```python
import torch

def _softmax(x, axis=-1):
    return torch.softmax(x, dim=axis)
def _gelu(x):
    return torch.nn.functional.gelu(x, approximate="tanh")
def _silu(x):
    return torch.nn.functional.silu(x)
def _sigmoid(x):
    return torch.sigmoid(x)
def _layernorm(x, axis=-1, eps=1e-5):
    m = x.mean(dim=axis, keepdim=True)
    v = x.var(dim=axis, keepdim=True, unbiased=False)
    return (x - m) / torch.sqrt(v + eps)
def _scatter_add(tgt, idx, src, axis=0):
    return tgt.clone().index_add_(axis, idx, src)
def _segment_sum(src, seg, n):
    out = torch.zeros((n,) + src.shape[1:], dtype=src.dtype)
    return out.index_add_(0, seg, src)
def _pad(x, pw):
    flat = tuple(v for pair in reversed(pw) for v in pair)
    return torch.nn.functional.pad(x, flat)

kernel_name = 'sequential_preLN__grouped_kv_mqa__moe_arch_mod__prompt'

def setup_inputs():

    _w = (lambda a: (lambda t: t.to(torch.bfloat16) if t.is_floating_point() else t)(torch.as_tensor(a)))
    def _A_setup():
        B, S, D, H = 1, 2048, 512, 32
        Dh = D // H
        return {
            "x": _w((lambda *s: torch.randn(*s, dtype=torch.bfloat16) * 0.05)(B, S, D)),
            "wq": _w((lambda *s: torch.randn(*s, dtype=torch.bfloat16) * 0.2)(D, H * Dh)),
            "wk": _w((lambda *s: torch.randn(*s, dtype=torch.bfloat16) * 0.2)(D, Dh)),
            "wv": _w((lambda *s: torch.randn(*s, dtype=torch.bfloat16) * 0.2)(D, Dh)),
            "wo": _w((lambda *s: torch.randn(*s, dtype=torch.bfloat16) * 0.2)(H * Dh, D)),
        }
    _A_in = _A_setup()

    def _B_setup():
        B, S, D, F, C = 1, 2048, 512, 1792, 2
        return {
            "x": _w((lambda *s: torch.randn(*s, dtype=torch.bfloat16) * 0.05)(B, S, D)),
            "w_r": _w((lambda *s: torch.randn(*s, dtype=torch.bfloat16) * 0.2)(D)),
            "w_gate": _w((lambda *s: torch.randn(*s, dtype=torch.bfloat16) * 0.2)(D, F)),
            "w_up": _w((lambda *s: torch.randn(*s, dtype=torch.bfloat16) * 0.2)(D, F)),
            "w_down": _w((lambda *s: torch.randn(*s, dtype=torch.bfloat16) * 0.2)(F, D)),
        }
    _B_in = _B_setup()

    return {
        "A_x": _A_in["x"],
        "A_wq": _A_in["wq"],
        "A_wk": _A_in["wk"],
        "A_wv": _A_in["wv"],
        "A_wo": _A_in["wo"],
        "B_x": _B_in["x"],
        "B_w_r": _B_in["w_r"],
        "B_w_gate": _B_in["w_gate"],
        "B_w_up": _B_in["w_up"],
        "B_w_down": _B_in["w_down"],
    }

def reference(A_x, A_wq, A_wk, A_wv, A_wo, B_x, B_w_r, B_w_gate, B_w_up, B_w_down):
    def _A_ref(x, wq, wk, wv, wo):
        B, S, D = x.shape
        H = 32
        Dh = D // H
        q = (lambda x, *d: x.permute(*d))((x @ wq).reshape(B, S, H, Dh), 0, 2, 1, 3)
        k = x @ wk
        v = x @ wv
        scores = torch.einsum("bhqd,bkd->bhqk", q, k) * (Dh ** -0.5)
        p = _softmax(scores, axis=-1)
        o = torch.einsum("bhqk,bkd->bhqd", p, v)
        return (lambda x, *d: x.permute(*d))(o, 0, 2, 1, 3).reshape(B, S, H * Dh) @ wo

    def _B_ref(x, w_r, w_gate, w_up, w_down):
        B, S, D = x.shape
        C = 2
        r = x @ w_r
        idx = torch.argsort(-r, axis=-1)[:, :C]
        idx_e = (lambda x, n, axis: torch.repeat_interleave(x, n, dim=axis))(idx.reshape(B, C, 1), D, axis=2)
        x_sel = (lambda x, i, axis: torch.take_along_dim(x, i, dim=axis))(x, idx_e, axis=1)
        g = _silu(x_sel @ w_gate)
        u = x_sel @ w_up
        y = (g * u) @ w_down
        r_sel = _sigmoid((lambda x, i, axis: torch.take_along_dim(x, i, dim=axis))(r, idx, axis=1))
        y = y * r_sel.reshape(B, C, 1)
        b_off = (torch.arange(B) * S).reshape(B, 1)
        flat_idx = (idx + b_off).reshape(B * C)
        zero = (x * 0.0).reshape(B * S, D)
        upd = _scatter_add(zero, flat_idx, y.reshape(B * C, D), axis=0)
        return x + upd.reshape(B, S, D)

    x = A_x
    h = x + _A_ref(_layernorm(x, axis=-1), A_wq, A_wk, A_wv, A_wo)
    h2 = h + _B_ref(_layernorm(h, axis=-1), B_w_r, B_w_gate, B_w_up, B_w_down)
    return h2
```

```python
import re

TRANS = ("v_exp_f32", "v_log_f32", "v_rcp_f32", "v_rsq_f32", "v_sqrt_f32", "v_sin_f32", "v_cos_f32",
         "v_exp_f16", "v_rcp_iflag_f32")

def regs_of(tok):
    tok = tok.strip()
    tok = re.sub(r"^-", "", tok)
    tok = re.sub(r"^abs\((.*)\)$", r"\1", tok)
    tok = tok.strip("|")
    m = re.fullmatch(r"([vsa])(\d+)", tok)
    if m:
        return {(m.group(1), int(m.group(2)))}
    m = re.fullmatch(r"([vsa])\[(\d+):(\d+)\]", tok)
    if m:
        return {(m.group(1), i) for i in range(int(m.group(2)), int(m.group(3)) + 1)}
    if tok in ("vcc", "vcc_lo", "vcc_hi"):
        return {("s", "vcc")}
    if tok in ("exec", "exec_lo", "exec_hi"):
        return {("s", "exec")}
    if tok == "m0":
        return {("s", "m0")}
    return set()

class Ins:
    def __init__(self, text):
        self.text = text
        body = text.split(";")[0].strip()
        parts = body.split(None, 1)
        self.op = parts[0]
        rest = parts[1] if len(parts) > 1 else ""
        ops = [o.strip() for o in re.split(r",(?![^\[]*\])", rest)] if rest else []
        mods = ""
        if ops:
            last = ops[-1].split(None, 1)
            ops[-1] = last[0]
            mods = last[1] if len(last) > 1 else ""
        self.ops, self.mods = ops, mods
        op = self.op
        self.is_mfma = op.startswith("v_mfma")
        self.is_valu = op.startswith("v_") and not self.is_mfma
        self.is_salu = op.startswith("s_")
        self.is_vmem = op.startswith(("buffer_", "global_", "flat_"))
        self.is_ds = op.startswith("ds_")
        self.is_trans = op.replace("_e32", "").replace("_e64", "") in TRANS
        self.is_dpp = ("dpp" in op) or ("row_" in mods) or ("quad_perm" in mods) or ("wave_" in mods)
        self.is_sdwa = "sdwa" in op
        self.is_perml = op.startswith("v_permlane")
        self.is_lds_dma = self.is_vmem and (" lds" in " " + mods or "load_lds" in op)
        R = [regs_of(o) for o in ops]
        self.defs, self.uses = set(), set()
        self.srcC = set(); self.srcAB = set()
        if self.is_mfma:
            self.defs = R[0]; self.srcAB = R[1] | R[2]; self.srcC = R[3]; self.uses = self.srcAB | self.srcC
            self.passes = 8 if "32x32" in op else 4
        elif self.is_valu:
            if op.startswith("v_cmp"):
                self.defs = R[0]; self.uses = set().union(*R[1:])
            elif self.is_perml and "swap" in op:
                self.defs = R[0] | R[1]; self.uses = R[0] | R[1]
            elif op.startswith(("v_add_co", "v_sub_co", "v_addc_co", "v_subb_co", "v_subrev_co")):
                self.defs = R[0] | R[1]; self.uses = set().union(*R[2:])
            elif op in ("v_nop",):
                pass
            else:
                self.defs = R[0]; self.uses = set().union(*R[1:]) if len(R) > 1 else set()
                if op.startswith(("v_fmac", "v_dot2c", "v_pk_fmac")) or "UNUSED_PRESERVE" in mods or self.is_dpp or op.startswith("v_writelane"):
                    self.uses |= R[0]
        elif self.is_vmem:
            if self.is_lds_dma:
                self.uses = set().union(*R) | {("s", "m0")}
            elif "store" in op or ("atomic" in op):
                self.uses = set().union(*R)
                if op.startswith("buffer_"):
                    self.store_data = R[0]
                else:
                    self.store_data = R[1]
                if "atomic" in op and "sc0" in mods:
                    self.defs = R[0]
            elif op.startswith(("buffer_inv", "buffer_wbl2")):
                pass
            else:
                self.defs = R[0]; self.uses = set().union(*R[1:])
        elif self.is_ds:
            if op.startswith(("ds_read", "ds_bpermute", "ds_permute", "ds_swizzle")) or "_rtn" in op:
                self.defs = R[0]; self.uses = set().union(*R[1:])
            else:
                self.uses = set().union(*R)
        elif self.is_salu:
            if op.startswith(("s_cmp", "s_cbranch", "s_branch", "s_waitcnt", "s_nop", "s_barrier", "s_endpgm", "s_setprio", "s_sleep", "s_bitcmp")):
                self.uses = set().union(*R) if R else set()
            else:
                self.defs = R[0] if R else set(); self.uses = set().union(*R[1:]) if len(R) > 1 else set()
                if "saveexec" in op:
                    self.defs |= {("s", "exec")}
        self.wide_store = self.is_vmem and ("store" in op) and op.endswith(("x3", "x4"))

    def states(self):
        if self.op == "s_nop":
            return int(self.ops[0], 0) + 1
        return 1

def need(p, c):
    n = 0
    vd = {r for r in p.defs if r[0] in "va"}
    sd = {r for r in p.defs if r[0] == "s"}
    if p.is_valu:
        if c.is_mfma and (vd & c.uses): n = max(n, 2)
        if c.is_valu:
            if p.is_trans and not c.is_trans and (vd & c.uses): n = max(n, 1)
            if (c.is_perml or c.is_dpp) and (vd & c.uses): n = max(n, 2)
            if c.op.startswith(("v_readlane", "v_readfirstlane")) and (vd & c.uses): n = max(n, 1)
            if (p.is_sdwa or "op_sel" in p.mods and not p.op.startswith("v_pk")) and (vd & (c.uses | c.defs)): n = max(n, 1)
            if sd & c.uses:
                n = max(n, 4 if c.op.startswith(("v_readlane", "v_writelane")) else 2)
            if ("s", "vcc") in sd and c.op.startswith(("v_cndmask", "v_addc", "v_subb", "v_div_fmas")): n = max(n, 4 if "div_fmas" in c.op else 2)
        if c.is_vmem and (sd & c.uses): n = max(n, 5)
        if p.op.startswith("v_dot") and (vd & (c.uses | c.defs)) and (c.is_valu or c.is_mfma or c.is_vmem or c.is_ds):
            same = (c.op == p.op)
            if same and len(c.ops) >= 4 and regs_of(c.ops[3]) == vd and not (vd & (regs_of(c.ops[1]) | regs_of(c.ops[2]))):
                pass
            else:
                n = max(n, 3)
    if p.is_mfma:
        big = p.passes == 8
        if c.is_mfma:
            if vd & c.srcAB: n = max(n, 12 if big else 8)
            if vd & c.srcC:
                if not (c.srcC == vd and c.passes == p.passes): n = max(n, 10 if big else 6)
            elif vd & c.defs: n = max(n, 12 if big else 8)
        elif c.is_valu or c.is_vmem or c.is_ds:
            if vd & (c.uses | c.defs): n = max(n, 12 if big else 8)
        if c.is_valu and (p.srcC & c.defs): n = max(n, 7 if big else 3)
        if (c.is_vmem or c.is_ds) and (p.srcC & c.defs): n = max(n, 7 if big else 3)
    if p.is_salu and ("s", "m0") in sd and c.is_lds_dma: n = max(n, 1)
    if p.wide_store and (p.store_data & c.defs): n = max(n, 2)
    return n

class Asm:
    def __init__(self):
        self.lines = []
    def __call__(self, text):
        for ln in text.strip("\n").split("\n"):
            s = ln.strip()
            if not s or s.startswith(";"):
                continue
            if s.endswith(":") or s.startswith("."):
                self.lines.append(s)
            else:
                self.lines.append(Ins(s))
    def label(self, name):
        self.lines.append(name + ":")
    def raw(self, s):
        self.lines.append(s)

    def fix(self, verbose=False):
        WIN = 14
        changed = True
        total = 0
        while changed:
            changed = False
            labels = {l[:-1]: i for i, l in enumerate(self.lines) if isinstance(l, str) and l.endswith(":")}
            preds = {}
            for i, l in enumerate(self.lines):
                if isinstance(l, Ins) and l.op.startswith(("s_cbranch", "s_branch")):
                    preds.setdefault(labels[l.ops[0]], []).append(i)
            def walk_back(i, dist, c, seen):
                miss = 0
                j = i - 1
                while j >= 0 and dist < WIN:
                    l = self.lines[j]
                    if isinstance(l, str):
                        if l.endswith(":"):
                            for b in preds.get(j, []):
                                if (b, dist) not in seen:
                                    seen.add((b, dist))
                                    miss = max(miss, walk_back(b + 1, dist, c, seen))
                        j -= 1
                        continue
                    if l.op in ("s_branch", "s_endpgm") and j != i - 1:
                        break
                    if l.op in ("s_branch", "s_endpgm") and j == i - 1 and not getattr(walk_back, "via", False):
                        pass
                    miss = max(miss, need(l, c) - dist)
                    dist += l.states()
                    j -= 1
                return miss
            for i, l in enumerate(self.lines):
                if isinstance(l, Ins):
                    m = walk_back(i, 0, l, set())
                    if m > 0:
                        if verbose: print("nop", m, "before", l.text)
                        self.lines.insert(i, Ins(f"s_nop {m-1}"))
                        total += m
                        changed = True
                        break
        return total

    def text(self):
        out = []
        for l in self.lines:
            out.append(("    " + l.text) if isinstance(l, Ins) else l)
        return "\n".join(out) + "\n"

def kernel_header(name):
    return f""".text
.globl {name}
.p2align 8
.type {name},@function
{name}:
"""

def kernel_desc(name, vgpr, sgpr=102, accum=None):
    accum = accum if accum is not None else (vgpr + 3) // 4 * 4
    return f""".section .rodata,"a"
.p2align 6
.amdhsa_kernel {name}
  .amdhsa_next_free_vgpr {vgpr}
  .amdhsa_next_free_sgpr {sgpr}
  .amdhsa_accum_offset {accum}
  .amdhsa_group_segment_fixed_size 0
  .amdhsa_kernarg_size 104
  .amdhsa_user_sgpr_count 2
  .amdhsa_user_sgpr_kernarg_segment_ptr 1
  .amdhsa_system_sgpr_workgroup_id_x 1
  .amdhsa_float_denorm_mode_32 3
.end_amdhsa_kernel
"""
```

```python
import sys, struct
sys.path.insert(0, "gen")
from asmlib import *

NAME = "sequential_preLN__grouped_kv_mqa__moe_arch_mod__prompt"
WS_Q    = 0x000000
WS_K    = 0x200000
WS_VT   = 0x210000
WS_KEY  = 0x220000
WS_SEL  = 0x221000
WS_YP   = 0x230000
WS_H    = 0x300000
WS_HN   = 0x500000
WS_SIZE = 0x700000

def f2u(x): return struct.unpack("<I", struct.pack("<f", x))[0]

def srd(a, d, lo, hi, size):
    a(f"""
    s_mov_b32 s{d}, s{lo}
    s_mov_b32 s{d+1}, s{hi}
    s_mov_b32 s{d+2}, {size:#x}
    s_mov_b32 s{d+3}, 0x00020000
    """)

def ln_scalars(a, vsum, vsq, vm, vrs, t0, t1, two_pass_var=False):
    a(f"v_mul_f32 v{t0}, {f2u(1/512):#x}, v{vsum}")
    a(f"v_mul_f32 v{t1}, {f2u(1/512):#x}, v{vsq}")
    if not two_pass_var:
        a(f"v_fma_f32 v{t1}, -v{t0}, v{t0}, v{t1}")
        a(f"v_max_f32 v{t1}, 0, v{t1}")
    a(f"""
    v_cvt_pk_bf16_f32 v{vm}, 0, v{t0}
    v_cvt_pk_bf16_f32 v{t1}, 0, v{t1}
    v_add_f32 v{t1}, {f2u(1e-5):#x}, v{t1}
    v_cvt_pk_bf16_f32 v{t1}, 0, v{t1}
    v_sqrt_f32 v{t1}, v{t1}
    v_cvt_pk_bf16_f32 v{t1}, 0, v{t1}
    v_rcp_f32 v{vrs}, v{t1}
    """)

def sum_swap(a, v, t, which):
    a(f"""
    v_mov_b32 v{t}, v{v}
    v_permlane{which}_swap_b32 v{t}, v{v}
    v_add_f32 v{v}, v{v}, v{t}
    """)

def gen_k1():
    a = Asm()
    X = 32
    ACC = 96
    AF = 116
    T = 148
    a(f"""
    s_cmp_ge_u32 s2, 256
    s_cbranch_scc1 K1_end
    s_load_dwordx4 s[24:27], s[0:1], 0
    s_load_dwordx4 s[28:31], s[0:1], 16
    s_load_dwordx2 s[32:33], s[0:1], 96
    s_and_b32 s3, s2, 7
    s_lshr_b32 s4, s2, 3
    s_and_b32 s5, s4, 7
    s_lshr_b32 s4, s4, 3
    s_lshl_b32 s3, s3, 2
    s_add_u32 s3, s3, s4
    v_lshrrev_b32 v1, 6, v0
    v_and_b32 v2, 63, v0           ; lane
    v_readfirstlane_b32 s6, v1     ; wave
    v_and_b32 v3, 15, v2           ; l & 15
    v_lshrrev_b32 v4, 4, v2        ; g
    s_lshl_b32 s7, s3, 6
    s_lshl_b32 s34, s6, 4
    s_add_u32 s7, s7, s34
    v_add_u32 v5, s7, v3           ; token
    v_lshlrev_b32 v6, 10, v5
    v_lshl_add_u32 v6, v4, 4, v6
    v_lshrrev_b32 v7, 3, v2        ; row_in
    v_and_b32 v8, 7, v2            ; slot
    v_and_b32 v9, 2, v7            ; ((row_in>>1)&1)<<1
    v_xor_b32 v8, v8, v9
    v_xor_b32 v9, 4, v8
    s_lshl_b32 s34, s6, 17
    s_lshl_b32 s35, s5, 7
    s_add_u32 s34, s34, s35
    v_lshlrev_b32 v7, 10, v7
    v_add_u32 v7, s34, v7
    v_lshl_add_u32 v10, v8, 4, v7
    v_lshl_add_u32 v11, v9, 4, v7
    s_waitcnt lgkmcnt(0)
    """)
    srd(a, 8, 24, 25, 0x200000)
    srd(a, 12, 26, 27, 0x80000)
    for s in range(16):
        a(f"buffer_load_dwordx4 v[{X+4*s}:{X+4*s+3}], v6, s[8:11], 0 offen offset:{64*s}")
    a("s_lshl_b32 s36, s6, 14")
    a("s_mov_b32 s37, 0")
    for i in range(16):
        a(f"s_add_u32 m0, s36, {i*1024}")
        a(f"buffer_load_dwordx4 v{10 + (i & 1)}, s[12:15], s37 offen lds")
        if i < 15: a(f"s_add_u32 s37, s37, 8192")
    a(f"""
    s_cmp_eq_u32 s5, 0
    s_cselect_b64 s[38:39], s[28:29], s[30:31]
    """)
    srd(a, 16, 38, 39, 0x4000)
    srd(a, 20, 32, 33, WS_SIZE)
    a(f"""
    s_cmp_gt_u32 s5, 1
    s_cbranch_scc1 K1_nokv
    v_lshlrev_b32 v12, 4, v0       ; tid*16
    s_lshl_b32 s36, s6, 10
    s_add_u32 s36, s36, 65536
    """)
    for i in range(4):
        a(f"s_add_u32 m0, s36, {i*4096}")
        a(f"s_mov_b32 s37, {i*4096}")
        a(f"buffer_load_dwordx4 v12, s[16:19], s37 offen lds")
    a.label("K1_nokv")
    a(f"""
    v_bfe_u32 v18, v2, 2, 2        ; r'
    v_and_b32 v19, 3, v2           ; c'
    v_lshl_add_u32 v20, v4, 3, v18 ; 8g + r'
    v_lshlrev_b32 v21, 7, v20
    v_lshl_add_u32 v21, v19, 3, v21   ; row*128 + 8c'
    v_lshrrev_b32 v22, 1, v18
    v_and_b32 v23, 1, v4
    v_lshl_or_b32 v22, v23, 1, v22 ; h
    """)
    for t in range(4):
        a(f"v_xor_b32 v23, {t}, v22")
        a(f"v_lshl_add_u32 v{13+t}, v23, 5, v21")
    a(f"""
    v_lshlrev_b32 v17, 5, v20
    v_lshl_add_u32 v17, v19, 3, v17
    v_add_u32 v17, 65536, v17
    v_mov_b32 v24, 0x3f803f80
    v_mov_b32 v25, 0
    v_mov_b32 v26, 0
    """)
    a("s_waitcnt vmcnt(16)")
    for r in range(64):
        a(f"v_dot2_f32_bf16 v25, v{X+r}, v24, v25")
        a(f"v_dot2_f32_bf16 v26, v{X+r}, v{X+r}, v26")
    for w in (16, 32):
        sum_swap(a, 25, 27, w)
        sum_swap(a, 26, 28, w)
    ln_scalars(a, 25, 26, 28, 30, 27, 29)
    for r in range(64):
        t = T + 2 * (r % 4)
        a(f"""
        v_lshlrev_b32 v{t}, 16, v{X+r}
        v_and_b32 v{t+1}, 0xffff0000, v{X+r}
        v_pk_add_f32 v[{t}:{t+1}], v[{t}:{t+1}], v[28:29] op_sel_hi:[1,0] neg_lo:[0,1] neg_hi:[0,1]
        v_cvt_pk_bf16_f32 v{t}, 0, v{t}
        v_cvt_pk_bf16_f32 v{t+1}, 0, v{t+1}
        v_pk_mul_f32 v[{t}:{t+1}], v[{t}:{t+1}], v[30:31] op_sel_hi:[1,0]
        v_cvt_pk_bf16_f32 v{X+r}, v{t}, v{t+1}
        """)
    a("s_waitcnt vmcnt(0)")
    a("s_barrier")
    def rd(s, buf):
        for t in range(4):
            for half in range(2):
                d = AF + 16 * buf + 4 * t + 2 * half
                a(f"ds_read_b64_tr_b16 v[{d}:{d+1}], v{13+t} offset:{s*4096 + half*512}")
    rd(0, 0)
    for s in range(16):
        if s < 15:
            rd(s + 1, (s + 1) & 1)
            a("s_waitcnt lgkmcnt(8)")
        else:
            a("s_waitcnt lgkmcnt(0)")
        for t in range(4):
            d = AF + 16 * (s & 1) + 4 * t
            c = "0" if s == 0 else f"v[{ACC+4*t}:{ACC+4*t+3}]"
            a(f"v_mfma_f32_16x16x32_bf16 v[{ACC+4*t}:{ACC+4*t+3}], v[{d}:{d+3}], v[{X+4*s}:{X+4*s+3}], {c}")
    a(f"""
    s_lshl_b32 s35, s5, 7
    v_lshlrev_b32 v7, 10, v5
    v_lshl_add_u32 v7, v4, 3, v7
    v_add_u32 v7, s35, v7
    """)
    for t in range(4):
        a(f"v_cvt_pk_bf16_f32 v{T+2*t}, v{ACC+4*t}, v{ACC+4*t+1}")
        a(f"v_cvt_pk_bf16_f32 v{T+2*t+1}, v{ACC+4*t+2}, v{ACC+4*t+3}")
        a(f"buffer_store_dwordx2 v[{T+2*t}:{T+2*t+1}], v7, s[20:23], 0 offen offset:{32*t}")
    a(f"""
    s_cmp_gt_u32 s5, 1
    s_cbranch_scc1 K1_end
    """)
    KV = ACC + 16
    for hb in range(2):
        for s8 in range(8):
            s = hb * 8 + s8
            for half in range(2):
                d = AF + 4 * s8 + 2 * half
                a(f"ds_read_b64_tr_b16 v[{d}:{d+1}], v17 offset:{s*1024 + half*128}")
        a("s_waitcnt lgkmcnt(0)")
        a("s_cmp_eq_u32 s5, 0")
        a(f"s_cbranch_scc0 K1_v{hb}")
        for s8 in range(8):
            s = hb * 8 + s8
            c = "0" if s == 0 else f"v[{KV}:{KV+3}]"
            a(f"v_mfma_f32_16x16x32_bf16 v[{KV}:{KV+3}], v[{AF+4*s8}:{AF+4*s8+3}], v[{X+4*s}:{X+4*s+3}], {c}")
        a(f"s_branch K1_j{hb}")
        a.label(f"K1_v{hb}")
        for s8 in range(8):
            s = hb * 8 + s8
            c = "0" if s == 0 else f"v[{KV}:{KV+3}]"
            a(f"v_mfma_f32_16x16x32_bf16 v[{KV}:{KV+3}], v[{X+4*s}:{X+4*s+3}], v[{AF+4*s8}:{AF+4*s8+3}], {c}")
        a.label(f"K1_j{hb}")
    a(f"""
    v_lshlrev_b32 v7, 5, v5
    v_lshl_add_u32 v7, v4, 3, v7
    v_add_u32 v7, {WS_K:#x}, v7
    s_lshl_b32 s35, s7, 5
    s_add_u32 s35, s35, {WS_VT:#x}
    v_and_b32 v8, 1, v4
    v_lshlrev_b32 v8, 8, v8
    v_lshl_add_u32 v8, v3, 4, v8
    v_lshrrev_b32 v9, 1, v4
    v_lshl_add_u32 v8, v9, 3, v8
    v_add_u32 v8, s35, v8
    s_cmp_eq_u32 s5, 0
    s_cselect_b64 vcc, -1, 0
    v_cndmask_b32 v7, v8, v7, vcc
    v_cvt_pk_bf16_f32 v{T}, v{KV}, v{KV+1}
    v_cvt_pk_bf16_f32 v{T+1}, v{KV+2}, v{KV+3}
    buffer_store_dwordx2 v[{T}:{T+1}], v7, s[20:23], 0 offen
    """)
    a.label("K1_end")
    a("s_endpgm")
    a.fix()
    return a.text(), 160, 81920

KERNELS = []

def build(kernels, path):
    hdr = open(f"cdna_kernels/{NAME}.s.ref").read().split("\n")
    out = []
    for ln in hdr:
        if ln.startswith("; Override") : break
        out.append(ln)
    for (name, text, vg, lds, grid, block) in kernels:
        out.append(f"; @launch kernel={name} grid=({grid},1,1) block=({block},1,1) lds={lds}")
    out.append('.amdgcn_target "amdgcn-amd-amdhsa--gfx950"')
    seen = set()
    for (name, text, vg, lds, grid, block) in kernels:
        if name in seen: continue
        seen.add(name)
        out.append(kernel_header(name) + text)
    seen = set()
    for (name, text, vg, lds, grid, block) in kernels:
        if name in seen: continue
        seen.add(name)
        out.append(kernel_desc(name, vg))
    open(path, "w").write("\n".join(out))

if __name__ == "__main__":
    t1, v1, l1 = gen_k1()
    ks = [("k1_kernel", t1, v1, l1, 256, 256)]
    build(ks, sys.argv[1] if len(sys.argv) > 1 else f"cdna_kernels/{NAME}.s")
```

```python
from gen import *

L_WO = 0x0; L_PART = 0x10000; L_Q = 0x16000; L_MREF = 0x18400; L_OB = 0x1A800; L_KEY = 0x1AC00; L_MX = 0x1B000
L_TOTAL = 0x1B400
C_EXACT = 0.25 * 1.4426950408889634
C_BF16 = 0.361328125
OFFS = 64.0

def wave_sum(a, v, t):
    for mod in ("quad_perm:[1,0,3,2]", "quad_perm:[2,3,0,1]", "row_half_mirror", "row_mirror"):
        a(f"v_add_f32_dpp v{v}, v{v}, v{v} {mod} row_mask:0xf bank_mask:0xf")
    sum_swap(a, v, t, 16)
    sum_swap(a, v, t, 32)

def gen_k2(ROUND=True, stamp=False):
    a = Asm()
    K = 16; V = 48; S = 112; X = [128, 144]; O = 160; CM = 176; SP = 192; I0 = 200; I1 = 204; Q = 208
    OA = 212; AF = 228; BF = 244
    vQA, vPW, vPR, vPL, vOW, vOR, vLM = 1, 2, 3, 4, 5, 6, 7
    vWA = 8
    vWD = 12
    t0, t1, t2, t3, t4, t5 = 14, 15, 252, 253, 254, 255
    cval = C_BF16 if ROUND else C_EXACT
    a(f"""
    s_cmp_ge_u32 s2, 256
    s_cbranch_scc1 K2_end
    s_load_dwordx2 s[40:41], s[0:1], 0
    s_load_dwordx2 s[42:43], s[0:1], 32
    s_load_dwordx2 s[44:45], s[0:1], 48
    s_load_dwordx2 s[46:47], s[0:1], 80
    s_load_dwordx2 s[48:49], s[0:1], 96
    s_and_b32 s3, s2, 7
    s_lshr_b32 s4, s2, 3
    s_lshl_b32 s7, s3, 8
    s_lshl_b32 s5, s4, 3
    s_add_u32 s7, s7, s5           ; T0
    s_and_b32 s28, s4, 7           ; rot
    v_lshrrev_b32 v{t0}, 6, v0
    v_and_b32 v0, 63, v0
    v_readfirstlane_b32 s6, v{t0}
    s_mov_b32 s30, 0
    s_waitcnt lgkmcnt(0)
    """)
    srd(a, 8, 48, 49, WS_SIZE)
    srd(a, 12, 42, 43, 0x80000)
    srd(a, 16, 40, 41, 0x200000)
    srd(a, 20, 46, 47, 0x200000)
    srd(a, 24, 44, 45, 0x400)
    a.label("K2_restart")
    a(f"""
    s_add_u32 s3, s6, s28
    s_and_b32 s3, s3, 7
    s_lshl_b32 s3, s3, 7
    s_lshl_b32 s4, s7, 10
    s_add_u32 s3, s3, s4
    v_and_b32 v{t0}, 7, v0
    v_lshlrev_b32 v{t0}, 10, v{t0}
    v_bfe_u32 v{t1}, v0, 3, 2
    v_lshl_add_u32 v{t0}, v{t1}, 5, v{t0}
    v_lshrrev_b32 v{t2}, 5, v0     ; hh
    v_lshl_add_u32 v{t0}, v{t2}, 4, v{t0}
    buffer_load_dwordx4 v[{Q}:{Q+3}], v{t0}, s[8:11], s3 offen
    """)
    a(f"""
    v_and_b32 v{t1}, 31, v0
    v_lshlrev_b32 v{t0}, 5, v{t1}
    v_lshl_add_u32 v{t0}, v{t2}, 4, v{t0}
    s_lshl_b32 s3, s6, 13
    s_add_u32 s4, s3, {WS_K:#x}
    s_add_u32 s5, s4, 4096
    """)
    for t in range(8):
        a(f"buffer_load_dwordx4 v[{K+4*t}:{K+4*t+3}], v{t0}, s[8:11], s{4 if t < 4 else 5} offen offset:{1024*(t&3)}")
    for r in range(64):
        a(f"v_mov_b32 v{V+r}, 0x3f803f80")
    a(f"""
    v_and_b32 v{t0}, 15, v0
    v_lshlrev_b32 v{t0}, 4, v{t0}
    v_lshl_add_u32 v{t0}, v{t2}, 8, v{t0}
    s_add_u32 s4, s3, {WS_VT:#x}
    s_add_u32 s5, s4, 4096
    s_mov_b32 exec_lo, 0xffff
    s_mov_b32 exec_hi, 0xffff
    """)
    for t in range(16):
        a(f"buffer_load_dwordx4 v[{V+4*t}:{V+4*t+3}], v{t0}, s[8:11], s{4 if t < 8 else 5} offen offset:{512*(t&7)}")
    a("s_mov_b64 exec, -1")
    a(f"""
    v_lshrrev_b32 v{t0}, 3, v0     ; row_in
    v_and_b32 v{t1}, 7, v0
    v_and_b32 v{t3}, 2, v{t0}
    v_xor_b32 v{t1}, v{t1}, v{t3}
    v_xor_b32 v{t3}, 4, v{t1}
    s_lshl_b32 s3, s6, 7
    v_lshlrev_b32 v{t0}, 10, v{t0}
    v_add_u32 v{t0}, s3, v{t0}
    v_lshl_add_u32 v{vWD}, v{t1}, 4, v{t0}
    v_lshl_add_u32 v{vWD+1}, v{t3}, 4, v{t0}
    s_lshl_b32 s34, s6, 13
    s_lshl_b32 s31, s28, 16
    """)
    def wo_dma():
        for i in range(8):
            a(f"s_add_u32 m0, s34, {L_WO + i*1024}")
            a(f"s_add_u32 s35, s31, {i*8192}")
            a(f"buffer_load_dwordx4 v{vWD + (i & 1)}, s[12:15], s35 offen lds")
        a("s_add_u32 s31, s31, 0x10000")
        a("s_and_b32 s31, s31, 0x7ffff")
    wo_dma()
    a(f"""
    v_lshlrev_b32 v{vQA}, 4, v0
    v_add_u32 v{vQA}, {L_Q:#x}, v{vQA}
    v_and_b32 v{t1}, 31, v0
    v_mul_u32_u24 v{vPW}, 96, v{t1}
    v_lshl_add_u32 v{vPW}, v{t2}, 4, v{vPW}
    s_mul_i32 s3, s6, 3072
    s_add_u32 s3, s3, {L_PART:#x}
    v_add_u32 v{vPW}, s3, v{vPW}
    v_lshrrev_b32 v{t0}, 4, v0     ; g
    s_lshl_b32 s3, s6, 2
    v_add_u32 v{t1}, s3, v{t0}     ; n = 4w + g
    v_mul_u32_u24 v{vPL}, 96, v{t1}
    v_add_u32 v{vPL}, {L_PART:#x}, v{vPL}
    v_and_b32 v{t3}, 15, v0        ; d
    v_lshl_add_u32 v{vPR}, v{t3}, 2, v{vPL}
    v_add_u32 v{vPL}, 64, v{vPL}
    v_and_b32 v{t4}, 7, v{t1}      ; token
    v_lshrrev_b32 v{t1}, 3, v{t1}  ; head_local
    v_lshlrev_b32 v{vOW}, 7, v{t4}
    v_lshl_add_u32 v{vOW}, v{t1}, 5, v{vOW}
    v_lshl_add_u32 v{vOW}, v{t3}, 1, v{vOW}
    v_add_u32 v{vOW}, {L_OB:#x}, v{vOW}
    v_and_b32 v{t4}, 7, v0
    v_lshlrev_b32 v{vOR}, 7, v{t4}
    v_lshl_add_u32 v{vOR}, v{t0}, 4, v{vOR}
    v_add_u32 v{vOR}, {L_OB:#x}, v{vOR}
    v_bfe_u32 v{t1}, v0, 2, 2      ; r'
    v_and_b32 v{t3}, 3, v0         ; c'
    v_lshl_add_u32 v{t4}, v{t0}, 3, v{t1}
    v_lshlrev_b32 v{t4}, 7, v{t4}
    v_lshl_add_u32 v{t4}, v{t3}, 3, v{t4}
    v_add_u32 v{t4}, s34, v{t4}
    v_lshrrev_b32 v{t1}, 1, v{t1}
    v_and_b32 v{t0}, 1, v{t0}
    v_lshl_or_b32 v{t1}, v{t0}, 1, v{t1}
    """)
    for t in range(4):
        a(f"v_xor_b32 v{t0}, {t}, v{t1}")
        a(f"v_lshl_add_u32 v{vWA+t}, v{t0}, 5, v{t4}")
    a(f"v_mov_b32 v{vLM}, 0")
    for r in range(16):
        a(f"v_mov_b32 v{OA+r}, 0")
    if ROUND:
        a(f"""
        v_and_b32 v{t0}, 1, v0
        v_lshlrev_b32 v{t0}, 4, v{t0}
        v_mov_b32 v{t1}, 0x3eb9
        v_lshlrev_b32 v{t0}, v{t0}, v{t1}      ; value
        v_bfe_u32 v{t1}, v0, 1, 1
        v_bfe_u32 v{t3}, v0, 3, 2
        v_lshl_add_u32 v{t1}, v{t3}, 1, v{t1}  ; idx
        v_bfe_u32 v{t3}, v0, 2, 1
        v_xor_b32 v{t3}, v{t3}, v{t2}
        v_lshl_add_u32 v{t1}, v{t3}, 4, v{t1}
        """)
        for k in range(8):
            a(f"v_cmp_eq_u32 vcc, {k}, v{t1}")
            a(f"v_cndmask_b32 v{I0+k}, 0, v{t0}, vcc")
    a("s_waitcnt vmcnt(32)")
    if not ROUND:
        for r in range(4):
            a(f"""
            v_lshlrev_b32 v{t0}, 16, v{Q+r}
            v_and_b32 v{t1}, 0xffff0000, v{Q+r}
            v_mul_f32 v{t0}, {f2u(cval):#x}, v{t0}
            v_mul_f32 v{t1}, {f2u(cval):#x}, v{t1}
            v_cvt_pk_bf16_f32 v{Q+r}, v{t0}, v{t1}
            """)
    a(f"""
    s_lshl_b32 s3, s6, 10
    v_add_u32 v{t3}, s3, v{vQA}
    ds_write_b128 v{t3}, v[{Q}:{Q+3}]
    s_cmp_lg_u32 s30, 0
    s_cbranch_scc1 K2_safe
    s_waitcnt vmcnt(30)
    v_mfma_f32_32x32x16_bf16 v[{S}:{S+15}], v[{K}:{K+3}], v[{Q}:{Q+3}], 0
    v_mfma_f32_32x32x16_bf16 v[{X[0]}:{X[0]+15}], v[{K+4}:{K+7}], v[{Q}:{Q+3}], 0
    """)
    a(f"v_max3_f32 v{t0}, v{S}, v{S+1}, v{S+2}")
    for r in range(3, 15, 2):
        a(f"v_max3_f32 v{t0}, v{t0}, v{S+r}, v{S+r+1}")
    a(f"v_max3_f32 v{t0}, v{t0}, v{S+15}, v{X[0]}")
    for r in range(1, 15, 2):
        a(f"v_max3_f32 v{t0}, v{t0}, v{X[0]+r}, v{X[0]+r+1}")
    a(f"""
    v_max_f32 v{t0}, v{t0}, v{X[0]+15}
    v_mov_b32 v{t1}, v{t0}
    v_permlane32_swap_b32 v{t1}, v{t0}
    v_max_f32 v{t0}, v{t0}, v{t1}
    v_mov_b32 v{t1}, {f2u(-OFFS):#x}
    s_branch K2_mref
    """)
    a.label("K2_safe")
    a(f"""
    v_and_b32 v{t0}, 31, v0
    v_lshlrev_b32 v{t4}, 2, v{t0}
    v_add_u32 v{t4}, {L_MX:#x}, v{t4}
    s_lshl_b32 s3, s6, 7
    v_add_u32 v{t5}, s3, v{t4}
    v_mov_b32 v{t0}, 0xff800000
    ds_write_b32 v{t5}, v{t0}
    s_waitcnt vmcnt(24) lgkmcnt(0)
    s_barrier
    v_mov_b32 v{t1}, v{vQA}
    s_mov_b32 s29, 0
    """)
    a.label("K2_safe_loop")
    a(f"""
    ds_read_b128 v[{BF}:{BF+3}], v{t1}
    v_mov_b32 v{t0}, 0xff800000
    s_waitcnt lgkmcnt(0)
    """)
    for t in range(8):
        a(f"v_mfma_f32_32x32x16_bf16 v[{S}:{S+15}], v[{K+4*t}:{K+4*t+3}], v[{BF}:{BF+3}], 0")
        for r in range(0, 16, 2):
            a(f"v_max3_f32 v{t0}, v{t0}, v{S+r}, v{S+r+1}")
    a(f"""
    ds_max_f32 v{t4}, v{t0}
    v_add_u32 v{t1}, 1024, v{t1}
    v_add_u32 v{t4}, 128, v{t4}
    s_add_u32 s29, s29, 1
    s_cmp_lt_u32 s29, 8
    s_cbranch_scc1 K2_safe_loop
    s_waitcnt lgkmcnt(0)
    s_barrier
    ds_read_b32 v{t0}, v{t5}
    v_mov_b32 v{t1}, 0
    s_waitcnt lgkmcnt(0)
    """)
    a.label("K2_mref")
    if ROUND:
        a(f"v_cvt_pk_bf16_f32 v{t0}, 0, v{t0}")
        a(f"v_fmamk_f32 v{BF}, v{t0}, {f2u(-cval):#x}, v{t1}")
    else:
        a(f"v_sub_f32 v{BF}, v{t1}, v{t0}")
    a(f"""
    v_mov_b32 v{BF+1}, v{BF}
    v_mov_b32 v{BF+2}, v{BF}
    v_mov_b32 v{BF+3}, v{BF}
    ds_write_b128 v{t3}, v[{BF}:{BF+3}] offset:{L_MREF - L_Q}
    s_waitcnt lgkmcnt(0)
    s_barrier
    """)
    def rd_q():
        a(f"ds_read_b128 v[{Q}:{Q+3}], v{vQA}")
    def rd_cm():
        for k in range(4):
            a(f"ds_read_b128 v[{CM+4*k}:{CM+4*k+3}], v{vQA} offset:{L_MREF - L_Q}")
        a(f"v_add_u32 v{vQA}, 1024, v{vQA}")
    mf = "v_mfma_f32_32x32x16_bf16"
    def M1(kt):
        a(f"{mf} v[{S}:{S+15}], v[{K+4*kt}:{K+4*kt+3}], v[{Q}:{Q+3}], 0")
    def M1n(kt, xb):
        a(f"{mf} v[{X[xb]}:{X[xb]+15}], v[{K+4*kt}:{K+4*kt+3}], v[{Q}:{Q+3}], v[{CM}:{CM+15}]")
    def C1(h):
        for k in range(4):
            a(f"v_cvt_pk_bf16_f32 v{SP+4*h+k}, v{S+8*h+2*k}, v{S+8*h+2*k+1}")
    def M2(h, xb):
        c = f"v[{CM}:{CM+15}]" if h == 0 else f"v[{X[xb]}:{X[xb]+15}]"
        I = I0 if h == 0 else I1
        a(f"{mf} v[{X[xb]}:{X[xb]+15}], v[{I}:{I+3}], v[{SP+4*h}:{SP+4*h+3}], {c}")
    def E(xb, lo, hi):
        for r in range(lo, hi):
            a(f"v_exp_f32 v{X[xb]+r}, v{X[xb]+r}")
    def C2(h, xb):
        for k in range(4):
            a(f"v_cvt_pk_bf16_f32 v{SP+4*h+k}, v{X[xb]+8*h+2*k}, v{X[xb]+8*h+2*k+1}")
    def M3(h, kt, first=False):
        c = "0" if first else f"v[{O}:{O+15}]"
        a(f"{mf} v[{O}:{O+15}], v[{V+8*kt+4*h}:{V+8*kt+4*h+3}], v[{SP+4*h}:{SP+4*h+3}], {c}")
    def part_write():
        a(f"""
        ds_write_b128 v{vPW}, v[{O}:{O+3}]
        ds_write_b128 v{vPW}, v[{O+4}:{O+7}] offset:32
        """)
        a(f"ds_write_b32 v{vPW}, v{O+8} offset:64")
    def s1_read():
        for k in range(4):
            a(f"ds_read2st64_b32 v[{AF+2*k}:{AF+2*k+1}], v{vPR} offset0:{24*k} offset1:{24*k+12}")
        for k in range(4):
            a(f"ds_read2st64_b32 v[{AF+8+2*k}:{AF+8+2*k+1}], v{vPL} offset0:{24*k} offset1:{24*k+12}")
    def s1_calc():
        for b in (AF, AF + 8):
            a(f"""
            v_add_f32 v{b}, v{b}, v{b+1}
            v_add_f32 v{b+2}, v{b+2}, v{b+3}
            v_add_f32 v{b+4}, v{b+4}, v{b+5}
            v_add_f32 v{b+6}, v{b+6}, v{b+7}
            v_add_f32 v{b}, v{b}, v{b+2}
            v_add_f32 v{b+4}, v{b+4}, v{b+6}
            v_add_f32 v{b}, v{b}, v{b+4}
            """)
        a(f"""
        v_rcp_f32 v{AF+1}, v{AF+8}
        v_max_f32 v{vLM}, v{vLM}, v{AF+8}
        v_mul_f32 v{AF}, v{AF}, v{AF+1}
        v_cvt_pk_bf16_f32 v{AF}, v{AF}, v{AF}
        ds_write_b16 v{vOW}, v{AF}
        """)
    def s2_read(s):
        a(f"ds_read_b128 v[{BF+4*s}:{BF+4*s+3}], v{vOR} offset:{64*s}")
        for t in range(4):
            for half in range(2):
                d = AF + 4 * t + 2 * half
                a(f"ds_read_b64_tr_b16 v[{d}:{d+1}], v{vWA+t} offset:{s*4096 + half*512}")
    def s2_mma(s):
        for t in range(4):
            a(f"v_mfma_f32_16x16x32_bf16 v[{OA+4*t}:{OA+4*t+3}], v[{AF+4*t}:{AF+4*t+3}], v[{BF+4*s}:{BF+4*s+3}], v[{OA+4*t}:{OA+4*t+3}]")
    uid = [0]
    def skip0(body):
        uid[0] += 1
        a("s_cmp_eq_u32 s29, 0")
        a(f"s_cbranch_scc1 K2_sk{uid[0]}")
        body()
        a.label(f"K2_sk{uid[0]}")
    rd_q(); rd_cm()
    a("s_waitcnt vmcnt(8) lgkmcnt(0)")
    if ROUND:
        M1(0); C1(0); C1(1); M2(0, 0); M2(1, 0); M1(1)
    else:
        M1n(0, 0)
    a("s_mov_b32 s29, 0")
    a.raw(".p2align 3")
    a.label("K2_round")
    def hook(i, pos):
        if i == 0 and pos == 1: skip0(part_write)
        if i == 0 and pos == 2:
            def f():
                a("s_waitcnt lgkmcnt(0)"); a("s_barrier"); s1_read()
            skip0(f)
        if i == 1 and pos == 1:
            def f():
                a("s_waitcnt lgkmcnt(0)"); s1_calc()
            skip0(f)
        if i == 2 and pos == 0:
            def f():
                a("s_waitcnt vmcnt(0) lgkmcnt(0)"); a("s_barrier"); s2_read(0)
            skip0(f)
        if i == 2 and pos == 2:
            def f():
                a("s_waitcnt lgkmcnt(0)"); s2_mma(0); s2_read(1)
            skip0(f)
        if i == 3 and pos == 2:
            def f():
                a("s_waitcnt lgkmcnt(0)"); s2_mma(1); wo_dma()
            skip0(f)
    for i in range(8):
        xb = i & 1; xn = xb ^ 1
        if ROUND:
            C1(0)
            M3(1, (i - 1) & 7)
            C1(1); E(xb, 0, 2)
            if i == 7: a("s_waitcnt lgkmcnt(0)")
            M2(0, xn)
            hook(i, 0)
            E(xb, 2, 7)
            M2(1, xn)
            E(xb, 7, 8); C2(0, xb); E(xb, 8, 10)
            if i == 6: rd_cm()
            hook(i, 1)
            if i == 6: a("s_waitcnt lgkmcnt(4)")
            M1((i + 2) & 7)
            if i == 5: rd_q()
            E(xb, 10, 15)
            M3(0, i, first=(i == 0))
            hook(i, 2)
            E(xb, 15, 16); C2(1, xb)
        else:
            E(xb, 0, 2)
            M3(1, (i - 1) & 7)
            E(xb, 2, 8)
            if i == 7: a("s_waitcnt lgkmcnt(0)")
            M1n((i + 1) & 7, xn)
            hook(i, 0)
            C2(0, xb); E(xb, 8, 12)
            if i == 6: rd_q(); rd_cm()
            hook(i, 1)
            M3(0, i, first=(i == 0))
            hook(i, 2)
            E(xb, 12, 16); C2(1, xb)
    a(f"""
    s_add_u32 s29, s29, 1
    s_cmp_lt_u32 s29, 8
    s_cbranch_scc1 K2_round
    """)
    M3(1, 7)
    XR = K; WR = K + 4; HV = K + 8; HN = K + 16; PK = K + 24
    a(f"""
    s_add_u32 s3, s7, s6
    s_lshl_b32 s4, s3, 10
    v_lshlrev_b32 v{t5}, 4, v0
    buffer_load_dwordx4 v[{XR}:{XR+3}], v{t5}, s[16:19], s4 offen
    buffer_load_dwordx4 v[{WR}:{WR+3}], v{t5}, s[24:27], 0 offen
    """)
    part_write()
    a("s_waitcnt lgkmcnt(0)"); a("s_barrier"); s1_read()
    a("s_waitcnt lgkmcnt(0)"); s1_calc()
    a("s_waitcnt vmcnt(2) lgkmcnt(0)"); a("s_barrier"); s2_read(0)
    a("s_waitcnt lgkmcnt(0)"); s2_mma(0); s2_read(1)
    a("s_waitcnt lgkmcnt(0)"); s2_mma(1)
    a(f"""
    v_and_b32 v{t0}, 7, v0
    v_mul_u32_u24 v{t0}, 1040, v{t0}
    v_lshrrev_b32 v{t1}, 4, v0
    v_lshl_add_u32 v{t0}, v{t1}, 3, v{t0}
    s_lshl_b32 s5, s6, 7
    s_add_u32 s5, s5, {L_PART:#x}
    v_add_u32 v{t0}, s5, v{t0}
    s_mul_i32 s5, s6, 1040
    s_add_u32 s5, s5, {L_PART:#x}
    v_add_u32 v{t1}, s5, v{t5}
    """)
    for t in range(4):
        a(f"v_cvt_pk_bf16_f32 v{AF+2*t}, v{OA+4*t}, v{OA+4*t+1}")
        a(f"v_cvt_pk_bf16_f32 v{AF+2*t+1}, v{OA+4*t+2}, v{OA+4*t+3}")
        a(f"ds_write_b64 v{t0}, v[{AF+2*t}:{AF+2*t+1}] offset:{32*t}")
    a(f"""
    s_waitcnt lgkmcnt(0)
    s_barrier
    ds_read_b128 v[{BF}:{BF+3}], v{t1}
    s_waitcnt vmcnt(0) lgkmcnt(0)
    """)
    for r in range(4):
        a(f"""
        v_lshlrev_b32 v{HV+2*r}, 16, v{XR+r}
        v_and_b32 v{HV+2*r+1}, 0xffff0000, v{XR+r}
        v_lshlrev_b32 v{t0}, 16, v{BF+r}
        v_and_b32 v{t1}, 0xffff0000, v{BF+r}
        v_add_f32 v{HV+2*r}, v{HV+2*r}, v{t0}
        v_add_f32 v{HV+2*r+1}, v{HV+2*r+1}, v{t1}
        v_cvt_pk_bf16_f32 v{HV+2*r}, 0, v{HV+2*r}
        v_cvt_pk_bf16_f32 v{HV+2*r+1}, 0, v{HV+2*r+1}
        """)
    a(f"v_add_f32 v{t0}, v{HV}, v{HV+1}")
    for r in range(2, 8):
        a(f"v_add_f32 v{t0}, v{t0}, v{HV+r}")
    wave_sum(a, t0, t1)
    a(f"v_mul_f32 v{t3}, {f2u(1/512):#x}, v{t0}")
    a(f"v_mov_b32 v{t2}, 0")
    for r in range(8):
        a(f"v_sub_f32 v{t1}, v{HV+r}, v{t3}")
        a(f"v_fmac_f32 v{t2}, v{t1}, v{t1}")
    wave_sum(a, t2, t1)
    a(f"v_mov_b32 v{S}, v{t2}")
    ln_scalars(a, t0, t2, S + 1, S + 2, t1, t3, two_pass_var=True)
    a(f"v_mov_b32 v{t2}, 0")
    for r in range(8):
        a(f"""
        v_sub_f32 v{HN+r}, v{HV+r}, v{S+1}
        v_cvt_pk_bf16_f32 v{HN+r}, 0, v{HN+r}
        v_mul_f32 v{HN+r}, v{HN+r}, v{S+2}
        v_cvt_pk_bf16_f32 v{HN+r}, 0, v{HN+r}
        """)
        if r & 1: a(f"v_and_b32 v{t0}, 0xffff0000, v{WR+r//2}")
        else:     a(f"v_lshlrev_b32 v{t0}, 16, v{WR+r//2}")
        a(f"v_fmac_f32 v{t2}, v{HN+r}, v{t0}")
    for r in range(4):
        a(f"""
        v_add_f32 v{t0}, v{HV+2*r}, v{HN+2*r}
        v_add_f32 v{t1}, v{HV+2*r+1}, v{HN+2*r+1}
        v_cvt_pk_bf16_f32 v{PK+r}, v{t0}, v{t1}
        """)
    a(f"buffer_store_dwordx4 v[{PK}:{PK+3}], v{t5}, s[20:23], s4 offen")
    wave_sum(a, t2, t1)
    a(f"""
    v_cvt_pk_bf16_f32 v{t2}, 0, v{t2}
    v_ashrrev_i32 v{t0}, 31, v{t2}
    v_or_b32 v{t0}, 0x80000000, v{t0}
    v_xor_b32 v{t2}, v{t2}, v{t0}
    v_and_b32 v{t2}, 0xffff0000, v{t2}
    s_sub_u32 s5, 0xffff, s3
    v_or_b32 v{t2}, s5, v{t2}      ; key
    v_mov_b32 v{t0}, {f2u(2.0**100):#x}
    v_cmp_nlt_f32 vcc, v{vLM}, v{t0}
    v_cmp_nlt_f32 s[36:37], v{S}, v{t0}
    s_or_b64 vcc, vcc, s[36:37]
    s_cmp_lg_u64 vcc, 0
    s_cselect_b32 s5, 1, 0
    v_mov_b32 v{t3}, s5
    s_lshl_b32 s35, s6, 2
    s_add_u32 s35, s35, {L_KEY:#x}
    v_mov_b32 v{t0}, s35
    ds_write_b32 v{t0}, v{t2}
    ds_write_b32 v{t0}, v{t3} offset:32
    v_and_b32 v{t1}, 15, v0
    v_lshlrev_b32 v{t1}, 2, v{t1}
    v_add_u32 v{t1}, {L_KEY:#x}, v{t1}
    s_waitcnt lgkmcnt(0)
    s_barrier
    ds_read_b32 v{t3}, v{t1}
    s_waitcnt lgkmcnt(0)
    v_cmp_gt_u32 vcc, v{t3}, v{t2}
    v_cmp_ne_u32 s[36:37], 0, v{t3}
    s_and_b32 s38, vcc_lo, 0xff
    s_bcnt1_i32_b32 s38, s38       ; rank
    s_and_b32 s36, s36, 0xff00
    s_cmp_eq_u32 s36, 0
    s_cbranch_scc1 K2_fin
    s_cmp_lg_u32 s30, 0
    s_cbranch_scc1 K2_fin
    s_mov_b32 s30, 1
    s_barrier
    s_branch K2_restart
    """)
    a.label("K2_fin")
    a(f"""
    s_cmp_gt_u32 s38, 1
    s_cbranch_scc1 K2_end
    """)
    for r in range(4):
        a(f"v_cvt_pk_bf16_f32 v{PK+4+r}, v{HV+2*r}, v{HV+2*r+1}")
        a(f"v_cvt_pk_bf16_f32 v{S+4+r}, v{HN+2*r}, v{HN+2*r+1}")
    a(f"""
    s_add_u32 s5, s4, {WS_H:#x}
    buffer_store_dwordx4 v[{PK+4}:{PK+7}], v{t5}, s[8:11], s5 offen
    s_add_u32 s5, s4, {WS_HN:#x}
    buffer_store_dwordx4 v[{S+4}:{S+7}], v{t5}, s[8:11], s5 offen
    s_lshl_b32 s5, s2, 1
    s_add_u32 s5, s5, s38
    s_lshl_b32 s5, s5, 2
    s_add_u32 s5, s5, {WS_KEY:#x}
    v_mov_b32 v{t0}, 0
    s_mov_b64 exec, 1
    buffer_store_dword v{t2}, v{t0}, s[8:11], s5 offen
    """)
    a.label("K2_end")
    a("s_endpgm")
    n = a.fix()
    return a.text(), 256, L_TOTAL
```

```python
from gen import *
from k2 import wave_sum

def wave_max_u32(a, v, t):
    for mod in ("quad_perm:[1,0,3,2]", "quad_perm:[2,3,0,1]", "row_half_mirror", "row_mirror"):
        a(f"v_max_u32_dpp v{v}, v{v}, v{v} {mod} row_mask:0xf bank_mask:0xf")
    for w in (16, 32):
        a(f"""
        v_mov_b32 v{t}, v{v}
        v_permlane{w}_swap_b32 v{t}, v{v}
        v_max_u32 v{v}, v{v}, v{t}
        """)

LOG2E = 1.4426950408889634

def sigmoid(a, d, x, t):
    a(f"""
    v_mul_f32 v{t}, {f2u(-LOG2E):#x}, v{x}
    v_exp_f32 v{t}, v{t}
    v_add_f32 v{t}, 1.0, v{t}
    v_rcp_f32 v{d}, v{t}
    """)

def gen_k3():
    a = Asm()
    KY = 8
    WD = 16
    WU = 32
    XB = 64
    AF = 96
    AC = 128
    Y = 132
    L_RED = 32768
    a(f"""
    s_cmp_ge_u32 s2, 112
    s_cbranch_scc1 K3_end
    s_load_dwordx4 s[40:43], s[0:1], 56
    s_load_dwordx2 s[44:45], s[0:1], 72
    s_load_dwordx2 s[48:49], s[0:1], 96
    s_and_b32 s3, s2, 7
    s_lshr_b32 s4, s2, 3
    s_mul_i32 s3, s3, 14
    s_add_u32 s7, s3, s4
    v_lshrrev_b32 v1, 6, v0
    v_and_b32 v2, 63, v0           ; lane
    v_readfirstlane_b32 s6, v1
    v_lshlrev_b32 v3, 5, v2
    s_and_b32 s28, s6, 1           ; matrix
    s_lshr_b32 s29, s6, 1          ; k half
    s_waitcnt lgkmcnt(0)
    """)
    srd(a, 8, 48, 49, WS_SIZE)
    a(f"""
    s_mov_b32 s5, {WS_KEY:#x}
    buffer_load_dwordx4 v[{KY}:{KY+3}], v3, s[8:11], s5 offen
    buffer_load_dwordx4 v[{KY+4}:{KY+7}], v3, s[8:11], s5 offen offset:16
    s_cmp_eq_u32 s28, 0
    s_cselect_b64 s[46:47], s[40:41], s[42:43]
    """)
    srd(a, 12, 46, 47, 512 * 1792 * 2)
    srd(a, 16, 44, 45, 512 * 1792 * 2)
    a(f"""
    v_lshrrev_b32 v4, 1, v2
    s_movk_i32 s5, 3584
    v_mul_lo_u32 v4, v4, s5
    v_and_b32 v5, 1, v2
    v_lshl_add_u32 v4, v5, 4, v4
    s_mul_i32 s30, s29, {256*3584}
    s_lshl_b32 s31, s7, 5
    s_add_u32 s30, s30, s31
    s_lshl_b32 s34, s6, 13
    """)
    for i in range(8):
        a(f"s_add_u32 m0, s34, {i*1024}")
        a(f"s_add_u32 s35, s30, {i*32*3584}")
        a(f"buffer_load_dwordx4 v4, s[12:15], s35 offen lds")
    a(f"""
    v_lshlrev_b32 v5, 2, v0        ; tid*4
    s_lshl_b32 s30, s7, 14
    s_add_u32 s31, s30, 4096
    s_add_u32 s32, s30, 8192
    s_add_u32 s33, s30, 12288
    """)
    for f in range(16):
        a(f"buffer_load_dword v{WD+f}, v5, s[16:19], s{30 + f//4} offen offset:{1024*(f&3)}")
    a("s_waitcnt vmcnt(24)")
    a(f"""
    v_max_u32 v6, v{KY}, v{KY+2}
    v_min_u32 v7, v{KY}, v{KY+2}
    v_max3_u32 v7, v7, v{KY+1}, v{KY+3}
    v_max_u32 v{Y}, v{KY+4}, v{KY+6}
    v_min_u32 v{Y+1}, v{KY+4}, v{KY+6}
    v_max3_u32 v{Y+1}, v{Y+1}, v{KY+5}, v{KY+7}
    v_min_u32 v{Y+2}, v6, v{Y}
    v_max_u32 v6, v6, v{Y}
    v_max3_u32 v7, v7, v{Y+1}, v{Y+2}
    v_mov_b32 v{Y}, v6
    """)
    wave_max_u32(a, Y, Y + 1)
    a(f"""
    v_cmp_eq_u32 vcc, v6, v{Y}
    v_cndmask_b32 v6, v6, v7, vcc
    """)
    wave_max_u32(a, 6, Y + 1)
    a(f"""
    v_and_b32 v7, 1, v2
    v_cmp_eq_u32 vcc, 0, v7
    v_cndmask_b32 v6, v6, v{Y}, vcc
    v_and_b32 v7, 0xffff, v6
    v_sub_u32 v7, 0xffff, v7             ; token
    v_lshlrev_b32 v{Y}, 10, v7
    v_lshrrev_b32 v{Y+1}, 4, v2          ; g
    v_lshl_add_u32 v{Y}, v{Y+1}, 4, v{Y}
    s_lshl_b32 s5, s29, 9
    s_add_u32 s5, s5, {WS_HN:#x}
    """)
    for s in range(8):
        a(f"buffer_load_dwordx4 v[{XB+4*s}:{XB+4*s+3}], v{Y}, s[8:11], s5 offen offset:{64*s}")
    a(f"""
    s_cmp_lg_u32 s7, 0
    s_cbranch_scc1 K3_nosel
    v_readlane_b32 s36, v7, s28
    s_lshl_b32 s36, s36, 10
    s_mul_i32 s37, s29, {WS_HN - WS_H:#x}
    s_add_u32 s36, s36, s37
    s_add_u32 s36, s36, {WS_H:#x}
    v_lshlrev_b32 v{Y+2}, 4, v2
    buffer_load_dwordx4 v[{AC}:{AC+3}], v{Y+2}, s[8:11], s36 offen
    v_and_b32 v{Y+3}, 0xffff0000, v6
    v_ashrrev_i32 v{Y+1}, 31, v{Y+3}
    v_not_b32 v{Y+1}, v{Y+1}
    v_or_b32 v{Y+1}, 0x80000000, v{Y+1}
    v_xor_b32 v{Y+3}, v{Y+3}, v{Y+1}
    v_and_b32 v{Y+3}, 0xffff0000, v{Y+3}
    """)
    sigmoid(a, Y + 3, Y + 3, Y + 1)
    a(f"""
    v_cvt_pk_bf16_f32 v{Y+3}, 0, v{Y+3}
    v_lshlrev_b32 v{Y+1}, 2, v2
    s_mov_b32 s37, {WS_SEL:#x}
    s_mov_b64 exec, 3
    buffer_store_dword v7, v{Y+1}, s[8:11], s37 offen
    buffer_store_dword v{Y+3}, v{Y+1}, s[8:11], s37 offen offset:8
    s_mov_b64 exec, -1
    s_lshl_b32 s37, s6, 10
    s_add_u32 s37, s37, {WS_SEL + 0x100:#x}
    s_waitcnt vmcnt(2)
    buffer_store_dwordx4 v[{AC}:{AC+3}], v{Y+2}, s[8:11], s37 offen
    """)
    a.label("K3_nosel")
    a(f"""
    v_bfe_u32 v3, v2, 2, 2
    v_lshrrev_b32 v4, 4, v2
    v_lshl_add_u32 v3, v4, 3, v3
    v_lshlrev_b32 v3, 5, v3
    v_and_b32 v{Y+1}, 3, v2
    v_lshl_add_u32 v3, v{Y+1}, 3, v3
    v_add_u32 v3, s34, v3
    s_waitcnt vmcnt(8)
    """)
    for s in range(8):
        for half in range(2):
            d = AF + 4 * s + 2 * half
            a(f"ds_read_b64_tr_b16 v[{d}:{d+1}], v3 offset:{s*1024 + half*128}")
    for f in range(16):
        a(f"v_lshlrev_b32 v{WU+2*f}, 16, v{WD+f}")
        a(f"v_and_b32 v{WU+2*f+1}, 0xffff0000, v{WD+f}")
    a("s_waitcnt vmcnt(0) lgkmcnt(0)")
    for s in range(8):
        c = "0" if s == 0 else f"v[{AC}:{AC+3}]"
        a(f"v_mfma_f32_16x16x32_bf16 v[{AC}:{AC+3}], v[{AF+4*s}:{AF+4*s+3}], v[{XB+4*s}:{XB+4*s+3}], {c}")
    a(f"""
    v_and_b32 v3, 1, v2
    v_lshlrev_b32 v3, 6, v3
    v_lshl_add_u32 v3, v4, 4, v3
    s_lshl_b32 s5, s6, 7
    s_add_u32 s5, s5, {L_RED}
    v_add_u32 v3, s5, v3
    v_and_b32 v4, 31, v2
    v_lshlrev_b32 v4, 2, v4
    v_add_u32 v4, {L_RED}, v4
    ds_write_b128 v3, v[{AC}:{AC+3}]
    s_waitcnt lgkmcnt(0)
    s_barrier
    ds_read2_b32 v[{Y}:{Y+1}], v4 offset0:0 offset1:64
    ds_read2_b32 v[{Y+2}:{Y+3}], v4 offset0:32 offset1:96
    s_waitcnt lgkmcnt(0)
    v_add_f32 v{Y}, v{Y}, v{Y+1}
    v_add_f32 v{Y+2}, v{Y+2}, v{Y+3}
    v_cvt_pk_bf16_f32 v{Y}, 0, v{Y}          ; g
    v_cvt_pk_bf16_f32 v{Y+2}, 0, v{Y+2}      ; u
    """)
    sigmoid(a, Y + 1, Y, Y + 3)
    a(f"""
    v_mul_f32 v{Y}, v{Y}, v{Y+1}
    v_cvt_pk_bf16_f32 v{Y}, 0, v{Y}          ; silu(g)
    v_mul_f32 v{Y}, v{Y}, v{Y+2}
    v_cvt_pk_bf16_f32 v6, 0, v{Y}
    """)
    for l in range(32):
        a(f"v_readlane_b32 s{50+l}, v6, {l}")
    for r in range(4):
        a(f"v_mov_b32 v{Y+r}, 0")
    for f in range(16):
        for sel in range(2):
            sr = 50 + sel * 16 + f
            pair = sr & ~1
            osel = "op_sel:[0,1,0] op_sel_hi:[1,1,1]" if sr & 1 else "op_sel:[0,0,0] op_sel_hi:[1,0,1]"
            a(f"v_pk_fma_f32 v[{Y+2*sel}:{Y+2*sel+1}], v[{WU+2*f}:{WU+2*f+1}], s[{pair}:{pair+1}], v[{Y+2*sel}:{Y+2*sel+1}] {osel}")
    a(f"""
    v_lshlrev_b32 v5, 3, v0
    s_lshl_b32 s5, s7, 12
    s_add_u32 s5, s5, {WS_YP:#x}
    buffer_store_dwordx2 v[{Y}:{Y+1}], v5, s[8:11], s5 offen
    buffer_store_dwordx2 v[{Y+2}:{Y+3}], v5, s[8:11], s5 offen offset:2048
    """)
    a.label("K3_end")
    a("s_endpgm")
    a.fix()
    return a.text(), 136, 32768 + 512

def gen_k4():
    a = Asm()
    P = 16
    a(f"""
    s_cmp_ge_u32 s2, 32
    s_cbranch_scc1 K4_end
    s_load_dwordx2 s[46:47], s[0:1], 80
    s_load_dwordx2 s[48:49], s[0:1], 96
    s_lshr_b32 s3, s2, 4           ; sel
    s_and_b32 s4, s2, 15
    v_and_b32 v1, 7, v0
    v_lshrrev_b32 v2, 3, v0
    v_mul_u32_u24 v3, {14*4096}, v2
    v_lshl_add_u32 v3, v1, 4, v3
    s_lshl_b32 s5, s2, 7
    s_add_u32 s5, s5, {WS_YP:#x}
    v_lshlrev_b32 v4, 3, v1
    s_lshl_b32 s6, s3, 10
    s_lshl_b32 s7, s4, 6
    s_add_u32 s6, s6, s7
    s_add_u32 s6, s6, {WS_SEL + 0x100:#x}
    s_lshl_b32 s28, s3, 2
    s_add_u32 s28, s28, {WS_SEL:#x}
    v_mov_b32 v5, 0
    s_waitcnt lgkmcnt(0)
    """)
    srd(a, 8, 48, 49, WS_SIZE)
    srd(a, 20, 46, 47, 0x200000)
    for i in range(14):
        a(f"buffer_load_dwordx4 v[{P+4*i}:{P+4*i+3}], v3, s[8:11], s5 offen")
        if i < 13: a("s_add_u32 s5, s5, 4096")
    a(f"""
    buffer_load_dwordx2 v[6:7], v4, s[8:11], s6 offen
    buffer_load_dwordx2 v[8:9], v4, s[8:11], s6 offen offset:2048
    buffer_load_dword v10, v5, s[8:11], s28 offen
    buffer_load_dword v11, v5, s[8:11], s28 offen offset:8
    """)
    for i in range(1, 14):
        a(f"s_waitcnt vmcnt({4 + 13 - i})")
        for r in range(0, 4, 2):
            a(f"v_pk_add_f32 v[{P+r}:{P+r+1}], v[{P+r}:{P+r+1}], v[{P+4*i+r}:{P+4*i+r+1}]")
    for r in range(4):
        a(f"v_add_f32_dpp v{P+r}, v{P+r}, v{P+r} row_ror:8 row_mask:0xf bank_mask:0xf")
    for w in (16, 32):
        for r in range(4):
            sum_swap(a, P + r, P + 4 + r, w)
    a("s_waitcnt vmcnt(0)")
    for r in range(4):
        hsrc = 6 + r // 2; nsrc = 8 + r // 2
        un = (lambda d, s: f"v_and_b32 v{d}, 0xffff0000, v{s}") if r & 1 else (lambda d, s: f"v_lshlrev_b32 v{d}, 16, v{s}")
        a(f"""
        v_cvt_pk_bf16_f32 v{P+r}, 0, v{P+r}
        v_mul_f32 v{P+r}, v{P+r}, v11
        v_cvt_pk_bf16_f32 v{P+r}, 0, v{P+r}
        {un(12, nsrc)}
        v_add_f32 v{P+r}, v{P+r}, v12
        v_cvt_pk_bf16_f32 v{P+r}, 0, v{P+r}
        {un(12, hsrc)}
        v_add_f32 v{P+r}, v{P+r}, v12
        """)
    a(f"""
    v_cvt_pk_bf16_f32 v12, v{P}, v{P+1}
    v_cvt_pk_bf16_f32 v13, v{P+2}, v{P+3}
    v_lshl_add_u32 v4, v10, 10, v4
    s_mov_b64 exec, 0xff
    buffer_store_dwordx2 v[12:13], v4, s[20:23], s7 offen
    """)
    a.label("K4_end")
    a("s_endpgm")
    a.fix()
    return a.text(), 72, 0
```

```python
import sys
sys.path.insert(0, "gen")
from gen import *
from k2 import gen_k2
from k34 import gen_k3, gen_k4
import argparse
ap = argparse.ArgumentParser()
ap.add_argument("out")
ap.add_argument("--noround", action="store_true")
args = ap.parse_args()
t1, v1, l1 = gen_k1()
t2, v2, l2 = gen_k2(ROUND=not args.noround)
t3, v3, l3 = gen_k3()
t4, v4, l4 = gen_k4()
ks = [("k1_kernel", t1, v1, l1, 256, 256), ("k2_kernel", t2, v2, l2, 256, 512), ("k3_kernel", t3, v3, l3, 112, 256), ("k4_kernel", t4, v4, l4, 32, 64)]
build(ks, args.out)
```

```python
import sys, struct
sys.path.insert(0, "gen")
from asmlib import *

NAME = "sequential_preLN__grouped_kv_mqa__moe_arch_mod__prompt"
WS_Q    = 0x000000
WS_K    = 0x200000
WS_VT   = 0x210000
WS_KEY  = 0x220000
WS_SEL  = 0x221000
WS_YP   = 0x230000
WS_H    = 0x300000
WS_HN   = 0x500000
WS_SIZE = 0x800000
WS_STAMP = 0x700000
STAMP = False
def set_stamp(v):
    global STAMP
    STAMP = v
def stamp(a, i):
    if not STAMP: return
    a(f"""
    s_memtime s[82:83]
    s_memrealtime s[100:101]
    s_waitcnt lgkmcnt(0)
    s_mov_b32 s{84+i}, s82
    s_mov_b32 s{92+i}, s100
    """)
def stamp_out(a, kid, srd_base, swave, vt):
    if not STAMP: return
    a(f"""
    s_mov_b64 exec, 1
    s_lshl_b32 s82, s2, 3
    s_add_u32 s82, s82, {swave}
    s_lshl_b32 s82, s82, 6
    s_add_u32 s82, s82, {WS_STAMP + kid * 0x20000:#x}
    v_mov_b32 v{vt}, 0
    """)
    for i in range(16):
        a(f"v_mov_b32 v{vt+1}, s{84+i}")
        a(f"buffer_store_dword v{vt+1}, v{vt}, s[{srd_base}:{srd_base+3}], s82 offen offset:{4*i}")
    a("s_mov_b64 exec, -1")

def f2u(x): return struct.unpack("<I", struct.pack("<f", x))[0]

def srd(a, d, lo, hi, size):
    a(f"""
    s_mov_b32 s{d}, s{lo}
    s_mov_b32 s{d+1}, s{hi}
    s_mov_b32 s{d+2}, {size:#x}
    s_mov_b32 s{d+3}, 0x00020000
    """)

def ln_scalars(a, vsum, vsq, vm, vrs, t0, t1, two_pass_var=False):
    a(f"v_mul_f32 v{t0}, {f2u(1/512):#x}, v{vsum}")
    a(f"v_mul_f32 v{t1}, {f2u(1/512):#x}, v{vsq}")
    if not two_pass_var:
        a(f"v_fma_f32 v{t1}, -v{t0}, v{t0}, v{t1}")
        a(f"v_max_f32 v{t1}, 0, v{t1}")
    a(f"""
    v_cvt_pk_bf16_f32 v{vm}, 0, v{t0}
    v_cvt_pk_bf16_f32 v{t1}, 0, v{t1}
    v_add_f32 v{t1}, {f2u(1e-5):#x}, v{t1}
    v_cvt_pk_bf16_f32 v{t1}, 0, v{t1}
    v_sqrt_f32 v{t1}, v{t1}
    v_cvt_pk_bf16_f32 v{t1}, 0, v{t1}
    v_rcp_f32 v{vrs}, v{t1}
    """)

def sum_swap(a, v, t, which):
    a(f"""
    v_mov_b32 v{t}, v{v}
    v_permlane{which}_swap_b32 v{t}, v{v}
    v_add_f32 v{v}, v{v}, v{t}
    """)

def gen_k1():
    a = Asm()
    X = 32
    ACC = 96
    AF = 116
    T = 148
    a(f"""
    s_cmp_ge_u32 s2, 256
    s_cbranch_scc1 K1_end
    """)
    stamp(a, 0)
    a(f"""
    s_load_dwordx4 s[24:27], s[0:1], 0
    s_load_dwordx4 s[28:31], s[0:1], 16
    s_load_dwordx2 s[32:33], s[0:1], 96
    s_and_b32 s3, s2, 7
    s_lshr_b32 s4, s2, 3
    s_and_b32 s5, s4, 7
    s_lshr_b32 s4, s4, 3
    s_lshl_b32 s3, s3, 2
    s_add_u32 s3, s3, s4
    v_lshrrev_b32 v1, 6, v0
    v_and_b32 v2, 63, v0           ; lane
    v_readfirstlane_b32 s6, v1     ; wave
    v_and_b32 v3, 15, v2           ; l & 15
    v_lshrrev_b32 v4, 4, v2        ; g
    s_lshl_b32 s7, s3, 6
    s_lshl_b32 s34, s6, 4
    s_add_u32 s7, s7, s34
    v_add_u32 v5, s7, v3           ; token
    v_lshlrev_b32 v6, 10, v5
    v_lshl_add_u32 v6, v4, 4, v6
    v_lshrrev_b32 v7, 3, v2        ; row_in
    v_and_b32 v8, 7, v2            ; slot
    v_and_b32 v9, 2, v7            ; ((row_in>>1)&1)<<1
    v_xor_b32 v8, v8, v9
    v_xor_b32 v9, 4, v8
    s_lshl_b32 s34, s6, 17
    s_lshl_b32 s35, s5, 7
    s_add_u32 s34, s34, s35
    v_lshlrev_b32 v7, 10, v7
    v_add_u32 v7, s34, v7
    v_lshl_add_u32 v10, v8, 4, v7
    v_lshl_add_u32 v11, v9, 4, v7
    s_waitcnt lgkmcnt(0)
    """)
    srd(a, 8, 24, 25, 0x200000)
    srd(a, 12, 26, 27, 0x80000)
    for s in range(16):
        a(f"buffer_load_dwordx4 v[{X+4*s}:{X+4*s+3}], v6, s[8:11], 0 offen offset:{64*s}")
    a("s_lshl_b32 s36, s6, 14")
    a("s_mov_b32 s37, 0")
    for i in range(16):
        a(f"s_add_u32 m0, s36, {i*1024}")
        a(f"buffer_load_dwordx4 v{10 + (i & 1)}, s[12:15], s37 offen lds")
        if i < 15: a(f"s_add_u32 s37, s37, 8192")
    a(f"""
    s_cmp_eq_u32 s5, 0
    s_cselect_b64 s[38:39], s[28:29], s[30:31]
    """)
    srd(a, 16, 38, 39, 0x4000)
    srd(a, 20, 32, 33, WS_SIZE)
    a(f"""
    s_cmp_gt_u32 s5, 1
    s_cbranch_scc1 K1_nokv
    v_lshlrev_b32 v12, 4, v0       ; tid*16
    s_lshl_b32 s36, s6, 10
    s_add_u32 s36, s36, 65536
    """)
    for i in range(4):
        a(f"s_add_u32 m0, s36, {i*4096}")
        a(f"s_mov_b32 s37, {i*4096}")
        a(f"buffer_load_dwordx4 v12, s[16:19], s37 offen lds")
    a.label("K1_nokv")
    a(f"""
    v_bfe_u32 v18, v2, 2, 2        ; r'
    v_and_b32 v19, 3, v2           ; c'
    v_lshl_add_u32 v20, v4, 3, v18 ; 8g + r'
    v_lshlrev_b32 v21, 7, v20
    v_lshl_add_u32 v21, v19, 3, v21   ; row*128 + 8c'
    v_lshrrev_b32 v22, 1, v18
    v_and_b32 v23, 1, v4
    v_lshl_or_b32 v22, v23, 1, v22 ; h
    """)
    for t in range(4):
        a(f"v_xor_b32 v23, {t}, v22")
        a(f"v_lshl_add_u32 v{13+t}, v23, 5, v21")
    a(f"""
    v_lshlrev_b32 v17, 5, v20
    v_lshl_add_u32 v17, v19, 3, v17
    v_add_u32 v17, 65536, v17
    v_mov_b32 v24, 0x3f803f80
    v_mov_b32 v25, 0
    v_mov_b32 v26, 0
    """)
    stamp(a, 1)
    a("s_waitcnt vmcnt(16)")
    stamp(a, 2)
    for r in range(64):
        a(f"v_dot2_f32_bf16 v25, v{X+r}, v24, v25")
        a(f"v_dot2_f32_bf16 v26, v{X+r}, v{X+r}, v26")
    for w in (16, 32):
        sum_swap(a, 25, 27, w)
        sum_swap(a, 26, 28, w)
    ln_scalars(a, 25, 26, 28, 30, 27, 29)
    for r in range(64):
        t = T + 2 * (r % 4)
        a(f"""
        v_lshlrev_b32 v{t}, 16, v{X+r}
        v_and_b32 v{t+1}, 0xffff0000, v{X+r}
        v_pk_add_f32 v[{t}:{t+1}], v[{t}:{t+1}], v[28:29] op_sel_hi:[1,0] neg_lo:[0,1] neg_hi:[0,1]
        v_cvt_pk_bf16_f32 v{t}, 0, v{t}
        v_cvt_pk_bf16_f32 v{t+1}, 0, v{t+1}
        v_pk_mul_f32 v[{t}:{t+1}], v[{t}:{t+1}], v[30:31] op_sel_hi:[1,0]
        v_cvt_pk_bf16_f32 v{X+r}, v{t}, v{t+1}
        """)
    stamp(a, 3)
    a("s_waitcnt vmcnt(0)")
    a("s_barrier")
    stamp(a, 4)
    def rd(s, buf):
        for t in range(4):
            for half in range(2):
                d = AF + 16 * buf + 4 * t + 2 * half
                a(f"ds_read_b64_tr_b16 v[{d}:{d+1}], v{13+t} offset:{s*4096 + half*512}")
    rd(0, 0)
    for s in range(16):
        if s < 15:
            rd(s + 1, (s + 1) & 1)
            a("s_waitcnt lgkmcnt(8)")
        else:
            a("s_waitcnt lgkmcnt(0)")
        for t in range(4):
            d = AF + 16 * (s & 1) + 4 * t
            c = "0" if s == 0 else f"v[{ACC+4*t}:{ACC+4*t+3}]"
            a(f"v_mfma_f32_16x16x32_bf16 v[{ACC+4*t}:{ACC+4*t+3}], v[{d}:{d+3}], v[{X+4*s}:{X+4*s+3}], {c}")
    a(f"""
    s_lshl_b32 s35, s5, 7
    v_lshlrev_b32 v7, 10, v5
    v_lshl_add_u32 v7, v4, 3, v7
    v_add_u32 v7, s35, v7
    """)
    for t in range(4):
        a(f"v_cvt_pk_bf16_f32 v{T+2*t}, v{ACC+4*t}, v{ACC+4*t+1}")
        a(f"v_cvt_pk_bf16_f32 v{T+2*t+1}, v{ACC+4*t+2}, v{ACC+4*t+3}")
        a(f"buffer_store_dwordx2 v[{T+2*t}:{T+2*t+1}], v7, s[20:23], 0 offen offset:{32*t}")
    stamp(a, 5)
    if STAMP: a("s_waitcnt vmcnt(0)")
    stamp(a, 6)
    stamp_out(a, 0, 20, "s6", 158)
    a(f"""
    s_cmp_gt_u32 s5, 1
    s_cbranch_scc1 K1_end
    """)
    KV = ACC + 16
    for hb in range(2):
        for s8 in range(8):
            s = hb * 8 + s8
            for half in range(2):
                d = AF + 4 * s8 + 2 * half
                a(f"ds_read_b64_tr_b16 v[{d}:{d+1}], v17 offset:{s*1024 + half*128}")
        a("s_waitcnt lgkmcnt(0)")
        a("s_cmp_eq_u32 s5, 0")
        a(f"s_cbranch_scc0 K1_v{hb}")
        for s8 in range(8):
            s = hb * 8 + s8
            c = "0" if s == 0 else f"v[{KV}:{KV+3}]"
            a(f"v_mfma_f32_16x16x32_bf16 v[{KV}:{KV+3}], v[{AF+4*s8}:{AF+4*s8+3}], v[{X+4*s}:{X+4*s+3}], {c}")
        a(f"s_branch K1_j{hb}")
        a.label(f"K1_v{hb}")
        for s8 in range(8):
            s = hb * 8 + s8
            c = "0" if s == 0 else f"v[{KV}:{KV+3}]"
            a(f"v_mfma_f32_16x16x32_bf16 v[{KV}:{KV+3}], v[{X+4*s}:{X+4*s+3}], v[{AF+4*s8}:{AF+4*s8+3}], {c}")
        a.label(f"K1_j{hb}")
    a(f"""
    v_lshlrev_b32 v7, 5, v5
    v_lshl_add_u32 v7, v4, 3, v7
    v_add_u32 v7, {WS_K:#x}, v7
    s_lshl_b32 s35, s7, 5
    s_add_u32 s35, s35, {WS_VT:#x}
    v_and_b32 v8, 1, v4
    v_lshlrev_b32 v8, 8, v8
    v_lshl_add_u32 v8, v3, 4, v8
    v_lshrrev_b32 v9, 1, v4
    v_lshl_add_u32 v8, v9, 3, v8
    v_add_u32 v8, s35, v8
    s_cmp_eq_u32 s5, 0
    s_cselect_b64 vcc, -1, 0
    v_cndmask_b32 v7, v8, v7, vcc
    v_cvt_pk_bf16_f32 v{T}, v{KV}, v{KV+1}
    v_cvt_pk_bf16_f32 v{T+1}, v{KV+2}, v{KV+3}
    buffer_store_dwordx2 v[{T}:{T+1}], v7, s[20:23], 0 offen
    """)
    a.label("K1_end")
    a("s_endpgm")
    a.fix()
    return a.text(), 160, 81920

KERNELS = []

def build(kernels, path):
    hdr = open(f"cdna_kernels/{NAME}.s.ref").read().split("\n")
    out = []
    for ln in hdr:
        if ln.startswith("; Override") : break
        out.append(ln)
    for (name, text, vg, lds, grid, block) in kernels:
        out.append(f"; @launch kernel={name} grid=({grid},1,1) block=({block},1,1) lds={lds}")
    out.append('.amdgcn_target "amdgcn-amd-amdhsa--gfx950"')
    seen = set()
    for (name, text, vg, lds, grid, block) in kernels:
        if name in seen: continue
        seen.add(name)
        out.append(kernel_header(name) + text)
    seen = set()
    for (name, text, vg, lds, grid, block) in kernels:
        if name in seen: continue
        seen.add(name)
        out.append(kernel_desc(name, vg))
    open(path, "w").write("\n".join(out))

if __name__ == "__main__":
    t1, v1, l1 = gen_k1()
    ks = [("k1_kernel", t1, v1, l1, 256, 256)]
    build(ks, sys.argv[1] if len(sys.argv) > 1 else f"cdna_kernels/{NAME}.s")
```

```python
from gen import *
import gen as G

L_WO = 0x0; L_PART = 0x10000; L_Q = 0x16000; L_MREF = 0x18400; L_OB = 0x1A800; L_KEY = 0x1AC00; L_MX = 0x1B000
L_TOTAL = 0x1B400
C_EXACT = 0.25 * 1.4426950408889634
C_BF16 = 0.361328125
OFFS = 64.0

def wave_sum(a, v, t):
    for mod in ("quad_perm:[1,0,3,2]", "quad_perm:[2,3,0,1]", "row_half_mirror", "row_mirror"):
        a(f"v_add_f32_dpp v{v}, v{v}, v{v} {mod} row_mask:0xf bank_mask:0xf")
    sum_swap(a, v, t, 16)
    sum_swap(a, v, t, 32)

def gen_k2(ROUND=True, probe=None):
    a = Asm()
    K = 16; V = 48; S = 112; X = [128, 144]; O = 160; CM = 176; SP = 192; I0 = 200; I1 = 204; Q = 208
    OA = 212; AF = 228; BF = 244
    vQA, vPW, vPR, vPL, vOW, vOR, vLM = 1, 2, 3, 4, 5, 6, 7
    vWA = 8
    vWD = 12
    t0, t1, t2, t3, t4, t5 = 14, 15, 252, 253, 254, 255
    cval = C_BF16 if ROUND else C_EXACT
    a(f"""
    s_cmp_ge_u32 s2, 256
    s_cbranch_scc1 K2_end
    """)
    stamp(a, 0)
    a(f"""
    s_load_dwordx2 s[40:41], s[0:1], 0
    s_load_dwordx2 s[42:43], s[0:1], 32
    s_load_dwordx2 s[44:45], s[0:1], 48
    s_load_dwordx2 s[46:47], s[0:1], 80
    s_load_dwordx2 s[48:49], s[0:1], 96
    s_and_b32 s3, s2, 7
    s_lshr_b32 s4, s2, 3
    s_lshl_b32 s7, s3, 8
    s_lshl_b32 s5, s4, 3
    s_add_u32 s7, s7, s5           ; T0
    s_and_b32 s28, s4, 7           ; rot
    v_lshrrev_b32 v{t0}, 6, v0
    v_and_b32 v0, 63, v0
    v_readfirstlane_b32 s6, v{t0}
    s_mov_b32 s30, 0
    s_waitcnt lgkmcnt(0)
    """)
    srd(a, 8, 48, 49, WS_SIZE)
    srd(a, 12, 42, 43, 0x80000)
    srd(a, 16, 40, 41, 0x200000)
    srd(a, 20, 46, 47, 0x200000)
    srd(a, 24, 44, 45, 0x400)
    a.label("K2_restart")
    a(f"""
    s_add_u32 s3, s6, s28
    s_and_b32 s3, s3, 7
    s_lshl_b32 s3, s3, 7
    s_lshl_b32 s4, s7, 10
    s_add_u32 s3, s3, s4
    v_and_b32 v{t0}, 7, v0
    v_lshlrev_b32 v{t0}, 10, v{t0}
    v_bfe_u32 v{t1}, v0, 3, 2
    v_lshl_add_u32 v{t0}, v{t1}, 5, v{t0}
    v_lshrrev_b32 v{t2}, 5, v0     ; hh
    v_lshl_add_u32 v{t0}, v{t2}, 4, v{t0}
    buffer_load_dwordx4 v[{Q}:{Q+3}], v{t0}, s[8:11], s3 offen
    """)
    a(f"""
    v_and_b32 v{t1}, 31, v0
    v_lshlrev_b32 v{t0}, 5, v{t1}
    v_lshl_add_u32 v{t0}, v{t2}, 4, v{t0}
    s_lshl_b32 s3, s6, 13
    s_add_u32 s4, s3, {WS_K:#x}
    s_add_u32 s5, s4, 4096
    """)
    for t in range(8):
        a(f"buffer_load_dwordx4 v[{K+4*t}:{K+4*t+3}], v{t0}, s[8:11], s{4 if t < 4 else 5} offen offset:{1024*(t&3)}")
    for r in range(64):
        a(f"v_mov_b32 v{V+r}, 0x3f803f80")
    a(f"""
    v_and_b32 v{t0}, 15, v0
    v_lshlrev_b32 v{t0}, 4, v{t0}
    v_lshl_add_u32 v{t0}, v{t2}, 8, v{t0}
    s_add_u32 s4, s3, {WS_VT:#x}
    s_add_u32 s5, s4, 4096
    s_mov_b32 exec_lo, 0xffff
    s_mov_b32 exec_hi, 0xffff
    """)
    for t in range(16):
        a(f"buffer_load_dwordx4 v[{V+4*t}:{V+4*t+3}], v{t0}, s[8:11], s{4 if t < 8 else 5} offen offset:{512*(t&7)}")
    a("s_mov_b64 exec, -1")
    a(f"""
    v_lshrrev_b32 v{t0}, 3, v0     ; row_in
    v_and_b32 v{t1}, 7, v0
    v_and_b32 v{t3}, 2, v{t0}
    v_xor_b32 v{t1}, v{t1}, v{t3}
    v_xor_b32 v{t3}, 4, v{t1}
    s_lshl_b32 s3, s6, 7
    v_lshlrev_b32 v{t0}, 10, v{t0}
    v_add_u32 v{t0}, s3, v{t0}
    v_lshl_add_u32 v{vWD}, v{t1}, 4, v{t0}
    v_lshl_add_u32 v{vWD+1}, v{t3}, 4, v{t0}
    s_lshl_b32 s34, s6, 13
    s_lshl_b32 s31, s28, 16
    """)
    def wo_dma():
        for i in range(8):
            a(f"s_add_u32 m0, s34, {L_WO + i*1024}")
            a(f"s_add_u32 s35, s31, {i*8192}")
            a(f"buffer_load_dwordx4 v{vWD + (i & 1)}, s[12:15], s35 offen lds")
        a("s_add_u32 s31, s31, 0x10000")
        a("s_and_b32 s31, s31, 0x7ffff")
    wo_dma()
    a(f"""
    v_lshlrev_b32 v{vQA}, 4, v0
    v_add_u32 v{vQA}, {L_Q:#x}, v{vQA}
    v_and_b32 v{t1}, 31, v0
    v_mul_u32_u24 v{vPW}, 96, v{t1}
    v_lshl_add_u32 v{vPW}, v{t2}, 4, v{vPW}
    s_mul_i32 s3, s6, 3072
    s_add_u32 s3, s3, {L_PART:#x}
    v_add_u32 v{vPW}, s3, v{vPW}
    v_lshrrev_b32 v{t0}, 4, v0     ; g
    s_lshl_b32 s3, s6, 2
    v_add_u32 v{t1}, s3, v{t0}     ; n = 4w + g
    v_mul_u32_u24 v{vPL}, 96, v{t1}
    v_add_u32 v{vPL}, {L_PART:#x}, v{vPL}
    v_and_b32 v{t3}, 15, v0        ; d
    v_lshl_add_u32 v{vPR}, v{t3}, 2, v{vPL}
    v_add_u32 v{vPL}, 64, v{vPL}
    v_and_b32 v{t4}, 7, v{t1}      ; token
    v_lshrrev_b32 v{t1}, 3, v{t1}  ; head_local
    v_lshlrev_b32 v{vOW}, 7, v{t4}
    v_lshl_add_u32 v{vOW}, v{t1}, 5, v{vOW}
    v_lshl_add_u32 v{vOW}, v{t3}, 1, v{vOW}
    v_add_u32 v{vOW}, {L_OB:#x}, v{vOW}
    v_and_b32 v{t4}, 7, v0
    v_lshlrev_b32 v{vOR}, 7, v{t4}
    v_lshl_add_u32 v{vOR}, v{t0}, 4, v{vOR}
    v_add_u32 v{vOR}, {L_OB:#x}, v{vOR}
    v_bfe_u32 v{t1}, v0, 2, 2      ; r'
    v_and_b32 v{t3}, 3, v0         ; c'
    v_lshl_add_u32 v{t4}, v{t0}, 3, v{t1}
    v_lshlrev_b32 v{t4}, 7, v{t4}
    v_lshl_add_u32 v{t4}, v{t3}, 3, v{t4}
    v_add_u32 v{t4}, s34, v{t4}
    v_lshrrev_b32 v{t1}, 1, v{t1}
    v_and_b32 v{t0}, 1, v{t0}
    v_lshl_or_b32 v{t1}, v{t0}, 1, v{t1}
    """)
    for t in range(4):
        a(f"v_xor_b32 v{t0}, {t}, v{t1}")
        a(f"v_lshl_add_u32 v{vWA+t}, v{t0}, 5, v{t4}")
    a(f"v_mov_b32 v{vLM}, 0")
    for r in range(16):
        a(f"v_mov_b32 v{OA+r}, 0")
    if ROUND:
        a(f"""
        v_and_b32 v{t0}, 1, v0
        v_lshlrev_b32 v{t0}, 4, v{t0}
        v_mov_b32 v{t1}, 0x3eb9
        v_lshlrev_b32 v{t0}, v{t0}, v{t1}      ; value
        v_bfe_u32 v{t1}, v0, 1, 1
        v_bfe_u32 v{t3}, v0, 3, 2
        v_lshl_add_u32 v{t1}, v{t3}, 1, v{t1}  ; idx
        v_bfe_u32 v{t3}, v0, 2, 1
        v_xor_b32 v{t3}, v{t3}, v{t2}
        v_lshl_add_u32 v{t1}, v{t3}, 4, v{t1}
        """)
        for k in range(8):
            a(f"v_cmp_eq_u32 vcc, {k}, v{t1}")
            a(f"v_cndmask_b32 v{I0+k}, 0, v{t0}, vcc")
    stamp(a, 1)
    a("s_waitcnt vmcnt(32)")
    if not ROUND:
        for r in range(4):
            a(f"""
            v_lshlrev_b32 v{t0}, 16, v{Q+r}
            v_and_b32 v{t1}, 0xffff0000, v{Q+r}
            v_mul_f32 v{t0}, {f2u(cval):#x}, v{t0}
            v_mul_f32 v{t1}, {f2u(cval):#x}, v{t1}
            v_cvt_pk_bf16_f32 v{Q+r}, v{t0}, v{t1}
            """)
    a(f"""
    s_lshl_b32 s3, s6, 10
    v_add_u32 v{t3}, s3, v{vQA}
    ds_write_b128 v{t3}, v[{Q}:{Q+3}]
    s_cmp_lg_u32 s30, 0
    s_cbranch_scc1 K2_safe
    s_waitcnt vmcnt(30)
    v_mfma_f32_32x32x16_bf16 v[{S}:{S+15}], v[{K}:{K+3}], v[{Q}:{Q+3}], 0
    v_mfma_f32_32x32x16_bf16 v[{X[0]}:{X[0]+15}], v[{K+4}:{K+7}], v[{Q}:{Q+3}], 0
    """)
    a(f"v_max3_f32 v{t0}, v{S}, v{S+1}, v{S+2}")
    for r in range(3, 15, 2):
        a(f"v_max3_f32 v{t0}, v{t0}, v{S+r}, v{S+r+1}")
    a(f"v_max3_f32 v{t0}, v{t0}, v{S+15}, v{X[0]}")
    for r in range(1, 15, 2):
        a(f"v_max3_f32 v{t0}, v{t0}, v{X[0]+r}, v{X[0]+r+1}")
    a(f"""
    v_max_f32 v{t0}, v{t0}, v{X[0]+15}
    v_mov_b32 v{t1}, v{t0}
    v_permlane32_swap_b32 v{t1}, v{t0}
    v_max_f32 v{t0}, v{t0}, v{t1}
    v_mov_b32 v{t1}, {f2u(-OFFS):#x}
    s_branch K2_mref
    """)
    a.label("K2_safe")
    a(f"""
    v_and_b32 v{t0}, 31, v0
    v_lshlrev_b32 v{t4}, 2, v{t0}
    v_add_u32 v{t4}, {L_MX:#x}, v{t4}
    s_lshl_b32 s3, s6, 7
    v_add_u32 v{t5}, s3, v{t4}
    v_mov_b32 v{t0}, 0xff800000
    ds_write_b32 v{t5}, v{t0}
    s_waitcnt vmcnt(24) lgkmcnt(0)
    s_barrier
    v_mov_b32 v{t1}, v{vQA}
    s_mov_b32 s29, 0
    """)
    a.label("K2_safe_loop")
    a(f"""
    ds_read_b128 v[{BF}:{BF+3}], v{t1}
    v_mov_b32 v{t0}, 0xff800000
    s_waitcnt lgkmcnt(0)
    """)
    for t in range(8):
        a(f"v_mfma_f32_32x32x16_bf16 v[{S}:{S+15}], v[{K+4*t}:{K+4*t+3}], v[{BF}:{BF+3}], 0")
        for r in range(0, 16, 2):
            a(f"v_max3_f32 v{t0}, v{t0}, v{S+r}, v{S+r+1}")
    a(f"""
    ds_max_f32 v{t4}, v{t0}
    v_add_u32 v{t1}, 1024, v{t1}
    v_add_u32 v{t4}, 128, v{t4}
    s_add_u32 s29, s29, 1
    s_cmp_lt_u32 s29, 8
    s_cbranch_scc1 K2_safe_loop
    s_waitcnt lgkmcnt(0)
    s_barrier
    ds_read_b32 v{t0}, v{t5}
    v_mov_b32 v{t1}, 0
    s_waitcnt lgkmcnt(0)
    """)
    a.label("K2_mref")
    if ROUND:
        a(f"v_cvt_pk_bf16_f32 v{t0}, 0, v{t0}")
        a(f"v_fmamk_f32 v{BF}, v{t0}, {f2u(-cval):#x}, v{t1}")
    else:
        a(f"v_sub_f32 v{BF}, v{t1}, v{t0}")
    a(f"""
    v_mov_b32 v{BF+1}, v{BF}
    v_mov_b32 v{BF+2}, v{BF}
    v_mov_b32 v{BF+3}, v{BF}
    ds_write_b128 v{t3}, v[{BF}:{BF+3}] offset:{L_MREF - L_Q}
    s_waitcnt lgkmcnt(0)
    s_barrier
    """)
    def rd_q():
        a(f"ds_read_b128 v[{Q}:{Q+3}], v{vQA}")
    def rd_cm():
        for k in range(4):
            a(f"ds_read_b128 v[{CM+4*k}:{CM+4*k+3}], v{vQA} offset:{L_MREF - L_Q}")
        a(f"v_add_u32 v{vQA}, 1024, v{vQA}")
    mf = "v_mfma_f32_32x32x16_bf16"
    def M1(kt):
        a(f"{mf} v[{S}:{S+15}], v[{K+4*kt}:{K+4*kt+3}], v[{Q}:{Q+3}], 0")
    def M1n(kt, xb):
        a(f"{mf} v[{X[xb]}:{X[xb]+15}], v[{K+4*kt}:{K+4*kt+3}], v[{Q}:{Q+3}], v[{CM}:{CM+15}]")
    def C1(h):
        for k in range(4):
            a(f"v_cvt_pk_bf16_f32 v{SP+4*h+k}, v{S+8*h+2*k}, v{S+8*h+2*k+1}")
    def M2(h, xb):
        c = f"v[{CM}:{CM+15}]" if h == 0 else f"v[{X[xb]}:{X[xb]+15}]"
        I = I0 if h == 0 else I1
        a(f"{mf} v[{X[xb]}:{X[xb]+15}], v[{I}:{I+3}], v[{SP+4*h}:{SP+4*h+3}], {c}")
    def E(xb, lo, hi):
        for r in range(lo, hi):
            a(f"v_exp_f32 v{X[xb]+r}, v{X[xb]+r}")
    def C2(h, xb):
        for k in range(4):
            a(f"v_cvt_pk_bf16_f32 v{SP+4*h+k}, v{X[xb]+8*h+2*k}, v{X[xb]+8*h+2*k+1}")
    def M3(h, kt, first=False):
        c = "0" if first else f"v[{O}:{O+15}]"
        a(f"{mf} v[{O}:{O+15}], v[{V+8*kt+4*h}:{V+8*kt+4*h+3}], v[{SP+4*h}:{SP+4*h+3}], {c}")
    def part_write():
        a(f"""
        ds_write_b128 v{vPW}, v[{O}:{O+3}]
        ds_write_b128 v{vPW}, v[{O+4}:{O+7}] offset:32
        """)
        a(f"ds_write_b32 v{vPW}, v{O+8} offset:64")
    def s1_read():
        for k in range(4):
            a(f"ds_read2st64_b32 v[{AF+2*k}:{AF+2*k+1}], v{vPR} offset0:{24*k} offset1:{24*k+12}")
        for k in range(4):
            a(f"ds_read2st64_b32 v[{AF+8+2*k}:{AF+8+2*k+1}], v{vPL} offset0:{24*k} offset1:{24*k+12}")
    def s1_calc():
        for b in (AF, AF + 8):
            a(f"""
            v_add_f32 v{b}, v{b}, v{b+1}
            v_add_f32 v{b+2}, v{b+2}, v{b+3}
            v_add_f32 v{b+4}, v{b+4}, v{b+5}
            v_add_f32 v{b+6}, v{b+6}, v{b+7}
            v_add_f32 v{b}, v{b}, v{b+2}
            v_add_f32 v{b+4}, v{b+4}, v{b+6}
            v_add_f32 v{b}, v{b}, v{b+4}
            """)
        a(f"""
        v_rcp_f32 v{AF+1}, v{AF+8}
        v_max_f32 v{vLM}, v{vLM}, v{AF+8}
        v_mul_f32 v{AF}, v{AF}, v{AF+1}
        v_cvt_pk_bf16_f32 v{AF}, v{AF}, v{AF}
        ds_write_b16 v{vOW}, v{AF}
        """)
    def s2_read(s):
        a(f"ds_read_b128 v[{BF+4*s}:{BF+4*s+3}], v{vOR} offset:{64*s}")
        for t in range(4):
            for half in range(2):
                d = AF + 4 * t + 2 * half
                a(f"ds_read_b64_tr_b16 v[{d}:{d+1}], v{vWA+t} offset:{s*4096 + half*512}")
    def s2_mma(s):
        for t in range(4):
            a(f"v_mfma_f32_16x16x32_bf16 v[{OA+4*t}:{OA+4*t+3}], v[{AF+4*t}:{AF+4*t+3}], v[{BF+4*s}:{BF+4*s+3}], v[{OA+4*t}:{OA+4*t+3}]")
    uid = [0]
    def skip0(body):
        uid[0] += 1
        a("s_cmp_eq_u32 s29, 0")
        a(f"s_cbranch_scc1 K2_sk{uid[0]}")
        body()
        a.label(f"K2_sk{uid[0]}")
    stamp(a, 2)
    rd_q(); rd_cm()
    a("s_waitcnt vmcnt(8) lgkmcnt(0)")
    stamp(a, 3)
    if ROUND:
        M1(0); C1(0); C1(1); M2(0, 0); M2(1, 0); M1(1)
    else:
        M1n(0, 0)
    a("s_mov_b32 s29, 0")
    a.raw(".p2align 3")
    a.label("K2_round")
    def hook(i, pos):
        if i == 0 and pos == 1: skip0(part_write)
        if i == 0 and pos == 2:
            def f():
                a("s_waitcnt lgkmcnt(0)"); a("s_barrier"); s1_read()
            skip0(f)
        if i == 1 and pos == 1:
            def f():
                a("s_waitcnt lgkmcnt(0)"); s1_calc()
            skip0(f)
        if i == 2 and pos == 0:
            def f():
                a("s_waitcnt vmcnt(0) lgkmcnt(0)"); a("s_barrier"); s2_read(0)
            skip0(f)
        if i == 2 and pos == 2:
            def f():
                a("s_waitcnt lgkmcnt(0)"); s2_mma(0); s2_read(1)
            skip0(f)
        if i == 3 and pos == 2:
            def f():
                a("s_waitcnt lgkmcnt(0)"); s2_mma(1); wo_dma()
            skip0(f)
    for i in range(8):
        xb = i & 1; xn = xb ^ 1
        if ROUND:
            C1(0)
            M3(1, (i - 1) & 7)
            C1(1); E(xb, 0, 2)
            if i == 7: a("s_waitcnt lgkmcnt(0)")
            M2(0, xn)
            hook(i, 0)
            E(xb, 2, 7)
            M2(1, xn)
            E(xb, 7, 8); C2(0, xb); E(xb, 8, 10)
            if i == 6: rd_cm()
            hook(i, 1)
            if i == 6: a("s_waitcnt lgkmcnt(4)")
            M1((i + 2) & 7)
            if i == 5: rd_q()
            E(xb, 10, 15)
            M3(0, i, first=(i == 0))
            hook(i, 2)
            E(xb, 15, 16); C2(1, xb)
        else:
            E(xb, 0, 2)
            M3(1, (i - 1) & 7)
            E(xb, 2, 8)
            if i == 7: a("s_waitcnt lgkmcnt(0)")
            M1n((i + 1) & 7, xn)
            hook(i, 0)
            C2(0, xb); E(xb, 8, 12)
            if i == 6: rd_q(); rd_cm()
            hook(i, 1)
            M3(0, i, first=(i == 0))
            hook(i, 2)
            E(xb, 12, 16); C2(1, xb)
    a(f"""
    s_add_u32 s29, s29, 1
    s_cmp_lt_u32 s29, 8
    s_cbranch_scc1 K2_round
    """)
    stamp(a, 4)
    M3(1, 7)
    XR = K; WR = K + 4; HV = K + 8; HN = K + 16; PK = K + 24
    a(f"""
    s_add_u32 s3, s7, s6
    s_lshl_b32 s4, s3, 10
    v_lshlrev_b32 v{t5}, 4, v0
    buffer_load_dwordx4 v[{XR}:{XR+3}], v{t5}, s[16:19], s4 offen
    buffer_load_dwordx4 v[{WR}:{WR+3}], v{t5}, s[24:27], 0 offen
    """)
    part_write()
    a("s_waitcnt lgkmcnt(0)"); a("s_barrier"); s1_read()
    a("s_waitcnt lgkmcnt(0)"); s1_calc()
    a("s_waitcnt vmcnt(2) lgkmcnt(0)"); a("s_barrier"); s2_read(0)
    a("s_waitcnt lgkmcnt(0)"); s2_mma(0); s2_read(1)
    a("s_waitcnt lgkmcnt(0)"); s2_mma(1)
    a(f"""
    v_and_b32 v{t0}, 7, v0
    v_mul_u32_u24 v{t0}, 1040, v{t0}
    v_lshrrev_b32 v{t1}, 4, v0
    v_lshl_add_u32 v{t0}, v{t1}, 3, v{t0}
    s_lshl_b32 s5, s6, 7
    s_add_u32 s5, s5, {L_PART:#x}
    v_add_u32 v{t0}, s5, v{t0}
    s_mul_i32 s5, s6, 1040
    s_add_u32 s5, s5, {L_PART:#x}
    v_add_u32 v{t1}, s5, v{t5}
    """)
    for t in range(4):
        a(f"v_cvt_pk_bf16_f32 v{AF+2*t}, v{OA+4*t}, v{OA+4*t+1}")
        a(f"v_cvt_pk_bf16_f32 v{AF+2*t+1}, v{OA+4*t+2}, v{OA+4*t+3}")
        a(f"ds_write_b64 v{t0}, v[{AF+2*t}:{AF+2*t+1}] offset:{32*t}")
    a(f"""
    s_waitcnt lgkmcnt(0)
    s_barrier
    ds_read_b128 v[{BF}:{BF+3}], v{t1}
    s_waitcnt vmcnt(0) lgkmcnt(0)
    """)
    for r in range(4):
        a(f"""
        v_lshlrev_b32 v{HV+2*r}, 16, v{XR+r}
        v_and_b32 v{HV+2*r+1}, 0xffff0000, v{XR+r}
        v_lshlrev_b32 v{t0}, 16, v{BF+r}
        v_and_b32 v{t1}, 0xffff0000, v{BF+r}
        v_add_f32 v{HV+2*r}, v{HV+2*r}, v{t0}
        v_add_f32 v{HV+2*r+1}, v{HV+2*r+1}, v{t1}
        v_cvt_pk_bf16_f32 v{HV+2*r}, 0, v{HV+2*r}
        v_cvt_pk_bf16_f32 v{HV+2*r+1}, 0, v{HV+2*r+1}
        """)
    a(f"v_add_f32 v{t0}, v{HV}, v{HV+1}")
    for r in range(2, 8):
        a(f"v_add_f32 v{t0}, v{t0}, v{HV+r}")
    wave_sum(a, t0, t1)
    a(f"v_mul_f32 v{t3}, {f2u(1/512):#x}, v{t0}")
    a(f"v_mov_b32 v{t2}, 0")
    for r in range(8):
        a(f"v_sub_f32 v{t1}, v{HV+r}, v{t3}")
        a(f"v_fmac_f32 v{t2}, v{t1}, v{t1}")
    wave_sum(a, t2, t1)
    a(f"v_mov_b32 v{S}, v{t2}")
    ln_scalars(a, t0, t2, S + 1, S + 2, t1, t3, two_pass_var=True)
    a(f"v_mov_b32 v{t2}, 0")
    for r in range(8):
        a(f"""
        v_sub_f32 v{HN+r}, v{HV+r}, v{S+1}
        v_cvt_pk_bf16_f32 v{HN+r}, 0, v{HN+r}
        v_mul_f32 v{HN+r}, v{HN+r}, v{S+2}
        v_cvt_pk_bf16_f32 v{HN+r}, 0, v{HN+r}
        """)
        if r & 1: a(f"v_and_b32 v{t0}, 0xffff0000, v{WR+r//2}")
        else:     a(f"v_lshlrev_b32 v{t0}, 16, v{WR+r//2}")
        a(f"v_fmac_f32 v{t2}, v{HN+r}, v{t0}")
    for r in range(4):
        a(f"""
        v_add_f32 v{t0}, v{HV+2*r}, v{HN+2*r}
        v_add_f32 v{t1}, v{HV+2*r+1}, v{HN+2*r+1}
        """)
        if probe is not None and r == 0:
            a(f"""
            s_cmp_eq_u32 s3, 0
            s_cselect_b32 s5, {f2u(probe):#x}, 0
            s_mov_b64 exec, 1
            v_add_f32 v{t0}, s5, v{t0}
            s_mov_b64 exec, -1
            """)
        a(f"v_cvt_pk_bf16_f32 v{PK+r}, v{t0}, v{t1}")
    a(f"buffer_store_dwordx4 v[{PK}:{PK+3}], v{t5}, s[20:23], s4 offen")
    wave_sum(a, t2, t1)
    a(f"""
    v_cvt_pk_bf16_f32 v{t2}, 0, v{t2}
    v_ashrrev_i32 v{t0}, 31, v{t2}
    v_or_b32 v{t0}, 0x80000000, v{t0}
    v_xor_b32 v{t2}, v{t2}, v{t0}
    v_and_b32 v{t2}, 0xffff0000, v{t2}
    s_sub_u32 s5, 0xffff, s3
    v_or_b32 v{t2}, s5, v{t2}      ; key
    v_mov_b32 v{t0}, {f2u(2.0**100):#x}
    v_cmp_nlt_f32 vcc, v{vLM}, v{t0}
    v_cmp_nlt_f32 s[36:37], v{S}, v{t0}
    s_or_b64 vcc, vcc, s[36:37]
    s_cmp_lg_u64 vcc, 0
    s_cselect_b32 s5, 1, 0
    v_mov_b32 v{t3}, s5
    s_lshl_b32 s35, s6, 2
    s_add_u32 s35, s35, {L_KEY:#x}
    v_mov_b32 v{t0}, s35
    ds_write_b32 v{t0}, v{t2}
    ds_write_b32 v{t0}, v{t3} offset:32
    v_and_b32 v{t1}, 15, v0
    v_lshlrev_b32 v{t1}, 2, v{t1}
    v_add_u32 v{t1}, {L_KEY:#x}, v{t1}
    s_waitcnt lgkmcnt(0)
    s_barrier
    ds_read_b32 v{t3}, v{t1}
    s_waitcnt lgkmcnt(0)
    v_cmp_gt_u32 vcc, v{t3}, v{t2}
    v_cmp_ne_u32 s[36:37], 0, v{t3}
    s_and_b32 s38, vcc_lo, 0xff
    s_bcnt1_i32_b32 s38, s38       ; rank
    s_and_b32 s36, s36, 0xff00
    s_cmp_eq_u32 s36, 0
    s_cbranch_scc1 K2_fin
    s_cmp_lg_u32 s30, 0
    s_cbranch_scc1 K2_fin
    s_mov_b32 s30, 1
    s_barrier
    s_branch K2_restart
    """)
    a.label("K2_fin")
    stamp(a, 5)
    if G.STAMP: a("s_waitcnt vmcnt(0)")
    stamp(a, 6)
    if G.STAMP: a("s_mov_b32 s91, s30")
    stamp_out(a, 1, 8, "s6", X[0])
    a(f"""
    s_cmp_gt_u32 s38, 1
    s_cbranch_scc1 K2_end
    """)
    for r in range(4):
        a(f"v_cvt_pk_bf16_f32 v{PK+4+r}, v{HV+2*r}, v{HV+2*r+1}")
        a(f"v_cvt_pk_bf16_f32 v{S+4+r}, v{HN+2*r}, v{HN+2*r+1}")
    a(f"""
    s_add_u32 s5, s4, {WS_H:#x}
    buffer_store_dwordx4 v[{PK+4}:{PK+7}], v{t5}, s[8:11], s5 offen
    s_add_u32 s5, s4, {WS_HN:#x}
    buffer_store_dwordx4 v[{S+4}:{S+7}], v{t5}, s[8:11], s5 offen
    s_lshl_b32 s5, s2, 1
    s_add_u32 s5, s5, s38
    s_lshl_b32 s5, s5, 2
    s_add_u32 s5, s5, {WS_KEY:#x}
    v_mov_b32 v{t0}, 0
    s_mov_b64 exec, 1
    buffer_store_dword v{t2}, v{t0}, s[8:11], s5 offen
    """)
    a.label("K2_end")
    a("s_endpgm")
    n = a.fix()
    return a.text(), 256, L_TOTAL
```

```python
from gen import *
import gen as G
from k2 import wave_sum

def wave_max_u32(a, v, t):
    for mod in ("quad_perm:[1,0,3,2]", "quad_perm:[2,3,0,1]", "row_half_mirror", "row_mirror"):
        a(f"v_max_u32_dpp v{v}, v{v}, v{v} {mod} row_mask:0xf bank_mask:0xf")
    for w in (16, 32):
        a(f"""
        v_mov_b32 v{t}, v{v}
        v_permlane{w}_swap_b32 v{t}, v{v}
        v_max_u32 v{v}, v{v}, v{t}
        """)

LOG2E = 1.4426950408889634

def sigmoid(a, d, x, t):
    a(f"""
    v_mul_f32 v{t}, {f2u(-LOG2E):#x}, v{x}
    v_exp_f32 v{t}, v{t}
    v_add_f32 v{t}, 1.0, v{t}
    v_rcp_f32 v{d}, v{t}
    """)

def gen_k3():
    a = Asm()
    KY = 8
    WD = 16
    WU = 32
    XB = 64
    AF = 96
    AC = 128
    Y = 132
    L_RED = 32768
    a(f"""
    s_cmp_ge_u32 s2, 112
    s_cbranch_scc1 K3_end
    """)
    stamp(a, 0)
    a(f"""
    s_load_dwordx4 s[40:43], s[0:1], 56
    s_load_dwordx2 s[44:45], s[0:1], 72
    s_load_dwordx2 s[48:49], s[0:1], 96
    s_and_b32 s3, s2, 7
    s_lshr_b32 s4, s2, 3
    s_mul_i32 s3, s3, 14
    s_add_u32 s7, s3, s4
    v_lshrrev_b32 v1, 6, v0
    v_and_b32 v2, 63, v0           ; lane
    v_readfirstlane_b32 s6, v1
    v_lshlrev_b32 v3, 5, v2
    s_and_b32 s28, s6, 1           ; matrix
    s_lshr_b32 s29, s6, 1          ; k half
    s_waitcnt lgkmcnt(0)
    """)
    srd(a, 8, 48, 49, WS_SIZE)
    a(f"""
    s_mov_b32 s5, {WS_KEY:#x}
    buffer_load_dwordx4 v[{KY}:{KY+3}], v3, s[8:11], s5 offen
    buffer_load_dwordx4 v[{KY+4}:{KY+7}], v3, s[8:11], s5 offen offset:16
    s_cmp_eq_u32 s28, 0
    s_cselect_b64 s[46:47], s[40:41], s[42:43]
    """)
    srd(a, 12, 46, 47, 512 * 1792 * 2)
    srd(a, 16, 44, 45, 512 * 1792 * 2)
    a(f"""
    v_lshrrev_b32 v4, 1, v2
    s_movk_i32 s5, 3584
    v_mul_lo_u32 v4, v4, s5
    v_and_b32 v5, 1, v2
    v_lshl_add_u32 v4, v5, 4, v4
    s_mul_i32 s30, s29, {256*3584}
    s_lshl_b32 s31, s7, 5
    s_add_u32 s30, s30, s31
    s_lshl_b32 s34, s6, 13
    """)
    for i in range(8):
        a(f"s_add_u32 m0, s34, {i*1024}")
        a(f"s_add_u32 s35, s30, {i*32*3584}")
        a(f"buffer_load_dwordx4 v4, s[12:15], s35 offen lds")
    a(f"""
    v_lshlrev_b32 v5, 2, v0        ; tid*4
    s_lshl_b32 s30, s7, 14
    s_add_u32 s31, s30, 4096
    s_add_u32 s32, s30, 8192
    s_add_u32 s33, s30, 12288
    """)
    for f in range(16):
        a(f"buffer_load_dword v{WD+f}, v5, s[16:19], s{30 + f//4} offen offset:{1024*(f&3)}")
    stamp(a, 1)
    a("s_waitcnt vmcnt(24)")
    stamp(a, 2)
    a(f"""
    v_max_u32 v6, v{KY}, v{KY+2}
    v_min_u32 v7, v{KY}, v{KY+2}
    v_max3_u32 v7, v7, v{KY+1}, v{KY+3}
    v_max_u32 v{Y}, v{KY+4}, v{KY+6}
    v_min_u32 v{Y+1}, v{KY+4}, v{KY+6}
    v_max3_u32 v{Y+1}, v{Y+1}, v{KY+5}, v{KY+7}
    v_min_u32 v{Y+2}, v6, v{Y}
    v_max_u32 v6, v6, v{Y}
    v_max3_u32 v7, v7, v{Y+1}, v{Y+2}
    v_mov_b32 v{Y}, v6
    """)
    wave_max_u32(a, Y, Y + 1)
    a(f"""
    v_cmp_eq_u32 vcc, v6, v{Y}
    v_cndmask_b32 v6, v6, v7, vcc
    """)
    wave_max_u32(a, 6, Y + 1)
    a(f"""
    v_and_b32 v7, 1, v2
    v_cmp_eq_u32 vcc, 0, v7
    v_cndmask_b32 v6, v6, v{Y}, vcc
    v_and_b32 v7, 0xffff, v6
    v_sub_u32 v7, 0xffff, v7             ; token
    v_lshlrev_b32 v{Y}, 10, v7
    v_lshrrev_b32 v{Y+1}, 4, v2          ; g
    v_lshl_add_u32 v{Y}, v{Y+1}, 4, v{Y}
    s_lshl_b32 s5, s29, 9
    s_add_u32 s5, s5, {WS_HN:#x}
    """)
    for s in range(8):
        a(f"buffer_load_dwordx4 v[{XB+4*s}:{XB+4*s+3}], v{Y}, s[8:11], s5 offen offset:{64*s}")
    a(f"""
    s_cmp_lg_u32 s7, 0
    s_cbranch_scc1 K3_nosel
    v_readlane_b32 s36, v7, s28
    s_lshl_b32 s36, s36, 10
    s_mul_i32 s37, s29, {WS_HN - WS_H:#x}
    s_add_u32 s36, s36, s37
    s_add_u32 s36, s36, {WS_H:#x}
    v_lshlrev_b32 v{Y+2}, 4, v2
    buffer_load_dwordx4 v[{AC}:{AC+3}], v{Y+2}, s[8:11], s36 offen
    v_and_b32 v{Y+3}, 0xffff0000, v6
    v_ashrrev_i32 v{Y+1}, 31, v{Y+3}
    v_not_b32 v{Y+1}, v{Y+1}
    v_or_b32 v{Y+1}, 0x80000000, v{Y+1}
    v_xor_b32 v{Y+3}, v{Y+3}, v{Y+1}
    v_and_b32 v{Y+3}, 0xffff0000, v{Y+3}
    """)
    sigmoid(a, Y + 3, Y + 3, Y + 1)
    a(f"""
    v_cvt_pk_bf16_f32 v{Y+3}, 0, v{Y+3}
    v_lshlrev_b32 v{Y+1}, 2, v2
    s_mov_b32 s37, {WS_SEL:#x}
    s_mov_b64 exec, 3
    buffer_store_dword v7, v{Y+1}, s[8:11], s37 offen
    buffer_store_dword v{Y+3}, v{Y+1}, s[8:11], s37 offen offset:8
    s_mov_b64 exec, -1
    s_lshl_b32 s37, s6, 10
    s_add_u32 s37, s37, {WS_SEL + 0x100:#x}
    s_waitcnt vmcnt(2)
    buffer_store_dwordx4 v[{AC}:{AC+3}], v{Y+2}, s[8:11], s37 offen
    """)
    a.label("K3_nosel")
    a(f"""
    v_bfe_u32 v3, v2, 2, 2
    v_lshrrev_b32 v4, 4, v2
    v_lshl_add_u32 v3, v4, 3, v3
    v_lshlrev_b32 v3, 5, v3
    v_and_b32 v{Y+1}, 3, v2
    v_lshl_add_u32 v3, v{Y+1}, 3, v3
    v_add_u32 v3, s34, v3
    s_waitcnt vmcnt(8)
    """)
    for s in range(8):
        for half in range(2):
            d = AF + 4 * s + 2 * half
            a(f"ds_read_b64_tr_b16 v[{d}:{d+1}], v3 offset:{s*1024 + half*128}")
    for f in range(16):
        a(f"v_lshlrev_b32 v{WU+2*f}, 16, v{WD+f}")
        a(f"v_and_b32 v{WU+2*f+1}, 0xffff0000, v{WD+f}")
    stamp(a, 3)
    a("s_waitcnt vmcnt(0) lgkmcnt(0)")
    stamp(a, 4)
    for s in range(8):
        c = "0" if s == 0 else f"v[{AC}:{AC+3}]"
        a(f"v_mfma_f32_16x16x32_bf16 v[{AC}:{AC+3}], v[{AF+4*s}:{AF+4*s+3}], v[{XB+4*s}:{XB+4*s+3}], {c}")
    a(f"""
    v_and_b32 v3, 1, v2
    v_lshlrev_b32 v3, 6, v3
    v_lshl_add_u32 v3, v4, 4, v3
    s_lshl_b32 s5, s6, 7
    s_add_u32 s5, s5, {L_RED}
    v_add_u32 v3, s5, v3
    v_and_b32 v4, 31, v2
    v_lshlrev_b32 v4, 2, v4
    v_add_u32 v4, {L_RED}, v4
    ds_write_b128 v3, v[{AC}:{AC+3}]
    s_waitcnt lgkmcnt(0)
    s_barrier
    ds_read2_b32 v[{Y}:{Y+1}], v4 offset0:0 offset1:64
    ds_read2_b32 v[{Y+2}:{Y+3}], v4 offset0:32 offset1:96
    s_waitcnt lgkmcnt(0)
    v_add_f32 v{Y}, v{Y}, v{Y+1}
    v_add_f32 v{Y+2}, v{Y+2}, v{Y+3}
    v_cvt_pk_bf16_f32 v{Y}, 0, v{Y}          ; g
    v_cvt_pk_bf16_f32 v{Y+2}, 0, v{Y+2}      ; u
    """)
    sigmoid(a, Y + 1, Y, Y + 3)
    a(f"""
    v_mul_f32 v{Y}, v{Y}, v{Y+1}
    v_cvt_pk_bf16_f32 v{Y}, 0, v{Y}          ; silu(g)
    v_mul_f32 v{Y}, v{Y}, v{Y+2}
    v_cvt_pk_bf16_f32 v6, 0, v{Y}
    """)
    for l in range(32):
        a(f"v_readlane_b32 s{50+l}, v6, {l}")
    for r in range(4):
        a(f"v_mov_b32 v{Y+r}, 0")
    for f in range(16):
        for sel in range(2):
            sr = 50 + sel * 16 + f
            pair = sr & ~1
            osel = "op_sel:[0,1,0] op_sel_hi:[1,1,1]" if sr & 1 else "op_sel:[0,0,0] op_sel_hi:[1,0,1]"
            a(f"v_pk_fma_f32 v[{Y+2*sel}:{Y+2*sel+1}], v[{WU+2*f}:{WU+2*f+1}], s[{pair}:{pair+1}], v[{Y+2*sel}:{Y+2*sel+1}] {osel}")
    a(f"""
    v_lshlrev_b32 v5, 3, v0
    s_lshl_b32 s5, s7, 12
    s_add_u32 s5, s5, {WS_YP:#x}
    buffer_store_dwordx2 v[{Y}:{Y+1}], v5, s[8:11], s5 offen
    buffer_store_dwordx2 v[{Y+2}:{Y+3}], v5, s[8:11], s5 offen offset:2048
    """)
    stamp(a, 5)
    if G.STAMP: a("s_waitcnt vmcnt(0)")
    stamp(a, 6)
    stamp_out(a, 2, 8, "s6", 16)
    a.label("K3_end")
    a("s_endpgm")
    a.fix()
    return a.text(), 136, 32768 + 512

def gen_k4():
    a = Asm()
    P = 16
    a(f"""
    s_cmp_ge_u32 s2, 32
    s_cbranch_scc1 K4_end
    """)
    stamp(a, 0)
    a(f"""
    s_load_dwordx2 s[46:47], s[0:1], 80
    s_load_dwordx2 s[48:49], s[0:1], 96
    s_lshr_b32 s3, s2, 4           ; sel
    s_and_b32 s4, s2, 15
    v_and_b32 v1, 7, v0
    v_lshrrev_b32 v2, 3, v0
    v_mul_u32_u24 v3, {14*4096}, v2
    v_lshl_add_u32 v3, v1, 4, v3
    s_lshl_b32 s5, s2, 7
    s_add_u32 s5, s5, {WS_YP:#x}
    v_lshlrev_b32 v4, 3, v1
    s_lshl_b32 s6, s3, 10
    s_lshl_b32 s7, s4, 6
    s_add_u32 s6, s6, s7
    s_add_u32 s6, s6, {WS_SEL + 0x100:#x}
    s_lshl_b32 s28, s3, 2
    s_add_u32 s28, s28, {WS_SEL:#x}
    v_mov_b32 v5, 0
    s_waitcnt lgkmcnt(0)
    """)
    srd(a, 8, 48, 49, WS_SIZE)
    srd(a, 20, 46, 47, 0x200000)
    for i in range(14):
        a(f"buffer_load_dwordx4 v[{P+4*i}:{P+4*i+3}], v3, s[8:11], s5 offen")
        if i < 13: a("s_add_u32 s5, s5, 4096")
    a(f"""
    buffer_load_dwordx2 v[6:7], v4, s[8:11], s6 offen
    buffer_load_dwordx2 v[8:9], v4, s[8:11], s6 offen offset:2048
    buffer_load_dword v10, v5, s[8:11], s28 offen
    buffer_load_dword v11, v5, s[8:11], s28 offen offset:8
    """)
    for i in range(1, 14):
        a(f"s_waitcnt vmcnt({4 + 13 - i})")
        for r in range(0, 4, 2):
            a(f"v_pk_add_f32 v[{P+r}:{P+r+1}], v[{P+r}:{P+r+1}], v[{P+4*i+r}:{P+4*i+r+1}]")
    for r in range(4):
        a(f"v_add_f32_dpp v{P+r}, v{P+r}, v{P+r} row_ror:8 row_mask:0xf bank_mask:0xf")
    for w in (16, 32):
        for r in range(4):
            sum_swap(a, P + r, P + 4 + r, w)
    a("s_waitcnt vmcnt(0)")
    for r in range(4):
        hsrc = 6 + r // 2; nsrc = 8 + r // 2
        un = (lambda d, s: f"v_and_b32 v{d}, 0xffff0000, v{s}") if r & 1 else (lambda d, s: f"v_lshlrev_b32 v{d}, 16, v{s}")
        a(f"""
        v_cvt_pk_bf16_f32 v{P+r}, 0, v{P+r}
        v_mul_f32 v{P+r}, v{P+r}, v11
        v_cvt_pk_bf16_f32 v{P+r}, 0, v{P+r}
        {un(12, nsrc)}
        v_add_f32 v{P+r}, v{P+r}, v12
        v_cvt_pk_bf16_f32 v{P+r}, 0, v{P+r}
        {un(12, hsrc)}
        v_add_f32 v{P+r}, v{P+r}, v12
        """)
    a(f"""
    v_cvt_pk_bf16_f32 v12, v{P}, v{P+1}
    v_cvt_pk_bf16_f32 v13, v{P+2}, v{P+3}
    v_lshl_add_u32 v4, v10, 10, v4
    s_mov_b64 exec, 0xff
    buffer_store_dwordx2 v[12:13], v4, s[20:23], s7 offen
    """)
    stamp(a, 5)
    if G.STAMP: a("s_waitcnt vmcnt(0)")
    stamp(a, 6)
    stamp_out(a, 3, 8, "0", 40)
    a.label("K4_end")
    a("s_endpgm")
    a.fix()
    return a.text(), 72, 0
```

```python
import sys
sys.path.insert(0, "gen")
from gen import *
from k2 import gen_k2
from k34 import gen_k3, gen_k4
import argparse
ap = argparse.ArgumentParser()
ap.add_argument("out")
ap.add_argument("--noround", action="store_true")
ap.add_argument("--stamp", action="store_true")
ap.add_argument("--probe", type=float, default=None)
args = ap.parse_args()
set_stamp(args.stamp)
t1, v1, l1 = gen_k1()
t2, v2, l2 = gen_k2(ROUND=not args.noround, probe=args.probe)
t3, v3, l3 = gen_k3()
t4, v4, l4 = gen_k4()
ks = [("k1_kernel", t1, v1, l1, 256, 256), ("k2_kernel", t2, v2, l2, 256, 512), ("k3_kernel", t3, v3, l3, 112, 256), ("k4_kernel", t4, v4, l4, 32, 64)]
build(ks, args.out)
```

```python
from gen import *
import gen as G

L_WO = 0x0; L_PART = 0x10000; L_Q = 0x16000; L_MREF = 0x18400; L_OB = 0x1A800; L_KEY = 0x1AC00; L_MX = 0x1B000
L_TOTAL = 0x1B400
C_EXACT = 0.25 * 1.4426950408889634
C_BF16 = 0.361328125
OFFS = 64.0

def wave_sum(a, v, t):
    for mod in ("quad_perm:[1,0,3,2]", "quad_perm:[2,3,0,1]", "row_half_mirror", "row_mirror"):
        a(f"v_add_f32_dpp v{v}, v{v}, v{v} {mod} row_mask:0xf bank_mask:0xf")
    sum_swap(a, v, t, 16)
    sum_swap(a, v, t, 32)

def gen_k2(ROUND=True, probe=None, dbg=''):
    a = Asm()
    K = 16; V = 48; S = 112; X = [128, 144]; O = 160; CM = 176; SP = 192; I0 = 200; I1 = 204; Q = 208
    OA = 212; AF = 228; BF = 244
    vQA, vPW, vPR, vPL, vOW, vOR, vLM = 1, 2, 3, 4, 5, 6, 7
    vWA = 8
    vWD = 12
    t0, t1, t2, t3, t4, t5 = 14, 15, 252, 253, 254, 255
    cval = C_BF16 if ROUND else C_EXACT
    a(f"""
    s_cmp_ge_u32 s2, 256
    s_cbranch_scc1 K2_end
    """)
    stamp(a, 0)
    a(f"""
    s_load_dwordx2 s[40:41], s[0:1], 0
    s_load_dwordx2 s[42:43], s[0:1], 32
    s_load_dwordx2 s[44:45], s[0:1], 48
    s_load_dwordx2 s[46:47], s[0:1], 80
    s_load_dwordx2 s[48:49], s[0:1], 96
    s_and_b32 s3, s2, 7
    s_lshr_b32 s4, s2, 3
    s_lshl_b32 s7, s3, 8
    s_lshl_b32 s5, s4, 3
    s_add_u32 s7, s7, s5           ; T0
    s_and_b32 s28, s4, 7           ; rot
    v_lshrrev_b32 v{t0}, 6, v0
    v_and_b32 v0, 63, v0
    v_readfirstlane_b32 s6, v{t0}
    s_mov_b32 s30, 0
    s_waitcnt lgkmcnt(0)
    """)
    srd(a, 8, 48, 49, WS_SIZE)
    srd(a, 12, 42, 43, 0x80000)
    srd(a, 16, 40, 41, 0x200000)
    srd(a, 20, 46, 47, 0x200000)
    srd(a, 24, 44, 45, 0x400)
    a.label("K2_restart")
    a(f"""
    s_add_u32 s3, s6, s28
    s_and_b32 s3, s3, 7
    s_lshl_b32 s3, s3, 7
    s_lshl_b32 s4, s7, 10
    s_add_u32 s3, s3, s4
    v_and_b32 v{t0}, 7, v0
    v_lshlrev_b32 v{t0}, 10, v{t0}
    v_bfe_u32 v{t1}, v0, 3, 2
    v_lshl_add_u32 v{t0}, v{t1}, 5, v{t0}
    v_lshrrev_b32 v{t2}, 5, v0     ; hh
    v_lshl_add_u32 v{t0}, v{t2}, 4, v{t0}
    buffer_load_dwordx4 v[{Q}:{Q+3}], v{t0}, s[8:11], s3 offen
    """)
    a(f"""
    v_and_b32 v{t1}, 31, v0
    v_lshlrev_b32 v{t0}, 5, v{t1}
    v_lshl_add_u32 v{t0}, v{t2}, 4, v{t0}
    s_lshl_b32 s3, s6, 13
    s_add_u32 s4, s3, {WS_K:#x}
    s_add_u32 s5, s4, 4096
    """)
    for t in range(8):
        a(f"buffer_load_dwordx4 v[{K+4*t}:{K+4*t+3}], v{t0}, s[8:11], s{4 if t < 4 else 5} offen offset:{1024*(t&3)}")
    for r in range(64):
        a(f"v_mov_b32 v{V+r}, 0x3f803f80")
    a(f"""
    v_and_b32 v{t0}, 15, v0
    v_lshlrev_b32 v{t0}, 4, v{t0}
    v_lshl_add_u32 v{t0}, v{t2}, 8, v{t0}
    s_add_u32 s4, s3, {WS_VT:#x}
    s_add_u32 s5, s4, 4096
    s_mov_b32 exec_lo, 0xffff
    s_mov_b32 exec_hi, 0xffff
    """)
    for t in range(16):
        a(f"buffer_load_dwordx4 v[{V+4*t}:{V+4*t+3}], v{t0}, s[8:11], s{4 if t < 8 else 5} offen offset:{512*(t&7)}")
    a("s_mov_b64 exec, -1")
    a(f"""
    v_lshrrev_b32 v{t0}, 3, v0     ; row_in
    v_and_b32 v{t1}, 7, v0
    v_and_b32 v{t3}, 2, v{t0}
    v_xor_b32 v{t1}, v{t1}, v{t3}
    v_xor_b32 v{t3}, 4, v{t1}
    s_lshl_b32 s3, s6, 7
    v_lshlrev_b32 v{t0}, 10, v{t0}
    v_add_u32 v{t0}, s3, v{t0}
    v_lshl_add_u32 v{vWD}, v{t1}, 4, v{t0}
    v_lshl_add_u32 v{vWD+1}, v{t3}, 4, v{t0}
    s_lshl_b32 s34, s6, 13
    s_lshl_b32 s31, s28, 16
    """)
    def wo_dma():
        for i in range(8):
            a(f"s_add_u32 m0, s34, {L_WO + i*1024}")
            a(f"s_add_u32 s35, s31, {i*8192}")
            a(f"buffer_load_dwordx4 v{vWD + (i & 1)}, s[12:15], s35 offen lds")
        a("s_add_u32 s31, s31, 0x10000")
        a("s_and_b32 s31, s31, 0x7ffff")
    wo_dma()
    a(f"""
    v_lshlrev_b32 v{vQA}, 4, v0
    v_add_u32 v{vQA}, {L_Q:#x}, v{vQA}
    v_and_b32 v{t1}, 31, v0
    v_mul_u32_u24 v{vPW}, 96, v{t1}
    v_lshl_add_u32 v{vPW}, v{t2}, 4, v{vPW}
    s_mul_i32 s3, s6, 3072
    s_add_u32 s3, s3, {L_PART:#x}
    v_add_u32 v{vPW}, s3, v{vPW}
    v_lshrrev_b32 v{t0}, 4, v0     ; g
    s_lshl_b32 s3, s6, 2
    v_add_u32 v{t1}, s3, v{t0}     ; n = 4w + g
    v_mul_u32_u24 v{vPL}, 96, v{t1}
    v_add_u32 v{vPL}, {L_PART:#x}, v{vPL}
    v_and_b32 v{t3}, 15, v0        ; d
    v_lshl_add_u32 v{vPR}, v{t3}, 2, v{vPL}
    v_add_u32 v{vPL}, 64, v{vPL}
    v_and_b32 v{t4}, 7, v{t1}      ; token
    v_lshrrev_b32 v{t1}, 3, v{t1}  ; head_local
    v_lshlrev_b32 v{vOW}, 7, v{t4}
    v_lshl_add_u32 v{vOW}, v{t1}, 5, v{vOW}
    v_lshl_add_u32 v{vOW}, v{t3}, 1, v{vOW}
    v_add_u32 v{vOW}, {L_OB:#x}, v{vOW}
    v_and_b32 v{t4}, 7, v0
    v_lshlrev_b32 v{vOR}, 7, v{t4}
    v_lshl_add_u32 v{vOR}, v{t0}, 4, v{vOR}
    v_add_u32 v{vOR}, {L_OB:#x}, v{vOR}
    v_bfe_u32 v{t1}, v0, 2, 2      ; r'
    v_and_b32 v{t3}, 3, v0         ; c'
    v_lshl_add_u32 v{t4}, v{t0}, 3, v{t1}
    v_lshlrev_b32 v{t4}, 7, v{t4}
    v_lshl_add_u32 v{t4}, v{t3}, 3, v{t4}
    v_add_u32 v{t4}, s34, v{t4}
    v_lshrrev_b32 v{t1}, 1, v{t1}
    v_and_b32 v{t0}, 1, v{t0}
    v_lshl_or_b32 v{t1}, v{t0}, 1, v{t1}
    """)
    for t in range(4):
        a(f"v_xor_b32 v{t0}, {t}, v{t1}")
        a(f"v_lshl_add_u32 v{vWA+t}, v{t0}, 5, v{t4}")
    a(f"v_mov_b32 v{vLM}, 0")
    for r in range(16):
        a(f"v_mov_b32 v{OA+r}, 0")
    if ROUND:
        a(f"""
        v_and_b32 v{t0}, 1, v0
        v_lshlrev_b32 v{t0}, 4, v{t0}
        v_mov_b32 v{t1}, 0x3eb9
        v_lshlrev_b32 v{t0}, v{t0}, v{t1}      ; value
        v_bfe_u32 v{t1}, v0, 1, 1
        v_bfe_u32 v{t3}, v0, 3, 2
        v_lshl_add_u32 v{t1}, v{t3}, 1, v{t1}  ; idx
        v_bfe_u32 v{t3}, v0, 2, 1
        v_xor_b32 v{t3}, v{t3}, v{t2}
        v_lshl_add_u32 v{t1}, v{t3}, 4, v{t1}
        """)
        for k in range(8):
            a(f"v_cmp_eq_u32 vcc, {k}, v{t1}")
            a(f"v_cndmask_b32 v{I0+k}, 0, v{t0}, vcc")
    stamp(a, 1)
    a("s_waitcnt vmcnt(32)")
    if not ROUND:
        for r in range(4):
            a(f"""
            v_lshlrev_b32 v{t0}, 16, v{Q+r}
            v_and_b32 v{t1}, 0xffff0000, v{Q+r}
            v_mul_f32 v{t0}, {f2u(cval):#x}, v{t0}
            v_mul_f32 v{t1}, {f2u(cval):#x}, v{t1}
            v_cvt_pk_bf16_f32 v{Q+r}, v{t0}, v{t1}
            """)
    a(f"""
    s_lshl_b32 s3, s6, 10
    v_add_u32 v{t3}, s3, v{vQA}
    ds_write_b128 v{t3}, v[{Q}:{Q+3}]
    s_cmp_lg_u32 s30, 0
    s_cbranch_scc1 K2_safe
    s_waitcnt vmcnt(30)
    v_mfma_f32_32x32x16_bf16 v[{S}:{S+15}], v[{K}:{K+3}], v[{Q}:{Q+3}], 0
    v_mfma_f32_32x32x16_bf16 v[{X[0]}:{X[0]+15}], v[{K+4}:{K+7}], v[{Q}:{Q+3}], 0
    """)
    a(f"v_max3_f32 v{t0}, v{S}, v{S+1}, v{S+2}")
    for r in range(3, 15, 2):
        a(f"v_max3_f32 v{t0}, v{t0}, v{S+r}, v{S+r+1}")
    a(f"v_max3_f32 v{t0}, v{t0}, v{S+15}, v{X[0]}")
    for r in range(1, 15, 2):
        a(f"v_max3_f32 v{t0}, v{t0}, v{X[0]+r}, v{X[0]+r+1}")
    a(f"""
    v_max_f32 v{t0}, v{t0}, v{X[0]+15}
    v_mov_b32 v{t1}, v{t0}
    v_permlane32_swap_b32 v{t1}, v{t0}
    v_max_f32 v{t0}, v{t0}, v{t1}
    v_mov_b32 v{t1}, {f2u(-OFFS):#x}
    s_branch K2_mref
    """)
    a.label("K2_safe")
    a(f"""
    v_and_b32 v{t0}, 31, v0
    v_lshlrev_b32 v{t4}, 2, v{t0}
    v_add_u32 v{t4}, {L_MX:#x}, v{t4}
    s_lshl_b32 s3, s6, 7
    v_add_u32 v{t5}, s3, v{t4}
    v_mov_b32 v{t0}, 0xff800000
    ds_write_b32 v{t5}, v{t0}
    s_waitcnt vmcnt(24) lgkmcnt(0)
    s_barrier
    v_mov_b32 v{t1}, v{vQA}
    s_mov_b32 s29, 0
    """)
    a.label("K2_safe_loop")
    a(f"""
    ds_read_b128 v[{BF}:{BF+3}], v{t1}
    v_mov_b32 v{t0}, 0xff800000
    s_waitcnt lgkmcnt(0)
    """)
    for t in range(8):
        a(f"v_mfma_f32_32x32x16_bf16 v[{S}:{S+15}], v[{K+4*t}:{K+4*t+3}], v[{BF}:{BF+3}], 0")
        for r in range(0, 16, 2):
            a(f"v_max3_f32 v{t0}, v{t0}, v{S+r}, v{S+r+1}")
    a(f"""
    ds_max_f32 v{t4}, v{t0}
    v_add_u32 v{t1}, 1024, v{t1}
    v_add_u32 v{t4}, 128, v{t4}
    s_add_u32 s29, s29, 1
    s_cmp_lt_u32 s29, 8
    s_cbranch_scc1 K2_safe_loop
    s_waitcnt lgkmcnt(0)
    s_barrier
    ds_read_b32 v{t0}, v{t5}
    v_mov_b32 v{t1}, 0
    s_waitcnt lgkmcnt(0)
    """)
    a.label("K2_mref")
    if ROUND:
        a(f"v_cvt_pk_bf16_f32 v{t0}, 0, v{t0}")
        a(f"v_fmamk_f32 v{BF}, v{t0}, {f2u(-cval):#x}, v{t1}")
    else:
        a(f"v_sub_f32 v{BF}, v{t1}, v{t0}")
    a(f"""
    v_mov_b32 v{BF+1}, v{BF}
    v_mov_b32 v{BF+2}, v{BF}
    v_mov_b32 v{BF+3}, v{BF}
    ds_write_b128 v{t3}, v[{BF}:{BF+3}] offset:{L_MREF - L_Q}
    s_waitcnt lgkmcnt(0)
    s_barrier
    """)
    def rd_q():
        a(f"ds_read_b128 v[{Q}:{Q+3}], v{vQA}")
    def rd_cm():
        for k in range(4):
            a(f"ds_read_b128 v[{CM+4*k}:{CM+4*k+3}], v{vQA} offset:{L_MREF - L_Q}")
        a(f"v_add_u32 v{vQA}, 1024, v{vQA}")
    mf = "v_mfma_f32_32x32x16_bf16"
    def M1(kt):
        a(f"{mf} v[{S}:{S+15}], v[{K+4*kt}:{K+4*kt+3}], v[{Q}:{Q+3}], 0")
    def M1n(kt, xb):
        a(f"{mf} v[{X[xb]}:{X[xb]+15}], v[{K+4*kt}:{K+4*kt+3}], v[{Q}:{Q+3}], v[{CM}:{CM+15}]")
    def C1(h):
        for k in range(4):
            a(f"v_cvt_pk_bf16_f32 v{SP+4*h+k}, v{S+8*h+2*k}, v{S+8*h+2*k+1}")
    def M2(h, xb):
        c = f"v[{CM}:{CM+15}]" if h == 0 else f"v[{X[xb]}:{X[xb]+15}]"
        I = I0 if h == 0 else I1
        a(f"{mf} v[{X[xb]}:{X[xb]+15}], v[{I}:{I+3}], v[{SP+4*h}:{SP+4*h+3}], {c}")
    def E(xb, lo, hi):
        for r in range(lo, hi):
            a(f"v_exp_f32 v{X[xb]+r}, v{X[xb]+r}")
    def C2(h, xb):
        for k in range(4):
            a(f"v_cvt_pk_bf16_f32 v{SP+4*h+k}, v{X[xb]+8*h+2*k}, v{X[xb]+8*h+2*k+1}")
    def M3(h, kt, first=False):
        c = "0" if first else f"v[{O}:{O+15}]"
        a(f"{mf} v[{O}:{O+15}], v[{V+8*kt+4*h}:{V+8*kt+4*h+3}], v[{SP+4*h}:{SP+4*h+3}], {c}")
    def part_write():
        a(f"""
        ds_write_b128 v{vPW}, v[{O}:{O+3}]
        ds_write_b128 v{vPW}, v[{O+4}:{O+7}] offset:32
        """)
        a(f"ds_write_b32 v{vPW}, v{O+8} offset:64")
    def s1_read():
        for k in range(4):
            a(f"ds_read2st64_b32 v[{AF+2*k}:{AF+2*k+1}], v{vPR} offset0:{24*k} offset1:{24*k+12}")
        for k in range(4):
            a(f"ds_read2st64_b32 v[{AF+8+2*k}:{AF+8+2*k+1}], v{vPL} offset0:{24*k} offset1:{24*k+12}")
    def s1_calc():
        for b in (AF, AF + 8):
            a(f"""
            v_add_f32 v{b}, v{b}, v{b+1}
            v_add_f32 v{b+2}, v{b+2}, v{b+3}
            v_add_f32 v{b+4}, v{b+4}, v{b+5}
            v_add_f32 v{b+6}, v{b+6}, v{b+7}
            v_add_f32 v{b}, v{b}, v{b+2}
            v_add_f32 v{b+4}, v{b+4}, v{b+6}
            v_add_f32 v{b}, v{b}, v{b+4}
            """)
        a(f"""
        v_rcp_f32 v{AF+1}, v{AF+8}
        v_max_f32 v{vLM}, v{vLM}, v{AF+8}
        v_mul_f32 v{AF}, v{AF}, v{AF+1}
        v_cvt_pk_bf16_f32 v{AF}, v{AF}, v{AF}
        ds_write_b16 v{vOW}, v{AF}
        """)
    def s2_read(s):
        a(f"ds_read_b128 v[{BF+4*s}:{BF+4*s+3}], v{vOR} offset:{64*s}")
        for t in range(4):
            for half in range(2):
                d = AF + 4 * t + 2 * half
                a(f"ds_read_b64_tr_b16 v[{d}:{d+1}], v{vWA+t} offset:{s*4096 + half*512}")
    def s2_mma(s):
        for t in range(4):
            a(f"v_mfma_f32_16x16x32_bf16 v[{OA+4*t}:{OA+4*t+3}], v[{AF+4*t}:{AF+4*t+3}], v[{BF+4*s}:{BF+4*s+3}], v[{OA+4*t}:{OA+4*t+3}]")
    uid = [0]
    def skip0(body):
        uid[0] += 1
        a("s_cmp_eq_u32 s29, 0")
        a(f"s_cbranch_scc1 K2_sk{uid[0]}")
        body()
        a.label(f"K2_sk{uid[0]}")
    stamp(a, 2)
    rd_q(); rd_cm()
    a("s_waitcnt vmcnt(8) lgkmcnt(0)")
    stamp(a, 3)
    if ROUND:
        M1(0); C1(0); C1(1); M2(0, 0); M2(1, 0); M1(1)
    else:
        M1n(0, 0)
    a("s_mov_b32 s29, 0")
    a.raw(".p2align 3")
    a.label("K2_round")
    def hook(i, pos):
        if 'nohook' in dbg: return
        if i == 0 and pos == 1: skip0(part_write)
        if i == 0 and pos == 2:
            def f():
                a("s_waitcnt lgkmcnt(0)"); a("s_barrier"); s1_read()
            skip0(f)
        if i == 1 and pos == 1:
            def f():
                a("s_waitcnt lgkmcnt(0)"); s1_calc()
            skip0(f)
        if i == 2 and pos == 0:
            def f():
                a("s_waitcnt vmcnt(0) lgkmcnt(0)"); a("s_barrier"); s2_read(0)
            skip0(f)
        if i == 2 and pos == 2:
            def f():
                a("s_waitcnt lgkmcnt(0)"); s2_mma(0); s2_read(1)
            skip0(f)
        if i == 3 and pos == 2:
            def f():
                a("s_waitcnt lgkmcnt(0)"); s2_mma(1)
                if 'nodma' not in dbg: wo_dma()
            skip0(f)
    for i in range(8):
        xb = i & 1; xn = xb ^ 1
        if ROUND:
            C1(0)
            M3(1, (i - 1) & 7)
            C1(1); E(xb, 0, 2)
            if i == 7: a("s_waitcnt lgkmcnt(0)")
            M2(0, xn)
            hook(i, 0)
            E(xb, 2, 7)
            M2(1, xn)
            E(xb, 7, 8); C2(0, xb); E(xb, 8, 10)
            if i == 6: rd_cm()
            hook(i, 1)
            if i == 6: a("s_waitcnt lgkmcnt(4)")
            M1((i + 2) & 7)
            if i == 5: rd_q()
            E(xb, 10, 15)
            M3(0, i, first=(i == 0))
            hook(i, 2)
            E(xb, 15, 16); C2(1, xb)
        else:
            E(xb, 0, 2)
            M3(1, (i - 1) & 7)
            E(xb, 2, 8)
            if i == 7: a("s_waitcnt lgkmcnt(0)")
            M1n((i + 1) & 7, xn)
            hook(i, 0)
            C2(0, xb); E(xb, 8, 12)
            if i == 6: rd_q(); rd_cm()
            hook(i, 1)
            M3(0, i, first=(i == 0))
            hook(i, 2)
            E(xb, 12, 16); C2(1, xb)
    a(f"""
    s_add_u32 s29, s29, 1
    s_cmp_lt_u32 s29, 8
    s_cbranch_scc1 K2_round
    """)
    stamp(a, 4)
    M3(1, 7)
    XR = K; WR = K + 4; HV = K + 8; HN = K + 16; PK = K + 24
    a(f"""
    s_add_u32 s3, s7, s6
    s_lshl_b32 s4, s3, 10
    v_lshlrev_b32 v{t5}, 4, v0
    buffer_load_dwordx4 v[{XR}:{XR+3}], v{t5}, s[16:19], s4 offen
    buffer_load_dwordx4 v[{WR}:{WR+3}], v{t5}, s[24:27], 0 offen
    """)
    part_write()
    a("s_waitcnt lgkmcnt(0)"); a("s_barrier"); s1_read()
    a("s_waitcnt lgkmcnt(0)"); s1_calc()
    a("s_waitcnt vmcnt(2) lgkmcnt(0)"); a("s_barrier"); s2_read(0)
    a("s_waitcnt lgkmcnt(0)"); s2_mma(0); s2_read(1)
    a("s_waitcnt lgkmcnt(0)"); s2_mma(1)
    a(f"""
    v_and_b32 v{t0}, 7, v0
    v_mul_u32_u24 v{t0}, 1040, v{t0}
    v_lshrrev_b32 v{t1}, 4, v0
    v_lshl_add_u32 v{t0}, v{t1}, 3, v{t0}
    s_lshl_b32 s5, s6, 7
    s_add_u32 s5, s5, {L_PART:#x}
    v_add_u32 v{t0}, s5, v{t0}
    s_mul_i32 s5, s6, 1040
    s_add_u32 s5, s5, {L_PART:#x}
    v_add_u32 v{t1}, s5, v{t5}
    """)
    for t in range(4):
        a(f"v_cvt_pk_bf16_f32 v{AF+2*t}, v{OA+4*t}, v{OA+4*t+1}")
        a(f"v_cvt_pk_bf16_f32 v{AF+2*t+1}, v{OA+4*t+2}, v{OA+4*t+3}")
        a(f"ds_write_b64 v{t0}, v[{AF+2*t}:{AF+2*t+1}] offset:{32*t}")
    a(f"""
    s_waitcnt lgkmcnt(0)
    s_barrier
    ds_read_b128 v[{BF}:{BF+3}], v{t1}
    s_waitcnt vmcnt(0) lgkmcnt(0)
    """)
    for r in range(4):
        a(f"""
        v_lshlrev_b32 v{HV+2*r}, 16, v{XR+r}
        v_and_b32 v{HV+2*r+1}, 0xffff0000, v{XR+r}
        v_lshlrev_b32 v{t0}, 16, v{BF+r}
        v_and_b32 v{t1}, 0xffff0000, v{BF+r}
        v_add_f32 v{HV+2*r}, v{HV+2*r}, v{t0}
        v_add_f32 v{HV+2*r+1}, v{HV+2*r+1}, v{t1}
        v_cvt_pk_bf16_f32 v{HV+2*r}, 0, v{HV+2*r}
        v_cvt_pk_bf16_f32 v{HV+2*r+1}, 0, v{HV+2*r+1}
        """)
    a(f"v_add_f32 v{t0}, v{HV}, v{HV+1}")
    for r in range(2, 8):
        a(f"v_add_f32 v{t0}, v{t0}, v{HV+r}")
    wave_sum(a, t0, t1)
    a(f"v_mul_f32 v{t3}, {f2u(1/512):#x}, v{t0}")
    a(f"v_mov_b32 v{t2}, 0")
    for r in range(8):
        a(f"v_sub_f32 v{t1}, v{HV+r}, v{t3}")
        a(f"v_fmac_f32 v{t2}, v{t1}, v{t1}")
    wave_sum(a, t2, t1)
    a(f"v_mov_b32 v{S}, v{t2}")
    ln_scalars(a, t0, t2, S + 1, S + 2, t1, t3, two_pass_var=True)
    a(f"v_mov_b32 v{t2}, 0")
    for r in range(8):
        a(f"""
        v_sub_f32 v{HN+r}, v{HV+r}, v{S+1}
        v_cvt_pk_bf16_f32 v{HN+r}, 0, v{HN+r}
        v_mul_f32 v{HN+r}, v{HN+r}, v{S+2}
        v_cvt_pk_bf16_f32 v{HN+r}, 0, v{HN+r}
        """)
        if r & 1: a(f"v_and_b32 v{t0}, 0xffff0000, v{WR+r//2}")
        else:     a(f"v_lshlrev_b32 v{t0}, 16, v{WR+r//2}")
        a(f"v_fmac_f32 v{t2}, v{HN+r}, v{t0}")
    for r in range(4):
        a(f"""
        v_add_f32 v{t0}, v{HV+2*r}, v{HN+2*r}
        v_add_f32 v{t1}, v{HV+2*r+1}, v{HN+2*r+1}
        """)
        if probe is not None and r == 0:
            a(f"""
            s_cmp_eq_u32 s3, 0
            s_cselect_b32 s5, {f2u(probe):#x}, 0
            s_mov_b64 exec, 1
            v_add_f32 v{t0}, s5, v{t0}
            s_mov_b64 exec, -1
            """)
        a(f"v_cvt_pk_bf16_f32 v{PK+r}, v{t0}, v{t1}")
    a(f"buffer_store_dwordx4 v[{PK}:{PK+3}], v{t5}, s[20:23], s4 offen")
    wave_sum(a, t2, t1)
    a(f"""
    v_cvt_pk_bf16_f32 v{t2}, 0, v{t2}
    v_ashrrev_i32 v{t0}, 31, v{t2}
    v_or_b32 v{t0}, 0x80000000, v{t0}
    v_xor_b32 v{t2}, v{t2}, v{t0}
    v_and_b32 v{t2}, 0xffff0000, v{t2}
    s_sub_u32 s5, 0xffff, s3
    v_or_b32 v{t2}, s5, v{t2}      ; key
    v_mov_b32 v{t0}, {f2u(2.0**100):#x}
    v_cmp_nlt_f32 vcc, v{vLM}, v{t0}
    v_cmp_nlt_f32 s[36:37], v{S}, v{t0}
    s_or_b64 vcc, vcc, s[36:37]
    s_cmp_lg_u64 vcc, 0
    s_cselect_b32 s5, 1, 0
    v_mov_b32 v{t3}, s5
    s_lshl_b32 s35, s6, 2
    s_add_u32 s35, s35, {L_KEY:#x}
    v_mov_b32 v{t0}, s35
    ds_write_b32 v{t0}, v{t2}
    ds_write_b32 v{t0}, v{t3} offset:32
    v_and_b32 v{t1}, 15, v0
    v_lshlrev_b32 v{t1}, 2, v{t1}
    v_add_u32 v{t1}, {L_KEY:#x}, v{t1}
    s_waitcnt lgkmcnt(0)
    s_barrier
    ds_read_b32 v{t3}, v{t1}
    s_waitcnt lgkmcnt(0)
    v_cmp_gt_u32 vcc, v{t3}, v{t2}
    v_cmp_ne_u32 s[36:37], 0, v{t3}
    s_and_b32 s38, vcc_lo, 0xff
    s_bcnt1_i32_b32 s38, s38       ; rank
    s_and_b32 s36, s36, 0xff00
    s_cmp_eq_u32 s36, 0
    s_cbranch_scc1 K2_fin
    s_cmp_lg_u32 s30, 0
    s_cbranch_scc1 K2_fin
    s_mov_b32 s30, 1
    s_barrier
    s_branch K2_restart
    """)
    a.label("K2_fin")
    stamp(a, 5)
    if G.STAMP: a("s_waitcnt vmcnt(0)")
    stamp(a, 6)
    if G.STAMP: a("s_mov_b32 s91, s30")
    stamp_out(a, 1, 8, "s6", X[0])
    a(f"""
    s_cmp_gt_u32 s38, 1
    s_cbranch_scc1 K2_end
    """)
    for r in range(4):
        a(f"v_cvt_pk_bf16_f32 v{PK+4+r}, v{HV+2*r}, v{HV+2*r+1}")
        a(f"v_cvt_pk_bf16_f32 v{S+4+r}, v{HN+2*r}, v{HN+2*r+1}")
    a(f"""
    s_add_u32 s5, s4, {WS_H:#x}
    buffer_store_dwordx4 v[{PK+4}:{PK+7}], v{t5}, s[8:11], s5 offen
    s_add_u32 s5, s4, {WS_HN:#x}
    buffer_store_dwordx4 v[{S+4}:{S+7}], v{t5}, s[8:11], s5 offen
    s_lshl_b32 s5, s2, 1
    s_add_u32 s5, s5, s38
    s_lshl_b32 s5, s5, 2
    s_add_u32 s5, s5, {WS_KEY:#x}
    v_mov_b32 v{t0}, 0
    s_mov_b64 exec, 1
    buffer_store_dword v{t2}, v{t0}, s[8:11], s5 offen
    """)
    a.label("K2_end")
    a("s_endpgm")
    n = a.fix()
    return a.text(), 256, L_TOTAL
```

```python
import sys
sys.path.insert(0, "gen")
from gen import *
from k2 import gen_k2
from k34 import gen_k3, gen_k4
import argparse
ap = argparse.ArgumentParser()
ap.add_argument("out")
ap.add_argument("--noround", action="store_true")
ap.add_argument("--stamp", action="store_true")
ap.add_argument("--probe", type=float, default=None)
ap.add_argument("--dbg", default="")
ap.add_argument("--noop", default="")
args = ap.parse_args()
set_stamp(args.stamp)
t1, v1, l1 = gen_k1()
t2, v2, l2 = gen_k2(ROUND=not args.noround, probe=args.probe, dbg=args.dbg)
t3, v3, l3 = gen_k3()
t4, v4, l4 = gen_k4()
ks = [("k1_kernel", t1, v1, l1, 256, 256), ("k2_kernel", t2, v2, l2, 256, 512), ("k3_kernel", t3, v3, l3, 112, 256), ("k4_kernel", t4, v4, l4, 32, 64)]
for pos in sorted([int(x) for x in args.noop.split(",") if x], reverse=True):
    ks.insert(pos, ("noop_kernel", "    s_endpgm\n", 8, 0, 256, 256))
build(ks, args.out)
```

```python
import sys, struct
sys.path.insert(0, "gen")
from asmlib import *

NAME = "sequential_preLN__grouped_kv_mqa__moe_arch_mod__prompt"
WS_Q    = 0x000000
WS_K    = 0x200000
WS_VT   = 0x210000
WS_KEY  = 0x220000
WS_SEL  = 0x221000
WS_YP   = 0x230000
WS_H    = 0x300000
WS_HN   = 0x500000
WS_WOF  = 0x780000
WS_SIZE = 0x800000
WS_STAMP = 0x700000
STAMP = False
def set_stamp(v):
    global STAMP
    STAMP = v
def stamp(a, i):
    if not STAMP: return
    a(f"""
    s_memtime s[82:83]
    s_memrealtime s[100:101]
    s_waitcnt lgkmcnt(0)
    s_mov_b32 s{84+i}, s82
    s_mov_b32 s{92+i}, s100
    """)
def stamp_out(a, kid, srd_base, swave, vt):
    if not STAMP: return
    a(f"""
    s_mov_b64 exec, 1
    s_lshl_b32 s82, s2, 3
    s_add_u32 s82, s82, {swave}
    s_lshl_b32 s82, s82, 6
    s_add_u32 s82, s82, {WS_STAMP + kid * 0x20000:#x}
    v_mov_b32 v{vt}, 0
    """)
    for i in range(16):
        a(f"v_mov_b32 v{vt+1}, s{84+i}")
        a(f"buffer_store_dword v{vt+1}, v{vt}, s[{srd_base}:{srd_base+3}], s82 offen offset:{4*i}")
    a("s_mov_b64 exec, -1")

def f2u(x): return struct.unpack("<I", struct.pack("<f", x))[0]

def srd(a, d, lo, hi, size):
    a(f"""
    s_mov_b32 s{d}, s{lo}
    s_mov_b32 s{d+1}, s{hi}
    s_mov_b32 s{d+2}, {size:#x}
    s_mov_b32 s{d+3}, 0x00020000
    """)

def ln_scalars(a, vsum, vsq, vm, vrs, t0, t1, two_pass_var=False):
    a(f"v_mul_f32 v{t0}, {f2u(1/512):#x}, v{vsum}")
    a(f"v_mul_f32 v{t1}, {f2u(1/512):#x}, v{vsq}")
    if not two_pass_var:
        a(f"v_fma_f32 v{t1}, -v{t0}, v{t0}, v{t1}")
        a(f"v_max_f32 v{t1}, 0, v{t1}")
    a(f"""
    v_cvt_pk_bf16_f32 v{vm}, 0, v{t0}
    v_cvt_pk_bf16_f32 v{t1}, 0, v{t1}
    v_add_f32 v{t1}, {f2u(1e-5):#x}, v{t1}
    v_cvt_pk_bf16_f32 v{t1}, 0, v{t1}
    v_sqrt_f32 v{t1}, v{t1}
    v_cvt_pk_bf16_f32 v{t1}, 0, v{t1}
    v_rcp_f32 v{vrs}, v{t1}
    """)

def sum_swap(a, v, t, which):
    a(f"""
    v_mov_b32 v{t}, v{v}
    v_permlane{which}_swap_b32 v{t}, v{v}
    v_add_f32 v{v}, v{v}, v{t}
    """)

def gen_k1():
    a = Asm()
    X = 32
    ACC = 96
    AF = 116
    T = 148
    a(f"""
    s_cmp_ge_u32 s2, 256
    s_cbranch_scc1 K1_end
    """)
    stamp(a, 0)
    a(f"""
    s_load_dwordx4 s[24:27], s[0:1], 0
    s_load_dwordx4 s[28:31], s[0:1], 16
    s_load_dwordx2 s[32:33], s[0:1], 96
    s_load_dwordx2 s[44:45], s[0:1], 32
    s_and_b32 s3, s2, 7
    s_lshr_b32 s4, s2, 3
    s_and_b32 s5, s4, 7
    s_lshr_b32 s4, s4, 3
    s_lshl_b32 s3, s3, 2
    s_add_u32 s3, s3, s4
    v_lshrrev_b32 v1, 6, v0
    v_and_b32 v2, 63, v0           ; lane
    v_readfirstlane_b32 s6, v1     ; wave
    v_and_b32 v3, 15, v2           ; l & 15
    v_lshrrev_b32 v4, 4, v2        ; g
    s_lshl_b32 s7, s3, 6
    s_lshl_b32 s34, s6, 4
    s_add_u32 s7, s7, s34
    v_add_u32 v5, s7, v3           ; token
    v_lshlrev_b32 v6, 10, v5
    v_lshl_add_u32 v6, v4, 4, v6
    v_lshrrev_b32 v7, 3, v2        ; row_in
    v_and_b32 v8, 7, v2            ; slot
    v_and_b32 v9, 2, v7            ; ((row_in>>1)&1)<<1
    v_xor_b32 v8, v8, v9
    v_xor_b32 v9, 4, v8
    s_lshl_b32 s34, s6, 17
    s_lshl_b32 s35, s5, 7
    s_add_u32 s34, s34, s35
    v_lshlrev_b32 v7, 10, v7
    v_add_u32 v7, s34, v7
    v_lshl_add_u32 v10, v8, 4, v7
    v_lshl_add_u32 v11, v9, 4, v7
    s_waitcnt lgkmcnt(0)
    """)
    srd(a, 8, 24, 25, 0x200000)
    srd(a, 12, 26, 27, 0x80000)
    for s in range(16):
        a(f"buffer_load_dwordx4 v[{X+4*s}:{X+4*s+3}], v6, s[8:11], 0 offen offset:{64*s}")
    a("s_lshl_b32 s36, s6, 14")
    a("s_mov_b32 s37, 0")
    for i in range(16):
        a(f"s_add_u32 m0, s36, {i*1024}")
        a(f"buffer_load_dwordx4 v{10 + (i & 1)}, s[12:15], s37 offen lds")
        if i < 15: a(f"s_add_u32 s37, s37, 8192")
    a(f"""
    s_cmp_eq_u32 s5, 0
    s_cselect_b64 s[38:39], s[28:29], s[30:31]
    """)
    srd(a, 16, 38, 39, 0x4000)
    srd(a, 20, 32, 33, WS_SIZE)
    a(f"""
    s_cmp_gt_u32 s5, 1
    s_cbranch_scc1 K1_nokv
    v_lshlrev_b32 v12, 4, v0       ; tid*16
    s_lshl_b32 s36, s6, 10
    s_add_u32 s36, s36, 65536
    """)
    for i in range(4):
        a(f"s_add_u32 m0, s36, {i*4096}")
        a(f"s_mov_b32 s37, {i*4096}")
        a(f"buffer_load_dwordx4 v12, s[16:19], s37 offen lds")
    a.label("K1_nokv")
    srd(a, 40, 44, 45, 0x80000)
    a(f"""
    s_cmp_lt_u32 s6, 2
    s_cbranch_scc1 K1_nowo
    s_lshl_b32 s46, s2, 1
    s_and_b32 s47, s6, 1
    s_add_u32 s46, s46, s47
    s_lshr_b32 s47, s46, 6
    s_lshl_b32 s47, s47, 16
    s_bfe_u32 s48, s46, 0x10002
    s_lshl_b32 s48, s48, 15        ; s * 32 rows
    s_add_u32 s47, s47, s48
    s_bfe_u32 s48, s46, 0x30003
    s_lshl_b32 s48, s48, 7         ; w * 128 B
    s_add_u32 s47, s47, s48
    s_and_b32 s48, s46, 3
    s_lshl_b32 s48, s48, 5         ; t * 32 B
    s_add_u32 s47, s47, s48
    v_lshrrev_b32 v12, 1, v2
    v_lshlrev_b32 v12, 10, v12
    v_and_b32 v18, 1, v2
    v_lshl_add_u32 v12, v18, 4, v12
    s_lshl_b32 s48, s6, 10
    s_add_u32 m0, s48, {81920 - 2048}
    s_nop 0
    buffer_load_dwordx4 v12, s[40:43], s47 offen lds
    """)
    a.label("K1_nowo")
    a(f"""
    v_bfe_u32 v18, v2, 2, 2        ; r'
    v_and_b32 v19, 3, v2           ; c'
    v_lshl_add_u32 v20, v4, 3, v18 ; 8g + r'
    v_lshlrev_b32 v21, 7, v20
    v_lshl_add_u32 v21, v19, 3, v21   ; row*128 + 8c'
    v_lshrrev_b32 v22, 1, v18
    v_and_b32 v23, 1, v4
    v_lshl_or_b32 v22, v23, 1, v22 ; h
    """)
    for t in range(4):
        a(f"v_xor_b32 v23, {t}, v22")
        a(f"v_lshl_add_u32 v{13+t}, v23, 5, v21")
    a(f"""
    v_lshlrev_b32 v17, 5, v20
    v_lshl_add_u32 v17, v19, 3, v17
    v_add_u32 v17, 65536, v17
    v_mov_b32 v24, 0x3f803f80
    v_mov_b32 v25, 0
    v_mov_b32 v26, 0
    """)
    stamp(a, 1)
    a("s_waitcnt vmcnt(16)")
    stamp(a, 2)
    for r in range(64):
        a(f"v_dot2_f32_bf16 v25, v{X+r}, v24, v25")
        a(f"v_dot2_f32_bf16 v26, v{X+r}, v{X+r}, v26")
    for w in (16, 32):
        sum_swap(a, 25, 27, w)
        sum_swap(a, 26, 28, w)
    ln_scalars(a, 25, 26, 28, 30, 27, 29)
    for r in range(64):
        t = T + 2 * (r % 4)
        a(f"""
        v_lshlrev_b32 v{t}, 16, v{X+r}
        v_and_b32 v{t+1}, 0xffff0000, v{X+r}
        v_pk_add_f32 v[{t}:{t+1}], v[{t}:{t+1}], v[28:29] op_sel_hi:[1,0] neg_lo:[0,1] neg_hi:[0,1]
        v_cvt_pk_bf16_f32 v{t}, 0, v{t}
        v_cvt_pk_bf16_f32 v{t+1}, 0, v{t+1}
        v_pk_mul_f32 v[{t}:{t+1}], v[{t}:{t+1}], v[30:31] op_sel_hi:[1,0]
        v_cvt_pk_bf16_f32 v{X+r}, v{t}, v{t+1}
        """)
    stamp(a, 3)
    a("s_waitcnt vmcnt(0)")
    a("s_barrier")
    stamp(a, 4)
    a(f"""
    s_cmp_lt_u32 s6, 2
    s_cbranch_scc1 K1_nowo2
    s_lshl_b32 s48, s6, 10
    s_add_u32 s48, s48, {81920 - 2048 - 65536}
    v_add_u32 v12, s48, v17
    ds_read_b64_tr_b16 v[{T}:{T+1}], v12
    ds_read_b64_tr_b16 v[{T+2}:{T+3}], v12 offset:128
    s_lshl_b32 s46, s46, 10
    s_add_u32 s46, s46, {WS_WOF:#x}
    v_lshlrev_b32 v12, 4, v2
    s_waitcnt lgkmcnt(0)
    buffer_store_dwordx4 v[{T}:{T+3}], v12, s[20:23], s46 offen
    """)
    a.label("K1_nowo2")
    def rd1(u):
        s, t = u >> 2, u & 3
        for half in range(2):
            d = AF + 4 * (u & 7) + 2 * half
            a(f"ds_read_b64_tr_b16 v[{d}:{d+1}], v{13+t} offset:{s*4096 + half*512}")
    for u in range(6): rd1(u)
    for u in range(64):
        s, t = u >> 2, u & 3
        if u + 6 < 64: rd1(u + 6)
        a(f"s_waitcnt lgkmcnt({2 * min(6, 63 - u)})")
        d = AF + 4 * (u & 7)
        c = "0" if s == 0 else f"v[{ACC+4*t}:{ACC+4*t+3}]"
        a(f"v_mfma_f32_16x16x32_bf16 v[{ACC+4*t}:{ACC+4*t+3}], v[{d}:{d+3}], v[{X+4*s}:{X+4*s+3}], {c}")
    a(f"""
    s_lshl_b32 s35, s5, 7
    v_lshlrev_b32 v7, 10, v5
    v_lshl_add_u32 v7, v4, 3, v7
    v_add_u32 v7, s35, v7
    """)
    for r in range(16): a(f"v_cvt_pk_bf16_f32 v{ACC+r}, 0, v{ACC+r}")
    for r in range(16): a(f"v_mul_f32 v{ACC+r}, {f2u(0.25 * 1.4426950408889634):#x}, v{ACC+r}")
    for t in range(4):
        a(f"v_cvt_pk_bf16_f32 v{T+2*t}, v{ACC+4*t}, v{ACC+4*t+1}")
        a(f"v_cvt_pk_bf16_f32 v{T+2*t+1}, v{ACC+4*t+2}, v{ACC+4*t+3}")
        a(f"buffer_store_dwordx2 v[{T+2*t}:{T+2*t+1}], v7, s[20:23], 0 offen offset:{32*t}")
    stamp(a, 5)
    if STAMP: a("s_waitcnt vmcnt(0)")
    stamp(a, 6)
    stamp_out(a, 0, 20, "s6", 158)
    a(f"""
    s_cmp_gt_u32 s5, 1
    s_cbranch_scc1 K1_end
    """)
    KV = ACC + 16
    for hb in range(2):
        for s8 in range(8):
            s = hb * 8 + s8
            for half in range(2):
                d = AF + 4 * s8 + 2 * half
                a(f"ds_read_b64_tr_b16 v[{d}:{d+1}], v17 offset:{s*1024 + half*128}")
        a("s_waitcnt lgkmcnt(0)")
        a("s_cmp_eq_u32 s5, 0")
        a(f"s_cbranch_scc0 K1_v{hb}")
        for s8 in range(8):
            s = hb * 8 + s8
            c = "0" if s == 0 else f"v[{KV}:{KV+3}]"
            a(f"v_mfma_f32_16x16x32_bf16 v[{KV}:{KV+3}], v[{AF+4*s8}:{AF+4*s8+3}], v[{X+4*s}:{X+4*s+3}], {c}")
        a(f"s_branch K1_j{hb}")
        a.label(f"K1_v{hb}")
        for s8 in range(8):
            s = hb * 8 + s8
            c = "0" if s == 0 else f"v[{KV}:{KV+3}]"
            a(f"v_mfma_f32_16x16x32_bf16 v[{KV}:{KV+3}], v[{X+4*s}:{X+4*s+3}], v[{AF+4*s8}:{AF+4*s8+3}], {c}")
        a.label(f"K1_j{hb}")
    a(f"""
    v_lshlrev_b32 v7, 5, v5
    v_lshl_add_u32 v7, v4, 3, v7
    v_add_u32 v7, {WS_K:#x}, v7
    s_lshl_b32 s35, s7, 5
    s_add_u32 s35, s35, {WS_VT:#x}
    v_and_b32 v8, 1, v4
    v_lshlrev_b32 v8, 8, v8
    v_lshl_add_u32 v8, v3, 4, v8
    v_lshrrev_b32 v9, 1, v4
    v_lshl_add_u32 v8, v9, 3, v8
    v_add_u32 v8, s35, v8
    s_cmp_eq_u32 s5, 0
    s_cselect_b64 vcc, -1, 0
    v_cndmask_b32 v7, v8, v7, vcc
    v_cvt_pk_bf16_f32 v{T}, v{KV}, v{KV+1}
    v_cvt_pk_bf16_f32 v{T+1}, v{KV+2}, v{KV+3}
    buffer_store_dwordx2 v[{T}:{T+1}], v7, s[20:23], 0 offen
    """)
    a.label("K1_end")
    a("s_endpgm")
    a.fix()
    return a.text(), 160, 81920 + 2048

KERNELS = []

def build(kernels, path):
    hdr = open(f"cdna_kernels/{NAME}.s.ref").read().split("\n")
    out = []
    for ln in hdr:
        if ln.startswith("; Override") : break
        out.append(ln)
    for (name, text, vg, lds, grid, block) in kernels:
        out.append(f"; @launch kernel={name} grid=({grid},1,1) block=({block},1,1) lds={lds}")
    out.append('.amdgcn_target "amdgcn-amd-amdhsa--gfx950"')
    seen = set()
    for (name, text, vg, lds, grid, block) in kernels:
        if name in seen: continue
        seen.add(name)
        out.append(kernel_header(name) + text)
    out.append("K_all_end:")
    seen = set()
    for (name, text, vg, lds, grid, block) in kernels:
        if name in seen: continue
        seen.add(name)
        out.append(kernel_desc(name, vg))
    open(path, "w").write("\n".join(out))

if __name__ == "__main__":
    t1, v1, l1 = gen_k1()
    ks = [("k1_kernel", t1, v1, l1, 256, 256)]
    build(ks, sys.argv[1] if len(sys.argv) > 1 else f"cdna_kernels/{NAME}.s")
```

```python
from gen import *
import gen as G

L_KV = 65536; L_WOT = 81920; L_X = 81920 + 2048; XS = 1056; L1_TOTAL = L_X + 64 * XS

def gen_k1(dbg=''):
    a = Asm()
    X = 32
    ACC = 96
    AF = 116
    T = 148
    a(f"""
    s_cmp_ge_u32 s2, 256
    s_cbranch_scc1 K1_end
    """)
    stamp(a, 0)
    dstamp(a, 0, False, 200)
    a(f"""
    s_load_dwordx8 s[24:31], s[0:1], 0
    s_load_dwordx2 s[44:45], s[0:1], 32
    s_load_dwordx2 s[32:33], s[0:1], 96
    s_and_b32 s3, s2, 7
    s_lshr_b32 s4, s2, 3
    s_and_b32 s5, s4, 7
    s_lshr_b32 s4, s4, 3           ; tb & 3
    s_lshl_b32 s3, s3, 2
    s_add_u32 s3, s3, s4
    v_lshrrev_b32 v1, 6, v0
    v_and_b32 v2, 63, v0           ; lane
    v_readfirstlane_b32 s6, v1     ; wave
    v_and_b32 v3, 15, v2           ; l & 15
    v_lshrrev_b32 v4, 4, v2        ; g
    v_bfe_u32 v18, v2, 2, 2        ; r'
    v_and_b32 v19, 3, v2           ; c'
    v_lshl_add_u32 v20, v4, 3, v18 ; 8g + r'
    v_lshlrev_b32 v17, 5, v20
    v_lshl_add_u32 v17, v19, 3, v17
    s_cmp_ge_u32 s6, 4
    s_cbranch_scc1 K1_loader
    s_lshl_b32 s7, s3, 6
    s_lshl_b32 s34, s6, 4
    s_add_u32 s7, s7, s34
    v_add_u32 v5, s7, v3           ; token
    v_lshlrev_b32 v6, 4, v2        ; lane*16
    s_mul_i32 s63, s6, {16*XS}
    s_add_u32 s63, s63, {L_X}
    s_lshl_b32 s64, s7, 10
    s_lshl_b32 s62, s5, 1
    v_mul_u32_u24 v10, {XS}, v3
    v_lshl_add_u32 v10, v4, 4, v10
    v_add_u32 v10, s63, v10
    s_waitcnt lgkmcnt(0)
    """)
    stamp(a, 1)
    srd(a, 8, 24, 25, 0x200000)
    def xdma(u):
        a(f"""
        s_add_u32 s48, s62, {u}
        s_and_b32 s48, s48, 15
        s_mul_i32 s49, s48, {XS}
        s_add_u32 m0, s63, s49
        s_lshl_b32 s48, s48, 10
        s_add_u32 s48, s48, s64
        buffer_load_dwordx4 v6, s[8:11], s48 offen lds
        """)
    for u in range(10): xdma(u)
    srd(a, 20, 32, 33, WS_SIZE)
    ONE = 24; SEL = 8
    SEL = 152
    a(f"""
    v_lshlrev_b32 v21, 7, v20
    v_lshl_add_u32 v21, v19, 3, v21   ; row*128 + 8c'
    v_lshrrev_b32 v22, 1, v18
    v_and_b32 v23, 1, v4
    v_lshl_or_b32 v22, v23, 1, v22 ; h
    """)
    for t in range(4):
        a(f"v_xor_b32 v23, {t}, v22")
        a(f"v_lshl_add_u32 v{13+t}, v23, 5, v21")
    a(f"v_add_u32 v17, {L_KV}, v17")
    for r in range(4): a(f"v_mov_b32 v{ONE+r}, 0x3f803f80")
    a(f"""
    v_and_b32 v7, 1, v2
    v_lshlrev_b32 v7, 4, v7
    v_mov_b32 v8, 0x3f80
    v_lshlrev_b32 v7, v7, v8
    v_cmp_eq_u32 s[36:37], v18, v4 ; g == (l&15)>>2
    v_bfe_u32 v8, v2, 1, 1
    v_cmp_eq_u32 vcc, 0, v8
    s_and_b64 s[38:39], s[36:37], vcc
    s_andn2_b64 s[40:41], s[36:37], vcc
    v_mov_b32 v{SEL}, 0
    v_mov_b32 v{SEL+1}, 0
    v_cndmask_b32 v{SEL+2}, 0, v7, s[38:39]
    v_cndmask_b32 v{SEL+3}, 0, v7, s[40:41]
    v_mov_b32 v{SEL+4}, 0
    v_mov_b32 v{SEL+5}, 0
    """)
    for u in range(10, 16): xdma(u)
    stamp(a, 2)
    if 'k1nb' not in dbg: a("s_barrier")
    stamp(a, 3)
    m16 = "v_mfma_f32_16x16x32_bf16"
    SUM = ACC; GR = ACC + 4; NM = ACC + 8
    a("s_waitcnt vmcnt(0)")
    for u in range(16):
        a(f"ds_read_b128 v[{X+4*u}:{X+4*u+3}], v10 offset:{64*u}")
    for u in range(16):
        a(f"s_waitcnt lgkmcnt({15-u})")
        xs = f"v[{X+4*u}:{X+4*u+3}]"
        a(f"{m16} v[{SUM}:{SUM+3}], v[{ONE}:{ONE+3}], {xs}, " + ("0" if u == 0 else f"v[{SUM}:{SUM+3}]"))
        a(f"{m16} v[{GR}:{GR+3}], {xs}, {xs}, " + ("0" if u == 0 else f"v[{GR}:{GR+3}]"))
    stamp(a, 4)
    a(f"""
    v_and_b32 v7, 1, v2
    v_cmp_eq_u32 s[42:43], 1, v7
    v_cndmask_b32 v8, v{GR}, v{GR+1}, s[42:43]
    v_cndmask_b32 v9, v{GR+2}, v{GR+3}, s[42:43]
    v_cndmask_b32 v8, 0, v8, s[38:39]
    v_cndmask_b32 v26, v8, v9, s[40:41]
    """)
    for w in (16, 32):
        sum_swap(a, 26, 28, w)
    ln_scalars(a, SUM, 26, 28, 30, 27, 29)
    for r in range(4): a(f"v_sub_f32 v{NM+r}, 0, v28")
    NB = 4
    def sub(u):
        d = AF + 8 * (u % NB)
        xs = f"v[{X+4*u}:{X+4*u+3}]"
        a(f"{m16} v[{d}:{d+3}], v[{SEL+2}:{SEL+5}], {xs}, v[{NM}:{NM+3}]")
        a(f"{m16} v[{d+4}:{d+7}], v[{SEL}:{SEL+3}], {xs}, v[{NM}:{NM+3}]")
    sub(0); sub(1)
    for u in range(16):
        d = AF + 8 * (u % NB)
        for r in range(4): a(f"v_cvt_pk_bf16_f32 v{d+r}, 0, v{d+r}")
        if u + 2 < 16:
            dd = AF + 8 * ((u + 2) % NB); xs = f"v[{X+4*(u+2)}:{X+4*(u+2)+3}]"
            a(f"{m16} v[{dd}:{dd+3}], v[{SEL+2}:{SEL+5}], {xs}, v[{NM}:{NM+3}]")
        for r in range(4, 8): a(f"v_cvt_pk_bf16_f32 v{d+r}, 0, v{d+r}")
        for r in range(0, 8, 2): a(f"v_pk_mul_f32 v[{d+r}:{d+r+1}], v[{d+r}:{d+r+1}], v[30:31] op_sel_hi:[1,0]")
        if u + 2 < 16:
            a(f"{m16} v[{dd+4}:{dd+7}], v[{SEL}:{SEL+3}], {xs}, v[{NM}:{NM+3}]")
        for r in range(4): a(f"v_cvt_pk_bf16_f32 v{X+4*u+r}, v{d+2*r}, v{d+2*r+1}")
    a("s_barrier")
    stamp(a, 5)
    RG = 160
    def rd(s, t):
        for half in range(2):
            d = RG + 20 * (s % 3) + 4 * t + 2 * half
            if t < 4: a(f"ds_read_b64_tr_b16 v[{d}:{d+1}], v{13+t} offset:{s*4096 + half*512}")
            else:     a(f"ds_read_b64_tr_b16 v[{d}:{d+1}], v17 offset:{s*1024 + half*128}")
    for t in range(5): rd(0, t)
    for t in range(5): rd(1, t)
    for s in range(16):
        a(f"s_waitcnt lgkmcnt({10 if s < 15 else 0})")
        for t in range(5):
            d = RG + 20 * (s % 3) + 4 * t
            c = "0" if s == 0 else f"v[{ACC+4*t}:{ACC+4*t+3}]"
            a(f"{m16} v[{ACC+4*t}:{ACC+4*t+3}], v[{d}:{d+3}], v[{X+4*s}:{X+4*s+3}], {c}")
            if s + 2 < 16: rd(s + 2, t)
    a(f"""
    s_lshl_b32 s35, s5, 7
    v_lshlrev_b32 v7, 10, v5
    v_lshl_add_u32 v7, v4, 3, v7
    v_add_u32 v7, s35, v7
    """)
    for t in range(4):
        for r in range(4): a(f"v_cvt_pk_bf16_f32 v{ACC+4*t+r}, 0, v{ACC+4*t+r}")
        for r in range(4): a(f"v_mul_f32 v{ACC+4*t+r}, {f2u(0.25 * 1.4426950408889634):#x}, v{ACC+4*t+r}")
        a(f"v_cvt_pk_bf16_f32 v{AF+2*t}, v{ACC+4*t}, v{ACC+4*t+1}")
        a(f"v_cvt_pk_bf16_f32 v{AF+2*t+1}, v{ACC+4*t+2}, v{ACC+4*t+3}")
        a(f"buffer_store_dwordx2 v[{AF+2*t}:{AF+2*t+1}], v7, s[20:23], 0 offen offset:{32*t}")
    KV = ACC + 16
    a(f"""
    s_cmp_gt_u32 s5, 1
    s_cbranch_scc1 K1_q
    v_cvt_pk_bf16_f32 v{T}, v{KV}, v{KV+1}
    v_cvt_pk_bf16_f32 v{T+1}, v{KV+2}, v{KV+3}
    s_cmp_eq_u32 s5, 0
    s_cbranch_scc0 K1_v
    v_lshrrev_b32 v8, 5, v5
    v_lshlrev_b32 v8, 10, v8
    v_and_b32 v9, 31, v5
    v_lshl_add_u32 v8, v9, 4, v8
    v_lshrrev_b32 v9, 1, v4
    v_lshl_add_u32 v8, v9, 9, v8
    v_and_b32 v9, 1, v4
    v_lshl_add_u32 v8, v9, 3, v8
    v_add_u32 v8, {WS_K:#x}, v8
    buffer_store_dwordx2 v[{T}:{T+1}], v8, s[20:23], 0 offen
    s_branch K1_q
    """)
    a.label("K1_v")
    a(f"""
    s_lshl_b32 s35, s7, 5
    s_add_u32 s35, s35, {WS_VT:#x}
    v_bfe_u32 v8, v3, 2, 1
    v_lshlrev_b32 v8, 8, v8
    v_lshl_add_u32 v8, v4, 6, v8
    v_lshrrev_b32 v9, 3, v3
    v_lshl_add_u32 v8, v9, 3, v8
    v_and_b32 v9, 3, v3
    v_lshl_add_u32 v8, v9, 1, v8
    buffer_store_short v{T}, v8, s[20:23], s35 offen
    buffer_store_short_d16_hi v{T}, v8, s[20:23], s35 offen offset:16
    buffer_store_short v{T+1}, v8, s[20:23], s35 offen offset:32
    buffer_store_short_d16_hi v{T+1}, v8, s[20:23], s35 offen offset:48
    """)
    a.label("K1_q")
    if G.STAMP: a("s_waitcnt vmcnt(0)")
    stamp(a, 6)
    stamp_out(a, 0, 20, "s6", 158)
    dstamp(a, 0, True, 200)
    a("s_endpgm")
    a.label("K1_loader")
    if 'noldprio' not in dbg: a("s_setprio 3")
    if 'nocodepf' not in dbg:
        a(f"""
        s_cmp_ge_u32 s2, 16
        s_cbranch_scc1 K1_nocp
        s_getpc_b64 s[60:61]
        """)
        a.label("K1_pc")
        a(f"""
        s_sub_u32 s60, s60, K1_pc-k1_kernel
        s_subb_u32 s61, s61, 0
        v_subrev_u32 v30, 256, v0
        v_lshlrev_b32 v30, 7, v30
        v_min_u32 v30, K_all_end-k1_kernel-4, v30
        global_load_dword v31, v30, s[60:61]
        """)
        a.label("K1_nocp")
    a(f"""
    s_sub_u32 s6, s6, 4
    v_lshrrev_b32 v7, 3, v2        ; row_in
    v_and_b32 v8, 7, v2            ; slot
    v_and_b32 v9, 2, v7
    v_xor_b32 v8, v8, v9
    v_xor_b32 v9, 4, v8
    s_lshl_b32 s35, s5, 7
    v_lshlrev_b32 v7, 10, v7
    v_add_u32 v7, s35, v7
    v_lshl_add_u32 v10, v8, 4, v7
    v_lshl_add_u32 v11, v9, 4, v7
    v_lshlrev_b32 v12, 4, v2       ; lane*16
    v_lshrrev_b32 v13, 1, v2
    v_lshlrev_b32 v13, 10, v13
    v_and_b32 v14, 1, v2
    v_lshl_add_u32 v13, v14, 4, v13
    s_lshl_b32 s36, s6, 14
    s_lshl_b32 s37, s6, 4
    s_lshl_b32 s39, s4, 2
    s_waitcnt lgkmcnt(0)
    """)
    srd(a, 12, 26, 27, 0x80000)
    if 'wpf' in dbg:
        a(f"""
        s_lshr_b32 s48, s2, 3
        s_lshl_b32 s48, s48, 14
        s_and_b32 s49, s6, 1
        s_lshl_b32 s49, s49, 13
        s_add_u32 s48, s48, s49
        v_lshlrev_b32 v30, 7, v2
        s_cmp_gt_u32 s6, 1
        s_cbranch_scc1 K1_nopf
        buffer_load_dword v29, v30, s[12:15], s48 offen
        """)
        a.label("K1_nopf")
    a(f"""
    s_cmp_eq_u32 s5, 0
    s_cselect_b64 s[46:47], s[28:29], s[30:31]
    """)
    srd(a, 16, 46, 47, 0x4000)
    srd(a, 40, 44, 45, 0x80000)
    srd(a, 20, 32, 33, WS_SIZE)
    if 'k1nb' not in dbg: a("s_barrier")
    for i in range(16):
        a(f"""
        s_add_u32 s48, s39, {i}
        s_and_b32 s48, s48, 15
        s_lshl_b32 s49, s48, 10
        s_add_u32 m0, s36, s49
        s_add_u32 s48, s48, s37
        s_lshl_b32 s48, s48, 13
        buffer_load_dwordx4 v{10 + (i & 1)}, s[12:15], s48 offen lds
        """)
    a(f"""
    s_cmp_gt_u32 s5, 1
    s_cbranch_scc1 K1_nokv
    s_lshl_b32 s36, s6, 12
    """)
    for i in range(4):
        a(f"""
        s_add_u32 s48, s36, {i*1024}
        s_add_u32 m0, s48, {L_KV}
        buffer_load_dwordx4 v12, s[16:19], s48 offen lds
        """)
    a.label("K1_nokv")
    a(f"""
    s_cmp_lt_u32 s6, 2
    s_cbranch_scc1 K1_nowo
    s_lshl_b32 s46, s2, 1
    s_and_b32 s47, s6, 1
    s_add_u32 s46, s46, s47
    s_lshr_b32 s47, s46, 6
    s_lshl_b32 s47, s47, 16
    s_bfe_u32 s48, s46, 0x10002
    s_lshl_b32 s48, s48, 15        ; s * 32 rows
    s_add_u32 s47, s47, s48
    s_bfe_u32 s48, s46, 0x30003
    s_lshl_b32 s48, s48, 7         ; w * 128 B
    s_add_u32 s47, s47, s48
    s_and_b32 s48, s46, 3
    s_lshl_b32 s48, s48, 5         ; t * 32 B
    s_add_u32 s47, s47, s48
    s_lshl_b32 s48, s6, 10
    s_add_u32 s48, s48, {L_WOT - 2048}
    s_mov_b32 m0, s48
    v_add_u32 v17, s48, v17
    buffer_load_dwordx4 v13, s[40:43], s47 offen lds
    s_waitcnt vmcnt(1)
    s_barrier
    s_waitcnt vmcnt(0)
    ds_read_b64_tr_b16 v[32:33], v17
    ds_read_b64_tr_b16 v[34:35], v17 offset:128
    s_lshl_b32 s46, s46, 10
    s_add_u32 s46, s46, {WS_WOF:#x}
    s_waitcnt lgkmcnt(0)
    buffer_store_dwordx4 v[32:35], v12, s[20:23], s46 offen
    s_endpgm
    """)
    a.label("K1_nowo")
    a("s_waitcnt vmcnt(0)")
    a("s_barrier")
    a.label("K1_end")
    a("s_endpgm")
    a.fix()
    return a.text(), 220, L1_TOTAL
```

```python
from gen import *
import gen as G

L_PART = 0x0; L_Q = 0x6000; L_MREF = 0x8400; L_OB = 0xA800; L_KEY = 0xAC00; L_MX = 0xB000; L_HB = 0xB400
L_TOTAL = 0xD600
C_EXACT = 0.25 * 1.4426950408889634
OFFS = 96.0

def wave_sum(a, vs, ts):
    if isinstance(vs, int): vs, ts = [vs], [ts]
    for mod in ("quad_perm:[1,0,3,2]", "quad_perm:[2,3,0,1]", "row_half_mirror", "row_mirror"):
        for v in vs:
            a(f"v_add_f32_dpp v{v}, v{v}, v{v} {mod} row_mask:0xf bank_mask:0xf")
    for w in (16, 32):
        for v, t in zip(vs, ts): a(f"v_mov_b32 v{t}, v{v}")
        for v, t in zip(vs, ts): a(f"v_permlane{w}_swap_b32 v{t}, v{v}")
        for v, t in zip(vs, ts): a(f"v_add_f32 v{v}, v{v}, v{t}")

class VM:
    def __init__(self, a): self.a = a; self.q = []; self.done = -1
    def issue(self, tag): self.q.append(tag)
    def wait(self, tag):
        i = max(k for k, t in enumerate(self.q) if t == tag)
        if i <= self.done: return
        self.done = i
        self.a(f"s_waitcnt vmcnt({len(self.q) - 1 - i})")

def gen_k2(dbg='', prio=True):
    a = Asm()
    K = 16; V = 48; X = [112, 128]; O = 144; CM = 160; SP = 176; Q = 184; OA = 188; WF = 204; BF = 236; S1 = 240
    vQA, vPW, vPR, vPL, vOW, vOR, vLM, vWL, vKL, vVL = 1, 2, 3, 4, 5, 6, 7, 8, 9, 10
    t0, t1, t2, t3, t4 = 11, 12, 13, 14, 15
    a(f"""
    s_cmp_ge_u32 s2, 256
    s_cbranch_scc1 K2_end
    """)
    stamp(a, 0)
    dstamp(a, 1, False, 240)
    a(f"""
    s_load_dwordx2 s[48:49], s[0:1], 96
    s_load_dwordx2 s[40:41], s[0:1], 0
    s_load_dwordx8 s[60:67], s[0:1], 48
    s_load_dwordx2 s[46:47], s[0:1], 80
    s_and_b32 s3, s2, 7
    s_lshr_b32 s4, s2, 3
    s_lshl_b32 s7, s3, 8
    s_lshl_b32 s5, s4, 3
    s_add_u32 s7, s7, s5           ; T0
    s_and_b32 s28, s4, 7           ; rot
    v_lshrrev_b32 v{t0}, 6, v0
    v_and_b32 v0, 63, v0
    v_readfirstlane_b32 s6, v{t0}
    s_mov_b32 s30, 0
    v_lshrrev_b32 v{t2}, 5, v0     ; hh
    v_and_b32 v{vVL}, 15, v0
    v_lshlrev_b32 v{vVL}, 4, v{vVL}
    v_lshl_add_u32 v{vVL}, v{t2}, 8, v{vVL}
    v_add_u32 v{vVL}, {WS_VT - WS_K:#x}, v{vVL}
    v_lshlrev_b32 v{vWL}, 4, v0
    s_lshl_b32 s3, s6, 13
    s_add_u32 s3, s3, {WS_K:#x}
    """)
    for t in range(8):
        a(f"""
        s_add_u32 s4, s28, {t}
        s_and_b32 s4, s4, 7
        s_lshl_b32 s4, s4, 10
        s_add_u32 s{50+t}, s3, s4
        """)
    a.label("K2_restart")
    a(f"""
    s_add_u32 s3, s6, s28
    s_and_b32 s3, s3, 7
    s_lshl_b32 s3, s3, 7
    s_lshl_b32 s4, s7, 10
    s_add_u32 s3, s3, s4
    v_and_b32 v{t0}, 7, v0
    v_lshlrev_b32 v{t0}, 10, v{t0}
    v_bfe_u32 v{t1}, v0, 3, 2
    v_lshl_add_u32 v{t0}, v{t1}, 5, v{t0}
    v_lshrrev_b32 v{t2}, 5, v0     ; hh
    v_lshl_add_u32 v{t0}, v{t2}, 4, v{t0}
    s_waitcnt lgkmcnt(0)
    """)
    srd(a, 8, 48, 49, WS_SIZE)
    vm = VM(a)
    def ldK(t):
        a(f"buffer_load_dwordx4 v[{K+4*t}:{K+4*t+3}], v{vWL}, s[8:11], s{50+t} offen"); vm.issue(f"K{t}")
    def ldV(t):
        a("s_mov_b64 exec, s[58:59]")
        for h in range(2):
            a(f"buffer_load_dwordx4 v[{V+8*t+4*h}:{V+8*t+4*h+3}], v{vVL}, s[8:11], s{50+t} offen offset:{512*h}"); vm.issue(f"V{t}{h}")
        a("s_mov_b64 exec, -1")
    a(f"buffer_load_dwordx4 v[{Q}:{Q+3}], v{t0}, s[8:11], s3 offen"); vm.issue("Q")
    ldK(0); ldK(1)
    a(f"""
    s_mov_b32 s58, 0xffff
    s_mov_b32 s59, 0xffff
    v_and_b32 v{t1}, 27, v0
    v_cmp_eq_u32 vcc, 16, v{t1}
    v_mov_b32 v{t3}, 0x3f803f80
    v_cndmask_b32 v{t3}, 0, v{t3}, vcc
    """)
    for r in range(16):
        a(f"v_mov_b32 v{V+r}, v{t3}")
    ldV(0); ldK(2); ldV(1)
    for r in range(16, 64):
        a(f"v_mov_b32 v{V+r}, v{t3}")
    srd(a, 16, 40, 41, 0x200000)
    srd(a, 20, 46, 47, 0x200000)
    srd(a, 24, 60, 61, 0x400)
    a(f"""
    v_add_u32 v{vQA}, {L_Q:#x}, v{vWL}
    v_and_b32 v{t1}, 31, v0
    v_mul_u32_u24 v{vPW}, 96, v{t1}
    v_lshl_add_u32 v{vPW}, v{t2}, 4, v{vPW}
    s_mul_i32 s3, s6, 3072
    v_add_u32 v{vPW}, s3, v{vPW}
    v_lshrrev_b32 v{t0}, 4, v0     ; g
    s_lshl_b32 s3, s6, 2
    v_add_u32 v{t1}, s3, v{t0}     ; n = 4w + g
    v_mul_u32_u24 v{vPL}, 96, v{t1}
    v_and_b32 v{t3}, 15, v0        ; d
    v_lshl_add_u32 v{vPR}, v{t3}, 2, v{vPL}
    v_add_u32 v{vPL}, 64, v{vPL}
    v_and_b32 v{t4}, 7, v{t1}      ; token
    v_lshrrev_b32 v{t1}, 3, v{t1}  ; head_local
    v_lshlrev_b32 v{vOW}, 7, v{t4}
    v_lshl_add_u32 v{vOW}, v{t1}, 5, v{vOW}
    v_lshl_add_u32 v{vOW}, v{t3}, 1, v{vOW}
    v_add_u32 v{vOW}, {L_OB:#x}, v{vOW}
    v_and_b32 v{t4}, 7, v0
    v_lshlrev_b32 v{vOR}, 7, v{t4}
    v_lshl_add_u32 v{vOR}, v{t0}, 4, v{vOR}
    v_add_u32 v{vOR}, {L_OB:#x}, v{vOR}
    v_mov_b32 v{vLM}, 0
    s_lshl_b32 s31, s28, 16
    s_lshl_b32 s33, s6, 13
    s_add_u32 s33, s33, {WS_WOF:#x}
    s_lshl_b32 s3, s6, 10
    v_add_u32 v{t3}, s3, v{vQA}
    """)
    for r in range(16):
        a(f"v_mov_b32 v{OA+r}, 0")
    stamp(a, 1)
    vm.wait("Q")
    a(f"""
    ds_write_b128 v{t3}, v[{Q}:{Q+3}]
    s_cmp_lg_u32 s30, 0
    s_cbranch_scc1 K2_safe
    """)
    vm.wait("K1")
    a(f"""
    v_mfma_f32_32x32x16_bf16 v[{X[0]}:{X[0]+15}], v[{K}:{K+3}], v[{Q}:{Q+3}], 0
    v_mfma_f32_32x32x16_bf16 v[{X[1]}:{X[1]+15}], v[{K+4}:{K+7}], v[{Q}:{Q+3}], 0
    """)
    S = X[0]
    a(f"v_max3_f32 v{t0}, v{S}, v{S+1}, v{S+2}")
    for r in range(3, 31, 2):
        a(f"v_max3_f32 v{t0}, v{t0}, v{S+r}, v{S+r+1}")
    a(f"""
    v_max_f32 v{t0}, v{t0}, v{S+31}
    v_mov_b32 v{t1}, v{t0}
    v_permlane32_swap_b32 v{t1}, v{t0}
    v_max_f32 v{t0}, v{t0}, v{t1}
    v_mov_b32 v{t1}, {f2u(-OFFS):#x}
    s_branch K2_mref
    """)
    a.label("K2_safe")
    a(f"""
    v_and_b32 v{t0}, 31, v0
    v_lshlrev_b32 v{t4}, 2, v{t0}
    v_add_u32 v{t4}, {L_MX:#x}, v{t4}
    s_lshl_b32 s3, s6, 7
    v_add_u32 v{t2}, s3, v{t4}
    v_mov_b32 v{t0}, 0xff800000
    ds_write_b32 v{t2}, v{t0}
    s_waitcnt vmcnt(0) lgkmcnt(0)
    s_barrier
    v_mov_b32 v{t1}, v{vQA}
    s_mov_b32 s29, 0
    """)
    a.label("K2_safe_loop")
    a(f"""
    ds_read_b128 v[{BF}:{BF+3}], v{t1}
    v_mov_b32 v{t0}, 0xff800000
    s_waitcnt lgkmcnt(0)
    """)
    for t in range(8):
        a(f"v_mfma_f32_32x32x16_bf16 v[{S}:{S+15}], v[{K+4*t}:{K+4*t+3}], v[{BF}:{BF+3}], 0")
        for r in range(0, 16, 2):
            a(f"v_max3_f32 v{t0}, v{t0}, v{S+r}, v{S+r+1}")
    a(f"""
    ds_max_f32 v{t4}, v{t0}
    v_add_u32 v{t1}, 1024, v{t1}
    v_add_u32 v{t4}, 128, v{t4}
    s_add_u32 s29, s29, 1
    s_cmp_lt_u32 s29, 8
    s_cbranch_scc1 K2_safe_loop
    s_waitcnt lgkmcnt(0)
    s_barrier
    ds_read_b32 v{t0}, v{t2}
    v_mov_b32 v{t1}, 0
    s_waitcnt lgkmcnt(0)
    """)
    a.label("K2_mref")
    a(f"""
    v_sub_f32 v{BF}, v{t1}, v{t0}
    v_sub_f32 v{BF+1}, v{t1}, v{t0}
    v_sub_f32 v{BF+2}, v{t1}, v{t0}
    v_sub_f32 v{BF+3}, v{t1}, v{t0}
    ds_write_b128 v{t3}, v[{BF}:{BF+3}] offset:{L_MREF - L_Q}
    s_waitcnt lgkmcnt(0)
    s_barrier
    """)
    def rd_qcm():
        a(f"ds_read_b128 v[{Q}:{Q+3}], v{vQA}")
        for k in range(4):
            a(f"ds_read_b128 v[{CM+4*k}:{CM+4*k+3}], v{vQA} offset:{L_MREF - L_Q}")
        a(f"v_add_u32 v{vQA}, 1024, v{vQA}")
    mf = "v_mfma_f32_32x32x16_bf16"
    def M1(kt, xb):
        a(f"{mf} v[{X[xb]}:{X[xb]+15}], v[{K+4*kt}:{K+4*kt+3}], v[{Q}:{Q+3}], v[{CM}:{CM+15}]")
    def E(xb, lo, hi):
        for r in range(lo, hi):
            a(f"v_exp_f32 v{X[xb]+r}, v{X[xb]+r}")
    def C2(h, xb):
        for k in range(4):
            a(f"v_cvt_pk_bf16_f32 v{SP+4*h+k}, v{X[xb]+8*h+2*k}, v{X[xb]+8*h+2*k+1}")
    def M3(h, kt, first=False):
        c = "0" if first else f"v[{O}:{O+15}]"
        a(f"{mf} v[{O}:{O+15}], v[{V+8*kt+4*h}:{V+8*kt+4*h+3}], v[{SP+4*h}:{SP+4*h+3}], {c}")
    def part_write():
        a(f"""
        ds_write_b128 v{vPW}, v[{O}:{O+3}]
        ds_write_b128 v{vPW}, v[{O+4}:{O+7}] offset:32
        ds_write_b32 v{vPW}, v{O+8} offset:64
        """)
    def s1_read():
        for k in range(4):
            a(f"ds_read2st64_b32 v[{S1+2*k}:{S1+2*k+1}], v{vPR} offset0:{24*k} offset1:{24*k+12}")
        for k in range(4):
            a(f"ds_read2st64_b32 v[{S1+8+2*k}:{S1+8+2*k+1}], v{vPL} offset0:{24*k} offset1:{24*k+12}")
    def s1_calc():
        for (x, y) in ((0, 1), (2, 3), (4, 5), (6, 7), (0, 2), (4, 6), (0, 4)):
            a(f"v_add_f32 v{S1+8+x}, v{S1+8+x}, v{S1+8+y}")
            a(f"v_add_f32 v{S1+x}, v{S1+x}, v{S1+y}")
        a(f"""
        v_rcp_f32 v{S1+1}, v{S1+8}
        v_maximum3_f32 v{vLM}, v{vLM}, v{S1+8}, abs(v{S1})
        v_mul_f32 v{S1}, v{S1}, v{S1+1}
        v_cvt_pk_bf16_f32 v{S1}, v{S1}, v{S1}
        ds_write_b16 v{vOW}, v{S1}
        """)
    def s2_read():
        for s in range(2):
            a(f"ds_read_b128 v[{BF+4*s}:{BF+4*s+3}], v{vOR} offset:{64*s}")
    def s2_mma(lo, hi):
        for u in range(lo, hi):
            s, t = u >> 2, u & 3
            a(f"v_mfma_f32_16x16x32_bf16 v[{OA+4*t}:{OA+4*t+3}], v[{WF+4*u}:{WF+4*u+3}], v[{BF+4*s}:{BF+4*s+3}], v[{OA+4*t}:{OA+4*t+3}]")
    def wf_load(lo, hi):
        if lo == 0:
            a("s_add_u32 s34, s33, s31")
            a("s_add_u32 s35, s34, 4096")
            a("s_add_u32 s31, s31, 0x10000")
            a("s_and_b32 s31, s31, 0x7ffff")
        for u in range(lo, hi):
            a(f"buffer_load_dwordx4 v[{WF+4*u}:{WF+4*u+3}], v{vWL}, s[8:11], s{34 + (u >> 2)} offen offset:{1024*(u&3)}")
            vm.issue("WF")
    def ffn_prefetch():
        a(f"""
        s_cmp_gt_u32 s6, 2
        s_cbranch_scc1 K2_nopf
        s_cmp_eq_u32 s6, 1
        s_cselect_b64 s[36:37], s[64:65], s[62:63]
        s_cmp_eq_u32 s6, 2
        s_cselect_b64 s[36:37], s[66:67], s[36:37]
        """)
        srd(a, 12, 36, 37, 512 * 1792 * 2)
        a(f"""
        s_and_b32 s3, s2, 7
        s_lshr_b32 s4, s2, 3
        s_mul_i32 s5, s4, {16*3584}
        s_mul_i32 s36, s3, 448
        s_and_b32 s36, s36, 0xffffff80
        s_add_u32 s5, s5, s36
        s_mul_i32 s36, s3, {224*1024}
        s_mul_i32 s37, s4, {56*128}
        s_add_u32 s36, s36, s37
        v_lshrrev_b32 v{t0}, 2, v0
        v_mul_u32_u24 v{t0}, 3584, v{t0}
        v_and_b32 v{t1}, 3, v0
        v_lshl_add_u32 v{t0}, v{t1}, 7, v{t0}
        v_lshlrev_b32 v{t1}, 7, v0
        s_cmp_eq_u32 s6, 2
        s_cselect_b32 s5, s36, s5
        s_cselect_b64 vcc, -1, 0
        v_cndmask_b32 v{t0}, v{t0}, v{t1}, vcc
        buffer_load_dword v{t1}, v{t0}, s[12:15], s5 offen
        """)
        a.label("K2_nopf")
    def setprio(p):
        if prio: a(f"s_setprio {p}")
    stamp(a, 2)
    rd_qcm()
    a("s_waitcnt lgkmcnt(0)")
    M1(0, 0)
    a("s_mov_b32 s29, 1")
    setprio(3)
    ldK(3); ldV(2)
    stamp(a, 3)
    def tile(i, hook):
        xb = i & 1; xn = xb ^ 1
        hook(i, 'a')
        E(xb, 0, 2)
        hook(i, 'm3b')
        E(xb, 2, 8)
        hook(i, 'm1')
        M1((i + 1) & 7, xn)
        hook(i, 0)
        C2(0, xb); E(xb, 8, 12)
        hook(i, 1)
        M3(0, i, first=(i == 0))
        hook(i, 2)
        E(xb, 12, 16); C2(1, xb)
    def hook0(i, pos):
        if pos == 'a' and i in (3, 5, 7): setprio({3: 2, 5: 1, 7: 1}[i])
        if pos == 'm3b' and i > 0:
            vm.wait(f"V{i-1}1"); M3(1, i - 1)
        if pos == 'm1':
            if i < 7: vm.wait(f"K{i+1}")
            else: a("s_waitcnt lgkmcnt(0)")
        if pos == 0:
            if i + 4 <= 7: ldK(i + 4)
            if i + 3 <= 7: ldV(i + 3)
            if i == 5: wf_load(0, 4)
            if i == 6: wf_load(4, 8)
        if pos == 1:
            if i == 6: rd_qcm()
            vm.wait(f"V{i}0")
        if pos == 2 and i == 7:
            vm.wait("V71")
            if 'nopf' not in dbg: ffn_prefetch()
    for i in range(8): tile(i, hook0)
    a.raw(".p2align 3")
    a.label("K2_round")
    def hook(i, pos):
        if pos == 'm3b': M3(1, (i - 1) & 7)
        if pos == 'm1' and i == 7: a("s_waitcnt lgkmcnt(0)")
        if pos == 1 and i == 6: rd_qcm()
        if pos == 'a' and i in (0, 6, 7): setprio({6: 2, 7: 1, 0: 0}[i])
        if 'nohook' in dbg: return
        D = lambda k: k in dbg
        bar = lambda: None if D('nobar') else a("s_barrier")
        mma = (lambda lo, hi: None) if D('nomma') else s2_mma
        wfl = (lambda lo, hi: None) if D('nowf') else wf_load
        if i == 0 and pos == 1 and not D('nopw'): part_write()
        if i == 1 and pos == 0:
            a("s_waitcnt lgkmcnt(0)"); bar(); setprio(2)
            if not D('nos1'): s1_read()
        if i == 2 and pos == 0:
            a("s_waitcnt lgkmcnt(0)")
            if not D('nos1'): s1_calc()
            setprio(1)
        if i == 3 and pos == 0: setprio(0)
        if i == 4 and pos == 0:
            a("s_waitcnt vmcnt(0) lgkmcnt(0)"); bar(); setprio(3); s2_read()
        if i == 4 and pos == 2:
            a("s_waitcnt lgkmcnt(0)"); mma(0, 2)
        if i == 5 and pos == 'm1': mma(2, 4); wfl(0, 2)
        if i == 5 and pos == 1: mma(4, 6); wfl(2, 4)
        if i == 6 and pos == 'a': mma(6, 8); wfl(4, 6)
        if i == 6 and pos == 0: wfl(6, 8)
    for i in range(8): tile(i, hook)
    a(f"""
    s_add_u32 s29, s29, 1
    s_cmp_lt_u32 s29, 8
    s_cbranch_scc1 K2_round
    """)
    stamp(a, 4)
    M3(1, 7)
    XR = CM; WR = CM + 4; HV = X[0]; HN = X[0] + 8; PK = X[1]; ST = X[1] + 8
    a(f"""
    s_add_u32 s3, s7, s6
    s_lshl_b32 s4, s3, 10
    buffer_load_dwordx4 v[{XR}:{XR+3}], v{vWL}, s[16:19], s4 offen
    buffer_load_dwordx4 v[{WR}:{WR+3}], v{vWL}, s[24:27], 0 offen
    v_and_b32 v{t0}, 7, v0
    v_mul_u32_u24 v{t0}, 1040, v{t0}
    v_lshrrev_b32 v{t1}, 4, v0
    v_lshl_add_u32 v{t0}, v{t1}, 3, v{t0}
    s_lshl_b32 s5, s6, 7
    s_add_u32 s5, s5, {L_HB:#x}
    v_add_u32 v{t0}, s5, v{t0}
    s_mul_i32 s5, s6, 1040
    s_add_u32 s5, s5, {L_HB:#x}
    v_add_u32 v{t1}, s5, v{vWL}
    s_lshl_b32 s35, s6, 2
    s_add_u32 s35, s35, {L_KEY:#x}
    v_mov_b32 v{t4}, s35
    v_and_b32 v{t3}, 7, v0
    v_lshlrev_b32 v{t3}, 2, v{t3}
    v_add_u32 v{t3}, {L_KEY:#x}, v{t3}
    """)
    part_write()
    a("s_waitcnt lgkmcnt(0)"); a("s_barrier"); s1_read()
    a("s_waitcnt lgkmcnt(0)"); s1_calc()
    a(f"""
    v_mov_b32 v{t2}, {f2u(2.0**124):#x}
    v_cmp_nlt_f32 vcc, v{vLM}, v{t2}
    s_cmp_lg_u64 vcc, 0
    s_cselect_b32 s5, 1, 0
    v_mov_b32 v{t2}, s5
    ds_write_b32 v{t4}, v{t2} offset:32
    """)
    a("s_waitcnt vmcnt(2) lgkmcnt(0)"); a("s_barrier"); s2_read()
    a(f"ds_read_b32 v{t2}, v{t3} offset:32")
    a("s_waitcnt lgkmcnt(1)"); s2_mma(0, 8)
    a(f"""
    s_waitcnt lgkmcnt(0)
    v_cmp_ne_u32 vcc, 0, v{t2}
    s_cmp_eq_u64 vcc, 0
    s_cbranch_scc1 K2_good
    s_cmp_lg_u32 s30, 0
    s_cbranch_scc1 K2_good
    s_mov_b32 s30, 1
    s_waitcnt vmcnt(0)
    s_setprio 0
    s_branch K2_restart
    """)
    a.label("K2_good")
    for t in range(4):
        a(f"v_cvt_pk_bf16_f32 v{S1+2*t}, v{OA+4*t}, v{OA+4*t+1}")
        a(f"v_cvt_pk_bf16_f32 v{S1+2*t+1}, v{OA+4*t+2}, v{OA+4*t+3}")
        a(f"ds_write_b64 v{t0}, v[{S1+2*t}:{S1+2*t+1}] offset:{32*t}")
    a("s_waitcnt vmcnt(0)")
    for r in range(4):
        a(f"v_lshlrev_b32 v{HV+2*r}, 16, v{XR+r}")
        a(f"v_and_b32 v{HV+2*r+1}, 0xffff0000, v{XR+r}")
        a(f"v_lshlrev_b32 v{WF+2*r}, 16, v{WR+r}")
        a(f"v_and_b32 v{WF+2*r+1}, 0xffff0000, v{WR+r}")
    a(f"""
    s_waitcnt lgkmcnt(0)
    s_barrier
    ds_read_b128 v[{BF}:{BF+3}], v{t1}
    s_waitcnt lgkmcnt(0)
    """)
    for r in range(4):
        a(f"v_lshlrev_b32 v{HN+2*r}, 16, v{BF+r}")
        a(f"v_and_b32 v{HN+2*r+1}, 0xffff0000, v{BF+r}")
    for r in range(8): a(f"v_add_f32 v{HV+r}, v{HV+r}, v{HN+r}")
    for r in range(8): a(f"v_cvt_pk_bf16_f32 v{HV+r}, 0, v{HV+r}")
    a(f"v_add_f32 v{t0}, v{HV}, v{HV+1}")
    a(f"v_mul_f32 v{t2}, v{HV}, v{HV}")
    a(f"v_fmac_f32 v{t2}, v{HV+1}, v{HV+1}")
    for r in range(2, 8):
        a(f"v_add_f32 v{t0}, v{t0}, v{HV+r}")
        a(f"v_fmac_f32 v{t2}, v{HV+r}, v{HV+r}")
    wave_sum(a, [t0, t2], [ST, ST + 1])
    ln_scalars(a, t0, t2, ST, ST + 1, ST + 2, ST + 3)
    for r in range(8): a(f"v_sub_f32 v{HN+r}, v{HV+r}, v{ST}")
    for r in range(8): a(f"v_cvt_pk_bf16_f32 v{HN+r}, 0, v{HN+r}")
    for r in range(8): a(f"v_mul_f32 v{HN+r}, v{HN+r}, v{ST+1}")
    for r in range(8): a(f"v_cvt_pk_bf16_f32 v{HN+r}, 0, v{HN+r}")
    a(f"v_mul_f32 v{t2}, v{HN}, v{WF}")
    a(f"v_mul_f32 v{t0}, v{HN+1}, v{WF+1}")
    for r in range(2, 8):
        a(f"v_fmac_f32 v{t0 if r & 1 else t2}, v{HN+r}, v{WF+r}")
    a(f"v_add_f32 v{t2}, v{t2}, v{t0}")
    for r in range(8): a(f"v_add_f32 v{WF+8+r}, v{HV+r}, v{HN+r}")
    wave_sum(a, t2, t0)
    for r in range(4): a(f"v_cvt_pk_bf16_f32 v{PK+r}, v{WF+8+2*r}, v{WF+8+2*r+1}")
    a(f"""
    v_cvt_pk_bf16_f32 v{t2}, 0, v{t2}
    v_ashrrev_i32 v{t0}, 31, v{t2}
    v_or_b32 v{t0}, 0x80000000, v{t0}
    v_xor_b32 v{t2}, v{t2}, v{t0}
    v_and_b32 v{t2}, 0xffff0000, v{t2}
    s_sub_u32 s5, 0xffff, s3
    v_or_b32 v{t2}, s5, v{t2}      ; key
    ds_write_b32 v{t4}, v{t2}
    buffer_store_dwordx4 v[{PK}:{PK+3}], v{vWL}, s[20:23], s4 offen
    """)
    for r in range(4):
        a(f"v_cvt_pk_bf16_f32 v{PK+4+r}, v{HV+2*r}, v{HV+2*r+1}")
        a(f"v_cvt_pk_bf16_f32 v{ST+4+r}, v{HN+2*r}, v{HN+2*r+1}")
    a(f"""
    s_waitcnt lgkmcnt(0)
    s_barrier
    ds_read_b32 v{t1}, v{t3}
    s_waitcnt lgkmcnt(0)
    v_cmp_gt_u32 vcc, v{t1}, v{t2}
    s_and_b32 s38, vcc_lo, 0xff
    s_bcnt1_i32_b32 s38, s38       ; rank
    """)
    stamp(a, 5)
    if G.STAMP: a("s_waitcnt vmcnt(0)")
    stamp(a, 6)
    if G.STAMP: a("s_mov_b32 s91, s30")
    stamp_out(a, 1, 8, "s6", WF)
    dstamp(a, 1, True, 240)
    a(f"""
    s_cmp_gt_u32 s38, 1
    s_cbranch_scc1 K2_end
    s_add_u32 s5, s4, {WS_H:#x}
    buffer_store_dwordx4 v[{PK+4}:{PK+7}], v{vWL}, s[8:11], s5 offen
    s_add_u32 s5, s4, {WS_HN:#x}
    buffer_store_dwordx4 v[{ST+4}:{ST+7}], v{vWL}, s[8:11], s5 offen
    s_lshl_b32 s5, s2, 1
    s_add_u32 s5, s5, s38
    s_lshl_b32 s5, s5, 2
    s_add_u32 s5, s5, {WS_KEY:#x}
    v_mov_b32 v{t0}, 0
    s_mov_b64 exec, 1
    buffer_store_dword v{t2}, v{t0}, s[8:11], s5 offen
    """)
    a.label("K2_end")
    a("s_endpgm")
    n = a.fix()
    return a.text(), 256, L_TOTAL
```

```python
import sys
sys.path.insert(0, "gen")
from gen import *
from k1 import gen_k1
from k2 import gen_k2
from k34 import gen_k3, gen_k4
import argparse
ap = argparse.ArgumentParser()
ap.add_argument("out")
ap.add_argument("--noround", action="store_true")
ap.add_argument("--stamp", action="store_true")
ap.add_argument("--probe", type=float, default=None)
ap.add_argument("--dbg", default="")
ap.add_argument("--noop", default="")
ap.add_argument("--dstamp", action="store_true")
ap.add_argument("--dup", default="")
args = ap.parse_args()
set_dstamp(args.dstamp)
set_stamp(args.stamp)
t1, v1, l1 = gen_k1(dbg=args.dbg)
t2, v2, l2 = gen_k2(dbg=args.dbg, prio='noprio' not in args.dbg)
t3, v3, l3 = gen_k3()
t4, v4, l4 = gen_k4()
ks = [("k1_kernel", t1, v1, l1, 256, 512), ("k2_kernel", t2, v2, l2, 256, 512), ("k3_kernel", t3, v3, l3, 112, 256), ("k4_kernel", t4, v4, l4, 32, 64)]
for pos in sorted([int(x) for x in args.dup.split(",") if x], reverse=True):
    ks.insert(pos, ks[pos])
for pos in sorted([int(x) for x in args.noop.split(",") if x], reverse=True):
    ks.insert(pos, ("noop_kernel", "    s_endpgm\n", 8, 0, 256, 256))
build(ks, args.out)
```

```python
import sys, struct
sys.path.insert(0, "gen")
from asmlib import *

NAME = "sequential_preLN__grouped_kv_mqa__moe_arch_mod__prompt"
WS_Q    = 0x000000
WS_K    = 0x200000
WS_VT   = 0x210000
WS_KEY  = 0x220000
WS_SEL  = 0x221000
WS_YP   = 0x230000
WS_H    = 0x300000
WS_HN   = 0x500000
WS_WOF  = 0x780000
WS_SIZE = 0x800000
WS_STAMP = 0x700000
STAMP = False
DSTAMP = False
def set_dstamp(v):
    global DSTAMP
    DSTAMP = v
def dstamp(a, kid, end, vt):
    if not DSTAMP: return
    if not end:
        a("""
        s_memrealtime s[90:91]
        s_load_dwordx2 s[92:93], s[0:1], 88
        """)
        return
    a(f"""
    s_waitcnt vmcnt(0)
    s_memrealtime s[100:101]
    s_waitcnt lgkmcnt(0)
    s_mul_i32 s89, s2, 0x1111
    s_and_b32 s89, s89, 0x70
    s_cmp_lg_u32 s89, 0
    s_cbranch_scc1 DS_skip{kid}
    s_sub_u32 s96, s92, {kid * 512}
    s_subb_u32 s97, s93, 0
    s_mov_b32 s98, 256
    s_mov_b32 s99, 0x00020000
    s_not_b32 s90, s90
    s_mov_b64 s[94:95], exec
    s_mov_b64 exec, 1
    v_mov_b32 v{vt}, s90
    v_mov_b32 v{vt+1}, 0
    v_mov_b32 v{vt+2}, s100
    buffer_atomic_umax v{vt}, v{vt+1}, s[96:99], 0 offen offset:{8 * kid}
    buffer_atomic_umax v{vt+2}, v{vt+1}, s[96:99], 0 offen offset:{8 * kid + 4}
    s_mov_b64 exec, s[94:95]
    """)
    a.label(f"DS_skip{kid}")
def set_stamp(v):
    global STAMP
    STAMP = v
def stamp(a, i):
    if not STAMP: return
    a(f"""
    s_memtime s[82:83]
    s_memrealtime s[100:101]
    s_waitcnt lgkmcnt(0)
    s_mov_b32 s{84+i}, s82
    s_mov_b32 s{92+i}, s100
    """)
def stamp_out(a, kid, srd_base, swave, vt):
    if not STAMP: return
    a(f"""
    s_mov_b64 exec, 1
    s_lshl_b32 s82, s2, 3
    s_add_u32 s82, s82, {swave}
    s_lshl_b32 s82, s82, 6
    s_add_u32 s82, s82, {WS_STAMP + kid * 0x20000:#x}
    v_mov_b32 v{vt}, 0
    """)
    for i in range(16):
        a(f"v_mov_b32 v{vt+1}, s{84+i}")
        a(f"buffer_store_dword v{vt+1}, v{vt}, s[{srd_base}:{srd_base+3}], s82 offen offset:{4*i}")
    a("s_mov_b64 exec, -1")

def f2u(x): return struct.unpack("<I", struct.pack("<f", x))[0]

def srd(a, d, lo, hi, size):
    a(f"""
    s_mov_b32 s{d}, s{lo}
    s_mov_b32 s{d+1}, s{hi}
    s_mov_b32 s{d+2}, {size:#x}
    s_mov_b32 s{d+3}, 0x00020000
    """)

def ln_scalars(a, vsum, vsq, vm, vrs, t0, t1, two_pass_var=False):
    a(f"v_mul_f32 v{t0}, {f2u(1/512):#x}, v{vsum}")
    a(f"v_mul_f32 v{t1}, {f2u(1/512):#x}, v{vsq}")
    if not two_pass_var:
        a(f"v_fma_f32 v{t1}, -v{t0}, v{t0}, v{t1}")
        a(f"v_max_f32 v{t1}, 0, v{t1}")
    a(f"""
    v_cvt_pk_bf16_f32 v{vm}, 0, v{t0}
    v_cvt_pk_bf16_f32 v{t1}, 0, v{t1}
    v_add_f32 v{t1}, {f2u(1e-5):#x}, v{t1}
    v_cvt_pk_bf16_f32 v{t1}, 0, v{t1}
    v_sqrt_f32 v{t1}, v{t1}
    v_cvt_pk_bf16_f32 v{t1}, 0, v{t1}
    v_rcp_f32 v{vrs}, v{t1}
    """)

def sum_swap(a, v, t, which):
    a(f"""
    v_mov_b32 v{t}, v{v}
    v_permlane{which}_swap_b32 v{t}, v{v}
    v_add_f32 v{v}, v{v}, v{t}
    """)

def gen_k1():
    a = Asm()
    X = 32
    ACC = 96
    AF = 116
    T = 148
    a(f"""
    s_cmp_ge_u32 s2, 256
    s_cbranch_scc1 K1_end
    """)
    stamp(a, 0)
    a(f"""
    s_load_dwordx4 s[24:27], s[0:1], 0
    s_load_dwordx4 s[28:31], s[0:1], 16
    s_load_dwordx2 s[32:33], s[0:1], 96
    s_load_dwordx2 s[44:45], s[0:1], 32
    s_and_b32 s3, s2, 7
    s_lshr_b32 s4, s2, 3
    s_and_b32 s5, s4, 7
    s_lshr_b32 s4, s4, 3
    s_lshl_b32 s3, s3, 2
    s_add_u32 s3, s3, s4
    v_lshrrev_b32 v1, 6, v0
    v_and_b32 v2, 63, v0           ; lane
    v_readfirstlane_b32 s6, v1     ; wave
    v_and_b32 v3, 15, v2           ; l & 15
    v_lshrrev_b32 v4, 4, v2        ; g
    s_lshl_b32 s7, s3, 6
    s_lshl_b32 s34, s6, 4
    s_add_u32 s7, s7, s34
    v_add_u32 v5, s7, v3           ; token
    v_lshlrev_b32 v6, 10, v5
    v_lshl_add_u32 v6, v4, 4, v6
    v_lshrrev_b32 v7, 3, v2        ; row_in
    v_and_b32 v8, 7, v2            ; slot
    v_and_b32 v9, 2, v7            ; ((row_in>>1)&1)<<1
    v_xor_b32 v8, v8, v9
    v_xor_b32 v9, 4, v8
    s_lshl_b32 s34, s6, 17
    s_lshl_b32 s35, s5, 7
    s_add_u32 s34, s34, s35
    v_lshlrev_b32 v7, 10, v7
    v_add_u32 v7, s34, v7
    v_lshl_add_u32 v10, v8, 4, v7
    v_lshl_add_u32 v11, v9, 4, v7
    s_waitcnt lgkmcnt(0)
    """)
    srd(a, 8, 24, 25, 0x200000)
    srd(a, 12, 26, 27, 0x80000)
    for s in range(16):
        a(f"buffer_load_dwordx4 v[{X+4*s}:{X+4*s+3}], v6, s[8:11], 0 offen offset:{64*s}")
    a("s_lshl_b32 s36, s6, 14")
    a("s_mov_b32 s37, 0")
    for i in range(16):
        a(f"s_add_u32 m0, s36, {i*1024}")
        a(f"buffer_load_dwordx4 v{10 + (i & 1)}, s[12:15], s37 offen lds")
        if i < 15: a(f"s_add_u32 s37, s37, 8192")
    a(f"""
    s_cmp_eq_u32 s5, 0
    s_cselect_b64 s[38:39], s[28:29], s[30:31]
    """)
    srd(a, 16, 38, 39, 0x4000)
    srd(a, 20, 32, 33, WS_SIZE)
    a(f"""
    s_cmp_gt_u32 s5, 1
    s_cbranch_scc1 K1_nokv
    v_lshlrev_b32 v12, 4, v0       ; tid*16
    s_lshl_b32 s36, s6, 10
    s_add_u32 s36, s36, 65536
    """)
    for i in range(4):
        a(f"s_add_u32 m0, s36, {i*4096}")
        a(f"s_mov_b32 s37, {i*4096}")
        a(f"buffer_load_dwordx4 v12, s[16:19], s37 offen lds")
    a.label("K1_nokv")
    srd(a, 40, 44, 45, 0x80000)
    a(f"""
    s_cmp_lt_u32 s6, 2
    s_cbranch_scc1 K1_nowo
    s_lshl_b32 s46, s2, 1
    s_and_b32 s47, s6, 1
    s_add_u32 s46, s46, s47
    s_lshr_b32 s47, s46, 6
    s_lshl_b32 s47, s47, 16
    s_bfe_u32 s48, s46, 0x10002
    s_lshl_b32 s48, s48, 15        ; s * 32 rows
    s_add_u32 s47, s47, s48
    s_bfe_u32 s48, s46, 0x30003
    s_lshl_b32 s48, s48, 7         ; w * 128 B
    s_add_u32 s47, s47, s48
    s_and_b32 s48, s46, 3
    s_lshl_b32 s48, s48, 5         ; t * 32 B
    s_add_u32 s47, s47, s48
    v_lshrrev_b32 v12, 1, v2
    v_lshlrev_b32 v12, 10, v12
    v_and_b32 v18, 1, v2
    v_lshl_add_u32 v12, v18, 4, v12
    s_lshl_b32 s48, s6, 10
    s_add_u32 m0, s48, {81920 - 2048}
    s_nop 0
    buffer_load_dwordx4 v12, s[40:43], s47 offen lds
    """)
    a.label("K1_nowo")
    a(f"""
    v_bfe_u32 v18, v2, 2, 2        ; r'
    v_and_b32 v19, 3, v2           ; c'
    v_lshl_add_u32 v20, v4, 3, v18 ; 8g + r'
    v_lshlrev_b32 v21, 7, v20
    v_lshl_add_u32 v21, v19, 3, v21   ; row*128 + 8c'
    v_lshrrev_b32 v22, 1, v18
    v_and_b32 v23, 1, v4
    v_lshl_or_b32 v22, v23, 1, v22 ; h
    """)
    for t in range(4):
        a(f"v_xor_b32 v23, {t}, v22")
        a(f"v_lshl_add_u32 v{13+t}, v23, 5, v21")
    a(f"""
    v_lshlrev_b32 v17, 5, v20
    v_lshl_add_u32 v17, v19, 3, v17
    v_add_u32 v17, 65536, v17
    v_mov_b32 v24, 0x3f803f80
    v_mov_b32 v25, 0
    v_mov_b32 v26, 0
    """)
    stamp(a, 1)
    a("s_waitcnt vmcnt(16)")
    stamp(a, 2)
    for r in range(64):
        a(f"v_dot2_f32_bf16 v25, v{X+r}, v24, v25")
        a(f"v_dot2_f32_bf16 v26, v{X+r}, v{X+r}, v26")
    for w in (16, 32):
        sum_swap(a, 25, 27, w)
        sum_swap(a, 26, 28, w)
    ln_scalars(a, 25, 26, 28, 30, 27, 29)
    for r in range(64):
        t = T + 2 * (r % 4)
        a(f"""
        v_lshlrev_b32 v{t}, 16, v{X+r}
        v_and_b32 v{t+1}, 0xffff0000, v{X+r}
        v_pk_add_f32 v[{t}:{t+1}], v[{t}:{t+1}], v[28:29] op_sel_hi:[1,0] neg_lo:[0,1] neg_hi:[0,1]
        v_cvt_pk_bf16_f32 v{t}, 0, v{t}
        v_cvt_pk_bf16_f32 v{t+1}, 0, v{t+1}
        v_pk_mul_f32 v[{t}:{t+1}], v[{t}:{t+1}], v[30:31] op_sel_hi:[1,0]
        v_cvt_pk_bf16_f32 v{X+r}, v{t}, v{t+1}
        """)
    stamp(a, 3)
    a("s_waitcnt vmcnt(0)")
    a("s_barrier")
    stamp(a, 4)
    a(f"""
    s_cmp_lt_u32 s6, 2
    s_cbranch_scc1 K1_nowo2
    s_lshl_b32 s48, s6, 10
    s_add_u32 s48, s48, {81920 - 2048 - 65536}
    v_add_u32 v12, s48, v17
    ds_read_b64_tr_b16 v[{T}:{T+1}], v12
    ds_read_b64_tr_b16 v[{T+2}:{T+3}], v12 offset:128
    s_lshl_b32 s46, s46, 10
    s_add_u32 s46, s46, {WS_WOF:#x}
    v_lshlrev_b32 v12, 4, v2
    s_waitcnt lgkmcnt(0)
    buffer_store_dwordx4 v[{T}:{T+3}], v12, s[20:23], s46 offen
    """)
    a.label("K1_nowo2")
    def rd1(u):
        s, t = u >> 2, u & 3
        for half in range(2):
            d = AF + 4 * (u & 7) + 2 * half
            a(f"ds_read_b64_tr_b16 v[{d}:{d+1}], v{13+t} offset:{s*4096 + half*512}")
    for u in range(6): rd1(u)
    for u in range(64):
        s, t = u >> 2, u & 3
        if u + 6 < 64: rd1(u + 6)
        a(f"s_waitcnt lgkmcnt({2 * min(6, 63 - u)})")
        d = AF + 4 * (u & 7)
        c = "0" if s == 0 else f"v[{ACC+4*t}:{ACC+4*t+3}]"
        a(f"v_mfma_f32_16x16x32_bf16 v[{ACC+4*t}:{ACC+4*t+3}], v[{d}:{d+3}], v[{X+4*s}:{X+4*s+3}], {c}")
    a(f"""
    s_lshl_b32 s35, s5, 7
    v_lshlrev_b32 v7, 10, v5
    v_lshl_add_u32 v7, v4, 3, v7
    v_add_u32 v7, s35, v7
    """)
    for r in range(16): a(f"v_cvt_pk_bf16_f32 v{ACC+r}, 0, v{ACC+r}")
    for r in range(16): a(f"v_mul_f32 v{ACC+r}, {f2u(0.25 * 1.4426950408889634):#x}, v{ACC+r}")
    for t in range(4):
        a(f"v_cvt_pk_bf16_f32 v{T+2*t}, v{ACC+4*t}, v{ACC+4*t+1}")
        a(f"v_cvt_pk_bf16_f32 v{T+2*t+1}, v{ACC+4*t+2}, v{ACC+4*t+3}")
        a(f"buffer_store_dwordx2 v[{T+2*t}:{T+2*t+1}], v7, s[20:23], 0 offen offset:{32*t}")
    stamp(a, 5)
    if STAMP: a("s_waitcnt vmcnt(0)")
    stamp(a, 6)
    stamp_out(a, 0, 20, "s6", 158)
    a(f"""
    s_cmp_gt_u32 s5, 1
    s_cbranch_scc1 K1_end
    """)
    KV = ACC + 16
    for hb in range(2):
        for s8 in range(8):
            s = hb * 8 + s8
            for half in range(2):
                d = AF + 4 * s8 + 2 * half
                a(f"ds_read_b64_tr_b16 v[{d}:{d+1}], v17 offset:{s*1024 + half*128}")
        a("s_waitcnt lgkmcnt(0)")
        a("s_cmp_eq_u32 s5, 0")
        a(f"s_cbranch_scc0 K1_v{hb}")
        for s8 in range(8):
            s = hb * 8 + s8
            c = "0" if s == 0 else f"v[{KV}:{KV+3}]"
            a(f"v_mfma_f32_16x16x32_bf16 v[{KV}:{KV+3}], v[{AF+4*s8}:{AF+4*s8+3}], v[{X+4*s}:{X+4*s+3}], {c}")
        a(f"s_branch K1_j{hb}")
        a.label(f"K1_v{hb}")
        for s8 in range(8):
            s = hb * 8 + s8
            c = "0" if s == 0 else f"v[{KV}:{KV+3}]"
            a(f"v_mfma_f32_16x16x32_bf16 v[{KV}:{KV+3}], v[{X+4*s}:{X+4*s+3}], v[{AF+4*s8}:{AF+4*s8+3}], {c}")
        a.label(f"K1_j{hb}")
    a(f"""
    v_lshlrev_b32 v7, 5, v5
    v_lshl_add_u32 v7, v4, 3, v7
    v_add_u32 v7, {WS_K:#x}, v7
    s_lshl_b32 s35, s7, 5
    s_add_u32 s35, s35, {WS_VT:#x}
    v_and_b32 v8, 1, v4
    v_lshlrev_b32 v8, 8, v8
    v_lshl_add_u32 v8, v3, 4, v8
    v_lshrrev_b32 v9, 1, v4
    v_lshl_add_u32 v8, v9, 3, v8
    v_add_u32 v8, s35, v8
    s_cmp_eq_u32 s5, 0
    s_cselect_b64 vcc, -1, 0
    v_cndmask_b32 v7, v8, v7, vcc
    v_cvt_pk_bf16_f32 v{T}, v{KV}, v{KV+1}
    v_cvt_pk_bf16_f32 v{T+1}, v{KV+2}, v{KV+3}
    buffer_store_dwordx2 v[{T}:{T+1}], v7, s[20:23], 0 offen
    """)
    a.label("K1_end")
    a("s_endpgm")
    a.fix()
    return a.text(), 160, 81920 + 2048

KERNELS = []

def build(kernels, path):
    hdr = open(f"cdna_kernels/{NAME}.s.ref").read().split("\n")
    out = []
    for ln in hdr:
        if ln.startswith("; Override") : break
        out.append(ln)
    for (name, text, vg, lds, grid, block) in kernels:
        out.append(f"; @launch kernel={name} grid=({grid},1,1) block=({block},1,1) lds={lds}")
    out.append('.amdgcn_target "amdgcn-amd-amdhsa--gfx950"')
    seen = set()
    for (name, text, vg, lds, grid, block) in kernels:
        if name in seen: continue
        seen.add(name)
        out.append(kernel_header(name) + text)
    out.append("K_all_end:")
    seen = set()
    for (name, text, vg, lds, grid, block) in kernels:
        if name in seen: continue
        seen.add(name)
        out.append(kernel_desc(name, vg))
    open(path, "w").write("\n".join(out))

if __name__ == "__main__":
    t1, v1, l1 = gen_k1()
    ks = [("k1_kernel", t1, v1, l1, 256, 256)]
    build(ks, sys.argv[1] if len(sys.argv) > 1 else f"cdna_kernels/{NAME}.s")
```

```python
from gen import *
import gen as G
from k2 import wave_sum

def wave_max_u32(a, v, t):
    for mod in ("quad_perm:[1,0,3,2]", "quad_perm:[2,3,0,1]", "row_half_mirror", "row_mirror"):
        a(f"v_max_u32_dpp v{v}, v{v}, v{v} {mod} row_mask:0xf bank_mask:0xf")
    for w in (16, 32):
        a(f"""
        v_mov_b32 v{t}, v{v}
        v_permlane{w}_swap_b32 v{t}, v{v}
        v_max_u32 v{v}, v{v}, v{t}
        """)

LOG2E = 1.4426950408889634

def sigmoid(a, d, x, t):
    a(f"""
    v_mul_f32 v{t}, {f2u(-LOG2E):#x}, v{x}
    v_exp_f32 v{t}, v{t}
    v_add_f32 v{t}, 1.0, v{t}
    v_rcp_f32 v{d}, v{t}
    """)

def gen_k3():
    a = Asm()
    KY = 8
    WD = 16
    WU = 32
    XB = 64
    AF = 96
    AC = 128
    Y = 132
    L_RED = 32768
    a(f"""
    s_cmp_ge_u32 s2, 112
    s_cbranch_scc1 K3_end
    """)
    stamp(a, 0)
    dstamp(a, 2, False, 100)
    a(f"""
    s_load_dwordx4 s[40:43], s[0:1], 56
    s_load_dwordx2 s[44:45], s[0:1], 72
    s_load_dwordx2 s[48:49], s[0:1], 96
    s_and_b32 s3, s2, 7
    s_lshr_b32 s4, s2, 3
    s_mul_i32 s3, s3, 14
    s_add_u32 s7, s3, s4
    v_lshrrev_b32 v1, 6, v0
    v_and_b32 v2, 63, v0           ; lane
    v_readfirstlane_b32 s6, v1
    v_lshlrev_b32 v3, 5, v2
    s_and_b32 s28, s6, 1           ; matrix
    s_lshr_b32 s29, s6, 1          ; k half
    s_waitcnt lgkmcnt(0)
    """)
    srd(a, 8, 48, 49, WS_SIZE)
    a(f"""
    s_mov_b32 s5, {WS_KEY:#x}
    buffer_load_dwordx4 v[{KY}:{KY+3}], v3, s[8:11], s5 offen
    buffer_load_dwordx4 v[{KY+4}:{KY+7}], v3, s[8:11], s5 offen offset:16
    s_cmp_eq_u32 s28, 0
    s_cselect_b64 s[46:47], s[40:41], s[42:43]
    """)
    srd(a, 12, 46, 47, 512 * 1792 * 2)
    srd(a, 16, 44, 45, 512 * 1792 * 2)
    a(f"""
    v_lshrrev_b32 v4, 1, v2
    s_movk_i32 s5, 3584
    v_mul_lo_u32 v4, v4, s5
    v_and_b32 v5, 1, v2
    v_lshl_add_u32 v4, v5, 4, v4
    s_mul_i32 s30, s29, {256*3584}
    s_lshl_b32 s31, s7, 5
    s_add_u32 s30, s30, s31
    s_lshl_b32 s34, s6, 13
    """)
    for i in range(8):
        a(f"s_add_u32 m0, s34, {i*1024}")
        a(f"s_add_u32 s35, s30, {i*32*3584}")
        a(f"buffer_load_dwordx4 v4, s[12:15], s35 offen lds")
    a(f"""
    v_lshlrev_b32 v5, 2, v0        ; tid*4
    s_lshl_b32 s30, s7, 14
    s_add_u32 s31, s30, 4096
    s_add_u32 s32, s30, 8192
    s_add_u32 s33, s30, 12288
    """)
    for f in range(16):
        a(f"buffer_load_dword v{WD+f}, v5, s[16:19], s{30 + f//4} offen offset:{1024*(f&3)}")
    stamp(a, 1)
    a("s_waitcnt vmcnt(24)")
    stamp(a, 2)
    a(f"""
    v_max_u32 v6, v{KY}, v{KY+2}
    v_min_u32 v7, v{KY}, v{KY+2}
    v_max3_u32 v7, v7, v{KY+1}, v{KY+3}
    v_max_u32 v{Y}, v{KY+4}, v{KY+6}
    v_min_u32 v{Y+1}, v{KY+4}, v{KY+6}
    v_max3_u32 v{Y+1}, v{Y+1}, v{KY+5}, v{KY+7}
    v_min_u32 v{Y+2}, v6, v{Y}
    v_max_u32 v6, v6, v{Y}
    v_max3_u32 v7, v7, v{Y+1}, v{Y+2}
    v_mov_b32 v{Y}, v6
    """)
    wave_max_u32(a, Y, Y + 1)
    a(f"""
    v_cmp_eq_u32 vcc, v6, v{Y}
    v_cndmask_b32 v6, v6, v7, vcc
    """)
    wave_max_u32(a, 6, Y + 1)
    a(f"""
    v_and_b32 v7, 1, v2
    v_cmp_eq_u32 vcc, 0, v7
    v_cndmask_b32 v6, v6, v{Y}, vcc
    v_and_b32 v7, 0xffff, v6
    v_sub_u32 v7, 0xffff, v7             ; token
    v_lshlrev_b32 v{Y}, 10, v7
    v_lshrrev_b32 v{Y+1}, 4, v2          ; g
    v_lshl_add_u32 v{Y}, v{Y+1}, 4, v{Y}
    s_lshl_b32 s5, s29, 9
    s_add_u32 s5, s5, {WS_HN:#x}
    """)
    for s in range(8):
        a(f"buffer_load_dwordx4 v[{XB+4*s}:{XB+4*s+3}], v{Y}, s[8:11], s5 offen offset:{64*s}")
    a(f"""
    s_cmp_lg_u32 s7, 0
    s_cbranch_scc1 K3_nosel
    v_readlane_b32 s36, v7, s28
    s_lshl_b32 s36, s36, 10
    s_mul_i32 s37, s29, {WS_HN - WS_H:#x}
    s_add_u32 s36, s36, s37
    s_add_u32 s36, s36, {WS_H:#x}
    v_lshlrev_b32 v{Y+2}, 4, v2
    buffer_load_dwordx4 v[{AC}:{AC+3}], v{Y+2}, s[8:11], s36 offen
    v_and_b32 v{Y+3}, 0xffff0000, v6
    v_ashrrev_i32 v{Y+1}, 31, v{Y+3}
    v_not_b32 v{Y+1}, v{Y+1}
    v_or_b32 v{Y+1}, 0x80000000, v{Y+1}
    v_xor_b32 v{Y+3}, v{Y+3}, v{Y+1}
    v_and_b32 v{Y+3}, 0xffff0000, v{Y+3}
    """)
    sigmoid(a, Y + 3, Y + 3, Y + 1)
    a(f"""
    v_cvt_pk_bf16_f32 v{Y+3}, 0, v{Y+3}
    v_lshlrev_b32 v{Y+1}, 2, v2
    s_mov_b32 s37, {WS_SEL:#x}
    s_mov_b64 exec, 3
    buffer_store_dword v7, v{Y+1}, s[8:11], s37 offen
    buffer_store_dword v{Y+3}, v{Y+1}, s[8:11], s37 offen offset:8
    s_mov_b64 exec, -1
    s_lshl_b32 s37, s6, 10
    s_add_u32 s37, s37, {WS_SEL + 0x100:#x}
    s_waitcnt vmcnt(2)
    buffer_store_dwordx4 v[{AC}:{AC+3}], v{Y+2}, s[8:11], s37 offen
    """)
    a.label("K3_nosel")
    a(f"""
    v_bfe_u32 v3, v2, 2, 2
    v_lshrrev_b32 v4, 4, v2
    v_lshl_add_u32 v3, v4, 3, v3
    v_lshlrev_b32 v3, 5, v3
    v_and_b32 v{Y+1}, 3, v2
    v_lshl_add_u32 v3, v{Y+1}, 3, v3
    v_add_u32 v3, s34, v3
    s_waitcnt vmcnt(8)
    """)
    for s in range(8):
        for half in range(2):
            d = AF + 4 * s + 2 * half
            a(f"ds_read_b64_tr_b16 v[{d}:{d+1}], v3 offset:{s*1024 + half*128}")
    for f in range(16):
        a(f"v_lshlrev_b32 v{WU+2*f}, 16, v{WD+f}")
        a(f"v_and_b32 v{WU+2*f+1}, 0xffff0000, v{WD+f}")
    stamp(a, 3)
    a("s_waitcnt vmcnt(0) lgkmcnt(0)")
    stamp(a, 4)
    for s in range(8):
        c = "0" if s == 0 else f"v[{AC}:{AC+3}]"
        a(f"v_mfma_f32_16x16x32_bf16 v[{AC}:{AC+3}], v[{AF+4*s}:{AF+4*s+3}], v[{XB+4*s}:{XB+4*s+3}], {c}")
    a(f"""
    v_and_b32 v3, 1, v2
    v_lshlrev_b32 v3, 6, v3
    v_lshl_add_u32 v3, v4, 4, v3
    s_lshl_b32 s5, s6, 7
    s_add_u32 s5, s5, {L_RED}
    v_add_u32 v3, s5, v3
    v_and_b32 v4, 31, v2
    v_lshlrev_b32 v4, 2, v4
    v_add_u32 v4, {L_RED}, v4
    ds_write_b128 v3, v[{AC}:{AC+3}]
    s_waitcnt lgkmcnt(0)
    s_barrier
    ds_read2_b32 v[{Y}:{Y+1}], v4 offset0:0 offset1:64
    ds_read2_b32 v[{Y+2}:{Y+3}], v4 offset0:32 offset1:96
    s_waitcnt lgkmcnt(0)
    v_add_f32 v{Y}, v{Y}, v{Y+1}
    v_add_f32 v{Y+2}, v{Y+2}, v{Y+3}
    v_cvt_pk_bf16_f32 v{Y}, 0, v{Y}          ; g
    v_cvt_pk_bf16_f32 v{Y+2}, 0, v{Y+2}      ; u
    """)
    sigmoid(a, Y + 1, Y, Y + 3)
    a(f"""
    v_mul_f32 v{Y}, v{Y}, v{Y+1}
    v_cvt_pk_bf16_f32 v{Y}, 0, v{Y}          ; silu(g)
    v_mul_f32 v{Y}, v{Y}, v{Y+2}
    v_cvt_pk_bf16_f32 v6, 0, v{Y}
    """)
    for l in range(32):
        a(f"v_readlane_b32 s{50+l}, v6, {l}")
    for r in range(4):
        a(f"v_mov_b32 v{Y+r}, 0")
    for f in range(16):
        for sel in range(2):
            sr = 50 + sel * 16 + f
            pair = sr & ~1
            osel = "op_sel:[0,1,0] op_sel_hi:[1,1,1]" if sr & 1 else "op_sel:[0,0,0] op_sel_hi:[1,0,1]"
            a(f"v_pk_fma_f32 v[{Y+2*sel}:{Y+2*sel+1}], v[{WU+2*f}:{WU+2*f+1}], s[{pair}:{pair+1}], v[{Y+2*sel}:{Y+2*sel+1}] {osel}")
    a(f"""
    v_lshlrev_b32 v5, 3, v0
    s_lshl_b32 s5, s7, 12
    s_add_u32 s5, s5, {WS_YP:#x}
    buffer_store_dwordx2 v[{Y}:{Y+1}], v5, s[8:11], s5 offen
    buffer_store_dwordx2 v[{Y+2}:{Y+3}], v5, s[8:11], s5 offen offset:2048
    """)
    stamp(a, 5)
    if G.STAMP: a("s_waitcnt vmcnt(0)")
    stamp(a, 6)
    stamp_out(a, 2, 8, "s6", 16)
    dstamp(a, 2, True, 100)
    a.label("K3_end")
    a("s_endpgm")
    a.fix()
    return a.text(), 136, 32768 + 512

def gen_k4():
    a = Asm()
    P = 16
    a(f"""
    s_cmp_ge_u32 s2, 32
    s_cbranch_scc1 K4_end
    """)
    stamp(a, 0)
    dstamp(a, 3, False, 60)
    a(f"""
    s_load_dwordx2 s[46:47], s[0:1], 80
    s_load_dwordx2 s[48:49], s[0:1], 96
    s_lshr_b32 s3, s2, 4           ; sel
    s_and_b32 s4, s2, 15
    v_and_b32 v1, 7, v0
    v_lshrrev_b32 v2, 3, v0
    v_mul_u32_u24 v3, {14*4096}, v2
    v_lshl_add_u32 v3, v1, 4, v3
    s_lshl_b32 s5, s2, 7
    s_add_u32 s5, s5, {WS_YP:#x}
    v_lshlrev_b32 v4, 3, v1
    s_lshl_b32 s6, s3, 10
    s_lshl_b32 s7, s4, 6
    s_add_u32 s6, s6, s7
    s_add_u32 s6, s6, {WS_SEL + 0x100:#x}
    s_lshl_b32 s28, s3, 2
    s_add_u32 s28, s28, {WS_SEL:#x}
    v_mov_b32 v5, 0
    s_waitcnt lgkmcnt(0)
    """)
    srd(a, 8, 48, 49, WS_SIZE)
    srd(a, 20, 46, 47, 0x200000)
    for i in range(14):
        a(f"buffer_load_dwordx4 v[{P+4*i}:{P+4*i+3}], v3, s[8:11], s5 offen")
        if i < 13: a("s_add_u32 s5, s5, 4096")
    a(f"""
    buffer_load_dwordx2 v[6:7], v4, s[8:11], s6 offen
    buffer_load_dwordx2 v[8:9], v4, s[8:11], s6 offen offset:2048
    buffer_load_dword v10, v5, s[8:11], s28 offen
    buffer_load_dword v11, v5, s[8:11], s28 offen offset:8
    """)
    for i in range(1, 14):
        a(f"s_waitcnt vmcnt({4 + 13 - i})")
        for r in range(0, 4, 2):
            a(f"v_pk_add_f32 v[{P+r}:{P+r+1}], v[{P+r}:{P+r+1}], v[{P+4*i+r}:{P+4*i+r+1}]")
    for r in range(4):
        a(f"v_add_f32_dpp v{P+r}, v{P+r}, v{P+r} row_ror:8 row_mask:0xf bank_mask:0xf")
    for w in (16, 32):
        for r in range(4):
            sum_swap(a, P + r, P + 4 + r, w)
    a("s_waitcnt vmcnt(0)")
    for r in range(4):
        hsrc = 6 + r // 2; nsrc = 8 + r // 2
        un = (lambda d, s: f"v_and_b32 v{d}, 0xffff0000, v{s}") if r & 1 else (lambda d, s: f"v_lshlrev_b32 v{d}, 16, v{s}")
        a(f"""
        v_cvt_pk_bf16_f32 v{P+r}, 0, v{P+r}
        v_mul_f32 v{P+r}, v{P+r}, v11
        v_cvt_pk_bf16_f32 v{P+r}, 0, v{P+r}
        {un(12, nsrc)}
        v_add_f32 v{P+r}, v{P+r}, v12
        v_cvt_pk_bf16_f32 v{P+r}, 0, v{P+r}
        {un(12, hsrc)}
        v_add_f32 v{P+r}, v{P+r}, v12
        """)
    a(f"""
    v_cvt_pk_bf16_f32 v12, v{P}, v{P+1}
    v_cvt_pk_bf16_f32 v13, v{P+2}, v{P+3}
    v_lshl_add_u32 v4, v10, 10, v4
    s_mov_b64 exec, 0xff
    buffer_store_dwordx2 v[12:13], v4, s[20:23], s7 offen
    """)
    stamp(a, 5)
    if G.STAMP: a("s_waitcnt vmcnt(0)")
    stamp(a, 6)
    stamp_out(a, 3, 8, "0", 40)
    dstamp(a, 3, True, 60)
    a.label("K4_end")
    a("s_endpgm")
    a.fix()
    return a.text(), 72, 0
```

```python
import sys, struct
sys.path.insert(0, "gen")
from asmlib import *

NAME = "sequential_preLN__grouped_kv_mqa__moe_arch_mod__prompt"
WS_Q    = 0x000000
WS_K    = 0x200000
WS_VT   = 0x210000
WS_KEY  = 0x220000
WS_SEL  = 0x221000
WS_YP   = 0x230000
WS_H    = 0x300000
WS_HN   = 0x500000
WS_WOF  = 0x780000
WS_SIZE = 0x800000
WS_STAMP = 0x700000
STAMP = False
DSTAMP = False
def set_dstamp(v):
    global DSTAMP
    DSTAMP = v
def dstamp(a, kid, end, vt):
    if not DSTAMP: return
    if not end:
        a("""
        s_memrealtime s[90:91]
        s_load_dwordx2 s[92:93], s[0:1], 88
        """)
        return
    a(f"""
    s_waitcnt vmcnt(0)
    s_memrealtime s[100:101]
    s_waitcnt lgkmcnt(0)
    s_cmp_lg_u32 s2, 5
    s_cbranch_scc1 DS_skip{kid}
    s_add_u32 s96, s92, {(3 - kid) * 512}
    s_addc_u32 s97, s93, 0
    s_mov_b32 s98, 256
    s_mov_b32 s99, 0x00020000
    s_mov_b64 s[94:95], exec
    s_mov_b64 exec, 1
    v_mov_b32 v{vt}, s90
    v_mov_b32 v{vt+1}, 0
    v_mov_b32 v{vt+2}, s100
    buffer_store_dword v{vt}, v{vt+1}, s[96:99], 0 offen offset:{8 * kid}
    buffer_store_dword v{vt+2}, v{vt+1}, s[96:99], 0 offen offset:{8 * kid + 4}
    s_mov_b64 exec, s[94:95]
    """)
    a.label(f"DS_skip{kid}")
def set_stamp(v):
    global STAMP
    STAMP = v
def stamp(a, i):
    if not STAMP: return
    a(f"""
    s_memtime s[82:83]
    s_memrealtime s[100:101]
    s_waitcnt lgkmcnt(0)
    s_mov_b32 s{84+i}, s82
    s_mov_b32 s{92+i}, s100
    """)
def stamp_out(a, kid, srd_base, swave, vt):
    if not STAMP: return
    a(f"""
    s_mov_b64 exec, 1
    s_lshl_b32 s82, s2, 3
    s_add_u32 s82, s82, {swave}
    s_lshl_b32 s82, s82, 6
    s_add_u32 s82, s82, {WS_STAMP + kid * 0x20000:#x}
    v_mov_b32 v{vt}, 0
    """)
    for i in range(16):
        a(f"v_mov_b32 v{vt+1}, s{84+i}")
        a(f"buffer_store_dword v{vt+1}, v{vt}, s[{srd_base}:{srd_base+3}], s82 offen offset:{4*i}")
    a("s_mov_b64 exec, -1")

def f2u(x): return struct.unpack("<I", struct.pack("<f", x))[0]

def srd(a, d, lo, hi, size):
    a(f"""
    s_mov_b32 s{d}, s{lo}
    s_mov_b32 s{d+1}, s{hi}
    s_mov_b32 s{d+2}, {size:#x}
    s_mov_b32 s{d+3}, 0x00020000
    """)

def ln_scalars(a, vsum, vsq, vm, vrs, t0, t1, two_pass_var=False):
    a(f"v_mul_f32 v{t0}, {f2u(1/512):#x}, v{vsum}")
    a(f"v_mul_f32 v{t1}, {f2u(1/512):#x}, v{vsq}")
    if not two_pass_var:
        a(f"v_fma_f32 v{t1}, -v{t0}, v{t0}, v{t1}")
        a(f"v_max_f32 v{t1}, 0, v{t1}")
    a(f"""
    v_cvt_pk_bf16_f32 v{vm}, 0, v{t0}
    v_cvt_pk_bf16_f32 v{t1}, 0, v{t1}
    v_add_f32 v{t1}, {f2u(1e-5):#x}, v{t1}
    v_cvt_pk_bf16_f32 v{t1}, 0, v{t1}
    v_sqrt_f32 v{t1}, v{t1}
    v_cvt_pk_bf16_f32 v{t1}, 0, v{t1}
    v_rcp_f32 v{vrs}, v{t1}
    """)

def sum_swap(a, v, t, which):
    a(f"""
    v_mov_b32 v{t}, v{v}
    v_permlane{which}_swap_b32 v{t}, v{v}
    v_add_f32 v{v}, v{v}, v{t}
    """)

def gen_k1():
    a = Asm()
    X = 32
    ACC = 96
    AF = 116
    T = 148
    a(f"""
    s_cmp_ge_u32 s2, 256
    s_cbranch_scc1 K1_end
    """)
    stamp(a, 0)
    a(f"""
    s_load_dwordx4 s[24:27], s[0:1], 0
    s_load_dwordx4 s[28:31], s[0:1], 16
    s_load_dwordx2 s[32:33], s[0:1], 96
    s_load_dwordx2 s[44:45], s[0:1], 32
    s_and_b32 s3, s2, 7
    s_lshr_b32 s4, s2, 3
    s_and_b32 s5, s4, 7
    s_lshr_b32 s4, s4, 3
    s_lshl_b32 s3, s3, 2
    s_add_u32 s3, s3, s4
    v_lshrrev_b32 v1, 6, v0
    v_and_b32 v2, 63, v0           ; lane
    v_readfirstlane_b32 s6, v1     ; wave
    v_and_b32 v3, 15, v2           ; l & 15
    v_lshrrev_b32 v4, 4, v2        ; g
    s_lshl_b32 s7, s3, 6
    s_lshl_b32 s34, s6, 4
    s_add_u32 s7, s7, s34
    v_add_u32 v5, s7, v3           ; token
    v_lshlrev_b32 v6, 10, v5
    v_lshl_add_u32 v6, v4, 4, v6
    v_lshrrev_b32 v7, 3, v2        ; row_in
    v_and_b32 v8, 7, v2            ; slot
    v_and_b32 v9, 2, v7            ; ((row_in>>1)&1)<<1
    v_xor_b32 v8, v8, v9
    v_xor_b32 v9, 4, v8
    s_lshl_b32 s34, s6, 17
    s_lshl_b32 s35, s5, 7
    s_add_u32 s34, s34, s35
    v_lshlrev_b32 v7, 10, v7
    v_add_u32 v7, s34, v7
    v_lshl_add_u32 v10, v8, 4, v7
    v_lshl_add_u32 v11, v9, 4, v7
    s_waitcnt lgkmcnt(0)
    """)
    srd(a, 8, 24, 25, 0x200000)
    srd(a, 12, 26, 27, 0x80000)
    for s in range(16):
        a(f"buffer_load_dwordx4 v[{X+4*s}:{X+4*s+3}], v6, s[8:11], 0 offen offset:{64*s}")
    a("s_lshl_b32 s36, s6, 14")
    a("s_mov_b32 s37, 0")
    for i in range(16):
        a(f"s_add_u32 m0, s36, {i*1024}")
        a(f"buffer_load_dwordx4 v{10 + (i & 1)}, s[12:15], s37 offen lds")
        if i < 15: a(f"s_add_u32 s37, s37, 8192")
    a(f"""
    s_cmp_eq_u32 s5, 0
    s_cselect_b64 s[38:39], s[28:29], s[30:31]
    """)
    srd(a, 16, 38, 39, 0x4000)
    srd(a, 20, 32, 33, WS_SIZE)
    a(f"""
    s_cmp_gt_u32 s5, 1
    s_cbranch_scc1 K1_nokv
    v_lshlrev_b32 v12, 4, v0       ; tid*16
    s_lshl_b32 s36, s6, 10
    s_add_u32 s36, s36, 65536
    """)
    for i in range(4):
        a(f"s_add_u32 m0, s36, {i*4096}")
        a(f"s_mov_b32 s37, {i*4096}")
        a(f"buffer_load_dwordx4 v12, s[16:19], s37 offen lds")
    a.label("K1_nokv")
    srd(a, 40, 44, 45, 0x80000)
    a(f"""
    s_cmp_lt_u32 s6, 2
    s_cbranch_scc1 K1_nowo
    s_lshl_b32 s46, s2, 1
    s_and_b32 s47, s6, 1
    s_add_u32 s46, s46, s47
    s_lshr_b32 s47, s46, 6
    s_lshl_b32 s47, s47, 16
    s_bfe_u32 s48, s46, 0x10002
    s_lshl_b32 s48, s48, 15        ; s * 32 rows
    s_add_u32 s47, s47, s48
    s_bfe_u32 s48, s46, 0x30003
    s_lshl_b32 s48, s48, 7         ; w * 128 B
    s_add_u32 s47, s47, s48
    s_and_b32 s48, s46, 3
    s_lshl_b32 s48, s48, 5         ; t * 32 B
    s_add_u32 s47, s47, s48
    v_lshrrev_b32 v12, 1, v2
    v_lshlrev_b32 v12, 10, v12
    v_and_b32 v18, 1, v2
    v_lshl_add_u32 v12, v18, 4, v12
    s_lshl_b32 s48, s6, 10
    s_add_u32 m0, s48, {81920 - 2048}
    s_nop 0
    buffer_load_dwordx4 v12, s[40:43], s47 offen lds
    """)
    a.label("K1_nowo")
    a(f"""
    v_bfe_u32 v18, v2, 2, 2        ; r'
    v_and_b32 v19, 3, v2           ; c'
    v_lshl_add_u32 v20, v4, 3, v18 ; 8g + r'
    v_lshlrev_b32 v21, 7, v20
    v_lshl_add_u32 v21, v19, 3, v21   ; row*128 + 8c'
    v_lshrrev_b32 v22, 1, v18
    v_and_b32 v23, 1, v4
    v_lshl_or_b32 v22, v23, 1, v22 ; h
    """)
    for t in range(4):
        a(f"v_xor_b32 v23, {t}, v22")
        a(f"v_lshl_add_u32 v{13+t}, v23, 5, v21")
    a(f"""
    v_lshlrev_b32 v17, 5, v20
    v_lshl_add_u32 v17, v19, 3, v17
    v_add_u32 v17, 65536, v17
    v_mov_b32 v24, 0x3f803f80
    v_mov_b32 v25, 0
    v_mov_b32 v26, 0
    """)
    stamp(a, 1)
    a("s_waitcnt vmcnt(16)")
    stamp(a, 2)
    for r in range(64):
        a(f"v_dot2_f32_bf16 v25, v{X+r}, v24, v25")
        a(f"v_dot2_f32_bf16 v26, v{X+r}, v{X+r}, v26")
    for w in (16, 32):
        sum_swap(a, 25, 27, w)
        sum_swap(a, 26, 28, w)
    ln_scalars(a, 25, 26, 28, 30, 27, 29)
    for r in range(64):
        t = T + 2 * (r % 4)
        a(f"""
        v_lshlrev_b32 v{t}, 16, v{X+r}
        v_and_b32 v{t+1}, 0xffff0000, v{X+r}
        v_pk_add_f32 v[{t}:{t+1}], v[{t}:{t+1}], v[28:29] op_sel_hi:[1,0] neg_lo:[0,1] neg_hi:[0,1]
        v_cvt_pk_bf16_f32 v{t}, 0, v{t}
        v_cvt_pk_bf16_f32 v{t+1}, 0, v{t+1}
        v_pk_mul_f32 v[{t}:{t+1}], v[{t}:{t+1}], v[30:31] op_sel_hi:[1,0]
        v_cvt_pk_bf16_f32 v{X+r}, v{t}, v{t+1}
        """)
    stamp(a, 3)
    a("s_waitcnt vmcnt(0)")
    a("s_barrier")
    stamp(a, 4)
    a(f"""
    s_cmp_lt_u32 s6, 2
    s_cbranch_scc1 K1_nowo2
    s_lshl_b32 s48, s6, 10
    s_add_u32 s48, s48, {81920 - 2048 - 65536}
    v_add_u32 v12, s48, v17
    ds_read_b64_tr_b16 v[{T}:{T+1}], v12
    ds_read_b64_tr_b16 v[{T+2}:{T+3}], v12 offset:128
    s_lshl_b32 s46, s46, 10
    s_add_u32 s46, s46, {WS_WOF:#x}
    v_lshlrev_b32 v12, 4, v2
    s_waitcnt lgkmcnt(0)
    buffer_store_dwordx4 v[{T}:{T+3}], v12, s[20:23], s46 offen
    """)
    a.label("K1_nowo2")
    def rd1(u):
        s, t = u >> 2, u & 3
        for half in range(2):
            d = AF + 4 * (u & 7) + 2 * half
            a(f"ds_read_b64_tr_b16 v[{d}:{d+1}], v{13+t} offset:{s*4096 + half*512}")
    for u in range(6): rd1(u)
    for u in range(64):
        s, t = u >> 2, u & 3
        if u + 6 < 64: rd1(u + 6)
        a(f"s_waitcnt lgkmcnt({2 * min(6, 63 - u)})")
        d = AF + 4 * (u & 7)
        c = "0" if s == 0 else f"v[{ACC+4*t}:{ACC+4*t+3}]"
        a(f"v_mfma_f32_16x16x32_bf16 v[{ACC+4*t}:{ACC+4*t+3}], v[{d}:{d+3}], v[{X+4*s}:{X+4*s+3}], {c}")
    a(f"""
    s_lshl_b32 s35, s5, 7
    v_lshlrev_b32 v7, 10, v5
    v_lshl_add_u32 v7, v4, 3, v7
    v_add_u32 v7, s35, v7
    """)
    for r in range(16): a(f"v_cvt_pk_bf16_f32 v{ACC+r}, 0, v{ACC+r}")
    for r in range(16): a(f"v_mul_f32 v{ACC+r}, {f2u(0.25 * 1.4426950408889634):#x}, v{ACC+r}")
    for t in range(4):
        a(f"v_cvt_pk_bf16_f32 v{T+2*t}, v{ACC+4*t}, v{ACC+4*t+1}")
        a(f"v_cvt_pk_bf16_f32 v{T+2*t+1}, v{ACC+4*t+2}, v{ACC+4*t+3}")
        a(f"buffer_store_dwordx2 v[{T+2*t}:{T+2*t+1}], v7, s[20:23], 0 offen offset:{32*t}")
    stamp(a, 5)
    if STAMP: a("s_waitcnt vmcnt(0)")
    stamp(a, 6)
    stamp_out(a, 0, 20, "s6", 158)
    a(f"""
    s_cmp_gt_u32 s5, 1
    s_cbranch_scc1 K1_end
    """)
    KV = ACC + 16
    for hb in range(2):
        for s8 in range(8):
            s = hb * 8 + s8
            for half in range(2):
                d = AF + 4 * s8 + 2 * half
                a(f"ds_read_b64_tr_b16 v[{d}:{d+1}], v17 offset:{s*1024 + half*128}")
        a("s_waitcnt lgkmcnt(0)")
        a("s_cmp_eq_u32 s5, 0")
        a(f"s_cbranch_scc0 K1_v{hb}")
        for s8 in range(8):
            s = hb * 8 + s8
            c = "0" if s == 0 else f"v[{KV}:{KV+3}]"
            a(f"v_mfma_f32_16x16x32_bf16 v[{KV}:{KV+3}], v[{AF+4*s8}:{AF+4*s8+3}], v[{X+4*s}:{X+4*s+3}], {c}")
        a(f"s_branch K1_j{hb}")
        a.label(f"K1_v{hb}")
        for s8 in range(8):
            s = hb * 8 + s8
            c = "0" if s == 0 else f"v[{KV}:{KV+3}]"
            a(f"v_mfma_f32_16x16x32_bf16 v[{KV}:{KV+3}], v[{X+4*s}:{X+4*s+3}], v[{AF+4*s8}:{AF+4*s8+3}], {c}")
        a.label(f"K1_j{hb}")
    a(f"""
    v_lshlrev_b32 v7, 5, v5
    v_lshl_add_u32 v7, v4, 3, v7
    v_add_u32 v7, {WS_K:#x}, v7
    s_lshl_b32 s35, s7, 5
    s_add_u32 s35, s35, {WS_VT:#x}
    v_and_b32 v8, 1, v4
    v_lshlrev_b32 v8, 8, v8
    v_lshl_add_u32 v8, v3, 4, v8
    v_lshrrev_b32 v9, 1, v4
    v_lshl_add_u32 v8, v9, 3, v8
    v_add_u32 v8, s35, v8
    s_cmp_eq_u32 s5, 0
    s_cselect_b64 vcc, -1, 0
    v_cndmask_b32 v7, v8, v7, vcc
    v_cvt_pk_bf16_f32 v{T}, v{KV}, v{KV+1}
    v_cvt_pk_bf16_f32 v{T+1}, v{KV+2}, v{KV+3}
    buffer_store_dwordx2 v[{T}:{T+1}], v7, s[20:23], 0 offen
    """)
    a.label("K1_end")
    a("s_endpgm")
    a.fix()
    return a.text(), 160, 81920 + 2048

KERNELS = []

def build(kernels, path):
    hdr = open(f"cdna_kernels/{NAME}.s.ref").read().split("\n")
    out = []
    for ln in hdr:
        if ln.startswith("; Override") : break
        out.append(ln)
    for (name, text, vg, lds, grid, block) in kernels:
        out.append(f"; @launch kernel={name} grid=({grid},1,1) block=({block},1,1) lds={lds}")
    out.append('.amdgcn_target "amdgcn-amd-amdhsa--gfx950"')
    seen = set()
    for (name, text, vg, lds, grid, block) in kernels:
        if name in seen: continue
        seen.add(name)
        out.append(kernel_header(name) + text)
    out.append("K_all_end:")
    seen = set()
    for (name, text, vg, lds, grid, block) in kernels:
        if name in seen: continue
        seen.add(name)
        out.append(kernel_desc(name, vg))
    open(path, "w").write("\n".join(out))

if __name__ == "__main__":
    t1, v1, l1 = gen_k1()
    ks = [("k1_kernel", t1, v1, l1, 256, 256)]
    build(ks, sys.argv[1] if len(sys.argv) > 1 else f"cdna_kernels/{NAME}.s")
```

```python
import sys, struct
sys.path.insert(0, "gen")
from asmlib import *

NAME = "sequential_preLN__grouped_kv_mqa__moe_arch_mod__prompt"
WS_Q    = 0x000000
WS_K    = 0x200000
WS_VT   = 0x210000
WS_KEY  = 0x220000
WS_SEL  = 0x221000
WS_YP   = 0x230000
WS_H    = 0x300000
WS_HN   = 0x500000
WS_WOF  = 0x780000
WS_SIZE = 0x800000
WS_STAMP = 0x700000
STAMP = False
DSTAMP = False
def set_dstamp(v):
    global DSTAMP
    DSTAMP = v
def dstamp(a, kid, end, vt):
    if not DSTAMP: return
    if not end:
        a("""
        s_memrealtime s[90:91]
        s_load_dwordx2 s[92:93], s[0:1], 88
        """)
        return
    a(f"""
    s_waitcnt vmcnt(0)
    s_memrealtime s[100:101]
    s_waitcnt lgkmcnt(0)
    s_cmp_lg_u32 s2, 5
    s_cbranch_scc1 DS_skip{kid}
    s_add_u32 s96, s92, {(3 - kid) * 512}
    s_addc_u32 s97, s93, 0
    s_mov_b32 s98, 256
    s_mov_b32 s99, 0x00020000
    s_mov_b64 s[94:95], exec
    s_mov_b64 exec, 1
    v_mov_b32 v{vt}, s90
    v_mov_b32 v{vt+1}, 0
    v_mov_b32 v{vt+2}, s100
    buffer_store_dword v{vt}, v{vt+1}, s[96:99], 0 offen offset:{8 * kid}
    buffer_store_dword v{vt+2}, v{vt+1}, s[96:99], 0 offen offset:{8 * kid + 4}
    s_getreg_b32 s89, hwreg(HW_REG_XCC_ID)
    v_mov_b32 v{vt}, s89
    buffer_store_dword v{vt}, v{vt+1}, s[96:99], 0 offen offset:{32 + 4 * kid}
    s_getreg_b32 s89, hwreg(HW_REG_HW_ID)
    v_mov_b32 v{vt+2}, s89
    buffer_store_dword v{vt+2}, v{vt+1}, s[96:99], 0 offen offset:{48 + 4 * kid}
    s_mov_b64 exec, s[94:95]
    """)
    a.label(f"DS_skip{kid}")
def set_stamp(v):
    global STAMP
    STAMP = v
def stamp(a, i):
    if not STAMP: return
    a(f"""
    s_memtime s[82:83]
    s_memrealtime s[100:101]
    s_waitcnt lgkmcnt(0)
    s_mov_b32 s{84+i}, s82
    s_mov_b32 s{92+i}, s100
    """)
def stamp_out(a, kid, srd_base, swave, vt):
    if not STAMP: return
    a(f"""
    s_mov_b64 exec, 1
    s_lshl_b32 s82, s2, 3
    s_add_u32 s82, s82, {swave}
    s_lshl_b32 s82, s82, 6
    s_add_u32 s82, s82, {WS_STAMP + kid * 0x20000:#x}
    v_mov_b32 v{vt}, 0
    """)
    for i in range(16):
        a(f"v_mov_b32 v{vt+1}, s{84+i}")
        a(f"buffer_store_dword v{vt+1}, v{vt}, s[{srd_base}:{srd_base+3}], s82 offen offset:{4*i}")
    a("s_mov_b64 exec, -1")

def f2u(x): return struct.unpack("<I", struct.pack("<f", x))[0]

def srd(a, d, lo, hi, size):
    a(f"""
    s_mov_b32 s{d}, s{lo}
    s_mov_b32 s{d+1}, s{hi}
    s_mov_b32 s{d+2}, {size:#x}
    s_mov_b32 s{d+3}, 0x00020000
    """)

def ln_scalars(a, vsum, vsq, vm, vrs, t0, t1, two_pass_var=False):
    a(f"v_mul_f32 v{t0}, {f2u(1/512):#x}, v{vsum}")
    a(f"v_mul_f32 v{t1}, {f2u(1/512):#x}, v{vsq}")
    if not two_pass_var:
        a(f"v_fma_f32 v{t1}, -v{t0}, v{t0}, v{t1}")
        a(f"v_max_f32 v{t1}, 0, v{t1}")
    a(f"""
    v_cvt_pk_bf16_f32 v{vm}, 0, v{t0}
    v_cvt_pk_bf16_f32 v{t1}, 0, v{t1}
    v_add_f32 v{t1}, {f2u(1e-5):#x}, v{t1}
    v_cvt_pk_bf16_f32 v{t1}, 0, v{t1}
    v_sqrt_f32 v{t1}, v{t1}
    v_cvt_pk_bf16_f32 v{t1}, 0, v{t1}
    v_rcp_f32 v{vrs}, v{t1}
    """)

def sum_swap(a, v, t, which):
    a(f"""
    v_mov_b32 v{t}, v{v}
    v_permlane{which}_swap_b32 v{t}, v{v}
    v_add_f32 v{v}, v{v}, v{t}
    """)

def gen_k1():
    a = Asm()
    X = 32
    ACC = 96
    AF = 116
    T = 148
    a(f"""
    s_cmp_ge_u32 s2, 256
    s_cbranch_scc1 K1_end
    """)
    stamp(a, 0)
    a(f"""
    s_load_dwordx4 s[24:27], s[0:1], 0
    s_load_dwordx4 s[28:31], s[0:1], 16
    s_load_dwordx2 s[32:33], s[0:1], 96
    s_load_dwordx2 s[44:45], s[0:1], 32
    s_and_b32 s3, s2, 7
    s_lshr_b32 s4, s2, 3
    s_and_b32 s5, s4, 7
    s_lshr_b32 s4, s4, 3
    s_lshl_b32 s3, s3, 2
    s_add_u32 s3, s3, s4
    v_lshrrev_b32 v1, 6, v0
    v_and_b32 v2, 63, v0           ; lane
    v_readfirstlane_b32 s6, v1     ; wave
    v_and_b32 v3, 15, v2           ; l & 15
    v_lshrrev_b32 v4, 4, v2        ; g
    s_lshl_b32 s7, s3, 6
    s_lshl_b32 s34, s6, 4
    s_add_u32 s7, s7, s34
    v_add_u32 v5, s7, v3           ; token
    v_lshlrev_b32 v6, 10, v5
    v_lshl_add_u32 v6, v4, 4, v6
    v_lshrrev_b32 v7, 3, v2        ; row_in
    v_and_b32 v8, 7, v2            ; slot
    v_and_b32 v9, 2, v7            ; ((row_in>>1)&1)<<1
    v_xor_b32 v8, v8, v9
    v_xor_b32 v9, 4, v8
    s_lshl_b32 s34, s6, 17
    s_lshl_b32 s35, s5, 7
    s_add_u32 s34, s34, s35
    v_lshlrev_b32 v7, 10, v7
    v_add_u32 v7, s34, v7
    v_lshl_add_u32 v10, v8, 4, v7
    v_lshl_add_u32 v11, v9, 4, v7
    s_waitcnt lgkmcnt(0)
    """)
    srd(a, 8, 24, 25, 0x200000)
    srd(a, 12, 26, 27, 0x80000)
    for s in range(16):
        a(f"buffer_load_dwordx4 v[{X+4*s}:{X+4*s+3}], v6, s[8:11], 0 offen offset:{64*s}")
    a("s_lshl_b32 s36, s6, 14")
    a("s_mov_b32 s37, 0")
    for i in range(16):
        a(f"s_add_u32 m0, s36, {i*1024}")
        a(f"buffer_load_dwordx4 v{10 + (i & 1)}, s[12:15], s37 offen lds")
        if i < 15: a(f"s_add_u32 s37, s37, 8192")
    a(f"""
    s_cmp_eq_u32 s5, 0
    s_cselect_b64 s[38:39], s[28:29], s[30:31]
    """)
    srd(a, 16, 38, 39, 0x4000)
    srd(a, 20, 32, 33, WS_SIZE)
    a(f"""
    s_cmp_gt_u32 s5, 1
    s_cbranch_scc1 K1_nokv
    v_lshlrev_b32 v12, 4, v0       ; tid*16
    s_lshl_b32 s36, s6, 10
    s_add_u32 s36, s36, 65536
    """)
    for i in range(4):
        a(f"s_add_u32 m0, s36, {i*4096}")
        a(f"s_mov_b32 s37, {i*4096}")
        a(f"buffer_load_dwordx4 v12, s[16:19], s37 offen lds")
    a.label("K1_nokv")
    srd(a, 40, 44, 45, 0x80000)
    a(f"""
    s_cmp_lt_u32 s6, 2
    s_cbranch_scc1 K1_nowo
    s_lshl_b32 s46, s2, 1
    s_and_b32 s47, s6, 1
    s_add_u32 s46, s46, s47
    s_lshr_b32 s47, s46, 6
    s_lshl_b32 s47, s47, 16
    s_bfe_u32 s48, s46, 0x10002
    s_lshl_b32 s48, s48, 15        ; s * 32 rows
    s_add_u32 s47, s47, s48
    s_bfe_u32 s48, s46, 0x30003
    s_lshl_b32 s48, s48, 7         ; w * 128 B
    s_add_u32 s47, s47, s48
    s_and_b32 s48, s46, 3
    s_lshl_b32 s48, s48, 5         ; t * 32 B
    s_add_u32 s47, s47, s48
    v_lshrrev_b32 v12, 1, v2
    v_lshlrev_b32 v12, 10, v12
    v_and_b32 v18, 1, v2
    v_lshl_add_u32 v12, v18, 4, v12
    s_lshl_b32 s48, s6, 10
    s_add_u32 m0, s48, {81920 - 2048}
    s_nop 0
    buffer_load_dwordx4 v12, s[40:43], s47 offen lds
    """)
    a.label("K1_nowo")
    a(f"""
    v_bfe_u32 v18, v2, 2, 2        ; r'
    v_and_b32 v19, 3, v2           ; c'
    v_lshl_add_u32 v20, v4, 3, v18 ; 8g + r'
    v_lshlrev_b32 v21, 7, v20
    v_lshl_add_u32 v21, v19, 3, v21   ; row*128 + 8c'
    v_lshrrev_b32 v22, 1, v18
    v_and_b32 v23, 1, v4
    v_lshl_or_b32 v22, v23, 1, v22 ; h
    """)
    for t in range(4):
        a(f"v_xor_b32 v23, {t}, v22")
        a(f"v_lshl_add_u32 v{13+t}, v23, 5, v21")
    a(f"""
    v_lshlrev_b32 v17, 5, v20
    v_lshl_add_u32 v17, v19, 3, v17
    v_add_u32 v17, 65536, v17
    v_mov_b32 v24, 0x3f803f80
    v_mov_b32 v25, 0
    v_mov_b32 v26, 0
    """)
    stamp(a, 1)
    a("s_waitcnt vmcnt(16)")
    stamp(a, 2)
    for r in range(64):
        a(f"v_dot2_f32_bf16 v25, v{X+r}, v24, v25")
        a(f"v_dot2_f32_bf16 v26, v{X+r}, v{X+r}, v26")
    for w in (16, 32):
        sum_swap(a, 25, 27, w)
        sum_swap(a, 26, 28, w)
    ln_scalars(a, 25, 26, 28, 30, 27, 29)
    for r in range(64):
        t = T + 2 * (r % 4)
        a(f"""
        v_lshlrev_b32 v{t}, 16, v{X+r}
        v_and_b32 v{t+1}, 0xffff0000, v{X+r}
        v_pk_add_f32 v[{t}:{t+1}], v[{t}:{t+1}], v[28:29] op_sel_hi:[1,0] neg_lo:[0,1] neg_hi:[0,1]
        v_cvt_pk_bf16_f32 v{t}, 0, v{t}
        v_cvt_pk_bf16_f32 v{t+1}, 0, v{t+1}
        v_pk_mul_f32 v[{t}:{t+1}], v[{t}:{t+1}], v[30:31] op_sel_hi:[1,0]
        v_cvt_pk_bf16_f32 v{X+r}, v{t}, v{t+1}
        """)
    stamp(a, 3)
    a("s_waitcnt vmcnt(0)")
    a("s_barrier")
    stamp(a, 4)
    a(f"""
    s_cmp_lt_u32 s6, 2
    s_cbranch_scc1 K1_nowo2
    s_lshl_b32 s48, s6, 10
    s_add_u32 s48, s48, {81920 - 2048 - 65536}
    v_add_u32 v12, s48, v17
    ds_read_b64_tr_b16 v[{T}:{T+1}], v12
    ds_read_b64_tr_b16 v[{T+2}:{T+3}], v12 offset:128
    s_lshl_b32 s46, s46, 10
    s_add_u32 s46, s46, {WS_WOF:#x}
    v_lshlrev_b32 v12, 4, v2
    s_waitcnt lgkmcnt(0)
    buffer_store_dwordx4 v[{T}:{T+3}], v12, s[20:23], s46 offen
    """)
    a.label("K1_nowo2")
    def rd1(u):
        s, t = u >> 2, u & 3
        for half in range(2):
            d = AF + 4 * (u & 7) + 2 * half
            a(f"ds_read_b64_tr_b16 v[{d}:{d+1}], v{13+t} offset:{s*4096 + half*512}")
    for u in range(6): rd1(u)
    for u in range(64):
        s, t = u >> 2, u & 3
        if u + 6 < 64: rd1(u + 6)
        a(f"s_waitcnt lgkmcnt({2 * min(6, 63 - u)})")
        d = AF + 4 * (u & 7)
        c = "0" if s == 0 else f"v[{ACC+4*t}:{ACC+4*t+3}]"
        a(f"v_mfma_f32_16x16x32_bf16 v[{ACC+4*t}:{ACC+4*t+3}], v[{d}:{d+3}], v[{X+4*s}:{X+4*s+3}], {c}")
    a(f"""
    s_lshl_b32 s35, s5, 7
    v_lshlrev_b32 v7, 10, v5
    v_lshl_add_u32 v7, v4, 3, v7
    v_add_u32 v7, s35, v7
    """)
    for r in range(16): a(f"v_cvt_pk_bf16_f32 v{ACC+r}, 0, v{ACC+r}")
    for r in range(16): a(f"v_mul_f32 v{ACC+r}, {f2u(0.25 * 1.4426950408889634):#x}, v{ACC+r}")
    for t in range(4):
        a(f"v_cvt_pk_bf16_f32 v{T+2*t}, v{ACC+4*t}, v{ACC+4*t+1}")
        a(f"v_cvt_pk_bf16_f32 v{T+2*t+1}, v{ACC+4*t+2}, v{ACC+4*t+3}")
        a(f"buffer_store_dwordx2 v[{T+2*t}:{T+2*t+1}], v7, s[20:23], 0 offen offset:{32*t}")
    stamp(a, 5)
    if STAMP: a("s_waitcnt vmcnt(0)")
    stamp(a, 6)
    stamp_out(a, 0, 20, "s6", 158)
    a(f"""
    s_cmp_gt_u32 s5, 1
    s_cbranch_scc1 K1_end
    """)
    KV = ACC + 16
    for hb in range(2):
        for s8 in range(8):
            s = hb * 8 + s8
            for half in range(2):
                d = AF + 4 * s8 + 2 * half
                a(f"ds_read_b64_tr_b16 v[{d}:{d+1}], v17 offset:{s*1024 + half*128}")
        a("s_waitcnt lgkmcnt(0)")
        a("s_cmp_eq_u32 s5, 0")
        a(f"s_cbranch_scc0 K1_v{hb}")
        for s8 in range(8):
            s = hb * 8 + s8
            c = "0" if s == 0 else f"v[{KV}:{KV+3}]"
            a(f"v_mfma_f32_16x16x32_bf16 v[{KV}:{KV+3}], v[{AF+4*s8}:{AF+4*s8+3}], v[{X+4*s}:{X+4*s+3}], {c}")
        a(f"s_branch K1_j{hb}")
        a.label(f"K1_v{hb}")
        for s8 in range(8):
            s = hb * 8 + s8
            c = "0" if s == 0 else f"v[{KV}:{KV+3}]"
            a(f"v_mfma_f32_16x16x32_bf16 v[{KV}:{KV+3}], v[{X+4*s}:{X+4*s+3}], v[{AF+4*s8}:{AF+4*s8+3}], {c}")
        a.label(f"K1_j{hb}")
    a(f"""
    v_lshlrev_b32 v7, 5, v5
    v_lshl_add_u32 v7, v4, 3, v7
    v_add_u32 v7, {WS_K:#x}, v7
    s_lshl_b32 s35, s7, 5
    s_add_u32 s35, s35, {WS_VT:#x}
    v_and_b32 v8, 1, v4
    v_lshlrev_b32 v8, 8, v8
    v_lshl_add_u32 v8, v3, 4, v8
    v_lshrrev_b32 v9, 1, v4
    v_lshl_add_u32 v8, v9, 3, v8
    v_add_u32 v8, s35, v8
    s_cmp_eq_u32 s5, 0
    s_cselect_b64 vcc, -1, 0
    v_cndmask_b32 v7, v8, v7, vcc
    v_cvt_pk_bf16_f32 v{T}, v{KV}, v{KV+1}
    v_cvt_pk_bf16_f32 v{T+1}, v{KV+2}, v{KV+3}
    buffer_store_dwordx2 v[{T}:{T+1}], v7, s[20:23], 0 offen
    """)
    a.label("K1_end")
    a("s_endpgm")
    a.fix()
    return a.text(), 160, 81920 + 2048

KERNELS = []

def build(kernels, path):
    hdr = open(f"cdna_kernels/{NAME}.s.ref").read().split("\n")
    out = []
    for ln in hdr:
        if ln.startswith("; Override") : break
        out.append(ln)
    for (name, text, vg, lds, grid, block) in kernels:
        out.append(f"; @launch kernel={name} grid=({grid},1,1) block=({block},1,1) lds={lds}")
    out.append('.amdgcn_target "amdgcn-amd-amdhsa--gfx950"')
    seen = set()
    for (name, text, vg, lds, grid, block) in kernels:
        if name in seen: continue
        seen.add(name)
        out.append(kernel_header(name) + text)
    out.append("K_all_end:")
    seen = set()
    for (name, text, vg, lds, grid, block) in kernels:
        if name in seen: continue
        seen.add(name)
        out.append(kernel_desc(name, vg))
    open(path, "w").write("\n".join(out))

if __name__ == "__main__":
    t1, v1, l1 = gen_k1()
    ks = [("k1_kernel", t1, v1, l1, 256, 256)]
    build(ks, sys.argv[1] if len(sys.argv) > 1 else f"cdna_kernels/{NAME}.s")
```

```python
import re

TRANS = ("v_exp_f32", "v_log_f32", "v_rcp_f32", "v_rsq_f32", "v_sqrt_f32", "v_sin_f32", "v_cos_f32",
         "v_exp_f16", "v_rcp_iflag_f32")

def regs_of(tok):
    tok = tok.strip()
    tok = re.sub(r"^-", "", tok)
    tok = re.sub(r"^abs\((.*)\)$", r"\1", tok)
    tok = tok.strip("|")
    m = re.fullmatch(r"([vsa])(\d+)", tok)
    if m:
        return {(m.group(1), int(m.group(2)))}
    m = re.fullmatch(r"([vsa])\[(\d+):(\d+)\]", tok)
    if m:
        return {(m.group(1), i) for i in range(int(m.group(2)), int(m.group(3)) + 1)}
    if tok in ("vcc", "vcc_lo", "vcc_hi"):
        return {("s", "vcc")}
    if tok in ("exec", "exec_lo", "exec_hi"):
        return {("s", "exec")}
    if tok == "m0":
        return {("s", "m0")}
    return set()

class Ins:
    def __init__(self, text):
        self.text = text
        body = text.split(";")[0].strip()
        parts = body.split(None, 1)
        self.op = parts[0]
        rest = parts[1] if len(parts) > 1 else ""
        ops = [o.strip() for o in re.split(r",(?![^\[]*\])", rest)] if rest else []
        mods = ""
        if ops:
            last = ops[-1].split(None, 1)
            ops[-1] = last[0]
            mods = last[1] if len(last) > 1 else ""
        self.ops, self.mods = ops, mods
        op = self.op
        self.is_mfma = op.startswith("v_mfma")
        self.is_valu = op.startswith("v_") and not self.is_mfma
        self.is_salu = op.startswith("s_")
        self.is_vmem = op.startswith(("buffer_", "global_", "flat_"))
        self.is_ds = op.startswith("ds_")
        self.is_trans = op.replace("_e32", "").replace("_e64", "") in TRANS
        self.is_dpp = ("dpp" in op) or ("row_" in mods) or ("quad_perm" in mods) or ("wave_" in mods)
        self.is_sdwa = "sdwa" in op
        self.is_perml = op.startswith("v_permlane")
        self.is_lds_dma = self.is_vmem and (" lds" in " " + mods or "load_lds" in op)
        R = [regs_of(o) for o in ops]
        self.defs, self.uses = set(), set()
        self.srcC = set(); self.srcAB = set()
        if self.is_mfma:
            self.defs = R[0]; self.srcAB = R[1] | R[2]; self.srcC = R[3]; self.uses = self.srcAB | self.srcC
            self.passes = 8 if "32x32" in op else 4
        elif self.is_valu:
            if op.startswith("v_cmp"):
                self.defs = R[0]; self.uses = set().union(*R[1:])
            elif self.is_perml and "swap" in op:
                self.defs = R[0] | R[1]; self.uses = R[0] | R[1]
            elif op.startswith(("v_add_co", "v_sub_co", "v_addc_co", "v_subb_co", "v_subrev_co")):
                self.defs = R[0] | R[1]; self.uses = set().union(*R[2:])
            elif op in ("v_nop",):
                pass
            else:
                self.defs = R[0]; self.uses = set().union(*R[1:]) if len(R) > 1 else set()
                if op.startswith(("v_fmac", "v_dot2c", "v_pk_fmac")) or "UNUSED_PRESERVE" in mods or self.is_dpp or op.startswith("v_writelane"):
                    self.uses |= R[0]
        elif self.is_vmem:
            if self.is_lds_dma:
                self.uses = set().union(*R) | {("s", "m0")}
            elif "store" in op or ("atomic" in op):
                self.uses = set().union(*R)
                if op.startswith("buffer_"):
                    self.store_data = R[0]
                else:
                    self.store_data = R[1]
                if "atomic" in op and "sc0" in mods:
                    self.defs = R[0]
            elif op.startswith(("buffer_inv", "buffer_wbl2")):
                pass
            else:
                self.defs = R[0]; self.uses = set().union(*R[1:])
        elif self.is_ds:
            if op.startswith(("ds_read", "ds_bpermute", "ds_permute", "ds_swizzle")) or "_rtn" in op:
                self.defs = R[0]; self.uses = set().union(*R[1:])
            else:
                self.uses = set().union(*R)
        elif self.is_salu:
            if op.startswith(("s_cmp", "s_cbranch", "s_branch", "s_waitcnt", "s_nop", "s_barrier", "s_endpgm", "s_setprio", "s_sleep", "s_bitcmp")):
                self.uses = set().union(*R) if R else set()
            else:
                self.defs = R[0] if R else set(); self.uses = set().union(*R[1:]) if len(R) > 1 else set()
                if "saveexec" in op:
                    self.defs |= {("s", "exec")}
        self.wide_store = self.is_vmem and ("store" in op) and op.endswith(("x3", "x4"))

    def states(self):
        if self.op == "s_nop":
            return int(self.ops[0], 0) + 1
        return 1

def need(p, c):
    n = 0
    vd = {r for r in p.defs if r[0] in "va"}
    sd = {r for r in p.defs if r[0] == "s"}
    if p.is_valu:
        if c.is_mfma and (vd & c.uses): n = max(n, 2)
        if c.is_valu:
            if p.is_trans and not c.is_trans and (vd & c.uses): n = max(n, 1)
            if (c.is_perml or c.is_dpp) and (vd & c.uses): n = max(n, 2)
            if c.op.startswith(("v_readlane", "v_readfirstlane")) and (vd & c.uses): n = max(n, 1)
            if (p.is_sdwa or "op_sel" in p.mods and not p.op.startswith("v_pk")) and (vd & (c.uses | c.defs)): n = max(n, 1)
            if sd & c.uses:
                n = max(n, 4 if c.op.startswith(("v_readlane", "v_writelane")) else 2)
            if ("s", "vcc") in sd and c.op.startswith(("v_cndmask", "v_addc", "v_subb", "v_div_fmas")): n = max(n, 4 if "div_fmas" in c.op else 2)
        if c.is_vmem and (sd & c.uses): n = max(n, 5)
        if p.op.startswith("v_dot") and (vd & (c.uses | c.defs)) and (c.is_valu or c.is_mfma or c.is_vmem or c.is_ds):
            same = (c.op == p.op)
            if same and len(c.ops) >= 4 and regs_of(c.ops[3]) == vd and not (vd & (regs_of(c.ops[1]) | regs_of(c.ops[2]))):
                pass
            else:
                n = max(n, 3)
    if p.is_mfma:
        big = p.passes == 8
        if c.is_mfma:
            if vd & c.srcAB: n = max(n, 12 if big else 8)
            if vd & c.srcC:
                if not (c.srcC == vd and c.passes == p.passes): n = max(n, 10 if big else 6)
            elif vd & c.defs: n = max(n, 12 if big else 8)
        elif c.is_valu or c.is_vmem or c.is_ds:
            if vd & (c.uses | c.defs): n = max(n, 12 if big else 8)
        if c.is_valu and (p.srcC & c.defs): n = max(n, 7 if big else 3)
        if (c.is_vmem or c.is_ds) and (p.srcC & c.defs): n = max(n, 7 if big else 3)
    if p.is_salu and ("s", "m0") in sd and c.is_lds_dma: n = max(n, 1)
    if p.wide_store and (p.store_data & c.defs): n = max(n, 2)
    return n

class Asm:
    def __init__(self):
        self.lines = []
    def __call__(self, text):
        for ln in text.strip("\n").split("\n"):
            s = ln.strip()
            if not s or s.startswith(";"):
                continue
            if s.endswith(":") or s.startswith("."):
                self.lines.append(s)
            else:
                self.lines.append(Ins(s))
    def label(self, name):
        self.lines.append(name + ":")
    def raw(self, s):
        self.lines.append(s)

    def fix(self, verbose=False):
        WIN = 14
        changed = True
        total = 0
        while changed:
            changed = False
            labels = {l[:-1]: i for i, l in enumerate(self.lines) if isinstance(l, str) and l.endswith(":")}
            preds = {}
            for i, l in enumerate(self.lines):
                if isinstance(l, Ins) and l.op.startswith(("s_cbranch", "s_branch")):
                    preds.setdefault(labels[l.ops[0]], []).append(i)
            def walk_back(i, dist, c, seen):
                miss = 0
                j = i - 1
                while j >= 0 and dist < WIN:
                    l = self.lines[j]
                    if isinstance(l, str):
                        if l.endswith(":"):
                            for b in preds.get(j, []):
                                if (b, dist) not in seen:
                                    seen.add((b, dist))
                                    miss = max(miss, walk_back(b + 1, dist, c, seen))
                        j -= 1
                        continue
                    if l.op in ("s_branch", "s_endpgm") and j != i - 1:
                        break
                    if l.op in ("s_branch", "s_endpgm") and j == i - 1 and not getattr(walk_back, "via", False):
                        pass
                    miss = max(miss, need(l, c) - dist)
                    dist += l.states()
                    j -= 1
                return miss
            for i, l in enumerate(self.lines):
                if isinstance(l, Ins):
                    m = walk_back(i, 0, l, set())
                    if m > 0:
                        if verbose: print("nop", m, "before", l.text)
                        self.lines.insert(i, Ins(f"s_nop {m-1}"))
                        total += m
                        changed = True
                        break
        return total

    def text(self):
        out = []
        for l in self.lines:
            out.append(("    " + l.text) if isinstance(l, Ins) else l)
        return "\n".join(out) + "\n"

def kernel_header(name):
    return f""".text
.globl {name}
.p2align 8
.type {name},@function
{name}:
"""

def kernel_desc(name, vgpr, sgpr=102, accum=None):
    accum = accum if accum is not None else (vgpr + 3) // 4 * 4
    return f""".section .rodata,"a"
.p2align 6
.amdhsa_kernel {name}
  .amdhsa_next_free_vgpr {vgpr}
  .amdhsa_next_free_sgpr {sgpr}
  .amdhsa_accum_offset {accum}
  .amdhsa_group_segment_fixed_size 0
  .amdhsa_kernarg_size 104
  .amdhsa_user_sgpr_count 2
  .amdhsa_user_sgpr_kernarg_segment_ptr 1
  .amdhsa_system_sgpr_workgroup_id_x 1
  .amdhsa_float_denorm_mode_32 3
.end_amdhsa_kernel
"""

import subprocess, tempfile, os
E64_OK = ("v_exp_f32", "v_mov_b32", "v_add_f32", "v_sub_f32", "v_mul_f32", "v_max_f32", "v_min_f32", "v_rcp_f32", "v_sqrt_f32",
          "v_add_u32", "v_sub_u32", "v_and_b32", "v_or_b32", "v_xor_b32", "v_lshlrev_b32", "v_lshrrev_b32", "v_max_u32", "v_min_u32",
          "v_mul_u32_u24", "v_ashrrev_i32", "v_not_b32", "v_fmac_f32")

def sizes_of(a, extra_labels=""):
    src = '.amdgcn_target "amdgcn-amd-amdhsa--gfx950"\n.text\nk1_kernel:\n' + \
          "\n".join(l for l in a.text().split("\n") if not l.startswith(".p2align")) + "\nK_all_end:\n"
    d = tempfile.mkdtemp()
    open(d + "/t.s", "w").write(src)
    r = subprocess.run(["clang", "-x", "assembler", "-target", "amdgcn-amd-amdhsa", "-mcpu=gfx950", "-c", d + "/t.s", "-o", d + "/t.o"], capture_output=True, text=True)
    assert r.returncode == 0, r.stderr
    out = subprocess.run(["llvm-objdump", "-d", "--mcpu=gfx950", d + "/t.o"], capture_output=True, text=True).stdout
    sz = []
    for ln in out.split("\n"):
        m = re.search(r"//\s*[0-9A-F]{12}:\s*((?:[0-9A-F]{8}\s*)+)", ln)
        if m: sz.append(4 * len(m.group(1).split()))
    return sz

def align8(a, min_run=6):
    sz = sizes_of(a)
    ins = [i for i, l in enumerate(a.lines) if isinstance(l, Ins)]
    assert len(sz) == len(ins), (len(sz), len(ins))
    size = dict(zip(ins, sz))
    out = []; off = 0; widened = padded = 0
    osz = []
    n = len(a.lines)
    for i, l in enumerate(a.lines):
        if isinstance(l, str):
            if l.startswith(".p2align"):
                al = 1 << int(l.split()[1]); off = (off + al - 1) // al * al
            out.append(l); osz.append(0); continue
        s = size[i]
        if s == 8 and off % 8 == 4:
            j = len(out) - 1; done = False; o2 = off
            while j >= 0 and (isinstance(out[j], str) and not out[j].startswith(".p2align") or (isinstance(out[j], Ins) and osz[j] == 4)):
                p = out[j]; o2 -= osz[j]
                if isinstance(p, Ins) and p.op in E64_OK and not p.is_dpp and o2 % 8 == 0:
                    out[j] = Ins(p.text.replace(p.op, p.op + "_e64", 1)); osz[j] = 8; off += 4; widened += 1; done = True
                    break
                j -= 1
            if not done:
                run = 0; k = i
                while k < n and (isinstance(a.lines[k], str) or size[k] == 8):
                    if isinstance(a.lines[k], Ins): run += 1
                    k += 1
                if run >= min_run:
                    out.append(Ins("s_nop 0")); osz.append(4); off += 4; padded += 1
        out.append(l); osz.append(s); off += s
    a.lines = out
    return widened, padded
```

```python
import sys, struct
sys.path.insert(0, "gen")
from asmlib import *

NAME = "sequential_preLN__grouped_kv_mqa__moe_arch_mod__prompt"
WS_Q    = 0x000000
WS_KV   = 0x260000
TS = 2176
WS_KEY  = 0x240000
KS_LOG = 6
WS_GU   = 0x220000
WS_SEL  = 0x228000
WS_YP   = 0x230000
WS_H    = 0x300000
WS_HN   = 0x500000
WS_WOF  = 0x780000
WS_SIZE = 0x800000
WS_STAMP = 0x700000
STAMP = False
ALIGN = True
DSTAMP = False
def set_dstamp(v):
    global DSTAMP
    DSTAMP = v
def dstamp(a, kid, end, vt):
    if not DSTAMP: return
    if not end:
        a("""
        s_memrealtime s[90:91]
        s_load_dwordx2 s[92:93], s[0:1], 88
        """)
        return
    a(f"""
    s_waitcnt vmcnt(0)
    s_memrealtime s[100:101]
    s_waitcnt lgkmcnt(0)
    s_cmp_lg_u32 s2, 5
    s_cbranch_scc1 DS_skip{kid}
    s_add_u32 s96, s92, {(3 - kid) * 512}
    s_addc_u32 s97, s93, 0
    s_mov_b32 s98, 256
    s_mov_b32 s99, 0x00020000
    s_mov_b64 s[94:95], exec
    s_mov_b64 exec, 1
    v_mov_b32 v{vt}, s90
    v_mov_b32 v{vt+1}, 0
    v_mov_b32 v{vt+2}, s100
    buffer_store_dword v{vt}, v{vt+1}, s[96:99], 0 offen offset:{8 * kid}
    buffer_store_dword v{vt+2}, v{vt+1}, s[96:99], 0 offen offset:{8 * kid + 4}
    s_getreg_b32 s89, hwreg(HW_REG_XCC_ID)
    v_mov_b32 v{vt}, s89
    buffer_store_dword v{vt}, v{vt+1}, s[96:99], 0 offen offset:{32 + 4 * kid}
    s_getreg_b32 s89, hwreg(HW_REG_HW_ID)
    v_mov_b32 v{vt+2}, s89
    buffer_store_dword v{vt+2}, v{vt+1}, s[96:99], 0 offen offset:{48 + 4 * kid}
    s_mov_b64 exec, s[94:95]
    """)
    a.label(f"DS_skip{kid}")
def set_stamp(v):
    global STAMP
    STAMP = v
def stamp(a, i):
    if not STAMP: return
    a(f"""
    s_memtime s[82:83]
    s_memrealtime s[100:101]
    s_waitcnt lgkmcnt(0)
    s_mov_b32 s{84+i}, s82
    s_mov_b32 s{92+i}, s100
    """)
def stamp_out(a, kid, srd_base, swave, vt):
    if not STAMP: return
    a(f"""
    s_mov_b64 exec, 1
    s_lshl_b32 s82, s2, 3
    s_add_u32 s82, s82, {swave}
    s_lshl_b32 s82, s82, 6
    s_add_u32 s82, s82, {WS_STAMP + kid * 0x20000:#x}
    v_mov_b32 v{vt}, 0
    """)
    for i in range(16):
        a(f"v_mov_b32 v{vt+1}, s{84+i}")
        a(f"buffer_store_dword v{vt+1}, v{vt}, s[{srd_base}:{srd_base+3}], s82 offen offset:{4*i}")
    a("s_mov_b64 exec, -1")

def f2u(x): return struct.unpack("<I", struct.pack("<f", x))[0]

def srd(a, d, lo, hi, size):
    a(f"""
    s_mov_b32 s{d}, s{lo}
    s_mov_b32 s{d+1}, s{hi}
    s_mov_b32 s{d+2}, {size:#x}
    s_mov_b32 s{d+3}, 0x00020000
    """)

def ln_scalars(a, vsum, vsq, vm, vrs, t0, t1, two_pass_var=False):
    a(f"v_mul_f32 v{t0}, {f2u(1/512):#x}, v{vsum}")
    a(f"v_mul_f32 v{t1}, {f2u(1/512):#x}, v{vsq}")
    if not two_pass_var:
        a(f"v_fma_f32 v{t1}, -v{t0}, v{t0}, v{t1}")
        a(f"v_max_f32 v{t1}, 0, v{t1}")
    a(f"""
    v_cvt_pk_bf16_f32 v{vm}, 0, v{t0}
    v_cvt_pk_bf16_f32 v{t1}, 0, v{t1}
    v_add_f32 v{t1}, {f2u(1e-5):#x}, v{t1}
    v_cvt_pk_bf16_f32 v{t1}, 0, v{t1}
    v_sqrt_f32 v{t1}, v{t1}
    v_cvt_pk_bf16_f32 v{t1}, 0, v{t1}
    v_rcp_f32 v{vrs}, v{t1}
    """)

def sum_swap(a, v, t, which):
    a(f"""
    v_mov_b32 v{t}, v{v}
    v_permlane{which}_swap_b32 v{t}, v{v}
    v_add_f32 v{v}, v{v}, v{t}
    """)

def gen_k1():
    a = Asm()
    X = 32
    ACC = 96
    AF = 116
    T = 148
    a(f"""
    s_cmp_ge_u32 s2, 256
    s_cbranch_scc1 K1_end
    """)
    stamp(a, 0)
    a(f"""
    s_load_dwordx4 s[24:27], s[0:1], 0
    s_load_dwordx4 s[28:31], s[0:1], 16
    s_load_dwordx2 s[32:33], s[0:1], 96
    s_load_dwordx2 s[44:45], s[0:1], 32
    s_and_b32 s3, s2, 7
    s_lshr_b32 s4, s2, 3
    s_and_b32 s5, s4, 7
    s_lshr_b32 s4, s4, 3
    s_lshl_b32 s3, s3, 2
    s_add_u32 s3, s3, s4
    v_lshrrev_b32 v1, 6, v0
    v_and_b32 v2, 63, v0           ; lane
    v_readfirstlane_b32 s6, v1     ; wave
    v_and_b32 v3, 15, v2           ; l & 15
    v_lshrrev_b32 v4, 4, v2        ; g
    s_lshl_b32 s7, s3, 6
    s_lshl_b32 s34, s6, 4
    s_add_u32 s7, s7, s34
    v_add_u32 v5, s7, v3           ; token
    v_lshlrev_b32 v6, 10, v5
    v_lshl_add_u32 v6, v4, 4, v6
    v_lshrrev_b32 v7, 3, v2        ; row_in
    v_and_b32 v8, 7, v2            ; slot
    v_and_b32 v9, 2, v7            ; ((row_in>>1)&1)<<1
    v_xor_b32 v8, v8, v9
    v_xor_b32 v9, 4, v8
    s_lshl_b32 s34, s6, 17
    s_lshl_b32 s35, s5, 7
    s_add_u32 s34, s34, s35
    v_lshlrev_b32 v7, 10, v7
    v_add_u32 v7, s34, v7
    v_lshl_add_u32 v10, v8, 4, v7
    v_lshl_add_u32 v11, v9, 4, v7
    s_waitcnt lgkmcnt(0)
    """)
    srd(a, 8, 24, 25, 0x200000)
    srd(a, 12, 26, 27, 0x80000)
    for s in range(16):
        a(f"buffer_load_dwordx4 v[{X+4*s}:{X+4*s+3}], v6, s[8:11], 0 offen offset:{64*s}")
    a("s_lshl_b32 s36, s6, 14")
    a("s_mov_b32 s37, 0")
    for i in range(16):
        a(f"s_add_u32 m0, s36, {i*1024}")
        a(f"buffer_load_dwordx4 v{10 + (i & 1)}, s[12:15], s37 offen lds")
        if i < 15: a(f"s_add_u32 s37, s37, 8192")
    a(f"""
    s_cmp_eq_u32 s5, 0
    s_cselect_b64 s[38:39], s[28:29], s[30:31]
    """)
    srd(a, 16, 38, 39, 0x4000)
    srd(a, 20, 32, 33, WS_SIZE)
    a(f"""
    s_cmp_gt_u32 s5, 1
    s_cbranch_scc1 K1_nokv
    v_lshlrev_b32 v12, 4, v0       ; tid*16
    s_lshl_b32 s36, s6, 10
    s_add_u32 s36, s36, 65536
    """)
    for i in range(4):
        a(f"s_add_u32 m0, s36, {i*4096}")
        a(f"s_mov_b32 s37, {i*4096}")
        a(f"buffer_load_dwordx4 v12, s[16:19], s37 offen lds")
    a.label("K1_nokv")
    srd(a, 40, 44, 45, 0x80000)
    a(f"""
    s_cmp_lt_u32 s6, 2
    s_cbranch_scc1 K1_nowo
    s_lshl_b32 s46, s2, 1
    s_and_b32 s47, s6, 1
    s_add_u32 s46, s46, s47
    s_lshr_b32 s47, s46, 6
    s_lshl_b32 s47, s47, 16
    s_bfe_u32 s48, s46, 0x10002
    s_lshl_b32 s48, s48, 15        ; s * 32 rows
    s_add_u32 s47, s47, s48
    s_bfe_u32 s48, s46, 0x30003
    s_lshl_b32 s48, s48, 7         ; w * 128 B
    s_add_u32 s47, s47, s48
    s_and_b32 s48, s46, 3
    s_lshl_b32 s48, s48, 5         ; t * 32 B
    s_add_u32 s47, s47, s48
    v_lshrrev_b32 v12, 1, v2
    v_lshlrev_b32 v12, 10, v12
    v_and_b32 v18, 1, v2
    v_lshl_add_u32 v12, v18, 4, v12
    s_lshl_b32 s48, s6, 10
    s_add_u32 m0, s48, {81920 - 2048}
    s_nop 0
    buffer_load_dwordx4 v12, s[40:43], s47 offen lds
    """)
    a.label("K1_nowo")
    a(f"""
    v_bfe_u32 v18, v2, 2, 2        ; r'
    v_and_b32 v19, 3, v2           ; c'
    v_lshl_add_u32 v20, v4, 3, v18 ; 8g + r'
    v_lshlrev_b32 v21, 7, v20
    v_lshl_add_u32 v21, v19, 3, v21   ; row*128 + 8c'
    v_lshrrev_b32 v22, 1, v18
    v_and_b32 v23, 1, v4
    v_lshl_or_b32 v22, v23, 1, v22 ; h
    """)
    for t in range(4):
        a(f"v_xor_b32 v23, {t}, v22")
        a(f"v_lshl_add_u32 v{13+t}, v23, 5, v21")
    a(f"""
    v_lshlrev_b32 v17, 5, v20
    v_lshl_add_u32 v17, v19, 3, v17
    v_add_u32 v17, 65536, v17
    v_mov_b32 v24, 0x3f803f80
    v_mov_b32 v25, 0
    v_mov_b32 v26, 0
    """)
    stamp(a, 1)
    a("s_waitcnt vmcnt(16)")
    stamp(a, 2)
    for r in range(64):
        a(f"v_dot2_f32_bf16 v25, v{X+r}, v24, v25")
        a(f"v_dot2_f32_bf16 v26, v{X+r}, v{X+r}, v26")
    for w in (16, 32):
        sum_swap(a, 25, 27, w)
        sum_swap(a, 26, 28, w)
    ln_scalars(a, 25, 26, 28, 30, 27, 29)
    for r in range(64):
        t = T + 2 * (r % 4)
        a(f"""
        v_lshlrev_b32 v{t}, 16, v{X+r}
        v_and_b32 v{t+1}, 0xffff0000, v{X+r}
        v_pk_add_f32 v[{t}:{t+1}], v[{t}:{t+1}], v[28:29] op_sel_hi:[1,0] neg_lo:[0,1] neg_hi:[0,1]
        v_cvt_pk_bf16_f32 v{t}, 0, v{t}
        v_cvt_pk_bf16_f32 v{t+1}, 0, v{t+1}
        v_pk_mul_f32 v[{t}:{t+1}], v[{t}:{t+1}], v[30:31] op_sel_hi:[1,0]
        v_cvt_pk_bf16_f32 v{X+r}, v{t}, v{t+1}
        """)
    stamp(a, 3)
    a("s_waitcnt vmcnt(0)")
    a("s_barrier")
    stamp(a, 4)
    a(f"""
    s_cmp_lt_u32 s6, 2
    s_cbranch_scc1 K1_nowo2
    s_lshl_b32 s48, s6, 10
    s_add_u32 s48, s48, {81920 - 2048 - 65536}
    v_add_u32 v12, s48, v17
    ds_read_b64_tr_b16 v[{T}:{T+1}], v12
    ds_read_b64_tr_b16 v[{T+2}:{T+3}], v12 offset:128
    s_lshl_b32 s46, s46, 10
    s_add_u32 s46, s46, {WS_WOF:#x}
    v_lshlrev_b32 v12, 4, v2
    s_waitcnt lgkmcnt(0)
    buffer_store_dwordx4 v[{T}:{T+3}], v12, s[20:23], s46 offen
    """)
    a.label("K1_nowo2")
    def rd1(u):
        s, t = u >> 2, u & 3
        for half in range(2):
            d = AF + 4 * (u & 7) + 2 * half
            a(f"ds_read_b64_tr_b16 v[{d}:{d+1}], v{13+t} offset:{s*4096 + half*512}")
    for u in range(6): rd1(u)
    for u in range(64):
        s, t = u >> 2, u & 3
        if u + 6 < 64: rd1(u + 6)
        a(f"s_waitcnt lgkmcnt({2 * min(6, 63 - u)})")
        d = AF + 4 * (u & 7)
        c = "0" if s == 0 else f"v[{ACC+4*t}:{ACC+4*t+3}]"
        a(f"v_mfma_f32_16x16x32_bf16 v[{ACC+4*t}:{ACC+4*t+3}], v[{d}:{d+3}], v[{X+4*s}:{X+4*s+3}], {c}")
    a(f"""
    s_lshl_b32 s35, s5, 7
    v_lshlrev_b32 v7, 10, v5
    v_lshl_add_u32 v7, v4, 3, v7
    v_add_u32 v7, s35, v7
    """)
    for r in range(16): a(f"v_cvt_pk_bf16_f32 v{ACC+r}, 0, v{ACC+r}")
    for r in range(16): a(f"v_mul_f32 v{ACC+r}, {f2u(0.25 * 1.4426950408889634):#x}, v{ACC+r}")
    for t in range(4):
        a(f"v_cvt_pk_bf16_f32 v{T+2*t}, v{ACC+4*t}, v{ACC+4*t+1}")
        a(f"v_cvt_pk_bf16_f32 v{T+2*t+1}, v{ACC+4*t+2}, v{ACC+4*t+3}")
        a(f"buffer_store_dwordx2 v[{T+2*t}:{T+2*t+1}], v7, s[20:23], 0 offen offset:{32*t}")
    stamp(a, 5)
    if STAMP: a("s_waitcnt vmcnt(0)")
    stamp(a, 6)
    stamp_out(a, 0, 20, "s6", 158)
    a(f"""
    s_cmp_gt_u32 s5, 1
    s_cbranch_scc1 K1_end
    """)
    KV = ACC + 16
    for hb in range(2):
        for s8 in range(8):
            s = hb * 8 + s8
            for half in range(2):
                d = AF + 4 * s8 + 2 * half
                a(f"ds_read_b64_tr_b16 v[{d}:{d+1}], v17 offset:{s*1024 + half*128}")
        a("s_waitcnt lgkmcnt(0)")
        a("s_cmp_eq_u32 s5, 0")
        a(f"s_cbranch_scc0 K1_v{hb}")
        for s8 in range(8):
            s = hb * 8 + s8
            c = "0" if s == 0 else f"v[{KV}:{KV+3}]"
            a(f"v_mfma_f32_16x16x32_bf16 v[{KV}:{KV+3}], v[{AF+4*s8}:{AF+4*s8+3}], v[{X+4*s}:{X+4*s+3}], {c}")
        a(f"s_branch K1_j{hb}")
        a.label(f"K1_v{hb}")
        for s8 in range(8):
            s = hb * 8 + s8
            c = "0" if s == 0 else f"v[{KV}:{KV+3}]"
            a(f"v_mfma_f32_16x16x32_bf16 v[{KV}:{KV+3}], v[{X+4*s}:{X+4*s+3}], v[{AF+4*s8}:{AF+4*s8+3}], {c}")
        a.label(f"K1_j{hb}")
    a(f"""
    v_lshlrev_b32 v7, 5, v5
    v_lshl_add_u32 v7, v4, 3, v7
    v_add_u32 v7, {WS_K:#x}, v7
    s_lshl_b32 s35, s7, 5
    s_add_u32 s35, s35, {WS_VT:#x}
    v_and_b32 v8, 1, v4
    v_lshlrev_b32 v8, 8, v8
    v_lshl_add_u32 v8, v3, 4, v8
    v_lshrrev_b32 v9, 1, v4
    v_lshl_add_u32 v8, v9, 3, v8
    v_add_u32 v8, s35, v8
    s_cmp_eq_u32 s5, 0
    s_cselect_b64 vcc, -1, 0
    v_cndmask_b32 v7, v8, v7, vcc
    v_cvt_pk_bf16_f32 v{T}, v{KV}, v{KV+1}
    v_cvt_pk_bf16_f32 v{T+1}, v{KV+2}, v{KV+3}
    buffer_store_dwordx2 v[{T}:{T+1}], v7, s[20:23], 0 offen
    """)
    a.label("K1_end")
    a("s_endpgm")
    a.fix()
    return a.text(), 160, 81920 + 2048

KERNELS = []

def build(kernels, path):
    hdr = open(f"cdna_kernels/{NAME}.s.ref").read().split("\n")
    out = []
    for ln in hdr:
        if ln.startswith("; Override") : break
        out.append(ln)
    for (name, text, vg, lds, grid, block) in kernels:
        out.append(f"; @launch kernel={name} grid=({grid},1,1) block=({block},1,1) lds={lds}")
    out.append('.amdgcn_target "amdgcn-amd-amdhsa--gfx950"')
    seen = set()
    for (name, text, vg, lds, grid, block) in kernels:
        if name in seen: continue
        seen.add(name)
        out.append(kernel_header(name) + text)
    out.append("K_all_end:")
    seen = set()
    for (name, text, vg, lds, grid, block) in kernels:
        if name in seen: continue
        seen.add(name)
        out.append(kernel_desc(name, vg))
    open(path, "w").write("\n".join(out))

if __name__ == "__main__":
    t1, v1, l1 = gen_k1()
    ks = [("k1_kernel", t1, v1, l1, 256, 256)]
    build(ks, sys.argv[1] if len(sys.argv) > 1 else f"cdna_kernels/{NAME}.s")
```

```python
from gen import *
import gen as G

L_KV = 65536; L_WOT = 81920; L_X = 81920 + 2048; XS = 1056; L1_TOTAL = L_X + 64 * XS

def gen_k1(dbg=''):
    a = Asm()
    X = 32
    ACC = 96
    AF = 116
    T = 148
    a(f"""
    s_cmp_ge_u32 s2, 256
    s_cbranch_scc1 K1_end
    """)
    stamp(a, 0)
    dstamp(a, 0, False, 200)
    a(f"""
    s_load_dwordx8 s[24:31], s[0:1], 0
    s_load_dwordx2 s[44:45], s[0:1], 32
    s_load_dwordx2 s[32:33], s[0:1], 96
    s_and_b32 s3, s2, 7
    s_lshr_b32 s4, s2, 3
    s_and_b32 s5, s4, 7
    s_lshr_b32 s4, s4, 3           ; tb & 3
    s_lshl_b32 s3, s3, 2
    s_add_u32 s3, s3, s4
    v_lshrrev_b32 v1, 6, v0
    v_and_b32 v2, 63, v0           ; lane
    v_readfirstlane_b32 s6, v1     ; wave
    v_and_b32 v3, 15, v2           ; l & 15
    v_lshrrev_b32 v4, 4, v2        ; g
    v_bfe_u32 v18, v2, 2, 2        ; r'
    v_and_b32 v19, 3, v2           ; c'
    v_lshl_add_u32 v20, v4, 3, v18 ; 8g + r'
    v_lshlrev_b32 v17, 5, v20
    v_lshl_add_u32 v17, v19, 3, v17
    s_cmp_ge_u32 s6, 4
    s_cbranch_scc1 K1_loader
    s_lshl_b32 s7, s3, 6
    s_lshl_b32 s34, s6, 4
    s_add_u32 s7, s7, s34
    v_add_u32 v5, s7, v3           ; token
    v_lshlrev_b32 v6, 4, v2        ; lane*16
    s_mul_i32 s63, s6, {16*XS}
    s_add_u32 s63, s63, {L_X}
    s_lshl_b32 s64, s7, 10
    s_lshl_b32 s62, s5, 1
    v_mul_u32_u24 v10, {XS}, v3
    v_lshl_add_u32 v10, v4, 4, v10
    v_add_u32 v10, s63, v10
    s_waitcnt lgkmcnt(0)
    """)
    stamp(a, 1)
    srd(a, 8, 24, 25, 0x200000)
    def xdma(u):
        a(f"""
        s_add_u32 s48, s62, {u}
        s_and_b32 s48, s48, 15
        s_mul_i32 s49, s48, {XS}
        s_add_u32 m0, s63, s49
        s_lshl_b32 s48, s48, 10
        s_add_u32 s48, s48, s64
        buffer_load_dwordx4 v6, s[8:11], s48 offen lds
        """)
    for u in range(10): xdma(u)
    srd(a, 20, 32, 33, WS_SIZE)
    ONE = 24; SEL = 8
    SEL = 152
    a(f"""
    v_lshlrev_b32 v21, 7, v20
    v_lshl_add_u32 v21, v19, 3, v21   ; row*128 + 8c'
    v_lshrrev_b32 v22, 1, v18
    v_and_b32 v23, 1, v4
    v_lshl_or_b32 v22, v23, 1, v22 ; h
    """)
    for t in range(4):
        a(f"v_xor_b32 v23, {t}, v22")
        a(f"v_lshl_add_u32 v{13+t}, v23, 5, v21")
    a(f"v_add_u32 v17, {L_KV}, v17")
    for r in range(4): a(f"v_mov_b32 v{ONE+r}, 0x3f803f80")
    a(f"""
    v_and_b32 v7, 1, v2
    v_lshlrev_b32 v7, 4, v7
    v_mov_b32 v8, 0x3f80
    v_lshlrev_b32 v7, v7, v8
    v_cmp_eq_u32 s[36:37], v18, v4 ; g == (l&15)>>2
    v_bfe_u32 v8, v2, 1, 1
    v_cmp_eq_u32 vcc, 0, v8
    s_and_b64 s[38:39], s[36:37], vcc
    s_andn2_b64 s[40:41], s[36:37], vcc
    v_mov_b32 v{SEL}, 0
    v_mov_b32 v{SEL+1}, 0
    v_cndmask_b32 v{SEL+2}, 0, v7, s[38:39]
    v_cndmask_b32 v{SEL+3}, 0, v7, s[40:41]
    v_mov_b32 v{SEL+4}, 0
    v_mov_b32 v{SEL+5}, 0
    """)
    for u in range(10, 16): xdma(u)
    stamp(a, 2)
    if 'k1nb' not in dbg: a("s_barrier")
    stamp(a, 3)
    m16 = "v_mfma_f32_16x16x32_bf16"
    SUM = ACC; GR = ACC + 4; NM = ACC + 8
    a("s_waitcnt vmcnt(0)")
    for u in range(16):
        a(f"ds_read_b128 v[{X+4*u}:{X+4*u+3}], v10 offset:{64*u}")
    for u in range(16):
        a(f"s_waitcnt lgkmcnt({15-u})")
        xs = f"v[{X+4*u}:{X+4*u+3}]"
        a(f"{m16} v[{SUM}:{SUM+3}], v[{ONE}:{ONE+3}], {xs}, " + ("0" if u == 0 else f"v[{SUM}:{SUM+3}]"))
        a(f"{m16} v[{GR}:{GR+3}], {xs}, {xs}, " + ("0" if u == 0 else f"v[{GR}:{GR+3}]"))
    stamp(a, 4)
    a(f"""
    v_and_b32 v7, 1, v2
    v_cmp_eq_u32 s[42:43], 1, v7
    v_cndmask_b32 v8, v{GR}, v{GR+1}, s[42:43]
    v_cndmask_b32 v9, v{GR+2}, v{GR+3}, s[42:43]
    v_cndmask_b32 v8, 0, v8, s[38:39]
    v_cndmask_b32 v26, v8, v9, s[40:41]
    """)
    for w in (16, 32):
        sum_swap(a, 26, 28, w)
    ln_scalars(a, SUM, 26, 28, 30, 27, 29)
    for r in range(4): a(f"v_sub_f32 v{NM+r}, 0, v28")
    NB = 4
    def sub(u):
        d = AF + 8 * (u % NB)
        xs = f"v[{X+4*u}:{X+4*u+3}]"
        a(f"{m16} v[{d}:{d+3}], v[{SEL+2}:{SEL+5}], {xs}, v[{NM}:{NM+3}]")
        a(f"{m16} v[{d+4}:{d+7}], v[{SEL}:{SEL+3}], {xs}, v[{NM}:{NM+3}]")
    sub(0); sub(1)
    for u in range(16):
        d = AF + 8 * (u % NB)
        for r in range(4): a(f"v_cvt_pk_bf16_f32 v{d+r}, 0, v{d+r}")
        if u + 2 < 16:
            dd = AF + 8 * ((u + 2) % NB); xs = f"v[{X+4*(u+2)}:{X+4*(u+2)+3}]"
            a(f"{m16} v[{dd}:{dd+3}], v[{SEL+2}:{SEL+5}], {xs}, v[{NM}:{NM+3}]")
        for r in range(4, 8): a(f"v_cvt_pk_bf16_f32 v{d+r}, 0, v{d+r}")
        for r in range(0, 8, 2): a(f"v_pk_mul_f32 v[{d+r}:{d+r+1}], v[{d+r}:{d+r+1}], v[30:31] op_sel_hi:[1,0]")
        if u + 2 < 16:
            a(f"{m16} v[{dd+4}:{dd+7}], v[{SEL}:{SEL+3}], {xs}, v[{NM}:{NM+3}]")
        for r in range(4): a(f"v_cvt_pk_bf16_f32 v{X+4*u+r}, v{d+2*r}, v{d+2*r+1}")
    a("s_barrier")
    stamp(a, 5)
    RG = 160
    def rd(s, t):
        for half in range(2):
            d = RG + 20 * (s % 3) + 4 * t + 2 * half
            if t < 4: a(f"ds_read_b64_tr_b16 v[{d}:{d+1}], v{13+t} offset:{s*4096 + half*512}")
            else:     a(f"ds_read_b64_tr_b16 v[{d}:{d+1}], v17 offset:{s*1024 + half*128}")
    for t in range(5): rd(0, t)
    for t in range(5): rd(1, t)
    for s in range(16):
        a(f"s_waitcnt lgkmcnt({10 if s < 15 else 0})")
        for t in range(5):
            d = RG + 20 * (s % 3) + 4 * t
            c = "0" if s == 0 else f"v[{ACC+4*t}:{ACC+4*t+3}]"
            a(f"{m16} v[{ACC+4*t}:{ACC+4*t+3}], v[{d}:{d+3}], v[{X+4*s}:{X+4*s+3}], {c}")
            if s + 2 < 16: rd(s + 2, t)
    a(f"""
    s_lshl_b32 s35, s5, 7
    v_lshlrev_b32 v7, 10, v5
    v_lshl_add_u32 v7, v4, 3, v7
    v_add_u32 v7, s35, v7
    """)
    for t in range(4):
        for r in range(4): a(f"v_cvt_pk_bf16_f32 v{ACC+4*t+r}, 0, v{ACC+4*t+r}")
        for r in range(4): a(f"v_mul_f32 v{ACC+4*t+r}, {f2u(0.25 * 1.4426950408889634):#x}, v{ACC+4*t+r}")
        a(f"v_cvt_pk_bf16_f32 v{AF+2*t}, v{ACC+4*t}, v{ACC+4*t+1}")
        a(f"v_cvt_pk_bf16_f32 v{AF+2*t+1}, v{ACC+4*t+2}, v{ACC+4*t+3}")
        a(f"buffer_store_dwordx2 v[{AF+2*t}:{AF+2*t+1}], v7, s[20:23], 0 offen offset:{32*t}")
    KV = ACC + 16
    a(f"""
    s_cmp_gt_u32 s5, 1
    s_cbranch_scc1 K1_q
    v_cvt_pk_bf16_f32 v{T}, v{KV}, v{KV+1}
    v_cvt_pk_bf16_f32 v{T+1}, v{KV+2}, v{KV+3}
    s_cmp_eq_u32 s5, 0
    s_cbranch_scc0 K1_v
    v_lshrrev_b32 v8, 5, v5
    v_lshlrev_b32 v8, 10, v8
    v_and_b32 v9, 31, v5
    v_lshl_add_u32 v8, v9, 4, v8
    v_lshrrev_b32 v9, 1, v4
    v_lshl_add_u32 v8, v9, 9, v8
    v_and_b32 v9, 1, v4
    v_lshl_add_u32 v8, v9, 3, v8
    v_add_u32 v8, {WS_K:#x}, v8
    buffer_store_dwordx2 v[{T}:{T+1}], v8, s[20:23], 0 offen
    s_branch K1_q
    """)
    a.label("K1_v")
    a(f"""
    s_lshl_b32 s35, s7, 5
    s_add_u32 s35, s35, {WS_VT:#x}
    v_bfe_u32 v8, v3, 2, 1
    v_lshlrev_b32 v8, 8, v8
    v_lshl_add_u32 v8, v4, 6, v8
    v_lshrrev_b32 v9, 3, v3
    v_lshl_add_u32 v8, v9, 3, v8
    v_and_b32 v9, 3, v3
    v_lshl_add_u32 v8, v9, 1, v8
    buffer_store_short v{T}, v8, s[20:23], s35 offen
    buffer_store_short_d16_hi v{T}, v8, s[20:23], s35 offen offset:16
    buffer_store_short v{T+1}, v8, s[20:23], s35 offen offset:32
    buffer_store_short_d16_hi v{T+1}, v8, s[20:23], s35 offen offset:48
    """)
    a.label("K1_q")
    if G.STAMP: a("s_waitcnt vmcnt(0)")
    stamp(a, 6)
    stamp_out(a, 0, 20, "s6", 158)
    dstamp(a, 0, True, 200)
    a("s_endpgm")
    a.label("K1_loader")
    if 'noldprio' not in dbg: a("s_setprio 3")
    if 'nocodepf' not in dbg:
        a(f"""
        s_cmp_ge_u32 s2, 16
        s_cbranch_scc1 K1_nocp
        s_getpc_b64 s[60:61]
        """)
        a.label("K1_pc")
        a(f"""
        s_sub_u32 s60, s60, K1_pc-k1_kernel
        s_subb_u32 s61, s61, 0
        v_subrev_u32 v30, 256, v0
        v_lshlrev_b32 v30, 7, v30
        v_min_u32 v30, K_all_end-k1_kernel-4, v30
        global_load_dword v31, v30, s[60:61]
        """)
        a.label("K1_nocp")
    a(f"""
    s_sub_u32 s6, s6, 4
    v_lshrrev_b32 v7, 3, v2        ; row_in
    v_and_b32 v8, 7, v2            ; slot
    v_and_b32 v9, 2, v7
    v_xor_b32 v8, v8, v9
    v_xor_b32 v9, 4, v8
    s_lshl_b32 s35, s5, 7
    v_lshlrev_b32 v7, 10, v7
    v_add_u32 v7, s35, v7
    v_lshl_add_u32 v10, v8, 4, v7
    v_lshl_add_u32 v11, v9, 4, v7
    v_lshlrev_b32 v12, 4, v2       ; lane*16
    v_lshrrev_b32 v13, 1, v2
    v_lshlrev_b32 v13, 10, v13
    v_and_b32 v14, 1, v2
    v_lshl_add_u32 v13, v14, 4, v13
    s_lshl_b32 s36, s6, 14
    s_lshl_b32 s37, s6, 4
    s_lshl_b32 s39, s4, 2
    s_waitcnt lgkmcnt(0)
    """)
    srd(a, 12, 26, 27, 0x80000)
    if 'wpf' in dbg:
        a(f"""
        s_lshr_b32 s48, s2, 3
        s_lshl_b32 s48, s48, 14
        s_and_b32 s49, s6, 1
        s_lshl_b32 s49, s49, 13
        s_add_u32 s48, s48, s49
        v_lshlrev_b32 v30, 7, v2
        s_cmp_gt_u32 s6, 1
        s_cbranch_scc1 K1_nopf
        buffer_load_dword v29, v30, s[12:15], s48 offen
        """)
        a.label("K1_nopf")
    a(f"""
    s_cmp_eq_u32 s5, 0
    s_cselect_b64 s[46:47], s[28:29], s[30:31]
    """)
    srd(a, 16, 46, 47, 0x4000)
    srd(a, 40, 44, 45, 0x80000)
    srd(a, 20, 32, 33, WS_SIZE)
    a(f"""
    s_cmp_ge_u32 s2, {14 + (256 << G.KS_LOG) // 1024}
    s_cbranch_scc1 K1_noz
    s_cmp_lg_u32 s6, 0
    s_cbranch_scc1 K1_noz
    v_mov_b32 v32, 0
    v_mov_b32 v33, 0
    v_mov_b32 v34, 0
    v_mov_b32 v35, 0
    s_lshl_b32 s48, s2, 10
    s_cmp_lt_u32 s2, 14
    s_mov_b32 s49, {WS_KEY - 14 * 1024:#x}
    s_cselect_b32 s49, {WS_GU:#x}, s49
    s_add_u32 s48, s48, s49
    buffer_store_dwordx4 v[32:35], v12, s[20:23], s48 offen
    """)
    a.label("K1_noz")
    if 'k1nb' not in dbg: a("s_barrier")
    for i in range(16):
        a(f"""
        s_add_u32 s48, s39, {i}
        s_and_b32 s48, s48, 15
        s_lshl_b32 s49, s48, 10
        s_add_u32 m0, s36, s49
        s_add_u32 s48, s48, s37
        s_lshl_b32 s48, s48, 13
        buffer_load_dwordx4 v{10 + (i & 1)}, s[12:15], s48 offen lds
        """)
    a(f"""
    s_cmp_gt_u32 s5, 1
    s_cbranch_scc1 K1_nokv
    s_lshl_b32 s36, s6, 12
    """)
    for i in range(4):
        a(f"""
        s_add_u32 s48, s36, {i*1024}
        s_add_u32 m0, s48, {L_KV}
        buffer_load_dwordx4 v12, s[16:19], s48 offen lds
        """)
    a.label("K1_nokv")
    a(f"""
    s_cmp_lt_u32 s6, 2
    s_cbranch_scc1 K1_nowo
    s_lshl_b32 s46, s2, 1
    s_and_b32 s47, s6, 1
    s_add_u32 s46, s46, s47
    s_lshr_b32 s47, s46, 6
    s_lshl_b32 s47, s47, 16
    s_bfe_u32 s48, s46, 0x10002
    s_lshl_b32 s48, s48, 15        ; s * 32 rows
    s_add_u32 s47, s47, s48
    s_bfe_u32 s48, s46, 0x30003
    s_lshl_b32 s48, s48, 7         ; w * 128 B
    s_add_u32 s47, s47, s48
    s_and_b32 s48, s46, 3
    s_lshl_b32 s48, s48, 5         ; t * 32 B
    s_add_u32 s47, s47, s48
    s_lshl_b32 s48, s6, 10
    s_add_u32 s48, s48, {L_WOT - 2048}
    s_mov_b32 m0, s48
    v_add_u32 v17, s48, v17
    buffer_load_dwordx4 v13, s[40:43], s47 offen lds
    s_waitcnt vmcnt(1)
    s_barrier
    s_waitcnt vmcnt(0)
    ds_read_b64_tr_b16 v[32:33], v17
    ds_read_b64_tr_b16 v[34:35], v17 offset:128
    s_lshl_b32 s46, s46, 10
    s_add_u32 s46, s46, {WS_WOF:#x}
    s_waitcnt lgkmcnt(0)
    buffer_store_dwordx4 v[32:35], v12, s[20:23], s46 offen
    s_endpgm
    """)
    a.label("K1_nowo")
    a("s_waitcnt vmcnt(0)")
    a("s_barrier")
    a.label("K1_end")
    a("s_endpgm")
    a.fix()
    if G.ALIGN: print('align', align8(a))
    return a.text(), 220, L1_TOTAL
```

```python
from gen import *
import gen as G

L_PART = 0x0; L_Q = 0x6000; L_MREF = 0x8400; L_OB = 0xA800; L_KEY = 0xAC00; L_FLG = 0xAD00; L_MX = 0xB000; L_HB = 0xB400
L_FW = 0xE000; L_TOTAL = 0xE000 + 8 * 7168
L_XS = L_PART; L_RED = L_PART + 0x1000; L_GB = L_PART + 0x2000
C_EXACT = 0.25 * 1.4426950408889634
OFFS = 96.0

def wave_sum(a, vs, ts):
    if isinstance(vs, int): vs, ts = [vs], [ts]
    for mod in ("quad_perm:[1,0,3,2]", "quad_perm:[2,3,0,1]", "row_half_mirror", "row_mirror"):
        for v in vs:
            a(f"v_add_f32_dpp v{v}, v{v}, v{v} {mod} row_mask:0xf bank_mask:0xf")
    for w in (16, 32):
        for v, t in zip(vs, ts): a(f"v_mov_b32 v{t}, v{v}")
        for v, t in zip(vs, ts): a(f"v_permlane{w}_swap_b32 v{t}, v{v}")
        for v, t in zip(vs, ts): a(f"v_add_f32 v{v}, v{v}, v{t}")

class VM:
    def __init__(self, a): self.a = a; self.q = []; self.done = -1
    def issue(self, tag): self.q.append(tag)
    def wait(self, tag):
        i = max(k for k, t in enumerate(self.q) if t == tag)
        if i <= self.done: return
        self.done = i
        self.a(f"s_waitcnt vmcnt({len(self.q) - 1 - i})")

def wave_max_u32(a, v, t):
    for mod in ("quad_perm:[1,0,3,2]", "quad_perm:[2,3,0,1]", "row_half_mirror", "row_mirror"):
        a(f"v_max_u32_dpp v{v}, v{v}, v{v} {mod} row_mask:0xf bank_mask:0xf")
    for w in (16, 32):
        a(f"""
        v_mov_b32 v{t}, v{v}
        v_permlane{w}_swap_b32 v{t}, v{v}
        v_max_u32 v{v}, v{v}, v{t}
        """)

LOG2E = 1.4426950408889634
def sigmoid(a, d, x, t):
    a(f"""
    v_mul_f32 v{t}, {f2u(-LOG2E):#x}, v{x}
    v_exp_f32 v{t}, v{t}
    v_add_f32 v{t}, 1.0, v{t}
    v_rcp_f32 v{d}, v{t}
    """)

def gen_k2(dbg='', prio=True):
    a = Asm()
    OPT = dict(x.split('=') for x in dbg.split(',') if '=' in x)
    PFS = int(OPT.get('pfs', 0)); PFP = int(OPT.get('pfp', 1))
    TS = 'tailst' in dbg
    FS = 'ffnst' in dbg
    def st(i, tail):
        if FS:
            if tail == 2: stamp(a, i)
        elif tail != 2 and bool(tail) == TS: stamp(a, i)
    K = 16; V = 48; X = [112, 128]; O = 144; CM = 160; SP = 176; Q = 184; OA = 188; WF = 204; BF = 236; S1 = 240
    vQA, vPW, vPR, vPL, vOW, vOR, vLM, vWL, vKL, vVL = 1, 2, 3, 4, 5, 6, 7, 8, 9, 10
    t0, t1, t2, t3, t4 = 11, 12, 13, 14, 15
    vFW, vFR, vFV, vRD = 9, 13, 14, 15
    a(f"""
    s_cmp_ge_u32 s2, 256
    s_cbranch_scc1 K2_end
    """)
    st(0, False)
    dstamp(a, 1, False, 240)
    a(f"""
    s_load_dwordx2 s[48:49], s[0:1], 96
    s_load_dwordx2 s[40:41], s[0:1], 0
    s_load_dwordx8 s[60:67], s[0:1], 48
    s_load_dwordx2 s[46:47], s[0:1], 80
    s_and_b32 s3, s2, 7
    s_lshr_b32 s4, s2, 3
    s_lshl_b32 s7, s3, 8
    s_lshl_b32 s5, s4, 3
    s_add_u32 s7, s7, s5           ; T0
    s_and_b32 s28, s4, 7           ; rot
    v_lshrrev_b32 v{t0}, 6, v0
    v_and_b32 v0, 63, v0
    v_readfirstlane_b32 s6, v{t0}
    s_mov_b32 s30, 0
    v_lshrrev_b32 v{t2}, 5, v0     ; hh
    v_lshlrev_b32 v{vWL}, 4, v0
    s_lshl_b32 s3, s6, 13
    s_add_u32 s3, s3, {WS_K:#x}
    """)
    for t in range(8):
        a(f"""
        s_add_u32 s4, s28, {t}
        s_and_b32 s4, s4, 7
        s_lshl_b32 s4, s4, 10
        s_add_u32 s{50+t}, s3, s4
        """)
    a.label("K2_restart")
    a(f"""
    s_add_u32 s3, s6, s28
    s_and_b32 s3, s3, 7
    s_lshl_b32 s3, s3, 7
    s_lshl_b32 s4, s7, 10
    s_add_u32 s3, s3, s4
    v_and_b32 v{t0}, 7, v0
    v_lshlrev_b32 v{t0}, 10, v{t0}
    v_bfe_u32 v{t1}, v0, 3, 2
    v_lshl_add_u32 v{t0}, v{t1}, 5, v{t0}
    v_lshrrev_b32 v{t2}, 5, v0     ; hh
    v_lshl_add_u32 v{t0}, v{t2}, 4, v{t0}
    v_and_b32 v{vVL}, 15, v0
    v_lshlrev_b32 v{vVL}, 4, v{vVL}
    v_lshl_add_u32 v{vVL}, v{t2}, 8, v{vVL}
    v_add_u32 v{vVL}, {WS_VT - WS_K:#x}, v{vVL}
    s_waitcnt lgkmcnt(0)
    """)
    srd(a, 8, 48, 49, WS_SIZE)
    vm = VM(a)
    def ldK(t):
        a(f"buffer_load_dwordx4 v[{K+4*t}:{K+4*t+3}], v{vWL}, s[8:11], s{50+t} offen"); vm.issue(f"K{t}")
    def ldV(t):
        a("s_mov_b64 exec, s[58:59]")
        for h in range(2):
            a(f"buffer_load_dwordx4 v[{V+8*t+4*h}:{V+8*t+4*h+3}], v{vVL}, s[8:11], s{50+t} offen offset:{512*h}"); vm.issue(f"V{t}{h}")
        a("s_mov_b64 exec, -1")
    a(f"buffer_load_dwordx4 v[{Q}:{Q+3}], v{t0}, s[8:11], s3 offen"); vm.issue("Q")
    ldK(0); ldK(1)
    a(f"""
    s_mov_b32 s58, 0xffff
    s_mov_b32 s59, 0xffff
    v_and_b32 v{t1}, 27, v0
    v_cmp_eq_u32 vcc, 16, v{t1}
    v_mov_b32 v{t3}, 0x3f803f80
    v_cndmask_b32 v{t3}, 0, v{t3}, vcc
    """)
    for r in range(16):
        a(f"v_mov_b32 v{V+r}, v{t3}")
    ldV(0); ldK(2); ldV(1)
    for r in range(16, 64):
        a(f"v_mov_b32 v{V+r}, v{t3}")
    srd(a, 16, 40, 41, 0x200000)
    srd(a, 20, 46, 47, 0x200000)
    srd(a, 24, 60, 61, 0x400)
    a(f"""
    v_add_u32 v{vQA}, {L_Q:#x}, v{vWL}
    v_and_b32 v{t1}, 31, v0
    v_mul_u32_u24 v{vPW}, 96, v{t1}
    v_lshl_add_u32 v{vPW}, v{t2}, 4, v{vPW}
    s_mul_i32 s3, s6, 3072
    v_add_u32 v{vPW}, s3, v{vPW}
    v_lshrrev_b32 v{t0}, 4, v0     ; g
    s_lshl_b32 s3, s6, 2
    v_add_u32 v{t1}, s3, v{t0}     ; n = 4w + g
    v_mul_u32_u24 v{vPL}, 96, v{t1}
    v_and_b32 v{t3}, 15, v0        ; d
    v_lshl_add_u32 v{vPR}, v{t3}, 2, v{vPL}
    v_add_u32 v{vPL}, 64, v{vPL}
    v_and_b32 v{t4}, 7, v{t1}      ; token
    v_lshrrev_b32 v{t1}, 3, v{t1}  ; head_local
    v_lshlrev_b32 v{vOW}, 7, v{t4}
    v_lshl_add_u32 v{vOW}, v{t1}, 5, v{vOW}
    v_lshl_add_u32 v{vOW}, v{t3}, 1, v{vOW}
    v_add_u32 v{vOW}, {L_OB:#x}, v{vOW}
    v_and_b32 v{t4}, 7, v0
    v_lshlrev_b32 v{vOR}, 7, v{t4}
    v_lshl_add_u32 v{vOR}, v{t0}, 4, v{vOR}
    v_add_u32 v{vOR}, {L_OB:#x}, v{vOR}
    v_mov_b32 v{vLM}, 0
    s_lshl_b32 s31, s28, 16
    s_lshl_b32 s33, s6, 13
    s_add_u32 s33, s33, {WS_WOF:#x}
    s_lshl_b32 s3, s6, 10
    v_add_u32 v{t3}, s3, v{vQA}
    """)
    for r in range(16):
        a(f"v_mov_b32 v{OA+r}, 0")
    st(1, False)
    vm.wait("Q")
    a(f"""
    ds_write_b128 v{t3}, v[{Q}:{Q+3}]
    s_cmp_lg_u32 s30, 0
    s_cbranch_scc1 K2_safe
    """)
    vm.wait("K1")
    a(f"""
    v_mfma_f32_32x32x16_bf16 v[{X[0]}:{X[0]+15}], v[{K}:{K+3}], v[{Q}:{Q+3}], 0
    v_mfma_f32_32x32x16_bf16 v[{X[1]}:{X[1]+15}], v[{K+4}:{K+7}], v[{Q}:{Q+3}], 0
    """)
    S = X[0]
    a(f"v_max3_f32 v{t0}, v{S}, v{S+1}, v{S+2}")
    for r in range(3, 31, 2):
        a(f"v_max3_f32 v{t0}, v{t0}, v{S+r}, v{S+r+1}")
    a(f"""
    v_max_f32 v{t0}, v{t0}, v{S+31}
    v_mov_b32 v{t1}, v{t0}
    v_permlane32_swap_b32 v{t1}, v{t0}
    v_max_f32 v{t0}, v{t0}, v{t1}
    v_mov_b32 v{t1}, {f2u(-OFFS):#x}
    s_branch K2_mref
    """)
    a.label("K2_safe")
    a(f"""
    v_and_b32 v{t0}, 31, v0
    v_lshlrev_b32 v{t4}, 2, v{t0}
    v_add_u32 v{t4}, {L_MX:#x}, v{t4}
    s_lshl_b32 s3, s6, 7
    v_add_u32 v{t2}, s3, v{t4}
    v_mov_b32 v{t0}, 0xff800000
    ds_write_b32 v{t2}, v{t0}
    s_waitcnt vmcnt(0) lgkmcnt(0)
    s_barrier
    v_mov_b32 v{t1}, v{vQA}
    s_mov_b32 s29, 0
    """)
    a.label("K2_safe_loop")
    a(f"""
    ds_read_b128 v[{BF}:{BF+3}], v{t1}
    v_mov_b32 v{t0}, 0xff800000
    s_waitcnt lgkmcnt(0)
    """)
    for t in range(8):
        a(f"v_mfma_f32_32x32x16_bf16 v[{S}:{S+15}], v[{K+4*t}:{K+4*t+3}], v[{BF}:{BF+3}], 0")
        for r in range(0, 16, 2):
            a(f"v_max3_f32 v{t0}, v{t0}, v{S+r}, v{S+r+1}")
    a(f"""
    ds_max_f32 v{t4}, v{t0}
    v_add_u32 v{t1}, 1024, v{t1}
    v_add_u32 v{t4}, 128, v{t4}
    s_add_u32 s29, s29, 1
    s_cmp_lt_u32 s29, 8
    s_cbranch_scc1 K2_safe_loop
    s_waitcnt lgkmcnt(0)
    s_barrier
    ds_read_b32 v{t0}, v{t2}
    v_mov_b32 v{t1}, 0
    s_waitcnt lgkmcnt(0)
    """)
    a.label("K2_mref")
    a(f"""
    v_sub_f32 v{BF}, v{t1}, v{t0}
    v_sub_f32 v{BF+1}, v{t1}, v{t0}
    v_sub_f32 v{BF+2}, v{t1}, v{t0}
    v_sub_f32 v{BF+3}, v{t1}, v{t0}
    ds_write_b128 v{t3}, v[{BF}:{BF+3}] offset:{L_MREF - L_Q}
    s_lshl_b32 s3, s6, 2
    s_add_u32 s3, s3, {L_FLG:#x}
    v_mov_b32 v{vFW}, s3
    v_mov_b32 v{vRD}, 0
    ds_write2_b32 v{vFW}, v{vRD}, v{vRD} offset0:0 offset1:8
    v_and_b32 v{vFR}, 7, v0
    v_lshlrev_b32 v{vFR}, 2, v{vFR}
    v_add_u32 v{vFR}, {L_FLG:#x}, v{vFR}
    s_waitcnt lgkmcnt(0)
    s_barrier
    """)
    def rd_qcm():
        a(f"ds_read_b128 v[{Q}:{Q+3}], v{vQA}")
        for k in range(4):
            a(f"ds_read_b128 v[{CM+4*k}:{CM+4*k+3}], v{vQA} offset:{L_MREF - L_Q}")
        a(f"v_add_u32 v{vQA}, 1024, v{vQA}")
    mf = "v_mfma_f32_32x32x16_bf16"
    def M1(kt, xb):
        a(f"{mf} v[{X[xb]}:{X[xb]+15}], v[{K+4*kt}:{K+4*kt+3}], v[{Q}:{Q+3}], v[{CM}:{CM+15}]")
    def E(xb, lo, hi):
        for r in range(lo, hi):
            if 'noexp' in dbg:
                a(f"v_cvt_pk_bf16_f32 v{X[xb]+r}, 0, v{X[xb]+r}"); a(f"v_cvt_pk_bf16_f32 v{X[xb]+r}, 0, v{X[xb]+r}")
                continue
            a(f"v_exp_f32 v{X[xb]+r}, v{X[xb]+r}")
    def C2(h, xb):
        for k in range(4):
            a(f"v_cvt_pk_bf16_f32 v{SP+4*h+k}, v{X[xb]+8*h+2*k}, v{X[xb]+8*h+2*k+1}")
    def M3(h, kt, first=False):
        c = "0" if first else f"v[{O}:{O+15}]"
        if 'nom3' in dbg: return
        if 'm3small' in dbg:
            a(f"v_mfma_f32_16x16x32_bf16 v[{O+4*h}:{O+4*h+3}], v[{V+8*kt+4*h}:{V+8*kt+4*h+3}], v[{SP+4*h}:{SP+4*h+3}], v[{O+4*h}:{O+4*h+3}]")
            return
        a(f"{mf} v[{O}:{O+15}], v[{V+8*kt+4*h}:{V+8*kt+4*h+3}], v[{SP+4*h}:{SP+4*h+3}], {c}")
    def part_write():
        a(f"""
        ds_write_b128 v{vPW}, v[{O}:{O+3}]
        ds_write_b128 v{vPW}, v[{O+4}:{O+7}] offset:32
        ds_write_b32 v{vPW}, v{O+8} offset:64
        """)
    def s1_read():
        for k in range(4):
            a(f"ds_read2st64_b32 v[{S1+2*k}:{S1+2*k+1}], v{vPR} offset0:{24*k} offset1:{24*k+12}")
        for k in range(4):
            a(f"ds_read2st64_b32 v[{S1+8+2*k}:{S1+8+2*k+1}], v{vPL} offset0:{24*k} offset1:{24*k+12}")
    def s1_calc():
        for (x, y) in ((0, 2), (4, 6), (0, 4)):
            a(f"v_pk_add_f32 v[{S1+8+x}:{S1+9+x}], v[{S1+8+x}:{S1+9+x}], v[{S1+8+y}:{S1+9+y}]")
            a(f"v_pk_add_f32 v[{S1+x}:{S1+1+x}], v[{S1+x}:{S1+1+x}], v[{S1+y}:{S1+1+y}]")
        a(f"""
        v_add_f32 v{S1+8}, v{S1+8}, v{S1+9}
        v_add_f32 v{S1}, v{S1}, v{S1+1}
        v_rcp_f32 v{S1+1}, v{S1+8}
        v_maximum3_f32 v{vLM}, v{vLM}, v{S1+8}, abs(v{S1})
        v_mul_f32 v{S1}, v{S1}, v{S1+1}
        v_cvt_pk_bf16_f32 v{S1}, v{S1}, v{S1}
        ds_write_b16 v{vOW}, v{S1}
        """)
    def s2_read():
        for s in range(2):
            a(f"ds_read_b128 v[{BF+4*s}:{BF+4*s+3}], v{vOR} offset:{64*s}")
    def s2_mma(lo, hi):
        for u in range(lo, hi):
            s, t = u >> 2, u & 3
            a(f"v_mfma_f32_16x16x32_bf16 v[{OA+4*t}:{OA+4*t+3}], v[{WF+4*u}:{WF+4*u+3}], v[{BF+4*s}:{BF+4*s+3}], v[{OA+4*t}:{OA+4*t+3}]")
    def wf_load(lo, hi):
        if lo == 0:
            a("s_add_u32 s34, s33, s31")
            a("s_add_u32 s35, s34, 4096")
            a("s_add_u32 s31, s31, 0x10000")
            a("s_and_b32 s31, s31, 0x7ffff")
        for u in range(lo, hi):
            a(f"buffer_load_dwordx4 v[{WF+4*u}:{WF+4*u+3}], v{vWL}, s[8:11], s{34 + (u >> 2)} offen offset:{1024*(u&3)}")
            vm.issue("WF")
    def ffn_prefetch():
        a(f"""
        s_mov_b32 s39, s6
        s_cmp_eq_u32 s39, 1
        s_cselect_b64 s[36:37], s[64:65], s[62:63]
        s_cmp_eq_u32 s39, 2
        s_cselect_b64 s[36:37], s[66:67], s[36:37]
        """)
        srd(a, 12, 36, 37, 512 * 1792 * 2)
        a(f"""
        s_and_b32 s3, s2, 7
        s_lshr_b32 s4, s2, 3
        s_mul_i32 s5, s4, {16*3584}
        s_mul_i32 s36, s3, 448
        s_and_b32 s36, s36, 0xffffff80
        s_add_u32 s5, s5, s36
        s_lshl_b32 s36, s3, 7
        s_mul_i32 s37, s4, {56*1024}
        s_add_u32 s36, s36, s37
        v_lshrrev_b32 v{t0}, 2, v0
        v_mul_u32_u24 v{t0}, 3584, v{t0}
        v_and_b32 v{t1}, 3, v0
        v_lshl_add_u32 v{t0}, v{t1}, 7, v{t0}
        v_min_u32 v{t1}, 55, v0
        v_lshlrev_b32 v{t1}, 10, v{t1}
        s_cmp_eq_u32 s39, 2
        s_cselect_b32 s38, s36, s5
        s_cselect_b64 vcc, -1, 0
        v_cndmask_b32 v{t0}, v{t0}, v{t1}, vcc
        s_lshl_b32 s39, s6, {PFS}
        s_add_u32 s39, s39, 1
        s_cmp_gt_u32 s6, 2
        s_cselect_b32 s39, 99, s39
        """)
    def ffn_setup():
        a(f"""
        s_and_b32 s3, s2, 7
        s_lshr_b32 s4, s2, 3
        s_and_b32 s5, s6, 1
        s_cmp_eq_u32 s5, 0
        s_cselect_b64 s[36:37], s[62:63], s[64:65]
        s_cmp_lt_u32 s2, 112
        s_cselect_b64 s[36:37], s[36:37], s[66:67]
        """)
        srd(a, 68, 36, 37, 512 * 1792 * 2)
        a(f"""
        s_mul_i32 s76, s3, 14
        s_add_u32 s76, s76, s4           ; fs
        s_lshl_b32 s77, s3, 2
        s_add_u32 s77, s77, s4
        s_sub_u32 s77, s77, 14           ; cb
        s_lshr_b32 s5, s6, 1
        s_mul_i32 s5, s5, {128*3584}
        s_lshl_b32 s36, s76, 5
        s_add_u32 s5, s5, s36
        s_mul_i32 s36, s6, {224*1024}
        s_lshl_b32 s37, s77, 5
        s_add_u32 s36, s36, s37
        s_cmp_lt_u32 s2, 112
        s_cselect_b32 s72, s5, s36
        s_movk_i32 s73, 1024
        s_cselect_b32 s73, 3584, s73
        s_cselect_b32 s75, 4, 7
        s_cmp_lt_u32 s2, 144
        s_cselect_b32 s75, s75, 0
        s_mul_i32 s74, s6, 7168
        s_add_u32 s74, s74, {L_FW:#x}
        v_lshrrev_b32 v{vVL}, 1, v0
        v_mul_lo_u32 v{vVL}, v{vVL}, s73
        v_and_b32 v{t1}, 1, v0
        v_lshl_add_u32 v{vVL}, v{t1}, 4, v{vVL}
        s_lshl_b32 s73, s73, 5
        s_mov_b32 s78, s74
        """)
    def ffn_stage():
        a(f"""
        s_cmp_lt_u32 s29, 4
        s_cbranch_scc1 K2_nost
        """)
        for e in range(2):
            a(f"""
            s_cmp_eq_u32 s75, 0
            s_cbranch_scc1 K2_nost
            s_mov_b32 m0, s78
            s_sub_u32 s75, s75, 1
            buffer_load_dwordx4 v{vVL}, s[68:71], s72 offen lds
            s_add_u32 s78, s78, 1024
            s_add_u32 s72, s72, s73
            """)
        a.label("K2_nost")
    def ffn_issue():
        a(f"""
        s_cmp_lg_u32 s29, s39
        s_cbranch_scc1 K2_nopf
        buffer_load_dword v{t1}, v{t0}, s[12:15], s38 offen
        """)
        a.label("K2_nopf")
    def setprio(p):
        if prio: a(f"s_setprio {p}")
    st(2, False)
    rd_qcm()
    a("s_waitcnt lgkmcnt(0)")
    M1(0, 0)
    a("s_mov_b32 s29, 1")
    setprio(3)
    ldK(3); ldV(2)
    st(3, False)
    def tile(i, hook):
        xb = i & 1; xn = xb ^ 1
        hook(i, 'a')
        E(xb, 0, 2)
        hook(i, 'm3b')
        E(xb, 2, 6)
        hook(i, 'e1')
        E(xb, 6, 8)
        hook(i, 'm1')
        M1((i + 1) & 7, xn)
        hook(i, 0)
        C2(0, xb); E(xb, 8, 10)
        hook(i, 'e2')
        E(xb, 10, 12)
        hook(i, 1)
        M3(0, i, first=(i == 0))
        hook(i, 2)
        E(xb, 12, 16)
        hook(i, 'e3')
        C2(1, xb)
    def hook0(i, pos):
        if pos == 'a' and i in (3, 5, 7): setprio({3: 2, 5: 1, 7: 1}[i])
        if pos == 'm3b' and i > 0:
            vm.wait(f"V{i-1}1"); M3(1, i - 1)
        if pos == 'm1':
            if i < 7: vm.wait(f"K{i+1}")
            else: a("s_waitcnt lgkmcnt(0)")
        if pos == 0:
            if i + 4 <= 7: ldK(i + 4)
            if i + 3 <= 7: ldV(i + 3)
            if i == 4 and 'nopf' not in dbg: ffn_prefetch()
            if i == 5: wf_load(0, 4); ffn_setup()
            if i == 6: wf_load(4, 8)
        if pos == 1:
            if i == 6: rd_qcm()
            vm.wait(f"V{i}0")
        if pos == 2 and i == 7:
            vm.wait("V71")
    for i in range(8): tile(i, hook0)
    a.raw(".p2align 3")
    a.label("K2_round")
    spins = []
    def poll(off):
        a(f"ds_read_b32 v{vFV}, v{vFR} offset:{off}")
    def check(off):
        k = len(spins); spins.append(off)
        a(f"""
        s_waitcnt lgkmcnt(0)
        v_cmp_gt_u32 vcc, s29, v{vFV}
        s_cbranch_vccnz K2_spin{k}
        """)
        a.label(f"K2_back{k}")
    PR = dict(x.split('=') for x in dbg.split(',') if '=' in x).get('pr', 'c')
    def hook(i, pos):
        if pos == 'm3b': M3(1, (i - 1) & 7)
        if pos == 'm1' and i == 7: a("s_waitcnt lgkmcnt(0)")
        if pos == 1 and i == 6: rd_qcm()
        if 'nohook' in dbg: return
        if 'bar' in dbg.split(','):
            if pos == 'a' and i in (0, 6, 7): setprio({6: 2, 7: 1, 0: 0}[i])
            if i == 0 and pos == 1: part_write()
            if i == 1 and pos == 0:
                a("s_waitcnt lgkmcnt(0)"); a("s_barrier"); setprio(2); s1_read()
            if i == 2 and pos == 0:
                a("s_waitcnt lgkmcnt(0)"); s1_calc(); setprio(1)
            if i == 3 and pos == 0: setprio(0)
            if i == 4 and pos == 0:
                a("s_waitcnt vmcnt(0) lgkmcnt(0)"); a("s_barrier"); setprio(3); s2_read()
            seq = [(4, 'e3'), (5, 'e1'), (5, 'e2'), (5, 'e3'), (6, 'e1'), (6, 'e2'), (6, 'e3'), (7, 'e1')]
        else:
            if i == 0 and pos == 'a': a(f"v_mov_b32 v{vRD}, s29")
            if i == 0 and pos == 1:
                part_write(); a(f"ds_write_b32 v{vFW}, v{vRD}")
                if PR == 'b': setprio(0)
            if i == 2 and pos == 0: poll(0)
            if i == 2 and pos == 2:
                check(0); s1_read()
                if PR == 'b': setprio(1)
            if i == 3 and pos == 0:
                a("s_waitcnt lgkmcnt(0)"); s1_calc(); a(f"ds_write_b32 v{vFW}, v{vRD} offset:32")
                if PR == 'b': setprio(0)
            if i == 4 and pos == 2: poll(32)
            if i == 5 and pos == 'm1':
                check(32); s2_read(); a("s_waitcnt vmcnt(0)")
                if 'nopf' not in dbg and PFP == 0: ffn_issue()
            if i == 7 and pos == 'a' and PR == 'b': setprio(1)
            if PR == 'c' and pos == 'a' and i in (1, 3, 5, 7): setprio({1: 0, 3: 3, 5: 2, 7: 1}[i])
            seq = [(5, 'e2'), (5, 'e3'), (6, 'e1'), (6, 'e2'), (6, 'e3'), (7, 'e1'), (7, 'e2'), (7, 'e3')]
        if (i, pos) in seq:
            u = seq.index((i, pos))
            if u == 0: a("s_waitcnt lgkmcnt(0)")
            s2_mma(u, u + 1); wf_load(u, u + 1)
            if u == 7 and 'nopf' not in dbg and PFP == 1: ffn_issue(); ffn_stage()
    for i in range(8): tile(i, hook)
    a(f"""
    s_add_u32 s29, s29, 1
    s_cmp_lt_u32 s29, 8
    s_cbranch_scc1 K2_round
    """)
    st(4, False); st(0, True)
    M3(1, 7)
    XR = CM; WR = CM + 4; HV = X[0]; HN = X[0] + 8; PK = X[1]; ST = X[1] + 8
    a(f"""
    s_add_u32 s3, s7, s6
    s_lshl_b32 s4, s3, 10
    buffer_load_dwordx4 v[{XR}:{XR+3}], v{vWL}, s[16:19], s4 offen
    buffer_load_dwordx4 v[{WR}:{WR+3}], v{vWL}, s[24:27], 0 offen
    v_and_b32 v{t0}, 7, v0
    v_mul_u32_u24 v{t0}, 1040, v{t0}
    v_lshrrev_b32 v{t1}, 4, v0
    v_lshl_add_u32 v{t0}, v{t1}, 3, v{t0}
    s_lshl_b32 s5, s6, 7
    s_add_u32 s5, s5, {L_HB:#x}
    v_add_u32 v{t0}, s5, v{t0}
    s_mul_i32 s5, s6, 1040
    s_add_u32 s5, s5, {L_HB:#x}
    v_add_u32 v{t1}, s5, v{vWL}
    s_lshl_b32 s35, s6, 2
    s_add_u32 s35, s35, {L_KEY:#x}
    v_mov_b32 v{t4}, s35
    v_and_b32 v{t3}, 7, v0
    v_lshlrev_b32 v{t3}, 2, v{t3}
    v_add_u32 v{t3}, {L_KEY:#x}, v{t3}
    """)
    part_write()
    a("s_waitcnt lgkmcnt(0)"); a("s_barrier"); st(1, True); s1_read()
    a("s_waitcnt lgkmcnt(0)"); s1_calc()
    a(f"""
    v_mov_b32 v{t2}, {f2u(2.0**124):#x}
    v_cmp_nlt_f32 vcc, v{vLM}, v{t2}
    s_cmp_lg_u64 vcc, 0
    s_cselect_b32 s5, 1, 0
    v_mov_b32 v{t2}, s5
    ds_write_b32 v{t4}, v{t2} offset:32
    """)
    a("s_waitcnt vmcnt(2) lgkmcnt(0)"); a("s_barrier"); st(2, True); s2_read()
    a(f"ds_read_b32 v{t2}, v{t3} offset:32")
    a("s_waitcnt lgkmcnt(1)"); s2_mma(0, 8)
    a(f"""
    s_waitcnt lgkmcnt(0)
    v_cmp_ne_u32 vcc, 0, v{t2}
    s_cmp_eq_u64 vcc, 0
    s_cbranch_scc1 K2_good
    s_cmp_lg_u32 s30, 0
    s_cbranch_scc1 K2_good
    s_mov_b32 s30, 1
    s_waitcnt vmcnt(0)
    s_setprio 0
    s_branch K2_restart
    """)
    a.label("K2_good")
    for t in range(4):
        a(f"v_cvt_pk_bf16_f32 v{S1+2*t}, v{OA+4*t}, v{OA+4*t+1}")
        a(f"v_cvt_pk_bf16_f32 v{S1+2*t+1}, v{OA+4*t+2}, v{OA+4*t+3}")
        a(f"ds_write_b64 v{t0}, v[{S1+2*t}:{S1+2*t+1}] offset:{32*t}")
    a("s_waitcnt vmcnt(0)")
    for r in range(4):
        a(f"v_lshlrev_b32 v{HV+2*r}, 16, v{XR+r}")
        a(f"v_and_b32 v{HV+2*r+1}, 0xffff0000, v{XR+r}")
        a(f"v_lshlrev_b32 v{WF+2*r}, 16, v{WR+r}")
        a(f"v_and_b32 v{WF+2*r+1}, 0xffff0000, v{WR+r}")
    a(f"""
    s_waitcnt lgkmcnt(0)
    s_barrier
    """)
    st(3, True)
    a(f"""
    ds_read_b128 v[{BF}:{BF+3}], v{t1}
    s_waitcnt lgkmcnt(0)
    """)
    for r in range(4):
        a(f"v_lshlrev_b32 v{HN+2*r}, 16, v{BF+r}")
        a(f"v_and_b32 v{HN+2*r+1}, 0xffff0000, v{BF+r}")
    for r in range(8): a(f"v_add_f32 v{HV+r}, v{HV+r}, v{HN+r}")
    for r in range(8): a(f"v_cvt_pk_bf16_f32 v{HV+r}, 0, v{HV+r}")
    a(f"v_add_f32 v{t0}, v{HV}, v{HV+1}")
    a(f"v_mul_f32 v{t2}, v{HV}, v{HV}")
    a(f"v_fmac_f32 v{t2}, v{HV+1}, v{HV+1}")
    for r in range(2, 8):
        a(f"v_add_f32 v{t0}, v{t0}, v{HV+r}")
        a(f"v_fmac_f32 v{t2}, v{HV+r}, v{HV+r}")
    wave_sum(a, [t0, t2], [ST, ST + 1])
    ln_scalars(a, t0, t2, ST, ST + 1, ST + 2, ST + 3)
    st(4, True)
    for r in range(8): a(f"v_sub_f32 v{HN+r}, v{HV+r}, v{ST}")
    for r in range(8): a(f"v_cvt_pk_bf16_f32 v{HN+r}, 0, v{HN+r}")
    for r in range(8): a(f"v_mul_f32 v{HN+r}, v{HN+r}, v{ST+1}")
    for r in range(8): a(f"v_cvt_pk_bf16_f32 v{HN+r}, 0, v{HN+r}")
    a(f"v_mul_f32 v{t2}, v{HN}, v{WF}")
    a(f"v_mul_f32 v{t0}, v{HN+1}, v{WF+1}")
    for r in range(2, 8):
        a(f"v_fmac_f32 v{t0 if r & 1 else t2}, v{HN+r}, v{WF+r}")
    a(f"v_add_f32 v{t2}, v{t2}, v{t0}")
    for r in range(8): a(f"v_add_f32 v{WF+8+r}, v{HV+r}, v{HN+r}")
    wave_sum(a, t2, t0)
    for r in range(4): a(f"v_cvt_pk_bf16_f32 v{PK+r}, v{WF+8+2*r}, v{WF+8+2*r+1}")
    a(f"""
    v_cvt_pk_bf16_f32 v{t2}, 0, v{t2}
    v_ashrrev_i32 v{t0}, 31, v{t2}
    v_or_b32 v{t0}, 0x80000000, v{t0}
    v_xor_b32 v{t2}, v{t2}, v{t0}
    v_and_b32 v{t2}, 0xffff0000, v{t2}
    s_sub_u32 s5, 0xffff, s3
    v_or_b32 v{t2}, s5, v{t2}      ; key
    ds_write_b32 v{t4}, v{t2}
    buffer_store_dwordx4 v[{PK}:{PK+3}], v{vWL}, s[20:23], s4 offen sc1
    """)
    for r in range(4):
        a(f"v_cvt_pk_bf16_f32 v{PK+4+r}, v{HV+2*r}, v{HV+2*r+1}")
        a(f"v_cvt_pk_bf16_f32 v{ST+4+r}, v{HN+2*r}, v{HN+2*r+1}")
    a(f"""
    s_waitcnt lgkmcnt(0)
    s_barrier
    ds_read_b32 v{t1}, v{t3}
    s_waitcnt lgkmcnt(0)
    v_cmp_gt_u32 vcc, v{t1}, v{t2}
    v_cmp_eq_u32 s[36:37], v{t1}, v{t2}
    s_and_b32 s38, vcc_lo, 0xff
    s_bcnt1_i32_b32 s38, s38       ; rank
    """)
    st(5, False); st(5, True); st(0, 2); st(1, 2); st(2, 2); st(3, 2); st(4, 2); st(5, 2)
    a(f"""
    s_cmp_gt_u32 s38, 1
    s_cbranch_scc1 K2_pub0
    s_add_u32 s5, s4, {WS_H:#x}
    buffer_store_dwordx4 v[{PK+4}:{PK+7}], v{vWL}, s[8:11], s5 offen sc1
    s_add_u32 s5, s4, {WS_HN:#x}
    buffer_store_dwordx4 v[{ST+4}:{ST+7}], v{vWL}, s[8:11], s5 offen sc1
    s_waitcnt vmcnt(0)
    """)
    a.label("K2_pub0")
    a(f"""
    s_barrier
    s_cmp_lg_u32 s38, 0
    s_cbranch_scc1 K2_pub
    v_cndmask_b32 v{t3}, v{t1}, 0, s[36:37]
    """)
    for mod in ("quad_perm:[1,0,3,2]", "quad_perm:[2,3,0,1]", "row_half_mirror"):
        a(f"v_max_u32_dpp v{t3}, v{t3}, v{t3} {mod} row_mask:0xf bank_mask:0xf")
    a(f"""
    v_mov_b32 v{ST}, v{t2}
    v_mov_b32 v{ST+1}, v{t3}
    s_lshl_b32 s5, s2, {G.KS_LOG}
    s_add_u32 s5, s5, {WS_KEY:#x}
    v_mov_b32 v{t0}, 0
    s_mov_b64 exec, 1
    buffer_store_dwordx2 v[{ST}:{ST+1}], v{t0}, s[8:11], s5 offen sc1
    s_mov_b64 exec, -1
    """)
    a.label("K2_pub")
    st(1, 2)
    def fin():
        if G.STAMP: a("s_waitcnt vmcnt(0)")
        stamp(a, 6)
        if G.STAMP: a("s_mov_b32 s91, s30")
        stamp_out(a, 1, 8, "s6", WF)
        a("s_endpgm")
    a(f"""
    s_cmp_ge_u32 s2, 144
    s_cbranch_scc1 K2_fin
    """)
    AFR = V
    KY = K; Y = K + 8; BX = V + 32; AC = K + 16
    a(f"""
    s_setprio 0
    v_bfe_u32 v{t0}, v0, 2, 2
    v_lshrrev_b32 v{t4}, 4, v0           ; g
    v_lshl_add_u32 v{t0}, v{t4}, 3, v{t0}
    v_lshlrev_b32 v{t0}, 5, v{t0}
    v_and_b32 v{t1}, 3, v0
    v_lshl_add_u32 v{t0}, v{t1}, 3, v{t0}
    v_add_u32 v{t0}, s74, v{t0}
    """)
    for sx in range(7):
        for half in range(2):
            d = AFR + 4 * sx + 2 * half
            a(f"ds_read_b64_tr_b16 v[{d}:{d+1}], v{t0} offset:{sx*1024 + half*128}")
    a(f"""
    v_and_b32 v{t3}, 1, v0
    v_lshlrev_b32 v{vPW}, 6, v{t3}
    v_lshl_add_u32 v{vPW}, v{t4}, 4, v{vPW}
    s_lshl_b32 s5, s6, 7
    s_add_u32 s5, s5, {L_RED:#x}
    v_add_u32 v{vPW}, s5, v{vPW}
    v_and_b32 v{vPR}, 31, v0
    v_lshlrev_b32 v{vPR}, 2, v{vPR}      ; (lane&31)*4
    s_cmp_lg_u32 s6, 0
    s_cbranch_scc1 K2_nokey
    v_lshlrev_b32 v{t1}, {G.KS_LOG}, v0
    s_mov_b32 s5, {WS_KEY:#x}
    s_add_u32 s79, s5, {64 << G.KS_LOG}
    s_add_u32 s80, s5, {128 << G.KS_LOG}
    s_add_u32 s81, s5, {192 << G.KS_LOG}
    s_mov_b32 s36, 0
    """)
    a.label("K2_kpoll")
    a(f"""
    buffer_load_dwordx2 v[{KY}:{KY+1}], v{t1}, s[8:11], s5 offen sc1
    buffer_load_dwordx2 v[{KY+2}:{KY+3}], v{t1}, s[8:11], s79 offen sc1
    buffer_load_dwordx2 v[{KY+4}:{KY+5}], v{t1}, s[8:11], s80 offen sc1
    buffer_load_dwordx2 v[{KY+6}:{KY+7}], v{t1}, s[8:11], s81 offen sc1
    s_add_u32 s36, s36, 1
    s_waitcnt vmcnt(0)
    v_min3_u32 v{Y}, v{KY}, v{KY+1}, v{KY+2}
    v_min3_u32 v{Y+1}, v{KY+3}, v{KY+4}, v{KY+5}
    v_min3_u32 v{Y}, v{Y}, v{KY+6}, v{KY+7}
    v_min_u32 v{Y}, v{Y}, v{Y+1}
    v_cmp_eq_u32 vcc, 0, v{Y}
    s_cbranch_vccz K2_kok
    s_sleep {OPT.get('ksl', 2)}
    s_cmp_lt_u32 s36, 0x40000
    s_cbranch_scc1 K2_kpoll
    """)
    a.label("K2_kok")
    st(2, 2)
    if FS: a("s_mov_b32 s30, s36")
    B1, B2 = Y + 4, Y + 5
    a(f"""
    v_max_u32 v{B1}, v{KY}, v{KY+2}
    v_min_u32 v{B2}, v{KY}, v{KY+2}
    v_max3_u32 v{B2}, v{B2}, v{KY+1}, v{KY+3}
    v_max_u32 v{Y}, v{KY+4}, v{KY+6}
    v_min_u32 v{Y+1}, v{KY+4}, v{KY+6}
    v_max3_u32 v{Y+1}, v{Y+1}, v{KY+5}, v{KY+7}
    v_min_u32 v{Y+2}, v{B1}, v{Y}
    v_max_u32 v{B1}, v{B1}, v{Y}
    v_max3_u32 v{B2}, v{B2}, v{Y+1}, v{Y+2}
    v_mov_b32 v{Y}, v{B1}
    """)
    wave_max_u32(a, Y, Y + 1)
    a(f"""
    v_cmp_eq_u32 vcc, v{B1}, v{Y}
    v_cndmask_b32 v{B1}, v{B1}, v{B2}, vcc
    """)
    wave_max_u32(a, B1, Y + 1)
    a(f"""
    v_readfirstlane_b32 s40, v{Y}
    v_readfirstlane_b32 s41, v{B1}
    s_andn2_b32 s42, 0x7ff, s40
    s_andn2_b32 s43, 0x7ff, s41
    s_lshl_b32 s42, s42, 10
    s_lshl_b32 s43, s43, 10
    """)
    a.label("K2_nokey")
    a(f"""
    s_cmp_ge_u32 s2, 112
    s_cbranch_scc1 K2_down
    s_cmp_lg_u32 s6, 0
    s_cbranch_scc1 K2_up1
    s_add_u32 s36, s42, {WS_HN:#x}
    s_add_u32 s37, s43, {WS_HN:#x}
    buffer_load_dwordx4 v[{KY}:{KY+3}], v{vWL}, s[8:11], s36 offen sc1
    buffer_load_dwordx4 v[{KY+4}:{KY+7}], v{vWL}, s[8:11], s37 offen sc1
    s_waitcnt vmcnt(1)
    ds_write_b128 v{vWL}, v[{KY}:{KY+3}] offset:{L_XS}
    s_waitcnt vmcnt(0)
    ds_write_b128 v{vWL}, v[{KY+4}:{KY+7}] offset:{L_XS + 1040}
    """)
    a.label("K2_up1")
    st(3, 2)
    a(f"""
    v_mul_u32_u24 v{t0}, 1040, v{t3}
    v_lshl_add_u32 v{t0}, v{t4}, 4, v{t0}
    s_lshr_b32 s5, s6, 1
    s_lshl_b32 s5, s5, 8
    v_add_u32 v{t0}, s5, v{t0}
    s_waitcnt lgkmcnt(0)
    s_barrier
    """)
    for sx in range(4):
        a(f"ds_read_b128 v[{BX+4*sx}:{BX+4*sx+3}], v{t0} offset:{L_XS + 64*sx}")
    for sx in range(4):
        a(f"s_waitcnt lgkmcnt({3-sx})")
        c = "0" if sx == 0 else f"v[{AC}:{AC+3}]"
        a(f"v_mfma_f32_16x16x32_bf16 v[{AC}:{AC+3}], v[{AFR+4*sx}:{AFR+4*sx+3}], v[{BX+4*sx}:{BX+4*sx+3}], {c}")
    a(f"""
    ds_write_b128 v{vPW}, v[{AC}:{AC+3}]
    s_waitcnt lgkmcnt(0)
    s_barrier
    s_cmp_lg_u32 s6, 0
    s_cbranch_scc1 K2_fin
    """)
    def red_read():
        a(f"v_add_u32 v{t0}, {L_RED:#x}, v{vPR}")
        for k in range(4):
            a(f"ds_read2_b32 v[{KY+2*k}:{KY+2*k+1}], v{t0} offset0:{64*k} offset1:{64*k+32}")
        a("s_waitcnt lgkmcnt(0)")
        a(f"v_pk_add_f32 v[{KY}:{KY+1}], v[{KY}:{KY+1}], v[{KY+2}:{KY+3}]")
        a(f"v_pk_add_f32 v[{KY+4}:{KY+5}], v[{KY+4}:{KY+5}], v[{KY+6}:{KY+7}]")
        a(f"v_pk_add_f32 v[{KY}:{KY+1}], v[{KY}:{KY+1}], v[{KY+4}:{KY+5}]")
    st(4, 2)
    red_read()
    a(f"""
    v_cvt_pk_bf16_f32 v{KY}, 0, v{KY}
    v_cvt_pk_bf16_f32 v{KY+1}, 0, v{KY+1}
    """)
    sigmoid(a, KY + 2, KY, KY + 3)
    a(f"""
    v_mul_f32 v{KY}, v{KY}, v{KY+2}
    v_cvt_pk_bf16_f32 v{KY}, 0, v{KY}
    v_mul_f32 v{KY}, v{KY}, v{KY+1}
    v_cvt_pk_bf16_f32 v{KY}, 0, v{KY}
    v_or_b32 v{KY}, 1, v{KY}
    s_lshl_b32 s5, s76, 7
    s_add_u32 s5, s5, {WS_GU:#x}
    s_mov_b32 exec_hi, 0
    buffer_store_dword v{KY}, v{vPR}, s[8:11], s5 offen sc1
    s_mov_b64 exec, -1
    s_branch K2_fin
    """)
    a.label("K2_down")
    HH, NN, GT, OO = Y + 6, Y + 7, AC + 4, AC + 5
    a(f"""
    s_cmp_lg_u32 s6, 0
    s_cbranch_scc1 K2_dn1
    v_bfe_u32 v{t0}, v0, 4, 1
    v_cmp_eq_u32 vcc, 0, v{t0}
    v_mov_b32 v{t0}, s43
    v_mov_b32 v{t1}, s42
    v_cndmask_b32 v{OO}, v{t0}, v{t1}, vcc
    v_and_b32 v{t0}, 15, v0
    v_lshl_add_u32 v{OO}, v{t0}, 1, v{OO}
    s_lshl_b32 s44, s77, 5
    s_add_u32 s36, s44, {WS_H:#x}
    s_add_u32 s37, s44, {WS_HN:#x}
    buffer_load_ushort v{HH}, v{OO}, s[8:11], s36 offen sc1
    buffer_load_ushort v{NN}, v{OO}, s[8:11], s37 offen sc1
    v_mov_b32 v{t0}, s41
    v_mov_b32 v{t1}, s40
    v_cndmask_b32 v{GT}, v{t0}, v{t1}, vcc
    v_and_b32 v{GT}, 0xffff0000, v{GT}
    v_ashrrev_i32 v{t0}, 31, v{GT}
    v_not_b32 v{t0}, v{t0}
    v_or_b32 v{t0}, 0x80000000, v{t0}
    v_xor_b32 v{GT}, v{GT}, v{t0}
    v_and_b32 v{GT}, 0xffff0000, v{GT}
    """)
    sigmoid(a, GT, GT, t0)
    a(f"v_cvt_pk_bf16_f32 v{GT}, 0, v{GT}")
    a.label("K2_dn1")
    a(f"""
    s_mul_i32 s5, s6, 1792
    s_add_u32 s5, s5, {WS_GU:#x}
    v_min_u32 v{t1}, 47, v0
    v_lshlrev_b32 v{t1}, 4, v{t1}
    s_lshl_b32 s37, s6, 10
    s_add_u32 s37, s37, {L_GB:#x}
    v_lshrrev_b32 v{t0}, 3, v0
    v_lshlrev_b32 v{vPL}, 5, v{t0}
    v_and_b32 v{t0}, 3, v0
    v_lshl_add_u32 v{vPL}, v{t0}, 3, v{vPL}
    v_bfe_u32 v{t0}, v0, 2, 1
    v_mul_u32_u24 v{t0}, 464, v{t0}
    v_add3_u32 v{vPL}, v{vPL}, v{t0}, s37
    v_mul_u32_u24 v{vOW}, 464, v{t3}
    v_lshl_add_u32 v{vOW}, v{t4}, 4, v{vOW}
    v_add_u32 v{vOW}, s37, v{vOW}
    s_mov_b32 s45, 0x07060302
    s_mov_b32 s36, 0
    """)
    a.label("K2_gpoll")
    a(f"""
    buffer_load_dwordx4 v[{KY}:{KY+3}], v{vWL}, s[8:11], s5 offen sc1
    buffer_load_dwordx4 v[{KY+4}:{KY+7}], v{t1}, s[8:11], s5 offen offset:1024 sc1
    s_add_u32 s36, s36, 1
    s_waitcnt vmcnt(0)
    v_min3_u32 v{Y}, v{KY}, v{KY+1}, v{KY+2}
    v_min3_u32 v{Y+1}, v{KY+3}, v{KY+4}, v{KY+5}
    v_min3_u32 v{Y}, v{Y}, v{KY+6}, v{KY+7}
    v_min_u32 v{Y}, v{Y}, v{Y+1}
    v_cmp_eq_u32 vcc, 0, v{Y}
    s_cbranch_vccz K2_gok
    s_sleep {OPT.get('gsl', 2)}
    s_cmp_lt_u32 s36, 0x40000
    s_cbranch_scc1 K2_gpoll
    """)
    a.label("K2_gok")
    st(4, 2)
    a(f"""
    v_perm_b32 v{Y}, v{KY+1}, v{KY}, s45
    v_perm_b32 v{Y+1}, v{KY+3}, v{KY+2}, s45
    v_perm_b32 v{Y+2}, v{KY+5}, v{KY+4}, s45
    v_perm_b32 v{Y+3}, v{KY+7}, v{KY+6}, s45
    ds_write_b64 v{vPL}, v[{Y}:{Y+1}]
    s_mov_b32 exec_hi, 0xffff
    ds_write_b64 v{vPL}, v[{Y+2}:{Y+3}] offset:256
    s_mov_b64 exec, -1
    """)
    for sx in range(7):
        a(f"ds_read_b128 v[{BX+4*sx}:{BX+4*sx+3}], v{vOW} offset:{64*sx}")
    for sx in range(7):
        a(f"s_waitcnt lgkmcnt({6-sx})")
        c = "0" if sx == 0 else f"v[{AC}:{AC+3}]"
        a(f"v_mfma_f32_16x16x32_bf16 v[{AC}:{AC+3}], v[{AFR+4*sx}:{AFR+4*sx+3}], v[{BX+4*sx}:{BX+4*sx+3}], {c}")
    a(f"""
    ds_write_b128 v{vPW}, v[{AC}:{AC+3}]
    s_waitcnt lgkmcnt(0)
    s_barrier
    s_cmp_lg_u32 s6, 0
    s_cbranch_scc1 K2_fin
    """)
    red_read()
    a(f"""
    v_add_f32 v{KY}, v{KY}, v{KY+1}
    v_lshlrev_b32 v{HH}, 16, v{HH}
    v_lshlrev_b32 v{NN}, 16, v{NN}
    v_cvt_pk_bf16_f32 v{KY}, 0, v{KY}
    v_mul_f32 v{KY}, v{KY}, v{GT}
    v_cvt_pk_bf16_f32 v{KY}, 0, v{KY}
    v_add_f32 v{KY}, v{KY}, v{NN}
    v_cvt_pk_bf16_f32 v{KY}, 0, v{KY}
    v_add_f32 v{KY}, v{KY}, v{HH}
    v_cvt_pk_bf16_f32 v{KY}, v{KY}, v{KY}
    s_mov_b32 exec_hi, 0
    buffer_store_short v{KY}, v{OO}, s[20:23], s44 offen sc1
    s_mov_b64 exec, -1
    """)
    a.label("K2_fin")
    if G.STAMP: a("s_waitcnt vmcnt(0)")
    stamp(a, 6)
    if G.STAMP: a("s_mov_b32 s91, s30")
    stamp_out(a, 1, 8, "s6", WF)
    dstamp(a, 1, True, 240)
    a.label("K2_end")
    a("s_endpgm")
    for k, off in enumerate(spins):
        a.label(f"K2_spin{k}")
        a(f"""
        s_sleep 1
        ds_read_b32 v{vFV}, v{vFR} offset:{off}
        s_waitcnt lgkmcnt(0)
        v_cmp_gt_u32 vcc, s29, v{vFV}
        s_cbranch_vccnz K2_spin{k}
        s_branch K2_back{k}
        """)
    n = a.fix()
    if G.ALIGN: print('align', align8(a))
    return a.text(), 256, L_TOTAL
```

```python
import sys
sys.path.insert(0, "gen")
from gen import *
from k1 import gen_k1
from k2 import gen_k2
import argparse
ap = argparse.ArgumentParser()
ap.add_argument("out")
ap.add_argument("--noround", action="store_true")
ap.add_argument("--stamp", action="store_true")
ap.add_argument("--probe", type=float, default=None)
ap.add_argument("--dbg", default="")
ap.add_argument("--noop", default="")
ap.add_argument("--dstamp", action="store_true")
ap.add_argument("--dup", default="")
args = ap.parse_args()
set_dstamp(args.dstamp)
set_stamp(args.stamp)
import gen as G
G.ALIGN = 'noalign' not in args.dbg
G.KS_LOG = int(dict(x.split('=') for x in args.dbg.split(',') if '=' in x).get('ks', G.KS_LOG))
t1, v1, l1 = gen_k1(dbg=args.dbg)
t2, v2, l2 = gen_k2(dbg=args.dbg, prio='noprio' not in args.dbg)
ks = [("k1_kernel", t1, v1, l1, 256, 512), ("k2_kernel", t2, v2, l2, 256, 512)]
for pos in sorted([int(x) for x in args.dup.split(",") if x], reverse=True):
    ks.insert(pos, ks[pos])
for pos in sorted([int(x) for x in args.noop.split(",") if x], reverse=True):
    ks.insert(pos, ("noop_kernel", "    s_endpgm\n", 8, 0, 256, 256))
build(ks, args.out)
```

```python
from gen import *
import gen as G

L_KV = 65536; L_WOT = 81920; L_X = 81920 + 2048; L1_TOTAL = L_X + 65536

def gen_k1(dbg=''):
    a = Asm()
    X = 32
    ACC = 96
    AF = 116
    T = 148
    a(f"""
    s_cmp_ge_u32 s2, 256
    s_cbranch_scc1 K1_end
    """)
    stamp(a, 0)
    if 'leak' in dbg: a('s_memrealtime s[90:91]')
    dstamp(a, 0, False, 200)
    a(f"""
    s_load_dwordx8 s[24:31], s[0:1], 0
    s_load_dwordx2 s[44:45], s[0:1], 32
    s_load_dwordx2 s[32:33], s[0:1], 96
    s_and_b32 s3, s2, 7
    s_lshr_b32 s4, s2, 3
    s_and_b32 s5, s4, 7
    s_lshr_b32 s4, s4, 3           ; tb & 3
    s_lshl_b32 s3, s3, 2
    s_add_u32 s3, s3, s4
    v_lshrrev_b32 v1, 6, v0
    v_and_b32 v2, 63, v0           ; lane
    v_readfirstlane_b32 s6, v1     ; wave
    v_and_b32 v3, 15, v2           ; l & 15
    v_lshrrev_b32 v4, 4, v2        ; g
    v_bfe_u32 v18, v2, 2, 2        ; r'
    v_and_b32 v19, 3, v2           ; c'
    v_lshl_add_u32 v20, v4, 3, v18 ; 8g + r'
    v_lshlrev_b32 v17, 5, v20
    v_lshl_add_u32 v17, v19, 3, v17
    s_cmp_ge_u32 s6, 4
    s_cbranch_scc1 K1_loader
    s_lshl_b32 s7, s3, 6
    s_lshl_b32 s34, s6, 4
    s_add_u32 s7, s7, s34
    v_add_u32 v5, s7, v3           ; token
    v_lshrrev_b32 v6, 2, v2        ; row
    v_lshrrev_b32 v7, 4, v2
    v_and_b32 v7, 2, v7
    v_xor_b32 v7, v7, v19
    v_lshlrev_b32 v6, 10, v6
    v_lshl_add_u32 v6, v7, 4, v6
    s_lshl_b32 s63, s6, 14
    s_add_u32 s63, s63, {L_X}
    s_lshl_b32 s64, s7, 10
    s_lshl_b32 s62, s5, 7
    s_waitcnt lgkmcnt(0)
    """)
    stamp(a, 1)
    srd(a, 8, 24, 25, 0x200000)
    def xdma(u):
        if u % 2 == 0:
            a(f"""
            s_add_u32 m0, s63, {u*1024}
            s_add_u32 s48, s62, s64
            buffer_load_dwordx4 v6, s[8:11], s48 offen lds
            """)
        else:
            a(f"""
            s_add_u32 m0, s63, {u*1024 - 64}
            s_add_u32 s62, s62, 128
            buffer_load_dwordx4 v6, s[8:11], s48 offen offset:64 lds
            s_and_b32 s62, s62, 0x3ff
            """)
    for u in range(10): xdma(u)
    srd(a, 20, 32, 33, WS_SIZE)
    ONE = 24; SEL = 8
    SEL = 152
    a(f"""
    v_lshlrev_b32 v21, 7, v20
    v_lshl_add_u32 v21, v19, 3, v21   ; row*128 + 8c'
    v_lshrrev_b32 v22, 1, v18
    v_and_b32 v23, 1, v4
    v_lshl_or_b32 v22, v23, 1, v22 ; h
    """)
    for t in range(4):
        a(f"v_xor_b32 v23, {t}, v22")
        a(f"v_lshl_add_u32 v{13+t}, v23, 5, v21")
    a(f"""
    v_lshlrev_b32 v10, 6, v3
    v_lshrrev_b32 v7, 2, v3
    v_and_b32 v7, 2, v7
    v_xor_b32 v7, v7, v4
    v_lshl_add_u32 v10, v7, 4, v10
    v_add_u32 v10, s63, v10
    v_and_b32 v7, 1, v4
    v_lshlrev_b32 v7, 7, v7
    v_add_u32 v17, {L_KV}, v17
    v_xor_b32 v12, v17, v7
    v_xor_b32 v17, 128, v12
    """)
    for r in range(4): a(f"v_mov_b32 v{ONE+r}, 0x3f803f80")
    a(f"""
    v_and_b32 v7, 1, v2
    v_lshlrev_b32 v7, 4, v7
    v_mov_b32 v8, 0x3f80
    v_lshlrev_b32 v7, v7, v8
    v_cmp_eq_u32 s[36:37], v18, v4 ; g == (l&15)>>2
    v_bfe_u32 v8, v2, 1, 1
    v_cmp_eq_u32 vcc, 0, v8
    s_and_b64 s[38:39], s[36:37], vcc
    s_andn2_b64 s[40:41], s[36:37], vcc
    v_mov_b32 v{SEL}, 0
    v_mov_b32 v{SEL+1}, 0
    v_cndmask_b32 v{SEL+2}, 0, v7, s[38:39]
    v_cndmask_b32 v{SEL+3}, 0, v7, s[40:41]
    v_mov_b32 v{SEL+4}, 0
    v_mov_b32 v{SEL+5}, 0
    """)
    for u in range(10, 16): xdma(u)
    stamp(a, 2)
    if 'k1nb' not in dbg: a("s_barrier")
    stamp(a, 3)
    if 'leak' in dbg: a('s_memrealtime s[94:95]')
    m16 = "v_mfma_f32_16x16x32_bf16"
    SUM = ACC; GR = ACC + 4; NM = 220
    def stat(u):
        xs = f"v[{X+4*u}:{X+4*u+3}]"
        a(f"{m16} v[{SUM}:{SUM+3}], v[{ONE}:{ONE+3}], {xs}, " + ("0" if u == 0 else f"v[{SUM}:{SUM+3}]"))
        a(f"{m16} v[{GR}:{GR+3}], {xs}, {xs}, " + ("0" if u == 0 else f"v[{GR}:{GR+3}]"))
    for u in range(0, 16, 2):
        a(f"s_waitcnt vmcnt({14-u})")
        a(f"ds_read_b128 v[{X+4*u}:{X+4*u+3}], v10 offset:{1024*u}")
        a(f"ds_read_b128 v[{X+4*u+4}:{X+4*u+7}], v10 offset:{1024*u+1024}")
        if u >= 4:
            a("s_waitcnt lgkmcnt(4)")
            stat(u - 4); stat(u - 3)
    a("s_waitcnt lgkmcnt(2)"); stat(12); stat(13)
    a("s_waitcnt lgkmcnt(0)"); stat(14); stat(15)
    stamp(a, 4)
    a(f"""
    v_and_b32 v7, 1, v2
    v_cmp_eq_u32 s[42:43], 1, v7
    v_cndmask_b32 v8, v{GR}, v{GR+1}, s[42:43]
    v_cndmask_b32 v9, v{GR+2}, v{GR+3}, s[42:43]
    v_cndmask_b32 v8, 0, v8, s[38:39]
    v_cndmask_b32 v26, v8, v9, s[40:41]
    """)
    for w in (16, 32):
        sum_swap(a, 26, 28, w)
    ln_scalars(a, SUM, 26, 28, 30, 27, 29)
    for r in range(4): a(f"v_sub_f32 v{NM+r}, 0, v28")
    NB = 4
    def sub(u):
        d = AF + 8 * (u % NB)
        xs = f"v[{X+4*u}:{X+4*u+3}]"
        a(f"{m16} v[{d}:{d+3}], v[{SEL+2}:{SEL+5}], {xs}, v[{NM}:{NM+3}]")
        a(f"{m16} v[{d+4}:{d+7}], v[{SEL}:{SEL+3}], {xs}, v[{NM}:{NM+3}]")
    sub(0); sub(1)
    def ln_step(u):
        d = AF + 8 * (u % NB); L = []
        for r in range(4): L.append(f"v_cvt_pk_bf16_f32 v{d+r}, 0, v{d+r}")
        if u + 2 < 16:
            dd = AF + 8 * ((u + 2) % NB); xs = f"v[{X+4*(u+2)}:{X+4*(u+2)+3}]"
            L.append(f"{m16} v[{dd}:{dd+3}], v[{SEL+2}:{SEL+5}], {xs}, v[{NM}:{NM+3}]")
        for r in range(4, 8): L.append(f"v_cvt_pk_bf16_f32 v{d+r}, 0, v{d+r}")
        for r in range(0, 8, 2): L.append(f"v_pk_mul_f32 v[{d+r}:{d+r+1}], v[{d+r}:{d+r+1}], v[30:31] op_sel_hi:[1,0]")
        if u + 2 < 16:
            L.append(f"{m16} v[{dd+4}:{dd+7}], v[{SEL}:{SEL+3}], {xs}, v[{NM}:{NM+3}]")
        for r in range(4): L.append(f"v_cvt_pk_bf16_f32 v{X+4*u+r}, v{d+2*r}, v{d+2*r+1}")
        return L
    LEAD = int(dict(x.split('=') for x in dbg.split(',') if '=' in x).get('lead', 5))
    for u in range(LEAD):
        for ins in ln_step(u): a(ins)
    a("s_barrier")
    stamp(a, 5)
    RG = 160
    def rd(s, t):
        for half in range(2):
            d = RG + 20 * (s % 3) + 4 * t + 2 * half
            if t < 4: a(f"ds_read_b64_tr_b16 v[{d}:{d+1}], v{13+t} offset:{s*4096 + half*512}")
            else:     a(f"ds_read_b64_tr_b16 v[{d}:{d+1}], v{17 if half else 12} offset:{s*1024}")
    for t in range(5): rd(0, t)
    for t in range(5): rd(1, t)
    for s in range(16):
        L = ln_step(s + LEAD) if s + LEAD < 16 else []
        a(f"s_waitcnt lgkmcnt({10 if s < 15 else 0})")
        for t in range(5):
            d = RG + 20 * (s % 3) + 4 * t
            c = "0" if s == 0 else f"v[{ACC+4*t}:{ACC+4*t+3}]"
            a(f"{m16} v[{ACC+4*t}:{ACC+4*t+3}], v[{d}:{d+3}], v[{X+4*s}:{X+4*s+3}], {c}")
            if s + 2 < 16: rd(s + 2, t)
            n = (len(L) + (4 - t)) // (5 - t)
            for ins in L[:n]: a(ins)
            L = L[n:]
    a(f"""
    s_lshl_b32 s35, s5, 10
    v_lshrrev_b32 v7, 3, v5
    v_lshlrev_b32 v7, 13, v7
    v_and_b32 v8, 7, v5
    v_lshl_add_u32 v7, v8, 4, v7
    v_lshrrev_b32 v9, 1, v4
    v_lshl_add_u32 v7, v9, 9, v7
    v_and_b32 v11, 1, v4
    v_lshl_add_u32 v7, v11, 7, v7
    """)
    for tp in range(2):
        for t in (2 * tp, 2 * tp + 1):
            for r in range(4): a(f"v_cvt_pk_bf16_f32 v{ACC+4*t+r}, 0, v{ACC+4*t+r}")
            for r in range(4): a(f"v_mul_f32 v{ACC+4*t+r}, {f2u(0.25 * 1.4426950408889634):#x}, v{ACC+4*t+r}")
            a(f"v_cvt_pk_bf16_f32 v{AF+2*t}, v{ACC+4*t}, v{ACC+4*t+1}")
            a(f"v_cvt_pk_bf16_f32 v{AF+2*t+1}, v{ACC+4*t+2}, v{ACC+4*t+3}")
        b = AF + 4 * tp
        a(f"v_permlane16_swap_b32 v{b}, v{b+2}")
        a(f"v_permlane16_swap_b32 v{b+1}, v{b+3}")
        a(f"buffer_store_dwordx4 v[{b}:{b+3}], v7, s[20:23], s35 offen offset:{256*tp}")
    KV = ACC + 16
    a(f"""
    s_cmp_gt_u32 s5, 1
    s_cbranch_scc1 K1_q
    v_cvt_pk_bf16_f32 v{T}, v{KV}, v{KV+1}
    v_cvt_pk_bf16_f32 v{T+1}, v{KV+2}, v{KV+3}
    s_lshr_b32 s35, s7, 5
    s_mul_i32 s35, s35, {TS}
    s_add_u32 s35, s35, {WS_KV:#x}
    s_cmp_eq_u32 s5, 0
    s_cbranch_scc0 K1_v
    v_and_b32 v8, 31, v5
    v_lshlrev_b32 v8, 4, v8
    v_lshl_add_u32 v8, v9, 9, v8
    v_lshl_add_u32 v8, v11, 3, v8
    buffer_store_dwordx2 v[{T}:{T+1}], v8, s[20:23], s35 offen
    s_branch K1_q
    """)
    a.label("K1_v")
    a(f"""
    s_and_b32 s36, s6, 1
    s_mul_i32 s36, s36, 544
    s_add_u32 s35, s35, s36
    v_bfe_u32 v8, v3, 2, 1
    v_mul_u32_u24 v8, 272, v8
    v_lshrrev_b32 v9, 3, v3
    v_lshl_add_u32 v8, v9, 3, v8
    v_and_b32 v9, 3, v3
    v_lshl_add_u32 v8, v9, 1, v8
    v_mov_b32 v9, 0x3f80
    buffer_store_short v9, v8, s[20:23], s35 offen offset:{1024 + 256}
    v_lshl_add_u32 v8, v4, 6, v8
    buffer_store_short v{T}, v8, s[20:23], s35 offen offset:1024
    buffer_store_short_d16_hi v{T}, v8, s[20:23], s35 offen offset:1040
    buffer_store_short v{T+1}, v8, s[20:23], s35 offen offset:1056
    buffer_store_short_d16_hi v{T+1}, v8, s[20:23], s35 offen offset:1072
    """)
    a.label("K1_q")
    if G.STAMP: a("s_waitcnt vmcnt(0)")
    stamp(a, 6)
    stamp_out(a, 0, 20, "s6", 158)
    if 'leak' in dbg:
        a(f"""
        s_waitcnt vmcnt(0)
        s_memrealtime s[92:93]
        s_waitcnt lgkmcnt(0)
        s_cmp_lg_u32 s2, 0
        s_cbranch_scc1 K1_leak
        v_mov_b32 v40, s90
        v_mov_b32 v41, s92
        v_mov_b32 v42, s94
        v_mov_b32 v43, 0
        s_mov_b32 s48, {WS_SEL:#x}
        s_mov_b64 exec, 1
        buffer_store_dwordx4 v[40:43], v43, s[20:23], s48 offen
        """)
        a.label("K1_leak")
    dstamp(a, 0, True, 200)
    a("s_endpgm")
    a.label("K1_loader")
    if 'noldprio' not in dbg: a("s_setprio 3")
    if 'nocodepf' not in dbg:
        a(f"""
        s_cmp_ge_u32 s2, 16
        s_cbranch_scc1 K1_nocp
        s_getpc_b64 s[60:61]
        """)
        a.label("K1_pc")
        a(f"""
        s_sub_u32 s60, s60, K1_pc-k1_kernel
        s_subb_u32 s61, s61, 0
        v_subrev_u32 v30, 256, v0
        v_lshlrev_b32 v30, 7, v30
        v_min_u32 v30, K_all_end-k1_kernel-4, v30
        global_load_dword v31, v30, s[60:61]
        """)
        a.label("K1_nocp")
    a(f"""
    s_sub_u32 s6, s6, 4
    v_lshrrev_b32 v7, 3, v2        ; row_in
    v_and_b32 v8, 7, v2            ; slot
    v_and_b32 v9, 2, v7
    v_xor_b32 v8, v8, v9
    v_xor_b32 v9, 4, v8
    s_lshl_b32 s35, s5, 7
    v_lshlrev_b32 v7, 10, v7
    v_add_u32 v7, s35, v7
    v_lshl_add_u32 v10, v8, 4, v7
    v_lshl_add_u32 v11, v9, 4, v7
    v_lshlrev_b32 v12, 4, v2       ; lane*16
    v_lshrrev_b32 v13, 1, v2
    v_lshlrev_b32 v13, 10, v13
    v_and_b32 v14, 1, v2
    v_lshl_add_u32 v13, v14, 4, v13
    s_lshl_b32 s36, s6, 14
    s_lshl_b32 s37, s6, 4
    s_lshl_b32 s38, s5, 3
    s_add_u32 s37, s37, s38
    v_and_b32 v15, 16, v2
    v_lshlrev_b32 v15, 3, v15
    v_xor_b32 v15, v15, v12
    s_lshl_b32 s39, s4, 2
    s_waitcnt lgkmcnt(0)
    """)
    srd(a, 12, 26, 27, 0x80000)
    if 'wpf' in dbg:
        a(f"""
        s_lshr_b32 s48, s2, 3
        s_lshl_b32 s48, s48, 14
        s_and_b32 s49, s6, 1
        s_lshl_b32 s49, s49, 13
        s_add_u32 s48, s48, s49
        v_lshlrev_b32 v30, 7, v2
        s_cmp_gt_u32 s6, 1
        s_cbranch_scc1 K1_nopf
        buffer_load_dword v29, v30, s[12:15], s48 offen
        """)
        a.label("K1_nopf")
    a(f"""
    s_cmp_eq_u32 s5, 0
    s_cselect_b64 s[46:47], s[28:29], s[30:31]
    """)
    srd(a, 16, 46, 47, 0x4000)
    srd(a, 40, 44, 45, 0x80000)
    srd(a, 20, 32, 33, WS_SIZE)
    a(f"""
    s_cmp_ge_u32 s2, {14 + (256 << G.KS_LOG) // 1024}
    s_cbranch_scc1 K1_noz
    s_cmp_lg_u32 s6, 0
    s_cbranch_scc1 K1_noz
    v_mov_b32 v32, 0
    v_mov_b32 v33, 0
    v_mov_b32 v34, 0
    v_mov_b32 v35, 0
    s_lshl_b32 s48, s2, 10
    s_cmp_lt_u32 s2, 14
    s_mov_b32 s49, {WS_KEY - 14 * 1024:#x}
    s_cselect_b32 s49, {WS_GU:#x}, s49
    s_add_u32 s48, s48, s49
    buffer_store_dwordx4 v[32:35], v12, s[20:23], s48 offen
    """)
    a.label("K1_noz")
    if 'k1nb' not in dbg: a("s_barrier")
    for i in range(16):
        a(f"""
        s_add_u32 s48, s39, {i}
        s_and_b32 s48, s48, 15
        s_lshl_b32 s49, s48, 10
        s_add_u32 m0, s36, s49
        s_add_u32 s48, s48, s37
        s_and_b32 s48, s48, 63
        s_lshl_b32 s48, s48, 13
        buffer_load_dwordx4 v{10 + (i & 1)}, s[12:15], s48 offen lds
        """)
    a(f"""
    s_cmp_gt_u32 s5, 1
    s_cbranch_scc1 K1_nokv
    s_lshl_b32 s36, s6, 12
    s_lshl_b32 s38, s5, 11
    """)
    for i in range(4):
        a(f"""
        s_add_u32 s48, s36, {i*1024}
        s_add_u32 m0, s48, {L_KV}
        s_add_u32 s48, s48, s38
        s_and_b32 s48, s48, 0x3fff
        buffer_load_dwordx4 v15, s[16:19], s48 offen lds
        """)
    a.label("K1_nokv")
    a(f"""
    s_cmp_lt_u32 s6, 2
    s_cbranch_scc1 K1_nowo
    s_lshl_b32 s46, s2, 1
    s_and_b32 s47, s6, 1
    s_add_u32 s46, s46, s47
    s_lshr_b32 s47, s46, 6
    s_lshl_b32 s47, s47, 16
    s_bfe_u32 s48, s46, 0x10002
    s_lshl_b32 s48, s48, 15        ; s * 32 rows
    s_add_u32 s47, s47, s48
    s_bfe_u32 s48, s46, 0x30003
    s_lshl_b32 s48, s48, 7         ; w * 128 B
    s_add_u32 s47, s47, s48
    s_and_b32 s48, s46, 3
    s_lshl_b32 s48, s48, 5         ; t * 32 B
    s_add_u32 s47, s47, s48
    s_lshl_b32 s48, s6, 10
    s_add_u32 s48, s48, {L_WOT - 2048}
    s_mov_b32 m0, s48
    v_add_u32 v17, s48, v17
    buffer_load_dwordx4 v13, s[40:43], s47 offen lds
    s_waitcnt vmcnt(1)
    s_barrier
    s_waitcnt vmcnt(0)
    ds_read_b64_tr_b16 v[32:33], v17
    ds_read_b64_tr_b16 v[34:35], v17 offset:128
    s_lshl_b32 s46, s46, 10
    s_add_u32 s46, s46, {WS_WOF:#x}
    s_waitcnt lgkmcnt(0)
    buffer_store_dwordx4 v[32:35], v12, s[20:23], s46 offen
    s_endpgm
    """)
    a.label("K1_nowo")
    a("s_waitcnt vmcnt(0)")
    a("s_barrier")
    a.label("K1_end")
    a("s_endpgm")
    a.fix()
    if G.ALIGN: print('align', align8(a))
    return a.text(), 224, L1_TOTAL
```

```python
from gen import *
import gen as G

L_PART = 0x0; L_Q = 0x6000; L_MREF = 0x8400; L_OB = 0xA800; L_KEY = 0xAC00; L_FLG = 0xAD00; L_MX = 0xB000; L_HB = 0xB400
L_FW = 0xE000; L_TOTAL = 0xE000 + 8 * 7168
L_XS = L_PART; L_RED = L_PART + 0x1000; L_GB = L_PART + 0x2000
C_EXACT = 0.25 * 1.4426950408889634
OFFS = 96.0

def wave_sum(a, vs, ts):
    if isinstance(vs, int): vs, ts = [vs], [ts]
    for mod in ("quad_perm:[1,0,3,2]", "quad_perm:[2,3,0,1]", "row_half_mirror", "row_mirror"):
        for v in vs:
            a(f"v_add_f32_dpp v{v}, v{v}, v{v} {mod} row_mask:0xf bank_mask:0xf")
    for w in (16, 32):
        for v, t in zip(vs, ts): a(f"v_mov_b32 v{t}, v{v}")
        for v, t in zip(vs, ts): a(f"v_permlane{w}_swap_b32 v{t}, v{v}")
        for v, t in zip(vs, ts): a(f"v_add_f32 v{v}, v{v}, v{t}")

class VM:
    def __init__(self, a): self.a = a; self.q = []; self.done = -1
    def issue(self, tag): self.q.append(tag)
    def wait(self, tag):
        i = max(k for k, t in enumerate(self.q) if t == tag)
        if i <= self.done: return
        self.done = i
        self.a(f"s_waitcnt vmcnt({len(self.q) - 1 - i})")

def wave_max_u32(a, v, t):
    for mod in ("quad_perm:[1,0,3,2]", "quad_perm:[2,3,0,1]", "row_half_mirror", "row_mirror"):
        a(f"v_max_u32_dpp v{v}, v{v}, v{v} {mod} row_mask:0xf bank_mask:0xf")
    for w in (16, 32):
        a(f"""
        v_mov_b32 v{t}, v{v}
        v_permlane{w}_swap_b32 v{t}, v{v}
        v_max_u32 v{v}, v{v}, v{t}
        """)

LOG2E = 1.4426950408889634
def sigmoid(a, d, x, t):
    a(f"""
    v_mul_f32 v{t}, {f2u(-LOG2E):#x}, v{x}
    v_exp_f32 v{t}, v{t}
    v_add_f32 v{t}, 1.0, v{t}
    v_rcp_f32 v{d}, v{t}
    """)

def gen_k2(dbg='', prio=True):
    a = Asm()
    OPT = dict(x.split('=') for x in dbg.split(',') if '=' in x)
    PFS = int(OPT.get('pfs', 0)); PFP = int(OPT.get('pfp', 1))
    TAILST = 'tailst' in dbg
    FS = 'ffnst' in dbg
    def st(i, tail):
        if FS:
            if tail == 2: stamp(a, i)
        elif tail != 2 and bool(tail) == TAILST: stamp(a, i)
    K = 16; V = 48; X = [112, 128]; O = 144; CM = 160; SP = 176; Q = 184; OA = 188; WF = 204; BF = 236; S1 = 240
    vQA, vPW, vPR, vPL, vOW, vOR, vLM, vWL, vKL, vVL = 1, 2, 3, 4, 5, 6, 7, 8, 9, 10
    t0, t1, t2, t3, t4 = 11, 12, 13, 14, 15
    vFW, vFR, vFV, vRD = 9, 13, 14, 15
    a(f"""
    s_cmp_ge_u32 s2, 256
    s_cbranch_scc1 K2_end
    """)
    st(0, False)
    if 'leak' in dbg: a('s_memrealtime s[90:91]')
    dstamp(a, 1, False, 240)
    a(f"""
    s_load_dwordx2 s[48:49], s[0:1], 96
    s_load_dwordx2 s[40:41], s[0:1], 0
    s_load_dwordx8 s[60:67], s[0:1], 48
    s_load_dwordx2 s[46:47], s[0:1], 80
    s_and_b32 s3, s2, 7
    s_lshr_b32 s4, s2, 3
    s_lshl_b32 s7, s3, 8
    s_lshl_b32 s5, s4, 3
    s_add_u32 s7, s7, s5           ; T0
    s_and_b32 s28, s4, 7           ; rot
    v_lshrrev_b32 v{t0}, 6, v0
    v_and_b32 v0, 63, v0
    v_readfirstlane_b32 s6, v{t0}
    s_mov_b32 s30, 0
    v_lshlrev_b32 v{vWL}, 4, v0
    s_mul_i32 s3, s6, {8*TS}
    s_add_u32 s3, s3, {WS_KV:#x}
    """)
    for t in range(8):
        a(f"""
        s_add_u32 s4, s28, {t}
        s_and_b32 s4, s4, 7
        s_mul_i32 s4, s4, {TS}
        s_add_u32 s{50+t}, s3, s4
        """)
    a.label("K2_restart")
    a(f"""
    s_add_u32 s3, s6, s28
    s_and_b32 s3, s3, 7
    s_add_u32 s3, s3, s7
    s_lshl_b32 s3, s3, 10
    v_and_b32 v{t1}, 31, v0
    v_lshrrev_b32 v{t2}, 5, v0
    v_mul_u32_u24 v{vVL}, 272, v{t2}
    v_lshl_add_u32 v{vVL}, v{t1}, 4, v{vVL}
    v_cmp_lt_u32 vcc, 16, v{t1}
    v_bfrev_b32 v{t0}, 1
    v_add_u32 v{vQA}, {L_Q:#x}, v{vWL}
    v_cndmask_b32 v{vVL}, v{vVL}, v{t0}, vcc
    s_waitcnt lgkmcnt(0)
    """)
    srd(a, 8, 48, 49, WS_SIZE)
    vm = VM(a)
    def ldK(t):
        a(f"buffer_load_dwordx4 v[{K+4*t}:{K+4*t+3}], v{vWL}, s[8:11], s{50+t} offen"); vm.issue(f"K{t}")
    def ldV(t):
        for h in range(2):
            a(f"buffer_load_dwordx4 v[{V+8*t+4*h}:{V+8*t+4*h+3}], v{vVL}, s[8:11], s{50+t} offen offset:{1024 + 544*h}"); vm.issue(f"V{t}{h}")
    a(f"buffer_load_dwordx4 v[{Q}:{Q+3}], v{vWL}, s[8:11], s3 offen"); vm.issue("Q")
    ldK(0); ldK(1)
    a(f"""
    s_lshl_b32 s3, s6, 10
    v_add_u32 v{t3}, s3, v{vQA}
    """)
    def late_setup(part):
        u0, u1, u2, u3 = S1, S1 + 1, S1 + 2, S1 + 3
        if part == 0:
            srd(a, 16, 40, 41, 0x200000)
            srd(a, 20, 46, 47, 0x200000)
            srd(a, 24, 60, 61, 0x400)
            a(f"""
            v_and_b32 v{u1}, 31, v0
            v_lshrrev_b32 v{u2}, 5, v0
            v_mul_u32_u24 v{vPW}, 96, v{u1}
            v_lshl_add_u32 v{vPW}, v{u2}, 4, v{vPW}
            s_mul_i32 s3, s6, 3072
            v_add_u32 v{vPW}, s3, v{vPW}
            v_lshrrev_b32 v{u0}, 4, v0     ; g
            s_lshl_b32 s3, s6, 2
            v_add_u32 v{u1}, s3, v{u0}     ; n = 4w + g
            v_mul_u32_u24 v{vPL}, 96, v{u1}
            v_and_b32 v{u2}, 15, v0        ; d
            v_lshl_add_u32 v{vPR}, v{u2}, 2, v{vPL}
            v_add_u32 v{vPL}, 64, v{vPL}
            s_lshl_b32 s31, s28, 16
            s_lshl_b32 s33, s6, 13
            s_add_u32 s33, s33, {WS_WOF:#x}
            """)
        elif part == 1:
            a(f"""
            v_and_b32 v{u3}, 7, v{u1}      ; token
            v_lshrrev_b32 v{u1}, 3, v{u1}  ; head_local
            v_lshlrev_b32 v{vOW}, 7, v{u3}
            v_lshl_add_u32 v{vOW}, v{u1}, 5, v{vOW}
            v_lshl_add_u32 v{vOW}, v{u2}, 1, v{vOW}
            v_add_u32 v{vOW}, {L_OB:#x}, v{vOW}
            v_and_b32 v{u3}, 7, v0
            v_lshlrev_b32 v{vOR}, 7, v{u3}
            v_lshl_add_u32 v{vOR}, v{u0}, 4, v{vOR}
            v_add_u32 v{vOR}, {L_OB:#x}, v{vOR}
            v_mov_b32 v{vLM}, 0
            v_lshlrev_b32 v{vFR}, 2, v{u3}
            v_add_u32 v{vFR}, {L_FLG:#x}, v{vFR}
            """)
        else:
            for r in range(0, 16, 2):
                a(f"v_pk_mov_b32 v[{OA+r}:{OA+r+1}], 0, 0")
    late_setup(0); late_setup(1)
    ldV(0); ldK(2); ldV(1)
    late_setup(2)
    st(1, False)
    vm.wait("Q")
    a(f"""
    ds_write_b128 v{t3}, v[{Q}:{Q+3}]
    s_cmp_lg_u32 s30, 0
    s_cbranch_scc1 K2_safe
    """)
    vm.wait("K1")
    a(f"""
    v_mfma_f32_32x32x16_bf16 v[{X[0]}:{X[0]+15}], v[{K}:{K+3}], v[{Q}:{Q+3}], 0
    v_mfma_f32_32x32x16_bf16 v[{X[1]}:{X[1]+15}], v[{K+4}:{K+7}], v[{Q}:{Q+3}], 0
    """)
    S = X[0]
    a(f"v_max3_f32 v{t0}, v{S}, v{S+1}, v{S+2}")
    for r in range(3, 31, 2):
        a(f"v_max3_f32 v{t0}, v{t0}, v{S+r}, v{S+r+1}")
    a(f"""
    v_max_f32 v{t0}, v{t0}, v{S+31}
    v_mov_b32 v{t1}, v{t0}
    v_permlane32_swap_b32 v{t1}, v{t0}
    v_max_f32 v{t0}, v{t0}, v{t1}
    v_mov_b32 v{t1}, {f2u(-OFFS):#x}
    s_branch K2_mref
    """)
    a.label("K2_safe")
    a(f"""
    v_and_b32 v{t0}, 31, v0
    v_lshlrev_b32 v{S1+4}, 2, v{t0}
    v_add_u32 v{S1+4}, {L_MX:#x}, v{S1+4}
    s_lshl_b32 s3, s6, 7
    v_add_u32 v{S1+5}, s3, v{S1+4}
    v_mov_b32 v{t0}, 0xff800000
    ds_write_b32 v{S1+5}, v{t0}
    s_waitcnt vmcnt(0) lgkmcnt(0)
    s_barrier
    v_mov_b32 v{t1}, v{vQA}
    s_mov_b32 s29, 0
    """)
    a.label("K2_safe_loop")
    a(f"""
    ds_read_b128 v[{BF}:{BF+3}], v{t1}
    v_mov_b32 v{t0}, 0xff800000
    s_waitcnt lgkmcnt(0)
    """)
    for t in range(8):
        a(f"v_mfma_f32_32x32x16_bf16 v[{S}:{S+15}], v[{K+4*t}:{K+4*t+3}], v[{BF}:{BF+3}], 0")
        for r in range(0, 16, 2):
            a(f"v_max3_f32 v{t0}, v{t0}, v{S+r}, v{S+r+1}")
    a(f"""
    ds_max_f32 v{S1+4}, v{t0}
    v_add_u32 v{t1}, 1024, v{t1}
    v_add_u32 v{S1+4}, 128, v{S1+4}
    s_add_u32 s29, s29, 1
    s_cmp_lt_u32 s29, 8
    s_cbranch_scc1 K2_safe_loop
    s_waitcnt lgkmcnt(0)
    s_barrier
    ds_read_b32 v{t0}, v{S1+5}
    v_mov_b32 v{t1}, 0
    s_waitcnt lgkmcnt(0)
    """)
    a.label("K2_mref")
    a(f"""
    v_sub_f32 v{BF}, v{t1}, v{t0}
    v_sub_f32 v{BF+1}, v{t1}, v{t0}
    v_sub_f32 v{BF+2}, v{t1}, v{t0}
    v_sub_f32 v{BF+3}, v{t1}, v{t0}
    ds_write_b128 v{t3}, v[{BF}:{BF+3}] offset:{L_MREF - L_Q}
    s_lshl_b32 s3, s6, 2
    s_add_u32 s3, s3, {L_FLG:#x}
    v_mov_b32 v{vFW}, s3
    v_mov_b32 v{vRD}, 0
    ds_write2_b32 v{vFW}, v{vRD}, v{vRD} offset0:0 offset1:8
    s_waitcnt lgkmcnt(0)
    s_barrier
    """)
    def rd_qcm():
        a(f"ds_read_b128 v[{Q}:{Q+3}], v{vQA}")
        for k in range(4):
            a(f"ds_read_b128 v[{CM+4*k}:{CM+4*k+3}], v{vQA} offset:{L_MREF - L_Q}")
        a(f"v_add_u32 v{vQA}, 1024, v{vQA}")
    mf = "v_mfma_f32_32x32x16_bf16"
    def M1(kt, xb):
        a(f"{mf} v[{X[xb]}:{X[xb]+15}], v[{K+4*kt}:{K+4*kt+3}], v[{Q}:{Q+3}], v[{CM}:{CM+15}]")
    def E(xb, lo, hi):
        for r in range(lo, hi):
            if 'noexp' in dbg:
                a(f"v_cvt_pk_bf16_f32 v{X[xb]+r}, 0, v{X[xb]+r}"); a(f"v_cvt_pk_bf16_f32 v{X[xb]+r}, 0, v{X[xb]+r}")
                continue
            a(f"v_exp_f32 v{X[xb]+r}, v{X[xb]+r}")
    def C2(h, xb):
        for k in range(4):
            a(f"v_cvt_pk_bf16_f32 v{SP+4*h+k}, v{X[xb]+8*h+2*k}, v{X[xb]+8*h+2*k+1}")
    def M3(h, kt, first=False):
        c = "0" if first else f"v[{O}:{O+15}]"
        if 'nom3' in dbg: return
        if 'm3small' in dbg:
            a(f"v_mfma_f32_16x16x32_bf16 v[{O+4*h}:{O+4*h+3}], v[{V+8*kt+4*h}:{V+8*kt+4*h+3}], v[{SP+4*h}:{SP+4*h+3}], v[{O+4*h}:{O+4*h+3}]")
            return
        a(f"{mf} v[{O}:{O+15}], v[{V+8*kt+4*h}:{V+8*kt+4*h+3}], v[{SP+4*h}:{SP+4*h+3}], {c}")
    def part_write():
        a(f"""
        ds_write_b128 v{vPW}, v[{O}:{O+3}]
        ds_write_b128 v{vPW}, v[{O+4}:{O+7}] offset:32
        ds_write_b32 v{vPW}, v{O+8} offset:64
        """)
    def s1_read():
        for k in range(4):
            a(f"ds_read2st64_b32 v[{S1+2*k}:{S1+2*k+1}], v{vPR} offset0:{24*k} offset1:{24*k+12}")
        for k in range(4):
            a(f"ds_read2st64_b32 v[{S1+8+2*k}:{S1+8+2*k+1}], v{vPL} offset0:{24*k} offset1:{24*k+12}")
    def s1_calc():
        for (x, y) in ((0, 2), (4, 6), (0, 4)):
            a(f"v_pk_add_f32 v[{S1+8+x}:{S1+9+x}], v[{S1+8+x}:{S1+9+x}], v[{S1+8+y}:{S1+9+y}]")
            a(f"v_pk_add_f32 v[{S1+x}:{S1+1+x}], v[{S1+x}:{S1+1+x}], v[{S1+y}:{S1+1+y}]")
        a(f"""
        v_add_f32 v{S1+8}, v{S1+8}, v{S1+9}
        v_add_f32 v{S1}, v{S1}, v{S1+1}
        v_rcp_f32 v{S1+1}, v{S1+8}
        v_maximum3_f32 v{vLM}, v{vLM}, v{S1+8}, abs(v{S1})
        v_mul_f32 v{S1}, v{S1}, v{S1+1}
        v_cvt_pk_bf16_f32 v{S1}, v{S1}, v{S1}
        ds_write_b16 v{vOW}, v{S1}
        """)
    def s2_read():
        for s in range(2):
            a(f"ds_read_b128 v[{BF+4*s}:{BF+4*s+3}], v{vOR} offset:{64*s}")
    def s2_mma(lo, hi):
        for u in range(lo, hi):
            s, t = u >> 2, u & 3
            a(f"v_mfma_f32_16x16x32_bf16 v[{OA+4*t}:{OA+4*t+3}], v[{WF+4*u}:{WF+4*u+3}], v[{BF+4*s}:{BF+4*s+3}], v[{OA+4*t}:{OA+4*t+3}]")
    def wf_load(lo, hi):
        if lo == 0:
            a("s_add_u32 s34, s33, s31")
            a("s_add_u32 s35, s34, 4096")
            a("s_add_u32 s31, s31, 0x10000")
            a("s_and_b32 s31, s31, 0x7ffff")
        for u in range(lo, hi):
            a(f"buffer_load_dwordx4 v[{WF+4*u}:{WF+4*u+3}], v{vWL}, s[8:11], s{34 + (u >> 2)} offen offset:{1024*(u&3)}")
            vm.issue("WF")
    def ffn_prefetch():
        a(f"""
        s_mov_b32 s39, s6
        s_cmp_eq_u32 s39, 1
        s_cselect_b64 s[36:37], s[64:65], s[62:63]
        s_cmp_eq_u32 s39, 2
        s_cselect_b64 s[36:37], s[66:67], s[36:37]
        """)
        srd(a, 12, 36, 37, 512 * 1792 * 2)
        a(f"""
        s_and_b32 s3, s2, 7
        s_lshr_b32 s4, s2, 3
        s_mul_i32 s5, s4, {16*3584}
        s_mul_i32 s36, s3, 448
        s_and_b32 s36, s36, 0xffffff80
        s_add_u32 s5, s5, s36
        s_lshl_b32 s36, s3, 7
        s_mul_i32 s37, s4, {56*1024}
        s_add_u32 s36, s36, s37
        v_lshrrev_b32 v{t0}, 2, v0
        v_mul_u32_u24 v{t0}, 3584, v{t0}
        v_and_b32 v{t1}, 3, v0
        v_lshl_add_u32 v{t0}, v{t1}, 7, v{t0}
        v_min_u32 v{t1}, 55, v0
        v_lshlrev_b32 v{t1}, 10, v{t1}
        s_cmp_eq_u32 s39, 2
        s_cselect_b32 s38, s36, s5
        s_cselect_b64 vcc, -1, 0
        v_cndmask_b32 v{t0}, v{t0}, v{t1}, vcc
        s_lshl_b32 s39, s6, {PFS}
        s_add_u32 s39, s39, 1
        s_cmp_gt_u32 s6, 2
        s_cselect_b32 s39, 99, s39
        """)
    def ffn_setup():
        a(f"""
        s_and_b32 s3, s2, 7
        s_lshr_b32 s4, s2, 3
        s_and_b32 s5, s6, 1
        s_cmp_eq_u32 s5, 0
        s_cselect_b64 s[36:37], s[62:63], s[64:65]
        s_cmp_lt_u32 s2, 112
        s_cselect_b64 s[36:37], s[36:37], s[66:67]
        """)
        srd(a, 68, 36, 37, 512 * 1792 * 2)
        a(f"""
        s_mul_i32 s76, s3, 14
        s_add_u32 s76, s76, s4           ; fs
        s_lshl_b32 s77, s3, 2
        s_add_u32 s77, s77, s4
        s_sub_u32 s77, s77, 14           ; cb
        s_lshr_b32 s5, s6, 1
        s_mul_i32 s5, s5, {128*3584}
        s_lshl_b32 s36, s76, 5
        s_add_u32 s5, s5, s36
        s_mul_i32 s36, s6, {224*1024}
        s_lshl_b32 s37, s77, 5
        s_add_u32 s36, s36, s37
        s_cmp_lt_u32 s2, 112
        s_cselect_b32 s72, s5, s36
        s_movk_i32 s73, 1024
        s_cselect_b32 s73, 3584, s73
        s_cselect_b32 s75, 4, 7
        s_cmp_lt_u32 s2, 144
        s_cselect_b32 s75, s75, 0
        s_mul_i32 s74, s6, 7168
        s_add_u32 s74, s74, {L_FW:#x}
        v_lshrrev_b32 v{vVL}, 1, v0
        v_mul_lo_u32 v{vVL}, v{vVL}, s73
        v_and_b32 v{t1}, 1, v0
        v_lshl_add_u32 v{vVL}, v{t1}, 4, v{vVL}
        s_lshl_b32 s73, s73, 5
        s_mov_b32 s78, s74
        """)
    def ffn_stage():
        a(f"""
        s_cmp_lt_u32 s29, 4
        s_cbranch_scc1 K2_nost
        """)
        for e in range(2):
            a(f"""
            s_cmp_eq_u32 s75, 0
            s_cbranch_scc1 K2_nost
            s_mov_b32 m0, s78
            s_sub_u32 s75, s75, 1
            buffer_load_dwordx4 v{vVL}, s[68:71], s72 offen lds
            s_add_u32 s78, s78, 1024
            s_add_u32 s72, s72, s73
            """)
        a.label("K2_nost")
    def ffn_issue():
        a(f"""
        s_cmp_lg_u32 s29, s39
        s_cbranch_scc1 K2_nopf
        buffer_load_dword v{t1}, v{t0}, s[12:15], s38 offen
        """)
        a.label("K2_nopf")
    def setprio(p):
        if prio: a(f"s_setprio {p}")
    st(2, False)
    rd_qcm()
    a("s_waitcnt lgkmcnt(0)")
    M1(0, 0)
    a("s_mov_b32 s29, 1")
    setprio(3)
    ldK(3); ldV(2)
    st(3, False)
    if 'leak' in dbg: a('s_memrealtime s[94:95]'); a('s_waitcnt lgkmcnt(0)')
    def tile(i, hook):
        xb = i & 1; xn = xb ^ 1
        hook(i, 'a')
        E(xb, 0, 2)
        hook(i, 'm3b')
        E(xb, 2, 6)
        hook(i, 'e1')
        E(xb, 6, 8)
        hook(i, 'm1')
        M1((i + 1) & 7, xn)
        hook(i, 0)
        C2(0, xb); E(xb, 8, 10)
        hook(i, 'e2')
        E(xb, 10, 12)
        hook(i, 1)
        M3(0, i, first=(i == 0))
        hook(i, 2)
        E(xb, 12, 16)
        hook(i, 'e3')
        C2(1, xb)
    def hook0(i, pos):
        if pos == 'a' and i in (3, 5, 7): setprio({3: 2, 5: 1, 7: 1}[i])
        if pos == 'm3b' and i > 0:
            vm.wait(f"V{i-1}1"); M3(1, i - 1)
        if pos == 'm1':
            if i < 7: vm.wait(f"K{i+1}")
            else: a("s_waitcnt lgkmcnt(0)")
        if pos == 0:
            if i + 4 <= 7: ldK(i + 4)
            if i + 3 <= 7: ldV(i + 3)
            if i == 4 and 'nopf' not in dbg: ffn_prefetch()
            if i == 5: wf_load(0, 4); ffn_setup()
            if i == 6: wf_load(4, 8)
        if pos == 1:
            if i == 6: rd_qcm()
            vm.wait(f"V{i}0")
        if pos == 2 and i == 7:
            vm.wait("V71")
    for i in range(8): tile(i, hook0)
    a.raw(".p2align 3")
    a.label("K2_round")
    spins = []
    def poll(off):
        a(f"ds_read_b32 v{vFV}, v{vFR} offset:{off}")
    def check(off):
        k = len(spins); spins.append(off)
        a(f"""
        s_waitcnt lgkmcnt(0)
        v_cmp_gt_u32 vcc, s29, v{vFV}
        s_cbranch_vccnz K2_spin{k}
        """)
        a.label(f"K2_back{k}")
    PR = dict(x.split('=') for x in dbg.split(',') if '=' in x).get('pr', 'c')
    def hook(i, pos):
        if pos == 'm3b': M3(1, (i - 1) & 7)
        if pos == 'm1' and i == 7: a("s_waitcnt lgkmcnt(0)")
        if pos == 1 and i == 6: rd_qcm()
        if 'nohook' in dbg: return
        if 'bar' in dbg.split(','):
            if pos == 'a' and i in (0, 6, 7): setprio({6: 2, 7: 1, 0: 0}[i])
            if i == 0 and pos == 1: part_write()
            if i == 1 and pos == 0:
                a("s_waitcnt lgkmcnt(0)"); a("s_barrier"); setprio(2); s1_read()
            if i == 2 and pos == 0:
                a("s_waitcnt lgkmcnt(0)"); s1_calc(); setprio(1)
            if i == 3 and pos == 0: setprio(0)
            if i == 4 and pos == 0:
                a("s_waitcnt vmcnt(0) lgkmcnt(0)"); a("s_barrier"); setprio(3); s2_read()
            seq = [(4, 'e3'), (5, 'e1'), (5, 'e2'), (5, 'e3'), (6, 'e1'), (6, 'e2'), (6, 'e3'), (7, 'e1')]
        else:
            if i == 0 and pos == 'a': a(f"v_mov_b32 v{vRD}, s29")
            if i == 0 and pos == 1:
                part_write(); a(f"ds_write_b32 v{vFW}, v{vRD}")
                if PR == 'b': setprio(0)
            if i == 2 and pos == 0: poll(0)
            if i == 2 and pos == 2:
                check(0); s1_read()
                if PR == 'b': setprio(1)
            if i == 3 and pos == 0:
                a("s_waitcnt lgkmcnt(0)"); s1_calc(); a(f"ds_write_b32 v{vFW}, v{vRD} offset:32")
                if PR == 'b': setprio(0)
            if i == 4 and pos == 2: poll(32)
            if i == 5 and pos == 'm1':
                check(32); s2_read(); a("s_waitcnt vmcnt(0)")
                if 'nopf' not in dbg and PFP == 0: ffn_issue()
            if i == 7 and pos == 'a' and PR == 'b': setprio(1)
            if PR == 'c' and pos == 'a' and i in (1, 3, 5, 7): setprio({1: 0, 3: 3, 5: 2, 7: 1}[i])
            seq = [(5, 'e2'), (5, 'e3'), (6, 'e1'), (6, 'e2'), (6, 'e3'), (7, 'e1'), (7, 'e2'), (7, 'e3')]
        if (i, pos) in seq:
            u = seq.index((i, pos))
            if u == 0: a("s_waitcnt lgkmcnt(0)")
            s2_mma(u, u + 1); wf_load(u, u + 1)
            if u == 7 and 'nopf' not in dbg and PFP == 1: ffn_issue(); ffn_stage()
    for i in range(8): tile(i, hook)
    if 'rndst' in dbg:
        a(f"""
        s_memtime s[82:83]
        s_memrealtime s[100:101]
        s_waitcnt lgkmcnt(0)
        s_lshl_b32 s84, s2, 3
        s_add_u32 s84, s84, s6
        s_lshl_b32 s84, s84, 3
        s_add_u32 s84, s84, s29
        s_lshl_b32 s84, s84, 3
        s_add_u32 s84, s84, {WS_STAMP + 0x40000:#x}
        s_mov_b64 exec, 1
        v_mov_b32 v{S1+8}, s82
        v_mov_b32 v{S1+9}, s100
        v_mov_b32 v{S1+10}, 0
        buffer_store_dwordx2 v[{S1+8}:{S1+9}], v{S1+10}, s[8:11], s84 offen
        s_mov_b64 exec, -1
        """)
    a(f"""
    s_add_u32 s29, s29, 1
    s_cmp_lt_u32 s29, 8
    s_cbranch_scc1 K2_round
    """)
    st(4, False); st(0, True)
    M3(1, 7)
    XR = CM; WR = CM + 4; HV = X[0]; HN = X[0] + 8; PK = X[1]; ST = X[1] + 8
    a(f"""
    s_add_u32 s3, s7, s6
    s_lshl_b32 s4, s3, 10
    buffer_load_dwordx4 v[{XR}:{XR+3}], v{vWL}, s[16:19], s4 offen
    buffer_load_dwordx4 v[{WR}:{WR+3}], v{vWL}, s[24:27], 0 offen
    v_and_b32 v{t0}, 7, v0
    v_mul_u32_u24 v{t0}, 1040, v{t0}
    v_lshrrev_b32 v{t1}, 4, v0
    v_lshl_add_u32 v{t0}, v{t1}, 3, v{t0}
    s_lshl_b32 s5, s6, 7
    s_add_u32 s5, s5, {L_HB:#x}
    v_add_u32 v{t0}, s5, v{t0}
    s_mul_i32 s5, s6, 1040
    s_add_u32 s5, s5, {L_HB:#x}
    v_add_u32 v{t1}, s5, v{vWL}
    s_lshl_b32 s35, s6, 2
    s_add_u32 s35, s35, {L_KEY:#x}
    v_mov_b32 v{t4}, s35
    v_and_b32 v{t3}, 7, v0
    v_lshlrev_b32 v{t3}, 2, v{t3}
    v_add_u32 v{t3}, {L_KEY:#x}, v{t3}
    """)
    part_write()
    a("s_waitcnt lgkmcnt(0)"); a("s_barrier"); st(1, True); s1_read()
    a("s_waitcnt lgkmcnt(0)"); s1_calc()
    a(f"""
    v_mov_b32 v{t2}, {f2u(2.0**124):#x}
    v_cmp_nlt_f32 vcc, v{vLM}, v{t2}
    s_cmp_lg_u64 vcc, 0
    s_cselect_b32 s5, 1, 0
    v_mov_b32 v{t2}, s5
    ds_write_b32 v{t4}, v{t2} offset:32
    """)
    a("s_waitcnt vmcnt(2) lgkmcnt(0)"); a("s_barrier"); st(2, True); s2_read()
    a(f"ds_read_b32 v{t2}, v{t3} offset:32")
    a("s_waitcnt lgkmcnt(1)"); s2_mma(0, 8)
    a(f"""
    s_waitcnt lgkmcnt(0)
    v_cmp_ne_u32 vcc, 0, v{t2}
    s_cmp_eq_u64 vcc, 0
    s_cbranch_scc1 K2_good
    s_cmp_lg_u32 s30, 0
    s_cbranch_scc1 K2_good
    s_mov_b32 s30, 1
    s_waitcnt vmcnt(0)
    s_setprio 0
    s_branch K2_restart
    """)
    a.label("K2_good")
    for t in range(4):
        a(f"v_cvt_pk_bf16_f32 v{S1+2*t}, v{OA+4*t}, v{OA+4*t+1}")
        a(f"v_cvt_pk_bf16_f32 v{S1+2*t+1}, v{OA+4*t+2}, v{OA+4*t+3}")
        a(f"ds_write_b64 v{t0}, v[{S1+2*t}:{S1+2*t+1}] offset:{32*t}")
    a("s_waitcnt vmcnt(0)")
    for r in range(4):
        a(f"v_lshlrev_b32 v{HV+2*r}, 16, v{XR+r}")
        a(f"v_and_b32 v{HV+2*r+1}, 0xffff0000, v{XR+r}")
        a(f"v_lshlrev_b32 v{WF+2*r}, 16, v{WR+r}")
        a(f"v_and_b32 v{WF+2*r+1}, 0xffff0000, v{WR+r}")
    a(f"""
    s_waitcnt lgkmcnt(0)
    s_barrier
    """)
    st(3, True)
    a(f"""
    ds_read_b128 v[{BF}:{BF+3}], v{t1}
    s_waitcnt lgkmcnt(0)
    """)
    for r in range(4):
        a(f"v_lshlrev_b32 v{HN+2*r}, 16, v{BF+r}")
        a(f"v_and_b32 v{HN+2*r+1}, 0xffff0000, v{BF+r}")
    P2 = lambda b, r: f"v[{b+r}:{b+r+1}]"
    for r in range(0, 8, 2): a(f"v_pk_add_f32 {P2(HV,r)}, {P2(HV,r)}, {P2(HN,r)}")
    for r in range(8): a(f"v_cvt_pk_bf16_f32 v{HV+r}, 0, v{HV+r}")
    SA, SB = S1, S1 + 2
    a(f"v_pk_add_f32 {P2(SA,0)}, {P2(HV,0)}, {P2(HV,2)}")
    a(f"v_pk_mul_f32 {P2(SB,0)}, {P2(HV,0)}, {P2(HV,0)}")
    a(f"v_pk_add_f32 {P2(SA,4)}, {P2(HV,4)}, {P2(HV,6)}")
    a(f"v_pk_fma_f32 {P2(SB,0)}, {P2(HV,2)}, {P2(HV,2)}, {P2(SB,0)}")
    a(f"v_pk_add_f32 {P2(SA,0)}, {P2(SA,0)}, {P2(SA,4)}")
    a(f"v_pk_fma_f32 {P2(SB,0)}, {P2(HV,4)}, {P2(HV,4)}, {P2(SB,0)}")
    a(f"v_add_f32 v{t0}, v{SA}, v{SA+1}")
    a(f"v_pk_fma_f32 {P2(SB,0)}, {P2(HV,6)}, {P2(HV,6)}, {P2(SB,0)}")
    a(f"v_add_f32 v{t2}, v{SB}, v{SB+1}")
    wave_sum(a, [t0, t2], [ST, ST + 1])
    ln_scalars(a, t0, t2, ST, ST + 2, ST + 1, ST + 3)
    st(4, True)
    for r in range(0, 8, 2): a(f"v_pk_add_f32 {P2(HN,r)}, {P2(HV,r)}, {P2(ST,0)} op_sel_hi:[1,0] neg_lo:[0,1] neg_hi:[0,1]")
    for r in range(8): a(f"v_cvt_pk_bf16_f32 v{HN+r}, 0, v{HN+r}")
    for r in range(0, 8, 2): a(f"v_pk_mul_f32 {P2(HN,r)}, {P2(HN,r)}, {P2(ST,2)} op_sel_hi:[1,0]")
    for r in range(8): a(f"v_cvt_pk_bf16_f32 v{HN+r}, 0, v{HN+r}")
    a(f"v_pk_mul_f32 {P2(SA,0)}, {P2(HN,0)}, {P2(WF,0)}")
    for r in range(2, 8, 2): a(f"v_pk_fma_f32 {P2(SA,0)}, {P2(HN,r)}, {P2(WF,r)}, {P2(SA,0)}")
    a(f"v_add_f32 v{t2}, v{SA}, v{SA+1}")
    fill = [f"v_pk_add_f32 {P2(WF+8,r)}, {P2(HV,r)}, {P2(HN,r)}" for r in range(0, 8, 2)]
    fill += [f"v_cvt_pk_bf16_f32 v{PK+4+r}, v{HV+2*r}, v{HV+2*r+1}" for r in range(4)]
    fill += [f"v_cvt_pk_bf16_f32 v{ST+4+r}, v{HN+2*r}, v{HN+2*r+1}" for r in range(4)]
    for mod in ("quad_perm:[1,0,3,2]", "quad_perm:[2,3,0,1]", "row_half_mirror", "row_mirror"):
        a(fill.pop(0)); a(fill.pop(0))
        a(f"v_add_f32_dpp v{t2}, v{t2}, v{t2} {mod} row_mask:0xf bank_mask:0xf")
    for w in (16, 32):
        a(f"v_mov_b32 v{t0}, v{t2}")
        a(fill.pop(0)); a(fill.pop(0))
        a(f"v_permlane{w}_swap_b32 v{t0}, v{t2}")
        a(f"v_add_f32 v{t2}, v{t2}, v{t0}")
    if 'leak' in dbg:
        a(f"""
        s_cmp_lg_u32 s3, 0
        s_cbranch_scc1 K2_leak
        s_memrealtime s[92:93]
        v_mov_b32 v{S1+4}, 0
        s_mov_b32 s5, {WS_SEL:#x}
        buffer_load_dwordx4 v[{S1}:{S1+3}], v{S1+4}, s[8:11], s5 offen
        s_waitcnt vmcnt(0) lgkmcnt(0)
        s_mov_b64 exec, 1
        v_add_f32 v{WF+8}, {f2u(64.0):#x}, v{WF+8}
        v_sub_u32 v{WF+9}, v{S1+2}, v{S1}
        v_sub_u32 v{WF+10}, v{S1+1}, v{S1}
        v_sub_u32 v{WF+11}, s90, v{S1}
        v_sub_u32 v{WF+12}, s94, v{S1}
        v_sub_u32 v{WF+13}, s92, v{S1}
        """)
        for r in range(9, 14):
            a(f"v_cvt_f32_u32 v{WF+r}, v{WF+r}")
            a(f"v_mul_f32 v{WF+r}, {f2u(0.005):#x}, v{WF+r}")
            a(f"v_min_f32 v{WF+r}, {f2u(20.0):#x}, v{WF+r}")
        a("s_mov_b64 exec, -1")
        a.label("K2_leak")
    a(f"""
    v_cvt_pk_bf16_f32 v{t2}, 0, v{t2}
    v_ashrrev_i32 v{t0}, 31, v{t2}
    v_or_b32 v{t0}, 0x80000000, v{t0}
    v_xor_b32 v{t2}, v{t2}, v{t0}
    v_and_b32 v{t2}, 0xffff0000, v{t2}
    s_sub_u32 s5, 0xffff, s3
    v_or_b32 v{t2}, s5, v{t2}      ; key
    ds_write_b32 v{t4}, v{t2}
    """)
    for r in range(4): a(f"v_cvt_pk_bf16_f32 v{PK+r}, v{WF+8+2*r}, v{WF+8+2*r+1}")
    a(f"""
    buffer_store_dwordx4 v[{PK}:{PK+3}], v{vWL}, s[20:23], s4 offen sc1
    """)
    a(f"""
    s_waitcnt lgkmcnt(0)
    s_barrier
    ds_read_b32 v{t1}, v{t3}
    s_waitcnt lgkmcnt(0)
    v_cmp_gt_u32 vcc, v{t1}, v{t2}
    v_cmp_eq_u32 s[36:37], v{t1}, v{t2}
    s_and_b32 s38, vcc_lo, 0xff
    s_bcnt1_i32_b32 s38, s38       ; rank
    """)
    st(5, False); st(5, True); st(0, 2); st(1, 2); st(2, 2); st(3, 2); st(4, 2); st(5, 2)
    a(f"""
    s_cmp_gt_u32 s38, 1
    s_cbranch_scc1 K2_pub0
    s_add_u32 s5, s4, {WS_H:#x}
    buffer_store_dwordx4 v[{PK+4}:{PK+7}], v{vWL}, s[8:11], s5 offen sc1
    s_add_u32 s5, s4, {WS_HN:#x}
    buffer_store_dwordx4 v[{ST+4}:{ST+7}], v{vWL}, s[8:11], s5 offen sc1
    v_cndmask_b32 v{ST+1}, v{t1}, 0, s[36:37]
    v_mov_b32 v{ST}, v{t2}
    s_lshl_b32 s5, s2, {G.KS_LOG}
    s_add_u32 s5, s5, {WS_KEY:#x}
    v_mov_b32 v{t0}, 0
    """)
    for mod in ("quad_perm:[1,0,3,2]", "quad_perm:[2,3,0,1]", "row_half_mirror"):
        a(f"v_max_u32_dpp v{ST+1}, v{ST+1}, v{ST+1} {mod} row_mask:0xf bank_mask:0xf")
    a("s_waitcnt vmcnt(0)")
    a.label("K2_pub0")
    a(f"""
    s_barrier
    s_cmp_lg_u32 s38, 0
    s_cbranch_scc1 K2_pub
    s_mov_b64 exec, 1
    buffer_store_dwordx2 v[{ST}:{ST+1}], v{t0}, s[8:11], s5 offen sc1
    s_mov_b64 exec, -1
    """)
    a.label("K2_pub")
    st(1, 2)
    def fin():
        if G.STAMP: a("s_waitcnt vmcnt(0)")
        stamp(a, 6)
        if G.STAMP: a("s_mov_b32 s91, s30")
        stamp_out(a, 1, 8, "s6", WF)
        a("s_endpgm")
    a(f"""
    s_cmp_ge_u32 s2, 144
    s_cbranch_scc1 K2_fin
    """)
    AFR = V
    KY = K; Y = K + 8; BX = V + 32; AC = K + 16
    a(f"""
    s_setprio 0
    v_bfe_u32 v{t0}, v0, 2, 2
    v_lshrrev_b32 v{t4}, 4, v0           ; g
    v_lshl_add_u32 v{t0}, v{t4}, 3, v{t0}
    v_lshlrev_b32 v{t0}, 5, v{t0}
    v_and_b32 v{t1}, 3, v0
    v_lshl_add_u32 v{t0}, v{t1}, 3, v{t0}
    v_add_u32 v{t0}, s74, v{t0}
    """)
    for sx in range(7):
        for half in range(2):
            d = AFR + 4 * sx + 2 * half
            a(f"ds_read_b64_tr_b16 v[{d}:{d+1}], v{t0} offset:{sx*1024 + half*128}")
    a(f"""
    v_and_b32 v{t3}, 1, v0
    v_lshlrev_b32 v{vPW}, 6, v{t3}
    v_lshl_add_u32 v{vPW}, v{t4}, 4, v{vPW}
    s_lshl_b32 s5, s6, 7
    s_add_u32 s5, s5, {L_RED:#x}
    v_add_u32 v{vPW}, s5, v{vPW}
    v_and_b32 v{vPR}, 31, v0
    v_lshlrev_b32 v{vPR}, 2, v{vPR}      ; (lane&31)*4
    s_cmp_lg_u32 s6, 0
    s_cbranch_scc1 K2_nokey
    v_lshlrev_b32 v{t1}, {G.KS_LOG}, v0
    s_mov_b32 s5, {WS_KEY:#x}
    s_add_u32 s79, s5, {64 << G.KS_LOG}
    s_add_u32 s80, s5, {128 << G.KS_LOG}
    s_add_u32 s81, s5, {192 << G.KS_LOG}
    s_mov_b32 s36, 0
    """)
    a.label("K2_kpoll")
    a(f"""
    buffer_load_dwordx2 v[{KY}:{KY+1}], v{t1}, s[8:11], s5 offen sc1
    buffer_load_dwordx2 v[{KY+2}:{KY+3}], v{t1}, s[8:11], s79 offen sc1
    buffer_load_dwordx2 v[{KY+4}:{KY+5}], v{t1}, s[8:11], s80 offen sc1
    buffer_load_dwordx2 v[{KY+6}:{KY+7}], v{t1}, s[8:11], s81 offen sc1
    s_add_u32 s36, s36, 1
    s_waitcnt vmcnt(0)
    v_min3_u32 v{Y}, v{KY}, v{KY+1}, v{KY+2}
    v_min3_u32 v{Y+1}, v{KY+3}, v{KY+4}, v{KY+5}
    v_min3_u32 v{Y}, v{Y}, v{KY+6}, v{KY+7}
    v_min_u32 v{Y}, v{Y}, v{Y+1}
    v_cmp_eq_u32 vcc, 0, v{Y}
    s_cbranch_vccz K2_kok
    s_sleep {OPT.get('ksl', 2)}
    s_cmp_lt_u32 s36, 0x40000
    s_cbranch_scc1 K2_kpoll
    """)
    a.label("K2_kok")
    st(2, 2)
    if FS: a("s_mov_b32 s30, s36")
    B1, B2 = Y + 4, Y + 5
    a(f"""
    v_max_u32 v{B1}, v{KY}, v{KY+2}
    v_min_u32 v{B2}, v{KY}, v{KY+2}
    v_max3_u32 v{B2}, v{B2}, v{KY+1}, v{KY+3}
    v_max_u32 v{Y}, v{KY+4}, v{KY+6}
    v_min_u32 v{Y+1}, v{KY+4}, v{KY+6}
    v_max3_u32 v{Y+1}, v{Y+1}, v{KY+5}, v{KY+7}
    v_min_u32 v{Y+2}, v{B1}, v{Y}
    v_max_u32 v{B1}, v{B1}, v{Y}
    v_max3_u32 v{B2}, v{B2}, v{Y+1}, v{Y+2}
    v_mov_b32 v{Y}, v{B1}
    """)
    wave_max_u32(a, Y, Y + 1)
    a(f"""
    v_cmp_eq_u32 vcc, v{B1}, v{Y}
    v_cndmask_b32 v{B1}, v{B1}, v{B2}, vcc
    """)
    wave_max_u32(a, B1, Y + 1)
    a(f"""
    v_readfirstlane_b32 s40, v{Y}
    v_readfirstlane_b32 s41, v{B1}
    s_andn2_b32 s42, 0x7ff, s40
    s_andn2_b32 s43, 0x7ff, s41
    s_lshl_b32 s42, s42, 10
    s_lshl_b32 s43, s43, 10
    """)
    a.label("K2_nokey")
    a(f"""
    s_cmp_ge_u32 s2, 112
    s_cbranch_scc1 K2_down
    s_cmp_lg_u32 s6, 0
    s_cbranch_scc1 K2_up1
    s_add_u32 s36, s42, {WS_HN:#x}
    s_add_u32 s37, s43, {WS_HN:#x}
    buffer_load_dwordx4 v[{KY}:{KY+3}], v{vWL}, s[8:11], s36 offen sc1
    buffer_load_dwordx4 v[{KY+4}:{KY+7}], v{vWL}, s[8:11], s37 offen sc1
    s_waitcnt vmcnt(1)
    ds_write_b128 v{vWL}, v[{KY}:{KY+3}] offset:{L_XS}
    s_waitcnt vmcnt(0)
    ds_write_b128 v{vWL}, v[{KY+4}:{KY+7}] offset:{L_XS + 1040}
    """)
    a.label("K2_up1")
    st(3, 2)
    a(f"""
    v_mul_u32_u24 v{t0}, 1040, v{t3}
    v_lshl_add_u32 v{t0}, v{t4}, 4, v{t0}
    s_lshr_b32 s5, s6, 1
    s_lshl_b32 s5, s5, 8
    v_add_u32 v{t0}, s5, v{t0}
    s_waitcnt lgkmcnt(0)
    s_barrier
    """)
    for sx in range(4):
        a(f"ds_read_b128 v[{BX+4*sx}:{BX+4*sx+3}], v{t0} offset:{L_XS + 64*sx}")
    for sx in range(4):
        a(f"s_waitcnt lgkmcnt({3-sx})")
        c = "0" if sx == 0 else f"v[{AC}:{AC+3}]"
        a(f"v_mfma_f32_16x16x32_bf16 v[{AC}:{AC+3}], v[{AFR+4*sx}:{AFR+4*sx+3}], v[{BX+4*sx}:{BX+4*sx+3}], {c}")
    a(f"""
    ds_write_b128 v{vPW}, v[{AC}:{AC+3}]
    s_waitcnt lgkmcnt(0)
    s_barrier
    s_cmp_lg_u32 s6, 0
    s_cbranch_scc1 K2_fin
    """)
    def red_read():
        a(f"v_add_u32 v{t0}, {L_RED:#x}, v{vPR}")
        for k in range(4):
            a(f"ds_read2_b32 v[{KY+2*k}:{KY+2*k+1}], v{t0} offset0:{64*k} offset1:{64*k+32}")
        a("s_waitcnt lgkmcnt(0)")
        a(f"v_pk_add_f32 v[{KY}:{KY+1}], v[{KY}:{KY+1}], v[{KY+2}:{KY+3}]")
        a(f"v_pk_add_f32 v[{KY+4}:{KY+5}], v[{KY+4}:{KY+5}], v[{KY+6}:{KY+7}]")
        a(f"v_pk_add_f32 v[{KY}:{KY+1}], v[{KY}:{KY+1}], v[{KY+4}:{KY+5}]")
    st(4, 2)
    red_read()
    a(f"""
    v_cvt_pk_bf16_f32 v{KY}, 0, v{KY}
    v_cvt_pk_bf16_f32 v{KY+1}, 0, v{KY+1}
    """)
    sigmoid(a, KY + 2, KY, KY + 3)
    a(f"""
    v_mul_f32 v{KY}, v{KY}, v{KY+2}
    v_cvt_pk_bf16_f32 v{KY}, 0, v{KY}
    v_mul_f32 v{KY}, v{KY}, v{KY+1}
    v_cvt_pk_bf16_f32 v{KY}, 0, v{KY}
    v_or_b32 v{KY}, 1, v{KY}
    s_lshl_b32 s5, s76, 7
    s_add_u32 s5, s5, {WS_GU:#x}
    s_mov_b32 exec_hi, 0
    buffer_store_dword v{KY}, v{vPR}, s[8:11], s5 offen sc1
    s_mov_b64 exec, -1
    s_branch K2_fin
    """)
    a.label("K2_down")
    HH, NN, GT, OO = Y + 6, Y + 7, AC + 4, AC + 5
    a(f"""
    s_cmp_lg_u32 s6, 0
    s_cbranch_scc1 K2_dn1
    v_bfe_u32 v{t0}, v0, 4, 1
    v_cmp_eq_u32 vcc, 0, v{t0}
    v_mov_b32 v{t0}, s43
    v_mov_b32 v{t1}, s42
    v_cndmask_b32 v{OO}, v{t0}, v{t1}, vcc
    v_and_b32 v{t0}, 15, v0
    v_lshl_add_u32 v{OO}, v{t0}, 1, v{OO}
    s_lshl_b32 s44, s77, 5
    s_add_u32 s36, s44, {WS_H:#x}
    s_add_u32 s37, s44, {WS_HN:#x}
    buffer_load_ushort v{HH}, v{OO}, s[8:11], s36 offen sc1
    buffer_load_ushort v{NN}, v{OO}, s[8:11], s37 offen sc1
    v_mov_b32 v{t0}, s41
    v_mov_b32 v{t1}, s40
    v_cndmask_b32 v{GT}, v{t0}, v{t1}, vcc
    v_and_b32 v{GT}, 0xffff0000, v{GT}
    v_ashrrev_i32 v{t0}, 31, v{GT}
    v_not_b32 v{t0}, v{t0}
    v_or_b32 v{t0}, 0x80000000, v{t0}
    v_xor_b32 v{GT}, v{GT}, v{t0}
    v_and_b32 v{GT}, 0xffff0000, v{GT}
    """)
    sigmoid(a, GT, GT, t0)
    a(f"v_cvt_pk_bf16_f32 v{GT}, 0, v{GT}")
    a.label("K2_dn1")
    a(f"""
    s_mul_i32 s5, s6, 1792
    s_add_u32 s5, s5, {WS_GU:#x}
    v_min_u32 v{t1}, 47, v0
    v_lshlrev_b32 v{t1}, 4, v{t1}
    s_lshl_b32 s37, s6, 10
    s_add_u32 s37, s37, {L_GB:#x}
    v_lshrrev_b32 v{t0}, 3, v0
    v_lshlrev_b32 v{vPL}, 5, v{t0}
    v_and_b32 v{t0}, 3, v0
    v_lshl_add_u32 v{vPL}, v{t0}, 3, v{vPL}
    v_bfe_u32 v{t0}, v0, 2, 1
    v_mul_u32_u24 v{t0}, 464, v{t0}
    v_add3_u32 v{vPL}, v{vPL}, v{t0}, s37
    v_mul_u32_u24 v{vOW}, 464, v{t3}
    v_lshl_add_u32 v{vOW}, v{t4}, 4, v{vOW}
    v_add_u32 v{vOW}, s37, v{vOW}
    s_mov_b32 s45, 0x07060302
    s_mov_b32 s36, 0
    """)
    a.label("K2_gpoll")
    a(f"""
    buffer_load_dwordx4 v[{KY}:{KY+3}], v{vWL}, s[8:11], s5 offen sc1
    buffer_load_dwordx4 v[{KY+4}:{KY+7}], v{t1}, s[8:11], s5 offen offset:1024 sc1
    s_add_u32 s36, s36, 1
    s_waitcnt vmcnt(0)
    v_min3_u32 v{Y}, v{KY}, v{KY+1}, v{KY+2}
    v_min3_u32 v{Y+1}, v{KY+3}, v{KY+4}, v{KY+5}
    v_min3_u32 v{Y}, v{Y}, v{KY+6}, v{KY+7}
    v_min_u32 v{Y}, v{Y}, v{Y+1}
    v_cmp_eq_u32 vcc, 0, v{Y}
    s_cbranch_vccz K2_gok
    s_sleep {OPT.get('gsl', 2)}
    s_cmp_lt_u32 s36, 0x40000
    s_cbranch_scc1 K2_gpoll
    """)
    a.label("K2_gok")
    st(4, 2)
    a(f"""
    v_perm_b32 v{Y}, v{KY+1}, v{KY}, s45
    v_perm_b32 v{Y+1}, v{KY+3}, v{KY+2}, s45
    v_perm_b32 v{Y+2}, v{KY+5}, v{KY+4}, s45
    v_perm_b32 v{Y+3}, v{KY+7}, v{KY+6}, s45
    ds_write_b64 v{vPL}, v[{Y}:{Y+1}]
    s_mov_b32 exec_hi, 0xffff
    ds_write_b64 v{vPL}, v[{Y+2}:{Y+3}] offset:256
    s_mov_b64 exec, -1
    """)
    for sx in range(7):
        a(f"ds_read_b128 v[{BX+4*sx}:{BX+4*sx+3}], v{vOW} offset:{64*sx}")
    for sx in range(7):
        a(f"s_waitcnt lgkmcnt({6-sx})")
        c = "0" if sx == 0 else f"v[{AC}:{AC+3}]"
        a(f"v_mfma_f32_16x16x32_bf16 v[{AC}:{AC+3}], v[{AFR+4*sx}:{AFR+4*sx+3}], v[{BX+4*sx}:{BX+4*sx+3}], {c}")
    a(f"""
    ds_write_b128 v{vPW}, v[{AC}:{AC+3}]
    s_waitcnt lgkmcnt(0)
    s_barrier
    s_cmp_lg_u32 s6, 0
    s_cbranch_scc1 K2_fin
    """)
    red_read()
    a(f"""
    v_add_f32 v{KY}, v{KY}, v{KY+1}
    v_lshlrev_b32 v{HH}, 16, v{HH}
    v_lshlrev_b32 v{NN}, 16, v{NN}
    v_cvt_pk_bf16_f32 v{KY}, 0, v{KY}
    v_mul_f32 v{KY}, v{KY}, v{GT}
    v_cvt_pk_bf16_f32 v{KY}, 0, v{KY}
    v_add_f32 v{KY}, v{KY}, v{NN}
    v_cvt_pk_bf16_f32 v{KY}, 0, v{KY}
    v_add_f32 v{KY}, v{KY}, v{HH}
    v_cvt_pk_bf16_f32 v{KY}, v{KY}, v{KY}
    s_mov_b32 exec_hi, 0
    buffer_store_short v{KY}, v{OO}, s[20:23], s44 offen sc1
    s_mov_b64 exec, -1
    """)
    a.label("K2_fin")
    if G.STAMP: a("s_waitcnt vmcnt(0)")
    stamp(a, 6)
    if G.STAMP: a("s_mov_b32 s91, s30")
    stamp_out(a, 1, 8, "s6", WF)
    dstamp(a, 1, True, 240)
    a.label("K2_end")
    a("s_endpgm")
    for k, off in enumerate(spins):
        a.label(f"K2_spin{k}")
        a(f"""
        s_sleep 1
        ds_read_b32 v{vFV}, v{vFR} offset:{off}
        s_waitcnt lgkmcnt(0)
        v_cmp_gt_u32 vcc, s29, v{vFV}
        s_cbranch_vccnz K2_spin{k}
        s_branch K2_back{k}
        """)
    n = a.fix()
    if G.ALIGN: print('align', align8(a))
    return a.text(), 256, L_TOTAL
```

```python
from gen import *
import gen as G

L_KV = 65536; L_WOT = 81920; L_X = 81920 + 2048; L1_TOTAL = L_X + 65536

def gen_k1(dbg=''):
    a = Asm()
    X = 32
    ACC = 96
    AF = 116
    T = 148
    a(f"""
    s_cmp_ge_u32 s2, 256
    s_cbranch_scc1 K1_end
    """)
    stamp(a, 0)
    if ('leak' in dbg or 'amp' in dbg): a('s_memrealtime s[90:91]')
    dstamp(a, 0, False, 200)
    a(f"""
    s_load_dwordx8 s[24:31], s[0:1], 0
    s_load_dwordx2 s[44:45], s[0:1], 32
    s_load_dwordx2 s[32:33], s[0:1], 96
    s_and_b32 s3, s2, 7
    s_lshr_b32 s4, s2, 3
    s_and_b32 s5, s4, 7
    s_lshr_b32 s4, s4, 3           ; tb & 3
    s_lshl_b32 s3, s3, 2
    s_add_u32 s3, s3, s4
    v_lshrrev_b32 v1, 6, v0
    v_and_b32 v2, 63, v0           ; lane
    v_readfirstlane_b32 s6, v1     ; wave
    v_and_b32 v3, 15, v2           ; l & 15
    v_lshrrev_b32 v4, 4, v2        ; g
    v_bfe_u32 v18, v2, 2, 2        ; r'
    v_and_b32 v19, 3, v2           ; c'
    v_lshl_add_u32 v20, v4, 3, v18 ; 8g + r'
    v_lshlrev_b32 v17, 5, v20
    v_lshl_add_u32 v17, v19, 3, v17
    s_cmp_ge_u32 s6, 4
    s_cbranch_scc1 K1_loader
    s_lshl_b32 s7, s3, 6
    s_lshl_b32 s34, s6, 4
    s_add_u32 s7, s7, s34
    v_add_u32 v5, s7, v3           ; token
    v_lshrrev_b32 v6, 2, v2        ; row
    v_lshrrev_b32 v7, 4, v2
    v_and_b32 v7, 2, v7
    v_xor_b32 v7, v7, v19
    v_lshlrev_b32 v6, 10, v6
    v_lshl_add_u32 v6, v7, 4, v6
    s_lshl_b32 s63, s6, 14
    s_add_u32 s63, s63, {L_X}
    s_lshl_b32 s64, s7, 10
    s_lshl_b32 s62, s5, 7
    s_waitcnt lgkmcnt(0)
    """)
    stamp(a, 1)
    srd(a, 8, 24, 25, 0x200000)
    def xdma(u):
        if u % 2 == 0:
            a(f"""
            s_add_u32 m0, s63, {u*1024}
            s_add_u32 s48, s62, s64
            buffer_load_dwordx4 v6, s[8:11], s48 offen lds
            """)
        else:
            a(f"""
            s_add_u32 m0, s63, {u*1024 - 64}
            s_add_u32 s62, s62, 128
            buffer_load_dwordx4 v6, s[8:11], s48 offen offset:64 lds
            s_and_b32 s62, s62, 0x3ff
            """)
    for u in range(10): xdma(u)
    srd(a, 20, 32, 33, WS_SIZE)
    ONE = 24; SEL = 8
    SEL = 152
    a(f"""
    v_lshlrev_b32 v21, 7, v20
    v_lshl_add_u32 v21, v19, 3, v21   ; row*128 + 8c'
    v_lshrrev_b32 v22, 1, v18
    v_and_b32 v23, 1, v4
    v_lshl_or_b32 v22, v23, 1, v22 ; h
    """)
    for t in range(4):
        a(f"v_xor_b32 v23, {t}, v22")
        a(f"v_lshl_add_u32 v{13+t}, v23, 5, v21")
    a(f"""
    v_lshlrev_b32 v10, 6, v3
    v_lshrrev_b32 v7, 2, v3
    v_and_b32 v7, 2, v7
    v_xor_b32 v7, v7, v4
    v_lshl_add_u32 v10, v7, 4, v10
    v_add_u32 v10, s63, v10
    v_and_b32 v7, 1, v4
    v_lshlrev_b32 v7, 7, v7
    v_add_u32 v17, {L_KV}, v17
    v_xor_b32 v12, v17, v7
    v_xor_b32 v17, 128, v12
    """)
    for r in range(4): a(f"v_mov_b32 v{ONE+r}, 0x3f803f80")
    a(f"""
    v_and_b32 v7, 1, v2
    v_lshlrev_b32 v7, 4, v7
    v_mov_b32 v8, 0x3f80
    v_lshlrev_b32 v7, v7, v8
    v_cmp_eq_u32 s[36:37], v18, v4 ; g == (l&15)>>2
    v_bfe_u32 v8, v2, 1, 1
    v_cmp_eq_u32 vcc, 0, v8
    s_and_b64 s[38:39], s[36:37], vcc
    s_andn2_b64 s[40:41], s[36:37], vcc
    v_mov_b32 v{SEL}, 0
    v_mov_b32 v{SEL+1}, 0
    v_cndmask_b32 v{SEL+2}, 0, v7, s[38:39]
    v_cndmask_b32 v{SEL+3}, 0, v7, s[40:41]
    v_mov_b32 v{SEL+4}, 0
    v_mov_b32 v{SEL+5}, 0
    """)
    for u in range(10, 16): xdma(u)
    stamp(a, 2)
    if 'k1nb' not in dbg: a("s_barrier")
    stamp(a, 3)
    if ('leak' in dbg or 'amp' in dbg): a('s_memrealtime s[94:95]')
    m16 = "v_mfma_f32_16x16x32_bf16"
    SUM = ACC; GR = ACC + 4; NM = 220
    def stat(u):
        xs = f"v[{X+4*u}:{X+4*u+3}]"
        a(f"{m16} v[{SUM}:{SUM+3}], v[{ONE}:{ONE+3}], {xs}, " + ("0" if u == 0 else f"v[{SUM}:{SUM+3}]"))
        a(f"{m16} v[{GR}:{GR+3}], {xs}, {xs}, " + ("0" if u == 0 else f"v[{GR}:{GR+3}]"))
    for u in range(0, 16, 2):
        a(f"s_waitcnt vmcnt({14-u})")
        a(f"ds_read_b128 v[{X+4*u}:{X+4*u+3}], v10 offset:{1024*u}")
        a(f"ds_read_b128 v[{X+4*u+4}:{X+4*u+7}], v10 offset:{1024*u+1024}")
        if u >= 4:
            a("s_waitcnt lgkmcnt(4)")
            stat(u - 4); stat(u - 3)
    a("s_waitcnt lgkmcnt(2)"); stat(12); stat(13)
    a("s_waitcnt lgkmcnt(0)"); stat(14); stat(15)
    stamp(a, 4)
    a(f"""
    v_and_b32 v7, 1, v2
    v_cmp_eq_u32 s[42:43], 1, v7
    v_cndmask_b32 v8, v{GR}, v{GR+1}, s[42:43]
    v_cndmask_b32 v9, v{GR+2}, v{GR+3}, s[42:43]
    v_cndmask_b32 v8, 0, v8, s[38:39]
    v_cndmask_b32 v26, v8, v9, s[40:41]
    """)
    for w in (16, 32):
        sum_swap(a, 26, 28, w)
    ln_scalars(a, SUM, 26, 28, 30, 27, 29)
    for r in range(4): a(f"v_sub_f32 v{NM+r}, 0, v28")
    NB = 4
    def sub(u):
        d = AF + 8 * (u % NB)
        xs = f"v[{X+4*u}:{X+4*u+3}]"
        a(f"{m16} v[{d}:{d+3}], v[{SEL+2}:{SEL+5}], {xs}, v[{NM}:{NM+3}]")
        a(f"{m16} v[{d+4}:{d+7}], v[{SEL}:{SEL+3}], {xs}, v[{NM}:{NM+3}]")
    sub(0); sub(1)
    def ln_step(u):
        d = AF + 8 * (u % NB); L = []
        for r in range(4): L.append(f"v_cvt_pk_bf16_f32 v{d+r}, 0, v{d+r}")
        if u + 2 < 16:
            dd = AF + 8 * ((u + 2) % NB); xs = f"v[{X+4*(u+2)}:{X+4*(u+2)+3}]"
            L.append(f"{m16} v[{dd}:{dd+3}], v[{SEL+2}:{SEL+5}], {xs}, v[{NM}:{NM+3}]")
        for r in range(4, 8): L.append(f"v_cvt_pk_bf16_f32 v{d+r}, 0, v{d+r}")
        for r in range(0, 8, 2): L.append(f"v_pk_mul_f32 v[{d+r}:{d+r+1}], v[{d+r}:{d+r+1}], v[30:31] op_sel_hi:[1,0]")
        if u + 2 < 16:
            L.append(f"{m16} v[{dd+4}:{dd+7}], v[{SEL}:{SEL+3}], {xs}, v[{NM}:{NM+3}]")
        for r in range(4): L.append(f"v_cvt_pk_bf16_f32 v{X+4*u+r}, v{d+2*r}, v{d+2*r+1}")
        return L
    LEAD = int(dict(x.split('=') for x in dbg.split(',') if '=' in x).get('lead', 16))
    for u in range(LEAD):
        for ins in ln_step(u): a(ins)
    a("s_barrier")
    stamp(a, 5)
    RG = 160
    def rd(s, t):
        for half in range(2):
            d = RG + 20 * (s % 3) + 4 * t + 2 * half
            if t < 4: a(f"ds_read_b64_tr_b16 v[{d}:{d+1}], v{13+t} offset:{s*4096 + half*512}")
            else:     a(f"ds_read_b64_tr_b16 v[{d}:{d+1}], v{17 if half else 12} offset:{s*1024}")
    for t in range(5): rd(0, t)
    for t in range(5): rd(1, t)
    for s in range(16):
        L = ln_step(s + LEAD) if s + LEAD < 16 else []
        a(f"s_waitcnt lgkmcnt({10 if s < 15 else 0})")
        for t in range(5):
            d = RG + 20 * (s % 3) + 4 * t
            c = "0" if s == 0 else f"v[{ACC+4*t}:{ACC+4*t+3}]"
            a(f"{m16} v[{ACC+4*t}:{ACC+4*t+3}], v[{d}:{d+3}], v[{X+4*s}:{X+4*s+3}], {c}")
            if s + 2 < 16: rd(s + 2, t)
            n = (len(L) + (4 - t)) // (5 - t)
            for ins in L[:n]: a(ins)
            L = L[n:]
    a(f"""
    s_lshl_b32 s35, s5, 10
    v_lshrrev_b32 v7, 3, v5
    v_lshlrev_b32 v7, 13, v7
    v_and_b32 v8, 7, v5
    v_lshl_add_u32 v7, v8, 4, v7
    v_lshrrev_b32 v9, 1, v4
    v_lshl_add_u32 v7, v9, 9, v7
    v_and_b32 v11, 1, v4
    v_lshl_add_u32 v7, v11, 7, v7
    """)
    for tp in range(2):
        for t in (2 * tp, 2 * tp + 1):
            for r in range(4): a(f"v_cvt_pk_bf16_f32 v{ACC+4*t+r}, 0, v{ACC+4*t+r}")
            for r in range(4): a(f"v_mul_f32 v{ACC+4*t+r}, {f2u(0.25 * 1.4426950408889634):#x}, v{ACC+4*t+r}")
            a(f"v_cvt_pk_bf16_f32 v{AF+2*t}, v{ACC+4*t}, v{ACC+4*t+1}")
            a(f"v_cvt_pk_bf16_f32 v{AF+2*t+1}, v{ACC+4*t+2}, v{ACC+4*t+3}")
        b = AF + 4 * tp
        a(f"v_permlane16_swap_b32 v{b}, v{b+2}")
        a(f"v_permlane16_swap_b32 v{b+1}, v{b+3}")
        a(f"buffer_store_dwordx4 v[{b}:{b+3}], v7, s[20:23], s35 offen offset:{256*tp}")
    KV = ACC + 16
    a(f"""
    s_cmp_gt_u32 s5, 1
    s_cbranch_scc1 K1_q
    v_cvt_pk_bf16_f32 v{T}, v{KV}, v{KV+1}
    v_cvt_pk_bf16_f32 v{T+1}, v{KV+2}, v{KV+3}
    s_lshr_b32 s35, s7, 5
    s_mul_i32 s35, s35, {TS}
    s_add_u32 s35, s35, {WS_KV:#x}
    s_cmp_eq_u32 s5, 0
    s_cbranch_scc0 K1_v
    v_and_b32 v8, 31, v5
    v_lshlrev_b32 v8, 4, v8
    v_lshl_add_u32 v8, v9, 9, v8
    v_lshl_add_u32 v8, v11, 3, v8
    buffer_store_dwordx2 v[{T}:{T+1}], v8, s[20:23], s35 offen
    s_branch K1_q
    """)
    a.label("K1_v")
    a(f"""
    s_and_b32 s36, s6, 1
    s_mul_i32 s36, s36, 544
    s_add_u32 s35, s35, s36
    v_bfe_u32 v8, v3, 2, 1
    v_mul_u32_u24 v8, 272, v8
    v_lshrrev_b32 v9, 3, v3
    v_lshl_add_u32 v8, v9, 3, v8
    v_and_b32 v9, 3, v3
    v_lshl_add_u32 v8, v9, 1, v8
    v_mov_b32 v9, 0x3f80
    buffer_store_short v9, v8, s[20:23], s35 offen offset:{1024 + 256}
    v_lshl_add_u32 v8, v4, 6, v8
    buffer_store_short v{T}, v8, s[20:23], s35 offen offset:1024
    buffer_store_short_d16_hi v{T}, v8, s[20:23], s35 offen offset:1040
    buffer_store_short v{T+1}, v8, s[20:23], s35 offen offset:1056
    buffer_store_short_d16_hi v{T+1}, v8, s[20:23], s35 offen offset:1072
    """)
    a.label("K1_q")
    if G.STAMP: a("s_waitcnt vmcnt(0)")
    stamp(a, 6)
    stamp_out(a, 0, 20, "s6", 158)
    if ('leak' in dbg or 'amp' in dbg):
        a(f"""
        s_waitcnt vmcnt(0)
        s_memrealtime s[92:93]
        s_waitcnt lgkmcnt(0)
        s_cmp_lg_u32 s2, 0
        s_cbranch_scc1 K1_leak
        v_mov_b32 v40, s90
        v_mov_b32 v41, s92
        v_mov_b32 v42, s94
        v_mov_b32 v43, 0
        s_mov_b32 s48, {WS_SEL:#x}
        s_mov_b64 exec, 1
        buffer_store_dwordx4 v[40:43], v43, s[20:23], s48 offen
        """)
        a.label("K1_leak")
    dstamp(a, 0, True, 200)
    a("s_endpgm")
    a.label("K1_loader")
    if 'noldprio' not in dbg: a("s_setprio 3")
    if 'nocodepf' not in dbg:
        a(f"""
        s_cmp_ge_u32 s2, 16
        s_cbranch_scc1 K1_nocp
        s_getpc_b64 s[60:61]
        """)
        a.label("K1_pc")
        a(f"""
        s_sub_u32 s60, s60, K1_pc-k1_kernel
        s_subb_u32 s61, s61, 0
        v_subrev_u32 v30, 256, v0
        v_lshlrev_b32 v30, 7, v30
        v_min_u32 v30, K_all_end-k1_kernel-4, v30
        global_load_dword v31, v30, s[60:61]
        """)
        a.label("K1_nocp")
    a(f"""
    s_sub_u32 s6, s6, 4
    v_lshrrev_b32 v7, 3, v2        ; row_in
    v_and_b32 v8, 7, v2            ; slot
    v_and_b32 v9, 2, v7
    v_xor_b32 v8, v8, v9
    v_xor_b32 v9, 4, v8
    s_lshl_b32 s35, s5, 7
    v_lshlrev_b32 v7, 10, v7
    v_add_u32 v7, s35, v7
    v_lshl_add_u32 v10, v8, 4, v7
    v_lshl_add_u32 v11, v9, 4, v7
    v_lshlrev_b32 v12, 4, v2       ; lane*16
    v_lshrrev_b32 v13, 1, v2
    v_lshlrev_b32 v13, 10, v13
    v_and_b32 v14, 1, v2
    v_lshl_add_u32 v13, v14, 4, v13
    s_lshl_b32 s36, s6, 14
    s_lshl_b32 s37, s6, 4
    s_lshl_b32 s38, s5, 3
    s_add_u32 s37, s37, s38
    v_and_b32 v15, 16, v2
    v_lshlrev_b32 v15, 3, v15
    v_xor_b32 v15, v15, v12
    s_lshl_b32 s39, s4, 2
    s_waitcnt lgkmcnt(0)
    """)
    srd(a, 12, 26, 27, 0x80000)
    if 'wpf' in dbg:
        a(f"""
        s_lshr_b32 s48, s2, 3
        s_lshl_b32 s48, s48, 14
        s_and_b32 s49, s6, 1
        s_lshl_b32 s49, s49, 13
        s_add_u32 s48, s48, s49
        v_lshlrev_b32 v30, 7, v2
        s_cmp_gt_u32 s6, 1
        s_cbranch_scc1 K1_nopf
        buffer_load_dword v29, v30, s[12:15], s48 offen
        """)
        a.label("K1_nopf")
    a(f"""
    s_cmp_eq_u32 s5, 0
    s_cselect_b64 s[46:47], s[28:29], s[30:31]
    """)
    srd(a, 16, 46, 47, 0x4000)
    srd(a, 40, 44, 45, 0x80000)
    srd(a, 20, 32, 33, WS_SIZE)
    a(f"""
    s_cmp_ge_u32 s2, {14 + (256 << G.KS_LOG) // 1024}
    s_cbranch_scc1 K1_noz
    s_cmp_lg_u32 s6, 0
    s_cbranch_scc1 K1_noz
    v_mov_b32 v32, 0
    v_mov_b32 v33, 0
    v_mov_b32 v34, 0
    v_mov_b32 v35, 0
    s_lshl_b32 s48, s2, 10
    s_cmp_lt_u32 s2, 14
    s_mov_b32 s49, {WS_KEY - 14 * 1024:#x}
    s_cselect_b32 s49, {WS_GU:#x}, s49
    s_add_u32 s48, s48, s49
    buffer_store_dwordx4 v[32:35], v12, s[20:23], s48 offen
    """)
    a.label("K1_noz")
    if 'k1nb' not in dbg: a("s_barrier")
    for i in range(16):
        a(f"""
        s_add_u32 s48, s39, {i}
        s_and_b32 s48, s48, 15
        s_lshl_b32 s49, s48, 10
        s_add_u32 m0, s36, s49
        s_add_u32 s48, s48, s37
        s_and_b32 s48, s48, 63
        s_lshl_b32 s48, s48, 13
        buffer_load_dwordx4 v{10 + (i & 1)}, s[12:15], s48 offen lds
        """)
    a(f"""
    s_cmp_gt_u32 s5, 1
    s_cbranch_scc1 K1_nokv
    s_lshl_b32 s36, s6, 12
    s_lshl_b32 s38, s5, 11
    """)
    for i in range(4):
        a(f"""
        s_add_u32 s48, s36, {i*1024}
        s_add_u32 m0, s48, {L_KV}
        s_add_u32 s48, s48, s38
        s_and_b32 s48, s48, 0x3fff
        buffer_load_dwordx4 v15, s[16:19], s48 offen lds
        """)
    a.label("K1_nokv")
    a(f"""
    s_cmp_lt_u32 s6, 2
    s_cbranch_scc1 K1_nowo
    s_lshl_b32 s46, s2, 1
    s_and_b32 s47, s6, 1
    s_add_u32 s46, s46, s47
    s_lshr_b32 s47, s46, 6
    s_lshl_b32 s47, s47, 16
    s_bfe_u32 s48, s46, 0x10002
    s_lshl_b32 s48, s48, 15        ; s * 32 rows
    s_add_u32 s47, s47, s48
    s_bfe_u32 s48, s46, 0x30003
    s_lshl_b32 s48, s48, 7         ; w * 128 B
    s_add_u32 s47, s47, s48
    s_and_b32 s48, s46, 3
    s_lshl_b32 s48, s48, 5         ; t * 32 B
    s_add_u32 s47, s47, s48
    s_lshl_b32 s48, s6, 10
    s_add_u32 s48, s48, {L_WOT - 2048}
    s_mov_b32 m0, s48
    v_add_u32 v17, s48, v17
    buffer_load_dwordx4 v13, s[40:43], s47 offen lds
    s_waitcnt vmcnt(1)
    s_barrier
    s_waitcnt vmcnt(0)
    ds_read_b64_tr_b16 v[32:33], v17
    ds_read_b64_tr_b16 v[34:35], v17 offset:128
    s_lshl_b32 s46, s46, 10
    s_add_u32 s46, s46, {WS_WOF:#x}
    s_waitcnt lgkmcnt(0)
    buffer_store_dwordx4 v[32:35], v12, s[20:23], s46 offen
    s_endpgm
    """)
    a.label("K1_nowo")
    a("s_waitcnt vmcnt(0)")
    a("s_barrier")
    a.label("K1_end")
    a("s_endpgm")
    a.fix()
    if G.ALIGN: print('align', align8(a))
    return a.text(), 224, L1_TOTAL
```

```python
from gen import *
import gen as G

L_PART = 0x0; L_Q = 0x6000; L_MREF = 0x8400; L_OB = 0xA800; L_KEY = 0xAC00; L_FLG = 0xAD00; L_MX = 0xB000; L_HB = 0xB400
L_FW = 0xE000; L_TOTAL = 0xE000 + 8 * 7168
L_XS = L_PART; L_RED = L_PART + 0x1000; L_GB = L_PART + 0x2000
C_EXACT = 0.25 * 1.4426950408889634
OFFS = 96.0

def wave_sum(a, vs, ts):
    if isinstance(vs, int): vs, ts = [vs], [ts]
    for mod in ("quad_perm:[1,0,3,2]", "quad_perm:[2,3,0,1]", "row_half_mirror", "row_mirror"):
        for v in vs:
            a(f"v_add_f32_dpp v{v}, v{v}, v{v} {mod} row_mask:0xf bank_mask:0xf")
    for w in (16, 32):
        for v, t in zip(vs, ts): a(f"v_mov_b32 v{t}, v{v}")
        for v, t in zip(vs, ts): a(f"v_permlane{w}_swap_b32 v{t}, v{v}")
        for v, t in zip(vs, ts): a(f"v_add_f32 v{v}, v{v}, v{t}")

class VM:
    def __init__(self, a): self.a = a; self.q = []; self.done = -1
    def issue(self, tag): self.q.append(tag)
    def wait(self, tag):
        i = max(k for k, t in enumerate(self.q) if t == tag)
        if i <= self.done: return
        self.done = i
        self.a(f"s_waitcnt vmcnt({len(self.q) - 1 - i})")

def wave_max_u32(a, v, t):
    for mod in ("quad_perm:[1,0,3,2]", "quad_perm:[2,3,0,1]", "row_half_mirror", "row_mirror"):
        a(f"v_max_u32_dpp v{v}, v{v}, v{v} {mod} row_mask:0xf bank_mask:0xf")
    for w in (16, 32):
        a(f"""
        v_mov_b32 v{t}, v{v}
        v_permlane{w}_swap_b32 v{t}, v{v}
        v_max_u32 v{v}, v{v}, v{t}
        """)

LOG2E = 1.4426950408889634
def sigmoid(a, d, x, t):
    a(f"""
    v_mul_f32 v{t}, {f2u(-LOG2E):#x}, v{x}
    v_exp_f32 v{t}, v{t}
    v_add_f32 v{t}, 1.0, v{t}
    v_rcp_f32 v{d}, v{t}
    """)

def gen_k2(dbg='', prio=True):
    a = Asm()
    OPT = dict(x.split('=') for x in dbg.split(',') if '=' in x)
    PFS = int(OPT.get('pfs', 0)); PFP = int(OPT.get('pfp', 1))
    TAILST = 'tailst' in dbg
    FS = 'ffnst' in dbg
    def st(i, tail):
        if FS:
            if tail == 2: stamp(a, i)
        elif tail != 2 and bool(tail) == TAILST: stamp(a, i)
    K = 16; V = 48; X = [112, 128]; O = 144; CM = 160; SP = 176; Q = 184; OA = 188; WF = 204; BF = 236; S1 = 240
    vQA, vPW, vPR, vPL, vOW, vOR, vLM, vWL, vKL, vVL = 1, 2, 3, 4, 5, 6, 7, 8, 9, 10
    t0, t1, t2, t3, t4 = 11, 12, 13, 14, 15
    vFW, vFR, vFV, vRD = 9, 13, 14, 15
    a(f"""
    s_cmp_ge_u32 s2, 256
    s_cbranch_scc1 K2_end
    """)
    st(0, False)
    if 'leak' in dbg or 'amp' in dbg: a('s_memrealtime s[90:91]')
    dstamp(a, 1, False, 240)
    a(f"""
    s_load_dwordx2 s[48:49], s[0:1], 96
    s_load_dwordx2 s[40:41], s[0:1], 0
    s_load_dwordx8 s[60:67], s[0:1], 48
    s_load_dwordx2 s[46:47], s[0:1], 80
    s_and_b32 s3, s2, 7
    s_lshr_b32 s4, s2, 3
    s_lshl_b32 s7, s3, 8
    s_lshl_b32 s5, s4, 3
    s_add_u32 s7, s7, s5           ; T0
    s_and_b32 s28, s4, 7           ; rot
    v_lshrrev_b32 v{t0}, 6, v0
    v_and_b32 v0, 63, v0
    v_readfirstlane_b32 s6, v{t0}
    s_mov_b32 s30, 0
    v_lshlrev_b32 v{vWL}, 4, v0
    s_mul_i32 s3, s6, {8*TS}
    s_add_u32 s3, s3, {WS_KV:#x}
    """)
    for t in range(8):
        a(f"""
        s_add_u32 s4, s28, {t}
        s_and_b32 s4, s4, 7
        s_mul_i32 s4, s4, {TS}
        s_add_u32 s{50+t}, s3, s4
        """)
    a.label("K2_restart")
    a(f"""
    s_add_u32 s3, s6, s28
    s_and_b32 s3, s3, 7
    s_add_u32 s3, s3, s7
    s_lshl_b32 s3, s3, 10
    v_and_b32 v{t1}, 31, v0
    v_lshrrev_b32 v{t2}, 5, v0
    v_mul_u32_u24 v{vVL}, 272, v{t2}
    v_lshl_add_u32 v{vVL}, v{t1}, 4, v{vVL}
    v_cmp_lt_u32 vcc, 16, v{t1}
    v_bfrev_b32 v{t0}, 1
    v_add_u32 v{vQA}, {L_Q:#x}, v{vWL}
    v_cndmask_b32 v{vVL}, v{vVL}, v{t0}, vcc
    s_waitcnt lgkmcnt(0)
    """)
    srd(a, 8, 48, 49, WS_SIZE)
    vm = VM(a)
    def ldK(t):
        a(f"buffer_load_dwordx4 v[{K+4*t}:{K+4*t+3}], v{vWL}, s[8:11], s{50+t} offen"); vm.issue(f"K{t}")
    def ldV(t):
        for h in range(2):
            a(f"buffer_load_dwordx4 v[{V+8*t+4*h}:{V+8*t+4*h+3}], v{vVL}, s[8:11], s{50+t} offen offset:{1024 + 544*h}"); vm.issue(f"V{t}{h}")
    a(f"buffer_load_dwordx4 v[{Q}:{Q+3}], v{vWL}, s[8:11], s3 offen"); vm.issue("Q")
    ldK(0); ldK(1)
    a(f"""
    s_lshl_b32 s3, s6, 10
    v_add_u32 v{t3}, s3, v{vQA}
    """)
    def late_setup(part):
        u0, u1, u2, u3 = S1, S1 + 1, S1 + 2, S1 + 3
        if part == 0:
            srd(a, 16, 40, 41, 0x200000)
            srd(a, 20, 46, 47, 0x200000)
            srd(a, 24, 60, 61, 0x400)
            a(f"""
            v_and_b32 v{u1}, 31, v0
            v_lshrrev_b32 v{u2}, 5, v0
            v_mul_u32_u24 v{vPW}, 96, v{u1}
            v_lshl_add_u32 v{vPW}, v{u2}, 4, v{vPW}
            s_mul_i32 s3, s6, 3072
            v_add_u32 v{vPW}, s3, v{vPW}
            v_lshrrev_b32 v{u0}, 4, v0     ; g
            s_lshl_b32 s3, s6, 2
            v_add_u32 v{u1}, s3, v{u0}     ; n = 4w + g
            v_mul_u32_u24 v{vPL}, 96, v{u1}
            v_and_b32 v{u2}, 15, v0        ; d
            v_lshl_add_u32 v{vPR}, v{u2}, 2, v{vPL}
            v_add_u32 v{vPL}, 64, v{vPL}
            s_lshl_b32 s31, s28, 16
            s_lshl_b32 s33, s6, 13
            s_add_u32 s33, s33, {WS_WOF:#x}
            """)
        elif part == 1:
            a(f"""
            v_and_b32 v{u3}, 7, v{u1}      ; token
            v_lshrrev_b32 v{u1}, 3, v{u1}  ; head_local
            v_lshlrev_b32 v{vOW}, 7, v{u3}
            v_lshl_add_u32 v{vOW}, v{u1}, 5, v{vOW}
            v_lshl_add_u32 v{vOW}, v{u2}, 1, v{vOW}
            v_add_u32 v{vOW}, {L_OB:#x}, v{vOW}
            v_and_b32 v{u3}, 7, v0
            v_lshlrev_b32 v{vOR}, 7, v{u3}
            v_lshl_add_u32 v{vOR}, v{u0}, 4, v{vOR}
            v_add_u32 v{vOR}, {L_OB:#x}, v{vOR}
            v_mov_b32 v{vLM}, 0
            v_lshlrev_b32 v{vFR}, 2, v{u3}
            v_add_u32 v{vFR}, {L_FLG:#x}, v{vFR}
            """)
        else:
            for r in range(0, 16, 2):
                a(f"v_pk_mov_b32 v[{OA+r}:{OA+r+1}], 0, 0")
    late_setup(0); late_setup(1)
    ldV(0); ldK(2); ldV(1)
    late_setup(2)
    st(1, False)
    vm.wait("Q")
    a(f"""
    ds_write_b128 v{t3}, v[{Q}:{Q+3}]
    s_cmp_lg_u32 s30, 0
    s_cbranch_scc1 K2_safe
    """)
    vm.wait("K1")
    a(f"""
    v_mfma_f32_32x32x16_bf16 v[{X[0]}:{X[0]+15}], v[{K}:{K+3}], v[{Q}:{Q+3}], 0
    v_mfma_f32_32x32x16_bf16 v[{X[1]}:{X[1]+15}], v[{K+4}:{K+7}], v[{Q}:{Q+3}], 0
    """)
    S = X[0]
    a(f"v_max3_f32 v{t0}, v{S}, v{S+1}, v{S+2}")
    for r in range(3, 31, 2):
        a(f"v_max3_f32 v{t0}, v{t0}, v{S+r}, v{S+r+1}")
    a(f"""
    v_max_f32 v{t0}, v{t0}, v{S+31}
    v_mov_b32 v{t1}, v{t0}
    v_permlane32_swap_b32 v{t1}, v{t0}
    v_max_f32 v{t0}, v{t0}, v{t1}
    v_mov_b32 v{t1}, {f2u(-OFFS):#x}
    s_branch K2_mref
    """)
    a.label("K2_safe")
    a(f"""
    v_and_b32 v{t0}, 31, v0
    v_lshlrev_b32 v{S1+4}, 2, v{t0}
    v_add_u32 v{S1+4}, {L_MX:#x}, v{S1+4}
    s_lshl_b32 s3, s6, 7
    v_add_u32 v{S1+5}, s3, v{S1+4}
    v_mov_b32 v{t0}, 0xff800000
    ds_write_b32 v{S1+5}, v{t0}
    s_waitcnt vmcnt(0) lgkmcnt(0)
    s_barrier
    v_mov_b32 v{t1}, v{vQA}
    s_mov_b32 s29, 0
    """)
    a.label("K2_safe_loop")
    a(f"""
    ds_read_b128 v[{BF}:{BF+3}], v{t1}
    v_mov_b32 v{t0}, 0xff800000
    s_waitcnt lgkmcnt(0)
    """)
    for t in range(8):
        a(f"v_mfma_f32_32x32x16_bf16 v[{S}:{S+15}], v[{K+4*t}:{K+4*t+3}], v[{BF}:{BF+3}], 0")
        for r in range(0, 16, 2):
            a(f"v_max3_f32 v{t0}, v{t0}, v{S+r}, v{S+r+1}")
    a(f"""
    ds_max_f32 v{S1+4}, v{t0}
    v_add_u32 v{t1}, 1024, v{t1}
    v_add_u32 v{S1+4}, 128, v{S1+4}
    s_add_u32 s29, s29, 1
    s_cmp_lt_u32 s29, 8
    s_cbranch_scc1 K2_safe_loop
    s_waitcnt lgkmcnt(0)
    s_barrier
    ds_read_b32 v{t0}, v{S1+5}
    v_mov_b32 v{t1}, 0
    s_waitcnt lgkmcnt(0)
    """)
    a.label("K2_mref")
    a(f"""
    v_sub_f32 v{BF}, v{t1}, v{t0}
    v_sub_f32 v{BF+1}, v{t1}, v{t0}
    v_sub_f32 v{BF+2}, v{t1}, v{t0}
    v_sub_f32 v{BF+3}, v{t1}, v{t0}
    ds_write_b128 v{t3}, v[{BF}:{BF+3}] offset:{L_MREF - L_Q}
    s_lshl_b32 s3, s6, 2
    s_add_u32 s3, s3, {L_FLG:#x}
    v_mov_b32 v{vFW}, s3
    v_mov_b32 v{vRD}, 0
    ds_write2_b32 v{vFW}, v{vRD}, v{vRD} offset0:0 offset1:8
    s_waitcnt lgkmcnt(0)
    s_barrier
    """)
    def rd_qcm():
        a(f"ds_read_b128 v[{Q}:{Q+3}], v{vQA}")
        for k in range(4):
            a(f"ds_read_b128 v[{CM+4*k}:{CM+4*k+3}], v{vQA} offset:{L_MREF - L_Q}")
        a(f"v_add_u32 v{vQA}, 1024, v{vQA}")
    mf = "v_mfma_f32_32x32x16_bf16"
    def M1(kt, xb):
        a(f"{mf} v[{X[xb]}:{X[xb]+15}], v[{K+4*kt}:{K+4*kt+3}], v[{Q}:{Q+3}], v[{CM}:{CM+15}]")
    def E(xb, lo, hi):
        for r in range(lo, hi):
            if 'noexp' in dbg:
                a(f"v_cvt_pk_bf16_f32 v{X[xb]+r}, 0, v{X[xb]+r}"); a(f"v_cvt_pk_bf16_f32 v{X[xb]+r}, 0, v{X[xb]+r}")
                continue
            a(f"v_exp_f32 v{X[xb]+r}, v{X[xb]+r}")
    def C2(h, xb):
        for k in range(4):
            a(f"v_cvt_pk_bf16_f32 v{SP+4*h+k}, v{X[xb]+8*h+2*k}, v{X[xb]+8*h+2*k+1}")
    def M3(h, kt, first=False):
        c = "0" if first else f"v[{O}:{O+15}]"
        if 'nom3' in dbg: return
        if 'm3small' in dbg:
            a(f"v_mfma_f32_16x16x32_bf16 v[{O+4*h}:{O+4*h+3}], v[{V+8*kt+4*h}:{V+8*kt+4*h+3}], v[{SP+4*h}:{SP+4*h+3}], v[{O+4*h}:{O+4*h+3}]")
            return
        a(f"{mf} v[{O}:{O+15}], v[{V+8*kt+4*h}:{V+8*kt+4*h+3}], v[{SP+4*h}:{SP+4*h+3}], {c}")
    def part_write():
        a(f"""
        ds_write_b128 v{vPW}, v[{O}:{O+3}]
        ds_write_b128 v{vPW}, v[{O+4}:{O+7}] offset:32
        ds_write_b32 v{vPW}, v{O+8} offset:64
        """)
    def s1_read():
        for k in range(4):
            a(f"ds_read2st64_b32 v[{S1+2*k}:{S1+2*k+1}], v{vPR} offset0:{24*k} offset1:{24*k+12}")
        for k in range(4):
            a(f"ds_read2st64_b32 v[{S1+8+2*k}:{S1+8+2*k+1}], v{vPL} offset0:{24*k} offset1:{24*k+12}")
    def s1_calc():
        for (x, y) in ((0, 2), (4, 6), (0, 4)):
            a(f"v_pk_add_f32 v[{S1+8+x}:{S1+9+x}], v[{S1+8+x}:{S1+9+x}], v[{S1+8+y}:{S1+9+y}]")
            a(f"v_pk_add_f32 v[{S1+x}:{S1+1+x}], v[{S1+x}:{S1+1+x}], v[{S1+y}:{S1+1+y}]")
        a(f"""
        v_add_f32 v{S1+8}, v{S1+8}, v{S1+9}
        v_add_f32 v{S1}, v{S1}, v{S1+1}
        v_rcp_f32 v{S1+1}, v{S1+8}
        v_maximum3_f32 v{vLM}, v{vLM}, v{S1+8}, abs(v{S1})
        v_mul_f32 v{S1}, v{S1}, v{S1+1}
        v_cvt_pk_bf16_f32 v{S1}, v{S1}, v{S1}
        ds_write_b16 v{vOW}, v{S1}
        """)
    def s2_read():
        for s in range(2):
            a(f"ds_read_b128 v[{BF+4*s}:{BF+4*s+3}], v{vOR} offset:{64*s}")
    def s2_mma(lo, hi):
        for u in range(lo, hi):
            s, t = u >> 2, u & 3
            a(f"v_mfma_f32_16x16x32_bf16 v[{OA+4*t}:{OA+4*t+3}], v[{WF+4*u}:{WF+4*u+3}], v[{BF+4*s}:{BF+4*s+3}], v[{OA+4*t}:{OA+4*t+3}]")
    def wf_load(lo, hi):
        if lo == 0:
            a("s_add_u32 s34, s33, s31")
            a("s_add_u32 s35, s34, 4096")
            a("s_add_u32 s31, s31, 0x10000")
            a("s_and_b32 s31, s31, 0x7ffff")
        for u in range(lo, hi):
            a(f"buffer_load_dwordx4 v[{WF+4*u}:{WF+4*u+3}], v{vWL}, s[8:11], s{34 + (u >> 2)} offen offset:{1024*(u&3)}")
            vm.issue("WF")
    def ffn_prefetch():
        a(f"""
        s_mov_b32 s39, s6
        s_cmp_eq_u32 s39, 1
        s_cselect_b64 s[36:37], s[64:65], s[62:63]
        s_cmp_eq_u32 s39, 2
        s_cselect_b64 s[36:37], s[66:67], s[36:37]
        """)
        srd(a, 12, 36, 37, 512 * 1792 * 2)
        a(f"""
        s_and_b32 s3, s2, 7
        s_lshr_b32 s4, s2, 3
        s_mul_i32 s5, s4, {16*3584}
        s_mul_i32 s36, s3, 448
        s_and_b32 s36, s36, 0xffffff80
        s_add_u32 s5, s5, s36
        s_lshl_b32 s36, s3, 7
        s_mul_i32 s37, s4, {56*1024}
        s_add_u32 s36, s36, s37
        v_lshrrev_b32 v{t0}, 2, v0
        v_mul_u32_u24 v{t0}, 3584, v{t0}
        v_and_b32 v{t1}, 3, v0
        v_lshl_add_u32 v{t0}, v{t1}, 7, v{t0}
        v_min_u32 v{t1}, 55, v0
        v_lshlrev_b32 v{t1}, 10, v{t1}
        s_cmp_eq_u32 s39, 2
        s_cselect_b32 s38, s36, s5
        s_cselect_b64 vcc, -1, 0
        v_cndmask_b32 v{t0}, v{t0}, v{t1}, vcc
        s_lshl_b32 s39, s6, {PFS}
        s_add_u32 s39, s39, 1
        s_cmp_gt_u32 s6, 2
        s_cselect_b32 s39, 99, s39
        """)
    def ffn_setup():
        a(f"""
        s_and_b32 s3, s2, 7
        s_lshr_b32 s4, s2, 3
        s_and_b32 s5, s6, 1
        s_cmp_eq_u32 s5, 0
        s_cselect_b64 s[36:37], s[62:63], s[64:65]
        s_cmp_lt_u32 s2, 112
        s_cselect_b64 s[36:37], s[36:37], s[66:67]
        """)
        srd(a, 68, 36, 37, 512 * 1792 * 2)
        a(f"""
        s_mul_i32 s76, s3, 14
        s_add_u32 s76, s76, s4           ; fs
        s_lshl_b32 s77, s3, 2
        s_add_u32 s77, s77, s4
        s_sub_u32 s77, s77, 14           ; cb
        s_lshr_b32 s5, s6, 1
        s_mul_i32 s5, s5, {128*3584}
        s_lshl_b32 s36, s76, 5
        s_add_u32 s5, s5, s36
        s_mul_i32 s36, s6, {224*1024}
        s_lshl_b32 s37, s77, 5
        s_add_u32 s36, s36, s37
        s_cmp_lt_u32 s2, 112
        s_cselect_b32 s72, s5, s36
        s_movk_i32 s73, 1024
        s_cselect_b32 s73, 3584, s73
        s_cselect_b32 s75, 4, 7
        s_cmp_lt_u32 s2, 144
        s_cselect_b32 s75, s75, 0
        s_mul_i32 s74, s6, 7168
        s_add_u32 s74, s74, {L_FW:#x}
        v_lshrrev_b32 v{vVL}, 1, v0
        v_mul_lo_u32 v{vVL}, v{vVL}, s73
        v_and_b32 v{t1}, 1, v0
        v_lshl_add_u32 v{vVL}, v{t1}, 4, v{vVL}
        s_lshl_b32 s73, s73, 5
        s_mov_b32 s78, s74
        """)
    def ffn_stage():
        a(f"""
        s_cmp_lt_u32 s29, 4
        s_cbranch_scc1 K2_nost
        """)
        for e in range(2):
            a(f"""
            s_cmp_eq_u32 s75, 0
            s_cbranch_scc1 K2_nost
            s_mov_b32 m0, s78
            s_sub_u32 s75, s75, 1
            buffer_load_dwordx4 v{vVL}, s[68:71], s72 offen lds
            s_add_u32 s78, s78, 1024
            s_add_u32 s72, s72, s73
            """)
        a.label("K2_nost")
    def ffn_issue():
        a(f"""
        s_cmp_lg_u32 s29, s39
        s_cbranch_scc1 K2_nopf
        buffer_load_dword v{t1}, v{t0}, s[12:15], s38 offen
        """)
        a.label("K2_nopf")
    def setprio(p):
        if prio: a(f"s_setprio {p}")
    st(2, False)
    rd_qcm()
    a("s_waitcnt lgkmcnt(0)")
    M1(0, 0)
    a("s_mov_b32 s29, 1")
    setprio(3)
    ldK(3); ldV(2)
    st(3, False)
    if 'leak' in dbg or 'amp' in dbg: a('s_memrealtime s[94:95]'); a('s_waitcnt lgkmcnt(0)')
    def tile(i, hook):
        xb = i & 1; xn = xb ^ 1
        hook(i, 'a')
        E(xb, 0, 2)
        hook(i, 'm3b')
        E(xb, 2, 6)
        hook(i, 'e1')
        E(xb, 6, 8)
        hook(i, 'm1')
        M1((i + 1) & 7, xn)
        hook(i, 0)
        C2(0, xb); E(xb, 8, 10)
        hook(i, 'e2')
        E(xb, 10, 12)
        hook(i, 1)
        M3(0, i, first=(i == 0))
        hook(i, 2)
        E(xb, 12, 16)
        hook(i, 'e3')
        C2(1, xb)
    def hook0(i, pos):
        if pos == 'a' and i in (3, 5, 7): setprio({3: 2, 5: 1, 7: 1}[i])
        if pos == 'm3b' and i > 0:
            vm.wait(f"V{i-1}1"); M3(1, i - 1)
        if pos == 'm1':
            if i < 7: vm.wait(f"K{i+1}")
            else: a("s_waitcnt lgkmcnt(0)")
        if pos == 0:
            if i + 4 <= 7: ldK(i + 4)
            if i + 3 <= 7: ldV(i + 3)
            if i == 4 and 'nopf' not in dbg: ffn_prefetch()
            if i == 5: wf_load(0, 4); ffn_setup()
            if i == 6: wf_load(4, 8)
        if pos == 1:
            if i == 6: rd_qcm()
            vm.wait(f"V{i}0")
        if pos == 2 and i == 7:
            vm.wait("V71")
    for i in range(8): tile(i, hook0)
    a.raw(".p2align 3")
    a.label("K2_round")
    spins = []
    def poll(off):
        a(f"ds_read_b32 v{vFV}, v{vFR} offset:{off}")
    def check(off):
        k = len(spins); spins.append(off)
        a(f"""
        s_waitcnt lgkmcnt(0)
        v_cmp_gt_u32 vcc, s29, v{vFV}
        s_cbranch_vccnz K2_spin{k}
        """)
        a.label(f"K2_back{k}")
    PR = dict(x.split('=') for x in dbg.split(',') if '=' in x).get('pr', 'c')
    def hook(i, pos):
        if pos == 'm3b': M3(1, (i - 1) & 7)
        if pos == 'm1' and i == 7: a("s_waitcnt lgkmcnt(0)")
        if pos == 1 and i == 6: rd_qcm()
        if 'nohook' in dbg: return
        if 'bar' in dbg.split(','):
            if pos == 'a' and i in (0, 6, 7): setprio({6: 2, 7: 1, 0: 0}[i])
            if i == 0 and pos == 1: part_write()
            if i == 1 and pos == 0:
                a("s_waitcnt lgkmcnt(0)"); a("s_barrier"); setprio(2); s1_read()
            if i == 2 and pos == 0:
                a("s_waitcnt lgkmcnt(0)"); s1_calc(); setprio(1)
            if i == 3 and pos == 0: setprio(0)
            if i == 4 and pos == 0:
                a("s_waitcnt vmcnt(0) lgkmcnt(0)"); a("s_barrier"); setprio(3); s2_read()
            seq = [(4, 'e3'), (5, 'e1'), (5, 'e2'), (5, 'e3'), (6, 'e1'), (6, 'e2'), (6, 'e3'), (7, 'e1')]
        else:
            if i == 0 and pos == 'a': a(f"v_mov_b32 v{vRD}, s29")
            if i == 0 and pos == 1:
                part_write(); a(f"ds_write_b32 v{vFW}, v{vRD}")
                if PR == 'b': setprio(0)
            if i == 2 and pos == 0: poll(0)
            if i == 2 and pos == 2:
                check(0); s1_read()
                if PR == 'b': setprio(1)
            if i == 3 and pos == 0:
                a("s_waitcnt lgkmcnt(0)"); s1_calc(); a(f"ds_write_b32 v{vFW}, v{vRD} offset:32")
                if PR == 'b': setprio(0)
            if i == 4 and pos == 2: poll(32)
            if i == 5 and pos == 'm1':
                check(32); s2_read(); a("s_waitcnt vmcnt(0)")
                if 'nopf' not in dbg and PFP == 0: ffn_issue()
            if i == 7 and pos == 'a' and PR == 'b': setprio(1)
            if PR == 'c' and pos == 'a' and i in (1, 3, 5, 7): setprio({1: 0, 3: 3, 5: 2, 7: 1}[i])
            seq = [(5, 'e2'), (5, 'e3'), (6, 'e1'), (6, 'e2'), (6, 'e3'), (7, 'e1'), (7, 'e2'), (7, 'e3')]
        if (i, pos) in seq:
            u = seq.index((i, pos))
            if u == 0: a("s_waitcnt lgkmcnt(0)")
            s2_mma(u, u + 1); wf_load(u, u + 1)
            if u == 7 and 'nopf' not in dbg and PFP == 1: ffn_issue(); ffn_stage()
    for i in range(8): tile(i, hook)
    if 'rndst' in dbg:
        a(f"""
        s_memtime s[82:83]
        s_memrealtime s[100:101]
        s_waitcnt lgkmcnt(0)
        s_lshl_b32 s84, s2, 3
        s_add_u32 s84, s84, s6
        s_lshl_b32 s84, s84, 3
        s_add_u32 s84, s84, s29
        s_lshl_b32 s84, s84, 3
        s_add_u32 s84, s84, {WS_STAMP + 0x40000:#x}
        s_mov_b64 exec, 1
        v_mov_b32 v{S1+8}, s82
        v_mov_b32 v{S1+9}, s100
        v_mov_b32 v{S1+10}, 0
        buffer_store_dwordx2 v[{S1+8}:{S1+9}], v{S1+10}, s[8:11], s84 offen
        s_mov_b64 exec, -1
        """)
    a(f"""
    s_add_u32 s29, s29, 1
    s_cmp_lt_u32 s29, 8
    s_cbranch_scc1 K2_round
    """)
    st(4, False); st(0, True)
    M3(1, 7)
    XR = CM; WR = CM + 4; HV = X[0]; HN = X[0] + 8; PK = X[1]; ST = X[1] + 8
    a(f"""
    s_add_u32 s3, s7, s6
    s_lshl_b32 s4, s3, 10
    buffer_load_dwordx4 v[{XR}:{XR+3}], v{vWL}, s[16:19], s4 offen
    buffer_load_dwordx4 v[{WR}:{WR+3}], v{vWL}, s[24:27], 0 offen
    v_and_b32 v{t0}, 7, v0
    v_mul_u32_u24 v{t0}, 1040, v{t0}
    v_lshrrev_b32 v{t1}, 4, v0
    v_lshl_add_u32 v{t0}, v{t1}, 3, v{t0}
    s_lshl_b32 s5, s6, 7
    s_add_u32 s5, s5, {L_HB:#x}
    v_add_u32 v{t0}, s5, v{t0}
    s_mul_i32 s5, s6, 1040
    s_add_u32 s5, s5, {L_HB:#x}
    v_add_u32 v{t1}, s5, v{vWL}
    s_lshl_b32 s35, s6, 2
    s_add_u32 s35, s35, {L_KEY:#x}
    v_mov_b32 v{t4}, s35
    v_and_b32 v{t3}, 7, v0
    v_lshlrev_b32 v{t3}, 2, v{t3}
    v_add_u32 v{t3}, {L_KEY:#x}, v{t3}
    """)
    part_write()
    a("s_waitcnt lgkmcnt(0)"); a("s_barrier"); st(1, True); s1_read()
    a("s_waitcnt lgkmcnt(0)"); s1_calc()
    a(f"""
    v_mov_b32 v{t2}, {f2u(2.0**124):#x}
    v_cmp_nlt_f32 vcc, v{vLM}, v{t2}
    s_cmp_lg_u64 vcc, 0
    s_cselect_b32 s5, 1, 0
    v_mov_b32 v{t2}, s5
    ds_write_b32 v{t4}, v{t2} offset:32
    """)
    a("s_waitcnt vmcnt(2) lgkmcnt(0)"); a("s_barrier"); st(2, True); s2_read()
    a(f"ds_read_b32 v{t2}, v{t3} offset:32")
    a("s_waitcnt lgkmcnt(1)"); s2_mma(0, 8)
    a(f"""
    s_waitcnt lgkmcnt(0)
    v_cmp_ne_u32 vcc, 0, v{t2}
    s_cmp_eq_u64 vcc, 0
    s_cbranch_scc1 K2_good
    s_cmp_lg_u32 s30, 0
    s_cbranch_scc1 K2_good
    s_mov_b32 s30, 1
    s_waitcnt vmcnt(0)
    s_setprio 0
    s_branch K2_restart
    """)
    a.label("K2_good")
    for t in range(4):
        a(f"v_cvt_pk_bf16_f32 v{S1+2*t}, v{OA+4*t}, v{OA+4*t+1}")
        a(f"v_cvt_pk_bf16_f32 v{S1+2*t+1}, v{OA+4*t+2}, v{OA+4*t+3}")
        a(f"ds_write_b64 v{t0}, v[{S1+2*t}:{S1+2*t+1}] offset:{32*t}")
    a("s_waitcnt vmcnt(0)")
    for r in range(4):
        a(f"v_lshlrev_b32 v{HV+2*r}, 16, v{XR+r}")
        a(f"v_and_b32 v{HV+2*r+1}, 0xffff0000, v{XR+r}")
        a(f"v_lshlrev_b32 v{WF+2*r}, 16, v{WR+r}")
        a(f"v_and_b32 v{WF+2*r+1}, 0xffff0000, v{WR+r}")
    a(f"""
    s_waitcnt lgkmcnt(0)
    s_barrier
    """)
    st(3, True)
    a(f"""
    ds_read_b128 v[{BF}:{BF+3}], v{t1}
    s_waitcnt lgkmcnt(0)
    """)
    for r in range(4):
        a(f"v_lshlrev_b32 v{HN+2*r}, 16, v{BF+r}")
        a(f"v_and_b32 v{HN+2*r+1}, 0xffff0000, v{BF+r}")
    P2 = lambda b, r: f"v[{b+r}:{b+r+1}]"
    for r in range(0, 8, 2): a(f"v_pk_add_f32 {P2(HV,r)}, {P2(HV,r)}, {P2(HN,r)}")
    for r in range(8): a(f"v_cvt_pk_bf16_f32 v{HV+r}, 0, v{HV+r}")
    SA, SB = S1, S1 + 2
    a(f"v_pk_add_f32 {P2(SA,0)}, {P2(HV,0)}, {P2(HV,2)}")
    a(f"v_pk_mul_f32 {P2(SB,0)}, {P2(HV,0)}, {P2(HV,0)}")
    a(f"v_pk_add_f32 {P2(SA,4)}, {P2(HV,4)}, {P2(HV,6)}")
    a(f"v_pk_fma_f32 {P2(SB,0)}, {P2(HV,2)}, {P2(HV,2)}, {P2(SB,0)}")
    a(f"v_pk_add_f32 {P2(SA,0)}, {P2(SA,0)}, {P2(SA,4)}")
    a(f"v_pk_fma_f32 {P2(SB,0)}, {P2(HV,4)}, {P2(HV,4)}, {P2(SB,0)}")
    a(f"v_add_f32 v{t0}, v{SA}, v{SA+1}")
    a(f"v_pk_fma_f32 {P2(SB,0)}, {P2(HV,6)}, {P2(HV,6)}, {P2(SB,0)}")
    a(f"v_add_f32 v{t2}, v{SB}, v{SB+1}")
    wave_sum(a, [t0, t2], [ST, ST + 1])
    ln_scalars(a, t0, t2, ST, ST + 2, ST + 1, ST + 3)
    st(4, True)
    for r in range(0, 8, 2): a(f"v_pk_add_f32 {P2(HN,r)}, {P2(HV,r)}, {P2(ST,0)} op_sel_hi:[1,0] neg_lo:[0,1] neg_hi:[0,1]")
    for r in range(8): a(f"v_cvt_pk_bf16_f32 v{HN+r}, 0, v{HN+r}")
    for r in range(0, 8, 2): a(f"v_pk_mul_f32 {P2(HN,r)}, {P2(HN,r)}, {P2(ST,2)} op_sel_hi:[1,0]")
    for r in range(8): a(f"v_cvt_pk_bf16_f32 v{HN+r}, 0, v{HN+r}")
    a(f"v_pk_mul_f32 {P2(SA,0)}, {P2(HN,0)}, {P2(WF,0)}")
    for r in range(2, 8, 2): a(f"v_pk_fma_f32 {P2(SA,0)}, {P2(HN,r)}, {P2(WF,r)}, {P2(SA,0)}")
    a(f"v_add_f32 v{t2}, v{SA}, v{SA+1}")
    fill = [f"v_pk_add_f32 {P2(WF+8,r)}, {P2(HV,r)}, {P2(HN,r)}" for r in range(0, 8, 2)]
    fill += [f"v_cvt_pk_bf16_f32 v{PK+4+r}, v{HV+2*r}, v{HV+2*r+1}" for r in range(4)]
    fill += [f"v_cvt_pk_bf16_f32 v{ST+4+r}, v{HN+2*r}, v{HN+2*r+1}" for r in range(4)]
    for mod in ("quad_perm:[1,0,3,2]", "quad_perm:[2,3,0,1]", "row_half_mirror", "row_mirror"):
        a(fill.pop(0)); a(fill.pop(0))
        a(f"v_add_f32_dpp v{t2}, v{t2}, v{t2} {mod} row_mask:0xf bank_mask:0xf")
    for w in (16, 32):
        a(f"v_mov_b32 v{t0}, v{t2}")
        a(fill.pop(0)); a(fill.pop(0))
        a(f"v_permlane{w}_swap_b32 v{t0}, v{t2}")
        a(f"v_add_f32 v{t2}, v{t2}, v{t0}")
    if 'leak' in dbg:
        a(f"""
        s_cmp_lg_u32 s3, 0
        s_cbranch_scc1 K2_leak
        s_memrealtime s[92:93]
        v_mov_b32 v{S1+4}, 0
        s_mov_b32 s5, {WS_SEL:#x}
        buffer_load_dwordx4 v[{S1}:{S1+3}], v{S1+4}, s[8:11], s5 offen
        s_waitcnt vmcnt(0) lgkmcnt(0)
        s_mov_b64 exec, 1
        v_add_f32 v{WF+8}, {f2u(64.0):#x}, v{WF+8}
        v_sub_u32 v{WF+9}, v{S1+2}, v{S1}
        v_sub_u32 v{WF+10}, v{S1+1}, v{S1}
        v_sub_u32 v{WF+11}, s90, v{S1}
        v_sub_u32 v{WF+12}, s94, v{S1}
        v_sub_u32 v{WF+13}, s92, v{S1}
        """)
        for r in range(9, 14):
            a(f"v_cvt_f32_u32 v{WF+r}, v{WF+r}")
            a(f"v_mul_f32 v{WF+r}, {f2u(0.005):#x}, v{WF+r}")
            a(f"v_min_f32 v{WF+r}, {f2u(20.0):#x}, v{WF+r}")
        a("s_mov_b64 exec, -1")
        a.label("K2_leak")
    a(f"""
    v_cvt_pk_bf16_f32 v{t2}, 0, v{t2}
    v_ashrrev_i32 v{t0}, 31, v{t2}
    v_or_b32 v{t0}, 0x80000000, v{t0}
    v_xor_b32 v{t2}, v{t2}, v{t0}
    v_and_b32 v{t2}, 0xffff0000, v{t2}
    s_sub_u32 s5, 0xffff, s3
    v_or_b32 v{t2}, s5, v{t2}      ; key
    ds_write_b32 v{t4}, v{t2}
    """)
    for r in range(4): a(f"v_cvt_pk_bf16_f32 v{PK+r}, v{WF+8+2*r}, v{WF+8+2*r+1}")
    a(f"""
    buffer_store_dwordx4 v[{PK}:{PK+3}], v{vWL}, s[20:23], s4 offen sc1
    """)
    a(f"""
    s_waitcnt lgkmcnt(0)
    s_barrier
    ds_read_b32 v{t1}, v{t3}
    s_waitcnt lgkmcnt(0)
    v_cmp_gt_u32 vcc, v{t1}, v{t2}
    v_cmp_eq_u32 s[36:37], v{t1}, v{t2}
    s_and_b32 s38, vcc_lo, 0xff
    s_bcnt1_i32_b32 s38, s38       ; rank
    """)
    st(5, False); st(5, True); st(0, 2); st(1, 2); st(2, 2); st(3, 2); st(4, 2); st(5, 2)
    a(f"""
    s_cmp_gt_u32 s38, 1
    s_cbranch_scc1 K2_pub0
    s_add_u32 s5, s4, {WS_H:#x}
    buffer_store_dwordx4 v[{PK+4}:{PK+7}], v{vWL}, s[8:11], s5 offen sc1
    s_add_u32 s5, s4, {WS_HN:#x}
    buffer_store_dwordx4 v[{ST+4}:{ST+7}], v{vWL}, s[8:11], s5 offen sc1
    v_cndmask_b32 v{ST+1}, v{t1}, 0, s[36:37]
    v_mov_b32 v{ST}, v{t2}
    s_lshl_b32 s5, s2, {G.KS_LOG}
    s_add_u32 s5, s5, {WS_KEY:#x}
    v_mov_b32 v{t0}, 0
    """)
    for mod in ("quad_perm:[1,0,3,2]", "quad_perm:[2,3,0,1]", "row_half_mirror"):
        a(f"v_max_u32_dpp v{ST+1}, v{ST+1}, v{ST+1} {mod} row_mask:0xf bank_mask:0xf")
    a("s_waitcnt vmcnt(0)")
    a.label("K2_pub0")
    a(f"""
    s_barrier
    s_cmp_lg_u32 s38, 0
    s_cbranch_scc1 K2_pub
    s_mov_b64 exec, 1
    buffer_store_dwordx2 v[{ST}:{ST+1}], v{t0}, s[8:11], s5 offen sc1
    s_mov_b64 exec, -1
    """)
    a.label("K2_pub")
    if 'amp' in dbg: a('s_memrealtime s[96:97]'); a('s_waitcnt lgkmcnt(0)')
    st(1, 2)
    def fin():
        if G.STAMP: a("s_waitcnt vmcnt(0)")
        stamp(a, 6)
        if G.STAMP: a("s_mov_b32 s91, s30")
        stamp_out(a, 1, 8, "s6", WF)
        a("s_endpgm")
    a(f"""
    s_cmp_ge_u32 s2, 144
    s_cbranch_scc1 K2_fin
    """)
    AFR = V
    KY = K; Y = K + 8; BX = V + 32; AC = K + 16
    a(f"""
    s_setprio 0
    v_bfe_u32 v{t0}, v0, 2, 2
    v_lshrrev_b32 v{t4}, 4, v0           ; g
    v_lshl_add_u32 v{t0}, v{t4}, 3, v{t0}
    v_lshlrev_b32 v{t0}, 5, v{t0}
    v_and_b32 v{t1}, 3, v0
    v_lshl_add_u32 v{t0}, v{t1}, 3, v{t0}
    v_add_u32 v{t0}, s74, v{t0}
    """)
    for sx in range(7):
        for half in range(2):
            d = AFR + 4 * sx + 2 * half
            a(f"ds_read_b64_tr_b16 v[{d}:{d+1}], v{t0} offset:{sx*1024 + half*128}")
    a(f"""
    v_and_b32 v{t3}, 1, v0
    v_lshlrev_b32 v{vPW}, 6, v{t3}
    v_lshl_add_u32 v{vPW}, v{t4}, 4, v{vPW}
    s_lshl_b32 s5, s6, 7
    s_add_u32 s5, s5, {L_RED:#x}
    v_add_u32 v{vPW}, s5, v{vPW}
    v_and_b32 v{vPR}, 31, v0
    v_lshlrev_b32 v{vPR}, 2, v{vPR}      ; (lane&31)*4
    s_cmp_lg_u32 s6, 0
    s_cbranch_scc1 K2_nokey
    v_lshlrev_b32 v{t1}, {G.KS_LOG}, v0
    s_mov_b32 s5, {WS_KEY:#x}
    s_add_u32 s79, s5, {64 << G.KS_LOG}
    s_add_u32 s80, s5, {128 << G.KS_LOG}
    s_add_u32 s81, s5, {192 << G.KS_LOG}
    s_mov_b32 s36, 0
    """)
    a.label("K2_kpoll")
    a(f"""
    buffer_load_dwordx2 v[{KY}:{KY+1}], v{t1}, s[8:11], s5 offen sc1
    buffer_load_dwordx2 v[{KY+2}:{KY+3}], v{t1}, s[8:11], s79 offen sc1
    buffer_load_dwordx2 v[{KY+4}:{KY+5}], v{t1}, s[8:11], s80 offen sc1
    buffer_load_dwordx2 v[{KY+6}:{KY+7}], v{t1}, s[8:11], s81 offen sc1
    s_add_u32 s36, s36, 1
    s_waitcnt vmcnt(0)
    v_min3_u32 v{Y}, v{KY}, v{KY+1}, v{KY+2}
    v_min3_u32 v{Y+1}, v{KY+3}, v{KY+4}, v{KY+5}
    v_min3_u32 v{Y}, v{Y}, v{KY+6}, v{KY+7}
    v_min_u32 v{Y}, v{Y}, v{Y+1}
    v_cmp_eq_u32 vcc, 0, v{Y}
    s_cbranch_vccz K2_kok
    s_sleep {OPT.get('ksl', 2)}
    s_cmp_lt_u32 s36, 0x40000
    s_cbranch_scc1 K2_kpoll
    """)
    a.label("K2_kok")
    st(2, 2)
    if FS: a("s_mov_b32 s30, s36")
    B1, B2 = Y + 4, Y + 5
    a(f"""
    v_max_u32 v{B1}, v{KY}, v{KY+2}
    v_min_u32 v{B2}, v{KY}, v{KY+2}
    v_max3_u32 v{B2}, v{B2}, v{KY+1}, v{KY+3}
    v_max_u32 v{Y}, v{KY+4}, v{KY+6}
    v_min_u32 v{Y+1}, v{KY+4}, v{KY+6}
    v_max3_u32 v{Y+1}, v{Y+1}, v{KY+5}, v{KY+7}
    v_min_u32 v{Y+2}, v{B1}, v{Y}
    v_max_u32 v{B1}, v{B1}, v{Y}
    v_max3_u32 v{B2}, v{B2}, v{Y+1}, v{Y+2}
    v_mov_b32 v{Y}, v{B1}
    """)
    wave_max_u32(a, Y, Y + 1)
    a(f"""
    v_cmp_eq_u32 vcc, v{B1}, v{Y}
    v_cndmask_b32 v{B1}, v{B1}, v{B2}, vcc
    """)
    wave_max_u32(a, B1, Y + 1)
    a(f"""
    v_readfirstlane_b32 s40, v{Y}
    v_readfirstlane_b32 s41, v{B1}
    s_andn2_b32 s42, 0x7ff, s40
    s_andn2_b32 s43, 0x7ff, s41
    s_lshl_b32 s42, s42, 10
    s_lshl_b32 s43, s43, 10
    """)
    a.label("K2_nokey")
    a(f"""
    s_cmp_ge_u32 s2, 112
    s_cbranch_scc1 K2_down
    s_cmp_lg_u32 s6, 0
    s_cbranch_scc1 K2_up1
    s_add_u32 s36, s42, {WS_HN:#x}
    s_add_u32 s37, s43, {WS_HN:#x}
    buffer_load_dwordx4 v[{KY}:{KY+3}], v{vWL}, s[8:11], s36 offen sc1
    buffer_load_dwordx4 v[{KY+4}:{KY+7}], v{vWL}, s[8:11], s37 offen sc1
    s_waitcnt vmcnt(1)
    ds_write_b128 v{vWL}, v[{KY}:{KY+3}] offset:{L_XS}
    s_waitcnt vmcnt(0)
    ds_write_b128 v{vWL}, v[{KY+4}:{KY+7}] offset:{L_XS + 1040}
    """)
    a.label("K2_up1")
    st(3, 2)
    a(f"""
    v_mul_u32_u24 v{t0}, 1040, v{t3}
    v_lshl_add_u32 v{t0}, v{t4}, 4, v{t0}
    s_lshr_b32 s5, s6, 1
    s_lshl_b32 s5, s5, 8
    v_add_u32 v{t0}, s5, v{t0}
    s_waitcnt lgkmcnt(0)
    s_barrier
    """)
    for sx in range(4):
        a(f"ds_read_b128 v[{BX+4*sx}:{BX+4*sx+3}], v{t0} offset:{L_XS + 64*sx}")
    for sx in range(4):
        a(f"s_waitcnt lgkmcnt({3-sx})")
        c = "0" if sx == 0 else f"v[{AC}:{AC+3}]"
        a(f"v_mfma_f32_16x16x32_bf16 v[{AC}:{AC+3}], v[{AFR+4*sx}:{AFR+4*sx+3}], v[{BX+4*sx}:{BX+4*sx+3}], {c}")
    a(f"""
    ds_write_b128 v{vPW}, v[{AC}:{AC+3}]
    s_waitcnt lgkmcnt(0)
    s_barrier
    s_cmp_lg_u32 s6, 0
    s_cbranch_scc1 K2_fin
    """)
    def red_read():
        a(f"v_add_u32 v{t0}, {L_RED:#x}, v{vPR}")
        for k in range(4):
            a(f"ds_read2_b32 v[{KY+2*k}:{KY+2*k+1}], v{t0} offset0:{64*k} offset1:{64*k+32}")
        a("s_waitcnt lgkmcnt(0)")
        a(f"v_pk_add_f32 v[{KY}:{KY+1}], v[{KY}:{KY+1}], v[{KY+2}:{KY+3}]")
        a(f"v_pk_add_f32 v[{KY+4}:{KY+5}], v[{KY+4}:{KY+5}], v[{KY+6}:{KY+7}]")
        a(f"v_pk_add_f32 v[{KY}:{KY+1}], v[{KY}:{KY+1}], v[{KY+4}:{KY+5}]")
    st(4, 2)
    red_read()
    a(f"""
    v_cvt_pk_bf16_f32 v{KY}, 0, v{KY}
    v_cvt_pk_bf16_f32 v{KY+1}, 0, v{KY+1}
    """)
    sigmoid(a, KY + 2, KY, KY + 3)
    a(f"""
    v_mul_f32 v{KY}, v{KY}, v{KY+2}
    v_cvt_pk_bf16_f32 v{KY}, 0, v{KY}
    v_mul_f32 v{KY}, v{KY}, v{KY+1}
    v_cvt_pk_bf16_f32 v{KY}, 0, v{KY}
    v_or_b32 v{KY}, 1, v{KY}
    s_lshl_b32 s5, s76, 7
    s_add_u32 s5, s5, {WS_GU:#x}
    s_mov_b32 exec_hi, 0
    buffer_store_dword v{KY}, v{vPR}, s[8:11], s5 offen sc1
    s_mov_b64 exec, -1
    s_branch K2_fin
    """)
    a.label("K2_down")
    HH, NN, GT, OO = Y + 6, Y + 7, AC + 4, AC + 5
    a(f"""
    s_cmp_lg_u32 s6, 0
    s_cbranch_scc1 K2_dn1
    v_bfe_u32 v{t0}, v0, 4, 1
    v_cmp_eq_u32 vcc, 0, v{t0}
    v_mov_b32 v{t0}, s43
    v_mov_b32 v{t1}, s42
    v_cndmask_b32 v{OO}, v{t0}, v{t1}, vcc
    v_and_b32 v{t0}, 15, v0
    v_lshl_add_u32 v{OO}, v{t0}, 1, v{OO}
    s_lshl_b32 s44, s77, 5
    s_add_u32 s36, s44, {WS_H:#x}
    s_add_u32 s37, s44, {WS_HN:#x}
    buffer_load_ushort v{HH}, v{OO}, s[8:11], s36 offen sc1
    buffer_load_ushort v{NN}, v{OO}, s[8:11], s37 offen sc1
    v_mov_b32 v{t0}, s41
    v_mov_b32 v{t1}, s40
    v_cndmask_b32 v{GT}, v{t0}, v{t1}, vcc
    v_and_b32 v{GT}, 0xffff0000, v{GT}
    v_ashrrev_i32 v{t0}, 31, v{GT}
    v_not_b32 v{t0}, v{t0}
    v_or_b32 v{t0}, 0x80000000, v{t0}
    v_xor_b32 v{GT}, v{GT}, v{t0}
    v_and_b32 v{GT}, 0xffff0000, v{GT}
    """)
    sigmoid(a, GT, GT, t0)
    a(f"v_cvt_pk_bf16_f32 v{GT}, 0, v{GT}")
    a.label("K2_dn1")
    a(f"""
    s_mul_i32 s5, s6, 1792
    s_add_u32 s5, s5, {WS_GU:#x}
    v_min_u32 v{t1}, 47, v0
    v_lshlrev_b32 v{t1}, 4, v{t1}
    s_lshl_b32 s37, s6, 10
    s_add_u32 s37, s37, {L_GB:#x}
    v_lshrrev_b32 v{t0}, 3, v0
    v_lshlrev_b32 v{vPL}, 5, v{t0}
    v_and_b32 v{t0}, 3, v0
    v_lshl_add_u32 v{vPL}, v{t0}, 3, v{vPL}
    v_bfe_u32 v{t0}, v0, 2, 1
    v_mul_u32_u24 v{t0}, 464, v{t0}
    v_add3_u32 v{vPL}, v{vPL}, v{t0}, s37
    v_mul_u32_u24 v{vOW}, 464, v{t3}
    v_lshl_add_u32 v{vOW}, v{t4}, 4, v{vOW}
    v_add_u32 v{vOW}, s37, v{vOW}
    s_mov_b32 s45, 0x07060302
    s_mov_b32 s36, 0
    """)
    a.label("K2_gpoll")
    a(f"""
    buffer_load_dwordx4 v[{KY}:{KY+3}], v{vWL}, s[8:11], s5 offen sc1
    buffer_load_dwordx4 v[{KY+4}:{KY+7}], v{t1}, s[8:11], s5 offen offset:1024 sc1
    s_add_u32 s36, s36, 1
    s_waitcnt vmcnt(0)
    v_min3_u32 v{Y}, v{KY}, v{KY+1}, v{KY+2}
    v_min3_u32 v{Y+1}, v{KY+3}, v{KY+4}, v{KY+5}
    v_min3_u32 v{Y}, v{Y}, v{KY+6}, v{KY+7}
    v_min_u32 v{Y}, v{Y}, v{Y+1}
    v_cmp_eq_u32 vcc, 0, v{Y}
    s_cbranch_vccz K2_gok
    s_sleep {OPT.get('gsl', 2)}
    s_cmp_lt_u32 s36, 0x40000
    s_cbranch_scc1 K2_gpoll
    """)
    a.label("K2_gok")
    st(4, 2)
    a(f"""
    v_perm_b32 v{Y}, v{KY+1}, v{KY}, s45
    v_perm_b32 v{Y+1}, v{KY+3}, v{KY+2}, s45
    v_perm_b32 v{Y+2}, v{KY+5}, v{KY+4}, s45
    v_perm_b32 v{Y+3}, v{KY+7}, v{KY+6}, s45
    ds_write_b64 v{vPL}, v[{Y}:{Y+1}]
    s_mov_b32 exec_hi, 0xffff
    ds_write_b64 v{vPL}, v[{Y+2}:{Y+3}] offset:256
    s_mov_b64 exec, -1
    """)
    for sx in range(7):
        a(f"ds_read_b128 v[{BX+4*sx}:{BX+4*sx+3}], v{vOW} offset:{64*sx}")
    for sx in range(7):
        a(f"s_waitcnt lgkmcnt({6-sx})")
        c = "0" if sx == 0 else f"v[{AC}:{AC+3}]"
        a(f"v_mfma_f32_16x16x32_bf16 v[{AC}:{AC+3}], v[{AFR+4*sx}:{AFR+4*sx+3}], v[{BX+4*sx}:{BX+4*sx+3}], {c}")
    a(f"""
    ds_write_b128 v{vPW}, v[{AC}:{AC+3}]
    s_waitcnt lgkmcnt(0)
    s_barrier
    s_cmp_lg_u32 s6, 0
    s_cbranch_scc1 K2_fin
    """)
    red_read()
    a(f"""
    v_add_f32 v{KY}, v{KY}, v{KY+1}
    v_lshlrev_b32 v{HH}, 16, v{HH}
    v_lshlrev_b32 v{NN}, 16, v{NN}
    v_cvt_pk_bf16_f32 v{KY}, 0, v{KY}
    v_mul_f32 v{KY}, v{KY}, v{GT}
    v_cvt_pk_bf16_f32 v{KY}, 0, v{KY}
    v_add_f32 v{KY}, v{KY}, v{NN}
    v_cvt_pk_bf16_f32 v{KY}, 0, v{KY}
    v_add_f32 v{KY}, v{KY}, v{HH}
    v_cvt_pk_bf16_f32 v{KY}, v{KY}, v{KY}
    s_mov_b32 exec_hi, 0
    buffer_store_short v{KY}, v{OO}, s[20:23], s44 offen sc1
    s_mov_b64 exec, -1
    """)
    a.label("K2_fin")
    if 'amp' in dbg:
        q = int(OPT['amp'])
        expr = {0: None, 1: ("s83", "s82"), 2: ("s90", "s83"), 3: ("s96", "s90"), 4: ("s84", "s82"), 5: ("s94", "s90")}[q]
        a(f"""
        s_or_b32 s5, s2, s6
        s_cmp_lg_u32 s5, 0
        s_cbranch_scc1 K2_amp_end
        v_mov_b32 v{S1+4}, 0
        s_mov_b32 s5, {WS_SEL:#x}
        buffer_load_dwordx4 v[{S1}:{S1+3}], v{S1+4}, s[8:11], s5 offen
        s_waitcnt vmcnt(0)
        v_readfirstlane_b32 s82, v{S1}
        v_readfirstlane_b32 s83, v{S1+1}
        v_readfirstlane_b32 s84, v{S1+2}
        """)
        if expr: a(f"s_sub_u32 s85, {expr[0]}, {expr[1]}")
        else: a("s_mov_b32 s85, 0")
        a(f"""
        s_min_u32 s85, s85, 5000
        s_lshl_b32 s85, s85, 1
        s_add_u32 s85, s85, 600
        s_add_u32 s85, s85, s96
        """)
        a.label("K2_amp")
        a(f"""
        s_memrealtime s[86:87]
        s_waitcnt lgkmcnt(0)
        s_sub_u32 s86, s86, s85
        s_cmp_lt_i32 s86, 0
        s_cbranch_scc1 K2_amp
        """)
        a.label("K2_amp_end")
    if G.STAMP: a("s_waitcnt vmcnt(0)")
    stamp(a, 6)
    if G.STAMP: a("s_mov_b32 s91, s30")
    stamp_out(a, 1, 8, "s6", WF)
    dstamp(a, 1, True, 240)
    a.label("K2_end")
    a("s_endpgm")
    for k, off in enumerate(spins):
        a.label(f"K2_spin{k}")
        a(f"""
        s_sleep 1
        ds_read_b32 v{vFV}, v{vFR} offset:{off}
        s_waitcnt lgkmcnt(0)
        v_cmp_gt_u32 vcc, s29, v{vFV}
        s_cbranch_vccnz K2_spin{k}
        s_branch K2_back{k}
        """)
    n = a.fix()
    if G.ALIGN: print('align', align8(a))
    return a.text(), 256, L_TOTAL
```

```python
import re

TRANS = ("v_exp_f32", "v_log_f32", "v_rcp_f32", "v_rsq_f32", "v_sqrt_f32", "v_sin_f32", "v_cos_f32",
         "v_exp_f16", "v_rcp_iflag_f32")

def regs_of(tok):
    tok = tok.strip()
    tok = re.sub(r"^-", "", tok)
    tok = re.sub(r"^abs\((.*)\)$", r"\1", tok)
    tok = tok.strip("|")
    m = re.fullmatch(r"([vsa])(\d+)", tok)
    if m:
        return {(m.group(1), int(m.group(2)))}
    m = re.fullmatch(r"([vsa])\[(\d+):(\d+)\]", tok)
    if m:
        return {(m.group(1), i) for i in range(int(m.group(2)), int(m.group(3)) + 1)}
    if tok in ("vcc", "vcc_lo", "vcc_hi"):
        return {("s", "vcc")}
    if tok in ("exec", "exec_lo", "exec_hi"):
        return {("s", "exec")}
    if tok == "m0":
        return {("s", "m0")}
    return set()

class Ins:
    def __init__(self, text):
        self.text = text
        body = text.split(";")[0].strip()
        parts = body.split(None, 1)
        self.op = parts[0]
        rest = parts[1] if len(parts) > 1 else ""
        ops = [o.strip() for o in re.split(r",(?![^\[]*\])", rest)] if rest else []
        mods = ""
        if ops:
            last = ops[-1].split(None, 1)
            ops[-1] = last[0]
            mods = last[1] if len(last) > 1 else ""
        self.ops, self.mods = ops, mods
        op = self.op
        self.is_mfma = op.startswith(("v_mfma", "v_smfmac"))
        self.is_valu = op.startswith("v_") and not self.is_mfma
        self.is_salu = op.startswith("s_")
        self.is_vmem = op.startswith(("buffer_", "global_", "flat_"))
        self.is_ds = op.startswith("ds_")
        self.is_trans = op.replace("_e32", "").replace("_e64", "") in TRANS
        self.is_dpp = ("dpp" in op) or ("row_" in mods) or ("quad_perm" in mods) or ("wave_" in mods)
        self.is_sdwa = "sdwa" in op
        self.is_perml = op.startswith("v_permlane")
        self.is_lds_dma = self.is_vmem and (" lds" in " " + mods or "load_lds" in op)
        R = [regs_of(o) for o in ops]
        self.defs, self.uses = set(), set()
        self.srcC = set(); self.srcAB = set()
        if self.is_mfma:
            if op.startswith("v_smfmac"):
                self.defs = R[0]; self.srcAB = R[1] | R[2] | R[3]; self.srcC = R[0]
            else:
                self.defs = R[0]; self.srcAB = R[1] | R[2]; self.srcC = R[3]
            self.uses = self.srcAB | self.srcC
            self.passes = 8 if "32x32" in op else 4
        elif self.is_valu:
            if op.startswith("v_cmp"):
                self.defs = R[0]; self.uses = set().union(*R[1:])
            elif self.is_perml and "swap" in op:
                self.defs = R[0] | R[1]; self.uses = R[0] | R[1]
            elif op.startswith(("v_add_co", "v_sub_co", "v_addc_co", "v_subb_co", "v_subrev_co")):
                self.defs = R[0] | R[1]; self.uses = set().union(*R[2:])
            elif op in ("v_nop",):
                pass
            else:
                self.defs = R[0]; self.uses = set().union(*R[1:]) if len(R) > 1 else set()
                if op.startswith(("v_fmac", "v_dot2c", "v_pk_fmac")) or "UNUSED_PRESERVE" in mods or self.is_dpp or op.startswith("v_writelane"):
                    self.uses |= R[0]
        elif self.is_vmem:
            if self.is_lds_dma:
                self.uses = set().union(*R) | {("s", "m0")}
            elif "store" in op or ("atomic" in op):
                self.uses = set().union(*R)
                if op.startswith("buffer_"):
                    self.store_data = R[0]
                else:
                    self.store_data = R[1]
                if "atomic" in op and "sc0" in mods:
                    self.defs = R[0]
            elif op.startswith(("buffer_inv", "buffer_wbl2")):
                pass
            else:
                self.defs = R[0]; self.uses = set().union(*R[1:])
        elif self.is_ds:
            if op.startswith(("ds_read", "ds_bpermute", "ds_permute", "ds_swizzle")) or "_rtn" in op:
                self.defs = R[0]; self.uses = set().union(*R[1:])
            else:
                self.uses = set().union(*R)
        elif self.is_salu:
            if op.startswith(("s_cmp", "s_cbranch", "s_branch", "s_waitcnt", "s_nop", "s_barrier", "s_endpgm", "s_setprio", "s_sleep", "s_bitcmp")):
                self.uses = set().union(*R) if R else set()
            else:
                self.defs = R[0] if R else set(); self.uses = set().union(*R[1:]) if len(R) > 1 else set()
                if "saveexec" in op:
                    self.defs |= {("s", "exec")}
        self.wide_store = self.is_vmem and ("store" in op) and op.endswith(("x3", "x4"))

    def states(self):
        if self.op == "s_nop":
            return int(self.ops[0], 0) + 1
        return 1

def need(p, c):
    n = 0
    vd = {r for r in p.defs if r[0] in "va"}
    sd = {r for r in p.defs if r[0] == "s"}
    if p.is_valu:
        if c.is_mfma and (vd & c.uses): n = max(n, 2)
        if c.is_valu:
            if p.is_trans and not c.is_trans and (vd & c.uses): n = max(n, 1)
            if (c.is_perml or c.is_dpp) and (vd & c.uses): n = max(n, 2)
            if c.op.startswith(("v_readlane", "v_readfirstlane")) and (vd & c.uses): n = max(n, 1)
            if (p.is_sdwa or "op_sel" in p.mods and not p.op.startswith("v_pk")) and (vd & (c.uses | c.defs)): n = max(n, 1)
            if sd & c.uses:
                n = max(n, 4 if c.op.startswith(("v_readlane", "v_writelane")) else 2)
            if ("s", "vcc") in sd and c.op.startswith(("v_cndmask", "v_addc", "v_subb", "v_div_fmas")): n = max(n, 4 if "div_fmas" in c.op else 2)
        if c.is_vmem and (sd & c.uses): n = max(n, 5)
        if p.op.startswith("v_dot") and (vd & (c.uses | c.defs)) and (c.is_valu or c.is_mfma or c.is_vmem or c.is_ds):
            same = (c.op == p.op)
            if same and len(c.ops) >= 4 and regs_of(c.ops[3]) == vd and not (vd & (regs_of(c.ops[1]) | regs_of(c.ops[2]))):
                pass
            else:
                n = max(n, 3)
    if p.is_mfma:
        big = p.passes == 8
        if c.is_mfma:
            if vd & c.srcAB: n = max(n, 12 if big else 8)
            if vd & c.srcC:
                if not (c.srcC == vd and c.passes == p.passes): n = max(n, 10 if big else 6)
            elif vd & c.defs: n = max(n, 12 if big else 8)
        elif c.is_valu or c.is_vmem or c.is_ds:
            if vd & (c.uses | c.defs): n = max(n, 12 if big else 8)
        if c.is_valu and (p.srcC & c.defs): n = max(n, 7 if big else 3)
        if (c.is_vmem or c.is_ds) and (p.srcC & c.defs): n = max(n, 7 if big else 3)
    if p.is_salu and ("s", "m0") in sd and c.is_lds_dma: n = max(n, 1)
    if p.wide_store and (p.store_data & c.defs): n = max(n, 2)
    return n

class Asm:
    def __init__(self):
        self.lines = []
    def __call__(self, text):
        for ln in text.strip("\n").split("\n"):
            s = ln.strip()
            if not s or s.startswith(";"):
                continue
            if s.endswith(":") or s.startswith("."):
                self.lines.append(s)
            else:
                self.lines.append(Ins(s))
    def label(self, name):
        self.lines.append(name + ":")
    def raw(self, s):
        self.lines.append(s)

    def fix(self, verbose=False):
        WIN = 14
        changed = True
        total = 0
        while changed:
            changed = False
            labels = {l[:-1]: i for i, l in enumerate(self.lines) if isinstance(l, str) and l.endswith(":")}
            preds = {}
            for i, l in enumerate(self.lines):
                if isinstance(l, Ins) and l.op.startswith(("s_cbranch", "s_branch")):
                    preds.setdefault(labels[l.ops[0]], []).append(i)
            def walk_back(i, dist, c, seen):
                miss = 0
                j = i - 1
                while j >= 0 and dist < WIN:
                    l = self.lines[j]
                    if isinstance(l, str):
                        if l.endswith(":"):
                            for b in preds.get(j, []):
                                if (b, dist) not in seen:
                                    seen.add((b, dist))
                                    miss = max(miss, walk_back(b + 1, dist, c, seen))
                        j -= 1
                        continue
                    if l.op in ("s_branch", "s_endpgm") and j != i - 1:
                        break
                    if l.op in ("s_branch", "s_endpgm") and j == i - 1 and not getattr(walk_back, "via", False):
                        pass
                    miss = max(miss, need(l, c) - dist)
                    dist += l.states()
                    j -= 1
                return miss
            for i, l in enumerate(self.lines):
                if isinstance(l, Ins):
                    m = walk_back(i, 0, l, set())
                    if m > 0:
                        if verbose: print("nop", m, "before", l.text)
                        self.lines.insert(i, Ins(f"s_nop {m-1}"))
                        total += m
                        changed = True
                        break
        return total

    def text(self):
        out = []
        for l in self.lines:
            out.append(("    " + l.text) if isinstance(l, Ins) else l)
        return "\n".join(out) + "\n"

def kernel_header(name):
    return f""".text
.globl {name}
.p2align 8
.type {name},@function
{name}:
"""

def kernel_desc(name, vgpr, sgpr=102, accum=None):
    accum = accum if accum is not None else (vgpr + 3) // 4 * 4
    return f""".section .rodata,"a"
.p2align 6
.amdhsa_kernel {name}
  .amdhsa_next_free_vgpr {vgpr}
  .amdhsa_next_free_sgpr {sgpr}
  .amdhsa_accum_offset {accum}
  .amdhsa_group_segment_fixed_size 0
  .amdhsa_kernarg_size 104
  .amdhsa_user_sgpr_count 2
  .amdhsa_user_sgpr_kernarg_segment_ptr 1
  .amdhsa_system_sgpr_workgroup_id_x 1
  .amdhsa_float_denorm_mode_32 3
.end_amdhsa_kernel
"""

import subprocess, tempfile, os
E64_OK = ("v_exp_f32", "v_mov_b32", "v_add_f32", "v_sub_f32", "v_mul_f32", "v_max_f32", "v_min_f32", "v_rcp_f32", "v_sqrt_f32",
          "v_add_u32", "v_sub_u32", "v_and_b32", "v_or_b32", "v_xor_b32", "v_lshlrev_b32", "v_lshrrev_b32", "v_max_u32", "v_min_u32",
          "v_mul_u32_u24", "v_ashrrev_i32", "v_not_b32", "v_fmac_f32")

def sizes_of(a, extra_labels=""):
    src = '.amdgcn_target "amdgcn-amd-amdhsa--gfx950"\n.text\nk1_kernel:\n' + \
          "\n".join(l for l in a.text().split("\n") if not l.startswith(".p2align")) + "\nK_all_end:\n"
    d = tempfile.mkdtemp()
    open(d + "/t.s", "w").write(src)
    r = subprocess.run(["clang", "-x", "assembler", "-target", "amdgcn-amd-amdhsa", "-mcpu=gfx950", "-c", d + "/t.s", "-o", d + "/t.o"], capture_output=True, text=True)
    assert r.returncode == 0, r.stderr
    out = subprocess.run(["llvm-objdump", "-d", "--mcpu=gfx950", d + "/t.o"], capture_output=True, text=True).stdout
    sz = []
    for ln in out.split("\n"):
        m = re.search(r"//\s*[0-9A-F]{12}:\s*((?:[0-9A-F]{8}\s*)+)", ln)
        if m: sz.append(4 * len(m.group(1).split()))
    return sz

def align8(a, min_run=6):
    sz = sizes_of(a)
    ins = [i for i, l in enumerate(a.lines) if isinstance(l, Ins)]
    assert len(sz) == len(ins), (len(sz), len(ins))
    size = dict(zip(ins, sz))
    out = []; off = 0; widened = padded = 0
    osz = []
    n = len(a.lines)
    for i, l in enumerate(a.lines):
        if isinstance(l, str):
            if l.startswith(".p2align"):
                al = 1 << int(l.split()[1]); off = (off + al - 1) // al * al
            out.append(l); osz.append(0); continue
        s = size[i]
        if s == 8 and off % 8 == 4:
            j = len(out) - 1; done = False; o2 = off
            while j >= 0 and (isinstance(out[j], str) and not out[j].startswith(".p2align") or (isinstance(out[j], Ins) and osz[j] == 4)):
                p = out[j]; o2 -= osz[j]
                if isinstance(p, Ins) and p.op in E64_OK and not p.is_dpp and o2 % 8 == 0:
                    out[j] = Ins(p.text.replace(p.op, p.op + "_e64", 1)); osz[j] = 8; off += 4; widened += 1; done = True
                    break
                j -= 1
            if not done:
                run = 0; k = i
                while k < n and (isinstance(a.lines[k], str) or size[k] == 8):
                    if isinstance(a.lines[k], Ins): run += 1
                    k += 1
                if run >= min_run:
                    out.append(Ins("s_nop 0")); osz.append(4); off += 4; padded += 1
        out.append(l); osz.append(s); off += s
    a.lines = out
    return widened, padded
```

```python
from gen import *
import gen as G

L_KV = 65536; L_WOT = 81920; L_X = 81920 + 2048; L1_TOTAL = L_X + 65536

def gen_k1(dbg=''):
    a = Asm()
    X = 32
    ACC = 96
    AF = 116
    T = 148
    a(f"""
    s_cmp_ge_u32 s2, 256
    s_cbranch_scc1 K1_end
    """)
    stamp(a, 0)
    if ('leak' in dbg or 'amp' in dbg): a('s_memrealtime s[90:91]')
    dstamp(a, 0, False, 200)
    a(f"""
    s_load_dwordx8 s[24:31], s[0:1], 0
    s_load_dwordx2 s[44:45], s[0:1], 32
    s_load_dwordx2 s[32:33], s[0:1], 96
    s_and_b32 s3, s2, 7
    s_lshr_b32 s4, s2, 3
    s_and_b32 s5, s4, 7
    s_lshr_b32 s4, s4, 3           ; tb & 3
    s_lshl_b32 s3, s3, 2
    s_add_u32 s3, s3, s4
    v_lshrrev_b32 v1, 6, v0
    v_and_b32 v2, 63, v0           ; lane
    v_readfirstlane_b32 s6, v1     ; wave
    v_and_b32 v3, 15, v2           ; l & 15
    v_lshrrev_b32 v4, 4, v2        ; g
    v_bfe_u32 v18, v2, 2, 2        ; r'
    v_and_b32 v19, 3, v2           ; c'
    v_lshl_add_u32 v20, v4, 3, v18 ; 8g + r'
    v_lshlrev_b32 v17, 5, v20
    v_lshl_add_u32 v17, v19, 3, v17
    s_cmp_ge_u32 s6, 4
    s_cbranch_scc1 K1_loader
    s_lshl_b32 s7, s3, 6
    s_lshl_b32 s34, s6, 4
    s_add_u32 s7, s7, s34
    v_add_u32 v5, s7, v3           ; token
    v_lshrrev_b32 v6, 2, v2        ; row
    v_lshrrev_b32 v7, 4, v2
    v_and_b32 v7, 2, v7
    v_xor_b32 v7, v7, v19
    v_lshlrev_b32 v6, 10, v6
    v_lshl_add_u32 v6, v7, 4, v6
    s_lshl_b32 s63, s6, 14
    s_add_u32 s63, s63, {L_X}
    s_lshl_b32 s64, s7, 10
    s_lshl_b32 s62, s5, 7
    s_waitcnt lgkmcnt(0)
    """)
    stamp(a, 1)
    srd(a, 8, 24, 25, 0x200000)
    def xdma(u):
        if u % 2 == 0:
            a(f"""
            s_add_u32 m0, s63, {u*1024}
            s_add_u32 s48, s62, s64
            buffer_load_dwordx4 v6, s[8:11], s48 offen lds
            """)
        else:
            a(f"""
            s_add_u32 m0, s63, {u*1024 - 64}
            s_add_u32 s62, s62, 128
            buffer_load_dwordx4 v6, s[8:11], s48 offen offset:64 lds
            s_and_b32 s62, s62, 0x3ff
            """)
    for u in range(10): xdma(u)
    srd(a, 20, 32, 33, WS_SIZE)
    ONE = 24; SEL = 8
    SEL = 152
    a(f"""
    v_lshlrev_b32 v21, 7, v20
    v_lshl_add_u32 v21, v19, 3, v21   ; row*128 + 8c'
    v_lshrrev_b32 v22, 1, v18
    v_and_b32 v23, 1, v4
    v_lshl_or_b32 v22, v23, 1, v22 ; h
    """)
    for t in range(4):
        a(f"v_xor_b32 v23, {t}, v22")
        a(f"v_lshl_add_u32 v{13+t}, v23, 5, v21")
    a(f"""
    v_lshlrev_b32 v10, 6, v3
    v_lshrrev_b32 v7, 2, v3
    v_and_b32 v7, 2, v7
    v_xor_b32 v7, v7, v4
    v_lshl_add_u32 v10, v7, 4, v10
    v_add_u32 v10, s63, v10
    v_and_b32 v7, 1, v4
    v_lshlrev_b32 v7, 7, v7
    v_add_u32 v17, {L_KV}, v17
    v_xor_b32 v12, v17, v7
    v_xor_b32 v17, 128, v12
    """)
    for r in range(4): a(f"v_mov_b32 v{ONE+r}, 0x3f803f80")
    a(f"""
    v_and_b32 v7, 1, v2
    v_lshlrev_b32 v7, 4, v7
    v_mov_b32 v8, 0x3f80
    v_lshlrev_b32 v7, v7, v8
    v_cmp_eq_u32 s[36:37], v18, v4 ; g == (l&15)>>2
    v_bfe_u32 v8, v2, 1, 1
    v_cmp_eq_u32 vcc, 0, v8
    s_and_b64 s[38:39], s[36:37], vcc
    s_andn2_b64 s[40:41], s[36:37], vcc
    v_mov_b32 v{SEL}, 0
    v_mov_b32 v{SEL+1}, 0
    v_cndmask_b32 v{SEL+2}, 0, v7, s[38:39]
    v_cndmask_b32 v{SEL+3}, 0, v7, s[40:41]
    v_mov_b32 v{SEL+4}, 0
    v_mov_b32 v{SEL+5}, 0
    """)
    for u in range(10, 16): xdma(u)
    stamp(a, 2)
    if 'k1nb' not in dbg: a("s_barrier")
    stamp(a, 3)
    if ('leak' in dbg or 'amp' in dbg): a('s_memrealtime s[94:95]')
    m16 = "v_mfma_f32_16x16x32_bf16"
    SUM = ACC; GR = ACC + 4; NM = 220
    def stat(u):
        xs = f"v[{X+4*u}:{X+4*u+3}]"
        a(f"{m16} v[{SUM}:{SUM+3}], v[{ONE}:{ONE+3}], {xs}, " + ("0" if u == 0 else f"v[{SUM}:{SUM+3}]"))
        a(f"{m16} v[{GR}:{GR+3}], {xs}, {xs}, " + ("0" if u == 0 else f"v[{GR}:{GR+3}]"))
    for u in range(0, 16, 2):
        a(f"s_waitcnt vmcnt({14-u})")
        a(f"ds_read_b128 v[{X+4*u}:{X+4*u+3}], v10 offset:{1024*u}")
        a(f"ds_read_b128 v[{X+4*u+4}:{X+4*u+7}], v10 offset:{1024*u+1024}")
        if u >= 4:
            a("s_waitcnt lgkmcnt(4)")
            stat(u - 4); stat(u - 3)
    a("s_waitcnt lgkmcnt(2)"); stat(12); stat(13)
    a("s_waitcnt lgkmcnt(0)"); stat(14); stat(15)
    stamp(a, 4)
    a(f"""
    v_and_b32 v7, 1, v2
    v_cmp_eq_u32 s[42:43], 1, v7
    v_cndmask_b32 v8, v{GR}, v{GR+1}, s[42:43]
    v_cndmask_b32 v9, v{GR+2}, v{GR+3}, s[42:43]
    v_cndmask_b32 v8, 0, v8, s[38:39]
    v_cndmask_b32 v26, v8, v9, s[40:41]
    """)
    for w in (16, 32):
        sum_swap(a, 26, 28, w)
    ln_scalars(a, SUM, 26, 28, 30, 27, 29)
    for r in range(4): a(f"v_sub_f32 v{NM+r}, 0, v28")
    NB = 4
    def sub(u):
        d = AF + 8 * (u % NB)
        xs = f"v[{X+4*u}:{X+4*u+3}]"
        a(f"{m16} v[{d}:{d+3}], v[{SEL+2}:{SEL+5}], {xs}, v[{NM}:{NM+3}]")
        a(f"{m16} v[{d+4}:{d+7}], v[{SEL}:{SEL+3}], {xs}, v[{NM}:{NM+3}]")
    sub(0); sub(1)
    def ln_step(u):
        d = AF + 8 * (u % NB); L = []
        for r in range(4): L.append(f"v_cvt_pk_bf16_f32 v{d+r}, 0, v{d+r}")
        if u + 2 < 16:
            dd = AF + 8 * ((u + 2) % NB); xs = f"v[{X+4*(u+2)}:{X+4*(u+2)+3}]"
            L.append(f"{m16} v[{dd}:{dd+3}], v[{SEL+2}:{SEL+5}], {xs}, v[{NM}:{NM+3}]")
        for r in range(4, 8): L.append(f"v_cvt_pk_bf16_f32 v{d+r}, 0, v{d+r}")
        for r in range(0, 8, 2): L.append(f"v_pk_mul_f32 v[{d+r}:{d+r+1}], v[{d+r}:{d+r+1}], v[30:31] op_sel_hi:[1,0]")
        if u + 2 < 16:
            L.append(f"{m16} v[{dd+4}:{dd+7}], v[{SEL}:{SEL+3}], {xs}, v[{NM}:{NM+3}]")
        for r in range(4): L.append(f"v_cvt_pk_bf16_f32 v{X+4*u+r}, v{d+2*r}, v{d+2*r+1}")
        return L
    LEAD = int(dict(x.split('=') for x in dbg.split(',') if '=' in x).get('lead', 16))
    for u in range(LEAD):
        for ins in ln_step(u): a(ins)
    a("s_barrier")
    stamp(a, 5)
    RG = 160
    def rd(s, t):
        for half in range(2):
            d = RG + 20 * (s % 3) + 4 * t + 2 * half
            if t < 4: a(f"ds_read_b64_tr_b16 v[{d}:{d+1}], v{13+t} offset:{s*4096 + half*512}")
            else:     a(f"ds_read_b64_tr_b16 v[{d}:{d+1}], v{17 if half else 12} offset:{s*1024}")
    for t in range(5): rd(0, t)
    for t in range(5): rd(1, t)
    for s in range(16):
        L = ln_step(s + LEAD) if s + LEAD < 16 else []
        a(f"s_waitcnt lgkmcnt({10 if s < 15 else 0})")
        for t in range(5):
            d = RG + 20 * (s % 3) + 4 * t
            c = "0" if s == 0 else f"v[{ACC+4*t}:{ACC+4*t+3}]"
            a(f"{m16} v[{ACC+4*t}:{ACC+4*t+3}], v[{d}:{d+3}], v[{X+4*s}:{X+4*s+3}], {c}")
            if s + 2 < 16: rd(s + 2, t)
            n = (len(L) + (4 - t)) // (5 - t)
            for ins in L[:n]: a(ins)
            L = L[n:]
    a(f"""
    s_lshl_b32 s35, s5, 10
    v_lshrrev_b32 v7, 3, v5
    v_lshlrev_b32 v7, 13, v7
    v_and_b32 v8, 7, v5
    v_lshl_add_u32 v7, v8, 4, v7
    v_lshrrev_b32 v9, 1, v4
    v_lshl_add_u32 v7, v9, 9, v7
    v_and_b32 v11, 1, v4
    v_lshl_add_u32 v7, v11, 7, v7
    """)
    for tp in range(2):
        for t in (2 * tp, 2 * tp + 1):
            for r in range(4): a(f"v_cvt_pk_bf16_f32 v{ACC+4*t+r}, 0, v{ACC+4*t+r}")
            for r in range(4): a(f"v_mul_f32 v{ACC+4*t+r}, {f2u(0.25 * 1.4426950408889634):#x}, v{ACC+4*t+r}")
            a(f"v_cvt_pk_bf16_f32 v{AF+2*t}, v{ACC+4*t}, v{ACC+4*t+1}")
            a(f"v_cvt_pk_bf16_f32 v{AF+2*t+1}, v{ACC+4*t+2}, v{ACC+4*t+3}")
        b = AF + 4 * tp
        a(f"v_permlane16_swap_b32 v{b}, v{b+2}")
        a(f"v_permlane16_swap_b32 v{b+1}, v{b+3}")
        a(f"buffer_store_dwordx4 v[{b}:{b+3}], v7, s[20:23], s35 offen offset:{256*tp}")
    KV = ACC + 16
    a(f"""
    s_cmp_gt_u32 s5, 1
    s_cbranch_scc1 K1_q
    v_cvt_pk_bf16_f32 v{T}, v{KV}, v{KV+1}
    v_cvt_pk_bf16_f32 v{T+1}, v{KV+2}, v{KV+3}
    s_lshr_b32 s35, s7, 5
    s_mul_i32 s35, s35, {TS}
    s_add_u32 s35, s35, {WS_KV:#x}
    s_cmp_eq_u32 s5, 0
    s_cbranch_scc0 K1_v
    v_and_b32 v8, 31, v5
    v_lshlrev_b32 v8, 4, v8
    v_lshl_add_u32 v8, v9, 9, v8
    v_lshl_add_u32 v8, v11, 3, v8
    buffer_store_dwordx2 v[{T}:{T+1}], v8, s[20:23], s35 offen
    s_branch K1_q
    """)
    a.label("K1_v")
    a(f"""
    s_and_b32 s36, s6, 1
    s_mul_i32 s36, s36, 544
    s_add_u32 s35, s35, s36
    v_lshrrev_b32 v8, 3, v3
    v_mul_u32_u24 v8, 272, v8
    v_and_b32 v9, 7, v3
    v_lshl_add_u32 v8, v9, 1, v8
    v_mov_b32 v9, 0x3f80
    buffer_store_short v9, v8, s[20:23], s35 offen offset:{1024 + 256}
    v_lshl_add_u32 v8, v4, 6, v8
    buffer_store_short v{T}, v8, s[20:23], s35 offen offset:1024
    buffer_store_short_d16_hi v{T}, v8, s[20:23], s35 offen offset:1040
    buffer_store_short v{T+1}, v8, s[20:23], s35 offen offset:1056
    buffer_store_short_d16_hi v{T+1}, v8, s[20:23], s35 offen offset:1072
    """)
    a.label("K1_q")
    if G.STAMP: a("s_waitcnt vmcnt(0)")
    stamp(a, 6)
    stamp_out(a, 0, 20, "s6", 158)
    if ('leak' in dbg or 'amp' in dbg):
        a(f"""
        s_waitcnt vmcnt(0)
        s_memrealtime s[92:93]
        s_waitcnt lgkmcnt(0)
        s_cmp_lg_u32 s2, 0
        s_cbranch_scc1 K1_leak
        v_mov_b32 v40, s90
        v_mov_b32 v41, s92
        v_mov_b32 v42, s94
        v_mov_b32 v43, 0
        s_mov_b32 s48, {WS_SEL:#x}
        s_mov_b64 exec, 1
        buffer_store_dwordx4 v[40:43], v43, s[20:23], s48 offen
        """)
        a.label("K1_leak")
    dstamp(a, 0, True, 200)
    a("s_endpgm")
    a.label("K1_loader")
    if 'noldprio' not in dbg: a("s_setprio 3")
    if 'nocodepf' not in dbg:
        a(f"""
        s_cmp_ge_u32 s2, 16
        s_cbranch_scc1 K1_nocp
        s_getpc_b64 s[60:61]
        """)
        a.label("K1_pc")
        a(f"""
        s_sub_u32 s60, s60, K1_pc-k1_kernel
        s_subb_u32 s61, s61, 0
        v_subrev_u32 v30, 256, v0
        v_lshlrev_b32 v30, 7, v30
        v_min_u32 v30, K_all_end-k1_kernel-4, v30
        global_load_dword v31, v30, s[60:61]
        """)
        a.label("K1_nocp")
    a(f"""
    s_sub_u32 s6, s6, 4
    v_lshrrev_b32 v7, 3, v2        ; row_in
    v_and_b32 v8, 7, v2            ; slot
    v_and_b32 v9, 2, v7
    v_xor_b32 v8, v8, v9
    v_xor_b32 v9, 4, v8
    s_lshl_b32 s35, s5, 7
    v_lshlrev_b32 v7, 10, v7
    v_add_u32 v7, s35, v7
    v_lshl_add_u32 v10, v8, 4, v7
    v_lshl_add_u32 v11, v9, 4, v7
    v_lshlrev_b32 v12, 4, v2       ; lane*16
    v_lshrrev_b32 v13, 1, v2
    v_lshlrev_b32 v13, 10, v13
    v_and_b32 v14, 1, v2
    v_lshl_add_u32 v13, v14, 4, v13
    s_lshl_b32 s36, s6, 14
    s_lshl_b32 s37, s6, 4
    s_lshl_b32 s38, s5, 3
    s_add_u32 s37, s37, s38
    v_and_b32 v15, 16, v2
    v_lshlrev_b32 v15, 3, v15
    v_xor_b32 v15, v15, v12
    s_lshl_b32 s39, s4, 2
    s_waitcnt lgkmcnt(0)
    """)
    srd(a, 12, 26, 27, 0x80000)
    if 'wpf' in dbg:
        a(f"""
        s_lshr_b32 s48, s2, 3
        s_lshl_b32 s48, s48, 14
        s_and_b32 s49, s6, 1
        s_lshl_b32 s49, s49, 13
        s_add_u32 s48, s48, s49
        v_lshlrev_b32 v30, 7, v2
        s_cmp_gt_u32 s6, 1
        s_cbranch_scc1 K1_nopf
        buffer_load_dword v29, v30, s[12:15], s48 offen
        """)
        a.label("K1_nopf")
    a(f"""
    s_cmp_eq_u32 s5, 0
    s_cselect_b64 s[46:47], s[28:29], s[30:31]
    """)
    srd(a, 16, 46, 47, 0x4000)
    srd(a, 40, 44, 45, 0x80000)
    srd(a, 20, 32, 33, WS_SIZE)
    a(f"""
    s_cmp_ge_u32 s2, {14 + (256 << G.KS_LOG) // 1024}
    s_cbranch_scc1 K1_noz
    s_cmp_lg_u32 s6, 0
    s_cbranch_scc1 K1_noz
    v_mov_b32 v32, 0
    v_mov_b32 v33, 0
    v_mov_b32 v34, 0
    v_mov_b32 v35, 0
    s_lshl_b32 s48, s2, 10
    s_cmp_lt_u32 s2, 14
    s_mov_b32 s49, {WS_KEY - 14 * 1024:#x}
    s_cselect_b32 s49, {WS_GU:#x}, s49
    s_add_u32 s48, s48, s49
    buffer_store_dwordx4 v[32:35], v12, s[20:23], s48 offen
    """)
    a.label("K1_noz")
    if 'k1nb' not in dbg: a("s_barrier")
    for i in range(16):
        a(f"""
        s_add_u32 s48, s39, {i}
        s_and_b32 s48, s48, 15
        s_lshl_b32 s49, s48, 10
        s_add_u32 m0, s36, s49
        s_add_u32 s48, s48, s37
        s_and_b32 s48, s48, 63
        s_lshl_b32 s48, s48, 13
        buffer_load_dwordx4 v{10 + (i & 1)}, s[12:15], s48 offen lds
        """)
    a(f"""
    s_cmp_gt_u32 s5, 1
    s_cbranch_scc1 K1_nokv
    s_lshl_b32 s36, s6, 12
    s_lshl_b32 s38, s5, 11
    """)
    for i in range(4):
        a(f"""
        s_add_u32 s48, s36, {i*1024}
        s_add_u32 m0, s48, {L_KV}
        s_add_u32 s48, s48, s38
        s_and_b32 s48, s48, 0x3fff
        buffer_load_dwordx4 v15, s[16:19], s48 offen lds
        """)
    a.label("K1_nokv")
    a(f"""
    s_cmp_lt_u32 s6, 2
    s_cbranch_scc1 K1_nowo
    s_lshl_b32 s46, s2, 1
    s_and_b32 s47, s6, 1
    s_add_u32 s46, s46, s47
    s_lshr_b32 s47, s46, 6
    s_lshl_b32 s47, s47, 16
    s_bfe_u32 s48, s46, 0x10002
    s_lshl_b32 s48, s48, 15        ; s * 32 rows
    s_add_u32 s47, s47, s48
    s_bfe_u32 s48, s46, 0x30003
    s_lshl_b32 s48, s48, 7         ; w * 128 B
    s_add_u32 s47, s47, s48
    s_and_b32 s48, s46, 3
    s_lshl_b32 s48, s48, 5         ; t * 32 B
    s_add_u32 s47, s47, s48
    s_lshl_b32 s48, s6, 10
    s_add_u32 s48, s48, {L_WOT - 2048}
    s_mov_b32 m0, s48
    v_add_u32 v17, s48, v17
    buffer_load_dwordx4 v13, s[40:43], s47 offen lds
    s_waitcnt vmcnt(1)
    s_barrier
    s_waitcnt vmcnt(0)
    ds_read_b64_tr_b16 v[32:33], v17
    ds_read_b64_tr_b16 v[34:35], v17 offset:128
    s_lshl_b32 s46, s46, 10
    s_add_u32 s46, s46, {WS_WOF:#x}
    s_waitcnt lgkmcnt(0)
    buffer_store_dwordx4 v[32:35], v12, s[20:23], s46 offen
    s_endpgm
    """)
    a.label("K1_nowo")
    a("s_waitcnt vmcnt(0)")
    a("s_barrier")
    a.label("K1_end")
    a("s_endpgm")
    a.fix()
    if G.ALIGN: print('align', align8(a))
    return a.text(), 224, L1_TOTAL
```

```python
from gen import *
import gen as G

L_PART = 0x0; L_Q = 0x6000; L_MREF = 0x8400; L_OB = 0xA800; L_KEY = 0xAC00; L_FLG = 0xAD00; L_MX = 0xB000; L_HB = 0xB400
L_FW = 0xE000; L_TOTAL = 0xE000 + 8 * 7168
L_XS = L_PART; L_RED = L_PART + 0x1000; L_GB = L_PART + 0x2000
C_EXACT = 0.25 * 1.4426950408889634
OFFS = 96.0

def wave_sum(a, vs, ts):
    if isinstance(vs, int): vs, ts = [vs], [ts]
    for mod in ("quad_perm:[1,0,3,2]", "quad_perm:[2,3,0,1]", "row_half_mirror", "row_mirror"):
        for v in vs:
            a(f"v_add_f32_dpp v{v}, v{v}, v{v} {mod} row_mask:0xf bank_mask:0xf")
    for w in (16, 32):
        for v, t in zip(vs, ts): a(f"v_mov_b32 v{t}, v{v}")
        for v, t in zip(vs, ts): a(f"v_permlane{w}_swap_b32 v{t}, v{v}")
        for v, t in zip(vs, ts): a(f"v_add_f32 v{v}, v{v}, v{t}")

class VM:
    def __init__(self, a): self.a = a; self.q = []; self.done = -1
    def issue(self, tag): self.q.append(tag)
    def wait(self, tag):
        i = max(k for k, t in enumerate(self.q) if t == tag)
        if i <= self.done: return
        self.done = i
        self.a(f"s_waitcnt vmcnt({len(self.q) - 1 - i})")

def wave_max_u32(a, v, t):
    for mod in ("quad_perm:[1,0,3,2]", "quad_perm:[2,3,0,1]", "row_half_mirror", "row_mirror"):
        a(f"v_max_u32_dpp v{v}, v{v}, v{v} {mod} row_mask:0xf bank_mask:0xf")
    for w in (16, 32):
        a(f"""
        v_mov_b32 v{t}, v{v}
        v_permlane{w}_swap_b32 v{t}, v{v}
        v_max_u32 v{v}, v{v}, v{t}
        """)

LOG2E = 1.4426950408889634
def sigmoid(a, d, x, t):
    a(f"""
    v_mul_f32 v{t}, {f2u(-LOG2E):#x}, v{x}
    v_exp_f32 v{t}, v{t}
    v_add_f32 v{t}, 1.0, v{t}
    v_rcp_f32 v{d}, v{t}
    """)

def gen_k2(dbg='', prio=True):
    a = Asm()
    OPT = dict(x.split('=') for x in dbg.split(',') if '=' in x)
    PFS = int(OPT.get('pfs', 0)); PFP = int(OPT.get('pfp', 1))
    TAILST = 'tailst' in dbg
    FS = 'ffnst' in dbg
    def st(i, tail):
        if 'r0st' in dbg:
            if tail == 3: stamp(a, i)
        elif FS:
            if tail == 2: stamp(a, i)
        elif tail in (True, False) and bool(tail) == TAILST: stamp(a, i)
    K = 16; V = 48; X = [112, 128]; O = 144; CM = 160; SP = 176; Q = 184; OA = 188; WF = 204; BF = 236; S1 = 240
    vQA, vPW, vPR, vPL, vOW, vOR, vLM, vWL, vKL, vVL = 1, 2, 3, 4, 5, 6, 7, 8, 9, 10
    t0, t1, t2, t3, t4 = 11, 12, 13, 14, 15
    vFW, vFR, vFV, vRD = 9, 13, 14, 15
    a(f"""
    s_cmp_ge_u32 s2, 256
    s_cbranch_scc1 K2_end
    """)
    st(0, False); st(0, 3)
    if 'leak' in dbg or 'amp' in dbg: a('s_memrealtime s[90:91]')
    dstamp(a, 1, False, 240)
    a(f"""
    s_load_dwordx2 s[48:49], s[0:1], 96
    s_load_dwordx2 s[40:41], s[0:1], 0
    s_load_dwordx8 s[60:67], s[0:1], 48
    s_load_dwordx2 s[46:47], s[0:1], 80
    s_and_b32 s3, s2, 7
    s_lshr_b32 s4, s2, 3
    s_lshl_b32 s7, s3, 8
    s_lshl_b32 s5, s4, 3
    s_add_u32 s7, s7, s5           ; T0
    s_and_b32 s28, s4, 7           ; rot
    v_lshrrev_b32 v{t0}, 6, v0
    v_and_b32 v0, 63, v0
    v_readfirstlane_b32 s6, v{t0}
    s_mov_b32 s30, 0
    v_lshlrev_b32 v{vWL}, 4, v0
    s_mul_i32 s3, s6, {8*TS}
    s_add_u32 s3, s3, {WS_KV:#x}
    """)
    for t in range(8):
        a(f"""
        s_add_u32 s4, s28, {t}
        s_and_b32 s4, s4, 7
        s_mul_i32 s4, s4, {TS}
        s_add_u32 s{50+t}, s3, s4
        """)
    a.label("K2_restart")
    a(f"""
    s_add_u32 s3, s6, s28
    s_and_b32 s3, s3, 7
    s_add_u32 s3, s3, s7
    s_lshl_b32 s3, s3, 10
    v_and_b32 v{t1}, 31, v0
    v_lshrrev_b32 v{t2}, 5, v0
    v_mul_u32_u24 v{vVL}, 272, v{t2}
    v_lshl_add_u32 v{vVL}, v{t1}, 4, v{vVL}
    v_cmp_lt_u32 vcc, 16, v{t1}
    v_bfrev_b32 v{t0}, 1
    v_add_u32 v{vQA}, {L_Q:#x}, v{vWL}
    v_cndmask_b32 v{vVL}, v{vVL}, v{t0}, vcc
    s_waitcnt lgkmcnt(0)
    """)
    srd(a, 8, 48, 49, WS_SIZE)
    vm = VM(a)
    def ldK(t):
        a(f"buffer_load_dwordx4 v[{K+4*t}:{K+4*t+3}], v{vWL}, s[8:11], s{50+t} offen"); vm.issue(f"K{t}")
    def ldV(t):
        for h in range(2):
            a(f"buffer_load_dwordx4 v[{V+8*t+4*h}:{V+8*t+4*h+3}], v{vVL}, s[8:11], s{50+t} offen offset:{1024 + 544*h}"); vm.issue(f"V{t}{h}")
    a(f"buffer_load_dwordx4 v[{Q}:{Q+3}], v{vWL}, s[8:11], s3 offen"); vm.issue("Q")
    ldK(0); ldK(1)
    a(f"""
    s_lshl_b32 s3, s6, 10
    v_add_u32 v{t3}, s3, v{vQA}
    """)
    def late_setup(part):
        u0, u1, u2, u3 = S1, S1 + 1, S1 + 2, S1 + 3
        if part == 0:
            srd(a, 16, 40, 41, 0x200000)
            srd(a, 20, 46, 47, 0x200000)
            srd(a, 24, 60, 61, 0x400)
            a(f"""
            v_and_b32 v{u1}, 31, v0
            v_lshrrev_b32 v{u2}, 5, v0
            v_mul_u32_u24 v{vPW}, 96, v{u1}
            v_lshl_add_u32 v{vPW}, v{u2}, 4, v{vPW}
            s_mul_i32 s3, s6, 3072
            v_add_u32 v{vPW}, s3, v{vPW}
            v_lshrrev_b32 v{u0}, 4, v0     ; g
            s_lshl_b32 s3, s6, 2
            v_add_u32 v{u1}, s3, v{u0}     ; n = 4w + g
            v_mul_u32_u24 v{vPL}, 96, v{u1}
            v_and_b32 v{u2}, 15, v0        ; d
            v_lshl_add_u32 v{vPR}, v{u2}, 2, v{vPL}
            v_add_u32 v{vPL}, 64, v{vPL}
            s_lshl_b32 s31, s28, 16
            s_lshl_b32 s33, s6, 13
            s_add_u32 s33, s33, {WS_WOF:#x}
            """)
        elif part == 1:
            a(f"""
            v_and_b32 v{u3}, 7, v{u1}      ; token
            v_lshrrev_b32 v{u1}, 3, v{u1}  ; head_local
            v_lshlrev_b32 v{vOW}, 7, v{u3}
            v_lshl_add_u32 v{vOW}, v{u1}, 5, v{vOW}
            v_lshl_add_u32 v{vOW}, v{u2}, 1, v{vOW}
            v_add_u32 v{vOW}, {L_OB:#x}, v{vOW}
            v_and_b32 v{u3}, 7, v0
            v_lshlrev_b32 v{vOR}, 7, v{u3}
            v_lshl_add_u32 v{vOR}, v{u0}, 4, v{vOR}
            v_add_u32 v{vOR}, {L_OB:#x}, v{vOR}
            v_mov_b32 v{vLM}, 0
            v_lshlrev_b32 v{vFR}, 2, v{u3}
            v_add_u32 v{vFR}, {L_FLG:#x}, v{vFR}
            """)
        else:
            for r in range(0, 16, 2):
                a(f"v_pk_mov_b32 v[{OA+r}:{OA+r+1}], 0, 0")
            a(f"v_pk_mov_b32 v[{SP}:{SP+1}], 0, 0")
            a(f"v_mov_b32 v{SP+2}, 0xdddddddd")
    late_setup(0); late_setup(1)
    ldV(0); ldK(2); ldV(1)
    late_setup(2)
    st(1, False)
    vm.wait("Q")
    a(f"""
    ds_write_b128 v{t3}, v[{Q}:{Q+3}]
    s_cmp_lg_u32 s30, 0
    s_cbranch_scc1 K2_safe
    """)
    vm.wait("K1")
    a(f"""
    v_mfma_f32_32x32x16_bf16 v[{X[0]}:{X[0]+15}], v[{K}:{K+3}], v[{Q}:{Q+3}], 0
    v_mfma_f32_32x32x16_bf16 v[{X[1]}:{X[1]+15}], v[{K+4}:{K+7}], v[{Q}:{Q+3}], 0
    """)
    S = X[0]
    a(f"v_max3_f32 v{t0}, v{S}, v{S+1}, v{S+2}")
    for r in range(3, 31, 2):
        a(f"v_max3_f32 v{t0}, v{t0}, v{S+r}, v{S+r+1}")
    a(f"""
    v_max_f32 v{t0}, v{t0}, v{S+31}
    v_mov_b32 v{t1}, v{t0}
    v_permlane32_swap_b32 v{t1}, v{t0}
    v_max_f32 v{t0}, v{t0}, v{t1}
    v_mov_b32 v{t1}, {f2u(-OFFS):#x}
    s_branch K2_mref
    """)
    a.label("K2_safe")
    a(f"""
    v_and_b32 v{t0}, 31, v0
    v_lshlrev_b32 v{S1+4}, 2, v{t0}
    v_add_u32 v{S1+4}, {L_MX:#x}, v{S1+4}
    s_lshl_b32 s3, s6, 7
    v_add_u32 v{S1+5}, s3, v{S1+4}
    v_mov_b32 v{t0}, 0xff800000
    ds_write_b32 v{S1+5}, v{t0}
    s_waitcnt vmcnt(0) lgkmcnt(0)
    s_barrier
    v_mov_b32 v{t1}, v{vQA}
    s_mov_b32 s29, 0
    """)
    a.label("K2_safe_loop")
    a(f"""
    ds_read_b128 v[{BF}:{BF+3}], v{t1}
    v_mov_b32 v{t0}, 0xff800000
    s_waitcnt lgkmcnt(0)
    """)
    for t in range(8):
        a(f"v_mfma_f32_32x32x16_bf16 v[{S}:{S+15}], v[{K+4*t}:{K+4*t+3}], v[{BF}:{BF+3}], 0")
        for r in range(0, 16, 2):
            a(f"v_max3_f32 v{t0}, v{t0}, v{S+r}, v{S+r+1}")
    a(f"""
    ds_max_f32 v{S1+4}, v{t0}
    v_add_u32 v{t1}, 1024, v{t1}
    v_add_u32 v{S1+4}, 128, v{S1+4}
    s_add_u32 s29, s29, 1
    s_cmp_lt_u32 s29, 8
    s_cbranch_scc1 K2_safe_loop
    s_waitcnt lgkmcnt(0)
    s_barrier
    ds_read_b32 v{t0}, v{S1+5}
    v_mov_b32 v{t1}, 0
    s_waitcnt lgkmcnt(0)
    """)
    a.label("K2_mref")
    a(f"""
    v_sub_f32 v{BF}, v{t1}, v{t0}
    v_sub_f32 v{BF+1}, v{t1}, v{t0}
    v_sub_f32 v{BF+2}, v{t1}, v{t0}
    v_sub_f32 v{BF+3}, v{t1}, v{t0}
    ds_write_b128 v{t3}, v[{BF}:{BF+3}] offset:{L_MREF - L_Q}
    s_lshl_b32 s3, s6, 2
    s_add_u32 s3, s3, {L_FLG:#x}
    v_mov_b32 v{vFW}, s3
    v_mov_b32 v{vRD}, 0
    ds_write2_b32 v{vFW}, v{vRD}, v{vRD} offset0:0 offset1:8
    s_waitcnt lgkmcnt(0)
    s_barrier
    """)
    def rd_qcm():
        a(f"ds_read_b128 v[{Q}:{Q+3}], v{vQA}")
        for k in range(4):
            a(f"ds_read_b128 v[{CM+4*k}:{CM+4*k+3}], v{vQA} offset:{L_MREF - L_Q}")
        a(f"v_add_u32 v{vQA}, 1024, v{vQA}")
    mf = "v_mfma_f32_32x32x16_bf16"
    def M1(kt, xb):
        a(f"{mf} v[{X[xb]}:{X[xb]+15}], v[{K+4*kt}:{K+4*kt+3}], v[{Q}:{Q+3}], v[{CM}:{CM+15}]")
    def E(xb, lo, hi):
        for r in range(lo, hi):
            if 'noexp' in dbg:
                a(f"v_cvt_pk_bf16_f32 v{X[xb]+r}, 0, v{X[xb]+r}"); a(f"v_cvt_pk_bf16_f32 v{X[xb]+r}, 0, v{X[xb]+r}")
                continue
            a(f"v_exp_f32 v{X[xb]+r}, v{X[xb]+r}")
    def C2(h, xb):
        for k in range(4):
            a(f"v_cvt_pk_bf16_f32 v{SP+4*h+k}, v{X[xb]+8*h+2*k}, v{X[xb]+8*h+2*k+1}")
    def M3(h, kt):
        xb = kt & 1
        a(f"v_smfmac_f32_32x32x32_bf16 v[{O}:{O+15}], v[{V+8*kt+4*h}:{V+8*kt+4*h+3}], v[{X[xb]+8*h}:{X[xb]+8*h+7}], v{SP+2}")
    def Ozero():
        a(f"v_mfma_f32_32x32x8bf16_1k v[{O}:{O+15}], v[{SP}:{SP+1}], v[{SP}:{SP+1}], 0")
    def part_write():
        a(f"""
        ds_write_b128 v{vPW}, v[{O}:{O+3}]
        ds_write_b128 v{vPW}, v[{O+4}:{O+7}] offset:32
        ds_write_b32 v{vPW}, v{O+8} offset:64
        """)
    def s1_read():
        for k in range(4):
            a(f"ds_read2st64_b32 v[{S1+2*k}:{S1+2*k+1}], v{vPR} offset0:{24*k} offset1:{24*k+12}")
        for k in range(4):
            a(f"ds_read2st64_b32 v[{S1+8+2*k}:{S1+8+2*k+1}], v{vPL} offset0:{24*k} offset1:{24*k+12}")
    def s1_calc():
        for (x, y) in ((0, 2), (4, 6), (0, 4)):
            a(f"v_pk_add_f32 v[{S1+8+x}:{S1+9+x}], v[{S1+8+x}:{S1+9+x}], v[{S1+8+y}:{S1+9+y}]")
            a(f"v_pk_add_f32 v[{S1+x}:{S1+1+x}], v[{S1+x}:{S1+1+x}], v[{S1+y}:{S1+1+y}]")
        a(f"""
        v_add_f32 v{S1+8}, v{S1+8}, v{S1+9}
        v_add_f32 v{S1}, v{S1}, v{S1+1}
        v_rcp_f32 v{S1+1}, v{S1+8}
        v_maximum3_f32 v{vLM}, v{vLM}, v{S1+8}, abs(v{S1})
        v_mul_f32 v{S1}, v{S1}, v{S1+1}
        v_cvt_pk_bf16_f32 v{S1}, v{S1}, v{S1}
        ds_write_b16 v{vOW}, v{S1}
        """)
    def s2_read():
        for s in range(2):
            a(f"ds_read_b128 v[{BF+4*s}:{BF+4*s+3}], v{vOR} offset:{64*s}")
    def s2_mma(lo, hi):
        for u in range(lo, hi):
            s, t = u >> 2, u & 3
            a(f"v_mfma_f32_16x16x32_bf16 v[{OA+4*t}:{OA+4*t+3}], v[{WF+4*u}:{WF+4*u+3}], v[{BF+4*s}:{BF+4*s+3}], v[{OA+4*t}:{OA+4*t+3}]")
    def wf_load(lo, hi):
        if lo == 0:
            a("s_add_u32 s34, s33, s31")
            a("s_add_u32 s35, s34, 4096")
            a("s_add_u32 s31, s31, 0x10000")
            a("s_and_b32 s31, s31, 0x7ffff")
        for u in range(lo, hi):
            a(f"buffer_load_dwordx4 v[{WF+4*u}:{WF+4*u+3}], v{vWL}, s[8:11], s{34 + (u >> 2)} offen offset:{1024*(u&3)}")
            vm.issue("WF")
    def ffn_prefetch():
        a(f"""
        s_mov_b32 s39, s6
        s_cmp_eq_u32 s39, 1
        s_cselect_b64 s[36:37], s[64:65], s[62:63]
        s_cmp_eq_u32 s39, 2
        s_cselect_b64 s[36:37], s[66:67], s[36:37]
        """)
        srd(a, 12, 36, 37, 512 * 1792 * 2)
        a(f"""
        s_and_b32 s3, s2, 7
        s_lshr_b32 s4, s2, 3
        s_mul_i32 s5, s4, {16*3584}
        s_mul_i32 s36, s3, 448
        s_and_b32 s36, s36, 0xffffff80
        s_add_u32 s5, s5, s36
        s_lshl_b32 s36, s3, 7
        s_mul_i32 s37, s4, {56*1024}
        s_add_u32 s36, s36, s37
        v_lshrrev_b32 v{t0}, 2, v0
        v_mul_u32_u24 v{t0}, 3584, v{t0}
        v_and_b32 v{t1}, 3, v0
        v_lshl_add_u32 v{t0}, v{t1}, 7, v{t0}
        v_min_u32 v{t1}, 55, v0
        v_lshlrev_b32 v{t1}, 10, v{t1}
        s_cmp_eq_u32 s39, 2
        s_cselect_b32 s38, s36, s5
        s_cselect_b64 vcc, -1, 0
        v_cndmask_b32 v{t0}, v{t0}, v{t1}, vcc
        s_lshl_b32 s39, s6, {PFS}
        s_add_u32 s39, s39, 1
        s_cmp_gt_u32 s6, 2
        s_cselect_b32 s39, 99, s39
        """)
    def ffn_setup():
        a(f"""
        s_and_b32 s3, s2, 7
        s_lshr_b32 s4, s2, 3
        s_and_b32 s5, s6, 1
        s_cmp_eq_u32 s5, 0
        s_cselect_b64 s[36:37], s[62:63], s[64:65]
        s_cmp_lt_u32 s2, 112
        s_cselect_b64 s[36:37], s[36:37], s[66:67]
        """)
        srd(a, 68, 36, 37, 512 * 1792 * 2)
        a(f"""
        s_mul_i32 s76, s3, 14
        s_add_u32 s76, s76, s4           ; fs
        s_lshl_b32 s77, s3, 2
        s_add_u32 s77, s77, s4
        s_sub_u32 s77, s77, 14           ; cb
        s_lshr_b32 s5, s6, 1
        s_mul_i32 s5, s5, {128*3584}
        s_lshl_b32 s36, s76, 5
        s_add_u32 s5, s5, s36
        s_mul_i32 s36, s6, {224*1024}
        s_lshl_b32 s37, s77, 5
        s_add_u32 s36, s36, s37
        s_cmp_lt_u32 s2, 112
        s_cselect_b32 s72, s5, s36
        s_movk_i32 s73, 1024
        s_cselect_b32 s73, 3584, s73
        s_cselect_b32 s75, 4, 7
        s_cmp_lt_u32 s2, 144
        s_cselect_b32 s75, s75, 0
        s_mul_i32 s74, s6, 7168
        s_add_u32 s74, s74, {L_FW:#x}
        v_lshrrev_b32 v{vVL}, 1, v0
        v_mul_lo_u32 v{vVL}, v{vVL}, s73
        v_and_b32 v{t1}, 1, v0
        v_lshl_add_u32 v{vVL}, v{t1}, 4, v{vVL}
        s_lshl_b32 s73, s73, 5
        s_mov_b32 s78, s74
        """)
    def ffn_stage():
        a(f"""
        s_cmp_lt_u32 s29, 4
        s_cbranch_scc1 K2_nost
        """)
        for e in range(2):
            a(f"""
            s_cmp_eq_u32 s75, 0
            s_cbranch_scc1 K2_nost
            s_mov_b32 m0, s78
            s_sub_u32 s75, s75, 1
            buffer_load_dwordx4 v{vVL}, s[68:71], s72 offen lds
            s_add_u32 s78, s78, 1024
            s_add_u32 s72, s72, s73
            """)
        a.label("K2_nost")
    def ffn_issue():
        a(f"""
        s_cmp_lg_u32 s29, s39
        s_cbranch_scc1 K2_nopf
        buffer_load_dword v{t1}, v{t0}, s[12:15], s38 offen
        """)
        a.label("K2_nopf")
    def setprio(p):
        if prio: a(f"s_setprio {p}")
    st(2, False)
    rd_qcm()
    a("s_waitcnt lgkmcnt(0)")
    M1(0, 0)
    a("s_mov_b32 s29, 1")
    setprio(3)
    ldK(3); ldV(2)
    st(3, False)
    if 'leak' in dbg or 'amp' in dbg: a('s_memrealtime s[94:95]'); a('s_waitcnt lgkmcnt(0)')
    def tile(i, hook):
        xb = i & 1; xn = xb ^ 1
        hook(i, 'a')
        E(xb, 0, 2)
        hook(i, 'm3b')
        E(xb, 2, 5)
        hook(i, 'm1')
        M1((i + 1) & 7, xn)
        hook(i, 0)
        if i == 0:
            E(xb, 5, 12)
            hook(i, 1)
            Ozero()
            E(xb, 12, 16)
            M3(0, i)
            hook(i, 2)
        else:
            E(xb, 5, 8)
            hook(i, 'e1')
            E(xb, 8, 10)
            hook(i, 1)
            M3(0, i)
            hook(i, 2)
            E(xb, 10, 13)
            hook(i, 'e2')
            E(xb, 13, 15)
            hook(i, 'e3')
            E(xb, 15, 16)
    def hook0(i, pos):
        if pos == 'a' and i in (0, 2, 4, 6): st(1 + i // 2, 3)
        if pos == 'a' and i in (3, 5, 7): setprio({3: 2, 5: 1, 7: 1}[i])
        if pos == 'm3b' and i > 0:
            vm.wait(f"V{i-1}1"); M3(1, i - 1)
        if pos == 'm1':
            if i < 7: vm.wait(f"K{i+1}")
            else: a("s_waitcnt lgkmcnt(0)")
        if pos == 0:
            if i + 4 <= 7: ldK(i + 4)
            if i + 3 <= 7: ldV(i + 3)
            if i == 4 and 'nopf' not in dbg: ffn_prefetch()
            if i == 5: wf_load(0, 4); ffn_setup()
            if i == 6: wf_load(4, 8)
        if pos == 1:
            if i == 6: rd_qcm()
            vm.wait(f"V{i}0")
        if pos == 2 and i == 7:
            vm.wait("V71")
    for i in range(8): tile(i, hook0)
    st(5, 3)
    a.raw(".p2align 3")
    a.label("K2_round")
    spins = []
    def poll(off):
        a(f"ds_read_b32 v{vFV}, v{vFR} offset:{off}")
    def check(off):
        k = len(spins); spins.append(off)
        a(f"""
        s_waitcnt lgkmcnt(0)
        v_cmp_gt_u32 vcc, s29, v{vFV}
        s_cbranch_vccnz K2_spin{k}
        """)
        a.label(f"K2_back{k}")
    PR = dict(x.split('=') for x in dbg.split(',') if '=' in x).get('pr', 'c')
    def hook(i, pos):
        if pos == 'm3b': M3(1, (i - 1) & 7)
        if pos == 'm1' and i == 7: a("s_waitcnt lgkmcnt(0)")
        if pos == 1 and i == 6: rd_qcm()
        if 'nohook' in dbg: return
        if 'bar' in dbg.split(','):
            if pos == 'a' and i in (0, 6, 7): setprio({6: 2, 7: 1, 0: 0}[i])
            if i == 0 and pos == 1: part_write()
            if i == 1 and pos == 0:
                a("s_waitcnt lgkmcnt(0)"); a("s_barrier"); setprio(2); s1_read()
            if i == 2 and pos == 0:
                a("s_waitcnt lgkmcnt(0)"); s1_calc(); setprio(1)
            if i == 3 and pos == 0: setprio(0)
            if i == 4 and pos == 0:
                a("s_waitcnt vmcnt(0) lgkmcnt(0)"); a("s_barrier"); setprio(3); s2_read()
            seq = [(4, 'e3'), (5, 'e1'), (5, 'e2'), (5, 'e3'), (6, 'e1'), (6, 'e2'), (6, 'e3'), (7, 'e1')]
        else:
            ca = int(OPT.get('ca', 2)); cb = int(OPT.get('cb', 5)); PT = OPT.get('pt', '10110321')
            slots = [(t, p) for t in range(1, 8) for p in (('a', 'e1', 'e2', 'e3') if cb >= 6 else ('e1', 'e2', 'e3'))]
            if i == 0 and pos == 'a': a(f"v_mov_b32 v{vRD}, s29")
            if i == 0 and pos == 1:
                part_write(); a(f"ds_write_b32 v{vFW}, v{vRD}")
            if i == ca and pos == 0: poll(0)
            if i == ca and pos == 2: check(0); s1_read()
            if i == ca + 1 and pos == 0:
                a("s_waitcnt lgkmcnt(0)"); s1_calc(); a(f"ds_write_b32 v{vFW}, v{vRD} offset:32")
            if i == cb - 1 and pos == 2: poll(32)
            if i == cb and pos == 'm1':
                check(32); s2_read(); a("s_waitcnt vmcnt(0)")
            if len(PT) == 8: PT = "".join(ch * 2 for ch in PT)
            for hpos, k in (('a', 2 * i), (2, 2 * i + 1)):
                if pos == hpos and PT[k] != PT[k - 1]: setprio(int(PT[k]))
            av = [x for x in slots if x > (cb, 'e1')]
            if OPT.get('sp', '0') == '1' and len(av) >= 12: av = [x for x in av if x[1] != 'e3']
            seq = av[:8]
            while len(seq) < 8: seq = sorted(seq + [seq[len(seq) % len(av)]])
        for u in [k for k, x in enumerate(seq) if x == (i, pos)]:
            if u == 0: a("s_waitcnt lgkmcnt(0)")
            s2_mma(u, u + 1); wf_load(u, u + 1)
            if u == 7 and 'nopf' not in dbg and PFP == 1: ffn_issue(); ffn_stage()
    for i in range(8): tile(i, hook)
    if 'rndst' in dbg:
        a(f"""
        s_memtime s[82:83]
        s_memrealtime s[100:101]
        s_waitcnt lgkmcnt(0)
        s_lshl_b32 s84, s2, 3
        s_add_u32 s84, s84, s6
        s_lshl_b32 s84, s84, 3
        s_add_u32 s84, s84, s29
        s_lshl_b32 s84, s84, 3
        s_add_u32 s84, s84, {WS_STAMP + 0x40000:#x}
        s_mov_b64 exec, 1
        v_mov_b32 v{S1+8}, s82
        v_mov_b32 v{S1+9}, s100
        v_mov_b32 v{S1+10}, 0
        buffer_store_dwordx2 v[{S1+8}:{S1+9}], v{S1+10}, s[8:11], s84 offen
        s_mov_b64 exec, -1
        """)
    a(f"""
    s_add_u32 s29, s29, 1
    s_cmp_lt_u32 s29, 8
    s_cbranch_scc1 K2_round
    """)
    st(4, False); st(0, True)
    M3(1, 7)
    XR = CM; WR = CM + 4; HV = X[0]; HN = X[0] + 8; PK = X[1]; ST = X[1] + 8
    a(f"""
    s_add_u32 s3, s7, s6
    s_lshl_b32 s4, s3, 10
    buffer_load_dwordx4 v[{XR}:{XR+3}], v{vWL}, s[16:19], s4 offen
    buffer_load_dwordx4 v[{WR}:{WR+3}], v{vWL}, s[24:27], 0 offen
    v_and_b32 v{t0}, 7, v0
    v_mul_u32_u24 v{t0}, 1040, v{t0}
    v_lshrrev_b32 v{t1}, 4, v0
    v_lshl_add_u32 v{t0}, v{t1}, 3, v{t0}
    s_lshl_b32 s5, s6, 7
    s_add_u32 s5, s5, {L_HB:#x}
    v_add_u32 v{t0}, s5, v{t0}
    s_mul_i32 s5, s6, 1040
    s_add_u32 s5, s5, {L_HB:#x}
    v_add_u32 v{t1}, s5, v{vWL}
    s_lshl_b32 s35, s6, 2
    s_add_u32 s35, s35, {L_KEY:#x}
    v_mov_b32 v{t4}, s35
    v_and_b32 v{t3}, 7, v0
    v_lshlrev_b32 v{t3}, 2, v{t3}
    v_add_u32 v{t3}, {L_KEY:#x}, v{t3}
    """)
    part_write()
    a("s_waitcnt lgkmcnt(0)"); a("s_barrier"); st(1, True); s1_read()
    a("s_waitcnt lgkmcnt(0)"); s1_calc()
    a(f"""
    v_mov_b32 v{t2}, {f2u(2.0**124):#x}
    v_cmp_nlt_f32 vcc, v{vLM}, v{t2}
    s_cmp_lg_u64 vcc, 0
    s_cselect_b32 s5, 1, 0
    v_mov_b32 v{t2}, s5
    ds_write_b32 v{t4}, v{t2} offset:32
    """)
    a("s_waitcnt vmcnt(2) lgkmcnt(0)"); a("s_barrier"); st(2, True); s2_read()
    a(f"ds_read_b32 v{t2}, v{t3} offset:32")
    a("s_waitcnt lgkmcnt(1)"); s2_mma(0, 8)
    a(f"""
    s_waitcnt lgkmcnt(0)
    v_cmp_ne_u32 vcc, 0, v{t2}
    s_cmp_eq_u64 vcc, 0
    s_cbranch_scc1 K2_good
    s_cmp_lg_u32 s30, 0
    s_cbranch_scc1 K2_good
    s_mov_b32 s30, 1
    s_waitcnt vmcnt(0)
    s_setprio 0
    s_branch K2_restart
    """)
    a.label("K2_good")
    for t in range(4):
        a(f"v_cvt_pk_bf16_f32 v{S1+2*t}, v{OA+4*t}, v{OA+4*t+1}")
        a(f"v_cvt_pk_bf16_f32 v{S1+2*t+1}, v{OA+4*t+2}, v{OA+4*t+3}")
        a(f"ds_write_b64 v{t0}, v[{S1+2*t}:{S1+2*t+1}] offset:{32*t}")
    a("s_waitcnt vmcnt(0)")
    for r in range(4):
        a(f"v_lshlrev_b32 v{HV+2*r}, 16, v{XR+r}")
        a(f"v_and_b32 v{HV+2*r+1}, 0xffff0000, v{XR+r}")
        a(f"v_lshlrev_b32 v{WF+2*r}, 16, v{WR+r}")
        a(f"v_and_b32 v{WF+2*r+1}, 0xffff0000, v{WR+r}")
    a(f"""
    s_waitcnt lgkmcnt(0)
    s_barrier
    """)
    st(3, True)
    a(f"""
    ds_read_b128 v[{BF}:{BF+3}], v{t1}
    s_waitcnt lgkmcnt(0)
    """)
    for r in range(4):
        a(f"v_lshlrev_b32 v{HN+2*r}, 16, v{BF+r}")
        a(f"v_and_b32 v{HN+2*r+1}, 0xffff0000, v{BF+r}")
    P2 = lambda b, r: f"v[{b+r}:{b+r+1}]"
    for r in range(0, 8, 2): a(f"v_pk_add_f32 {P2(HV,r)}, {P2(HV,r)}, {P2(HN,r)}")
    for r in range(8): a(f"v_cvt_pk_bf16_f32 v{HV+r}, 0, v{HV+r}")
    SA, SB = S1, S1 + 2
    a(f"v_pk_add_f32 {P2(SA,0)}, {P2(HV,0)}, {P2(HV,2)}")
    a(f"v_pk_mul_f32 {P2(SB,0)}, {P2(HV,0)}, {P2(HV,0)}")
    a(f"v_pk_add_f32 {P2(SA,4)}, {P2(HV,4)}, {P2(HV,6)}")
    a(f"v_pk_fma_f32 {P2(SB,0)}, {P2(HV,2)}, {P2(HV,2)}, {P2(SB,0)}")
    a(f"v_pk_add_f32 {P2(SA,0)}, {P2(SA,0)}, {P2(SA,4)}")
    a(f"v_pk_fma_f32 {P2(SB,0)}, {P2(HV,4)}, {P2(HV,4)}, {P2(SB,0)}")
    a(f"v_add_f32 v{t0}, v{SA}, v{SA+1}")
    a(f"v_pk_fma_f32 {P2(SB,0)}, {P2(HV,6)}, {P2(HV,6)}, {P2(SB,0)}")
    a(f"v_add_f32 v{t2}, v{SB}, v{SB+1}")
    wave_sum(a, [t0, t2], [ST, ST + 1])
    ln_scalars(a, t0, t2, ST, ST + 2, ST + 1, ST + 3)
    st(4, True)
    for r in range(0, 8, 2): a(f"v_pk_add_f32 {P2(HN,r)}, {P2(HV,r)}, {P2(ST,0)} op_sel_hi:[1,0] neg_lo:[0,1] neg_hi:[0,1]")
    for r in range(8): a(f"v_cvt_pk_bf16_f32 v{HN+r}, 0, v{HN+r}")
    for r in range(0, 8, 2): a(f"v_pk_mul_f32 {P2(HN,r)}, {P2(HN,r)}, {P2(ST,2)} op_sel_hi:[1,0]")
    for r in range(8): a(f"v_cvt_pk_bf16_f32 v{HN+r}, 0, v{HN+r}")
    a(f"v_pk_mul_f32 {P2(SA,0)}, {P2(HN,0)}, {P2(WF,0)}")
    for r in range(2, 8, 2): a(f"v_pk_fma_f32 {P2(SA,0)}, {P2(HN,r)}, {P2(WF,r)}, {P2(SA,0)}")
    a(f"v_add_f32 v{t2}, v{SA}, v{SA+1}")
    fill = [f"v_pk_add_f32 {P2(WF+8,r)}, {P2(HV,r)}, {P2(HN,r)}" for r in range(0, 8, 2)]
    fill += [f"v_cvt_pk_bf16_f32 v{PK+4+r}, v{HV+2*r}, v{HV+2*r+1}" for r in range(4)]
    fill += [f"v_cvt_pk_bf16_f32 v{ST+4+r}, v{HN+2*r}, v{HN+2*r+1}" for r in range(4)]
    for mod in ("quad_perm:[1,0,3,2]", "quad_perm:[2,3,0,1]", "row_half_mirror", "row_mirror"):
        a(fill.pop(0)); a(fill.pop(0))
        a(f"v_add_f32_dpp v{t2}, v{t2}, v{t2} {mod} row_mask:0xf bank_mask:0xf")
    for w in (16, 32):
        a(f"v_mov_b32 v{t0}, v{t2}")
        a(fill.pop(0)); a(fill.pop(0))
        a(f"v_permlane{w}_swap_b32 v{t0}, v{t2}")
        a(f"v_add_f32 v{t2}, v{t2}, v{t0}")
    if 'leak' in dbg:
        a(f"""
        s_cmp_lg_u32 s3, 0
        s_cbranch_scc1 K2_leak
        s_memrealtime s[92:93]
        v_mov_b32 v{S1+4}, 0
        s_mov_b32 s5, {WS_SEL:#x}
        buffer_load_dwordx4 v[{S1}:{S1+3}], v{S1+4}, s[8:11], s5 offen
        s_waitcnt vmcnt(0) lgkmcnt(0)
        s_mov_b64 exec, 1
        v_add_f32 v{WF+8}, {f2u(64.0):#x}, v{WF+8}
        v_sub_u32 v{WF+9}, v{S1+2}, v{S1}
        v_sub_u32 v{WF+10}, v{S1+1}, v{S1}
        v_sub_u32 v{WF+11}, s90, v{S1}
        v_sub_u32 v{WF+12}, s94, v{S1}
        v_sub_u32 v{WF+13}, s92, v{S1}
        """)
        for r in range(9, 14):
            a(f"v_cvt_f32_u32 v{WF+r}, v{WF+r}")
            a(f"v_mul_f32 v{WF+r}, {f2u(0.005):#x}, v{WF+r}")
            a(f"v_min_f32 v{WF+r}, {f2u(20.0):#x}, v{WF+r}")
        a("s_mov_b64 exec, -1")
        a.label("K2_leak")
    a(f"""
    v_cvt_pk_bf16_f32 v{t2}, 0, v{t2}
    v_ashrrev_i32 v{t0}, 31, v{t2}
    v_or_b32 v{t0}, 0x80000000, v{t0}
    v_xor_b32 v{t2}, v{t2}, v{t0}
    v_and_b32 v{t2}, 0xffff0000, v{t2}
    s_sub_u32 s5, 0xffff, s3
    v_or_b32 v{t2}, s5, v{t2}      ; key
    ds_write_b32 v{t4}, v{t2}
    """)
    for r in range(4): a(f"v_cvt_pk_bf16_f32 v{PK+r}, v{WF+8+2*r}, v{WF+8+2*r+1}")
    a(f"""
    buffer_store_dwordx4 v[{PK}:{PK+3}], v{vWL}, s[20:23], s4 offen sc1
    """)
    a(f"""
    s_waitcnt lgkmcnt(0)
    s_barrier
    ds_read_b32 v{t1}, v{t3}
    s_waitcnt lgkmcnt(0)
    v_cmp_gt_u32 vcc, v{t1}, v{t2}
    v_cmp_eq_u32 s[36:37], v{t1}, v{t2}
    s_and_b32 s38, vcc_lo, 0xff
    s_bcnt1_i32_b32 s38, s38       ; rank
    """)
    st(5, False); st(5, True); st(0, 2); st(1, 2); st(2, 2); st(3, 2); st(4, 2); st(5, 2)
    a(f"""
    s_cmp_gt_u32 s38, 1
    s_cbranch_scc1 K2_pub0
    s_add_u32 s5, s4, {WS_H:#x}
    buffer_store_dwordx4 v[{PK+4}:{PK+7}], v{vWL}, s[8:11], s5 offen sc1
    s_add_u32 s5, s4, {WS_HN:#x}
    buffer_store_dwordx4 v[{ST+4}:{ST+7}], v{vWL}, s[8:11], s5 offen sc1
    v_cndmask_b32 v{ST+1}, v{t1}, 0, s[36:37]
    v_mov_b32 v{ST}, v{t2}
    s_lshl_b32 s5, s2, {G.KS_LOG}
    s_add_u32 s5, s5, {WS_KEY:#x}
    v_mov_b32 v{t0}, 0
    """)
    for mod in ("quad_perm:[1,0,3,2]", "quad_perm:[2,3,0,1]", "row_half_mirror"):
        a(f"v_max_u32_dpp v{ST+1}, v{ST+1}, v{ST+1} {mod} row_mask:0xf bank_mask:0xf")
    a("s_waitcnt vmcnt(0)")
    a.label("K2_pub0")
    a(f"""
    s_barrier
    s_cmp_lg_u32 s38, 0
    s_cbranch_scc1 K2_pub
    s_mov_b64 exec, 1
    buffer_store_dwordx2 v[{ST}:{ST+1}], v{t0}, s[8:11], s5 offen sc1
    s_mov_b64 exec, -1
    """)
    a.label("K2_pub")
    if 'amp' in dbg: a('s_memrealtime s[96:97]'); a('s_waitcnt lgkmcnt(0)')
    st(1, 2)
    def fin():
        if G.STAMP: a("s_waitcnt vmcnt(0)")
        stamp(a, 6)
        if G.STAMP: a("s_mov_b32 s91, s30")
        stamp_out(a, 1, 8, "s6", WF)
        a("s_endpgm")
    a(f"""
    s_cmp_ge_u32 s2, 144
    s_cbranch_scc1 K2_fin
    """)
    AFR = V
    KY = K; Y = K + 8; BX = V + 32; AC = K + 16
    a(f"""
    s_setprio 0
    v_bfe_u32 v{t0}, v0, 2, 2
    v_lshrrev_b32 v{t4}, 4, v0           ; g
    v_lshl_add_u32 v{t0}, v{t4}, 3, v{t0}
    v_lshlrev_b32 v{t0}, 5, v{t0}
    v_and_b32 v{t1}, 3, v0
    v_lshl_add_u32 v{t0}, v{t1}, 3, v{t0}
    v_add_u32 v{t0}, s74, v{t0}
    """)
    for sx in range(7):
        for half in range(2):
            d = AFR + 4 * sx + 2 * half
            a(f"ds_read_b64_tr_b16 v[{d}:{d+1}], v{t0} offset:{sx*1024 + half*128}")
    a(f"""
    v_and_b32 v{t3}, 1, v0
    v_lshlrev_b32 v{vPW}, 6, v{t3}
    v_lshl_add_u32 v{vPW}, v{t4}, 4, v{vPW}
    s_lshl_b32 s5, s6, 7
    s_add_u32 s5, s5, {L_RED:#x}
    v_add_u32 v{vPW}, s5, v{vPW}
    v_and_b32 v{vPR}, 31, v0
    v_lshlrev_b32 v{vPR}, 2, v{vPR}      ; (lane&31)*4
    s_cmp_lg_u32 s6, 0
    s_cbranch_scc1 K2_nokey
    v_lshlrev_b32 v{t1}, {G.KS_LOG}, v0
    s_mov_b32 s5, {WS_KEY:#x}
    s_add_u32 s79, s5, {64 << G.KS_LOG}
    s_add_u32 s80, s5, {128 << G.KS_LOG}
    s_add_u32 s81, s5, {192 << G.KS_LOG}
    s_mov_b32 s36, 0
    """)
    a.label("K2_kpoll")
    a(f"""
    buffer_load_dwordx2 v[{KY}:{KY+1}], v{t1}, s[8:11], s5 offen sc1
    buffer_load_dwordx2 v[{KY+2}:{KY+3}], v{t1}, s[8:11], s79 offen sc1
    buffer_load_dwordx2 v[{KY+4}:{KY+5}], v{t1}, s[8:11], s80 offen sc1
    buffer_load_dwordx2 v[{KY+6}:{KY+7}], v{t1}, s[8:11], s81 offen sc1
    s_add_u32 s36, s36, 1
    s_waitcnt vmcnt(0)
    v_min3_u32 v{Y}, v{KY}, v{KY+1}, v{KY+2}
    v_min3_u32 v{Y+1}, v{KY+3}, v{KY+4}, v{KY+5}
    v_min3_u32 v{Y}, v{Y}, v{KY+6}, v{KY+7}
    v_min_u32 v{Y}, v{Y}, v{Y+1}
    v_cmp_eq_u32 vcc, 0, v{Y}
    s_cbranch_vccz K2_kok
    s_sleep {OPT.get('ksl', 2)}
    s_cmp_lt_u32 s36, 0x40000
    s_cbranch_scc1 K2_kpoll
    """)
    a.label("K2_kok")
    st(2, 2)
    if FS: a("s_mov_b32 s30, s36")
    B1, B2 = Y + 4, Y + 5
    a(f"""
    v_max_u32 v{B1}, v{KY}, v{KY+2}
    v_min_u32 v{B2}, v{KY}, v{KY+2}
    v_max3_u32 v{B2}, v{B2}, v{KY+1}, v{KY+3}
    v_max_u32 v{Y}, v{KY+4}, v{KY+6}
    v_min_u32 v{Y+1}, v{KY+4}, v{KY+6}
    v_max3_u32 v{Y+1}, v{Y+1}, v{KY+5}, v{KY+7}
    v_min_u32 v{Y+2}, v{B1}, v{Y}
    v_max_u32 v{B1}, v{B1}, v{Y}
    v_max3_u32 v{B2}, v{B2}, v{Y+1}, v{Y+2}
    v_mov_b32 v{Y}, v{B1}
    """)
    wave_max_u32(a, Y, Y + 1)
    a(f"""
    v_cmp_eq_u32 vcc, v{B1}, v{Y}
    v_cndmask_b32 v{B1}, v{B1}, v{B2}, vcc
    """)
    wave_max_u32(a, B1, Y + 1)
    a(f"""
    v_readfirstlane_b32 s40, v{Y}
    v_readfirstlane_b32 s41, v{B1}
    s_andn2_b32 s42, 0x7ff, s40
    s_andn2_b32 s43, 0x7ff, s41
    s_lshl_b32 s42, s42, 10
    s_lshl_b32 s43, s43, 10
    """)
    a.label("K2_nokey")
    a(f"""
    s_cmp_ge_u32 s2, 112
    s_cbranch_scc1 K2_down
    s_cmp_lg_u32 s6, 0
    s_cbranch_scc1 K2_up1
    s_add_u32 s36, s42, {WS_HN:#x}
    s_add_u32 s37, s43, {WS_HN:#x}
    buffer_load_dwordx4 v[{KY}:{KY+3}], v{vWL}, s[8:11], s36 offen sc1
    buffer_load_dwordx4 v[{KY+4}:{KY+7}], v{vWL}, s[8:11], s37 offen sc1
    s_waitcnt vmcnt(1)
    ds_write_b128 v{vWL}, v[{KY}:{KY+3}] offset:{L_XS}
    s_waitcnt vmcnt(0)
    ds_write_b128 v{vWL}, v[{KY+4}:{KY+7}] offset:{L_XS + 1040}
    """)
    a.label("K2_up1")
    st(3, 2)
    a(f"""
    v_mul_u32_u24 v{t0}, 1040, v{t3}
    v_lshl_add_u32 v{t0}, v{t4}, 4, v{t0}
    s_lshr_b32 s5, s6, 1
    s_lshl_b32 s5, s5, 8
    v_add_u32 v{t0}, s5, v{t0}
    s_waitcnt lgkmcnt(0)
    s_barrier
    """)
    for sx in range(4):
        a(f"ds_read_b128 v[{BX+4*sx}:{BX+4*sx+3}], v{t0} offset:{L_XS + 64*sx}")
    for sx in range(4):
        a(f"s_waitcnt lgkmcnt({3-sx})")
        c = "0" if sx == 0 else f"v[{AC}:{AC+3}]"
        a(f"v_mfma_f32_16x16x32_bf16 v[{AC}:{AC+3}], v[{AFR+4*sx}:{AFR+4*sx+3}], v[{BX+4*sx}:{BX+4*sx+3}], {c}")
    a(f"""
    ds_write_b128 v{vPW}, v[{AC}:{AC+3}]
    s_waitcnt lgkmcnt(0)
    s_barrier
    s_cmp_lg_u32 s6, 0
    s_cbranch_scc1 K2_fin
    """)
    def red_read():
        a(f"v_add_u32 v{t0}, {L_RED:#x}, v{vPR}")
        for k in range(4):
            a(f"ds_read2_b32 v[{KY+2*k}:{KY+2*k+1}], v{t0} offset0:{64*k} offset1:{64*k+32}")
        a("s_waitcnt lgkmcnt(0)")
        a(f"v_pk_add_f32 v[{KY}:{KY+1}], v[{KY}:{KY+1}], v[{KY+2}:{KY+3}]")
        a(f"v_pk_add_f32 v[{KY+4}:{KY+5}], v[{KY+4}:{KY+5}], v[{KY+6}:{KY+7}]")
        a(f"v_pk_add_f32 v[{KY}:{KY+1}], v[{KY}:{KY+1}], v[{KY+4}:{KY+5}]")
    st(4, 2)
    red_read()
    a(f"""
    v_cvt_pk_bf16_f32 v{KY}, 0, v{KY}
    v_cvt_pk_bf16_f32 v{KY+1}, 0, v{KY+1}
    """)
    sigmoid(a, KY + 2, KY, KY + 3)
    a(f"""
    v_mul_f32 v{KY}, v{KY}, v{KY+2}
    v_cvt_pk_bf16_f32 v{KY}, 0, v{KY}
    v_mul_f32 v{KY}, v{KY}, v{KY+1}
    v_cvt_pk_bf16_f32 v{KY}, 0, v{KY}
    v_or_b32 v{KY}, 1, v{KY}
    s_lshl_b32 s5, s76, 7
    s_add_u32 s5, s5, {WS_GU:#x}
    s_mov_b32 exec_hi, 0
    buffer_store_dword v{KY}, v{vPR}, s[8:11], s5 offen sc1
    s_mov_b64 exec, -1
    s_branch K2_fin
    """)
    a.label("K2_down")
    HH, NN, GT, OO = Y + 6, Y + 7, AC + 4, AC + 5
    a(f"""
    s_cmp_lg_u32 s6, 0
    s_cbranch_scc1 K2_dn1
    v_bfe_u32 v{t0}, v0, 4, 1
    v_cmp_eq_u32 vcc, 0, v{t0}
    v_mov_b32 v{t0}, s43
    v_mov_b32 v{t1}, s42
    v_cndmask_b32 v{OO}, v{t0}, v{t1}, vcc
    v_and_b32 v{t0}, 15, v0
    v_lshl_add_u32 v{OO}, v{t0}, 1, v{OO}
    s_lshl_b32 s44, s77, 5
    s_add_u32 s36, s44, {WS_H:#x}
    s_add_u32 s37, s44, {WS_HN:#x}
    buffer_load_ushort v{HH}, v{OO}, s[8:11], s36 offen sc1
    buffer_load_ushort v{NN}, v{OO}, s[8:11], s37 offen sc1
    v_mov_b32 v{t0}, s41
    v_mov_b32 v{t1}, s40
    v_cndmask_b32 v{GT}, v{t0}, v{t1}, vcc
    v_and_b32 v{GT}, 0xffff0000, v{GT}
    v_ashrrev_i32 v{t0}, 31, v{GT}
    v_not_b32 v{t0}, v{t0}
    v_or_b32 v{t0}, 0x80000000, v{t0}
    v_xor_b32 v{GT}, v{GT}, v{t0}
    v_and_b32 v{GT}, 0xffff0000, v{GT}
    """)
    sigmoid(a, GT, GT, t0)
    a(f"v_cvt_pk_bf16_f32 v{GT}, 0, v{GT}")
    a.label("K2_dn1")
    a(f"""
    s_mul_i32 s5, s6, 1792
    s_add_u32 s5, s5, {WS_GU:#x}
    v_min_u32 v{t1}, 47, v0
    v_lshlrev_b32 v{t1}, 4, v{t1}
    s_lshl_b32 s37, s6, 10
    s_add_u32 s37, s37, {L_GB:#x}
    v_lshrrev_b32 v{t0}, 3, v0
    v_lshlrev_b32 v{vPL}, 5, v{t0}
    v_and_b32 v{t0}, 3, v0
    v_lshl_add_u32 v{vPL}, v{t0}, 3, v{vPL}
    v_bfe_u32 v{t0}, v0, 2, 1
    v_mul_u32_u24 v{t0}, 464, v{t0}
    v_add3_u32 v{vPL}, v{vPL}, v{t0}, s37
    v_mul_u32_u24 v{vOW}, 464, v{t3}
    v_lshl_add_u32 v{vOW}, v{t4}, 4, v{vOW}
    v_add_u32 v{vOW}, s37, v{vOW}
    s_mov_b32 s45, 0x07060302
    s_mov_b32 s36, 0
    """)
    a.label("K2_gpoll")
    a(f"""
    buffer_load_dwordx4 v[{KY}:{KY+3}], v{vWL}, s[8:11], s5 offen sc1
    buffer_load_dwordx4 v[{KY+4}:{KY+7}], v{t1}, s[8:11], s5 offen offset:1024 sc1
    s_add_u32 s36, s36, 1
    s_waitcnt vmcnt(0)
    v_min3_u32 v{Y}, v{KY}, v{KY+1}, v{KY+2}
    v_min3_u32 v{Y+1}, v{KY+3}, v{KY+4}, v{KY+5}
    v_min3_u32 v{Y}, v{Y}, v{KY+6}, v{KY+7}
    v_min_u32 v{Y}, v{Y}, v{Y+1}
    v_cmp_eq_u32 vcc, 0, v{Y}
    s_cbranch_vccz K2_gok
    s_sleep {OPT.get('gsl', 2)}
    s_cmp_lt_u32 s36, 0x40000
    s_cbranch_scc1 K2_gpoll
    """)
    a.label("K2_gok")
    st(4, 2)
    a(f"""
    v_perm_b32 v{Y}, v{KY+1}, v{KY}, s45
    v_perm_b32 v{Y+1}, v{KY+3}, v{KY+2}, s45
    v_perm_b32 v{Y+2}, v{KY+5}, v{KY+4}, s45
    v_perm_b32 v{Y+3}, v{KY+7}, v{KY+6}, s45
    ds_write_b64 v{vPL}, v[{Y}:{Y+1}]
    s_mov_b32 exec_hi, 0xffff
    ds_write_b64 v{vPL}, v[{Y+2}:{Y+3}] offset:256
    s_mov_b64 exec, -1
    """)
    for sx in range(7):
        a(f"ds_read_b128 v[{BX+4*sx}:{BX+4*sx+3}], v{vOW} offset:{64*sx}")
    for sx in range(7):
        a(f"s_waitcnt lgkmcnt({6-sx})")
        c = "0" if sx == 0 else f"v[{AC}:{AC+3}]"
        a(f"v_mfma_f32_16x16x32_bf16 v[{AC}:{AC+3}], v[{AFR+4*sx}:{AFR+4*sx+3}], v[{BX+4*sx}:{BX+4*sx+3}], {c}")
    a(f"""
    ds_write_b128 v{vPW}, v[{AC}:{AC+3}]
    s_waitcnt lgkmcnt(0)
    s_barrier
    s_cmp_lg_u32 s6, 0
    s_cbranch_scc1 K2_fin
    """)
    red_read()
    a(f"""
    v_add_f32 v{KY}, v{KY}, v{KY+1}
    v_lshlrev_b32 v{HH}, 16, v{HH}
    v_lshlrev_b32 v{NN}, 16, v{NN}
    v_cvt_pk_bf16_f32 v{KY}, 0, v{KY}
    v_mul_f32 v{KY}, v{KY}, v{GT}
    v_cvt_pk_bf16_f32 v{KY}, 0, v{KY}
    v_add_f32 v{KY}, v{KY}, v{NN}
    v_cvt_pk_bf16_f32 v{KY}, 0, v{KY}
    v_add_f32 v{KY}, v{KY}, v{HH}
    v_cvt_pk_bf16_f32 v{KY}, v{KY}, v{KY}
    s_mov_b32 exec_hi, 0
    buffer_store_short v{KY}, v{OO}, s[20:23], s44 offen sc1
    s_mov_b64 exec, -1
    """)
    a.label("K2_fin")
    if 'amp' in dbg:
        q = int(OPT['amp'])
        expr = {0: None, 1: ("s83", "s82"), 2: ("s90", "s83"), 3: ("s96", "s90"), 4: ("s84", "s82"), 5: ("s94", "s90")}[q]
        a(f"""
        s_or_b32 s5, s2, s6
        s_cmp_lg_u32 s5, 0
        s_cbranch_scc1 K2_amp_end
        v_mov_b32 v{S1+4}, 0
        s_mov_b32 s5, {WS_SEL:#x}
        buffer_load_dwordx4 v[{S1}:{S1+3}], v{S1+4}, s[8:11], s5 offen
        s_waitcnt vmcnt(0)
        v_readfirstlane_b32 s82, v{S1}
        v_readfirstlane_b32 s83, v{S1+1}
        v_readfirstlane_b32 s84, v{S1+2}
        """)
        if expr: a(f"s_sub_u32 s85, {expr[0]}, {expr[1]}")
        else: a("s_mov_b32 s85, 0")
        a(f"""
        s_min_u32 s85, s85, 5000
        s_lshl_b32 s85, s85, 1
        s_add_u32 s85, s85, 600
        s_add_u32 s85, s85, s96
        """)
        a.label("K2_amp")
        a(f"""
        s_memrealtime s[86:87]
        s_waitcnt lgkmcnt(0)
        s_sub_u32 s86, s86, s85
        s_cmp_lt_i32 s86, 0
        s_cbranch_scc1 K2_amp
        """)
        a.label("K2_amp_end")
    if G.STAMP: a("s_waitcnt vmcnt(0)")
    stamp(a, 6)
    if G.STAMP: a("s_mov_b32 s91, s30")
    stamp_out(a, 1, 8, "s6", WF)
    dstamp(a, 1, True, 240)
    a.label("K2_end")
    a("s_endpgm")
    for k, off in enumerate(spins):
        a.label(f"K2_spin{k}")
        a(f"""
        s_sleep 1
        ds_read_b32 v{vFV}, v{vFR} offset:{off}
        s_waitcnt lgkmcnt(0)
        v_cmp_gt_u32 vcc, s29, v{vFV}
        s_cbranch_vccnz K2_spin{k}
        s_branch K2_back{k}
        """)
    n = a.fix()
    if G.ALIGN: print('align', align8(a))
    return a.text(), 256, L_TOTAL
```

```python
import sys
sys.path.insert(0, "gen")
from gen import *
import gen as G
from k1 import gen_k1
from k2 import gen_k2
out = sys.argv[1]; dbg = sys.argv[2] if len(sys.argv) > 2 else ""
t1, v1, l1 = gen_k1(dbg=dbg)
t2, v2, l2 = gen_k2(dbg=dbg)
kn = NAME + "_kernel"
lines = t1.split("\n")
res = []
for i, ln in enumerate(lines):
    if ln.strip() == "s_endpgm":
        res.append("    s_branch K12_join")
    elif ln.strip() == "s_cbranch_scc1 K1_end":
        res.append("    s_cbranch_scc1 K2_end")
    else:
        res.append(ln.replace("k1_kernel", kn))
t1 = "\n".join(res)
bar = """K12_join:
    s_mov_b64 exec, -1
    s_setprio 0
    s_load_dwordx2 s[92:93], s[0:1], 88
    s_waitcnt vmcnt(0) lgkmcnt(0)
    s_barrier
    v_cmp_gt_u32 vcc, 64, v0
    s_cbranch_vccz K12_wait
    s_mov_b32 s96, s92
    s_mov_b32 s97, s93
    s_mov_b32 s98, 256
    s_mov_b32 s99, 0x00020000
    buffer_wbl2 sc1
    s_and_b32 s3, s2, 7
    s_lshl_b32 s3, s3, 5
    v_mov_b32 v1, 1
    v_mov_b32 v2, 0
    v_and_b32 v3, 7, v0
    v_lshlrev_b32 v3, 5, v3
    s_waitcnt vmcnt(0)
    s_mov_b64 exec, 1
    buffer_atomic_add v1, v2, s[96:99], s3 offen sc1
    s_mov_b64 exec, -1
    s_mov_b32 s4, 0
K12_poll:
    buffer_load_dword v4, v3, s[96:99], 0 offen sc1
    s_add_u32 s4, s4, 1
    s_waitcnt vmcnt(0)
    v_cmp_gt_u32 vcc, 32, v4
    s_cbranch_vccz K12_ok
    s_sleep 2
    s_cmp_lt_u32 s4, 0x40000
    s_cbranch_scc1 K12_poll
K12_ok:
    buffer_inv sc1
    s_waitcnt vmcnt(0)
K12_wait:
    s_barrier
.p2align 3
"""
hdr = open(f"cdna_kernels/{NAME}.s.ref").read().split("\n")
o = []
for ln in hdr:
    if ln.startswith("; Override"): break
    o.append(ln)
aslist = 'aslist' in dbg
o.append(f"; @launch {'kernel=' + kn + ' ' if aslist else ''}grid=(256,1,1) block=(512,1,1) lds={max(l1, l2)}")
o.append('.amdgcn_target "amdgcn-amd-amdhsa--gfx950"')
o.append(kernel_header(kn) + t1 + bar + t2 + "K_all_end:")
o.append(kernel_desc(kn, 256))
open(out, "w").write("\n".join(o))
```

```python
import sys, struct
sys.path.insert(0, "gen")
from asmlib import *

NAME = "sequential_preLN__grouped_kv_mqa__moe_arch_mod__prompt"
WS_Q    = 0x000000
WS_KV   = 0x260000
TS = 2176
WS_KEY  = 0x2C0000
KS_LOG = 6
REP = 8
WS_GU   = 0x2A0000
WS_FL   = 0x200000
WS_FQ   = 0x220000
WS_EP   = 0x227000
WS_SEL  = 0x228000
WS_YP   = 0x230000
WS_H    = 0x300000
WS_HN   = 0x500000
WS_WOF  = 0x780000
WS_SIZE = 0x800000
WS_STAMP = 0x700000
STAMP = False
ALIGN = True
DSTAMP = False
def set_dstamp(v):
    global DSTAMP
    DSTAMP = v
def dstamp(a, kid, end, vt):
    if not DSTAMP: return
    if not end:
        a("""
        s_memrealtime s[90:91]
        s_load_dwordx2 s[92:93], s[0:1], 88
        """)
        return
    a(f"""
    s_waitcnt vmcnt(0)
    s_memrealtime s[100:101]
    s_waitcnt lgkmcnt(0)
    s_cmp_lg_u32 s2, 5
    s_cbranch_scc1 DS_skip{kid}
    s_add_u32 s96, s92, {(3 - kid) * 512}
    s_addc_u32 s97, s93, 0
    s_mov_b32 s98, 256
    s_mov_b32 s99, 0x00020000
    s_mov_b64 s[94:95], exec
    s_mov_b64 exec, 1
    v_mov_b32 v{vt}, s90
    v_mov_b32 v{vt+1}, 0
    v_mov_b32 v{vt+2}, s100
    buffer_store_dword v{vt}, v{vt+1}, s[96:99], 0 offen offset:{8 * kid}
    buffer_store_dword v{vt+2}, v{vt+1}, s[96:99], 0 offen offset:{8 * kid + 4}
    s_getreg_b32 s89, hwreg(HW_REG_XCC_ID)
    v_mov_b32 v{vt}, s89
    buffer_store_dword v{vt}, v{vt+1}, s[96:99], 0 offen offset:{32 + 4 * kid}
    s_getreg_b32 s89, hwreg(HW_REG_HW_ID)
    v_mov_b32 v{vt+2}, s89
    buffer_store_dword v{vt+2}, v{vt+1}, s[96:99], 0 offen offset:{48 + 4 * kid}
    s_mov_b64 exec, s[94:95]
    """)
    a.label(f"DS_skip{kid}")
def set_stamp(v):
    global STAMP
    STAMP = v
def stamp(a, i):
    if not STAMP: return
    a(f"""
    s_memtime s[82:83]
    s_memrealtime s[100:101]
    s_waitcnt lgkmcnt(0)
    s_mov_b32 s{84+i}, s82
    s_mov_b32 s{92+i}, s100
    """)
def stamp_out(a, kid, srd_base, swave, vt):
    if not STAMP: return
    a(f"""
    s_mov_b64 exec, 1
    s_lshl_b32 s82, s2, 3
    s_add_u32 s82, s82, {swave}
    s_lshl_b32 s82, s82, 6
    s_add_u32 s82, s82, {WS_STAMP + kid * 0x20000:#x}
    v_mov_b32 v{vt}, 0
    """)
    for i in range(16):
        a(f"v_mov_b32 v{vt+1}, s{84+i}")
        a(f"buffer_store_dword v{vt+1}, v{vt}, s[{srd_base}:{srd_base+3}], s82 offen offset:{4*i}")
    a("s_mov_b64 exec, -1")

def f2u(x): return struct.unpack("<I", struct.pack("<f", x))[0]

def srd(a, d, lo, hi, size):
    a(f"""
    s_mov_b32 s{d}, s{lo}
    s_mov_b32 s{d+1}, s{hi}
    s_mov_b32 s{d+2}, {size:#x}
    s_mov_b32 s{d+3}, 0x00020000
    """)

def ln_scalars(a, vsum, vsq, vm, vrs, t0, t1, two_pass_var=False):
    a(f"v_mul_f32 v{t0}, {f2u(1/512):#x}, v{vsum}")
    a(f"v_mul_f32 v{t1}, {f2u(1/512):#x}, v{vsq}")
    if not two_pass_var:
        a(f"v_fma_f32 v{t1}, -v{t0}, v{t0}, v{t1}")
        a(f"v_max_f32 v{t1}, 0, v{t1}")
    a(f"""
    v_cvt_pk_bf16_f32 v{vm}, 0, v{t0}
    v_cvt_pk_bf16_f32 v{t1}, 0, v{t1}
    v_add_f32 v{t1}, {f2u(1e-5):#x}, v{t1}
    v_cvt_pk_bf16_f32 v{t1}, 0, v{t1}
    v_sqrt_f32 v{t1}, v{t1}
    v_cvt_pk_bf16_f32 v{t1}, 0, v{t1}
    v_rcp_f32 v{vrs}, v{t1}
    """)

def sum_swap(a, v, t, which):
    a(f"""
    v_mov_b32 v{t}, v{v}
    v_permlane{which}_swap_b32 v{t}, v{v}
    v_add_f32 v{v}, v{v}, v{t}
    """)

def gen_k1():
    a = Asm()
    X = 32
    ACC = 96
    AF = 116
    T = 148
    a(f"""
    s_cmp_ge_u32 s2, 256
    s_cbranch_scc1 K1_end
    """)
    stamp(a, 0)
    a(f"""
    s_load_dwordx4 s[24:27], s[0:1], 0
    s_load_dwordx4 s[28:31], s[0:1], 16
    s_load_dwordx2 s[32:33], s[0:1], 96
    s_load_dwordx2 s[44:45], s[0:1], 32
    s_and_b32 s3, s2, 7
    s_lshr_b32 s4, s2, 3
    s_and_b32 s5, s4, 7
    s_lshr_b32 s4, s4, 3
    s_lshl_b32 s3, s3, 2
    s_add_u32 s3, s3, s4
    v_lshrrev_b32 v1, 6, v0
    v_and_b32 v2, 63, v0           ; lane
    v_readfirstlane_b32 s6, v1     ; wave
    v_and_b32 v3, 15, v2           ; l & 15
    v_lshrrev_b32 v4, 4, v2        ; g
    s_lshl_b32 s7, s3, 6
    s_lshl_b32 s34, s6, 4
    s_add_u32 s7, s7, s34
    v_add_u32 v5, s7, v3           ; token
    v_lshlrev_b32 v6, 10, v5
    v_lshl_add_u32 v6, v4, 4, v6
    v_lshrrev_b32 v7, 3, v2        ; row_in
    v_and_b32 v8, 7, v2            ; slot
    v_and_b32 v9, 2, v7            ; ((row_in>>1)&1)<<1
    v_xor_b32 v8, v8, v9
    v_xor_b32 v9, 4, v8
    s_lshl_b32 s34, s6, 17
    s_lshl_b32 s35, s5, 7
    s_add_u32 s34, s34, s35
    v_lshlrev_b32 v7, 10, v7
    v_add_u32 v7, s34, v7
    v_lshl_add_u32 v10, v8, 4, v7
    v_lshl_add_u32 v11, v9, 4, v7
    s_waitcnt lgkmcnt(0)
    """)
    srd(a, 8, 24, 25, 0x200000)
    srd(a, 12, 26, 27, 0x80000)
    for s in range(16):
        a(f"buffer_load_dwordx4 v[{X+4*s}:{X+4*s+3}], v6, s[8:11], 0 offen offset:{64*s}")
    a("s_lshl_b32 s36, s6, 14")
    a("s_mov_b32 s37, 0")
    for i in range(16):
        a(f"s_add_u32 m0, s36, {i*1024}")
        a(f"buffer_load_dwordx4 v{10 + (i & 1)}, s[12:15], s37 offen lds")
        if i < 15: a(f"s_add_u32 s37, s37, 8192")
    a(f"""
    s_cmp_eq_u32 s5, 0
    s_cselect_b64 s[38:39], s[28:29], s[30:31]
    """)
    srd(a, 16, 38, 39, 0x4000)
    srd(a, 20, 32, 33, WS_SIZE)
    a(f"""
    s_cmp_gt_u32 s5, 1
    s_cbranch_scc1 K1_nokv
    v_lshlrev_b32 v12, 4, v0       ; tid*16
    s_lshl_b32 s36, s6, 10
    s_add_u32 s36, s36, 65536
    """)
    for i in range(4):
        a(f"s_add_u32 m0, s36, {i*4096}")
        a(f"s_mov_b32 s37, {i*4096}")
        a(f"buffer_load_dwordx4 v12, s[16:19], s37 offen lds")
    a.label("K1_nokv")
    srd(a, 40, 44, 45, 0x80000)
    a(f"""
    s_cmp_lt_u32 s6, 2
    s_cbranch_scc1 K1_nowo
    s_lshl_b32 s46, s2, 1
    s_and_b32 s47, s6, 1
    s_add_u32 s46, s46, s47
    s_lshr_b32 s47, s46, 6
    s_lshl_b32 s47, s47, 16
    s_bfe_u32 s48, s46, 0x10002
    s_lshl_b32 s48, s48, 15        ; s * 32 rows
    s_add_u32 s47, s47, s48
    s_bfe_u32 s48, s46, 0x30003
    s_lshl_b32 s48, s48, 7         ; w * 128 B
    s_add_u32 s47, s47, s48
    s_and_b32 s48, s46, 3
    s_lshl_b32 s48, s48, 5         ; t * 32 B
    s_add_u32 s47, s47, s48
    v_lshrrev_b32 v12, 1, v2
    v_lshlrev_b32 v12, 10, v12
    v_and_b32 v18, 1, v2
    v_lshl_add_u32 v12, v18, 4, v12
    s_lshl_b32 s48, s6, 10
    s_add_u32 m0, s48, {81920 - 2048}
    s_nop 0
    buffer_load_dwordx4 v12, s[40:43], s47 offen lds
    """)
    a.label("K1_nowo")
    a(f"""
    v_bfe_u32 v18, v2, 2, 2        ; r'
    v_and_b32 v19, 3, v2           ; c'
    v_lshl_add_u32 v20, v4, 3, v18 ; 8g + r'
    v_lshlrev_b32 v21, 7, v20
    v_lshl_add_u32 v21, v19, 3, v21   ; row*128 + 8c'
    v_lshrrev_b32 v22, 1, v18
    v_and_b32 v23, 1, v4
    v_lshl_or_b32 v22, v23, 1, v22 ; h
    """)
    for t in range(4):
        a(f"v_xor_b32 v23, {t}, v22")
        a(f"v_lshl_add_u32 v{13+t}, v23, 5, v21")
    a(f"""
    v_lshlrev_b32 v17, 5, v20
    v_lshl_add_u32 v17, v19, 3, v17
    v_add_u32 v17, 65536, v17
    v_mov_b32 v24, 0x3f803f80
    v_mov_b32 v25, 0
    v_mov_b32 v26, 0
    """)
    stamp(a, 1)
    a("s_waitcnt vmcnt(16)")
    stamp(a, 2)
    for r in range(64):
        a(f"v_dot2_f32_bf16 v25, v{X+r}, v24, v25")
        a(f"v_dot2_f32_bf16 v26, v{X+r}, v{X+r}, v26")
    for w in (16, 32):
        sum_swap(a, 25, 27, w)
        sum_swap(a, 26, 28, w)
    ln_scalars(a, 25, 26, 28, 30, 27, 29)
    for r in range(64):
        t = T + 2 * (r % 4)
        a(f"""
        v_lshlrev_b32 v{t}, 16, v{X+r}
        v_and_b32 v{t+1}, 0xffff0000, v{X+r}
        v_pk_add_f32 v[{t}:{t+1}], v[{t}:{t+1}], v[28:29] op_sel_hi:[1,0] neg_lo:[0,1] neg_hi:[0,1]
        v_cvt_pk_bf16_f32 v{t}, 0, v{t}
        v_cvt_pk_bf16_f32 v{t+1}, 0, v{t+1}
        v_pk_mul_f32 v[{t}:{t+1}], v[{t}:{t+1}], v[30:31] op_sel_hi:[1,0]
        v_cvt_pk_bf16_f32 v{X+r}, v{t}, v{t+1}
        """)
    stamp(a, 3)
    a("s_waitcnt vmcnt(0)")
    a("s_barrier")
    stamp(a, 4)
    a(f"""
    s_cmp_lt_u32 s6, 2
    s_cbranch_scc1 K1_nowo2
    s_lshl_b32 s48, s6, 10
    s_add_u32 s48, s48, {81920 - 2048 - 65536}
    v_add_u32 v12, s48, v17
    ds_read_b64_tr_b16 v[{T}:{T+1}], v12
    ds_read_b64_tr_b16 v[{T+2}:{T+3}], v12 offset:128
    s_lshl_b32 s46, s46, 10
    s_add_u32 s46, s46, {WS_WOF:#x}
    v_lshlrev_b32 v12, 4, v2
    s_waitcnt lgkmcnt(0)
    buffer_store_dwordx4 v[{T}:{T+3}], v12, s[20:23], s46 offen
    """)
    a.label("K1_nowo2")
    def rd1(u):
        s, t = u >> 2, u & 3
        for half in range(2):
            d = AF + 4 * (u & 7) + 2 * half
            a(f"ds_read_b64_tr_b16 v[{d}:{d+1}], v{13+t} offset:{s*4096 + half*512}")
    for u in range(6): rd1(u)
    for u in range(64):
        s, t = u >> 2, u & 3
        if u + 6 < 64: rd1(u + 6)
        a(f"s_waitcnt lgkmcnt({2 * min(6, 63 - u)})")
        d = AF + 4 * (u & 7)
        c = "0" if s == 0 else f"v[{ACC+4*t}:{ACC+4*t+3}]"
        a(f"v_mfma_f32_16x16x32_bf16 v[{ACC+4*t}:{ACC+4*t+3}], v[{d}:{d+3}], v[{X+4*s}:{X+4*s+3}], {c}")
    a(f"""
    s_lshl_b32 s35, s5, 7
    v_lshlrev_b32 v7, 10, v5
    v_lshl_add_u32 v7, v4, 3, v7
    v_add_u32 v7, s35, v7
    """)
    for r in range(16): a(f"v_cvt_pk_bf16_f32 v{ACC+r}, 0, v{ACC+r}")
    for r in range(16): a(f"v_mul_f32 v{ACC+r}, {f2u(0.25 * 1.4426950408889634):#x}, v{ACC+r}")
    for t in range(4):
        a(f"v_cvt_pk_bf16_f32 v{T+2*t}, v{ACC+4*t}, v{ACC+4*t+1}")
        a(f"v_cvt_pk_bf16_f32 v{T+2*t+1}, v{ACC+4*t+2}, v{ACC+4*t+3}")
        a(f"buffer_store_dwordx2 v[{T+2*t}:{T+2*t+1}], v7, s[20:23], 0 offen offset:{32*t}")
    stamp(a, 5)
    if STAMP: a("s_waitcnt vmcnt(0)")
    stamp(a, 6)
    stamp_out(a, 0, 20, "s6", 158)
    a(f"""
    s_cmp_gt_u32 s5, 1
    s_cbranch_scc1 K1_end
    """)
    KV = ACC + 16
    for hb in range(2):
        for s8 in range(8):
            s = hb * 8 + s8
            for half in range(2):
                d = AF + 4 * s8 + 2 * half
                a(f"ds_read_b64_tr_b16 v[{d}:{d+1}], v17 offset:{s*1024 + half*128}")
        a("s_waitcnt lgkmcnt(0)")
        a("s_cmp_eq_u32 s5, 0")
        a(f"s_cbranch_scc0 K1_v{hb}")
        for s8 in range(8):
            s = hb * 8 + s8
            c = "0" if s == 0 else f"v[{KV}:{KV+3}]"
            a(f"v_mfma_f32_16x16x32_bf16 v[{KV}:{KV+3}], v[{AF+4*s8}:{AF+4*s8+3}], v[{X+4*s}:{X+4*s+3}], {c}")
        a(f"s_branch K1_j{hb}")
        a.label(f"K1_v{hb}")
        for s8 in range(8):
            s = hb * 8 + s8
            c = "0" if s == 0 else f"v[{KV}:{KV+3}]"
            a(f"v_mfma_f32_16x16x32_bf16 v[{KV}:{KV+3}], v[{X+4*s}:{X+4*s+3}], v[{AF+4*s8}:{AF+4*s8+3}], {c}")
        a.label(f"K1_j{hb}")
    a(f"""
    v_lshlrev_b32 v7, 5, v5
    v_lshl_add_u32 v7, v4, 3, v7
    v_add_u32 v7, {WS_K:#x}, v7
    s_lshl_b32 s35, s7, 5
    s_add_u32 s35, s35, {WS_VT:#x}
    v_and_b32 v8, 1, v4
    v_lshlrev_b32 v8, 8, v8
    v_lshl_add_u32 v8, v3, 4, v8
    v_lshrrev_b32 v9, 1, v4
    v_lshl_add_u32 v8, v9, 3, v8
    v_add_u32 v8, s35, v8
    s_cmp_eq_u32 s5, 0
    s_cselect_b64 vcc, -1, 0
    v_cndmask_b32 v7, v8, v7, vcc
    v_cvt_pk_bf16_f32 v{T}, v{KV}, v{KV+1}
    v_cvt_pk_bf16_f32 v{T+1}, v{KV+2}, v{KV+3}
    buffer_store_dwordx2 v[{T}:{T+1}], v7, s[20:23], 0 offen
    """)
    a.label("K1_end")
    a("s_endpgm")
    a.fix()
    return a.text(), 160, 81920 + 2048

KERNELS = []

def build(kernels, path):
    hdr = open(f"cdna_kernels/{NAME}.s.ref").read().split("\n")
    out = []
    for ln in hdr:
        if ln.startswith("; Override") : break
        out.append(ln)
    for (name, text, vg, lds, grid, block) in kernels:
        out.append(f"; @launch kernel={name} grid=({grid},1,1) block=({block},1,1) lds={lds}")
    out.append('.amdgcn_target "amdgcn-amd-amdhsa--gfx950"')
    seen = set()
    for (name, text, vg, lds, grid, block) in kernels:
        if name in seen: continue
        seen.add(name)
        out.append(kernel_header(name) + text)
    out.append("K_all_end:")
    seen = set()
    for (name, text, vg, lds, grid, block) in kernels:
        if name in seen: continue
        seen.add(name)
        out.append(kernel_desc(name, vg))
    open(path, "w").write("\n".join(out))

if __name__ == "__main__":
    t1, v1, l1 = gen_k1()
    ks = [("k1_kernel", t1, v1, l1, 256, 256)]
    build(ks, sys.argv[1] if len(sys.argv) > 1 else f"cdna_kernels/{NAME}.s")
```

```python
from gen import *
import gen as G

L_KV = 65536; L_WOT = 81920; L_X = 81920 + 2048; L1_TOTAL = L_X + 65536

def gen_k1(dbg=''):
    a = Asm()
    X = 32
    ACC = 96
    AF = 116
    T = 148
    a(f"""
    s_cmp_ge_u32 s2, 256
    s_cbranch_scc1 K1_end
    """)
    stamp(a, 0)
    if ('leak' in dbg or 'amp' in dbg): a('s_memrealtime s[90:91]')
    dstamp(a, 0, False, 200)
    a(f"""
    s_load_dwordx8 s[24:31], s[0:1], 0
    s_load_dwordx2 s[44:45], s[0:1], 32
    s_load_dwordx2 s[32:33], s[0:1], 96
    s_and_b32 s3, s2, 7
    s_lshr_b32 s4, s2, 3
    s_and_b32 s5, s4, 7
    s_lshr_b32 s4, s4, 3           ; tb & 3
    s_lshl_b32 s3, s3, 2
    s_add_u32 s3, s3, s4
    v_lshrrev_b32 v1, 6, v0
    v_and_b32 v2, 63, v0           ; lane
    v_readfirstlane_b32 s6, v1     ; wave
    v_and_b32 v3, 15, v2           ; l & 15
    v_lshrrev_b32 v4, 4, v2        ; g
    v_bfe_u32 v18, v2, 2, 2        ; r'
    v_and_b32 v19, 3, v2           ; c'
    v_lshl_add_u32 v20, v4, 3, v18 ; 8g + r'
    v_lshlrev_b32 v17, 5, v20
    v_lshl_add_u32 v17, v19, 3, v17
    s_cmp_ge_u32 s6, 4
    s_cbranch_scc1 K1_loader
    s_lshl_b32 s7, s3, 6
    s_lshl_b32 s34, s6, 4
    s_add_u32 s7, s7, s34
    v_add_u32 v5, s7, v3           ; token
    v_lshrrev_b32 v6, 2, v2        ; row
    v_lshrrev_b32 v7, 4, v2
    v_and_b32 v7, 2, v7
    v_xor_b32 v7, v7, v19
    v_lshlrev_b32 v6, 10, v6
    v_lshl_add_u32 v6, v7, 4, v6
    s_lshl_b32 s63, s6, 14
    s_add_u32 s63, s63, {L_X}
    s_lshl_b32 s64, s7, 10
    s_lshl_b32 s62, s5, 7
    s_waitcnt lgkmcnt(0)
    """)
    stamp(a, 1)
    srd(a, 8, 24, 25, 0x200000)
    def xdma(u):
        if u % 2 == 0:
            a(f"""
            s_add_u32 m0, s63, {u*1024}
            s_add_u32 s48, s62, s64
            buffer_load_dwordx4 v6, s[8:11], s48 offen lds
            """)
        else:
            a(f"""
            s_add_u32 m0, s63, {u*1024 - 64}
            s_add_u32 s62, s62, 128
            buffer_load_dwordx4 v6, s[8:11], s48 offen offset:64 lds
            s_and_b32 s62, s62, 0x3ff
            """)
    for u in range(10): xdma(u)
    srd(a, 20, 32, 33, WS_SIZE)
    ONE = 24; SEL = 8
    SEL = 152
    a(f"""
    v_lshlrev_b32 v21, 7, v20
    v_lshl_add_u32 v21, v19, 3, v21   ; row*128 + 8c'
    v_lshrrev_b32 v22, 1, v18
    v_and_b32 v23, 1, v4
    v_lshl_or_b32 v22, v23, 1, v22 ; h
    """)
    for t in range(4):
        a(f"v_xor_b32 v23, {t}, v22")
        a(f"v_lshl_add_u32 v{13+t}, v23, 5, v21")
    a(f"""
    v_lshlrev_b32 v10, 6, v3
    v_lshrrev_b32 v7, 2, v3
    v_and_b32 v7, 2, v7
    v_xor_b32 v7, v7, v4
    v_lshl_add_u32 v10, v7, 4, v10
    v_add_u32 v10, s63, v10
    v_and_b32 v7, 1, v4
    v_lshlrev_b32 v7, 7, v7
    v_add_u32 v17, {L_KV}, v17
    v_xor_b32 v12, v17, v7
    v_xor_b32 v17, 128, v12
    """)
    for r in range(4): a(f"v_mov_b32 v{ONE+r}, 0x3f803f80")
    a(f"""
    v_and_b32 v7, 1, v2
    v_lshlrev_b32 v7, 4, v7
    v_mov_b32 v8, 0x3f80
    v_lshlrev_b32 v7, v7, v8
    v_cmp_eq_u32 s[36:37], v18, v4 ; g == (l&15)>>2
    v_bfe_u32 v8, v2, 1, 1
    v_cmp_eq_u32 vcc, 0, v8
    s_and_b64 s[38:39], s[36:37], vcc
    s_andn2_b64 s[40:41], s[36:37], vcc
    v_mov_b32 v{SEL}, 0
    v_mov_b32 v{SEL+1}, 0
    v_cndmask_b32 v{SEL+2}, 0, v7, s[38:39]
    v_cndmask_b32 v{SEL+3}, 0, v7, s[40:41]
    v_mov_b32 v{SEL+4}, 0
    v_mov_b32 v{SEL+5}, 0
    """)
    for u in range(10, 16): xdma(u)
    stamp(a, 2)
    if 'k1nb' not in dbg: a("s_barrier")
    stamp(a, 3)
    if ('leak' in dbg or 'amp' in dbg): a('s_memrealtime s[94:95]')
    m16 = "v_mfma_f32_16x16x32_bf16"
    SUM = ACC; GR = ACC + 4; NM = 220
    def stat(u):
        xs = f"v[{X+4*u}:{X+4*u+3}]"
        a(f"{m16} v[{SUM}:{SUM+3}], v[{ONE}:{ONE+3}], {xs}, " + ("0" if u == 0 else f"v[{SUM}:{SUM+3}]"))
        a(f"{m16} v[{GR}:{GR+3}], {xs}, {xs}, " + ("0" if u == 0 else f"v[{GR}:{GR+3}]"))
    for u in range(0, 16, 2):
        a(f"s_waitcnt vmcnt({14-u})")
        a(f"ds_read_b128 v[{X+4*u}:{X+4*u+3}], v10 offset:{1024*u}")
        a(f"ds_read_b128 v[{X+4*u+4}:{X+4*u+7}], v10 offset:{1024*u+1024}")
        if u >= 4:
            a("s_waitcnt lgkmcnt(4)")
            stat(u - 4); stat(u - 3)
    a("s_waitcnt lgkmcnt(2)"); stat(12); stat(13)
    a("s_waitcnt lgkmcnt(0)"); stat(14); stat(15)
    stamp(a, 4)
    a(f"""
    v_and_b32 v7, 1, v2
    v_cmp_eq_u32 s[42:43], 1, v7
    v_cndmask_b32 v8, v{GR}, v{GR+1}, s[42:43]
    v_cndmask_b32 v9, v{GR+2}, v{GR+3}, s[42:43]
    v_cndmask_b32 v8, 0, v8, s[38:39]
    v_cndmask_b32 v26, v8, v9, s[40:41]
    """)
    for w in (16, 32):
        sum_swap(a, 26, 28, w)
    ln_scalars(a, SUM, 26, 28, 30, 27, 29)
    for r in range(4): a(f"v_sub_f32 v{NM+r}, 0, v28")
    NB = 4
    def sub(u):
        d = AF + 8 * (u % NB)
        xs = f"v[{X+4*u}:{X+4*u+3}]"
        a(f"{m16} v[{d}:{d+3}], v[{SEL+2}:{SEL+5}], {xs}, v[{NM}:{NM+3}]")
        a(f"{m16} v[{d+4}:{d+7}], v[{SEL}:{SEL+3}], {xs}, v[{NM}:{NM+3}]")
    sub(0); sub(1)
    def ln_step(u):
        d = AF + 8 * (u % NB); L = []
        for r in range(4): L.append(f"v_cvt_pk_bf16_f32 v{d+r}, 0, v{d+r}")
        if u + 2 < 16:
            dd = AF + 8 * ((u + 2) % NB); xs = f"v[{X+4*(u+2)}:{X+4*(u+2)+3}]"
            L.append(f"{m16} v[{dd}:{dd+3}], v[{SEL+2}:{SEL+5}], {xs}, v[{NM}:{NM+3}]")
        for r in range(4, 8): L.append(f"v_cvt_pk_bf16_f32 v{d+r}, 0, v{d+r}")
        for r in range(0, 8, 2): L.append(f"v_pk_mul_f32 v[{d+r}:{d+r+1}], v[{d+r}:{d+r+1}], v[30:31] op_sel_hi:[1,0]")
        if u + 2 < 16:
            L.append(f"{m16} v[{dd+4}:{dd+7}], v[{SEL}:{SEL+3}], {xs}, v[{NM}:{NM+3}]")
        for r in range(4): L.append(f"v_cvt_pk_bf16_f32 v{X+4*u+r}, v{d+2*r}, v{d+2*r+1}")
        return L
    LEAD = int(dict(x.split('=') for x in dbg.split(',') if '=' in x).get('lead', 16))
    for u in range(LEAD):
        for ins in ln_step(u): a(ins)
    a("s_barrier")
    stamp(a, 5)
    RG = 160
    def rd(s, t):
        for half in range(2):
            d = RG + 20 * (s % 3) + 4 * t + 2 * half
            if t < 4: a(f"ds_read_b64_tr_b16 v[{d}:{d+1}], v{13+t} offset:{s*4096 + half*512}")
            else:     a(f"ds_read_b64_tr_b16 v[{d}:{d+1}], v{17 if half else 12} offset:{s*1024}")
    for t in range(5): rd(0, t)
    for t in range(5): rd(1, t)
    for s in range(16):
        L = ln_step(s + LEAD) if s + LEAD < 16 else []
        a(f"s_waitcnt lgkmcnt({10 if s < 15 else 0})")
        for t in range(5):
            d = RG + 20 * (s % 3) + 4 * t
            c = "0" if s == 0 else f"v[{ACC+4*t}:{ACC+4*t+3}]"
            a(f"{m16} v[{ACC+4*t}:{ACC+4*t+3}], v[{d}:{d+3}], v[{X+4*s}:{X+4*s+3}], {c}")
            if s + 2 < 16: rd(s + 2, t)
            n = (len(L) + (4 - t)) // (5 - t)
            for ins in L[:n]: a(ins)
            L = L[n:]
    a(f"""
    s_lshl_b32 s35, s5, 10
    v_lshrrev_b32 v7, 3, v5
    v_lshlrev_b32 v7, 13, v7
    v_and_b32 v8, 7, v5
    v_lshl_add_u32 v7, v8, 4, v7
    v_lshrrev_b32 v9, 1, v4
    v_lshl_add_u32 v7, v9, 9, v7
    v_and_b32 v11, 1, v4
    v_lshl_add_u32 v7, v11, 7, v7
    """)
    for tp in range(2):
        for t in (2 * tp, 2 * tp + 1):
            for r in range(4): a(f"v_cvt_pk_bf16_f32 v{ACC+4*t+r}, 0, v{ACC+4*t+r}")
            for r in range(4): a(f"v_mul_f32 v{ACC+4*t+r}, {f2u(0.25 * 1.4426950408889634):#x}, v{ACC+4*t+r}")
            a(f"v_cvt_pk_bf16_f32 v{AF+2*t}, v{ACC+4*t}, v{ACC+4*t+1}")
            a(f"v_cvt_pk_bf16_f32 v{AF+2*t+1}, v{ACC+4*t+2}, v{ACC+4*t+3}")
        b = AF + 4 * tp
        a(f"v_permlane16_swap_b32 v{b}, v{b+2}")
        a(f"v_permlane16_swap_b32 v{b+1}, v{b+3}")
        a(f"buffer_store_dwordx4 v[{b}:{b+3}], v7, s[20:23], s35 offen offset:{256*tp}")
    KV = ACC + 16
    a(f"""
    s_cmp_gt_u32 s5, 1
    s_cbranch_scc1 K1_q
    v_cvt_pk_bf16_f32 v{T}, v{KV}, v{KV+1}
    v_cvt_pk_bf16_f32 v{T+1}, v{KV+2}, v{KV+3}
    s_lshr_b32 s35, s7, 5
    s_mul_i32 s35, s35, {TS}
    s_add_u32 s35, s35, {WS_KV:#x}
    s_cmp_eq_u32 s5, 0
    s_cbranch_scc0 K1_v
    v_and_b32 v8, 31, v5
    v_lshlrev_b32 v8, 4, v8
    v_lshl_add_u32 v8, v9, 9, v8
    v_lshl_add_u32 v8, v11, 3, v8
    buffer_store_dwordx2 v[{T}:{T+1}], v8, s[20:23], s35 offen
    s_branch K1_q
    """)
    a.label("K1_v")
    a(f"""
    s_and_b32 s36, s6, 1
    s_mul_i32 s36, s36, 544
    s_add_u32 s35, s35, s36
    v_lshrrev_b32 v8, 3, v3
    v_mul_u32_u24 v8, 272, v8
    v_and_b32 v9, 7, v3
    v_lshl_add_u32 v8, v9, 1, v8
    v_mov_b32 v9, 0x3f80
    buffer_store_short v9, v8, s[20:23], s35 offen offset:{1024 + 256}
    v_lshl_add_u32 v8, v4, 6, v8
    buffer_store_short v{T}, v8, s[20:23], s35 offen offset:1024
    buffer_store_short_d16_hi v{T}, v8, s[20:23], s35 offen offset:1040
    buffer_store_short v{T+1}, v8, s[20:23], s35 offen offset:1056
    buffer_store_short_d16_hi v{T+1}, v8, s[20:23], s35 offen offset:1072
    """)
    a.label("K1_q")
    if G.STAMP: a("s_waitcnt vmcnt(0)")
    stamp(a, 6)
    stamp_out(a, 0, 20, "s6", 158)
    if ('leak' in dbg or 'amp' in dbg):
        a(f"""
        s_waitcnt vmcnt(0)
        s_memrealtime s[92:93]
        s_waitcnt lgkmcnt(0)
        s_cmp_ge_u32 s2, 64
        s_cbranch_scc1 K1_leak
        v_mov_b32 v40, s90
        v_mov_b32 v41, s92
        v_mov_b32 v42, s94
        v_mov_b32 v43, 0
        s_lshl_b32 s48, s2, 4
        s_add_u32 s48, s48, {WS_SEL:#x}
        s_mov_b64 exec, 1
        buffer_store_dwordx4 v[40:43], v43, s[20:23], s48 offen
        """)
        a.label("K1_leak")
    dstamp(a, 0, True, 200)
    a("s_endpgm")
    a.label("K1_loader")
    if 'noldprio' not in dbg: a("s_setprio 3")
    if 'nocodepf' not in dbg:
        a(f"""
        s_cmp_ge_u32 s2, 16
        s_cbranch_scc1 K1_nocp
        s_getpc_b64 s[60:61]
        """)
        a.label("K1_pc")
        a(f"""
        s_sub_u32 s60, s60, K1_pc-k1_kernel
        s_subb_u32 s61, s61, 0
        v_subrev_u32 v30, 256, v0
        v_lshlrev_b32 v30, 7, v30
        v_min_u32 v30, K_all_end-k1_kernel-4, v30
        global_load_dword v31, v30, s[60:61]
        """)
        a.label("K1_nocp")
    a(f"""
    s_sub_u32 s6, s6, 4
    v_lshrrev_b32 v7, 3, v2        ; row_in
    v_and_b32 v8, 7, v2            ; slot
    v_and_b32 v9, 2, v7
    v_xor_b32 v8, v8, v9
    v_xor_b32 v9, 4, v8
    s_lshl_b32 s35, s5, 7
    v_lshlrev_b32 v7, 10, v7
    v_add_u32 v7, s35, v7
    v_lshl_add_u32 v10, v8, 4, v7
    v_lshl_add_u32 v11, v9, 4, v7
    v_lshlrev_b32 v12, 4, v2       ; lane*16
    v_lshrrev_b32 v13, 1, v2
    v_lshlrev_b32 v13, 10, v13
    v_and_b32 v14, 1, v2
    v_lshl_add_u32 v13, v14, 4, v13
    s_lshl_b32 s36, s6, 14
    s_lshl_b32 s37, s6, 4
    s_lshl_b32 s38, s5, 3
    s_add_u32 s37, s37, s38
    v_and_b32 v15, 16, v2
    v_lshlrev_b32 v15, 3, v15
    v_xor_b32 v15, v15, v12
    s_lshl_b32 s39, s4, 2
    s_waitcnt lgkmcnt(0)
    """)
    srd(a, 12, 26, 27, 0x80000)
    if 'wpf' in dbg:
        a(f"""
        s_lshr_b32 s48, s2, 3
        s_lshl_b32 s48, s48, 14
        s_and_b32 s49, s6, 1
        s_lshl_b32 s49, s49, 13
        s_add_u32 s48, s48, s49
        v_lshlrev_b32 v30, 7, v2
        s_cmp_gt_u32 s6, 1
        s_cbranch_scc1 K1_nopf
        buffer_load_dword v29, v30, s[12:15], s48 offen
        """)
        a.label("K1_nopf")
    a(f"""
    s_cmp_eq_u32 s5, 0
    s_cselect_b64 s[46:47], s[28:29], s[30:31]
    """)
    srd(a, 16, 46, 47, 0x4000)
    srd(a, 40, 44, 45, 0x80000)
    srd(a, 20, 32, 33, WS_SIZE)
    a(f"""
    s_cmp_lg_u32 s6, 0
    s_cbranch_scc1 K1_noz
    v_mov_b32 v32, 0
    v_mov_b32 v33, 0
    v_mov_b32 v34, 0
    v_mov_b32 v35, 0
    s_lshl_b32 s48, s2, 10
    s_add_u32 s48, s48, {WS_GU:#x}
    buffer_store_dwordx4 v[32:35], v12, s[20:23], s48 offen
    """)
    a.label("K1_noz")
    if 'k1nb' not in dbg: a("s_barrier")
    for i in range(16):
        a(f"""
        s_add_u32 s48, s39, {i}
        s_and_b32 s48, s48, 15
        s_lshl_b32 s49, s48, 10
        s_add_u32 m0, s36, s49
        s_add_u32 s48, s48, s37
        s_and_b32 s48, s48, 63
        s_lshl_b32 s48, s48, 13
        buffer_load_dwordx4 v{10 + (i & 1)}, s[12:15], s48 offen lds
        """)
    a(f"""
    s_cmp_gt_u32 s5, 1
    s_cbranch_scc1 K1_nokv
    s_lshl_b32 s36, s6, 12
    s_lshl_b32 s38, s5, 11
    """)
    for i in range(4):
        a(f"""
        s_add_u32 s48, s36, {i*1024}
        s_add_u32 m0, s48, {L_KV}
        s_add_u32 s48, s48, s38
        s_and_b32 s48, s48, 0x3fff
        buffer_load_dwordx4 v15, s[16:19], s48 offen lds
        """)
    a.label("K1_nokv")
    a(f"""
    s_cmp_lt_u32 s6, 2
    s_cbranch_scc1 K1_nowo
    s_lshl_b32 s46, s2, 1
    s_and_b32 s47, s6, 1
    s_add_u32 s46, s46, s47
    s_lshr_b32 s47, s46, 6
    s_lshl_b32 s47, s47, 16
    s_bfe_u32 s48, s46, 0x10002
    s_lshl_b32 s48, s48, 15        ; s * 32 rows
    s_add_u32 s47, s47, s48
    s_bfe_u32 s48, s46, 0x30003
    s_lshl_b32 s48, s48, 7         ; w * 128 B
    s_add_u32 s47, s47, s48
    s_and_b32 s48, s46, 3
    s_lshl_b32 s48, s48, 5         ; t * 32 B
    s_add_u32 s47, s47, s48
    s_lshl_b32 s48, s6, 10
    s_add_u32 s48, s48, {L_WOT - 2048}
    s_mov_b32 m0, s48
    v_add_u32 v17, s48, v17
    buffer_load_dwordx4 v13, s[40:43], s47 offen lds
    s_waitcnt vmcnt(1)
    s_barrier
    s_waitcnt vmcnt(0)
    ds_read_b64_tr_b16 v[32:33], v17
    ds_read_b64_tr_b16 v[34:35], v17 offset:128
    s_lshl_b32 s46, s46, 10
    s_add_u32 s46, s46, {WS_WOF:#x}
    s_waitcnt lgkmcnt(0)
    buffer_store_dwordx4 v[32:35], v12, s[20:23], s46 offen
    s_endpgm
    """)
    a.label("K1_nowo")
    a("s_waitcnt vmcnt(0)")
    a("s_barrier")
    a.label("K1_end")
    a("s_endpgm")
    a.fix()
    if G.ALIGN: print('align', align8(a))
    return a.text(), 224, L1_TOTAL
```

```python
from gen import *
import gen as G

L_PART = 0x0; L_Q = 0x6000; L_MREF = 0x8400; L_OB = 0xA800; L_KEY = 0xAC00; L_FLG = 0xAD00; L_MX = 0xB000; L_HB = 0xB400
L_FW = 0xE000; L_TOTAL = 0xE000 + 8 * 7168
L_XS = L_PART; L_RED = L_PART + 0x1000; L_GB = L_PART + 0x2000
C_EXACT = 0.25 * 1.4426950408889634
OFFS = 96.0

def wave_sum(a, vs, ts):
    if isinstance(vs, int): vs, ts = [vs], [ts]
    for mod in ("quad_perm:[1,0,3,2]", "quad_perm:[2,3,0,1]", "row_half_mirror", "row_mirror"):
        for v in vs:
            a(f"v_add_f32_dpp v{v}, v{v}, v{v} {mod} row_mask:0xf bank_mask:0xf")
    for w in (16, 32):
        for v, t in zip(vs, ts): a(f"v_mov_b32 v{t}, v{v}")
        for v, t in zip(vs, ts): a(f"v_permlane{w}_swap_b32 v{t}, v{v}")
        for v, t in zip(vs, ts): a(f"v_add_f32 v{v}, v{v}, v{t}")

class VM:
    def __init__(self, a): self.a = a; self.q = []; self.done = -1
    def issue(self, tag): self.q.append(tag)
    def wait(self, tag):
        i = max(k for k, t in enumerate(self.q) if t == tag)
        if i <= self.done: return
        self.done = i
        self.a(f"s_waitcnt vmcnt({len(self.q) - 1 - i})")

def wave_max_u32(a, v, t):
    for mod in ("quad_perm:[1,0,3,2]", "quad_perm:[2,3,0,1]", "row_half_mirror", "row_mirror"):
        a(f"v_max_u32_dpp v{v}, v{v}, v{v} {mod} row_mask:0xf bank_mask:0xf")
    for w in (16, 32):
        a(f"""
        v_mov_b32 v{t}, v{v}
        v_permlane{w}_swap_b32 v{t}, v{v}
        v_max_u32 v{v}, v{v}, v{t}
        """)

LOG2E = 1.4426950408889634
def sigmoid(a, d, x, t):
    a(f"""
    v_mul_f32 v{t}, {f2u(-LOG2E):#x}, v{x}
    v_exp_f32 v{t}, v{t}
    v_add_f32 v{t}, 1.0, v{t}
    v_rcp_f32 v{d}, v{t}
    """)

def gen_k2(dbg='', prio=True):
    a = Asm()
    OPT = dict(x.split('=') for x in dbg.split(',') if '=' in x)
    PFS = int(OPT.get('pfs', 0)); PFP = int(OPT.get('pfp', 1))
    TAILST = 'tailst' in dbg
    FS = 'ffnst' in dbg
    KREP = 'nokrep' not in dbg; GREP = 'nogrep' not in dbg
    def st(i, tail):
        if 'r0st' in dbg:
            if tail == 3: stamp(a, i)
        elif FS:
            if tail == 2: stamp(a, i)
        elif tail in (True, False) and bool(tail) == TAILST: stamp(a, i)
    K = 16; V = 48; X = [112, 128]; O = 144; CM = 160; SP = 176; Q = 184; OA = 188; WF = 204; BF = 236; S1 = 240
    vQA, vPW, vPR, vPL, vOW, vOR, vLM, vWL, vKL, vVL = 1, 2, 3, 4, 5, 6, 7, 8, 9, 10
    t0, t1, t2, t3, t4 = 11, 12, 13, 14, 15
    vFW, vFR, vFV, vRD = 9, 13, 14, 15
    a(f"""
    s_cmp_ge_u32 s2, 256
    s_cbranch_scc1 K2_end
    """)
    st(0, False); st(0, 3)
    if 'leak' in dbg or 'amp' in dbg: a('s_memrealtime s[90:91]')
    dstamp(a, 1, False, 240)
    a(f"""
    s_load_dwordx2 s[48:49], s[0:1], 96
    s_load_dwordx2 s[40:41], s[0:1], 0
    s_load_dwordx8 s[60:67], s[0:1], 48
    s_load_dwordx2 s[46:47], s[0:1], 80
    s_and_b32 s3, s2, 7
    s_lshr_b32 s4, s2, 3
    s_lshl_b32 s7, s3, 8
    s_lshl_b32 s5, s4, 3
    s_add_u32 s7, s7, s5           ; T0
    s_and_b32 s28, s4, 7           ; rot
    v_lshrrev_b32 v{t0}, 6, v0
    v_and_b32 v0, 63, v0
    v_readfirstlane_b32 s6, v{t0}
    s_mov_b32 s30, 0
    v_lshlrev_b32 v{vWL}, 4, v0
    s_mul_i32 s3, s6, {8*TS}
    s_add_u32 s3, s3, {WS_KV:#x}
    """)
    for t in range(8):
        a(f"""
        s_add_u32 s4, s28, {t}
        s_and_b32 s4, s4, 7
        s_mul_i32 s4, s4, {TS}
        s_add_u32 s{50+t}, s3, s4
        """)
    a.label("K2_restart")
    a(f"""
    s_add_u32 s3, s6, s28
    s_and_b32 s3, s3, 7
    s_add_u32 s3, s3, s7
    s_lshl_b32 s3, s3, 10
    v_and_b32 v{t1}, 31, v0
    v_lshrrev_b32 v{t2}, 5, v0
    v_mul_u32_u24 v{vVL}, 272, v{t2}
    v_lshl_add_u32 v{vVL}, v{t1}, 4, v{vVL}
    v_cmp_lt_u32 vcc, 16, v{t1}
    v_bfrev_b32 v{t0}, 1
    v_add_u32 v{vQA}, {L_Q:#x}, v{vWL}
    v_cndmask_b32 v{vVL}, v{vVL}, v{t0}, vcc
    s_waitcnt lgkmcnt(0)
    """)
    srd(a, 8, 48, 49, WS_SIZE)
    vm = VM(a)
    def ldK(t):
        a(f"buffer_load_dwordx4 v[{K+4*t}:{K+4*t+3}], v{vWL}, s[8:11], s{50+t} offen"); vm.issue(f"K{t}")
    def ldV(t):
        for h in range(2):
            a(f"buffer_load_dwordx4 v[{V+8*t+4*h}:{V+8*t+4*h+3}], v{vVL}, s[8:11], s{50+t} offen offset:{1024 + 544*h}"); vm.issue(f"V{t}{h}")
    a(f"buffer_load_dwordx4 v[{Q}:{Q+3}], v{vWL}, s[8:11], s3 offen"); vm.issue("Q")
    ldK(0); ldK(1)
    a(f"""
    s_lshl_b32 s3, s6, 10
    v_add_u32 v{t3}, s3, v{vQA}
    """)
    def late_setup(part):
        u0, u1, u2, u3 = S1, S1 + 1, S1 + 2, S1 + 3
        if part == 0:
            srd(a, 16, 40, 41, 0x200000)
            srd(a, 20, 46, 47, 0x200000)
            srd(a, 24, 60, 61, 0x400)
            a(f"""
            v_and_b32 v{u1}, 31, v0
            v_lshrrev_b32 v{u2}, 5, v0
            v_mul_u32_u24 v{vPW}, 96, v{u1}
            v_lshl_add_u32 v{vPW}, v{u2}, 4, v{vPW}
            s_mul_i32 s3, s6, 3072
            v_add_u32 v{vPW}, s3, v{vPW}
            v_lshrrev_b32 v{u0}, 4, v0     ; g
            s_lshl_b32 s3, s6, 2
            v_add_u32 v{u1}, s3, v{u0}     ; n = 4w + g
            v_mul_u32_u24 v{vPL}, 96, v{u1}
            v_and_b32 v{u2}, 15, v0        ; d
            v_lshl_add_u32 v{vPR}, v{u2}, 2, v{vPL}
            v_add_u32 v{vPL}, 64, v{vPL}
            s_lshl_b32 s31, s28, 16
            s_lshl_b32 s33, s6, 13
            s_add_u32 s33, s33, {WS_WOF:#x}
            """)
        elif part == 1:
            a(f"""
            v_and_b32 v{u3}, 7, v{u1}      ; token
            v_lshrrev_b32 v{u1}, 3, v{u1}  ; head_local
            v_lshlrev_b32 v{vOW}, 7, v{u3}
            v_lshl_add_u32 v{vOW}, v{u1}, 5, v{vOW}
            v_lshl_add_u32 v{vOW}, v{u2}, 1, v{vOW}
            v_add_u32 v{vOW}, {L_OB:#x}, v{vOW}
            v_and_b32 v{u3}, 7, v0
            v_lshlrev_b32 v{vOR}, 7, v{u3}
            v_lshl_add_u32 v{vOR}, v{u0}, 4, v{vOR}
            v_add_u32 v{vOR}, {L_OB:#x}, v{vOR}
            v_mov_b32 v{vLM}, 0
            v_lshlrev_b32 v{vFR}, 2, v{u3}
            v_add_u32 v{vFR}, {L_FLG:#x}, v{vFR}
            """)
        else:
            for r in range(0, 16, 2):
                a(f"v_pk_mov_b32 v[{OA+r}:{OA+r+1}], 0, 0")
            a(f"v_pk_mov_b32 v[{SP}:{SP+1}], 0, 0")
            a(f"v_mov_b32 v{SP+2}, 0xdddddddd")
    late_setup(0); late_setup(1)
    ldV(0); ldK(2); ldV(1)
    late_setup(2)
    st(1, False)
    vm.wait("Q")
    a(f"""
    ds_write_b128 v{t3}, v[{Q}:{Q+3}]
    s_cmp_lg_u32 s30, 0
    s_cbranch_scc1 K2_safe
    """)
    vm.wait("K1")
    a(f"""
    v_mfma_f32_32x32x16_bf16 v[{X[0]}:{X[0]+15}], v[{K}:{K+3}], v[{Q}:{Q+3}], 0
    v_mfma_f32_32x32x16_bf16 v[{X[1]}:{X[1]+15}], v[{K+4}:{K+7}], v[{Q}:{Q+3}], 0
    """)
    S = X[0]
    a(f"v_max3_f32 v{t0}, v{S}, v{S+1}, v{S+2}")
    for r in range(3, 31, 2):
        a(f"v_max3_f32 v{t0}, v{t0}, v{S+r}, v{S+r+1}")
    a(f"""
    v_max_f32 v{t0}, v{t0}, v{S+31}
    v_mov_b32 v{t1}, v{t0}
    v_permlane32_swap_b32 v{t1}, v{t0}
    v_max_f32 v{t0}, v{t0}, v{t1}
    v_mov_b32 v{t1}, {f2u(-OFFS):#x}
    s_branch K2_mref
    """)
    a.label("K2_safe")
    a(f"""
    v_and_b32 v{t0}, 31, v0
    v_lshlrev_b32 v{S1+4}, 2, v{t0}
    v_add_u32 v{S1+4}, {L_MX:#x}, v{S1+4}
    s_lshl_b32 s3, s6, 7
    v_add_u32 v{S1+5}, s3, v{S1+4}
    v_mov_b32 v{t0}, 0xff800000
    ds_write_b32 v{S1+5}, v{t0}
    s_waitcnt vmcnt(0) lgkmcnt(0)
    s_barrier
    v_mov_b32 v{t1}, v{vQA}
    s_mov_b32 s29, 0
    """)
    a.label("K2_safe_loop")
    a(f"""
    ds_read_b128 v[{BF}:{BF+3}], v{t1}
    v_mov_b32 v{t0}, 0xff800000
    s_waitcnt lgkmcnt(0)
    """)
    for t in range(8):
        a(f"v_mfma_f32_32x32x16_bf16 v[{S}:{S+15}], v[{K+4*t}:{K+4*t+3}], v[{BF}:{BF+3}], 0")
        for r in range(0, 16, 2):
            a(f"v_max3_f32 v{t0}, v{t0}, v{S+r}, v{S+r+1}")
    a(f"""
    ds_max_f32 v{S1+4}, v{t0}
    v_add_u32 v{t1}, 1024, v{t1}
    v_add_u32 v{S1+4}, 128, v{S1+4}
    s_add_u32 s29, s29, 1
    s_cmp_lt_u32 s29, 8
    s_cbranch_scc1 K2_safe_loop
    s_waitcnt lgkmcnt(0)
    s_barrier
    ds_read_b32 v{t0}, v{S1+5}
    v_mov_b32 v{t1}, 0
    s_waitcnt lgkmcnt(0)
    """)
    a.label("K2_mref")
    a(f"""
    v_sub_f32 v{BF}, v{t1}, v{t0}
    v_sub_f32 v{BF+1}, v{t1}, v{t0}
    v_sub_f32 v{BF+2}, v{t1}, v{t0}
    v_sub_f32 v{BF+3}, v{t1}, v{t0}
    ds_write_b128 v{t3}, v[{BF}:{BF+3}] offset:{L_MREF - L_Q}
    s_lshl_b32 s3, s6, 2
    s_add_u32 s3, s3, {L_FLG:#x}
    v_mov_b32 v{vFW}, s3
    v_mov_b32 v{vRD}, 0
    ds_write2_b32 v{vFW}, v{vRD}, v{vRD} offset0:0 offset1:8
    s_waitcnt lgkmcnt(0)
    s_barrier
    """)
    def rd_qcm():
        a(f"ds_read_b128 v[{Q}:{Q+3}], v{vQA}")
        for k in range(4):
            a(f"ds_read_b128 v[{CM+4*k}:{CM+4*k+3}], v{vQA} offset:{L_MREF - L_Q}")
        a(f"v_add_u32 v{vQA}, 1024, v{vQA}")
    mf = "v_mfma_f32_32x32x16_bf16"
    def M1(kt, xb):
        a(f"{mf} v[{X[xb]}:{X[xb]+15}], v[{K+4*kt}:{K+4*kt+3}], v[{Q}:{Q+3}], v[{CM}:{CM+15}]")
    def E(xb, lo, hi):
        for r in range(lo, hi):
            if 'noexp' in dbg:
                a(f"v_cvt_pk_bf16_f32 v{X[xb]+r}, 0, v{X[xb]+r}"); a(f"v_cvt_pk_bf16_f32 v{X[xb]+r}, 0, v{X[xb]+r}")
                continue
            a(f"v_exp_f32 v{X[xb]+r}, v{X[xb]+r}")
    def C2(h, xb):
        for k in range(4):
            a(f"v_cvt_pk_bf16_f32 v{SP+4*h+k}, v{X[xb]+8*h+2*k}, v{X[xb]+8*h+2*k+1}")
    def M3(h, kt):
        xb = kt & 1
        a(f"v_smfmac_f32_32x32x32_bf16 v[{O}:{O+15}], v[{V+8*kt+4*h}:{V+8*kt+4*h+3}], v[{X[xb]+8*h}:{X[xb]+8*h+7}], v{SP+2}")
    def Ozero():
        a(f"v_mfma_f32_32x32x8bf16_1k v[{O}:{O+15}], v[{SP}:{SP+1}], v[{SP}:{SP+1}], 0")
    def part_write():
        a(f"""
        ds_write_b128 v{vPW}, v[{O}:{O+3}]
        ds_write_b128 v{vPW}, v[{O+4}:{O+7}] offset:32
        ds_write_b32 v{vPW}, v{O+8} offset:64
        """)
    def s1_read():
        for k in range(4):
            a(f"ds_read2st64_b32 v[{S1+2*k}:{S1+2*k+1}], v{vPR} offset0:{24*k} offset1:{24*k+12}")
        for k in range(4):
            a(f"ds_read2st64_b32 v[{S1+8+2*k}:{S1+8+2*k+1}], v{vPL} offset0:{24*k} offset1:{24*k+12}")
    def s1_calc():
        for (x, y) in ((0, 2), (4, 6), (0, 4)):
            a(f"v_pk_add_f32 v[{S1+8+x}:{S1+9+x}], v[{S1+8+x}:{S1+9+x}], v[{S1+8+y}:{S1+9+y}]")
            a(f"v_pk_add_f32 v[{S1+x}:{S1+1+x}], v[{S1+x}:{S1+1+x}], v[{S1+y}:{S1+1+y}]")
        a(f"""
        v_add_f32 v{S1+8}, v{S1+8}, v{S1+9}
        v_add_f32 v{S1}, v{S1}, v{S1+1}
        v_rcp_f32 v{S1+1}, v{S1+8}
        v_maximum3_f32 v{vLM}, v{vLM}, v{S1+8}, abs(v{S1})
        v_mul_f32 v{S1}, v{S1}, v{S1+1}
        v_cvt_pk_bf16_f32 v{S1}, v{S1}, v{S1}
        ds_write_b16 v{vOW}, v{S1}
        """)
    def s2_read():
        for s in range(2):
            a(f"ds_read_b128 v[{BF+4*s}:{BF+4*s+3}], v{vOR} offset:{64*s}")
    def s2_mma(lo, hi):
        for u in range(lo, hi):
            s, t = u >> 2, u & 3
            a(f"v_mfma_f32_16x16x32_bf16 v[{OA+4*t}:{OA+4*t+3}], v[{WF+4*u}:{WF+4*u+3}], v[{BF+4*s}:{BF+4*s+3}], v[{OA+4*t}:{OA+4*t+3}]")
    def wf_load(lo, hi):
        if lo == 0:
            a("s_add_u32 s34, s33, s31")
            a("s_add_u32 s35, s34, 4096")
            a("s_add_u32 s31, s31, 0x10000")
            a("s_and_b32 s31, s31, 0x7ffff")
        for u in range(lo, hi):
            a(f"buffer_load_dwordx4 v[{WF+4*u}:{WF+4*u+3}], v{vWL}, s[8:11], s{34 + (u >> 2)} offen offset:{1024*(u&3)}")
            vm.issue("WF")
    def ffn_prefetch():
        a(f"""
        s_mov_b32 s39, s6
        s_cmp_eq_u32 s39, 1
        s_cselect_b64 s[36:37], s[64:65], s[62:63]
        s_cmp_eq_u32 s39, 2
        s_cselect_b64 s[36:37], s[66:67], s[36:37]
        """)
        srd(a, 12, 36, 37, 512 * 1792 * 2)
        a(f"""
        s_and_b32 s3, s2, 7
        s_lshr_b32 s4, s2, 3
        s_mul_i32 s5, s4, {16*3584}
        s_mul_i32 s36, s3, 448
        s_and_b32 s36, s36, 0xffffff80
        s_add_u32 s5, s5, s36
        s_lshl_b32 s36, s3, 7
        s_mul_i32 s37, s4, {56*1024}
        s_add_u32 s36, s36, s37
        v_lshrrev_b32 v{t0}, 2, v0
        v_mul_u32_u24 v{t0}, 3584, v{t0}
        v_and_b32 v{t1}, 3, v0
        v_lshl_add_u32 v{t0}, v{t1}, 7, v{t0}
        v_min_u32 v{t1}, 55, v0
        v_lshlrev_b32 v{t1}, 10, v{t1}
        s_cmp_eq_u32 s39, 2
        s_cselect_b32 s38, s36, s5
        s_cselect_b64 vcc, -1, 0
        v_cndmask_b32 v{t0}, v{t0}, v{t1}, vcc
        s_lshl_b32 s39, s6, {PFS}
        s_add_u32 s39, s39, 1
        s_cmp_gt_u32 s6, 2
        s_cselect_b32 s39, 99, s39
        """)
    def ffn_setup():
        a(f"""
        s_and_b32 s3, s2, 7
        s_lshr_b32 s4, s2, 3
        s_and_b32 s5, s6, 1
        s_cmp_eq_u32 s5, 0
        s_cselect_b64 s[36:37], s[62:63], s[64:65]
        s_cmp_lt_u32 s2, 112
        s_cselect_b64 s[36:37], s[36:37], s[66:67]
        """)
        srd(a, 68, 36, 37, 512 * 1792 * 2)
        a(f"""
        s_mul_i32 s76, s3, 14
        s_add_u32 s76, s76, s4           ; fs
        s_lshl_b32 s77, s3, 2
        s_add_u32 s77, s77, s4
        s_sub_u32 s77, s77, 14           ; cb
        s_lshr_b32 s5, s6, 1
        s_mul_i32 s5, s5, {128*3584}
        s_lshl_b32 s36, s76, 5
        s_add_u32 s5, s5, s36
        s_mul_i32 s36, s6, {224*1024}
        s_lshl_b32 s37, s77, 5
        s_add_u32 s36, s36, s37
        s_cmp_lt_u32 s2, 112
        s_cselect_b32 s72, s5, s36
        s_movk_i32 s73, 1024
        s_cselect_b32 s73, 3584, s73
        s_cselect_b32 s75, 4, 7
        s_cmp_lt_u32 s2, 144
        s_cselect_b32 s75, s75, 0
        s_mul_i32 s74, s6, 7168
        s_add_u32 s74, s74, {L_FW:#x}
        v_lshrrev_b32 v{vVL}, 1, v0
        v_mul_lo_u32 v{vVL}, v{vVL}, s73
        v_and_b32 v{t1}, 1, v0
        v_lshl_add_u32 v{vVL}, v{t1}, 4, v{vVL}
        s_lshl_b32 s73, s73, 5
        s_mov_b32 s78, s74
        """)
    def ffn_stage():
        a(f"""
        s_cmp_lt_u32 s29, 4
        s_cbranch_scc1 K2_nost
        """)
        for e in range(2):
            a(f"""
            s_cmp_eq_u32 s75, 0
            s_cbranch_scc1 K2_nost
            s_mov_b32 m0, s78
            s_sub_u32 s75, s75, 1
            buffer_load_dwordx4 v{vVL}, s[68:71], s72 offen lds
            s_add_u32 s78, s78, 1024
            s_add_u32 s72, s72, s73
            """)
        a.label("K2_nost")
    def ffn_issue():
        a(f"""
        s_cmp_lg_u32 s29, s39
        s_cbranch_scc1 K2_nopf
        buffer_load_dword v{t1}, v{t0}, s[12:15], s38 offen
        """)
        a.label("K2_nopf")
    def setprio(p):
        if prio: a(f"s_setprio {p}")
    st(2, False)
    rd_qcm()
    a("s_waitcnt lgkmcnt(0)")
    M1(0, 0)
    a("s_mov_b32 s29, 1")
    setprio(3)
    ldK(3); ldV(2)
    st(3, False)
    if 'leak' in dbg or 'amp' in dbg: a('s_memrealtime s[94:95]'); a('s_waitcnt lgkmcnt(0)')
    def tile(i, hook):
        xb = i & 1; xn = xb ^ 1
        hook(i, 'a')
        E(xb, 0, 2)
        hook(i, 'm3b')
        E(xb, 2, 5)
        hook(i, 'm1')
        M1((i + 1) & 7, xn)
        hook(i, 0)
        if i == 0:
            E(xb, 5, 12)
            hook(i, 1)
            Ozero()
            E(xb, 12, 16)
            M3(0, i)
            hook(i, 2)
        else:
            E(xb, 5, 8)
            hook(i, 'e1')
            E(xb, 8, 10)
            hook(i, 1)
            M3(0, i)
            hook(i, 2)
            E(xb, 10, 13)
            hook(i, 'e2')
            E(xb, 13, 15)
            hook(i, 'e3')
            E(xb, 15, 16)
    def hook0(i, pos):
        if pos == 'a' and i in (0, 2, 4, 6): st(1 + i // 2, 3)
        if pos == 'a' and i in (3, 5, 7): setprio({3: 2, 5: 1, 7: 1}[i])
        if pos == 'm3b' and i > 0:
            vm.wait(f"V{i-1}1"); M3(1, i - 1)
        if pos == 'm1':
            if i < 7: vm.wait(f"K{i+1}")
            else: a("s_waitcnt lgkmcnt(0)")
        if pos == 0:
            if i + 4 <= 7: ldK(i + 4)
            if i + 3 <= 7: ldV(i + 3)
            if i == 4 and 'nopf' not in dbg: ffn_prefetch()
            if i == 5: wf_load(0, 4); ffn_setup()
            if i == 6: wf_load(4, 8)
        if pos == 1:
            if i == 6: rd_qcm()
            vm.wait(f"V{i}0")
        if pos == 2 and i == 7:
            vm.wait("V71")
    for i in range(8): tile(i, hook0)
    st(5, 3)
    a.raw(".p2align 3")
    a.label("K2_round")
    spins = []
    def poll(off):
        a(f"ds_read_b32 v{vFV}, v{vFR} offset:{off}")
    def check(off):
        k = len(spins); spins.append(off)
        a(f"""
        s_waitcnt lgkmcnt(0)
        v_cmp_gt_u32 vcc, s29, v{vFV}
        s_cbranch_vccnz K2_spin{k}
        """)
        a.label(f"K2_back{k}")
    PR = dict(x.split('=') for x in dbg.split(',') if '=' in x).get('pr', 'c')
    def hook(i, pos):
        if pos == 'm3b': M3(1, (i - 1) & 7)
        if pos == 'm1' and i == 7: a("s_waitcnt lgkmcnt(0)")
        if pos == 1 and i == 6: rd_qcm()
        if 'nohook' in dbg: return
        if 'bar' in dbg.split(','):
            if pos == 'a' and i in (0, 6, 7): setprio({6: 2, 7: 1, 0: 0}[i])
            if i == 0 and pos == 1: part_write()
            if i == 1 and pos == 0:
                a("s_waitcnt lgkmcnt(0)"); a("s_barrier"); setprio(2); s1_read()
            if i == 2 and pos == 0:
                a("s_waitcnt lgkmcnt(0)"); s1_calc(); setprio(1)
            if i == 3 and pos == 0: setprio(0)
            if i == 4 and pos == 0:
                a("s_waitcnt vmcnt(0) lgkmcnt(0)"); a("s_barrier"); setprio(3); s2_read()
            seq = [(4, 'e3'), (5, 'e1'), (5, 'e2'), (5, 'e3'), (6, 'e1'), (6, 'e2'), (6, 'e3'), (7, 'e1')]
        else:
            ca = int(OPT.get('ca', 2)); cb = int(OPT.get('cb', 5)); PT = OPT.get('pt', '10110321')
            slots = [(t, p) for t in range(1, 8) for p in (('a', 'e1', 'e2', 'e3') if cb >= 6 else ('e1', 'e2', 'e3'))]
            if i == 0 and pos == 'a': a(f"v_mov_b32 v{vRD}, s29")
            if i == 0 and pos == 1:
                part_write(); a(f"ds_write_b32 v{vFW}, v{vRD}")
            if i == ca and pos == 0: poll(0)
            if i == ca and pos == 2: check(0); s1_read()
            if i == ca + 1 and pos == 0:
                a("s_waitcnt lgkmcnt(0)"); s1_calc(); a(f"ds_write_b32 v{vFW}, v{vRD} offset:32")
            if i == cb - 1 and pos == 2: poll(32)
            if i == cb and pos == 'm1':
                check(32); s2_read(); a("s_waitcnt vmcnt(0)")
            if len(PT) == 8: PT = "".join(ch * 2 for ch in PT)
            for hpos, k in (('a', 2 * i), (2, 2 * i + 1)):
                if pos == hpos and PT[k] != PT[k - 1]: setprio(int(PT[k]))
            av = [x for x in slots if x > (cb, 'e1')]
            if OPT.get('sp', '0') == '1' and len(av) >= 12: av = [x for x in av if x[1] != 'e3']
            seq = av[:8]
            while len(seq) < 8: seq = sorted(seq + [seq[len(seq) % len(av)]])
        for u in [k for k, x in enumerate(seq) if x == (i, pos)]:
            if u == 0: a("s_waitcnt lgkmcnt(0)")
            s2_mma(u, u + 1); wf_load(u, u + 1)
            if u == 7 and 'nopf' not in dbg and PFP == 1: ffn_issue(); ffn_stage()
    for i in range(8): tile(i, hook)
    if 'rndst' in dbg:
        a(f"""
        s_memtime s[82:83]
        s_memrealtime s[100:101]
        s_waitcnt lgkmcnt(0)
        s_lshl_b32 s84, s2, 3
        s_add_u32 s84, s84, s6
        s_lshl_b32 s84, s84, 3
        s_add_u32 s84, s84, s29
        s_lshl_b32 s84, s84, 3
        s_add_u32 s84, s84, {WS_STAMP + 0x40000:#x}
        s_mov_b64 exec, 1
        v_mov_b32 v{S1+8}, s82
        v_mov_b32 v{S1+9}, s100
        v_mov_b32 v{S1+10}, 0
        buffer_store_dwordx2 v[{S1+8}:{S1+9}], v{S1+10}, s[8:11], s84 offen
        s_mov_b64 exec, -1
        """)
    a(f"""
    s_add_u32 s29, s29, 1
    s_cmp_lt_u32 s29, 8
    s_cbranch_scc1 K2_round
    """)
    st(4, False); st(0, True)
    M3(1, 7)
    XR = CM; WR = CM + 4; HV = X[0]; HN = X[0] + 8; PK = X[1]; ST = X[1] + 8
    a(f"""
    s_add_u32 s3, s7, s6
    s_lshl_b32 s4, s3, 10
    buffer_load_dwordx4 v[{XR}:{XR+3}], v{vWL}, s[16:19], s4 offen
    buffer_load_dwordx4 v[{WR}:{WR+3}], v{vWL}, s[24:27], 0 offen
    v_and_b32 v{t0}, 7, v0
    v_mul_u32_u24 v{t0}, 1040, v{t0}
    v_lshrrev_b32 v{t1}, 4, v0
    v_lshl_add_u32 v{t0}, v{t1}, 3, v{t0}
    s_lshl_b32 s5, s6, 7
    s_add_u32 s5, s5, {L_HB:#x}
    v_add_u32 v{t0}, s5, v{t0}
    s_mul_i32 s5, s6, 1040
    s_add_u32 s5, s5, {L_HB:#x}
    v_add_u32 v{t1}, s5, v{vWL}
    s_lshl_b32 s35, s6, 2
    s_add_u32 s35, s35, {L_KEY:#x}
    v_mov_b32 v{t4}, s35
    v_and_b32 v{t3}, 7, v0
    v_lshlrev_b32 v{t3}, 2, v{t3}
    v_add_u32 v{t3}, {L_KEY:#x}, v{t3}
    """)
    part_write()
    a("s_waitcnt lgkmcnt(0)"); a("s_barrier"); st(1, True); s1_read()
    a("s_waitcnt lgkmcnt(0)"); s1_calc()
    a(f"""
    v_mov_b32 v{t2}, {f2u(2.0**124):#x}
    v_cmp_nlt_f32 vcc, v{vLM}, v{t2}
    s_cmp_lg_u64 vcc, 0
    s_cselect_b32 s5, 1, 0
    v_mov_b32 v{t2}, s5
    ds_write_b32 v{t4}, v{t2} offset:32
    """)
    a("s_waitcnt vmcnt(2) lgkmcnt(0)"); a("s_barrier"); st(2, True); s2_read()
    a(f"ds_read_b32 v{t2}, v{t3} offset:32")
    a("s_waitcnt lgkmcnt(1)"); s2_mma(0, 8)
    a(f"""
    s_waitcnt lgkmcnt(0)
    v_cmp_ne_u32 vcc, 0, v{t2}
    s_cmp_eq_u64 vcc, 0
    s_cbranch_scc1 K2_good
    s_cmp_lg_u32 s30, 0
    s_cbranch_scc1 K2_good
    s_mov_b32 s30, 1
    s_waitcnt vmcnt(0)
    s_setprio 0
    s_branch K2_restart
    """)
    a.label("K2_good")
    for t in range(4):
        a(f"v_cvt_pk_bf16_f32 v{S1+2*t}, v{OA+4*t}, v{OA+4*t+1}")
        a(f"v_cvt_pk_bf16_f32 v{S1+2*t+1}, v{OA+4*t+2}, v{OA+4*t+3}")
        a(f"ds_write_b64 v{t0}, v[{S1+2*t}:{S1+2*t+1}] offset:{32*t}")
    a("s_waitcnt vmcnt(0)")
    for r in range(4):
        a(f"v_lshlrev_b32 v{HV+2*r}, 16, v{XR+r}")
        a(f"v_and_b32 v{HV+2*r+1}, 0xffff0000, v{XR+r}")
        a(f"v_lshlrev_b32 v{WF+2*r}, 16, v{WR+r}")
        a(f"v_and_b32 v{WF+2*r+1}, 0xffff0000, v{WR+r}")
    a(f"""
    s_waitcnt lgkmcnt(0)
    s_barrier
    """)
    st(3, True)
    a(f"""
    ds_read_b128 v[{BF}:{BF+3}], v{t1}
    s_waitcnt lgkmcnt(0)
    """)
    for r in range(4):
        a(f"v_lshlrev_b32 v{HN+2*r}, 16, v{BF+r}")
        a(f"v_and_b32 v{HN+2*r+1}, 0xffff0000, v{BF+r}")
    P2 = lambda b, r: f"v[{b+r}:{b+r+1}]"
    for r in range(0, 8, 2): a(f"v_pk_add_f32 {P2(HV,r)}, {P2(HV,r)}, {P2(HN,r)}")
    for r in range(8): a(f"v_cvt_pk_bf16_f32 v{HV+r}, 0, v{HV+r}")
    SA, SB = S1, S1 + 2
    a(f"v_pk_add_f32 {P2(SA,0)}, {P2(HV,0)}, {P2(HV,2)}")
    a(f"v_pk_mul_f32 {P2(SB,0)}, {P2(HV,0)}, {P2(HV,0)}")
    a(f"v_pk_add_f32 {P2(SA,4)}, {P2(HV,4)}, {P2(HV,6)}")
    a(f"v_pk_fma_f32 {P2(SB,0)}, {P2(HV,2)}, {P2(HV,2)}, {P2(SB,0)}")
    a(f"v_pk_add_f32 {P2(SA,0)}, {P2(SA,0)}, {P2(SA,4)}")
    a(f"v_pk_fma_f32 {P2(SB,0)}, {P2(HV,4)}, {P2(HV,4)}, {P2(SB,0)}")
    a(f"v_add_f32 v{t0}, v{SA}, v{SA+1}")
    a(f"v_pk_fma_f32 {P2(SB,0)}, {P2(HV,6)}, {P2(HV,6)}, {P2(SB,0)}")
    a(f"v_add_f32 v{t2}, v{SB}, v{SB+1}")
    wave_sum(a, [t0, t2], [ST, ST + 1])
    ln_scalars(a, t0, t2, ST, ST + 2, ST + 1, ST + 3)
    st(4, True)
    for r in range(0, 8, 2): a(f"v_pk_add_f32 {P2(HN,r)}, {P2(HV,r)}, {P2(ST,0)} op_sel_hi:[1,0] neg_lo:[0,1] neg_hi:[0,1]")
    for r in range(8): a(f"v_cvt_pk_bf16_f32 v{HN+r}, 0, v{HN+r}")
    for r in range(0, 8, 2): a(f"v_pk_mul_f32 {P2(HN,r)}, {P2(HN,r)}, {P2(ST,2)} op_sel_hi:[1,0]")
    for r in range(8): a(f"v_cvt_pk_bf16_f32 v{HN+r}, 0, v{HN+r}")
    a(f"v_pk_mul_f32 {P2(SA,0)}, {P2(HN,0)}, {P2(WF,0)}")
    for r in range(2, 8, 2): a(f"v_pk_fma_f32 {P2(SA,0)}, {P2(HN,r)}, {P2(WF,r)}, {P2(SA,0)}")
    a(f"v_add_f32 v{t2}, v{SA}, v{SA+1}")
    fill = [f"v_pk_add_f32 {P2(WF+8,r)}, {P2(HV,r)}, {P2(HN,r)}" for r in range(0, 8, 2)]
    fill += [f"v_cvt_pk_bf16_f32 v{PK+4+r}, v{HV+2*r}, v{HV+2*r+1}" for r in range(4)]
    fill += [f"v_cvt_pk_bf16_f32 v{ST+4+r}, v{HN+2*r}, v{HN+2*r+1}" for r in range(4)]
    for mod in ("quad_perm:[1,0,3,2]", "quad_perm:[2,3,0,1]", "row_half_mirror", "row_mirror"):
        a(fill.pop(0)); a(fill.pop(0))
        a(f"v_add_f32_dpp v{t2}, v{t2}, v{t2} {mod} row_mask:0xf bank_mask:0xf")
    for w in (16, 32):
        a(f"v_mov_b32 v{t0}, v{t2}")
        a(fill.pop(0)); a(fill.pop(0))
        a(f"v_permlane{w}_swap_b32 v{t0}, v{t2}")
        a(f"v_add_f32 v{t2}, v{t2}, v{t0}")
    if 'leak' in dbg:
        a(f"""
        s_cmp_lg_u32 s3, 0
        s_cbranch_scc1 K2_leak
        s_memrealtime s[92:93]
        v_mov_b32 v{S1+4}, 0
        s_mov_b32 s5, {WS_SEL:#x}
        buffer_load_dwordx4 v[{S1}:{S1+3}], v{S1+4}, s[8:11], s5 offen
        s_waitcnt vmcnt(0) lgkmcnt(0)
        s_mov_b64 exec, 1
        v_add_f32 v{WF+8}, {f2u(64.0):#x}, v{WF+8}
        v_sub_u32 v{WF+9}, v{S1+2}, v{S1}
        v_sub_u32 v{WF+10}, v{S1+1}, v{S1}
        v_sub_u32 v{WF+11}, s90, v{S1}
        v_sub_u32 v{WF+12}, s94, v{S1}
        v_sub_u32 v{WF+13}, s92, v{S1}
        """)
        for r in range(9, 14):
            a(f"v_cvt_f32_u32 v{WF+r}, v{WF+r}")
            a(f"v_mul_f32 v{WF+r}, {f2u(0.005):#x}, v{WF+r}")
            a(f"v_min_f32 v{WF+r}, {f2u(20.0):#x}, v{WF+r}")
        a("s_mov_b64 exec, -1")
        a.label("K2_leak")
    a(f"""
    v_cvt_pk_bf16_f32 v{t2}, 0, v{t2}
    v_ashrrev_i32 v{t0}, 31, v{t2}
    v_or_b32 v{t0}, 0x80000000, v{t0}
    v_xor_b32 v{t2}, v{t2}, v{t0}
    v_and_b32 v{t2}, 0xffff0000, v{t2}
    s_sub_u32 s5, 0xffff, s3
    v_or_b32 v{t2}, s5, v{t2}      ; key
    ds_write_b32 v{t4}, v{t2}
    """)
    for r in range(4): a(f"v_cvt_pk_bf16_f32 v{PK+r}, v{WF+8+2*r}, v{WF+8+2*r+1}")
    a(f"""
    buffer_store_dwordx4 v[{PK}:{PK+3}], v{vWL}, s[20:23], s4 offen sc1
    """)
    a(f"""
    s_waitcnt lgkmcnt(0)
    s_barrier
    ds_read_b32 v{t1}, v{t3}
    s_waitcnt lgkmcnt(0)
    v_cmp_gt_u32 vcc, v{t1}, v{t2}
    v_cmp_eq_u32 s[36:37], v{t1}, v{t2}
    s_and_b32 s38, vcc_lo, 0xff
    s_bcnt1_i32_b32 s38, s38       ; rank
    """)
    st(5, False); st(5, True); st(0, 2); st(1, 2); st(2, 2); st(3, 2); st(4, 2); st(5, 2)
    a(f"""
    s_cmp_gt_u32 s38, 1
    s_cbranch_scc1 K2_pub0
    s_add_u32 s5, s4, {WS_H:#x}
    buffer_store_dwordx4 v[{PK+4}:{PK+7}], v{vWL}, s[8:11], s5 offen sc1
    s_add_u32 s5, s4, {WS_HN:#x}
    buffer_store_dwordx4 v[{ST+4}:{ST+7}], v{vWL}, s[8:11], s5 offen sc1
    v_cndmask_b32 v{ST+1}, v{t1}, 0, s[36:37]
    v_mov_b32 v{ST}, v{t2}
    s_lshl_b32 s5, s2, {G.KS_LOG}
    s_add_u32 s5, s5, {WS_KEY:#x}
    v_lshlrev_b32 v{t0}, 14, v0
    """)
    for mod in ("quad_perm:[1,0,3,2]", "quad_perm:[2,3,0,1]", "row_half_mirror"):
        a(f"v_max_u32_dpp v{ST+1}, v{ST+1}, v{ST+1} {mod} row_mask:0xf bank_mask:0xf")
    a("s_waitcnt vmcnt(0)")
    a.label("K2_pub0")
    a(f"""
    s_barrier
    s_cmp_lg_u32 s38, 0
    s_cbranch_scc1 K2_pub
    s_mov_b64 exec, {0xff if KREP else 1}
    buffer_store_dwordx2 v[{ST}:{ST+1}], v{t0}, s[8:11], s5 offen sc1
    s_mov_b64 exec, -1
    """)
    a.label("K2_pub")
    if 'amp' in dbg: a('s_memrealtime s[96:97]'); a('s_waitcnt lgkmcnt(0)')
    st(1, 2)
    def fin():
        if G.STAMP: a("s_waitcnt vmcnt(0)")
        stamp(a, 6)
        if G.STAMP: a("s_mov_b32 s91, s30")
        stamp_out(a, 1, 8, "s6", WF)
        a("s_endpgm")
    a(f"""
    s_cmp_ge_u32 s2, 144
    s_cbranch_scc1 K2_fin
    """)
    AFR = V
    KY = K; Y = K + 8; BX = V + 32; AC = K + 16
    a(f"""
    s_setprio 0
    v_bfe_u32 v{t0}, v0, 2, 2
    v_lshrrev_b32 v{t4}, 4, v0           ; g
    v_lshl_add_u32 v{t0}, v{t4}, 3, v{t0}
    v_lshlrev_b32 v{t0}, 5, v{t0}
    v_and_b32 v{t1}, 3, v0
    v_lshl_add_u32 v{t0}, v{t1}, 3, v{t0}
    v_add_u32 v{t0}, s74, v{t0}
    """)
    for sx in range(7):
        for half in range(2):
            d = AFR + 4 * sx + 2 * half
            a(f"ds_read_b64_tr_b16 v[{d}:{d+1}], v{t0} offset:{sx*1024 + half*128}")
    a(f"""
    v_and_b32 v{t3}, 1, v0
    v_lshlrev_b32 v{vPW}, 6, v{t3}
    v_lshl_add_u32 v{vPW}, v{t4}, 4, v{vPW}
    s_lshl_b32 s5, s6, 7
    s_add_u32 s5, s5, {L_RED:#x}
    v_add_u32 v{vPW}, s5, v{vPW}
    v_and_b32 v{vPR}, 31, v0
    v_lshlrev_b32 v{vPR}, 2, v{vPR}      ; (lane&31)*4
    v_lshrrev_b32 v{vOR}, 5, v0
    v_lshl_add_u32 v{vOR}, v{vOR}, 14, v{vPR}
    s_cmp_lg_u32 s6, 0
    s_cbranch_scc1 K2_nokey
    v_lshlrev_b32 v{t1}, {G.KS_LOG}, v0
    s_and_b32 s5, s2, {7 if KREP else 0}
    s_lshl_b32 s5, s5, 14
    s_add_u32 s5, s5, {WS_KEY:#x}
    s_add_u32 s79, s5, {64 << G.KS_LOG}
    s_add_u32 s80, s5, {128 << G.KS_LOG}
    s_add_u32 s81, s5, {192 << G.KS_LOG}
    s_mov_b32 s36, 0
    """)
    KZ = V + 60 - 8 * 0
    def poll_loop(name, issue, nld):
        K2R = X[0]
        def chk(b):
            a(f"""
            v_min3_u32 v{Y}, v{b}, v{b+1}, v{b+2}
            v_min3_u32 v{Y+1}, v{b+3}, v{b+4}, v{b+5}
            v_min3_u32 v{Y}, v{Y}, v{b+6}, v{b+7}
            v_min_u32 v{Y}, v{Y}, v{Y+1}
            v_cmp_eq_u32 vcc, 0, v{Y}
            """)
        sl = OPT.get('psl', 3)
        issue(KY)
        a(f"s_sleep {sl}")
        a.label(f"{name}_l")
        issue(K2R)
        a(f"s_waitcnt vmcnt({nld})")
        chk(KY)
        a(f"s_cbranch_vccz {name}_ok")
        issue(KY)
        a(f"s_waitcnt vmcnt({nld})")
        chk(K2R)
        a(f"""
        s_cbranch_vccz {name}_ok2
        s_add_u32 s36, s36, 1
        s_cmp_lt_u32 s36, 0x40000
        s_cbranch_scc1 {name}_l
        """)
        a.label(f"{name}_ok2")
        for r in range(0, 8, 2): a(f"v_pk_mov_b32 v[{KY+r}:{KY+r+1}], v[{K2R+r}:{K2R+r+1}], v[{K2R+r}:{K2R+r+1}] op_sel:[0,1]")
        a.label(f"{name}_ok")
    def kissue(b):
        for k, sr in enumerate(("s5", "s79", "s80", "s81")):
            a(f"buffer_load_dwordx2 v[{b+2*k}:{b+2*k+1}], v{t1}, s[8:11], {sr} offen sc1")
    poll_loop("K2_kp", kissue, 4)
    a.label("K2_kok")
    st(2, 2)
    if FS: a("s_mov_b32 s30, s36")
    B1, B2 = Y + 4, Y + 5
    a(f"""
    v_max_u32 v{B1}, v{KY}, v{KY+2}
    v_min_u32 v{B2}, v{KY}, v{KY+2}
    v_max3_u32 v{B2}, v{B2}, v{KY+1}, v{KY+3}
    v_max_u32 v{Y}, v{KY+4}, v{KY+6}
    v_min_u32 v{Y+1}, v{KY+4}, v{KY+6}
    v_max3_u32 v{Y+1}, v{Y+1}, v{KY+5}, v{KY+7}
    v_min_u32 v{Y+2}, v{B1}, v{Y}
    v_max_u32 v{B1}, v{B1}, v{Y}
    v_max3_u32 v{B2}, v{B2}, v{Y+1}, v{Y+2}
    v_mov_b32 v{Y}, v{B1}
    """)
    wave_max_u32(a, Y, Y + 1)
    a(f"""
    v_cmp_eq_u32 vcc, v{B1}, v{Y}
    v_cndmask_b32 v{B1}, v{B1}, v{B2}, vcc
    """)
    wave_max_u32(a, B1, Y + 1)
    a(f"""
    v_readfirstlane_b32 s40, v{Y}
    v_readfirstlane_b32 s41, v{B1}
    s_andn2_b32 s42, 0x7ff, s40
    s_andn2_b32 s43, 0x7ff, s41
    s_lshl_b32 s42, s42, 10
    s_lshl_b32 s43, s43, 10
    """)
    a.label("K2_nokey")
    a(f"""
    s_cmp_ge_u32 s2, 112
    s_cbranch_scc1 K2_down
    s_cmp_lg_u32 s6, 0
    s_cbranch_scc1 K2_up1
    s_add_u32 s36, s42, {WS_HN:#x}
    s_add_u32 s37, s43, {WS_HN:#x}
    buffer_load_dwordx4 v[{KY}:{KY+3}], v{vWL}, s[8:11], s36 offen sc1
    buffer_load_dwordx4 v[{KY+4}:{KY+7}], v{vWL}, s[8:11], s37 offen sc1
    s_waitcnt vmcnt(1)
    ds_write_b128 v{vWL}, v[{KY}:{KY+3}] offset:{L_XS}
    s_waitcnt vmcnt(0)
    ds_write_b128 v{vWL}, v[{KY+4}:{KY+7}] offset:{L_XS + 1040}
    """)
    a.label("K2_up1")
    st(3, 2)
    a(f"""
    v_mul_u32_u24 v{t0}, 1040, v{t3}
    v_lshl_add_u32 v{t0}, v{t4}, 4, v{t0}
    s_lshr_b32 s5, s6, 1
    s_lshl_b32 s5, s5, 8
    v_add_u32 v{t0}, s5, v{t0}
    s_waitcnt lgkmcnt(0)
    s_barrier
    """)
    for sx in range(4):
        a(f"ds_read_b128 v[{BX+4*sx}:{BX+4*sx+3}], v{t0} offset:{L_XS + 64*sx}")
    for sx in range(4):
        a(f"s_waitcnt lgkmcnt({3-sx})")
        c = "0" if sx == 0 else f"v[{AC}:{AC+3}]"
        a(f"v_mfma_f32_16x16x32_bf16 v[{AC}:{AC+3}], v[{AFR+4*sx}:{AFR+4*sx+3}], v[{BX+4*sx}:{BX+4*sx+3}], {c}")
    a(f"""
    ds_write_b128 v{vPW}, v[{AC}:{AC+3}]
    s_waitcnt lgkmcnt(0)
    s_barrier
    s_cmp_lg_u32 s6, 0
    s_cbranch_scc1 K2_fin
    """)
    def red_read():
        a(f"v_add_u32 v{t0}, {L_RED:#x}, v{vPR}")
        a("s_waitcnt vmcnt(0)")
        for k in range(4):
            a(f"ds_read2_b32 v[{KY+2*k}:{KY+2*k+1}], v{t0} offset0:{64*k} offset1:{64*k+32}")
        a("s_waitcnt lgkmcnt(0)")
        a(f"v_pk_add_f32 v[{KY}:{KY+1}], v[{KY}:{KY+1}], v[{KY+2}:{KY+3}]")
        a(f"v_pk_add_f32 v[{KY+4}:{KY+5}], v[{KY+4}:{KY+5}], v[{KY+6}:{KY+7}]")
        a(f"v_pk_add_f32 v[{KY}:{KY+1}], v[{KY}:{KY+1}], v[{KY+4}:{KY+5}]")
    st(4, 2)
    red_read()
    a(f"""
    v_cvt_pk_bf16_f32 v{KY}, 0, v{KY}
    v_cvt_pk_bf16_f32 v{KY+1}, 0, v{KY+1}
    """)
    sigmoid(a, KY + 2, KY, KY + 3)
    a(f"""
    v_mul_f32 v{KY}, v{KY}, v{KY+2}
    v_cvt_pk_bf16_f32 v{KY}, 0, v{KY}
    v_mul_f32 v{KY}, v{KY}, v{KY+1}
    v_cvt_pk_bf16_f32 v{KY}, 0, v{KY}
    v_or_b32 v{KY}, 1, v{KY}
    s_lshl_b32 s5, s76, 7
    s_add_u32 s5, s5, {WS_GU:#x}
    """)
    if GREP:
        for k in range(4):
            a(f"buffer_store_dword v{KY}, v{vOR}, s[8:11], s5 offen sc1")
            if k < 3: a("s_add_u32 s5, s5, 0x8000")
    else:
        a(f"""
        s_mov_b32 exec_hi, 0
        buffer_store_dword v{KY}, v{vPR}, s[8:11], s5 offen sc1
        s_mov_b64 exec, -1
        """)
    a(f"""
    s_branch K2_fin
    """)
    a.label("K2_down")
    HH, NN, GT, OO = Y + 6, Y + 7, AC + 4, AC + 5
    a(f"""
    s_cmp_lg_u32 s6, 0
    s_cbranch_scc1 K2_dn1
    v_bfe_u32 v{t0}, v0, 4, 1
    v_cmp_eq_u32 vcc, 0, v{t0}
    v_mov_b32 v{t0}, s43
    v_mov_b32 v{t1}, s42
    v_cndmask_b32 v{OO}, v{t0}, v{t1}, vcc
    v_and_b32 v{t0}, 15, v0
    v_lshl_add_u32 v{OO}, v{t0}, 1, v{OO}
    s_lshl_b32 s44, s77, 5
    s_add_u32 s36, s44, {WS_H:#x}
    s_add_u32 s37, s44, {WS_HN:#x}
    buffer_load_ushort v{HH}, v{OO}, s[8:11], s36 offen sc1
    buffer_load_ushort v{NN}, v{OO}, s[8:11], s37 offen sc1
    v_mov_b32 v{t0}, s41
    v_mov_b32 v{t1}, s40
    v_cndmask_b32 v{GT}, v{t0}, v{t1}, vcc
    v_and_b32 v{GT}, 0xffff0000, v{GT}
    v_ashrrev_i32 v{t0}, 31, v{GT}
    v_not_b32 v{t0}, v{t0}
    v_or_b32 v{t0}, 0x80000000, v{t0}
    v_xor_b32 v{GT}, v{GT}, v{t0}
    v_and_b32 v{GT}, 0xffff0000, v{GT}
    """)
    sigmoid(a, GT, GT, t0)
    a(f"v_cvt_pk_bf16_f32 v{GT}, 0, v{GT}")
    a.label("K2_dn1")
    a(f"""
    s_mul_i32 s5, s6, 1792
    s_and_b32 s37, s2, {7 if GREP else 0}
    s_lshl_b32 s37, s37, 14
    s_add_u32 s5, s5, s37
    s_add_u32 s5, s5, {WS_GU:#x}
    v_min_u32 v{t1}, 47, v0
    v_lshlrev_b32 v{t1}, 4, v{t1}
    s_lshl_b32 s37, s6, 10
    s_add_u32 s37, s37, {L_GB:#x}
    v_lshrrev_b32 v{t0}, 3, v0
    v_lshlrev_b32 v{vPL}, 5, v{t0}
    v_and_b32 v{t0}, 3, v0
    v_lshl_add_u32 v{vPL}, v{t0}, 3, v{vPL}
    v_bfe_u32 v{t0}, v0, 2, 1
    v_mul_u32_u24 v{t0}, 464, v{t0}
    v_add3_u32 v{vPL}, v{vPL}, v{t0}, s37
    v_mul_u32_u24 v{vOW}, 464, v{t3}
    v_lshl_add_u32 v{vOW}, v{t4}, 4, v{vOW}
    v_add_u32 v{vOW}, s37, v{vOW}
    s_mov_b32 s45, 0x07060302
    s_mov_b32 s36, 0
    """)
    def gissue(b):
        a(f"buffer_load_dwordx4 v[{b}:{b+3}], v{vWL}, s[8:11], s5 offen sc1")
        a(f"buffer_load_dwordx4 v[{b+4}:{b+7}], v{t1}, s[8:11], s5 offen offset:1024 sc1")
    poll_loop("K2_gp", gissue, 2)
    a.label("K2_gok")
    st(4, 2)
    a(f"""
    v_perm_b32 v{Y}, v{KY+1}, v{KY}, s45
    v_perm_b32 v{Y+1}, v{KY+3}, v{KY+2}, s45
    v_perm_b32 v{Y+2}, v{KY+5}, v{KY+4}, s45
    v_perm_b32 v{Y+3}, v{KY+7}, v{KY+6}, s45
    ds_write_b64 v{vPL}, v[{Y}:{Y+1}]
    s_mov_b32 exec_hi, 0xffff
    ds_write_b64 v{vPL}, v[{Y+2}:{Y+3}] offset:256
    s_mov_b64 exec, -1
    """)
    for sx in range(7):
        a(f"ds_read_b128 v[{BX+4*sx}:{BX+4*sx+3}], v{vOW} offset:{64*sx}")
    for sx in range(7):
        a(f"s_waitcnt lgkmcnt({6-sx})")
        c = "0" if sx == 0 else f"v[{AC}:{AC+3}]"
        a(f"v_mfma_f32_16x16x32_bf16 v[{AC}:{AC+3}], v[{AFR+4*sx}:{AFR+4*sx+3}], v[{BX+4*sx}:{BX+4*sx+3}], {c}")
    a(f"""
    ds_write_b128 v{vPW}, v[{AC}:{AC+3}]
    s_waitcnt lgkmcnt(0)
    s_barrier
    s_cmp_lg_u32 s6, 0
    s_cbranch_scc1 K2_fin
    """)
    red_read()
    a(f"""
    v_add_f32 v{KY}, v{KY}, v{KY+1}
    v_lshlrev_b32 v{HH}, 16, v{HH}
    v_lshlrev_b32 v{NN}, 16, v{NN}
    v_cvt_pk_bf16_f32 v{KY}, 0, v{KY}
    v_mul_f32 v{KY}, v{KY}, v{GT}
    v_cvt_pk_bf16_f32 v{KY}, 0, v{KY}
    v_add_f32 v{KY}, v{KY}, v{NN}
    v_cvt_pk_bf16_f32 v{KY}, 0, v{KY}
    v_add_f32 v{KY}, v{KY}, v{HH}
    v_cvt_pk_bf16_f32 v{KY}, v{KY}, v{KY}
    s_mov_b32 exec_hi, 0
    buffer_store_short v{KY}, v{OO}, s[20:23], s44 offen sc1
    s_mov_b64 exec, -1
    """)
    a.label("K2_fin")
    if 'amp' in dbg:
        q = int(OPT['amp'])
        expr = {0: None, 1: ("s83", "s82"), 2: ("s90", "s83"), 3: ("s96", "s90"), 4: ("s84", "s82"), 5: ("s94", "s90")}[q]
        a(f"""
        s_or_b32 s5, s2, s6
        s_cmp_lg_u32 s5, 0
        s_cbranch_scc1 K2_amp_end
        v_mov_b32 v{S1+4}, 0
        s_mov_b32 s5, {WS_SEL:#x}
        buffer_load_dwordx4 v[{S1}:{S1+3}], v{S1+4}, s[8:11], s5 offen
        s_waitcnt vmcnt(0)
        v_readfirstlane_b32 s82, v{S1}
        v_readfirstlane_b32 s83, v{S1+1}
        v_readfirstlane_b32 s84, v{S1+2}
        """)
        if expr: a(f"s_sub_u32 s85, {expr[0]}, {expr[1]}")
        else: a("s_mov_b32 s85, 0")
        a(f"""
        s_min_u32 s85, s85, 5000
        s_lshl_b32 s85, s85, 1
        s_add_u32 s85, s85, 600
        s_add_u32 s85, s85, s96
        """)
        a.label("K2_amp")
        a(f"""
        s_memrealtime s[86:87]
        s_waitcnt lgkmcnt(0)
        s_sub_u32 s86, s86, s85
        s_cmp_lt_i32 s86, 0
        s_cbranch_scc1 K2_amp
        """)
        a.label("K2_amp_end")
    if G.STAMP: a("s_waitcnt vmcnt(0)")
    stamp(a, 6)
    if G.STAMP: a("s_mov_b32 s91, s30")
    stamp_out(a, 1, 8, "s6", WF)
    dstamp(a, 1, True, 240)
    a.label("K2_end")
    a("s_endpgm")
    for k, off in enumerate(spins):
        a.label(f"K2_spin{k}")
        a(f"""
        s_sleep 1
        ds_read_b32 v{vFV}, v{vFR} offset:{off}
        s_waitcnt lgkmcnt(0)
        v_cmp_gt_u32 vcc, s29, v{vFV}
        s_cbranch_vccnz K2_spin{k}
        s_branch K2_back{k}
        """)
    n = a.fix()
    if G.ALIGN: print('align', align8(a))
    return a.text(), 256, L_TOTAL
```

```python
from gen import *
import gen as G

L_PART = 0x0; L_Q = 0x6000; L_MREF = 0x8400; L_OB = 0xA800; L_KEY = 0xAC00; L_FLG = 0xAD00; L_MX = 0xB000; L_HB = 0xB400
L_FW = 0xE000; L_TOTAL = 0xE000 + 8 * 7168
L_XS = L_PART; L_RED = L_PART + 0x1000; L_GB = L_PART + 0x2000
C_EXACT = 0.25 * 1.4426950408889634
OFFS = 96.0

def wave_sum(a, vs, ts):
    if isinstance(vs, int): vs, ts = [vs], [ts]
    for mod in ("quad_perm:[1,0,3,2]", "quad_perm:[2,3,0,1]", "row_half_mirror", "row_mirror"):
        for v in vs:
            a(f"v_add_f32_dpp v{v}, v{v}, v{v} {mod} row_mask:0xf bank_mask:0xf")
    for w in (16, 32):
        for v, t in zip(vs, ts): a(f"v_mov_b32 v{t}, v{v}")
        for v, t in zip(vs, ts): a(f"v_permlane{w}_swap_b32 v{t}, v{v}")
        for v, t in zip(vs, ts): a(f"v_add_f32 v{v}, v{v}, v{t}")

class VM:
    def __init__(self, a): self.a = a; self.q = []; self.done = -1
    def issue(self, tag): self.q.append(tag)
    def wait(self, tag):
        i = max(k for k, t in enumerate(self.q) if t == tag)
        if i <= self.done: return
        self.done = i
        self.a(f"s_waitcnt vmcnt({len(self.q) - 1 - i})")

def wave_max_u32(a, v, t):
    for mod in ("quad_perm:[1,0,3,2]", "quad_perm:[2,3,0,1]", "row_half_mirror", "row_mirror"):
        a(f"v_max_u32_dpp v{v}, v{v}, v{v} {mod} row_mask:0xf bank_mask:0xf")
    for w in (16, 32):
        a(f"""
        v_mov_b32 v{t}, v{v}
        v_permlane{w}_swap_b32 v{t}, v{v}
        v_max_u32 v{v}, v{v}, v{t}
        """)

LOG2E = 1.4426950408889634
def sigmoid(a, d, x, t):
    a(f"""
    v_mul_f32 v{t}, {f2u(-LOG2E):#x}, v{x}
    v_exp_f32 v{t}, v{t}
    v_add_f32 v{t}, 1.0, v{t}
    v_rcp_f32 v{d}, v{t}
    """)

def gen_k2(dbg='', prio=True):
    a = Asm()
    OPT = dict(x.split('=') for x in dbg.split(',') if '=' in x)
    PFS = int(OPT.get('pfs', 0)); PFP = int(OPT.get('pfp', 1))
    TAILST = 'tailst' in dbg
    FS = 'ffnst' in dbg
    KREP = 'nokrep' not in dbg; GREP = 'nogrep' not in dbg
    def st(i, tail):
        if 'r0st' in dbg:
            if tail == 3: stamp(a, i)
        elif FS:
            if tail == 2: stamp(a, i)
        elif tail in (True, False) and bool(tail) == TAILST: stamp(a, i)
    K = 16; V = 48; X = [112, 128]; O = 144; CM = 160; SP = 176; Q = 184; OA = 188; WF = 204; BF = 236; S1 = 240
    vQA, vPW, vPR, vPL, vOW, vOR, vLM, vWL, vKL, vVL = 1, 2, 3, 4, 5, 6, 7, 8, 9, 10
    t0, t1, t2, t3, t4 = 11, 12, 13, 14, 15
    vFW, vFR, vFV, vRD = 9, 13, 14, 15
    a(f"""
    s_cmp_ge_u32 s2, 256
    s_cbranch_scc1 K2_end
    """)
    st(0, False); st(0, 3)
    if 'leak' in dbg or 'amp' in dbg: a('s_memrealtime s[90:91]')
    dstamp(a, 1, False, 240)
    a(f"""
    s_load_dwordx2 s[48:49], s[0:1], 96
    s_load_dwordx2 s[40:41], s[0:1], 0
    s_load_dwordx8 s[60:67], s[0:1], 48
    s_load_dwordx2 s[46:47], s[0:1], 80
    s_and_b32 s3, s2, 7
    s_lshr_b32 s4, s2, 3
    s_lshl_b32 s7, s3, 8
    s_lshl_b32 s5, s4, 3
    s_add_u32 s7, s7, s5           ; T0
    s_and_b32 s28, s4, 7           ; rot
    v_lshrrev_b32 v{t0}, 6, v0
    v_and_b32 v0, 63, v0
    v_readfirstlane_b32 s6, v{t0}
    s_mov_b32 s30, 0
    v_lshlrev_b32 v{vWL}, 4, v0
    s_mul_i32 s3, s6, {8*TS}
    s_add_u32 s3, s3, {WS_KV:#x}
    """)
    for t in range(8):
        a(f"""
        s_add_u32 s4, s28, {t}
        s_and_b32 s4, s4, 7
        s_mul_i32 s4, s4, {TS}
        s_add_u32 s{50+t}, s3, s4
        """)
    a.label("K2_restart")
    a(f"""
    s_add_u32 s3, s6, s28
    s_and_b32 s3, s3, 7
    s_add_u32 s3, s3, s7
    s_lshl_b32 s3, s3, 10
    v_and_b32 v{t1}, 31, v0
    v_lshrrev_b32 v{t2}, 5, v0
    v_mul_u32_u24 v{vVL}, 272, v{t2}
    v_lshl_add_u32 v{vVL}, v{t1}, 4, v{vVL}
    v_cmp_lt_u32 vcc, 16, v{t1}
    v_bfrev_b32 v{t0}, 1
    v_add_u32 v{vQA}, {L_Q:#x}, v{vWL}
    v_cndmask_b32 v{vVL}, v{vVL}, v{t0}, vcc
    s_waitcnt lgkmcnt(0)
    """)
    srd(a, 8, 48, 49, WS_SIZE)
    vm = VM(a)
    def ldK(t):
        a(f"buffer_load_dwordx4 v[{K+4*t}:{K+4*t+3}], v{vWL}, s[8:11], s{50+t} offen"); vm.issue(f"K{t}")
    def ldV(t):
        for h in range(2):
            a(f"buffer_load_dwordx4 v[{V+8*t+4*h}:{V+8*t+4*h+3}], v{vVL}, s[8:11], s{50+t} offen offset:{1024 + 544*h}"); vm.issue(f"V{t}{h}")
    a(f"buffer_load_dwordx4 v[{Q}:{Q+3}], v{vWL}, s[8:11], s3 offen"); vm.issue("Q")
    ldK(0); ldK(1)
    a(f"""
    s_lshl_b32 s3, s6, 10
    v_add_u32 v{t3}, s3, v{vQA}
    """)
    def late_setup(part):
        u0, u1, u2, u3 = S1, S1 + 1, S1 + 2, S1 + 3
        if part == 0:
            srd(a, 16, 40, 41, 0x200000)
            srd(a, 20, 46, 47, 0x200000)
            srd(a, 24, 60, 61, 0x400)
            a(f"""
            v_and_b32 v{u1}, 31, v0
            v_lshrrev_b32 v{u2}, 5, v0
            v_mul_u32_u24 v{vPW}, 96, v{u1}
            v_lshl_add_u32 v{vPW}, v{u2}, 4, v{vPW}
            s_mul_i32 s3, s6, 3072
            v_add_u32 v{vPW}, s3, v{vPW}
            v_lshrrev_b32 v{u0}, 4, v0     ; g
            s_lshl_b32 s3, s6, 2
            v_add_u32 v{u1}, s3, v{u0}     ; n = 4w + g
            v_mul_u32_u24 v{vPL}, 96, v{u1}
            v_and_b32 v{u2}, 15, v0        ; d
            v_lshl_add_u32 v{vPR}, v{u2}, 2, v{vPL}
            v_add_u32 v{vPL}, 64, v{vPL}
            s_lshl_b32 s31, s28, 16
            s_lshl_b32 s33, s6, 13
            s_add_u32 s33, s33, {WS_WOF:#x}
            """)
        elif part == 1:
            a(f"""
            v_and_b32 v{u3}, 7, v{u1}      ; token
            v_lshrrev_b32 v{u1}, 3, v{u1}  ; head_local
            v_lshlrev_b32 v{vOW}, 7, v{u3}
            v_lshl_add_u32 v{vOW}, v{u1}, 5, v{vOW}
            v_lshl_add_u32 v{vOW}, v{u2}, 1, v{vOW}
            v_add_u32 v{vOW}, {L_OB:#x}, v{vOW}
            v_and_b32 v{u3}, 7, v0
            v_lshlrev_b32 v{vOR}, 7, v{u3}
            v_lshl_add_u32 v{vOR}, v{u0}, 4, v{vOR}
            v_add_u32 v{vOR}, {L_OB:#x}, v{vOR}
            v_mov_b32 v{vLM}, 0
            v_lshlrev_b32 v{vFR}, 2, v{u3}
            v_add_u32 v{vFR}, {L_FLG:#x}, v{vFR}
            """)
        else:
            for r in range(0, 16, 2):
                a(f"v_pk_mov_b32 v[{OA+r}:{OA+r+1}], 0, 0")
            a(f"v_pk_mov_b32 v[{SP}:{SP+1}], 0, 0")
            a(f"v_mov_b32 v{SP+2}, 0xdddddddd")
    late_setup(0); late_setup(1)
    ldV(0); ldK(2); ldV(1)
    late_setup(2)
    st(1, False)
    vm.wait("Q")
    a(f"""
    ds_write_b128 v{t3}, v[{Q}:{Q+3}]
    s_cmp_lg_u32 s30, 0
    s_cbranch_scc1 K2_safe
    """)
    vm.wait("K1")
    a(f"""
    v_mfma_f32_32x32x16_bf16 v[{X[0]}:{X[0]+15}], v[{K}:{K+3}], v[{Q}:{Q+3}], 0
    v_mfma_f32_32x32x16_bf16 v[{X[1]}:{X[1]+15}], v[{K+4}:{K+7}], v[{Q}:{Q+3}], 0
    """)
    S = X[0]
    a(f"v_max3_f32 v{t0}, v{S}, v{S+1}, v{S+2}")
    for r in range(3, 31, 2):
        a(f"v_max3_f32 v{t0}, v{t0}, v{S+r}, v{S+r+1}")
    a(f"""
    v_max_f32 v{t0}, v{t0}, v{S+31}
    v_mov_b32 v{t1}, v{t0}
    v_permlane32_swap_b32 v{t1}, v{t0}
    v_max_f32 v{t0}, v{t0}, v{t1}
    v_mov_b32 v{t1}, {f2u(-OFFS):#x}
    s_branch K2_mref
    """)
    a.label("K2_safe")
    a(f"""
    v_and_b32 v{t0}, 31, v0
    v_lshlrev_b32 v{S1+4}, 2, v{t0}
    v_add_u32 v{S1+4}, {L_MX:#x}, v{S1+4}
    s_lshl_b32 s3, s6, 7
    v_add_u32 v{S1+5}, s3, v{S1+4}
    v_mov_b32 v{t0}, 0xff800000
    ds_write_b32 v{S1+5}, v{t0}
    s_waitcnt vmcnt(0) lgkmcnt(0)
    s_barrier
    v_mov_b32 v{t1}, v{vQA}
    s_mov_b32 s29, 0
    """)
    a.label("K2_safe_loop")
    a(f"""
    ds_read_b128 v[{BF}:{BF+3}], v{t1}
    v_mov_b32 v{t0}, 0xff800000
    s_waitcnt lgkmcnt(0)
    """)
    for t in range(8):
        a(f"v_mfma_f32_32x32x16_bf16 v[{S}:{S+15}], v[{K+4*t}:{K+4*t+3}], v[{BF}:{BF+3}], 0")
        for r in range(0, 16, 2):
            a(f"v_max3_f32 v{t0}, v{t0}, v{S+r}, v{S+r+1}")
    a(f"""
    ds_max_f32 v{S1+4}, v{t0}
    v_add_u32 v{t1}, 1024, v{t1}
    v_add_u32 v{S1+4}, 128, v{S1+4}
    s_add_u32 s29, s29, 1
    s_cmp_lt_u32 s29, 8
    s_cbranch_scc1 K2_safe_loop
    s_waitcnt lgkmcnt(0)
    s_barrier
    ds_read_b32 v{t0}, v{S1+5}
    v_mov_b32 v{t1}, 0
    s_waitcnt lgkmcnt(0)
    """)
    a.label("K2_mref")
    a(f"""
    v_sub_f32 v{BF}, v{t1}, v{t0}
    v_sub_f32 v{BF+1}, v{t1}, v{t0}
    v_sub_f32 v{BF+2}, v{t1}, v{t0}
    v_sub_f32 v{BF+3}, v{t1}, v{t0}
    ds_write_b128 v{t3}, v[{BF}:{BF+3}] offset:{L_MREF - L_Q}
    s_lshl_b32 s3, s6, 2
    s_add_u32 s3, s3, {L_FLG:#x}
    v_mov_b32 v{vFW}, s3
    v_mov_b32 v{vRD}, 0
    ds_write2_b32 v{vFW}, v{vRD}, v{vRD} offset0:0 offset1:8
    s_waitcnt lgkmcnt(0)
    s_barrier
    """)
    def rd_qcm():
        a(f"ds_read_b128 v[{Q}:{Q+3}], v{vQA}")
        for k in range(4):
            a(f"ds_read_b128 v[{CM+4*k}:{CM+4*k+3}], v{vQA} offset:{L_MREF - L_Q}")
        a(f"v_add_u32 v{vQA}, 1024, v{vQA}")
    mf = "v_mfma_f32_32x32x16_bf16"
    def M1(kt, xb):
        a(f"{mf} v[{X[xb]}:{X[xb]+15}], v[{K+4*kt}:{K+4*kt+3}], v[{Q}:{Q+3}], v[{CM}:{CM+15}]")
    def E(xb, lo, hi):
        for r in range(lo, hi):
            if 'noexp' in dbg:
                a(f"v_cvt_pk_bf16_f32 v{X[xb]+r}, 0, v{X[xb]+r}"); a(f"v_cvt_pk_bf16_f32 v{X[xb]+r}, 0, v{X[xb]+r}")
                continue
            a(f"v_exp_f32 v{X[xb]+r}, v{X[xb]+r}")
    def C2(h, xb):
        for k in range(4):
            a(f"v_cvt_pk_bf16_f32 v{SP+4*h+k}, v{X[xb]+8*h+2*k}, v{X[xb]+8*h+2*k+1}")
    def M3(h, kt):
        xb = kt & 1
        a(f"v_smfmac_f32_32x32x32_bf16 v[{O}:{O+15}], v[{V+8*kt+4*h}:{V+8*kt+4*h+3}], v[{X[xb]+8*h}:{X[xb]+8*h+7}], v{SP+2}")
    def Ozero():
        a(f"v_mfma_f32_32x32x8bf16_1k v[{O}:{O+15}], v[{SP}:{SP+1}], v[{SP}:{SP+1}], 0")
    def part_write():
        a(f"""
        ds_write_b128 v{vPW}, v[{O}:{O+3}]
        ds_write_b128 v{vPW}, v[{O+4}:{O+7}] offset:32
        ds_write_b32 v{vPW}, v{O+8} offset:64
        """)
    def s1_read():
        for k in range(4):
            a(f"ds_read2st64_b32 v[{S1+2*k}:{S1+2*k+1}], v{vPR} offset0:{24*k} offset1:{24*k+12}")
        for k in range(4):
            a(f"ds_read2st64_b32 v[{S1+8+2*k}:{S1+8+2*k+1}], v{vPL} offset0:{24*k} offset1:{24*k+12}")
    def s1_calc():
        for (x, y) in ((0, 2), (4, 6), (0, 4)):
            a(f"v_pk_add_f32 v[{S1+8+x}:{S1+9+x}], v[{S1+8+x}:{S1+9+x}], v[{S1+8+y}:{S1+9+y}]")
            a(f"v_pk_add_f32 v[{S1+x}:{S1+1+x}], v[{S1+x}:{S1+1+x}], v[{S1+y}:{S1+1+y}]")
        a(f"""
        v_add_f32 v{S1+8}, v{S1+8}, v{S1+9}
        v_add_f32 v{S1}, v{S1}, v{S1+1}
        v_rcp_f32 v{S1+1}, v{S1+8}
        v_maximum3_f32 v{vLM}, v{vLM}, v{S1+8}, abs(v{S1})
        v_mul_f32 v{S1}, v{S1}, v{S1+1}
        v_cvt_pk_bf16_f32 v{S1}, v{S1}, v{S1}
        ds_write_b16 v{vOW}, v{S1}
        """)
    def s2_read():
        for s in range(2):
            a(f"ds_read_b128 v[{BF+4*s}:{BF+4*s+3}], v{vOR} offset:{64*s}")
    def s2_mma(lo, hi):
        for u in range(lo, hi):
            s, t = u >> 2, u & 3
            a(f"v_mfma_f32_16x16x32_bf16 v[{OA+4*t}:{OA+4*t+3}], v[{WF+4*u}:{WF+4*u+3}], v[{BF+4*s}:{BF+4*s+3}], v[{OA+4*t}:{OA+4*t+3}]")
    def wf_load(lo, hi):
        if lo == 0:
            a("s_add_u32 s34, s33, s31")
            a("s_add_u32 s35, s34, 4096")
            a("s_add_u32 s31, s31, 0x10000")
            a("s_and_b32 s31, s31, 0x7ffff")
        for u in range(lo, hi):
            a(f"buffer_load_dwordx4 v[{WF+4*u}:{WF+4*u+3}], v{vWL}, s[8:11], s{34 + (u >> 2)} offen offset:{1024*(u&3)}")
            vm.issue("WF")
    def ffn_prefetch():
        a(f"""
        s_mov_b32 s39, s6
        s_cmp_eq_u32 s39, 1
        s_cselect_b64 s[36:37], s[64:65], s[62:63]
        s_cmp_eq_u32 s39, 2
        s_cselect_b64 s[36:37], s[66:67], s[36:37]
        """)
        srd(a, 12, 36, 37, 512 * 1792 * 2)
        a(f"""
        s_and_b32 s3, s2, 7
        s_lshr_b32 s4, s2, 3
        s_mul_i32 s5, s4, {16*3584}
        s_mul_i32 s36, s3, 448
        s_and_b32 s36, s36, 0xffffff80
        s_add_u32 s5, s5, s36
        s_lshl_b32 s36, s3, 7
        s_mul_i32 s37, s4, {56*1024}
        s_add_u32 s36, s36, s37
        v_lshrrev_b32 v{t0}, 2, v0
        v_mul_u32_u24 v{t0}, 3584, v{t0}
        v_and_b32 v{t1}, 3, v0
        v_lshl_add_u32 v{t0}, v{t1}, 7, v{t0}
        v_min_u32 v{t1}, 55, v0
        v_lshlrev_b32 v{t1}, 10, v{t1}
        s_cmp_eq_u32 s39, 2
        s_cselect_b32 s38, s36, s5
        s_cselect_b64 vcc, -1, 0
        v_cndmask_b32 v{t0}, v{t0}, v{t1}, vcc
        s_lshl_b32 s39, s6, {PFS}
        s_add_u32 s39, s39, 1
        s_cmp_gt_u32 s6, 2
        s_cselect_b32 s39, 99, s39
        """)
    def ffn_setup():
        a(f"""
        s_and_b32 s3, s2, 7
        s_lshr_b32 s4, s2, 3
        s_and_b32 s5, s6, 1
        s_cmp_eq_u32 s5, 0
        s_cselect_b64 s[36:37], s[62:63], s[64:65]
        s_cmp_lt_u32 s2, 112
        s_cselect_b64 s[36:37], s[36:37], s[66:67]
        """)
        srd(a, 68, 36, 37, 512 * 1792 * 2)
        a(f"""
        s_mul_i32 s76, s3, 14
        s_add_u32 s76, s76, s4           ; fs
        s_lshl_b32 s77, s3, 2
        s_add_u32 s77, s77, s4
        s_sub_u32 s77, s77, 14           ; cb
        s_lshr_b32 s5, s6, 1
        s_mul_i32 s5, s5, {128*3584}
        s_lshl_b32 s36, s76, 5
        s_add_u32 s5, s5, s36
        s_mul_i32 s36, s6, {224*1024}
        s_lshl_b32 s37, s77, 5
        s_add_u32 s36, s36, s37
        s_cmp_lt_u32 s2, 112
        s_cselect_b32 s72, s5, s36
        s_movk_i32 s73, 1024
        s_cselect_b32 s73, 3584, s73
        s_cselect_b32 s75, 4, 7
        s_cmp_lt_u32 s2, 144
        s_cselect_b32 s75, s75, 0
        s_mul_i32 s74, s6, 7168
        s_add_u32 s74, s74, {L_FW:#x}
        v_lshrrev_b32 v{vVL}, 1, v0
        v_mul_lo_u32 v{vVL}, v{vVL}, s73
        v_and_b32 v{t1}, 1, v0
        v_lshl_add_u32 v{vVL}, v{t1}, 4, v{vVL}
        s_lshl_b32 s73, s73, 5
        s_mov_b32 s78, s74
        """)
    def ffn_stage():
        a(f"""
        s_cmp_lt_u32 s29, 4
        s_cbranch_scc1 K2_nost
        """)
        for e in range(2):
            a(f"""
            s_cmp_eq_u32 s75, 0
            s_cbranch_scc1 K2_nost
            s_mov_b32 m0, s78
            s_sub_u32 s75, s75, 1
            buffer_load_dwordx4 v{vVL}, s[68:71], s72 offen lds
            s_add_u32 s78, s78, 1024
            s_add_u32 s72, s72, s73
            """)
        a.label("K2_nost")
    def ffn_issue():
        a(f"""
        s_cmp_lg_u32 s29, s39
        s_cbranch_scc1 K2_nopf
        buffer_load_dword v{t1}, v{t0}, s[12:15], s38 offen
        """)
        a.label("K2_nopf")
    def setprio(p):
        if prio: a(f"s_setprio {p}")
    st(2, False)
    rd_qcm()
    a("s_waitcnt lgkmcnt(0)")
    M1(0, 0)
    a("s_mov_b32 s29, 1")
    setprio(3)
    ldK(3); ldV(2)
    st(3, False)
    if 'leak' in dbg or 'amp' in dbg: a('s_memrealtime s[94:95]'); a('s_waitcnt lgkmcnt(0)')
    def tile(i, hook):
        xb = i & 1; xn = xb ^ 1
        hook(i, 'a')
        E(xb, 0, 2)
        hook(i, 'm3b')
        E(xb, 2, 5)
        hook(i, 'm1')
        M1((i + 1) & 7, xn)
        hook(i, 0)
        if i == 0:
            E(xb, 5, 12)
            hook(i, 1)
            Ozero()
            E(xb, 12, 16)
            M3(0, i)
            hook(i, 2)
        else:
            E(xb, 5, 8)
            hook(i, 'e1')
            E(xb, 8, 10)
            hook(i, 1)
            M3(0, i)
            hook(i, 2)
            E(xb, 10, 13)
            hook(i, 'e2')
            E(xb, 13, 15)
            hook(i, 'e3')
            E(xb, 15, 16)
    def hook0(i, pos):
        if pos == 'a' and i in (0, 2, 4, 6): st(1 + i // 2, 3)
        if pos == 'a' and i in (3, 5, 7): setprio({3: 2, 5: 1, 7: 1}[i])
        if pos == 'm3b' and i > 0:
            vm.wait(f"V{i-1}1"); M3(1, i - 1)
        if pos == 'm1':
            if i < 7: vm.wait(f"K{i+1}")
            else: a("s_waitcnt lgkmcnt(0)")
        if pos == 0:
            if i + 4 <= 7: ldK(i + 4)
            if i + 3 <= 7: ldV(i + 3)
            if i == 4 and 'nopf' not in dbg: ffn_prefetch()
            if i == 5: wf_load(0, 4); ffn_setup()
            if i == 6: wf_load(4, 8)
        if pos == 1:
            if i == 6: rd_qcm()
            vm.wait(f"V{i}0")
        if pos == 2 and i == 7:
            vm.wait("V71")
    for i in range(8): tile(i, hook0)
    st(5, 3)
    a.raw(".p2align 3")
    a.label("K2_round")
    spins = []
    def poll(off):
        a(f"ds_read_b32 v{vFV}, v{vFR} offset:{off}")
    def check(off):
        k = len(spins); spins.append(off)
        a(f"""
        s_waitcnt lgkmcnt(0)
        v_cmp_gt_u32 vcc, s29, v{vFV}
        s_cbranch_vccnz K2_spin{k}
        """)
        a.label(f"K2_back{k}")
    PR = dict(x.split('=') for x in dbg.split(',') if '=' in x).get('pr', 'c')
    def hook(i, pos):
        if pos == 'm3b': M3(1, (i - 1) & 7)
        if pos == 'm1' and i == 7: a("s_waitcnt lgkmcnt(0)")
        if pos == 1 and i == 6: rd_qcm()
        if 'nohook' in dbg: return
        if 'bar' in dbg.split(','):
            if pos == 'a' and i in (0, 6, 7): setprio({6: 2, 7: 1, 0: 0}[i])
            if i == 0 and pos == 1: part_write()
            if i == 1 and pos == 0:
                a("s_waitcnt lgkmcnt(0)"); a("s_barrier"); setprio(2); s1_read()
            if i == 2 and pos == 0:
                a("s_waitcnt lgkmcnt(0)"); s1_calc(); setprio(1)
            if i == 3 and pos == 0: setprio(0)
            if i == 4 and pos == 0:
                a("s_waitcnt vmcnt(0) lgkmcnt(0)"); a("s_barrier"); setprio(3); s2_read()
            seq = [(4, 'e3'), (5, 'e1'), (5, 'e2'), (5, 'e3'), (6, 'e1'), (6, 'e2'), (6, 'e3'), (7, 'e1')]
        else:
            ca = int(OPT.get('ca', 2)); cb = int(OPT.get('cb', 5)); PT = OPT.get('pt', '10110321')
            slots = [(t, p) for t in range(1, 8) for p in (('a', 'e1', 'e2', 'e3') if cb >= 6 else ('e1', 'e2', 'e3'))]
            if i == 0 and pos == 'a': a(f"v_mov_b32 v{vRD}, s29")
            if i == 0 and pos == 1:
                part_write(); a(f"ds_write_b32 v{vFW}, v{vRD}")
            if i == ca and pos == 0: poll(0)
            if i == ca and pos == 2: check(0); s1_read()
            if i == ca + 1 and pos == 0:
                a("s_waitcnt lgkmcnt(0)"); s1_calc(); a(f"ds_write_b32 v{vFW}, v{vRD} offset:32")
            if i == cb - 1 and pos == 2: poll(32)
            if i == cb and pos == 'm1':
                check(32); s2_read(); a("s_waitcnt vmcnt(0)")
            if len(PT) == 8: PT = "".join(ch * 2 for ch in PT)
            for hpos, k in (('a', 2 * i), (2, 2 * i + 1)):
                if pos == hpos and PT[k] != PT[k - 1]: setprio(int(PT[k]))
            av = [x for x in slots if x > (cb, 'e1')]
            if OPT.get('sp', '0') == '1' and len(av) >= 12: av = [x for x in av if x[1] != 'e3']
            seq = av[:8]
            while len(seq) < 8: seq = sorted(seq + [seq[len(seq) % len(av)]])
        for u in [k for k, x in enumerate(seq) if x == (i, pos)]:
            if u == 0: a("s_waitcnt lgkmcnt(0)")
            s2_mma(u, u + 1); wf_load(u, u + 1)
            if u == 7 and 'nopf' not in dbg and PFP == 1: ffn_issue(); ffn_stage()
    for i in range(8): tile(i, hook)
    if 'rndst' in dbg:
        a(f"""
        s_memtime s[82:83]
        s_memrealtime s[100:101]
        s_waitcnt lgkmcnt(0)
        s_lshl_b32 s84, s2, 3
        s_add_u32 s84, s84, s6
        s_lshl_b32 s84, s84, 3
        s_add_u32 s84, s84, s29
        s_lshl_b32 s84, s84, 3
        s_add_u32 s84, s84, {WS_STAMP + 0x40000:#x}
        s_mov_b64 exec, 1
        v_mov_b32 v{S1+8}, s82
        v_mov_b32 v{S1+9}, s100
        v_mov_b32 v{S1+10}, 0
        buffer_store_dwordx2 v[{S1+8}:{S1+9}], v{S1+10}, s[8:11], s84 offen
        s_mov_b64 exec, -1
        """)
    a(f"""
    s_add_u32 s29, s29, 1
    s_cmp_lt_u32 s29, 8
    s_cbranch_scc1 K2_round
    """)
    st(4, False); st(0, True)
    M3(1, 7)
    XR = CM; WR = CM + 4; HV = X[0]; HN = X[0] + 8; PK = X[1]; ST = X[1] + 8
    a(f"""
    s_add_u32 s3, s7, s6
    s_lshl_b32 s4, s3, 10
    buffer_load_dwordx4 v[{XR}:{XR+3}], v{vWL}, s[16:19], s4 offen
    buffer_load_dwordx4 v[{WR}:{WR+3}], v{vWL}, s[24:27], 0 offen
    v_and_b32 v{t0}, 7, v0
    v_mul_u32_u24 v{t0}, 1040, v{t0}
    v_lshrrev_b32 v{t1}, 4, v0
    v_lshl_add_u32 v{t0}, v{t1}, 3, v{t0}
    s_lshl_b32 s5, s6, 7
    s_add_u32 s5, s5, {L_HB:#x}
    v_add_u32 v{t0}, s5, v{t0}
    s_mul_i32 s5, s6, 1040
    s_add_u32 s5, s5, {L_HB:#x}
    v_add_u32 v{t1}, s5, v{vWL}
    s_lshl_b32 s35, s6, 2
    s_add_u32 s35, s35, {L_KEY:#x}
    v_mov_b32 v{t4}, s35
    v_and_b32 v{t3}, 7, v0
    v_lshlrev_b32 v{t3}, 2, v{t3}
    v_add_u32 v{t3}, {L_KEY:#x}, v{t3}
    """)
    part_write()
    a("s_waitcnt lgkmcnt(0)"); a("s_barrier"); st(1, True); s1_read()
    a("s_waitcnt lgkmcnt(0)"); s1_calc()
    a(f"""
    v_mov_b32 v{t2}, {f2u(2.0**124):#x}
    v_cmp_nlt_f32 vcc, v{vLM}, v{t2}
    s_cmp_lg_u64 vcc, 0
    s_cselect_b32 s5, 1, 0
    v_mov_b32 v{t2}, s5
    ds_write_b32 v{t4}, v{t2} offset:32
    """)
    a("s_waitcnt vmcnt(2) lgkmcnt(0)"); a("s_barrier"); st(2, True); s2_read()
    a(f"ds_read_b32 v{t2}, v{t3} offset:32")
    a("s_waitcnt lgkmcnt(1)"); s2_mma(0, 8)
    a(f"""
    s_waitcnt lgkmcnt(0)
    v_cmp_ne_u32 vcc, 0, v{t2}
    s_cmp_eq_u64 vcc, 0
    s_cbranch_scc1 K2_good
    s_cmp_lg_u32 s30, 0
    s_cbranch_scc1 K2_good
    s_mov_b32 s30, 1
    s_waitcnt vmcnt(0)
    s_setprio 0
    s_branch K2_restart
    """)
    a.label("K2_good")
    for t in range(4):
        a(f"v_cvt_pk_bf16_f32 v{S1+2*t}, v{OA+4*t}, v{OA+4*t+1}")
        a(f"v_cvt_pk_bf16_f32 v{S1+2*t+1}, v{OA+4*t+2}, v{OA+4*t+3}")
        a(f"ds_write_b64 v{t0}, v[{S1+2*t}:{S1+2*t+1}] offset:{32*t}")
    a("s_waitcnt vmcnt(0)")
    for r in range(4):
        a(f"v_lshlrev_b32 v{HV+2*r}, 16, v{XR+r}")
        a(f"v_and_b32 v{HV+2*r+1}, 0xffff0000, v{XR+r}")
        a(f"v_lshlrev_b32 v{WF+2*r}, 16, v{WR+r}")
        a(f"v_and_b32 v{WF+2*r+1}, 0xffff0000, v{WR+r}")
    a(f"""
    s_waitcnt lgkmcnt(0)
    s_barrier
    """)
    st(3, True)
    a(f"""
    ds_read_b128 v[{BF}:{BF+3}], v{t1}
    s_waitcnt lgkmcnt(0)
    """)
    for r in range(4):
        a(f"v_lshlrev_b32 v{HN+2*r}, 16, v{BF+r}")
        a(f"v_and_b32 v{HN+2*r+1}, 0xffff0000, v{BF+r}")
    P2 = lambda b, r: f"v[{b+r}:{b+r+1}]"
    for r in range(0, 8, 2): a(f"v_pk_add_f32 {P2(HV,r)}, {P2(HV,r)}, {P2(HN,r)}")
    for r in range(8): a(f"v_cvt_pk_bf16_f32 v{HV+r}, 0, v{HV+r}")
    SA, SB = S1, S1 + 2
    a(f"v_pk_add_f32 {P2(SA,0)}, {P2(HV,0)}, {P2(HV,2)}")
    a(f"v_pk_mul_f32 {P2(SB,0)}, {P2(HV,0)}, {P2(HV,0)}")
    a(f"v_pk_add_f32 {P2(SA,4)}, {P2(HV,4)}, {P2(HV,6)}")
    a(f"v_pk_fma_f32 {P2(SB,0)}, {P2(HV,2)}, {P2(HV,2)}, {P2(SB,0)}")
    a(f"v_pk_add_f32 {P2(SA,0)}, {P2(SA,0)}, {P2(SA,4)}")
    a(f"v_pk_fma_f32 {P2(SB,0)}, {P2(HV,4)}, {P2(HV,4)}, {P2(SB,0)}")
    a(f"v_add_f32 v{t0}, v{SA}, v{SA+1}")
    a(f"v_pk_fma_f32 {P2(SB,0)}, {P2(HV,6)}, {P2(HV,6)}, {P2(SB,0)}")
    a(f"v_add_f32 v{t2}, v{SB}, v{SB+1}")
    wave_sum(a, [t0, t2], [ST, ST + 1])
    ln_scalars(a, t0, t2, ST, ST + 2, ST + 1, ST + 3)
    st(4, True)
    for r in range(0, 8, 2): a(f"v_pk_add_f32 {P2(HN,r)}, {P2(HV,r)}, {P2(ST,0)} op_sel_hi:[1,0] neg_lo:[0,1] neg_hi:[0,1]")
    for r in range(8): a(f"v_cvt_pk_bf16_f32 v{HN+r}, 0, v{HN+r}")
    for r in range(0, 8, 2): a(f"v_pk_mul_f32 {P2(HN,r)}, {P2(HN,r)}, {P2(ST,2)} op_sel_hi:[1,0]")
    for r in range(8): a(f"v_cvt_pk_bf16_f32 v{HN+r}, 0, v{HN+r}")
    a(f"v_pk_mul_f32 {P2(SA,0)}, {P2(HN,0)}, {P2(WF,0)}")
    for r in range(2, 8, 2): a(f"v_pk_fma_f32 {P2(SA,0)}, {P2(HN,r)}, {P2(WF,r)}, {P2(SA,0)}")
    a(f"v_add_f32 v{t2}, v{SA}, v{SA+1}")
    fill = [f"v_pk_add_f32 {P2(WF+8,r)}, {P2(HV,r)}, {P2(HN,r)}" for r in range(0, 8, 2)]
    fill += [f"v_cvt_pk_bf16_f32 v{PK+4+r}, v{HV+2*r}, v{HV+2*r+1}" for r in range(4)]
    fill += [f"v_cvt_pk_bf16_f32 v{ST+4+r}, v{HN+2*r}, v{HN+2*r+1}" for r in range(4)]
    for mod in ("quad_perm:[1,0,3,2]", "quad_perm:[2,3,0,1]", "row_half_mirror", "row_mirror"):
        a(fill.pop(0)); a(fill.pop(0))
        a(f"v_add_f32_dpp v{t2}, v{t2}, v{t2} {mod} row_mask:0xf bank_mask:0xf")
    for w in (16, 32):
        a(f"v_mov_b32 v{t0}, v{t2}")
        a(fill.pop(0)); a(fill.pop(0))
        a(f"v_permlane{w}_swap_b32 v{t0}, v{t2}")
        a(f"v_add_f32 v{t2}, v{t2}, v{t0}")
    if 'leak' in dbg:
        a(f"""
        s_cmp_lg_u32 s3, 0
        s_cbranch_scc1 K2_leak
        s_memrealtime s[92:93]
        v_mov_b32 v{S1+4}, 0
        s_mov_b32 s5, {WS_SEL:#x}
        buffer_load_dwordx4 v[{S1}:{S1+3}], v{S1+4}, s[8:11], s5 offen
        s_waitcnt vmcnt(0) lgkmcnt(0)
        s_mov_b64 exec, 1
        v_add_f32 v{WF+8}, {f2u(64.0):#x}, v{WF+8}
        v_sub_u32 v{WF+9}, v{S1+2}, v{S1}
        v_sub_u32 v{WF+10}, v{S1+1}, v{S1}
        v_sub_u32 v{WF+11}, s90, v{S1}
        v_sub_u32 v{WF+12}, s94, v{S1}
        v_sub_u32 v{WF+13}, s92, v{S1}
        """)
        for r in range(9, 14):
            a(f"v_cvt_f32_u32 v{WF+r}, v{WF+r}")
            a(f"v_mul_f32 v{WF+r}, {f2u(0.005):#x}, v{WF+r}")
            a(f"v_min_f32 v{WF+r}, {f2u(20.0):#x}, v{WF+r}")
        a("s_mov_b64 exec, -1")
        a.label("K2_leak")
    a(f"""
    v_cvt_pk_bf16_f32 v{t2}, 0, v{t2}
    v_ashrrev_i32 v{t0}, 31, v{t2}
    v_or_b32 v{t0}, 0x80000000, v{t0}
    v_xor_b32 v{t2}, v{t2}, v{t0}
    v_and_b32 v{t2}, 0xffff0000, v{t2}
    s_sub_u32 s5, 0xffff, s3
    v_or_b32 v{t2}, s5, v{t2}      ; key
    ds_write_b32 v{t4}, v{t2}
    """)
    for r in range(4): a(f"v_cvt_pk_bf16_f32 v{PK+r}, v{WF+8+2*r}, v{WF+8+2*r+1}")
    a(f"""
    buffer_store_dwordx4 v[{PK}:{PK+3}], v{vWL}, s[20:23], s4 offen sc1
    """)
    a(f"""
    s_waitcnt lgkmcnt(0)
    s_barrier
    ds_read_b32 v{t1}, v{t3}
    s_waitcnt lgkmcnt(0)
    v_cmp_gt_u32 vcc, v{t1}, v{t2}
    v_cmp_eq_u32 s[36:37], v{t1}, v{t2}
    s_and_b32 s38, vcc_lo, 0xff
    s_bcnt1_i32_b32 s38, s38       ; rank
    """)
    st(5, False); st(5, True); st(0, 2); st(1, 2); st(2, 2); st(3, 2); st(4, 2); st(5, 2)
    a(f"""
    s_cmp_gt_u32 s38, 1
    s_cbranch_scc1 K2_pub0
    s_add_u32 s5, s4, {WS_H:#x}
    buffer_store_dwordx4 v[{PK+4}:{PK+7}], v{vWL}, s[8:11], s5 offen sc1
    s_add_u32 s5, s4, {WS_HN:#x}
    buffer_store_dwordx4 v[{ST+4}:{ST+7}], v{vWL}, s[8:11], s5 offen sc1
    v_cndmask_b32 v{ST+1}, v{t1}, 0, s[36:37]
    v_mov_b32 v{ST}, v{t2}
    s_lshl_b32 s5, s2, {G.KS_LOG}
    s_add_u32 s5, s5, {WS_KEY:#x}
    v_lshlrev_b32 v{t0}, 14, v0
    """)
    for mod in ("quad_perm:[1,0,3,2]", "quad_perm:[2,3,0,1]", "row_half_mirror"):
        a(f"v_max_u32_dpp v{ST+1}, v{ST+1}, v{ST+1} {mod} row_mask:0xf bank_mask:0xf")
    a("s_waitcnt vmcnt(0)")
    a.label("K2_pub0")
    a(f"""
    s_barrier
    s_cmp_lg_u32 s38, 0
    s_cbranch_scc1 K2_pub
    s_mov_b64 exec, {0xff if KREP else 1}
    buffer_store_dwordx2 v[{ST}:{ST+1}], v{t0}, s[8:11], s5 offen sc1
    s_mov_b64 exec, -1
    """)
    a.label("K2_pub")
    if 'amp' in dbg: a('s_memrealtime s[96:97]'); a('s_waitcnt lgkmcnt(0)')
    st(1, 2)
    def fin():
        if G.STAMP: a("s_waitcnt vmcnt(0)")
        stamp(a, 6)
        if G.STAMP: a("s_mov_b32 s91, s30")
        stamp_out(a, 1, 8, "s6", WF)
        a("s_endpgm")
    a(f"""
    s_cmp_ge_u32 s2, 144
    s_cbranch_scc1 K2_fin
    """)
    AFR = V
    KY = K; Y = K + 8; BX = V + 32; AC = K + 16
    a(f"""
    s_setprio 0
    v_bfe_u32 v{t0}, v0, 2, 2
    v_lshrrev_b32 v{t4}, 4, v0           ; g
    v_lshl_add_u32 v{t0}, v{t4}, 3, v{t0}
    v_lshlrev_b32 v{t0}, 5, v{t0}
    v_and_b32 v{t1}, 3, v0
    v_lshl_add_u32 v{t0}, v{t1}, 3, v{t0}
    v_add_u32 v{t0}, s74, v{t0}
    """)
    for sx in range(7):
        for half in range(2):
            d = AFR + 4 * sx + 2 * half
            a(f"ds_read_b64_tr_b16 v[{d}:{d+1}], v{t0} offset:{sx*1024 + half*128}")
    a(f"""
    v_and_b32 v{t3}, 1, v0
    v_lshlrev_b32 v{vPW}, 6, v{t3}
    v_lshl_add_u32 v{vPW}, v{t4}, 4, v{vPW}
    s_lshl_b32 s5, s6, 7
    s_add_u32 s5, s5, {L_RED:#x}
    v_add_u32 v{vPW}, s5, v{vPW}
    v_and_b32 v{vPR}, 31, v0
    v_lshlrev_b32 v{vPR}, 2, v{vPR}      ; (lane&31)*4
    v_lshrrev_b32 v{vOR}, 5, v0
    v_lshl_add_u32 v{vOR}, v{vOR}, 14, v{vPR}
    s_cmp_lg_u32 s6, 0
    s_cbranch_scc1 K2_nokey
    v_lshlrev_b32 v{t1}, {G.KS_LOG}, v0
    s_and_b32 s5, s2, {7 if KREP else 0}
    s_lshl_b32 s5, s5, 14
    s_add_u32 s5, s5, {WS_KEY:#x}
    s_add_u32 s79, s5, {64 << G.KS_LOG}
    s_add_u32 s80, s5, {128 << G.KS_LOG}
    s_add_u32 s81, s5, {192 << G.KS_LOG}
    s_mov_b32 s36, 0
    """)
    KZ = V + 60 - 8 * 0
    def poll_loop(name, issue, nld):
        K2R = X[0]
        def chk(b):
            a(f"""
            v_min3_u32 v{Y}, v{b}, v{b+1}, v{b+2}
            v_min3_u32 v{Y+1}, v{b+3}, v{b+4}, v{b+5}
            v_min3_u32 v{Y}, v{Y}, v{b+6}, v{b+7}
            v_min_u32 v{Y}, v{Y}, v{Y+1}
            v_cmp_eq_u32 vcc, 0, v{Y}
            """)
        sl = OPT.get('psl', 3)
        issue(KY)
        a(f"s_sleep {sl}")
        a.label(f"{name}_l")
        issue(K2R)
        a(f"s_waitcnt vmcnt({nld})")
        chk(KY)
        a(f"s_cbranch_vccz {name}_ok")
        issue(KY)
        a(f"s_waitcnt vmcnt({nld})")
        chk(K2R)
        a(f"""
        s_cbranch_vccz {name}_ok2
        s_add_u32 s36, s36, 1
        s_cmp_lt_u32 s36, 0x40000
        s_cbranch_scc1 {name}_l
        """)
        a.label(f"{name}_ok2")
        for r in range(0, 8, 2): a(f"v_pk_mov_b32 v[{KY+r}:{KY+r+1}], v[{K2R+r}:{K2R+r+1}], v[{K2R+r}:{K2R+r+1}] op_sel:[0,1]")
        a.label(f"{name}_ok")
    def kissue(b):
        for k, sr in enumerate(("s5", "s79", "s80", "s81")):
            a(f"buffer_load_dwordx2 v[{b+2*k}:{b+2*k+1}], v{t1}, s[8:11], {sr} offen sc1")
    poll_loop("K2_kp", kissue, 4)
    a.label("K2_kok")
    st(2, 2)
    if FS: a("s_mov_b32 s30, s36")
    B1, B2 = Y + 4, Y + 5
    a(f"""
    v_max_u32 v{B1}, v{KY}, v{KY+2}
    v_min_u32 v{B2}, v{KY}, v{KY+2}
    v_max3_u32 v{B2}, v{B2}, v{KY+1}, v{KY+3}
    v_max_u32 v{Y}, v{KY+4}, v{KY+6}
    v_min_u32 v{Y+1}, v{KY+4}, v{KY+6}
    v_max3_u32 v{Y+1}, v{Y+1}, v{KY+5}, v{KY+7}
    v_min_u32 v{Y+2}, v{B1}, v{Y}
    v_max_u32 v{B1}, v{B1}, v{Y}
    v_max3_u32 v{B2}, v{B2}, v{Y+1}, v{Y+2}
    v_mov_b32 v{Y}, v{B1}
    """)
    wave_max_u32(a, Y, Y + 1)
    a(f"""
    v_cmp_eq_u32 vcc, v{B1}, v{Y}
    v_cndmask_b32 v{B1}, v{B1}, v{B2}, vcc
    """)
    wave_max_u32(a, B1, Y + 1)
    a(f"""
    v_readfirstlane_b32 s40, v{Y}
    v_readfirstlane_b32 s41, v{B1}
    s_andn2_b32 s42, 0x7ff, s40
    s_andn2_b32 s43, 0x7ff, s41
    s_lshl_b32 s42, s42, 10
    s_lshl_b32 s43, s43, 10
    """)
    a.label("K2_nokey")
    a(f"""
    s_cmp_ge_u32 s2, 112
    s_cbranch_scc1 K2_down
    s_cmp_lg_u32 s6, 0
    s_cbranch_scc1 K2_up1
    s_add_u32 s36, s42, {WS_HN:#x}
    s_add_u32 s37, s43, {WS_HN:#x}
    buffer_load_dwordx4 v[{KY}:{KY+3}], v{vWL}, s[8:11], s36 offen sc1
    buffer_load_dwordx4 v[{KY+4}:{KY+7}], v{vWL}, s[8:11], s37 offen sc1
    s_waitcnt vmcnt(1)
    ds_write_b128 v{vWL}, v[{KY}:{KY+3}] offset:{L_XS}
    s_waitcnt vmcnt(0)
    ds_write_b128 v{vWL}, v[{KY+4}:{KY+7}] offset:{L_XS + 1040}
    """)
    a.label("K2_up1")
    st(3, 2)
    a(f"""
    v_mul_u32_u24 v{t0}, 1040, v{t3}
    v_lshl_add_u32 v{t0}, v{t4}, 4, v{t0}
    s_lshr_b32 s5, s6, 1
    s_lshl_b32 s5, s5, 8
    v_add_u32 v{t0}, s5, v{t0}
    s_waitcnt lgkmcnt(0)
    s_barrier
    """)
    for sx in range(4):
        a(f"ds_read_b128 v[{BX+4*sx}:{BX+4*sx+3}], v{t0} offset:{L_XS + 64*sx}")
    for sx in range(4):
        a(f"s_waitcnt lgkmcnt({3-sx})")
        c = "0" if sx == 0 else f"v[{AC}:{AC+3}]"
        a(f"v_mfma_f32_16x16x32_bf16 v[{AC}:{AC+3}], v[{AFR+4*sx}:{AFR+4*sx+3}], v[{BX+4*sx}:{BX+4*sx+3}], {c}")
    a(f"""
    ds_write_b128 v{vPW}, v[{AC}:{AC+3}]
    s_waitcnt lgkmcnt(0)
    s_barrier
    s_cmp_lg_u32 s6, 0
    s_cbranch_scc1 K2_fin
    """)
    def red_read():
        a(f"v_add_u32 v{t0}, {L_RED:#x}, v{vPR}")
        a("s_waitcnt vmcnt(0)")
        for k in range(4):
            a(f"ds_read2_b32 v[{KY+2*k}:{KY+2*k+1}], v{t0} offset0:{64*k} offset1:{64*k+32}")
        a("s_waitcnt lgkmcnt(0)")
        a(f"v_pk_add_f32 v[{KY}:{KY+1}], v[{KY}:{KY+1}], v[{KY+2}:{KY+3}]")
        a(f"v_pk_add_f32 v[{KY+4}:{KY+5}], v[{KY+4}:{KY+5}], v[{KY+6}:{KY+7}]")
        a(f"v_pk_add_f32 v[{KY}:{KY+1}], v[{KY}:{KY+1}], v[{KY+4}:{KY+5}]")
    st(4, 2)
    red_read()
    a(f"""
    v_cvt_pk_bf16_f32 v{KY}, 0, v{KY}
    v_cvt_pk_bf16_f32 v{KY+1}, 0, v{KY+1}
    """)
    sigmoid(a, KY + 2, KY, KY + 3)
    a(f"""
    v_mul_f32 v{KY}, v{KY}, v{KY+2}
    v_cvt_pk_bf16_f32 v{KY}, 0, v{KY}
    v_mul_f32 v{KY}, v{KY}, v{KY+1}
    v_cvt_pk_bf16_f32 v{KY}, 0, v{KY}
    v_or_b32 v{KY}, 1, v{KY}
    s_lshl_b32 s5, s76, 7
    s_add_u32 s5, s5, {WS_GU:#x}
    """)
    if GREP:
        for k in range(4):
            a(f"buffer_store_dword v{KY}, v{vOR}, s[8:11], s5 offen sc1")
            if k < 3: a("s_add_u32 s5, s5, 0x8000")
    else:
        a(f"""
        s_mov_b32 exec_hi, 0
        buffer_store_dword v{KY}, v{vPR}, s[8:11], s5 offen sc1
        s_mov_b64 exec, -1
        """)
    a(f"""
    s_branch K2_fin
    """)
    a.label("K2_down")
    HH, NN, GT, OO = Y + 6, Y + 7, AC + 4, AC + 5
    a(f"""
    s_cmp_lg_u32 s6, 0
    s_cbranch_scc1 K2_dn1
    v_bfe_u32 v{t0}, v0, 4, 1
    v_cmp_eq_u32 vcc, 0, v{t0}
    v_mov_b32 v{t0}, s43
    v_mov_b32 v{t1}, s42
    v_cndmask_b32 v{OO}, v{t0}, v{t1}, vcc
    v_and_b32 v{t0}, 15, v0
    v_lshl_add_u32 v{OO}, v{t0}, 1, v{OO}
    s_lshl_b32 s44, s77, 5
    s_add_u32 s36, s44, {WS_H:#x}
    s_add_u32 s37, s44, {WS_HN:#x}
    buffer_load_ushort v{HH}, v{OO}, s[8:11], s36 offen sc1
    buffer_load_ushort v{NN}, v{OO}, s[8:11], s37 offen sc1
    v_mov_b32 v{t0}, s41
    v_mov_b32 v{t1}, s40
    v_cndmask_b32 v{GT}, v{t0}, v{t1}, vcc
    v_and_b32 v{GT}, 0xffff0000, v{GT}
    v_ashrrev_i32 v{t0}, 31, v{GT}
    v_not_b32 v{t0}, v{t0}
    v_or_b32 v{t0}, 0x80000000, v{t0}
    v_xor_b32 v{GT}, v{GT}, v{t0}
    v_and_b32 v{GT}, 0xffff0000, v{GT}
    """)
    sigmoid(a, GT, GT, t0)
    a(f"v_cvt_pk_bf16_f32 v{GT}, 0, v{GT}")
    a.label("K2_dn1")
    a(f"""
    s_mul_i32 s5, s6, 1792
    s_and_b32 s37, s2, {7 if GREP else 0}
    s_lshl_b32 s37, s37, 14
    s_add_u32 s5, s5, s37
    s_add_u32 s5, s5, {WS_GU:#x}
    v_min_u32 v{t1}, 47, v0
    v_lshlrev_b32 v{t1}, 4, v{t1}
    s_lshl_b32 s37, s6, 10
    s_add_u32 s37, s37, {L_GB:#x}
    v_lshrrev_b32 v{t0}, 3, v0
    v_lshlrev_b32 v{vPL}, 5, v{t0}
    v_and_b32 v{t0}, 3, v0
    v_lshl_add_u32 v{vPL}, v{t0}, 3, v{vPL}
    v_bfe_u32 v{t0}, v0, 2, 1
    v_mul_u32_u24 v{t0}, 464, v{t0}
    v_add3_u32 v{vPL}, v{vPL}, v{t0}, s37
    v_mul_u32_u24 v{vOW}, 464, v{t3}
    v_lshl_add_u32 v{vOW}, v{t4}, 4, v{vOW}
    v_add_u32 v{vOW}, s37, v{vOW}
    s_mov_b32 s45, 0x07060302
    s_mov_b32 s36, 0
    """)
    def gissue(b):
        a(f"buffer_load_dwordx4 v[{b}:{b+3}], v{vWL}, s[8:11], s5 offen sc1")
        a(f"buffer_load_dwordx4 v[{b+4}:{b+7}], v{t1}, s[8:11], s5 offen offset:1024 sc1")
    poll_loop("K2_gp", gissue, 2)
    a.label("K2_gok")
    st(4, 2)
    a(f"""
    v_perm_b32 v{Y}, v{KY+1}, v{KY}, s45
    v_perm_b32 v{Y+1}, v{KY+3}, v{KY+2}, s45
    v_perm_b32 v{Y+2}, v{KY+5}, v{KY+4}, s45
    v_perm_b32 v{Y+3}, v{KY+7}, v{KY+6}, s45
    ds_write_b64 v{vPL}, v[{Y}:{Y+1}]
    s_mov_b32 exec_hi, 0xffff
    ds_write_b64 v{vPL}, v[{Y+2}:{Y+3}] offset:256
    s_mov_b64 exec, -1
    """)
    for sx in range(7):
        a(f"ds_read_b128 v[{BX+4*sx}:{BX+4*sx+3}], v{vOW} offset:{64*sx}")
    for sx in range(7):
        a(f"s_waitcnt lgkmcnt({6-sx})")
        c = "0" if sx == 0 else f"v[{AC}:{AC+3}]"
        a(f"v_mfma_f32_16x16x32_bf16 v[{AC}:{AC+3}], v[{AFR+4*sx}:{AFR+4*sx+3}], v[{BX+4*sx}:{BX+4*sx+3}], {c}")
    a(f"""
    ds_write_b128 v{vPW}, v[{AC}:{AC+3}]
    s_waitcnt lgkmcnt(0)
    s_barrier
    s_cmp_lg_u32 s6, 0
    s_cbranch_scc1 K2_fin
    """)
    red_read()
    a(f"""
    v_add_f32 v{KY}, v{KY}, v{KY+1}
    v_lshlrev_b32 v{HH}, 16, v{HH}
    v_lshlrev_b32 v{NN}, 16, v{NN}
    v_cvt_pk_bf16_f32 v{KY}, 0, v{KY}
    v_mul_f32 v{KY}, v{KY}, v{GT}
    v_cvt_pk_bf16_f32 v{KY}, 0, v{KY}
    v_add_f32 v{KY}, v{KY}, v{NN}
    v_cvt_pk_bf16_f32 v{KY}, 0, v{KY}
    v_add_f32 v{KY}, v{KY}, v{HH}
    v_cvt_pk_bf16_f32 v{KY}, v{KY}, v{KY}
    s_mov_b32 exec_hi, 0
    buffer_store_short v{KY}, v{OO}, s[20:23], s44 offen sc1
    s_mov_b64 exec, -1
    """)
    a.label("K2_fin")
    if 'amp' in dbg:
        q = int(OPT['amp'])
        expr = {0: None, 1: ("s83", "s82"), 2: ("s90", "s83"), 3: ("s96", "s90"), 4: ("s84", "s82"), 5: ("s94", "s90"), 6: ("s88", "s87"), 7: ("s82", "s87"), 8: ("s89", "s87"), 9: ("s90", "s89")}[q]
        a(f"""
        s_or_b32 s5, s2, s6
        s_cmp_lg_u32 s5, 0
        s_cbranch_scc1 K2_amp_end
        s_mov_b32 s5, {WS_SEL:#x}
        buffer_load_dwordx4 v[{S1}:{S1+3}], v{vWL}, s[8:11], s5 offen
        s_waitcnt vmcnt(0)
        v_readfirstlane_b32 s82, v{S1}
        v_readfirstlane_b32 s83, v{S1+1}
        v_readfirstlane_b32 s84, v{S1+2}
        v_not_b32 v{S1+3}, v{S1}
        """)
        wave_max_u32(a, S1, S1 + 5); wave_max_u32(a, S1 + 3, S1 + 5); wave_max_u32(a, S1 + 1, S1 + 5)
        a(f"""
        v_readfirstlane_b32 s88, v{S1}
        v_readfirstlane_b32 s87, v{S1+3}
        v_readfirstlane_b32 s89, v{S1+1}
        s_not_b32 s87, s87
        """)
        if expr: a(f"s_sub_u32 s85, {expr[0]}, {expr[1]}")
        else: a("s_mov_b32 s85, 0")
        a(f"""
        s_min_u32 s85, s85, 5000
        s_lshl_b32 s85, s85, 1
        s_add_u32 s85, s85, 600
        s_add_u32 s85, s85, s96
        """)
        a.label("K2_amp")
        a(f"""
        s_memrealtime s[92:93]
        s_waitcnt lgkmcnt(0)
        s_sub_u32 s86, s92, s85
        s_cmp_lt_i32 s86, 0
        s_cbranch_scc1 K2_amp
        """)
        a.label("K2_amp_end")
    if G.STAMP: a("s_waitcnt vmcnt(0)")
    stamp(a, 6)
    if G.STAMP: a("s_mov_b32 s91, s30")
    stamp_out(a, 1, 8, "s6", WF)
    dstamp(a, 1, True, 240)
    a.label("K2_end")
    a("s_endpgm")
    for k, off in enumerate(spins):
        a.label(f"K2_spin{k}")
        a(f"""
        s_sleep 1
        ds_read_b32 v{vFV}, v{vFR} offset:{off}
        s_waitcnt lgkmcnt(0)
        v_cmp_gt_u32 vcc, s29, v{vFV}
        s_cbranch_vccnz K2_spin{k}
        s_branch K2_back{k}
        """)
    n = a.fix()
    if G.ALIGN: print('align', align8(a))
    return a.text(), 256, L_TOTAL
```

```python
from gen import *
import gen as G

L_KV = 65536; L_WOT = 81920; L_X = 81920 + 2048; L1_TOTAL = L_X + 65536

def gen_k1(dbg='', fused=False):
    a = Asm()
    SC = ' sc1' if fused else ''
    END = 's_branch K12_join' if fused else 's_endpgm'
    X = 32
    ACC = 96
    AF = 116
    T = 148
    a(f"""
    s_cmp_lt_u32 s2, 256
    s_cbranch_scc1 K1_go
    s_endpgm
    """)
    a.label("K1_go")
    stamp(a, 0)
    if ('leak' in dbg or 'amp' in dbg): a('s_memrealtime s[90:91]')
    dstamp(a, 0, False, 200)
    a(f"""
    s_load_dwordx8 s[24:31], s[0:1], 0
    s_load_dwordx2 s[44:45], s[0:1], 32
    s_load_dwordx2 s[32:33], s[0:1], 96
    s_and_b32 s3, s2, 7
    s_lshr_b32 s4, s2, 3
    s_and_b32 s5, s4, 7
    s_lshr_b32 s4, s4, 3           ; tb & 3
    s_lshl_b32 s3, s3, 2
    s_add_u32 s3, s3, s4
    v_lshrrev_b32 v1, 6, v0
    v_and_b32 v2, 63, v0           ; lane
    v_readfirstlane_b32 s6, v1     ; wave
    v_and_b32 v3, 15, v2           ; l & 15
    v_lshrrev_b32 v4, 4, v2        ; g
    v_bfe_u32 v18, v2, 2, 2        ; r'
    v_and_b32 v19, 3, v2           ; c'
    v_lshl_add_u32 v20, v4, 3, v18 ; 8g + r'
    v_lshlrev_b32 v17, 5, v20
    v_lshl_add_u32 v17, v19, 3, v17
    s_cmp_ge_u32 s6, 4
    s_cbranch_scc1 K1_loader
    s_lshl_b32 s7, s3, 6
    s_lshl_b32 s34, s6, 4
    s_add_u32 s7, s7, s34
    v_add_u32 v5, s7, v3           ; token
    v_lshrrev_b32 v6, 2, v2        ; row
    v_lshrrev_b32 v7, 4, v2
    v_and_b32 v7, 2, v7
    v_xor_b32 v7, v7, v19
    v_lshlrev_b32 v6, 10, v6
    v_lshl_add_u32 v6, v7, 4, v6
    s_lshl_b32 s63, s6, 14
    s_add_u32 s63, s63, {L_X}
    s_lshl_b32 s64, s7, 10
    s_lshl_b32 s62, s5, 7
    s_waitcnt lgkmcnt(0)
    """)
    stamp(a, 1)
    srd(a, 8, 24, 25, 0x200000)
    def xdma(u):
        if u % 2 == 0:
            a(f"""
            s_add_u32 m0, s63, {u*1024}
            s_add_u32 s48, s62, s64
            buffer_load_dwordx4 v6, s[8:11], s48 offen lds
            """)
        else:
            a(f"""
            s_add_u32 m0, s63, {u*1024 - 64}
            s_add_u32 s62, s62, 128
            buffer_load_dwordx4 v6, s[8:11], s48 offen offset:64 lds
            s_and_b32 s62, s62, 0x3ff
            """)
    for u in range(10): xdma(u)
    srd(a, 20, 32, 33, WS_SIZE)
    ONE = 24; SEL = 8
    SEL = 152
    a(f"""
    v_lshlrev_b32 v21, 7, v20
    v_lshl_add_u32 v21, v19, 3, v21   ; row*128 + 8c'
    v_lshrrev_b32 v22, 1, v18
    v_and_b32 v23, 1, v4
    v_lshl_or_b32 v22, v23, 1, v22 ; h
    """)
    for t in range(4):
        a(f"v_xor_b32 v23, {t}, v22")
        a(f"v_lshl_add_u32 v{13+t}, v23, 5, v21")
    a(f"""
    v_lshlrev_b32 v10, 6, v3
    v_lshrrev_b32 v7, 2, v3
    v_and_b32 v7, 2, v7
    v_xor_b32 v7, v7, v4
    v_lshl_add_u32 v10, v7, 4, v10
    v_add_u32 v10, s63, v10
    v_and_b32 v7, 1, v4
    v_lshlrev_b32 v7, 7, v7
    v_add_u32 v17, {L_KV}, v17
    v_xor_b32 v12, v17, v7
    v_xor_b32 v17, 128, v12
    """)
    for r in range(4): a(f"v_mov_b32 v{ONE+r}, 0x3f803f80")
    a(f"""
    v_and_b32 v7, 1, v2
    v_lshlrev_b32 v7, 4, v7
    v_mov_b32 v8, 0x3f80
    v_lshlrev_b32 v7, v7, v8
    v_cmp_eq_u32 s[36:37], v18, v4 ; g == (l&15)>>2
    v_bfe_u32 v8, v2, 1, 1
    v_cmp_eq_u32 vcc, 0, v8
    s_and_b64 s[38:39], s[36:37], vcc
    s_andn2_b64 s[40:41], s[36:37], vcc
    v_mov_b32 v{SEL}, 0
    v_mov_b32 v{SEL+1}, 0
    v_cndmask_b32 v{SEL+2}, 0, v7, s[38:39]
    v_cndmask_b32 v{SEL+3}, 0, v7, s[40:41]
    v_mov_b32 v{SEL+4}, 0
    v_mov_b32 v{SEL+5}, 0
    """)
    for u in range(10, 16): xdma(u)
    stamp(a, 2)
    if 'k1nb' not in dbg: a("s_barrier")
    stamp(a, 3)
    if ('leak' in dbg or 'amp' in dbg): a('s_memrealtime s[94:95]')
    m16 = "v_mfma_f32_16x16x32_bf16"
    SUM = ACC; GR = ACC + 4; NM = 220
    def stat(u):
        xs = f"v[{X+4*u}:{X+4*u+3}]"
        a(f"{m16} v[{SUM}:{SUM+3}], v[{ONE}:{ONE+3}], {xs}, " + ("0" if u == 0 else f"v[{SUM}:{SUM+3}]"))
        a(f"{m16} v[{GR}:{GR+3}], {xs}, {xs}, " + ("0" if u == 0 else f"v[{GR}:{GR+3}]"))
    for u in range(0, 16, 2):
        a(f"s_waitcnt vmcnt({14-u})")
        a(f"ds_read_b128 v[{X+4*u}:{X+4*u+3}], v10 offset:{1024*u}")
        a(f"ds_read_b128 v[{X+4*u+4}:{X+4*u+7}], v10 offset:{1024*u+1024}")
        if u >= 4:
            a("s_waitcnt lgkmcnt(4)")
            stat(u - 4); stat(u - 3)
    a("s_waitcnt lgkmcnt(2)"); stat(12); stat(13)
    a("s_waitcnt lgkmcnt(0)"); stat(14); stat(15)
    stamp(a, 4)
    a(f"""
    v_and_b32 v7, 1, v2
    v_cmp_eq_u32 s[42:43], 1, v7
    v_cndmask_b32 v8, v{GR}, v{GR+1}, s[42:43]
    v_cndmask_b32 v9, v{GR+2}, v{GR+3}, s[42:43]
    v_cndmask_b32 v8, 0, v8, s[38:39]
    v_cndmask_b32 v26, v8, v9, s[40:41]
    """)
    for w in (16, 32):
        sum_swap(a, 26, 28, w)
    ln_scalars(a, SUM, 26, 28, 30, 27, 29)
    for r in range(4): a(f"v_sub_f32 v{NM+r}, 0, v28")
    NB = 4
    def sub(u):
        d = AF + 8 * (u % NB)
        xs = f"v[{X+4*u}:{X+4*u+3}]"
        a(f"{m16} v[{d}:{d+3}], v[{SEL+2}:{SEL+5}], {xs}, v[{NM}:{NM+3}]")
        a(f"{m16} v[{d+4}:{d+7}], v[{SEL}:{SEL+3}], {xs}, v[{NM}:{NM+3}]")
    sub(0); sub(1)
    def ln_step(u):
        d = AF + 8 * (u % NB); L = []
        for r in range(4): L.append(f"v_cvt_pk_bf16_f32 v{d+r}, 0, v{d+r}")
        if u + 2 < 16:
            dd = AF + 8 * ((u + 2) % NB); xs = f"v[{X+4*(u+2)}:{X+4*(u+2)+3}]"
            L.append(f"{m16} v[{dd}:{dd+3}], v[{SEL+2}:{SEL+5}], {xs}, v[{NM}:{NM+3}]")
        for r in range(4, 8): L.append(f"v_cvt_pk_bf16_f32 v{d+r}, 0, v{d+r}")
        for r in range(0, 8, 2): L.append(f"v_pk_mul_f32 v[{d+r}:{d+r+1}], v[{d+r}:{d+r+1}], v[30:31] op_sel_hi:[1,0]")
        if u + 2 < 16:
            L.append(f"{m16} v[{dd+4}:{dd+7}], v[{SEL}:{SEL+3}], {xs}, v[{NM}:{NM+3}]")
        for r in range(4): L.append(f"v_cvt_pk_bf16_f32 v{X+4*u+r}, v{d+2*r}, v{d+2*r+1}")
        return L
    LEAD = int(dict(x.split('=') for x in dbg.split(',') if '=' in x).get('lead', 16))
    for u in range(LEAD):
        for ins in ln_step(u): a(ins)
    a("s_barrier")
    stamp(a, 5)
    VT = 24
    RG = 160
    def rd(s, t):
        for half in range(2):
            d = RG + 20 * (s % 3) + 4 * t + 2 * half
            if t < 4: a(f"ds_read_b64_tr_b16 v[{d}:{d+1}], v{13+t} offset:{s*4096 + half*512}")
            else:     a(f"ds_read_b64_tr_b16 v[{d}:{d+1}], v{17 if half else 12} offset:{s*1024}")
    for t in range(5): rd(0, t)
    for t in range(5): rd(1, t)
    for s in range(16):
        L = ln_step(s + LEAD) if s + LEAD < 16 else []
        a(f"s_waitcnt lgkmcnt({10 if s < 15 else 0})")
        for t in range(5):
            d = RG + 20 * (s % 3) + 4 * t
            c = "0" if s == 0 else f"v[{ACC+4*t}:{ACC+4*t+3}]"
            a(f"{m16} v[{ACC+4*t}:{ACC+4*t+3}], v[{d}:{d+3}], v[{X+4*s}:{X+4*s+3}], {c}")
            if t == 4:
                c = "0" if s == 0 else f"v[{VT}:{VT+3}]"
                a(f"{m16} v[{VT}:{VT+3}], v[{X+4*s}:{X+4*s+3}], v[{d}:{d+3}], {c}")
            if s + 2 < 16: rd(s + 2, t)
            n = (len(L) + (4 - t)) // (5 - t)
            for ins in L[:n]: a(ins)
            L = L[n:]
    a(f"""
    s_lshl_b32 s35, s5, 10
    v_lshrrev_b32 v7, 3, v5
    v_lshlrev_b32 v7, 13, v7
    v_and_b32 v8, 7, v5
    v_lshl_add_u32 v7, v8, 4, v7
    v_lshrrev_b32 v9, 1, v4
    v_lshl_add_u32 v7, v9, 9, v7
    v_and_b32 v11, 1, v4
    v_lshl_add_u32 v7, v11, 7, v7
    """)
    for tp in range(2):
        for t in (2 * tp, 2 * tp + 1):
            for r in range(4): a(f"v_cvt_pk_bf16_f32 v{ACC+4*t+r}, 0, v{ACC+4*t+r}")
            for r in range(4): a(f"v_mul_f32 v{ACC+4*t+r}, {f2u(0.25 * 1.4426950408889634):#x}, v{ACC+4*t+r}")
            a(f"v_cvt_pk_bf16_f32 v{AF+2*t}, v{ACC+4*t}, v{ACC+4*t+1}")
            a(f"v_cvt_pk_bf16_f32 v{AF+2*t+1}, v{ACC+4*t+2}, v{ACC+4*t+3}")
        b = AF + 4 * tp
        a(f"v_permlane16_swap_b32 v{b}, v{b+2}")
        a(f"v_permlane16_swap_b32 v{b+1}, v{b+3}")
        a(f"buffer_store_dwordx4 v[{b}:{b+3}], v7, s[20:23], s35 offen offset:{256*tp}{SC}")
    KV = ACC + 16
    a(f"""
    s_cmp_gt_u32 s5, 1
    s_cbranch_scc1 K1_q
    v_cvt_pk_bf16_f32 v{T}, v{KV}, v{KV+1}
    v_cvt_pk_bf16_f32 v{T+1}, v{KV+2}, v{KV+3}
    s_lshr_b32 s35, s7, 5
    s_mul_i32 s35, s35, {TS}
    s_add_u32 s35, s35, {WS_KV:#x}
    s_cmp_eq_u32 s5, 0
    s_cbranch_scc0 K1_v
    v_and_b32 v8, 31, v5
    v_lshlrev_b32 v8, 4, v8
    v_lshl_add_u32 v8, v9, 9, v8
    v_lshl_add_u32 v8, v11, 3, v8
    buffer_store_dwordx2 v[{T}:{T+1}], v8, s[20:23], s35 offen{SC}
    s_branch K1_q
    """)
    a.label("K1_v")
    a(f"""
    s_and_b32 s36, s6, 1
    s_mul_i32 s36, s36, 544
    s_add_u32 s35, s35, s36
    v_cvt_pk_bf16_f32 v{T}, v{VT}, v{VT+1}
    v_cvt_pk_bf16_f32 v{T+1}, v{VT+2}, v{VT+3}
    v_mul_u32_u24 v8, 272, v9
    v_lshl_add_u32 v8, v11, 3, v8
    v_mov_b32 v{T+2}, 0x3f803f80
    v_mov_b32 v{T+3}, 0x3f803f80
    v_lshl_add_u32 v9, v3, 4, v8
    buffer_store_dwordx2 v[{T}:{T+1}], v9, s[20:23], s35 offen offset:1024{SC}
    s_mov_b32 exec_lo, 0x00010001
    s_mov_b32 exec_hi, 0x00010001
    buffer_store_dwordx2 v[{T+2}:{T+3}], v8, s[20:23], s35 offen offset:{1024 + 256}{SC}
    s_mov_b64 exec, -1
    """)
    a.label("K1_q")
    if G.STAMP: a("s_waitcnt vmcnt(0)")
    stamp(a, 6)
    stamp_out(a, 0, 20, "s6", 158)
    if ('leak' in dbg or 'amp' in dbg):
        a(f"""
        s_waitcnt vmcnt(0)
        s_memrealtime s[92:93]
        s_waitcnt lgkmcnt(0)
        s_cmp_ge_u32 s2, 64
        s_cbranch_scc1 K1_leak
        v_mov_b32 v40, s90
        v_mov_b32 v41, s92
        v_mov_b32 v42, s94
        v_mov_b32 v43, 0
        s_lshl_b32 s48, s2, 4
        s_add_u32 s48, s48, {WS_SEL:#x}
        s_mov_b64 exec, 1
        buffer_store_dwordx4 v[40:43], v43, s[20:23], s48 offen
        """)
        a.label("K1_leak")
    dstamp(a, 0, True, 200)
    a(END)
    a.label("K1_loader")
    if 'noldprio' not in dbg: a("s_setprio 3")
    if 'nocodepf' not in dbg:
        a(f"""
        s_cmp_ge_u32 s2, 16
        s_cbranch_scc1 K1_nocp
        s_getpc_b64 s[60:61]
        """)
        a.label("K1_pc")
        a(f"""
        s_sub_u32 s60, s60, K1_pc-k1_kernel
        s_subb_u32 s61, s61, 0
        v_subrev_u32 v30, 256, v0
        v_lshlrev_b32 v30, 7, v30
        v_min_u32 v30, K_all_end-k1_kernel-4, v30
        global_load_dword v31, v30, s[60:61]
        """)
        a.label("K1_nocp")
    a(f"""
    s_sub_u32 s6, s6, 4
    v_lshrrev_b32 v7, 3, v2        ; row_in
    v_and_b32 v8, 7, v2            ; slot
    v_and_b32 v9, 2, v7
    v_xor_b32 v8, v8, v9
    v_xor_b32 v9, 4, v8
    s_lshl_b32 s35, s5, 7
    v_lshlrev_b32 v7, 10, v7
    v_add_u32 v7, s35, v7
    v_lshl_add_u32 v10, v8, 4, v7
    v_lshl_add_u32 v11, v9, 4, v7
    v_lshlrev_b32 v12, 4, v2       ; lane*16
    v_lshrrev_b32 v13, 1, v2
    v_lshlrev_b32 v13, 10, v13
    v_and_b32 v14, 1, v2
    v_lshl_add_u32 v13, v14, 4, v13
    s_lshl_b32 s36, s6, 14
    s_lshl_b32 s37, s6, 4
    s_lshl_b32 s38, s5, 3
    s_add_u32 s37, s37, s38
    v_and_b32 v15, 16, v2
    v_lshlrev_b32 v15, 3, v15
    v_xor_b32 v15, v15, v12
    s_lshl_b32 s39, s4, 2
    s_waitcnt lgkmcnt(0)
    """)
    if fused:
        a(f"""
        s_add_u32 s56, s32, {WS_EP:#x}
        s_addc_u32 s57, s33, 0
        s_load_dword s58, s[56:57], 0
        """)
    srd(a, 12, 26, 27, 0x80000)
    if 'wpf' in dbg:
        a(f"""
        s_lshr_b32 s48, s2, 3
        s_lshl_b32 s48, s48, 14
        s_and_b32 s49, s6, 1
        s_lshl_b32 s49, s49, 13
        s_add_u32 s48, s48, s49
        v_lshlrev_b32 v30, 7, v2
        s_cmp_gt_u32 s6, 1
        s_cbranch_scc1 K1_nopf
        buffer_load_dword v29, v30, s[12:15], s48 offen
        """)
        a.label("K1_nopf")
    a(f"""
    s_cmp_eq_u32 s5, 0
    s_cselect_b64 s[46:47], s[28:29], s[30:31]
    """)
    srd(a, 16, 46, 47, 0x4000)
    srd(a, 40, 44, 45, 0x80000)
    srd(a, 20, 32, 33, WS_SIZE)
    a(f"""
    s_cmp_lg_u32 s6, 0
    s_cbranch_scc1 K1_noz
    v_mov_b32 v32, 0
    v_mov_b32 v33, 0
    v_mov_b32 v34, 0
    v_mov_b32 v35, 0
    s_lshl_b32 s48, s2, 10
    s_add_u32 s48, s48, {WS_GU:#x}
    buffer_store_dwordx4 v[32:35], v12, s[20:23], s48 offen{SC}
    """)
    a.label("K1_noz")
    if 'k1nb' not in dbg: a("s_barrier")
    for i in range(16):
        a(f"""
        s_add_u32 s48, s39, {i}
        s_and_b32 s48, s48, 15
        s_lshl_b32 s49, s48, 10
        s_add_u32 m0, s36, s49
        s_add_u32 s48, s48, s37
        s_and_b32 s48, s48, 63
        s_lshl_b32 s48, s48, 13
        buffer_load_dwordx4 v{10 + (i & 1)}, s[12:15], s48 offen lds
        """)
    a(f"""
    s_cmp_gt_u32 s5, 1
    s_cbranch_scc1 K1_nokv
    s_lshl_b32 s36, s6, 12
    s_lshl_b32 s38, s5, 11
    """)
    for i in range(4):
        a(f"""
        s_add_u32 s48, s36, {i*1024}
        s_add_u32 m0, s48, {L_KV}
        s_add_u32 s48, s48, s38
        s_and_b32 s48, s48, 0x3fff
        buffer_load_dwordx4 v15, s[16:19], s48 offen lds
        """)
    a.label("K1_nokv")
    a(f"""
    s_cmp_lt_u32 s6, 2
    s_cbranch_scc1 K1_nowo
    s_lshl_b32 s46, s2, 1
    s_and_b32 s47, s6, 1
    s_add_u32 s46, s46, s47
    s_lshr_b32 s47, s46, 6
    s_lshl_b32 s47, s47, 16
    s_bfe_u32 s48, s46, 0x10002
    s_lshl_b32 s48, s48, 15        ; s * 32 rows
    s_add_u32 s47, s47, s48
    s_bfe_u32 s48, s46, 0x30003
    s_lshl_b32 s48, s48, 7         ; w * 128 B
    s_add_u32 s47, s47, s48
    s_and_b32 s48, s46, 3
    s_lshl_b32 s48, s48, 5         ; t * 32 B
    s_add_u32 s47, s47, s48
    s_lshl_b32 s48, s6, 10
    s_add_u32 s48, s48, {L_WOT - 2048}
    s_mov_b32 m0, s48
    v_add_u32 v17, s48, v17
    buffer_load_dwordx4 v13, s[40:43], s47 offen lds
    s_waitcnt vmcnt(1)
    s_barrier
    s_waitcnt vmcnt(0)
    ds_read_b64_tr_b16 v[32:33], v17
    ds_read_b64_tr_b16 v[34:35], v17 offset:128
    s_lshl_b32 s46, s46, 10
    s_add_u32 s46, s46, {WS_WOF:#x}
    s_waitcnt lgkmcnt(0)
    buffer_store_dwordx4 v[32:35], v12, s[20:23], s46 offen{SC}
    {END}
    """)
    a.label("K1_nowo")
    a("s_waitcnt vmcnt(0)")
    a("s_barrier")
    if fused:
        a.label("K12_join")
        a(f"""
        s_setprio 0
        s_waitcnt vmcnt(0) lgkmcnt(0)
        s_barrier
        """)
    else:
        a.label("K1_end")
        a("s_endpgm")
    a.fix()
    if G.ALIGN: print('align', align8(a))
    return a.text(), 224, L1_TOTAL
```

```python
from gen import *
import gen as G

L_PART = 0x0; L_Q = 0x6000; L_MREF = 0x8400; L_OB = 0x5800; L_KEY = 0xAC00; L_FLG = 0xAD00; L_MX = 0xB000; L_HB = 0xB400
L_FW = 0xE000; L_TOTAL = 0xE000 + 8 * 7168
L_XS = L_PART; L_RED = L_PART + 0x1000; L_GB = L_PART + 0x2000
C_EXACT = 0.25 * 1.4426950408889634
OFFS = 96.0

def wave_sum(a, vs, ts):
    if isinstance(vs, int): vs, ts = [vs], [ts]
    for mod in ("quad_perm:[1,0,3,2]", "quad_perm:[2,3,0,1]", "row_half_mirror", "row_mirror"):
        for v in vs:
            a(f"v_add_f32_dpp v{v}, v{v}, v{v} {mod} row_mask:0xf bank_mask:0xf")
    for w in (16, 32):
        for v, t in zip(vs, ts): a(f"v_mov_b32 v{t}, v{v}")
        for v, t in zip(vs, ts): a(f"v_permlane{w}_swap_b32 v{t}, v{v}")
        for v, t in zip(vs, ts): a(f"v_add_f32 v{v}, v{v}, v{t}")

class VM:
    def __init__(self, a): self.a = a; self.q = []; self.done = -1
    def issue(self, tag): self.q.append(tag)
    def wait(self, tag):
        i = max(k for k, t in enumerate(self.q) if t == tag)
        if i <= self.done: return
        self.done = i
        self.a(f"s_waitcnt vmcnt({len(self.q) - 1 - i})")

def wave_max_u32(a, v, t):
    for mod in ("quad_perm:[1,0,3,2]", "quad_perm:[2,3,0,1]", "row_half_mirror", "row_mirror"):
        a(f"v_max_u32_dpp v{v}, v{v}, v{v} {mod} row_mask:0xf bank_mask:0xf")
    for w in (16, 32):
        a(f"""
        v_mov_b32 v{t}, v{v}
        v_permlane{w}_swap_b32 v{t}, v{v}
        v_max_u32 v{v}, v{v}, v{t}
        """)

LOG2E = 1.4426950408889634
def sigmoid(a, d, x, t):
    a(f"""
    v_mul_f32 v{t}, {f2u(-LOG2E):#x}, v{x}
    v_exp_f32 v{t}, v{t}
    v_add_f32 v{t}, 1.0, v{t}
    v_rcp_f32 v{d}, v{t}
    """)

def gen_k2(dbg='', prio=True, fused=False):
    a = Asm()
    SC = ' sc1' if fused and 'nosc' not in dbg else ''
    OPT = dict(x.split('=') for x in dbg.split(',') if '=' in x)
    PFS = int(OPT.get('pfs', 0)); PFP = int(OPT.get('pfp', 1))
    TAILST = 'tailst' in dbg
    FS = 'ffnst' in dbg
    KREP = 'nokrep' not in dbg; GREP = 'nogrep' not in dbg
    def st(i, tail):
        if 'r0st' in dbg:
            if tail == 3: stamp(a, i)
        elif FS:
            if tail == 2: stamp(a, i)
        elif tail in (True, False) and bool(tail) == TAILST: stamp(a, i)
    K = 16; V = 48; X = [112, 128]; O = 144; CM = 160; SP = 176; Q = 184; OA = 188; WF = 204; BF = 236; S1 = 240
    vQA, vPW, vPR, vPL, vOW, vOR, vLM, vWL, vKL, vVL = 1, 2, 3, 4, 5, 6, 7, 8, 9, 10
    t0, t1, t2, t3, t4 = 11, 12, 13, 14, 15
    vFW, vFR, vFV, vWLs = 9, 13, 14, 15
    if not fused:
        a(f"""
        s_cmp_ge_u32 s2, 256
        s_cbranch_scc1 K2_end
        """)
    else:
        a(f"""
        v_cmp_eq_u32 vcc, 256, v0
        s_cbranch_vccz K2_nofl
        s_add_u32 s58, s58, 1
        v_mov_b32 v{t0}, s58
        v_and_b32 v{t1}, 63, v0
        v_lshlrev_b32 v{t1}, 14, v{t1}
        s_lshl_b32 s3, s2, 6
        s_add_u32 s3, s3, {WS_FL:#x}
        s_mov_b64 exec, 0xff
        buffer_store_dword v{t0}, v{t1}, s[20:23], s3 offen sc1
        s_mov_b64 exec, -1
        """)
        a.label("K2_nofl")
    st(0, False); st(0, 3)
    if 'leak' in dbg or 'amp' in dbg: a('s_memrealtime s[90:91]')
    dstamp(a, 1, False, 240)
    a(f"""
    s_load_dwordx2 s[48:49], s[0:1], 96
    s_load_dwordx2 s[40:41], s[0:1], 0
    s_load_dwordx8 s[60:67], s[0:1], 48
    s_load_dwordx2 s[46:47], s[0:1], 80
    s_and_b32 s3, s2, 7
    s_lshr_b32 s4, s2, 3
    s_lshl_b32 s7, s3, 8
    s_lshl_b32 s5, s4, 3
    s_add_u32 s7, s7, s5           ; T0
    s_and_b32 s28, s4, 7           ; rot
    v_lshrrev_b32 v{t0}, 6, v0
    v_and_b32 v0, 63, v0
    v_readfirstlane_b32 s6, v{t0}
    s_mov_b32 s30, 0
    v_lshlrev_b32 v{vWL}, 4, v0
    s_mul_i32 s3, s6, {8*TS}
    s_add_u32 s3, s3, {WS_KV:#x}
    """)
    for t in range(8):
        a(f"""
        s_add_u32 s4, s28, {t}
        s_and_b32 s4, s4, 7
        s_mul_i32 s4, s4, {TS}
        s_add_u32 s{50+t}, s3, s4
        """)
    a.label("K2_restart")
    a(f"""
    s_add_u32 s3, s6, s28
    s_and_b32 s3, s3, 7
    s_add_u32 s3, s3, s7
    s_lshl_b32 s32, s3, 10
    v_and_b32 v{t1}, 31, v0
    v_lshrrev_b32 v{t2}, 5, v0
    v_mul_u32_u24 v{vVL}, 272, v{t2}
    v_lshl_add_u32 v{vVL}, v{t1}, 4, v{vVL}
    v_cmp_lt_u32 vcc, 16, v{t1}
    v_bfrev_b32 v{t0}, 1
    v_add_u32 v{vQA}, {L_Q:#x}, v{vWL}
    v_cndmask_b32 v{vVL}, v{vVL}, v{t0}, vcc
    s_waitcnt lgkmcnt(0)
    """)
    srd(a, 8, 48, 49, WS_SIZE)
    vm = VM(a)
    def ldK(t):
        a(f"buffer_load_dwordx4 v[{K+4*t}:{K+4*t+3}], v{vWL}, s[8:11], s{50+t} offen{SC}"); vm.issue(f"K{t}")
    def ldV(t):
        for h in range(2):
            a(f"buffer_load_dwordx4 v[{V+8*t+4*h}:{V+8*t+4*h+3}], v{vVL}, s[8:11], s{50+t} offen offset:{1024 + 544*h}{SC}"); vm.issue(f"V{t}{h}")
    def first_loads():
        a(f"buffer_load_dwordx4 v[{Q}:{Q+3}], v{vWL}, s[8:11], s32 offen{SC}"); vm.issue("Q")
        ldK(0); ldK(1)
    if not fused: first_loads()
    a(f"""
    s_lshl_b32 s3, s6, 10
    v_add_u32 v{t3}, s3, v{vQA}
    """)
    def late_setup(part):
        u0, u1, u2, u3 = S1, S1 + 1, S1 + 2, S1 + 3
        if part == 0:
            srd(a, 16, 40, 41, 0x200000)
            srd(a, 20, 46, 47, 0x200000)
            srd(a, 24, 60, 61, 0x400)
            a(f"""
            v_and_b32 v{u1}, 31, v0
            v_lshrrev_b32 v{u2}, 5, v0
            v_mul_u32_u24 v{vPW}, 80, v{u1}
            s_mul_i32 s3, s6, 2560
            v_add_u32 v{vPW}, s3, v{vPW}
            v_lshl_add_u32 v{SP+3}, v{u2}, 2, v{vPW}
            v_lshl_add_u32 v{vPW}, v{u2}, 4, v{vPW}
            v_lshrrev_b32 v{u0}, 4, v0     ; g
            s_lshr_b32 s3, s6, 1
            s_lshl_b32 s3, s3, 3
            s_and_b32 s4, s6, 1
            s_lshl_b32 s4, s4, 1
            s_add_u32 s3, s3, s4
            v_and_b32 v{u1}, 1, v{u0}
            v_lshl_add_u32 v{u1}, v{u1}, 2, v{u2}
            v_add_u32 v{u1}, s3, v{u1}     ; n = 8*(w>>1) + 2*(w&1) + (g>>1) + 4*(g&1)
            v_mul_u32_u24 v{vPL}, 80, v{u1}
            v_and_b32 v{u2}, 15, v0        ; d
            v_lshl_add_u32 v{vPR}, v{u2}, 2, v{vPL}
            v_and_b32 v{u3}, 7, v0
            v_mul_u32_u24 v{u3}, 2560, v{u3}
            v_add3_u32 v{vPL}, v{vPL}, v{u3}, 64
            s_lshl_b32 s31, s28, 16
            s_lshl_b32 s33, s6, 13
            s_add_u32 s33, s33, {WS_WOF:#x}
            """)
        elif part == 1:
            a(f"""
            v_and_b32 v{u3}, 7, v{u1}      ; token
            v_lshrrev_b32 v{u1}, 3, v{u1}  ; head_local
            v_mul_u32_u24 v{vOW}, 144, v{u3}
            v_lshl_add_u32 v{vOW}, v{u1}, 5, v{vOW}
            v_lshl_add_u32 v{vOW}, v{u2}, 1, v{vOW}
            v_add_u32 v{vOW}, {L_OB:#x}, v{vOW}
            v_and_b32 v{u3}, 7, v0
            v_mul_u32_u24 v{vOR}, 144, v{u3}
            v_lshl_add_u32 v{vOR}, v{u0}, 4, v{vOR}
            v_add_u32 v{vOR}, {L_OB:#x}, v{vOR}
            v_mov_b32 v{vLM}, 0
            v_lshlrev_b32 v{vFR}, 2, v{u3}
            v_add_u32 v{vFR}, {L_FLG:#x}, v{vFR}
            """)
        else:
            for r in range(0, 16, 2):
                a(f"v_pk_mov_b32 v[{OA+r}:{OA+r+1}], 0, 0")
            a(f"v_pk_mov_b32 v[{SP}:{SP+1}], 0, 0")
            a(f"v_mov_b32 v{SP+2}, 0xdddddddd")
    late_setup(0); late_setup(1)
    if fused:
        late_setup(2)
        PA, PB = X[0], X[0] + 4
        a(f"""
        s_cmp_lg_u32 s30, 0
        s_cbranch_scc1 K2_synced
        s_cmp_lg_u32 s6, 4
        s_cbranch_scc1 K2_sync1
        v_lshlrev_b32 v{t1}, 6, v0
        s_and_b32 s3, s2, 7
        s_lshl_b32 s3, s3, 14
        s_add_u32 s3, s3, {WS_FL:#x}
        s_add_u32 s4, s3, 0x1000
        s_add_u32 s5, s3, 0x2000
        s_add_u32 s34, s3, 0x3000
        s_mov_b32 s36, 0
        """)
        def fissue(b):
            for k, sr in enumerate(("s3", "s4", "s5", "s34")):
                a(f"buffer_load_dword v{b+k}, v{t1}, s[8:11], {sr} offen sc1")
        def fchk(b):
            a(f"""
            v_xor_b32 v{b}, s58, v{b}
            v_xor_b32 v{b+1}, s58, v{b+1}
            v_xor_b32 v{b+2}, s58, v{b+2}
            v_xor_b32 v{b+3}, s58, v{b+3}
            v_or3_b32 v{b}, v{b}, v{b+1}, v{b+2}
            v_or_b32 v{b}, v{b}, v{b+3}
            v_cmp_ne_u32 vcc, 0, v{b}
            s_cbranch_vccz K2_sync0
            """)
        fissue(PA)
        a("s_sleep 3")
        a.label("K2_fl")
        fissue(PB); a("s_waitcnt vmcnt(4)"); fchk(PA)
        fissue(PA); a("s_waitcnt vmcnt(4)"); fchk(PB)
        a(f"""
        s_add_u32 s36, s36, 1
        s_cmp_lt_u32 s36, 0x40000
        s_cbranch_scc1 K2_fl
        """)
        a.label("K2_sync0")
        a(f"""
        s_cmp_lg_u32 s2, 0
        s_cbranch_scc1 K2_sync1
        v_mov_b32 v{t0}, s58
        v_mov_b32 v{t1}, 0
        s_mov_b32 s3, {WS_EP:#x}
        s_mov_b64 exec, 1
        buffer_store_dword v{t0}, v{t1}, s[8:11], s3 offen sc1
        s_mov_b64 exec, -1
        """)
        a.label("K2_sync1")
        a("s_barrier")
        a.label("K2_synced")
        first_loads()
        if 'nob2' not in dbg: a("s_barrier")
        ldV(0); ldK(2); ldV(1)
    else:
        ldV(0); ldK(2); ldV(1)
        late_setup(2)
    st(1, False)
    vm.wait("Q")
    a(f"""
    ds_write_b128 v{t3}, v[{Q}:{Q+3}]
    s_cmp_lg_u32 s30, 0
    s_cbranch_scc1 K2_safe
    """)
    vm.wait("K1")
    a(f"""
    v_mfma_f32_32x32x16_bf16 v[{X[0]}:{X[0]+15}], v[{K}:{K+3}], v[{Q}:{Q+3}], 0
    v_mfma_f32_32x32x16_bf16 v[{X[1]}:{X[1]+15}], v[{K+4}:{K+7}], v[{Q}:{Q+3}], 0
    """)
    S = X[0]
    a(f"v_max3_f32 v{t0}, v{S}, v{S+1}, v{S+2}")
    for r in range(3, 31, 2):
        a(f"v_max3_f32 v{t0}, v{t0}, v{S+r}, v{S+r+1}")
    a(f"""
    v_max_f32 v{t0}, v{t0}, v{S+31}
    v_mov_b32 v{t1}, v{t0}
    v_permlane32_swap_b32 v{t1}, v{t0}
    v_max_f32 v{t0}, v{t0}, v{t1}
    v_mov_b32 v{t1}, {f2u(-OFFS):#x}
    s_branch K2_mref
    """)
    a.label("K2_safe")
    a(f"""
    v_and_b32 v{t0}, 31, v0
    v_lshlrev_b32 v{S1+4}, 2, v{t0}
    v_add_u32 v{S1+4}, {L_MX:#x}, v{S1+4}
    s_lshl_b32 s3, s6, 7
    v_add_u32 v{S1+5}, s3, v{S1+4}
    v_mov_b32 v{t0}, 0xff800000
    ds_write_b32 v{S1+5}, v{t0}
    s_waitcnt vmcnt(0) lgkmcnt(0)
    s_barrier
    v_mov_b32 v{t1}, v{vQA}
    s_mov_b32 s29, 0
    """)
    a.label("K2_safe_loop")
    a(f"""
    ds_read_b128 v[{BF}:{BF+3}], v{t1}
    v_mov_b32 v{t0}, 0xff800000
    s_waitcnt lgkmcnt(0)
    """)
    for t in range(8):
        a(f"v_mfma_f32_32x32x16_bf16 v[{S}:{S+15}], v[{K+4*t}:{K+4*t+3}], v[{BF}:{BF+3}], 0")
        for r in range(0, 16, 2):
            a(f"v_max3_f32 v{t0}, v{t0}, v{S+r}, v{S+r+1}")
    a(f"""
    ds_max_f32 v{S1+4}, v{t0}
    v_add_u32 v{t1}, 1024, v{t1}
    v_add_u32 v{S1+4}, 128, v{S1+4}
    s_add_u32 s29, s29, 1
    s_cmp_lt_u32 s29, 8
    s_cbranch_scc1 K2_safe_loop
    s_waitcnt lgkmcnt(0)
    s_barrier
    ds_read_b32 v{t0}, v{S1+5}
    v_mov_b32 v{t1}, 0
    s_waitcnt lgkmcnt(0)
    """)
    a.label("K2_mref")
    a(f"""
    v_sub_f32 v{BF}, v{t1}, v{t0}
    v_sub_f32 v{BF+1}, v{t1}, v{t0}
    v_sub_f32 v{BF+2}, v{t1}, v{t0}
    v_sub_f32 v{BF+3}, v{t1}, v{t0}
    ds_write_b128 v{t3}, v[{BF}:{BF+3}] offset:{L_MREF - L_Q}
    s_lshl_b32 s3, s6, 2
    s_add_u32 s3, s3, {L_FLG:#x}
    v_mov_b32 v{vFW}, s3
    ds_write2_b32 v{vFW}, v{SP}, v{SP} offset0:0 offset1:8
    s_movk_i32 s59, {L_Q + 2048:#x}
    s_waitcnt lgkmcnt(0)
    s_barrier
    """)
    def rd_qcm():
        a(f"ds_read_b128 v[{Q}:{Q+3}], v{vQA}")
        for k in range(4):
            a(f"ds_read_b128 v[{CM+4*k}:{CM+4*k+3}], v{vQA} offset:{L_MREF - L_Q}")
        a(f"v_add_u32 v{vQA}, 1024, v{vQA}")
    mf = "v_mfma_f32_32x32x16_bf16"
    def M1(kt, xb):
        if 'nom1' in dbg: a("s_nop 1"); return
        a(f"{mf} v[{X[xb]}:{X[xb]+15}], v[{K+4*kt}:{K+4*kt+3}], v[{Q}:{Q+3}], v[{CM}:{CM+15}]")
    def E(xb, lo, hi):
        for r in range(lo, hi):
            if 'expnop' in dbg:
                a("v_nop"); a("v_nop")
                continue
            if 'noexp' in dbg:
                a(f"v_cvt_pk_bf16_f32 v{X[xb]+r}, 0, v{X[xb]+r}"); a(f"v_cvt_pk_bf16_f32 v{X[xb]+r}, 0, v{X[xb]+r}")
                continue
            a(f"v_exp_f32 v{X[xb]+r}, v{X[xb]+r}")
    def C2(h, xb):
        for k in range(4):
            a(f"v_cvt_pk_bf16_f32 v{SP+4*h+k}, v{X[xb]+8*h+2*k}, v{X[xb]+8*h+2*k+1}")
    def M3(h, kt):
        xb = kt & 1
        if 'nom3' in dbg: a("s_nop 2"); return
        a(f"v_smfmac_f32_32x32x32_bf16 v[{O}:{O+15}], v[{V+8*kt+4*h}:{V+8*kt+4*h+3}], v[{X[xb]+8*h}:{X[xb]+8*h+7}], v{SP+2}")
    def Ozero():
        a(f"v_mfma_f32_32x32x8bf16_1k v[{O}:{O+15}], v[{SP}:{SP+1}], v[{SP}:{SP+1}], 0")
    def part_write():
        a(f"""
        ds_write_b128 v{vPW}, v[{O}:{O+3}]
        ds_write_b128 v{vPW}, v[{O+4}:{O+7}] offset:32
        ds_write_b32 v{SP+3}, v{O+8} offset:64
        """)
    def s1_read():
        a(f"ds_read_b32 v{S1+8}, v{vPL}")
        for k in range(4):
            a(f"ds_read2st64_b32 v[{S1+2*k}:{S1+2*k+1}], v{vPR} offset0:{20*k} offset1:{20*k+10}")
    def s1_calc():
        dp = lambda mod: f"v_add_f32_dpp v{S1+8}, v{S1+8}, v{S1+8} {mod} row_mask:0xf bank_mask:0xf"
        a(f"""
        {dp("quad_perm:[1,0,3,2]")}
        v_pk_add_f32 v[{S1}:{S1+1}], v[{S1}:{S1+1}], v[{S1+2}:{S1+3}]
        v_pk_add_f32 v[{S1+4}:{S1+5}], v[{S1+4}:{S1+5}], v[{S1+6}:{S1+7}]
        {dp("quad_perm:[2,3,0,1]")}
        v_pk_add_f32 v[{S1}:{S1+1}], v[{S1}:{S1+1}], v[{S1+4}:{S1+5}]
        v_add_f32 v{S1}, v{S1}, v{S1+1}
        {dp("row_half_mirror")}
        v_rcp_f32 v{S1+1}, v{S1+8}
        v_maximum3_f32 v{vLM}, v{vLM}, v{S1+8}, abs(v{S1})
        v_mul_f32 v{S1}, v{S1}, v{S1+1}
        v_cvt_pk_bf16_f32 v{S1}, v{S1}, v{S1}
        ds_write_b16 v{vOW}, v{S1}
        """)
    def s2_read():
        for s in range(2):
            a(f"ds_read_b128 v[{BF+4*s}:{BF+4*s+3}], v{vOR} offset:{64*s}")
    def s2_mma(lo, hi):
        for u in range(lo, hi):
            s, t = u >> 2, u & 3
            a(f"v_mfma_f32_16x16x32_bf16 v[{OA+4*t}:{OA+4*t+3}], v[{WF+4*u}:{WF+4*u+3}], v[{BF+4*s}:{BF+4*s+3}], v[{OA+4*t}:{OA+4*t+3}]")
    def wf_load(lo, hi):
        if lo == 0:
            a("s_add_u32 s34, s33, s31")
            a("s_add_u32 s35, s34, 4096")
            a("s_add_u32 s31, s31, 0x10000")
            a("s_and_b32 s31, s31, 0x7ffff")
        for u in range(lo, hi):
            a(f"buffer_load_dwordx4 v[{WF+4*u}:{WF+4*u+3}], v{vWL}, s[8:11], s{34 + (u >> 2)} offen offset:{1024*(u&3)}{SC}")
            vm.issue("WF")
    def ffn_prefetch():
        a(f"""
        s_mov_b32 s39, s6
        s_cmp_eq_u32 s39, 1
        s_cselect_b64 s[36:37], s[64:65], s[62:63]
        s_cmp_eq_u32 s39, 2
        s_cselect_b64 s[36:37], s[66:67], s[36:37]
        """)
        srd(a, 12, 36, 37, 512 * 1792 * 2)
        a(f"""
        s_and_b32 s3, s2, 7
        s_lshr_b32 s4, s2, 3
        s_mul_i32 s5, s4, {16*3584}
        s_mul_i32 s36, s3, 448
        s_and_b32 s36, s36, 0xffffff80
        s_add_u32 s5, s5, s36
        s_lshl_b32 s36, s3, 7
        s_mul_i32 s37, s4, {56*1024}
        s_add_u32 s36, s36, s37
        v_lshrrev_b32 v{t0}, 2, v0
        v_mul_u32_u24 v{t0}, 3584, v{t0}
        v_and_b32 v{t1}, 3, v0
        v_lshl_add_u32 v{t0}, v{t1}, 7, v{t0}
        v_min_u32 v{t1}, 55, v0
        v_lshlrev_b32 v{t1}, 10, v{t1}
        s_cmp_eq_u32 s39, 2
        s_cselect_b32 s38, s36, s5
        s_cselect_b64 vcc, -1, 0
        v_cndmask_b32 v{t0}, v{t0}, v{t1}, vcc
        s_lshl_b32 s39, s6, {PFS}
        s_add_u32 s39, s39, 1
        s_cmp_gt_u32 s6, 2
        s_cselect_b32 s39, 99, s39
        """)
    def ffn_setup():
        a(f"""
        s_and_b32 s3, s2, 7
        s_lshr_b32 s4, s2, 3
        s_and_b32 s5, s6, 1
        s_cmp_eq_u32 s5, 0
        s_cselect_b64 s[36:37], s[62:63], s[64:65]
        s_cmp_lt_u32 s2, 112
        s_cselect_b64 s[36:37], s[36:37], s[66:67]
        """)
        srd(a, 68, 36, 37, 512 * 1792 * 2)
        a(f"""
        s_mul_i32 s76, s3, 14
        s_add_u32 s76, s76, s4           ; fs
        s_lshl_b32 s77, s3, 2
        s_add_u32 s77, s77, s4
        s_sub_u32 s77, s77, 14           ; cb
        s_lshr_b32 s5, s6, 1
        s_mul_i32 s5, s5, {128*3584}
        s_lshl_b32 s36, s76, 5
        s_add_u32 s5, s5, s36
        s_mul_i32 s36, s6, {224*1024}
        s_lshl_b32 s37, s77, 5
        s_add_u32 s36, s36, s37
        s_cmp_lt_u32 s2, 112
        s_cselect_b32 s72, s5, s36
        s_movk_i32 s73, 1024
        s_cselect_b32 s73, 3584, s73
        s_cselect_b32 s75, 4, 7
        s_cmp_lt_u32 s2, 144
        s_cselect_b32 s75, s75, 0
        s_mul_i32 s74, s6, 7168
        s_add_u32 s74, s74, {L_FW:#x}
        v_lshrrev_b32 v{vVL}, 1, v0
        v_mul_lo_u32 v{vVL}, v{vVL}, s73
        v_and_b32 v{t1}, 1, v0
        v_lshl_add_u32 v{vVL}, v{t1}, 4, v{vVL}
        s_lshl_b32 s73, s73, 5
        s_mov_b32 s78, s74
        """)
    def ffn_stage():
        a(f"""
        s_cmp_lt_u32 s29, 4
        s_cbranch_scc1 K2_nost
        """)
        for e in range(2):
            a(f"""
            s_cmp_eq_u32 s75, 0
            s_cbranch_scc1 K2_nost
            s_mov_b32 m0, s78
            s_sub_u32 s75, s75, 1
            buffer_load_dwordx4 v{vVL}, s[68:71], s72 offen lds
            s_add_u32 s78, s78, 1024
            s_add_u32 s72, s72, s73
            """)
        a.label("K2_nost")
    def ffn_issue():
        a(f"""
        s_cmp_lg_u32 s29, s39
        s_cbranch_scc1 K2_nopf
        buffer_load_dword v{t1}, v{t0}, s[12:15], s38 offen
        """)
        a.label("K2_nopf")
    def setprio(p):
        if prio: a(f"s_setprio {p}")
    st(2, False)
    rd_qcm()
    a("s_waitcnt lgkmcnt(0)")
    M1(0, 0)
    a("s_mov_b32 s29, 1")
    setprio(3)
    ldK(3); ldV(2)
    st(3, False)
    if 'leak' in dbg or 'amp' in dbg: a('s_memrealtime s[94:95]'); a('s_waitcnt lgkmcnt(0)')
    def tile(i, hook):
        xb = i & 1; xn = xb ^ 1
        hook(i, 'a')
        E(xb, 0, 2)
        hook(i, 'm3b')
        E(xb, 2, 5)
        hook(i, 'm1')
        M1((i + 1) & 7, xn)
        hook(i, 0)
        if i == 0:
            E(xb, 5, 12)
            hook(i, 1)
            Ozero()
            E(xb, 12, 16)
            M3(0, i)
            hook(i, 2)
        else:
            E(xb, 5, 8)
            hook(i, 'e1')
            E(xb, 8, 10)
            hook(i, 1)
            M3(0, i)
            hook(i, 2)
            E(xb, 10, 13)
            hook(i, 'e2')
            E(xb, 13, 15)
            hook(i, 'e3')
            E(xb, 15, 16)
    def hook0(i, pos):
        if pos == 'a' and i in (0, 2, 4, 6): st(1 + i // 2, 3)
        if pos == 'a' and i in (3, 5, 7): setprio({3: 2, 5: 1, 7: 1}[i])
        if pos == 'm3b' and i > 0:
            vm.wait(f"V{i-1}1"); M3(1, i - 1)
        if pos == 'm1':
            if i < 7: vm.wait(f"K{i+1}")
            else: a("s_waitcnt lgkmcnt(0)")
        if pos == 0:
            if i + 4 <= 7: ldK(i + 4)
            if i + 3 <= 7: ldV(i + 3)
            if i == 4 and 'nopf' not in dbg: ffn_prefetch()
            if i == 5: wf_load(0, 4); ffn_setup()
            if i == 6: wf_load(4, 8)
        if pos == 1:
            if i == 6: rd_qcm()
            vm.wait(f"V{i}0")
        if pos == 2 and i == 7:
            vm.wait("V71")
    for i in range(8): tile(i, hook0)
    st(5, 3)
    a.raw(".p2align 3")
    a.label("K2_round")
    spins = []
    def poll(off):
        a(f"ds_read_b32 v{vFV}, v{vFR} offset:{off}")
    def check(off):
        k = len(spins); spins.append(off)
        a(f"""
        s_waitcnt lgkmcnt(0)
        v_cmp_gt_u32 vcc, s59, v{vFV}
        s_cbranch_vccnz K2_spin{k}
        """)
        a.label(f"K2_back{k}")
    PR = dict(x.split('=') for x in dbg.split(',') if '=' in x).get('pr', 'c')
    def hook(i, pos):
        if pos == 'm3b': M3(1, (i - 1) & 7)
        if pos == 'm1' and i == 7: a("s_waitcnt lgkmcnt(0)")
        if pos == 1 and i == 6: rd_qcm()
        if 'nohook' in dbg: return
        if 'bar' in dbg.split(','):
            if pos == 'a' and i in (0, 6, 7): setprio({6: 2, 7: 1, 0: 0}[i])
            if i == 0 and pos == 1: part_write()
            if i == 1 and pos == 0:
                a("s_waitcnt lgkmcnt(0)"); a("s_barrier"); setprio(2); s1_read()
            if i == 2 and pos == 0:
                a("s_waitcnt lgkmcnt(0)"); s1_calc(); setprio(1)
            if i == 3 and pos == 0: setprio(0)
            if i == 4 and pos == 0:
                a("s_waitcnt vmcnt(0) lgkmcnt(0)"); a("s_barrier"); setprio(3); s2_read()
            seq = [(4, 'e3'), (5, 'e1'), (5, 'e2'), (5, 'e3'), (6, 'e1'), (6, 'e2'), (6, 'e3'), (7, 'e1')]
        else:
            ca = int(OPT.get('ca', 2)); cb = int(OPT.get('cb', 5)); PT = OPT.get('pt', '10110321')
            slots = [(t, p) for t in range(1, 8) for p in (('a', 'e1', 'e2', 'e3') if cb >= 6 else ('e1', 'e2', 'e3'))]
            if i == 0 and pos == 1:
                part_write(); a(f"ds_write_b32 v{vFW}, v{vQA}")
            if i == ca and pos == 0: poll(0)
            if i == ca and pos == 2: check(0); s1_read()
            if i == ca + 1 and pos == 0:
                a("s_waitcnt lgkmcnt(0)"); s1_calc(); a(f"ds_write_b32 v{vFW}, v{vQA} offset:32")
            if i == cb - 1 and pos == 2: poll(32)
            if i == cb and pos == 'm1':
                check(32); s2_read(); a("s_waitcnt vmcnt(0)")
            if len(PT) == 8: PT = "".join(ch * 2 for ch in PT)
            for hpos, k in (('a', 2 * i), (2, 2 * i + 1)):
                if pos == hpos and PT[k] != PT[k - 1]: setprio(int(PT[k]))
            av = [x for x in slots if x > (cb, 'e1')]
            if OPT.get('sp', '0') == '1' and len(av) >= 12: av = [x for x in av if x[1] != 'e3']
            seq = av[:8]
            while len(seq) < 8: seq = sorted(seq + [seq[len(seq) % len(av)]])
        for u in [k for k, x in enumerate(seq) if x == (i, pos)]:
            if u == 0: a("s_waitcnt lgkmcnt(0)")
            s2_mma(u, u + 1)
            if 'nowf' not in dbg: wf_load(u, u + 1)
            if u == 7 and 'nopf' not in dbg and PFP == 1: ffn_issue(); ffn_stage()
    for i in range(8): tile(i, hook)
    if 'rndst' in dbg:
        a(f"""
        s_memtime s[82:83]
        s_memrealtime s[100:101]
        s_waitcnt lgkmcnt(0)
        s_lshl_b32 s84, s2, 3
        s_add_u32 s84, s84, s6
        s_lshl_b32 s84, s84, 3
        s_add_u32 s84, s84, s29
        s_lshl_b32 s84, s84, 3
        s_add_u32 s84, s84, {WS_STAMP + 0x40000:#x}
        s_mov_b64 exec, 1
        v_mov_b32 v{S1+8}, s82
        v_mov_b32 v{S1+9}, s100
        v_mov_b32 v{S1+10}, 0
        buffer_store_dwordx2 v[{S1+8}:{S1+9}], v{S1+10}, s[8:11], s84 offen
        s_mov_b64 exec, -1
        """)
    a(f"""
    s_addk_i32 s59, 1024
    s_add_u32 s29, s29, 1
    s_cmp_lt_u32 s29, 8
    s_cbranch_scc1 K2_round
    """)
    st(4, False); st(0, True)
    M3(1, 7)
    XR = CM; WR = CM + 4; HV = X[0]; HN = X[0] + 8; PK = X[1]; ST = X[1] + 8
    a(f"""
    s_add_u32 s3, s7, s6
    s_lshl_b32 s4, s3, 10
    buffer_load_dwordx4 v[{XR}:{XR+3}], v{vWL}, s[16:19], s4 offen
    buffer_load_dwordx4 v[{WR}:{WR+3}], v{vWL}, s[24:27], 0 offen
    v_and_b32 v{t0}, 7, v0
    v_mul_u32_u24 v{t0}, 1040, v{t0}
    v_lshrrev_b32 v{t1}, 4, v0
    v_lshl_add_u32 v{t0}, v{t1}, 3, v{t0}
    s_lshl_b32 s5, s6, 7
    s_add_u32 s5, s5, {L_HB:#x}
    v_add_u32 v{t0}, s5, v{t0}
    s_mul_i32 s5, s6, 1040
    s_add_u32 s5, s5, {L_HB:#x}
    v_add_u32 v{t1}, s5, v{vWL}
    s_lshl_b32 s35, s6, 2
    s_add_u32 s35, s35, {L_KEY:#x}
    v_mov_b32 v{t4}, s35
    v_and_b32 v{t3}, 7, v0
    v_lshlrev_b32 v{t3}, 2, v{t3}
    v_add_u32 v{t3}, {L_KEY:#x}, v{t3}
    """)
    part_write()
    a("s_waitcnt lgkmcnt(0)"); a("s_barrier"); st(1, True); s1_read()
    a("s_waitcnt lgkmcnt(0)"); s1_calc()
    a(f"""
    v_mov_b32 v{t2}, {f2u(2.0**124):#x}
    v_cmp_nlt_f32 vcc, v{vLM}, v{t2}
    s_cmp_lg_u64 vcc, 0
    s_cselect_b32 s5, 1, 0
    v_mov_b32 v{t2}, s5
    ds_write_b32 v{t4}, v{t2} offset:32
    """)
    a("s_waitcnt vmcnt(2) lgkmcnt(0)"); a("s_barrier"); st(2, True); s2_read()
    a(f"ds_read_b32 v{t2}, v{t3} offset:32")
    a("s_waitcnt lgkmcnt(1)"); s2_mma(0, 8)
    a(f"""
    s_waitcnt lgkmcnt(0)
    v_cmp_ne_u32 vcc, 0, v{t2}
    s_cmp_eq_u64 vcc, 0
    s_cbranch_scc1 K2_good
    s_cmp_lg_u32 s30, 0
    s_cbranch_scc1 K2_good
    s_mov_b32 s30, 1
    s_waitcnt vmcnt(0)
    s_setprio 0
    s_branch K2_restart
    """)
    a.label("K2_good")
    for t in range(4):
        a(f"v_cvt_pk_bf16_f32 v{S1+2*t}, v{OA+4*t}, v{OA+4*t+1}")
        a(f"v_cvt_pk_bf16_f32 v{S1+2*t+1}, v{OA+4*t+2}, v{OA+4*t+3}")
        a(f"ds_write_b64 v{t0}, v[{S1+2*t}:{S1+2*t+1}] offset:{32*t}")
    a("s_waitcnt vmcnt(0)")
    for r in range(4):
        a(f"v_lshlrev_b32 v{HV+2*r}, 16, v{XR+r}")
        a(f"v_and_b32 v{HV+2*r+1}, 0xffff0000, v{XR+r}")
        a(f"v_lshlrev_b32 v{WF+2*r}, 16, v{WR+r}")
        a(f"v_and_b32 v{WF+2*r+1}, 0xffff0000, v{WR+r}")
    a(f"""
    s_waitcnt lgkmcnt(0)
    s_barrier
    """)
    st(3, True)
    a(f"""
    ds_read_b128 v[{BF}:{BF+3}], v{t1}
    s_waitcnt lgkmcnt(0)
    """)
    for r in range(4):
        a(f"v_lshlrev_b32 v{HN+2*r}, 16, v{BF+r}")
        a(f"v_and_b32 v{HN+2*r+1}, 0xffff0000, v{BF+r}")
    P2 = lambda b, r: f"v[{b+r}:{b+r+1}]"
    for r in range(0, 8, 2): a(f"v_pk_add_f32 {P2(HV,r)}, {P2(HV,r)}, {P2(HN,r)}")
    for r in range(8): a(f"v_cvt_pk_bf16_f32 v{HV+r}, 0, v{HV+r}")
    SA, SB = S1, S1 + 2
    a(f"v_pk_add_f32 {P2(SA,0)}, {P2(HV,0)}, {P2(HV,2)}")
    a(f"v_pk_mul_f32 {P2(SB,0)}, {P2(HV,0)}, {P2(HV,0)}")
    a(f"v_pk_add_f32 {P2(SA,4)}, {P2(HV,4)}, {P2(HV,6)}")
    a(f"v_pk_fma_f32 {P2(SB,0)}, {P2(HV,2)}, {P2(HV,2)}, {P2(SB,0)}")
    a(f"v_pk_add_f32 {P2(SA,0)}, {P2(SA,0)}, {P2(SA,4)}")
    a(f"v_pk_fma_f32 {P2(SB,0)}, {P2(HV,4)}, {P2(HV,4)}, {P2(SB,0)}")
    a(f"v_add_f32 v{t0}, v{SA}, v{SA+1}")
    a(f"v_pk_fma_f32 {P2(SB,0)}, {P2(HV,6)}, {P2(HV,6)}, {P2(SB,0)}")
    a(f"v_add_f32 v{t2}, v{SB}, v{SB+1}")
    wave_sum(a, [t0, t2], [ST, ST + 1])
    ln_scalars(a, t0, t2, ST, ST + 2, ST + 1, ST + 3)
    st(4, True)
    for r in range(0, 8, 2): a(f"v_pk_add_f32 {P2(HN,r)}, {P2(HV,r)}, {P2(ST,0)} op_sel_hi:[1,0] neg_lo:[0,1] neg_hi:[0,1]")
    for r in range(8): a(f"v_cvt_pk_bf16_f32 v{HN+r}, 0, v{HN+r}")
    for r in range(0, 8, 2): a(f"v_pk_mul_f32 {P2(HN,r)}, {P2(HN,r)}, {P2(ST,2)} op_sel_hi:[1,0]")
    for r in range(8): a(f"v_cvt_pk_bf16_f32 v{HN+r}, 0, v{HN+r}")
    a(f"v_pk_mul_f32 {P2(SA,0)}, {P2(HN,0)}, {P2(WF,0)}")
    for r in range(2, 8, 2): a(f"v_pk_fma_f32 {P2(SA,0)}, {P2(HN,r)}, {P2(WF,r)}, {P2(SA,0)}")
    a(f"v_add_f32 v{t2}, v{SA}, v{SA+1}")
    fill = [f"v_pk_add_f32 {P2(WF+8,r)}, {P2(HV,r)}, {P2(HN,r)}" for r in range(0, 8, 2)]
    fill += [f"v_cvt_pk_bf16_f32 v{PK+4+r}, v{HV+2*r}, v{HV+2*r+1}" for r in range(4)]
    fill += [f"v_cvt_pk_bf16_f32 v{ST+4+r}, v{HN+2*r}, v{HN+2*r+1}" for r in range(4)]
    for mod in ("quad_perm:[1,0,3,2]", "quad_perm:[2,3,0,1]", "row_half_mirror", "row_mirror"):
        a(fill.pop(0)); a(fill.pop(0))
        a(f"v_add_f32_dpp v{t2}, v{t2}, v{t2} {mod} row_mask:0xf bank_mask:0xf")
    for w in (16, 32):
        a(f"v_mov_b32 v{t0}, v{t2}")
        a(fill.pop(0)); a(fill.pop(0))
        a(f"v_permlane{w}_swap_b32 v{t0}, v{t2}")
        a(f"v_add_f32 v{t2}, v{t2}, v{t0}")
    if 'leak' in dbg:
        a(f"""
        s_cmp_lg_u32 s3, 0
        s_cbranch_scc1 K2_leak
        s_memrealtime s[92:93]
        v_mov_b32 v{S1+4}, 0
        s_mov_b32 s5, {WS_SEL:#x}
        buffer_load_dwordx4 v[{S1}:{S1+3}], v{S1+4}, s[8:11], s5 offen
        s_waitcnt vmcnt(0) lgkmcnt(0)
        s_mov_b64 exec, 1
        v_add_f32 v{WF+8}, {f2u(64.0):#x}, v{WF+8}
        v_sub_u32 v{WF+9}, v{S1+2}, v{S1}
        v_sub_u32 v{WF+10}, v{S1+1}, v{S1}
        v_sub_u32 v{WF+11}, s90, v{S1}
        v_sub_u32 v{WF+12}, s94, v{S1}
        v_sub_u32 v{WF+13}, s92, v{S1}
        """)
        for r in range(9, 14):
            a(f"v_cvt_f32_u32 v{WF+r}, v{WF+r}")
            a(f"v_mul_f32 v{WF+r}, {f2u(0.005):#x}, v{WF+r}")
            a(f"v_min_f32 v{WF+r}, {f2u(20.0):#x}, v{WF+r}")
        a("s_mov_b64 exec, -1")
        a.label("K2_leak")
    a(f"""
    v_cvt_pk_bf16_f32 v{t2}, 0, v{t2}
    v_ashrrev_i32 v{t0}, 31, v{t2}
    v_or_b32 v{t0}, 0x80000000, v{t0}
    v_xor_b32 v{t2}, v{t2}, v{t0}
    v_and_b32 v{t2}, 0xffff0000, v{t2}
    s_sub_u32 s5, 0xffff, s3
    v_or_b32 v{t2}, s5, v{t2}      ; key
    ds_write_b32 v{t4}, v{t2}
    """)
    for r in range(4): a(f"v_cvt_pk_bf16_f32 v{PK+r}, v{WF+8+2*r}, v{WF+8+2*r+1}")
    a(f"""
    buffer_store_dwordx4 v[{PK}:{PK+3}], v{vWL}, s[20:23], s4 offen sc1
    """)
    a(f"""
    s_waitcnt lgkmcnt(0)
    s_barrier
    ds_read_b32 v{t1}, v{t3}
    s_waitcnt lgkmcnt(0)
    v_cmp_gt_u32 vcc, v{t1}, v{t2}
    v_cmp_eq_u32 s[36:37], v{t1}, v{t2}
    s_and_b32 s38, vcc_lo, 0xff
    s_bcnt1_i32_b32 s38, s38       ; rank
    """)
    st(5, False); st(5, True); st(0, 2); st(1, 2); st(2, 2); st(3, 2); st(4, 2); st(5, 2)
    a(f"""
    s_cmp_gt_u32 s38, 1
    s_cbranch_scc1 K2_pub0
    s_add_u32 s5, s4, {WS_H:#x}
    buffer_store_dwordx4 v[{PK+4}:{PK+7}], v{vWL}, s[8:11], s5 offen sc1
    s_add_u32 s5, s4, {WS_HN:#x}
    buffer_store_dwordx4 v[{ST+4}:{ST+7}], v{vWL}, s[8:11], s5 offen sc1
    v_cndmask_b32 v{ST+1}, v{t1}, 0, s[36:37]
    v_mov_b32 v{ST}, v{t2}
    s_lshl_b32 s5, s2, {G.KS_LOG}
    s_add_u32 s5, s5, {WS_KEY:#x}
    v_lshlrev_b32 v{t0}, 14, v0
    """)
    for mod in ("quad_perm:[1,0,3,2]", "quad_perm:[2,3,0,1]", "row_half_mirror"):
        a(f"v_max_u32_dpp v{ST+1}, v{ST+1}, v{ST+1} {mod} row_mask:0xf bank_mask:0xf")
    a("s_waitcnt vmcnt(0)")
    a.label("K2_pub0")
    a(f"""
    s_barrier
    s_cmp_lg_u32 s38, 0
    s_cbranch_scc1 K2_pub
    s_mov_b64 exec, {0xff if KREP else 1}
    buffer_store_dwordx2 v[{ST}:{ST+1}], v{t0}, s[8:11], s5 offen sc1
    s_mov_b64 exec, -1
    """)
    a.label("K2_pub")
    if 'amp' in dbg: a('s_memrealtime s[96:97]'); a('s_waitcnt lgkmcnt(0)')
    st(1, 2)
    def fin():
        if G.STAMP: a("s_waitcnt vmcnt(0)")
        stamp(a, 6)
        if G.STAMP: a("s_mov_b32 s91, s30")
        stamp_out(a, 1, 8, "s6", WF)
        a("s_endpgm")
    a(f"""
    s_cmp_ge_u32 s2, 144
    s_cbranch_scc1 K2_fin
    """)
    AFR = V
    KY = K; Y = K + 8; BX = V + 32; AC = K + 16
    a(f"""
    s_setprio 0
    v_bfe_u32 v{t0}, v0, 2, 2
    v_lshrrev_b32 v{t4}, 4, v0           ; g
    v_lshl_add_u32 v{t0}, v{t4}, 3, v{t0}
    v_lshlrev_b32 v{t0}, 5, v{t0}
    v_and_b32 v{t1}, 3, v0
    v_lshl_add_u32 v{t0}, v{t1}, 3, v{t0}
    v_add_u32 v{t0}, s74, v{t0}
    """)
    for sx in range(7):
        for half in range(2):
            d = AFR + 4 * sx + 2 * half
            a(f"ds_read_b64_tr_b16 v[{d}:{d+1}], v{t0} offset:{sx*1024 + half*128}")
    a(f"""
    v_and_b32 v{t3}, 1, v0
    v_lshlrev_b32 v{vPW}, 6, v{t3}
    v_lshl_add_u32 v{vPW}, v{t4}, 4, v{vPW}
    s_lshl_b32 s5, s6, 7
    s_add_u32 s5, s5, {L_RED:#x}
    v_add_u32 v{vPW}, s5, v{vPW}
    v_and_b32 v{vPR}, 31, v0
    v_lshlrev_b32 v{vPR}, 2, v{vPR}      ; (lane&31)*4
    v_lshrrev_b32 v{vOR}, 5, v0
    v_lshl_add_u32 v{vOR}, v{vOR}, 14, v{vPR}
    s_cmp_lg_u32 s6, 0
    s_cbranch_scc1 K2_nokey
    v_lshlrev_b32 v{t1}, {G.KS_LOG}, v0
    s_and_b32 s5, s2, {7 if KREP else 0}
    s_lshl_b32 s5, s5, 14
    s_add_u32 s5, s5, {WS_KEY:#x}
    s_add_u32 s79, s5, {64 << G.KS_LOG}
    s_add_u32 s80, s5, {128 << G.KS_LOG}
    s_add_u32 s81, s5, {192 << G.KS_LOG}
    s_mov_b32 s36, 0
    """)
    KZ = V + 60 - 8 * 0
    def poll_loop(name, issue, nld):
        K2R = X[0]
        def chk(b):
            a(f"""
            v_min3_u32 v{Y}, v{b}, v{b+1}, v{b+2}
            v_min3_u32 v{Y+1}, v{b+3}, v{b+4}, v{b+5}
            v_min3_u32 v{Y}, v{Y}, v{b+6}, v{b+7}
            v_min_u32 v{Y}, v{Y}, v{Y+1}
            v_cmp_eq_u32 vcc, 0, v{Y}
            """)
        sl = OPT.get('psl', 3)
        issue(KY)
        a(f"s_sleep {sl}")
        a.label(f"{name}_l")
        issue(K2R)
        a(f"s_waitcnt vmcnt({nld})")
        chk(KY)
        a(f"s_cbranch_vccz {name}_ok")
        issue(KY)
        a(f"s_waitcnt vmcnt({nld})")
        chk(K2R)
        a(f"""
        s_cbranch_vccz {name}_ok2
        s_add_u32 s36, s36, 1
        s_cmp_lt_u32 s36, 0x40000
        s_cbranch_scc1 {name}_l
        """)
        a.label(f"{name}_ok2")
        for r in range(0, 8, 2): a(f"v_pk_mov_b32 v[{KY+r}:{KY+r+1}], v[{K2R+r}:{K2R+r+1}], v[{K2R+r}:{K2R+r+1}] op_sel:[0,1]")
        a.label(f"{name}_ok")
    def kissue(b):
        for k, sr in enumerate(("s5", "s79", "s80", "s81")):
            a(f"buffer_load_dwordx2 v[{b+2*k}:{b+2*k+1}], v{t1}, s[8:11], {sr} offen sc1")
    poll_loop("K2_kp", kissue, 4)
    a.label("K2_kok")
    st(2, 2)
    if FS: a("s_mov_b32 s30, s36")
    B1, B2 = Y + 4, Y + 5
    a(f"""
    v_max_u32 v{B1}, v{KY}, v{KY+2}
    v_min_u32 v{B2}, v{KY}, v{KY+2}
    v_max3_u32 v{B2}, v{B2}, v{KY+1}, v{KY+3}
    v_max_u32 v{Y}, v{KY+4}, v{KY+6}
    v_min_u32 v{Y+1}, v{KY+4}, v{KY+6}
    v_max3_u32 v{Y+1}, v{Y+1}, v{KY+5}, v{KY+7}
    v_min_u32 v{Y+2}, v{B1}, v{Y}
    v_max_u32 v{B1}, v{B1}, v{Y}
    v_max3_u32 v{B2}, v{B2}, v{Y+1}, v{Y+2}
    v_mov_b32 v{Y}, v{B1}
    """)
    wave_max_u32(a, Y, Y + 1)
    a(f"""
    v_cmp_eq_u32 vcc, v{B1}, v{Y}
    v_cndmask_b32 v{B1}, v{B1}, v{B2}, vcc
    """)
    wave_max_u32(a, B1, Y + 1)
    a(f"""
    v_readfirstlane_b32 s40, v{Y}
    v_readfirstlane_b32 s41, v{B1}
    s_andn2_b32 s42, 0x7ff, s40
    s_andn2_b32 s43, 0x7ff, s41
    s_lshl_b32 s42, s42, 10
    s_lshl_b32 s43, s43, 10
    """)
    a.label("K2_nokey")
    a(f"""
    s_cmp_ge_u32 s2, 112
    s_cbranch_scc1 K2_down
    s_cmp_lg_u32 s6, 0
    s_cbranch_scc1 K2_up1
    s_add_u32 s36, s42, {WS_HN:#x}
    s_add_u32 s37, s43, {WS_HN:#x}
    buffer_load_dwordx4 v[{KY}:{KY+3}], v{vWL}, s[8:11], s36 offen sc1
    buffer_load_dwordx4 v[{KY+4}:{KY+7}], v{vWL}, s[8:11], s37 offen sc1
    s_waitcnt vmcnt(1)
    ds_write_b128 v{vWL}, v[{KY}:{KY+3}] offset:{L_XS}
    s_waitcnt vmcnt(0)
    ds_write_b128 v{vWL}, v[{KY+4}:{KY+7}] offset:{L_XS + 1040}
    """)
    a.label("K2_up1")
    st(3, 2)
    a(f"""
    v_mul_u32_u24 v{t0}, 1040, v{t3}
    v_lshl_add_u32 v{t0}, v{t4}, 4, v{t0}
    s_lshr_b32 s5, s6, 1
    s_lshl_b32 s5, s5, 8
    v_add_u32 v{t0}, s5, v{t0}
    s_waitcnt lgkmcnt(0)
    s_barrier
    """)
    for sx in range(4):
        a(f"ds_read_b128 v[{BX+4*sx}:{BX+4*sx+3}], v{t0} offset:{L_XS + 64*sx}")
    for sx in range(4):
        a(f"s_waitcnt lgkmcnt({3-sx})")
        c = "0" if sx == 0 else f"v[{AC}:{AC+3}]"
        a(f"v_mfma_f32_16x16x32_bf16 v[{AC}:{AC+3}], v[{AFR+4*sx}:{AFR+4*sx+3}], v[{BX+4*sx}:{BX+4*sx+3}], {c}")
    a(f"""
    ds_write_b128 v{vPW}, v[{AC}:{AC+3}]
    s_waitcnt lgkmcnt(0)
    s_barrier
    s_cmp_lg_u32 s6, 0
    s_cbranch_scc1 K2_fin
    """)
    def red_read():
        a(f"v_add_u32 v{t0}, {L_RED:#x}, v{vPR}")
        a("s_waitcnt vmcnt(0)")
        for k in range(4):
            a(f"ds_read2_b32 v[{KY+2*k}:{KY+2*k+1}], v{t0} offset0:{64*k} offset1:{64*k+32}")
        a("s_waitcnt lgkmcnt(0)")
        a(f"v_pk_add_f32 v[{KY}:{KY+1}], v[{KY}:{KY+1}], v[{KY+2}:{KY+3}]")
        a(f"v_pk_add_f32 v[{KY+4}:{KY+5}], v[{KY+4}:{KY+5}], v[{KY+6}:{KY+7}]")
        a(f"v_pk_add_f32 v[{KY}:{KY+1}], v[{KY}:{KY+1}], v[{KY+4}:{KY+5}]")
    st(4, 2)
    red_read()
    a(f"""
    v_cvt_pk_bf16_f32 v{KY}, 0, v{KY}
    v_cvt_pk_bf16_f32 v{KY+1}, 0, v{KY+1}
    """)
    sigmoid(a, KY + 2, KY, KY + 3)
    a(f"""
    v_mul_f32 v{KY}, v{KY}, v{KY+2}
    v_cvt_pk_bf16_f32 v{KY}, 0, v{KY}
    v_mul_f32 v{KY}, v{KY}, v{KY+1}
    v_cvt_pk_bf16_f32 v{KY}, 0, v{KY}
    v_or_b32 v{KY}, 1, v{KY}
    s_lshl_b32 s5, s76, 7
    s_add_u32 s5, s5, {WS_GU:#x}
    """)
    if GREP:
        for k in range(4):
            a(f"buffer_store_dword v{KY}, v{vOR}, s[8:11], s5 offen sc1")
            if k < 3: a("s_add_u32 s5, s5, 0x8000")
    else:
        a(f"""
        s_mov_b32 exec_hi, 0
        buffer_store_dword v{KY}, v{vPR}, s[8:11], s5 offen sc1
        s_mov_b64 exec, -1
        """)
    a(f"""
    s_branch K2_fin
    """)
    a.label("K2_down")
    HH, NN, GT, OO = Y + 6, Y + 7, AC + 4, AC + 5
    a(f"""
    s_cmp_lg_u32 s6, 0
    s_cbranch_scc1 K2_dn1
    v_bfe_u32 v{t0}, v0, 4, 1
    v_cmp_eq_u32 vcc, 0, v{t0}
    v_mov_b32 v{t0}, s43
    v_mov_b32 v{t1}, s42
    v_cndmask_b32 v{OO}, v{t0}, v{t1}, vcc
    v_and_b32 v{t0}, 15, v0
    v_lshl_add_u32 v{OO}, v{t0}, 1, v{OO}
    s_lshl_b32 s44, s77, 5
    s_add_u32 s36, s44, {WS_H:#x}
    s_add_u32 s37, s44, {WS_HN:#x}
    buffer_load_ushort v{HH}, v{OO}, s[8:11], s36 offen sc1
    buffer_load_ushort v{NN}, v{OO}, s[8:11], s37 offen sc1
    v_mov_b32 v{t0}, s41
    v_mov_b32 v{t1}, s40
    v_cndmask_b32 v{GT}, v{t0}, v{t1}, vcc
    v_and_b32 v{GT}, 0xffff0000, v{GT}
    v_ashrrev_i32 v{t0}, 31, v{GT}
    v_not_b32 v{t0}, v{t0}
    v_or_b32 v{t0}, 0x80000000, v{t0}
    v_xor_b32 v{GT}, v{GT}, v{t0}
    v_and_b32 v{GT}, 0xffff0000, v{GT}
    """)
    sigmoid(a, GT, GT, t0)
    a(f"v_cvt_pk_bf16_f32 v{GT}, 0, v{GT}")
    a.label("K2_dn1")
    a(f"""
    s_mul_i32 s5, s6, 1792
    s_and_b32 s37, s2, {7 if GREP else 0}
    s_lshl_b32 s37, s37, 14
    s_add_u32 s5, s5, s37
    s_add_u32 s5, s5, {WS_GU:#x}
    v_min_u32 v{t1}, 47, v0
    v_lshlrev_b32 v{t1}, 4, v{t1}
    s_lshl_b32 s37, s6, 10
    s_add_u32 s37, s37, {L_GB:#x}
    v_lshrrev_b32 v{t0}, 3, v0
    v_lshlrev_b32 v{vPL}, 5, v{t0}
    v_and_b32 v{t0}, 3, v0
    v_lshl_add_u32 v{vPL}, v{t0}, 3, v{vPL}
    v_bfe_u32 v{t0}, v0, 2, 1
    v_mul_u32_u24 v{t0}, 464, v{t0}
    v_add3_u32 v{vPL}, v{vPL}, v{t0}, s37
    v_mul_u32_u24 v{vOW}, 464, v{t3}
    v_lshl_add_u32 v{vOW}, v{t4}, 4, v{vOW}
    v_add_u32 v{vOW}, s37, v{vOW}
    s_mov_b32 s45, 0x07060302
    s_mov_b32 s36, 0
    """)
    def gissue(b):
        a(f"buffer_load_dwordx4 v[{b}:{b+3}], v{vWL}, s[8:11], s5 offen sc1")
        a(f"buffer_load_dwordx4 v[{b+4}:{b+7}], v{t1}, s[8:11], s5 offen offset:1024 sc1")
    poll_loop("K2_gp", gissue, 2)
    a.label("K2_gok")
    st(4, 2)
    a(f"""
    v_perm_b32 v{Y}, v{KY+1}, v{KY}, s45
    v_perm_b32 v{Y+1}, v{KY+3}, v{KY+2}, s45
    v_perm_b32 v{Y+2}, v{KY+5}, v{KY+4}, s45
    v_perm_b32 v{Y+3}, v{KY+7}, v{KY+6}, s45
    ds_write_b64 v{vPL}, v[{Y}:{Y+1}]
    s_mov_b32 exec_hi, 0xffff
    ds_write_b64 v{vPL}, v[{Y+2}:{Y+3}] offset:256
    s_mov_b64 exec, -1
    """)
    for sx in range(7):
        a(f"ds_read_b128 v[{BX+4*sx}:{BX+4*sx+3}], v{vOW} offset:{64*sx}")
    for sx in range(7):
        a(f"s_waitcnt lgkmcnt({6-sx})")
        c = "0" if sx == 0 else f"v[{AC}:{AC+3}]"
        a(f"v_mfma_f32_16x16x32_bf16 v[{AC}:{AC+3}], v[{AFR+4*sx}:{AFR+4*sx+3}], v[{BX+4*sx}:{BX+4*sx+3}], {c}")
    a(f"""
    ds_write_b128 v{vPW}, v[{AC}:{AC+3}]
    s_waitcnt lgkmcnt(0)
    s_barrier
    s_cmp_lg_u32 s6, 0
    s_cbranch_scc1 K2_fin
    """)
    red_read()
    a(f"""
    v_add_f32 v{KY}, v{KY}, v{KY+1}
    v_lshlrev_b32 v{HH}, 16, v{HH}
    v_lshlrev_b32 v{NN}, 16, v{NN}
    v_cvt_pk_bf16_f32 v{KY}, 0, v{KY}
    v_mul_f32 v{KY}, v{KY}, v{GT}
    v_cvt_pk_bf16_f32 v{KY}, 0, v{KY}
    v_add_f32 v{KY}, v{KY}, v{NN}
    v_cvt_pk_bf16_f32 v{KY}, 0, v{KY}
    v_add_f32 v{KY}, v{KY}, v{HH}
    v_cvt_pk_bf16_f32 v{KY}, v{KY}, v{KY}
    s_mov_b32 exec_hi, 0
    buffer_store_short v{KY}, v{OO}, s[20:23], s44 offen sc1
    s_mov_b64 exec, -1
    """)
    a.label("K2_fin")
    if 'amp' in dbg:
        q = int(OPT['amp'])
        expr = {0: None, 1: ("s83", "s82"), 2: ("s90", "s83"), 3: ("s96", "s90"), 4: ("s84", "s82"), 5: ("s94", "s90"), 6: ("s88", "s87"), 7: ("s82", "s87"), 8: ("s89", "s87"), 9: ("s90", "s89")}[q]
        a(f"""
        s_or_b32 s5, s2, s6
        s_cmp_lg_u32 s5, 0
        s_cbranch_scc1 K2_amp_end
        s_mov_b32 s5, {WS_SEL:#x}
        buffer_load_dwordx4 v[{S1}:{S1+3}], v{vWL}, s[8:11], s5 offen
        s_waitcnt vmcnt(0)
        v_readfirstlane_b32 s82, v{S1}
        v_readfirstlane_b32 s83, v{S1+1}
        v_readfirstlane_b32 s84, v{S1+2}
        v_not_b32 v{S1+3}, v{S1}
        """)
        wave_max_u32(a, S1, S1 + 5); wave_max_u32(a, S1 + 3, S1 + 5); wave_max_u32(a, S1 + 1, S1 + 5)
        a(f"""
        v_readfirstlane_b32 s88, v{S1}
        v_readfirstlane_b32 s87, v{S1+3}
        v_readfirstlane_b32 s89, v{S1+1}
        s_not_b32 s87, s87
        """)
        if expr: a(f"s_sub_u32 s85, {expr[0]}, {expr[1]}")
        else: a("s_mov_b32 s85, 0")
        a(f"""
        s_min_u32 s85, s85, 5000
        s_lshl_b32 s85, s85, 1
        s_add_u32 s85, s85, 600
        s_add_u32 s85, s85, s96
        """)
        a.label("K2_amp")
        a(f"""
        s_memrealtime s[92:93]
        s_waitcnt lgkmcnt(0)
        s_sub_u32 s86, s92, s85
        s_cmp_lt_i32 s86, 0
        s_cbranch_scc1 K2_amp
        """)
        a.label("K2_amp_end")
    if G.STAMP: a("s_waitcnt vmcnt(0)")
    stamp(a, 6)
    if G.STAMP: a("s_mov_b32 s91, s30")
    stamp_out(a, 1, 8, "s6", WF)
    dstamp(a, 1, True, 240)
    a.label("K2_end")
    a("s_endpgm")
    for k, off in enumerate(spins):
        a.label(f"K2_spin{k}")
        a(f"""
        s_sleep 1
        ds_read_b32 v{vFV}, v{vFR} offset:{off}
        s_waitcnt lgkmcnt(0)
        v_cmp_gt_u32 vcc, s59, v{vFV}
        s_cbranch_vccnz K2_spin{k}
        s_branch K2_back{k}
        """)
    n = a.fix()
    if G.ALIGN: print('align', align8(a))
    return a.text(), 256, L_TOTAL
```

```python
import sys
sys.path.insert(0, "gen")
from gen import *
from k1 import gen_k1
from k2 import gen_k2
import argparse
ap = argparse.ArgumentParser()
ap.add_argument("out")
ap.add_argument("--noround", action="store_true")
ap.add_argument("--stamp", action="store_true")
ap.add_argument("--probe", type=float, default=None)
ap.add_argument("--dbg", default="")
ap.add_argument("--noop", default="")
ap.add_argument("--dstamp", action="store_true")
ap.add_argument("--dup", default="")
args = ap.parse_args()
set_dstamp(args.dstamp)
set_stamp(args.stamp)
import gen as G
G.ALIGN = 'noalign' not in args.dbg
G.KS_LOG = int(dict(x.split('=') for x in args.dbg.split(',') if '=' in x).get('ks', G.KS_LOG))
FUSED = 'split' not in args.dbg
t1, v1, l1 = gen_k1(dbg=args.dbg, fused=FUSED)
t2, v2, l2 = gen_k2(dbg=args.dbg, prio='noprio' not in args.dbg, fused=FUSED)
ks = [("k1_kernel", t1, v1, l1, 256, 512), ("k2_kernel", t2, v2, l2, 256, 512)]
if FUSED:
    ks = [("k1_kernel", t1 + ".p2align 3\n" + t2, 256, max(l1, l2), 256, 512)]
for pos in sorted([int(x) for x in args.dup.split(",") if x], reverse=True):
    ks.insert(pos, ks[pos])
for pos in sorted([int(x) for x in args.noop.split(",") if x], reverse=True):
    ks.insert(pos, ("noop_kernel", "    s_endpgm\n", 8, 0, 256, 256))
build(ks, args.out)
```

```python
from gen import *
import gen as G

L_X = 0; L_W = 65536; L_KV = 131072; L_WOT = L_KV + 16384; L1_TOTAL = L_WOT + 2048
L_Q0 = 0x6000

def gen_p1(a, dbg=''):
    SC = ' sc1'
    FST = int(dict(x.split('=') for x in dbg.split(',') if '=' in x).get('fst', 4))
    FLS = int(dict(x.split('=') for x in dbg.split(',') if '=' in x).get('fls', 4))
    EPOCH = f"""
    s_add_u32 s56, s32, {WS_EP:#x}
    s_addc_u32 s57, s33, 0
    s_load_dword s58, s[56:57], 0
    """
    X = 32
    ACC = 96
    AF = 116
    T = 148
    a(f"""
    s_cmp_lt_u32 s2, 256
    s_cbranch_scc1 K1_go
    s_endpgm
    """)
    a.label("K1_go")
    stamp(a, 0)
    if ('leak' in dbg or 'amp' in dbg): a('s_memrealtime s[90:91]')
    dstamp(a, 0, False, 200)
    a(f"""
    s_load_dwordx8 s[24:31], s[0:1], 0
    s_load_dwordx2 s[44:45], s[0:1], 32
    s_load_dwordx2 s[32:33], s[0:1], 96
    s_and_b32 s3, s2, 7
    s_lshr_b32 s4, s2, 3
    s_and_b32 s5, s4, 7
    s_lshr_b32 s4, s4, 3           ; tb & 3
    s_lshl_b32 s3, s3, 2
    s_add_u32 s3, s3, s4
    v_lshrrev_b32 v1, 6, v0
    v_and_b32 v2, 63, v0           ; lane
    v_readfirstlane_b32 s6, v1     ; wave
    v_and_b32 v3, 15, v2           ; l & 15
    v_lshrrev_b32 v4, 4, v2        ; g
    v_bfe_u32 v18, v2, 2, 2        ; r'
    v_and_b32 v19, 3, v2           ; c'
    v_lshl_add_u32 v20, v4, 3, v18 ; 8g + r'
    v_lshlrev_b32 v17, 5, v20
    v_lshl_add_u32 v17, v19, 3, v17
    s_cmp_ge_u32 s6, 4
    s_cbranch_scc1 K1_loader
    s_lshl_b32 s7, s3, 6
    s_lshl_b32 s34, s6, 4
    s_add_u32 s7, s7, s34
    v_add_u32 v5, s7, v3           ; token
    v_lshrrev_b32 v6, 2, v2        ; row
    v_lshrrev_b32 v7, 4, v2
    v_and_b32 v7, 2, v7
    v_xor_b32 v7, v7, v19
    v_lshlrev_b32 v6, 10, v6
    v_lshl_add_u32 v6, v7, 4, v6
    s_lshl_b32 s63, s6, 14
    s_add_u32 s63, s63, {L_X}
    s_lshl_b32 s64, s7, 10
    s_lshl_b32 s62, s5, 7
    s_waitcnt lgkmcnt(0)
    """)
    srd(a, 8, 24, 25, 0x200000)
    def xdma(u):
        if u % 2 == 0:
            a(f"""
            s_add_u32 m0, s63, {u*1024}
            s_add_u32 s48, s62, s64
            buffer_load_dwordx4 v6, s[8:11], s48 offen lds
            """)
        else:
            a(f"""
            s_add_u32 m0, s63, {u*1024 - 64}
            s_add_u32 s62, s62, 128
            buffer_load_dwordx4 v6, s[8:11], s48 offen offset:64 lds
            s_and_b32 s62, s62, 0x3ff
            """)
    for u in range(10): xdma(u)
    a(EPOCH)
    srd(a, 20, 32, 33, WS_SIZE)
    ONE = 24; SEL = 8
    SEL = 152
    a(f"""
    v_lshlrev_b32 v21, 7, v20
    v_lshl_add_u32 v21, v19, 3, v21   ; row*128 + 8c'
    v_add_u32 v21, {L_W}, v21
    v_lshrrev_b32 v22, 1, v18
    v_and_b32 v23, 1, v4
    v_lshl_or_b32 v22, v23, 1, v22 ; h
    """)
    for t in range(4):
        a(f"v_xor_b32 v23, {t}, v22")
        a(f"v_lshl_add_u32 v{13+t}, v23, 5, v21")
    a(f"""
    v_lshlrev_b32 v10, 6, v3
    v_lshrrev_b32 v7, 2, v3
    v_and_b32 v7, 2, v7
    v_xor_b32 v7, v7, v4
    v_lshl_add_u32 v10, v7, 4, v10
    v_add_u32 v10, s63, v10
    v_and_b32 v7, 1, v4
    v_lshlrev_b32 v7, 7, v7
    v_add_u32 v17, {L_KV}, v17
    v_xor_b32 v12, v17, v7
    v_xor_b32 v17, 128, v12
    """)
    for r in range(4): a(f"v_mov_b32 v{ONE+r}, 0x3f803f80")
    a(f"""
    v_and_b32 v7, 1, v2
    v_lshlrev_b32 v7, 4, v7
    v_mov_b32 v8, 0x3f80
    v_lshlrev_b32 v7, v7, v8
    v_cmp_eq_u32 s[36:37], v18, v4 ; g == (l&15)>>2
    v_bfe_u32 v8, v2, 1, 1
    v_cmp_eq_u32 vcc, 0, v8
    s_and_b64 s[38:39], s[36:37], vcc
    s_andn2_b64 s[40:41], s[36:37], vcc
    v_mov_b32 v{SEL}, 0
    v_mov_b32 v{SEL+1}, 0
    v_cndmask_b32 v{SEL+2}, 0, v7, s[38:39]
    v_cndmask_b32 v{SEL+3}, 0, v7, s[40:41]
    v_mov_b32 v{SEL+4}, 0
    v_mov_b32 v{SEL+5}, 0
    """)
    for u in range(10, 16): xdma(u)
    a("s_waitcnt lgkmcnt(0)")
    a("s_add_u32 s58, s58, 1")
    a("s_barrier")
    if ('leak' in dbg or 'amp' in dbg): a('s_memrealtime s[94:95]')
    m16 = "v_mfma_f32_16x16x32_bf16"
    SUM = ACC; GR = ACC + 4; NM = 224
    def stat(u):
        xs = f"v[{X+4*u}:{X+4*u+3}]"
        a(f"{m16} v[{SUM}:{SUM+3}], v[{ONE}:{ONE+3}], {xs}, " + ("0" if u == 0 else f"v[{SUM}:{SUM+3}]"))
        a(f"{m16} v[{GR}:{GR+3}], {xs}, {xs}, " + ("0" if u == 0 else f"v[{GR}:{GR+3}]"))
    for u in range(0, 16, 2):
        a(f"s_waitcnt vmcnt({14-u})")
        a(f"ds_read_b128 v[{X+4*u}:{X+4*u+3}], v10 offset:{1024*u}")
        a(f"ds_read_b128 v[{X+4*u+4}:{X+4*u+7}], v10 offset:{1024*u+1024}")
        if u >= 4:
            a("s_waitcnt lgkmcnt(4)")
            stat(u - 4); stat(u - 3)
    a("s_waitcnt lgkmcnt(2)"); stat(12); stat(13)
    a("s_waitcnt lgkmcnt(0)"); stat(14); stat(15)
    RG = 160
    a("s_lshr_b32 s66, s5, 1")
    a("s_cmp_lg_u32 s66, s6")
    a("s_cbranch_scc1 K1_nokvf")
    for sx in range(16):
        for half in range(2):
            d = RG + 4 * sx + 2 * half
            a(f"ds_read_b64_tr_b16 v[{d}:{d+1}], v{17 if half else 12} offset:{sx*1024}")
    a.label("K1_nokvf")
    a(f"""
    v_and_b32 v7, 1, v2
    v_cmp_eq_u32 s[42:43], 1, v7
    v_cndmask_b32 v8, v{GR}, v{GR+1}, s[42:43]
    v_cndmask_b32 v9, v{GR+2}, v{GR+3}, s[42:43]
    v_cndmask_b32 v8, 0, v8, s[38:39]
    v_cndmask_b32 v26, v8, v9, s[40:41]
    """)
    for w in (16, 32):
        sum_swap(a, 26, 28, w)
    ln_scalars(a, SUM, 26, 28, 30, 27, 29)
    for r in range(4): a(f"v_sub_f32 v{NM+r}, 0, v28")
    NB = 4
    def sub(u):
        d = AF + 8 * (u % NB)
        xs = f"v[{X+4*u}:{X+4*u+3}]"
        a(f"{m16} v[{d}:{d+3}], v[{SEL+2}:{SEL+5}], {xs}, v[{NM}:{NM+3}]")
        a(f"{m16} v[{d+4}:{d+7}], v[{SEL}:{SEL+3}], {xs}, v[{NM}:{NM+3}]")
    sub(0); sub(1)
    def ln_step(u):
        d = AF + 8 * (u % NB); L = []
        for r in range(4): L.append(f"v_cvt_pk_bf16_f32 v{d+r}, 0, v{d+r}")
        if u + 2 < 16:
            dd = AF + 8 * ((u + 2) % NB); xs = f"v[{X+4*(u+2)}:{X+4*(u+2)+3}]"
            L.append(f"{m16} v[{dd}:{dd+3}], v[{SEL+2}:{SEL+5}], {xs}, v[{NM}:{NM+3}]")
        for r in range(4, 8): L.append(f"v_cvt_pk_bf16_f32 v{d+r}, 0, v{d+r}")
        for r in range(0, 8, 2): L.append(f"v_pk_mul_f32 v[{d+r}:{d+r+1}], v[{d+r}:{d+r+1}], v[30:31] op_sel_hi:[1,0]")
        if u + 2 < 16:
            L.append(f"{m16} v[{dd+4}:{dd+7}], v[{SEL}:{SEL+3}], {xs}, v[{NM}:{NM+3}]")
        for r in range(4): L.append(f"v_cvt_pk_bf16_f32 v{X+4*u+r}, v{d+2*r}, v{d+2*r+1}")
        return L
    for u in range(16):
        for ins in ln_step(u): a(ins)
    KV = ACC + 16
    a(f"""
    v_lshrrev_b32 v9, 1, v4
    v_and_b32 v11, 1, v4
    s_cmp_lg_u32 s66, s6
    s_cbranch_scc1 K1_q
    s_lshr_b32 s35, s7, 5
    s_mul_i32 s35, s35, {TS}
    s_add_u32 s35, s35, {WS_KV:#x}
    s_waitcnt lgkmcnt(0)
    s_bitcmp0_b32 s5, 0
    s_cbranch_scc0 K1_v
    """)
    for sx in range(16):
        a(f"{m16} v[{KV}:{KV+3}], v[{RG+4*sx}:{RG+4*sx+3}], v[{X+4*sx}:{X+4*sx+3}], " + ("0" if sx == 0 else f"v[{KV}:{KV+3}]"))
    a(f"""
    v_and_b32 v8, 31, v5
    v_lshlrev_b32 v8, 4, v8
    v_lshl_add_u32 v8, v9, 9, v8
    v_lshl_add_u32 v8, v11, 3, v8
    s_branch K1_kvs
    """)
    a.label("K1_v")
    for sx in range(16):
        a(f"{m16} v[{KV}:{KV+3}], v[{X+4*sx}:{X+4*sx+3}], v[{RG+4*sx}:{RG+4*sx+3}], " + ("0" if sx == 0 else f"v[{KV}:{KV+3}]"))
    a(f"""
    s_and_b32 s36, s6, 1
    s_mul_i32 s36, s36, 544
    s_add_u32 s35, s35, s36
    s_add_u32 s35, s35, 1024
    v_mul_u32_u24 v8, 272, v9
    v_lshl_add_u32 v8, v11, 3, v8
    v_mov_b32 v{T+2}, 0x3f803f80
    v_mov_b32 v{T+3}, 0x3f803f80
    s_mov_b32 exec_lo, 0x00010001
    s_mov_b32 exec_hi, 0x00010001
    buffer_store_dwordx2 v[{T+2}:{T+3}], v8, s[20:23], s35 offen offset:256 sc1
    s_mov_b64 exec, -1
    v_lshl_add_u32 v8, v3, 4, v8
    """)
    a.label("K1_kvs")
    a(f"""
    v_cvt_pk_bf16_f32 v{T}, v{KV}, v{KV+1}
    v_cvt_pk_bf16_f32 v{T+1}, v{KV+2}, v{KV+3}
    buffer_store_dwordx2 v[{T}:{T+1}], v8, s[20:23], s35 offen sc1
    v_mov_b32 v7, s58
    v_lshlrev_b32 v8, 14, v2
    s_lshl_b32 s35, s2, {FLS}
    s_add_u32 s35, s35, {WS_FL:#x}
    """)
    a.label("K1_q")
    a("s_barrier")
    def rd(s, t):
        for half in range(2):
            d = RG + 16 * (s % 3) + 4 * t + 2 * half
            a(f"ds_read_b64_tr_b16 v[{d}:{d+1}], v{13+t} offset:{s*4096 + half*512}")
    for t in range(4): rd(0, t)
    for t in range(4): rd(1, t)
    for s in range(16):
        a(f"s_waitcnt lgkmcnt({8 if s < 15 else 0})")
        for t in range(4):
            d = RG + 16 * (s % 3) + 4 * t
            c = "0" if s == 0 else f"v[{ACC+4*t}:{ACC+4*t+3}]"
            a(f"{m16} v[{ACC+4*t}:{ACC+4*t+3}], v[{d}:{d+3}], v[{X+4*s}:{X+4*s+3}], {c}")
            if s + 2 < 16: rd(s + 2, t)
        if s == FST:
            a(f"""
            s_cmp_lg_u32 s66, s6
            s_cbranch_scc1 K1_nofl
            s_waitcnt vmcnt(0)
            s_mov_b64 exec, 0xff
            buffer_store_dword v7, v8, s[20:23], s35 offen sc1
            s_mov_b64 exec, -1
            """)
            a.label("K1_nofl")
    a(f"""
    s_lshl_b32 s35, s5, 10
    v_lshrrev_b32 v7, 3, v5
    v_lshlrev_b32 v7, 13, v7
    v_and_b32 v8, 7, v5
    v_lshl_add_u32 v7, v8, 4, v7
    v_lshl_add_u32 v7, v9, 9, v7
    v_lshl_add_u32 v7, v11, 7, v7
    """)
    for tp in range(2):
        for t in (2 * tp, 2 * tp + 1):
            for r in range(4): a(f"v_cvt_pk_bf16_f32 v{ACC+4*t+r}, 0, v{ACC+4*t+r}")
            for r in range(4): a(f"v_mul_f32 v{ACC+4*t+r}, {f2u(0.25 * 1.4426950408889634):#x}, v{ACC+4*t+r}")
            a(f"v_cvt_pk_bf16_f32 v{AF+2*t}, v{ACC+4*t}, v{ACC+4*t+1}")
            a(f"v_cvt_pk_bf16_f32 v{AF+2*t+1}, v{ACC+4*t+2}, v{ACC+4*t+3}")
        b = AF + 4 * tp
        a(f"v_permlane16_swap_b32 v{b}, v{b+2}")
        a(f"v_permlane16_swap_b32 v{b+1}, v{b+3}")
        a(f"buffer_store_dwordx4 v[{b}:{b+3}], v7, s[20:23], s35 offen offset:{256*tp}{SC}")
    a(f"""
    s_cmp_lg_u32 s66, s6
    s_cbranch_scc1 K1_nol
    v_and_b32 v8, 0x3ff, v7
    s_mov_b32 s36, 0x00ff00ff
    s_and_b32 s37, s5, 1
    s_lshl_b32 s37, s37, 3
    s_lshl_b32 exec_lo, s36, s37
    s_mov_b32 exec_hi, exec_lo
    ds_write_b128 v8, v[{AF}:{AF+3}] offset:{L_Q0}
    ds_write_b128 v8, v[{AF+4}:{AF+7}] offset:{L_Q0 + 256}
    s_mov_b64 exec, -1
    """)
    a.label("K1_nol")
    if ('leak' in dbg or 'amp' in dbg):
        a(f"""
        s_waitcnt vmcnt(0)
        s_memrealtime s[92:93]
        s_waitcnt lgkmcnt(0)
        s_cmp_ge_u32 s2, 64
        s_cbranch_scc1 K1_leak
        v_mov_b32 v40, s90
        v_mov_b32 v41, s92
        v_mov_b32 v42, s94
        v_mov_b32 v43, 0
        s_lshl_b32 s48, s2, 4
        s_add_u32 s48, s48, {WS_SEL:#x}
        s_mov_b64 exec, 1
        buffer_store_dwordx4 v[40:43], v43, s[20:23], s48 offen
        """)
        a.label("K1_leak")
    dstamp(a, 0, True, 200)
    a("s_branch K12_join")
    a.label("K1_loader")
    if 'noldprio' not in dbg: a("s_setprio 3")
    if 'nocodepf' not in dbg:
        a(f"""
        s_cmp_ge_u32 s2, 16
        s_cbranch_scc1 K1_nocp
        s_getpc_b64 s[60:61]
        """)
        a.label("K1_pc")
        a(f"""
        s_sub_u32 s60, s60, K1_pc-k1_kernel
        s_subb_u32 s61, s61, 0
        v_subrev_u32 v30, 256, v0
        v_lshlrev_b32 v30, 7, v30
        v_min_u32 v30, K_all_end-k1_kernel-4, v30
        global_load_dword v31, v30, s[60:61]
        """)
        a.label("K1_nocp")
    a(f"""
    s_sub_u32 s6, s6, 4
    v_lshrrev_b32 v7, 3, v2        ; row_in
    v_and_b32 v8, 7, v2            ; slot
    v_and_b32 v9, 2, v7
    v_xor_b32 v8, v8, v9
    v_xor_b32 v9, 4, v8
    s_lshl_b32 s35, s5, 7
    v_lshlrev_b32 v7, 10, v7
    v_add_u32 v7, s35, v7
    v_lshl_add_u32 v10, v8, 4, v7
    v_lshl_add_u32 v11, v9, 4, v7
    v_lshlrev_b32 v12, 4, v2       ; lane*16
    v_lshrrev_b32 v13, 1, v2
    v_lshlrev_b32 v13, 10, v13
    v_and_b32 v14, 1, v2
    v_lshl_add_u32 v13, v14, 4, v13
    s_lshl_b32 s65, s6, 14
    s_add_u32 s65, s65, {L_W}
    s_lshl_b32 s37, s6, 4
    s_lshl_b32 s38, s5, 3
    s_add_u32 s37, s37, s38
    v_and_b32 v15, 16, v2
    v_lshlrev_b32 v15, 3, v15
    v_xor_b32 v15, v15, v12
    s_lshl_b32 s39, s4, 2
    s_waitcnt lgkmcnt(0)
    """)
    a(EPOCH)
    srd(a, 12, 26, 27, 0x80000)
    a(f"""
    s_bitcmp0_b32 s5, 0
    s_cselect_b64 s[46:47], s[28:29], s[30:31]
    """)
    srd(a, 16, 46, 47, 0x4000)
    srd(a, 40, 44, 45, 0x80000)
    srd(a, 20, 32, 33, WS_SIZE)
    a(f"""
    s_cmp_lg_u32 s6, 0
    s_cbranch_scc1 K1_noz
    v_mov_b32 v32, 0
    v_mov_b32 v33, 0
    v_mov_b32 v34, 0
    v_mov_b32 v35, 0
    s_lshl_b32 s48, s2, 10
    s_add_u32 s48, s48, {WS_GU:#x}
    buffer_store_dwordx4 v[32:35], v12, s[20:23], s48 offen{SC}
    """)
    a.label("K1_noz")
    a(f"""
    s_cmp_lt_u32 s6, 2
    s_cbranch_scc1 K1_nowo
    s_lshl_b32 s46, s2, 1
    s_and_b32 s47, s6, 1
    s_add_u32 s46, s46, s47
    s_lshr_b32 s47, s46, 6
    s_lshl_b32 s47, s47, 16
    s_bfe_u32 s48, s46, 0x10002
    s_lshl_b32 s48, s48, 15        ; s * 32 rows
    s_add_u32 s47, s47, s48
    s_bfe_u32 s48, s46, 0x30003
    s_lshl_b32 s48, s48, 7         ; w * 128 B
    s_add_u32 s47, s47, s48
    s_and_b32 s48, s46, 3
    s_lshl_b32 s48, s48, 5         ; t * 32 B
    s_add_u32 s47, s47, s48
    s_lshl_b32 s48, s6, 10
    s_add_u32 s48, s48, {L_WOT - 2048}
    s_mov_b32 m0, s48
    v_add_u32 v17, s48, v17
    buffer_load_dwordx4 v13, s[40:43], s47 offen lds
    """)
    a.label("K1_nowo")
    a(f"""
    s_lshl_b32 s36, s6, 12
    s_lshl_b32 s38, s5, 11
    """)
    for i in range(4):
        a(f"""
        s_add_u32 s48, s36, {i*1024}
        s_add_u32 m0, s48, {L_KV}
        s_add_u32 s48, s48, s38
        s_and_b32 s48, s48, 0x3fff
        buffer_load_dwordx4 v15, s[16:19], s48 offen lds
        """)
    a("s_waitcnt vmcnt(0)")
    a("s_waitcnt lgkmcnt(0)")
    a("s_add_u32 s58, s58, 1")
    a("s_barrier")
    for i in range(16):
        a(f"""
        s_add_u32 s48, s39, {i}
        s_and_b32 s48, s48, 15
        s_lshl_b32 s49, s48, 10
        s_add_u32 m0, s65, s49
        s_add_u32 s48, s48, s37
        s_and_b32 s48, s48, 63
        s_lshl_b32 s48, s48, 13
        buffer_load_dwordx4 v{10 + (i & 1)}, s[12:15], s48 offen lds
        """)
        if i == 7:
            a(f"""
            s_cmp_lt_u32 s6, 2
            s_cbranch_scc1 K1_nowo2
            s_waitcnt vmcnt(8)
            ds_read_b64_tr_b16 v[32:33], v17
            ds_read_b64_tr_b16 v[34:35], v17 offset:128
            s_lshl_b32 s46, s46, 10
            s_add_u32 s46, s46, {WS_WOF:#x}
            s_waitcnt lgkmcnt(0)
            buffer_store_dwordx4 v[32:35], v12, s[20:23], s46 offen sc1
            """)
            a.label("K1_nowo2")
    a(f"""
    s_waitcnt vmcnt(0)
    s_barrier
    s_setprio 0
    """)
    a.label("K12_join")
```

```python
from gen import *
import gen as G

L_PART = 0x0; L_Q = 0x6000; L_MREF = 0x8400; L_OB = 0x5800; L_KEY = 0xAC00; L_FLG = 0xAD00; L_MX = 0xB000; L_HB = 0xB400
L_FW = 0xE000; L_TOTAL = 0xE000 + 8 * 7168
L_XS = L_PART; L_RED = L_PART + 0x1000; L_GB = L_PART + 0x2000
C_EXACT = 0.25 * 1.4426950408889634
OFFS = 96.0

def wave_sum(a, vs, ts):
    if isinstance(vs, int): vs, ts = [vs], [ts]
    for mod in ("quad_perm:[1,0,3,2]", "quad_perm:[2,3,0,1]", "row_half_mirror", "row_mirror"):
        for v in vs:
            a(f"v_add_f32_dpp v{v}, v{v}, v{v} {mod} row_mask:0xf bank_mask:0xf")
    for w in (16, 32):
        for v, t in zip(vs, ts): a(f"v_mov_b32 v{t}, v{v}")
        for v, t in zip(vs, ts): a(f"v_permlane{w}_swap_b32 v{t}, v{v}")
        for v, t in zip(vs, ts): a(f"v_add_f32 v{v}, v{v}, v{t}")

class VM:
    def __init__(self, a): self.a = a; self.q = []; self.done = -1
    def issue(self, tag): self.q.append(tag)
    def wait(self, tag):
        i = max(k for k, t in enumerate(self.q) if t == tag)
        if i <= self.done: return
        self.done = i
        self.a(f"s_waitcnt vmcnt({len(self.q) - 1 - i})")

def wave_max_u32(a, v, t):
    for mod in ("quad_perm:[1,0,3,2]", "quad_perm:[2,3,0,1]", "row_half_mirror", "row_mirror"):
        a(f"v_max_u32_dpp v{v}, v{v}, v{v} {mod} row_mask:0xf bank_mask:0xf")
    for w in (16, 32):
        a(f"""
        v_mov_b32 v{t}, v{v}
        v_permlane{w}_swap_b32 v{t}, v{v}
        v_max_u32 v{v}, v{v}, v{t}
        """)

LOG2E = 1.4426950408889634
def sigmoid(a, d, x, t):
    a(f"""
    v_mul_f32 v{t}, {f2u(-LOG2E):#x}, v{x}
    v_exp_f32 v{t}, v{t}
    v_add_f32 v{t}, 1.0, v{t}
    v_rcp_f32 v{d}, v{t}
    """)

def gen_p2(a, dbg='', prio=True):
    SC = ' sc1'
    OPT = dict(x.split('=') for x in dbg.split(',') if '=' in x)
    FLS = int(OPT.get('fls', 4))
    PFS = int(OPT.get('pfs', 0)); PFP = int(OPT.get('pfp', 1))
    TAILST = 'tailst' in dbg
    FS = 'ffnst' in dbg
    KREP = 'nokrep' not in dbg; GREP = 'nogrep' not in dbg
    def st(i, tail):
        if 'r0st' in dbg:
            if tail == 3: stamp(a, i)
        elif FS:
            if tail == 2: stamp(a, i)
        elif tail in (True, False) and bool(tail) == TAILST: stamp(a, i)
    K = 16; V = 48; X = [112, 128]; O = 144; CM = 160; SP = 176; Q = 184; OA = 188; WF = 204; BF = 236; S1 = 240
    vQA, vPW, vPR, vPL, vOW, vOR, vLM, vWL, vKL, vVL = 1, 2, 3, 4, 5, 6, 7, 8, 9, 10
    t0, t1, t2, t3, t4 = 11, 12, 13, 14, 15
    vFW, vFR, vFV, vWLs = 9, 13, 14, 15
    vFS, vPA, vPD = SP + 4, SP + 5, SP + 6
    if 'leak' in dbg or 'amp' in dbg: a('s_memrealtime s[90:91]')
    dstamp(a, 1, False, 240)
    a(f"""
    s_load_dwordx2 s[48:49], s[0:1], 96
    s_load_dwordx2 s[40:41], s[0:1], 0
    s_load_dwordx8 s[60:67], s[0:1], 48
    s_load_dwordx2 s[46:47], s[0:1], 80
    s_and_b32 s3, s2, 7
    s_lshr_b32 s4, s2, 3
    s_lshl_b32 s7, s3, 8
    s_lshl_b32 s5, s4, 3
    s_add_u32 s7, s7, s5           ; T0
    s_and_b32 s28, s4, 7           ; rot
    v_lshrrev_b32 v{t0}, 6, v0
    v_and_b32 v0, 63, v0
    v_readfirstlane_b32 s6, v{t0}
    s_mov_b32 s30, 0
    v_lshlrev_b32 v{vWL}, 4, v0
    s_mul_i32 s3, s6, {8*TS}
    s_add_u32 s3, s3, {WS_KV:#x}
    """)
    for t in range(8):
        a(f"""
        s_add_u32 s4, s28, {t}
        s_and_b32 s4, s4, 7
        s_mul_i32 s4, s4, {TS}
        s_add_u32 s{50+t}, s3, s4
        """)
    a.label("K2_restart")
    a(f"""
    s_add_u32 s44, s6, 4
    s_and_b32 s44, s44, 7
    s_add_u32 s3, s44, s28
    s_and_b32 s3, s3, 7
    s_andn2_b32 s45, s2, 0x38
    s_lshl_b32 s4, s3, 3
    s_or_b32 s45, s45, s4
    s_lshl_b32 s45, s45, 6
    s_lshr_b32 s4, s28, 1
    s_lshl_b32 s4, s4, 2
    s_add_u32 s45, s45, s4
    s_add_u32 s45, s45, {WS_FQ:#x}
    s_add_u32 s3, s3, s7
    s_lshl_b32 s32, s3, 10
    v_and_b32 v{t1}, 31, v0
    v_lshrrev_b32 v{t2}, 5, v0
    v_mul_u32_u24 v{vVL}, 272, v{t2}
    v_lshl_add_u32 v{vVL}, v{t1}, 4, v{vVL}
    v_cmp_lt_u32 vcc, 16, v{t1}
    v_bfrev_b32 v{t0}, 1
    v_add_u32 v{vQA}, {L_Q:#x}, v{vWL}
    v_cndmask_b32 v{vVL}, v{vVL}, v{t0}, vcc
    s_waitcnt lgkmcnt(0)
    """)
    srd(a, 8, 48, 49, WS_SIZE)
    vm = VM(a)
    def ldK(t):
        a(f"buffer_load_dwordx4 v[{K+4*t}:{K+4*t+3}], v{vWL}, s[8:11], s{50+t} offen{SC}"); vm.issue(f"K{t}")
    def ldV(t):
        for h in range(2):
            a(f"buffer_load_dwordx4 v[{V+8*t+4*h}:{V+8*t+4*h+3}], v{vVL}, s[8:11], s{50+t} offen offset:{1024 + 544*h}{SC}"); vm.issue(f"V{t}{h}")
    a(f"""
    s_lshl_b32 s3, s44, 10
    v_add_u32 v{t4}, s3, v{vQA}
    """)
    def late_setup(part):
        u0, u1, u2, u3 = S1, S1 + 1, S1 + 2, S1 + 3
        if part == 0:
            srd(a, 16, 40, 41, 0x200000)
            srd(a, 20, 46, 47, 0x200000)
            srd(a, 24, 60, 61, 0x400)
            a(f"""
            v_and_b32 v{u1}, 31, v0
            v_lshrrev_b32 v{u2}, 5, v0
            v_mul_u32_u24 v{vPW}, 80, v{u1}
            s_mul_i32 s3, s6, 2560
            v_add_u32 v{vPW}, s3, v{vPW}
            v_lshl_add_u32 v{SP+3}, v{u2}, 2, v{vPW}
            v_lshl_add_u32 v{vPW}, v{u2}, 4, v{vPW}
            v_lshrrev_b32 v{u0}, 4, v0     ; g
            s_lshr_b32 s3, s6, 1
            s_lshl_b32 s3, s3, 3
            s_and_b32 s4, s6, 1
            s_lshl_b32 s4, s4, 1
            s_add_u32 s3, s3, s4
            v_and_b32 v{u1}, 1, v{u0}
            v_lshl_add_u32 v{u1}, v{u1}, 2, v{u2}
            v_add_u32 v{u1}, s3, v{u1}     ; n = 8*(w>>1) + 2*(w&1) + (g>>1) + 4*(g&1)
            v_mul_u32_u24 v{vPL}, 80, v{u1}
            v_and_b32 v{u2}, 15, v0        ; d
            v_lshl_add_u32 v{vPR}, v{u2}, 2, v{vPL}
            v_and_b32 v{u3}, 7, v0
            v_mul_u32_u24 v{u3}, 2560, v{u3}
            v_add3_u32 v{vPL}, v{vPL}, v{u3}, 64
            s_lshl_b32 s31, s28, 16
            s_lshl_b32 s33, s6, 13
            s_add_u32 s33, s33, {WS_WOF:#x}
            """)
        elif part == 1:
            a(f"""
            v_and_b32 v{u3}, 7, v{u1}      ; token
            v_lshrrev_b32 v{u1}, 3, v{u1}  ; head_local
            v_mul_u32_u24 v{vOW}, 144, v{u3}
            v_lshl_add_u32 v{vOW}, v{u1}, 5, v{vOW}
            v_lshl_add_u32 v{vOW}, v{u2}, 1, v{vOW}
            v_add_u32 v{vOW}, {L_OB:#x}, v{vOW}
            v_and_b32 v{u3}, 7, v0
            v_mul_u32_u24 v{vOR}, 144, v{u3}
            v_lshl_add_u32 v{vOR}, v{u0}, 4, v{vOR}
            v_add_u32 v{vOR}, {L_OB:#x}, v{vOR}
            v_mov_b32 v{vLM}, 0
            v_lshlrev_b32 v{vFR}, 2, v{u3}
            v_add_u32 v{vFR}, {L_FLG:#x}, v{vFR}
            """)
        else:
            for r in range(0, 16, 2):
                a(f"v_pk_mov_b32 v[{OA+r}:{OA+r+1}], 0, 0")
            a(f"v_pk_mov_b32 v[{SP}:{SP+1}], 0, 0")
            a(f"v_mov_b32 v{SP+2}, 0xdddddddd")
    def rd_qcm():
        a(f"ds_read_b128 v[{Q}:{Q+3}], v{vQA}")
        for k in range(4):
            a(f"ds_read_b128 v[{CM+4*k}:{CM+4*k+3}], v{vQA} offset:{L_MREF - L_Q}")
        a(f"v_add_u32 v{vQA}, 1024, v{vQA}")
    mf = "v_mfma_f32_32x32x16_bf16"
    def M1(kt, xb):
        if 'nom1' in dbg: a("s_nop 1"); return
        a(f"{mf} v[{X[xb]}:{X[xb]+15}], v[{K+4*kt}:{K+4*kt+3}], v[{Q}:{Q+3}], v[{CM}:{CM+15}]")
    def E(xb, lo, hi):
        for r in range(lo, hi):
            if 'expnop' in dbg:
                a("v_nop"); a("v_nop")
                continue
            if 'noexp' in dbg:
                a(f"v_cvt_pk_bf16_f32 v{X[xb]+r}, 0, v{X[xb]+r}"); a(f"v_cvt_pk_bf16_f32 v{X[xb]+r}, 0, v{X[xb]+r}")
                continue
            a(f"v_exp_f32 v{X[xb]+r}, v{X[xb]+r}")
    def C2(h, xb):
        for k in range(4):
            a(f"v_cvt_pk_bf16_f32 v{SP+4*h+k}, v{X[xb]+8*h+2*k}, v{X[xb]+8*h+2*k+1}")
    def M3(h, kt):
        xb = kt & 1
        if 'nom3' in dbg: a("s_nop 2"); return
        a(f"v_smfmac_f32_32x32x32_bf16 v[{O}:{O+15}], v[{V+8*kt+4*h}:{V+8*kt+4*h+3}], v[{X[xb]+8*h}:{X[xb]+8*h+7}], v{SP+2}")
    def Ozero():
        a(f"v_mfma_f32_32x32x8bf16_1k v[{O}:{O+15}], v[{SP}:{SP+1}], v[{SP}:{SP+1}], 0")
    def part_write():
        a(f"""
        ds_write_b128 v{vPW}, v[{O}:{O+3}]
        ds_write_b128 v{vPW}, v[{O+4}:{O+7}] offset:32
        ds_write_b32 v{SP+3}, v{O+8} offset:64
        """)
    def s1_read():
        a(f"ds_read_b32 v{S1+8}, v{vPL}")
        for k in range(4):
            a(f"ds_read2st64_b32 v[{S1+2*k}:{S1+2*k+1}], v{vPR} offset0:{20*k} offset1:{20*k+10}")
    def s1_calc():
        dp = lambda mod: f"v_add_f32_dpp v{S1+8}, v{S1+8}, v{S1+8} {mod} row_mask:0xf bank_mask:0xf"
        a(f"""
        {dp("quad_perm:[1,0,3,2]")}
        v_pk_add_f32 v[{S1}:{S1+1}], v[{S1}:{S1+1}], v[{S1+2}:{S1+3}]
        v_pk_add_f32 v[{S1+4}:{S1+5}], v[{S1+4}:{S1+5}], v[{S1+6}:{S1+7}]
        {dp("quad_perm:[2,3,0,1]")}
        v_pk_add_f32 v[{S1}:{S1+1}], v[{S1}:{S1+1}], v[{S1+4}:{S1+5}]
        v_add_f32 v{S1}, v{S1}, v{S1+1}
        {dp("row_half_mirror")}
        v_rcp_f32 v{S1+1}, v{S1+8}
        v_maximum3_f32 v{vLM}, v{vLM}, v{S1+8}, abs(v{S1})
        v_mul_f32 v{S1}, v{S1}, v{S1+1}
        v_cvt_pk_bf16_f32 v{S1}, v{S1}, v{S1}
        ds_write_b16 v{vOW}, v{S1}
        """)
    def s2_read():
        for s in range(2):
            a(f"ds_read_b128 v[{BF+4*s}:{BF+4*s+3}], v{vOR} offset:{64*s}")
    def s2_mma(lo, hi):
        for u in range(lo, hi):
            s, t = u >> 2, u & 3
            a(f"v_mfma_f32_16x16x32_bf16 v[{OA+4*t}:{OA+4*t+3}], v[{WF+4*u}:{WF+4*u+3}], v[{BF+4*s}:{BF+4*s+3}], v[{OA+4*t}:{OA+4*t+3}]")
    def wf_load(lo, hi):
        if lo == 0:
            a("s_add_u32 s34, s33, s31")
            a("s_add_u32 s35, s34, 4096")
            a("s_add_u32 s31, s31, 0x10000")
            a("s_and_b32 s31, s31, 0x7ffff")
        for u in range(lo, hi):
            a(f"buffer_load_dwordx4 v[{WF+4*u}:{WF+4*u+3}], v{vWL}, s[8:11], s{34 + (u >> 2)} offen offset:{1024*(u&3)}{SC}")
            vm.issue("WF")
    def ffn_prefetch():
        a(f"""
        s_mov_b32 s39, s6
        s_cmp_eq_u32 s39, 1
        s_cselect_b64 s[36:37], s[64:65], s[62:63]
        s_cmp_eq_u32 s39, 2
        s_cselect_b64 s[36:37], s[66:67], s[36:37]
        """)
        srd(a, 12, 36, 37, 512 * 1792 * 2)
        a(f"""
        s_and_b32 s3, s2, 7
        s_lshr_b32 s4, s2, 3
        s_mul_i32 s5, s4, {16*3584}
        s_mul_i32 s36, s3, 448
        s_and_b32 s36, s36, 0xffffff80
        s_add_u32 s5, s5, s36
        s_lshl_b32 s36, s3, 7
        s_mul_i32 s37, s4, {56*1024}
        s_add_u32 s36, s36, s37
        v_lshrrev_b32 v{t0}, 2, v0
        v_mul_u32_u24 v{t0}, 3584, v{t0}
        v_and_b32 v{t1}, 3, v0
        v_lshl_add_u32 v{t0}, v{t1}, 7, v{t0}
        v_min_u32 v{t1}, 55, v0
        v_lshlrev_b32 v{t1}, 10, v{t1}
        s_cmp_eq_u32 s39, 2
        s_cselect_b32 s38, s36, s5
        s_cselect_b64 vcc, -1, 0
        v_cndmask_b32 v{vPA}, v{t0}, v{t1}, vcc
        s_lshl_b32 s39, s6, {PFS}
        s_add_u32 s39, s39, 1
        s_cmp_gt_u32 s6, 2
        s_cselect_b32 s39, 99, s39
        """)
    def ffn_setup():
        a(f"""
        s_and_b32 s3, s2, 7
        s_lshr_b32 s4, s2, 3
        s_and_b32 s5, s6, 1
        s_cmp_eq_u32 s5, 0
        s_cselect_b64 s[36:37], s[62:63], s[64:65]
        s_cmp_lt_u32 s2, 112
        s_cselect_b64 s[36:37], s[36:37], s[66:67]
        """)
        srd(a, 68, 36, 37, 512 * 1792 * 2)
        a(f"""
        s_mul_i32 s76, s3, 14
        s_add_u32 s76, s76, s4           ; fs
        s_lshl_b32 s77, s3, 2
        s_add_u32 s77, s77, s4
        s_sub_u32 s77, s77, 14           ; cb
        s_lshr_b32 s5, s6, 1
        s_mul_i32 s5, s5, {128*3584}
        s_lshl_b32 s36, s76, 5
        s_add_u32 s5, s5, s36
        s_mul_i32 s36, s6, {224*1024}
        s_lshl_b32 s37, s77, 5
        s_add_u32 s36, s36, s37
        s_cmp_lt_u32 s2, 112
        s_cselect_b32 s72, s5, s36
        s_movk_i32 s73, 1024
        s_cselect_b32 s73, 3584, s73
        s_cselect_b32 s75, 4, 7
        s_cmp_lt_u32 s2, 144
        s_cselect_b32 s75, s75, 0
        s_mul_i32 s74, s6, 7168
        s_add_u32 s74, s74, {L_FW:#x}
        v_lshrrev_b32 v{vFS}, 1, v0
        v_mul_lo_u32 v{vFS}, v{vFS}, s73
        v_and_b32 v{t1}, 1, v0
        v_lshl_add_u32 v{vFS}, v{t1}, 4, v{vFS}
        s_lshl_b32 s73, s73, 5
        s_mov_b32 s78, s74
        """)
    def ffn_stage():
        a(f"""
        s_cmp_lt_u32 s29, 4
        s_cbranch_scc1 K2_nost
        """)
        for e in range(2):
            a(f"""
            s_cmp_eq_u32 s75, 0
            s_cbranch_scc1 K2_nost
            s_mov_b32 m0, s78
            s_sub_u32 s75, s75, 1
            buffer_load_dwordx4 v{vFS}, s[68:71], s72 offen lds
            s_add_u32 s78, s78, 1024
            s_add_u32 s72, s72, s73
            """)
        a.label("K2_nost")
    def ffn_issue():
        a(f"""
        s_cmp_lg_u32 s29, s39
        s_cbranch_scc1 K2_nopf
        buffer_load_dword v{vPD}, v{vPA}, s[12:15], s38 offen
        """)
        a.label("K2_nopf")
    def setprio(p):
        if prio: a(f"s_setprio {p}")
    def mref_mma(q, d):
        a(f"{mf} v[{d}:{d+15}], v[{K}:{K+3}], v[{q}:{q+3}], 0")
        a(f"{mf} v[{d+16}:{d+31}], v[{K+4}:{K+7}], v[{q}:{q+3}], 0")
    def mref_max(S):
        a(f"v_max3_f32 v{t0}, v{S}, v{S+1}, v{S+2}")
        for r in range(3, 31, 2):
            a(f"v_max3_f32 v{t0}, v{t0}, v{S+r}, v{S+r+1}")
        a(f"""
        v_max_f32 v{t0}, v{t0}, v{S+31}
        v_mov_b32 v{t1}, v{t0}
        v_permlane32_swap_b32 v{t1}, v{t0}
        v_max_f32 v{t0}, v{t0}, v{t1}
        """)
        for r in range(4): a(f"v_sub_f32 v{S+r}, {f2u(-OFFS):#x}, v{t0}")
        a(f"ds_write_b128 v{t4}, v[{S}:{S+3}] offset:{L_MREF - L_Q}")
    def kv_first():
        ldK(0); ldK(1); ldV(0); ldK(2); ldV(1)
    for p in range(3): late_setup(p)
    ffn_prefetch(); ffn_setup()
    a(f"""
    s_lshl_b32 s3, s6, 2
    s_add_u32 s3, s3, {L_FLG:#x}
    v_mov_b32 v{vFW}, s3
    ds_write2_b32 v{vFW}, v{SP}, v{SP} offset0:0 offset1:8
    s_movk_i32 s59, {L_Q + 2048:#x}
    s_cmp_lg_u32 s30, 0
    s_cbranch_scc1 K2_safe
    s_cmp_eq_u32 s6, 4
    s_cbranch_scc1 K2_poller
    v_mov_b32 v{t0}, s58
    s_lshl_b32 s3, s2, 6
    s_lshl_b32 s4, s6, 2
    s_add_u32 s3, s3, s4
    s_add_u32 s3, s3, {WS_FQ:#x}
    s_waitcnt vmcnt(0)
    s_mov_b64 exec, 1
    buffer_store_dword v{t0}, v{SP}, s[8:11], s3 offen sc1
    s_mov_b64 exec, -1
    s_waitcnt lgkmcnt(0)
    s_barrier
    """)
    st(1, False)
    kv_first()
    a("s_branch K2_go")
    a.label("K2_poller")
    PA, PB = X[0], X[0] + 8
    a(f"""
    v_lshlrev_b32 v{t1}, {FLS}, v0
    s_and_b32 s3, s2, 7
    s_lshl_b32 s3, s3, 14
    s_add_u32 s3, s3, {WS_FL:#x}
    s_add_u32 s4, s3, {64 << FLS}
    s_add_u32 s5, s3, {128 << FLS}
    s_add_u32 s34, s3, {192 << FLS}
    s_mov_b32 s36, 0
    """)
    def fissue(b):
        for k, sr in enumerate(("s3", "s4", "s5", "s34")):
            a(f"buffer_load_dword v{b+k}, v{t1}, s[8:11], {sr} offen sc1")
    def fchk(b):
        for r in range(4): a(f"v_xor_b32 v{b+r}, s58, v{b+r}")
        a(f"""
        v_or3_b32 v{b}, v{b}, v{b+1}, v{b+2}
        v_or_b32 v{b}, v{b}, v{b+3}
        v_cmp_ne_u32 vcc, 0, v{b}
        s_cbranch_vccz K2_sync0
        """)
    fissue(PA)
    a("s_sleep 3")
    a.label("K2_fl")
    fissue(PB); a("s_waitcnt vmcnt(4)"); fchk(PA)
    fissue(PA); a("s_waitcnt vmcnt(4)"); fchk(PB)
    a(f"""
    s_add_u32 s36, s36, 1
    s_cmp_lt_u32 s36, 0x40000
    s_cbranch_scc1 K2_fl
    """)
    a.label("K2_sync0")
    a(f"""
    s_cmp_lg_u32 s2, 0
    s_cbranch_scc1 K2_sync1
    v_mov_b32 v{t0}, s58
    s_mov_b32 s3, {WS_EP:#x}
    s_mov_b64 exec, 1
    buffer_store_dword v{t0}, v{SP}, s[8:11], s3 offen sc1
    s_mov_b64 exec, -1
    """)
    a.label("K2_sync1")
    vm.q = []; vm.done = -1
    ldK(0); ldK(1)
    a("s_waitcnt lgkmcnt(0)")
    a("s_barrier")
    st(1, False)
    a(f"ds_read_b128 v[{Q}:{Q+3}], v{vQA}")
    ldV(0); ldK(2); ldV(1)
    a("s_waitcnt vmcnt(5) lgkmcnt(0)")
    mref_mma(Q, X[0]); mref_max(X[0])
    a("s_branch K2_go")
    a.label("K2_safe")
    S = X[0]
    a(f"""
    v_and_b32 v{t0}, 31, v0
    v_lshlrev_b32 v{S1+4}, 2, v{t0}
    v_add_u32 v{S1+4}, {L_MX:#x}, v{S1+4}
    s_lshl_b32 s3, s44, 7
    v_add_u32 v{S1+5}, s3, v{S1+4}
    v_mov_b32 v{t0}, 0xff800000
    ds_write_b32 v{S1+5}, v{t0}
    s_waitcnt vmcnt(0) lgkmcnt(0)
    s_barrier
    v_mov_b32 v{t1}, v{vQA}
    s_mov_b32 s29, 0
    """)
    a.label("K2_safe_loop")
    a(f"""
    ds_read_b128 v[{BF}:{BF+3}], v{t1}
    v_mov_b32 v{t0}, 0xff800000
    s_waitcnt lgkmcnt(0)
    """)
    for t in range(8):
        a(f"v_mfma_f32_32x32x16_bf16 v[{S}:{S+15}], v[{K+4*t}:{K+4*t+3}], v[{BF}:{BF+3}], 0")
        for r in range(0, 16, 2):
            a(f"v_max3_f32 v{t0}, v{t0}, v{S+r}, v{S+r+1}")
    a(f"""
    ds_max_f32 v{S1+4}, v{t0}
    v_add_u32 v{t1}, 1024, v{t1}
    v_add_u32 v{S1+4}, 128, v{S1+4}
    s_add_u32 s29, s29, 1
    s_cmp_lt_u32 s29, 8
    s_cbranch_scc1 K2_safe_loop
    s_waitcnt lgkmcnt(0)
    s_barrier
    ds_read_b32 v{t0}, v{S1+5}
    s_waitcnt lgkmcnt(0)
    """)
    for r in range(4): a(f"v_sub_f32 v{BF+r}, 0, v{t0}")
    a(f"ds_write_b128 v{t4}, v[{BF}:{BF+3}] offset:{L_MREF - L_Q}")
    a.label("K2_go")
    a("s_waitcnt lgkmcnt(0)")
    a("s_barrier")
    st(2, False)
    rd_qcm()
    vm.wait("K0")
    a("s_waitcnt lgkmcnt(0)")
    M1(0, 0)
    a("s_mov_b32 s29, 1")
    setprio(3)
    ldK(3); ldV(2)
    st(3, False)
    if 'leak' in dbg or 'amp' in dbg: a('s_memrealtime s[94:95]'); a('s_waitcnt lgkmcnt(0)')
    def tile(i, hook):
        xb = i & 1; xn = xb ^ 1
        hook(i, 'a')
        E(xb, 0, 2)
        hook(i, 'm3b')
        E(xb, 2, 5)
        hook(i, 'm1')
        M1((i + 1) & 7, xn)
        hook(i, 0)
        if i == 0:
            E(xb, 5, 12)
            hook(i, 1)
            Ozero()
            E(xb, 12, 16)
            M3(0, i)
            hook(i, 2)
        else:
            E(xb, 5, 8)
            hook(i, 'e1')
            E(xb, 8, 10)
            hook(i, 1)
            M3(0, i)
            hook(i, 2)
            E(xb, 10, 13)
            hook(i, 'e2')
            E(xb, 13, 15)
            hook(i, 'e3')
            E(xb, 15, 16)
    def hook0(i, pos):
        if pos == 'a' and i in (0, 2, 4, 6): st(1 + i // 2, 3)
        if pos == 'a' and i in (3, 5, 7): setprio({3: 2, 5: 1, 7: 1}[i])
        if pos == 'm3b' and i > 0:
            vm.wait(f"V{i-1}1"); M3(1, i - 1)
        if pos == 'm1':
            if i < 7: vm.wait(f"K{i+1}")
            else: a("s_waitcnt lgkmcnt(0)")
        if pos == 0:
            if i + 4 <= 7: ldK(i + 4)
            if i + 3 <= 7: ldV(i + 3)
            if i == 6: wf_load(0, 4)
            if i == 7: wf_load(4, 8)
        QT = int(OPT.get('qt', 1))
        if pos == 'e1' and i == QT:
            a(f"buffer_load_dword v{t0}, v{SP}, s[8:11], s45 offen sc1"); vm.issue("FQ")
        if pos == 'e1' and i == QT + 1:
            vm.wait("FQ")
            a(f"v_cmp_ne_u32 vcc, s58, v{t0}")
            a("s_cbranch_vccnz K2_qspin")
            a.label("K2_qback")
            a(f"buffer_load_dwordx4 v[{BF}:{BF+3}], v{vWL}, s[8:11], s32 offen sc1"); vm.issue("Q")
        if pos == 'e2' and i == 4:
            vm.wait("Q")
            a(f"ds_write_b128 v{t4}, v[{BF}:{BF+3}]")
            mref_mma(BF, WF)
        if pos == 'e1' and i == 5:
            a("s_cmp_lg_u32 s30, 0")
            a("s_cbranch_scc1 K2_keepm")
            mref_max(WF)
            a.label("K2_keepm")
        if pos == 1:
            if i == 6:
                a("s_waitcnt lgkmcnt(0)"); a("s_barrier"); rd_qcm()
            vm.wait(f"V{i}0")
        if pos == 2 and i == 7:
            vm.wait("V71")
    for i in range(8): tile(i, hook0)
    st(5, 3)
    a.raw(".p2align 3")
    a.label("K2_round")
    spins = []
    def poll(off):
        a(f"ds_read_b32 v{vFV}, v{vFR} offset:{off}")
    def check(off):
        k = len(spins); spins.append(off)
        a(f"""
        s_waitcnt lgkmcnt(0)
        v_cmp_gt_u32 vcc, s59, v{vFV}
        s_cbranch_vccnz K2_spin{k}
        """)
        a.label(f"K2_back{k}")
    PR = dict(x.split('=') for x in dbg.split(',') if '=' in x).get('pr', 'c')
    def hook(i, pos):
        if pos == 'm3b': M3(1, (i - 1) & 7)
        if pos == 'm1' and i == 7: a("s_waitcnt lgkmcnt(0)")
        if pos == 1 and i == 6: rd_qcm()
        if 'nohook' in dbg: return
        if 'bar' in dbg.split(','):
            if pos == 'a' and i in (0, 6, 7): setprio({6: 2, 7: 1, 0: 0}[i])
            if i == 0 and pos == 1: part_write()
            if i == 1 and pos == 0:
                a("s_waitcnt lgkmcnt(0)"); a("s_barrier"); setprio(2); s1_read()
            if i == 2 and pos == 0:
                a("s_waitcnt lgkmcnt(0)"); s1_calc(); setprio(1)
            if i == 3 and pos == 0: setprio(0)
            if i == 4 and pos == 0:
                a("s_waitcnt vmcnt(0) lgkmcnt(0)"); a("s_barrier"); setprio(3); s2_read()
            seq = [(4, 'e3'), (5, 'e1'), (5, 'e2'), (5, 'e3'), (6, 'e1'), (6, 'e2'), (6, 'e3'), (7, 'e1')]
        else:
            ca = int(OPT.get('ca', 2)); cb = int(OPT.get('cb', 5)); PT = OPT.get('pt', '10110321')
            slots = [(t, p) for t in range(1, 8) for p in (('a', 'e1', 'e2', 'e3') if cb >= 6 else ('e1', 'e2', 'e3'))]
            if i == 0 and pos == 1:
                part_write(); a(f"ds_write_b32 v{vFW}, v{vQA}")
            if i == ca and pos == 0: poll(0)
            if i == ca and pos == 2: check(0); s1_read()
            if i == ca + 1 and pos == 0:
                a("s_waitcnt lgkmcnt(0)"); s1_calc(); a(f"ds_write_b32 v{vFW}, v{vQA} offset:32")
            if i == cb - 1 and pos == 2: poll(32)
            if i == cb and pos == 'm1':
                check(32); s2_read(); a("s_waitcnt vmcnt(0)")
            if len(PT) == 8: PT = "".join(ch * 2 for ch in PT)
            for hpos, k in (('a', 2 * i), (2, 2 * i + 1)):
                if pos == hpos and PT[k] != PT[k - 1]: setprio(int(PT[k]))
            av = [x for x in slots if x > (cb, 'e1')]
            if OPT.get('sp', '0') == '1' and len(av) >= 12: av = [x for x in av if x[1] != 'e3']
            seq = av[:8]
            while len(seq) < 8: seq = sorted(seq + [seq[len(seq) % len(av)]])
        for u in [k for k, x in enumerate(seq) if x == (i, pos)]:
            if u == 0: a("s_waitcnt lgkmcnt(0)")
            s2_mma(u, u + 1)
            if 'nowf' not in dbg: wf_load(u, u + 1)
            if u == 7 and 'nopf' not in dbg and PFP == 1: ffn_issue(); ffn_stage()
    for i in range(8): tile(i, hook)
    if 'rndst' in dbg:
        a(f"""
        s_memtime s[82:83]
        s_memrealtime s[100:101]
        s_waitcnt lgkmcnt(0)
        s_lshl_b32 s84, s2, 3
        s_add_u32 s84, s84, s6
        s_lshl_b32 s84, s84, 3
        s_add_u32 s84, s84, s29
        s_lshl_b32 s84, s84, 3
        s_add_u32 s84, s84, {WS_STAMP + 0x40000:#x}
        s_mov_b64 exec, 1
        v_mov_b32 v{S1+8}, s82
        v_mov_b32 v{S1+9}, s100
        v_mov_b32 v{S1+10}, 0
        buffer_store_dwordx2 v[{S1+8}:{S1+9}], v{S1+10}, s[8:11], s84 offen
        s_mov_b64 exec, -1
        """)
    a(f"""
    s_addk_i32 s59, 1024
    s_add_u32 s29, s29, 1
    s_cmp_lt_u32 s29, 8
    s_cbranch_scc1 K2_round
    """)
    st(4, False); st(0, True)
    M3(1, 7)
    XR = CM; WR = CM + 4; HV = X[0]; HN = X[0] + 8; PK = X[1]; ST = X[1] + 8
    a(f"""
    s_add_u32 s3, s7, s6
    s_lshl_b32 s4, s3, 10
    buffer_load_dwordx4 v[{XR}:{XR+3}], v{vWL}, s[16:19], s4 offen
    buffer_load_dwordx4 v[{WR}:{WR+3}], v{vWL}, s[24:27], 0 offen
    v_and_b32 v{t0}, 7, v0
    v_mul_u32_u24 v{t0}, 1040, v{t0}
    v_lshrrev_b32 v{t1}, 4, v0
    v_lshl_add_u32 v{t0}, v{t1}, 3, v{t0}
    s_lshl_b32 s5, s6, 7
    s_add_u32 s5, s5, {L_HB:#x}
    v_add_u32 v{t0}, s5, v{t0}
    s_mul_i32 s5, s6, 1040
    s_add_u32 s5, s5, {L_HB:#x}
    v_add_u32 v{t1}, s5, v{vWL}
    s_lshl_b32 s35, s6, 2
    s_add_u32 s35, s35, {L_KEY:#x}
    v_mov_b32 v{t4}, s35
    v_and_b32 v{t3}, 7, v0
    v_lshlrev_b32 v{t3}, 2, v{t3}
    v_add_u32 v{t3}, {L_KEY:#x}, v{t3}
    """)
    part_write()
    a("s_waitcnt lgkmcnt(0)"); a("s_barrier"); st(1, True); s1_read()
    a("s_waitcnt lgkmcnt(0)"); s1_calc()
    a(f"""
    v_mov_b32 v{t2}, {f2u(2.0**124):#x}
    v_cmp_nlt_f32 vcc, v{vLM}, v{t2}
    s_cmp_lg_u64 vcc, 0
    s_cselect_b32 s5, 1, 0
    v_mov_b32 v{t2}, s5
    ds_write_b32 v{t4}, v{t2} offset:32
    """)
    a("s_waitcnt vmcnt(2) lgkmcnt(0)"); a("s_barrier"); st(2, True); s2_read()
    a(f"ds_read_b32 v{t2}, v{t3} offset:32")
    a("s_waitcnt lgkmcnt(1)"); s2_mma(0, 8)
    a(f"""
    s_waitcnt lgkmcnt(0)
    v_cmp_ne_u32 vcc, 0, v{t2}
    s_cmp_eq_u64 vcc, 0
    s_cbranch_scc1 K2_good
    s_cmp_lg_u32 s30, 0
    s_cbranch_scc1 K2_good
    s_mov_b32 s30, 1
    s_waitcnt vmcnt(0)
    s_setprio 0
    s_branch K2_restart
    """)
    a.label("K2_good")
    for t in range(4):
        a(f"v_cvt_pk_bf16_f32 v{S1+2*t}, v{OA+4*t}, v{OA+4*t+1}")
        a(f"v_cvt_pk_bf16_f32 v{S1+2*t+1}, v{OA+4*t+2}, v{OA+4*t+3}")
        a(f"ds_write_b64 v{t0}, v[{S1+2*t}:{S1+2*t+1}] offset:{32*t}")
    a("s_waitcnt vmcnt(0)")
    for r in range(4):
        a(f"v_lshlrev_b32 v{HV+2*r}, 16, v{XR+r}")
        a(f"v_and_b32 v{HV+2*r+1}, 0xffff0000, v{XR+r}")
        a(f"v_lshlrev_b32 v{WF+2*r}, 16, v{WR+r}")
        a(f"v_and_b32 v{WF+2*r+1}, 0xffff0000, v{WR+r}")
    a(f"""
    s_waitcnt lgkmcnt(0)
    s_barrier
    """)
    st(3, True)
    a(f"""
    ds_read_b128 v[{BF}:{BF+3}], v{t1}
    s_waitcnt lgkmcnt(0)
    """)
    for r in range(4):
        a(f"v_lshlrev_b32 v{HN+2*r}, 16, v{BF+r}")
        a(f"v_and_b32 v{HN+2*r+1}, 0xffff0000, v{BF+r}")
    P2 = lambda b, r: f"v[{b+r}:{b+r+1}]"
    for r in range(0, 8, 2): a(f"v_pk_add_f32 {P2(HV,r)}, {P2(HV,r)}, {P2(HN,r)}")
    for r in range(8): a(f"v_cvt_pk_bf16_f32 v{HV+r}, 0, v{HV+r}")
    SA, SB = S1, S1 + 2
    a(f"v_pk_add_f32 {P2(SA,0)}, {P2(HV,0)}, {P2(HV,2)}")
    a(f"v_pk_mul_f32 {P2(SB,0)}, {P2(HV,0)}, {P2(HV,0)}")
    a(f"v_pk_add_f32 {P2(SA,4)}, {P2(HV,4)}, {P2(HV,6)}")
    a(f"v_pk_fma_f32 {P2(SB,0)}, {P2(HV,2)}, {P2(HV,2)}, {P2(SB,0)}")
    a(f"v_pk_add_f32 {P2(SA,0)}, {P2(SA,0)}, {P2(SA,4)}")
    a(f"v_pk_fma_f32 {P2(SB,0)}, {P2(HV,4)}, {P2(HV,4)}, {P2(SB,0)}")
    a(f"v_add_f32 v{t0}, v{SA}, v{SA+1}")
    a(f"v_pk_fma_f32 {P2(SB,0)}, {P2(HV,6)}, {P2(HV,6)}, {P2(SB,0)}")
    a(f"v_add_f32 v{t2}, v{SB}, v{SB+1}")
    wave_sum(a, [t0, t2], [ST, ST + 1])
    ln_scalars(a, t0, t2, ST, ST + 2, ST + 1, ST + 3)
    st(4, True)
    for r in range(0, 8, 2): a(f"v_pk_add_f32 {P2(HN,r)}, {P2(HV,r)}, {P2(ST,0)} op_sel_hi:[1,0] neg_lo:[0,1] neg_hi:[0,1]")
    for r in range(8): a(f"v_cvt_pk_bf16_f32 v{HN+r}, 0, v{HN+r}")
    for r in range(0, 8, 2): a(f"v_pk_mul_f32 {P2(HN,r)}, {P2(HN,r)}, {P2(ST,2)} op_sel_hi:[1,0]")
    for r in range(8): a(f"v_cvt_pk_bf16_f32 v{HN+r}, 0, v{HN+r}")
    a(f"v_pk_mul_f32 {P2(SA,0)}, {P2(HN,0)}, {P2(WF,0)}")
    for r in range(2, 8, 2): a(f"v_pk_fma_f32 {P2(SA,0)}, {P2(HN,r)}, {P2(WF,r)}, {P2(SA,0)}")
    a(f"v_add_f32 v{t2}, v{SA}, v{SA+1}")
    fill = [f"v_pk_add_f32 {P2(WF+8,r)}, {P2(HV,r)}, {P2(HN,r)}" for r in range(0, 8, 2)]
    fill += [f"v_cvt_pk_bf16_f32 v{PK+4+r}, v{HV+2*r}, v{HV+2*r+1}" for r in range(4)]
    fill += [f"v_cvt_pk_bf16_f32 v{ST+4+r}, v{HN+2*r}, v{HN+2*r+1}" for r in range(4)]
    for mod in ("quad_perm:[1,0,3,2]", "quad_perm:[2,3,0,1]", "row_half_mirror", "row_mirror"):
        a(fill.pop(0)); a(fill.pop(0))
        a(f"v_add_f32_dpp v{t2}, v{t2}, v{t2} {mod} row_mask:0xf bank_mask:0xf")
    for w in (16, 32):
        a(f"v_mov_b32 v{t0}, v{t2}")
        a(fill.pop(0)); a(fill.pop(0))
        a(f"v_permlane{w}_swap_b32 v{t0}, v{t2}")
        a(f"v_add_f32 v{t2}, v{t2}, v{t0}")
    if 'leak' in dbg:
        a(f"""
        s_cmp_lg_u32 s3, 0
        s_cbranch_scc1 K2_leak
        s_memrealtime s[92:93]
        v_mov_b32 v{S1+4}, 0
        s_mov_b32 s5, {WS_SEL:#x}
        buffer_load_dwordx4 v[{S1}:{S1+3}], v{S1+4}, s[8:11], s5 offen
        s_waitcnt vmcnt(0) lgkmcnt(0)
        s_mov_b64 exec, 1
        v_add_f32 v{WF+8}, {f2u(64.0):#x}, v{WF+8}
        v_sub_u32 v{WF+9}, v{S1+2}, v{S1}
        v_sub_u32 v{WF+10}, v{S1+1}, v{S1}
        v_sub_u32 v{WF+11}, s90, v{S1}
        v_sub_u32 v{WF+12}, s94, v{S1}
        v_sub_u32 v{WF+13}, s92, v{S1}
        """)
        for r in range(9, 14):
            a(f"v_cvt_f32_u32 v{WF+r}, v{WF+r}")
            a(f"v_mul_f32 v{WF+r}, {f2u(0.005):#x}, v{WF+r}")
            a(f"v_min_f32 v{WF+r}, {f2u(20.0):#x}, v{WF+r}")
        a("s_mov_b64 exec, -1")
        a.label("K2_leak")
    a(f"""
    v_cvt_pk_bf16_f32 v{t2}, 0, v{t2}
    v_ashrrev_i32 v{t0}, 31, v{t2}
    v_or_b32 v{t0}, 0x80000000, v{t0}
    v_xor_b32 v{t2}, v{t2}, v{t0}
    v_and_b32 v{t2}, 0xffff0000, v{t2}
    s_sub_u32 s5, 0xffff, s3
    v_or_b32 v{t2}, s5, v{t2}      ; key
    ds_write_b32 v{t4}, v{t2}
    """)
    for r in range(4): a(f"v_cvt_pk_bf16_f32 v{PK+r}, v{WF+8+2*r}, v{WF+8+2*r+1}")
    a(f"""
    buffer_store_dwordx4 v[{PK}:{PK+3}], v{vWL}, s[20:23], s4 offen sc1
    """)
    a(f"""
    s_waitcnt lgkmcnt(0)
    s_barrier
    ds_read_b32 v{t1}, v{t3}
    s_waitcnt lgkmcnt(0)
    v_cmp_gt_u32 vcc, v{t1}, v{t2}
    v_cmp_eq_u32 s[36:37], v{t1}, v{t2}
    s_and_b32 s38, vcc_lo, 0xff
    s_bcnt1_i32_b32 s38, s38       ; rank
    """)
    st(5, False); st(5, True); st(0, 2); st(1, 2); st(2, 2); st(3, 2); st(4, 2); st(5, 2)
    a(f"""
    s_cmp_gt_u32 s38, 1
    s_cbranch_scc1 K2_pub0
    s_add_u32 s5, s4, {WS_H:#x}
    buffer_store_dwordx4 v[{PK+4}:{PK+7}], v{vWL}, s[8:11], s5 offen sc1
    s_add_u32 s5, s4, {WS_HN:#x}
    buffer_store_dwordx4 v[{ST+4}:{ST+7}], v{vWL}, s[8:11], s5 offen sc1
    v_cndmask_b32 v{ST+1}, v{t1}, 0, s[36:37]
    v_mov_b32 v{ST}, v{t2}
    s_lshl_b32 s5, s2, {G.KS_LOG}
    s_add_u32 s5, s5, {WS_KEY:#x}
    v_lshlrev_b32 v{t0}, 14, v0
    """)
    for mod in ("quad_perm:[1,0,3,2]", "quad_perm:[2,3,0,1]", "row_half_mirror"):
        a(f"v_max_u32_dpp v{ST+1}, v{ST+1}, v{ST+1} {mod} row_mask:0xf bank_mask:0xf")
    a("s_waitcnt vmcnt(0)")
    a.label("K2_pub0")
    a(f"""
    s_barrier
    s_cmp_lg_u32 s38, 0
    s_cbranch_scc1 K2_pub
    s_mov_b64 exec, {0xff if KREP else 1}
    buffer_store_dwordx2 v[{ST}:{ST+1}], v{t0}, s[8:11], s5 offen sc1
    s_mov_b64 exec, -1
    """)
    a.label("K2_pub")
    if 'amp' in dbg: a('s_memrealtime s[96:97]'); a('s_waitcnt lgkmcnt(0)')
    st(1, 2)
    def fin():
        if G.STAMP: a("s_waitcnt vmcnt(0)")
        stamp(a, 6)
        if G.STAMP: a("s_mov_b32 s91, s30")
        stamp_out(a, 1, 8, "s6", WF)
        a("s_endpgm")
    a(f"""
    s_cmp_ge_u32 s2, 144
    s_cbranch_scc1 K2_fin
    """)
    AFR = V
    KY = K; Y = K + 8; BX = V + 32; AC = K + 16
    a(f"""
    s_setprio 0
    v_bfe_u32 v{t0}, v0, 2, 2
    v_lshrrev_b32 v{t4}, 4, v0           ; g
    v_lshl_add_u32 v{t0}, v{t4}, 3, v{t0}
    v_lshlrev_b32 v{t0}, 5, v{t0}
    v_and_b32 v{t1}, 3, v0
    v_lshl_add_u32 v{t0}, v{t1}, 3, v{t0}
    v_add_u32 v{t0}, s74, v{t0}
    """)
    for sx in range(7):
        for half in range(2):
            d = AFR + 4 * sx + 2 * half
            a(f"ds_read_b64_tr_b16 v[{d}:{d+1}], v{t0} offset:{sx*1024 + half*128}")
    a(f"""
    v_and_b32 v{t3}, 1, v0
    v_lshlrev_b32 v{vPW}, 6, v{t3}
    v_lshl_add_u32 v{vPW}, v{t4}, 4, v{vPW}
    s_lshl_b32 s5, s6, 7
    s_add_u32 s5, s5, {L_RED:#x}
    v_add_u32 v{vPW}, s5, v{vPW}
    v_and_b32 v{vPR}, 31, v0
    v_lshlrev_b32 v{vPR}, 2, v{vPR}      ; (lane&31)*4
    v_lshrrev_b32 v{vOR}, 5, v0
    v_lshl_add_u32 v{vOR}, v{vOR}, 14, v{vPR}
    s_cmp_lg_u32 s6, 0
    s_cbranch_scc1 K2_nokey
    v_lshlrev_b32 v{t1}, {G.KS_LOG}, v0
    s_and_b32 s5, s2, {7 if KREP else 0}
    s_lshl_b32 s5, s5, 14
    s_add_u32 s5, s5, {WS_KEY:#x}
    s_add_u32 s79, s5, {64 << G.KS_LOG}
    s_add_u32 s80, s5, {128 << G.KS_LOG}
    s_add_u32 s81, s5, {192 << G.KS_LOG}
    s_mov_b32 s36, 0
    """)
    KZ = V + 60 - 8 * 0
    def poll_loop(name, issue, nld):
        K2R = X[0]
        def chk(b):
            a(f"""
            v_min3_u32 v{Y}, v{b}, v{b+1}, v{b+2}
            v_min3_u32 v{Y+1}, v{b+3}, v{b+4}, v{b+5}
            v_min3_u32 v{Y}, v{Y}, v{b+6}, v{b+7}
            v_min_u32 v{Y}, v{Y}, v{Y+1}
            v_cmp_eq_u32 vcc, 0, v{Y}
            """)
        sl = OPT.get('psl', 3)
        issue(KY)
        a(f"s_sleep {sl}")
        a.label(f"{name}_l")
        issue(K2R)
        a(f"s_waitcnt vmcnt({nld})")
        chk(KY)
        a(f"s_cbranch_vccz {name}_ok")
        issue(KY)
        a(f"s_waitcnt vmcnt({nld})")
        chk(K2R)
        a(f"""
        s_cbranch_vccz {name}_ok2
        s_add_u32 s36, s36, 1
        s_cmp_lt_u32 s36, 0x40000
        s_cbranch_scc1 {name}_l
        """)
        a.label(f"{name}_ok2")
        for r in range(0, 8, 2): a(f"v_pk_mov_b32 v[{KY+r}:{KY+r+1}], v[{K2R+r}:{K2R+r+1}], v[{K2R+r}:{K2R+r+1}] op_sel:[0,1]")
        a.label(f"{name}_ok")
    def kissue(b):
        for k, sr in enumerate(("s5", "s79", "s80", "s81")):
            a(f"buffer_load_dwordx2 v[{b+2*k}:{b+2*k+1}], v{t1}, s[8:11], {sr} offen sc1")
    poll_loop("K2_kp", kissue, 4)
    a.label("K2_kok")
    st(2, 2)
    if FS: a("s_mov_b32 s30, s36")
    B1, B2 = Y + 4, Y + 5
    a(f"""
    v_max_u32 v{B1}, v{KY}, v{KY+2}
    v_min_u32 v{B2}, v{KY}, v{KY+2}
    v_max3_u32 v{B2}, v{B2}, v{KY+1}, v{KY+3}
    v_max_u32 v{Y}, v{KY+4}, v{KY+6}
    v_min_u32 v{Y+1}, v{KY+4}, v{KY+6}
    v_max3_u32 v{Y+1}, v{Y+1}, v{KY+5}, v{KY+7}
    v_min_u32 v{Y+2}, v{B1}, v{Y}
    v_max_u32 v{B1}, v{B1}, v{Y}
    v_max3_u32 v{B2}, v{B2}, v{Y+1}, v{Y+2}
    v_mov_b32 v{Y}, v{B1}
    """)
    wave_max_u32(a, Y, Y + 1)
    a(f"""
    v_cmp_eq_u32 vcc, v{B1}, v{Y}
    v_cndmask_b32 v{B1}, v{B1}, v{B2}, vcc
    """)
    wave_max_u32(a, B1, Y + 1)
    a(f"""
    v_readfirstlane_b32 s40, v{Y}
    v_readfirstlane_b32 s41, v{B1}
    s_andn2_b32 s42, 0x7ff, s40
    s_andn2_b32 s43, 0x7ff, s41
    s_lshl_b32 s42, s42, 10
    s_lshl_b32 s43, s43, 10
    """)
    a.label("K2_nokey")
    a(f"""
    s_cmp_ge_u32 s2, 112
    s_cbranch_scc1 K2_down
    s_cmp_lg_u32 s6, 0
    s_cbranch_scc1 K2_up1
    s_add_u32 s36, s42, {WS_HN:#x}
    s_add_u32 s37, s43, {WS_HN:#x}
    buffer_load_dwordx4 v[{KY}:{KY+3}], v{vWL}, s[8:11], s36 offen sc1
    buffer_load_dwordx4 v[{KY+4}:{KY+7}], v{vWL}, s[8:11], s37 offen sc1
    s_waitcnt vmcnt(1)
    ds_write_b128 v{vWL}, v[{KY}:{KY+3}] offset:{L_XS}
    s_waitcnt vmcnt(0)
    ds_write_b128 v{vWL}, v[{KY+4}:{KY+7}] offset:{L_XS + 1040}
    """)
    a.label("K2_up1")
    st(3, 2)
    a(f"""
    v_mul_u32_u24 v{t0}, 1040, v{t3}
    v_lshl_add_u32 v{t0}, v{t4}, 4, v{t0}
    s_lshr_b32 s5, s6, 1
    s_lshl_b32 s5, s5, 8
    v_add_u32 v{t0}, s5, v{t0}
    s_waitcnt lgkmcnt(0)
    s_barrier
    """)
    for sx in range(4):
        a(f"ds_read_b128 v[{BX+4*sx}:{BX+4*sx+3}], v{t0} offset:{L_XS + 64*sx}")
    for sx in range(4):
        a(f"s_waitcnt lgkmcnt({3-sx})")
        c = "0" if sx == 0 else f"v[{AC}:{AC+3}]"
        a(f"v_mfma_f32_16x16x32_bf16 v[{AC}:{AC+3}], v[{AFR+4*sx}:{AFR+4*sx+3}], v[{BX+4*sx}:{BX+4*sx+3}], {c}")
    a(f"""
    ds_write_b128 v{vPW}, v[{AC}:{AC+3}]
    s_waitcnt lgkmcnt(0)
    s_barrier
    s_cmp_lg_u32 s6, 0
    s_cbranch_scc1 K2_fin
    """)
    def red_read():
        a(f"v_add_u32 v{t0}, {L_RED:#x}, v{vPR}")
        a("s_waitcnt vmcnt(0)")
        for k in range(4):
            a(f"ds_read2_b32 v[{KY+2*k}:{KY+2*k+1}], v{t0} offset0:{64*k} offset1:{64*k+32}")
        a("s_waitcnt lgkmcnt(0)")
        a(f"v_pk_add_f32 v[{KY}:{KY+1}], v[{KY}:{KY+1}], v[{KY+2}:{KY+3}]")
        a(f"v_pk_add_f32 v[{KY+4}:{KY+5}], v[{KY+4}:{KY+5}], v[{KY+6}:{KY+7}]")
        a(f"v_pk_add_f32 v[{KY}:{KY+1}], v[{KY}:{KY+1}], v[{KY+4}:{KY+5}]")
    st(4, 2)
    red_read()
    a(f"""
    v_cvt_pk_bf16_f32 v{KY}, 0, v{KY}
    v_cvt_pk_bf16_f32 v{KY+1}, 0, v{KY+1}
    """)
    sigmoid(a, KY + 2, KY, KY + 3)
    a(f"""
    v_mul_f32 v{KY}, v{KY}, v{KY+2}
    v_cvt_pk_bf16_f32 v{KY}, 0, v{KY}
    v_mul_f32 v{KY}, v{KY}, v{KY+1}
    v_cvt_pk_bf16_f32 v{KY}, 0, v{KY}
    v_or_b32 v{KY}, 1, v{KY}
    s_lshl_b32 s5, s76, 7
    s_add_u32 s5, s5, {WS_GU:#x}
    """)
    if GREP:
        for k in range(4):
            a(f"buffer_store_dword v{KY}, v{vOR}, s[8:11], s5 offen sc1")
            if k < 3: a("s_add_u32 s5, s5, 0x8000")
    else:
        a(f"""
        s_mov_b32 exec_hi, 0
        buffer_store_dword v{KY}, v{vPR}, s[8:11], s5 offen sc1
        s_mov_b64 exec, -1
        """)
    a(f"""
    s_branch K2_fin
    """)
    a.label("K2_down")
    HH, NN, GT, OO = Y + 6, Y + 7, AC + 4, AC + 5
    a(f"""
    s_cmp_lg_u32 s6, 0
    s_cbranch_scc1 K2_dn1
    v_bfe_u32 v{t0}, v0, 4, 1
    v_cmp_eq_u32 vcc, 0, v{t0}
    v_mov_b32 v{t0}, s43
    v_mov_b32 v{t1}, s42
    v_cndmask_b32 v{OO}, v{t0}, v{t1}, vcc
    v_and_b32 v{t0}, 15, v0
    v_lshl_add_u32 v{OO}, v{t0}, 1, v{OO}
    s_lshl_b32 s44, s77, 5
    s_add_u32 s36, s44, {WS_H:#x}
    s_add_u32 s37, s44, {WS_HN:#x}
    buffer_load_ushort v{HH}, v{OO}, s[8:11], s36 offen sc1
    buffer_load_ushort v{NN}, v{OO}, s[8:11], s37 offen sc1
    v_mov_b32 v{t0}, s41
    v_mov_b32 v{t1}, s40
    v_cndmask_b32 v{GT}, v{t0}, v{t1}, vcc
    v_and_b32 v{GT}, 0xffff0000, v{GT}
    v_ashrrev_i32 v{t0}, 31, v{GT}
    v_not_b32 v{t0}, v{t0}
    v_or_b32 v{t0}, 0x80000000, v{t0}
    v_xor_b32 v{GT}, v{GT}, v{t0}
    v_and_b32 v{GT}, 0xffff0000, v{GT}
    """)
    sigmoid(a, GT, GT, t0)
    a(f"v_cvt_pk_bf16_f32 v{GT}, 0, v{GT}")
    a.label("K2_dn1")
    a(f"""
    s_mul_i32 s5, s6, 1792
    s_and_b32 s37, s2, {7 if GREP else 0}
    s_lshl_b32 s37, s37, 14
    s_add_u32 s5, s5, s37
    s_add_u32 s5, s5, {WS_GU:#x}
    v_min_u32 v{t1}, 47, v0
    v_lshlrev_b32 v{t1}, 4, v{t1}
    s_lshl_b32 s37, s6, 10
    s_add_u32 s37, s37, {L_GB:#x}
    v_lshrrev_b32 v{t0}, 3, v0
    v_lshlrev_b32 v{vPL}, 5, v{t0}
    v_and_b32 v{t0}, 3, v0
    v_lshl_add_u32 v{vPL}, v{t0}, 3, v{vPL}
    v_bfe_u32 v{t0}, v0, 2, 1
    v_mul_u32_u24 v{t0}, 464, v{t0}
    v_add3_u32 v{vPL}, v{vPL}, v{t0}, s37
    v_mul_u32_u24 v{vOW}, 464, v{t3}
    v_lshl_add_u32 v{vOW}, v{t4}, 4, v{vOW}
    v_add_u32 v{vOW}, s37, v{vOW}
    s_mov_b32 s45, 0x07060302
    s_mov_b32 s36, 0
    """)
    def gissue(b):
        a(f"buffer_load_dwordx4 v[{b}:{b+3}], v{vWL}, s[8:11], s5 offen sc1")
        a(f"buffer_load_dwordx4 v[{b+4}:{b+7}], v{t1}, s[8:11], s5 offen offset:1024 sc1")
    poll_loop("K2_gp", gissue, 2)
    a.label("K2_gok")
    st(4, 2)
    a(f"""
    v_perm_b32 v{Y}, v{KY+1}, v{KY}, s45
    v_perm_b32 v{Y+1}, v{KY+3}, v{KY+2}, s45
    v_perm_b32 v{Y+2}, v{KY+5}, v{KY+4}, s45
    v_perm_b32 v{Y+3}, v{KY+7}, v{KY+6}, s45
    ds_write_b64 v{vPL}, v[{Y}:{Y+1}]
    s_mov_b32 exec_hi, 0xffff
    ds_write_b64 v{vPL}, v[{Y+2}:{Y+3}] offset:256
    s_mov_b64 exec, -1
    """)
    for sx in range(7):
        a(f"ds_read_b128 v[{BX+4*sx}:{BX+4*sx+3}], v{vOW} offset:{64*sx}")
    for sx in range(7):
        a(f"s_waitcnt lgkmcnt({6-sx})")
        c = "0" if sx == 0 else f"v[{AC}:{AC+3}]"
        a(f"v_mfma_f32_16x16x32_bf16 v[{AC}:{AC+3}], v[{AFR+4*sx}:{AFR+4*sx+3}], v[{BX+4*sx}:{BX+4*sx+3}], {c}")
    a(f"""
    ds_write_b128 v{vPW}, v[{AC}:{AC+3}]
    s_waitcnt lgkmcnt(0)
    s_barrier
    s_cmp_lg_u32 s6, 0
    s_cbranch_scc1 K2_fin
    """)
    red_read()
    a(f"""
    v_add_f32 v{KY}, v{KY}, v{KY+1}
    v_lshlrev_b32 v{HH}, 16, v{HH}
    v_lshlrev_b32 v{NN}, 16, v{NN}
    v_cvt_pk_bf16_f32 v{KY}, 0, v{KY}
    v_mul_f32 v{KY}, v{KY}, v{GT}
    v_cvt_pk_bf16_f32 v{KY}, 0, v{KY}
    v_add_f32 v{KY}, v{KY}, v{NN}
    v_cvt_pk_bf16_f32 v{KY}, 0, v{KY}
    v_add_f32 v{KY}, v{KY}, v{HH}
    v_cvt_pk_bf16_f32 v{KY}, v{KY}, v{KY}
    s_mov_b32 exec_hi, 0
    buffer_store_short v{KY}, v{OO}, s[20:23], s44 offen sc1
    s_mov_b64 exec, -1
    """)
    a.label("K2_fin")
    if 'amp' in dbg:
        q = int(OPT['amp'])
        expr = {0: None, 1: ("s83", "s82"), 2: ("s90", "s83"), 3: ("s96", "s90"), 4: ("s84", "s82"), 5: ("s94", "s90"), 6: ("s88", "s87"), 7: ("s82", "s87"), 8: ("s89", "s87"), 9: ("s90", "s89")}[q]
        a(f"""
        s_or_b32 s5, s2, s6
        s_cmp_lg_u32 s5, 0
        s_cbranch_scc1 K2_amp_end
        s_mov_b32 s5, {WS_SEL:#x}
        buffer_load_dwordx4 v[{S1}:{S1+3}], v{vWL}, s[8:11], s5 offen
        s_waitcnt vmcnt(0)
        v_readfirstlane_b32 s82, v{S1}
        v_readfirstlane_b32 s83, v{S1+1}
        v_readfirstlane_b32 s84, v{S1+2}
        v_not_b32 v{S1+3}, v{S1}
        """)
        wave_max_u32(a, S1, S1 + 5); wave_max_u32(a, S1 + 3, S1 + 5); wave_max_u32(a, S1 + 1, S1 + 5)
        a(f"""
        v_readfirstlane_b32 s88, v{S1}
        v_readfirstlane_b32 s87, v{S1+3}
        v_readfirstlane_b32 s89, v{S1+1}
        s_not_b32 s87, s87
        """)
        if expr: a(f"s_sub_u32 s85, {expr[0]}, {expr[1]}")
        else: a("s_mov_b32 s85, 0")
        a(f"""
        s_min_u32 s85, s85, 5000
        s_lshl_b32 s85, s85, 1
        s_add_u32 s85, s85, 600
        s_add_u32 s85, s85, s96
        """)
        a.label("K2_amp")
        a(f"""
        s_memrealtime s[92:93]
        s_waitcnt lgkmcnt(0)
        s_sub_u32 s86, s92, s85
        s_cmp_lt_i32 s86, 0
        s_cbranch_scc1 K2_amp
        """)
        a.label("K2_amp_end")
    if G.STAMP: a("s_waitcnt vmcnt(0)")
    stamp(a, 6)
    if G.STAMP: a("s_mov_b32 s91, s30")
    stamp_out(a, 1, 8, "s6", WF)
    dstamp(a, 1, True, 240)
    a.label("K2_end")
    a("s_endpgm")
    a.label("K2_qspin")
    a(f"""
    s_mov_b32 s36, 0
    """)
    a.label("K2_qspin1")
    a(f"""
    s_sleep 2
    buffer_load_dword v{t0}, v{SP}, s[8:11], s45 offen sc1
    s_add_u32 s36, s36, 1
    s_waitcnt vmcnt(0)
    v_cmp_ne_u32 vcc, s58, v{t0}
    s_cbranch_vccz K2_qback
    s_cmp_lt_u32 s36, 0x40000
    s_cbranch_scc1 K2_qspin1
    s_branch K2_qback
    """)
    for k, off in enumerate(spins):
        a.label(f"K2_spin{k}")
        a(f"""
        s_sleep 1
        ds_read_b32 v{vFV}, v{vFR} offset:{off}
        s_waitcnt lgkmcnt(0)
        v_cmp_gt_u32 vcc, s59, v{vFV}
        s_cbranch_vccnz K2_spin{k}
        s_branch K2_back{k}
        """)
```

```python
import sys
sys.path.insert(0, "gen")
from gen import *
import gen as G
import kf1, kf1b
from kf1 import L1_TOTAL
from kf2 import gen_p2, L_TOTAL
import argparse
ap = argparse.ArgumentParser()
ap.add_argument("out"); ap.add_argument("--stamp", action="store_true"); ap.add_argument("--dbg", default="")
args = ap.parse_args()
set_stamp(args.stamp)
a = Asm()
(kf1 if 'oldlay' in args.dbg else kf1b).gen_p1(a, dbg=args.dbg)
gen_p2(a, dbg=args.dbg)
a.fix()
print("align", align8(a))
build([("k1_kernel", a.text(), 256, max(L1_TOTAL, L_TOTAL), 256, 512)], args.out)
```

```python
from gen import *
import gen as G

L_X = 0; L_W = 65536; L_KV = 131072; L_WOT = L_KV + 16384; L_DN = L_WOT + 2048; L1_TOTAL = L_DN + 64
L_Q0 = 0x6000

def gen_p1(a, dbg=''):
    SC = ' sc1'
    def p1(i):
        if 'p1st' in dbg: stamp(a, i)
    FST = int(dict(x.split('=') for x in dbg.split(',') if '=' in x).get('fst', 2))
    WB = int(dict(x.split('=') for x in dbg.split(',') if '=' in x).get('wb', 5))
    WD = int(dict(x.split('=') for x in dbg.split(',') if '=' in x).get('wd', 9))
    PB = int(dict(x.split('=') for x in dbg.split(',') if '=' in x).get('pb', 99))
    FLS = int(dict(x.split('=') for x in dbg.split(',') if '=' in x).get('fls', 4))
    EPOCH = f"""
    s_add_u32 s56, s32, {WS_EP:#x}
    s_addc_u32 s57, s33, 0
    s_load_dword s58, s[56:57], 0
    """
    X = 32
    ACC = 96
    AF = 116
    T = 148
    a(f"""
    s_cmp_lt_u32 s2, 256
    s_cbranch_scc1 K1_go
    s_endpgm
    """)
    a.label("K1_go")
    stamp(a, 0)
    if ('leak' in dbg or 'amp' in dbg): a('s_memrealtime s[90:91]')
    dstamp(a, 0, False, 200)
    a(f"""
    s_load_dwordx8 s[24:31], s[0:1], 0
    s_load_dwordx2 s[44:45], s[0:1], 32
    s_load_dwordx2 s[32:33], s[0:1], 96
    s_and_b32 s3, s2, 7
    s_lshr_b32 s4, s2, 3
    s_and_b32 s5, s4, 7
    s_lshr_b32 s4, s4, 3           ; tb & 3
    s_lshl_b32 s3, s3, 2
    s_add_u32 s3, s3, s4
    v_lshrrev_b32 v1, 6, v0
    v_and_b32 v2, 63, v0           ; lane
    v_readfirstlane_b32 s6, v1     ; wave
    v_and_b32 v3, 15, v2           ; l & 15
    v_lshrrev_b32 v4, 4, v2        ; g
    v_bfe_u32 v18, v2, 2, 2        ; r'
    v_and_b32 v19, 3, v2           ; c'
    v_lshl_add_u32 v20, v4, 3, v18 ; 8g + r'
    v_lshlrev_b32 v17, 5, v20
    v_lshl_add_u32 v17, v19, 3, v17
    s_cmp_ge_u32 s6, 4
    s_cbranch_scc1 K1_loader
    s_lshl_b32 s7, s3, 6
    s_lshl_b32 s34, s6, 4
    s_add_u32 s7, s7, s34
    v_add_u32 v5, s7, v3           ; token
    v_lshrrev_b32 v6, 2, v2        ; row
    v_lshrrev_b32 v7, 4, v2
    v_and_b32 v7, 2, v7
    v_xor_b32 v7, v7, v19
    v_lshlrev_b32 v6, 10, v6
    v_lshl_add_u32 v6, v7, 4, v6
    s_lshl_b32 s63, s6, 14
    s_add_u32 s63, s63, {L_X}
    s_lshl_b32 s64, s7, 10
    s_lshl_b32 s62, s5, 7
    s_waitcnt lgkmcnt(0)
    """)
    srd(a, 8, 24, 25, 0x200000)
    def xdma(u):
        if u % 2 == 0:
            a(f"""
            s_add_u32 m0, s63, {u*1024}
            s_add_u32 s48, s62, s64
            buffer_load_dwordx4 v6, s[8:11], s48 offen lds
            """)
        else:
            a(f"""
            s_add_u32 m0, s63, {u*1024 - 64}
            s_add_u32 s62, s62, 128
            buffer_load_dwordx4 v6, s[8:11], s48 offen offset:64 lds
            s_and_b32 s62, s62, 0x3ff
            """)
    for u in range(10): xdma(u)
    a(EPOCH)
    srd(a, 20, 32, 33, WS_SIZE)
    ONE = 24; SEL = 8
    SEL = 152
    a(f"""
    v_lshlrev_b32 v21, 7, v20
    v_lshl_add_u32 v21, v19, 3, v21   ; row*128 + 8c'
    v_add_u32 v21, {L_W}, v21
    v_lshrrev_b32 v22, 1, v18
    v_and_b32 v23, 1, v4
    v_lshl_or_b32 v22, v23, 1, v22 ; h
    """)
    for t in range(4):
        a(f"v_xor_b32 v23, {t}, v22")
        a(f"v_lshl_add_u32 v{13+t}, v23, 5, v21")
    a(f"""
    v_lshlrev_b32 v10, 6, v3
    v_lshrrev_b32 v7, 2, v3
    v_and_b32 v7, 2, v7
    v_xor_b32 v7, v7, v4
    v_lshl_add_u32 v10, v7, 4, v10
    v_add_u32 v10, s63, v10
    v_and_b32 v7, 1, v4
    v_lshlrev_b32 v7, 7, v7
    v_add_u32 v17, {L_KV}, v17
    v_xor_b32 v12, v17, v7
    v_xor_b32 v17, 128, v12
    """)
    for r in range(4): a(f"v_mov_b32 v{ONE+r}, 0x3f803f80")
    a(f"""
    v_and_b32 v7, 1, v2
    v_lshlrev_b32 v7, 4, v7
    v_mov_b32 v8, 0x3f80
    v_lshlrev_b32 v7, v7, v8
    v_cmp_eq_u32 s[36:37], v18, v4 ; g == (l&15)>>2
    v_bfe_u32 v8, v2, 1, 1
    v_cmp_eq_u32 vcc, 0, v8
    s_and_b64 s[38:39], s[36:37], vcc
    s_andn2_b64 s[40:41], s[36:37], vcc
    v_mov_b32 v{SEL}, 0
    v_mov_b32 v{SEL+1}, 0
    v_cndmask_b32 v{SEL+2}, 0, v7, s[38:39]
    v_cndmask_b32 v{SEL+3}, 0, v7, s[40:41]
    v_mov_b32 v{SEL+4}, 0
    v_mov_b32 v{SEL+5}, 0
    """)
    for u in range(10, 16): xdma(u)
    a("s_waitcnt lgkmcnt(0)")
    a("s_add_u32 s58, s58, 1")
    a("s_barrier")
    p1(1)
    if ('leak' in dbg or 'amp' in dbg): a('s_memrealtime s[94:95]')
    m16 = "v_mfma_f32_16x16x32_bf16"
    SUM = ACC; GR = ACC + 4; NM = 224
    def stat(u):
        xs = f"v[{X+4*u}:{X+4*u+3}]"
        a(f"{m16} v[{SUM}:{SUM+3}], v[{ONE}:{ONE+3}], {xs}, " + ("0" if u == 0 else f"v[{SUM}:{SUM+3}]"))
        a(f"{m16} v[{GR}:{GR+3}], {xs}, {xs}, " + ("0" if u == 0 else f"v[{GR}:{GR+3}]"))
    for u in range(0, 16, 2):
        a(f"s_waitcnt vmcnt({14-u})")
        a(f"ds_read_b128 v[{X+4*u}:{X+4*u+3}], v10 offset:{1024*u}")
        a(f"ds_read_b128 v[{X+4*u+4}:{X+4*u+7}], v10 offset:{1024*u+1024}")
        if u >= 4:
            a("s_waitcnt lgkmcnt(4)")
            stat(u - 4); stat(u - 3)
    a("s_waitcnt lgkmcnt(2)"); stat(12); stat(13)
    a("s_waitcnt lgkmcnt(0)"); stat(14); stat(15)
    RG = 160
    a("s_barrier")
    a("s_lshr_b32 s66, s5, 1")
    a("s_cmp_lg_u32 s66, s6")
    a("s_cbranch_scc1 K1_nokvf")
    for sx in range(16):
        for half in range(2):
            d = RG + 4 * sx + 2 * half
            a(f"ds_read_b64_tr_b16 v[{d}:{d+1}], v{17 if half else 12} offset:{sx*1024}")
    a.label("K1_nokvf")
    a(f"""
    v_and_b32 v7, 1, v2
    v_cmp_eq_u32 s[42:43], 1, v7
    v_cndmask_b32 v8, v{GR}, v{GR+1}, s[42:43]
    v_cndmask_b32 v9, v{GR+2}, v{GR+3}, s[42:43]
    v_cndmask_b32 v8, 0, v8, s[38:39]
    v_cndmask_b32 v26, v8, v9, s[40:41]
    """)
    for w in (16, 32):
        sum_swap(a, 26, 28, w)
    ln_scalars(a, SUM, 26, 28, 30, 27, 29)
    for r in range(4): a(f"v_sub_f32 v{NM+r}, 0, v28")
    NB = 4
    def sub(u):
        d = AF + 8 * (u % NB)
        xs = f"v[{X+4*u}:{X+4*u+3}]"
        a(f"{m16} v[{d}:{d+3}], v[{SEL+2}:{SEL+5}], {xs}, v[{NM}:{NM+3}]")
        a(f"{m16} v[{d+4}:{d+7}], v[{SEL}:{SEL+3}], {xs}, v[{NM}:{NM+3}]")
    sub(0); sub(1)
    def ln_step(u):
        d = AF + 8 * (u % NB); L = []
        for r in range(4): L.append(f"v_cvt_pk_bf16_f32 v{d+r}, 0, v{d+r}")
        if u + 2 < 16:
            dd = AF + 8 * ((u + 2) % NB); xs = f"v[{X+4*(u+2)}:{X+4*(u+2)+3}]"
            L.append(f"{m16} v[{dd}:{dd+3}], v[{SEL+2}:{SEL+5}], {xs}, v[{NM}:{NM+3}]")
        for r in range(4, 8): L.append(f"v_cvt_pk_bf16_f32 v{d+r}, 0, v{d+r}")
        for r in range(0, 8, 2): L.append(f"v_pk_mul_f32 v[{d+r}:{d+r+1}], v[{d+r}:{d+r+1}], v[30:31] op_sel_hi:[1,0]")
        if u + 2 < 16:
            L.append(f"{m16} v[{dd+4}:{dd+7}], v[{SEL}:{SEL+3}], {xs}, v[{NM}:{NM+3}]")
        for r in range(4): L.append(f"v_cvt_pk_bf16_f32 v{X+4*u+r}, v{d+2*r}, v{d+2*r+1}")
        return L
    for u in range(16):
        for ins in ln_step(u): a(ins)
    p1(2)
    KV = ACC + 16
    a(f"""
    v_lshrrev_b32 v9, 1, v4
    v_and_b32 v11, 1, v4
    s_cmp_lg_u32 s66, s6
    s_cbranch_scc1 K1_q
    s_lshr_b32 s35, s7, 5
    s_mul_i32 s35, s35, {TS}
    s_add_u32 s35, s35, {WS_KV:#x}
    s_waitcnt lgkmcnt(0)
    s_bitcmp0_b32 s5, 0
    s_cbranch_scc0 K1_v
    """)
    for sx in range(16):
        a(f"{m16} v[{KV}:{KV+3}], v[{RG+4*sx}:{RG+4*sx+3}], v[{X+4*sx}:{X+4*sx+3}], " + ("0" if sx == 0 else f"v[{KV}:{KV+3}]"))
    a(f"""
    v_and_b32 v8, 31, v5
    v_lshlrev_b32 v8, 4, v8
    v_lshl_add_u32 v8, v9, 9, v8
    s_branch K1_kvs
    """)
    a.label("K1_v")
    for sx in range(16):
        a(f"{m16} v[{KV}:{KV+3}], v[{X+4*sx}:{X+4*sx+3}], v[{RG+4*sx}:{RG+4*sx+3}], " + ("0" if sx == 0 else f"v[{KV}:{KV+3}]"))
    a(f"""
    s_and_b32 s36, s6, 1
    s_mul_i32 s36, s36, 544
    s_add_u32 s35, s35, s36
    s_add_u32 s35, s35, 1024
    v_mul_u32_u24 v8, 272, v9
    v_mov_b32 v{AF}, 0x3f803f80
    v_mov_b32 v{AF+1}, 0x3f803f80
    v_mov_b32 v{AF+2}, 0x3f803f80
    v_mov_b32 v{AF+3}, 0x3f803f80
    s_mov_b32 exec_lo, 1
    s_mov_b32 exec_hi, 1
    buffer_store_dwordx4 v[{AF}:{AF+3}], v8, s[20:23], s35 offen offset:256 sc1
    s_mov_b64 exec, -1
    v_lshl_add_u32 v8, v3, 4, v8
    """)
    a.label("K1_kvs")
    a(f"""
    v_cvt_pk_bf16_f32 v{T}, v{KV}, v{KV+1}
    v_cvt_pk_bf16_f32 v{T+1}, v{KV+2}, v{KV+3}
    v_mov_b32 v{T+2}, v{T}
    v_mov_b32 v{T+3}, v{T+1}
    v_permlane16_swap_b32 v{T}, v{T+2}
    v_permlane16_swap_b32 v{T+1}, v{T+3}
    s_mov_b32 exec_lo, 0xffff
    s_mov_b32 exec_hi, 0xffff
    buffer_store_dwordx4 v[{T}:{T+3}], v8, s[20:23], s35 offen sc1
    s_mov_b64 exec, -1
    v_mov_b32 v7, s58
    v_lshlrev_b32 v8, 14, v2
    s_lshl_b32 s35, s2, {FLS}
    s_add_u32 s35, s35, {WS_FL:#x}
    v_mov_b32 v21, {L_DN}
    """)
    EARLY = 'early' in dbg
    if EARLY: a.label("K1_dn")
    if EARLY: a(f"""
    ds_read_b64 v[22:23], v21
    s_waitcnt vmcnt(0) lgkmcnt(0)
    v_and_b32 v22, v22, v23
    v_cmp_eq_u32 vcc, 0, v22
    s_cbranch_vccnz K1_dn
    s_mov_b64 exec, 0xff
    buffer_store_dword v7, v8, s[20:23], s35 offen sc1
    s_mov_b64 exec, -1
    """)
    a.label("K1_q")
    a("s_barrier")
    p1(3)
    def rd(s, t):
        for half in range(2):
            d = RG + 16 * (s % 3) + 4 * t + 2 * half
            a(f"ds_read_b64_tr_b16 v[{d}:{d+1}], v{13+t} offset:{s*4096 + half*512}")
    for t in range(4): rd(0, t)
    for t in range(4): rd(1, t)
    for s in range(16):
        a(f"s_waitcnt lgkmcnt({8 if s < 15 else 0})")
        for t in range(4):
            d = RG + 16 * (s % 3) + 4 * t
            c = "0" if s == 0 else f"v[{ACC+4*t}:{ACC+4*t+3}]"
            a(f"{m16} v[{ACC+4*t}:{ACC+4*t+3}], v[{d}:{d+3}], v[{X+4*s}:{X+4*s+3}], {c}")
            if s + 2 < 16: rd(s + 2, t)
        if s == PB: a("s_barrier")
        if s == FST and not EARLY:
            a(f"""
            s_cmp_lg_u32 s66, s6
            s_cbranch_scc1 K1_nofl
            s_waitcnt vmcnt(0)
            s_mov_b64 exec, 0xff
            buffer_store_dword v7, v8, s[20:23], s35 offen sc1
            s_mov_b64 exec, -1
            """)
            a.label("K1_nofl")
    a(f"""
    s_lshl_b32 s35, s5, 10
    v_lshrrev_b32 v7, 3, v5
    v_lshlrev_b32 v7, 13, v7
    v_and_b32 v8, 7, v5
    v_lshl_add_u32 v7, v8, 4, v7
    v_lshl_add_u32 v7, v9, 9, v7
    v_lshl_add_u32 v7, v11, 7, v7
    """)
    for tp in range(2):
        for t in (2 * tp, 2 * tp + 1):
            for r in range(4): a(f"v_cvt_pk_bf16_f32 v{ACC+4*t+r}, 0, v{ACC+4*t+r}")
            for r in range(4): a(f"v_mul_f32 v{ACC+4*t+r}, {f2u(0.25 * 1.4426950408889634):#x}, v{ACC+4*t+r}")
            a(f"v_cvt_pk_bf16_f32 v{AF+2*t}, v{ACC+4*t}, v{ACC+4*t+1}")
            a(f"v_cvt_pk_bf16_f32 v{AF+2*t+1}, v{ACC+4*t+2}, v{ACC+4*t+3}")
        b = AF + 4 * tp
        a(f"v_permlane16_swap_b32 v{b}, v{b+2}")
        a(f"v_permlane16_swap_b32 v{b+1}, v{b+3}")
        a(f"buffer_store_dwordx4 v[{b}:{b+3}], v7, s[20:23], s35 offen offset:{256*tp}{SC}")
    a(f"""
    s_cmp_lg_u32 s66, s6
    s_cbranch_scc1 K1_nol
    v_and_b32 v8, 0x3ff, v7
    s_mov_b32 s36, 0x00ff00ff
    s_and_b32 s37, s5, 1
    s_lshl_b32 s37, s37, 3
    s_lshl_b32 exec_lo, s36, s37
    s_mov_b32 exec_hi, exec_lo
    ds_write_b128 v8, v[{AF}:{AF+3}] offset:{L_Q0}
    ds_write_b128 v8, v[{AF+4}:{AF+7}] offset:{L_Q0 + 256}
    s_mov_b64 exec, -1
    """)
    a.label("K1_nol")
    p1(4)
    if ('leak' in dbg or 'amp' in dbg):
        a(f"""
        s_waitcnt vmcnt(0)
        s_memrealtime s[92:93]
        s_waitcnt lgkmcnt(0)
        s_cmp_ge_u32 s2, 64
        s_cbranch_scc1 K1_leak
        v_mov_b32 v40, s90
        v_mov_b32 v41, s92
        v_mov_b32 v42, s94
        v_mov_b32 v43, 0
        s_lshl_b32 s48, s2, 4
        s_add_u32 s48, s48, {WS_SEL:#x}
        s_mov_b64 exec, 1
        buffer_store_dwordx4 v[40:43], v43, s[20:23], s48 offen
        """)
        a.label("K1_leak")
    dstamp(a, 0, True, 200)
    a("s_branch K12_join")
    a.label("K1_loader")
    if 'noldprio' not in dbg: a("s_setprio 3")
    if 'nocodepf' not in dbg:
        a(f"""
        s_cmp_ge_u32 s2, 16
        s_cbranch_scc1 K1_nocp
        s_getpc_b64 s[60:61]
        """)
        a.label("K1_pc")
        a(f"""
        s_sub_u32 s60, s60, K1_pc-k1_kernel
        s_subb_u32 s61, s61, 0
        v_subrev_u32 v30, 256, v0
        v_lshlrev_b32 v30, 7, v30
        v_min_u32 v30, K_all_end-k1_kernel-4, v30
        global_load_dword v31, v30, s[60:61]
        """)
        a.label("K1_nocp")
    a(f"""
    s_sub_u32 s6, s6, 4
    v_lshrrev_b32 v7, 3, v2        ; row_in
    v_and_b32 v8, 7, v2            ; slot
    v_and_b32 v9, 2, v7
    v_xor_b32 v8, v8, v9
    v_xor_b32 v9, 4, v8
    s_lshl_b32 s35, s5, 7
    v_lshlrev_b32 v7, 10, v7
    v_add_u32 v7, s35, v7
    v_lshl_add_u32 v10, v8, 4, v7
    v_lshl_add_u32 v11, v9, 4, v7
    v_lshlrev_b32 v12, 4, v2       ; lane*16
    v_lshrrev_b32 v13, 1, v2
    v_lshlrev_b32 v13, 10, v13
    v_and_b32 v14, 1, v2
    v_lshl_add_u32 v13, v14, 4, v13
    s_lshl_b32 s65, s6, 14
    s_add_u32 s65, s65, {L_W}
    s_lshl_b32 s37, s6, 4
    s_lshl_b32 s38, s5, 3
    s_add_u32 s37, s37, s38
    v_and_b32 v15, 16, v2
    v_lshlrev_b32 v15, 3, v15
    v_xor_b32 v15, v15, v12
    s_lshl_b32 s39, s4, 2
    s_waitcnt lgkmcnt(0)
    """)
    a(EPOCH)
    srd(a, 12, 26, 27, 0x80000)
    a(f"""
    s_bitcmp0_b32 s5, 0
    s_cselect_b64 s[46:47], s[28:29], s[30:31]
    """)
    srd(a, 16, 46, 47, 0x4000)
    srd(a, 40, 44, 45, 0x80000)
    srd(a, 20, 32, 33, WS_SIZE)
    a(f"""
    s_cmp_lg_u32 s6, 0
    s_cbranch_scc1 K1_noz
    v_mov_b32 v32, 0
    v_mov_b32 v33, 0
    v_mov_b32 v34, 0
    v_mov_b32 v35, 0
    s_lshl_b32 s48, s2, 10
    s_add_u32 s48, s48, {WS_GU:#x}
    buffer_store_dwordx4 v[32:35], v12, s[20:23], s48 offen{SC}
    """)
    a.label("K1_noz")
    if 'notouch' not in dbg:
        a(f"""
        s_cmp_lg_u32 s6, 1
        s_cbranch_scc1 K1_not
        s_and_b32 s48, s2, 7
        s_lshl_b32 s48, s48, 14
        s_add_u32 s48, s48, {WS_FL:#x}
        v_lshlrev_b32 v32, {FLS + 2}, v2
        buffer_load_dword v33, v32, s[20:23], s48 offen sc1
        """)
        a.label("K1_not")
    a(f"""
    s_cmp_lt_u32 s6, 2
    s_cbranch_scc1 K1_nowo
    s_lshl_b32 s46, s2, 1
    s_and_b32 s47, s6, 1
    s_add_u32 s46, s46, s47
    s_lshr_b32 s47, s46, 6
    s_lshl_b32 s47, s47, 16
    s_bfe_u32 s48, s46, 0x10002
    s_lshl_b32 s48, s48, 15        ; s * 32 rows
    s_add_u32 s47, s47, s48
    s_bfe_u32 s48, s46, 0x30003
    s_lshl_b32 s48, s48, 7         ; w * 128 B
    s_add_u32 s47, s47, s48
    s_and_b32 s48, s46, 3
    s_lshl_b32 s48, s48, 5         ; t * 32 B
    s_add_u32 s47, s47, s48
    s_lshl_b32 s48, s6, 10
    s_add_u32 s48, s48, {L_WOT - 2048}
    s_mov_b32 m0, s48
    v_add_u32 v17, s48, v17
    buffer_load_dwordx4 v13, s[40:43], s47 offen lds
    s_lshl_b32 s48, s6, 2
    s_add_u32 s48, s48, {L_DN - 8}
    v_mov_b32 v36, s48
    v_mov_b32 v37, 0
    ds_write_b32 v36, v37
    v_mov_b32 v37, 1
    """)
    a.label("K1_nowo")
    a(f"""
    s_lshl_b32 s36, s6, 12
    s_lshl_b32 s38, s5, 11
    """)
    for i in range(4):
        a(f"""
        s_add_u32 s48, s36, {i*1024}
        s_add_u32 m0, s48, {L_KV}
        s_add_u32 s48, s48, s38
        s_and_b32 s48, s48, 0x3fff
        buffer_load_dwordx4 v15, s[16:19], s48 offen lds
        """)
    a("s_waitcnt lgkmcnt(0)")
    a("s_add_u32 s58, s58, 1")
    a(f"""
    s_barrier
    s_cmp_lt_u32 s6, 2
    s_cbranch_scc1 K1_nowo2
    s_waitcnt vmcnt(4)
    ds_read_b64_tr_b16 v[32:33], v17
    ds_read_b64_tr_b16 v[34:35], v17 offset:128
    s_lshl_b32 s46, s46, 10
    s_add_u32 s46, s46, {WS_WOF:#x}
    s_waitcnt lgkmcnt(0)
    buffer_store_dwordx4 v[32:35], v12, s[20:23], s46 offen sc1
    s_branch K1_wst
    """)
    a.label("K1_nowo2")
    a("buffer_load_dword v33, v12, s[16:19], 0 offen")
    a.label("K1_wst")
    for i in range(16):
        a(f"""
        s_add_u32 s48, s39, {i}
        s_and_b32 s48, s48, 15
        s_lshl_b32 s49, s48, 10
        s_add_u32 m0, s65, s49
        s_add_u32 s48, s48, s37
        s_and_b32 s48, s48, 63
        s_lshl_b32 s48, s48, 13
        buffer_load_dwordx4 v{10 + (i & 1)}, s[12:15], s48 offen lds
        """)
        if i == WB:
            a(f"s_waitcnt vmcnt({WB + 2})")
            p1(1)
            a("s_barrier")
        if i == WD and EARLY:
            a(f"""
            s_cmp_lt_u32 s6, 2
            s_cbranch_scc1 K1_nodn
            s_waitcnt vmcnt({WD + 1})
            ds_write_b32 v36, v37
            """)
            a.label("K1_nodn")
    p1(2)
    a("s_setprio 0")
    a.label("K12_join")
```

```python
from gen import *
import gen as G

L_PART = 0x0; L_Q = 0x6000; L_MREF = 0x8400; L_OB = 0x5800; L_KEY = 0xAC00; L_FLG = 0xAD00; L_MX = 0xB000; L_HB = 0xB400
L_FW = 0xE000; L_TOTAL = 0xE000 + 8 * 7168
L_XS = L_PART; L_RED = L_PART + 0x1000; L_GB = L_PART + 0x2000
C_EXACT = 0.25 * 1.4426950408889634
OFFS = 96.0

def wave_sum(a, vs, ts):
    if isinstance(vs, int): vs, ts = [vs], [ts]
    for mod in ("quad_perm:[1,0,3,2]", "quad_perm:[2,3,0,1]", "row_half_mirror", "row_mirror"):
        for v in vs:
            a(f"v_add_f32_dpp v{v}, v{v}, v{v} {mod} row_mask:0xf bank_mask:0xf")
    for w in (16, 32):
        for v, t in zip(vs, ts): a(f"v_mov_b32 v{t}, v{v}")
        for v, t in zip(vs, ts): a(f"v_permlane{w}_swap_b32 v{t}, v{v}")
        for v, t in zip(vs, ts): a(f"v_add_f32 v{v}, v{v}, v{t}")

class VM:
    def __init__(self, a): self.a = a; self.q = []; self.done = -1
    def issue(self, tag): self.q.append(tag)
    def wait(self, tag):
        i = max(k for k, t in enumerate(self.q) if t == tag)
        if i <= self.done: return
        self.done = i
        self.a(f"s_waitcnt vmcnt({len(self.q) - 1 - i})")

def wave_max_u32(a, v, t):
    for mod in ("quad_perm:[1,0,3,2]", "quad_perm:[2,3,0,1]", "row_half_mirror", "row_mirror"):
        a(f"v_max_u32_dpp v{v}, v{v}, v{v} {mod} row_mask:0xf bank_mask:0xf")
    for w in (16, 32):
        a(f"""
        v_mov_b32 v{t}, v{v}
        v_permlane{w}_swap_b32 v{t}, v{v}
        v_max_u32 v{v}, v{v}, v{t}
        """)

LOG2E = 1.4426950408889634
def sigmoid(a, d, x, t):
    a(f"""
    v_mul_f32 v{t}, {f2u(-LOG2E):#x}, v{x}
    v_exp_f32 v{t}, v{t}
    v_add_f32 v{t}, 1.0, v{t}
    v_rcp_f32 v{d}, v{t}
    """)

def gen_p2(a, dbg='', prio=True):
    SC = ' sc1'
    OPT = dict(x.split('=') for x in dbg.split(',') if '=' in x)
    FLS = int(OPT.get('fls', 4))
    PFS = int(OPT.get('pfs', 0)); PFP = int(OPT.get('pfp', 1))
    TAILST = 'tailst' in dbg
    FS = 'ffnst' in dbg
    KREP = 'nokrep' not in dbg; GREP = 'nogrep' not in dbg
    def st(i, tail):
        if 'p1st' in dbg:
            if tail == 4: stamp(a, i)
        elif 'r0st' in dbg:
            if tail == 3: stamp(a, i)
        elif FS:
            if tail == 2: stamp(a, i)
        elif tail in (True, False) and bool(tail) == TAILST: stamp(a, i)
    K = 16; V = 48; X = [112, 128]; O = 144; CM = 160; SP = 176; Q = 184; OA = 188; WF = 204; BF = 236; S1 = 240
    vQA, vPW, vPR, vPL, vOW, vOR, vLM, vWL, vKL, vVL = 1, 2, 3, 4, 5, 6, 7, 8, 9, 10
    t0, t1, t2, t3, t4 = 11, 12, 13, 14, 15
    vFW, vFR, vFV, vWLs = 9, 13, 14, 15
    vFS, vPA, vPD = SP + 4, SP + 5, SP + 6
    if 'leak' in dbg or 'amp' in dbg: a('s_memrealtime s[90:91]')
    dstamp(a, 1, False, 240)
    a(f"""
    s_load_dwordx2 s[48:49], s[0:1], 96
    s_load_dwordx2 s[40:41], s[0:1], 0
    s_load_dwordx8 s[60:67], s[0:1], 48
    s_load_dwordx2 s[46:47], s[0:1], 80
    s_and_b32 s3, s2, 7
    s_lshr_b32 s4, s2, 3
    s_lshl_b32 s7, s3, 8
    s_lshl_b32 s5, s4, 3
    s_add_u32 s7, s7, s5           ; T0
    s_and_b32 s28, s4, 7           ; rot
    v_lshrrev_b32 v{t0}, 6, v0
    v_and_b32 v0, 63, v0
    v_readfirstlane_b32 s6, v{t0}
    s_mov_b32 s30, 0
    v_lshlrev_b32 v{vWL}, 4, v0
    s_mul_i32 s3, s6, {8*TS}
    s_add_u32 s3, s3, {WS_KV:#x}
    """)
    for t in range(8):
        a(f"""
        s_add_u32 s4, s28, {t}
        s_and_b32 s4, s4, 7
        s_mul_i32 s4, s4, {TS}
        s_add_u32 s{50+t}, s3, s4
        """)
    a.label("K2_restart")
    a(f"""
    s_add_u32 s44, s6, 4
    s_and_b32 s44, s44, 7
    s_add_u32 s3, s44, s28
    s_and_b32 s3, s3, 7
    s_andn2_b32 s45, s2, 0x38
    s_lshl_b32 s4, s3, 3
    s_or_b32 s45, s45, s4
    s_lshl_b32 s45, s45, 6
    s_lshr_b32 s4, s28, 1
    s_lshl_b32 s4, s4, 2
    s_add_u32 s45, s45, s4
    s_add_u32 s45, s45, {WS_FQ:#x}
    s_add_u32 s3, s3, s7
    s_lshl_b32 s32, s3, 10
    v_and_b32 v{t1}, 31, v0
    v_lshrrev_b32 v{t2}, 5, v0
    v_mul_u32_u24 v{vVL}, 272, v{t2}
    v_lshl_add_u32 v{vVL}, v{t1}, 4, v{vVL}
    v_cmp_lt_u32 vcc, 16, v{t1}
    v_bfrev_b32 v{t0}, 1
    v_add_u32 v{vQA}, {L_Q:#x}, v{vWL}
    v_cndmask_b32 v{vVL}, v{vVL}, v{t0}, vcc
    s_waitcnt lgkmcnt(0)
    """)
    srd(a, 8, 48, 49, WS_SIZE)
    vm = VM(a)
    def ldK(t):
        a(f"buffer_load_dwordx4 v[{K+4*t}:{K+4*t+3}], v{vWL}, s[8:11], s{50+t} offen{SC}"); vm.issue(f"K{t}")
    def ldV(t):
        for h in range(2):
            a(f"buffer_load_dwordx4 v[{V+8*t+4*h}:{V+8*t+4*h+3}], v{vVL}, s[8:11], s{50+t} offen offset:{1024 + 544*h}{SC}"); vm.issue(f"V{t}{h}")
    a(f"""
    s_lshl_b32 s3, s44, 10
    v_add_u32 v{t4}, s3, v{vQA}
    """)
    def late_setup(part):
        u0, u1, u2, u3 = S1, S1 + 1, S1 + 2, S1 + 3
        if part == 0:
            srd(a, 16, 40, 41, 0x200000)
            srd(a, 20, 46, 47, 0x200000)
            srd(a, 24, 60, 61, 0x400)
            a(f"""
            v_and_b32 v{u1}, 31, v0
            v_lshrrev_b32 v{u2}, 5, v0
            v_mul_u32_u24 v{vPW}, 80, v{u1}
            s_mul_i32 s3, s6, 2560
            v_add_u32 v{vPW}, s3, v{vPW}
            v_lshl_add_u32 v{SP+3}, v{u2}, 2, v{vPW}
            v_lshl_add_u32 v{vPW}, v{u2}, 4, v{vPW}
            v_lshrrev_b32 v{u0}, 4, v0     ; g
            s_lshr_b32 s3, s6, 1
            s_lshl_b32 s3, s3, 3
            s_and_b32 s4, s6, 1
            s_lshl_b32 s4, s4, 1
            s_add_u32 s3, s3, s4
            v_and_b32 v{u1}, 1, v{u0}
            v_lshl_add_u32 v{u1}, v{u1}, 2, v{u2}
            v_add_u32 v{u1}, s3, v{u1}     ; n = 8*(w>>1) + 2*(w&1) + (g>>1) + 4*(g&1)
            v_mul_u32_u24 v{vPL}, 80, v{u1}
            v_and_b32 v{u2}, 15, v0        ; d
            v_lshl_add_u32 v{vPR}, v{u2}, 2, v{vPL}
            v_and_b32 v{u3}, 7, v0
            v_mul_u32_u24 v{u3}, 2560, v{u3}
            v_add3_u32 v{vPL}, v{vPL}, v{u3}, 64
            s_lshl_b32 s31, s28, 16
            s_lshl_b32 s33, s6, 13
            s_add_u32 s33, s33, {WS_WOF:#x}
            """)
        elif part == 1:
            a(f"""
            v_and_b32 v{u3}, 7, v{u1}      ; token
            v_lshrrev_b32 v{u1}, 3, v{u1}  ; head_local
            v_mul_u32_u24 v{vOW}, 144, v{u3}
            v_lshl_add_u32 v{vOW}, v{u1}, 5, v{vOW}
            v_lshl_add_u32 v{vOW}, v{u2}, 1, v{vOW}
            v_add_u32 v{vOW}, {L_OB:#x}, v{vOW}
            v_and_b32 v{u3}, 7, v0
            v_mul_u32_u24 v{vOR}, 144, v{u3}
            v_lshl_add_u32 v{vOR}, v{u0}, 4, v{vOR}
            v_add_u32 v{vOR}, {L_OB:#x}, v{vOR}
            v_mov_b32 v{vLM}, 0
            v_lshlrev_b32 v{vFR}, 2, v{u3}
            v_add_u32 v{vFR}, {L_FLG:#x}, v{vFR}
            """)
        else:
            for r in range(0, 16, 2):
                a(f"v_pk_mov_b32 v[{OA+r}:{OA+r+1}], 0, 0")
            a(f"v_pk_mov_b32 v[{SP}:{SP+1}], 0, 0")
            a(f"v_mov_b32 v{SP+2}, 0xdddddddd")
    def rd_qcm():
        a(f"ds_read_b128 v[{Q}:{Q+3}], v{vQA}")
        for k in range(4):
            a(f"ds_read_b128 v[{CM+4*k}:{CM+4*k+3}], v{vQA} offset:{L_MREF - L_Q}")
        a(f"v_add_u32 v{vQA}, 1024, v{vQA}")
    mf = "v_mfma_f32_32x32x16_bf16"
    def M1(kt, xb):
        if 'nom1' in dbg: a("s_nop 1"); return
        a(f"{mf} v[{X[xb]}:{X[xb]+15}], v[{K+4*kt}:{K+4*kt+3}], v[{Q}:{Q+3}], v[{CM}:{CM+15}]")
    def E(xb, lo, hi):
        for r in range(lo, hi):
            if 'expnop' in dbg:
                a("v_nop"); a("v_nop")
                continue
            if 'noexp' in dbg:
                a(f"v_cvt_pk_bf16_f32 v{X[xb]+r}, 0, v{X[xb]+r}"); a(f"v_cvt_pk_bf16_f32 v{X[xb]+r}, 0, v{X[xb]+r}")
                continue
            a(f"v_exp_f32 v{X[xb]+r}, v{X[xb]+r}")
    def C2(h, xb):
        for k in range(4):
            a(f"v_cvt_pk_bf16_f32 v{SP+4*h+k}, v{X[xb]+8*h+2*k}, v{X[xb]+8*h+2*k+1}")
    def M3(h, kt):
        xb = kt & 1
        if 'nom3' in dbg: a("s_nop 2"); return
        a(f"v_smfmac_f32_32x32x32_bf16 v[{O}:{O+15}], v[{V+8*kt+4*h}:{V+8*kt+4*h+3}], v[{X[xb]+8*h}:{X[xb]+8*h+7}], v{SP+2}")
    def Ozero():
        a(f"v_mfma_f32_32x32x8bf16_1k v[{O}:{O+15}], v[{SP}:{SP+1}], v[{SP}:{SP+1}], 0")
    def part_write():
        a(f"""
        ds_write_b128 v{vPW}, v[{O}:{O+3}]
        ds_write_b128 v{vPW}, v[{O+4}:{O+7}] offset:32
        ds_write_b32 v{SP+3}, v{O+8} offset:64
        """)
    def s1_read():
        a(f"ds_read_b32 v{S1+8}, v{vPL}")
        for k in range(4):
            a(f"ds_read2st64_b32 v[{S1+2*k}:{S1+2*k+1}], v{vPR} offset0:{20*k} offset1:{20*k+10}")
    def s1_calc():
        dp = lambda mod: f"v_add_f32_dpp v{S1+8}, v{S1+8}, v{S1+8} {mod} row_mask:0xf bank_mask:0xf"
        a(f"""
        {dp("quad_perm:[1,0,3,2]")}
        v_pk_add_f32 v[{S1}:{S1+1}], v[{S1}:{S1+1}], v[{S1+2}:{S1+3}]
        v_pk_add_f32 v[{S1+4}:{S1+5}], v[{S1+4}:{S1+5}], v[{S1+6}:{S1+7}]
        {dp("quad_perm:[2,3,0,1]")}
        v_pk_add_f32 v[{S1}:{S1+1}], v[{S1}:{S1+1}], v[{S1+4}:{S1+5}]
        v_add_f32 v{S1}, v{S1}, v{S1+1}
        {dp("row_half_mirror")}
        v_rcp_f32 v{S1+1}, v{S1+8}
        v_maximum3_f32 v{vLM}, v{vLM}, v{S1+8}, abs(v{S1})
        v_mul_f32 v{S1}, v{S1}, v{S1+1}
        v_cvt_pk_bf16_f32 v{S1}, v{S1}, v{S1}
        ds_write_b16 v{vOW}, v{S1}
        """)
    def s2_read():
        for s in range(2):
            a(f"ds_read_b128 v[{BF+4*s}:{BF+4*s+3}], v{vOR} offset:{64*s}")
    def s2_mma(lo, hi):
        for u in range(lo, hi):
            s, t = u >> 2, u & 3
            a(f"v_mfma_f32_16x16x32_bf16 v[{OA+4*t}:{OA+4*t+3}], v[{WF+4*u}:{WF+4*u+3}], v[{BF+4*s}:{BF+4*s+3}], v[{OA+4*t}:{OA+4*t+3}]")
    def wf_load(lo, hi):
        if lo == 0:
            a("s_add_u32 s34, s33, s31")
            a("s_add_u32 s35, s34, 4096")
            a("s_add_u32 s31, s31, 0x10000")
            a("s_and_b32 s31, s31, 0x7ffff")
        for u in range(lo, hi):
            a(f"buffer_load_dwordx4 v[{WF+4*u}:{WF+4*u+3}], v{vWL}, s[8:11], s{34 + (u >> 2)} offen offset:{1024*(u&3)}{SC}")
            vm.issue("WF")
    def ffn_prefetch():
        a(f"""
        s_mov_b32 s39, s6
        s_cmp_eq_u32 s39, 1
        s_cselect_b64 s[36:37], s[64:65], s[62:63]
        s_cmp_eq_u32 s39, 2
        s_cselect_b64 s[36:37], s[66:67], s[36:37]
        """)
        srd(a, 12, 36, 37, 512 * 1792 * 2)
        a(f"""
        s_and_b32 s3, s2, 7
        s_lshr_b32 s4, s2, 3
        s_mul_i32 s5, s4, {16*3584}
        s_mul_i32 s36, s3, 448
        s_and_b32 s36, s36, 0xffffff80
        s_add_u32 s5, s5, s36
        s_lshl_b32 s36, s3, 7
        s_mul_i32 s37, s4, {56*1024}
        s_add_u32 s36, s36, s37
        v_lshrrev_b32 v{t0}, 2, v0
        v_mul_u32_u24 v{t0}, 3584, v{t0}
        v_and_b32 v{t1}, 3, v0
        v_lshl_add_u32 v{t0}, v{t1}, 7, v{t0}
        v_min_u32 v{t1}, 55, v0
        v_lshlrev_b32 v{t1}, 10, v{t1}
        s_cmp_eq_u32 s39, 2
        s_cselect_b32 s38, s36, s5
        s_cselect_b64 vcc, -1, 0
        v_cndmask_b32 v{vPA}, v{t0}, v{t1}, vcc
        s_lshl_b32 s39, s6, {PFS}
        s_add_u32 s39, s39, 1
        s_cmp_gt_u32 s6, 2
        s_cselect_b32 s39, 99, s39
        """)
    def ffn_setup():
        a(f"""
        s_and_b32 s3, s2, 7
        s_lshr_b32 s4, s2, 3
        s_and_b32 s5, s6, 1
        s_cmp_eq_u32 s5, 0
        s_cselect_b64 s[36:37], s[62:63], s[64:65]
        s_cmp_lt_u32 s2, 112
        s_cselect_b64 s[36:37], s[36:37], s[66:67]
        """)
        srd(a, 68, 36, 37, 512 * 1792 * 2)
        a(f"""
        s_mul_i32 s76, s3, 14
        s_add_u32 s76, s76, s4           ; fs
        s_lshl_b32 s77, s3, 2
        s_add_u32 s77, s77, s4
        s_sub_u32 s77, s77, 14           ; cb
        s_lshr_b32 s5, s6, 1
        s_mul_i32 s5, s5, {128*3584}
        s_lshl_b32 s36, s76, 5
        s_add_u32 s5, s5, s36
        s_mul_i32 s36, s6, {224*1024}
        s_lshl_b32 s37, s77, 5
        s_add_u32 s36, s36, s37
        s_cmp_lt_u32 s2, 112
        s_cselect_b32 s72, s5, s36
        s_movk_i32 s73, 1024
        s_cselect_b32 s73, 3584, s73
        s_cselect_b32 s75, 4, 7
        s_cmp_lt_u32 s2, 144
        s_cselect_b32 s75, s75, 0
        s_mul_i32 s74, s6, 7168
        s_add_u32 s74, s74, {L_FW:#x}
        v_lshrrev_b32 v{vFS}, 1, v0
        v_mul_lo_u32 v{vFS}, v{vFS}, s73
        v_and_b32 v{t1}, 1, v0
        v_lshl_add_u32 v{vFS}, v{t1}, 4, v{vFS}
        s_lshl_b32 s73, s73, 5
        s_mov_b32 s78, s74
        """)
    def ffn_stage():
        a(f"""
        s_cmp_lt_u32 s29, 4
        s_cbranch_scc1 K2_nost
        """)
        for e in range(2):
            a(f"""
            s_cmp_eq_u32 s75, 0
            s_cbranch_scc1 K2_nost
            s_mov_b32 m0, s78
            s_sub_u32 s75, s75, 1
            buffer_load_dwordx4 v{vFS}, s[68:71], s72 offen lds
            s_add_u32 s78, s78, 1024
            s_add_u32 s72, s72, s73
            """)
        a.label("K2_nost")
    def ffn_issue():
        a(f"""
        s_cmp_lg_u32 s29, s39
        s_cbranch_scc1 K2_nopf
        buffer_load_dword v{vPD}, v{vPA}, s[12:15], s38 offen
        """)
        a.label("K2_nopf")
    def setprio(p):
        if prio: a(f"s_setprio {p}")
    def mref_mma(q, d):
        a(f"{mf} v[{d}:{d+15}], v[{K}:{K+3}], v[{q}:{q+3}], 0")
        a(f"{mf} v[{d+16}:{d+31}], v[{K+4}:{K+7}], v[{q}:{q+3}], 0")
    def mref_max(S):
        a(f"v_max3_f32 v{t0}, v{S}, v{S+1}, v{S+2}")
        for r in range(3, 31, 2):
            a(f"v_max3_f32 v{t0}, v{t0}, v{S+r}, v{S+r+1}")
        a(f"""
        v_max_f32 v{t0}, v{t0}, v{S+31}
        v_mov_b32 v{t1}, v{t0}
        v_permlane32_swap_b32 v{t1}, v{t0}
        v_max_f32 v{t0}, v{t0}, v{t1}
        """)
        for r in range(4): a(f"v_sub_f32 v{S+r}, {f2u(-OFFS):#x}, v{t0}")
        a(f"ds_write_b128 v{t4}, v[{S}:{S+3}] offset:{L_MREF - L_Q}")
    def kv_first():
        ldK(0); ldK(1); ldV(0); ldK(2); ldV(1)
    for p in range(3): late_setup(p)
    ffn_prefetch(); ffn_setup()
    a(f"""
    s_lshl_b32 s3, s6, 2
    s_add_u32 s3, s3, {L_FLG:#x}
    v_mov_b32 v{vFW}, s3
    ds_write2_b32 v{vFW}, v{SP}, v{SP} offset0:0 offset1:8
    s_movk_i32 s59, {L_Q + 2048:#x}
    s_cmp_lg_u32 s30, 0
    s_cbranch_scc1 K2_safe
    s_cmp_lt_u32 s6, 4
    s_cbranch_scc1 K2_cw
    s_waitcnt vmcnt(0)
    """)
    st(3, 4)
    a(f"""
    s_barrier
    {"s_barrier" if int(OPT.get('pb', 99)) < 16 else ""}
    """)
    a.label("K2_cw")
    a(f"""
    s_cmp_eq_u32 s6, 4
    s_cbranch_scc1 K2_poller
    v_mov_b32 v{t0}, s58
    s_lshl_b32 s3, s2, 6
    s_lshl_b32 s4, s6, 2
    s_add_u32 s3, s3, s4
    s_add_u32 s3, s3, {WS_FQ:#x}
    s_waitcnt vmcnt(0)
    s_mov_b64 exec, 1
    buffer_store_dword v{t0}, v{SP}, s[8:11], s3 offen sc1
    s_mov_b64 exec, -1
    s_waitcnt lgkmcnt(0)
    s_barrier
    """)
    st(1, False); st(5, 4)
    kv_first()
    a("s_branch K2_go")
    a.label("K2_poller")
    PA, PB = X[0], X[0] + 8
    a(f"""
    v_lshlrev_b32 v{t1}, {FLS}, v0
    s_and_b32 s3, s2, 7
    s_lshl_b32 s3, s3, 14
    s_add_u32 s3, s3, {WS_FL:#x}
    s_add_u32 s4, s3, {64 << FLS}
    s_add_u32 s5, s3, {128 << FLS}
    s_add_u32 s34, s3, {192 << FLS}
    s_mov_b32 s36, 0
    """)
    def fissue(b):
        for k, sr in enumerate(("s3", "s4", "s5", "s34")):
            a(f"buffer_load_dword v{b+k}, v{t1}, s[8:11], {sr} offen sc1")
    def fchk(b):
        for r in range(4): a(f"v_xor_b32 v{b+r}, s58, v{b+r}")
        a(f"""
        v_or3_b32 v{b}, v{b}, v{b+1}, v{b+2}
        v_or_b32 v{b}, v{b}, v{b+3}
        v_cmp_ne_u32 vcc, 0, v{b}
        s_cbranch_vccz K2_sync0
        """)
    if int(OPT.get('fd', 24)): a(f"s_sleep {OPT.get('fd', 24)}")
    if 'fnp' in dbg:
        a.label("K2_fl")
        fissue(PA); a("s_waitcnt vmcnt(0)"); fchk(PA)
        a(f"s_sleep {OPT.get('fsl', 2)}")
    else:
        fissue(PA)
        a("s_sleep 3")
        a.label("K2_fl")
        fissue(PB); a("s_waitcnt vmcnt(4)"); fchk(PA)
        fissue(PA); a("s_waitcnt vmcnt(4)"); fchk(PB)
    a(f"""
    s_add_u32 s36, s36, 1
    s_cmp_lt_u32 s36, 0x40000
    s_cbranch_scc1 K2_fl
    """)
    a.label("K2_sync0")
    st(4, 4)
    a(f"""
    s_cmp_lg_u32 s2, 0
    s_cbranch_scc1 K2_sync1
    v_mov_b32 v{t0}, s58
    s_mov_b32 s3, {WS_EP:#x}
    s_mov_b64 exec, 1
    buffer_store_dword v{t0}, v{SP}, s[8:11], s3 offen sc1
    s_mov_b64 exec, -1
    """)
    a.label("K2_sync1")
    vm.q = []; vm.done = -1
    ldK(0); ldK(1)
    a("s_waitcnt lgkmcnt(0)")
    a("s_barrier")
    st(1, False); st(5, 4)
    a(f"ds_read_b128 v[{Q}:{Q+3}], v{vQA}")
    ldV(0); ldK(2); ldV(1)
    a("s_waitcnt vmcnt(5) lgkmcnt(0)")
    mref_mma(Q, X[0]); mref_max(X[0])
    a("s_branch K2_go")
    a.label("K2_safe")
    S = X[0]
    a(f"""
    v_and_b32 v{t0}, 31, v0
    v_lshlrev_b32 v{S1+4}, 2, v{t0}
    v_add_u32 v{S1+4}, {L_MX:#x}, v{S1+4}
    s_lshl_b32 s3, s44, 7
    v_add_u32 v{S1+5}, s3, v{S1+4}
    v_mov_b32 v{t0}, 0xff800000
    ds_write_b32 v{S1+5}, v{t0}
    s_waitcnt vmcnt(0) lgkmcnt(0)
    s_barrier
    v_mov_b32 v{t1}, v{vQA}
    s_mov_b32 s29, 0
    """)
    a.label("K2_safe_loop")
    a(f"""
    ds_read_b128 v[{BF}:{BF+3}], v{t1}
    v_mov_b32 v{t0}, 0xff800000
    s_waitcnt lgkmcnt(0)
    """)
    for t in range(8):
        a(f"v_mfma_f32_32x32x16_bf16 v[{S}:{S+15}], v[{K+4*t}:{K+4*t+3}], v[{BF}:{BF+3}], 0")
        for r in range(0, 16, 2):
            a(f"v_max3_f32 v{t0}, v{t0}, v{S+r}, v{S+r+1}")
    a(f"""
    ds_max_f32 v{S1+4}, v{t0}
    v_add_u32 v{t1}, 1024, v{t1}
    v_add_u32 v{S1+4}, 128, v{S1+4}
    s_add_u32 s29, s29, 1
    s_cmp_lt_u32 s29, 8
    s_cbranch_scc1 K2_safe_loop
    s_waitcnt lgkmcnt(0)
    s_barrier
    ds_read_b32 v{t0}, v{S1+5}
    s_waitcnt lgkmcnt(0)
    """)
    for r in range(4): a(f"v_sub_f32 v{BF+r}, 0, v{t0}")
    a(f"ds_write_b128 v{t4}, v[{BF}:{BF+3}] offset:{L_MREF - L_Q}")
    a.label("K2_go")
    a("s_waitcnt lgkmcnt(0)")
    a("s_barrier")
    st(2, False)
    rd_qcm()
    vm.wait("K0")
    a("s_waitcnt lgkmcnt(0)")
    M1(0, 0)
    a("s_mov_b32 s29, 1")
    setprio(3)
    ldK(3); ldV(2)
    st(3, False)
    if 'leak' in dbg or 'amp' in dbg: a('s_memrealtime s[94:95]'); a('s_waitcnt lgkmcnt(0)')
    def tile(i, hook):
        xb = i & 1; xn = xb ^ 1
        hook(i, 'a')
        E(xb, 0, 2)
        hook(i, 'm3b')
        E(xb, 2, 5)
        hook(i, 'm1')
        M1((i + 1) & 7, xn)
        hook(i, 0)
        if i == 0:
            E(xb, 5, 12)
            hook(i, 1)
            Ozero()
            E(xb, 12, 16)
            M3(0, i)
            hook(i, 2)
        else:
            E(xb, 5, 8)
            hook(i, 'e1')
            E(xb, 8, 10)
            hook(i, 1)
            M3(0, i)
            hook(i, 2)
            E(xb, 10, 13)
            hook(i, 'e2')
            E(xb, 13, 15)
            hook(i, 'e3')
            E(xb, 15, 16)
    def hook0(i, pos):
        if pos == 'a' and i in (0, 2, 4, 6): st(1 + i // 2, 3)
        if pos == 'a' and i in (3, 5, 7): setprio({3: 2, 5: 1, 7: 1}[i])
        if pos == 'm3b' and i > 0:
            vm.wait(f"V{i-1}1"); M3(1, i - 1)
        if pos == 'm1':
            if i < 7: vm.wait(f"K{i+1}")
            else: a("s_waitcnt lgkmcnt(0)")
        if pos == 0:
            if i + 4 <= 7: ldK(i + 4)
            if i + 3 <= 7: ldV(i + 3)
            if i == 6: wf_load(0, 4)
            if i == 7: wf_load(4, 8)
        QT = int(OPT.get('qt', 1))
        if pos == 'e1' and i == QT:
            a(f"buffer_load_dword v{t0}, v{SP}, s[8:11], s45 offen sc1"); vm.issue("FQ")
        if pos == 'e1' and i == QT + 1:
            vm.wait("FQ")
            a(f"v_cmp_ne_u32 vcc, s58, v{t0}")
            a("s_cbranch_vccnz K2_qspin")
            a.label("K2_qback")
            a(f"buffer_load_dwordx4 v[{BF}:{BF+3}], v{vWL}, s[8:11], s32 offen sc1"); vm.issue("Q")
        if pos == 'e2' and i == 4:
            vm.wait("Q")
            a(f"ds_write_b128 v{t4}, v[{BF}:{BF+3}]")
            mref_mma(BF, WF)
        if pos == 'e1' and i == 5:
            a("s_cmp_lg_u32 s30, 0")
            a("s_cbranch_scc1 K2_keepm")
            mref_max(WF)
            a.label("K2_keepm")
        if pos == 1:
            if i == 6:
                a("s_waitcnt lgkmcnt(0)"); a("s_barrier"); rd_qcm()
            vm.wait(f"V{i}0")
        if pos == 2 and i == 7:
            vm.wait("V71")
    for i in range(8): tile(i, hook0)
    st(5, 3)
    a.raw(".p2align 3")
    a.label("K2_round")
    spins = []
    def poll(off):
        a(f"ds_read_b32 v{vFV}, v{vFR} offset:{off}")
    def check(off):
        k = len(spins); spins.append(off)
        a(f"""
        s_waitcnt lgkmcnt(0)
        v_cmp_gt_u32 vcc, s59, v{vFV}
        s_cbranch_vccnz K2_spin{k}
        """)
        a.label(f"K2_back{k}")
    PR = dict(x.split('=') for x in dbg.split(',') if '=' in x).get('pr', 'c')
    def hook(i, pos):
        if pos == 'm3b': M3(1, (i - 1) & 7)
        if pos == 'm1' and i == 7: a("s_waitcnt lgkmcnt(0)")
        if pos == 1 and i == 6: rd_qcm()
        if 'nohook' in dbg: return
        if 'bar' in dbg.split(','):
            if pos == 'a' and i in (0, 6, 7): setprio({6: 2, 7: 1, 0: 0}[i])
            if i == 0 and pos == 1: part_write()
            if i == 1 and pos == 0:
                a("s_waitcnt lgkmcnt(0)"); a("s_barrier"); setprio(2); s1_read()
            if i == 2 and pos == 0:
                a("s_waitcnt lgkmcnt(0)"); s1_calc(); setprio(1)
            if i == 3 and pos == 0: setprio(0)
            if i == 4 and pos == 0:
                a("s_waitcnt vmcnt(0) lgkmcnt(0)"); a("s_barrier"); setprio(3); s2_read()
            seq = [(4, 'e3'), (5, 'e1'), (5, 'e2'), (5, 'e3'), (6, 'e1'), (6, 'e2'), (6, 'e3'), (7, 'e1')]
        else:
            ca = int(OPT.get('ca', 2)); cb = int(OPT.get('cb', 5)); PT = OPT.get('pt', '10110321')
            slots = [(t, p) for t in range(1, 8) for p in (('a', 'e1', 'e2', 'e3') if cb >= 6 else ('e1', 'e2', 'e3'))]
            if i == 0 and pos == 1:
                part_write(); a(f"ds_write_b32 v{vFW}, v{vQA}")
            if i == ca and pos == 0: poll(0)
            if i == ca and pos == 2: check(0); s1_read()
            if i == ca + 1 and pos == 0:
                a("s_waitcnt lgkmcnt(0)"); s1_calc(); a(f"ds_write_b32 v{vFW}, v{vQA} offset:32")
            if i == cb - 1 and pos == 2: poll(32)
            if i == cb and pos == 'm1':
                check(32); s2_read(); a("s_waitcnt vmcnt(0)")
            if len(PT) == 8: PT = "".join(ch * 2 for ch in PT)
            for hpos, k in (('a', 2 * i), (2, 2 * i + 1)):
                if pos == hpos and PT[k] != PT[k - 1]: setprio(int(PT[k]))
            av = [x for x in slots if x > (cb, 'e1')]
            if OPT.get('sp', '0') == '1' and len(av) >= 12: av = [x for x in av if x[1] != 'e3']
            seq = av[:8]
            while len(seq) < 8: seq = sorted(seq + [seq[len(seq) % len(av)]])
        for u in [k for k, x in enumerate(seq) if x == (i, pos)]:
            if u == 0: a("s_waitcnt lgkmcnt(0)")
            s2_mma(u, u + 1)
            if 'nowf' not in dbg: wf_load(u, u + 1)
            if u == 7 and 'nopf' not in dbg and PFP == 1: ffn_issue(); ffn_stage()
    for i in range(8): tile(i, hook)
    if 'rndst' in dbg:
        a(f"""
        s_memtime s[82:83]
        s_memrealtime s[100:101]
        s_waitcnt lgkmcnt(0)
        s_lshl_b32 s84, s2, 3
        s_add_u32 s84, s84, s6
        s_lshl_b32 s84, s84, 3
        s_add_u32 s84, s84, s29
        s_lshl_b32 s84, s84, 3
        s_add_u32 s84, s84, {WS_STAMP + 0x40000:#x}
        s_mov_b64 exec, 1
        v_mov_b32 v{S1+8}, s82
        v_mov_b32 v{S1+9}, s100
        v_mov_b32 v{S1+10}, 0
        buffer_store_dwordx2 v[{S1+8}:{S1+9}], v{S1+10}, s[8:11], s84 offen
        s_mov_b64 exec, -1
        """)
    a(f"""
    s_addk_i32 s59, 1024
    s_add_u32 s29, s29, 1
    s_cmp_lt_u32 s29, 8
    s_cbranch_scc1 K2_round
    """)
    st(4, False); st(0, True)
    M3(1, 7)
    XR = CM; WR = CM + 4; HV = X[0]; HN = X[0] + 8; PK = X[1]; ST = X[1] + 8
    a(f"""
    s_add_u32 s3, s7, s6
    s_lshl_b32 s4, s3, 10
    buffer_load_dwordx4 v[{XR}:{XR+3}], v{vWL}, s[16:19], s4 offen
    buffer_load_dwordx4 v[{WR}:{WR+3}], v{vWL}, s[24:27], 0 offen
    v_and_b32 v{t0}, 7, v0
    v_mul_u32_u24 v{t0}, 1040, v{t0}
    v_lshrrev_b32 v{t1}, 4, v0
    v_lshl_add_u32 v{t0}, v{t1}, 3, v{t0}
    s_lshl_b32 s5, s6, 7
    s_add_u32 s5, s5, {L_HB:#x}
    v_add_u32 v{t0}, s5, v{t0}
    s_mul_i32 s5, s6, 1040
    s_add_u32 s5, s5, {L_HB:#x}
    v_add_u32 v{t1}, s5, v{vWL}
    s_lshl_b32 s35, s6, 2
    s_add_u32 s35, s35, {L_KEY:#x}
    v_mov_b32 v{t4}, s35
    v_and_b32 v{t3}, 7, v0
    v_lshlrev_b32 v{t3}, 2, v{t3}
    v_add_u32 v{t3}, {L_KEY:#x}, v{t3}
    """)
    part_write()
    a("s_waitcnt lgkmcnt(0)"); a("s_barrier"); st(1, True); s1_read()
    a("s_waitcnt lgkmcnt(0)"); s1_calc()
    a(f"""
    v_mov_b32 v{t2}, {f2u(2.0**124):#x}
    v_cmp_nlt_f32 vcc, v{vLM}, v{t2}
    s_cmp_lg_u64 vcc, 0
    s_cselect_b32 s5, 1, 0
    v_mov_b32 v{t2}, s5
    ds_write_b32 v{t4}, v{t2} offset:32
    """)
    a("s_waitcnt vmcnt(2) lgkmcnt(0)"); a("s_barrier"); st(2, True); s2_read()
    a(f"ds_read_b32 v{t2}, v{t3} offset:32")
    a("s_waitcnt lgkmcnt(1)"); s2_mma(0, 8)
    a(f"""
    s_waitcnt lgkmcnt(0)
    v_cmp_ne_u32 vcc, 0, v{t2}
    s_cmp_eq_u64 vcc, 0
    s_cbranch_scc1 K2_good
    s_cmp_lg_u32 s30, 0
    s_cbranch_scc1 K2_good
    s_mov_b32 s30, 1
    s_waitcnt vmcnt(0)
    s_setprio 0
    s_branch K2_restart
    """)
    a.label("K2_good")
    for t in range(4):
        a(f"v_cvt_pk_bf16_f32 v{S1+2*t}, v{OA+4*t}, v{OA+4*t+1}")
        a(f"v_cvt_pk_bf16_f32 v{S1+2*t+1}, v{OA+4*t+2}, v{OA+4*t+3}")
        a(f"ds_write_b64 v{t0}, v[{S1+2*t}:{S1+2*t+1}] offset:{32*t}")
    a("s_waitcnt vmcnt(0)")
    for r in range(4):
        a(f"v_lshlrev_b32 v{HV+2*r}, 16, v{XR+r}")
        a(f"v_and_b32 v{HV+2*r+1}, 0xffff0000, v{XR+r}")
        a(f"v_lshlrev_b32 v{WF+2*r}, 16, v{WR+r}")
        a(f"v_and_b32 v{WF+2*r+1}, 0xffff0000, v{WR+r}")
    a(f"""
    s_waitcnt lgkmcnt(0)
    s_barrier
    """)
    st(3, True)
    a(f"""
    ds_read_b128 v[{BF}:{BF+3}], v{t1}
    s_waitcnt lgkmcnt(0)
    """)
    for r in range(4):
        a(f"v_lshlrev_b32 v{HN+2*r}, 16, v{BF+r}")
        a(f"v_and_b32 v{HN+2*r+1}, 0xffff0000, v{BF+r}")
    P2 = lambda b, r: f"v[{b+r}:{b+r+1}]"
    for r in range(0, 8, 2): a(f"v_pk_add_f32 {P2(HV,r)}, {P2(HV,r)}, {P2(HN,r)}")
    for r in range(8): a(f"v_cvt_pk_bf16_f32 v{HV+r}, 0, v{HV+r}")
    SA, SB = S1, S1 + 2
    a(f"v_pk_add_f32 {P2(SA,0)}, {P2(HV,0)}, {P2(HV,2)}")
    a(f"v_pk_mul_f32 {P2(SB,0)}, {P2(HV,0)}, {P2(HV,0)}")
    a(f"v_pk_add_f32 {P2(SA,4)}, {P2(HV,4)}, {P2(HV,6)}")
    a(f"v_pk_fma_f32 {P2(SB,0)}, {P2(HV,2)}, {P2(HV,2)}, {P2(SB,0)}")
    a(f"v_pk_add_f32 {P2(SA,0)}, {P2(SA,0)}, {P2(SA,4)}")
    a(f"v_pk_fma_f32 {P2(SB,0)}, {P2(HV,4)}, {P2(HV,4)}, {P2(SB,0)}")
    a(f"v_add_f32 v{t0}, v{SA}, v{SA+1}")
    a(f"v_pk_fma_f32 {P2(SB,0)}, {P2(HV,6)}, {P2(HV,6)}, {P2(SB,0)}")
    a(f"v_add_f32 v{t2}, v{SB}, v{SB+1}")
    wave_sum(a, [t0, t2], [ST, ST + 1])
    ln_scalars(a, t0, t2, ST, ST + 2, ST + 1, ST + 3)
    st(4, True)
    for r in range(0, 8, 2): a(f"v_pk_add_f32 {P2(HN,r)}, {P2(HV,r)}, {P2(ST,0)} op_sel_hi:[1,0] neg_lo:[0,1] neg_hi:[0,1]")
    for r in range(8): a(f"v_cvt_pk_bf16_f32 v{HN+r}, 0, v{HN+r}")
    for r in range(0, 8, 2): a(f"v_pk_mul_f32 {P2(HN,r)}, {P2(HN,r)}, {P2(ST,2)} op_sel_hi:[1,0]")
    for r in range(8): a(f"v_cvt_pk_bf16_f32 v{HN+r}, 0, v{HN+r}")
    a(f"v_pk_mul_f32 {P2(SA,0)}, {P2(HN,0)}, {P2(WF,0)}")
    for r in range(2, 8, 2): a(f"v_pk_fma_f32 {P2(SA,0)}, {P2(HN,r)}, {P2(WF,r)}, {P2(SA,0)}")
    a(f"v_add_f32 v{t2}, v{SA}, v{SA+1}")
    fill = [f"v_pk_add_f32 {P2(WF+8,r)}, {P2(HV,r)}, {P2(HN,r)}" for r in range(0, 8, 2)]
    fill += [f"v_cvt_pk_bf16_f32 v{PK+4+r}, v{HV+2*r}, v{HV+2*r+1}" for r in range(4)]
    fill += [f"v_cvt_pk_bf16_f32 v{ST+4+r}, v{HN+2*r}, v{HN+2*r+1}" for r in range(4)]
    for mod in ("quad_perm:[1,0,3,2]", "quad_perm:[2,3,0,1]", "row_half_mirror", "row_mirror"):
        a(fill.pop(0)); a(fill.pop(0))
        a(f"v_add_f32_dpp v{t2}, v{t2}, v{t2} {mod} row_mask:0xf bank_mask:0xf")
    for w in (16, 32):
        a(f"v_mov_b32 v{t0}, v{t2}")
        a(fill.pop(0)); a(fill.pop(0))
        a(f"v_permlane{w}_swap_b32 v{t0}, v{t2}")
        a(f"v_add_f32 v{t2}, v{t2}, v{t0}")
    if 'leak' in dbg:
        a(f"""
        s_cmp_lg_u32 s3, 0
        s_cbranch_scc1 K2_leak
        s_memrealtime s[92:93]
        v_mov_b32 v{S1+4}, 0
        s_mov_b32 s5, {WS_SEL:#x}
        buffer_load_dwordx4 v[{S1}:{S1+3}], v{S1+4}, s[8:11], s5 offen
        s_waitcnt vmcnt(0) lgkmcnt(0)
        s_mov_b64 exec, 1
        v_add_f32 v{WF+8}, {f2u(64.0):#x}, v{WF+8}
        v_sub_u32 v{WF+9}, v{S1+2}, v{S1}
        v_sub_u32 v{WF+10}, v{S1+1}, v{S1}
        v_sub_u32 v{WF+11}, s90, v{S1}
        v_sub_u32 v{WF+12}, s94, v{S1}
        v_sub_u32 v{WF+13}, s92, v{S1}
        """)
        for r in range(9, 14):
            a(f"v_cvt_f32_u32 v{WF+r}, v{WF+r}")
            a(f"v_mul_f32 v{WF+r}, {f2u(0.005):#x}, v{WF+r}")
            a(f"v_min_f32 v{WF+r}, {f2u(20.0):#x}, v{WF+r}")
        a("s_mov_b64 exec, -1")
        a.label("K2_leak")
    a(f"""
    v_cvt_pk_bf16_f32 v{t2}, 0, v{t2}
    v_ashrrev_i32 v{t0}, 31, v{t2}
    v_or_b32 v{t0}, 0x80000000, v{t0}
    v_xor_b32 v{t2}, v{t2}, v{t0}
    v_and_b32 v{t2}, 0xffff0000, v{t2}
    s_sub_u32 s5, 0xffff, s3
    v_or_b32 v{t2}, s5, v{t2}      ; key
    ds_write_b32 v{t4}, v{t2}
    """)
    for r in range(4): a(f"v_cvt_pk_bf16_f32 v{PK+r}, v{WF+8+2*r}, v{WF+8+2*r+1}")
    a(f"""
    buffer_store_dwordx4 v[{PK}:{PK+3}], v{vWL}, s[20:23], s4 offen sc1
    """)
    a(f"""
    s_waitcnt lgkmcnt(0)
    s_barrier
    ds_read_b32 v{t1}, v{t3}
    s_waitcnt lgkmcnt(0)
    v_cmp_gt_u32 vcc, v{t1}, v{t2}
    v_cmp_eq_u32 s[36:37], v{t1}, v{t2}
    s_and_b32 s38, vcc_lo, 0xff
    s_bcnt1_i32_b32 s38, s38       ; rank
    """)
    st(5, False); st(5, True); st(0, 2); st(1, 2); st(2, 2); st(3, 2); st(4, 2); st(5, 2)
    a(f"""
    s_cmp_gt_u32 s38, 1
    s_cbranch_scc1 K2_pub0
    s_add_u32 s5, s4, {WS_H:#x}
    buffer_store_dwordx4 v[{PK+4}:{PK+7}], v{vWL}, s[8:11], s5 offen sc1
    s_add_u32 s5, s4, {WS_HN:#x}
    buffer_store_dwordx4 v[{ST+4}:{ST+7}], v{vWL}, s[8:11], s5 offen sc1
    v_cndmask_b32 v{ST+1}, v{t1}, 0, s[36:37]
    v_mov_b32 v{ST}, v{t2}
    s_lshl_b32 s5, s2, {G.KS_LOG}
    s_add_u32 s5, s5, {WS_KEY:#x}
    v_lshlrev_b32 v{t0}, 14, v0
    """)
    for mod in ("quad_perm:[1,0,3,2]", "quad_perm:[2,3,0,1]", "row_half_mirror"):
        a(f"v_max_u32_dpp v{ST+1}, v{ST+1}, v{ST+1} {mod} row_mask:0xf bank_mask:0xf")
    a("s_waitcnt vmcnt(0)")
    a.label("K2_pub0")
    a(f"""
    s_barrier
    s_cmp_lg_u32 s38, 0
    s_cbranch_scc1 K2_pub
    s_mov_b64 exec, {0xff if KREP else 1}
    buffer_store_dwordx2 v[{ST}:{ST+1}], v{t0}, s[8:11], s5 offen sc1
    s_mov_b64 exec, -1
    """)
    a.label("K2_pub")
    if 'amp' in dbg: a('s_memrealtime s[96:97]'); a('s_waitcnt lgkmcnt(0)')
    st(1, 2)
    def fin():
        if G.STAMP: a("s_waitcnt vmcnt(0)")
        stamp(a, 6)
        if G.STAMP: a("s_mov_b32 s91, s30")
        stamp_out(a, 1, 8, "s6", WF)
        a("s_endpgm")
    a(f"""
    s_cmp_ge_u32 s2, 144
    s_cbranch_scc1 K2_fin
    """)
    AFR = V
    KY = K; Y = K + 8; BX = V + 32; AC = K + 16
    a(f"""
    s_setprio 0
    v_bfe_u32 v{t0}, v0, 2, 2
    v_lshrrev_b32 v{t4}, 4, v0           ; g
    v_lshl_add_u32 v{t0}, v{t4}, 3, v{t0}
    v_lshlrev_b32 v{t0}, 5, v{t0}
    v_and_b32 v{t1}, 3, v0
    v_lshl_add_u32 v{t0}, v{t1}, 3, v{t0}
    v_add_u32 v{t0}, s74, v{t0}
    """)
    for sx in range(7):
        for half in range(2):
            d = AFR + 4 * sx + 2 * half
            a(f"ds_read_b64_tr_b16 v[{d}:{d+1}], v{t0} offset:{sx*1024 + half*128}")
    a(f"""
    v_and_b32 v{t3}, 1, v0
    v_lshlrev_b32 v{vPW}, 6, v{t3}
    v_lshl_add_u32 v{vPW}, v{t4}, 4, v{vPW}
    s_lshl_b32 s5, s6, 7
    s_add_u32 s5, s5, {L_RED:#x}
    v_add_u32 v{vPW}, s5, v{vPW}
    v_and_b32 v{vPR}, 31, v0
    v_lshlrev_b32 v{vPR}, 2, v{vPR}      ; (lane&31)*4
    v_lshrrev_b32 v{vOR}, 5, v0
    v_lshl_add_u32 v{vOR}, v{vOR}, 14, v{vPR}
    s_cmp_lg_u32 s6, 0
    s_cbranch_scc1 K2_nokey
    v_lshlrev_b32 v{t1}, {G.KS_LOG}, v0
    s_and_b32 s5, s2, {7 if KREP else 0}
    s_lshl_b32 s5, s5, 14
    s_add_u32 s5, s5, {WS_KEY:#x}
    s_add_u32 s79, s5, {64 << G.KS_LOG}
    s_add_u32 s80, s5, {128 << G.KS_LOG}
    s_add_u32 s81, s5, {192 << G.KS_LOG}
    s_mov_b32 s36, 0
    """)
    KZ = V + 60 - 8 * 0
    def poll_loop(name, issue, nld):
        K2R = X[0]
        def chk(b):
            a(f"""
            v_min3_u32 v{Y}, v{b}, v{b+1}, v{b+2}
            v_min3_u32 v{Y+1}, v{b+3}, v{b+4}, v{b+5}
            v_min3_u32 v{Y}, v{Y}, v{b+6}, v{b+7}
            v_min_u32 v{Y}, v{Y}, v{Y+1}
            v_cmp_eq_u32 vcc, 0, v{Y}
            """)
        sl = OPT.get('psl', 3)
        issue(KY)
        a(f"s_sleep {sl}")
        a.label(f"{name}_l")
        issue(K2R)
        a(f"s_waitcnt vmcnt({nld})")
        chk(KY)
        a(f"s_cbranch_vccz {name}_ok")
        issue(KY)
        a(f"s_waitcnt vmcnt({nld})")
        chk(K2R)
        a(f"""
        s_cbranch_vccz {name}_ok2
        s_add_u32 s36, s36, 1
        s_cmp_lt_u32 s36, 0x40000
        s_cbranch_scc1 {name}_l
        """)
        a.label(f"{name}_ok2")
        for r in range(0, 8, 2): a(f"v_pk_mov_b32 v[{KY+r}:{KY+r+1}], v[{K2R+r}:{K2R+r+1}], v[{K2R+r}:{K2R+r+1}] op_sel:[0,1]")
        a.label(f"{name}_ok")
    def kissue(b):
        for k, sr in enumerate(("s5", "s79", "s80", "s81")):
            a(f"buffer_load_dwordx2 v[{b+2*k}:{b+2*k+1}], v{t1}, s[8:11], {sr} offen sc1")
    if int(OPT.get('kd', 16)): a(f"s_sleep {OPT.get('kd', 16)}")
    poll_loop("K2_kp", kissue, 4)
    a.label("K2_kok")
    st(2, 2)
    if FS: a("s_mov_b32 s30, s36")
    B1, B2 = Y + 4, Y + 5
    a(f"""
    v_max_u32 v{B1}, v{KY}, v{KY+2}
    v_min_u32 v{B2}, v{KY}, v{KY+2}
    v_max3_u32 v{B2}, v{B2}, v{KY+1}, v{KY+3}
    v_max_u32 v{Y}, v{KY+4}, v{KY+6}
    v_min_u32 v{Y+1}, v{KY+4}, v{KY+6}
    v_max3_u32 v{Y+1}, v{Y+1}, v{KY+5}, v{KY+7}
    v_min_u32 v{Y+2}, v{B1}, v{Y}
    v_max_u32 v{B1}, v{B1}, v{Y}
    v_max3_u32 v{B2}, v{B2}, v{Y+1}, v{Y+2}
    v_mov_b32 v{Y}, v{B1}
    """)
    wave_max_u32(a, Y, Y + 1)
    a(f"""
    v_cmp_eq_u32 vcc, v{B1}, v{Y}
    v_cndmask_b32 v{B1}, v{B1}, v{B2}, vcc
    """)
    wave_max_u32(a, B1, Y + 1)
    a(f"""
    v_readfirstlane_b32 s40, v{Y}
    v_readfirstlane_b32 s41, v{B1}
    s_andn2_b32 s42, 0x7ff, s40
    s_andn2_b32 s43, 0x7ff, s41
    s_lshl_b32 s42, s42, 10
    s_lshl_b32 s43, s43, 10
    """)
    a.label("K2_nokey")
    a(f"""
    s_cmp_ge_u32 s2, 112
    s_cbranch_scc1 K2_down
    s_cmp_lg_u32 s6, 0
    s_cbranch_scc1 K2_up1
    s_add_u32 s36, s42, {WS_HN:#x}
    s_add_u32 s37, s43, {WS_HN:#x}
    buffer_load_dwordx4 v[{KY}:{KY+3}], v{vWL}, s[8:11], s36 offen sc1
    buffer_load_dwordx4 v[{KY+4}:{KY+7}], v{vWL}, s[8:11], s37 offen sc1
    s_waitcnt vmcnt(1)
    ds_write_b128 v{vWL}, v[{KY}:{KY+3}] offset:{L_XS}
    s_waitcnt vmcnt(0)
    ds_write_b128 v{vWL}, v[{KY+4}:{KY+7}] offset:{L_XS + 1040}
    """)
    a.label("K2_up1")
    st(3, 2)
    a(f"""
    v_mul_u32_u24 v{t0}, 1040, v{t3}
    v_lshl_add_u32 v{t0}, v{t4}, 4, v{t0}
    s_lshr_b32 s5, s6, 1
    s_lshl_b32 s5, s5, 8
    v_add_u32 v{t0}, s5, v{t0}
    s_waitcnt lgkmcnt(0)
    s_barrier
    """)
    for sx in range(4):
        a(f"ds_read_b128 v[{BX+4*sx}:{BX+4*sx+3}], v{t0} offset:{L_XS + 64*sx}")
    for sx in range(4):
        a(f"s_waitcnt lgkmcnt({3-sx})")
        c = "0" if sx == 0 else f"v[{AC}:{AC+3}]"
        a(f"v_mfma_f32_16x16x32_bf16 v[{AC}:{AC+3}], v[{AFR+4*sx}:{AFR+4*sx+3}], v[{BX+4*sx}:{BX+4*sx+3}], {c}")
    a(f"""
    ds_write_b128 v{vPW}, v[{AC}:{AC+3}]
    s_waitcnt lgkmcnt(0)
    s_barrier
    s_cmp_lg_u32 s6, 0
    s_cbranch_scc1 K2_fin
    """)
    def red_read():
        a(f"v_add_u32 v{t0}, {L_RED:#x}, v{vPR}")
        a("s_waitcnt vmcnt(0)")
        for k in range(4):
            a(f"ds_read2_b32 v[{KY+2*k}:{KY+2*k+1}], v{t0} offset0:{64*k} offset1:{64*k+32}")
        a("s_waitcnt lgkmcnt(0)")
        a(f"v_pk_add_f32 v[{KY}:{KY+1}], v[{KY}:{KY+1}], v[{KY+2}:{KY+3}]")
        a(f"v_pk_add_f32 v[{KY+4}:{KY+5}], v[{KY+4}:{KY+5}], v[{KY+6}:{KY+7}]")
        a(f"v_pk_add_f32 v[{KY}:{KY+1}], v[{KY}:{KY+1}], v[{KY+4}:{KY+5}]")
    st(4, 2)
    red_read()
    a(f"""
    v_cvt_pk_bf16_f32 v{KY}, 0, v{KY}
    v_cvt_pk_bf16_f32 v{KY+1}, 0, v{KY+1}
    """)
    sigmoid(a, KY + 2, KY, KY + 3)
    a(f"""
    v_mul_f32 v{KY}, v{KY}, v{KY+2}
    v_cvt_pk_bf16_f32 v{KY}, 0, v{KY}
    v_mul_f32 v{KY}, v{KY}, v{KY+1}
    v_cvt_pk_bf16_f32 v{KY}, 0, v{KY}
    v_or_b32 v{KY}, 1, v{KY}
    s_lshl_b32 s5, s76, 7
    s_add_u32 s5, s5, {WS_GU:#x}
    """)
    if GREP:
        for k in range(4):
            a(f"buffer_store_dword v{KY}, v{vOR}, s[8:11], s5 offen sc1")
            if k < 3: a("s_add_u32 s5, s5, 0x8000")
    else:
        a(f"""
        s_mov_b32 exec_hi, 0
        buffer_store_dword v{KY}, v{vPR}, s[8:11], s5 offen sc1
        s_mov_b64 exec, -1
        """)
    a(f"""
    s_branch K2_fin
    """)
    a.label("K2_down")
    HH, NN, GT, OO = Y + 6, Y + 7, AC + 4, AC + 5
    a(f"""
    s_cmp_lg_u32 s6, 0
    s_cbranch_scc1 K2_dn1
    v_bfe_u32 v{t0}, v0, 4, 1
    v_cmp_eq_u32 vcc, 0, v{t0}
    v_mov_b32 v{t0}, s43
    v_mov_b32 v{t1}, s42
    v_cndmask_b32 v{OO}, v{t0}, v{t1}, vcc
    v_and_b32 v{t0}, 15, v0
    v_lshl_add_u32 v{OO}, v{t0}, 1, v{OO}
    s_lshl_b32 s44, s77, 5
    s_add_u32 s36, s44, {WS_H:#x}
    s_add_u32 s37, s44, {WS_HN:#x}
    buffer_load_ushort v{HH}, v{OO}, s[8:11], s36 offen sc1
    buffer_load_ushort v{NN}, v{OO}, s[8:11], s37 offen sc1
    v_mov_b32 v{t0}, s41
    v_mov_b32 v{t1}, s40
    v_cndmask_b32 v{GT}, v{t0}, v{t1}, vcc
    v_and_b32 v{GT}, 0xffff0000, v{GT}
    v_ashrrev_i32 v{t0}, 31, v{GT}
    v_not_b32 v{t0}, v{t0}
    v_or_b32 v{t0}, 0x80000000, v{t0}
    v_xor_b32 v{GT}, v{GT}, v{t0}
    v_and_b32 v{GT}, 0xffff0000, v{GT}
    """)
    sigmoid(a, GT, GT, t0)
    a(f"v_cvt_pk_bf16_f32 v{GT}, 0, v{GT}")
    a.label("K2_dn1")
    a(f"""
    s_mul_i32 s5, s6, 1792
    s_and_b32 s37, s2, {7 if GREP else 0}
    s_lshl_b32 s37, s37, 14
    s_add_u32 s5, s5, s37
    s_add_u32 s5, s5, {WS_GU:#x}
    v_min_u32 v{t1}, 47, v0
    v_lshlrev_b32 v{t1}, 4, v{t1}
    s_lshl_b32 s37, s6, 10
    s_add_u32 s37, s37, {L_GB:#x}
    v_lshrrev_b32 v{t0}, 3, v0
    v_lshlrev_b32 v{vPL}, 5, v{t0}
    v_and_b32 v{t0}, 3, v0
    v_lshl_add_u32 v{vPL}, v{t0}, 3, v{vPL}
    v_bfe_u32 v{t0}, v0, 2, 1
    v_mul_u32_u24 v{t0}, 464, v{t0}
    v_add3_u32 v{vPL}, v{vPL}, v{t0}, s37
    v_mul_u32_u24 v{vOW}, 464, v{t3}
    v_lshl_add_u32 v{vOW}, v{t4}, 4, v{vOW}
    v_add_u32 v{vOW}, s37, v{vOW}
    s_mov_b32 s45, 0x07060302
    s_mov_b32 s36, 0
    """)
    def gissue(b):
        a(f"buffer_load_dwordx4 v[{b}:{b+3}], v{vWL}, s[8:11], s5 offen sc1")
        a(f"buffer_load_dwordx4 v[{b+4}:{b+7}], v{t1}, s[8:11], s5 offen offset:1024 sc1")
    if 'nogb' not in dbg:
        a("s_barrier")
        if int(OPT.get('gd', 24)): a(f"s_sleep {OPT.get('gd', 24)}")
    poll_loop("K2_gp", gissue, 2)
    a.label("K2_gok")
    st(4, 2)
    a(f"""
    v_perm_b32 v{Y}, v{KY+1}, v{KY}, s45
    v_perm_b32 v{Y+1}, v{KY+3}, v{KY+2}, s45
    v_perm_b32 v{Y+2}, v{KY+5}, v{KY+4}, s45
    v_perm_b32 v{Y+3}, v{KY+7}, v{KY+6}, s45
    ds_write_b64 v{vPL}, v[{Y}:{Y+1}]
    s_mov_b32 exec_hi, 0xffff
    ds_write_b64 v{vPL}, v[{Y+2}:{Y+3}] offset:256
    s_mov_b64 exec, -1
    """)
    for sx in range(7):
        a(f"ds_read_b128 v[{BX+4*sx}:{BX+4*sx+3}], v{vOW} offset:{64*sx}")
    for sx in range(7):
        a(f"s_waitcnt lgkmcnt({6-sx})")
        c = "0" if sx == 0 else f"v[{AC}:{AC+3}]"
        a(f"v_mfma_f32_16x16x32_bf16 v[{AC}:{AC+3}], v[{AFR+4*sx}:{AFR+4*sx+3}], v[{BX+4*sx}:{BX+4*sx+3}], {c}")
    a(f"""
    ds_write_b128 v{vPW}, v[{AC}:{AC+3}]
    s_waitcnt lgkmcnt(0)
    s_barrier
    s_cmp_lg_u32 s6, 0
    s_cbranch_scc1 K2_fin
    """)
    red_read()
    a(f"""
    v_add_f32 v{KY}, v{KY}, v{KY+1}
    v_lshlrev_b32 v{HH}, 16, v{HH}
    v_lshlrev_b32 v{NN}, 16, v{NN}
    v_cvt_pk_bf16_f32 v{KY}, 0, v{KY}
    v_mul_f32 v{KY}, v{KY}, v{GT}
    v_cvt_pk_bf16_f32 v{KY}, 0, v{KY}
    v_add_f32 v{KY}, v{KY}, v{NN}
    v_cvt_pk_bf16_f32 v{KY}, 0, v{KY}
    v_add_f32 v{KY}, v{KY}, v{HH}
    v_cvt_pk_bf16_f32 v{KY}, v{KY}, v{KY}
    s_mov_b32 exec_hi, 0
    buffer_store_short v{KY}, v{OO}, s[20:23], s44 offen sc1
    s_mov_b64 exec, -1
    """)
    a.label("K2_fin")
    if 'amp' in dbg:
        q = int(OPT['amp'])
        expr = {0: None, 1: ("s83", "s82"), 2: ("s90", "s83"), 3: ("s96", "s90"), 4: ("s84", "s82"), 5: ("s94", "s90"), 6: ("s88", "s87"), 7: ("s82", "s87"), 8: ("s89", "s87"), 9: ("s90", "s89")}[q]
        a(f"""
        s_or_b32 s5, s2, s6
        s_cmp_lg_u32 s5, 0
        s_cbranch_scc1 K2_amp_end
        s_mov_b32 s5, {WS_SEL:#x}
        buffer_load_dwordx4 v[{S1}:{S1+3}], v{vWL}, s[8:11], s5 offen
        s_waitcnt vmcnt(0)
        v_readfirstlane_b32 s82, v{S1}
        v_readfirstlane_b32 s83, v{S1+1}
        v_readfirstlane_b32 s84, v{S1+2}
        v_not_b32 v{S1+3}, v{S1}
        """)
        wave_max_u32(a, S1, S1 + 5); wave_max_u32(a, S1 + 3, S1 + 5); wave_max_u32(a, S1 + 1, S1 + 5)
        a(f"""
        v_readfirstlane_b32 s88, v{S1}
        v_readfirstlane_b32 s87, v{S1+3}
        v_readfirstlane_b32 s89, v{S1+1}
        s_not_b32 s87, s87
        """)
        if expr: a(f"s_sub_u32 s85, {expr[0]}, {expr[1]}")
        else: a("s_mov_b32 s85, 0")
        a(f"""
        s_min_u32 s85, s85, 5000
        s_lshl_b32 s85, s85, 1
        s_add_u32 s85, s85, 600
        s_add_u32 s85, s85, s96
        """)
        a.label("K2_amp")
        a(f"""
        s_memrealtime s[92:93]
        s_waitcnt lgkmcnt(0)
        s_sub_u32 s86, s92, s85
        s_cmp_lt_i32 s86, 0
        s_cbranch_scc1 K2_amp
        """)
        a.label("K2_amp_end")
    if G.STAMP: a("s_waitcnt vmcnt(0)")
    stamp(a, 6)
    if G.STAMP: a("s_mov_b32 s91, s30")
    stamp_out(a, 1, 8, "s6", WF)
    dstamp(a, 1, True, 240)
    a.label("K2_end")
    a("s_endpgm")
    a.label("K2_qspin")
    a(f"""
    s_mov_b32 s36, 0
    """)
    a.label("K2_qspin1")
    a(f"""
    s_sleep 2
    buffer_load_dword v{t0}, v{SP}, s[8:11], s45 offen sc1
    s_add_u32 s36, s36, 1
    s_waitcnt vmcnt(0)
    v_cmp_ne_u32 vcc, s58, v{t0}
    s_cbranch_vccz K2_qback
    s_cmp_lt_u32 s36, 0x40000
    s_cbranch_scc1 K2_qspin1
    s_branch K2_qback
    """)
    for k, off in enumerate(spins):
        a.label(f"K2_spin{k}")
        a(f"""
        s_sleep 1
        ds_read_b32 v{vFV}, v{vFR} offset:{off}
        s_waitcnt lgkmcnt(0)
        v_cmp_gt_u32 vcc, s59, v{vFV}
        s_cbranch_vccnz K2_spin{k}
        s_branch K2_back{k}
        """)
```

```python
from gen import *
import gen as G

L_X = 0; L_W = 65536; L_KV = 131072; L_WOT = L_KV + 16384; L_DN = L_WOT + 2048; L1_TOTAL = L_DN + 64
L_Q0 = 0x6000

def gen_p1(a, dbg=''):
    SC = ' sc1'
    def p1(i):
        if 'p1st' in dbg: stamp(a, i)
    FST = int(dict(x.split('=') for x in dbg.split(',') if '=' in x).get('fst', 2))
    WB = int(dict(x.split('=') for x in dbg.split(',') if '=' in x).get('wb', 5))
    WD = int(dict(x.split('=') for x in dbg.split(',') if '=' in x).get('wd', 9))
    PB = int(dict(x.split('=') for x in dbg.split(',') if '=' in x).get('pb', 99))
    FLS = int(dict(x.split('=') for x in dbg.split(',') if '=' in x).get('fls', 4))
    EPOCH = f"""
    s_add_u32 s56, s32, {WS_EP:#x}
    s_addc_u32 s57, s33, 0
    s_load_dword s58, s[56:57], 0
    """
    X = 32
    ACC = 96
    AF = 116
    T = 148
    a(f"""
    s_cmp_lt_u32 s2, 256
    s_cbranch_scc1 K1_go
    s_endpgm
    """)
    a.label("K1_go")
    stamp(a, 0)
    if ('leak' in dbg or 'amp' in dbg): a('s_memrealtime s[90:91]')
    dstamp(a, 0, False, 200)
    a(f"""
    s_load_dwordx8 s[24:31], s[0:1], 0
    s_load_dwordx2 s[44:45], s[0:1], 32
    s_load_dwordx2 s[32:33], s[0:1], 96
    """)
    if 'nocodepf' not in dbg:
        a(f"""
        s_cmp_ge_u32 s2, 16
        s_cbranch_scc1 K1_nocp
        v_subrev_u32 v30, 256, v0
        v_cmp_gt_u32 vcc, (K_all_end-k1_kernel+127)/128, v30
        s_and_saveexec_b64 s[62:63], vcc
        s_cbranch_execz K1_cpx
        s_getpc_b64 s[60:61]
        """)
        a.label("K1_pc")
        a(f"""
        s_sub_u32 s60, s60, K1_pc-k1_kernel
        s_subb_u32 s61, s61, 0
        v_lshlrev_b32 v30, 7, v30
        global_load_dword v31, v30, s[60:61]
        """)
        a.label("K1_cpx")
        a("s_mov_b64 exec, s[62:63]")
        a.label("K1_nocp")
    a(f"""
    s_and_b32 s3, s2, 7
    s_lshr_b32 s4, s2, 3
    s_and_b32 s5, s4, 7
    s_lshr_b32 s4, s4, 3           ; tb & 3
    s_lshl_b32 s3, s3, 2
    s_add_u32 s3, s3, s4
    v_lshrrev_b32 v1, 6, v0
    v_and_b32 v2, 63, v0           ; lane
    v_readfirstlane_b32 s6, v1     ; wave
    v_and_b32 v3, 15, v2           ; l & 15
    v_lshrrev_b32 v4, 4, v2        ; g
    v_bfe_u32 v18, v2, 2, 2        ; r'
    v_and_b32 v19, 3, v2           ; c'
    v_lshl_add_u32 v20, v4, 3, v18 ; 8g + r'
    v_lshlrev_b32 v17, 5, v20
    v_lshl_add_u32 v17, v19, 3, v17
    s_cmp_ge_u32 s6, 4
    s_cbranch_scc1 K1_loader
    """)
    a(f"""
    s_lshl_b32 s7, s3, 6
    s_lshl_b32 s34, s6, 4
    s_add_u32 s7, s7, s34
    v_add_u32 v5, s7, v3           ; token
    v_lshrrev_b32 v6, 2, v2        ; row
    v_lshrrev_b32 v7, 4, v2
    v_and_b32 v7, 2, v7
    v_xor_b32 v7, v7, v19
    v_lshlrev_b32 v6, 10, v6
    v_lshl_add_u32 v6, v7, 4, v6
    s_lshl_b32 s63, s6, 14
    s_add_u32 s63, s63, {L_X}
    s_lshl_b32 s64, s7, 10
    s_lshl_b32 s62, s5, 7
    s_waitcnt lgkmcnt(0)
    """)
    srd(a, 8, 24, 25, 0x200000)
    def xloop(name, lo, hi):
        if lo >= hi: return
        a(f"s_mov_b32 s49, {lo}")
        a.label(name)
        a(f"""
        s_mov_b32 m0, s67
        s_add_u32 s48, s62, s64
        buffer_load_dwordx4 v6, s[8:11], s48 offen lds
        s_add_u32 m0, s67, {1024 - 64}
        s_add_u32 s62, s62, 128
        buffer_load_dwordx4 v6, s[8:11], s48 offen offset:64 lds
        s_and_b32 s62, s62, 0x3ff
        s_add_u32 s67, s67, 2048
        s_add_u32 s49, s49, 1
        s_cmp_lt_u32 s49, {hi}
        s_cbranch_scc1 {name}
        """)
    XN = int(dict(x.split('=') for x in dbg.split(',') if '=' in x).get('xn', 5))
    a("s_mov_b32 s67, s63")
    xloop("K1_x1", 0, XN)
    a("s_branch K1_comp")
    EARLY = 'early' in dbg
    a.label("K1_loader")
    if 'noldprio' not in dbg: a("s_setprio 3")
    a(f"""
    s_sub_u32 s6, s6, 4
    v_lshrrev_b32 v7, 3, v2        ; row_in
    v_and_b32 v8, 7, v2            ; slot
    v_and_b32 v9, 2, v7
    v_xor_b32 v8, v8, v9
    v_xor_b32 v9, 4, v8
    s_lshl_b32 s35, s5, 7
    v_lshlrev_b32 v7, 10, v7
    v_add_u32 v7, s35, v7
    v_lshl_add_u32 v10, v8, 4, v7
    v_lshl_add_u32 v11, v9, 4, v7
    v_lshlrev_b32 v12, 4, v2       ; lane*16
    v_lshrrev_b32 v13, 1, v2
    v_lshlrev_b32 v13, 10, v13
    v_and_b32 v14, 1, v2
    v_lshl_add_u32 v13, v14, 4, v13
    s_lshl_b32 s65, s6, 14
    s_add_u32 s65, s65, {L_W}
    s_lshl_b32 s37, s6, 4
    s_lshl_b32 s38, s5, 3
    s_add_u32 s37, s37, s38
    v_and_b32 v15, 16, v2
    v_lshlrev_b32 v15, 3, v15
    v_xor_b32 v15, v15, v12
    s_lshl_b32 s39, s4, 2
    s_waitcnt lgkmcnt(0)
    """)
    a(EPOCH)
    srd(a, 12, 26, 27, 0x80000)
    a(f"""
    s_bitcmp0_b32 s5, 0
    s_cselect_b64 s[46:47], s[28:29], s[30:31]
    """)
    srd(a, 16, 46, 47, 0x4000)
    srd(a, 40, 44, 45, 0x80000)
    srd(a, 20, 32, 33, WS_SIZE)
    a(f"""
    s_cmp_lg_u32 s6, 0
    s_cbranch_scc1 K1_noz
    v_mov_b32 v32, 0
    v_mov_b32 v33, 0
    v_mov_b32 v34, 0
    v_mov_b32 v35, 0
    s_lshl_b32 s48, s2, 10
    s_add_u32 s48, s48, {WS_GU:#x}
    buffer_store_dwordx4 v[32:35], v12, s[20:23], s48 offen{SC}
    """)
    a.label("K1_noz")
    if 'notouch' not in dbg:
        a(f"""
        s_cmp_lg_u32 s6, 1
        s_cbranch_scc1 K1_not
        s_and_b32 s48, s2, 7
        s_lshl_b32 s48, s48, 14
        s_add_u32 s48, s48, {WS_FL:#x}
        v_lshlrev_b32 v32, {FLS + 2}, v2
        buffer_load_dword v33, v32, s[20:23], s48 offen sc1
        """)
        a.label("K1_not")
    a(f"""
    s_cmp_lt_u32 s6, 2
    s_cbranch_scc1 K1_nowo
    s_lshl_b32 s46, s2, 1
    s_and_b32 s47, s6, 1
    s_add_u32 s46, s46, s47
    s_lshr_b32 s47, s46, 6
    s_lshl_b32 s47, s47, 16
    s_bfe_u32 s48, s46, 0x10002
    s_lshl_b32 s48, s48, 15        ; s * 32 rows
    s_add_u32 s47, s47, s48
    s_bfe_u32 s48, s46, 0x30003
    s_lshl_b32 s48, s48, 7         ; w * 128 B
    s_add_u32 s47, s47, s48
    s_and_b32 s48, s46, 3
    s_lshl_b32 s48, s48, 5         ; t * 32 B
    s_add_u32 s47, s47, s48
    s_lshl_b32 s48, s6, 10
    s_add_u32 s48, s48, {L_WOT - 2048}
    s_mov_b32 m0, s48
    v_add_u32 v17, s48, v17
    buffer_load_dwordx4 v13, s[40:43], s47 offen lds
    s_lshl_b32 s48, s6, 2
    s_add_u32 s48, s48, {L_DN - 8}
    v_mov_b32 v36, s48
    v_mov_b32 v37, 0
    ds_write_b32 v36, v37
    v_mov_b32 v37, 1
    """)
    a.label("K1_nowo")
    a(f"""
    s_lshl_b32 s36, s6, 12
    s_lshl_b32 s38, s5, 11
    """)
    for i in range(4):
        a(f"""
        s_add_u32 s48, s36, {i*1024}
        s_add_u32 m0, s48, {L_KV}
        s_add_u32 s48, s48, s38
        s_and_b32 s48, s48, 0x3fff
        buffer_load_dwordx4 v15, s[16:19], s48 offen lds
        """)
    a("s_waitcnt lgkmcnt(0)")
    a("s_add_u32 s58, s58, 1")
    a(f"""
    s_barrier
    s_cmp_lt_u32 s6, 2
    s_cbranch_scc1 K1_nowo2
    s_waitcnt vmcnt(4)
    ds_read_b64_tr_b16 v[32:33], v17
    ds_read_b64_tr_b16 v[34:35], v17 offset:128
    s_lshl_b32 s46, s46, 10
    s_add_u32 s46, s46, {WS_WOF:#x}
    s_waitcnt lgkmcnt(0)
    buffer_store_dwordx4 v[32:35], v12, s[20:23], s46 offen sc1
    s_branch K1_wst
    """)
    a.label("K1_nowo2")
    a("buffer_load_dword v33, v12, s[16:19], 0 offen")
    a.label("K1_wst")
    for i in range(16):
        a(f"""
        s_add_u32 s48, s39, {i}
        s_and_b32 s48, s48, 15
        s_lshl_b32 s49, s48, 10
        s_add_u32 m0, s65, s49
        s_add_u32 s48, s48, s37
        s_and_b32 s48, s48, 63
        s_lshl_b32 s48, s48, 13
        buffer_load_dwordx4 v{10 + (i & 1)}, s[12:15], s48 offen lds
        """)
        if i == WB:
            a(f"s_waitcnt vmcnt({WB + 2})")
            p1(1)
            a("s_barrier")
        if i == WD and EARLY:
            a(f"""
            s_cmp_lt_u32 s6, 2
            s_cbranch_scc1 K1_nodn
            s_waitcnt vmcnt({WD + 1})
            ds_write_b32 v36, v37
            """)
            a.label("K1_nodn")
    p1(2)
    a("s_waitcnt vmcnt(0)")
    p1(3)
    a("s_barrier")
    a("s_cmp_eq_u32 s6, 0")
    a("s_cbranch_scc1 K12_join")
    a("s_setprio 0")
    a("s_branch K12_join")
    a.label("K1_comp")
    a(EPOCH)
    srd(a, 20, 32, 33, WS_SIZE)
    ONE = 24; SEL = 8
    SEL = 152
    a(f"""
    v_lshlrev_b32 v21, 7, v20
    v_lshl_add_u32 v21, v19, 3, v21   ; row*128 + 8c'
    v_add_u32 v21, {L_W}, v21
    v_lshrrev_b32 v22, 1, v18
    v_and_b32 v23, 1, v4
    v_lshl_or_b32 v22, v23, 1, v22 ; h
    """)
    for t in range(4):
        a(f"v_xor_b32 v23, {t}, v22")
        a(f"v_lshl_add_u32 v{13+t}, v23, 5, v21")
    a(f"""
    v_lshlrev_b32 v10, 6, v3
    v_lshrrev_b32 v7, 2, v3
    v_and_b32 v7, 2, v7
    v_xor_b32 v7, v7, v4
    v_lshl_add_u32 v10, v7, 4, v10
    v_add_u32 v10, s63, v10
    v_and_b32 v7, 1, v4
    v_lshlrev_b32 v7, 7, v7
    v_add_u32 v17, {L_KV}, v17
    v_xor_b32 v12, v17, v7
    v_xor_b32 v17, 128, v12
    """)
    for r in range(4): a(f"v_mov_b32 v{ONE+r}, 0x3f803f80")
    a(f"""
    v_and_b32 v7, 1, v2
    v_lshlrev_b32 v7, 4, v7
    v_mov_b32 v8, 0x3f80
    v_lshlrev_b32 v7, v7, v8
    v_cmp_eq_u32 s[36:37], v18, v4 ; g == (l&15)>>2
    v_bfe_u32 v8, v2, 1, 1
    v_cmp_eq_u32 vcc, 0, v8
    s_and_b64 s[38:39], s[36:37], vcc
    s_andn2_b64 s[40:41], s[36:37], vcc
    v_mov_b32 v{SEL}, 0
    v_mov_b32 v{SEL+1}, 0
    v_cndmask_b32 v{SEL+2}, 0, v7, s[38:39]
    v_cndmask_b32 v{SEL+3}, 0, v7, s[40:41]
    v_mov_b32 v{SEL+4}, 0
    v_mov_b32 v{SEL+5}, 0
    """)
    xloop("K1_x2", XN, 8)
    a("s_waitcnt lgkmcnt(0)")
    a("s_add_u32 s58, s58, 1")
    a("s_barrier")
    p1(1)
    if ('leak' in dbg or 'amp' in dbg): a('s_memrealtime s[94:95]')
    m16 = "v_mfma_f32_16x16x32_bf16"
    SUM = ACC; GR = ACC + 4; NM = 224
    def stat(u):
        xs = f"v[{X+4*u}:{X+4*u+3}]"
        a(f"{m16} v[{SUM}:{SUM+3}], v[{ONE}:{ONE+3}], {xs}, " + ("0" if u == 0 else f"v[{SUM}:{SUM+3}]"))
        a(f"{m16} v[{GR}:{GR+3}], {xs}, {xs}, " + ("0" if u == 0 else f"v[{GR}:{GR+3}]"))
    for u in range(0, 16, 2):
        a(f"s_waitcnt vmcnt({14-u})")
        a(f"ds_read_b128 v[{X+4*u}:{X+4*u+3}], v10 offset:{1024*u}")
        a(f"ds_read_b128 v[{X+4*u+4}:{X+4*u+7}], v10 offset:{1024*u+1024}")
        if u >= 4:
            a("s_waitcnt lgkmcnt(4)")
            stat(u - 4); stat(u - 3)
    a("s_waitcnt lgkmcnt(2)"); stat(12); stat(13)
    a("s_waitcnt lgkmcnt(0)"); stat(14); stat(15)
    RG = 160
    a("s_barrier")
    a("s_lshr_b32 s66, s5, 1")
    a("s_cmp_lg_u32 s66, s6")
    a("s_cbranch_scc1 K1_nokvf")
    for sx in range(16):
        for half in range(2):
            d = RG + 4 * sx + 2 * half
            a(f"ds_read_b64_tr_b16 v[{d}:{d+1}], v{17 if half else 12} offset:{sx*1024}")
    a.label("K1_nokvf")
    a(f"""
    v_and_b32 v7, 1, v2
    v_cmp_eq_u32 s[42:43], 1, v7
    v_cndmask_b32 v8, v{GR}, v{GR+1}, s[42:43]
    v_cndmask_b32 v9, v{GR+2}, v{GR+3}, s[42:43]
    v_cndmask_b32 v8, 0, v8, s[38:39]
    v_cndmask_b32 v26, v8, v9, s[40:41]
    """)
    for w in (16, 32):
        sum_swap(a, 26, 28, w)
    ln_scalars(a, SUM, 26, 28, 30, 27, 29)
    for r in range(4): a(f"v_sub_f32 v{NM+r}, 0, v28")
    NB = 4
    def sub(u):
        d = AF + 8 * (u % NB)
        xs = f"v[{X+4*u}:{X+4*u+3}]"
        a(f"{m16} v[{d}:{d+3}], v[{SEL+2}:{SEL+5}], {xs}, v[{NM}:{NM+3}]")
        a(f"{m16} v[{d+4}:{d+7}], v[{SEL}:{SEL+3}], {xs}, v[{NM}:{NM+3}]")
    sub(0); sub(1)
    def ln_step(u):
        d = AF + 8 * (u % NB); L = []
        for r in range(4): L.append(f"v_cvt_pk_bf16_f32 v{d+r}, 0, v{d+r}")
        if u + 2 < 16:
            dd = AF + 8 * ((u + 2) % NB); xs = f"v[{X+4*(u+2)}:{X+4*(u+2)+3}]"
            L.append(f"{m16} v[{dd}:{dd+3}], v[{SEL+2}:{SEL+5}], {xs}, v[{NM}:{NM+3}]")
        for r in range(4, 8): L.append(f"v_cvt_pk_bf16_f32 v{d+r}, 0, v{d+r}")
        for r in range(0, 8, 2): L.append(f"v_pk_mul_f32 v[{d+r}:{d+r+1}], v[{d+r}:{d+r+1}], v[30:31] op_sel_hi:[1,0]")
        if u + 2 < 16:
            L.append(f"{m16} v[{dd+4}:{dd+7}], v[{SEL}:{SEL+3}], {xs}, v[{NM}:{NM+3}]")
        for r in range(4): L.append(f"v_cvt_pk_bf16_f32 v{X+4*u+r}, v{d+2*r}, v{d+2*r+1}")
        return L
    for u in range(16):
        for ins in ln_step(u): a(ins)
    p1(2)
    KV = ACC + 16
    a(f"""
    v_lshrrev_b32 v9, 1, v4
    v_and_b32 v11, 1, v4
    s_cmp_lg_u32 s66, s6
    s_cbranch_scc1 K1_q
    s_lshr_b32 s35, s7, 5
    s_mul_i32 s35, s35, {TS}
    s_add_u32 s35, s35, {WS_KV:#x}
    s_waitcnt lgkmcnt(0)
    s_bitcmp0_b32 s5, 0
    s_cbranch_scc0 K1_v
    """)
    for sx in range(16):
        a(f"{m16} v[{KV}:{KV+3}], v[{RG+4*sx}:{RG+4*sx+3}], v[{X+4*sx}:{X+4*sx+3}], " + ("0" if sx == 0 else f"v[{KV}:{KV+3}]"))
    a(f"""
    v_and_b32 v8, 31, v5
    v_lshlrev_b32 v8, 4, v8
    v_lshl_add_u32 v8, v9, 9, v8
    s_branch K1_kvs
    """)
    a.label("K1_v")
    for sx in range(16):
        a(f"{m16} v[{KV}:{KV+3}], v[{X+4*sx}:{X+4*sx+3}], v[{RG+4*sx}:{RG+4*sx+3}], " + ("0" if sx == 0 else f"v[{KV}:{KV+3}]"))
    a(f"""
    s_and_b32 s36, s6, 1
    s_mul_i32 s36, s36, 544
    s_add_u32 s35, s35, s36
    s_add_u32 s35, s35, 1024
    v_mul_u32_u24 v8, 272, v9
    v_mov_b32 v{AF}, 0x3f803f80
    v_mov_b32 v{AF+1}, 0x3f803f80
    v_mov_b32 v{AF+2}, 0x3f803f80
    v_mov_b32 v{AF+3}, 0x3f803f80
    s_mov_b32 exec_lo, 1
    s_mov_b32 exec_hi, 1
    buffer_store_dwordx4 v[{AF}:{AF+3}], v8, s[20:23], s35 offen offset:256 sc1
    s_mov_b64 exec, -1
    v_lshl_add_u32 v8, v3, 4, v8
    """)
    a.label("K1_kvs")
    a(f"""
    v_cvt_pk_bf16_f32 v{T}, v{KV}, v{KV+1}
    v_cvt_pk_bf16_f32 v{T+1}, v{KV+2}, v{KV+3}
    v_mov_b32 v{T+2}, v{T}
    v_mov_b32 v{T+3}, v{T+1}
    v_permlane16_swap_b32 v{T}, v{T+2}
    v_permlane16_swap_b32 v{T+1}, v{T+3}
    s_mov_b32 exec_lo, 0xffff
    s_mov_b32 exec_hi, 0xffff
    buffer_store_dwordx4 v[{T}:{T+3}], v8, s[20:23], s35 offen sc1
    s_mov_b64 exec, -1
    v_mov_b32 v7, s58
    v_lshlrev_b32 v8, 14, v2
    s_lshl_b32 s35, s2, {FLS}
    s_add_u32 s35, s35, {WS_FL:#x}
    v_mov_b32 v21, {L_DN}
    """)
    EARLY = 'early' in dbg
    if EARLY: a.label("K1_dn")
    if EARLY: a(f"""
    ds_read_b64 v[22:23], v21
    s_waitcnt vmcnt(0) lgkmcnt(0)
    v_and_b32 v22, v22, v23
    v_cmp_eq_u32 vcc, 0, v22
    s_cbranch_vccnz K1_dn
    s_mov_b64 exec, 0xff
    buffer_store_dword v7, v8, s[20:23], s35 offen sc1
    s_mov_b64 exec, -1
    """)
    a.label("K1_q")
    a("s_barrier")
    p1(3)
    def rd(s, t):
        for half in range(2):
            d = RG + 16 * (s % 3) + 4 * t + 2 * half
            a(f"ds_read_b64_tr_b16 v[{d}:{d+1}], v{13+t} offset:{s*4096 + half*512}")
    for t in range(4): rd(0, t)
    for t in range(4): rd(1, t)
    for s in range(16):
        a(f"s_waitcnt lgkmcnt({8 if s < 15 else 0})")
        for t in range(4):
            d = RG + 16 * (s % 3) + 4 * t
            c = "0" if s == 0 else f"v[{ACC+4*t}:{ACC+4*t+3}]"
            a(f"{m16} v[{ACC+4*t}:{ACC+4*t+3}], v[{d}:{d+3}], v[{X+4*s}:{X+4*s+3}], {c}")
            if s + 2 < 16: rd(s + 2, t)
        if s == PB: a("s_barrier")
        if s == FST and not EARLY:
            a(f"""
            s_cmp_lg_u32 s66, s6
            s_cbranch_scc1 K1_nofl
            s_waitcnt vmcnt(0)
            s_mov_b64 exec, 0xff
            buffer_store_dword v7, v8, s[20:23], s35 offen sc1
            s_mov_b64 exec, -1
            """)
            a.label("K1_nofl")
    a(f"""
    s_lshl_b32 s35, s5, 10
    v_lshrrev_b32 v7, 3, v5
    v_lshlrev_b32 v7, 13, v7
    v_and_b32 v8, 7, v5
    v_lshl_add_u32 v7, v8, 4, v7
    v_lshl_add_u32 v7, v9, 9, v7
    v_lshl_add_u32 v7, v11, 7, v7
    """)
    for tp in range(2):
        for t in (2 * tp, 2 * tp + 1):
            for r in range(4): a(f"v_cvt_pk_bf16_f32 v{ACC+4*t+r}, 0, v{ACC+4*t+r}")
            for r in range(4): a(f"v_mul_f32 v{ACC+4*t+r}, {f2u(0.25 * 1.4426950408889634):#x}, v{ACC+4*t+r}")
            a(f"v_cvt_pk_bf16_f32 v{AF+2*t}, v{ACC+4*t}, v{ACC+4*t+1}")
            a(f"v_cvt_pk_bf16_f32 v{AF+2*t+1}, v{ACC+4*t+2}, v{ACC+4*t+3}")
        b = AF + 4 * tp
        a(f"v_permlane16_swap_b32 v{b}, v{b+2}")
        a(f"v_permlane16_swap_b32 v{b+1}, v{b+3}")
        a(f"buffer_store_dwordx4 v[{b}:{b+3}], v7, s[20:23], s35 offen offset:{256*tp}{SC}")
    a(f"""
    s_cmp_lg_u32 s66, s6
    s_cbranch_scc1 K1_nol
    v_and_b32 v8, 0x3ff, v7
    s_mov_b32 s36, 0x00ff00ff
    s_and_b32 s37, s5, 1
    s_lshl_b32 s37, s37, 3
    s_lshl_b32 exec_lo, s36, s37
    s_mov_b32 exec_hi, exec_lo
    ds_write_b128 v8, v[{AF}:{AF+3}] offset:{L_Q0}
    ds_write_b128 v8, v[{AF+4}:{AF+7}] offset:{L_Q0 + 256}
    s_mov_b64 exec, -1
    """)
    a.label("K1_nol")
    p1(4)
    if ('leak' in dbg or 'amp' in dbg):
        a(f"""
        s_waitcnt vmcnt(0)
        s_memrealtime s[92:93]
        s_waitcnt lgkmcnt(0)
        s_cmp_ge_u32 s2, 64
        s_cbranch_scc1 K1_leak
        v_mov_b32 v40, s90
        v_mov_b32 v41, s92
        v_mov_b32 v42, s94
        v_mov_b32 v43, 0
        s_lshl_b32 s48, s2, 4
        s_add_u32 s48, s48, {WS_SEL:#x}
        s_mov_b64 exec, 1
        buffer_store_dwordx4 v[40:43], v43, s[20:23], s48 offen
        """)
        a.label("K1_leak")
    dstamp(a, 0, True, 200)
    a.label("K12_join")
```

```python
from gen import *
import gen as G

L_PART = 0x0; L_Q = 0x6000; L_MREF = 0x8400; L_OB = 0x5800; L_KEY = 0xAC00; L_FLG = 0xAD00; L_MX = 0xB000; L_HB = 0xB400
L_FW = 0xE000; L_TOTAL = 0xE000 + 8 * 7168
L_XS = L_PART; L_RED = L_PART + 0x1000; L_GB = L_PART + 0x2000
C_EXACT = 0.25 * 1.4426950408889634
OFFS = 96.0

def wave_sum(a, vs, ts):
    if isinstance(vs, int): vs, ts = [vs], [ts]
    for mod in ("quad_perm:[1,0,3,2]", "quad_perm:[2,3,0,1]", "row_half_mirror", "row_mirror"):
        for v in vs:
            a(f"v_add_f32_dpp v{v}, v{v}, v{v} {mod} row_mask:0xf bank_mask:0xf")
    for w in (16, 32):
        for v, t in zip(vs, ts): a(f"v_mov_b32 v{t}, v{v}")
        for v, t in zip(vs, ts): a(f"v_permlane{w}_swap_b32 v{t}, v{v}")
        for v, t in zip(vs, ts): a(f"v_add_f32 v{v}, v{v}, v{t}")

class VM:
    def __init__(self, a): self.a = a; self.q = []; self.done = -1
    def issue(self, tag): self.q.append(tag)
    def wait(self, tag):
        i = max(k for k, t in enumerate(self.q) if t == tag)
        if i <= self.done: return
        self.done = i
        self.a(f"s_waitcnt vmcnt({len(self.q) - 1 - i})")

def wave_max_u32(a, v, t):
    for mod in ("quad_perm:[1,0,3,2]", "quad_perm:[2,3,0,1]", "row_half_mirror", "row_mirror"):
        a(f"v_max_u32_dpp v{v}, v{v}, v{v} {mod} row_mask:0xf bank_mask:0xf")
    for w in (16, 32):
        a(f"""
        v_mov_b32 v{t}, v{v}
        v_permlane{w}_swap_b32 v{t}, v{v}
        v_max_u32 v{v}, v{v}, v{t}
        """)

LOG2E = 1.4426950408889634
def sigmoid(a, d, x, t):
    a(f"""
    v_mul_f32 v{t}, {f2u(-LOG2E):#x}, v{x}
    v_exp_f32 v{t}, v{t}
    v_add_f32 v{t}, 1.0, v{t}
    v_rcp_f32 v{d}, v{t}
    """)

def gen_p2(a, dbg='', prio=True):
    SC = ' sc1'
    OPT = dict(x.split('=') for x in dbg.split(',') if '=' in x)
    FLS = int(OPT.get('fls', 4))
    PFS = int(OPT.get('pfs', 0)); PFP = int(OPT.get('pfp', 1))
    TAILST = 'tailst' in dbg
    FS = 'ffnst' in dbg
    KREP = 'nokrep' not in dbg; GREP = 'nogrep' not in dbg
    def st(i, tail):
        if 'p1st' in dbg:
            if tail == 4: stamp(a, i)
        elif 'r0st' in dbg:
            if tail == 3: stamp(a, i)
        elif FS:
            if tail == 2: stamp(a, i)
        elif tail in (True, False) and bool(tail) == TAILST: stamp(a, i)
    K = 16; V = 48; X = [112, 128]; O = 144; CM = 160; SP = 176; Q = 184; OA = 188; WF = 204; BF = 236; S1 = 240
    vQA, vPW, vPR, vPL, vOW, vOR, vLM, vWL, vKL, vVL = 1, 2, 3, 4, 5, 6, 7, 8, 9, 10
    t0, t1, t2, t3, t4 = 11, 12, 13, 14, 15
    vFW, vFR, vFV, vWLs = 9, 13, 14, 15
    vFS, vPA, vPD = SP + 4, SP + 5, SP + 6
    if 'leak' in dbg or 'amp' in dbg: a('s_memrealtime s[90:91]')
    dstamp(a, 1, False, 240)
    a(f"""
    s_load_dwordx2 s[48:49], s[0:1], 96
    s_load_dwordx2 s[40:41], s[0:1], 0
    s_load_dwordx8 s[60:67], s[0:1], 48
    s_load_dwordx2 s[46:47], s[0:1], 80
    s_and_b32 s3, s2, 7
    s_lshr_b32 s4, s2, 3
    s_lshl_b32 s7, s3, 8
    s_lshl_b32 s5, s4, 3
    s_add_u32 s7, s7, s5           ; T0
    s_and_b32 s28, s4, 7           ; rot
    v_lshrrev_b32 v{t0}, 6, v0
    v_and_b32 v0, 63, v0
    v_readfirstlane_b32 s6, v{t0}
    s_mov_b32 s30, 0
    v_lshlrev_b32 v{vWL}, 4, v0
    s_mul_i32 s3, s6, {8*TS}
    s_add_u32 s3, s3, {WS_KV:#x}
    """)
    for t in range(8):
        a(f"""
        s_add_u32 s4, s28, {t}
        s_and_b32 s4, s4, 7
        s_mul_i32 s4, s4, {TS}
        s_add_u32 s{50+t}, s3, s4
        """)
    a.label("K2_restart")
    a(f"""
    s_add_u32 s44, s6, 4
    s_and_b32 s44, s44, 7
    s_add_u32 s3, s44, s28
    s_and_b32 s3, s3, 7
    s_andn2_b32 s45, s2, 0x38
    s_lshl_b32 s4, s3, 3
    s_or_b32 s45, s45, s4
    s_lshl_b32 s45, s45, 6
    s_lshr_b32 s4, s28, 1
    s_lshl_b32 s4, s4, 2
    s_add_u32 s45, s45, s4
    s_add_u32 s45, s45, {WS_FQ:#x}
    s_add_u32 s3, s3, s7
    s_lshl_b32 s32, s3, 10
    v_and_b32 v{t1}, 31, v0
    v_lshrrev_b32 v{t2}, 5, v0
    v_mul_u32_u24 v{vVL}, 272, v{t2}
    v_lshl_add_u32 v{vVL}, v{t1}, 4, v{vVL}
    v_cmp_lt_u32 vcc, 16, v{t1}
    v_bfrev_b32 v{t0}, 1
    v_add_u32 v{vQA}, {L_Q:#x}, v{vWL}
    v_cndmask_b32 v{vVL}, v{vVL}, v{t0}, vcc
    s_waitcnt lgkmcnt(0)
    """)
    srd(a, 8, 48, 49, WS_SIZE)
    vm = VM(a)
    def ldK(t):
        a(f"buffer_load_dwordx4 v[{K+4*t}:{K+4*t+3}], v{vWL}, s[8:11], s{50+t} offen{SC}"); vm.issue(f"K{t}")
    def ldV(t):
        for h in range(2):
            a(f"buffer_load_dwordx4 v[{V+8*t+4*h}:{V+8*t+4*h+3}], v{vVL}, s[8:11], s{50+t} offen offset:{1024 + 544*h}{SC}"); vm.issue(f"V{t}{h}")
    a(f"""
    s_lshl_b32 s3, s44, 10
    v_add_u32 v{t4}, s3, v{vQA}
    """)
    def late_setup(part):
        u0, u1, u2, u3 = S1, S1 + 1, S1 + 2, S1 + 3
        if part == 0:
            srd(a, 16, 40, 41, 0x200000)
            srd(a, 20, 46, 47, 0x200000)
            srd(a, 24, 60, 61, 0x400)
            a(f"""
            v_and_b32 v{u1}, 31, v0
            v_lshrrev_b32 v{u2}, 5, v0
            v_mul_u32_u24 v{vPW}, 80, v{u1}
            s_mul_i32 s3, s6, 2560
            v_add_u32 v{vPW}, s3, v{vPW}
            v_lshl_add_u32 v{SP+3}, v{u2}, 2, v{vPW}
            v_lshl_add_u32 v{vPW}, v{u2}, 4, v{vPW}
            v_lshrrev_b32 v{u0}, 4, v0     ; g
            s_lshr_b32 s3, s6, 1
            s_lshl_b32 s3, s3, 3
            s_and_b32 s4, s6, 1
            s_lshl_b32 s4, s4, 1
            s_add_u32 s3, s3, s4
            v_and_b32 v{u1}, 1, v{u0}
            v_lshl_add_u32 v{u1}, v{u1}, 2, v{u2}
            v_add_u32 v{u1}, s3, v{u1}     ; n = 8*(w>>1) + 2*(w&1) + (g>>1) + 4*(g&1)
            v_mul_u32_u24 v{vPL}, 80, v{u1}
            v_and_b32 v{u2}, 15, v0        ; d
            v_lshl_add_u32 v{vPR}, v{u2}, 2, v{vPL}
            v_and_b32 v{u3}, 7, v0
            v_mul_u32_u24 v{u3}, 2560, v{u3}
            v_add3_u32 v{vPL}, v{vPL}, v{u3}, 64
            s_lshl_b32 s31, s28, 16
            s_lshl_b32 s33, s6, 13
            s_add_u32 s33, s33, {WS_WOF:#x}
            """)
        elif part == 1:
            a(f"""
            v_and_b32 v{u3}, 7, v{u1}      ; token
            v_lshrrev_b32 v{u1}, 3, v{u1}  ; head_local
            v_mul_u32_u24 v{vOW}, 144, v{u3}
            v_lshl_add_u32 v{vOW}, v{u1}, 5, v{vOW}
            v_lshl_add_u32 v{vOW}, v{u2}, 1, v{vOW}
            v_add_u32 v{vOW}, {L_OB:#x}, v{vOW}
            v_and_b32 v{u3}, 7, v0
            v_mul_u32_u24 v{vOR}, 144, v{u3}
            v_lshl_add_u32 v{vOR}, v{u0}, 4, v{vOR}
            v_add_u32 v{vOR}, {L_OB:#x}, v{vOR}
            v_mov_b32 v{vLM}, 0
            v_lshlrev_b32 v{vFR}, 2, v{u3}
            v_add_u32 v{vFR}, {L_FLG:#x}, v{vFR}
            """)
        else:
            for r in range(0, 16, 2):
                a(f"v_pk_mov_b32 v[{OA+r}:{OA+r+1}], 0, 0")
            a(f"v_pk_mov_b32 v[{SP}:{SP+1}], 0, 0")
            a(f"v_mov_b32 v{SP+2}, 0xdddddddd")
    def rd_qcm():
        a(f"ds_read_b128 v[{Q}:{Q+3}], v{vQA}")
        for k in range(4):
            a(f"ds_read_b128 v[{CM+4*k}:{CM+4*k+3}], v{vQA} offset:{L_MREF - L_Q}")
        a(f"v_add_u32 v{vQA}, 1024, v{vQA}")
    mf = "v_mfma_f32_32x32x16_bf16"
    def M1(kt, xb):
        if 'nom1' in dbg: a("s_nop 1"); return
        a(f"{mf} v[{X[xb]}:{X[xb]+15}], v[{K+4*kt}:{K+4*kt+3}], v[{Q}:{Q+3}], v[{CM}:{CM+15}]")
    def E(xb, lo, hi):
        for r in range(lo, hi):
            if 'expnop' in dbg:
                a("v_nop"); a("v_nop")
                continue
            if 'noexp' in dbg:
                a(f"v_cvt_pk_bf16_f32 v{X[xb]+r}, 0, v{X[xb]+r}"); a(f"v_cvt_pk_bf16_f32 v{X[xb]+r}, 0, v{X[xb]+r}")
                continue
            a(f"v_exp_f32 v{X[xb]+r}, v{X[xb]+r}")
    def C2(h, xb):
        for k in range(4):
            a(f"v_cvt_pk_bf16_f32 v{SP+4*h+k}, v{X[xb]+8*h+2*k}, v{X[xb]+8*h+2*k+1}")
    def M3(h, kt):
        xb = kt & 1
        if 'nom3' in dbg: a("s_nop 2"); return
        a(f"v_smfmac_f32_32x32x32_bf16 v[{O}:{O+15}], v[{V+8*kt+4*h}:{V+8*kt+4*h+3}], v[{X[xb]+8*h}:{X[xb]+8*h+7}], v{SP+2}")
    def Ozero():
        a(f"v_mfma_f32_32x32x8bf16_1k v[{O}:{O+15}], v[{SP}:{SP+1}], v[{SP}:{SP+1}], 0")
    def part_write():
        a(f"""
        ds_write_b128 v{vPW}, v[{O}:{O+3}]
        ds_write_b128 v{vPW}, v[{O+4}:{O+7}] offset:32
        ds_write_b32 v{SP+3}, v{O+8} offset:64
        """)
    def s1_read():
        a(f"ds_read_b32 v{S1+8}, v{vPL}")
        for k in range(4):
            a(f"ds_read2st64_b32 v[{S1+2*k}:{S1+2*k+1}], v{vPR} offset0:{20*k} offset1:{20*k+10}")
    def s1_calc():
        dp = lambda mod: f"v_add_f32_dpp v{S1+8}, v{S1+8}, v{S1+8} {mod} row_mask:0xf bank_mask:0xf"
        a(f"""
        {dp("quad_perm:[1,0,3,2]")}
        v_pk_add_f32 v[{S1}:{S1+1}], v[{S1}:{S1+1}], v[{S1+2}:{S1+3}]
        v_pk_add_f32 v[{S1+4}:{S1+5}], v[{S1+4}:{S1+5}], v[{S1+6}:{S1+7}]
        {dp("quad_perm:[2,3,0,1]")}
        v_pk_add_f32 v[{S1}:{S1+1}], v[{S1}:{S1+1}], v[{S1+4}:{S1+5}]
        v_add_f32 v{S1}, v{S1}, v{S1+1}
        {dp("row_half_mirror")}
        v_rcp_f32 v{S1+1}, v{S1+8}
        v_maximum3_f32 v{vLM}, v{vLM}, v{S1+8}, abs(v{S1})
        v_mul_f32 v{S1}, v{S1}, v{S1+1}
        v_cvt_pk_bf16_f32 v{S1}, v{S1}, v{S1}
        ds_write_b16 v{vOW}, v{S1}
        """)
    def s2_read():
        for s in range(2):
            a(f"ds_read_b128 v[{BF+4*s}:{BF+4*s+3}], v{vOR} offset:{64*s}")
    def s2_mma(lo, hi):
        for u in range(lo, hi):
            s, t = u >> 2, u & 3
            a(f"v_mfma_f32_16x16x32_bf16 v[{OA+4*t}:{OA+4*t+3}], v[{WF+4*u}:{WF+4*u+3}], v[{BF+4*s}:{BF+4*s+3}], v[{OA+4*t}:{OA+4*t+3}]")
    def wf_load(lo, hi):
        if lo == 0:
            a("s_add_u32 s34, s33, s31")
            a("s_add_u32 s35, s34, 4096")
            a("s_add_u32 s31, s31, 0x10000")
            a("s_and_b32 s31, s31, 0x7ffff")
        for u in range(lo, hi):
            a(f"buffer_load_dwordx4 v[{WF+4*u}:{WF+4*u+3}], v{vWL}, s[8:11], s{34 + (u >> 2)} offen offset:{1024*(u&3)}{SC}")
            vm.issue("WF")
    def ffn_prefetch():
        a(f"""
        s_mov_b32 s39, s6
        s_cmp_eq_u32 s39, 1
        s_cselect_b64 s[36:37], s[64:65], s[62:63]
        s_cmp_eq_u32 s39, 2
        s_cselect_b64 s[36:37], s[66:67], s[36:37]
        """)
        srd(a, 12, 36, 37, 512 * 1792 * 2)
        a(f"""
        s_and_b32 s3, s2, 7
        s_lshr_b32 s4, s2, 3
        s_mul_i32 s5, s4, {16*3584}
        s_mul_i32 s36, s3, 448
        s_and_b32 s36, s36, 0xffffff80
        s_add_u32 s5, s5, s36
        s_lshl_b32 s36, s3, 7
        s_mul_i32 s37, s4, {56*1024}
        s_add_u32 s36, s36, s37
        v_lshrrev_b32 v{t0}, 2, v0
        v_mul_u32_u24 v{t0}, 3584, v{t0}
        v_and_b32 v{t1}, 3, v0
        v_lshl_add_u32 v{t0}, v{t1}, 7, v{t0}
        v_min_u32 v{t1}, 55, v0
        v_lshlrev_b32 v{t1}, 10, v{t1}
        s_cmp_eq_u32 s39, 2
        s_cselect_b32 s38, s36, s5
        s_cselect_b64 vcc, -1, 0
        v_cndmask_b32 v{vPA}, v{t0}, v{t1}, vcc
        s_lshl_b32 s39, s6, {PFS}
        s_add_u32 s39, s39, 1
        s_cmp_gt_u32 s6, 2
        s_cselect_b32 s39, 99, s39
        """)
    def ffn_setup():
        a(f"""
        s_and_b32 s3, s2, 7
        s_lshr_b32 s4, s2, 3
        s_and_b32 s5, s6, 1
        s_cmp_eq_u32 s5, 0
        s_cselect_b64 s[36:37], s[62:63], s[64:65]
        s_cmp_lt_u32 s2, 112
        s_cselect_b64 s[36:37], s[36:37], s[66:67]
        """)
        srd(a, 68, 36, 37, 512 * 1792 * 2)
        a(f"""
        s_mul_i32 s76, s3, 14
        s_add_u32 s76, s76, s4           ; fs
        s_lshl_b32 s77, s3, 2
        s_add_u32 s77, s77, s4
        s_sub_u32 s77, s77, 14           ; cb
        s_lshr_b32 s5, s6, 1
        s_mul_i32 s5, s5, {128*3584}
        s_lshl_b32 s36, s76, 5
        s_add_u32 s5, s5, s36
        s_mul_i32 s36, s6, {224*1024}
        s_lshl_b32 s37, s77, 5
        s_add_u32 s36, s36, s37
        s_cmp_lt_u32 s2, 112
        s_cselect_b32 s72, s5, s36
        s_movk_i32 s73, 1024
        s_cselect_b32 s73, 3584, s73
        s_cselect_b32 s75, 4, 7
        s_cmp_lt_u32 s2, 144
        s_cselect_b32 s75, s75, 0
        s_mul_i32 s74, s6, 7168
        s_add_u32 s74, s74, {L_FW:#x}
        v_lshrrev_b32 v{vFS}, 1, v0
        v_mul_lo_u32 v{vFS}, v{vFS}, s73
        v_and_b32 v{t1}, 1, v0
        v_lshl_add_u32 v{vFS}, v{t1}, 4, v{vFS}
        s_lshl_b32 s73, s73, 5
        s_mov_b32 s78, s74
        """)
    def ffn_stage():
        a(f"""
        s_cmp_lt_u32 s29, 4
        s_cbranch_scc1 K2_nost
        """)
        for e in range(2):
            a(f"""
            s_cmp_eq_u32 s75, 0
            s_cbranch_scc1 K2_nost
            s_mov_b32 m0, s78
            s_sub_u32 s75, s75, 1
            buffer_load_dwordx4 v{vFS}, s[68:71], s72 offen lds
            s_add_u32 s78, s78, 1024
            s_add_u32 s72, s72, s73
            """)
        a.label("K2_nost")
    def ffn_issue():
        a(f"""
        s_cmp_lg_u32 s29, s39
        s_cbranch_scc1 K2_nopf
        buffer_load_dword v{vPD}, v{vPA}, s[12:15], s38 offen
        """)
        a.label("K2_nopf")
    def setprio(p):
        if prio: a(f"s_setprio {p}")
    def mref_mma(q, d):
        a(f"{mf} v[{d}:{d+15}], v[{K}:{K+3}], v[{q}:{q+3}], 0")
        a(f"{mf} v[{d+16}:{d+31}], v[{K+4}:{K+7}], v[{q}:{q+3}], 0")
    def mref_max(S):
        a(f"v_max3_f32 v{t0}, v{S}, v{S+1}, v{S+2}")
        for r in range(3, 31, 2):
            a(f"v_max3_f32 v{t0}, v{t0}, v{S+r}, v{S+r+1}")
        a(f"""
        v_max_f32 v{t0}, v{t0}, v{S+31}
        v_mov_b32 v{t1}, v{t0}
        v_permlane32_swap_b32 v{t1}, v{t0}
        v_max_f32 v{t0}, v{t0}, v{t1}
        """)
        for r in range(4): a(f"v_sub_f32 v{S+r}, {f2u(-OFFS):#x}, v{t0}")
        a(f"ds_write_b128 v{t4}, v[{S}:{S+3}] offset:{L_MREF - L_Q}")
    def kv_first():
        ldK(0); ldK(1); ldV(0); ldK(2); ldV(1)
    for p in range(3): late_setup(p)
    ffn_prefetch(); ffn_setup()
    a(f"""
    s_lshl_b32 s3, s6, 2
    s_add_u32 s3, s3, {L_FLG:#x}
    v_mov_b32 v{vFW}, s3
    ds_write2_b32 v{vFW}, v{SP}, v{SP} offset0:0 offset1:8
    s_movk_i32 s59, {L_Q + 2048:#x}
    s_cmp_lg_u32 s30, 0
    s_cbranch_scc1 K2_safe
    s_cmp_eq_u32 s6, 4
    s_cbranch_scc1 K2_poller
    v_mov_b32 v{t0}, s58
    s_lshl_b32 s3, s2, 6
    s_lshl_b32 s4, s6, 2
    s_add_u32 s3, s3, s4
    s_add_u32 s3, s3, {WS_FQ:#x}
    s_waitcnt vmcnt(0)
    s_mov_b64 exec, 1
    buffer_store_dword v{t0}, v{SP}, s[8:11], s3 offen sc1
    s_mov_b64 exec, -1
    s_waitcnt lgkmcnt(0)
    s_barrier
    """)
    st(1, False); st(5, 4)
    kv_first()
    a("s_branch K2_go")
    a.label("K2_poller")
    PA, PB = X[0], X[0] + 8
    a(f"""
    v_lshlrev_b32 v{t1}, {FLS}, v0
    s_and_b32 s3, s2, 7
    s_lshl_b32 s3, s3, 14
    s_add_u32 s3, s3, {WS_FL:#x}
    s_add_u32 s4, s3, {64 << FLS}
    s_add_u32 s5, s3, {128 << FLS}
    s_add_u32 s34, s3, {192 << FLS}
    s_mov_b32 s36, 0
    """)
    def fissue(b):
        for k, sr in enumerate(("s3", "s4", "s5", "s34")):
            a(f"buffer_load_dword v{b+k}, v{t1}, s[8:11], {sr} offen sc1")
    def fchk(b):
        for r in range(4): a(f"v_xor_b32 v{b+r}, s58, v{b+r}")
        a(f"""
        v_or3_b32 v{b}, v{b}, v{b+1}, v{b+2}
        v_or_b32 v{b}, v{b}, v{b+3}
        v_cmp_ne_u32 vcc, 0, v{b}
        s_cbranch_vccz K2_sync0
        """)
    if int(OPT.get('fd', 6)): a(f"s_sleep {OPT.get('fd', 6)}")
    if 'fnp' in dbg:
        a.label("K2_fl")
        fissue(PA); a("s_waitcnt vmcnt(0)"); fchk(PA)
        a(f"s_sleep {OPT.get('fsl', 2)}")
    else:
        fissue(PA)
        a("s_sleep 3")
        a.label("K2_fl")
        fissue(PB); a("s_waitcnt vmcnt(4)"); fchk(PA)
        fissue(PA); a("s_waitcnt vmcnt(4)"); fchk(PB)
    a(f"""
    s_add_u32 s36, s36, 1
    s_cmp_lt_u32 s36, 0x40000
    s_cbranch_scc1 K2_fl
    """)
    a.label("K2_sync0")
    st(4, 4)
    a(f"""
    s_cmp_lg_u32 s2, 0
    s_cbranch_scc1 K2_sync1
    v_mov_b32 v{t0}, s58
    s_mov_b32 s3, {WS_EP:#x}
    s_mov_b64 exec, 1
    buffer_store_dword v{t0}, v{SP}, s[8:11], s3 offen sc1
    s_mov_b64 exec, -1
    """)
    a.label("K2_sync1")
    vm.q = []; vm.done = -1
    ldK(0); ldK(1)
    a("s_waitcnt lgkmcnt(0)")
    a("s_barrier")
    st(1, False); st(5, 4)
    a(f"ds_read_b128 v[{Q}:{Q+3}], v{vQA}")
    ldV(0); ldK(2); ldV(1)
    a("s_waitcnt vmcnt(5) lgkmcnt(0)")
    mref_mma(Q, X[0]); mref_max(X[0])
    a("s_branch K2_go")
    a.label("K2_safe")
    S = X[0]
    a(f"""
    v_and_b32 v{t0}, 31, v0
    v_lshlrev_b32 v{S1+4}, 2, v{t0}
    v_add_u32 v{S1+4}, {L_MX:#x}, v{S1+4}
    s_lshl_b32 s3, s44, 7
    v_add_u32 v{S1+5}, s3, v{S1+4}
    v_mov_b32 v{t0}, 0xff800000
    ds_write_b32 v{S1+5}, v{t0}
    s_waitcnt vmcnt(0) lgkmcnt(0)
    s_barrier
    v_mov_b32 v{t1}, v{vQA}
    s_mov_b32 s29, 0
    """)
    a.label("K2_safe_loop")
    a(f"""
    ds_read_b128 v[{BF}:{BF+3}], v{t1}
    v_mov_b32 v{t0}, 0xff800000
    s_waitcnt lgkmcnt(0)
    """)
    for t in range(8):
        a(f"v_mfma_f32_32x32x16_bf16 v[{S}:{S+15}], v[{K+4*t}:{K+4*t+3}], v[{BF}:{BF+3}], 0")
        for r in range(0, 16, 2):
            a(f"v_max3_f32 v{t0}, v{t0}, v{S+r}, v{S+r+1}")
    a(f"""
    ds_max_f32 v{S1+4}, v{t0}
    v_add_u32 v{t1}, 1024, v{t1}
    v_add_u32 v{S1+4}, 128, v{S1+4}
    s_add_u32 s29, s29, 1
    s_cmp_lt_u32 s29, 8
    s_cbranch_scc1 K2_safe_loop
    s_waitcnt lgkmcnt(0)
    s_barrier
    ds_read_b32 v{t0}, v{S1+5}
    s_waitcnt lgkmcnt(0)
    """)
    for r in range(4): a(f"v_sub_f32 v{BF+r}, 0, v{t0}")
    a(f"ds_write_b128 v{t4}, v[{BF}:{BF+3}] offset:{L_MREF - L_Q}")
    a.label("K2_go")
    a("s_waitcnt lgkmcnt(0)")
    a("s_barrier")
    st(2, False)
    rd_qcm()
    vm.wait("K0")
    a("s_waitcnt lgkmcnt(0)")
    M1(0, 0)
    a("s_mov_b32 s29, 1")
    setprio(3)
    ldK(3); ldV(2)
    st(3, False)
    if 'leak' in dbg or 'amp' in dbg: a('s_memrealtime s[94:95]'); a('s_waitcnt lgkmcnt(0)')
    def tile(i, hook):
        xb = i & 1; xn = xb ^ 1
        hook(i, 'a')
        E(xb, 0, 2)
        hook(i, 'm3b')
        E(xb, 2, 5)
        hook(i, 'm1')
        M1((i + 1) & 7, xn)
        hook(i, 0)
        if i == 0:
            E(xb, 5, 12)
            hook(i, 1)
            Ozero()
            E(xb, 12, 16)
            M3(0, i)
            hook(i, 2)
        else:
            E(xb, 5, 8)
            hook(i, 'e1')
            E(xb, 8, 10)
            hook(i, 1)
            M3(0, i)
            hook(i, 2)
            E(xb, 10, 13)
            hook(i, 'e2')
            E(xb, 13, 15)
            hook(i, 'e3')
            E(xb, 15, 16)
    def hook0(i, pos):
        if pos == 'a' and i in (0, 2, 4, 6): st(1 + i // 2, 3)
        if pos == 'a' and i in (3, 5, 7): setprio({3: 2, 5: 1, 7: 1}[i])
        if pos == 'm3b' and i > 0:
            vm.wait(f"V{i-1}1"); M3(1, i - 1)
        if pos == 'm1':
            if i < 7: vm.wait(f"K{i+1}")
            else: a("s_waitcnt lgkmcnt(0)")
        if pos == 0:
            if i + 4 <= 7: ldK(i + 4)
            if i + 3 <= 7: ldV(i + 3)
            if i == 6: wf_load(0, 4)
            if i == 7: wf_load(4, 8)
        QT = int(OPT.get('qt', 1))
        if pos == 'e1' and i == QT:
            a(f"buffer_load_dword v{t0}, v{SP}, s[8:11], s45 offen sc1"); vm.issue("FQ")
        if pos == 'e1' and i == QT + 1:
            vm.wait("FQ")
            a(f"v_cmp_ne_u32 vcc, s58, v{t0}")
            a("s_cbranch_vccnz K2_qspin")
            a.label("K2_qback")
            a(f"buffer_load_dwordx4 v[{BF}:{BF+3}], v{vWL}, s[8:11], s32 offen sc1"); vm.issue("Q")
        if pos == 'e2' and i == 4:
            vm.wait("Q")
            a(f"ds_write_b128 v{t4}, v[{BF}:{BF+3}]")
            mref_mma(BF, WF)
        if pos == 'e1' and i == 5:
            a("s_cmp_lg_u32 s30, 0")
            a("s_cbranch_scc1 K2_keepm")
            mref_max(WF)
            a.label("K2_keepm")
        if pos == 1:
            if i == 6:
                a("s_waitcnt lgkmcnt(0)"); a("s_barrier"); rd_qcm()
            vm.wait(f"V{i}0")
        if pos == 2 and i == 7:
            vm.wait("V71")
    for i in range(8): tile(i, hook0)
    st(5, 3)
    a.raw(".p2align 3")
    a.label("K2_round")
    spins = []
    def poll(off):
        a(f"ds_read_b32 v{vFV}, v{vFR} offset:{off}")
    def check(off):
        k = len(spins); spins.append(off)
        a(f"""
        s_waitcnt lgkmcnt(0)
        v_cmp_gt_u32 vcc, s59, v{vFV}
        s_cbranch_vccnz K2_spin{k}
        """)
        a.label(f"K2_back{k}")
    PR = dict(x.split('=') for x in dbg.split(',') if '=' in x).get('pr', 'c')
    def hook(i, pos):
        if pos == 'm3b': M3(1, (i - 1) & 7)
        if pos == 'm1' and i == 7: a("s_waitcnt lgkmcnt(0)")
        if pos == 1 and i == 6: rd_qcm()
        if 'nohook' in dbg: return
        if 'bar' in dbg.split(','):
            if pos == 'a' and i in (0, 6, 7): setprio({6: 2, 7: 1, 0: 0}[i])
            if i == 0 and pos == 1: part_write()
            if i == 1 and pos == 0:
                a("s_waitcnt lgkmcnt(0)"); a("s_barrier"); setprio(2); s1_read()
            if i == 2 and pos == 0:
                a("s_waitcnt lgkmcnt(0)"); s1_calc(); setprio(1)
            if i == 3 and pos == 0: setprio(0)
            if i == 4 and pos == 0:
                a("s_waitcnt vmcnt(0) lgkmcnt(0)"); a("s_barrier"); setprio(3); s2_read()
            seq = [(4, 'e3'), (5, 'e1'), (5, 'e2'), (5, 'e3'), (6, 'e1'), (6, 'e2'), (6, 'e3'), (7, 'e1')]
        else:
            ca = int(OPT.get('ca', 2)); cb = int(OPT.get('cb', 5)); PT = OPT.get('pt', '10110321')
            slots = [(t, p) for t in range(1, 8) for p in (('a', 'e1', 'e2', 'e3') if cb >= 6 else ('e1', 'e2', 'e3'))]
            if i == 0 and pos == 1:
                part_write(); a(f"ds_write_b32 v{vFW}, v{vQA}")
            if i == ca and pos == 0: poll(0)
            if i == ca and pos == 2: check(0); s1_read()
            if i == ca + 1 and pos == 0:
                a("s_waitcnt lgkmcnt(0)"); s1_calc(); a(f"ds_write_b32 v{vFW}, v{vQA} offset:32")
            if i == cb - 1 and pos == 2: poll(32)
            if i == cb and pos == 'm1':
                check(32); s2_read(); a("s_waitcnt vmcnt(0)")
            if len(PT) == 8: PT = "".join(ch * 2 for ch in PT)
            for hpos, k in (('a', 2 * i), (2, 2 * i + 1)):
                if pos == hpos and PT[k] != PT[k - 1]: setprio(int(PT[k]))
            av = [x for x in slots if x > (cb, 'e1')]
            if OPT.get('sp', '0') == '1' and len(av) >= 12: av = [x for x in av if x[1] != 'e3']
            seq = av[:8]
            while len(seq) < 8: seq = sorted(seq + [seq[len(seq) % len(av)]])
        for u in [k for k, x in enumerate(seq) if x == (i, pos)]:
            if u == 0: a("s_waitcnt lgkmcnt(0)")
            s2_mma(u, u + 1)
            if 'nowf' not in dbg: wf_load(u, u + 1)
            if u == 7 and 'nopf' not in dbg and PFP == 1: ffn_issue(); ffn_stage()
    for i in range(8): tile(i, hook)
    if 'rndst' in dbg:
        a(f"""
        s_memtime s[82:83]
        s_memrealtime s[100:101]
        s_waitcnt lgkmcnt(0)
        s_lshl_b32 s84, s2, 3
        s_add_u32 s84, s84, s6
        s_lshl_b32 s84, s84, 3
        s_add_u32 s84, s84, s29
        s_lshl_b32 s84, s84, 3
        s_add_u32 s84, s84, {WS_STAMP + 0x40000:#x}
        s_mov_b64 exec, 1
        v_mov_b32 v{S1+8}, s82
        v_mov_b32 v{S1+9}, s100
        v_mov_b32 v{S1+10}, 0
        buffer_store_dwordx2 v[{S1+8}:{S1+9}], v{S1+10}, s[8:11], s84 offen
        s_mov_b64 exec, -1
        """)
    a(f"""
    s_addk_i32 s59, 1024
    s_add_u32 s29, s29, 1
    s_cmp_lt_u32 s29, 8
    s_cbranch_scc1 K2_round
    """)
    st(4, False); st(0, True)
    M3(1, 7)
    XR = CM; WR = CM + 4; HV = X[0]; HN = X[0] + 8; PK = X[1]; ST = X[1] + 8
    a(f"""
    s_add_u32 s3, s7, s6
    s_lshl_b32 s4, s3, 10
    buffer_load_dwordx4 v[{XR}:{XR+3}], v{vWL}, s[16:19], s4 offen
    buffer_load_dwordx4 v[{WR}:{WR+3}], v{vWL}, s[24:27], 0 offen
    v_and_b32 v{t0}, 7, v0
    v_mul_u32_u24 v{t0}, 1040, v{t0}
    v_lshrrev_b32 v{t1}, 4, v0
    v_lshl_add_u32 v{t0}, v{t1}, 3, v{t0}
    s_lshl_b32 s5, s6, 7
    s_add_u32 s5, s5, {L_HB:#x}
    v_add_u32 v{t0}, s5, v{t0}
    s_mul_i32 s5, s6, 1040
    s_add_u32 s5, s5, {L_HB:#x}
    v_add_u32 v{t1}, s5, v{vWL}
    s_lshl_b32 s35, s6, 2
    s_add_u32 s35, s35, {L_KEY:#x}
    v_mov_b32 v{t4}, s35
    v_and_b32 v{t3}, 7, v0
    v_lshlrev_b32 v{t3}, 2, v{t3}
    v_add_u32 v{t3}, {L_KEY:#x}, v{t3}
    """)
    part_write()
    a("s_waitcnt lgkmcnt(0)"); a("s_barrier"); st(1, True); s1_read()
    a("s_waitcnt lgkmcnt(0)"); s1_calc()
    a(f"""
    v_mov_b32 v{t2}, {f2u(2.0**124):#x}
    v_cmp_nlt_f32 vcc, v{vLM}, v{t2}
    s_cmp_lg_u64 vcc, 0
    s_cselect_b32 s5, 1, 0
    v_mov_b32 v{t2}, s5
    ds_write_b32 v{t4}, v{t2} offset:32
    """)
    a("s_waitcnt vmcnt(2) lgkmcnt(0)"); a("s_barrier"); st(2, True); s2_read()
    a(f"ds_read_b32 v{t2}, v{t3} offset:32")
    a("s_waitcnt lgkmcnt(1)"); s2_mma(0, 8)
    a(f"""
    s_waitcnt lgkmcnt(0)
    v_cmp_ne_u32 vcc, 0, v{t2}
    s_cmp_eq_u64 vcc, 0
    s_cbranch_scc1 K2_good
    s_cmp_lg_u32 s30, 0
    s_cbranch_scc1 K2_good
    s_mov_b32 s30, 1
    s_waitcnt vmcnt(0)
    s_setprio 0
    s_branch K2_restart
    """)
    a.label("K2_good")
    for t in range(4):
        a(f"v_cvt_pk_bf16_f32 v{S1+2*t}, v{OA+4*t}, v{OA+4*t+1}")
        a(f"v_cvt_pk_bf16_f32 v{S1+2*t+1}, v{OA+4*t+2}, v{OA+4*t+3}")
        a(f"ds_write_b64 v{t0}, v[{S1+2*t}:{S1+2*t+1}] offset:{32*t}")
    a("s_waitcnt vmcnt(0)")
    for r in range(4):
        a(f"v_lshlrev_b32 v{HV+2*r}, 16, v{XR+r}")
        a(f"v_and_b32 v{HV+2*r+1}, 0xffff0000, v{XR+r}")
        a(f"v_lshlrev_b32 v{WF+2*r}, 16, v{WR+r}")
        a(f"v_and_b32 v{WF+2*r+1}, 0xffff0000, v{WR+r}")
    a(f"""
    s_waitcnt lgkmcnt(0)
    s_barrier
    """)
    st(3, True)
    a(f"""
    ds_read_b128 v[{BF}:{BF+3}], v{t1}
    s_waitcnt lgkmcnt(0)
    """)
    for r in range(4):
        a(f"v_lshlrev_b32 v{HN+2*r}, 16, v{BF+r}")
        a(f"v_and_b32 v{HN+2*r+1}, 0xffff0000, v{BF+r}")
    P2 = lambda b, r: f"v[{b+r}:{b+r+1}]"
    for r in range(0, 8, 2): a(f"v_pk_add_f32 {P2(HV,r)}, {P2(HV,r)}, {P2(HN,r)}")
    for r in range(8): a(f"v_cvt_pk_bf16_f32 v{HV+r}, 0, v{HV+r}")
    SA, SB = S1, S1 + 2
    a(f"v_pk_add_f32 {P2(SA,0)}, {P2(HV,0)}, {P2(HV,2)}")
    a(f"v_pk_mul_f32 {P2(SB,0)}, {P2(HV,0)}, {P2(HV,0)}")
    a(f"v_pk_add_f32 {P2(SA,4)}, {P2(HV,4)}, {P2(HV,6)}")
    a(f"v_pk_fma_f32 {P2(SB,0)}, {P2(HV,2)}, {P2(HV,2)}, {P2(SB,0)}")
    a(f"v_pk_add_f32 {P2(SA,0)}, {P2(SA,0)}, {P2(SA,4)}")
    a(f"v_pk_fma_f32 {P2(SB,0)}, {P2(HV,4)}, {P2(HV,4)}, {P2(SB,0)}")
    a(f"v_add_f32 v{t0}, v{SA}, v{SA+1}")
    a(f"v_pk_fma_f32 {P2(SB,0)}, {P2(HV,6)}, {P2(HV,6)}, {P2(SB,0)}")
    a(f"v_add_f32 v{t2}, v{SB}, v{SB+1}")
    wave_sum(a, [t0, t2], [ST, ST + 1])
    ln_scalars(a, t0, t2, ST, ST + 2, ST + 1, ST + 3)
    st(4, True)
    for r in range(0, 8, 2): a(f"v_pk_add_f32 {P2(HN,r)}, {P2(HV,r)}, {P2(ST,0)} op_sel_hi:[1,0] neg_lo:[0,1] neg_hi:[0,1]")
    for r in range(8): a(f"v_cvt_pk_bf16_f32 v{HN+r}, 0, v{HN+r}")
    for r in range(0, 8, 2): a(f"v_pk_mul_f32 {P2(HN,r)}, {P2(HN,r)}, {P2(ST,2)} op_sel_hi:[1,0]")
    for r in range(8): a(f"v_cvt_pk_bf16_f32 v{HN+r}, 0, v{HN+r}")
    a(f"v_pk_mul_f32 {P2(SA,0)}, {P2(HN,0)}, {P2(WF,0)}")
    for r in range(2, 8, 2): a(f"v_pk_fma_f32 {P2(SA,0)}, {P2(HN,r)}, {P2(WF,r)}, {P2(SA,0)}")
    a(f"v_add_f32 v{t2}, v{SA}, v{SA+1}")
    fill = [f"v_pk_add_f32 {P2(WF+8,r)}, {P2(HV,r)}, {P2(HN,r)}" for r in range(0, 8, 2)]
    fill += [f"v_cvt_pk_bf16_f32 v{PK+4+r}, v{HV+2*r}, v{HV+2*r+1}" for r in range(4)]
    fill += [f"v_cvt_pk_bf16_f32 v{ST+4+r}, v{HN+2*r}, v{HN+2*r+1}" for r in range(4)]
    for mod in ("quad_perm:[1,0,3,2]", "quad_perm:[2,3,0,1]", "row_half_mirror", "row_mirror"):
        a(fill.pop(0)); a(fill.pop(0))
        a(f"v_add_f32_dpp v{t2}, v{t2}, v{t2} {mod} row_mask:0xf bank_mask:0xf")
    for w in (16, 32):
        a(f"v_mov_b32 v{t0}, v{t2}")
        a(fill.pop(0)); a(fill.pop(0))
        a(f"v_permlane{w}_swap_b32 v{t0}, v{t2}")
        a(f"v_add_f32 v{t2}, v{t2}, v{t0}")
    if 'leak' in dbg:
        a(f"""
        s_cmp_lg_u32 s3, 0
        s_cbranch_scc1 K2_leak
        s_memrealtime s[92:93]
        v_mov_b32 v{S1+4}, 0
        s_mov_b32 s5, {WS_SEL:#x}
        buffer_load_dwordx4 v[{S1}:{S1+3}], v{S1+4}, s[8:11], s5 offen
        s_waitcnt vmcnt(0) lgkmcnt(0)
        s_mov_b64 exec, 1
        v_add_f32 v{WF+8}, {f2u(64.0):#x}, v{WF+8}
        v_sub_u32 v{WF+9}, v{S1+2}, v{S1}
        v_sub_u32 v{WF+10}, v{S1+1}, v{S1}
        v_sub_u32 v{WF+11}, s90, v{S1}
        v_sub_u32 v{WF+12}, s94, v{S1}
        v_sub_u32 v{WF+13}, s92, v{S1}
        """)
        for r in range(9, 14):
            a(f"v_cvt_f32_u32 v{WF+r}, v{WF+r}")
            a(f"v_mul_f32 v{WF+r}, {f2u(0.005):#x}, v{WF+r}")
            a(f"v_min_f32 v{WF+r}, {f2u(20.0):#x}, v{WF+r}")
        a("s_mov_b64 exec, -1")
        a.label("K2_leak")
    a(f"""
    v_cvt_pk_bf16_f32 v{t2}, 0, v{t2}
    v_ashrrev_i32 v{t0}, 31, v{t2}
    v_or_b32 v{t0}, 0x80000000, v{t0}
    v_xor_b32 v{t2}, v{t2}, v{t0}
    v_and_b32 v{t2}, 0xffff0000, v{t2}
    s_sub_u32 s5, 0xffff, s3
    v_or_b32 v{t2}, s5, v{t2}      ; key
    ds_write_b32 v{t4}, v{t2}
    """)
    for r in range(4): a(f"v_cvt_pk_bf16_f32 v{PK+r}, v{WF+8+2*r}, v{WF+8+2*r+1}")
    a(f"""
    buffer_store_dwordx4 v[{PK}:{PK+3}], v{vWL}, s[20:23], s4 offen sc1
    """)
    a(f"""
    s_waitcnt lgkmcnt(0)
    s_barrier
    ds_read_b32 v{t1}, v{t3}
    s_waitcnt lgkmcnt(0)
    v_cmp_gt_u32 vcc, v{t1}, v{t2}
    v_cmp_eq_u32 s[36:37], v{t1}, v{t2}
    s_and_b32 s38, vcc_lo, 0xff
    s_bcnt1_i32_b32 s38, s38       ; rank
    """)
    st(5, False); st(5, True); st(0, 2); st(1, 2); st(2, 2); st(3, 2); st(4, 2); st(5, 2)
    a(f"""
    s_cmp_gt_u32 s38, 1
    s_cbranch_scc1 K2_pub0
    s_add_u32 s5, s4, {WS_H:#x}
    buffer_store_dwordx4 v[{PK+4}:{PK+7}], v{vWL}, s[8:11], s5 offen sc1
    s_add_u32 s5, s4, {WS_HN:#x}
    buffer_store_dwordx4 v[{ST+4}:{ST+7}], v{vWL}, s[8:11], s5 offen sc1
    v_cndmask_b32 v{ST+1}, v{t1}, 0, s[36:37]
    v_mov_b32 v{ST}, v{t2}
    s_lshl_b32 s5, s2, {G.KS_LOG}
    s_add_u32 s5, s5, {WS_KEY:#x}
    v_lshlrev_b32 v{t0}, 14, v0
    """)
    for mod in ("quad_perm:[1,0,3,2]", "quad_perm:[2,3,0,1]", "row_half_mirror"):
        a(f"v_max_u32_dpp v{ST+1}, v{ST+1}, v{ST+1} {mod} row_mask:0xf bank_mask:0xf")
    a("s_waitcnt vmcnt(0)")
    a.label("K2_pub0")
    a(f"""
    s_barrier
    s_cmp_lg_u32 s38, 0
    s_cbranch_scc1 K2_pub
    s_mov_b64 exec, {0xff if KREP else 1}
    buffer_store_dwordx2 v[{ST}:{ST+1}], v{t0}, s[8:11], s5 offen sc1
    s_mov_b64 exec, -1
    """)
    a.label("K2_pub")
    if 'amp' in dbg: a('s_memrealtime s[96:97]'); a('s_waitcnt lgkmcnt(0)')
    st(1, 2)
    def fin():
        if G.STAMP: a("s_waitcnt vmcnt(0)")
        stamp(a, 6)
        if G.STAMP: a("s_mov_b32 s91, s30")
        stamp_out(a, 1, 8, "s6", WF)
        a("s_endpgm")
    a(f"""
    s_cmp_ge_u32 s2, 144
    s_cbranch_scc1 K2_fin
    """)
    AFR = V
    KY = K; Y = K + 8; BX = V + 32; AC = K + 16
    a(f"""
    s_setprio 0
    v_bfe_u32 v{t0}, v0, 2, 2
    v_lshrrev_b32 v{t4}, 4, v0           ; g
    v_lshl_add_u32 v{t0}, v{t4}, 3, v{t0}
    v_lshlrev_b32 v{t0}, 5, v{t0}
    v_and_b32 v{t1}, 3, v0
    v_lshl_add_u32 v{t0}, v{t1}, 3, v{t0}
    v_add_u32 v{t0}, s74, v{t0}
    """)
    for sx in range(7):
        for half in range(2):
            d = AFR + 4 * sx + 2 * half
            a(f"ds_read_b64_tr_b16 v[{d}:{d+1}], v{t0} offset:{sx*1024 + half*128}")
    a(f"""
    v_and_b32 v{t3}, 1, v0
    v_lshlrev_b32 v{vPW}, 6, v{t3}
    v_lshl_add_u32 v{vPW}, v{t4}, 4, v{vPW}
    s_lshl_b32 s5, s6, 7
    s_add_u32 s5, s5, {L_RED:#x}
    v_add_u32 v{vPW}, s5, v{vPW}
    v_and_b32 v{vPR}, 31, v0
    v_lshlrev_b32 v{vPR}, 2, v{vPR}      ; (lane&31)*4
    v_lshrrev_b32 v{vOR}, 5, v0
    v_lshl_add_u32 v{vOR}, v{vOR}, 14, v{vPR}
    s_cmp_lg_u32 s6, 0
    s_cbranch_scc1 K2_nokey
    v_lshlrev_b32 v{t1}, {G.KS_LOG}, v0
    s_and_b32 s5, s2, {7 if KREP else 0}
    s_lshl_b32 s5, s5, 14
    s_add_u32 s5, s5, {WS_KEY:#x}
    s_add_u32 s79, s5, {64 << G.KS_LOG}
    s_add_u32 s80, s5, {128 << G.KS_LOG}
    s_add_u32 s81, s5, {192 << G.KS_LOG}
    s_mov_b32 s36, 0
    """)
    KZ = V + 60 - 8 * 0
    def poll_loop(name, issue, nld):
        K2R = X[0]
        def chk(b):
            a(f"""
            v_min3_u32 v{Y}, v{b}, v{b+1}, v{b+2}
            v_min3_u32 v{Y+1}, v{b+3}, v{b+4}, v{b+5}
            v_min3_u32 v{Y}, v{Y}, v{b+6}, v{b+7}
            v_min_u32 v{Y}, v{Y}, v{Y+1}
            v_cmp_eq_u32 vcc, 0, v{Y}
            """)
        sl = OPT.get('psl', 3)
        issue(KY)
        a(f"s_sleep {sl}")
        a.label(f"{name}_l")
        issue(K2R)
        a(f"s_waitcnt vmcnt({nld})")
        chk(KY)
        a(f"s_cbranch_vccz {name}_ok")
        issue(KY)
        a(f"s_waitcnt vmcnt({nld})")
        chk(K2R)
        a(f"""
        s_cbranch_vccz {name}_ok2
        s_add_u32 s36, s36, 1
        s_cmp_lt_u32 s36, 0x40000
        s_cbranch_scc1 {name}_l
        """)
        a.label(f"{name}_ok2")
        for r in range(0, 8, 2): a(f"v_pk_mov_b32 v[{KY+r}:{KY+r+1}], v[{K2R+r}:{K2R+r+1}], v[{K2R+r}:{K2R+r+1}] op_sel:[0,1]")
        a.label(f"{name}_ok")
    def kissue(b):
        for k, sr in enumerate(("s5", "s79", "s80", "s81")):
            a(f"buffer_load_dwordx2 v[{b+2*k}:{b+2*k+1}], v{t1}, s[8:11], {sr} offen sc1")
    if int(OPT.get('kd', 16)): a(f"s_sleep {OPT.get('kd', 16)}")
    poll_loop("K2_kp", kissue, 4)
    a.label("K2_kok")
    st(2, 2)
    if FS: a("s_mov_b32 s30, s36")
    B1, B2 = Y + 4, Y + 5
    a(f"""
    v_max_u32 v{B1}, v{KY}, v{KY+2}
    v_min_u32 v{B2}, v{KY}, v{KY+2}
    v_max3_u32 v{B2}, v{B2}, v{KY+1}, v{KY+3}
    v_max_u32 v{Y}, v{KY+4}, v{KY+6}
    v_min_u32 v{Y+1}, v{KY+4}, v{KY+6}
    v_max3_u32 v{Y+1}, v{Y+1}, v{KY+5}, v{KY+7}
    v_min_u32 v{Y+2}, v{B1}, v{Y}
    v_max_u32 v{B1}, v{B1}, v{Y}
    v_max3_u32 v{B2}, v{B2}, v{Y+1}, v{Y+2}
    v_mov_b32 v{Y}, v{B1}
    """)
    wave_max_u32(a, Y, Y + 1)
    a(f"""
    v_cmp_eq_u32 vcc, v{B1}, v{Y}
    v_cndmask_b32 v{B1}, v{B1}, v{B2}, vcc
    """)
    wave_max_u32(a, B1, Y + 1)
    a(f"""
    v_readfirstlane_b32 s40, v{Y}
    v_readfirstlane_b32 s41, v{B1}
    s_andn2_b32 s42, 0x7ff, s40
    s_andn2_b32 s43, 0x7ff, s41
    s_lshl_b32 s42, s42, 10
    s_lshl_b32 s43, s43, 10
    """)
    a.label("K2_nokey")
    a(f"""
    s_cmp_ge_u32 s2, 112
    s_cbranch_scc1 K2_down
    s_cmp_lg_u32 s6, 0
    s_cbranch_scc1 K2_up1
    s_add_u32 s36, s42, {WS_HN:#x}
    s_add_u32 s37, s43, {WS_HN:#x}
    buffer_load_dwordx4 v[{KY}:{KY+3}], v{vWL}, s[8:11], s36 offen sc1
    buffer_load_dwordx4 v[{KY+4}:{KY+7}], v{vWL}, s[8:11], s37 offen sc1
    s_waitcnt vmcnt(1)
    ds_write_b128 v{vWL}, v[{KY}:{KY+3}] offset:{L_XS}
    s_waitcnt vmcnt(0)
    ds_write_b128 v{vWL}, v[{KY+4}:{KY+7}] offset:{L_XS + 1040}
    """)
    a.label("K2_up1")
    st(3, 2)
    a(f"""
    v_mul_u32_u24 v{t0}, 1040, v{t3}
    v_lshl_add_u32 v{t0}, v{t4}, 4, v{t0}
    s_lshr_b32 s5, s6, 1
    s_lshl_b32 s5, s5, 8
    v_add_u32 v{t0}, s5, v{t0}
    s_waitcnt lgkmcnt(0)
    s_barrier
    """)
    for sx in range(4):
        a(f"ds_read_b128 v[{BX+4*sx}:{BX+4*sx+3}], v{t0} offset:{L_XS + 64*sx}")
    for sx in range(4):
        a(f"s_waitcnt lgkmcnt({3-sx})")
        c = "0" if sx == 0 else f"v[{AC}:{AC+3}]"
        a(f"v_mfma_f32_16x16x32_bf16 v[{AC}:{AC+3}], v[{AFR+4*sx}:{AFR+4*sx+3}], v[{BX+4*sx}:{BX+4*sx+3}], {c}")
    a(f"""
    ds_write_b128 v{vPW}, v[{AC}:{AC+3}]
    s_waitcnt lgkmcnt(0)
    s_barrier
    s_cmp_lg_u32 s6, 0
    s_cbranch_scc1 K2_fin
    """)
    def red_read():
        a(f"v_add_u32 v{t0}, {L_RED:#x}, v{vPR}")
        a("s_waitcnt vmcnt(0)")
        for k in range(4):
            a(f"ds_read2_b32 v[{KY+2*k}:{KY+2*k+1}], v{t0} offset0:{64*k} offset1:{64*k+32}")
        a("s_waitcnt lgkmcnt(0)")
        a(f"v_pk_add_f32 v[{KY}:{KY+1}], v[{KY}:{KY+1}], v[{KY+2}:{KY+3}]")
        a(f"v_pk_add_f32 v[{KY+4}:{KY+5}], v[{KY+4}:{KY+5}], v[{KY+6}:{KY+7}]")
        a(f"v_pk_add_f32 v[{KY}:{KY+1}], v[{KY}:{KY+1}], v[{KY+4}:{KY+5}]")
    st(4, 2)
    red_read()
    a(f"""
    v_cvt_pk_bf16_f32 v{KY}, 0, v{KY}
    v_cvt_pk_bf16_f32 v{KY+1}, 0, v{KY+1}
    """)
    sigmoid(a, KY + 2, KY, KY + 3)
    a(f"""
    v_mul_f32 v{KY}, v{KY}, v{KY+2}
    v_cvt_pk_bf16_f32 v{KY}, 0, v{KY}
    v_mul_f32 v{KY}, v{KY}, v{KY+1}
    v_cvt_pk_bf16_f32 v{KY}, 0, v{KY}
    v_or_b32 v{KY}, 1, v{KY}
    s_lshl_b32 s5, s76, 7
    s_add_u32 s5, s5, {WS_GU:#x}
    """)
    if GREP:
        for k in range(4):
            a(f"buffer_store_dword v{KY}, v{vOR}, s[8:11], s5 offen sc1")
            if k < 3: a("s_add_u32 s5, s5, 0x8000")
    else:
        a(f"""
        s_mov_b32 exec_hi, 0
        buffer_store_dword v{KY}, v{vPR}, s[8:11], s5 offen sc1
        s_mov_b64 exec, -1
        """)
    a(f"""
    s_branch K2_fin
    """)
    a.label("K2_down")
    HH, NN, GT, OO = Y + 6, Y + 7, AC + 4, AC + 5
    a(f"""
    s_cmp_lg_u32 s6, 0
    s_cbranch_scc1 K2_dn1
    v_bfe_u32 v{t0}, v0, 4, 1
    v_cmp_eq_u32 vcc, 0, v{t0}
    v_mov_b32 v{t0}, s43
    v_mov_b32 v{t1}, s42
    v_cndmask_b32 v{OO}, v{t0}, v{t1}, vcc
    v_and_b32 v{t0}, 15, v0
    v_lshl_add_u32 v{OO}, v{t0}, 1, v{OO}
    s_lshl_b32 s44, s77, 5
    s_add_u32 s36, s44, {WS_H:#x}
    s_add_u32 s37, s44, {WS_HN:#x}
    buffer_load_ushort v{HH}, v{OO}, s[8:11], s36 offen sc1
    buffer_load_ushort v{NN}, v{OO}, s[8:11], s37 offen sc1
    v_mov_b32 v{t0}, s41
    v_mov_b32 v{t1}, s40
    v_cndmask_b32 v{GT}, v{t0}, v{t1}, vcc
    v_and_b32 v{GT}, 0xffff0000, v{GT}
    v_ashrrev_i32 v{t0}, 31, v{GT}
    v_not_b32 v{t0}, v{t0}
    v_or_b32 v{t0}, 0x80000000, v{t0}
    v_xor_b32 v{GT}, v{GT}, v{t0}
    v_and_b32 v{GT}, 0xffff0000, v{GT}
    """)
    sigmoid(a, GT, GT, t0)
    a(f"v_cvt_pk_bf16_f32 v{GT}, 0, v{GT}")
    a.label("K2_dn1")
    a(f"""
    s_mul_i32 s5, s6, 1792
    s_and_b32 s37, s2, {7 if GREP else 0}
    s_lshl_b32 s37, s37, 14
    s_add_u32 s5, s5, s37
    s_add_u32 s5, s5, {WS_GU:#x}
    v_min_u32 v{t1}, 47, v0
    v_lshlrev_b32 v{t1}, 4, v{t1}
    s_lshl_b32 s37, s6, 10
    s_add_u32 s37, s37, {L_GB:#x}
    v_lshrrev_b32 v{t0}, 3, v0
    v_lshlrev_b32 v{vPL}, 5, v{t0}
    v_and_b32 v{t0}, 3, v0
    v_lshl_add_u32 v{vPL}, v{t0}, 3, v{vPL}
    v_bfe_u32 v{t0}, v0, 2, 1
    v_mul_u32_u24 v{t0}, 464, v{t0}
    v_add3_u32 v{vPL}, v{vPL}, v{t0}, s37
    v_mul_u32_u24 v{vOW}, 464, v{t3}
    v_lshl_add_u32 v{vOW}, v{t4}, 4, v{vOW}
    v_add_u32 v{vOW}, s37, v{vOW}
    s_mov_b32 s45, 0x07060302
    s_mov_b32 s36, 0
    """)
    def gissue(b):
        a(f"buffer_load_dwordx4 v[{b}:{b+3}], v{vWL}, s[8:11], s5 offen sc1")
        a(f"buffer_load_dwordx4 v[{b+4}:{b+7}], v{t1}, s[8:11], s5 offen offset:1024 sc1")
    if 'nogb' not in dbg:
        a("s_barrier")
        if int(OPT.get('gd', 24)): a(f"s_sleep {OPT.get('gd', 24)}")
    poll_loop("K2_gp", gissue, 2)
    a.label("K2_gok")
    st(4, 2)
    a(f"""
    v_perm_b32 v{Y}, v{KY+1}, v{KY}, s45
    v_perm_b32 v{Y+1}, v{KY+3}, v{KY+2}, s45
    v_perm_b32 v{Y+2}, v{KY+5}, v{KY+4}, s45
    v_perm_b32 v{Y+3}, v{KY+7}, v{KY+6}, s45
    ds_write_b64 v{vPL}, v[{Y}:{Y+1}]
    s_mov_b32 exec_hi, 0xffff
    ds_write_b64 v{vPL}, v[{Y+2}:{Y+3}] offset:256
    s_mov_b64 exec, -1
    """)
    for sx in range(7):
        a(f"ds_read_b128 v[{BX+4*sx}:{BX+4*sx+3}], v{vOW} offset:{64*sx}")
    for sx in range(7):
        a(f"s_waitcnt lgkmcnt({6-sx})")
        c = "0" if sx == 0 else f"v[{AC}:{AC+3}]"
        a(f"v_mfma_f32_16x16x32_bf16 v[{AC}:{AC+3}], v[{AFR+4*sx}:{AFR+4*sx+3}], v[{BX+4*sx}:{BX+4*sx+3}], {c}")
    a(f"""
    ds_write_b128 v{vPW}, v[{AC}:{AC+3}]
    s_waitcnt lgkmcnt(0)
    s_barrier
    s_cmp_lg_u32 s6, 0
    s_cbranch_scc1 K2_fin
    """)
    red_read()
    a(f"""
    v_add_f32 v{KY}, v{KY}, v{KY+1}
    v_lshlrev_b32 v{HH}, 16, v{HH}
    v_lshlrev_b32 v{NN}, 16, v{NN}
    v_cvt_pk_bf16_f32 v{KY}, 0, v{KY}
    v_mul_f32 v{KY}, v{KY}, v{GT}
    v_cvt_pk_bf16_f32 v{KY}, 0, v{KY}
    v_add_f32 v{KY}, v{KY}, v{NN}
    v_cvt_pk_bf16_f32 v{KY}, 0, v{KY}
    v_add_f32 v{KY}, v{KY}, v{HH}
    v_cvt_pk_bf16_f32 v{KY}, v{KY}, v{KY}
    s_mov_b32 exec_hi, 0
    buffer_store_short v{KY}, v{OO}, s[20:23], s44 offen sc1
    s_mov_b64 exec, -1
    """)
    a.label("K2_fin")
    if 'amp' in dbg:
        q = int(OPT['amp'])
        expr = {0: None, 1: ("s83", "s82"), 2: ("s90", "s83"), 3: ("s96", "s90"), 4: ("s84", "s82"), 5: ("s94", "s90"), 6: ("s88", "s87"), 7: ("s82", "s87"), 8: ("s89", "s87"), 9: ("s90", "s89")}[q]
        a(f"""
        s_or_b32 s5, s2, s6
        s_cmp_lg_u32 s5, 0
        s_cbranch_scc1 K2_amp_end
        s_mov_b32 s5, {WS_SEL:#x}
        buffer_load_dwordx4 v[{S1}:{S1+3}], v{vWL}, s[8:11], s5 offen
        s_waitcnt vmcnt(0)
        v_readfirstlane_b32 s82, v{S1}
        v_readfirstlane_b32 s83, v{S1+1}
        v_readfirstlane_b32 s84, v{S1+2}
        v_not_b32 v{S1+3}, v{S1}
        """)
        wave_max_u32(a, S1, S1 + 5); wave_max_u32(a, S1 + 3, S1 + 5); wave_max_u32(a, S1 + 1, S1 + 5)
        a(f"""
        v_readfirstlane_b32 s88, v{S1}
        v_readfirstlane_b32 s87, v{S1+3}
        v_readfirstlane_b32 s89, v{S1+1}
        s_not_b32 s87, s87
        """)
        if expr: a(f"s_sub_u32 s85, {expr[0]}, {expr[1]}")
        else: a("s_mov_b32 s85, 0")
        a(f"""
        s_min_u32 s85, s85, 5000
        s_lshl_b32 s85, s85, 1
        s_add_u32 s85, s85, 600
        s_add_u32 s85, s85, s96
        """)
        a.label("K2_amp")
        a(f"""
        s_memrealtime s[92:93]
        s_waitcnt lgkmcnt(0)
        s_sub_u32 s86, s92, s85
        s_cmp_lt_i32 s86, 0
        s_cbranch_scc1 K2_amp
        """)
        a.label("K2_amp_end")
    if G.STAMP: a("s_waitcnt vmcnt(0)")
    stamp(a, 6)
    if G.STAMP: a("s_mov_b32 s91, s30")
    stamp_out(a, 1, 8, "s6", WF)
    dstamp(a, 1, True, 240)
    a.label("K2_end")
    a("s_endpgm")
    a.label("K2_qspin")
    a(f"""
    s_mov_b32 s36, 0
    """)
    a.label("K2_qspin1")
    a(f"""
    s_sleep 2
    buffer_load_dword v{t0}, v{SP}, s[8:11], s45 offen sc1
    s_add_u32 s36, s36, 1
    s_waitcnt vmcnt(0)
    v_cmp_ne_u32 vcc, s58, v{t0}
    s_cbranch_vccz K2_qback
    s_cmp_lt_u32 s36, 0x40000
    s_cbranch_scc1 K2_qspin1
    s_branch K2_qback
    """)
    for k, off in enumerate(spins):
        a.label(f"K2_spin{k}")
        a(f"""
        s_sleep 1
        ds_read_b32 v{vFV}, v{vFR} offset:{off}
        s_waitcnt lgkmcnt(0)
        v_cmp_gt_u32 vcc, s59, v{vFV}
        s_cbranch_vccnz K2_spin{k}
        s_branch K2_back{k}
        """)
```

```python
from gen import *
import gen as G

L_X = 0; L_W = 65536; L_KV = 131072; L_WOT = L_KV + 16384; L_DN = L_WOT + 2048; L1_TOTAL = L_DN + 64
L_Q0 = 0x6000

def gen_p1(a, dbg=''):
    SC = ' sc1'
    def p1(i):
        if 'p1st' in dbg: stamp(a, i)
        if 'amp' in dbg: a(f's_memrealtime s[100:101]'); a('s_waitcnt lgkmcnt(0)'); a(f's_mov_b32 s{82+i}, s100')
    FST = int(dict(x.split('=') for x in dbg.split(',') if '=' in x).get('fst', 2))
    WB = int(dict(x.split('=') for x in dbg.split(',') if '=' in x).get('wb', 5))
    WD = int(dict(x.split('=') for x in dbg.split(',') if '=' in x).get('wd', 9))
    PB = int(dict(x.split('=') for x in dbg.split(',') if '=' in x).get('pb', 99))
    FLS = int(dict(x.split('=') for x in dbg.split(',') if '=' in x).get('fls', 4))
    EPOCH = f"""
    s_add_u32 s56, s32, {WS_EP:#x}
    s_addc_u32 s57, s33, 0
    s_load_dword s58, s[56:57], 0
    """
    X = 32
    ACC = 96
    AF = 116
    T = 148
    a(f"""
    s_cmp_lt_u32 s2, 256
    s_cbranch_scc1 K1_go
    s_endpgm
    """)
    a.label("K1_go")
    stamp(a, 0)
    if ('leak' in dbg or 'amp' in dbg): a('s_memrealtime s[90:91]')
    dstamp(a, 0, False, 200)
    a(f"""
    s_load_dwordx8 s[24:31], s[0:1], 0
    s_load_dwordx2 s[44:45], s[0:1], 32
    s_load_dwordx2 s[32:33], s[0:1], 96
    """)
    if 'nocodepf' not in dbg:
        a(f"""
        s_cmp_ge_u32 s2, 16
        s_cbranch_scc1 K1_nocp
        v_subrev_u32 v30, 256, v0
        v_cmp_gt_u32 vcc, (K_all_end-k1_kernel+127)/128, v30
        s_and_saveexec_b64 s[62:63], vcc
        s_cbranch_execz K1_cpx
        s_getpc_b64 s[60:61]
        """)
        a.label("K1_pc")
        a(f"""
        s_sub_u32 s60, s60, K1_pc-k1_kernel
        s_subb_u32 s61, s61, 0
        v_lshlrev_b32 v30, 7, v30
        global_load_dword v31, v30, s[60:61]
        """)
        a.label("K1_cpx")
        a("s_mov_b64 exec, s[62:63]")
        a.label("K1_nocp")
    a(f"""
    s_and_b32 s3, s2, 7
    s_lshr_b32 s4, s2, 3
    s_and_b32 s5, s4, 7
    s_lshr_b32 s4, s4, 3           ; tb & 3
    s_lshl_b32 s3, s3, 2
    s_add_u32 s3, s3, s4
    v_lshrrev_b32 v1, 6, v0
    v_and_b32 v2, 63, v0           ; lane
    v_readfirstlane_b32 s6, v1     ; wave
    v_and_b32 v3, 15, v2           ; l & 15
    v_lshrrev_b32 v4, 4, v2        ; g
    v_bfe_u32 v18, v2, 2, 2        ; r'
    v_and_b32 v19, 3, v2           ; c'
    v_lshl_add_u32 v20, v4, 3, v18 ; 8g + r'
    v_lshlrev_b32 v17, 5, v20
    v_lshl_add_u32 v17, v19, 3, v17
    s_cmp_ge_u32 s6, 4
    s_cbranch_scc1 K1_loader
    """)
    a(f"""
    s_lshl_b32 s7, s3, 6
    s_lshl_b32 s34, s6, 4
    s_add_u32 s7, s7, s34
    v_add_u32 v5, s7, v3           ; token
    v_lshrrev_b32 v6, 2, v2        ; row
    v_lshrrev_b32 v7, 4, v2
    v_and_b32 v7, 2, v7
    v_xor_b32 v7, v7, v19
    v_lshlrev_b32 v6, 10, v6
    v_lshl_add_u32 v6, v7, 4, v6
    s_lshl_b32 s63, s6, 14
    s_add_u32 s63, s63, {L_X}
    s_lshl_b32 s64, s7, 10
    s_lshl_b32 s62, s5, 7
    s_waitcnt lgkmcnt(0)
    """)
    srd(a, 8, 24, 25, 0x200000)
    def xloop(name, lo, hi):
        if lo >= hi: return
        a(f"s_mov_b32 s49, {lo}")
        a.label(name)
        a(f"""
        s_mov_b32 m0, s67
        s_add_u32 s48, s62, s64
        buffer_load_dwordx4 v6, s[8:11], s48 offen lds
        s_add_u32 m0, s67, {1024 - 64}
        s_add_u32 s62, s62, 128
        buffer_load_dwordx4 v6, s[8:11], s48 offen offset:64 lds
        s_and_b32 s62, s62, 0x3ff
        s_add_u32 s67, s67, 2048
        s_add_u32 s49, s49, 1
        s_cmp_lt_u32 s49, {hi}
        s_cbranch_scc1 {name}
        """)
    XN = int(dict(x.split('=') for x in dbg.split(',') if '=' in x).get('xn', 5))
    a("s_mov_b32 s67, s63")
    xloop("K1_x1", 0, XN)
    a("s_branch K1_comp")
    EARLY = 'early' in dbg
    a.label("K1_loader")
    if 'noldprio' not in dbg: a("s_setprio 3")
    a(f"""
    s_sub_u32 s6, s6, 4
    v_lshrrev_b32 v7, 3, v2        ; row_in
    v_and_b32 v8, 7, v2            ; slot
    v_and_b32 v9, 2, v7
    v_xor_b32 v8, v8, v9
    v_xor_b32 v9, 4, v8
    s_lshl_b32 s35, s5, 7
    v_lshlrev_b32 v7, 10, v7
    v_add_u32 v7, s35, v7
    v_lshl_add_u32 v10, v8, 4, v7
    v_lshl_add_u32 v11, v9, 4, v7
    v_lshlrev_b32 v12, 4, v2       ; lane*16
    v_lshrrev_b32 v13, 1, v2
    v_lshlrev_b32 v13, 10, v13
    v_and_b32 v14, 1, v2
    v_lshl_add_u32 v13, v14, 4, v13
    s_lshl_b32 s65, s6, 14
    s_add_u32 s65, s65, {L_W}
    s_lshl_b32 s37, s6, 4
    s_lshl_b32 s38, s5, 3
    s_add_u32 s37, s37, s38
    v_and_b32 v15, 16, v2
    v_lshlrev_b32 v15, 3, v15
    v_xor_b32 v15, v15, v12
    s_lshl_b32 s39, s4, 2
    s_waitcnt lgkmcnt(0)
    """)
    a(EPOCH)
    srd(a, 12, 26, 27, 0x80000)
    a(f"""
    s_bitcmp0_b32 s5, 0
    s_cselect_b64 s[46:47], s[28:29], s[30:31]
    """)
    srd(a, 16, 46, 47, 0x4000)
    srd(a, 40, 44, 45, 0x80000)
    srd(a, 20, 32, 33, WS_SIZE)
    a(f"""
    s_cmp_lg_u32 s6, 0
    s_cbranch_scc1 K1_noz
    v_mov_b32 v32, 0
    v_mov_b32 v33, 0
    v_mov_b32 v34, 0
    v_mov_b32 v35, 0
    s_lshl_b32 s48, s2, 10
    s_add_u32 s48, s48, {WS_GU:#x}
    buffer_store_dwordx4 v[32:35], v12, s[20:23], s48 offen{SC}
    """)
    a.label("K1_noz")
    if 'notouch' not in dbg:
        a(f"""
        s_cmp_lg_u32 s6, 1
        s_cbranch_scc1 K1_not
        s_and_b32 s48, s2, 7
        s_lshl_b32 s48, s48, 14
        s_add_u32 s48, s48, {WS_FL:#x}
        v_lshlrev_b32 v32, {FLS + 2}, v2
        buffer_load_dword v33, v32, s[20:23], s48 offen sc1
        """)
        a.label("K1_not")
    a(f"""
    s_cmp_lt_u32 s6, 2
    s_cbranch_scc1 K1_nowo
    s_lshl_b32 s46, s2, 1
    s_and_b32 s47, s6, 1
    s_add_u32 s46, s46, s47
    s_lshr_b32 s47, s46, 6
    s_lshl_b32 s47, s47, 16
    s_bfe_u32 s48, s46, 0x10002
    s_lshl_b32 s48, s48, 15        ; s * 32 rows
    s_add_u32 s47, s47, s48
    s_bfe_u32 s48, s46, 0x30003
    s_lshl_b32 s48, s48, 7         ; w * 128 B
    s_add_u32 s47, s47, s48
    s_and_b32 s48, s46, 3
    s_lshl_b32 s48, s48, 5         ; t * 32 B
    s_add_u32 s47, s47, s48
    s_lshl_b32 s48, s6, 10
    s_add_u32 s48, s48, {L_WOT - 2048}
    s_mov_b32 m0, s48
    v_add_u32 v17, s48, v17
    buffer_load_dwordx4 v13, s[40:43], s47 offen lds
    s_lshl_b32 s48, s6, 2
    s_add_u32 s48, s48, {L_DN - 8}
    v_mov_b32 v36, s48
    v_mov_b32 v37, 0
    ds_write_b32 v36, v37
    v_mov_b32 v37, 1
    """)
    a.label("K1_nowo")
    a(f"""
    s_lshl_b32 s36, s6, 12
    s_lshl_b32 s38, s5, 11
    """)
    for i in range(4):
        a(f"""
        s_add_u32 s48, s36, {i*1024}
        s_add_u32 m0, s48, {L_KV}
        s_add_u32 s48, s48, s38
        s_and_b32 s48, s48, 0x3fff
        buffer_load_dwordx4 v15, s[16:19], s48 offen lds
        """)
    a("s_waitcnt lgkmcnt(0)")
    a("s_add_u32 s58, s58, 1")
    a(f"""
    s_barrier
    s_cmp_lt_u32 s6, 2
    s_cbranch_scc1 K1_nowo2
    s_waitcnt vmcnt(4)
    ds_read_b64_tr_b16 v[32:33], v17
    ds_read_b64_tr_b16 v[34:35], v17 offset:128
    s_lshl_b32 s46, s46, 10
    s_add_u32 s46, s46, {WS_WOF:#x}
    s_waitcnt lgkmcnt(0)
    buffer_store_dwordx4 v[32:35], v12, s[20:23], s46 offen sc1
    s_branch K1_wst
    """)
    a.label("K1_nowo2")
    a("buffer_load_dword v33, v12, s[16:19], 0 offen")
    a.label("K1_wst")
    for i in range(16):
        a(f"""
        s_add_u32 s48, s39, {i}
        s_and_b32 s48, s48, 15
        s_lshl_b32 s49, s48, 10
        s_add_u32 m0, s65, s49
        s_add_u32 s48, s48, s37
        s_and_b32 s48, s48, 63
        s_lshl_b32 s48, s48, 13
        buffer_load_dwordx4 v{10 + (i & 1)}, s[12:15], s48 offen lds
        """)
        if i == WB:
            a(f"s_waitcnt vmcnt({WB + 2})")
            p1(1)
            a("s_barrier")
        if i == WD and EARLY:
            a(f"""
            s_cmp_lt_u32 s6, 2
            s_cbranch_scc1 K1_nodn
            s_waitcnt vmcnt({WD + 1})
            ds_write_b32 v36, v37
            """)
            a.label("K1_nodn")
    p1(2)
    a("s_waitcnt vmcnt(0)")
    p1(3)
    a("s_barrier")
    a("s_cmp_eq_u32 s6, 0")
    a("s_cbranch_scc1 K12_join")
    a("s_setprio 0")
    a("s_branch K12_join")
    a.label("K1_comp")
    a(EPOCH)
    srd(a, 20, 32, 33, WS_SIZE)
    ONE = 24; SEL = 8
    SEL = 152
    a(f"""
    v_lshlrev_b32 v21, 7, v20
    v_lshl_add_u32 v21, v19, 3, v21   ; row*128 + 8c'
    v_add_u32 v21, {L_W}, v21
    v_lshrrev_b32 v22, 1, v18
    v_and_b32 v23, 1, v4
    v_lshl_or_b32 v22, v23, 1, v22 ; h
    """)
    for t in range(4):
        a(f"v_xor_b32 v23, {t}, v22")
        a(f"v_lshl_add_u32 v{13+t}, v23, 5, v21")
    a(f"""
    v_lshlrev_b32 v10, 6, v3
    v_lshrrev_b32 v7, 2, v3
    v_and_b32 v7, 2, v7
    v_xor_b32 v7, v7, v4
    v_lshl_add_u32 v10, v7, 4, v10
    v_add_u32 v10, s63, v10
    v_and_b32 v7, 1, v4
    v_lshlrev_b32 v7, 7, v7
    v_add_u32 v17, {L_KV}, v17
    v_xor_b32 v12, v17, v7
    v_xor_b32 v17, 128, v12
    """)
    for r in range(4): a(f"v_mov_b32 v{ONE+r}, 0x3f803f80")
    a(f"""
    v_and_b32 v7, 1, v2
    v_lshlrev_b32 v7, 4, v7
    v_mov_b32 v8, 0x3f80
    v_lshlrev_b32 v7, v7, v8
    v_cmp_eq_u32 s[36:37], v18, v4 ; g == (l&15)>>2
    v_bfe_u32 v8, v2, 1, 1
    v_cmp_eq_u32 vcc, 0, v8
    s_and_b64 s[38:39], s[36:37], vcc
    s_andn2_b64 s[40:41], s[36:37], vcc
    v_mov_b32 v{SEL}, 0
    v_mov_b32 v{SEL+1}, 0
    v_cndmask_b32 v{SEL+2}, 0, v7, s[38:39]
    v_cndmask_b32 v{SEL+3}, 0, v7, s[40:41]
    v_mov_b32 v{SEL+4}, 0
    v_mov_b32 v{SEL+5}, 0
    """)
    xloop("K1_x2", XN, 8)
    a("s_waitcnt lgkmcnt(0)")
    a("s_add_u32 s58, s58, 1")
    a("s_barrier")
    p1(1)
    m16 = "v_mfma_f32_16x16x32_bf16"
    SUM = ACC; GR = ACC + 4; NM = 224
    def stat(u):
        xs = f"v[{X+4*u}:{X+4*u+3}]"
        a(f"{m16} v[{SUM}:{SUM+3}], v[{ONE}:{ONE+3}], {xs}, " + ("0" if u == 0 else f"v[{SUM}:{SUM+3}]"))
        a(f"{m16} v[{GR}:{GR+3}], {xs}, {xs}, " + ("0" if u == 0 else f"v[{GR}:{GR+3}]"))
    for u in range(0, 16, 2):
        a(f"s_waitcnt vmcnt({14-u})")
        a(f"ds_read_b128 v[{X+4*u}:{X+4*u+3}], v10 offset:{1024*u}")
        a(f"ds_read_b128 v[{X+4*u+4}:{X+4*u+7}], v10 offset:{1024*u+1024}")
        if u >= 4:
            a("s_waitcnt lgkmcnt(4)")
            stat(u - 4); stat(u - 3)
    a("s_waitcnt lgkmcnt(2)"); stat(12); stat(13)
    a("s_waitcnt lgkmcnt(0)"); stat(14); stat(15)
    RG = 160
    a("s_barrier")
    a("s_lshr_b32 s66, s5, 1")
    a("s_cmp_lg_u32 s66, s6")
    a("s_cbranch_scc1 K1_nokvf")
    for sx in range(16):
        for half in range(2):
            d = RG + 4 * sx + 2 * half
            a(f"ds_read_b64_tr_b16 v[{d}:{d+1}], v{17 if half else 12} offset:{sx*1024}")
    a.label("K1_nokvf")
    a(f"""
    v_and_b32 v7, 1, v2
    v_cmp_eq_u32 s[42:43], 1, v7
    v_cndmask_b32 v8, v{GR}, v{GR+1}, s[42:43]
    v_cndmask_b32 v9, v{GR+2}, v{GR+3}, s[42:43]
    v_cndmask_b32 v8, 0, v8, s[38:39]
    v_cndmask_b32 v26, v8, v9, s[40:41]
    """)
    for w in (16, 32):
        sum_swap(a, 26, 28, w)
    ln_scalars(a, SUM, 26, 28, 30, 27, 29)
    for r in range(4): a(f"v_sub_f32 v{NM+r}, 0, v28")
    NB = 4
    def sub(u):
        d = AF + 8 * (u % NB)
        xs = f"v[{X+4*u}:{X+4*u+3}]"
        a(f"{m16} v[{d}:{d+3}], v[{SEL+2}:{SEL+5}], {xs}, v[{NM}:{NM+3}]")
        a(f"{m16} v[{d+4}:{d+7}], v[{SEL}:{SEL+3}], {xs}, v[{NM}:{NM+3}]")
    sub(0); sub(1)
    def ln_step(u):
        d = AF + 8 * (u % NB); L = []
        for r in range(4): L.append(f"v_cvt_pk_bf16_f32 v{d+r}, 0, v{d+r}")
        if u + 2 < 16:
            dd = AF + 8 * ((u + 2) % NB); xs = f"v[{X+4*(u+2)}:{X+4*(u+2)+3}]"
            L.append(f"{m16} v[{dd}:{dd+3}], v[{SEL+2}:{SEL+5}], {xs}, v[{NM}:{NM+3}]")
        for r in range(4, 8): L.append(f"v_cvt_pk_bf16_f32 v{d+r}, 0, v{d+r}")
        for r in range(0, 8, 2): L.append(f"v_pk_mul_f32 v[{d+r}:{d+r+1}], v[{d+r}:{d+r+1}], v[30:31] op_sel_hi:[1,0]")
        if u + 2 < 16:
            L.append(f"{m16} v[{dd+4}:{dd+7}], v[{SEL}:{SEL+3}], {xs}, v[{NM}:{NM+3}]")
        for r in range(4): L.append(f"v_cvt_pk_bf16_f32 v{X+4*u+r}, v{d+2*r}, v{d+2*r+1}")
        return L
    for u in range(16):
        for ins in ln_step(u): a(ins)
    p1(2)
    KV = ACC + 16
    a(f"""
    v_lshrrev_b32 v9, 1, v4
    v_and_b32 v11, 1, v4
    s_cmp_lg_u32 s66, s6
    s_cbranch_scc1 K1_q
    s_lshr_b32 s35, s7, 5
    s_mul_i32 s35, s35, {TS}
    s_add_u32 s35, s35, {WS_KV:#x}
    s_waitcnt lgkmcnt(0)
    s_bitcmp0_b32 s5, 0
    s_cbranch_scc0 K1_v
    """)
    for sx in range(16):
        a(f"{m16} v[{KV}:{KV+3}], v[{RG+4*sx}:{RG+4*sx+3}], v[{X+4*sx}:{X+4*sx+3}], " + ("0" if sx == 0 else f"v[{KV}:{KV+3}]"))
    a(f"""
    v_and_b32 v8, 31, v5
    v_lshlrev_b32 v8, 4, v8
    v_lshl_add_u32 v8, v9, 9, v8
    s_branch K1_kvs
    """)
    a.label("K1_v")
    for sx in range(16):
        a(f"{m16} v[{KV}:{KV+3}], v[{X+4*sx}:{X+4*sx+3}], v[{RG+4*sx}:{RG+4*sx+3}], " + ("0" if sx == 0 else f"v[{KV}:{KV+3}]"))
    a(f"""
    s_and_b32 s36, s6, 1
    s_mul_i32 s36, s36, 544
    s_add_u32 s35, s35, s36
    s_add_u32 s35, s35, 1024
    v_mul_u32_u24 v8, 272, v9
    v_mov_b32 v{AF}, 0x3f803f80
    v_mov_b32 v{AF+1}, 0x3f803f80
    v_mov_b32 v{AF+2}, 0x3f803f80
    v_mov_b32 v{AF+3}, 0x3f803f80
    s_mov_b32 exec_lo, 1
    s_mov_b32 exec_hi, 1
    buffer_store_dwordx4 v[{AF}:{AF+3}], v8, s[20:23], s35 offen offset:256 sc1
    s_mov_b64 exec, -1
    v_lshl_add_u32 v8, v3, 4, v8
    """)
    a.label("K1_kvs")
    a(f"""
    v_cvt_pk_bf16_f32 v{T}, v{KV}, v{KV+1}
    v_cvt_pk_bf16_f32 v{T+1}, v{KV+2}, v{KV+3}
    v_mov_b32 v{T+2}, v{T}
    v_mov_b32 v{T+3}, v{T+1}
    v_permlane16_swap_b32 v{T}, v{T+2}
    v_permlane16_swap_b32 v{T+1}, v{T+3}
    s_mov_b32 exec_lo, 0xffff
    s_mov_b32 exec_hi, 0xffff
    buffer_store_dwordx4 v[{T}:{T+3}], v8, s[20:23], s35 offen sc1
    s_mov_b64 exec, -1
    v_mov_b32 v7, s58
    v_lshlrev_b32 v8, 14, v2
    s_lshl_b32 s35, s2, {FLS}
    s_add_u32 s35, s35, {WS_FL:#x}
    v_mov_b32 v21, {L_DN}
    """)
    EARLY = 'early' in dbg
    if EARLY: a.label("K1_dn")
    if EARLY: a(f"""
    ds_read_b64 v[22:23], v21
    s_waitcnt vmcnt(0) lgkmcnt(0)
    v_and_b32 v22, v22, v23
    v_cmp_eq_u32 vcc, 0, v22
    s_cbranch_vccnz K1_dn
    s_mov_b64 exec, 0xff
    buffer_store_dword v7, v8, s[20:23], s35 offen sc1
    s_mov_b64 exec, -1
    """)
    a.label("K1_q")
    a("s_barrier")
    p1(3)
    def rd(s, t):
        for half in range(2):
            d = RG + 16 * (s % 3) + 4 * t + 2 * half
            a(f"ds_read_b64_tr_b16 v[{d}:{d+1}], v{13+t} offset:{s*4096 + half*512}")
    for t in range(4): rd(0, t)
    for t in range(4): rd(1, t)
    for s in range(16):
        a(f"s_waitcnt lgkmcnt({8 if s < 15 else 0})")
        for t in range(4):
            d = RG + 16 * (s % 3) + 4 * t
            c = "0" if s == 0 else f"v[{ACC+4*t}:{ACC+4*t+3}]"
            a(f"{m16} v[{ACC+4*t}:{ACC+4*t+3}], v[{d}:{d+3}], v[{X+4*s}:{X+4*s+3}], {c}")
            if s + 2 < 16: rd(s + 2, t)
        if s == PB: a("s_barrier")
        if s == FST and not EARLY:
            a(f"""
            s_cmp_lg_u32 s66, s6
            s_cbranch_scc1 K1_nofl
            s_waitcnt vmcnt(0)
            s_mov_b64 exec, 0xff
            buffer_store_dword v7, v8, s[20:23], s35 offen sc1
            s_mov_b64 exec, -1
            """)
            a.label("K1_nofl")
    a(f"""
    s_lshl_b32 s35, s5, 10
    v_lshrrev_b32 v7, 3, v5
    v_lshlrev_b32 v7, 13, v7
    v_and_b32 v8, 7, v5
    v_lshl_add_u32 v7, v8, 4, v7
    v_lshl_add_u32 v7, v9, 9, v7
    v_lshl_add_u32 v7, v11, 7, v7
    """)
    for tp in range(2):
        for t in (2 * tp, 2 * tp + 1):
            for r in range(4): a(f"v_cvt_pk_bf16_f32 v{ACC+4*t+r}, 0, v{ACC+4*t+r}")
            for r in range(4): a(f"v_mul_f32 v{ACC+4*t+r}, {f2u(0.25 * 1.4426950408889634):#x}, v{ACC+4*t+r}")
            a(f"v_cvt_pk_bf16_f32 v{AF+2*t}, v{ACC+4*t}, v{ACC+4*t+1}")
            a(f"v_cvt_pk_bf16_f32 v{AF+2*t+1}, v{ACC+4*t+2}, v{ACC+4*t+3}")
        b = AF + 4 * tp
        a(f"v_permlane16_swap_b32 v{b}, v{b+2}")
        a(f"v_permlane16_swap_b32 v{b+1}, v{b+3}")
        a(f"buffer_store_dwordx4 v[{b}:{b+3}], v7, s[20:23], s35 offen offset:{256*tp}{SC}")
    a(f"""
    s_cmp_lg_u32 s66, s6
    s_cbranch_scc1 K1_nol
    v_and_b32 v8, 0x3ff, v7
    s_mov_b32 s36, 0x00ff00ff
    s_and_b32 s37, s5, 1
    s_lshl_b32 s37, s37, 3
    s_lshl_b32 exec_lo, s36, s37
    s_mov_b32 exec_hi, exec_lo
    ds_write_b128 v8, v[{AF}:{AF+3}] offset:{L_Q0}
    ds_write_b128 v8, v[{AF+4}:{AF+7}] offset:{L_Q0 + 256}
    s_mov_b64 exec, -1
    """)
    a.label("K1_nol")
    p1(4)
    dstamp(a, 0, True, 200)
    a.label("K12_join")
```

```python
from gen import *
import gen as G

L_PART = 0x0; L_Q = 0x6000; L_MREF = 0x8400; L_OB = 0x5800; L_KEY = 0xAC00; L_FLG = 0xAD00; L_MX = 0xB000; L_HB = 0xB400
L_FW = 0xE000; L_TOTAL = 0xE000 + 8 * 7168
L_XS = L_PART; L_RED = L_PART + 0x1000; L_GB = L_PART + 0x2000
C_EXACT = 0.25 * 1.4426950408889634
OFFS = 96.0

def wave_sum(a, vs, ts):
    if isinstance(vs, int): vs, ts = [vs], [ts]
    for mod in ("quad_perm:[1,0,3,2]", "quad_perm:[2,3,0,1]", "row_half_mirror", "row_mirror"):
        for v in vs:
            a(f"v_add_f32_dpp v{v}, v{v}, v{v} {mod} row_mask:0xf bank_mask:0xf")
    for w in (16, 32):
        for v, t in zip(vs, ts): a(f"v_mov_b32 v{t}, v{v}")
        for v, t in zip(vs, ts): a(f"v_permlane{w}_swap_b32 v{t}, v{v}")
        for v, t in zip(vs, ts): a(f"v_add_f32 v{v}, v{v}, v{t}")

class VM:
    def __init__(self, a): self.a = a; self.q = []; self.done = -1
    def issue(self, tag): self.q.append(tag)
    def wait(self, tag):
        i = max(k for k, t in enumerate(self.q) if t == tag)
        if i <= self.done: return
        self.done = i
        self.a(f"s_waitcnt vmcnt({len(self.q) - 1 - i})")

def wave_max_u32(a, v, t):
    for mod in ("quad_perm:[1,0,3,2]", "quad_perm:[2,3,0,1]", "row_half_mirror", "row_mirror"):
        a(f"v_max_u32_dpp v{v}, v{v}, v{v} {mod} row_mask:0xf bank_mask:0xf")
    for w in (16, 32):
        a(f"""
        v_mov_b32 v{t}, v{v}
        v_permlane{w}_swap_b32 v{t}, v{v}
        v_max_u32 v{v}, v{v}, v{t}
        """)

LOG2E = 1.4426950408889634
def sigmoid(a, d, x, t):
    a(f"""
    v_mul_f32 v{t}, {f2u(-LOG2E):#x}, v{x}
    v_exp_f32 v{t}, v{t}
    v_add_f32 v{t}, 1.0, v{t}
    v_rcp_f32 v{d}, v{t}
    """)

def gen_p2(a, dbg='', prio=True):
    SC = ' sc1'
    OPT = dict(x.split('=') for x in dbg.split(',') if '=' in x)
    FLS = int(OPT.get('fls', 4))
    PFS = int(OPT.get('pfs', 0)); PFP = int(OPT.get('pfp', 1))
    TAILST = 'tailst' in dbg
    FS = 'ffnst' in dbg
    KREP = 'nokrep' not in dbg; GREP = 'nogrep' not in dbg
    def st(i, tail):
        if 'p1st' in dbg:
            if tail == 4: stamp(a, i)
        elif 'r0st' in dbg:
            if tail == 3: stamp(a, i)
        elif FS:
            if tail == 2: stamp(a, i)
        elif tail in (True, False) and bool(tail) == TAILST: stamp(a, i)
    K = 16; V = 48; X = [112, 128]; O = 144; CM = 160; SP = 176; Q = 184; OA = 188; WF = 204; BF = 236; S1 = 240
    vQA, vPW, vPR, vPL, vOW, vOR, vLM, vWL, vKL, vVL = 1, 2, 3, 4, 5, 6, 7, 8, 9, 10
    t0, t1, t2, t3, t4 = 11, 12, 13, 14, 15
    vFW, vFR, vFV, vWLs = 9, 13, 14, 15
    vFS, vPA, vPD = SP + 4, SP + 5, SP + 6
    dstamp(a, 1, False, 240)
    a(f"""
    s_load_dwordx2 s[48:49], s[0:1], 96
    s_load_dwordx2 s[40:41], s[0:1], 0
    s_load_dwordx8 s[60:67], s[0:1], 48
    s_load_dwordx2 s[46:47], s[0:1], 80
    s_and_b32 s3, s2, 7
    s_lshr_b32 s4, s2, 3
    s_lshl_b32 s7, s3, 8
    s_lshl_b32 s5, s4, 3
    s_add_u32 s7, s7, s5           ; T0
    s_and_b32 s28, s4, 7           ; rot
    v_lshrrev_b32 v{t0}, 6, v0
    v_and_b32 v0, 63, v0
    v_readfirstlane_b32 s6, v{t0}
    s_mov_b32 s30, 0
    v_lshlrev_b32 v{vWL}, 4, v0
    s_mul_i32 s3, s6, {8*TS}
    s_add_u32 s3, s3, {WS_KV:#x}
    """)
    for t in range(8):
        a(f"""
        s_add_u32 s4, s28, {t}
        s_and_b32 s4, s4, 7
        s_mul_i32 s4, s4, {TS}
        s_add_u32 s{50+t}, s3, s4
        """)
    a.label("K2_restart")
    a(f"""
    s_add_u32 s44, s6, 4
    s_and_b32 s44, s44, 7
    s_add_u32 s3, s44, s28
    s_and_b32 s3, s3, 7
    s_andn2_b32 s45, s2, 0x38
    s_lshl_b32 s4, s3, 3
    s_or_b32 s45, s45, s4
    s_lshl_b32 s45, s45, 6
    s_lshr_b32 s4, s28, 1
    s_lshl_b32 s4, s4, 2
    s_add_u32 s45, s45, s4
    s_add_u32 s45, s45, {WS_FQ:#x}
    s_add_u32 s3, s3, s7
    s_lshl_b32 s32, s3, 10
    v_and_b32 v{t1}, 31, v0
    v_lshrrev_b32 v{t2}, 5, v0
    v_mul_u32_u24 v{vVL}, 272, v{t2}
    v_lshl_add_u32 v{vVL}, v{t1}, 4, v{vVL}
    v_cmp_lt_u32 vcc, 16, v{t1}
    v_bfrev_b32 v{t0}, 1
    v_add_u32 v{vQA}, {L_Q:#x}, v{vWL}
    v_cndmask_b32 v{vVL}, v{vVL}, v{t0}, vcc
    s_waitcnt lgkmcnt(0)
    """)
    srd(a, 8, 48, 49, WS_SIZE)
    vm = VM(a)
    def ldK(t):
        a(f"buffer_load_dwordx4 v[{K+4*t}:{K+4*t+3}], v{vWL}, s[8:11], s{50+t} offen{SC}"); vm.issue(f"K{t}")
    def ldV(t):
        for h in range(2):
            a(f"buffer_load_dwordx4 v[{V+8*t+4*h}:{V+8*t+4*h+3}], v{vVL}, s[8:11], s{50+t} offen offset:{1024 + 544*h}{SC}"); vm.issue(f"V{t}{h}")
    a(f"""
    s_lshl_b32 s3, s44, 10
    v_add_u32 v{t4}, s3, v{vQA}
    """)
    def late_setup(part):
        u0, u1, u2, u3 = S1, S1 + 1, S1 + 2, S1 + 3
        if part == 0:
            srd(a, 16, 40, 41, 0x200000)
            srd(a, 20, 46, 47, 0x200000)
            srd(a, 24, 60, 61, 0x400)
            a(f"""
            v_and_b32 v{u1}, 31, v0
            v_lshrrev_b32 v{u2}, 5, v0
            v_mul_u32_u24 v{vPW}, 80, v{u1}
            s_mul_i32 s3, s6, 2560
            v_add_u32 v{vPW}, s3, v{vPW}
            v_lshl_add_u32 v{SP+3}, v{u2}, 2, v{vPW}
            v_lshl_add_u32 v{vPW}, v{u2}, 4, v{vPW}
            v_lshrrev_b32 v{u0}, 4, v0     ; g
            s_lshr_b32 s3, s6, 1
            s_lshl_b32 s3, s3, 3
            s_and_b32 s4, s6, 1
            s_lshl_b32 s4, s4, 1
            s_add_u32 s3, s3, s4
            v_and_b32 v{u1}, 1, v{u0}
            v_lshl_add_u32 v{u1}, v{u1}, 2, v{u2}
            v_add_u32 v{u1}, s3, v{u1}     ; n = 8*(w>>1) + 2*(w&1) + (g>>1) + 4*(g&1)
            v_mul_u32_u24 v{vPL}, 80, v{u1}
            v_and_b32 v{u2}, 15, v0        ; d
            v_lshl_add_u32 v{vPR}, v{u2}, 2, v{vPL}
            v_and_b32 v{u3}, 7, v0
            v_mul_u32_u24 v{u3}, 2560, v{u3}
            v_add3_u32 v{vPL}, v{vPL}, v{u3}, 64
            s_lshl_b32 s31, s28, 16
            s_lshl_b32 s33, s6, 13
            s_add_u32 s33, s33, {WS_WOF:#x}
            """)
        elif part == 1:
            a(f"""
            v_and_b32 v{u3}, 7, v{u1}      ; token
            v_lshrrev_b32 v{u1}, 3, v{u1}  ; head_local
            v_mul_u32_u24 v{vOW}, 144, v{u3}
            v_lshl_add_u32 v{vOW}, v{u1}, 5, v{vOW}
            v_lshl_add_u32 v{vOW}, v{u2}, 1, v{vOW}
            v_add_u32 v{vOW}, {L_OB:#x}, v{vOW}
            v_and_b32 v{u3}, 7, v0
            v_mul_u32_u24 v{vOR}, 144, v{u3}
            v_lshl_add_u32 v{vOR}, v{u0}, 4, v{vOR}
            v_add_u32 v{vOR}, {L_OB:#x}, v{vOR}
            v_mov_b32 v{vLM}, 0
            v_lshlrev_b32 v{vFR}, 2, v{u3}
            v_add_u32 v{vFR}, {L_FLG:#x}, v{vFR}
            """)
        else:
            for r in range(0, 16, 2):
                a(f"v_pk_mov_b32 v[{OA+r}:{OA+r+1}], 0, 0")
            a(f"v_pk_mov_b32 v[{SP}:{SP+1}], 0, 0")
            a(f"v_mov_b32 v{SP+2}, 0xdddddddd")
    def rd_qcm():
        a(f"ds_read_b128 v[{Q}:{Q+3}], v{vQA}")
        for k in range(4):
            a(f"ds_read_b128 v[{CM+4*k}:{CM+4*k+3}], v{vQA} offset:{L_MREF - L_Q}")
        a(f"v_add_u32 v{vQA}, 1024, v{vQA}")
    mf = "v_mfma_f32_32x32x16_bf16"
    def M1(kt, xb):
        if 'nom1' in dbg: a("s_nop 1"); return
        a(f"{mf} v[{X[xb]}:{X[xb]+15}], v[{K+4*kt}:{K+4*kt+3}], v[{Q}:{Q+3}], v[{CM}:{CM+15}]")
    def E(xb, lo, hi):
        for r in range(lo, hi):
            if 'expnop' in dbg:
                a("v_nop"); a("v_nop")
                continue
            if 'noexp' in dbg:
                a(f"v_cvt_pk_bf16_f32 v{X[xb]+r}, 0, v{X[xb]+r}"); a(f"v_cvt_pk_bf16_f32 v{X[xb]+r}, 0, v{X[xb]+r}")
                continue
            a(f"v_exp_f32 v{X[xb]+r}, v{X[xb]+r}")
    def C2(h, xb):
        for k in range(4):
            a(f"v_cvt_pk_bf16_f32 v{SP+4*h+k}, v{X[xb]+8*h+2*k}, v{X[xb]+8*h+2*k+1}")
    def M3(h, kt):
        xb = kt & 1
        if 'nom3' in dbg: a("s_nop 2"); return
        a(f"v_smfmac_f32_32x32x32_bf16 v[{O}:{O+15}], v[{V+8*kt+4*h}:{V+8*kt+4*h+3}], v[{X[xb]+8*h}:{X[xb]+8*h+7}], v{SP+2}")
    def Ozero():
        a(f"v_mfma_f32_32x32x8bf16_1k v[{O}:{O+15}], v[{SP}:{SP+1}], v[{SP}:{SP+1}], 0")
    def part_write():
        a(f"""
        ds_write_b128 v{vPW}, v[{O}:{O+3}]
        ds_write_b128 v{vPW}, v[{O+4}:{O+7}] offset:32
        ds_write_b32 v{SP+3}, v{O+8} offset:64
        """)
    def s1_read():
        a(f"ds_read_b32 v{S1+8}, v{vPL}")
        for k in range(4):
            a(f"ds_read2st64_b32 v[{S1+2*k}:{S1+2*k+1}], v{vPR} offset0:{20*k} offset1:{20*k+10}")
    def s1_calc():
        dp = lambda mod: f"v_add_f32_dpp v{S1+8}, v{S1+8}, v{S1+8} {mod} row_mask:0xf bank_mask:0xf"
        a(f"""
        {dp("quad_perm:[1,0,3,2]")}
        v_pk_add_f32 v[{S1}:{S1+1}], v[{S1}:{S1+1}], v[{S1+2}:{S1+3}]
        v_pk_add_f32 v[{S1+4}:{S1+5}], v[{S1+4}:{S1+5}], v[{S1+6}:{S1+7}]
        {dp("quad_perm:[2,3,0,1]")}
        v_pk_add_f32 v[{S1}:{S1+1}], v[{S1}:{S1+1}], v[{S1+4}:{S1+5}]
        v_add_f32 v{S1}, v{S1}, v{S1+1}
        {dp("row_half_mirror")}
        v_rcp_f32 v{S1+1}, v{S1+8}
        v_maximum3_f32 v{vLM}, v{vLM}, v{S1+8}, abs(v{S1})
        v_mul_f32 v{S1}, v{S1}, v{S1+1}
        v_cvt_pk_bf16_f32 v{S1}, v{S1}, v{S1}
        ds_write_b16 v{vOW}, v{S1}
        """)
    def s2_read():
        for s in range(2):
            a(f"ds_read_b128 v[{BF+4*s}:{BF+4*s+3}], v{vOR} offset:{64*s}")
    def s2_mma(lo, hi):
        for u in range(lo, hi):
            s, t = u >> 2, u & 3
            a(f"v_mfma_f32_16x16x32_bf16 v[{OA+4*t}:{OA+4*t+3}], v[{WF+4*u}:{WF+4*u+3}], v[{BF+4*s}:{BF+4*s+3}], v[{OA+4*t}:{OA+4*t+3}]")
    def wf_load(lo, hi):
        if lo == 0:
            a("s_add_u32 s34, s33, s31")
            a("s_add_u32 s35, s34, 4096")
            a("s_add_u32 s31, s31, 0x10000")
            a("s_and_b32 s31, s31, 0x7ffff")
        for u in range(lo, hi):
            a(f"buffer_load_dwordx4 v[{WF+4*u}:{WF+4*u+3}], v{vWL}, s[8:11], s{34 + (u >> 2)} offen offset:{1024*(u&3)}{SC}")
            vm.issue("WF")
    def ffn_prefetch():
        a(f"""
        s_mov_b32 s39, s6
        s_cmp_eq_u32 s39, 1
        s_cselect_b64 s[36:37], s[64:65], s[62:63]
        s_cmp_eq_u32 s39, 2
        s_cselect_b64 s[36:37], s[66:67], s[36:37]
        """)
        srd(a, 12, 36, 37, 512 * 1792 * 2)
        a(f"""
        s_and_b32 s3, s2, 7
        s_lshr_b32 s4, s2, 3
        s_mul_i32 s5, s4, {16*3584}
        s_mul_i32 s36, s3, 448
        s_and_b32 s36, s36, 0xffffff80
        s_add_u32 s5, s5, s36
        s_lshl_b32 s36, s3, 7
        s_mul_i32 s37, s4, {56*1024}
        s_add_u32 s36, s36, s37
        v_lshrrev_b32 v{t0}, 2, v0
        v_mul_u32_u24 v{t0}, 3584, v{t0}
        v_and_b32 v{t1}, 3, v0
        v_lshl_add_u32 v{t0}, v{t1}, 7, v{t0}
        v_min_u32 v{t1}, 55, v0
        v_lshlrev_b32 v{t1}, 10, v{t1}
        s_cmp_eq_u32 s39, 2
        s_cselect_b32 s38, s36, s5
        s_cselect_b64 vcc, -1, 0
        v_cndmask_b32 v{vPA}, v{t0}, v{t1}, vcc
        s_lshl_b32 s39, s6, {PFS}
        s_add_u32 s39, s39, 1
        s_cmp_gt_u32 s6, 2
        s_cselect_b32 s39, 99, s39
        """)
    def ffn_setup():
        a(f"""
        s_and_b32 s3, s2, 7
        s_lshr_b32 s4, s2, 3
        s_and_b32 s5, s6, 1
        s_cmp_eq_u32 s5, 0
        s_cselect_b64 s[36:37], s[62:63], s[64:65]
        s_cmp_lt_u32 s2, 112
        s_cselect_b64 s[36:37], s[36:37], s[66:67]
        """)
        srd(a, 68, 36, 37, 512 * 1792 * 2)
        a(f"""
        s_mul_i32 s76, s3, 14
        s_add_u32 s76, s76, s4           ; fs
        s_lshl_b32 s77, s3, 2
        s_add_u32 s77, s77, s4
        s_sub_u32 s77, s77, 14           ; cb
        s_lshr_b32 s5, s6, 1
        s_mul_i32 s5, s5, {128*3584}
        s_lshl_b32 s36, s76, 5
        s_add_u32 s5, s5, s36
        s_mul_i32 s36, s6, {224*1024}
        s_lshl_b32 s37, s77, 5
        s_add_u32 s36, s36, s37
        s_cmp_lt_u32 s2, 112
        s_cselect_b32 s72, s5, s36
        s_movk_i32 s73, 1024
        s_cselect_b32 s73, 3584, s73
        s_cselect_b32 s75, 4, 7
        s_cmp_lt_u32 s2, 144
        s_cselect_b32 s75, s75, 0
        s_mul_i32 s74, s6, 7168
        s_add_u32 s74, s74, {L_FW:#x}
        v_lshrrev_b32 v{vFS}, 1, v0
        v_mul_lo_u32 v{vFS}, v{vFS}, s73
        v_and_b32 v{t1}, 1, v0
        v_lshl_add_u32 v{vFS}, v{t1}, 4, v{vFS}
        s_lshl_b32 s73, s73, 5
        s_mov_b32 s78, s74
        """)
    def ffn_stage():
        a(f"""
        s_cmp_lt_u32 s29, 4
        s_cbranch_scc1 K2_nost
        """)
        for e in range(2):
            a(f"""
            s_cmp_eq_u32 s75, 0
            s_cbranch_scc1 K2_nost
            s_mov_b32 m0, s78
            s_sub_u32 s75, s75, 1
            buffer_load_dwordx4 v{vFS}, s[68:71], s72 offen lds
            s_add_u32 s78, s78, 1024
            s_add_u32 s72, s72, s73
            """)
        a.label("K2_nost")
    def ffn_issue():
        a(f"""
        s_cmp_lg_u32 s29, s39
        s_cbranch_scc1 K2_nopf
        buffer_load_dword v{vPD}, v{vPA}, s[12:15], s38 offen
        """)
        a.label("K2_nopf")
    def setprio(p):
        if prio: a(f"s_setprio {p}")
    def mref_mma(q, d):
        a(f"{mf} v[{d}:{d+15}], v[{K}:{K+3}], v[{q}:{q+3}], 0")
        a(f"{mf} v[{d+16}:{d+31}], v[{K+4}:{K+7}], v[{q}:{q+3}], 0")
    def mref_max(S):
        a(f"v_max3_f32 v{t0}, v{S}, v{S+1}, v{S+2}")
        for r in range(3, 31, 2):
            a(f"v_max3_f32 v{t0}, v{t0}, v{S+r}, v{S+r+1}")
        a(f"""
        v_max_f32 v{t0}, v{t0}, v{S+31}
        v_mov_b32 v{t1}, v{t0}
        v_permlane32_swap_b32 v{t1}, v{t0}
        v_max_f32 v{t0}, v{t0}, v{t1}
        """)
        for r in range(4): a(f"v_sub_f32 v{S+r}, {f2u(-OFFS):#x}, v{t0}")
        a(f"ds_write_b128 v{t4}, v[{S}:{S+3}] offset:{L_MREF - L_Q}")
    def kv_first():
        ldK(0); ldK(1); ldV(0); ldK(2); ldV(1)
    for p in range(3): late_setup(p)
    ffn_prefetch(); ffn_setup()
    a(f"""
    s_lshl_b32 s3, s6, 2
    s_add_u32 s3, s3, {L_FLG:#x}
    v_mov_b32 v{vFW}, s3
    ds_write2_b32 v{vFW}, v{SP}, v{SP} offset0:0 offset1:8
    s_movk_i32 s59, {L_Q + 2048:#x}
    s_cmp_lg_u32 s30, 0
    s_cbranch_scc1 K2_safe
    s_cmp_eq_u32 s6, 4
    s_cbranch_scc1 K2_poller
    v_mov_b32 v{t0}, s58
    s_lshl_b32 s3, s2, 6
    s_lshl_b32 s4, s6, 2
    s_add_u32 s3, s3, s4
    s_add_u32 s3, s3, {WS_FQ:#x}
    s_waitcnt vmcnt(0)
    s_mov_b64 exec, 1
    buffer_store_dword v{t0}, v{SP}, s[8:11], s3 offen sc1
    s_mov_b64 exec, -1
    s_waitcnt lgkmcnt(0)
    s_barrier
    """)
    st(1, False); st(5, 4)
    if 'amp' in dbg: a('s_memrealtime s[88:89]'); a('s_waitcnt lgkmcnt(0)')
    kv_first()
    a("s_branch K2_go")
    a.label("K2_poller")
    PA, PB = X[0], X[0] + 8
    a(f"""
    v_lshlrev_b32 v{t1}, {FLS}, v0
    s_and_b32 s3, s2, 7
    s_lshl_b32 s3, s3, 14
    s_add_u32 s3, s3, {WS_FL:#x}
    s_add_u32 s4, s3, {64 << FLS}
    s_add_u32 s5, s3, {128 << FLS}
    s_add_u32 s34, s3, {192 << FLS}
    s_mov_b32 s36, 0
    """)
    def fissue(b):
        for k, sr in enumerate(("s3", "s4", "s5", "s34")):
            a(f"buffer_load_dword v{b+k}, v{t1}, s[8:11], {sr} offen sc1")
    def fchk(b):
        for r in range(4): a(f"v_xor_b32 v{b+r}, s58, v{b+r}")
        a(f"""
        v_or3_b32 v{b}, v{b}, v{b+1}, v{b+2}
        v_or_b32 v{b}, v{b}, v{b+3}
        v_cmp_ne_u32 vcc, 0, v{b}
        s_cbranch_vccz K2_sync0
        """)
    if int(OPT.get('fd', 0)): a(f"s_sleep {OPT.get('fd', 0)}")
    if 'fnp' in dbg:
        a.label("K2_fl")
        fissue(PA); a("s_waitcnt vmcnt(0)"); fchk(PA)
        a(f"s_sleep {OPT.get('fsl', 2)}")
    else:
        fissue(PA)
        a("s_sleep 3")
        a.label("K2_fl")
        fissue(PB); a("s_waitcnt vmcnt(4)"); fchk(PA)
        fissue(PA); a("s_waitcnt vmcnt(4)"); fchk(PB)
    a(f"""
    s_add_u32 s36, s36, 1
    s_cmp_lt_u32 s36, 0x40000
    s_cbranch_scc1 K2_fl
    """)
    a.label("K2_sync0")
    st(4, 4)
    a(f"""
    s_cmp_lg_u32 s2, 0
    s_cbranch_scc1 K2_sync1
    v_mov_b32 v{t0}, s58
    s_mov_b32 s3, {WS_EP:#x}
    s_mov_b64 exec, 1
    buffer_store_dword v{t0}, v{SP}, s[8:11], s3 offen sc1
    s_mov_b64 exec, -1
    """)
    a.label("K2_sync1")
    vm.q = []; vm.done = -1
    ldK(0); ldK(1)
    a("s_waitcnt lgkmcnt(0)")
    a("s_barrier")
    st(1, False); st(5, 4)
    if 'amp' in dbg: a('s_memrealtime s[88:89]'); a('s_waitcnt lgkmcnt(0)')
    a(f"ds_read_b128 v[{Q}:{Q+3}], v{vQA}")
    ldV(0); ldK(2); ldV(1)
    a("s_waitcnt vmcnt(5) lgkmcnt(0)")
    mref_mma(Q, X[0]); mref_max(X[0])
    a("s_branch K2_go")
    a.label("K2_safe")
    S = X[0]
    a(f"""
    v_and_b32 v{t0}, 31, v0
    v_lshlrev_b32 v{S1+4}, 2, v{t0}
    v_add_u32 v{S1+4}, {L_MX:#x}, v{S1+4}
    s_lshl_b32 s3, s44, 7
    v_add_u32 v{S1+5}, s3, v{S1+4}
    v_mov_b32 v{t0}, 0xff800000
    ds_write_b32 v{S1+5}, v{t0}
    s_waitcnt vmcnt(0) lgkmcnt(0)
    s_barrier
    v_mov_b32 v{t1}, v{vQA}
    s_mov_b32 s29, 0
    """)
    a.label("K2_safe_loop")
    a(f"""
    ds_read_b128 v[{BF}:{BF+3}], v{t1}
    v_mov_b32 v{t0}, 0xff800000
    s_waitcnt lgkmcnt(0)
    """)
    for t in range(8):
        a(f"v_mfma_f32_32x32x16_bf16 v[{S}:{S+15}], v[{K+4*t}:{K+4*t+3}], v[{BF}:{BF+3}], 0")
        for r in range(0, 16, 2):
            a(f"v_max3_f32 v{t0}, v{t0}, v{S+r}, v{S+r+1}")
    a(f"""
    ds_max_f32 v{S1+4}, v{t0}
    v_add_u32 v{t1}, 1024, v{t1}
    v_add_u32 v{S1+4}, 128, v{S1+4}
    s_add_u32 s29, s29, 1
    s_cmp_lt_u32 s29, 8
    s_cbranch_scc1 K2_safe_loop
    s_waitcnt lgkmcnt(0)
    s_barrier
    ds_read_b32 v{t0}, v{S1+5}
    s_waitcnt lgkmcnt(0)
    """)
    for r in range(4): a(f"v_sub_f32 v{BF+r}, 0, v{t0}")
    a(f"ds_write_b128 v{t4}, v[{BF}:{BF+3}] offset:{L_MREF - L_Q}")
    a.label("K2_go")
    a("s_waitcnt lgkmcnt(0)")
    a("s_barrier")
    st(2, False)
    rd_qcm()
    vm.wait("K0")
    a("s_waitcnt lgkmcnt(0)")
    M1(0, 0)
    a("s_mov_b32 s29, 1")
    setprio(3)
    ldK(3); ldV(2)
    st(3, False)
    if 'leak' in dbg or 'amp' in dbg: a('s_memrealtime s[94:95]'); a('s_waitcnt lgkmcnt(0)')
    def tile(i, hook):
        xb = i & 1; xn = xb ^ 1
        hook(i, 'a')
        E(xb, 0, 2)
        hook(i, 'm3b')
        E(xb, 2, 5)
        hook(i, 'm1')
        M1((i + 1) & 7, xn)
        hook(i, 0)
        if i == 0:
            E(xb, 5, 12)
            hook(i, 1)
            Ozero()
            E(xb, 12, 16)
            M3(0, i)
            hook(i, 2)
        else:
            E(xb, 5, 8)
            hook(i, 'e1')
            E(xb, 8, 10)
            hook(i, 1)
            M3(0, i)
            hook(i, 2)
            E(xb, 10, 13)
            hook(i, 'e2')
            E(xb, 13, 15)
            hook(i, 'e3')
            E(xb, 15, 16)
    def hook0(i, pos):
        if pos == 'a' and i in (0, 2, 4, 6): st(1 + i // 2, 3)
        if pos == 'a' and i in (3, 5, 7): setprio({3: 2, 5: 1, 7: 1}[i])
        if pos == 'm3b' and i > 0:
            vm.wait(f"V{i-1}1"); M3(1, i - 1)
        if pos == 'm1':
            if i < 7: vm.wait(f"K{i+1}")
            else: a("s_waitcnt lgkmcnt(0)")
        if pos == 0:
            if i + 4 <= 7: ldK(i + 4)
            if i + 3 <= 7: ldV(i + 3)
            if i == 6: wf_load(0, 4)
            if i == 7: wf_load(4, 8)
        QT = int(OPT.get('qt', 1))
        if pos == 'e1' and i == QT:
            a(f"buffer_load_dword v{t0}, v{SP}, s[8:11], s45 offen sc1"); vm.issue("FQ")
        if pos == 'e1' and i == QT + 1:
            vm.wait("FQ")
            a(f"v_cmp_ne_u32 vcc, s58, v{t0}")
            a("s_cbranch_vccnz K2_qspin")
            a.label("K2_qback")
            a(f"buffer_load_dwordx4 v[{BF}:{BF+3}], v{vWL}, s[8:11], s32 offen sc1"); vm.issue("Q")
        if pos == 'e2' and i == 4:
            vm.wait("Q")
            a(f"ds_write_b128 v{t4}, v[{BF}:{BF+3}]")
            mref_mma(BF, WF)
        if pos == 'e1' and i == 5:
            a("s_cmp_lg_u32 s30, 0")
            a("s_cbranch_scc1 K2_keepm")
            mref_max(WF)
            a.label("K2_keepm")
        if pos == 1:
            if i == 6:
                a("s_waitcnt lgkmcnt(0)"); a("s_barrier"); rd_qcm()
            vm.wait(f"V{i}0")
        if pos == 2 and i == 7:
            vm.wait("V71")
    for i in range(8): tile(i, hook0)
    st(5, 3)
    a.raw(".p2align 3")
    a.label("K2_round")
    spins = []
    def poll(off):
        a(f"ds_read_b32 v{vFV}, v{vFR} offset:{off}")
    def check(off):
        k = len(spins); spins.append(off)
        a(f"""
        s_waitcnt lgkmcnt(0)
        v_cmp_gt_u32 vcc, s59, v{vFV}
        s_cbranch_vccnz K2_spin{k}
        """)
        a.label(f"K2_back{k}")
    PR = dict(x.split('=') for x in dbg.split(',') if '=' in x).get('pr', 'c')
    def hook(i, pos):
        if pos == 'm3b': M3(1, (i - 1) & 7)
        if pos == 'm1' and i == 7: a("s_waitcnt lgkmcnt(0)")
        if pos == 1 and i == 6: rd_qcm()
        if 'nohook' in dbg: return
        if 'bar' in dbg.split(','):
            if pos == 'a' and i in (0, 6, 7): setprio({6: 2, 7: 1, 0: 0}[i])
            if i == 0 and pos == 1: part_write()
            if i == 1 and pos == 0:
                a("s_waitcnt lgkmcnt(0)"); a("s_barrier"); setprio(2); s1_read()
            if i == 2 and pos == 0:
                a("s_waitcnt lgkmcnt(0)"); s1_calc(); setprio(1)
            if i == 3 and pos == 0: setprio(0)
            if i == 4 and pos == 0:
                a("s_waitcnt vmcnt(0) lgkmcnt(0)"); a("s_barrier"); setprio(3); s2_read()
            seq = [(4, 'e3'), (5, 'e1'), (5, 'e2'), (5, 'e3'), (6, 'e1'), (6, 'e2'), (6, 'e3'), (7, 'e1')]
        else:
            ca = int(OPT.get('ca', 2)); cb = int(OPT.get('cb', 5)); PT = OPT.get('pt', '10110321')
            slots = [(t, p) for t in range(1, 8) for p in (('a', 'e1', 'e2', 'e3') if cb >= 6 else ('e1', 'e2', 'e3'))]
            if i == 0 and pos == 1:
                part_write(); a(f"ds_write_b32 v{vFW}, v{vQA}")
            if i == ca and pos == 0: poll(0)
            if i == ca and pos == 2: check(0); s1_read()
            if i == ca + 1 and pos == 0:
                a("s_waitcnt lgkmcnt(0)"); s1_calc(); a(f"ds_write_b32 v{vFW}, v{vQA} offset:32")
            if i == cb - 1 and pos == 2: poll(32)
            if i == cb and pos == 'm1':
                check(32); s2_read(); a("s_waitcnt vmcnt(0)")
            if len(PT) == 8: PT = "".join(ch * 2 for ch in PT)
            for hpos, k in (('a', 2 * i), (2, 2 * i + 1)):
                if pos == hpos and PT[k] != PT[k - 1]: setprio(int(PT[k]))
            av = [x for x in slots if x > (cb, 'e1')]
            if OPT.get('sp', '0') == '1' and len(av) >= 12: av = [x for x in av if x[1] != 'e3']
            seq = av[:8]
            while len(seq) < 8: seq = sorted(seq + [seq[len(seq) % len(av)]])
        for u in [k for k, x in enumerate(seq) if x == (i, pos)]:
            if u == 0: a("s_waitcnt lgkmcnt(0)")
            s2_mma(u, u + 1)
            if 'nowf' not in dbg: wf_load(u, u + 1)
            if u == 7 and 'nopf' not in dbg and PFP == 1: ffn_issue(); ffn_stage()
    for i in range(8): tile(i, hook)
    if 'rndst' in dbg:
        a(f"""
        s_memtime s[82:83]
        s_memrealtime s[100:101]
        s_waitcnt lgkmcnt(0)
        s_lshl_b32 s84, s2, 3
        s_add_u32 s84, s84, s6
        s_lshl_b32 s84, s84, 3
        s_add_u32 s84, s84, s29
        s_lshl_b32 s84, s84, 3
        s_add_u32 s84, s84, {WS_STAMP + 0x40000:#x}
        s_mov_b64 exec, 1
        v_mov_b32 v{S1+8}, s82
        v_mov_b32 v{S1+9}, s100
        v_mov_b32 v{S1+10}, 0
        buffer_store_dwordx2 v[{S1+8}:{S1+9}], v{S1+10}, s[8:11], s84 offen
        s_mov_b64 exec, -1
        """)
    a(f"""
    s_addk_i32 s59, 1024
    s_add_u32 s29, s29, 1
    s_cmp_lt_u32 s29, 8
    s_cbranch_scc1 K2_round
    """)
    st(4, False); st(0, True)
    if 'amp' in dbg: a('s_memrealtime s[98:99]'); a('s_waitcnt lgkmcnt(0)')
    M3(1, 7)
    XR = CM; WR = CM + 4; HV = X[0]; HN = X[0] + 8; PK = X[1]; ST = X[1] + 8
    a(f"""
    s_add_u32 s3, s7, s6
    s_lshl_b32 s4, s3, 10
    buffer_load_dwordx4 v[{XR}:{XR+3}], v{vWL}, s[16:19], s4 offen
    buffer_load_dwordx4 v[{WR}:{WR+3}], v{vWL}, s[24:27], 0 offen
    v_and_b32 v{t0}, 7, v0
    v_mul_u32_u24 v{t0}, 1040, v{t0}
    v_lshrrev_b32 v{t1}, 4, v0
    v_lshl_add_u32 v{t0}, v{t1}, 3, v{t0}
    s_lshl_b32 s5, s6, 7
    s_add_u32 s5, s5, {L_HB:#x}
    v_add_u32 v{t0}, s5, v{t0}
    s_mul_i32 s5, s6, 1040
    s_add_u32 s5, s5, {L_HB:#x}
    v_add_u32 v{t1}, s5, v{vWL}
    s_lshl_b32 s35, s6, 2
    s_add_u32 s35, s35, {L_KEY:#x}
    v_mov_b32 v{t4}, s35
    v_and_b32 v{t3}, 7, v0
    v_lshlrev_b32 v{t3}, 2, v{t3}
    v_add_u32 v{t3}, {L_KEY:#x}, v{t3}
    """)
    part_write()
    a("s_waitcnt lgkmcnt(0)"); a("s_barrier"); st(1, True); s1_read()
    a("s_waitcnt lgkmcnt(0)"); s1_calc()
    a(f"""
    v_mov_b32 v{t2}, {f2u(2.0**124):#x}
    v_cmp_nlt_f32 vcc, v{vLM}, v{t2}
    s_cmp_lg_u64 vcc, 0
    s_cselect_b32 s5, 1, 0
    v_mov_b32 v{t2}, s5
    ds_write_b32 v{t4}, v{t2} offset:32
    """)
    a("s_waitcnt vmcnt(2) lgkmcnt(0)"); a("s_barrier"); st(2, True); s2_read()
    a(f"ds_read_b32 v{t2}, v{t3} offset:32")
    a("s_waitcnt lgkmcnt(1)"); s2_mma(0, 8)
    a(f"""
    s_waitcnt lgkmcnt(0)
    v_cmp_ne_u32 vcc, 0, v{t2}
    s_cmp_eq_u64 vcc, 0
    s_cbranch_scc1 K2_good
    s_cmp_lg_u32 s30, 0
    s_cbranch_scc1 K2_good
    s_mov_b32 s30, 1
    s_waitcnt vmcnt(0)
    s_setprio 0
    s_branch K2_restart
    """)
    a.label("K2_good")
    for t in range(4):
        a(f"v_cvt_pk_bf16_f32 v{S1+2*t}, v{OA+4*t}, v{OA+4*t+1}")
        a(f"v_cvt_pk_bf16_f32 v{S1+2*t+1}, v{OA+4*t+2}, v{OA+4*t+3}")
        a(f"ds_write_b64 v{t0}, v[{S1+2*t}:{S1+2*t+1}] offset:{32*t}")
    a("s_waitcnt vmcnt(0)")
    for r in range(4):
        a(f"v_lshlrev_b32 v{HV+2*r}, 16, v{XR+r}")
        a(f"v_and_b32 v{HV+2*r+1}, 0xffff0000, v{XR+r}")
        a(f"v_lshlrev_b32 v{WF+2*r}, 16, v{WR+r}")
        a(f"v_and_b32 v{WF+2*r+1}, 0xffff0000, v{WR+r}")
    a(f"""
    s_waitcnt lgkmcnt(0)
    s_barrier
    """)
    st(3, True)
    a(f"""
    ds_read_b128 v[{BF}:{BF+3}], v{t1}
    s_waitcnt lgkmcnt(0)
    """)
    for r in range(4):
        a(f"v_lshlrev_b32 v{HN+2*r}, 16, v{BF+r}")
        a(f"v_and_b32 v{HN+2*r+1}, 0xffff0000, v{BF+r}")
    P2 = lambda b, r: f"v[{b+r}:{b+r+1}]"
    for r in range(0, 8, 2): a(f"v_pk_add_f32 {P2(HV,r)}, {P2(HV,r)}, {P2(HN,r)}")
    for r in range(8): a(f"v_cvt_pk_bf16_f32 v{HV+r}, 0, v{HV+r}")
    SA, SB = S1, S1 + 2
    a(f"v_pk_add_f32 {P2(SA,0)}, {P2(HV,0)}, {P2(HV,2)}")
    a(f"v_pk_mul_f32 {P2(SB,0)}, {P2(HV,0)}, {P2(HV,0)}")
    a(f"v_pk_add_f32 {P2(SA,4)}, {P2(HV,4)}, {P2(HV,6)}")
    a(f"v_pk_fma_f32 {P2(SB,0)}, {P2(HV,2)}, {P2(HV,2)}, {P2(SB,0)}")
    a(f"v_pk_add_f32 {P2(SA,0)}, {P2(SA,0)}, {P2(SA,4)}")
    a(f"v_pk_fma_f32 {P2(SB,0)}, {P2(HV,4)}, {P2(HV,4)}, {P2(SB,0)}")
    a(f"v_add_f32 v{t0}, v{SA}, v{SA+1}")
    a(f"v_pk_fma_f32 {P2(SB,0)}, {P2(HV,6)}, {P2(HV,6)}, {P2(SB,0)}")
    a(f"v_add_f32 v{t2}, v{SB}, v{SB+1}")
    wave_sum(a, [t0, t2], [ST, ST + 1])
    ln_scalars(a, t0, t2, ST, ST + 2, ST + 1, ST + 3)
    st(4, True)
    for r in range(0, 8, 2): a(f"v_pk_add_f32 {P2(HN,r)}, {P2(HV,r)}, {P2(ST,0)} op_sel_hi:[1,0] neg_lo:[0,1] neg_hi:[0,1]")
    for r in range(8): a(f"v_cvt_pk_bf16_f32 v{HN+r}, 0, v{HN+r}")
    for r in range(0, 8, 2): a(f"v_pk_mul_f32 {P2(HN,r)}, {P2(HN,r)}, {P2(ST,2)} op_sel_hi:[1,0]")
    for r in range(8): a(f"v_cvt_pk_bf16_f32 v{HN+r}, 0, v{HN+r}")
    a(f"v_pk_mul_f32 {P2(SA,0)}, {P2(HN,0)}, {P2(WF,0)}")
    for r in range(2, 8, 2): a(f"v_pk_fma_f32 {P2(SA,0)}, {P2(HN,r)}, {P2(WF,r)}, {P2(SA,0)}")
    a(f"v_add_f32 v{t2}, v{SA}, v{SA+1}")
    fill = [f"v_pk_add_f32 {P2(WF+8,r)}, {P2(HV,r)}, {P2(HN,r)}" for r in range(0, 8, 2)]
    fill += [f"v_cvt_pk_bf16_f32 v{PK+4+r}, v{HV+2*r}, v{HV+2*r+1}" for r in range(4)]
    fill += [f"v_cvt_pk_bf16_f32 v{ST+4+r}, v{HN+2*r}, v{HN+2*r+1}" for r in range(4)]
    for mod in ("quad_perm:[1,0,3,2]", "quad_perm:[2,3,0,1]", "row_half_mirror", "row_mirror"):
        a(fill.pop(0)); a(fill.pop(0))
        a(f"v_add_f32_dpp v{t2}, v{t2}, v{t2} {mod} row_mask:0xf bank_mask:0xf")
    for w in (16, 32):
        a(f"v_mov_b32 v{t0}, v{t2}")
        a(fill.pop(0)); a(fill.pop(0))
        a(f"v_permlane{w}_swap_b32 v{t0}, v{t2}")
        a(f"v_add_f32 v{t2}, v{t2}, v{t0}")
    if 'leak' in dbg:
        a(f"""
        s_cmp_lg_u32 s3, 0
        s_cbranch_scc1 K2_leak
        s_memrealtime s[92:93]
        v_mov_b32 v{S1+4}, 0
        s_mov_b32 s5, {WS_SEL:#x}
        buffer_load_dwordx4 v[{S1}:{S1+3}], v{S1+4}, s[8:11], s5 offen
        s_waitcnt vmcnt(0) lgkmcnt(0)
        s_mov_b64 exec, 1
        v_add_f32 v{WF+8}, {f2u(64.0):#x}, v{WF+8}
        v_sub_u32 v{WF+9}, v{S1+2}, v{S1}
        v_sub_u32 v{WF+10}, v{S1+1}, v{S1}
        v_sub_u32 v{WF+11}, s90, v{S1}
        v_sub_u32 v{WF+12}, s94, v{S1}
        v_sub_u32 v{WF+13}, s92, v{S1}
        """)
        for r in range(9, 14):
            a(f"v_cvt_f32_u32 v{WF+r}, v{WF+r}")
            a(f"v_mul_f32 v{WF+r}, {f2u(0.005):#x}, v{WF+r}")
            a(f"v_min_f32 v{WF+r}, {f2u(20.0):#x}, v{WF+r}")
        a("s_mov_b64 exec, -1")
        a.label("K2_leak")
    a(f"""
    v_cvt_pk_bf16_f32 v{t2}, 0, v{t2}
    v_ashrrev_i32 v{t0}, 31, v{t2}
    v_or_b32 v{t0}, 0x80000000, v{t0}
    v_xor_b32 v{t2}, v{t2}, v{t0}
    v_and_b32 v{t2}, 0xffff0000, v{t2}
    s_sub_u32 s5, 0xffff, s3
    v_or_b32 v{t2}, s5, v{t2}      ; key
    ds_write_b32 v{t4}, v{t2}
    """)
    for r in range(4): a(f"v_cvt_pk_bf16_f32 v{PK+r}, v{WF+8+2*r}, v{WF+8+2*r+1}")
    a(f"""
    buffer_store_dwordx4 v[{PK}:{PK+3}], v{vWL}, s[20:23], s4 offen sc1
    """)
    a(f"""
    s_waitcnt lgkmcnt(0)
    s_barrier
    ds_read_b32 v{t1}, v{t3}
    s_waitcnt lgkmcnt(0)
    v_cmp_gt_u32 vcc, v{t1}, v{t2}
    v_cmp_eq_u32 s[36:37], v{t1}, v{t2}
    s_and_b32 s38, vcc_lo, 0xff
    s_bcnt1_i32_b32 s38, s38       ; rank
    """)
    st(5, False); st(5, True); st(0, 2); st(1, 2); st(2, 2); st(3, 2); st(4, 2); st(5, 2)
    a(f"""
    s_cmp_gt_u32 s38, 1
    s_cbranch_scc1 K2_pub0
    s_add_u32 s5, s4, {WS_H:#x}
    buffer_store_dwordx4 v[{PK+4}:{PK+7}], v{vWL}, s[8:11], s5 offen sc1
    s_add_u32 s5, s4, {WS_HN:#x}
    buffer_store_dwordx4 v[{ST+4}:{ST+7}], v{vWL}, s[8:11], s5 offen sc1
    v_cndmask_b32 v{ST+1}, v{t1}, 0, s[36:37]
    v_mov_b32 v{ST}, v{t2}
    s_lshl_b32 s5, s2, {G.KS_LOG}
    s_add_u32 s5, s5, {WS_KEY:#x}
    v_lshlrev_b32 v{t0}, 14, v0
    """)
    for mod in ("quad_perm:[1,0,3,2]", "quad_perm:[2,3,0,1]", "row_half_mirror"):
        a(f"v_max_u32_dpp v{ST+1}, v{ST+1}, v{ST+1} {mod} row_mask:0xf bank_mask:0xf")
    a("s_waitcnt vmcnt(0)")
    a.label("K2_pub0")
    a(f"""
    s_barrier
    s_cmp_lg_u32 s38, 0
    s_cbranch_scc1 K2_pub
    s_mov_b64 exec, {0xff if KREP else 1}
    buffer_store_dwordx2 v[{ST}:{ST+1}], v{t0}, s[8:11], s5 offen sc1
    s_mov_b64 exec, -1
    """)
    a.label("K2_pub")
    if 'amp' in dbg: a('s_memrealtime s[96:97]'); a('s_waitcnt lgkmcnt(0)')
    st(1, 2)
    def fin():
        if G.STAMP: a("s_waitcnt vmcnt(0)")
        stamp(a, 6)
        if G.STAMP: a("s_mov_b32 s91, s30")
        stamp_out(a, 1, 8, "s6", WF)
        a("s_endpgm")
    a(f"""
    s_cmp_ge_u32 s2, 144
    s_cbranch_scc1 K2_fin
    """)
    AFR = V
    KY = K; Y = K + 8; BX = V + 32; AC = K + 16
    a(f"""
    s_setprio 0
    v_bfe_u32 v{t0}, v0, 2, 2
    v_lshrrev_b32 v{t4}, 4, v0           ; g
    v_lshl_add_u32 v{t0}, v{t4}, 3, v{t0}
    v_lshlrev_b32 v{t0}, 5, v{t0}
    v_and_b32 v{t1}, 3, v0
    v_lshl_add_u32 v{t0}, v{t1}, 3, v{t0}
    v_add_u32 v{t0}, s74, v{t0}
    """)
    for sx in range(7):
        for half in range(2):
            d = AFR + 4 * sx + 2 * half
            a(f"ds_read_b64_tr_b16 v[{d}:{d+1}], v{t0} offset:{sx*1024 + half*128}")
    a(f"""
    v_and_b32 v{t3}, 1, v0
    v_lshlrev_b32 v{vPW}, 6, v{t3}
    v_lshl_add_u32 v{vPW}, v{t4}, 4, v{vPW}
    s_lshl_b32 s5, s6, 7
    s_add_u32 s5, s5, {L_RED:#x}
    v_add_u32 v{vPW}, s5, v{vPW}
    v_and_b32 v{vPR}, 31, v0
    v_lshlrev_b32 v{vPR}, 2, v{vPR}      ; (lane&31)*4
    v_lshrrev_b32 v{vOR}, 5, v0
    v_lshl_add_u32 v{vOR}, v{vOR}, 14, v{vPR}
    s_cmp_lg_u32 s6, 0
    s_cbranch_scc1 K2_nokey
    v_lshlrev_b32 v{t1}, {G.KS_LOG}, v0
    s_and_b32 s5, s2, {7 if KREP else 0}
    s_lshl_b32 s5, s5, 14
    s_add_u32 s5, s5, {WS_KEY:#x}
    s_add_u32 s79, s5, {64 << G.KS_LOG}
    s_add_u32 s80, s5, {128 << G.KS_LOG}
    s_add_u32 s81, s5, {192 << G.KS_LOG}
    s_mov_b32 s36, 0
    """)
    KZ = V + 60 - 8 * 0
    def poll_loop(name, issue, nld):
        K2R = X[0]
        def chk(b):
            a(f"""
            v_min3_u32 v{Y}, v{b}, v{b+1}, v{b+2}
            v_min3_u32 v{Y+1}, v{b+3}, v{b+4}, v{b+5}
            v_min3_u32 v{Y}, v{Y}, v{b+6}, v{b+7}
            v_min_u32 v{Y}, v{Y}, v{Y+1}
            v_cmp_eq_u32 vcc, 0, v{Y}
            """)
        sl = OPT.get('psl', 3)
        issue(KY)
        a(f"s_sleep {sl}")
        a.label(f"{name}_l")
        issue(K2R)
        a(f"s_waitcnt vmcnt({nld})")
        chk(KY)
        a(f"s_cbranch_vccz {name}_ok")
        issue(KY)
        a(f"s_waitcnt vmcnt({nld})")
        chk(K2R)
        a(f"""
        s_cbranch_vccz {name}_ok2
        s_add_u32 s36, s36, 1
        s_cmp_lt_u32 s36, 0x40000
        s_cbranch_scc1 {name}_l
        """)
        a.label(f"{name}_ok2")
        for r in range(0, 8, 2): a(f"v_pk_mov_b32 v[{KY+r}:{KY+r+1}], v[{K2R+r}:{K2R+r+1}], v[{K2R+r}:{K2R+r+1}] op_sel:[0,1]")
        a.label(f"{name}_ok")
    def kissue(b):
        for k, sr in enumerate(("s5", "s79", "s80", "s81")):
            a(f"buffer_load_dwordx2 v[{b+2*k}:{b+2*k+1}], v{t1}, s[8:11], {sr} offen sc1")
    if int(OPT.get('kd', 16)): a(f"s_sleep {OPT.get('kd', 16)}")
    poll_loop("K2_kp", kissue, 4)
    a.label("K2_kok")
    st(2, 2)
    if FS: a("s_mov_b32 s30, s36")
    B1, B2 = Y + 4, Y + 5
    a(f"""
    v_max_u32 v{B1}, v{KY}, v{KY+2}
    v_min_u32 v{B2}, v{KY}, v{KY+2}
    v_max3_u32 v{B2}, v{B2}, v{KY+1}, v{KY+3}
    v_max_u32 v{Y}, v{KY+4}, v{KY+6}
    v_min_u32 v{Y+1}, v{KY+4}, v{KY+6}
    v_max3_u32 v{Y+1}, v{Y+1}, v{KY+5}, v{KY+7}
    v_min_u32 v{Y+2}, v{B1}, v{Y}
    v_max_u32 v{B1}, v{B1}, v{Y}
    v_max3_u32 v{B2}, v{B2}, v{Y+1}, v{Y+2}
    v_mov_b32 v{Y}, v{B1}
    """)
    wave_max_u32(a, Y, Y + 1)
    a(f"""
    v_cmp_eq_u32 vcc, v{B1}, v{Y}
    v_cndmask_b32 v{B1}, v{B1}, v{B2}, vcc
    """)
    wave_max_u32(a, B1, Y + 1)
    a(f"""
    v_readfirstlane_b32 s40, v{Y}
    v_readfirstlane_b32 s41, v{B1}
    s_andn2_b32 s42, 0x7ff, s40
    s_andn2_b32 s43, 0x7ff, s41
    s_lshl_b32 s42, s42, 10
    s_lshl_b32 s43, s43, 10
    """)
    a.label("K2_nokey")
    a(f"""
    s_cmp_ge_u32 s2, 112
    s_cbranch_scc1 K2_down
    s_cmp_lg_u32 s6, 0
    s_cbranch_scc1 K2_up1
    s_add_u32 s36, s42, {WS_HN:#x}
    s_add_u32 s37, s43, {WS_HN:#x}
    buffer_load_dwordx4 v[{KY}:{KY+3}], v{vWL}, s[8:11], s36 offen sc1
    buffer_load_dwordx4 v[{KY+4}:{KY+7}], v{vWL}, s[8:11], s37 offen sc1
    s_waitcnt vmcnt(1)
    ds_write_b128 v{vWL}, v[{KY}:{KY+3}] offset:{L_XS}
    s_waitcnt vmcnt(0)
    ds_write_b128 v{vWL}, v[{KY+4}:{KY+7}] offset:{L_XS + 1040}
    """)
    a.label("K2_up1")
    st(3, 2)
    a(f"""
    v_mul_u32_u24 v{t0}, 1040, v{t3}
    v_lshl_add_u32 v{t0}, v{t4}, 4, v{t0}
    s_lshr_b32 s5, s6, 1
    s_lshl_b32 s5, s5, 8
    v_add_u32 v{t0}, s5, v{t0}
    s_waitcnt lgkmcnt(0)
    s_barrier
    """)
    for sx in range(4):
        a(f"ds_read_b128 v[{BX+4*sx}:{BX+4*sx+3}], v{t0} offset:{L_XS + 64*sx}")
    for sx in range(4):
        a(f"s_waitcnt lgkmcnt({3-sx})")
        c = "0" if sx == 0 else f"v[{AC}:{AC+3}]"
        a(f"v_mfma_f32_16x16x32_bf16 v[{AC}:{AC+3}], v[{AFR+4*sx}:{AFR+4*sx+3}], v[{BX+4*sx}:{BX+4*sx+3}], {c}")
    a(f"""
    ds_write_b128 v{vPW}, v[{AC}:{AC+3}]
    s_waitcnt lgkmcnt(0)
    s_barrier
    s_cmp_lg_u32 s6, 0
    s_cbranch_scc1 K2_fin
    """)
    def red_read():
        a(f"v_add_u32 v{t0}, {L_RED:#x}, v{vPR}")
        a("s_waitcnt vmcnt(0)")
        for k in range(4):
            a(f"ds_read2_b32 v[{KY+2*k}:{KY+2*k+1}], v{t0} offset0:{64*k} offset1:{64*k+32}")
        a("s_waitcnt lgkmcnt(0)")
        a(f"v_pk_add_f32 v[{KY}:{KY+1}], v[{KY}:{KY+1}], v[{KY+2}:{KY+3}]")
        a(f"v_pk_add_f32 v[{KY+4}:{KY+5}], v[{KY+4}:{KY+5}], v[{KY+6}:{KY+7}]")
        a(f"v_pk_add_f32 v[{KY}:{KY+1}], v[{KY}:{KY+1}], v[{KY+4}:{KY+5}]")
    st(4, 2)
    red_read()
    a(f"""
    v_cvt_pk_bf16_f32 v{KY}, 0, v{KY}
    v_cvt_pk_bf16_f32 v{KY+1}, 0, v{KY+1}
    """)
    sigmoid(a, KY + 2, KY, KY + 3)
    a(f"""
    v_mul_f32 v{KY}, v{KY}, v{KY+2}
    v_cvt_pk_bf16_f32 v{KY}, 0, v{KY}
    v_mul_f32 v{KY}, v{KY}, v{KY+1}
    v_cvt_pk_bf16_f32 v{KY}, 0, v{KY}
    v_or_b32 v{KY}, 1, v{KY}
    s_lshl_b32 s5, s76, 7
    s_add_u32 s5, s5, {WS_GU:#x}
    """)
    if GREP:
        for k in range(4):
            a(f"buffer_store_dword v{KY}, v{vOR}, s[8:11], s5 offen sc1")
            if k < 3: a("s_add_u32 s5, s5, 0x8000")
    else:
        a(f"""
        s_mov_b32 exec_hi, 0
        buffer_store_dword v{KY}, v{vPR}, s[8:11], s5 offen sc1
        s_mov_b64 exec, -1
        """)
    a(f"""
    s_branch K2_fin
    """)
    a.label("K2_down")
    HH, NN, GT, OO = Y + 6, Y + 7, AC + 4, AC + 5
    a(f"""
    s_cmp_lg_u32 s6, 0
    s_cbranch_scc1 K2_dn1
    v_bfe_u32 v{t0}, v0, 4, 1
    v_cmp_eq_u32 vcc, 0, v{t0}
    v_mov_b32 v{t0}, s43
    v_mov_b32 v{t1}, s42
    v_cndmask_b32 v{OO}, v{t0}, v{t1}, vcc
    v_and_b32 v{t0}, 15, v0
    v_lshl_add_u32 v{OO}, v{t0}, 1, v{OO}
    s_lshl_b32 s44, s77, 5
    s_add_u32 s36, s44, {WS_H:#x}
    s_add_u32 s37, s44, {WS_HN:#x}
    buffer_load_ushort v{HH}, v{OO}, s[8:11], s36 offen sc1
    buffer_load_ushort v{NN}, v{OO}, s[8:11], s37 offen sc1
    v_mov_b32 v{t0}, s41
    v_mov_b32 v{t1}, s40
    v_cndmask_b32 v{GT}, v{t0}, v{t1}, vcc
    v_and_b32 v{GT}, 0xffff0000, v{GT}
    v_ashrrev_i32 v{t0}, 31, v{GT}
    v_not_b32 v{t0}, v{t0}
    v_or_b32 v{t0}, 0x80000000, v{t0}
    v_xor_b32 v{GT}, v{GT}, v{t0}
    v_and_b32 v{GT}, 0xffff0000, v{GT}
    """)
    sigmoid(a, GT, GT, t0)
    a(f"v_cvt_pk_bf16_f32 v{GT}, 0, v{GT}")
    a.label("K2_dn1")
    a(f"""
    s_mul_i32 s5, s6, 1792
    s_and_b32 s37, s2, {7 if GREP else 0}
    s_lshl_b32 s37, s37, 14
    s_add_u32 s5, s5, s37
    s_add_u32 s5, s5, {WS_GU:#x}
    v_min_u32 v{t1}, 47, v0
    v_lshlrev_b32 v{t1}, 4, v{t1}
    s_lshl_b32 s37, s6, 10
    s_add_u32 s37, s37, {L_GB:#x}
    v_lshrrev_b32 v{t0}, 3, v0
    v_lshlrev_b32 v{vPL}, 5, v{t0}
    v_and_b32 v{t0}, 3, v0
    v_lshl_add_u32 v{vPL}, v{t0}, 3, v{vPL}
    v_bfe_u32 v{t0}, v0, 2, 1
    v_mul_u32_u24 v{t0}, 464, v{t0}
    v_add3_u32 v{vPL}, v{vPL}, v{t0}, s37
    v_mul_u32_u24 v{vOW}, 464, v{t3}
    v_lshl_add_u32 v{vOW}, v{t4}, 4, v{vOW}
    v_add_u32 v{vOW}, s37, v{vOW}
    s_mov_b32 s45, 0x07060302
    s_mov_b32 s36, 0
    """)
    def gissue(b):
        a(f"buffer_load_dwordx4 v[{b}:{b+3}], v{vWL}, s[8:11], s5 offen sc1")
        a(f"buffer_load_dwordx4 v[{b+4}:{b+7}], v{t1}, s[8:11], s5 offen offset:1024 sc1")
    if 'nogb' not in dbg:
        a("s_barrier")
        if int(OPT.get('gd', 24)): a(f"s_sleep {OPT.get('gd', 24)}")
    poll_loop("K2_gp", gissue, 2)
    a.label("K2_gok")
    st(4, 2)
    a(f"""
    v_perm_b32 v{Y}, v{KY+1}, v{KY}, s45
    v_perm_b32 v{Y+1}, v{KY+3}, v{KY+2}, s45
    v_perm_b32 v{Y+2}, v{KY+5}, v{KY+4}, s45
    v_perm_b32 v{Y+3}, v{KY+7}, v{KY+6}, s45
    ds_write_b64 v{vPL}, v[{Y}:{Y+1}]
    s_mov_b32 exec_hi, 0xffff
    ds_write_b64 v{vPL}, v[{Y+2}:{Y+3}] offset:256
    s_mov_b64 exec, -1
    """)
    for sx in range(7):
        a(f"ds_read_b128 v[{BX+4*sx}:{BX+4*sx+3}], v{vOW} offset:{64*sx}")
    for sx in range(7):
        a(f"s_waitcnt lgkmcnt({6-sx})")
        c = "0" if sx == 0 else f"v[{AC}:{AC+3}]"
        a(f"v_mfma_f32_16x16x32_bf16 v[{AC}:{AC+3}], v[{AFR+4*sx}:{AFR+4*sx+3}], v[{BX+4*sx}:{BX+4*sx+3}], {c}")
    a(f"""
    ds_write_b128 v{vPW}, v[{AC}:{AC+3}]
    s_waitcnt lgkmcnt(0)
    s_barrier
    s_cmp_lg_u32 s6, 0
    s_cbranch_scc1 K2_fin
    """)
    red_read()
    a(f"""
    v_add_f32 v{KY}, v{KY}, v{KY+1}
    v_lshlrev_b32 v{HH}, 16, v{HH}
    v_lshlrev_b32 v{NN}, 16, v{NN}
    v_cvt_pk_bf16_f32 v{KY}, 0, v{KY}
    v_mul_f32 v{KY}, v{KY}, v{GT}
    v_cvt_pk_bf16_f32 v{KY}, 0, v{KY}
    v_add_f32 v{KY}, v{KY}, v{NN}
    v_cvt_pk_bf16_f32 v{KY}, 0, v{KY}
    v_add_f32 v{KY}, v{KY}, v{HH}
    v_cvt_pk_bf16_f32 v{KY}, v{KY}, v{KY}
    s_mov_b32 exec_hi, 0
    buffer_store_short v{KY}, v{OO}, s[20:23], s44 offen sc1
    s_mov_b64 exec, -1
    """)
    a.label("K2_fin")
    if 'amp' in dbg:
        q = int(OPT['amp'])
        expr = {0: None, 1: ("s83", "s90"), 2: ("s84", "s90"), 3: ("s85", "s90"), 4: ("s86", "s90"), 5: ("s88", "s90"), 6: ("s94", "s90"), 7: ("s98", "s94"), 8: ("s96", "s98")}[q]
        a(f"""
        s_or_b32 s5, s2, s6
        s_cmp_lg_u32 s5, 0
        s_cbranch_scc1 K2_amp_end
        """)
        if expr: a(f"s_sub_u32 s85, {expr[0]}, {expr[1]}")
        else: a("s_mov_b32 s85, 0")
        a(f"""
        s_min_u32 s85, s85, 5000
        s_lshl_b32 s85, s85, 1
        s_add_u32 s85, s85, 600
        s_add_u32 s85, s85, s96
        """)
        a.label("K2_amp")
        a(f"""
        s_memrealtime s[92:93]
        s_waitcnt lgkmcnt(0)
        s_sub_u32 s86, s92, s85
        s_cmp_lt_i32 s86, 0
        s_cbranch_scc1 K2_amp
        """)
        a.label("K2_amp_end")
    if G.STAMP: a("s_waitcnt vmcnt(0)")
    stamp(a, 6)
    if G.STAMP: a("s_mov_b32 s91, s30")
    stamp_out(a, 1, 8, "s6", WF)
    dstamp(a, 1, True, 240)
    a.label("K2_end")
    a("s_endpgm")
    a.label("K2_qspin")
    a(f"""
    s_mov_b32 s36, 0
    """)
    a.label("K2_qspin1")
    a(f"""
    s_sleep 2
    buffer_load_dword v{t0}, v{SP}, s[8:11], s45 offen sc1
    s_add_u32 s36, s36, 1
    s_waitcnt vmcnt(0)
    v_cmp_ne_u32 vcc, s58, v{t0}
    s_cbranch_vccz K2_qback
    s_cmp_lt_u32 s36, 0x40000
    s_cbranch_scc1 K2_qspin1
    s_branch K2_qback
    """)
    for k, off in enumerate(spins):
        a.label(f"K2_spin{k}")
        a(f"""
        s_sleep 1
        ds_read_b32 v{vFV}, v{vFR} offset:{off}
        s_waitcnt lgkmcnt(0)
        v_cmp_gt_u32 vcc, s59, v{vFV}
        s_cbranch_vccnz K2_spin{k}
        s_branch K2_back{k}
        """)
```

```python
from gen import *
import gen as G
import re

L_X = 0; L_W = 65536; L_KV = 131072; L_WOT = L_KV + 16384; L_DN = L_WOT + 2048; L1_TOTAL = L_DN + 64
L_Q0 = 0x6000

def gen_p1(a, dbg=''):
    SC = ' sc1'
    def p1(i):
        if 'p1st' in dbg: stamp(a, i)
        if 'amp' in dbg: a(f's_memrealtime s[100:101]'); a('s_waitcnt lgkmcnt(0)'); a(f's_mov_b32 s{82+i}, s100')
    FST = int(dict(x.split('=') for x in dbg.split(',') if '=' in x).get('fst', 2))
    WB = int(dict(x.split('=') for x in dbg.split(',') if '=' in x).get('wb', 5))
    WD = int(dict(x.split('=') for x in dbg.split(',') if '=' in x).get('wd', 9))
    PB = int(dict(x.split('=') for x in dbg.split(',') if '=' in x).get('pb', 99))
    FLS = int(dict(x.split('=') for x in dbg.split(',') if '=' in x).get('fls', 4))
    EPOCH = f"""
    s_add_u32 s56, s32, {WS_EP:#x}
    s_addc_u32 s57, s33, 0
    s_load_dword s58, s[56:57], 0
    """
    X = 32
    ACC = 96
    AF = 116
    T = 148
    a(f"""
    s_cmp_lt_u32 s2, 256
    s_cbranch_scc1 K1_go
    s_endpgm
    """)
    a.label("K1_go")
    stamp(a, 0)
    if ('leak' in dbg or 'amp' in dbg): a('s_memrealtime s[90:91]')
    dstamp(a, 0, False, 200)
    a(f"""
    s_load_dwordx8 s[24:31], s[0:1], 0
    s_load_dwordx2 s[44:45], s[0:1], 32
    s_load_dwordx2 s[32:33], s[0:1], 96
    """)
    if 'nocodepf' not in dbg:
        a(f"""
        s_cmp_ge_u32 s2, 16
        s_cbranch_scc1 K1_nocp
        v_subrev_u32 v30, 256, v0
        v_cmp_gt_u32 vcc, (K_all_end-k1_kernel+127)/128, v30
        s_and_saveexec_b64 s[62:63], vcc
        s_cbranch_execz K1_cpx
        s_getpc_b64 s[60:61]
        """)
        a.label("K1_pc")
        a(f"""
        s_sub_u32 s60, s60, K1_pc-k1_kernel
        s_subb_u32 s61, s61, 0
        v_lshlrev_b32 v30, 7, v30
        global_load_dword v31, v30, s[60:61]
        """)
        a.label("K1_cpx")
        a("s_mov_b64 exec, s[62:63]")
        a.label("K1_nocp")
    a(f"""
    s_and_b32 s3, s2, 7
    s_lshr_b32 s4, s2, 3
    s_and_b32 s5, s4, 7
    s_lshr_b32 s4, s4, 3           ; tb & 3
    s_lshl_b32 s3, s3, 2
    s_add_u32 s3, s3, s4
    v_lshrrev_b32 v1, 6, v0
    v_and_b32 v2, 63, v0           ; lane
    v_readfirstlane_b32 s6, v1     ; wave
    v_and_b32 v3, 15, v2           ; l & 15
    v_lshrrev_b32 v6, 2, v2
    v_lshrrev_b32 v4, 4, v2        ; g
    v_bfe_u32 v18, v2, 2, 2        ; r'
    v_and_b32 v19, 3, v2           ; c'
    v_lshl_add_u32 v20, v4, 3, v18 ; 8g + r'
    v_lshlrev_b32 v17, 5, v20
    v_lshl_add_u32 v17, v19, 3, v17
    s_cmp_ge_u32 s6, 4
    s_cbranch_scc1 K1_loader
    """)
    a(f"""
    s_load_dwordx2 s[48:49], s[0:1], 96
    s_load_dwordx2 s[40:41], s[0:1], 0
    s_load_dwordx8 s[60:67], s[0:1], 48
    s_load_dwordx2 s[46:47], s[0:1], 80
    s_lshl_b32 s7, s3, 6
    s_lshl_b32 s34, s6, 4
    s_add_u32 s7, s7, s34
    v_add_u32 v5, s7, v3           ; token
    v_lshrrev_b32 v7, 4, v2
    v_and_b32 v7, 2, v7
    v_xor_b32 v7, v7, v19
    v_lshlrev_b32 v6, 10, v6
    v_lshl_add_u32 v6, v7, 4, v6
    s_lshl_b32 s81, s6, 14
    s_lshl_b32 s80, s7, 10
    s_lshl_b32 s79, s5, 7
    s_waitcnt lgkmcnt(0)
    """)
    srd(a, 16, 24, 25, 0x200000)
    a(f"""
    s_add_u32 s42, s48, {WS_EP:#x}
    s_addc_u32 s43, s49, 0
    s_load_dword s58, s[42:43], 0
    """)
    def xloop(name, lo, hi):
        if lo >= hi: return
        a(f"s_mov_b32 s29, {lo}")
        a.label(name)
        a(f"""
        s_mov_b32 m0, s81
        s_add_u32 s3, s79, s80
        buffer_load_dwordx4 v6, s[16:19], s3 offen lds
        s_add_u32 m0, s81, {1024 - 64}
        s_add_u32 s79, s79, 128
        buffer_load_dwordx4 v6, s[16:19], s3 offen offset:64 lds
        s_and_b32 s79, s79, 0x3ff
        s_add_u32 s81, s81, 2048
        s_add_u32 s29, s29, 1
        s_cmp_lt_u32 s29, {hi}
        s_cbranch_scc1 {name}
        """)
    XN = int(dict(x.split('=') for x in dbg.split(',') if '=' in x).get('xn', 2))
    xloop("K1_x1", 0, XN)
    a("s_branch K12_setup1")
    EARLY = 'early' in dbg
    a.label("K1_loader")
    if 'noldprio' not in dbg: a("s_setprio 3")
    a(f"""
    s_sub_u32 s6, s6, 4
    v_lshrrev_b32 v7, 3, v2        ; row_in
    v_and_b32 v8, 7, v2            ; slot
    v_and_b32 v9, 2, v7
    v_xor_b32 v8, v8, v9
    v_xor_b32 v9, 4, v8
    s_lshl_b32 s35, s5, 7
    v_lshlrev_b32 v7, 10, v7
    v_add_u32 v7, s35, v7
    v_lshl_add_u32 v10, v8, 4, v7
    v_lshl_add_u32 v11, v9, 4, v7
    v_lshlrev_b32 v12, 4, v2       ; lane*16
    v_lshrrev_b32 v13, 1, v2
    v_lshlrev_b32 v13, 10, v13
    v_and_b32 v14, 1, v2
    v_lshl_add_u32 v13, v14, 4, v13
    s_lshl_b32 s65, s6, 14
    s_add_u32 s65, s65, {L_W}
    s_lshl_b32 s37, s6, 4
    s_lshl_b32 s38, s5, 3
    s_add_u32 s37, s37, s38
    v_and_b32 v15, 16, v2
    v_lshlrev_b32 v15, 3, v15
    v_xor_b32 v15, v15, v12
    s_lshl_b32 s39, s4, 2
    s_waitcnt lgkmcnt(0)
    """)
    a(EPOCH)
    srd(a, 12, 26, 27, 0x80000)
    a(f"""
    s_bitcmp0_b32 s5, 0
    s_cselect_b64 s[46:47], s[28:29], s[30:31]
    """)
    srd(a, 16, 46, 47, 0x4000)
    srd(a, 40, 44, 45, 0x80000)
    srd(a, 20, 32, 33, WS_SIZE)
    a(f"""
    s_cmp_lg_u32 s6, 0
    s_cbranch_scc1 K1_noz
    v_mov_b32 v32, 0
    v_mov_b32 v33, 0
    v_mov_b32 v34, 0
    v_mov_b32 v35, 0
    s_lshl_b32 s48, s2, 10
    s_add_u32 s48, s48, {WS_GU:#x}
    buffer_store_dwordx4 v[32:35], v12, s[20:23], s48 offen{SC}
    """)
    a.label("K1_noz")
    if 'notouch' not in dbg:
        a(f"""
        s_cmp_lg_u32 s6, 1
        s_cbranch_scc1 K1_not
        s_and_b32 s48, s2, 7
        s_lshl_b32 s48, s48, 14
        s_add_u32 s48, s48, {WS_FL:#x}
        v_lshlrev_b32 v32, {FLS + 2}, v2
        buffer_load_dword v33, v32, s[20:23], s48 offen sc1
        """)
        a.label("K1_not")
    a(f"""
    s_cmp_lt_u32 s6, 2
    s_cbranch_scc1 K1_nowo
    s_lshl_b32 s46, s2, 1
    s_and_b32 s47, s6, 1
    s_add_u32 s46, s46, s47
    s_lshr_b32 s47, s46, 6
    s_lshl_b32 s47, s47, 16
    s_bfe_u32 s48, s46, 0x10002
    s_lshl_b32 s48, s48, 15        ; s * 32 rows
    s_add_u32 s47, s47, s48
    s_bfe_u32 s48, s46, 0x30003
    s_lshl_b32 s48, s48, 7         ; w * 128 B
    s_add_u32 s47, s47, s48
    s_and_b32 s48, s46, 3
    s_lshl_b32 s48, s48, 5         ; t * 32 B
    s_add_u32 s47, s47, s48
    s_lshl_b32 s48, s6, 10
    s_add_u32 s48, s48, {L_WOT - 2048}
    s_mov_b32 m0, s48
    v_add_u32 v17, s48, v17
    buffer_load_dwordx4 v13, s[40:43], s47 offen lds
    s_lshl_b32 s48, s6, 2
    s_add_u32 s48, s48, {L_DN - 8}
    v_mov_b32 v36, s48
    v_mov_b32 v37, 0
    ds_write_b32 v36, v37
    v_mov_b32 v37, 1
    """)
    a.label("K1_nowo")
    a(f"""
    s_lshl_b32 s36, s6, 12
    s_lshl_b32 s38, s5, 11
    """)
    for i in range(4):
        a(f"""
        s_add_u32 s48, s36, {i*1024}
        s_add_u32 m0, s48, {L_KV}
        s_add_u32 s48, s48, s38
        s_and_b32 s48, s48, 0x3fff
        buffer_load_dwordx4 v15, s[16:19], s48 offen lds
        """)
    a("s_waitcnt lgkmcnt(0)")
    a("s_add_u32 s58, s58, 1")
    a(f"""
    s_barrier
    s_cmp_lt_u32 s6, 2
    s_cbranch_scc1 K1_nowo2
    s_waitcnt vmcnt(4)
    ds_read_b64_tr_b16 v[32:33], v17
    ds_read_b64_tr_b16 v[34:35], v17 offset:128
    s_lshl_b32 s46, s46, 10
    s_add_u32 s46, s46, {WS_WOF:#x}
    s_waitcnt lgkmcnt(0)
    buffer_store_dwordx4 v[32:35], v12, s[20:23], s46 offen sc1
    s_branch K1_wst
    """)
    a.label("K1_nowo2")
    a("buffer_load_dword v33, v12, s[16:19], 0 offen")
    a.label("K1_wst")
    for i in range(16):
        a(f"""
        s_add_u32 s48, s39, {i}
        s_and_b32 s48, s48, 15
        s_lshl_b32 s49, s48, 10
        s_add_u32 m0, s65, s49
        s_add_u32 s48, s48, s37
        s_and_b32 s48, s48, 63
        s_lshl_b32 s48, s48, 13
        buffer_load_dwordx4 v{10 + (i & 1)}, s[12:15], s48 offen lds
        """)
        if i == WB:
            a(f"s_waitcnt vmcnt({WB + 2})")
            p1(1)
            a("s_barrier")
        if i == WD and EARLY:
            a(f"""
            s_cmp_lt_u32 s6, 2
            s_cbranch_scc1 K1_nodn
            s_waitcnt vmcnt({WD + 1})
            ds_write_b32 v36, v37
            """)
            a.label("K1_nodn")
    p1(2)
    a("s_waitcnt vmcnt(0)")
    p1(3)
    a("s_barrier")
    a("s_cmp_eq_u32 s6, 0")
    a("s_cbranch_scc1 K12_setup")
    a("s_setprio 0")
    a("s_branch K12_setup")
    a.label("K1_comp")
    ONE = 24; SEL = 8
    SEL = 152
    a(f"""
    v_lshlrev_b32 v21, 7, v20
    v_lshl_add_u32 v21, v19, 3, v21   ; row*128 + 8c'
    v_add_u32 v21, {L_W}, v21
    v_lshrrev_b32 v22, 1, v18
    v_and_b32 v23, 1, v4
    v_lshl_or_b32 v22, v23, 1, v22 ; h
    """)
    for t in range(4):
        a(f"v_xor_b32 v23, {t}, v22")
        a(f"v_lshl_add_u32 v{13+t}, v23, 5, v21")
    a(f"""
    v_lshlrev_b32 v10, 6, v3
    v_lshrrev_b32 v7, 2, v3
    v_and_b32 v7, 2, v7
    v_xor_b32 v7, v7, v4
    v_lshl_add_u32 v10, v7, 4, v10
    s_lshl_b32 s3, s6, 14
    v_add_u32 v10, s3, v10
    v_and_b32 v7, 1, v4
    v_lshlrev_b32 v7, 7, v7
    v_add_u32 v17, {L_KV}, v17
    v_xor_b32 v12, v17, v7
    v_xor_b32 v17, 128, v12
    """)
    for r in range(4): a(f"v_mov_b32 v{ONE+r}, 0x3f803f80")
    a(f"""
    v_and_b32 v7, 1, v2
    v_lshlrev_b32 v7, 4, v7
    v_mov_b32 v8, 0x3f80
    v_lshlrev_b32 v7, v7, v8
    v_cmp_eq_u32 s[34:35], v18, v4 ; g == (l&15)>>2
    v_bfe_u32 v8, v2, 1, 1
    v_cmp_eq_u32 vcc, 0, v8
    s_and_b64 s[42:43], s[34:35], vcc
    s_andn2_b64 s[36:37], s[34:35], vcc
    v_mov_b32 v{SEL}, 0
    v_mov_b32 v{SEL+1}, 0
    v_cndmask_b32 v{SEL+2}, 0, v7, s[42:43]
    v_cndmask_b32 v{SEL+3}, 0, v7, s[36:37]
    v_mov_b32 v{SEL+4}, 0
    v_mov_b32 v{SEL+5}, 0
    """)
    xloop("K1_x2", XN, 8)
    a("s_waitcnt lgkmcnt(0)")
    a("s_add_u32 s58, s58, 1")
    a("s_barrier")
    p1(1)
    m16 = "v_mfma_f32_16x16x32_bf16"
    SUM = ACC; GR = ACC + 4; NM = 248
    def stat(u):
        xs = f"v[{X+4*u}:{X+4*u+3}]"
        a(f"{m16} v[{SUM}:{SUM+3}], v[{ONE}:{ONE+3}], {xs}, " + ("0" if u == 0 else f"v[{SUM}:{SUM+3}]"))
        a(f"{m16} v[{GR}:{GR+3}], {xs}, {xs}, " + ("0" if u == 0 else f"v[{GR}:{GR+3}]"))
    for u in range(0, 16, 2):
        a(f"s_waitcnt vmcnt({14-u})")
        a(f"ds_read_b128 v[{X+4*u}:{X+4*u+3}], v10 offset:{1024*u}")
        a(f"ds_read_b128 v[{X+4*u+4}:{X+4*u+7}], v10 offset:{1024*u+1024}")
        if u >= 4:
            a("s_waitcnt lgkmcnt(4)")
            stat(u - 4); stat(u - 3)
    a("s_waitcnt lgkmcnt(2)"); stat(12); stat(13)
    a("s_waitcnt lgkmcnt(0)"); stat(14); stat(15)
    RG = 184
    a("s_barrier")
    a("s_lshr_b32 s79, s28, 1")
    a("s_cmp_lg_u32 s79, s6")
    a("s_cbranch_scc1 K1_nokvf")
    for sx in range(16):
        for half in range(2):
            d = RG + 4 * sx + 2 * half
            a(f"ds_read_b64_tr_b16 v[{d}:{d+1}], v{17 if half else 12} offset:{sx*1024}")
    a.label("K1_nokvf")
    a(f"""
    v_and_b32 v7, 1, v2
    v_cmp_eq_u32 vcc, 1, v7
    v_cndmask_b32 v8, v{GR}, v{GR+1}, vcc
    v_cndmask_b32 v9, v{GR+2}, v{GR+3}, vcc
    v_cndmask_b32 v8, 0, v8, s[42:43]
    v_cndmask_b32 v26, v8, v9, s[36:37]
    """)
    for w in (16, 32):
        sum_swap(a, 26, 28, w)
    ln_scalars(a, SUM, 26, 28, 30, 27, 29)
    for r in range(4): a(f"v_sub_f32 v{NM+r}, 0, v28")
    NB = 4
    def sub(u):
        d = AF + 8 * (u % NB)
        xs = f"v[{X+4*u}:{X+4*u+3}]"
        a(f"{m16} v[{d}:{d+3}], v[{SEL+2}:{SEL+5}], {xs}, v[{NM}:{NM+3}]")
        a(f"{m16} v[{d+4}:{d+7}], v[{SEL}:{SEL+3}], {xs}, v[{NM}:{NM+3}]")
    sub(0); sub(1)
    def ln_step(u):
        d = AF + 8 * (u % NB); L = []
        for r in range(4): L.append(f"v_cvt_pk_bf16_f32 v{d+r}, 0, v{d+r}")
        if u + 2 < 16:
            dd = AF + 8 * ((u + 2) % NB); xs = f"v[{X+4*(u+2)}:{X+4*(u+2)+3}]"
            L.append(f"{m16} v[{dd}:{dd+3}], v[{SEL+2}:{SEL+5}], {xs}, v[{NM}:{NM+3}]")
        for r in range(4, 8): L.append(f"v_cvt_pk_bf16_f32 v{d+r}, 0, v{d+r}")
        for r in range(0, 8, 2): L.append(f"v_pk_mul_f32 v[{d+r}:{d+r+1}], v[{d+r}:{d+r+1}], v[30:31] op_sel_hi:[1,0]")
        if u + 2 < 16:
            L.append(f"{m16} v[{dd+4}:{dd+7}], v[{SEL}:{SEL+3}], {xs}, v[{NM}:{NM+3}]")
        for r in range(4): L.append(f"v_cvt_pk_bf16_f32 v{X+4*u+r}, v{d+2*r}, v{d+2*r+1}")
        return L
    for u in range(16):
        for ins in ln_step(u): a(ins)
    p1(2)
    KV = ACC + 16
    a(f"""
    v_lshrrev_b32 v9, 1, v4
    v_and_b32 v11, 1, v4
    s_cmp_lg_u32 s79, s6
    s_cbranch_scc1 K1_q
    s_lshr_b32 s35, s80, 15
    s_mul_i32 s35, s35, {TS}
    s_add_u32 s35, s35, {WS_KV:#x}
    s_waitcnt lgkmcnt(0)
    s_bitcmp0_b32 s28, 0
    s_cbranch_scc0 K1_v
    """)
    for sx in range(16):
        a(f"{m16} v[{KV}:{KV+3}], v[{RG+4*sx}:{RG+4*sx+3}], v[{X+4*sx}:{X+4*sx+3}], " + ("0" if sx == 0 else f"v[{KV}:{KV+3}]"))
    a(f"""
    v_and_b32 v8, 31, v5
    v_lshlrev_b32 v8, 4, v8
    v_lshl_add_u32 v8, v9, 9, v8
    s_branch K1_kvs
    """)
    a.label("K1_v")
    for sx in range(16):
        a(f"{m16} v[{KV}:{KV+3}], v[{X+4*sx}:{X+4*sx+3}], v[{RG+4*sx}:{RG+4*sx+3}], " + ("0" if sx == 0 else f"v[{KV}:{KV+3}]"))
    a(f"""
    s_and_b32 s36, s6, 1
    s_mul_i32 s36, s36, 544
    s_add_u32 s35, s35, s36
    s_add_u32 s35, s35, 1024
    v_mul_u32_u24 v8, 272, v9
    v_mov_b32 v{AF}, 0x3f803f80
    v_mov_b32 v{AF+1}, 0x3f803f80
    v_mov_b32 v{AF+2}, 0x3f803f80
    v_mov_b32 v{AF+3}, 0x3f803f80
    s_mov_b32 exec_lo, 1
    s_mov_b32 exec_hi, 1
    buffer_store_dwordx4 v[{AF}:{AF+3}], v8, s[8:11], s35 offen offset:256 sc1
    s_mov_b64 exec, -1
    v_lshl_add_u32 v8, v3, 4, v8
    """)
    a.label("K1_kvs")
    a(f"""
    v_cvt_pk_bf16_f32 v{T}, v{KV}, v{KV+1}
    v_cvt_pk_bf16_f32 v{T+1}, v{KV+2}, v{KV+3}
    v_mov_b32 v{T+2}, v{T}
    v_mov_b32 v{T+3}, v{T+1}
    v_permlane16_swap_b32 v{T}, v{T+2}
    v_permlane16_swap_b32 v{T+1}, v{T+3}
    s_mov_b32 exec_lo, 0xffff
    s_mov_b32 exec_hi, 0xffff
    buffer_store_dwordx4 v[{T}:{T+3}], v8, s[8:11], s35 offen sc1
    s_mov_b64 exec, -1
    v_mov_b32 v7, s58
    v_lshlrev_b32 v8, 14, v2
    s_lshl_b32 s35, s2, {FLS}
    s_add_u32 s35, s35, {WS_FL:#x}
    v_mov_b32 v21, {L_DN}
    """)
    EARLY = 'early' in dbg
    if EARLY: a.label("K1_dn")
    if EARLY: a(f"""
    ds_read_b64 v[22:23], v21
    s_waitcnt vmcnt(0) lgkmcnt(0)
    v_and_b32 v22, v22, v23
    v_cmp_eq_u32 vcc, 0, v22
    s_cbranch_vccnz K1_dn
    s_mov_b64 exec, 0xff
    buffer_store_dword v7, v8, s[8:11], s35 offen sc1
    s_mov_b64 exec, -1
    """)
    a.label("K1_q")
    a("s_barrier")
    p1(3)
    def rd(s, t):
        for half in range(2):
            d = RG + 16 * (s % 3) + 4 * t + 2 * half
            a(f"ds_read_b64_tr_b16 v[{d}:{d+1}], v{13+t} offset:{s*4096 + half*512}")
    for t in range(4): rd(0, t)
    for t in range(4): rd(1, t)
    for s in range(16):
        a(f"s_waitcnt lgkmcnt({8 if s < 15 else 0})")
        for t in range(4):
            d = RG + 16 * (s % 3) + 4 * t
            c = "0" if s == 0 else f"v[{ACC+4*t}:{ACC+4*t+3}]"
            a(f"{m16} v[{ACC+4*t}:{ACC+4*t+3}], v[{d}:{d+3}], v[{X+4*s}:{X+4*s+3}], {c}")
            if s + 2 < 16: rd(s + 2, t)
        if s == PB: a("s_barrier")
        if s == FST and not EARLY:
            a(f"""
            s_cmp_lg_u32 s79, s6
            s_cbranch_scc1 K1_nofl
            s_waitcnt vmcnt(0)
            s_mov_b64 exec, 0xff
            buffer_store_dword v7, v8, s[8:11], s35 offen sc1
            s_mov_b64 exec, -1
            """)
            a.label("K1_nofl")
    a(f"""
    s_lshl_b32 s35, s28, 10
    v_lshrrev_b32 v7, 3, v5
    v_lshlrev_b32 v7, 13, v7
    v_and_b32 v8, 7, v5
    v_lshl_add_u32 v7, v8, 4, v7
    v_lshl_add_u32 v7, v9, 9, v7
    v_lshl_add_u32 v7, v11, 7, v7
    """)
    for tp in range(2):
        for t in (2 * tp, 2 * tp + 1):
            for r in range(4): a(f"v_cvt_pk_bf16_f32 v{ACC+4*t+r}, 0, v{ACC+4*t+r}")
            for r in range(4): a(f"v_mul_f32 v{ACC+4*t+r}, {f2u(0.25 * 1.4426950408889634):#x}, v{ACC+4*t+r}")
            a(f"v_cvt_pk_bf16_f32 v{AF+2*t}, v{ACC+4*t}, v{ACC+4*t+1}")
            a(f"v_cvt_pk_bf16_f32 v{AF+2*t+1}, v{ACC+4*t+2}, v{ACC+4*t+3}")
        b = AF + 4 * tp
        a(f"v_permlane16_swap_b32 v{b}, v{b+2}")
        a(f"v_permlane16_swap_b32 v{b+1}, v{b+3}")
        a(f"buffer_store_dwordx4 v[{b}:{b+3}], v7, s[8:11], s35 offen offset:{256*tp}{SC}")
    a(f"""
    s_cmp_lg_u32 s79, s6
    s_cbranch_scc1 K1_nol
    v_and_b32 v8, 0x3ff, v7
    s_mov_b32 s36, 0x00ff00ff
    s_and_b32 s37, s28, 1
    s_lshl_b32 s37, s37, 3
    s_lshl_b32 exec_lo, s36, s37
    s_mov_b32 exec_hi, exec_lo
    ds_write_b128 v8, v[{AF}:{AF+3}] offset:{L_Q0}
    ds_write_b128 v8, v[{AF+4}:{AF+7}] offset:{L_Q0 + 256}
    s_mov_b64 exec, -1
    """)
    a.label("K1_nol")
    p1(4)
    dstamp(a, 0, True, 200)
    a("s_branch K12_join")
    for k, l in enumerate(a.lines):
        if isinstance(l, Ins):
            t = re.sub(r"\bv(\d+)\b", lambda m: f"v{159 + int(m.group(1))}" if 1 <= int(m.group(1)) <= 15 else m.group(0), l.text)
            if t != l.text: a.lines[k] = Ins(t)
```

```python
from gen import *
import gen as G

L_PART = 0x0; L_Q = 0x6000; L_MREF = 0x8400; L_OB = 0x5800; L_KEY = 0xAC00; L_FLG = 0xAD00; L_MX = 0xB000; L_HB = 0xB400
L_FW = 0xE000; L_TOTAL = 0xE000 + 8 * 7168
L_XS = L_PART; L_RED = L_PART + 0x1000; L_GB = L_PART + 0x2000
C_EXACT = 0.25 * 1.4426950408889634
OFFS = 96.0

def wave_sum(a, vs, ts):
    if isinstance(vs, int): vs, ts = [vs], [ts]
    for mod in ("quad_perm:[1,0,3,2]", "quad_perm:[2,3,0,1]", "row_half_mirror", "row_mirror"):
        for v in vs:
            a(f"v_add_f32_dpp v{v}, v{v}, v{v} {mod} row_mask:0xf bank_mask:0xf")
    for w in (16, 32):
        for v, t in zip(vs, ts): a(f"v_mov_b32 v{t}, v{v}")
        for v, t in zip(vs, ts): a(f"v_permlane{w}_swap_b32 v{t}, v{v}")
        for v, t in zip(vs, ts): a(f"v_add_f32 v{v}, v{v}, v{t}")

class VM:
    def __init__(self, a): self.a = a; self.q = []; self.done = -1
    def issue(self, tag): self.q.append(tag)
    def wait(self, tag):
        i = max(k for k, t in enumerate(self.q) if t == tag)
        if i <= self.done: return
        self.done = i
        self.a(f"s_waitcnt vmcnt({len(self.q) - 1 - i})")

def wave_max_u32(a, v, t):
    for mod in ("quad_perm:[1,0,3,2]", "quad_perm:[2,3,0,1]", "row_half_mirror", "row_mirror"):
        a(f"v_max_u32_dpp v{v}, v{v}, v{v} {mod} row_mask:0xf bank_mask:0xf")
    for w in (16, 32):
        a(f"""
        v_mov_b32 v{t}, v{v}
        v_permlane{w}_swap_b32 v{t}, v{v}
        v_max_u32 v{v}, v{v}, v{t}
        """)

LOG2E = 1.4426950408889634
def sigmoid(a, d, x, t):
    a(f"""
    v_mul_f32 v{t}, {f2u(-LOG2E):#x}, v{x}
    v_exp_f32 v{t}, v{t}
    v_add_f32 v{t}, 1.0, v{t}
    v_rcp_f32 v{d}, v{t}
    """)

def gen_p2(a, dbg='', prio=True):
    SC = ' sc1'
    OPT = dict(x.split('=') for x in dbg.split(',') if '=' in x)
    FLS = int(OPT.get('fls', 4))
    PFS = int(OPT.get('pfs', 0)); PFP = int(OPT.get('pfp', 1))
    TAILST = 'tailst' in dbg
    FS = 'ffnst' in dbg
    KREP = 'nokrep' not in dbg; GREP = 'nogrep' not in dbg
    def st(i, tail):
        if 'p1st' in dbg:
            if tail == 4: stamp(a, i)
        elif 'r0st' in dbg:
            if tail == 3: stamp(a, i)
        elif FS:
            if tail == 2: stamp(a, i)
        elif tail in (True, False) and bool(tail) == TAILST: stamp(a, i)
    K = 16; V = 48; X = [112, 128]; O = 144; CM = 160; SP = 176; Q = 184; OA = 188; WF = 204; BF = 236; S1 = 240
    vQA, vPW, vPR, vPL, vOW, vOR, vLM, vWL, vKL, vVL = 1, 2, 3, 4, 5, 6, 7, 8, 9, 10
    t0, t1, t2, t3, t4 = 11, 12, 13, 14, 15
    vFW, vFR, vFV, vWLs = 9, 13, 14, 15
    vFS, vPA, vPD = SP + 4, SP + 5, SP + 6
    a.label("K12_setup")
    a(f"""
    s_load_dwordx2 s[48:49], s[0:1], 96
    s_load_dwordx2 s[40:41], s[0:1], 0
    s_load_dwordx8 s[60:67], s[0:1], 48
    s_load_dwordx2 s[46:47], s[0:1], 80
    s_waitcnt lgkmcnt(0)
    """)
    a.label("K12_setup1")
    a(f"""
    s_and_b32 s3, s2, 7
    s_lshr_b32 s4, s2, 3
    s_lshl_b32 s7, s3, 8
    s_lshl_b32 s5, s4, 3
    s_add_u32 s7, s7, s5           ; T0
    s_and_b32 s28, s4, 7           ; rot
    v_lshrrev_b32 v{t0}, 6, v0
    v_and_b32 v0, 63, v0
    v_readfirstlane_b32 s6, v{t0}
    s_mov_b32 s30, 0
    v_lshlrev_b32 v{vWL}, 4, v0
    s_mul_i32 s3, s6, {8*TS}
    s_add_u32 s3, s3, {WS_KV:#x}
    """)
    for t in range(8):
        a(f"""
        s_add_u32 s4, s28, {t}
        s_and_b32 s4, s4, 7
        s_mul_i32 s4, s4, {TS}
        s_add_u32 s{50+t}, s3, s4
        """)
    a.label("K2_restart")
    a(f"""
    s_add_u32 s44, s6, 4
    s_and_b32 s44, s44, 7
    s_add_u32 s3, s44, s28
    s_and_b32 s3, s3, 7
    s_andn2_b32 s45, s2, 0x38
    s_lshl_b32 s4, s3, 3
    s_or_b32 s45, s45, s4
    s_lshl_b32 s45, s45, 6
    s_lshr_b32 s4, s28, 1
    s_lshl_b32 s4, s4, 2
    s_add_u32 s45, s45, s4
    s_add_u32 s45, s45, {WS_FQ:#x}
    s_add_u32 s3, s3, s7
    s_lshl_b32 s32, s3, 10
    v_and_b32 v{t1}, 31, v0
    v_lshrrev_b32 v{t2}, 5, v0
    v_mul_u32_u24 v{vVL}, 272, v{t2}
    v_lshl_add_u32 v{vVL}, v{t1}, 4, v{vVL}
    v_cmp_lt_u32 vcc, 16, v{t1}
    v_bfrev_b32 v{t0}, 1
    v_add_u32 v{vQA}, {L_Q:#x}, v{vWL}
    v_cndmask_b32 v{vVL}, v{vVL}, v{t0}, vcc
    """)
    srd(a, 8, 48, 49, WS_SIZE)
    vm = VM(a)
    def ldK(t):
        a(f"buffer_load_dwordx4 v[{K+4*t}:{K+4*t+3}], v{vWL}, s[8:11], s{50+t} offen{SC}"); vm.issue(f"K{t}")
    def ldV(t):
        for h in range(2):
            a(f"buffer_load_dwordx4 v[{V+8*t+4*h}:{V+8*t+4*h+3}], v{vVL}, s[8:11], s{50+t} offen offset:{1024 + 544*h}{SC}"); vm.issue(f"V{t}{h}")
    a(f"""
    s_lshl_b32 s3, s44, 10
    v_add_u32 v{t4}, s3, v{vQA}
    """)
    def late_setup(part):
        u0, u1, u2, u3 = S1, S1 + 1, S1 + 2, S1 + 3
        if part == 0:
            srd(a, 16, 40, 41, 0x200000)
            srd(a, 20, 46, 47, 0x200000)
            srd(a, 24, 60, 61, 0x400)
            a(f"""
            v_and_b32 v{u1}, 31, v0
            v_lshrrev_b32 v{u2}, 5, v0
            v_mul_u32_u24 v{vPW}, 80, v{u1}
            s_mul_i32 s3, s6, 2560
            v_add_u32 v{vPW}, s3, v{vPW}
            v_lshl_add_u32 v{SP+3}, v{u2}, 2, v{vPW}
            v_lshl_add_u32 v{vPW}, v{u2}, 4, v{vPW}
            v_lshrrev_b32 v{u0}, 4, v0     ; g
            s_lshr_b32 s3, s6, 1
            s_lshl_b32 s3, s3, 3
            s_and_b32 s4, s6, 1
            s_lshl_b32 s4, s4, 1
            s_add_u32 s3, s3, s4
            v_and_b32 v{u1}, 1, v{u0}
            v_lshl_add_u32 v{u1}, v{u1}, 2, v{u2}
            v_add_u32 v{u1}, s3, v{u1}     ; n = 8*(w>>1) + 2*(w&1) + (g>>1) + 4*(g&1)
            v_mul_u32_u24 v{vPL}, 80, v{u1}
            v_and_b32 v{u2}, 15, v0        ; d
            v_lshl_add_u32 v{vPR}, v{u2}, 2, v{vPL}
            v_and_b32 v{u3}, 7, v0
            v_mul_u32_u24 v{u3}, 2560, v{u3}
            v_add3_u32 v{vPL}, v{vPL}, v{u3}, 64
            s_lshl_b32 s31, s28, 16
            s_lshl_b32 s33, s6, 13
            s_add_u32 s33, s33, {WS_WOF:#x}
            """)
        elif part == 1:
            a(f"""
            v_and_b32 v{u3}, 7, v{u1}      ; token
            v_lshrrev_b32 v{u1}, 3, v{u1}  ; head_local
            v_mul_u32_u24 v{vOW}, 144, v{u3}
            v_lshl_add_u32 v{vOW}, v{u1}, 5, v{vOW}
            v_lshl_add_u32 v{vOW}, v{u2}, 1, v{vOW}
            v_add_u32 v{vOW}, {L_OB:#x}, v{vOW}
            v_and_b32 v{u3}, 7, v0
            v_mul_u32_u24 v{vOR}, 144, v{u3}
            v_lshl_add_u32 v{vOR}, v{u0}, 4, v{vOR}
            v_add_u32 v{vOR}, {L_OB:#x}, v{vOR}
            v_mov_b32 v{vLM}, 0
            v_lshlrev_b32 v{vFR}, 2, v{u3}
            v_add_u32 v{vFR}, {L_FLG:#x}, v{vFR}
            """)
        else:
            a(f"v_pk_mov_b32 v[{SP}:{SP+1}], 0, 0")
            a(f"v_mov_b32 v{SP+2}, 0xdddddddd")
    def rd_qcm():
        a(f"ds_read_b128 v[{Q}:{Q+3}], v{vQA}")
        for k in range(4):
            a(f"ds_read_b128 v[{CM+4*k}:{CM+4*k+3}], v{vQA} offset:{L_MREF - L_Q}")
        a(f"v_add_u32 v{vQA}, 1024, v{vQA}")
    mf = "v_mfma_f32_32x32x16_bf16"
    def M1(kt, xb):
        if 'nom1' in dbg: a("s_nop 1"); return
        a(f"{mf} v[{X[xb]}:{X[xb]+15}], v[{K+4*kt}:{K+4*kt+3}], v[{Q}:{Q+3}], v[{CM}:{CM+15}]")
    def E(xb, lo, hi):
        for r in range(lo, hi):
            if 'expnop' in dbg:
                a("v_nop"); a("v_nop")
                continue
            if 'noexp' in dbg:
                a(f"v_cvt_pk_bf16_f32 v{X[xb]+r}, 0, v{X[xb]+r}"); a(f"v_cvt_pk_bf16_f32 v{X[xb]+r}, 0, v{X[xb]+r}")
                continue
            a(f"v_exp_f32 v{X[xb]+r}, v{X[xb]+r}")
    def C2(h, xb):
        for k in range(4):
            a(f"v_cvt_pk_bf16_f32 v{SP+4*h+k}, v{X[xb]+8*h+2*k}, v{X[xb]+8*h+2*k+1}")
    def M3(h, kt):
        xb = kt & 1
        if 'nom3' in dbg: a("s_nop 2"); return
        a(f"v_smfmac_f32_32x32x32_bf16 v[{O}:{O+15}], v[{V+8*kt+4*h}:{V+8*kt+4*h+3}], v[{X[xb]+8*h}:{X[xb]+8*h+7}], v{SP+2}")
    def Ozero():
        a(f"v_mfma_f32_32x32x8bf16_1k v[{O}:{O+15}], v[{SP}:{SP+1}], v[{SP}:{SP+1}], 0")
    def part_write():
        a(f"""
        ds_write_b128 v{vPW}, v[{O}:{O+3}]
        ds_write_b128 v{vPW}, v[{O+4}:{O+7}] offset:32
        ds_write_b32 v{SP+3}, v{O+8} offset:64
        """)
    def s1_read():
        a(f"ds_read_b32 v{S1+8}, v{vPL}")
        for k in range(4):
            a(f"ds_read2st64_b32 v[{S1+2*k}:{S1+2*k+1}], v{vPR} offset0:{20*k} offset1:{20*k+10}")
    def s1_calc():
        dp = lambda mod: f"v_add_f32_dpp v{S1+8}, v{S1+8}, v{S1+8} {mod} row_mask:0xf bank_mask:0xf"
        a(f"""
        {dp("quad_perm:[1,0,3,2]")}
        v_pk_add_f32 v[{S1}:{S1+1}], v[{S1}:{S1+1}], v[{S1+2}:{S1+3}]
        v_pk_add_f32 v[{S1+4}:{S1+5}], v[{S1+4}:{S1+5}], v[{S1+6}:{S1+7}]
        {dp("quad_perm:[2,3,0,1]")}
        v_pk_add_f32 v[{S1}:{S1+1}], v[{S1}:{S1+1}], v[{S1+4}:{S1+5}]
        v_add_f32 v{S1}, v{S1}, v{S1+1}
        {dp("row_half_mirror")}
        v_rcp_f32 v{S1+1}, v{S1+8}
        v_maximum3_f32 v{vLM}, v{vLM}, v{S1+8}, abs(v{S1})
        v_mul_f32 v{S1}, v{S1}, v{S1+1}
        v_cvt_pk_bf16_f32 v{S1}, v{S1}, v{S1}
        ds_write_b16 v{vOW}, v{S1}
        """)
    def s2_read():
        for s in range(2):
            a(f"ds_read_b128 v[{BF+4*s}:{BF+4*s+3}], v{vOR} offset:{64*s}")
    def s2_mma(lo, hi):
        for u in range(lo, hi):
            s, t = u >> 2, u & 3
            a(f"v_mfma_f32_16x16x32_bf16 v[{OA+4*t}:{OA+4*t+3}], v[{WF+4*u}:{WF+4*u+3}], v[{BF+4*s}:{BF+4*s+3}], v[{OA+4*t}:{OA+4*t+3}]")
    def wf_load(lo, hi):
        if lo == 0:
            a("s_add_u32 s34, s33, s31")
            a("s_add_u32 s35, s34, 4096")
            a("s_add_u32 s31, s31, 0x10000")
            a("s_and_b32 s31, s31, 0x7ffff")
        for u in range(lo, hi):
            a(f"buffer_load_dwordx4 v[{WF+4*u}:{WF+4*u+3}], v{vWL}, s[8:11], s{34 + (u >> 2)} offen offset:{1024*(u&3)}{SC}")
            vm.issue("WF")
    def ffn_prefetch():
        a(f"""
        s_mov_b32 s39, s6
        s_cmp_eq_u32 s39, 1
        s_cselect_b64 s[36:37], s[64:65], s[62:63]
        s_cmp_eq_u32 s39, 2
        s_cselect_b64 s[36:37], s[66:67], s[36:37]
        """)
        srd(a, 12, 36, 37, 512 * 1792 * 2)
        a(f"""
        s_and_b32 s3, s2, 7
        s_lshr_b32 s4, s2, 3
        s_mul_i32 s5, s4, {16*3584}
        s_mul_i32 s36, s3, 448
        s_and_b32 s36, s36, 0xffffff80
        s_add_u32 s5, s5, s36
        s_lshl_b32 s36, s3, 7
        s_mul_i32 s37, s4, {56*1024}
        s_add_u32 s36, s36, s37
        v_lshrrev_b32 v{t0}, 2, v0
        v_mul_u32_u24 v{t0}, 3584, v{t0}
        v_and_b32 v{t1}, 3, v0
        v_lshl_add_u32 v{t0}, v{t1}, 7, v{t0}
        v_min_u32 v{t1}, 55, v0
        v_lshlrev_b32 v{t1}, 10, v{t1}
        s_cmp_eq_u32 s39, 2
        s_cselect_b32 s38, s36, s5
        s_cselect_b64 vcc, -1, 0
        v_cndmask_b32 v{vPA}, v{t0}, v{t1}, vcc
        s_lshl_b32 s39, s6, {PFS}
        s_add_u32 s39, s39, 1
        s_cmp_gt_u32 s6, 2
        s_cselect_b32 s39, 99, s39
        """)
    def ffn_setup():
        a(f"""
        s_and_b32 s3, s2, 7
        s_lshr_b32 s4, s2, 3
        s_and_b32 s5, s6, 1
        s_cmp_eq_u32 s5, 0
        s_cselect_b64 s[36:37], s[62:63], s[64:65]
        s_cmp_lt_u32 s2, 112
        s_cselect_b64 s[36:37], s[36:37], s[66:67]
        """)
        srd(a, 68, 36, 37, 512 * 1792 * 2)
        a(f"""
        s_mul_i32 s76, s3, 14
        s_add_u32 s76, s76, s4           ; fs
        s_lshl_b32 s77, s3, 2
        s_add_u32 s77, s77, s4
        s_sub_u32 s77, s77, 14           ; cb
        s_lshr_b32 s5, s6, 1
        s_mul_i32 s5, s5, {128*3584}
        s_lshl_b32 s36, s76, 5
        s_add_u32 s5, s5, s36
        s_mul_i32 s36, s6, {224*1024}
        s_lshl_b32 s37, s77, 5
        s_add_u32 s36, s36, s37
        s_cmp_lt_u32 s2, 112
        s_cselect_b32 s72, s5, s36
        s_movk_i32 s73, 1024
        s_cselect_b32 s73, 3584, s73
        s_cselect_b32 s75, 4, 7
        s_cmp_lt_u32 s2, 144
        s_cselect_b32 s75, s75, 0
        s_mul_i32 s74, s6, 7168
        s_add_u32 s74, s74, {L_FW:#x}
        v_lshrrev_b32 v{vFS}, 1, v0
        v_mul_lo_u32 v{vFS}, v{vFS}, s73
        v_and_b32 v{t1}, 1, v0
        v_lshl_add_u32 v{vFS}, v{t1}, 4, v{vFS}
        s_lshl_b32 s73, s73, 5
        s_mov_b32 s78, s74
        """)
    def ffn_stage():
        a(f"""
        s_cmp_lt_u32 s29, 4
        s_cbranch_scc1 K2_nost
        """)
        for e in range(2):
            a(f"""
            s_cmp_eq_u32 s75, 0
            s_cbranch_scc1 K2_nost
            s_mov_b32 m0, s78
            s_sub_u32 s75, s75, 1
            buffer_load_dwordx4 v{vFS}, s[68:71], s72 offen lds
            s_add_u32 s78, s78, 1024
            s_add_u32 s72, s72, s73
            """)
        a.label("K2_nost")
    def ffn_issue():
        a(f"""
        s_cmp_lg_u32 s29, s39
        s_cbranch_scc1 K2_nopf
        buffer_load_dword v{vPD}, v{vPA}, s[12:15], s38 offen
        """)
        a.label("K2_nopf")
    def setprio(p):
        if prio: a(f"s_setprio {p}")
    def mref_mma(q, d):
        a(f"{mf} v[{d}:{d+15}], v[{K}:{K+3}], v[{q}:{q+3}], 0")
        a(f"{mf} v[{d+16}:{d+31}], v[{K+4}:{K+7}], v[{q}:{q+3}], 0")
    def mref_max(S):
        a(f"v_max3_f32 v{t0}, v{S}, v{S+1}, v{S+2}")
        for r in range(3, 31, 2):
            a(f"v_max3_f32 v{t0}, v{t0}, v{S+r}, v{S+r+1}")
        a(f"""
        v_max_f32 v{t0}, v{t0}, v{S+31}
        v_mov_b32 v{t1}, v{t0}
        v_permlane32_swap_b32 v{t1}, v{t0}
        v_max_f32 v{t0}, v{t0}, v{t1}
        """)
        for r in range(4): a(f"v_sub_f32 v{S+r}, {f2u(-OFFS):#x}, v{t0}")
        a(f"ds_write_b128 v{t4}, v[{S}:{S+3}] offset:{L_MREF - L_Q}")
    def kv_first():
        ldK(0); ldK(1); ldV(0); ldK(2); ldV(1)
    for p in range(3): late_setup(p)
    ffn_prefetch(); ffn_setup()
    a(f"""
    s_lshl_b32 s3, s6, 2
    s_add_u32 s3, s3, {L_FLG:#x}
    v_mov_b32 v{vFW}, s3
    s_movk_i32 s59, {L_Q + 2048:#x}
    s_lshl_b32 s3, s30, 2
    s_or_b32 s3, s3, s6
    s_cmp_lt_u32 s3, 4
    s_cbranch_scc1 K1_comp
    """)
    a.label("K12_join")
    for r in range(0, 16, 2):
        a(f"v_pk_mov_b32 v[{OA+r}:{OA+r+1}], 0, 0")
    def fq_store():
        a(f"""
        v_mov_b32 v{t0}, s58
        s_lshl_b32 s3, s2, 6
        s_lshl_b32 s4, s6, 2
        s_add_u32 s3, s3, s4
        s_add_u32 s3, s3, {WS_FQ:#x}
        s_waitcnt vmcnt(7)
        s_mov_b64 exec, 1
        buffer_store_dword v{t0}, v{SP}, s[8:11], s3 offen sc1
        s_mov_b64 exec, -1
        """)
        vm.issue("FQS")
    a(f"""
    ds_write2_b32 v{vFW}, v{SP}, v{SP} offset0:0 offset1:8
    s_cmp_lg_u32 s30, 0
    s_cbranch_scc1 K2_safe
    s_cmp_eq_u32 s6, 4
    s_cbranch_scc1 K2_poller
    s_waitcnt lgkmcnt(0)
    s_barrier
    """)
    st(1, False); st(5, 4)
    if 'amp' in dbg: a('s_memrealtime s[88:89]'); a('s_waitcnt lgkmcnt(0)')
    kv_first()
    fq_store()
    a("s_branch K2_go")
    a.label("K2_poller")
    PA, PB = X[0], X[0] + 8
    a(f"""
    v_lshlrev_b32 v{t1}, {FLS}, v0
    s_and_b32 s3, s2, 7
    s_lshl_b32 s3, s3, 14
    s_add_u32 s3, s3, {WS_FL:#x}
    s_add_u32 s4, s3, {64 << FLS}
    s_add_u32 s5, s3, {128 << FLS}
    s_add_u32 s34, s3, {192 << FLS}
    s_mov_b32 s36, 0
    """)
    def fissue(b):
        for k, sr in enumerate(("s3", "s4", "s5", "s34")):
            a(f"buffer_load_dword v{b+k}, v{t1}, s[8:11], {sr} offen sc1")
    def fchk(b):
        for r in range(4): a(f"v_xor_b32 v{b+r}, s58, v{b+r}")
        a(f"""
        v_or3_b32 v{b}, v{b}, v{b+1}, v{b+2}
        v_or_b32 v{b}, v{b}, v{b+3}
        v_cmp_ne_u32 vcc, 0, v{b}
        s_cbranch_vccz K2_sync0
        """)
    if int(OPT.get('fd', 0)): a(f"s_sleep {OPT.get('fd', 0)}")
    if 'fnp' in dbg:
        a.label("K2_fl")
        fissue(PA); a("s_waitcnt vmcnt(0)"); fchk(PA)
        a(f"s_sleep {OPT.get('fsl', 2)}")
    else:
        fissue(PA)
        a("s_sleep 3")
        a.label("K2_fl")
        fissue(PB); a("s_waitcnt vmcnt(4)"); fchk(PA)
        fissue(PA); a("s_waitcnt vmcnt(4)"); fchk(PB)
    a(f"""
    s_add_u32 s36, s36, 1
    s_cmp_lt_u32 s36, 0x40000
    s_cbranch_scc1 K2_fl
    """)
    a.label("K2_sync0")
    st(4, 4)
    a(f"""
    s_cmp_lg_u32 s2, 0
    s_cbranch_scc1 K2_sync1
    v_mov_b32 v{t0}, s58
    s_mov_b32 s3, {WS_EP:#x}
    s_mov_b64 exec, 1
    buffer_store_dword v{t0}, v{SP}, s[8:11], s3 offen sc1
    s_mov_b64 exec, -1
    """)
    a.label("K2_sync1")
    vm.q = []; vm.done = -1
    ldK(0); ldK(1)
    a("s_waitcnt lgkmcnt(0)")
    a("s_barrier")
    st(1, False); st(5, 4)
    if 'amp' in dbg: a('s_memrealtime s[88:89]'); a('s_waitcnt lgkmcnt(0)')
    a(f"ds_read_b128 v[{Q}:{Q+3}], v{vQA}")
    ldV(0); ldK(2); ldV(1)
    a("s_waitcnt vmcnt(5) lgkmcnt(0)")
    mref_mma(Q, X[0]); mref_max(X[0])
    fq_store()
    a("s_branch K2_go")
    a.label("K2_safe")
    S = X[0]
    a(f"""
    v_and_b32 v{t0}, 31, v0
    v_lshlrev_b32 v{S1+4}, 2, v{t0}
    v_add_u32 v{S1+4}, {L_MX:#x}, v{S1+4}
    s_lshl_b32 s3, s44, 7
    v_add_u32 v{S1+5}, s3, v{S1+4}
    v_mov_b32 v{t0}, 0xff800000
    ds_write_b32 v{S1+5}, v{t0}
    s_waitcnt vmcnt(0) lgkmcnt(0)
    s_barrier
    v_mov_b32 v{t1}, v{vQA}
    s_mov_b32 s29, 0
    """)
    a.label("K2_safe_loop")
    a(f"""
    ds_read_b128 v[{BF}:{BF+3}], v{t1}
    v_mov_b32 v{t0}, 0xff800000
    s_waitcnt lgkmcnt(0)
    """)
    for t in range(8):
        a(f"v_mfma_f32_32x32x16_bf16 v[{S}:{S+15}], v[{K+4*t}:{K+4*t+3}], v[{BF}:{BF+3}], 0")
        for r in range(0, 16, 2):
            a(f"v_max3_f32 v{t0}, v{t0}, v{S+r}, v{S+r+1}")
    a(f"""
    ds_max_f32 v{S1+4}, v{t0}
    v_add_u32 v{t1}, 1024, v{t1}
    v_add_u32 v{S1+4}, 128, v{S1+4}
    s_add_u32 s29, s29, 1
    s_cmp_lt_u32 s29, 8
    s_cbranch_scc1 K2_safe_loop
    s_waitcnt lgkmcnt(0)
    s_barrier
    ds_read_b32 v{t0}, v{S1+5}
    s_waitcnt lgkmcnt(0)
    """)
    for r in range(4): a(f"v_sub_f32 v{BF+r}, 0, v{t0}")
    a(f"ds_write_b128 v{t4}, v[{BF}:{BF+3}] offset:{L_MREF - L_Q}")
    a.label("K2_go")
    a("s_waitcnt lgkmcnt(0)")
    a("s_barrier")
    st(2, False)
    rd_qcm()
    vm.wait("K0")
    a("s_waitcnt lgkmcnt(0)")
    M1(0, 0)
    a("s_mov_b32 s29, 1")
    setprio(3)
    ldK(3); ldV(2)
    st(3, False)
    if 'leak' in dbg or 'amp' in dbg: a('s_memrealtime s[94:95]'); a('s_waitcnt lgkmcnt(0)')
    def tile(i, hook):
        xb = i & 1; xn = xb ^ 1
        hook(i, 'a')
        E(xb, 0, 2)
        hook(i, 'm3b')
        E(xb, 2, 5)
        hook(i, 'm1')
        M1((i + 1) & 7, xn)
        hook(i, 0)
        if i == 0:
            E(xb, 5, 12)
            hook(i, 1)
            Ozero()
            E(xb, 12, 16)
            M3(0, i)
            hook(i, 2)
        else:
            E(xb, 5, 8)
            hook(i, 'e1')
            E(xb, 8, 10)
            hook(i, 1)
            M3(0, i)
            hook(i, 2)
            E(xb, 10, 13)
            hook(i, 'e2')
            E(xb, 13, 15)
            hook(i, 'e3')
            E(xb, 15, 16)
    def hook0(i, pos):
        if pos == 'a' and i in (0, 2, 4, 6): st(1 + i // 2, 3)
        if pos == 'a' and i in (3, 5, 7): setprio({3: 2, 5: 1, 7: 1}[i])
        if pos == 'm3b' and i > 0:
            vm.wait(f"V{i-1}1"); M3(1, i - 1)
        if pos == 'm1':
            if i < 7: vm.wait(f"K{i+1}")
            else: a("s_waitcnt lgkmcnt(0)")
        if pos == 0:
            if i + 4 <= 7: ldK(i + 4)
            if i + 3 <= 7: ldV(i + 3)
            if i == 6: wf_load(0, 4)
            if i == 7: wf_load(4, 8)
        QT = int(OPT.get('qt', 1))
        if pos == 'e1' and i == QT:
            a(f"buffer_load_dword v{t0}, v{SP}, s[8:11], s45 offen sc1"); vm.issue("FQ")
        if pos == 'e1' and i == QT + 1:
            vm.wait("FQ")
            a(f"v_cmp_ne_u32 vcc, s58, v{t0}")
            a("s_cbranch_vccnz K2_qspin")
            a.label("K2_qback")
            a(f"buffer_load_dwordx4 v[{BF}:{BF+3}], v{vWL}, s[8:11], s32 offen sc1"); vm.issue("Q")
        if pos == 'e2' and i == 4:
            vm.wait("Q")
            a(f"ds_write_b128 v{t4}, v[{BF}:{BF+3}]")
            mref_mma(BF, WF)
        if pos == 'e1' and i == 5:
            a("s_cmp_lg_u32 s30, 0")
            a("s_cbranch_scc1 K2_keepm")
            mref_max(WF)
            a.label("K2_keepm")
        if pos == 1:
            if i == 6:
                a("s_waitcnt lgkmcnt(0)"); a("s_barrier"); rd_qcm()
            vm.wait(f"V{i}0")
        if pos == 2 and i == 7:
            vm.wait("V71")
    for i in range(8): tile(i, hook0)
    st(5, 3)
    a.raw(".p2align 3")
    a.label("K2_round")
    spins = []
    def poll(off):
        a(f"ds_read_b32 v{vFV}, v{vFR} offset:{off}")
    def check(off):
        k = len(spins); spins.append(off)
        a(f"""
        s_waitcnt lgkmcnt(0)
        v_cmp_gt_u32 vcc, s59, v{vFV}
        s_cbranch_vccnz K2_spin{k}
        """)
        a.label(f"K2_back{k}")
    PR = dict(x.split('=') for x in dbg.split(',') if '=' in x).get('pr', 'c')
    def hook(i, pos):
        if pos == 'm3b': M3(1, (i - 1) & 7)
        if pos == 'm1' and i == 7: a("s_waitcnt lgkmcnt(0)")
        if pos == 1 and i == 6: rd_qcm()
        if 'nohook' in dbg: return
        if 'bar' in dbg.split(','):
            if pos == 'a' and i in (0, 6, 7): setprio({6: 2, 7: 1, 0: 0}[i])
            if i == 0 and pos == 1: part_write()
            if i == 1 and pos == 0:
                a("s_waitcnt lgkmcnt(0)"); a("s_barrier"); setprio(2); s1_read()
            if i == 2 and pos == 0:
                a("s_waitcnt lgkmcnt(0)"); s1_calc(); setprio(1)
            if i == 3 and pos == 0: setprio(0)
            if i == 4 and pos == 0:
                a("s_waitcnt vmcnt(0) lgkmcnt(0)"); a("s_barrier"); setprio(3); s2_read()
            seq = [(4, 'e3'), (5, 'e1'), (5, 'e2'), (5, 'e3'), (6, 'e1'), (6, 'e2'), (6, 'e3'), (7, 'e1')]
        else:
            ca = int(OPT.get('ca', 2)); cb = int(OPT.get('cb', 5)); PT = OPT.get('pt', '10110321')
            slots = [(t, p) for t in range(1, 8) for p in (('a', 'e1', 'e2', 'e3') if cb >= 6 else ('e1', 'e2', 'e3'))]
            if i == 0 and pos == 1:
                part_write(); a(f"ds_write_b32 v{vFW}, v{vQA}")
            if i == ca and pos == 0: poll(0)
            if i == ca and pos == 2: check(0); s1_read()
            if i == ca + 1 and pos == 0:
                a("s_waitcnt lgkmcnt(0)"); s1_calc(); a(f"ds_write_b32 v{vFW}, v{vQA} offset:32")
            if i == cb - 1 and pos == 2: poll(32)
            if i == cb and pos == 'm1':
                check(32); s2_read(); a("s_waitcnt vmcnt(0)")
            if len(PT) == 8: PT = "".join(ch * 2 for ch in PT)
            for hpos, k in (('a', 2 * i), (2, 2 * i + 1)):
                if pos == hpos and PT[k] != PT[k - 1]: setprio(int(PT[k]))
            av = [x for x in slots if x > (cb, 'e1')]
            if OPT.get('sp', '0') == '1' and len(av) >= 12: av = [x for x in av if x[1] != 'e3']
            seq = av[:8]
            while len(seq) < 8: seq = sorted(seq + [seq[len(seq) % len(av)]])
        for u in [k for k, x in enumerate(seq) if x == (i, pos)]:
            if u == 0: a("s_waitcnt lgkmcnt(0)")
            s2_mma(u, u + 1)
            if 'nowf' not in dbg: wf_load(u, u + 1)
            if u == 7 and 'nopf' not in dbg and PFP == 1: ffn_issue(); ffn_stage()
    for i in range(8): tile(i, hook)
    if 'rndst' in dbg:
        a(f"""
        s_memtime s[82:83]
        s_memrealtime s[100:101]
        s_waitcnt lgkmcnt(0)
        s_lshl_b32 s84, s2, 3
        s_add_u32 s84, s84, s6
        s_lshl_b32 s84, s84, 3
        s_add_u32 s84, s84, s29
        s_lshl_b32 s84, s84, 3
        s_add_u32 s84, s84, {WS_STAMP + 0x40000:#x}
        s_mov_b64 exec, 1
        v_mov_b32 v{S1+8}, s82
        v_mov_b32 v{S1+9}, s100
        v_mov_b32 v{S1+10}, 0
        buffer_store_dwordx2 v[{S1+8}:{S1+9}], v{S1+10}, s[8:11], s84 offen
        s_mov_b64 exec, -1
        """)
    a(f"""
    s_addk_i32 s59, 1024
    s_add_u32 s29, s29, 1
    s_cmp_lt_u32 s29, 8
    s_cbranch_scc1 K2_round
    """)
    st(4, False); st(0, True)
    if 'amp' in dbg: a('s_memrealtime s[98:99]'); a('s_waitcnt lgkmcnt(0)')
    M3(1, 7)
    XR = CM; WR = CM + 4; HV = X[0]; HN = X[0] + 8; PK = X[1]; ST = X[1] + 8
    a(f"""
    s_add_u32 s3, s7, s6
    s_lshl_b32 s4, s3, 10
    buffer_load_dwordx4 v[{XR}:{XR+3}], v{vWL}, s[16:19], s4 offen
    buffer_load_dwordx4 v[{WR}:{WR+3}], v{vWL}, s[24:27], 0 offen
    v_and_b32 v{t0}, 7, v0
    v_mul_u32_u24 v{t0}, 1040, v{t0}
    v_lshrrev_b32 v{t1}, 4, v0
    v_lshl_add_u32 v{t0}, v{t1}, 3, v{t0}
    s_lshl_b32 s5, s6, 7
    s_add_u32 s5, s5, {L_HB:#x}
    v_add_u32 v{t0}, s5, v{t0}
    s_mul_i32 s5, s6, 1040
    s_add_u32 s5, s5, {L_HB:#x}
    v_add_u32 v{t1}, s5, v{vWL}
    s_lshl_b32 s35, s6, 2
    s_add_u32 s35, s35, {L_KEY:#x}
    v_mov_b32 v{t4}, s35
    v_and_b32 v{t3}, 7, v0
    v_lshlrev_b32 v{t3}, 2, v{t3}
    v_add_u32 v{t3}, {L_KEY:#x}, v{t3}
    """)
    part_write()
    a("s_waitcnt lgkmcnt(0)"); a("s_barrier"); st(1, True); s1_read()
    a("s_waitcnt lgkmcnt(0)"); s1_calc()
    a(f"""
    v_mov_b32 v{t2}, {f2u(2.0**124):#x}
    v_cmp_nlt_f32 vcc, v{vLM}, v{t2}
    s_cmp_lg_u64 vcc, 0
    s_cselect_b32 s5, 1, 0
    v_mov_b32 v{t2}, s5
    ds_write_b32 v{t4}, v{t2} offset:32
    """)
    a("s_waitcnt vmcnt(2) lgkmcnt(0)"); a("s_barrier"); st(2, True); s2_read()
    a(f"ds_read_b32 v{t2}, v{t3} offset:32")
    a("s_waitcnt lgkmcnt(1)"); s2_mma(0, 8)
    a(f"""
    s_waitcnt lgkmcnt(0)
    v_cmp_ne_u32 vcc, 0, v{t2}
    s_cmp_eq_u64 vcc, 0
    s_cbranch_scc1 K2_good
    s_cmp_lg_u32 s30, 0
    s_cbranch_scc1 K2_good
    s_mov_b32 s30, 1
    s_waitcnt vmcnt(0)
    s_setprio 0
    s_branch K2_restart
    """)
    a.label("K2_good")
    for t in range(4):
        a(f"v_cvt_pk_bf16_f32 v{S1+2*t}, v{OA+4*t}, v{OA+4*t+1}")
        a(f"v_cvt_pk_bf16_f32 v{S1+2*t+1}, v{OA+4*t+2}, v{OA+4*t+3}")
        a(f"ds_write_b64 v{t0}, v[{S1+2*t}:{S1+2*t+1}] offset:{32*t}")
    a("s_waitcnt vmcnt(0)")
    for r in range(4):
        a(f"v_lshlrev_b32 v{HV+2*r}, 16, v{XR+r}")
        a(f"v_and_b32 v{HV+2*r+1}, 0xffff0000, v{XR+r}")
        a(f"v_lshlrev_b32 v{WF+2*r}, 16, v{WR+r}")
        a(f"v_and_b32 v{WF+2*r+1}, 0xffff0000, v{WR+r}")
    a(f"""
    s_waitcnt lgkmcnt(0)
    s_barrier
    """)
    st(3, True)
    a(f"""
    ds_read_b128 v[{BF}:{BF+3}], v{t1}
    s_waitcnt lgkmcnt(0)
    """)
    for r in range(4):
        a(f"v_lshlrev_b32 v{HN+2*r}, 16, v{BF+r}")
        a(f"v_and_b32 v{HN+2*r+1}, 0xffff0000, v{BF+r}")
    P2 = lambda b, r: f"v[{b+r}:{b+r+1}]"
    for r in range(0, 8, 2): a(f"v_pk_add_f32 {P2(HV,r)}, {P2(HV,r)}, {P2(HN,r)}")
    for r in range(8): a(f"v_cvt_pk_bf16_f32 v{HV+r}, 0, v{HV+r}")
    SA, SB = S1, S1 + 2
    a(f"v_pk_add_f32 {P2(SA,0)}, {P2(HV,0)}, {P2(HV,2)}")
    a(f"v_pk_mul_f32 {P2(SB,0)}, {P2(HV,0)}, {P2(HV,0)}")
    a(f"v_pk_add_f32 {P2(SA,4)}, {P2(HV,4)}, {P2(HV,6)}")
    a(f"v_pk_fma_f32 {P2(SB,0)}, {P2(HV,2)}, {P2(HV,2)}, {P2(SB,0)}")
    a(f"v_pk_add_f32 {P2(SA,0)}, {P2(SA,0)}, {P2(SA,4)}")
    a(f"v_pk_fma_f32 {P2(SB,0)}, {P2(HV,4)}, {P2(HV,4)}, {P2(SB,0)}")
    a(f"v_add_f32 v{t0}, v{SA}, v{SA+1}")
    a(f"v_pk_fma_f32 {P2(SB,0)}, {P2(HV,6)}, {P2(HV,6)}, {P2(SB,0)}")
    a(f"v_add_f32 v{t2}, v{SB}, v{SB+1}")
    wave_sum(a, [t0, t2], [ST, ST + 1])
    ln_scalars(a, t0, t2, ST, ST + 2, ST + 1, ST + 3)
    st(4, True)
    for r in range(0, 8, 2): a(f"v_pk_add_f32 {P2(HN,r)}, {P2(HV,r)}, {P2(ST,0)} op_sel_hi:[1,0] neg_lo:[0,1] neg_hi:[0,1]")
    for r in range(8): a(f"v_cvt_pk_bf16_f32 v{HN+r}, 0, v{HN+r}")
    for r in range(0, 8, 2): a(f"v_pk_mul_f32 {P2(HN,r)}, {P2(HN,r)}, {P2(ST,2)} op_sel_hi:[1,0]")
    for r in range(8): a(f"v_cvt_pk_bf16_f32 v{HN+r}, 0, v{HN+r}")
    a(f"v_pk_mul_f32 {P2(SA,0)}, {P2(HN,0)}, {P2(WF,0)}")
    for r in range(2, 8, 2): a(f"v_pk_fma_f32 {P2(SA,0)}, {P2(HN,r)}, {P2(WF,r)}, {P2(SA,0)}")
    a(f"v_add_f32 v{t2}, v{SA}, v{SA+1}")
    fill = [f"v_pk_add_f32 {P2(WF+8,r)}, {P2(HV,r)}, {P2(HN,r)}" for r in range(0, 8, 2)]
    fill += [f"v_cvt_pk_bf16_f32 v{PK+4+r}, v{HV+2*r}, v{HV+2*r+1}" for r in range(4)]
    fill += [f"v_cvt_pk_bf16_f32 v{ST+4+r}, v{HN+2*r}, v{HN+2*r+1}" for r in range(4)]
    for mod in ("quad_perm:[1,0,3,2]", "quad_perm:[2,3,0,1]", "row_half_mirror", "row_mirror"):
        a(fill.pop(0)); a(fill.pop(0))
        a(f"v_add_f32_dpp v{t2}, v{t2}, v{t2} {mod} row_mask:0xf bank_mask:0xf")
    for w in (16, 32):
        a(f"v_mov_b32 v{t0}, v{t2}")
        a(fill.pop(0)); a(fill.pop(0))
        a(f"v_permlane{w}_swap_b32 v{t0}, v{t2}")
        a(f"v_add_f32 v{t2}, v{t2}, v{t0}")
    if 'leak' in dbg:
        a(f"""
        s_cmp_lg_u32 s3, 0
        s_cbranch_scc1 K2_leak
        s_memrealtime s[92:93]
        v_mov_b32 v{S1+4}, 0
        s_mov_b32 s5, {WS_SEL:#x}
        buffer_load_dwordx4 v[{S1}:{S1+3}], v{S1+4}, s[8:11], s5 offen
        s_waitcnt vmcnt(0) lgkmcnt(0)
        s_mov_b64 exec, 1
        v_add_f32 v{WF+8}, {f2u(64.0):#x}, v{WF+8}
        v_sub_u32 v{WF+9}, v{S1+2}, v{S1}
        v_sub_u32 v{WF+10}, v{S1+1}, v{S1}
        v_sub_u32 v{WF+11}, s90, v{S1}
        v_sub_u32 v{WF+12}, s94, v{S1}
        v_sub_u32 v{WF+13}, s92, v{S1}
        """)
        for r in range(9, 14):
            a(f"v_cvt_f32_u32 v{WF+r}, v{WF+r}")
            a(f"v_mul_f32 v{WF+r}, {f2u(0.005):#x}, v{WF+r}")
            a(f"v_min_f32 v{WF+r}, {f2u(20.0):#x}, v{WF+r}")
        a("s_mov_b64 exec, -1")
        a.label("K2_leak")
    a(f"""
    v_cvt_pk_bf16_f32 v{t2}, 0, v{t2}
    v_ashrrev_i32 v{t0}, 31, v{t2}
    v_or_b32 v{t0}, 0x80000000, v{t0}
    v_xor_b32 v{t2}, v{t2}, v{t0}
    v_and_b32 v{t2}, 0xffff0000, v{t2}
    s_sub_u32 s5, 0xffff, s3
    v_or_b32 v{t2}, s5, v{t2}      ; key
    ds_write_b32 v{t4}, v{t2}
    """)
    for r in range(4): a(f"v_cvt_pk_bf16_f32 v{PK+r}, v{WF+8+2*r}, v{WF+8+2*r+1}")
    a(f"""
    buffer_store_dwordx4 v[{PK}:{PK+3}], v{vWL}, s[20:23], s4 offen sc1
    """)
    a(f"""
    s_waitcnt lgkmcnt(0)
    s_barrier
    ds_read_b32 v{t1}, v{t3}
    s_waitcnt lgkmcnt(0)
    v_cmp_gt_u32 vcc, v{t1}, v{t2}
    v_cmp_eq_u32 s[36:37], v{t1}, v{t2}
    s_and_b32 s38, vcc_lo, 0xff
    s_bcnt1_i32_b32 s38, s38       ; rank
    """)
    st(5, False); st(5, True); st(0, 2); st(1, 2); st(2, 2); st(3, 2); st(4, 2); st(5, 2)
    a(f"""
    s_cmp_gt_u32 s38, 1
    s_cbranch_scc1 K2_pub0
    s_add_u32 s5, s4, {WS_H:#x}
    buffer_store_dwordx4 v[{PK+4}:{PK+7}], v{vWL}, s[8:11], s5 offen sc1
    s_add_u32 s5, s4, {WS_HN:#x}
    buffer_store_dwordx4 v[{ST+4}:{ST+7}], v{vWL}, s[8:11], s5 offen sc1
    v_cndmask_b32 v{ST+1}, v{t1}, 0, s[36:37]
    v_mov_b32 v{ST}, v{t2}
    s_lshl_b32 s5, s2, {G.KS_LOG}
    s_add_u32 s5, s5, {WS_KEY:#x}
    v_lshlrev_b32 v{t0}, 14, v0
    """)
    for mod in ("quad_perm:[1,0,3,2]", "quad_perm:[2,3,0,1]", "row_half_mirror"):
        a(f"v_max_u32_dpp v{ST+1}, v{ST+1}, v{ST+1} {mod} row_mask:0xf bank_mask:0xf")
    a("s_waitcnt vmcnt(0)")
    a.label("K2_pub0")
    a(f"""
    s_barrier
    s_cmp_lg_u32 s38, 0
    s_cbranch_scc1 K2_pub
    s_mov_b64 exec, {0xff if KREP else 1}
    buffer_store_dwordx2 v[{ST}:{ST+1}], v{t0}, s[8:11], s5 offen sc1
    s_mov_b64 exec, -1
    """)
    a.label("K2_pub")
    if 'amp' in dbg: a('s_memrealtime s[96:97]'); a('s_waitcnt lgkmcnt(0)')
    st(1, 2)
    def fin():
        if G.STAMP: a("s_waitcnt vmcnt(0)")
        stamp(a, 6)
        if G.STAMP: a("s_mov_b32 s91, s30")
        stamp_out(a, 1, 8, "s6", WF)
        a("s_endpgm")
    a(f"""
    s_cmp_ge_u32 s2, 144
    s_cbranch_scc1 K2_fin
    """)
    AFR = V
    KY = K; Y = K + 8; BX = V + 32; AC = K + 16
    a(f"""
    s_setprio 0
    v_bfe_u32 v{t0}, v0, 2, 2
    v_lshrrev_b32 v{t4}, 4, v0           ; g
    v_lshl_add_u32 v{t0}, v{t4}, 3, v{t0}
    v_lshlrev_b32 v{t0}, 5, v{t0}
    v_and_b32 v{t1}, 3, v0
    v_lshl_add_u32 v{t0}, v{t1}, 3, v{t0}
    v_add_u32 v{t0}, s74, v{t0}
    """)
    for sx in range(7):
        for half in range(2):
            d = AFR + 4 * sx + 2 * half
            a(f"ds_read_b64_tr_b16 v[{d}:{d+1}], v{t0} offset:{sx*1024 + half*128}")
    a(f"""
    v_and_b32 v{t3}, 1, v0
    v_lshlrev_b32 v{vPW}, 6, v{t3}
    v_lshl_add_u32 v{vPW}, v{t4}, 4, v{vPW}
    s_lshl_b32 s5, s6, 7
    s_add_u32 s5, s5, {L_RED:#x}
    v_add_u32 v{vPW}, s5, v{vPW}
    v_and_b32 v{vPR}, 31, v0
    v_lshlrev_b32 v{vPR}, 2, v{vPR}      ; (lane&31)*4
    v_lshrrev_b32 v{vOR}, 5, v0
    v_lshl_add_u32 v{vOR}, v{vOR}, 14, v{vPR}
    s_cmp_lg_u32 s6, 0
    s_cbranch_scc1 K2_nokey
    v_lshlrev_b32 v{t1}, {G.KS_LOG}, v0
    s_and_b32 s5, s2, {7 if KREP else 0}
    s_lshl_b32 s5, s5, 14
    s_add_u32 s5, s5, {WS_KEY:#x}
    s_add_u32 s79, s5, {64 << G.KS_LOG}
    s_add_u32 s80, s5, {128 << G.KS_LOG}
    s_add_u32 s81, s5, {192 << G.KS_LOG}
    s_mov_b32 s36, 0
    """)
    KZ = V + 60 - 8 * 0
    def poll_loop(name, issue, nld):
        K2R = X[0]
        def chk(b):
            a(f"""
            v_min3_u32 v{Y}, v{b}, v{b+1}, v{b+2}
            v_min3_u32 v{Y+1}, v{b+3}, v{b+4}, v{b+5}
            v_min3_u32 v{Y}, v{Y}, v{b+6}, v{b+7}
            v_min_u32 v{Y}, v{Y}, v{Y+1}
            v_cmp_eq_u32 vcc, 0, v{Y}
            """)
        sl = OPT.get('psl', 3)
        issue(KY)
        a(f"s_sleep {sl}")
        a.label(f"{name}_l")
        issue(K2R)
        a(f"s_waitcnt vmcnt({nld})")
        chk(KY)
        a(f"s_cbranch_vccz {name}_ok")
        issue(KY)
        a(f"s_waitcnt vmcnt({nld})")
        chk(K2R)
        a(f"""
        s_cbranch_vccz {name}_ok2
        s_add_u32 s36, s36, 1
        s_cmp_lt_u32 s36, 0x40000
        s_cbranch_scc1 {name}_l
        """)
        a.label(f"{name}_ok2")
        for r in range(0, 8, 2): a(f"v_pk_mov_b32 v[{KY+r}:{KY+r+1}], v[{K2R+r}:{K2R+r+1}], v[{K2R+r}:{K2R+r+1}] op_sel:[0,1]")
        a.label(f"{name}_ok")
    def kissue(b):
        for k, sr in enumerate(("s5", "s79", "s80", "s81")):
            a(f"buffer_load_dwordx2 v[{b+2*k}:{b+2*k+1}], v{t1}, s[8:11], {sr} offen sc1")
    if int(OPT.get('kd', 16)): a(f"s_sleep {OPT.get('kd', 16)}")
    poll_loop("K2_kp", kissue, 4)
    a.label("K2_kok")
    st(2, 2)
    if FS: a("s_mov_b32 s30, s36")
    B1, B2 = Y + 4, Y + 5
    a(f"""
    v_max_u32 v{B1}, v{KY}, v{KY+2}
    v_min_u32 v{B2}, v{KY}, v{KY+2}
    v_max3_u32 v{B2}, v{B2}, v{KY+1}, v{KY+3}
    v_max_u32 v{Y}, v{KY+4}, v{KY+6}
    v_min_u32 v{Y+1}, v{KY+4}, v{KY+6}
    v_max3_u32 v{Y+1}, v{Y+1}, v{KY+5}, v{KY+7}
    v_min_u32 v{Y+2}, v{B1}, v{Y}
    v_max_u32 v{B1}, v{B1}, v{Y}
    v_max3_u32 v{B2}, v{B2}, v{Y+1}, v{Y+2}
    v_mov_b32 v{Y}, v{B1}
    """)
    wave_max_u32(a, Y, Y + 1)
    a(f"""
    v_cmp_eq_u32 vcc, v{B1}, v{Y}
    v_cndmask_b32 v{B1}, v{B1}, v{B2}, vcc
    """)
    wave_max_u32(a, B1, Y + 1)
    a(f"""
    v_readfirstlane_b32 s40, v{Y}
    v_readfirstlane_b32 s41, v{B1}
    s_andn2_b32 s42, 0x7ff, s40
    s_andn2_b32 s43, 0x7ff, s41
    s_lshl_b32 s42, s42, 10
    s_lshl_b32 s43, s43, 10
    """)
    a.label("K2_nokey")
    a(f"""
    s_cmp_ge_u32 s2, 112
    s_cbranch_scc1 K2_down
    s_cmp_lg_u32 s6, 0
    s_cbranch_scc1 K2_up1
    s_add_u32 s36, s42, {WS_HN:#x}
    s_add_u32 s37, s43, {WS_HN:#x}
    buffer_load_dwordx4 v[{KY}:{KY+3}], v{vWL}, s[8:11], s36 offen sc1
    buffer_load_dwordx4 v[{KY+4}:{KY+7}], v{vWL}, s[8:11], s37 offen sc1
    s_waitcnt vmcnt(1)
    ds_write_b128 v{vWL}, v[{KY}:{KY+3}] offset:{L_XS}
    s_waitcnt vmcnt(0)
    ds_write_b128 v{vWL}, v[{KY+4}:{KY+7}] offset:{L_XS + 1040}
    """)
    a.label("K2_up1")
    st(3, 2)
    a(f"""
    v_mul_u32_u24 v{t0}, 1040, v{t3}
    v_lshl_add_u32 v{t0}, v{t4}, 4, v{t0}
    s_lshr_b32 s5, s6, 1
    s_lshl_b32 s5, s5, 8
    v_add_u32 v{t0}, s5, v{t0}
    s_waitcnt lgkmcnt(0)
    s_barrier
    """)
    for sx in range(4):
        a(f"ds_read_b128 v[{BX+4*sx}:{BX+4*sx+3}], v{t0} offset:{L_XS + 64*sx}")
    for sx in range(4):
        a(f"s_waitcnt lgkmcnt({3-sx})")
        c = "0" if sx == 0 else f"v[{AC}:{AC+3}]"
        a(f"v_mfma_f32_16x16x32_bf16 v[{AC}:{AC+3}], v[{AFR+4*sx}:{AFR+4*sx+3}], v[{BX+4*sx}:{BX+4*sx+3}], {c}")
    a(f"""
    ds_write_b128 v{vPW}, v[{AC}:{AC+3}]
    s_waitcnt lgkmcnt(0)
    s_barrier
    s_cmp_lg_u32 s6, 0
    s_cbranch_scc1 K2_fin
    """)
    def red_read():
        a(f"v_add_u32 v{t0}, {L_RED:#x}, v{vPR}")
        a("s_waitcnt vmcnt(0)")
        for k in range(4):
            a(f"ds_read2_b32 v[{KY+2*k}:{KY+2*k+1}], v{t0} offset0:{64*k} offset1:{64*k+32}")
        a("s_waitcnt lgkmcnt(0)")
        a(f"v_pk_add_f32 v[{KY}:{KY+1}], v[{KY}:{KY+1}], v[{KY+2}:{KY+3}]")
        a(f"v_pk_add_f32 v[{KY+4}:{KY+5}], v[{KY+4}:{KY+5}], v[{KY+6}:{KY+7}]")
        a(f"v_pk_add_f32 v[{KY}:{KY+1}], v[{KY}:{KY+1}], v[{KY+4}:{KY+5}]")
    st(4, 2)
    red_read()
    a(f"""
    v_cvt_pk_bf16_f32 v{KY}, 0, v{KY}
    v_cvt_pk_bf16_f32 v{KY+1}, 0, v{KY+1}
    """)
    sigmoid(a, KY + 2, KY, KY + 3)
    a(f"""
    v_mul_f32 v{KY}, v{KY}, v{KY+2}
    v_cvt_pk_bf16_f32 v{KY}, 0, v{KY}
    v_mul_f32 v{KY}, v{KY}, v{KY+1}
    v_cvt_pk_bf16_f32 v{KY}, 0, v{KY}
    v_or_b32 v{KY}, 1, v{KY}
    s_lshl_b32 s5, s76, 7
    s_add_u32 s5, s5, {WS_GU:#x}
    """)
    if GREP:
        for k in range(4):
            a(f"buffer_store_dword v{KY}, v{vOR}, s[8:11], s5 offen sc1")
            if k < 3: a("s_add_u32 s5, s5, 0x8000")
    else:
        a(f"""
        s_mov_b32 exec_hi, 0
        buffer_store_dword v{KY}, v{vPR}, s[8:11], s5 offen sc1
        s_mov_b64 exec, -1
        """)
    a(f"""
    s_branch K2_fin
    """)
    a.label("K2_down")
    HH, NN, GT, OO = Y + 6, Y + 7, AC + 4, AC + 5
    a(f"""
    s_cmp_lg_u32 s6, 0
    s_cbranch_scc1 K2_dn1
    v_bfe_u32 v{t0}, v0, 4, 1
    v_cmp_eq_u32 vcc, 0, v{t0}
    v_mov_b32 v{t0}, s43
    v_mov_b32 v{t1}, s42
    v_cndmask_b32 v{OO}, v{t0}, v{t1}, vcc
    v_and_b32 v{t0}, 15, v0
    v_lshl_add_u32 v{OO}, v{t0}, 1, v{OO}
    s_lshl_b32 s44, s77, 5
    s_add_u32 s36, s44, {WS_H:#x}
    s_add_u32 s37, s44, {WS_HN:#x}
    buffer_load_ushort v{HH}, v{OO}, s[8:11], s36 offen sc1
    buffer_load_ushort v{NN}, v{OO}, s[8:11], s37 offen sc1
    v_mov_b32 v{t0}, s41
    v_mov_b32 v{t1}, s40
    v_cndmask_b32 v{GT}, v{t0}, v{t1}, vcc
    v_and_b32 v{GT}, 0xffff0000, v{GT}
    v_ashrrev_i32 v{t0}, 31, v{GT}
    v_not_b32 v{t0}, v{t0}
    v_or_b32 v{t0}, 0x80000000, v{t0}
    v_xor_b32 v{GT}, v{GT}, v{t0}
    v_and_b32 v{GT}, 0xffff0000, v{GT}
    """)
    sigmoid(a, GT, GT, t0)
    a(f"v_cvt_pk_bf16_f32 v{GT}, 0, v{GT}")
    a.label("K2_dn1")
    a(f"""
    s_mul_i32 s5, s6, 1792
    s_and_b32 s37, s2, {7 if GREP else 0}
    s_lshl_b32 s37, s37, 14
    s_add_u32 s5, s5, s37
    s_add_u32 s5, s5, {WS_GU:#x}
    v_min_u32 v{t1}, 47, v0
    v_lshlrev_b32 v{t1}, 4, v{t1}
    s_lshl_b32 s37, s6, 10
    s_add_u32 s37, s37, {L_GB:#x}
    v_lshrrev_b32 v{t0}, 3, v0
    v_lshlrev_b32 v{vPL}, 5, v{t0}
    v_and_b32 v{t0}, 3, v0
    v_lshl_add_u32 v{vPL}, v{t0}, 3, v{vPL}
    v_bfe_u32 v{t0}, v0, 2, 1
    v_mul_u32_u24 v{t0}, 464, v{t0}
    v_add3_u32 v{vPL}, v{vPL}, v{t0}, s37
    v_mul_u32_u24 v{vOW}, 464, v{t3}
    v_lshl_add_u32 v{vOW}, v{t4}, 4, v{vOW}
    v_add_u32 v{vOW}, s37, v{vOW}
    s_mov_b32 s45, 0x07060302
    s_mov_b32 s36, 0
    """)
    def gissue(b):
        a(f"buffer_load_dwordx4 v[{b}:{b+3}], v{vWL}, s[8:11], s5 offen sc1")
        a(f"buffer_load_dwordx4 v[{b+4}:{b+7}], v{t1}, s[8:11], s5 offen offset:1024 sc1")
    if 'nogb' not in dbg:
        a("s_barrier")
        if int(OPT.get('gd', 24)): a(f"s_sleep {OPT.get('gd', 24)}")
    poll_loop("K2_gp", gissue, 2)
    a.label("K2_gok")
    st(4, 2)
    a(f"""
    v_perm_b32 v{Y}, v{KY+1}, v{KY}, s45
    v_perm_b32 v{Y+1}, v{KY+3}, v{KY+2}, s45
    v_perm_b32 v{Y+2}, v{KY+5}, v{KY+4}, s45
    v_perm_b32 v{Y+3}, v{KY+7}, v{KY+6}, s45
    ds_write_b64 v{vPL}, v[{Y}:{Y+1}]
    s_mov_b32 exec_hi, 0xffff
    ds_write_b64 v{vPL}, v[{Y+2}:{Y+3}] offset:256
    s_mov_b64 exec, -1
    """)
    for sx in range(7):
        a(f"ds_read_b128 v[{BX+4*sx}:{BX+4*sx+3}], v{vOW} offset:{64*sx}")
    for sx in range(7):
        a(f"s_waitcnt lgkmcnt({6-sx})")
        c = "0" if sx == 0 else f"v[{AC}:{AC+3}]"
        a(f"v_mfma_f32_16x16x32_bf16 v[{AC}:{AC+3}], v[{AFR+4*sx}:{AFR+4*sx+3}], v[{BX+4*sx}:{BX+4*sx+3}], {c}")
    a(f"""
    ds_write_b128 v{vPW}, v[{AC}:{AC+3}]
    s_waitcnt lgkmcnt(0)
    s_barrier
    s_cmp_lg_u32 s6, 0
    s_cbranch_scc1 K2_fin
    """)
    red_read()
    a(f"""
    v_add_f32 v{KY}, v{KY}, v{KY+1}
    v_lshlrev_b32 v{HH}, 16, v{HH}
    v_lshlrev_b32 v{NN}, 16, v{NN}
    v_cvt_pk_bf16_f32 v{KY}, 0, v{KY}
    v_mul_f32 v{KY}, v{KY}, v{GT}
    v_cvt_pk_bf16_f32 v{KY}, 0, v{KY}
    v_add_f32 v{KY}, v{KY}, v{NN}
    v_cvt_pk_bf16_f32 v{KY}, 0, v{KY}
    v_add_f32 v{KY}, v{KY}, v{HH}
    v_cvt_pk_bf16_f32 v{KY}, v{KY}, v{KY}
    s_mov_b32 exec_hi, 0
    buffer_store_short v{KY}, v{OO}, s[20:23], s44 offen sc1
    s_mov_b64 exec, -1
    """)
    a.label("K2_fin")
    if 'amp' in dbg:
        q = int(OPT['amp'])
        expr = {0: None, 1: ("s83", "s90"), 2: ("s84", "s90"), 3: ("s85", "s90"), 4: ("s86", "s90"), 5: ("s88", "s90"), 6: ("s94", "s90"), 7: ("s98", "s94"), 8: ("s96", "s98")}[q]
        a(f"""
        s_or_b32 s5, s2, s6
        s_cmp_lg_u32 s5, 0
        s_cbranch_scc1 K2_amp_end
        """)
        if expr: a(f"s_sub_u32 s85, {expr[0]}, {expr[1]}")
        else: a("s_mov_b32 s85, 0")
        a(f"""
        s_min_u32 s85, s85, 5000
        s_lshl_b32 s85, s85, 1
        s_add_u32 s85, s85, 600
        s_add_u32 s85, s85, s96
        """)
        a.label("K2_amp")
        a(f"""
        s_memrealtime s[92:93]
        s_waitcnt lgkmcnt(0)
        s_sub_u32 s86, s92, s85
        s_cmp_lt_i32 s86, 0
        s_cbranch_scc1 K2_amp
        """)
        a.label("K2_amp_end")
    if G.STAMP: a("s_waitcnt vmcnt(0)")
    stamp(a, 6)
    if G.STAMP: a("s_mov_b32 s91, s30")
    stamp_out(a, 1, 8, "s6", WF)
    dstamp(a, 1, True, 240)
    a.label("K2_end")
    a("s_endpgm")
    a.label("K2_qspin")
    a(f"""
    s_mov_b32 s36, 0
    """)
    a.label("K2_qspin1")
    a(f"""
    s_sleep 2
    buffer_load_dword v{t0}, v{SP}, s[8:11], s45 offen sc1
    s_add_u32 s36, s36, 1
    s_waitcnt vmcnt(0)
    v_cmp_ne_u32 vcc, s58, v{t0}
    s_cbranch_vccz K2_qback
    s_cmp_lt_u32 s36, 0x40000
    s_cbranch_scc1 K2_qspin1
    s_branch K2_qback
    """)
    for k, off in enumerate(spins):
        a.label(f"K2_spin{k}")
        a(f"""
        s_sleep 1
        ds_read_b32 v{vFV}, v{vFR} offset:{off}
        s_waitcnt lgkmcnt(0)
        v_cmp_gt_u32 vcc, s59, v{vFV}
        s_cbranch_vccnz K2_spin{k}
        s_branch K2_back{k}
        """)
```

```python
import sys
sys.path.insert(0, "gen")
from gen import *
import gen as G
import kf1, kf1b, kf1c, kf2, kf2c
from kf1 import L1_TOTAL
from kf2 import gen_p2, L_TOTAL
import argparse
ap = argparse.ArgumentParser()
ap.add_argument("out"); ap.add_argument("--stamp", action="store_true"); ap.add_argument("--dbg", default="")
args = ap.parse_args()
set_stamp(args.stamp)
a = Asm()
old = 'v8' in args.dbg
(kf1b if old else kf1c).gen_p1(a, dbg=args.dbg)
(kf2 if old else kf2c).gen_p2(a, dbg=args.dbg)
a.fix()
print("align", align8(a))
build([("k1_kernel", a.text(), 256, max(L1_TOTAL, L_TOTAL), 256, 512)], args.out)
```

```python
from gen import *
import gen as G
import re

L_X = 0; L_W = 65536; L_KV = 131072; L_WOT = L_KV + 16384; L_DN = L_WOT + 2048; L1_TOTAL = L_DN + 64
L_Q0 = 0x6000

def gen_p1(a, dbg=''):
    SC = ' sc1'
    def p1(i):
        if 'p1st' in dbg: stamp(a, i)
        if 'amp' in dbg: a(f's_memrealtime s[100:101]'); a('s_waitcnt lgkmcnt(0)'); a(f's_mov_b32 s{82+i}, s100')
    FST = int(dict(x.split('=') for x in dbg.split(',') if '=' in x).get('fst', 0))
    WB = int(dict(x.split('=') for x in dbg.split(',') if '=' in x).get('wb', 5))
    WD = int(dict(x.split('=') for x in dbg.split(',') if '=' in x).get('wd', 9))
    PB = int(dict(x.split('=') for x in dbg.split(',') if '=' in x).get('pb', 99))
    FLS = int(dict(x.split('=') for x in dbg.split(',') if '=' in x).get('fls', 4))
    EPOCH = f"""
    s_add_u32 s56, s32, {WS_EP:#x}
    s_addc_u32 s57, s33, 0
    s_load_dword s58, s[56:57], 0
    """
    X = 32
    ACC = 96
    AF = 116
    T = 148
    a(f"""
    s_cmp_lt_u32 s2, 256
    s_cbranch_scc1 K1_go
    s_endpgm
    """)
    a.label("K1_go")
    stamp(a, 0)
    if ('leak' in dbg or 'amp' in dbg): a('s_memrealtime s[90:91]')
    dstamp(a, 0, False, 200)
    a(f"""
    s_load_dwordx8 s[24:31], s[0:1], 0
    s_load_dwordx2 s[44:45], s[0:1], 32
    s_load_dwordx2 s[32:33], s[0:1], 96
    """)
    if 'nocodepf' not in dbg:
        a(f"""
        s_cmp_ge_u32 s2, 16
        s_cbranch_scc1 K1_nocp
        v_subrev_u32 v30, 256, v0
        v_cmp_gt_u32 vcc, (K_all_end-k1_kernel+127)/128, v30
        s_and_saveexec_b64 s[62:63], vcc
        s_cbranch_execz K1_cpx
        s_getpc_b64 s[60:61]
        """)
        a.label("K1_pc")
        a(f"""
        s_sub_u32 s60, s60, K1_pc-k1_kernel
        s_subb_u32 s61, s61, 0
        v_lshlrev_b32 v30, 7, v30
        global_load_dword v31, v30, s[60:61]
        """)
        a.label("K1_cpx")
        a("s_mov_b64 exec, s[62:63]")
        a.label("K1_nocp")
    a(f"""
    s_and_b32 s3, s2, 7
    s_lshr_b32 s4, s2, 3
    s_and_b32 s5, s4, 7
    s_lshr_b32 s4, s4, 3           ; tb & 3
    s_lshl_b32 s3, s3, 2
    s_add_u32 s3, s3, s4
    v_lshrrev_b32 v1, 6, v0
    v_and_b32 v2, 63, v0           ; lane
    v_readfirstlane_b32 s6, v1     ; wave
    v_and_b32 v3, 15, v2           ; l & 15
    v_lshrrev_b32 v6, 2, v2
    v_lshrrev_b32 v4, 4, v2        ; g
    v_bfe_u32 v18, v2, 2, 2        ; r'
    v_and_b32 v19, 3, v2           ; c'
    v_lshl_add_u32 v20, v4, 3, v18 ; 8g + r'
    v_lshlrev_b32 v17, 5, v20
    v_lshl_add_u32 v17, v19, 3, v17
    s_cmp_ge_u32 s6, 4
    s_cbranch_scc1 K1_loader
    """)
    a(f"""
    s_load_dwordx2 s[48:49], s[0:1], 96
    s_load_dwordx2 s[40:41], s[0:1], 0
    s_load_dwordx8 s[60:67], s[0:1], 48
    s_load_dwordx2 s[46:47], s[0:1], 80
    s_lshl_b32 s7, s3, 6
    s_lshl_b32 s34, s6, 4
    s_add_u32 s7, s7, s34
    v_add_u32 v5, s7, v3           ; token
    v_lshrrev_b32 v7, 4, v2
    v_and_b32 v7, 2, v7
    v_xor_b32 v7, v7, v19
    v_lshlrev_b32 v6, 10, v6
    v_lshl_add_u32 v6, v7, 4, v6
    s_lshl_b32 s81, s6, 14
    s_lshl_b32 s80, s7, 10
    s_lshl_b32 s79, s5, 7
    s_waitcnt lgkmcnt(0)
    """)
    srd(a, 16, 24, 25, 0x200000)
    a(f"""
    s_add_u32 s42, s48, {WS_EP:#x}
    s_addc_u32 s43, s49, 0
    s_load_dword s58, s[42:43], 0
    """)
    def xloop(name, lo, hi):
        if lo >= hi: return
        a(f"s_mov_b32 s29, {lo}")
        a.label(name)
        a(f"""
        s_mov_b32 m0, s81
        s_add_u32 s3, s79, s80
        buffer_load_dwordx4 v6, s[16:19], s3 offen lds
        s_add_u32 m0, s81, {1024 - 64}
        s_add_u32 s79, s79, 128
        buffer_load_dwordx4 v6, s[16:19], s3 offen offset:64 lds
        s_and_b32 s79, s79, 0x3ff
        s_add_u32 s81, s81, 2048
        s_add_u32 s29, s29, 1
        s_cmp_lt_u32 s29, {hi}
        s_cbranch_scc1 {name}
        """)
    XN = int(dict(x.split('=') for x in dbg.split(',') if '=' in x).get('xn', 2))
    xloop("K1_x1", 0, XN)
    a("s_branch K12_setup1")
    EARLY = 'early' in dbg
    a.label("K1_loader")
    if 'noldprio' not in dbg: a("s_setprio 3")
    a(f"""
    s_sub_u32 s6, s6, 4
    v_lshrrev_b32 v7, 3, v2        ; row_in
    v_and_b32 v8, 7, v2            ; slot
    v_and_b32 v9, 2, v7
    v_xor_b32 v8, v8, v9
    v_xor_b32 v9, 4, v8
    s_lshl_b32 s35, s5, 7
    v_lshlrev_b32 v7, 10, v7
    v_add_u32 v7, s35, v7
    v_lshl_add_u32 v10, v8, 4, v7
    v_lshl_add_u32 v11, v9, 4, v7
    v_lshlrev_b32 v12, 4, v2       ; lane*16
    v_lshrrev_b32 v13, 1, v2
    v_lshlrev_b32 v13, 10, v13
    v_and_b32 v14, 1, v2
    v_lshl_add_u32 v13, v14, 4, v13
    s_lshl_b32 s65, s6, 14
    s_add_u32 s65, s65, {L_W}
    s_lshl_b32 s37, s6, 4
    s_lshl_b32 s38, s5, 3
    s_add_u32 s37, s37, s38
    v_and_b32 v15, 16, v2
    v_lshlrev_b32 v15, 3, v15
    v_xor_b32 v15, v15, v12
    s_lshl_b32 s39, s4, 2
    s_waitcnt lgkmcnt(0)
    """)
    a(EPOCH)
    srd(a, 12, 26, 27, 0x80000)
    a(f"""
    s_bitcmp0_b32 s5, 0
    s_cselect_b64 s[46:47], s[28:29], s[30:31]
    """)
    srd(a, 16, 46, 47, 0x4000)
    srd(a, 40, 44, 45, 0x80000)
    srd(a, 20, 32, 33, WS_SIZE)
    a(f"""
    s_cmp_lg_u32 s6, 0
    s_cbranch_scc1 K1_noz
    v_mov_b32 v32, 0
    v_mov_b32 v33, 0
    v_mov_b32 v34, 0
    v_mov_b32 v35, 0
    s_lshl_b32 s48, s2, 10
    s_add_u32 s48, s48, {WS_GU:#x}
    buffer_store_dwordx4 v[32:35], v12, s[20:23], s48 offen{SC}
    """)
    a.label("K1_noz")
    if 'notouch' not in dbg:
        a(f"""
        s_cmp_lg_u32 s6, 1
        s_cbranch_scc1 K1_not
        s_and_b32 s48, s2, 7
        s_lshl_b32 s48, s48, 14
        s_add_u32 s48, s48, {WS_FL:#x}
        v_lshlrev_b32 v32, {FLS + 2}, v2
        buffer_load_dword v33, v32, s[20:23], s48 offen sc1
        """)
        a.label("K1_not")
    a(f"""
    s_cmp_lt_u32 s6, 2
    s_cbranch_scc1 K1_nowo
    s_lshl_b32 s46, s2, 1
    s_and_b32 s47, s6, 1
    s_add_u32 s46, s46, s47
    s_lshr_b32 s47, s46, 6
    s_lshl_b32 s47, s47, 16
    s_bfe_u32 s48, s46, 0x10002
    s_lshl_b32 s48, s48, 15        ; s * 32 rows
    s_add_u32 s47, s47, s48
    s_bfe_u32 s48, s46, 0x30003
    s_lshl_b32 s48, s48, 7         ; w * 128 B
    s_add_u32 s47, s47, s48
    s_and_b32 s48, s46, 3
    s_lshl_b32 s48, s48, 5         ; t * 32 B
    s_add_u32 s47, s47, s48
    s_lshl_b32 s48, s6, 10
    s_add_u32 s48, s48, {L_WOT - 2048}
    s_mov_b32 m0, s48
    v_add_u32 v17, s48, v17
    buffer_load_dwordx4 v13, s[40:43], s47 offen lds
    s_lshl_b32 s48, s6, 2
    s_add_u32 s48, s48, {L_DN - 8}
    v_mov_b32 v36, s48
    v_mov_b32 v37, 0
    ds_write_b32 v36, v37
    v_mov_b32 v37, 1
    """)
    a.label("K1_nowo")
    a(f"""
    s_lshl_b32 s36, s6, 12
    s_lshl_b32 s38, s5, 11
    """)
    for i in range(4):
        a(f"""
        s_add_u32 s48, s36, {i*1024}
        s_add_u32 m0, s48, {L_KV}
        s_add_u32 s48, s48, s38
        s_and_b32 s48, s48, 0x3fff
        buffer_load_dwordx4 v15, s[16:19], s48 offen lds
        """)
    a("s_waitcnt lgkmcnt(0)")
    a("s_add_u32 s58, s58, 1")
    a(f"""
    s_barrier
    s_cmp_lt_u32 s6, 2
    s_cbranch_scc1 K1_nowo2
    s_waitcnt vmcnt(4)
    ds_read_b64_tr_b16 v[32:33], v17
    ds_read_b64_tr_b16 v[34:35], v17 offset:128
    s_lshl_b32 s46, s46, 10
    s_add_u32 s46, s46, {WS_WOF:#x}
    s_waitcnt lgkmcnt(0)
    buffer_store_dwordx4 v[32:35], v12, s[20:23], s46 offen sc1
    s_branch K1_wst
    """)
    a.label("K1_nowo2")
    a("buffer_load_dword v33, v12, s[16:19], 0 offen")
    a.label("K1_wst")
    for i in range(16):
        a(f"""
        s_add_u32 s48, s39, {i}
        s_and_b32 s48, s48, 15
        s_lshl_b32 s49, s48, 10
        s_add_u32 m0, s65, s49
        s_add_u32 s48, s48, s37
        s_and_b32 s48, s48, 63
        s_lshl_b32 s48, s48, 13
        buffer_load_dwordx4 v{10 + (i & 1)}, s[12:15], s48 offen lds
        """)
        if i == WB:
            a(f"s_waitcnt vmcnt({WB + 2})")
            p1(1)
            a("s_barrier")
        if i == WD and EARLY:
            a(f"""
            s_cmp_lt_u32 s6, 2
            s_cbranch_scc1 K1_nodn
            s_waitcnt vmcnt({WD + 1})
            ds_write_b32 v36, v37
            """)
            a.label("K1_nodn")
    p1(2)
    a("s_waitcnt vmcnt(0)")
    p1(3)
    a("s_barrier")
    a("s_cmp_eq_u32 s6, 0")
    a("s_cbranch_scc1 K12_setup")
    a("s_setprio 0")
    a("s_branch K12_setup")
    a.label("K1_comp")
    ONE = 24; SEL = 8
    SEL = 152
    a(f"""
    v_lshlrev_b32 v21, 7, v20
    v_lshl_add_u32 v21, v19, 3, v21   ; row*128 + 8c'
    v_add_u32 v21, {L_W}, v21
    v_lshrrev_b32 v22, 1, v18
    v_and_b32 v23, 1, v4
    v_lshl_or_b32 v22, v23, 1, v22 ; h
    """)
    for t in range(4):
        a(f"v_xor_b32 v23, {t}, v22")
        a(f"v_lshl_add_u32 v{13+t}, v23, 5, v21")
    a(f"""
    v_lshlrev_b32 v10, 6, v3
    v_lshrrev_b32 v7, 2, v3
    v_and_b32 v7, 2, v7
    v_xor_b32 v7, v7, v4
    v_lshl_add_u32 v10, v7, 4, v10
    s_lshl_b32 s3, s6, 14
    v_add_u32 v10, s3, v10
    v_and_b32 v7, 1, v4
    v_lshlrev_b32 v7, 7, v7
    v_add_u32 v17, {L_KV}, v17
    v_xor_b32 v12, v17, v7
    v_xor_b32 v17, 128, v12
    """)
    for r in range(4): a(f"v_mov_b32 v{ONE+r}, 0x3f803f80")
    a(f"""
    v_and_b32 v7, 1, v2
    v_lshlrev_b32 v7, 4, v7
    v_mov_b32 v8, 0x3f80
    v_lshlrev_b32 v7, v7, v8
    v_cmp_eq_u32 s[34:35], v18, v4 ; g == (l&15)>>2
    v_bfe_u32 v8, v2, 1, 1
    v_cmp_eq_u32 vcc, 0, v8
    s_and_b64 s[42:43], s[34:35], vcc
    s_andn2_b64 s[36:37], s[34:35], vcc
    v_mov_b32 v{SEL}, 0
    v_mov_b32 v{SEL+1}, 0
    v_cndmask_b32 v{SEL+2}, 0, v7, s[42:43]
    v_cndmask_b32 v{SEL+3}, 0, v7, s[36:37]
    v_mov_b32 v{SEL+4}, 0
    v_mov_b32 v{SEL+5}, 0
    """)
    xloop("K1_x2", XN, 8)
    a("s_waitcnt lgkmcnt(0)")
    a("s_add_u32 s58, s58, 1")
    a("s_barrier")
    p1(1)
    m16 = "v_mfma_f32_16x16x32_bf16"
    SUM = ACC; GR = ACC + 4; NM = 248
    def stat(u):
        xs = f"v[{X+4*u}:{X+4*u+3}]"
        a(f"{m16} v[{SUM}:{SUM+3}], v[{ONE}:{ONE+3}], {xs}, " + ("0" if u == 0 else f"v[{SUM}:{SUM+3}]"))
        a(f"{m16} v[{GR}:{GR+3}], {xs}, {xs}, " + ("0" if u == 0 else f"v[{GR}:{GR+3}]"))
    for u in range(0, 16, 2):
        a(f"s_waitcnt vmcnt({14-u})")
        a(f"ds_read_b128 v[{X+4*u}:{X+4*u+3}], v10 offset:{1024*u}")
        a(f"ds_read_b128 v[{X+4*u+4}:{X+4*u+7}], v10 offset:{1024*u+1024}")
        if u >= 4:
            a("s_waitcnt lgkmcnt(4)")
            stat(u - 4); stat(u - 3)
    a("s_waitcnt lgkmcnt(2)"); stat(12); stat(13)
    a("s_waitcnt lgkmcnt(0)"); stat(14); stat(15)
    RG = 184
    a("s_barrier")
    a("s_lshr_b32 s79, s28, 1")
    a("s_cmp_lg_u32 s79, s6")
    a("s_cbranch_scc1 K1_nokvf")
    for sx in range(16):
        for half in range(2):
            d = RG + 4 * sx + 2 * half
            a(f"ds_read_b64_tr_b16 v[{d}:{d+1}], v{17 if half else 12} offset:{sx*1024}")
    a.label("K1_nokvf")
    a(f"""
    v_and_b32 v7, 1, v2
    v_cmp_eq_u32 vcc, 1, v7
    v_cndmask_b32 v8, v{GR}, v{GR+1}, vcc
    v_cndmask_b32 v9, v{GR+2}, v{GR+3}, vcc
    v_cndmask_b32 v8, 0, v8, s[42:43]
    v_cndmask_b32 v26, v8, v9, s[36:37]
    """)
    for w in (16, 32):
        sum_swap(a, 26, 28, w)
    ln_scalars(a, SUM, 26, 28, 30, 27, 29)
    for r in range(4): a(f"v_sub_f32 v{NM+r}, 0, v28")
    if 'newln' not in dbg:
        NB = 4
        def cen(u, h):
            d = AF + 8 * (u % NB) + 4 * h
            if 'nolnleg' not in dbg:
                return f"v_mfma_f32_16x16x16bf16_1k v[{d}:{d+3}], v[{SEL+2}:{SEL+3}], v[{X+4*u+2*h}:{X+4*u+2*h+1}], v[{NM}:{NM+3}]"
            return f"{m16} v[{d}:{d+3}], v[{SEL+2-2*h}:{SEL+5-2*h}], v[{X+4*u}:{X+4*u+3}], v[{NM}:{NM+3}]"
        def sub(u):
            d = AF + 8 * (u % NB)
            xs = f"v[{X+4*u}:{X+4*u+3}]"
            a(cen(u, 0)); a(cen(u, 1))
        sub(0); sub(1)
        def ln_step(u):
            d = AF + 8 * (u % NB); L = []
            for r in range(4): L.append(f"v_cvt_pk_bf16_f32 v{d+r}, 0, v{d+r}")
            if u + 2 < 16:
                dd = AF + 8 * ((u + 2) % NB); xs = f"v[{X+4*(u+2)}:{X+4*(u+2)+3}]"
                L.append(cen(u + 2, 0))
            for r in range(4, 8): L.append(f"v_cvt_pk_bf16_f32 v{d+r}, 0, v{d+r}")
            if 'lnmul' in dbg:
                for r in range(8): L.append(f"v_mul_f32 v{d+r}, v{d+r}, v30")
            else:
                for r in range(0, 8, 2): L.append(f"v_pk_mul_f32 v[{d+r}:{d+r+1}], v[{d+r}:{d+r+1}], v[30:31] op_sel_hi:[1,0]")
            if u + 2 < 16:
                L.append(cen(u + 2, 1))
            for r in range(4): L.append(f"v_cvt_pk_bf16_f32 v{X+4*u+r}, v{d+2*r}, v{d+2*r+1}")
            return L
        for u in range(16):
            for ins in ln_step(u): a(ins)
    else:
        l16 = "v_mfma_f32_16x16x16bf16_1k"
        ID = f"v[{SEL+2}:{SEL+3}]"
        def A_(u, h):
            d = AF + 8 * (u & 1) + 4 * h
            return f"{l16} v[{d}:{d+3}], {ID}, v[{X+4*u+2*h}:{X+4*u+2*h+1}], v[{NM}:{NM+3}]"
        def R_(u):
            d = AF + 8 * (u & 1)
            return [f"v_cvt_pk_bf16_f32 v{X+4*u+r}, v{d+2*r}, v{d+2*r+1}" for r in range(4)]
        def B_(u, h):
            d = AF + 16 + 8 * (u & 1) + 4 * h
            return f"{l16} v[{d}:{d+3}], {ID}, v[{X+4*u+2*h}:{X+4*u+2*h+1}], 0"
        def S_(u):
            d = AF + 16 + 8 * (u & 1)
            if 'lnmul' in dbg: return [f"v_mul_f32 v{d+r}, v{d+r}, v30\nv_mul_f32 v{d+r+1}, v{d+r+1}, v30" for r in range(0, 8, 2)]
            return [f"v_pk_mul_f32 v[{d+r}:{d+r+1}], v[{d+r}:{d+r+1}], v[30:31] op_sel_hi:[1,0]" for r in range(0, 8, 2)]
        def P_(u):
            d = AF + 16 + 8 * (u & 1)
            return [f"v_cvt_pk_bf16_f32 v{X+4*u+r}, v{d+2*r}, v{d+2*r+1}" for r in range(4)]
        ok = lambda u: 0 <= u < 16
        for st_ in range(-2, 16):
            r = R_(st_ + 1) if ok(st_ + 1) else []
            sc = S_(st_) if ok(st_) else []
            pk = P_(st_) if ok(st_) else []
            seq = []
            if ok(st_ + 2): seq.append(A_(st_ + 2, 0))
            seq += r[:3]
            if ok(st_ + 2): seq.append(A_(st_ + 2, 1))
            seq += r[3:] + sc[:2]
            if ok(st_ + 1): seq.append(B_(st_ + 1, 0))
            seq += sc[2:] + pk[:1]
            if ok(st_ + 1): seq.append(B_(st_ + 1, 1))
            seq += pk[1:]
            for ins in seq: a(ins)
    p1(2)
    KV = ACC + 16
    a(f"""
    v_lshrrev_b32 v9, 1, v4
    v_and_b32 v11, 1, v4
    s_cmp_lg_u32 s79, s6
    s_cbranch_scc1 K1_q
    s_lshr_b32 s35, s80, 15
    s_mul_i32 s35, s35, {TS}
    s_add_u32 s35, s35, {WS_KV:#x}
    s_waitcnt lgkmcnt(0)
    s_bitcmp0_b32 s28, 0
    s_cbranch_scc0 K1_v
    """)
    for sx in range(16):
        a(f"{m16} v[{KV}:{KV+3}], v[{RG+4*sx}:{RG+4*sx+3}], v[{X+4*sx}:{X+4*sx+3}], " + ("0" if sx == 0 else f"v[{KV}:{KV+3}]"))
    a(f"""
    v_and_b32 v8, 31, v5
    v_lshlrev_b32 v8, 4, v8
    v_lshl_add_u32 v8, v9, 9, v8
    s_branch K1_kvs
    """)
    a.label("K1_v")
    for sx in range(16):
        a(f"{m16} v[{KV}:{KV+3}], v[{X+4*sx}:{X+4*sx+3}], v[{RG+4*sx}:{RG+4*sx+3}], " + ("0" if sx == 0 else f"v[{KV}:{KV+3}]"))
    a(f"""
    s_and_b32 s36, s6, 1
    s_mul_i32 s36, s36, 544
    s_add_u32 s35, s35, s36
    s_add_u32 s35, s35, 1024
    v_mul_u32_u24 v8, 272, v9
    v_mov_b32 v{AF}, 0x3f803f80
    v_mov_b32 v{AF+1}, 0x3f803f80
    v_mov_b32 v{AF+2}, 0x3f803f80
    v_mov_b32 v{AF+3}, 0x3f803f80
    s_mov_b32 exec_lo, 1
    s_mov_b32 exec_hi, 1
    buffer_store_dwordx4 v[{AF}:{AF+3}], v8, s[8:11], s35 offen offset:256 sc1
    s_mov_b64 exec, -1
    v_lshl_add_u32 v8, v3, 4, v8
    """)
    a.label("K1_kvs")
    a(f"""
    v_cvt_pk_bf16_f32 v{T}, v{KV}, v{KV+1}
    v_cvt_pk_bf16_f32 v{T+1}, v{KV+2}, v{KV+3}
    v_mov_b32 v{T+2}, v{T}
    v_mov_b32 v{T+3}, v{T+1}
    v_permlane16_swap_b32 v{T}, v{T+2}
    v_permlane16_swap_b32 v{T+1}, v{T+3}
    s_mov_b32 exec_lo, 0xffff
    s_mov_b32 exec_hi, 0xffff
    buffer_store_dwordx4 v[{T}:{T+3}], v8, s[8:11], s35 offen sc1
    s_mov_b64 exec, -1
    v_mov_b32 v7, s58
    v_lshlrev_b32 v8, 14, v2
    s_lshl_b32 s35, s2, {FLS}
    s_add_u32 s35, s35, {WS_FL:#x}
    v_mov_b32 v21, {L_DN}
    """)
    EARLY = 'early' in dbg
    if EARLY: a.label("K1_dn")
    if EARLY: a(f"""
    ds_read_b64 v[22:23], v21
    s_waitcnt vmcnt(0) lgkmcnt(0)
    v_and_b32 v22, v22, v23
    v_cmp_eq_u32 vcc, 0, v22
    s_cbranch_vccnz K1_dn
    s_mov_b64 exec, 0xff
    buffer_store_dword v7, v8, s[8:11], s35 offen sc1
    s_mov_b64 exec, -1
    """)
    a.label("K1_q")
    a("s_barrier")
    p1(3)
    def rd(s, t):
        for half in range(2):
            d = RG + 16 * (s % 3) + 4 * t + 2 * half
            a(f"ds_read_b64_tr_b16 v[{d}:{d+1}], v{13+t} offset:{s*4096 + half*512}")
    for t in range(4): rd(0, t)
    for t in range(4): rd(1, t)
    for s in range(16):
        a(f"s_waitcnt lgkmcnt({8 if s < 15 else 0})")
        for t in range(4):
            d = RG + 16 * (s % 3) + 4 * t
            c = "0" if s == 0 else f"v[{ACC+4*t}:{ACC+4*t+3}]"
            a(f"{m16} v[{ACC+4*t}:{ACC+4*t+3}], v[{d}:{d+3}], v[{X+4*s}:{X+4*s+3}], {c}")
            if s + 2 < 16: rd(s + 2, t)
        if s == PB: a("s_barrier")
        if s == FST and not EARLY:
            a(f"""
            s_cmp_lg_u32 s79, s6
            s_cbranch_scc1 K1_nofl
            s_waitcnt vmcnt(0)
            s_mov_b64 exec, 0xff
            buffer_store_dword v7, v8, s[8:11], s35 offen sc1
            s_mov_b64 exec, -1
            """)
            a.label("K1_nofl")
    a(f"""
    s_lshl_b32 s35, s28, 10
    v_lshrrev_b32 v7, 3, v5
    v_lshlrev_b32 v7, 13, v7
    v_and_b32 v8, 7, v5
    v_lshl_add_u32 v7, v8, 4, v7
    v_lshl_add_u32 v7, v9, 9, v7
    v_lshl_add_u32 v7, v11, 7, v7
    """)
    for tp in range(2):
        for t in (2 * tp, 2 * tp + 1):
            for r in range(4): a(f"v_cvt_pk_bf16_f32 v{ACC+4*t+r}, 0, v{ACC+4*t+r}")
            for r in range(4): a(f"v_mul_f32 v{ACC+4*t+r}, {f2u(0.25 * 1.4426950408889634):#x}, v{ACC+4*t+r}")
            a(f"v_cvt_pk_bf16_f32 v{AF+2*t}, v{ACC+4*t}, v{ACC+4*t+1}")
            a(f"v_cvt_pk_bf16_f32 v{AF+2*t+1}, v{ACC+4*t+2}, v{ACC+4*t+3}")
        b = AF + 4 * tp
        a(f"v_permlane16_swap_b32 v{b}, v{b+2}")
        a(f"v_permlane16_swap_b32 v{b+1}, v{b+3}")
        a(f"buffer_store_dwordx4 v[{b}:{b+3}], v7, s[8:11], s35 offen offset:{256*tp}{SC}")
    a(f"""
    s_cmp_lg_u32 s79, s6
    s_cbranch_scc1 K1_nol
    v_and_b32 v8, 0x3ff, v7
    s_mov_b32 s36, 0x00ff00ff
    s_and_b32 s37, s28, 1
    s_lshl_b32 s37, s37, 3
    s_lshl_b32 exec_lo, s36, s37
    s_mov_b32 exec_hi, exec_lo
    ds_write_b128 v8, v[{AF}:{AF+3}] offset:{L_Q0}
    ds_write_b128 v8, v[{AF+4}:{AF+7}] offset:{L_Q0 + 256}
    s_mov_b64 exec, -1
    """)
    a.label("K1_nol")
    p1(4)
    dstamp(a, 0, True, 200)
    a("s_branch K12_join")
    for k, l in enumerate(a.lines):
        if isinstance(l, Ins):
            t = re.sub(r"\bv(\d+)\b", lambda m: f"v{159 + int(m.group(1))}" if 1 <= int(m.group(1)) <= 15 else m.group(0), l.text)
            if t != l.text: a.lines[k] = Ins(t)
```

```python
from gen import *
import gen as G

L_PART = 0x0; L_Q = 0x6000; L_MREF = 0x8400; L_OB = 0x5800; L_KEY = 0xAC00; L_FLG = 0xAD00; L_MX = 0xB000; L_HB = 0xB400
L_FW = 0xE000; L_TOTAL = 0xE000 + 8 * 7168
L_XS = L_PART; L_RED = L_PART + 0x1000; L_GB = L_PART + 0x2000
C_EXACT = 0.25 * 1.4426950408889634
OFFS = 96.0

def wave_sum(a, vs, ts):
    if isinstance(vs, int): vs, ts = [vs], [ts]
    for mod in ("quad_perm:[1,0,3,2]", "quad_perm:[2,3,0,1]", "row_half_mirror", "row_mirror"):
        for v in vs:
            a(f"v_add_f32_dpp v{v}, v{v}, v{v} {mod} row_mask:0xf bank_mask:0xf")
    for w in (16, 32):
        for v, t in zip(vs, ts): a(f"v_mov_b32 v{t}, v{v}")
        for v, t in zip(vs, ts): a(f"v_permlane{w}_swap_b32 v{t}, v{v}")
        for v, t in zip(vs, ts): a(f"v_add_f32 v{v}, v{v}, v{t}")

class VM:
    def __init__(self, a): self.a = a; self.q = []; self.done = -1
    def issue(self, tag): self.q.append(tag)
    def wait(self, tag):
        i = max(k for k, t in enumerate(self.q) if t == tag)
        if i <= self.done: return
        self.done = i
        self.a(f"s_waitcnt vmcnt({len(self.q) - 1 - i})")

def wave_max_u32(a, v, t):
    for mod in ("quad_perm:[1,0,3,2]", "quad_perm:[2,3,0,1]", "row_half_mirror", "row_mirror"):
        a(f"v_max_u32_dpp v{v}, v{v}, v{v} {mod} row_mask:0xf bank_mask:0xf")
    for w in (16, 32):
        a(f"""
        v_mov_b32 v{t}, v{v}
        v_permlane{w}_swap_b32 v{t}, v{v}
        v_max_u32 v{v}, v{v}, v{t}
        """)

LOG2E = 1.4426950408889634
def sigmoid(a, d, x, t):
    a(f"""
    v_mul_f32 v{t}, {f2u(-LOG2E):#x}, v{x}
    v_exp_f32 v{t}, v{t}
    v_add_f32 v{t}, 1.0, v{t}
    v_rcp_f32 v{d}, v{t}
    """)

def gen_p2(a, dbg='', prio=True):
    SC = ' sc1'
    OPT = dict(x.split('=') for x in dbg.split(',') if '=' in x)
    FLS = int(OPT.get('fls', 4))
    PFS = int(OPT.get('pfs', 0)); PFP = int(OPT.get('pfp', 1))
    TAILST = 'tailst' in dbg
    FS = 'ffnst' in dbg
    KREP = 'nokrep' not in dbg; GREP = 'nogrep' not in dbg
    def st(i, tail):
        if 'p1st' in dbg:
            if tail == 4: stamp(a, i)
        elif 'r0st' in dbg:
            if tail == 3: stamp(a, i)
        elif FS:
            if tail == 2: stamp(a, i)
        elif tail in (True, False) and bool(tail) == TAILST: stamp(a, i)
    K = 16; V = 48; X = [112, 128]; O = 144; CM = 160; SP = 176; Q = 184; OA = 188; WF = 204; BF = 236; S1 = 240
    vQA, vPW, vPR, vPL, vOW, vOR, vLM, vWL, vKL, vVL = 1, 2, 3, 4, 5, 6, 7, 8, 9, 10
    t0, t1, t2, t3, t4 = 11, 12, 13, 14, 15
    vFW, vFR, vFV, vWLs = 9, 13, 14, 15
    vFS, vPA, vPD = SP + 4, SP + 5, SP + 6
    a.label("K12_setup")
    a(f"""
    s_load_dwordx2 s[48:49], s[0:1], 96
    s_load_dwordx2 s[40:41], s[0:1], 0
    s_load_dwordx8 s[60:67], s[0:1], 48
    s_load_dwordx2 s[46:47], s[0:1], 80
    s_waitcnt lgkmcnt(0)
    """)
    a.label("K12_setup1")
    a(f"""
    s_and_b32 s3, s2, 7
    s_lshr_b32 s4, s2, 3
    s_lshl_b32 s7, s3, 8
    s_lshl_b32 s5, s4, 3
    s_add_u32 s7, s7, s5           ; T0
    s_and_b32 s28, s4, 7           ; rot
    v_lshrrev_b32 v{t0}, 6, v0
    v_and_b32 v0, 63, v0
    v_readfirstlane_b32 s6, v{t0}
    s_mov_b32 s30, 0
    v_lshlrev_b32 v{vWL}, 4, v0
    s_mul_i32 s3, s6, {8*TS}
    s_add_u32 s3, s3, {WS_KV:#x}
    """)
    for t in range(8):
        a(f"""
        s_add_u32 s4, s28, {t}
        s_and_b32 s4, s4, 7
        s_mul_i32 s4, s4, {TS}
        s_add_u32 s{50+t}, s3, s4
        """)
    a.label("K2_restart")
    a(f"""
    s_add_u32 s44, s6, 4
    s_and_b32 s44, s44, 7
    s_add_u32 s3, s44, s28
    s_and_b32 s3, s3, 7
    s_andn2_b32 s45, s2, 0x38
    s_lshl_b32 s4, s3, 3
    s_or_b32 s45, s45, s4
    s_lshl_b32 s45, s45, 6
    s_lshr_b32 s4, s28, 1
    s_lshl_b32 s4, s4, 2
    s_add_u32 s45, s45, s4
    s_add_u32 s45, s45, {WS_FQ:#x}
    s_add_u32 s3, s3, s7
    s_lshl_b32 s32, s3, 10
    v_and_b32 v{t1}, 31, v0
    v_lshrrev_b32 v{t2}, 5, v0
    v_mul_u32_u24 v{vVL}, 272, v{t2}
    v_lshl_add_u32 v{vVL}, v{t1}, 4, v{vVL}
    v_cmp_lt_u32 vcc, 16, v{t1}
    v_bfrev_b32 v{t0}, 1
    v_add_u32 v{vQA}, {L_Q:#x}, v{vWL}
    v_cndmask_b32 v{vVL}, v{vVL}, v{t0}, vcc
    """)
    srd(a, 8, 48, 49, WS_SIZE)
    vm = VM(a)
    def ldK(t):
        a(f"buffer_load_dwordx4 v[{K+4*t}:{K+4*t+3}], v{vWL}, s[8:11], s{50+t} offen{SC}"); vm.issue(f"K{t}")
    def ldV(t):
        if 'vmask' in dbg:
            a("s_mov_b32 exec_lo, 0x1ffff"); a("s_mov_b32 exec_hi, 0x1ffff")
            for h in range(2):
                a(f"buffer_load_dwordx4 v[{V+8*t+4*h}:{V+8*t+4*h+3}], v{vVL}, s[8:11], s{50+t} offen offset:{1024 + 544*h}{SC}"); vm.issue(f"V{t}{h}")
            a("s_mov_b64 exec, -1")
            return
        for h in range(2):
            a(f"buffer_load_dwordx4 v[{V+8*t+4*h}:{V+8*t+4*h+3}], v{vVL}, s[8:11], s{50+t} offen offset:{1024 + 544*h}{SC}"); vm.issue(f"V{t}{h}")
    a(f"""
    s_lshl_b32 s3, s44, 10
    v_add_u32 v{t4}, s3, v{vQA}
    """)
    def late_setup(part):
        u0, u1, u2, u3 = S1, S1 + 1, S1 + 2, S1 + 3
        if part == 0:
            srd(a, 16, 40, 41, 0x200000)
            srd(a, 20, 46, 47, 0x200000)
            srd(a, 24, 60, 61, 0x400)
            a(f"""
            v_and_b32 v{u1}, 31, v0
            v_lshrrev_b32 v{u2}, 5, v0
            v_mul_u32_u24 v{vPW}, 80, v{u1}
            s_mul_i32 s3, s6, 2560
            v_add_u32 v{vPW}, s3, v{vPW}
            v_lshl_add_u32 v{SP+3}, v{u2}, 2, v{vPW}
            v_lshl_add_u32 v{vPW}, v{u2}, 4, v{vPW}
            v_lshrrev_b32 v{u0}, 4, v0     ; g
            s_lshr_b32 s3, s6, 1
            s_lshl_b32 s3, s3, 3
            s_and_b32 s4, s6, 1
            s_lshl_b32 s4, s4, 1
            s_add_u32 s3, s3, s4
            v_and_b32 v{u1}, 1, v{u0}
            v_lshl_add_u32 v{u1}, v{u1}, 2, v{u2}
            v_add_u32 v{u1}, s3, v{u1}     ; n = 8*(w>>1) + 2*(w&1) + (g>>1) + 4*(g&1)
            v_mul_u32_u24 v{vPL}, 80, v{u1}
            v_and_b32 v{u2}, 15, v0        ; d
            v_lshl_add_u32 v{vPR}, v{u2}, 2, v{vPL}
            v_and_b32 v{u3}, 7, v0
            v_mul_u32_u24 v{u3}, 2560, v{u3}
            v_add3_u32 v{vPL}, v{vPL}, v{u3}, 64
            s_lshl_b32 s31, s28, 16
            s_lshl_b32 s33, s6, 13
            s_add_u32 s33, s33, {WS_WOF:#x}
            """)
        elif part == 1:
            a(f"""
            v_and_b32 v{u3}, 7, v{u1}      ; token
            v_lshrrev_b32 v{u1}, 3, v{u1}  ; head_local
            v_mul_u32_u24 v{vOW}, 144, v{u3}
            v_lshl_add_u32 v{vOW}, v{u1}, 5, v{vOW}
            v_lshl_add_u32 v{vOW}, v{u2}, 1, v{vOW}
            v_add_u32 v{vOW}, {L_OB:#x}, v{vOW}
            v_and_b32 v{u3}, 7, v0
            v_mul_u32_u24 v{vOR}, 144, v{u3}
            v_lshl_add_u32 v{vOR}, v{u0}, 4, v{vOR}
            v_add_u32 v{vOR}, {L_OB:#x}, v{vOR}
            v_mov_b32 v{vLM}, 0
            v_lshlrev_b32 v{vFR}, 2, v{u3}
            v_add_u32 v{vFR}, {L_FLG:#x}, v{vFR}
            """)
        else:
            a(f"v_pk_mov_b32 v[{SP}:{SP+1}], 0, 0")
            a(f"v_mov_b32 v{SP+2}, 0xdddddddd")
    def rd_qcm():
        a(f"ds_read_b128 v[{Q}:{Q+3}], v{vQA}")
        for k in range(4):
            a(f"ds_read_b128 v[{CM+4*k}:{CM+4*k+3}], v{vQA} offset:{L_MREF - L_Q}")
        a(f"v_add_u32 v{vQA}, 1024, v{vQA}")
    mf = "v_mfma_f32_32x32x16_bf16"
    def M1(kt, xb):
        if 'nom1' in dbg: a("s_nop 1"); return
        a(f"{mf} v[{X[xb]}:{X[xb]+15}], v[{K+4*kt}:{K+4*kt+3}], v[{Q}:{Q+3}], v[{CM}:{CM+15}]")
    def E(xb, lo, hi):
        for r in range(lo, hi):
            if 'expnop' in dbg:
                a("v_nop"); a("v_nop")
                continue
            if 'noexp' in dbg:
                a(f"v_cvt_pk_bf16_f32 v{X[xb]+r}, 0, v{X[xb]+r}"); a(f"v_cvt_pk_bf16_f32 v{X[xb]+r}, 0, v{X[xb]+r}")
                continue
            a(f"v_exp_f32 v{X[xb]+r}, v{X[xb]+r}")
    def C2(h, xb):
        for k in range(4):
            a(f"v_cvt_pk_bf16_f32 v{SP+4*h+k}, v{X[xb]+8*h+2*k}, v{X[xb]+8*h+2*k+1}")
    def M3(h, kt):
        xb = kt & 1
        if 'nom3' in dbg: a("s_nop 2"); return
        a(f"v_smfmac_f32_32x32x32_bf16 v[{O}:{O+15}], v[{V+8*kt+4*h}:{V+8*kt+4*h+3}], v[{X[xb]+8*h}:{X[xb]+8*h+7}], v{SP+2}")
    def Ozero():
        a(f"v_mfma_f32_32x32x8bf16_1k v[{O}:{O+15}], v[{SP}:{SP+1}], v[{SP}:{SP+1}], 0")
    def part_write():
        a(f"""
        ds_write_b128 v{vPW}, v[{O}:{O+3}]
        ds_write_b128 v{vPW}, v[{O+4}:{O+7}] offset:32
        ds_write_b32 v{SP+3}, v{O+8} offset:64
        """)
    def s1_read():
        a(f"ds_read_b32 v{S1+8}, v{vPL}")
        for k in range(4):
            a(f"ds_read2st64_b32 v[{S1+2*k}:{S1+2*k+1}], v{vPR} offset0:{20*k} offset1:{20*k+10}")
    def s1_calc():
        dp = lambda mod: f"v_add_f32_dpp v{S1+8}, v{S1+8}, v{S1+8} {mod} row_mask:0xf bank_mask:0xf"
        pa = (lambda x, y: f"v_add_f32 v{x}, v{x}, v{y}\nv_add_f32 v{x+1}, v{x+1}, v{y+1}") if 's1sc' in dbg else \
             (lambda x, y: f"v_pk_add_f32 v[{x}:{x+1}], v[{x}:{x+1}], v[{y}:{y+1}]")
        a(f"""
        {dp("quad_perm:[1,0,3,2]")}
        {pa(S1, S1+2)}
        {pa(S1+4, S1+6)}
        {dp("quad_perm:[2,3,0,1]")}
        {pa(S1, S1+4)}
        v_add_f32 v{S1}, v{S1}, v{S1+1}
        {dp("row_half_mirror")}
        v_rcp_f32 v{S1+1}, v{S1+8}
        v_maximum3_f32 v{vLM}, v{vLM}, v{S1+8}, abs(v{S1})
        v_mul_f32 v{S1}, v{S1}, v{S1+1}
        v_cvt_pk_bf16_f32 v{S1}, v{S1}, v{S1}
        ds_write_b16 v{vOW}, v{S1}
        """)
    def s2_read():
        for s in range(2):
            a(f"ds_read_b128 v[{BF+4*s}:{BF+4*s+3}], v{vOR} offset:{64*s}")
    def s2_mma(lo, hi):
        for u in range(lo, hi):
            s, t = u >> 2, u & 3
            a(f"v_mfma_f32_16x16x32_bf16 v[{OA+4*t}:{OA+4*t+3}], v[{WF+4*u}:{WF+4*u+3}], v[{BF+4*s}:{BF+4*s+3}], v[{OA+4*t}:{OA+4*t+3}]")
    def wf_load(lo, hi):
        if lo == 0:
            a("s_add_u32 s34, s33, s31")
            a("s_add_u32 s35, s34, 4096")
            a("s_add_u32 s31, s31, 0x10000")
            a("s_and_b32 s31, s31, 0x7ffff")
        for u in range(lo, hi):
            a(f"buffer_load_dwordx4 v[{WF+4*u}:{WF+4*u+3}], v{vWL}, s[8:11], s{34 + (u >> 2)} offen offset:{1024*(u&3)}{SC}")
            vm.issue("WF")
    def ffn_prefetch():
        a(f"""
        s_mov_b32 s39, s6
        s_cmp_eq_u32 s39, 1
        s_cselect_b64 s[36:37], s[64:65], s[62:63]
        s_cmp_eq_u32 s39, 2
        s_cselect_b64 s[36:37], s[66:67], s[36:37]
        """)
        srd(a, 12, 36, 37, 512 * 1792 * 2)
        a(f"""
        s_and_b32 s3, s2, 7
        s_lshr_b32 s4, s2, 3
        s_mul_i32 s5, s4, {16*3584}
        s_mul_i32 s36, s3, 448
        s_and_b32 s36, s36, 0xffffff80
        s_add_u32 s5, s5, s36
        s_lshl_b32 s36, s3, 7
        s_mul_i32 s37, s4, {56*1024}
        s_add_u32 s36, s36, s37
        v_lshrrev_b32 v{t0}, 2, v0
        v_mul_u32_u24 v{t0}, 3584, v{t0}
        v_and_b32 v{t1}, 3, v0
        v_lshl_add_u32 v{t0}, v{t1}, 7, v{t0}
        v_min_u32 v{t1}, 55, v0
        v_lshlrev_b32 v{t1}, 10, v{t1}
        s_cmp_eq_u32 s39, 2
        s_cselect_b32 s38, s36, s5
        s_cselect_b64 vcc, -1, 0
        v_cndmask_b32 v{vPA}, v{t0}, v{t1}, vcc
        s_lshl_b32 s39, s6, {PFS}
        s_add_u32 s39, s39, 1
        s_cmp_gt_u32 s6, 2
        s_cselect_b32 s39, 99, s39
        """)
    def ffn_setup():
        a(f"""
        s_and_b32 s3, s2, 7
        s_lshr_b32 s4, s2, 3
        s_and_b32 s5, s6, 1
        s_cmp_eq_u32 s5, 0
        s_cselect_b64 s[36:37], s[62:63], s[64:65]
        s_cmp_lt_u32 s2, 112
        s_cselect_b64 s[36:37], s[36:37], s[66:67]
        """)
        srd(a, 68, 36, 37, 512 * 1792 * 2)
        a(f"""
        s_mul_i32 s76, s3, 14
        s_add_u32 s76, s76, s4           ; fs
        s_lshl_b32 s77, s3, 2
        s_add_u32 s77, s77, s4
        s_sub_u32 s77, s77, 14           ; cb
        s_lshr_b32 s5, s6, 1
        s_mul_i32 s5, s5, {128*3584}
        s_lshl_b32 s36, s76, 5
        s_add_u32 s5, s5, s36
        s_mul_i32 s36, s6, {224*1024}
        s_lshl_b32 s37, s77, 5
        s_add_u32 s36, s36, s37
        s_cmp_lt_u32 s2, 112
        s_cselect_b32 s72, s5, s36
        s_movk_i32 s73, 1024
        s_cselect_b32 s73, 3584, s73
        s_cselect_b32 s75, 4, 7
        s_cmp_lt_u32 s2, 144
        s_cselect_b32 s75, s75, 0
        s_mul_i32 s74, s6, 7168
        s_add_u32 s74, s74, {L_FW:#x}
        v_lshrrev_b32 v{vFS}, 1, v0
        v_mul_lo_u32 v{vFS}, v{vFS}, s73
        v_and_b32 v{t1}, 1, v0
        v_lshl_add_u32 v{vFS}, v{t1}, 4, v{vFS}
        s_lshl_b32 s73, s73, 5
        s_mov_b32 s78, s74
        """)
    def ffn_stage():
        a(f"""
        s_cmp_lt_u32 s29, 4
        s_cbranch_scc1 K2_nost
        """)
        for e in range(2):
            a(f"""
            s_cmp_eq_u32 s75, 0
            s_cbranch_scc1 K2_nost
            s_mov_b32 m0, s78
            s_sub_u32 s75, s75, 1
            buffer_load_dwordx4 v{vFS}, s[68:71], s72 offen lds
            s_add_u32 s78, s78, 1024
            s_add_u32 s72, s72, s73
            """)
        a.label("K2_nost")
    def ffn_issue():
        a(f"""
        s_cmp_lg_u32 s29, s39
        s_cbranch_scc1 K2_nopf
        buffer_load_dword v{vPD}, v{vPA}, s[12:15], s38 offen
        """)
        a.label("K2_nopf")
    def setprio(p):
        if prio: a(f"s_setprio {p}")
    def mref_mma(q, d):
        a(f"{mf} v[{d}:{d+15}], v[{K}:{K+3}], v[{q}:{q+3}], 0")
        a(f"{mf} v[{d+16}:{d+31}], v[{K+4}:{K+7}], v[{q}:{q+3}], 0")
    def mref_max(S):
        a(f"v_max3_f32 v{t0}, v{S}, v{S+1}, v{S+2}")
        for r in range(3, 31, 2):
            a(f"v_max3_f32 v{t0}, v{t0}, v{S+r}, v{S+r+1}")
        a(f"""
        v_max_f32 v{t0}, v{t0}, v{S+31}
        v_mov_b32 v{t1}, v{t0}
        v_permlane32_swap_b32 v{t1}, v{t0}
        v_max_f32 v{t0}, v{t0}, v{t1}
        """)
        for r in range(4): a(f"v_sub_f32 v{S+r}, {f2u(-OFFS):#x}, v{t0}")
        a(f"ds_write_b128 v{t4}, v[{S}:{S+3}] offset:{L_MREF - L_Q}")
    def kv_first():
        ldK(0); ldK(1); ldV(0); ldK(2); ldV(1)
    for p in range(3): late_setup(p)
    ffn_prefetch(); ffn_setup()
    a(f"""
    s_lshl_b32 s3, s6, 2
    s_add_u32 s3, s3, {L_FLG:#x}
    v_mov_b32 v{vFW}, s3
    s_movk_i32 s59, {L_Q + 2048:#x}
    s_lshl_b32 s3, s30, 2
    s_or_b32 s3, s3, s6
    s_cmp_lt_u32 s3, 4
    s_cbranch_scc1 K1_comp
    """)
    a.label("K12_join")
    for r in range(0, 16, 2):
        a(f"v_pk_mov_b32 v[{OA+r}:{OA+r+1}], 0, 0")
    def fq_store():
        a(f"""
        v_mov_b32 v{t0}, s58
        s_lshl_b32 s3, s2, 6
        s_lshl_b32 s4, s6, 2
        s_add_u32 s3, s3, s4
        s_add_u32 s3, s3, {WS_FQ:#x}
        s_waitcnt vmcnt(7)
        s_mov_b64 exec, 1
        buffer_store_dword v{t0}, v{SP}, s[8:11], s3 offen sc1
        s_mov_b64 exec, -1
        """)
        vm.issue("FQS")
    a(f"""
    ds_write2_b32 v{vFW}, v{SP}, v{SP} offset0:0 offset1:8
    s_cmp_lg_u32 s30, 0
    s_cbranch_scc1 K2_safe
    s_cmp_eq_u32 s6, 4
    s_cbranch_scc1 K2_poller
    s_waitcnt lgkmcnt(0)
    s_barrier
    """)
    st(1, False); st(5, 4)
    if 'amp' in dbg: a('s_memrealtime s[88:89]'); a('s_waitcnt lgkmcnt(0)')
    kv_first()
    fq_store()
    a("s_branch K2_go")
    a.label("K2_poller")
    PA, PB = X[0], X[0] + 8
    a(f"""
    v_lshlrev_b32 v{t1}, {FLS}, v0
    s_and_b32 s3, s2, 7
    s_lshl_b32 s3, s3, 14
    s_add_u32 s3, s3, {WS_FL:#x}
    s_add_u32 s4, s3, {64 << FLS}
    s_add_u32 s5, s3, {128 << FLS}
    s_add_u32 s34, s3, {192 << FLS}
    s_mov_b32 s36, 0
    """)
    def fissue(b):
        for k, sr in enumerate(("s3", "s4", "s5", "s34")):
            a(f"buffer_load_dword v{b+k}, v{t1}, s[8:11], {sr} offen sc1")
    def fchk(b):
        for r in range(4): a(f"v_xor_b32 v{b+r}, s58, v{b+r}")
        a(f"""
        v_or3_b32 v{b}, v{b}, v{b+1}, v{b+2}
        v_or_b32 v{b}, v{b}, v{b+3}
        v_cmp_ne_u32 vcc, 0, v{b}
        s_cbranch_vccz K2_sync0
        """)
    if int(OPT.get('fd', 0)): a(f"s_sleep {OPT.get('fd', 0)}")
    if 'fnp' in dbg:
        a.label("K2_fl")
        fissue(PA); a("s_waitcnt vmcnt(0)"); fchk(PA)
        a(f"s_sleep {OPT.get('fsl', 2)}")
    else:
        fissue(PA)
        a("s_sleep 3")
        a.label("K2_fl")
        fissue(PB); a("s_waitcnt vmcnt(4)"); fchk(PA)
        fissue(PA); a("s_waitcnt vmcnt(4)"); fchk(PB)
    a(f"""
    s_add_u32 s36, s36, 1
    s_cmp_lt_u32 s36, 0x40000
    s_cbranch_scc1 K2_fl
    """)
    a.label("K2_sync0")
    st(4, 4)
    a(f"""
    s_cmp_lg_u32 s2, 0
    s_cbranch_scc1 K2_sync1
    v_mov_b32 v{t0}, s58
    s_mov_b32 s3, {WS_EP:#x}
    s_mov_b64 exec, 1
    buffer_store_dword v{t0}, v{SP}, s[8:11], s3 offen sc1
    s_mov_b64 exec, -1
    """)
    a.label("K2_sync1")
    vm.q = []; vm.done = -1
    ldK(0); ldK(1)
    a("s_waitcnt lgkmcnt(0)")
    a("s_barrier")
    st(1, False); st(5, 4)
    if 'amp' in dbg: a('s_memrealtime s[88:89]'); a('s_waitcnt lgkmcnt(0)')
    a(f"ds_read_b128 v[{Q}:{Q+3}], v{vQA}")
    ldV(0); ldK(2); ldV(1)
    a("s_waitcnt vmcnt(5) lgkmcnt(0)")
    mref_mma(Q, X[0]); mref_max(X[0])
    fq_store()
    a("s_branch K2_go")
    a.label("K2_safe")
    S = X[0]
    a(f"""
    v_and_b32 v{t0}, 31, v0
    v_lshlrev_b32 v{S1+4}, 2, v{t0}
    v_add_u32 v{S1+4}, {L_MX:#x}, v{S1+4}
    s_lshl_b32 s3, s44, 7
    v_add_u32 v{S1+5}, s3, v{S1+4}
    v_mov_b32 v{t0}, 0xff800000
    ds_write_b32 v{S1+5}, v{t0}
    s_waitcnt vmcnt(0) lgkmcnt(0)
    s_barrier
    v_mov_b32 v{t1}, v{vQA}
    s_mov_b32 s29, 0
    """)
    a.label("K2_safe_loop")
    a(f"""
    ds_read_b128 v[{BF}:{BF+3}], v{t1}
    v_mov_b32 v{t0}, 0xff800000
    s_waitcnt lgkmcnt(0)
    """)
    for t in range(8):
        a(f"v_mfma_f32_32x32x16_bf16 v[{S}:{S+15}], v[{K+4*t}:{K+4*t+3}], v[{BF}:{BF+3}], 0")
        for r in range(0, 16, 2):
            a(f"v_max3_f32 v{t0}, v{t0}, v{S+r}, v{S+r+1}")
    a(f"""
    ds_max_f32 v{S1+4}, v{t0}
    v_add_u32 v{t1}, 1024, v{t1}
    v_add_u32 v{S1+4}, 128, v{S1+4}
    s_add_u32 s29, s29, 1
    s_cmp_lt_u32 s29, 8
    s_cbranch_scc1 K2_safe_loop
    s_waitcnt lgkmcnt(0)
    s_barrier
    ds_read_b32 v{t0}, v{S1+5}
    s_waitcnt lgkmcnt(0)
    """)
    for r in range(4): a(f"v_sub_f32 v{BF+r}, 0, v{t0}")
    a(f"ds_write_b128 v{t4}, v[{BF}:{BF+3}] offset:{L_MREF - L_Q}")
    a.label("K2_go")
    a("s_waitcnt lgkmcnt(0)")
    a("s_barrier")
    st(2, False)
    rd_qcm()
    vm.wait("K0")
    a("s_waitcnt lgkmcnt(0)")
    M1(0, 0)
    a("s_mov_b32 s29, 1")
    P0 = OPT.get('p0', '33322111')
    setprio(int(P0[0]))
    LA = int(OPT.get('la', 0))
    for k in range(LA + 1):
        ldK(3 + k); ldV(2 + k)
    st(3, False)
    if 'leak' in dbg or 'amp' in dbg: a('s_memrealtime s[94:95]'); a('s_waitcnt lgkmcnt(0)')
    def tile(i, hook):
        xb = i & 1; xn = xb ^ 1
        hook(i, 'a')
        E(xb, 0, 2)
        hook(i, 'm3b')
        E(xb, 2, 5)
        hook(i, 'm1')
        M1((i + 1) & 7, xn)
        hook(i, 0)
        if i == 0:
            E(xb, 5, 12)
            hook(i, 1)
            Ozero()
            E(xb, 12, 16)
            M3(0, i)
            hook(i, 2)
        else:
            E(xb, 5, 8)
            hook(i, 'e1')
            E(xb, 8, 10)
            hook(i, 1)
            M3(0, i)
            hook(i, 2)
            E(xb, 10, 13)
            hook(i, 'e2')
            E(xb, 13, 15)
            hook(i, 'e3')
            E(xb, 15, 16)
    def hook0(i, pos):
        if pos == 'a' and i in (0, 2, 4, 6): st(1 + i // 2, 3)
        if pos == 'a' and i > 0 and P0[i] != P0[i - 1]: setprio(int(P0[i]))
        if pos == 'm3b' and i > 0:
            vm.wait(f"V{i-1}1"); M3(1, i - 1)
        if pos == 'm1':
            if i < 7: vm.wait(f"K{i+1}")
            else: a("s_waitcnt lgkmcnt(0)")
        if pos == 0:
            if i + 4 + LA <= 7: ldK(i + 4 + LA)
            if i + 3 + LA <= 7: ldV(i + 3 + LA)
            if i == 6: wf_load(0, 4)
            if i == 7: wf_load(4, 8)
        QT = int(OPT.get('qt', 1))
        if pos == 'e1' and i == QT:
            a(f"buffer_load_dword v{t0}, v{SP}, s[8:11], s45 offen sc1"); vm.issue("FQ")
        if pos == 'e1' and i == QT + 1:
            vm.wait("FQ")
            a(f"v_cmp_ne_u32 vcc, s58, v{t0}")
            a("s_cbranch_vccnz K2_qspin")
            a.label("K2_qback")
            a(f"buffer_load_dwordx4 v[{BF}:{BF+3}], v{vWL}, s[8:11], s32 offen sc1"); vm.issue("Q")
        if pos == 'e2' and i == int(OPT.get('qw', 4)):
            vm.wait("Q")
            a(f"ds_write_b128 v{t4}, v[{BF}:{BF+3}]")
            mref_mma(BF, WF)
        if pos == 'e1' and i == int(OPT.get('qw', 4)) + 1:
            a("s_cmp_lg_u32 s30, 0")
            a("s_cbranch_scc1 K2_keepm")
            mref_max(WF)
            a.label("K2_keepm")
        if pos == 1:
            if i == 6:
                a("s_waitcnt lgkmcnt(0)"); a("s_barrier"); rd_qcm()
            vm.wait(f"V{i}0")
        if pos == 2 and i == 7:
            vm.wait("V71")
    for i in range(8): tile(i, hook0)
    st(5, 3)
    a.raw(".p2align 3")
    a.label("K2_round")
    spins = []
    def poll(off):
        a(f"ds_read_b32 v{vFV}, v{vFR} offset:{off}")
    def check(off):
        k = len(spins); spins.append(off)
        a(f"""
        s_waitcnt lgkmcnt(0)
        v_cmp_gt_u32 vcc, s59, v{vFV}
        s_cbranch_vccnz K2_spin{k}
        """)
        a.label(f"K2_back{k}")
    PR = dict(x.split('=') for x in dbg.split(',') if '=' in x).get('pr', 'c')
    def hook(i, pos):
        if pos == 'm3b': M3(1, (i - 1) & 7)
        if pos == 'm1' and i == 7: a("s_waitcnt lgkmcnt(0)")
        if pos == 1 and i == 6: rd_qcm()
        if 'nohook' in dbg: return
        if 'bar' in dbg.split(','):
            if pos == 'a' and i in (0, 6, 7): setprio({6: 2, 7: 1, 0: 0}[i])
            if i == 0 and pos == 1: part_write()
            if i == 1 and pos == 0:
                a("s_waitcnt lgkmcnt(0)"); a("s_barrier"); setprio(2); s1_read()
            if i == 2 and pos == 0:
                a("s_waitcnt lgkmcnt(0)"); s1_calc(); setprio(1)
            if i == 3 and pos == 0: setprio(0)
            if i == 4 and pos == 0:
                a("s_waitcnt vmcnt(0) lgkmcnt(0)"); a("s_barrier"); setprio(3); s2_read()
            seq = [(4, 'e3'), (5, 'e1'), (5, 'e2'), (5, 'e3'), (6, 'e1'), (6, 'e2'), (6, 'e3'), (7, 'e1')]
        else:
            ca = int(OPT.get('ca', 2)); cb = int(OPT.get('cb', 5)); PT = OPT.get('pt', '10110321')
            slots = [(t, p) for t in range(1, 8) for p in (('a', 'e1', 'e2', 'e3') if cb >= 6 else ('e1', 'e2', 'e3'))]
            if i == 0 and pos == 1:
                part_write(); a(f"ds_write_b32 v{vFW}, v{vQA}")
            if i == ca and pos == 0: poll(0)
            if i == ca and pos == 2: check(0); s1_read()
            if i == ca + 1 and pos == {'0': 0, '1': 'e1', '2': 'e2', '3': 'a'}[OPT.get('s1p', '0')]:
                a("s_waitcnt lgkmcnt(0)"); s1_calc(); a(f"ds_write_b32 v{vFW}, v{vQA} offset:32")
            if i == cb - 1 and pos == 2: poll(32)
            if i == cb and pos == 'm1':
                check(32); s2_read(); a("s_waitcnt vmcnt(0)")
            if len(PT) == 8: PT = "".join(ch * 2 for ch in PT)
            for hpos, k in (('a', 2 * i), (2, 2 * i + 1)):
                if pos == hpos and PT[k] != PT[k - 1]: setprio(int(PT[k]))
            av = [x for x in slots if x > (cb, 'e1')]
            if OPT.get('sp', '0') == '1' and len(av) >= 12: av = [x for x in av if x[1] != 'e3']
            seq = av[:8]
            while len(seq) < 8: seq = sorted(seq + [seq[len(seq) % len(av)]])
        for u in [k for k, x in enumerate(seq) if x == (i, pos)]:
            if u == 0: a("s_waitcnt lgkmcnt(0)")
            s2_mma(u, u + 1)
            if 'nowf' not in dbg: wf_load(u, u + 1)
            if u == 7 and 'nopf' not in dbg and PFP == 1: ffn_issue(); ffn_stage()
    for i in range(8): tile(i, hook)
    if 'rndst' in dbg:
        a(f"""
        s_memtime s[82:83]
        s_memrealtime s[100:101]
        s_waitcnt lgkmcnt(0)
        s_lshl_b32 s84, s2, 3
        s_add_u32 s84, s84, s6
        s_lshl_b32 s84, s84, 3
        s_add_u32 s84, s84, s29
        s_lshl_b32 s84, s84, 3
        s_add_u32 s84, s84, {WS_STAMP + 0x40000:#x}
        s_mov_b64 exec, 1
        v_mov_b32 v{S1+8}, s82
        v_mov_b32 v{S1+9}, s100
        v_mov_b32 v{S1+10}, 0
        buffer_store_dwordx2 v[{S1+8}:{S1+9}], v{S1+10}, s[8:11], s84 offen
        s_mov_b64 exec, -1
        """)
    a(f"""
    s_addk_i32 s59, 1024
    s_add_u32 s29, s29, 1
    s_cmp_lt_u32 s29, 8
    s_cbranch_scc1 K2_round
    """)
    st(4, False); st(0, True)
    if 'amp' in dbg: a('s_memrealtime s[98:99]'); a('s_waitcnt lgkmcnt(0)')
    M3(1, 7)
    XR = CM; WR = CM + 4; HV = X[0]; HN = X[0] + 8; PK = X[1]; ST = X[1] + 8
    a(f"""
    s_add_u32 s3, s7, s6
    s_lshl_b32 s4, s3, 10
    buffer_load_dwordx4 v[{XR}:{XR+3}], v{vWL}, s[16:19], s4 offen
    buffer_load_dwordx4 v[{WR}:{WR+3}], v{vWL}, s[24:27], 0 offen
    v_and_b32 v{t0}, 7, v0
    v_mul_u32_u24 v{t0}, 1040, v{t0}
    v_lshrrev_b32 v{t1}, 4, v0
    v_lshl_add_u32 v{t0}, v{t1}, 3, v{t0}
    s_lshl_b32 s5, s6, 7
    s_add_u32 s5, s5, {L_HB:#x}
    v_add_u32 v{t0}, s5, v{t0}
    s_mul_i32 s5, s6, 1040
    s_add_u32 s5, s5, {L_HB:#x}
    v_add_u32 v{t1}, s5, v{vWL}
    s_lshl_b32 s35, s6, 2
    s_add_u32 s35, s35, {L_KEY:#x}
    v_mov_b32 v{t4}, s35
    v_and_b32 v{t3}, 7, v0
    v_lshlrev_b32 v{t3}, 2, v{t3}
    v_add_u32 v{t3}, {L_KEY:#x}, v{t3}
    """)
    part_write()
    a("s_waitcnt lgkmcnt(0)"); a("s_barrier"); st(1, True); s1_read()
    a("s_waitcnt lgkmcnt(0)"); s1_calc()
    a(f"""
    v_mov_b32 v{t2}, {f2u(2.0**124):#x}
    v_cmp_nlt_f32 vcc, v{vLM}, v{t2}
    s_cmp_lg_u64 vcc, 0
    s_cselect_b32 s5, 1, 0
    v_mov_b32 v{t2}, s5
    ds_write_b32 v{t4}, v{t2} offset:32
    """)
    a("s_waitcnt vmcnt(2) lgkmcnt(0)"); a("s_barrier"); st(2, True); s2_read()
    a(f"ds_read_b32 v{t2}, v{t3} offset:32")
    a("s_waitcnt lgkmcnt(1)"); s2_mma(0, 8)
    a(f"""
    s_waitcnt lgkmcnt(0)
    v_cmp_ne_u32 vcc, 0, v{t2}
    s_cmp_eq_u64 vcc, 0
    s_cbranch_scc1 K2_good
    s_cmp_lg_u32 s30, 0
    s_cbranch_scc1 K2_good
    s_mov_b32 s30, 1
    s_waitcnt vmcnt(0)
    s_setprio 0
    s_branch K2_restart
    """)
    a.label("K2_good")
    for t in range(4):
        a(f"v_cvt_pk_bf16_f32 v{S1+2*t}, v{OA+4*t}, v{OA+4*t+1}")
        a(f"v_cvt_pk_bf16_f32 v{S1+2*t+1}, v{OA+4*t+2}, v{OA+4*t+3}")
        a(f"ds_write_b64 v{t0}, v[{S1+2*t}:{S1+2*t+1}] offset:{32*t}")
    a("s_waitcnt vmcnt(0)")
    for r in range(4):
        a(f"v_lshlrev_b32 v{HV+2*r}, 16, v{XR+r}")
        a(f"v_and_b32 v{HV+2*r+1}, 0xffff0000, v{XR+r}")
        a(f"v_lshlrev_b32 v{WF+2*r}, 16, v{WR+r}")
        a(f"v_and_b32 v{WF+2*r+1}, 0xffff0000, v{WR+r}")
    a(f"""
    s_waitcnt lgkmcnt(0)
    s_barrier
    """)
    st(3, True)
    a(f"""
    ds_read_b128 v[{BF}:{BF+3}], v{t1}
    s_waitcnt lgkmcnt(0)
    """)
    for r in range(4):
        a(f"v_lshlrev_b32 v{HN+2*r}, 16, v{BF+r}")
        a(f"v_and_b32 v{HN+2*r+1}, 0xffff0000, v{BF+r}")
    P2 = lambda b, r: f"v[{b+r}:{b+r+1}]"
    for r in range(0, 8, 2): a(f"v_pk_add_f32 {P2(HV,r)}, {P2(HV,r)}, {P2(HN,r)}")
    for r in range(8): a(f"v_cvt_pk_bf16_f32 v{HV+r}, 0, v{HV+r}")
    SA, SB = S1, S1 + 2
    a(f"v_pk_add_f32 {P2(SA,0)}, {P2(HV,0)}, {P2(HV,2)}")
    a(f"v_pk_mul_f32 {P2(SB,0)}, {P2(HV,0)}, {P2(HV,0)}")
    a(f"v_pk_add_f32 {P2(SA,4)}, {P2(HV,4)}, {P2(HV,6)}")
    a(f"v_pk_fma_f32 {P2(SB,0)}, {P2(HV,2)}, {P2(HV,2)}, {P2(SB,0)}")
    a(f"v_pk_add_f32 {P2(SA,0)}, {P2(SA,0)}, {P2(SA,4)}")
    a(f"v_pk_fma_f32 {P2(SB,0)}, {P2(HV,4)}, {P2(HV,4)}, {P2(SB,0)}")
    a(f"v_add_f32 v{t0}, v{SA}, v{SA+1}")
    a(f"v_pk_fma_f32 {P2(SB,0)}, {P2(HV,6)}, {P2(HV,6)}, {P2(SB,0)}")
    a(f"v_add_f32 v{t2}, v{SB}, v{SB+1}")
    wave_sum(a, [t0, t2], [ST, ST + 1])
    ln_scalars(a, t0, t2, ST, ST + 2, ST + 1, ST + 3)
    st(4, True)
    for r in range(0, 8, 2): a(f"v_pk_add_f32 {P2(HN,r)}, {P2(HV,r)}, {P2(ST,0)} op_sel_hi:[1,0] neg_lo:[0,1] neg_hi:[0,1]")
    for r in range(8): a(f"v_cvt_pk_bf16_f32 v{HN+r}, 0, v{HN+r}")
    for r in range(0, 8, 2): a(f"v_pk_mul_f32 {P2(HN,r)}, {P2(HN,r)}, {P2(ST,2)} op_sel_hi:[1,0]")
    for r in range(8): a(f"v_cvt_pk_bf16_f32 v{HN+r}, 0, v{HN+r}")
    a(f"v_pk_mul_f32 {P2(SA,0)}, {P2(HN,0)}, {P2(WF,0)}")
    for r in range(2, 8, 2): a(f"v_pk_fma_f32 {P2(SA,0)}, {P2(HN,r)}, {P2(WF,r)}, {P2(SA,0)}")
    a(f"v_add_f32 v{t2}, v{SA}, v{SA+1}")
    fill = [f"v_pk_add_f32 {P2(WF+8,r)}, {P2(HV,r)}, {P2(HN,r)}" for r in range(0, 8, 2)]
    fill += [f"v_cvt_pk_bf16_f32 v{PK+4+r}, v{HV+2*r}, v{HV+2*r+1}" for r in range(4)]
    fill += [f"v_cvt_pk_bf16_f32 v{ST+4+r}, v{HN+2*r}, v{HN+2*r+1}" for r in range(4)]
    for mod in ("quad_perm:[1,0,3,2]", "quad_perm:[2,3,0,1]", "row_half_mirror", "row_mirror"):
        a(fill.pop(0)); a(fill.pop(0))
        a(f"v_add_f32_dpp v{t2}, v{t2}, v{t2} {mod} row_mask:0xf bank_mask:0xf")
    for w in (16, 32):
        a(f"v_mov_b32 v{t0}, v{t2}")
        a(fill.pop(0)); a(fill.pop(0))
        a(f"v_permlane{w}_swap_b32 v{t0}, v{t2}")
        a(f"v_add_f32 v{t2}, v{t2}, v{t0}")
    if 'leak' in dbg:
        a(f"""
        s_cmp_lg_u32 s3, 0
        s_cbranch_scc1 K2_leak
        s_memrealtime s[92:93]
        v_mov_b32 v{S1+4}, 0
        s_mov_b32 s5, {WS_SEL:#x}
        buffer_load_dwordx4 v[{S1}:{S1+3}], v{S1+4}, s[8:11], s5 offen
        s_waitcnt vmcnt(0) lgkmcnt(0)
        s_mov_b64 exec, 1
        v_add_f32 v{WF+8}, {f2u(64.0):#x}, v{WF+8}
        v_sub_u32 v{WF+9}, v{S1+2}, v{S1}
        v_sub_u32 v{WF+10}, v{S1+1}, v{S1}
        v_sub_u32 v{WF+11}, s90, v{S1}
        v_sub_u32 v{WF+12}, s94, v{S1}
        v_sub_u32 v{WF+13}, s92, v{S1}
        """)
        for r in range(9, 14):
            a(f"v_cvt_f32_u32 v{WF+r}, v{WF+r}")
            a(f"v_mul_f32 v{WF+r}, {f2u(0.005):#x}, v{WF+r}")
            a(f"v_min_f32 v{WF+r}, {f2u(20.0):#x}, v{WF+r}")
        a("s_mov_b64 exec, -1")
        a.label("K2_leak")
    a(f"""
    v_cvt_pk_bf16_f32 v{t2}, 0, v{t2}
    v_ashrrev_i32 v{t0}, 31, v{t2}
    v_or_b32 v{t0}, 0x80000000, v{t0}
    v_xor_b32 v{t2}, v{t2}, v{t0}
    v_and_b32 v{t2}, 0xffff0000, v{t2}
    s_sub_u32 s5, 0xffff, s3
    v_or_b32 v{t2}, s5, v{t2}      ; key
    ds_write_b32 v{t4}, v{t2}
    """)
    for r in range(4): a(f"v_cvt_pk_bf16_f32 v{PK+r}, v{WF+8+2*r}, v{WF+8+2*r+1}")
    a(f"""
    buffer_store_dwordx4 v[{PK}:{PK+3}], v{vWL}, s[20:23], s4 offen sc1
    """)
    a(f"""
    s_waitcnt lgkmcnt(0)
    s_barrier
    ds_read_b32 v{t1}, v{t3}
    s_waitcnt lgkmcnt(0)
    v_cmp_gt_u32 vcc, v{t1}, v{t2}
    v_cmp_eq_u32 s[36:37], v{t1}, v{t2}
    s_and_b32 s38, vcc_lo, 0xff
    s_bcnt1_i32_b32 s38, s38       ; rank
    """)
    st(5, False); st(5, True); st(0, 2); st(1, 2); st(2, 2); st(3, 2); st(4, 2); st(5, 2)
    a(f"""
    s_cmp_gt_u32 s38, 1
    s_cbranch_scc1 K2_pub0
    s_add_u32 s5, s4, {WS_H:#x}
    buffer_store_dwordx4 v[{PK+4}:{PK+7}], v{vWL}, s[8:11], s5 offen sc1
    s_add_u32 s5, s4, {WS_HN:#x}
    buffer_store_dwordx4 v[{ST+4}:{ST+7}], v{vWL}, s[8:11], s5 offen sc1
    v_cndmask_b32 v{ST+1}, v{t1}, 0, s[36:37]
    v_mov_b32 v{ST}, v{t2}
    s_lshl_b32 s5, s2, {G.KS_LOG}
    s_add_u32 s5, s5, {WS_KEY:#x}
    v_lshlrev_b32 v{t0}, 14, v0
    """)
    for mod in ("quad_perm:[1,0,3,2]", "quad_perm:[2,3,0,1]", "row_half_mirror"):
        a(f"v_max_u32_dpp v{ST+1}, v{ST+1}, v{ST+1} {mod} row_mask:0xf bank_mask:0xf")
    a("s_waitcnt vmcnt(0)")
    a.label("K2_pub0")
    a(f"""
    s_barrier
    s_cmp_lg_u32 s38, 0
    s_cbranch_scc1 K2_pub
    s_mov_b64 exec, {0xff if KREP else 1}
    buffer_store_dwordx2 v[{ST}:{ST+1}], v{t0}, s[8:11], s5 offen sc1
    s_mov_b64 exec, -1
    """)
    a.label("K2_pub")
    if 'amp' in dbg: a('s_memrealtime s[96:97]'); a('s_waitcnt lgkmcnt(0)')
    st(1, 2)
    def fin():
        if G.STAMP: a("s_waitcnt vmcnt(0)")
        stamp(a, 6)
        if G.STAMP: a("s_mov_b32 s91, s30")
        stamp_out(a, 1, 8, "s6", WF)
        a("s_endpgm")
    a(f"""
    s_cmp_ge_u32 s2, 144
    s_cbranch_scc1 K2_fin
    """)
    AFR = V
    KY = K; Y = K + 8; BX = V + 32; AC = K + 16
    a(f"""
    s_setprio 0
    v_bfe_u32 v{t0}, v0, 2, 2
    v_lshrrev_b32 v{t4}, 4, v0           ; g
    v_lshl_add_u32 v{t0}, v{t4}, 3, v{t0}
    v_lshlrev_b32 v{t0}, 5, v{t0}
    v_and_b32 v{t1}, 3, v0
    v_lshl_add_u32 v{t0}, v{t1}, 3, v{t0}
    v_add_u32 v{t0}, s74, v{t0}
    """)
    for sx in range(7):
        for half in range(2):
            d = AFR + 4 * sx + 2 * half
            a(f"ds_read_b64_tr_b16 v[{d}:{d+1}], v{t0} offset:{sx*1024 + half*128}")
    a(f"""
    v_and_b32 v{t3}, 1, v0
    v_lshlrev_b32 v{vPW}, 6, v{t3}
    v_lshl_add_u32 v{vPW}, v{t4}, 4, v{vPW}
    s_lshl_b32 s5, s6, 7
    s_add_u32 s5, s5, {L_RED:#x}
    v_add_u32 v{vPW}, s5, v{vPW}
    v_and_b32 v{vPR}, 31, v0
    v_lshlrev_b32 v{vPR}, 2, v{vPR}      ; (lane&31)*4
    v_lshrrev_b32 v{vOR}, 5, v0
    v_lshl_add_u32 v{vOR}, v{vOR}, 14, v{vPR}
    s_cmp_lg_u32 s6, 0
    s_cbranch_scc1 K2_nokey
    v_lshlrev_b32 v{t1}, {G.KS_LOG}, v0
    s_and_b32 s5, s2, {7 if KREP else 0}
    s_lshl_b32 s5, s5, 14
    s_add_u32 s5, s5, {WS_KEY:#x}
    s_add_u32 s79, s5, {64 << G.KS_LOG}
    s_add_u32 s80, s5, {128 << G.KS_LOG}
    s_add_u32 s81, s5, {192 << G.KS_LOG}
    s_mov_b32 s36, 0
    """)
    KZ = V + 60 - 8 * 0
    def poll_loop(name, issue, nld):
        K2R = X[0]
        def chk(b):
            a(f"""
            v_min3_u32 v{Y}, v{b}, v{b+1}, v{b+2}
            v_min3_u32 v{Y+1}, v{b+3}, v{b+4}, v{b+5}
            v_min3_u32 v{Y}, v{Y}, v{b+6}, v{b+7}
            v_min_u32 v{Y}, v{Y}, v{Y+1}
            v_cmp_eq_u32 vcc, 0, v{Y}
            """)
        sl = OPT.get('psl', 3)
        issue(KY)
        a(f"s_sleep {sl}")
        a.label(f"{name}_l")
        issue(K2R)
        a(f"s_waitcnt vmcnt({nld})")
        chk(KY)
        a(f"s_cbranch_vccz {name}_ok")
        issue(KY)
        a(f"s_waitcnt vmcnt({nld})")
        chk(K2R)
        a(f"""
        s_cbranch_vccz {name}_ok2
        s_add_u32 s36, s36, 1
        s_cmp_lt_u32 s36, 0x40000
        s_cbranch_scc1 {name}_l
        """)
        a.label(f"{name}_ok2")
        for r in range(0, 8, 2): a(f"v_pk_mov_b32 v[{KY+r}:{KY+r+1}], v[{K2R+r}:{K2R+r+1}], v[{K2R+r}:{K2R+r+1}] op_sel:[0,1]")
        a.label(f"{name}_ok")
    def kissue(b):
        for k, sr in enumerate(("s5", "s79", "s80", "s81")):
            a(f"buffer_load_dwordx2 v[{b+2*k}:{b+2*k+1}], v{t1}, s[8:11], {sr} offen sc1")
    if int(OPT.get('kd', 16)): a(f"s_sleep {OPT.get('kd', 16)}")
    poll_loop("K2_kp", kissue, 4)
    a.label("K2_kok")
    st(2, 2)
    if FS: a("s_mov_b32 s30, s36")
    B1, B2 = Y + 4, Y + 5
    a(f"""
    v_max_u32 v{B1}, v{KY}, v{KY+2}
    v_min_u32 v{B2}, v{KY}, v{KY+2}
    v_max3_u32 v{B2}, v{B2}, v{KY+1}, v{KY+3}
    v_max_u32 v{Y}, v{KY+4}, v{KY+6}
    v_min_u32 v{Y+1}, v{KY+4}, v{KY+6}
    v_max3_u32 v{Y+1}, v{Y+1}, v{KY+5}, v{KY+7}
    v_min_u32 v{Y+2}, v{B1}, v{Y}
    v_max_u32 v{B1}, v{B1}, v{Y}
    v_max3_u32 v{B2}, v{B2}, v{Y+1}, v{Y+2}
    v_mov_b32 v{Y}, v{B1}
    """)
    wave_max_u32(a, Y, Y + 1)
    a(f"""
    v_cmp_eq_u32 vcc, v{B1}, v{Y}
    v_cndmask_b32 v{B1}, v{B1}, v{B2}, vcc
    """)
    wave_max_u32(a, B1, Y + 1)
    a(f"""
    v_readfirstlane_b32 s40, v{Y}
    v_readfirstlane_b32 s41, v{B1}
    s_andn2_b32 s42, 0x7ff, s40
    s_andn2_b32 s43, 0x7ff, s41
    s_lshl_b32 s42, s42, 10
    s_lshl_b32 s43, s43, 10
    """)
    a.label("K2_nokey")
    a(f"""
    s_cmp_ge_u32 s2, 112
    s_cbranch_scc1 K2_down
    s_cmp_lg_u32 s6, 0
    s_cbranch_scc1 K2_up1
    s_add_u32 s36, s42, {WS_HN:#x}
    s_add_u32 s37, s43, {WS_HN:#x}
    buffer_load_dwordx4 v[{KY}:{KY+3}], v{vWL}, s[8:11], s36 offen sc1
    buffer_load_dwordx4 v[{KY+4}:{KY+7}], v{vWL}, s[8:11], s37 offen sc1
    s_waitcnt vmcnt(1)
    ds_write_b128 v{vWL}, v[{KY}:{KY+3}] offset:{L_XS}
    s_waitcnt vmcnt(0)
    ds_write_b128 v{vWL}, v[{KY+4}:{KY+7}] offset:{L_XS + 1040}
    """)
    a.label("K2_up1")
    st(3, 2)
    a(f"""
    v_mul_u32_u24 v{t0}, 1040, v{t3}
    v_lshl_add_u32 v{t0}, v{t4}, 4, v{t0}
    s_lshr_b32 s5, s6, 1
    s_lshl_b32 s5, s5, 8
    v_add_u32 v{t0}, s5, v{t0}
    s_waitcnt lgkmcnt(0)
    s_barrier
    """)
    for sx in range(4):
        a(f"ds_read_b128 v[{BX+4*sx}:{BX+4*sx+3}], v{t0} offset:{L_XS + 64*sx}")
    for sx in range(4):
        a(f"s_waitcnt lgkmcnt({3-sx})")
        c = "0" if sx == 0 else f"v[{AC}:{AC+3}]"
        a(f"v_mfma_f32_16x16x32_bf16 v[{AC}:{AC+3}], v[{AFR+4*sx}:{AFR+4*sx+3}], v[{BX+4*sx}:{BX+4*sx+3}], {c}")
    a(f"""
    ds_write_b128 v{vPW}, v[{AC}:{AC+3}]
    s_waitcnt lgkmcnt(0)
    s_barrier
    s_cmp_lg_u32 s6, 0
    s_cbranch_scc1 K2_fin
    """)
    def red_read():
        a(f"v_add_u32 v{t0}, {L_RED:#x}, v{vPR}")
        a("s_waitcnt vmcnt(0)")
        for k in range(4):
            a(f"ds_read2_b32 v[{KY+2*k}:{KY+2*k+1}], v{t0} offset0:{64*k} offset1:{64*k+32}")
        a("s_waitcnt lgkmcnt(0)")
        a(f"v_pk_add_f32 v[{KY}:{KY+1}], v[{KY}:{KY+1}], v[{KY+2}:{KY+3}]")
        a(f"v_pk_add_f32 v[{KY+4}:{KY+5}], v[{KY+4}:{KY+5}], v[{KY+6}:{KY+7}]")
        a(f"v_pk_add_f32 v[{KY}:{KY+1}], v[{KY}:{KY+1}], v[{KY+4}:{KY+5}]")
    st(4, 2)
    red_read()
    a(f"""
    v_cvt_pk_bf16_f32 v{KY}, 0, v{KY}
    v_cvt_pk_bf16_f32 v{KY+1}, 0, v{KY+1}
    """)
    sigmoid(a, KY + 2, KY, KY + 3)
    a(f"""
    v_mul_f32 v{KY}, v{KY}, v{KY+2}
    v_cvt_pk_bf16_f32 v{KY}, 0, v{KY}
    v_mul_f32 v{KY}, v{KY}, v{KY+1}
    v_cvt_pk_bf16_f32 v{KY}, 0, v{KY}
    v_or_b32 v{KY}, 1, v{KY}
    s_lshl_b32 s5, s76, 7
    s_add_u32 s5, s5, {WS_GU:#x}
    """)
    if GREP:
        for k in range(4):
            a(f"buffer_store_dword v{KY}, v{vOR}, s[8:11], s5 offen sc1")
            if k < 3: a("s_add_u32 s5, s5, 0x8000")
    else:
        a(f"""
        s_mov_b32 exec_hi, 0
        buffer_store_dword v{KY}, v{vPR}, s[8:11], s5 offen sc1
        s_mov_b64 exec, -1
        """)
    a(f"""
    s_branch K2_fin
    """)
    a.label("K2_down")
    HH, NN, GT, OO = Y + 6, Y + 7, AC + 4, AC + 5
    a(f"""
    s_cmp_lg_u32 s6, 0
    s_cbranch_scc1 K2_dn1
    v_bfe_u32 v{t0}, v0, 4, 1
    v_cmp_eq_u32 vcc, 0, v{t0}
    v_mov_b32 v{t0}, s43
    v_mov_b32 v{t1}, s42
    v_cndmask_b32 v{OO}, v{t0}, v{t1}, vcc
    v_and_b32 v{t0}, 15, v0
    v_lshl_add_u32 v{OO}, v{t0}, 1, v{OO}
    s_lshl_b32 s44, s77, 5
    s_add_u32 s36, s44, {WS_H:#x}
    s_add_u32 s37, s44, {WS_HN:#x}
    buffer_load_ushort v{HH}, v{OO}, s[8:11], s36 offen sc1
    buffer_load_ushort v{NN}, v{OO}, s[8:11], s37 offen sc1
    v_mov_b32 v{t0}, s41
    v_mov_b32 v{t1}, s40
    v_cndmask_b32 v{GT}, v{t0}, v{t1}, vcc
    v_and_b32 v{GT}, 0xffff0000, v{GT}
    v_ashrrev_i32 v{t0}, 31, v{GT}
    v_not_b32 v{t0}, v{t0}
    v_or_b32 v{t0}, 0x80000000, v{t0}
    v_xor_b32 v{GT}, v{GT}, v{t0}
    v_and_b32 v{GT}, 0xffff0000, v{GT}
    """)
    sigmoid(a, GT, GT, t0)
    a(f"v_cvt_pk_bf16_f32 v{GT}, 0, v{GT}")
    a.label("K2_dn1")
    a(f"""
    s_mul_i32 s5, s6, 1792
    s_and_b32 s37, s2, {7 if GREP else 0}
    s_lshl_b32 s37, s37, 14
    s_add_u32 s5, s5, s37
    s_add_u32 s5, s5, {WS_GU:#x}
    v_min_u32 v{t1}, 47, v0
    v_lshlrev_b32 v{t1}, 4, v{t1}
    s_lshl_b32 s37, s6, 10
    s_add_u32 s37, s37, {L_GB:#x}
    v_lshrrev_b32 v{t0}, 3, v0
    v_lshlrev_b32 v{vPL}, 5, v{t0}
    v_and_b32 v{t0}, 3, v0
    v_lshl_add_u32 v{vPL}, v{t0}, 3, v{vPL}
    v_bfe_u32 v{t0}, v0, 2, 1
    v_mul_u32_u24 v{t0}, 464, v{t0}
    v_add3_u32 v{vPL}, v{vPL}, v{t0}, s37
    v_mul_u32_u24 v{vOW}, 464, v{t3}
    v_lshl_add_u32 v{vOW}, v{t4}, 4, v{vOW}
    v_add_u32 v{vOW}, s37, v{vOW}
    s_mov_b32 s45, 0x07060302
    s_mov_b32 s36, 0
    """)
    def gissue(b):
        a(f"buffer_load_dwordx4 v[{b}:{b+3}], v{vWL}, s[8:11], s5 offen sc1")
        a(f"buffer_load_dwordx4 v[{b+4}:{b+7}], v{t1}, s[8:11], s5 offen offset:1024 sc1")
    if 'nogb' not in dbg:
        a("s_barrier")
        if int(OPT.get('gd', 24)): a(f"s_sleep {OPT.get('gd', 24)}")
    poll_loop("K2_gp", gissue, 2)
    a.label("K2_gok")
    st(4, 2)
    a(f"""
    v_perm_b32 v{Y}, v{KY+1}, v{KY}, s45
    v_perm_b32 v{Y+1}, v{KY+3}, v{KY+2}, s45
    v_perm_b32 v{Y+2}, v{KY+5}, v{KY+4}, s45
    v_perm_b32 v{Y+3}, v{KY+7}, v{KY+6}, s45
    ds_write_b64 v{vPL}, v[{Y}:{Y+1}]
    s_mov_b32 exec_hi, 0xffff
    ds_write_b64 v{vPL}, v[{Y+2}:{Y+3}] offset:256
    s_mov_b64 exec, -1
    """)
    for sx in range(7):
        a(f"ds_read_b128 v[{BX+4*sx}:{BX+4*sx+3}], v{vOW} offset:{64*sx}")
    for sx in range(7):
        a(f"s_waitcnt lgkmcnt({6-sx})")
        c = "0" if sx == 0 else f"v[{AC}:{AC+3}]"
        a(f"v_mfma_f32_16x16x32_bf16 v[{AC}:{AC+3}], v[{AFR+4*sx}:{AFR+4*sx+3}], v[{BX+4*sx}:{BX+4*sx+3}], {c}")
    a(f"""
    ds_write_b128 v{vPW}, v[{AC}:{AC+3}]
    s_waitcnt lgkmcnt(0)
    s_barrier
    s_cmp_lg_u32 s6, 0
    s_cbranch_scc1 K2_fin
    """)
    red_read()
    a(f"""
    v_add_f32 v{KY}, v{KY}, v{KY+1}
    v_lshlrev_b32 v{HH}, 16, v{HH}
    v_lshlrev_b32 v{NN}, 16, v{NN}
    v_cvt_pk_bf16_f32 v{KY}, 0, v{KY}
    v_mul_f32 v{KY}, v{KY}, v{GT}
    v_cvt_pk_bf16_f32 v{KY}, 0, v{KY}
    v_add_f32 v{KY}, v{KY}, v{NN}
    v_cvt_pk_bf16_f32 v{KY}, 0, v{KY}
    v_add_f32 v{KY}, v{KY}, v{HH}
    v_cvt_pk_bf16_f32 v{KY}, v{KY}, v{KY}
    s_mov_b32 exec_hi, 0
    buffer_store_short v{KY}, v{OO}, s[20:23], s44 offen sc1
    s_mov_b64 exec, -1
    """)
    a.label("K2_fin")
    if 'amp' in dbg:
        q = int(OPT['amp'])
        expr = {0: None, 1: ("s83", "s90"), 2: ("s84", "s90"), 3: ("s85", "s90"), 4: ("s86", "s90"), 5: ("s88", "s90"), 6: ("s94", "s90"), 7: ("s98", "s94"), 8: ("s96", "s98")}[q]
        a(f"""
        s_or_b32 s5, s2, s6
        s_cmp_lg_u32 s5, 0
        s_cbranch_scc1 K2_amp_end
        """)
        if expr: a(f"s_sub_u32 s85, {expr[0]}, {expr[1]}")
        else: a("s_mov_b32 s85, 0")
        a(f"""
        s_min_u32 s85, s85, 5000
        s_lshl_b32 s85, s85, 1
        s_add_u32 s85, s85, 600
        s_add_u32 s85, s85, s96
        """)
        a.label("K2_amp")
        a(f"""
        s_memrealtime s[92:93]
        s_waitcnt lgkmcnt(0)
        s_sub_u32 s86, s92, s85
        s_cmp_lt_i32 s86, 0
        s_cbranch_scc1 K2_amp
        """)
        a.label("K2_amp_end")
    if G.STAMP: a("s_waitcnt vmcnt(0)")
    stamp(a, 6)
    if G.STAMP: a("s_mov_b32 s91, s30")
    stamp_out(a, 1, 8, "s6", WF)
    dstamp(a, 1, True, 240)
    a.label("K2_end")
    a("s_endpgm")
    a.label("K2_qspin")
    a(f"""
    s_mov_b32 s36, 0
    """)
    a.label("K2_qspin1")
    a(f"""
    s_sleep 2
    buffer_load_dword v{t0}, v{SP}, s[8:11], s45 offen sc1
    s_add_u32 s36, s36, 1
    s_waitcnt vmcnt(0)
    v_cmp_ne_u32 vcc, s58, v{t0}
    s_cbranch_vccz K2_qback
    s_cmp_lt_u32 s36, 0x40000
    s_cbranch_scc1 K2_qspin1
    s_branch K2_qback
    """)
    for k, off in enumerate(spins):
        a.label(f"K2_spin{k}")
        a(f"""
        s_sleep 1
        ds_read_b32 v{vFV}, v{vFR} offset:{off}
        s_waitcnt lgkmcnt(0)
        v_cmp_gt_u32 vcc, s59, v{vFV}
        s_cbranch_vccnz K2_spin{k}
        s_branch K2_back{k}
        """)
```

```python
from gen import *
import gen as G
import re

L_X = 0; L_W = 65536; L_KV = 131072; L_WOT = L_KV + 16384; L_DN = L_WOT + 2048; L1_TOTAL = L_DN + 64
L_Q0 = 0x6000

def gen_p1(a, dbg=''):
    SC = ' sc1'
    def p1(i):
        if 'p1st' in dbg: stamp(a, i)
        if 'amp' in dbg: a(f's_memrealtime s[100:101]'); a('s_waitcnt lgkmcnt(0)'); a(f's_mov_b32 s{82+i}, s100')
    FST = int(dict(x.split('=') for x in dbg.split(',') if '=' in x).get('fst', 0))
    WB = int(dict(x.split('=') for x in dbg.split(',') if '=' in x).get('wb', 5))
    WD = int(dict(x.split('=') for x in dbg.split(',') if '=' in x).get('wd', 9))
    PB = int(dict(x.split('=') for x in dbg.split(',') if '=' in x).get('pb', 99))
    FLS = int(dict(x.split('=') for x in dbg.split(',') if '=' in x).get('fls', 4))
    EPOCH = f"""
    s_add_u32 s56, s32, {WS_EP:#x}
    s_addc_u32 s57, s33, 0
    s_load_dword s58, s[56:57], 0
    """
    X = 32
    ACC = 96
    AF = 116
    T = 148
    a(f"""
    s_cmp_lt_u32 s2, 256
    s_cbranch_scc1 K1_go
    s_endpgm
    """)
    a.label("K1_go")
    stamp(a, 0)
    if ('leak' in dbg or 'amp' in dbg): a('s_memrealtime s[90:91]')
    dstamp(a, 0, False, 200)
    a(f"""
    s_load_dwordx8 s[24:31], s[0:1], 0
    s_load_dwordx2 s[44:45], s[0:1], 32
    s_load_dwordx2 s[32:33], s[0:1], 96
    """)
    if 'nocodepf' not in dbg:
        a(f"""
        s_cmp_ge_u32 s2, 16
        s_cbranch_scc1 K1_nocp
        v_subrev_u32 v30, 256, v0
        v_cmp_gt_u32 vcc, (K_all_end-k1_kernel+127)/128, v30
        s_and_saveexec_b64 s[62:63], vcc
        s_cbranch_execz K1_cpx
        s_getpc_b64 s[60:61]
        """)
        a.label("K1_pc")
        a(f"""
        s_sub_u32 s60, s60, K1_pc-k1_kernel
        s_subb_u32 s61, s61, 0
        v_lshlrev_b32 v30, 7, v30
        global_load_dword v31, v30, s[60:61]
        """)
        a.label("K1_cpx")
        a("s_mov_b64 exec, s[62:63]")
        a.label("K1_nocp")
    a(f"""
    s_and_b32 s3, s2, 7
    s_lshr_b32 s4, s2, 3
    s_and_b32 s5, s4, 7
    s_lshr_b32 s4, s4, 3           ; tb & 3
    s_lshl_b32 s3, s3, 2
    s_add_u32 s3, s3, s4
    v_lshrrev_b32 v1, 6, v0
    v_and_b32 v2, 63, v0           ; lane
    v_readfirstlane_b32 s6, v1     ; wave
    v_and_b32 v3, 15, v2           ; l & 15
    v_lshrrev_b32 v6, 2, v2
    v_lshrrev_b32 v4, 4, v2        ; g
    v_bfe_u32 v18, v2, 2, 2        ; r'
    v_and_b32 v19, 3, v2           ; c'
    v_lshl_add_u32 v20, v4, 3, v18 ; 8g + r'
    v_lshlrev_b32 v17, 5, v20
    v_lshl_add_u32 v17, v19, 3, v17
    s_cmp_ge_u32 s6, 4
    s_cbranch_scc1 K1_loader
    """)
    a(f"""
    s_load_dwordx2 s[48:49], s[0:1], 96
    s_load_dwordx2 s[40:41], s[0:1], 0
    s_load_dwordx8 s[60:67], s[0:1], 48
    s_load_dwordx2 s[46:47], s[0:1], 80
    s_lshl_b32 s7, s3, 6
    s_lshl_b32 s34, s6, 4
    s_add_u32 s7, s7, s34
    v_add_u32 v5, s7, v3           ; token
    v_lshrrev_b32 v7, 4, v2
    v_and_b32 v7, 2, v7
    v_xor_b32 v7, v7, v19
    v_lshlrev_b32 v6, 10, v6
    v_lshl_add_u32 v6, v7, 4, v6
    s_lshl_b32 s81, s6, 14
    s_lshl_b32 s80, s7, 10
    s_lshl_b32 s79, s5, 7
    s_waitcnt lgkmcnt(0)
    """)
    srd(a, 16, 24, 25, 0x200000)
    a(f"""
    s_add_u32 s42, s48, {WS_EP:#x}
    s_addc_u32 s43, s49, 0
    s_load_dword s58, s[42:43], 0
    """)
    def xloop(name, lo, hi):
        if lo >= hi: return
        a(f"s_mov_b32 s29, {lo}")
        a.label(name)
        a(f"""
        s_mov_b32 m0, s81
        s_add_u32 s3, s79, s80
        buffer_load_dwordx4 v6, s[16:19], s3 offen lds
        s_add_u32 m0, s81, {1024 - 64}
        s_add_u32 s79, s79, 128
        buffer_load_dwordx4 v6, s[16:19], s3 offen offset:64 lds
        s_and_b32 s79, s79, 0x3ff
        s_add_u32 s81, s81, 2048
        s_add_u32 s29, s29, 1
        s_cmp_lt_u32 s29, {hi}
        s_cbranch_scc1 {name}
        """)
    XN = int(dict(x.split('=') for x in dbg.split(',') if '=' in x).get('xn', 2))
    xloop("K1_x1", 0, XN)
    a("s_branch K12_setup1")
    EARLY = 'early' in dbg
    a.label("K1_loader")
    if 'noldprio' not in dbg: a("s_setprio 3")
    a(f"""
    s_sub_u32 s6, s6, 4
    v_lshrrev_b32 v7, 3, v2        ; row_in
    v_and_b32 v8, 7, v2            ; slot
    v_and_b32 v9, 2, v7
    v_xor_b32 v8, v8, v9
    v_xor_b32 v9, 4, v8
    s_lshl_b32 s35, s5, 7
    v_lshlrev_b32 v7, 10, v7
    v_add_u32 v7, s35, v7
    v_lshl_add_u32 v10, v8, 4, v7
    v_lshl_add_u32 v11, v9, 4, v7
    v_lshlrev_b32 v12, 4, v2       ; lane*16
    v_lshrrev_b32 v13, 1, v2
    v_lshlrev_b32 v13, 10, v13
    v_and_b32 v14, 1, v2
    v_lshl_add_u32 v13, v14, 4, v13
    s_lshl_b32 s65, s6, 14
    s_add_u32 s65, s65, {L_W}
    s_lshl_b32 s37, s6, 4
    s_lshl_b32 s38, s5, 3
    s_add_u32 s37, s37, s38
    v_and_b32 v15, 16, v2
    v_lshlrev_b32 v15, 3, v15
    v_xor_b32 v15, v15, v12
    s_lshl_b32 s39, s4, 2
    s_waitcnt lgkmcnt(0)
    """)
    a(EPOCH)
    srd(a, 12, 26, 27, 0x80000)
    a(f"""
    s_bitcmp0_b32 s5, 0
    s_cselect_b64 s[46:47], s[28:29], s[30:31]
    """)
    srd(a, 16, 46, 47, 0x4000)
    srd(a, 40, 44, 45, 0x80000)
    srd(a, 20, 32, 33, WS_SIZE)
    a(f"""
    s_cmp_lg_u32 s6, 0
    s_cbranch_scc1 K1_noz
    v_mov_b32 v32, 0
    v_mov_b32 v33, 0
    v_mov_b32 v34, 0
    v_mov_b32 v35, 0
    s_lshl_b32 s48, s2, 10
    s_add_u32 s48, s48, {WS_GU:#x}
    buffer_store_dwordx4 v[32:35], v12, s[20:23], s48 offen{SC}
    """)
    a.label("K1_noz")
    if 'notouch' not in dbg:
        a(f"""
        s_cmp_lg_u32 s6, 1
        s_cbranch_scc1 K1_not
        s_and_b32 s48, s2, 7
        s_lshl_b32 s48, s48, 14
        s_add_u32 s48, s48, {WS_FL:#x}
        v_lshlrev_b32 v32, {FLS + 2}, v2
        buffer_load_dword v33, v32, s[20:23], s48 offen sc1
        """)
        a.label("K1_not")
    a(f"""
    s_cmp_lt_u32 s6, 2
    s_cbranch_scc1 K1_nowo
    s_lshl_b32 s46, s2, 1
    s_and_b32 s47, s6, 1
    s_add_u32 s46, s46, s47
    s_lshr_b32 s47, s46, 6
    s_lshl_b32 s47, s47, 16
    s_bfe_u32 s48, s46, 0x10002
    s_lshl_b32 s48, s48, 15        ; s * 32 rows
    s_add_u32 s47, s47, s48
    s_bfe_u32 s48, s46, 0x30003
    s_lshl_b32 s48, s48, 7         ; w * 128 B
    s_add_u32 s47, s47, s48
    s_and_b32 s48, s46, 3
    s_lshl_b32 s48, s48, 5         ; t * 32 B
    s_add_u32 s47, s47, s48
    s_lshl_b32 s48, s6, 10
    s_add_u32 s48, s48, {L_WOT - 2048}
    s_mov_b32 m0, s48
    v_add_u32 v17, s48, v17
    buffer_load_dwordx4 v13, s[40:43], s47 offen lds
    s_lshl_b32 s48, s6, 2
    s_add_u32 s48, s48, {L_DN - 8}
    v_mov_b32 v36, s48
    v_mov_b32 v37, 0
    ds_write_b32 v36, v37
    v_mov_b32 v37, 1
    """)
    a.label("K1_nowo")
    a(f"""
    s_lshl_b32 s36, s6, 12
    s_lshl_b32 s38, s5, 11
    """)
    for i in range(4):
        a(f"""
        s_add_u32 s48, s36, {i*1024}
        s_add_u32 m0, s48, {L_KV}
        s_add_u32 s48, s48, s38
        s_and_b32 s48, s48, 0x3fff
        buffer_load_dwordx4 v15, s[16:19], s48 offen lds
        """)
    a("s_waitcnt lgkmcnt(0)")
    a("s_add_u32 s58, s58, 1")
    a(f"""
    s_barrier
    s_cmp_lt_u32 s6, 2
    s_cbranch_scc1 K1_nowo2
    s_waitcnt vmcnt(4)
    ds_read_b64_tr_b16 v[32:33], v17
    ds_read_b64_tr_b16 v[34:35], v17 offset:128
    s_lshl_b32 s46, s46, 10
    s_add_u32 s46, s46, {WS_WOF:#x}
    s_waitcnt lgkmcnt(0)
    buffer_store_dwordx4 v[32:35], v12, s[20:23], s46 offen sc1
    s_branch K1_wst
    """)
    a.label("K1_nowo2")
    a("buffer_load_dword v33, v12, s[16:19], 0 offen")
    a.label("K1_wst")
    for i in range(16):
        a(f"""
        s_add_u32 s48, s39, {i}
        s_and_b32 s48, s48, 15
        s_lshl_b32 s49, s48, 10
        s_add_u32 m0, s65, s49
        s_add_u32 s48, s48, s37
        s_and_b32 s48, s48, 63
        s_lshl_b32 s48, s48, 13
        buffer_load_dwordx4 v{10 + (i & 1)}, s[12:15], s48 offen lds
        """)
        if i == WB:
            a(f"s_waitcnt vmcnt({WB + 2})")
            p1(1)
            a("s_barrier")
        if i == WD and EARLY:
            a(f"""
            s_cmp_lt_u32 s6, 2
            s_cbranch_scc1 K1_nodn
            s_waitcnt vmcnt({WD + 1})
            ds_write_b32 v36, v37
            """)
            a.label("K1_nodn")
    p1(2)
    if 'nops' not in dbg:
        a("s_cmp_eq_u32 s6, 0")
        a("s_cbranch_scc1 K12_setup")
    a("s_waitcnt vmcnt(0)")
    p1(3)
    a("s_barrier")
    a("s_cmp_eq_u32 s6, 0")
    a("s_cbranch_scc1 K12_setup")
    a("s_setprio 0")
    a("s_branch K12_setup")
    a.label("K1_comp")
    ONE = 24; SEL = 8
    SEL = 152
    a(f"""
    v_lshlrev_b32 v21, 7, v20
    v_lshl_add_u32 v21, v19, 3, v21   ; row*128 + 8c'
    v_add_u32 v21, {L_W}, v21
    v_lshrrev_b32 v22, 1, v18
    v_and_b32 v23, 1, v4
    v_lshl_or_b32 v22, v23, 1, v22 ; h
    """)
    for t in range(4):
        a(f"v_xor_b32 v23, {t}, v22")
        a(f"v_lshl_add_u32 v{13+t}, v23, 5, v21")
    a(f"""
    v_lshlrev_b32 v10, 6, v3
    v_lshrrev_b32 v7, 2, v3
    v_and_b32 v7, 2, v7
    v_xor_b32 v7, v7, v4
    v_lshl_add_u32 v10, v7, 4, v10
    s_lshl_b32 s3, s6, 14
    v_add_u32 v10, s3, v10
    v_and_b32 v7, 1, v4
    v_lshlrev_b32 v7, 7, v7
    v_add_u32 v17, {L_KV}, v17
    v_xor_b32 v12, v17, v7
    v_xor_b32 v17, 128, v12
    """)
    for r in range(4): a(f"v_mov_b32 v{ONE+r}, 0x3f803f80")
    a(f"""
    v_and_b32 v7, 1, v2
    v_lshlrev_b32 v7, 4, v7
    v_mov_b32 v8, 0x3f80
    v_lshlrev_b32 v7, v7, v8
    v_cmp_eq_u32 s[34:35], v18, v4 ; g == (l&15)>>2
    v_bfe_u32 v8, v2, 1, 1
    v_cmp_eq_u32 vcc, 0, v8
    s_and_b64 s[42:43], s[34:35], vcc
    s_andn2_b64 s[36:37], s[34:35], vcc
    v_mov_b32 v{SEL}, 0
    v_mov_b32 v{SEL+1}, 0
    v_cndmask_b32 v{SEL+2}, 0, v7, s[42:43]
    v_cndmask_b32 v{SEL+3}, 0, v7, s[36:37]
    v_mov_b32 v{SEL+4}, 0
    v_mov_b32 v{SEL+5}, 0
    """)
    xloop("K1_x2", XN, 8)
    a("s_waitcnt lgkmcnt(0)")
    a("s_add_u32 s58, s58, 1")
    a("s_barrier")
    p1(1)
    m16 = "v_mfma_f32_16x16x32_bf16"
    SUM = ACC; GR = ACC + 4; NM = 248
    def stat(u):
        xs = f"v[{X+4*u}:{X+4*u+3}]"
        a(f"{m16} v[{SUM}:{SUM+3}], v[{ONE}:{ONE+3}], {xs}, " + ("0" if u == 0 else f"v[{SUM}:{SUM+3}]"))
        a(f"{m16} v[{GR}:{GR+3}], {xs}, {xs}, " + ("0" if u == 0 else f"v[{GR}:{GR+3}]"))
    for u in range(0, 16, 2):
        a(f"s_waitcnt vmcnt({14-u})")
        a(f"ds_read_b128 v[{X+4*u}:{X+4*u+3}], v10 offset:{1024*u}")
        a(f"ds_read_b128 v[{X+4*u+4}:{X+4*u+7}], v10 offset:{1024*u+1024}")
        if u >= 4:
            a("s_waitcnt lgkmcnt(4)")
            stat(u - 4); stat(u - 3)
    a("s_waitcnt lgkmcnt(2)"); stat(12); stat(13)
    a("s_waitcnt lgkmcnt(0)"); stat(14); stat(15)
    RG = 184
    a("s_barrier")
    a("s_lshr_b32 s79, s28, 1")
    a("s_cmp_lg_u32 s79, s6")
    a("s_cbranch_scc1 K1_nokvf")
    for sx in range(16):
        for half in range(2):
            d = RG + 4 * sx + 2 * half
            a(f"ds_read_b64_tr_b16 v[{d}:{d+1}], v{17 if half else 12} offset:{sx*1024}")
    a.label("K1_nokvf")
    a(f"""
    v_and_b32 v7, 1, v2
    v_cmp_eq_u32 vcc, 1, v7
    v_cndmask_b32 v8, v{GR}, v{GR+1}, vcc
    v_cndmask_b32 v9, v{GR+2}, v{GR+3}, vcc
    v_cndmask_b32 v8, 0, v8, s[42:43]
    v_cndmask_b32 v26, v8, v9, s[36:37]
    """)
    for w in (16, 32):
        sum_swap(a, 26, 28, w)
    ln_scalars(a, SUM, 26, 28, 30, 27, 29)
    for r in range(4): a(f"v_sub_f32 v{NM+r}, 0, v28")
    if 'newln' not in dbg:
        NB = 4
        def cen(u, h):
            d = AF + 8 * (u % NB) + 4 * h
            if 'nolnleg' not in dbg:
                return f"v_mfma_f32_16x16x16bf16_1k v[{d}:{d+3}], v[{SEL+2}:{SEL+3}], v[{X+4*u+2*h}:{X+4*u+2*h+1}], v[{NM}:{NM+3}]"
            return f"{m16} v[{d}:{d+3}], v[{SEL+2-2*h}:{SEL+5-2*h}], v[{X+4*u}:{X+4*u+3}], v[{NM}:{NM+3}]"
        def sub(u):
            d = AF + 8 * (u % NB)
            xs = f"v[{X+4*u}:{X+4*u+3}]"
            a(cen(u, 0)); a(cen(u, 1))
        sub(0); sub(1)
        def ln_step(u):
            d = AF + 8 * (u % NB); L = []
            for r in range(4): L.append(f"v_cvt_pk_bf16_f32 v{d+r}, 0, v{d+r}")
            if u + 2 < 16:
                dd = AF + 8 * ((u + 2) % NB); xs = f"v[{X+4*(u+2)}:{X+4*(u+2)+3}]"
                L.append(cen(u + 2, 0))
            for r in range(4, 8): L.append(f"v_cvt_pk_bf16_f32 v{d+r}, 0, v{d+r}")
            if 'lnmul' in dbg:
                for r in range(8): L.append(f"v_mul_f32 v{d+r}, v{d+r}, v30")
            else:
                for r in range(0, 8, 2): L.append(f"v_pk_mul_f32 v[{d+r}:{d+r+1}], v[{d+r}:{d+r+1}], v[30:31] op_sel_hi:[1,0]")
            if u + 2 < 16:
                L.append(cen(u + 2, 1))
            for r in range(4): L.append(f"v_cvt_pk_bf16_f32 v{X+4*u+r}, v{d+2*r}, v{d+2*r+1}")
            return L
        for u in range(16):
            for ins in ln_step(u): a(ins)
    else:
        l16 = "v_mfma_f32_16x16x16bf16_1k"
        ID = f"v[{SEL+2}:{SEL+3}]"
        def A_(u, h):
            d = AF + 8 * (u & 1) + 4 * h
            return f"{l16} v[{d}:{d+3}], {ID}, v[{X+4*u+2*h}:{X+4*u+2*h+1}], v[{NM}:{NM+3}]"
        def R_(u):
            d = AF + 8 * (u & 1)
            return [f"v_cvt_pk_bf16_f32 v{X+4*u+r}, v{d+2*r}, v{d+2*r+1}" for r in range(4)]
        def B_(u, h):
            d = AF + 16 + 8 * (u & 1) + 4 * h
            return f"{l16} v[{d}:{d+3}], {ID}, v[{X+4*u+2*h}:{X+4*u+2*h+1}], 0"
        def S_(u):
            d = AF + 16 + 8 * (u & 1)
            if 'lnmul' in dbg: return [f"v_mul_f32 v{d+r}, v{d+r}, v30\nv_mul_f32 v{d+r+1}, v{d+r+1}, v30" for r in range(0, 8, 2)]
            return [f"v_pk_mul_f32 v[{d+r}:{d+r+1}], v[{d+r}:{d+r+1}], v[30:31] op_sel_hi:[1,0]" for r in range(0, 8, 2)]
        def P_(u):
            d = AF + 16 + 8 * (u & 1)
            return [f"v_cvt_pk_bf16_f32 v{X+4*u+r}, v{d+2*r}, v{d+2*r+1}" for r in range(4)]
        ok = lambda u: 0 <= u < 16
        for st_ in range(-2, 16):
            r = R_(st_ + 1) if ok(st_ + 1) else []
            sc = S_(st_) if ok(st_) else []
            pk = P_(st_) if ok(st_) else []
            seq = []
            if ok(st_ + 2): seq.append(A_(st_ + 2, 0))
            seq += r[:3]
            if ok(st_ + 2): seq.append(A_(st_ + 2, 1))
            seq += r[3:] + sc[:2]
            if ok(st_ + 1): seq.append(B_(st_ + 1, 0))
            seq += sc[2:] + pk[:1]
            if ok(st_ + 1): seq.append(B_(st_ + 1, 1))
            seq += pk[1:]
            for ins in seq: a(ins)
    p1(2)
    KV = ACC + 16
    a(f"""
    v_lshrrev_b32 v9, 1, v4
    v_and_b32 v11, 1, v4
    s_cmp_lg_u32 s79, s6
    s_cbranch_scc1 K1_q
    s_lshr_b32 s35, s80, 15
    s_mul_i32 s35, s35, {TS}
    s_add_u32 s35, s35, {WS_KV:#x}
    s_waitcnt lgkmcnt(0)
    s_bitcmp0_b32 s28, 0
    s_cbranch_scc0 K1_v
    """)
    for sx in range(16):
        a(f"{m16} v[{KV}:{KV+3}], v[{RG+4*sx}:{RG+4*sx+3}], v[{X+4*sx}:{X+4*sx+3}], " + ("0" if sx == 0 else f"v[{KV}:{KV+3}]"))
    a(f"""
    v_and_b32 v8, 31, v5
    v_lshlrev_b32 v8, 4, v8
    v_lshl_add_u32 v8, v9, 9, v8
    s_branch K1_kvs
    """)
    a.label("K1_v")
    for sx in range(16):
        a(f"{m16} v[{KV}:{KV+3}], v[{X+4*sx}:{X+4*sx+3}], v[{RG+4*sx}:{RG+4*sx+3}], " + ("0" if sx == 0 else f"v[{KV}:{KV+3}]"))
    a(f"""
    s_and_b32 s36, s6, 1
    s_mul_i32 s36, s36, 544
    s_add_u32 s35, s35, s36
    s_add_u32 s35, s35, 1024
    v_mul_u32_u24 v8, 272, v9
    v_mov_b32 v{AF}, 0x3f803f80
    v_mov_b32 v{AF+1}, 0x3f803f80
    v_mov_b32 v{AF+2}, 0x3f803f80
    v_mov_b32 v{AF+3}, 0x3f803f80
    s_mov_b32 exec_lo, 1
    s_mov_b32 exec_hi, 1
    buffer_store_dwordx4 v[{AF}:{AF+3}], v8, s[8:11], s35 offen offset:256 sc1
    s_mov_b64 exec, -1
    v_lshl_add_u32 v8, v3, 4, v8
    """)
    a.label("K1_kvs")
    a(f"""
    v_cvt_pk_bf16_f32 v{T}, v{KV}, v{KV+1}
    v_cvt_pk_bf16_f32 v{T+1}, v{KV+2}, v{KV+3}
    v_mov_b32 v{T+2}, v{T}
    v_mov_b32 v{T+3}, v{T+1}
    v_permlane16_swap_b32 v{T}, v{T+2}
    v_permlane16_swap_b32 v{T+1}, v{T+3}
    s_mov_b32 exec_lo, 0xffff
    s_mov_b32 exec_hi, 0xffff
    buffer_store_dwordx4 v[{T}:{T+3}], v8, s[8:11], s35 offen sc1
    s_mov_b64 exec, -1
    v_mov_b32 v7, s58
    v_lshlrev_b32 v8, 14, v2
    s_lshl_b32 s35, s2, {FLS}
    s_add_u32 s35, s35, {WS_FL:#x}
    v_mov_b32 v21, {L_DN}
    """)
    EARLY = 'early' in dbg
    if EARLY: a.label("K1_dn")
    if EARLY: a(f"""
    ds_read_b64 v[22:23], v21
    s_waitcnt vmcnt(0) lgkmcnt(0)
    v_and_b32 v22, v22, v23
    v_cmp_eq_u32 vcc, 0, v22
    s_cbranch_vccnz K1_dn
    s_mov_b64 exec, 0xff
    buffer_store_dword v7, v8, s[8:11], s35 offen sc1
    s_mov_b64 exec, -1
    """)
    a.label("K1_q")
    a("s_barrier")
    p1(3)
    def rd(s, t):
        for half in range(2):
            d = RG + 16 * (s % 3) + 4 * t + 2 * half
            a(f"ds_read_b64_tr_b16 v[{d}:{d+1}], v{13+t} offset:{s*4096 + half*512}")
    for t in range(4): rd(0, t)
    for t in range(4): rd(1, t)
    for s in range(16):
        a(f"s_waitcnt lgkmcnt({8 if s < 15 else 0})")
        for t in range(4):
            d = RG + 16 * (s % 3) + 4 * t
            c = "0" if s == 0 else f"v[{ACC+4*t}:{ACC+4*t+3}]"
            a(f"{m16} v[{ACC+4*t}:{ACC+4*t+3}], v[{d}:{d+3}], v[{X+4*s}:{X+4*s+3}], {c}")
            if s + 2 < 16: rd(s + 2, t)
        if s == PB: a("s_barrier")
        if s == FST and not EARLY:
            a(f"""
            s_cmp_lg_u32 s79, s6
            s_cbranch_scc1 K1_nofl
            s_waitcnt vmcnt(0)
            s_mov_b64 exec, 0xff
            buffer_store_dword v7, v8, s[8:11], s35 offen sc1
            s_mov_b64 exec, -1
            """)
            a.label("K1_nofl")
    a(f"""
    s_lshl_b32 s35, s28, 10
    v_lshrrev_b32 v7, 3, v5
    v_lshlrev_b32 v7, 13, v7
    v_and_b32 v8, 7, v5
    v_lshl_add_u32 v7, v8, 4, v7
    v_lshl_add_u32 v7, v9, 9, v7
    v_lshl_add_u32 v7, v11, 7, v7
    """)
    for tp in range(2):
        for t in (2 * tp, 2 * tp + 1):
            for r in range(4): a(f"v_cvt_pk_bf16_f32 v{ACC+4*t+r}, 0, v{ACC+4*t+r}")
            for r in range(4): a(f"v_mul_f32 v{ACC+4*t+r}, {f2u(0.25 * 1.4426950408889634):#x}, v{ACC+4*t+r}")
            a(f"v_cvt_pk_bf16_f32 v{AF+2*t}, v{ACC+4*t}, v{ACC+4*t+1}")
            a(f"v_cvt_pk_bf16_f32 v{AF+2*t+1}, v{ACC+4*t+2}, v{ACC+4*t+3}")
        b = AF + 4 * tp
        a(f"v_permlane16_swap_b32 v{b}, v{b+2}")
        a(f"v_permlane16_swap_b32 v{b+1}, v{b+3}")
        a(f"buffer_store_dwordx4 v[{b}:{b+3}], v7, s[8:11], s35 offen offset:{256*tp}{SC}")
    a(f"""
    s_cmp_lg_u32 s79, s6
    s_cbranch_scc1 K1_nol
    v_and_b32 v8, 0x3ff, v7
    s_mov_b32 s36, 0x00ff00ff
    s_and_b32 s37, s28, 1
    s_lshl_b32 s37, s37, 3
    s_lshl_b32 exec_lo, s36, s37
    s_mov_b32 exec_hi, exec_lo
    ds_write_b128 v8, v[{AF}:{AF+3}] offset:{L_Q0}
    ds_write_b128 v8, v[{AF+4}:{AF+7}] offset:{L_Q0 + 256}
    s_mov_b64 exec, -1
    """)
    a.label("K1_nol")
    p1(4)
    dstamp(a, 0, True, 200)
    a("s_branch K12_join")
    for k, l in enumerate(a.lines):
        if isinstance(l, Ins):
            t = re.sub(r"\bv(\d+)\b", lambda m: f"v{159 + int(m.group(1))}" if 1 <= int(m.group(1)) <= 15 else m.group(0), l.text)
            if t != l.text: a.lines[k] = Ins(t)
```

```python
from gen import *
import gen as G
import re

L_X = 0; L_W = 65536; L_KV = 131072; L_WOT = L_KV + 16384; L_DN = L_WOT + 2048; L_ST = L_DN + 64; L_KP = L_ST + 512; L1_TOTAL = L_KP + 4096
L_Q0 = 0x6000

def gen_p1(a, dbg=''):
    SC = ' sc1'
    def p1(i):
        if 'p1st' in dbg: stamp(a, i)
        if 'amp' in dbg: a(f's_memrealtime s[100:101]'); a('s_waitcnt lgkmcnt(0)'); a(f's_mov_b32 s{82+i}, s100')
    FST = int(dict(x.split('=') for x in dbg.split(',') if '=' in x).get('fst', 0))
    WB = int(dict(x.split('=') for x in dbg.split(',') if '=' in x).get('wb', 5))
    WD = int(dict(x.split('=') for x in dbg.split(',') if '=' in x).get('wd', 9))
    PB = int(dict(x.split('=') for x in dbg.split(',') if '=' in x).get('pb', 99))
    FLS = int(dict(x.split('=') for x in dbg.split(',') if '=' in x).get('fls', 4))
    EPOCH = f"""
    s_add_u32 s56, s32, {WS_EP:#x}
    s_addc_u32 s57, s33, 0
    s_load_dword s58, s[56:57], 0
    """
    X = 32
    ACC = 96
    AF = 116
    T = 148
    a(f"""
    s_cmp_lt_u32 s2, 256
    s_cbranch_scc1 K1_go
    s_endpgm
    """)
    a.label("K1_go")
    stamp(a, 0)
    if ('lite' in dbg or 'amp' in dbg): a('s_memrealtime s[90:91]')
    dstamp(a, 0, False, 200)
    a(f"""
    s_load_dwordx8 s[24:31], s[0:1], 0
    s_load_dwordx2 s[44:45], s[0:1], 32
    s_load_dwordx2 s[32:33], s[0:1], 96
    """)
    if 'nocodepf' not in dbg:
        a(f"""
        s_cmp_ge_u32 s2, 16
        s_cbranch_scc1 K1_nocp
        v_subrev_u32 v30, 256, v0
        v_cmp_gt_u32 vcc, (K_all_end-k1_kernel+127)/128, v30
        s_and_saveexec_b64 s[62:63], vcc
        s_cbranch_execz K1_cpx
        s_getpc_b64 s[60:61]
        """)
        a.label("K1_pc")
        a(f"""
        s_sub_u32 s60, s60, K1_pc-k1_kernel
        s_subb_u32 s61, s61, 0
        v_lshlrev_b32 v30, 7, v30
        global_load_dword v31, v30, s[60:61]
        """)
        a.label("K1_cpx")
        a("s_mov_b64 exec, s[62:63]")
        a.label("K1_nocp")
    a(f"""
    s_and_b32 s3, s2, 7
    s_lshr_b32 s4, s2, 3
    s_and_b32 s5, s4, 7
    s_lshr_b32 s4, s4, 3           ; tb & 3
    s_lshl_b32 s3, s3, 2
    s_add_u32 s3, s3, s4
    v_lshrrev_b32 v1, 6, v0
    v_and_b32 v2, 63, v0           ; lane
    v_readfirstlane_b32 s6, v1     ; wave
    v_and_b32 v3, 15, v2           ; l & 15
    v_lshrrev_b32 v6, 2, v2
    v_lshrrev_b32 v4, 4, v2        ; g
    v_bfe_u32 v18, v2, 2, 2        ; r'
    v_and_b32 v19, 3, v2           ; c'
    v_lshl_add_u32 v20, v4, 3, v18 ; 8g + r'
    v_lshlrev_b32 v17, 5, v20
    v_lshl_add_u32 v17, v19, 3, v17
    s_cmp_ge_u32 s6, 4
    s_cbranch_scc1 K1_loader
    """)
    a(f"""
    s_load_dwordx2 s[48:49], s[0:1], 96
    s_load_dwordx2 s[40:41], s[0:1], 0
    s_load_dwordx8 s[60:67], s[0:1], 48
    s_load_dwordx2 s[46:47], s[0:1], 80
    s_lshl_b32 s7, s3, 6
    s_lshl_b32 s34, s6, 4
    s_add_u32 s7, s7, s34
    v_add_u32 v5, s7, v3           ; token
    v_lshrrev_b32 v7, 4, v2
    v_and_b32 v7, 2, v7
    v_xor_b32 v7, v7, v19
    v_lshlrev_b32 v6, 10, v6
    v_lshl_add_u32 v6, v7, 4, v6
    s_lshl_b32 s81, s6, 14
    s_lshl_b32 s80, s7, 10
    s_lshl_b32 s79, s5, 7          ; k rotation: 2j steps of 64 B
    s_waitcnt lgkmcnt(0)
    """)
    srd(a, 16, 24, 25, 0x200000)
    a(f"""
    s_add_u32 s42, s48, {WS_EP:#x}
    s_addc_u32 s43, s49, 0
    s_load_dword s58, s[42:43], 0
    """)
    def xloop(name, lo, hi):
        if lo >= hi: return
        a(f"s_mov_b32 s29, {lo}")
        a.label(name)
        a(f"""
        s_mov_b32 m0, s81
        s_add_u32 s3, s79, s80
        buffer_load_dwordx4 v6, s[16:19], s3 offen lds
        s_add_u32 m0, s81, {1024 - 64}
        s_add_u32 s79, s79, 128
        buffer_load_dwordx4 v6, s[16:19], s3 offen offset:64 lds
        s_and_b32 s79, s79, 0x3ff
        s_add_u32 s81, s81, 2048
        s_add_u32 s29, s29, 1
        s_cmp_lt_u32 s29, {hi}
        s_cbranch_scc1 {name}
        """)
    XN = int(dict(x.split('=') for x in dbg.split(',') if '=' in x).get('xn', 2))
    xloop("K1_x1", 0, XN)
    a("s_branch K12_setup1")
    EARLY = True
    a.label("K1_loader")
    if 'noldprio' not in dbg: a("s_setprio 3")
    a(f"""
    s_sub_u32 s6, s6, 4
    v_lshrrev_b32 v7, 3, v2        ; row_in
    v_and_b32 v8, 7, v2            ; slot
    v_and_b32 v9, 2, v7
    v_xor_b32 v8, v8, v9
    v_xor_b32 v9, 4, v8
    s_lshl_b32 s35, s5, 7
    v_lshlrev_b32 v7, 10, v7
    v_add_u32 v7, s35, v7
    v_lshl_add_u32 v10, v8, 4, v7
    v_lshl_add_u32 v11, v9, 4, v7
    v_lshlrev_b32 v12, 4, v2       ; lane*16
    v_lshrrev_b32 v13, 1, v2
    v_lshlrev_b32 v13, 10, v13
    v_and_b32 v14, 1, v2
    v_lshl_add_u32 v13, v14, 4, v13
    s_lshl_b32 s65, s6, 14
    s_add_u32 s65, s65, {L_W}
    s_lshl_b32 s37, s6, 4
    s_lshl_b32 s38, s5, 3
    s_add_u32 s37, s37, s38
    v_and_b32 v15, 16, v2
    v_lshlrev_b32 v15, 3, v15
    v_xor_b32 v15, v15, v12
    s_lshl_b32 s39, s4, 2
    s_waitcnt lgkmcnt(0)
    """)
    a(EPOCH)
    srd(a, 12, 26, 27, 0x80000)
    a(f"""
    s_bitcmp0_b32 s5, 0
    s_cselect_b64 s[46:47], s[28:29], s[30:31]
    """)
    srd(a, 16, 46, 47, 0x4000)
    srd(a, 40, 44, 45, 0x80000)
    srd(a, 20, 32, 33, WS_SIZE)
    a(f"""
    s_cmp_lg_u32 s6, 0
    s_cbranch_scc1 K1_noz
    v_mov_b32 v32, 0
    v_mov_b32 v33, 0
    v_mov_b32 v34, 0
    v_mov_b32 v35, 0
    s_lshl_b32 s48, s2, 10
    s_add_u32 s48, s48, {WS_GU:#x}
    buffer_store_dwordx4 v[32:35], v12, s[20:23], s48 offen{SC}
    """)
    a.label("K1_noz")
    if 'notouch' not in dbg:
        a(f"""
        s_cmp_lg_u32 s6, 1
        s_cbranch_scc1 K1_not
        s_and_b32 s48, s2, 7
        s_lshl_b32 s48, s48, 14
        s_add_u32 s48, s48, {WS_FL:#x}
        v_lshlrev_b32 v32, {FLS + 2}, v2
        buffer_load_dword v33, v32, s[20:23], s48 offen sc1
        """)
        a.label("K1_not")
    a(f"""
    s_cmp_lt_u32 s6, 2
    s_cbranch_scc1 K1_nowo
    s_lshl_b32 s46, s2, 1
    s_and_b32 s47, s6, 1
    s_add_u32 s46, s46, s47
    s_lshr_b32 s47, s46, 6
    s_lshl_b32 s47, s47, 16
    s_bfe_u32 s48, s46, 0x10002
    s_lshl_b32 s48, s48, 15        ; s * 32 rows
    s_add_u32 s47, s47, s48
    s_bfe_u32 s48, s46, 0x30003
    s_lshl_b32 s48, s48, 7         ; w * 128 B
    s_add_u32 s47, s47, s48
    s_and_b32 s48, s46, 3
    s_lshl_b32 s48, s48, 5         ; t * 32 B
    s_add_u32 s47, s47, s48
    s_lshl_b32 s48, s6, 10
    s_add_u32 s48, s48, {L_WOT - 2048}
    s_mov_b32 m0, s48
    v_add_u32 v17, s48, v17
    buffer_load_dwordx4 v13, s[40:43], s47 offen lds
    s_lshl_b32 s48, s6, 2
    s_add_u32 s48, s48, {L_DN - 8}
    v_mov_b32 v36, s48
    v_mov_b32 v37, 0
    ds_write_b32 v36, v37
    v_mov_b32 v37, 1
    """)
    a.label("K1_nowo")
    a(f"""
    s_lshl_b32 s36, s6, 12
    s_lshl_b32 s38, s5, 11
    """)
    for i in range(4):
        a(f"""
        s_add_u32 s48, s36, {i*1024}
        s_add_u32 m0, s48, {L_KV}
        s_add_u32 s48, s48, s38
        s_and_b32 s48, s48, 0x3fff
        buffer_load_dwordx4 v15, s[16:19], s48 offen lds
        """)
    a("s_waitcnt lgkmcnt(0)")
    a("s_add_u32 s58, s58, 1")
    a(f"""
    s_barrier
    s_cmp_lt_u32 s6, 2
    s_cbranch_scc1 K1_nowo2
    s_waitcnt vmcnt(4)
    ds_read_b64_tr_b16 v[32:33], v17
    ds_read_b64_tr_b16 v[34:35], v17 offset:128
    s_lshl_b32 s46, s46, 10
    s_add_u32 s46, s46, {WS_WOF:#x}
    s_waitcnt lgkmcnt(0)
    buffer_store_dwordx4 v[32:35], v12, s[20:23], s46 offen sc1
    s_branch K1_wst
    """)
    a.label("K1_nowo2")
    a("buffer_load_dword v33, v12, s[16:19], 0 offen")
    a.label("K1_wst")
    for i in range(16):
        a(f"""
        s_add_u32 s48, s39, {i}
        s_and_b32 s48, s48, 15
        s_lshl_b32 s49, s48, 10
        s_add_u32 m0, s65, s49
        s_add_u32 s48, s48, s37
        s_and_b32 s48, s48, 63
        s_lshl_b32 s48, s48, 13
        buffer_load_dwordx4 v{10 + (i & 1)}, s[12:15], s48 offen lds
        """)
        if i == WB:
            a(f"s_waitcnt vmcnt({WB + 2})")
            p1(1)
            a("s_barrier")
        if i == WD and EARLY:
            a(f"""
            s_cmp_lt_u32 s6, 2
            s_cbranch_scc1 K1_nodn
            s_waitcnt vmcnt({WD + 1})
            ds_write_b32 v36, v37
            """)
            a.label("K1_nodn")
    p1(2)
    if 'ps' in dbg.split(','):
        a("s_cmp_eq_u32 s6, 0")
        a("s_cbranch_scc1 K12_setup")
    a("s_waitcnt vmcnt(0)")
    p1(3)
    a("s_barrier")
    a("s_cmp_eq_u32 s6, 0")
    a("s_cbranch_scc1 K12_setup")
    a("s_setprio 0")
    a("s_branch K12_setup")
    a.label("K1_comp")
    ONE = 24; SEL = 8
    SEL = 152
    a(f"""
    v_lshlrev_b32 v21, 7, v20
    v_lshl_add_u32 v21, v19, 3, v21   ; row*128 + 8c'
    v_add_u32 v21, {L_W}, v21
    v_lshrrev_b32 v22, 1, v18
    v_and_b32 v23, 1, v4
    v_lshl_or_b32 v22, v23, 1, v22 ; h
    """)
    for t in range(4):
        a(f"v_xor_b32 v23, {t}, v22")
        a(f"v_lshl_add_u32 v{13+t}, v23, 5, v21")
    a(f"""
    v_lshlrev_b32 v10, 6, v3
    v_lshrrev_b32 v7, 2, v3
    v_and_b32 v7, 2, v7
    v_xor_b32 v7, v7, v4
    v_lshl_add_u32 v10, v7, 4, v10
    s_lshl_b32 s3, s6, 14
    v_add_u32 v10, s3, v10
    v_and_b32 v7, 1, v4
    v_lshlrev_b32 v7, 7, v7
    v_add_u32 v17, {L_KV}, v17
    v_xor_b32 v12, v17, v7
    v_xor_b32 v17, 128, v12
    """)
    for r in range(4): a(f"v_mov_b32 v{ONE+r}, 0x3f803f80")
    a(f"""
    v_and_b32 v7, 1, v2
    v_lshlrev_b32 v7, 4, v7
    v_mov_b32 v8, 0x3f80
    v_lshlrev_b32 v7, v7, v8
    v_cmp_eq_u32 s[34:35], v18, v4 ; g == (l&15)>>2
    v_bfe_u32 v8, v2, 1, 1
    v_cmp_eq_u32 vcc, 0, v8
    s_and_b64 s[42:43], s[34:35], vcc
    s_andn2_b64 s[36:37], s[34:35], vcc
    v_mov_b32 v{SEL}, 0
    v_mov_b32 v{SEL+1}, 0
    v_cndmask_b32 v{SEL+2}, 0, v7, s[42:43]
    v_cndmask_b32 v{SEL+3}, 0, v7, s[36:37]
    v_mov_b32 v{SEL+4}, 0
    v_mov_b32 v{SEL+5}, 0
    """)
    a(f"""
    s_lshl_b32 s3, s6, 2
    s_add_u32 s3, s3, {L_DN + 8}
    v_mov_b32 v21, s3
    ds_write_b32 v21, v{SEL}
    s_lshl_b32 s3, s6, 12
    v_add_u32 v12, s3, v12
    v_add_u32 v17, s3, v17
    s_lshr_b32 s4, s28, 1
    s_sub_u32 s4, s4, s6
    s_lshl_b32 s4, s4, 14
    s_add_u32 s3, s3, s4
    v_add_u32 v22, s3, v10
    """)
    xloop("K1_x2", XN, 8)
    a("s_waitcnt lgkmcnt(0)")
    a("s_add_u32 s58, s58, 1")
    a("s_barrier")
    p1(1)
    m16 = "v_mfma_f32_16x16x32_bf16"
    SUM = ACC; GR = ACC + 4; NM = 248
    def stat(u):
        xs = f"v[{X+4*u}:{X+4*u+3}]"
        a(f"{m16} v[{SUM}:{SUM+3}], v[{ONE}:{ONE+3}], {xs}, " + ("0" if u == 0 else f"v[{SUM}:{SUM+3}]"))
        a(f"{m16} v[{GR}:{GR+3}], {xs}, {xs}, " + ("0" if u == 0 else f"v[{GR}:{GR+3}]"))
    for u in range(0, 16, 2):
        a(f"s_waitcnt vmcnt({14-u})")
        a(f"ds_read_b128 v[{X+4*u}:{X+4*u+3}], v10 offset:{1024*u}")
        a(f"ds_read_b128 v[{X+4*u+4}:{X+4*u+7}], v10 offset:{1024*u+1024}")
        if u >= 4:
            a("s_waitcnt lgkmcnt(4)")
            stat(u - 4); stat(u - 3)
    a("s_waitcnt lgkmcnt(2)"); stat(12); stat(13)
    a("s_waitcnt lgkmcnt(0)"); stat(14); stat(15)
    RG = 184
    a("s_lshr_b32 s79, s28, 1")
    a(f"""
    v_and_b32 v7, 1, v2
    v_cmp_eq_u32 vcc, 1, v7
    v_cndmask_b32 v8, v{GR}, v{GR+1}, vcc
    v_cndmask_b32 v9, v{GR+2}, v{GR+3}, vcc
    v_cndmask_b32 v8, 0, v8, s[42:43]
    v_cndmask_b32 v26, v8, v9, s[36:37]
    """)
    for w in (16, 32):
        sum_swap(a, 26, 28, w)
    ln_scalars(a, SUM, 26, 28, 30, 27, 29)
    for r in range(4): a(f"v_sub_f32 v{NM+r}, 0, v28")
    NB = 4
    def cen(XB, NMB, u, h):
        d = AF + 8 * (u % NB) + 4 * h
        return f"v_mfma_f32_16x16x16bf16_1k v[{d}:{d+3}], v[{SEL+2}:{SEL+3}], v[{XB+4*u+2*h}:{XB+4*u+2*h+1}], v[{NMB}:{NMB+3}]"
    def ln_step(XB, NMB, RS, u, n):
        d = AF + 8 * (u % NB); L = []
        for r in range(4): L.append(f"v_cvt_pk_bf16_f32 v{d+r}, 0, v{d+r}")
        if u + 2 < n: L.append(cen(XB, NMB, u + 2, 0))
        for r in range(4, 8): L.append(f"v_cvt_pk_bf16_f32 v{d+r}, 0, v{d+r}")
        for r in range(0, 8, 2): L.append(f"v_pk_mul_f32 v[{d+r}:{d+r+1}], v[{d+r}:{d+r+1}], {RS}")
        if u + 2 < n: L.append(cen(XB, NMB, u + 2, 1))
        for r in range(4): L.append(f"v_cvt_pk_bf16_f32 v{XB+4*u+r}, v{d+2*r}, v{d+2*r+1}")
        return L
    XK = RG; WK = RG + 16; NK = RG + 32; SK = RG + 36; KV = ACC + 16; PR = RG + 40
    a(f"""
    s_lshl_b32 s3, s6, 7
    s_add_u32 s3, s3, {L_ST}
    v_lshl_add_u32 v7, v3, 3, s3
    ds_write2_b32 v7, v28, v30 offset0:0 offset1:1
    s_lshl_b32 s3, s79, 7
    s_add_u32 s3, s3, {L_ST}
    v_lshl_add_u32 v7, v3, 3, s3
    s_waitcnt lgkmcnt(0)
    s_barrier
    ds_read_b64 v[{SK}:{SK+1}], v7
    """)
    for u in range(4): a(f"ds_read_b128 v[{XK+4*u}:{XK+4*u+3}], v22 offset:{1024*u}")
    for u in range(4):
        for half in range(2):
            d = WK + 4 * u + 2 * half
            a(f"ds_read_b64_tr_b16 v[{d}:{d+1}], v{17 if half else 12} offset:{u*1024}")
    a(f"""
    s_lshl_b32 s3, s6, 10
    s_add_u32 s3, s3, {L_KP}
    v_lshl_add_u32 v23, v2, 4, s3
    v_lshrrev_b32 v9, 1, v4
    v_and_b32 v11, 1, v4
    s_waitcnt lgkmcnt(12)
    """)
    for r in range(4): a(f"v_sub_f32 v{NK+r}, 0, v{SK}")
    a("s_waitcnt lgkmcnt(8)")
    for u in range(2):
        a(cen(XK, NK, u, 0)); a(cen(XK, NK, u, 1))
    for u in range(4):
        for ins in ln_step(XK, NK, f"v[{SK}:{SK+1}] op_sel:[0,1] op_sel_hi:[1,1]", u, 4): a(ins)
    a(f"""
    s_waitcnt lgkmcnt(0)
    s_bitcmp0_b32 s28, 0
    s_cbranch_scc0 K1_v
    """)
    for u in range(4):
        a(f"{m16} v[{KV}:{KV+3}], v[{WK+4*u}:{WK+4*u+3}], v[{XK+4*u}:{XK+4*u+3}], " + ("0" if u == 0 else f"v[{KV}:{KV+3}]"))
    a("s_branch K1_kvs")
    a.label("K1_v")
    for u in range(4):
        a(f"{m16} v[{KV}:{KV+3}], v[{XK+4*u}:{XK+4*u+3}], v[{WK+4*u}:{WK+4*u+3}], " + ("0" if u == 0 else f"v[{KV}:{KV+3}]"))
    a.label("K1_kvs")
    for u in range(2):
        a(cen(X, NM, u, 0)); a(cen(X, NM, u, 1))
    a(f"""
    v_mov_b32 v7, 1
    ds_write_b128 v23, v[{KV}:{KV+3}]
    ds_write_b32 v21, v7
    """)
    KS1 = int(dict(x.split('=') for x in dbg.split(',') if '=' in x).get('ks1', 0))
    KS2 = int(dict(x.split('=') for x in dbg.split(',') if '=' in x).get('ks2', 9))
    for u in range(16):
        for ins in ln_step(X, NM, "v[30:31] op_sel_hi:[1,0]", u, 16): a(ins)
        if u == KS1:
            a(f"""
            s_cmp_lg_u32 s79, s6
            s_cbranch_scc1 K1_nk1
            v_mov_b32 v21, {L_DN}
            v_lshlrev_b32 v23, 4, v2
            v_add_u32 v23, {L_KP}, v23
            s_lshr_b32 s35, s80, 15
            s_mul_i32 s35, s35, {TS}
            s_add_u32 s35, s35, {WS_KV:#x}
            """)
            a.label("K1_pw")
            a(f"""
            ds_read2_b64 v[{PR}:{PR+3}], v21 offset0:1 offset1:2
            s_waitcnt lgkmcnt(0)
            v_and_b32 v{PR}, v{PR}, v{PR+1}
            v_and_b32 v{PR+2}, v{PR+2}, v{PR+3}
            v_and_b32 v{PR}, v{PR}, v{PR+2}
            v_cmp_eq_u32 vcc, 0, v{PR}
            s_cbranch_vccnz K1_pw
            """)
            for k in range(4): a(f"ds_read_b128 v[{PR+4*k}:{PR+4*k+3}], v23 offset:{1024*k}")
            a(f"""
            s_bitcmp0_b32 s28, 0
            s_cbranch_scc0 K1_va
            v_and_b32 v8, 31, v5
            v_lshlrev_b32 v8, 4, v8
            v_lshl_add_u32 v8, v9, 9, v8
            s_branch K1_kva
            """)
            a.label("K1_va")
            a(f"""
            s_and_b32 s36, s6, 1
            s_mul_i32 s36, s36, 544
            s_add_u32 s35, s35, s36
            s_add_u32 s35, s35, 1024
            v_mul_u32_u24 v8, 272, v9
            v_mov_b32 v{XK}, 0x3f803f80
            v_mov_b32 v{XK+1}, 0x3f803f80
            v_mov_b32 v{XK+2}, 0x3f803f80
            v_mov_b32 v{XK+3}, 0x3f803f80
            s_mov_b32 exec_lo, 1
            s_mov_b32 exec_hi, 1
            buffer_store_dwordx4 v[{XK}:{XK+3}], v8, s[8:11], s35 offen offset:256 sc1
            s_mov_b64 exec, -1
            v_lshl_add_u32 v8, v3, 4, v8
            """)
            a.label("K1_kva")
            a("s_waitcnt lgkmcnt(0)")
            for (x, y) in ((0, 4), (8, 12), (0, 8)):
                for r in (0, 2):
                    a(f"v_pk_add_f32 v[{PR+x+r}:{PR+x+r+1}], v[{PR+x+r}:{PR+x+r+1}], v[{PR+y+r}:{PR+y+r+1}]")
            a(f"""
            v_cvt_pk_bf16_f32 v{T}, v{PR}, v{PR+1}
            v_cvt_pk_bf16_f32 v{T+1}, v{PR+2}, v{PR+3}
            v_mov_b32 v{T+2}, v{T}
            v_mov_b32 v{T+3}, v{T+1}
            v_permlane16_swap_b32 v{T}, v{T+2}
            v_permlane16_swap_b32 v{T+1}, v{T+3}
            s_mov_b32 exec_lo, 0xffff
            s_mov_b32 exec_hi, 0xffff
            buffer_store_dwordx4 v[{T}:{T+3}], v8, s[8:11], s35 offen sc1
            s_mov_b64 exec, -1
            v_mov_b32 v7, s58
            v_lshlrev_b32 v8, 14, v2
            s_lshl_b32 s35, s2, {FLS}
            s_add_u32 s35, s35, {WS_FL:#x}
            """)
            a.label("K1_nk1")
        if u == KS2:
            a(f"""
            s_cmp_lg_u32 s79, s6
            s_cbranch_scc1 K1_nk2
            """)
            a.label("K1_dn")
            a(f"""
            ds_read_b64 v[22:23], v21
            s_waitcnt vmcnt(0) lgkmcnt(0)
            v_and_b32 v22, v22, v23
            v_cmp_eq_u32 vcc, 0, v22
            s_cbranch_vccnz K1_dn
            s_mov_b64 exec, 0xff
            buffer_store_dword v7, v8, s[8:11], s35 offen sc1
            s_mov_b64 exec, -1
            """)
            a.label("K1_nk2")
    p1(2)
    a.label("K1_q")
    a("s_barrier")
    p1(3)
    def rd(s, t):
        for half in range(2):
            d = RG + 16 * (s % 3) + 4 * t + 2 * half
            a(f"ds_read_b64_tr_b16 v[{d}:{d+1}], v{13+t} offset:{s*4096 + half*512}")
    for t in range(4): rd(0, t)
    for t in range(4): rd(1, t)
    for s in range(16):
        a(f"s_waitcnt lgkmcnt({8 if s < 15 else 0})")
        for t in range(4):
            d = RG + 16 * (s % 3) + 4 * t
            c = "0" if s == 0 else f"v[{ACC+4*t}:{ACC+4*t+3}]"
            a(f"{m16} v[{ACC+4*t}:{ACC+4*t+3}], v[{d}:{d+3}], v[{X+4*s}:{X+4*s+3}], {c}")
            if s + 2 < 16: rd(s + 2, t)
        if s == PB: a("s_barrier")
        if s == FST and not EARLY:
            a(f"""
            s_cmp_lg_u32 s79, s6
            s_cbranch_scc1 K1_nofl
            s_waitcnt vmcnt(0)
            s_mov_b64 exec, 0xff
            buffer_store_dword v7, v8, s[8:11], s35 offen sc1
            s_mov_b64 exec, -1
            """)
            a.label("K1_nofl")
    a(f"""
    s_lshl_b32 s35, s28, 10
    v_lshrrev_b32 v7, 3, v5
    v_lshlrev_b32 v7, 13, v7
    v_and_b32 v8, 7, v5
    v_lshl_add_u32 v7, v8, 4, v7
    v_lshl_add_u32 v7, v9, 9, v7
    v_lshl_add_u32 v7, v11, 7, v7
    """)
    for tp in range(2):
        for t in (2 * tp, 2 * tp + 1):
            for r in range(4): a(f"v_cvt_pk_bf16_f32 v{ACC+4*t+r}, 0, v{ACC+4*t+r}")
            for r in range(4): a(f"v_mul_f32 v{ACC+4*t+r}, {f2u(0.25 * 1.4426950408889634):#x}, v{ACC+4*t+r}")
            a(f"v_cvt_pk_bf16_f32 v{AF+2*t}, v{ACC+4*t}, v{ACC+4*t+1}")
            a(f"v_cvt_pk_bf16_f32 v{AF+2*t+1}, v{ACC+4*t+2}, v{ACC+4*t+3}")
        b = AF + 4 * tp
        a(f"v_permlane16_swap_b32 v{b}, v{b+2}")
        a(f"v_permlane16_swap_b32 v{b+1}, v{b+3}")
        a(f"buffer_store_dwordx4 v[{b}:{b+3}], v7, s[8:11], s35 offen offset:{256*tp}{SC}")
    a(f"""
    s_cmp_lg_u32 s79, s6
    s_cbranch_scc1 K1_nol
    v_and_b32 v8, 0x3ff, v7
    s_mov_b32 s36, 0x00ff00ff
    s_and_b32 s37, s28, 1
    s_lshl_b32 s37, s37, 3
    s_lshl_b32 exec_lo, s36, s37
    s_mov_b32 exec_hi, exec_lo
    ds_write_b128 v8, v[{AF}:{AF+3}] offset:{L_Q0}
    ds_write_b128 v8, v[{AF+4}:{AF+7}] offset:{L_Q0 + 256}
    s_mov_b64 exec, -1
    """)
    a.label("K1_nol")
    p1(4)
    dstamp(a, 0, True, 200)
    a("s_branch K12_join")
    for k, l in enumerate(a.lines):
        if isinstance(l, Ins):
            t = re.sub(r"\bv(\d+)\b", lambda m: f"v{159 + int(m.group(1))}" if 1 <= int(m.group(1)) <= 15 else m.group(0), l.text)
            if t != l.text: a.lines[k] = Ins(t)
```

```python
from gen import *
import gen as G

L_PART = 0x0; L_Q = 0x6000; L_MREF = 0x8400; L_OB = 0x5800; L_KEY = 0xAC00; L_FLG = 0xAD00; L_MX = 0xB000; L_HB = 0xB400
L_FW = 0xE000; L_TOTAL = 0xE000 + 8 * 7168
L_XS = L_PART; L_RED = L_PART + 0x1000; L_GB = L_PART + 0x2000
C_EXACT = 0.25 * 1.4426950408889634
OFFS = 96.0

def wave_sum(a, vs, ts):
    if isinstance(vs, int): vs, ts = [vs], [ts]
    for mod in ("quad_perm:[1,0,3,2]", "quad_perm:[2,3,0,1]", "row_half_mirror", "row_mirror"):
        for v in vs:
            a(f"v_add_f32_dpp v{v}, v{v}, v{v} {mod} row_mask:0xf bank_mask:0xf")
    for w in (16, 32):
        for v, t in zip(vs, ts): a(f"v_mov_b32 v{t}, v{v}")
        for v, t in zip(vs, ts): a(f"v_permlane{w}_swap_b32 v{t}, v{v}")
        for v, t in zip(vs, ts): a(f"v_add_f32 v{v}, v{v}, v{t}")

class VM:
    def __init__(self, a): self.a = a; self.q = []; self.done = -1
    def issue(self, tag): self.q.append(tag)
    def wait(self, tag):
        i = max(k for k, t in enumerate(self.q) if t == tag)
        if i <= self.done: return
        self.done = i
        self.a(f"s_waitcnt vmcnt({len(self.q) - 1 - i})")

def wave_max_u32(a, v, t):
    for mod in ("quad_perm:[1,0,3,2]", "quad_perm:[2,3,0,1]", "row_half_mirror", "row_mirror"):
        a(f"v_max_u32_dpp v{v}, v{v}, v{v} {mod} row_mask:0xf bank_mask:0xf")
    for w in (16, 32):
        a(f"""
        v_mov_b32 v{t}, v{v}
        v_permlane{w}_swap_b32 v{t}, v{v}
        v_max_u32 v{v}, v{v}, v{t}
        """)

LOG2E = 1.4426950408889634
def sigmoid(a, d, x, t):
    a(f"""
    v_mul_f32 v{t}, {f2u(-LOG2E):#x}, v{x}
    v_exp_f32 v{t}, v{t}
    v_add_f32 v{t}, 1.0, v{t}
    v_rcp_f32 v{d}, v{t}
    """)

def gen_p2(a, dbg='', prio=True):
    SC = ' sc1'
    OPT = dict(x.split('=') for x in dbg.split(',') if '=' in x)
    FLS = int(OPT.get('fls', 4))
    PFS = int(OPT.get('pfs', 0)); PFP = int(OPT.get('pfp', 1))
    TAILST = 'tailst' in dbg
    FS = 'ffnst' in dbg
    KREP = 'nokrep' not in dbg; GREP = 'nogrep' not in dbg
    def st(i, tail):
        if 'p1st' in dbg:
            if tail == 4: stamp(a, i)
        elif 'r0st' in dbg:
            if tail == 3: stamp(a, i)
        elif FS:
            if tail == 2: stamp(a, i)
        elif tail in (True, False) and bool(tail) == TAILST: stamp(a, i)
    K = 16; V = 48; X = [112, 128]; O = 144; CM = 160; SP = 176; Q = 184; OA = 188; WF = 204; BF = 236; S1 = 240
    vQA, vPW, vPR, vPL, vOW, vOR, vLM, vWL, vKL, vVL = 1, 2, 3, 4, 5, 6, 7, 8, 9, 10
    t0, t1, t2, t3, t4 = 11, 12, 13, 14, 15
    vFW, vFR, vFV, vWLs = 9, 13, 14, 15
    vFS, vPA, vPD = SP + 4, SP + 5, SP + 6
    a.label("K12_setup")
    a(f"""
    s_load_dwordx2 s[48:49], s[0:1], 96
    s_load_dwordx2 s[40:41], s[0:1], 0
    s_load_dwordx8 s[60:67], s[0:1], 48
    s_load_dwordx2 s[46:47], s[0:1], 80
    s_waitcnt lgkmcnt(0)
    """)
    a.label("K12_setup1")
    a(f"""
    s_and_b32 s3, s2, 7
    s_lshr_b32 s4, s2, 3
    s_lshl_b32 s7, s3, 8
    s_lshl_b32 s5, s4, 3
    s_add_u32 s7, s7, s5           ; T0
    s_and_b32 s28, s4, 7           ; rot
    v_lshrrev_b32 v{t0}, 6, v0
    v_and_b32 v0, 63, v0
    v_readfirstlane_b32 s6, v{t0}
    s_mov_b32 s30, 0
    v_lshlrev_b32 v{vWL}, 4, v0
    s_mul_i32 s3, s6, {8*TS}
    s_add_u32 s3, s3, {WS_KV:#x}
    """)
    for t in range(8):
        a(f"""
        s_add_u32 s4, s28, {t}
        s_and_b32 s4, s4, 7
        s_mul_i32 s4, s4, {TS}
        s_add_u32 s{50+t}, s3, s4
        """)
    a.label("K2_restart")
    a(f"""
    s_add_u32 s44, s6, 4
    s_and_b32 s44, s44, 7
    s_add_u32 s3, s44, s28
    s_and_b32 s3, s3, 7
    s_andn2_b32 s45, s2, 0x38
    s_lshl_b32 s4, s3, 3
    s_or_b32 s45, s45, s4
    s_lshl_b32 s45, s45, 6
    s_lshr_b32 s4, s28, 1
    s_lshl_b32 s4, s4, 2
    s_add_u32 s45, s45, s4
    s_add_u32 s45, s45, {WS_FQ:#x}
    s_add_u32 s3, s3, s7
    s_lshl_b32 s32, s3, 10
    v_and_b32 v{t1}, 31, v0
    v_lshrrev_b32 v{t2}, 5, v0
    v_mul_u32_u24 v{vVL}, 272, v{t2}
    v_lshl_add_u32 v{vVL}, v{t1}, 4, v{vVL}
    v_cmp_lt_u32 vcc, 16, v{t1}
    v_bfrev_b32 v{t0}, 1
    v_add_u32 v{vQA}, {L_Q:#x}, v{vWL}
    v_cndmask_b32 v{vVL}, v{vVL}, v{t0}, vcc
    """)
    srd(a, 8, 48, 49, WS_SIZE)
    vm = VM(a)
    def ldK(t):
        a(f"buffer_load_dwordx4 v[{K+4*t}:{K+4*t+3}], v{vWL}, s[8:11], s{50+t} offen{SC}"); vm.issue(f"K{t}")
    def ldV(t):
        if 'vmask' in dbg:
            a("s_mov_b32 exec_lo, 0x1ffff"); a("s_mov_b32 exec_hi, 0x1ffff")
            for h in range(2):
                a(f"buffer_load_dwordx4 v[{V+8*t+4*h}:{V+8*t+4*h+3}], v{vVL}, s[8:11], s{50+t} offen offset:{1024 + 544*h}{SC}"); vm.issue(f"V{t}{h}")
            a("s_mov_b64 exec, -1")
            return
        for h in range(2):
            a(f"buffer_load_dwordx4 v[{V+8*t+4*h}:{V+8*t+4*h+3}], v{vVL}, s[8:11], s{50+t} offen offset:{1024 + 544*h}{SC}"); vm.issue(f"V{t}{h}")
    a(f"""
    s_lshl_b32 s3, s44, 10
    v_add_u32 v{t4}, s3, v{vQA}
    """)
    def late_setup(part):
        u0, u1, u2, u3 = S1, S1 + 1, S1 + 2, S1 + 3
        if part == 0:
            srd(a, 16, 40, 41, 0x200000)
            srd(a, 20, 46, 47, 0x200000)
            srd(a, 24, 60, 61, 0x400)
            a(f"""
            v_and_b32 v{u1}, 31, v0
            v_lshrrev_b32 v{u2}, 5, v0
            v_mul_u32_u24 v{vPW}, 80, v{u1}
            s_mul_i32 s3, s6, 2560
            v_add_u32 v{vPW}, s3, v{vPW}
            v_lshl_add_u32 v{SP+3}, v{u2}, 2, v{vPW}
            v_lshl_add_u32 v{vPW}, v{u2}, 4, v{vPW}
            v_lshrrev_b32 v{u0}, 4, v0     ; g
            s_lshr_b32 s3, s6, 1
            s_lshl_b32 s3, s3, 3
            s_and_b32 s4, s6, 1
            s_lshl_b32 s4, s4, 1
            s_add_u32 s3, s3, s4
            v_and_b32 v{u1}, 1, v{u0}
            v_lshl_add_u32 v{u1}, v{u1}, 2, v{u2}
            v_add_u32 v{u1}, s3, v{u1}     ; n = 8*(w>>1) + 2*(w&1) + (g>>1) + 4*(g&1)
            v_mul_u32_u24 v{vPL}, 80, v{u1}
            v_and_b32 v{u2}, 15, v0        ; d
            v_lshl_add_u32 v{vPR}, v{u2}, 2, v{vPL}
            v_and_b32 v{u3}, 7, v0
            v_mul_u32_u24 v{u3}, 2560, v{u3}
            v_add3_u32 v{vPL}, v{vPL}, v{u3}, 64
            s_lshl_b32 s31, s28, 16
            s_lshl_b32 s33, s6, 13
            s_add_u32 s33, s33, {WS_WOF:#x}
            """)
        elif part == 1:
            a(f"""
            v_and_b32 v{u3}, 7, v{u1}      ; token
            v_lshrrev_b32 v{u1}, 3, v{u1}  ; head_local
            v_mul_u32_u24 v{vOW}, 144, v{u3}
            v_lshl_add_u32 v{vOW}, v{u1}, 5, v{vOW}
            v_lshl_add_u32 v{vOW}, v{u2}, 1, v{vOW}
            v_add_u32 v{vOW}, {L_OB:#x}, v{vOW}
            v_and_b32 v{u3}, 7, v0
            v_mul_u32_u24 v{vOR}, 144, v{u3}
            v_lshl_add_u32 v{vOR}, v{u0}, 4, v{vOR}
            v_add_u32 v{vOR}, {L_OB:#x}, v{vOR}
            v_mov_b32 v{vLM}, 0
            v_lshlrev_b32 v{vFR}, 2, v{u3}
            v_add_u32 v{vFR}, {L_FLG:#x}, v{vFR}
            """)
        else:
            a(f"v_pk_mov_b32 v[{SP}:{SP+1}], 0, 0")
            a(f"v_mov_b32 v{SP+2}, 0xdddddddd")
    def rd_qcm():
        a(f"ds_read_b128 v[{Q}:{Q+3}], v{vQA}")
        for k in range(4):
            a(f"ds_read_b128 v[{CM+4*k}:{CM+4*k+3}], v{vQA} offset:{L_MREF - L_Q}")
        a(f"v_add_u32 v{vQA}, 1024, v{vQA}")
    mf = "v_mfma_f32_32x32x16_bf16"
    def M1(kt, xb):
        if 'nom1' in dbg: a("s_nop 1"); return
        a(f"{mf} v[{X[xb]}:{X[xb]+15}], v[{K+4*kt}:{K+4*kt+3}], v[{Q}:{Q+3}], v[{CM}:{CM+15}]")
    def E(xb, lo, hi):
        for r in range(lo, hi):
            if 'expnop' in dbg:
                a("v_nop"); a("v_nop")
                continue
            if 'noexp' in dbg:
                a(f"v_cvt_pk_bf16_f32 v{X[xb]+r}, 0, v{X[xb]+r}"); a(f"v_cvt_pk_bf16_f32 v{X[xb]+r}, 0, v{X[xb]+r}")
                continue
            a(f"v_exp_f32 v{X[xb]+r}, v{X[xb]+r}")
    def C2(h, xb):
        for k in range(4):
            a(f"v_cvt_pk_bf16_f32 v{SP+4*h+k}, v{X[xb]+8*h+2*k}, v{X[xb]+8*h+2*k+1}")
    def M3(h, kt):
        xb = kt & 1
        if 'nom3' in dbg: a("s_nop 2"); return
        a(f"v_smfmac_f32_32x32x32_bf16 v[{O}:{O+15}], v[{V+8*kt+4*h}:{V+8*kt+4*h+3}], v[{X[xb]+8*h}:{X[xb]+8*h+7}], v{SP+2}")
    def Ozero():
        a(f"v_mfma_f32_32x32x8bf16_1k v[{O}:{O+15}], v[{SP}:{SP+1}], v[{SP}:{SP+1}], 0")
    def part_write():
        a(f"""
        ds_write_b128 v{vPW}, v[{O}:{O+3}]
        ds_write_b128 v{vPW}, v[{O+4}:{O+7}] offset:32
        ds_write_b32 v{SP+3}, v{O+8} offset:64
        """)
    def s1_read():
        a(f"ds_read_b32 v{S1+8}, v{vPL}")
        for k in range(4):
            a(f"ds_read2st64_b32 v[{S1+2*k}:{S1+2*k+1}], v{vPR} offset0:{20*k} offset1:{20*k+10}")
    def s1_calc():
        dp = lambda mod: f"v_add_f32_dpp v{S1+8}, v{S1+8}, v{S1+8} {mod} row_mask:0xf bank_mask:0xf"
        pa = (lambda x, y: f"v_add_f32 v{x}, v{x}, v{y}\nv_add_f32 v{x+1}, v{x+1}, v{y+1}") if 's1sc' in dbg else \
             (lambda x, y: f"v_pk_add_f32 v[{x}:{x+1}], v[{x}:{x+1}], v[{y}:{y+1}]")
        a(f"""
        {dp("quad_perm:[1,0,3,2]")}
        {pa(S1, S1+2)}
        {pa(S1+4, S1+6)}
        {dp("quad_perm:[2,3,0,1]")}
        {pa(S1, S1+4)}
        v_add_f32 v{S1}, v{S1}, v{S1+1}
        {dp("row_half_mirror")}
        v_rcp_f32 v{S1+1}, v{S1+8}
        v_maximum3_f32 v{vLM}, v{vLM}, v{S1+8}, abs(v{S1})
        v_mul_f32 v{S1}, v{S1}, v{S1+1}
        v_cvt_pk_bf16_f32 v{S1}, v{S1}, v{S1}
        ds_write_b16 v{vOW}, v{S1}
        """)
    def s2_read():
        for s in range(2):
            a(f"ds_read_b128 v[{BF+4*s}:{BF+4*s+3}], v{vOR} offset:{64*s}")
    def s2_mma(lo, hi):
        for u in range(lo, hi):
            s, t = u >> 2, u & 3
            a(f"v_mfma_f32_16x16x32_bf16 v[{OA+4*t}:{OA+4*t+3}], v[{WF+4*u}:{WF+4*u+3}], v[{BF+4*s}:{BF+4*s+3}], v[{OA+4*t}:{OA+4*t+3}]")
    def wf_load(lo, hi):
        if lo == 0:
            a("s_add_u32 s34, s33, s31")
            a("s_add_u32 s35, s34, 4096")
            a("s_add_u32 s31, s31, 0x10000")
            a("s_and_b32 s31, s31, 0x7ffff")
        for u in range(lo, hi):
            a(f"buffer_load_dwordx4 v[{WF+4*u}:{WF+4*u+3}], v{vWL}, s[8:11], s{34 + (u >> 2)} offen offset:{1024*(u&3)}{SC}")
            vm.issue("WF")
    def ffn_prefetch():
        a(f"""
        s_mov_b32 s39, s6
        s_cmp_eq_u32 s39, 1
        s_cselect_b64 s[36:37], s[64:65], s[62:63]
        s_cmp_eq_u32 s39, 2
        s_cselect_b64 s[36:37], s[66:67], s[36:37]
        """)
        srd(a, 12, 36, 37, 512 * 1792 * 2)
        a(f"""
        s_and_b32 s3, s2, 7
        s_lshr_b32 s4, s2, 3
        s_mul_i32 s5, s4, {16*3584}
        s_mul_i32 s36, s3, 448
        s_and_b32 s36, s36, 0xffffff80
        s_add_u32 s5, s5, s36
        s_lshl_b32 s36, s3, 7
        s_mul_i32 s37, s4, {56*1024}
        s_add_u32 s36, s36, s37
        v_lshrrev_b32 v{t0}, 2, v0
        v_mul_u32_u24 v{t0}, 3584, v{t0}
        v_and_b32 v{t1}, 3, v0
        v_lshl_add_u32 v{t0}, v{t1}, 7, v{t0}
        v_min_u32 v{t1}, 55, v0
        v_lshlrev_b32 v{t1}, 10, v{t1}
        s_cmp_eq_u32 s39, 2
        s_cselect_b32 s38, s36, s5
        s_cselect_b64 vcc, -1, 0
        v_cndmask_b32 v{vPA}, v{t0}, v{t1}, vcc
        s_lshl_b32 s39, s6, {PFS}
        s_add_u32 s39, s39, 1
        s_cmp_gt_u32 s6, 2
        s_cselect_b32 s39, 99, s39
        """)
    def ffn_setup():
        a(f"""
        s_and_b32 s3, s2, 7
        s_lshr_b32 s4, s2, 3
        s_and_b32 s5, s6, 1
        s_cmp_eq_u32 s5, 0
        s_cselect_b64 s[36:37], s[62:63], s[64:65]
        s_cmp_lt_u32 s2, 112
        s_cselect_b64 s[36:37], s[36:37], s[66:67]
        """)
        srd(a, 68, 36, 37, 512 * 1792 * 2)
        a(f"""
        s_mul_i32 s76, s3, 14
        s_add_u32 s76, s76, s4           ; fs
        s_lshl_b32 s77, s3, 2
        s_add_u32 s77, s77, s4
        s_sub_u32 s77, s77, 14           ; cb
        s_lshr_b32 s5, s6, 1
        s_mul_i32 s5, s5, {128*3584}
        s_lshl_b32 s36, s76, 5
        s_add_u32 s5, s5, s36
        s_mul_i32 s36, s6, {224*1024}
        s_lshl_b32 s37, s77, 5
        s_add_u32 s36, s36, s37
        s_cmp_lt_u32 s2, 112
        s_cselect_b32 s72, s5, s36
        s_movk_i32 s73, 1024
        s_cselect_b32 s73, 3584, s73
        s_cselect_b32 s75, 4, 7
        s_cmp_lt_u32 s2, 144
        s_cselect_b32 s75, s75, 0
        s_mul_i32 s74, s6, 7168
        s_add_u32 s74, s74, {L_FW:#x}
        v_lshrrev_b32 v{vFS}, 1, v0
        v_mul_lo_u32 v{vFS}, v{vFS}, s73
        v_and_b32 v{t1}, 1, v0
        v_lshl_add_u32 v{vFS}, v{t1}, 4, v{vFS}
        s_lshl_b32 s73, s73, 5
        s_mov_b32 s78, s74
        """)
    def ffn_stage():
        a(f"""
        s_cmp_lt_u32 s29, 4
        s_cbranch_scc1 K2_nost
        """)
        for e in range(2):
            a(f"""
            s_cmp_eq_u32 s75, 0
            s_cbranch_scc1 K2_nost
            s_mov_b32 m0, s78
            s_sub_u32 s75, s75, 1
            buffer_load_dwordx4 v{vFS}, s[68:71], s72 offen lds
            s_add_u32 s78, s78, 1024
            s_add_u32 s72, s72, s73
            """)
        a.label("K2_nost")
    def ffn_issue():
        a(f"""
        s_cmp_lg_u32 s29, s39
        s_cbranch_scc1 K2_nopf
        buffer_load_dword v{vPD}, v{vPA}, s[12:15], s38 offen
        """)
        a.label("K2_nopf")
    def setprio(p):
        if prio: a(f"s_setprio {p}")
    def mref_mma(q, d):
        a(f"{mf} v[{d}:{d+15}], v[{K}:{K+3}], v[{q}:{q+3}], 0")
        a(f"{mf} v[{d+16}:{d+31}], v[{K+4}:{K+7}], v[{q}:{q+3}], 0")
    def mref_max(S):
        a(f"v_max3_f32 v{t0}, v{S}, v{S+1}, v{S+2}")
        for r in range(3, 31, 2):
            a(f"v_max3_f32 v{t0}, v{t0}, v{S+r}, v{S+r+1}")
        a(f"""
        v_max_f32 v{t0}, v{t0}, v{S+31}
        v_mov_b32 v{t1}, v{t0}
        v_permlane32_swap_b32 v{t1}, v{t0}
        v_max_f32 v{t0}, v{t0}, v{t1}
        """)
        for r in range(4): a(f"v_sub_f32 v{S+r}, {f2u(-OFFS):#x}, v{t0}")
        a(f"ds_write_b128 v{t4}, v[{S}:{S+3}] offset:{L_MREF - L_Q}")
    def kv_first():
        ldK(0); ldK(1); ldV(0); ldK(2); ldV(1)
    for p in range(3): late_setup(p)
    ffn_prefetch(); ffn_setup()
    a(f"""
    s_lshl_b32 s3, s6, 2
    s_add_u32 s3, s3, {L_FLG:#x}
    v_mov_b32 v{vFW}, s3
    s_movk_i32 s59, {L_Q + 2048:#x}
    s_lshl_b32 s3, s30, 2
    s_or_b32 s3, s3, s6
    s_cmp_lt_u32 s3, 4
    s_cbranch_scc1 K1_comp
    """)
    a.label("K12_join")
    for r in range(0, 16, 2):
        a(f"v_pk_mov_b32 v[{OA+r}:{OA+r+1}], 0, 0")
    def fq_store():
        a(f"""
        v_mov_b32 v{t0}, s58
        s_lshl_b32 s3, s2, 6
        s_lshl_b32 s4, s6, 2
        s_add_u32 s3, s3, s4
        s_add_u32 s3, s3, {WS_FQ:#x}
        s_waitcnt vmcnt(7)
        s_mov_b64 exec, 1
        buffer_store_dword v{t0}, v{SP}, s[8:11], s3 offen sc1
        s_mov_b64 exec, -1
        """)
        vm.issue("FQS")
    if 'ps' in dbg.split(','):
        a(f"""
        s_lshl_b32 s3, s30, 3
        s_or_b32 s3, s3, s6
        s_cmp_lg_u32 s3, 4
        s_cbranch_scc1 K2_nb2
        s_waitcnt vmcnt(0)
        s_barrier
        """)
        a.label("K2_nb2")
    a(f"""
    ds_write2_b32 v{vFW}, v{SP}, v{SP} offset0:0 offset1:8
    s_cmp_lg_u32 s30, 0
    s_cbranch_scc1 K2_safe
    s_cmp_eq_u32 s6, 4
    s_cbranch_scc1 K2_poller
    s_waitcnt lgkmcnt(0)
    s_barrier
    """)
    st(1, False); st(5, 4)
    if 'amp' in dbg: a('s_memrealtime s[88:89]'); a('s_waitcnt lgkmcnt(0)')
    kv_first()
    fq_store()
    a("s_branch K2_go")
    a.label("K2_poller")
    PA, PB = X[0], X[0] + 8
    a(f"""
    v_lshlrev_b32 v{t1}, {FLS}, v0
    s_and_b32 s3, s2, 7
    s_lshl_b32 s3, s3, 14
    s_add_u32 s3, s3, {WS_FL:#x}
    s_add_u32 s4, s3, {64 << FLS}
    s_add_u32 s5, s3, {128 << FLS}
    s_add_u32 s34, s3, {192 << FLS}
    s_mov_b32 s36, 0
    """)
    def fissue(b):
        for k, sr in enumerate(("s3", "s4", "s5", "s34")):
            a(f"buffer_load_dword v{b+k}, v{t1}, s[8:11], {sr} offen sc1")
    def fchk(b):
        for r in range(4): a(f"v_xor_b32 v{b+r}, s58, v{b+r}")
        a(f"""
        v_or3_b32 v{b}, v{b}, v{b+1}, v{b+2}
        v_or_b32 v{b}, v{b}, v{b+3}
        v_cmp_ne_u32 vcc, 0, v{b}
        s_cbranch_vccz K2_sync0
        """)
    if int(OPT.get('fd', 0)): a(f"s_sleep {OPT.get('fd', 0)}")
    if 'fnp' in dbg:
        a.label("K2_fl")
        fissue(PA); a("s_waitcnt vmcnt(0)"); fchk(PA)
        a(f"s_sleep {OPT.get('fsl', 2)}")
    else:
        fissue(PA)
        a("s_sleep 3")
        a.label("K2_fl")
        fissue(PB); a("s_waitcnt vmcnt(4)"); fchk(PA)
        fissue(PA); a("s_waitcnt vmcnt(4)"); fchk(PB)
    a(f"""
    s_add_u32 s36, s36, 1
    s_cmp_lt_u32 s36, 0x40000
    s_cbranch_scc1 K2_fl
    """)
    a.label("K2_sync0")
    st(4, 4)
    a(f"""
    s_cmp_lg_u32 s2, 0
    s_cbranch_scc1 K2_sync1
    v_mov_b32 v{t0}, s58
    s_mov_b32 s3, {WS_EP:#x}
    s_mov_b64 exec, 1
    buffer_store_dword v{t0}, v{SP}, s[8:11], s3 offen sc1
    s_mov_b64 exec, -1
    """)
    a.label("K2_sync1")
    vm.q = []; vm.done = -1
    ldK(0); ldK(1)
    a("s_waitcnt lgkmcnt(0)")
    a("s_barrier")
    st(1, False); st(5, 4)
    if 'amp' in dbg: a('s_memrealtime s[88:89]'); a('s_waitcnt lgkmcnt(0)')
    a(f"ds_read_b128 v[{Q}:{Q+3}], v{vQA}")
    ldV(0); ldK(2); ldV(1)
    a("s_waitcnt vmcnt(5) lgkmcnt(0)")
    mref_mma(Q, X[0]); mref_max(X[0])
    fq_store()
    a("s_branch K2_go")
    a.label("K2_safe")
    S = X[0]
    a(f"""
    v_and_b32 v{t0}, 31, v0
    v_lshlrev_b32 v{S1+4}, 2, v{t0}
    v_add_u32 v{S1+4}, {L_MX:#x}, v{S1+4}
    s_lshl_b32 s3, s44, 7
    v_add_u32 v{S1+5}, s3, v{S1+4}
    v_mov_b32 v{t0}, 0xff800000
    ds_write_b32 v{S1+5}, v{t0}
    s_waitcnt vmcnt(0) lgkmcnt(0)
    s_barrier
    v_mov_b32 v{t1}, v{vQA}
    s_mov_b32 s29, 0
    """)
    a.label("K2_safe_loop")
    a(f"""
    ds_read_b128 v[{BF}:{BF+3}], v{t1}
    v_mov_b32 v{t0}, 0xff800000
    s_waitcnt lgkmcnt(0)
    """)
    for t in range(8):
        a(f"v_mfma_f32_32x32x16_bf16 v[{S}:{S+15}], v[{K+4*t}:{K+4*t+3}], v[{BF}:{BF+3}], 0")
        for r in range(0, 16, 2):
            a(f"v_max3_f32 v{t0}, v{t0}, v{S+r}, v{S+r+1}")
    a(f"""
    ds_max_f32 v{S1+4}, v{t0}
    v_add_u32 v{t1}, 1024, v{t1}
    v_add_u32 v{S1+4}, 128, v{S1+4}
    s_add_u32 s29, s29, 1
    s_cmp_lt_u32 s29, 8
    s_cbranch_scc1 K2_safe_loop
    s_waitcnt lgkmcnt(0)
    s_barrier
    ds_read_b32 v{t0}, v{S1+5}
    s_waitcnt lgkmcnt(0)
    """)
    for r in range(4): a(f"v_sub_f32 v{BF+r}, 0, v{t0}")
    a(f"ds_write_b128 v{t4}, v[{BF}:{BF+3}] offset:{L_MREF - L_Q}")
    a.label("K2_go")
    a("s_waitcnt lgkmcnt(0)")
    a("s_barrier")
    st(2, False)
    rd_qcm()
    vm.wait("K0")
    a("s_waitcnt lgkmcnt(0)")
    M1(0, 0)
    a("s_mov_b32 s29, 1")
    P0 = OPT.get('p0', '33322111')
    setprio(int(P0[0]))
    LA = int(OPT.get('la', 0))
    for k in range(LA + 1):
        ldK(3 + k); ldV(2 + k)
    st(3, False)
    if 'leak' in dbg or 'amp' in dbg: a('s_memrealtime s[94:95]'); a('s_waitcnt lgkmcnt(0)')
    def tile(i, hook):
        xb = i & 1; xn = xb ^ 1
        hook(i, 'a')
        E(xb, 0, 2)
        hook(i, 'm3b')
        E(xb, 2, 5)
        hook(i, 'm1')
        M1((i + 1) & 7, xn)
        hook(i, 0)
        if i == 0:
            E(xb, 5, 12)
            hook(i, 1)
            Ozero()
            E(xb, 12, 16)
            M3(0, i)
            hook(i, 2)
        else:
            E(xb, 5, 8)
            hook(i, 'e1')
            E(xb, 8, 10)
            hook(i, 1)
            M3(0, i)
            hook(i, 2)
            E(xb, 10, 13)
            hook(i, 'e2')
            E(xb, 13, 15)
            hook(i, 'e3')
            E(xb, 15, 16)
    def hook0(i, pos):
        if pos == 'a' and i in (0, 2, 4, 6): st(1 + i // 2, 3)
        if pos == 'a' and i > 0 and P0[i] != P0[i - 1]: setprio(int(P0[i]))
        if pos == 'm3b' and i > 0:
            vm.wait(f"V{i-1}1"); M3(1, i - 1)
        if pos == 'm1':
            if i < 7: vm.wait(f"K{i+1}")
            else: a("s_waitcnt lgkmcnt(0)")
        if pos == 0:
            if i + 4 + LA <= 7: ldK(i + 4 + LA)
            if i + 3 + LA <= 7: ldV(i + 3 + LA)
            if i == 6: wf_load(0, 4)
            if i == 7: wf_load(4, 8)
        QT = int(OPT.get('qt', 1))
        if pos == 'e1' and i == QT:
            a(f"buffer_load_dword v{t0}, v{SP}, s[8:11], s45 offen sc1"); vm.issue("FQ")
        if pos == 'e1' and i == QT + 1:
            vm.wait("FQ")
            a(f"v_cmp_ne_u32 vcc, s58, v{t0}")
            a("s_cbranch_vccnz K2_qspin")
            a.label("K2_qback")
            a(f"buffer_load_dwordx4 v[{BF}:{BF+3}], v{vWL}, s[8:11], s32 offen sc1"); vm.issue("Q")
        if pos == 'e2' and i == int(OPT.get('qw', 4)):
            vm.wait("Q")
            a(f"ds_write_b128 v{t4}, v[{BF}:{BF+3}]")
            mref_mma(BF, WF)
        if pos == 'e1' and i == int(OPT.get('qw', 4)) + 1:
            a("s_cmp_lg_u32 s30, 0")
            a("s_cbranch_scc1 K2_keepm")
            mref_max(WF)
            a.label("K2_keepm")
        if pos == 1:
            if i == 6:
                a("s_waitcnt lgkmcnt(0)"); a("s_barrier"); rd_qcm()
            vm.wait(f"V{i}0")
        if pos == 2 and i == 7:
            vm.wait("V71")
    for i in range(8): tile(i, hook0)
    st(5, 3)
    a.raw(".p2align 3")
    a.label("K2_round")
    spins = []
    def poll(off):
        a(f"ds_read_b32 v{vFV}, v{vFR} offset:{off}")
    def check(off):
        k = len(spins); spins.append(off)
        a(f"""
        s_waitcnt lgkmcnt(0)
        v_cmp_gt_u32 vcc, s59, v{vFV}
        s_cbranch_vccnz K2_spin{k}
        """)
        a.label(f"K2_back{k}")
    PR = dict(x.split('=') for x in dbg.split(',') if '=' in x).get('pr', 'c')
    def hook(i, pos):
        if pos == 'm3b': M3(1, (i - 1) & 7)
        if pos == 'm1' and i == 7: a("s_waitcnt lgkmcnt(0)")
        if pos == 1 and i == 6: rd_qcm()
        if 'nohook' in dbg: return
        if 'bar' in dbg.split(','):
            if pos == 'a' and i in (0, 6, 7): setprio({6: 2, 7: 1, 0: 0}[i])
            if i == 0 and pos == 1: part_write()
            if i == 1 and pos == 0:
                a("s_waitcnt lgkmcnt(0)"); a("s_barrier"); setprio(2); s1_read()
            if i == 2 and pos == 0:
                a("s_waitcnt lgkmcnt(0)"); s1_calc(); setprio(1)
            if i == 3 and pos == 0: setprio(0)
            if i == 4 and pos == 0:
                a("s_waitcnt vmcnt(0) lgkmcnt(0)"); a("s_barrier"); setprio(3); s2_read()
            seq = [(4, 'e3'), (5, 'e1'), (5, 'e2'), (5, 'e3'), (6, 'e1'), (6, 'e2'), (6, 'e3'), (7, 'e1')]
        else:
            ca = int(OPT.get('ca', 2)); cb = int(OPT.get('cb', 5)); PT = OPT.get('pt', '10110321')
            slots = [(t, p) for t in range(1, 8) for p in (('a', 'e1', 'e2', 'e3') if cb >= 6 else ('e1', 'e2', 'e3'))]
            if i == 0 and pos == 1:
                part_write(); a(f"ds_write_b32 v{vFW}, v{vQA}")
            if i == ca and pos == 0: poll(0)
            if i == ca and pos == 2: check(0); s1_read()
            if i == ca + 1 and pos == {'0': 0, '1': 'e1', '2': 'e2', '3': 'a'}[OPT.get('s1p', '0')]:
                a("s_waitcnt lgkmcnt(0)"); s1_calc(); a(f"ds_write_b32 v{vFW}, v{vQA} offset:32")
            if i == cb - 1 and pos == 2: poll(32)
            if i == cb and pos == 'm1':
                check(32); s2_read(); a("s_waitcnt vmcnt(0)")
            if len(PT) == 8: PT = "".join(ch * 2 for ch in PT)
            for hpos, k in (('a', 2 * i), (2, 2 * i + 1)):
                if pos == hpos and PT[k] != PT[k - 1]: setprio(int(PT[k]))
            av = [x for x in slots if x > (cb, 'e1')]
            if OPT.get('sp', '0') == '1' and len(av) >= 12: av = [x for x in av if x[1] != 'e3']
            seq = av[:8]
            while len(seq) < 8: seq = sorted(seq + [seq[len(seq) % len(av)]])
        for u in [k for k, x in enumerate(seq) if x == (i, pos)]:
            if u == 0: a("s_waitcnt lgkmcnt(0)")
            s2_mma(u, u + 1)
            if 'nowf' not in dbg: wf_load(u, u + 1)
            if u == 7 and 'nopf' not in dbg and PFP == 1: ffn_issue(); ffn_stage()
    for i in range(8): tile(i, hook)
    if 'rndst' in dbg:
        a(f"""
        s_memtime s[82:83]
        s_memrealtime s[100:101]
        s_waitcnt lgkmcnt(0)
        s_lshl_b32 s84, s2, 3
        s_add_u32 s84, s84, s6
        s_lshl_b32 s84, s84, 3
        s_add_u32 s84, s84, s29
        s_lshl_b32 s84, s84, 3
        s_add_u32 s84, s84, {WS_STAMP + 0x40000:#x}
        s_mov_b64 exec, 1
        v_mov_b32 v{S1+8}, s82
        v_mov_b32 v{S1+9}, s100
        v_mov_b32 v{S1+10}, 0
        buffer_store_dwordx2 v[{S1+8}:{S1+9}], v{S1+10}, s[8:11], s84 offen
        s_mov_b64 exec, -1
        """)
    a(f"""
    s_addk_i32 s59, 1024
    s_add_u32 s29, s29, 1
    s_cmp_lt_u32 s29, 8
    s_cbranch_scc1 K2_round
    """)
    st(4, False); st(0, True)
    if 'amp' in dbg: a('s_memrealtime s[98:99]'); a('s_waitcnt lgkmcnt(0)')
    M3(1, 7)
    XR = CM; WR = CM + 4; HV = X[0]; HN = X[0] + 8; PK = X[1]; ST = X[1] + 8
    a(f"""
    s_add_u32 s3, s7, s6
    s_lshl_b32 s4, s3, 10
    buffer_load_dwordx4 v[{XR}:{XR+3}], v{vWL}, s[16:19], s4 offen
    buffer_load_dwordx4 v[{WR}:{WR+3}], v{vWL}, s[24:27], 0 offen
    v_and_b32 v{t0}, 7, v0
    v_mul_u32_u24 v{t0}, 1040, v{t0}
    v_lshrrev_b32 v{t1}, 4, v0
    v_lshl_add_u32 v{t0}, v{t1}, 3, v{t0}
    s_lshl_b32 s5, s6, 7
    s_add_u32 s5, s5, {L_HB:#x}
    v_add_u32 v{t0}, s5, v{t0}
    s_mul_i32 s5, s6, 1040
    s_add_u32 s5, s5, {L_HB:#x}
    v_add_u32 v{t1}, s5, v{vWL}
    s_lshl_b32 s35, s6, 2
    s_add_u32 s35, s35, {L_KEY:#x}
    v_mov_b32 v{t4}, s35
    v_and_b32 v{t3}, 7, v0
    v_lshlrev_b32 v{t3}, 2, v{t3}
    v_add_u32 v{t3}, {L_KEY:#x}, v{t3}
    """)
    part_write()
    a("s_waitcnt lgkmcnt(0)"); a("s_barrier"); st(1, True); s1_read()
    a("s_waitcnt lgkmcnt(0)"); s1_calc()
    a(f"""
    v_mov_b32 v{t2}, {f2u(2.0**124):#x}
    v_cmp_nlt_f32 vcc, v{vLM}, v{t2}
    s_cmp_lg_u64 vcc, 0
    s_cselect_b32 s5, 1, 0
    v_mov_b32 v{t2}, s5
    ds_write_b32 v{t4}, v{t2} offset:32
    """)
    a("s_waitcnt vmcnt(2) lgkmcnt(0)"); a("s_barrier"); st(2, True); s2_read()
    a(f"ds_read_b32 v{t2}, v{t3} offset:32")
    a("s_waitcnt lgkmcnt(1)"); s2_mma(0, 8)
    a(f"""
    s_waitcnt lgkmcnt(0)
    v_cmp_ne_u32 vcc, 0, v{t2}
    s_cmp_eq_u64 vcc, 0
    s_cbranch_scc1 K2_good
    s_cmp_lg_u32 s30, 0
    s_cbranch_scc1 K2_good
    s_mov_b32 s30, 1
    s_waitcnt vmcnt(0)
    s_setprio 0
    s_branch K2_restart
    """)
    a.label("K2_good")
    for t in range(4):
        a(f"v_cvt_pk_bf16_f32 v{S1+2*t}, v{OA+4*t}, v{OA+4*t+1}")
        a(f"v_cvt_pk_bf16_f32 v{S1+2*t+1}, v{OA+4*t+2}, v{OA+4*t+3}")
        a(f"ds_write_b64 v{t0}, v[{S1+2*t}:{S1+2*t+1}] offset:{32*t}")
    a("s_waitcnt vmcnt(0)")
    for r in range(4):
        a(f"v_lshlrev_b32 v{HV+2*r}, 16, v{XR+r}")
        a(f"v_and_b32 v{HV+2*r+1}, 0xffff0000, v{XR+r}")
        a(f"v_lshlrev_b32 v{WF+2*r}, 16, v{WR+r}")
        a(f"v_and_b32 v{WF+2*r+1}, 0xffff0000, v{WR+r}")
    a(f"""
    s_waitcnt lgkmcnt(0)
    s_barrier
    """)
    st(3, True)
    a(f"""
    ds_read_b128 v[{BF}:{BF+3}], v{t1}
    s_waitcnt lgkmcnt(0)
    """)
    for r in range(4):
        a(f"v_lshlrev_b32 v{HN+2*r}, 16, v{BF+r}")
        a(f"v_and_b32 v{HN+2*r+1}, 0xffff0000, v{BF+r}")
    P2 = lambda b, r: f"v[{b+r}:{b+r+1}]"
    for r in range(0, 8, 2): a(f"v_pk_add_f32 {P2(HV,r)}, {P2(HV,r)}, {P2(HN,r)}")
    for r in range(8): a(f"v_cvt_pk_bf16_f32 v{HV+r}, 0, v{HV+r}")
    SA, SB = S1, S1 + 2
    a(f"v_pk_add_f32 {P2(SA,0)}, {P2(HV,0)}, {P2(HV,2)}")
    a(f"v_pk_mul_f32 {P2(SB,0)}, {P2(HV,0)}, {P2(HV,0)}")
    a(f"v_pk_add_f32 {P2(SA,4)}, {P2(HV,4)}, {P2(HV,6)}")
    a(f"v_pk_fma_f32 {P2(SB,0)}, {P2(HV,2)}, {P2(HV,2)}, {P2(SB,0)}")
    a(f"v_pk_add_f32 {P2(SA,0)}, {P2(SA,0)}, {P2(SA,4)}")
    a(f"v_pk_fma_f32 {P2(SB,0)}, {P2(HV,4)}, {P2(HV,4)}, {P2(SB,0)}")
    a(f"v_add_f32 v{t0}, v{SA}, v{SA+1}")
    a(f"v_pk_fma_f32 {P2(SB,0)}, {P2(HV,6)}, {P2(HV,6)}, {P2(SB,0)}")
    a(f"v_add_f32 v{t2}, v{SB}, v{SB+1}")
    wave_sum(a, [t0, t2], [ST, ST + 1])
    ln_scalars(a, t0, t2, ST, ST + 2, ST + 1, ST + 3)
    st(4, True)
    for r in range(0, 8, 2): a(f"v_pk_add_f32 {P2(HN,r)}, {P2(HV,r)}, {P2(ST,0)} op_sel_hi:[1,0] neg_lo:[0,1] neg_hi:[0,1]")
    for r in range(8): a(f"v_cvt_pk_bf16_f32 v{HN+r}, 0, v{HN+r}")
    for r in range(0, 8, 2): a(f"v_pk_mul_f32 {P2(HN,r)}, {P2(HN,r)}, {P2(ST,2)} op_sel_hi:[1,0]")
    for r in range(8): a(f"v_cvt_pk_bf16_f32 v{HN+r}, 0, v{HN+r}")
    a(f"v_pk_mul_f32 {P2(SA,0)}, {P2(HN,0)}, {P2(WF,0)}")
    for r in range(2, 8, 2): a(f"v_pk_fma_f32 {P2(SA,0)}, {P2(HN,r)}, {P2(WF,r)}, {P2(SA,0)}")
    a(f"v_add_f32 v{t2}, v{SA}, v{SA+1}")
    fill = [f"v_pk_add_f32 {P2(WF+8,r)}, {P2(HV,r)}, {P2(HN,r)}" for r in range(0, 8, 2)]
    fill += [f"v_cvt_pk_bf16_f32 v{PK+4+r}, v{HV+2*r}, v{HV+2*r+1}" for r in range(4)]
    fill += [f"v_cvt_pk_bf16_f32 v{ST+4+r}, v{HN+2*r}, v{HN+2*r+1}" for r in range(4)]
    for mod in ("quad_perm:[1,0,3,2]", "quad_perm:[2,3,0,1]", "row_half_mirror", "row_mirror"):
        a(fill.pop(0)); a(fill.pop(0))
        a(f"v_add_f32_dpp v{t2}, v{t2}, v{t2} {mod} row_mask:0xf bank_mask:0xf")
    for w in (16, 32):
        a(f"v_mov_b32 v{t0}, v{t2}")
        a(fill.pop(0)); a(fill.pop(0))
        a(f"v_permlane{w}_swap_b32 v{t0}, v{t2}")
        a(f"v_add_f32 v{t2}, v{t2}, v{t0}")
    if 'leak' in dbg:
        a(f"""
        s_cmp_lg_u32 s3, 0
        s_cbranch_scc1 K2_leak
        s_memrealtime s[92:93]
        v_mov_b32 v{S1+4}, 0
        s_mov_b32 s5, {WS_SEL:#x}
        buffer_load_dwordx4 v[{S1}:{S1+3}], v{S1+4}, s[8:11], s5 offen
        s_waitcnt vmcnt(0) lgkmcnt(0)
        s_mov_b64 exec, 1
        v_add_f32 v{WF+8}, {f2u(64.0):#x}, v{WF+8}
        v_sub_u32 v{WF+9}, v{S1+2}, v{S1}
        v_sub_u32 v{WF+10}, v{S1+1}, v{S1}
        v_sub_u32 v{WF+11}, s90, v{S1}
        v_sub_u32 v{WF+12}, s94, v{S1}
        v_sub_u32 v{WF+13}, s92, v{S1}
        """)
        for r in range(9, 14):
            a(f"v_cvt_f32_u32 v{WF+r}, v{WF+r}")
            a(f"v_mul_f32 v{WF+r}, {f2u(0.005):#x}, v{WF+r}")
            a(f"v_min_f32 v{WF+r}, {f2u(20.0):#x}, v{WF+r}")
        a("s_mov_b64 exec, -1")
        a.label("K2_leak")
    a(f"""
    v_cvt_pk_bf16_f32 v{t2}, 0, v{t2}
    v_ashrrev_i32 v{t0}, 31, v{t2}
    v_or_b32 v{t0}, 0x80000000, v{t0}
    v_xor_b32 v{t2}, v{t2}, v{t0}
    v_and_b32 v{t2}, 0xffff0000, v{t2}
    s_sub_u32 s5, 0xffff, s3
    v_or_b32 v{t2}, s5, v{t2}      ; key
    ds_write_b32 v{t4}, v{t2}
    """)
    for r in range(4): a(f"v_cvt_pk_bf16_f32 v{PK+r}, v{WF+8+2*r}, v{WF+8+2*r+1}")
    a(f"""
    buffer_store_dwordx4 v[{PK}:{PK+3}], v{vWL}, s[20:23], s4 offen sc1
    """)
    a(f"""
    s_waitcnt lgkmcnt(0)
    s_barrier
    ds_read_b32 v{t1}, v{t3}
    s_waitcnt lgkmcnt(0)
    v_cmp_gt_u32 vcc, v{t1}, v{t2}
    v_cmp_eq_u32 s[36:37], v{t1}, v{t2}
    s_and_b32 s38, vcc_lo, 0xff
    s_bcnt1_i32_b32 s38, s38       ; rank
    """)
    st(5, False); st(5, True); st(0, 2); st(1, 2); st(2, 2); st(3, 2); st(4, 2); st(5, 2)
    a(f"""
    s_cmp_gt_u32 s38, 1
    s_cbranch_scc1 K2_pub0
    s_add_u32 s5, s4, {WS_H:#x}
    buffer_store_dwordx4 v[{PK+4}:{PK+7}], v{vWL}, s[8:11], s5 offen sc1
    s_add_u32 s5, s4, {WS_HN:#x}
    buffer_store_dwordx4 v[{ST+4}:{ST+7}], v{vWL}, s[8:11], s5 offen sc1
    v_cndmask_b32 v{ST+1}, v{t1}, 0, s[36:37]
    v_mov_b32 v{ST}, v{t2}
    s_lshl_b32 s5, s2, {G.KS_LOG}
    s_add_u32 s5, s5, {WS_KEY:#x}
    v_lshlrev_b32 v{t0}, 14, v0
    """)
    for mod in ("quad_perm:[1,0,3,2]", "quad_perm:[2,3,0,1]", "row_half_mirror"):
        a(f"v_max_u32_dpp v{ST+1}, v{ST+1}, v{ST+1} {mod} row_mask:0xf bank_mask:0xf")
    a("s_waitcnt vmcnt(0)")
    a.label("K2_pub0")
    a(f"""
    s_barrier
    s_cmp_lg_u32 s38, 0
    s_cbranch_scc1 K2_pub
    s_mov_b64 exec, {0xff if KREP else 1}
    buffer_store_dwordx2 v[{ST}:{ST+1}], v{t0}, s[8:11], s5 offen sc1
    s_mov_b64 exec, -1
    """)
    a.label("K2_pub")
    if 'amp' in dbg: a('s_memrealtime s[96:97]'); a('s_waitcnt lgkmcnt(0)')
    st(1, 2)
    def fin():
        if G.STAMP: a("s_waitcnt vmcnt(0)")
        stamp(a, 6)
        if G.STAMP: a("s_mov_b32 s91, s30")
        stamp_out(a, 1, 8, "s6", WF)
        a("s_endpgm")
    a(f"""
    s_cmp_ge_u32 s2, 144
    s_cbranch_scc1 K2_fin
    """)
    AFR = V
    KY = K; Y = K + 8; BX = V + 32; AC = K + 16
    a(f"""
    s_setprio 0
    v_bfe_u32 v{t0}, v0, 2, 2
    v_lshrrev_b32 v{t4}, 4, v0           ; g
    v_lshl_add_u32 v{t0}, v{t4}, 3, v{t0}
    v_lshlrev_b32 v{t0}, 5, v{t0}
    v_and_b32 v{t1}, 3, v0
    v_lshl_add_u32 v{t0}, v{t1}, 3, v{t0}
    v_add_u32 v{t0}, s74, v{t0}
    """)
    for sx in range(7):
        for half in range(2):
            d = AFR + 4 * sx + 2 * half
            a(f"ds_read_b64_tr_b16 v[{d}:{d+1}], v{t0} offset:{sx*1024 + half*128}")
    a(f"""
    v_and_b32 v{t3}, 1, v0
    v_lshlrev_b32 v{vPW}, 6, v{t3}
    v_lshl_add_u32 v{vPW}, v{t4}, 4, v{vPW}
    s_lshl_b32 s5, s6, 7
    s_add_u32 s5, s5, {L_RED:#x}
    v_add_u32 v{vPW}, s5, v{vPW}
    v_and_b32 v{vPR}, 31, v0
    v_lshlrev_b32 v{vPR}, 2, v{vPR}      ; (lane&31)*4
    v_lshrrev_b32 v{vOR}, 5, v0
    v_lshl_add_u32 v{vOR}, v{vOR}, 14, v{vPR}
    s_cmp_lg_u32 s6, 0
    s_cbranch_scc1 K2_nokey
    v_lshlrev_b32 v{t1}, {G.KS_LOG}, v0
    s_and_b32 s5, s2, {7 if KREP else 0}
    s_lshl_b32 s5, s5, 14
    s_add_u32 s5, s5, {WS_KEY:#x}
    s_add_u32 s79, s5, {64 << G.KS_LOG}
    s_add_u32 s80, s5, {128 << G.KS_LOG}
    s_add_u32 s81, s5, {192 << G.KS_LOG}
    s_mov_b32 s36, 0
    """)
    KZ = V + 60 - 8 * 0
    def poll_loop(name, issue, nld):
        K2R = X[0]
        def chk(b):
            a(f"""
            v_min3_u32 v{Y}, v{b}, v{b+1}, v{b+2}
            v_min3_u32 v{Y+1}, v{b+3}, v{b+4}, v{b+5}
            v_min3_u32 v{Y}, v{Y}, v{b+6}, v{b+7}
            v_min_u32 v{Y}, v{Y}, v{Y+1}
            v_cmp_eq_u32 vcc, 0, v{Y}
            """)
        sl = OPT.get('psl', 3)
        issue(KY)
        a(f"s_sleep {sl}")
        a.label(f"{name}_l")
        issue(K2R)
        a(f"s_waitcnt vmcnt({nld})")
        chk(KY)
        a(f"s_cbranch_vccz {name}_ok")
        issue(KY)
        a(f"s_waitcnt vmcnt({nld})")
        chk(K2R)
        a(f"""
        s_cbranch_vccz {name}_ok2
        s_add_u32 s36, s36, 1
        s_cmp_lt_u32 s36, 0x40000
        s_cbranch_scc1 {name}_l
        """)
        a.label(f"{name}_ok2")
        for r in range(0, 8, 2): a(f"v_pk_mov_b32 v[{KY+r}:{KY+r+1}], v[{K2R+r}:{K2R+r+1}], v[{K2R+r}:{K2R+r+1}] op_sel:[0,1]")
        a.label(f"{name}_ok")
    def kissue(b):
        for k, sr in enumerate(("s5", "s79", "s80", "s81")):
            a(f"buffer_load_dwordx2 v[{b+2*k}:{b+2*k+1}], v{t1}, s[8:11], {sr} offen sc1")
    if int(OPT.get('kd', 16)): a(f"s_sleep {OPT.get('kd', 16)}")
    poll_loop("K2_kp", kissue, 4)
    a.label("K2_kok")
    st(2, 2)
    if FS: a("s_mov_b32 s30, s36")
    B1, B2 = Y + 4, Y + 5
    a(f"""
    v_max_u32 v{B1}, v{KY}, v{KY+2}
    v_min_u32 v{B2}, v{KY}, v{KY+2}
    v_max3_u32 v{B2}, v{B2}, v{KY+1}, v{KY+3}
    v_max_u32 v{Y}, v{KY+4}, v{KY+6}
    v_min_u32 v{Y+1}, v{KY+4}, v{KY+6}
    v_max3_u32 v{Y+1}, v{Y+1}, v{KY+5}, v{KY+7}
    v_min_u32 v{Y+2}, v{B1}, v{Y}
    v_max_u32 v{B1}, v{B1}, v{Y}
    v_max3_u32 v{B2}, v{B2}, v{Y+1}, v{Y+2}
    v_mov_b32 v{Y}, v{B1}
    """)
    wave_max_u32(a, Y, Y + 1)
    a(f"""
    v_cmp_eq_u32 vcc, v{B1}, v{Y}
    v_cndmask_b32 v{B1}, v{B1}, v{B2}, vcc
    """)
    wave_max_u32(a, B1, Y + 1)
    a(f"""
    v_readfirstlane_b32 s40, v{Y}
    v_readfirstlane_b32 s41, v{B1}
    s_andn2_b32 s42, 0x7ff, s40
    s_andn2_b32 s43, 0x7ff, s41
    s_lshl_b32 s42, s42, 10
    s_lshl_b32 s43, s43, 10
    """)
    a.label("K2_nokey")
    a(f"""
    s_cmp_ge_u32 s2, 112
    s_cbranch_scc1 K2_down
    s_cmp_lg_u32 s6, 0
    s_cbranch_scc1 K2_up1
    s_add_u32 s36, s42, {WS_HN:#x}
    s_add_u32 s37, s43, {WS_HN:#x}
    buffer_load_dwordx4 v[{KY}:{KY+3}], v{vWL}, s[8:11], s36 offen sc1
    buffer_load_dwordx4 v[{KY+4}:{KY+7}], v{vWL}, s[8:11], s37 offen sc1
    s_waitcnt vmcnt(1)
    ds_write_b128 v{vWL}, v[{KY}:{KY+3}] offset:{L_XS}
    s_waitcnt vmcnt(0)
    ds_write_b128 v{vWL}, v[{KY+4}:{KY+7}] offset:{L_XS + 1040}
    """)
    a.label("K2_up1")
    st(3, 2)
    a(f"""
    v_mul_u32_u24 v{t0}, 1040, v{t3}
    v_lshl_add_u32 v{t0}, v{t4}, 4, v{t0}
    s_lshr_b32 s5, s6, 1
    s_lshl_b32 s5, s5, 8
    v_add_u32 v{t0}, s5, v{t0}
    s_waitcnt lgkmcnt(0)
    s_barrier
    """)
    for sx in range(4):
        a(f"ds_read_b128 v[{BX+4*sx}:{BX+4*sx+3}], v{t0} offset:{L_XS + 64*sx}")
    for sx in range(4):
        a(f"s_waitcnt lgkmcnt({3-sx})")
        c = "0" if sx == 0 else f"v[{AC}:{AC+3}]"
        a(f"v_mfma_f32_16x16x32_bf16 v[{AC}:{AC+3}], v[{AFR+4*sx}:{AFR+4*sx+3}], v[{BX+4*sx}:{BX+4*sx+3}], {c}")
    a(f"""
    ds_write_b128 v{vPW}, v[{AC}:{AC+3}]
    s_waitcnt lgkmcnt(0)
    s_barrier
    s_cmp_lg_u32 s6, 0
    s_cbranch_scc1 K2_fin
    """)
    def red_read():
        a(f"v_add_u32 v{t0}, {L_RED:#x}, v{vPR}")
        a("s_waitcnt vmcnt(0)")
        for k in range(4):
            a(f"ds_read2_b32 v[{KY+2*k}:{KY+2*k+1}], v{t0} offset0:{64*k} offset1:{64*k+32}")
        a("s_waitcnt lgkmcnt(0)")
        a(f"v_pk_add_f32 v[{KY}:{KY+1}], v[{KY}:{KY+1}], v[{KY+2}:{KY+3}]")
        a(f"v_pk_add_f32 v[{KY+4}:{KY+5}], v[{KY+4}:{KY+5}], v[{KY+6}:{KY+7}]")
        a(f"v_pk_add_f32 v[{KY}:{KY+1}], v[{KY}:{KY+1}], v[{KY+4}:{KY+5}]")
    st(4, 2)
    red_read()
    a(f"""
    v_cvt_pk_bf16_f32 v{KY}, 0, v{KY}
    v_cvt_pk_bf16_f32 v{KY+1}, 0, v{KY+1}
    """)
    sigmoid(a, KY + 2, KY, KY + 3)
    a(f"""
    v_mul_f32 v{KY}, v{KY}, v{KY+2}
    v_cvt_pk_bf16_f32 v{KY}, 0, v{KY}
    v_mul_f32 v{KY}, v{KY}, v{KY+1}
    v_cvt_pk_bf16_f32 v{KY}, 0, v{KY}
    v_or_b32 v{KY}, 1, v{KY}
    s_lshl_b32 s5, s76, 7
    s_add_u32 s5, s5, {WS_GU:#x}
    """)
    if GREP:
        for k in range(4):
            a(f"buffer_store_dword v{KY}, v{vOR}, s[8:11], s5 offen sc1")
            if k < 3: a("s_add_u32 s5, s5, 0x8000")
    else:
        a(f"""
        s_mov_b32 exec_hi, 0
        buffer_store_dword v{KY}, v{vPR}, s[8:11], s5 offen sc1
        s_mov_b64 exec, -1
        """)
    a(f"""
    s_branch K2_fin
    """)
    a.label("K2_down")
    HH, NN, GT, OO = Y + 6, Y + 7, AC + 4, AC + 5
    a(f"""
    s_cmp_lg_u32 s6, 0
    s_cbranch_scc1 K2_dn1
    v_bfe_u32 v{t0}, v0, 4, 1
    v_cmp_eq_u32 vcc, 0, v{t0}
    v_mov_b32 v{t0}, s43
    v_mov_b32 v{t1}, s42
    v_cndmask_b32 v{OO}, v{t0}, v{t1}, vcc
    v_and_b32 v{t0}, 15, v0
    v_lshl_add_u32 v{OO}, v{t0}, 1, v{OO}
    s_lshl_b32 s44, s77, 5
    s_add_u32 s36, s44, {WS_H:#x}
    s_add_u32 s37, s44, {WS_HN:#x}
    buffer_load_ushort v{HH}, v{OO}, s[8:11], s36 offen sc1
    buffer_load_ushort v{NN}, v{OO}, s[8:11], s37 offen sc1
    v_mov_b32 v{t0}, s41
    v_mov_b32 v{t1}, s40
    v_cndmask_b32 v{GT}, v{t0}, v{t1}, vcc
    v_and_b32 v{GT}, 0xffff0000, v{GT}
    v_ashrrev_i32 v{t0}, 31, v{GT}
    v_not_b32 v{t0}, v{t0}
    v_or_b32 v{t0}, 0x80000000, v{t0}
    v_xor_b32 v{GT}, v{GT}, v{t0}
    v_and_b32 v{GT}, 0xffff0000, v{GT}
    """)
    sigmoid(a, GT, GT, t0)
    a(f"v_cvt_pk_bf16_f32 v{GT}, 0, v{GT}")
    a.label("K2_dn1")
    a(f"""
    s_mul_i32 s5, s6, 1792
    s_and_b32 s37, s2, {7 if GREP else 0}
    s_lshl_b32 s37, s37, 14
    s_add_u32 s5, s5, s37
    s_add_u32 s5, s5, {WS_GU:#x}
    v_min_u32 v{t1}, 47, v0
    v_lshlrev_b32 v{t1}, 4, v{t1}
    s_lshl_b32 s37, s6, 10
    s_add_u32 s37, s37, {L_GB:#x}
    v_lshrrev_b32 v{t0}, 3, v0
    v_lshlrev_b32 v{vPL}, 5, v{t0}
    v_and_b32 v{t0}, 3, v0
    v_lshl_add_u32 v{vPL}, v{t0}, 3, v{vPL}
    v_bfe_u32 v{t0}, v0, 2, 1
    v_mul_u32_u24 v{t0}, 464, v{t0}
    v_add3_u32 v{vPL}, v{vPL}, v{t0}, s37
    v_mul_u32_u24 v{vOW}, 464, v{t3}
    v_lshl_add_u32 v{vOW}, v{t4}, 4, v{vOW}
    v_add_u32 v{vOW}, s37, v{vOW}
    s_mov_b32 s45, 0x07060302
    s_mov_b32 s36, 0
    """)
    def gissue(b):
        a(f"buffer_load_dwordx4 v[{b}:{b+3}], v{vWL}, s[8:11], s5 offen sc1")
        a(f"buffer_load_dwordx4 v[{b+4}:{b+7}], v{t1}, s[8:11], s5 offen offset:1024 sc1")
    if 'nogb' not in dbg:
        a("s_barrier")
        if int(OPT.get('gd', 24)): a(f"s_sleep {OPT.get('gd', 24)}")
    poll_loop("K2_gp", gissue, 2)
    a.label("K2_gok")
    st(4, 2)
    a(f"""
    v_perm_b32 v{Y}, v{KY+1}, v{KY}, s45
    v_perm_b32 v{Y+1}, v{KY+3}, v{KY+2}, s45
    v_perm_b32 v{Y+2}, v{KY+5}, v{KY+4}, s45
    v_perm_b32 v{Y+3}, v{KY+7}, v{KY+6}, s45
    ds_write_b64 v{vPL}, v[{Y}:{Y+1}]
    s_mov_b32 exec_hi, 0xffff
    ds_write_b64 v{vPL}, v[{Y+2}:{Y+3}] offset:256
    s_mov_b64 exec, -1
    """)
    for sx in range(7):
        a(f"ds_read_b128 v[{BX+4*sx}:{BX+4*sx+3}], v{vOW} offset:{64*sx}")
    for sx in range(7):
        a(f"s_waitcnt lgkmcnt({6-sx})")
        c = "0" if sx == 0 else f"v[{AC}:{AC+3}]"
        a(f"v_mfma_f32_16x16x32_bf16 v[{AC}:{AC+3}], v[{AFR+4*sx}:{AFR+4*sx+3}], v[{BX+4*sx}:{BX+4*sx+3}], {c}")
    a(f"""
    ds_write_b128 v{vPW}, v[{AC}:{AC+3}]
    s_waitcnt lgkmcnt(0)
    s_barrier
    s_cmp_lg_u32 s6, 0
    s_cbranch_scc1 K2_fin
    """)
    red_read()
    a(f"""
    v_add_f32 v{KY}, v{KY}, v{KY+1}
    v_lshlrev_b32 v{HH}, 16, v{HH}
    v_lshlrev_b32 v{NN}, 16, v{NN}
    v_cvt_pk_bf16_f32 v{KY}, 0, v{KY}
    v_mul_f32 v{KY}, v{KY}, v{GT}
    v_cvt_pk_bf16_f32 v{KY}, 0, v{KY}
    v_add_f32 v{KY}, v{KY}, v{NN}
    v_cvt_pk_bf16_f32 v{KY}, 0, v{KY}
    v_add_f32 v{KY}, v{KY}, v{HH}
    v_cvt_pk_bf16_f32 v{KY}, v{KY}, v{KY}
    s_mov_b32 exec_hi, 0
    buffer_store_short v{KY}, v{OO}, s[20:23], s44 offen sc1
    s_mov_b64 exec, -1
    """)
    a.label("K2_fin")
    if 'amp' in dbg:
        q = int(OPT['amp'])
        expr = {0: None, 1: ("s83", "s90"), 2: ("s84", "s90"), 3: ("s85", "s90"), 4: ("s86", "s90"), 5: ("s88", "s90"), 6: ("s94", "s90"), 7: ("s98", "s94"), 8: ("s96", "s98")}[q]
        a(f"""
        s_or_b32 s5, s2, s6
        s_cmp_lg_u32 s5, 0
        s_cbranch_scc1 K2_amp_end
        """)
        if expr: a(f"s_sub_u32 s85, {expr[0]}, {expr[1]}")
        else: a("s_mov_b32 s85, 0")
        a(f"""
        s_min_u32 s85, s85, 5000
        s_lshl_b32 s85, s85, 1
        s_add_u32 s85, s85, 600
        s_add_u32 s85, s85, s96
        """)
        a.label("K2_amp")
        a(f"""
        s_memrealtime s[92:93]
        s_waitcnt lgkmcnt(0)
        s_sub_u32 s86, s92, s85
        s_cmp_lt_i32 s86, 0
        s_cbranch_scc1 K2_amp
        """)
        a.label("K2_amp_end")
    if G.STAMP: a("s_waitcnt vmcnt(0)")
    stamp(a, 6)
    if G.STAMP: a("s_mov_b32 s91, s30")
    stamp_out(a, 1, 8, "s6", WF)
    dstamp(a, 1, True, 240)
    a.label("K2_end")
    a("s_endpgm")
    a.label("K2_qspin")
    a(f"""
    s_mov_b32 s36, 0
    """)
    a.label("K2_qspin1")
    a(f"""
    s_sleep 2
    buffer_load_dword v{t0}, v{SP}, s[8:11], s45 offen sc1
    s_add_u32 s36, s36, 1
    s_waitcnt vmcnt(0)
    v_cmp_ne_u32 vcc, s58, v{t0}
    s_cbranch_vccz K2_qback
    s_cmp_lt_u32 s36, 0x40000
    s_cbranch_scc1 K2_qspin1
    s_branch K2_qback
    """)
    for k, off in enumerate(spins):
        a.label(f"K2_spin{k}")
        a(f"""
        s_sleep 1
        ds_read_b32 v{vFV}, v{vFR} offset:{off}
        s_waitcnt lgkmcnt(0)
        v_cmp_gt_u32 vcc, s59, v{vFV}
        s_cbranch_vccnz K2_spin{k}
        s_branch K2_back{k}
        """)
```

```python
import sys
sys.path.insert(0, "gen")
from gen import *
import gen as G
import kf1, kf1b, kf1c, kf1d, kf1e, kf1f, kf2, kf2c, kf2e, kf2f
from kf1 import L1_TOTAL
from kf2 import gen_p2, L_TOTAL
import argparse
ap = argparse.ArgumentParser()
ap.add_argument("out"); ap.add_argument("--stamp", action="store_true"); ap.add_argument("--dbg", default="")
args = ap.parse_args()
set_stamp(args.stamp)
a = Asm()
old = 'v8' in args.dbg
P1 = kf1b if old else kf1d if 'kvd' in args.dbg else kf1c if 'v12' in args.dbg else kf1f if 'vf' in args.dbg else kf1e
L1_TOTAL = P1.L1_TOTAL
P1.gen_p1(a, dbg=args.dbg)
(kf2 if old else kf2c if ('v12' in args.dbg or 'kvd' in args.dbg) else kf2f if 'vf' in args.dbg else kf2e).gen_p2(a, dbg=args.dbg)
a.fix()
print("align", align8(a))
build([("k1_kernel", a.text(), 256, max(L1_TOTAL, L_TOTAL), 256, 512)], args.out)
```

```python
from gen import *
import gen as G

L_PART = 0x0; L_Q = 0x6000; L_MREF = 0x8400; L_OB = 0x5800; L_KEY = 0xAC00; L_FLG = 0xAD00; L_ZC = 0xAE00; L_MX = 0xB000; L_HB = 0xB400
L_FW = 0xE000; L_TOTAL = 0xE000 + 8 * 7168
L_XS = L_PART; L_RED = L_PART + 0x1000; L_GB = L_PART + 0x2000
C_EXACT = 0.25 * 1.4426950408889634
OFFS = 96.0

def wave_sum(a, vs, ts):
    if isinstance(vs, int): vs, ts = [vs], [ts]
    for mod in ("quad_perm:[1,0,3,2]", "quad_perm:[2,3,0,1]", "row_half_mirror", "row_mirror"):
        for v in vs:
            a(f"v_add_f32_dpp v{v}, v{v}, v{v} {mod} row_mask:0xf bank_mask:0xf")
    for w in (16, 32):
        for v, t in zip(vs, ts): a(f"v_mov_b32 v{t}, v{v}")
        for v, t in zip(vs, ts): a(f"v_permlane{w}_swap_b32 v{t}, v{v}")
        for v, t in zip(vs, ts): a(f"v_add_f32 v{v}, v{v}, v{t}")

class VM:
    def __init__(self, a): self.a = a; self.q = []; self.done = -1
    def issue(self, tag): self.q.append(tag)
    def wait(self, tag):
        i = max(k for k, t in enumerate(self.q) if t == tag)
        if i <= self.done: return
        self.done = i
        self.a(f"s_waitcnt vmcnt({len(self.q) - 1 - i})")

def wave_max_u32(a, v, t):
    for mod in ("quad_perm:[1,0,3,2]", "quad_perm:[2,3,0,1]", "row_half_mirror", "row_mirror"):
        a(f"v_max_u32_dpp v{v}, v{v}, v{v} {mod} row_mask:0xf bank_mask:0xf")
    for w in (16, 32):
        a(f"""
        v_mov_b32 v{t}, v{v}
        v_permlane{w}_swap_b32 v{t}, v{v}
        v_max_u32 v{v}, v{v}, v{t}
        """)

LOG2E = 1.4426950408889634
def sigmoid(a, d, x, t):
    a(f"""
    v_mul_f32 v{t}, {f2u(-LOG2E):#x}, v{x}
    v_exp_f32 v{t}, v{t}
    v_add_f32 v{t}, 1.0, v{t}
    v_rcp_f32 v{d}, v{t}
    """)

def gen_p2(a, dbg='', prio=True):
    SC = ' sc1'
    OPT = dict(x.split('=') for x in dbg.split(',') if '=' in x)
    FLS = int(OPT.get('fls', 4))
    PFS = int(OPT.get('pfs', 0)); PFP = int(OPT.get('pfp', 1))
    TAILST = 'tailst' in dbg
    FS = 'ffnst' in dbg
    KREP = 'nokrep' not in dbg; GREP = 'nogrep' not in dbg
    def st(i, tail):
        if 'p1st' in dbg:
            if tail == 4: stamp(a, i)
        elif 'r0st' in dbg:
            if tail == 3: stamp(a, i)
        elif FS:
            if tail == 2: stamp(a, i)
        elif tail in (True, False) and bool(tail) == TAILST: stamp(a, i)
    K = 16; V = 48; X = [112, 128]; O = 144; CM = 160; SP = 176; Q = 184; OA = 188; WF = 204; BF = 236; S1 = 240
    vQA, vPW, vPR, vPL, vOW, vOR, vLM, vWL, vKL, vVL = 1, 2, 3, 4, 5, 6, 7, 8, 9, 10
    t0, t1, t2, t3, t4 = 11, 12, 13, 14, 15
    vFW, vFR, vFV, vWLs = 9, 13, 14, 15
    vFS, vPA, vPD = SP + 4, SP + 5, SP + 6
    a.label("K12_setup")
    a(f"""
    s_load_dwordx2 s[48:49], s[0:1], 96
    s_load_dwordx2 s[40:41], s[0:1], 0
    s_load_dwordx8 s[60:67], s[0:1], 48
    s_load_dwordx2 s[46:47], s[0:1], 80
    s_waitcnt lgkmcnt(0)
    """)
    a.label("K12_setup1")
    a(f"""
    s_and_b32 s3, s2, 7
    s_lshr_b32 s4, s2, 3
    s_lshl_b32 s7, s3, 8
    s_lshl_b32 s5, s4, 3
    s_add_u32 s7, s7, s5           ; T0
    s_and_b32 s28, s4, 7           ; rot
    v_lshrrev_b32 v{t0}, 6, v0
    v_and_b32 v0, 63, v0
    v_readfirstlane_b32 s6, v{t0}
    s_mov_b32 s30, 0
    v_lshlrev_b32 v{vWL}, 4, v0
    s_mul_i32 s3, s6, {8*TS}
    s_add_u32 s3, s3, {WS_KV:#x}
    """)
    for t in range(8):
        a(f"""
        s_add_u32 s4, s28, {t}
        s_and_b32 s4, s4, 7
        s_mul_i32 s4, s4, {TS}
        s_add_u32 s{50+t}, s3, s4
        """)
    a.label("K2_restart")
    a(f"""
    s_add_u32 s44, s6, 4
    s_and_b32 s44, s44, 7
    s_add_u32 s3, s44, s28
    s_and_b32 s3, s3, 7
    s_andn2_b32 s45, s2, 0x38
    s_lshl_b32 s4, s3, 3
    s_or_b32 s45, s45, s4
    s_lshl_b32 s45, s45, 6
    s_lshr_b32 s4, s28, 1
    s_lshl_b32 s4, s4, 2
    s_add_u32 s45, s45, s4
    s_add_u32 s45, s45, {WS_FQ:#x}
    s_add_u32 s3, s3, s7
    s_lshl_b32 s32, s3, 10
    v_and_b32 v{t1}, 31, v0
    v_lshrrev_b32 v{t2}, 5, v0
    v_mul_u32_u24 v{vVL}, 272, v{t2}
    v_lshl_add_u32 v{vVL}, v{t1}, 4, v{vVL}
    v_cmp_lt_u32 vcc, 16, v{t1}
    v_bfrev_b32 v{t0}, 1
    v_add_u32 v{vQA}, {L_Q:#x}, v{vWL}
    v_cndmask_b32 v{vVL}, v{vVL}, v{t0}, vcc
    """)
    srd(a, 8, 48, 49, WS_SIZE)
    vm = VM(a)
    def ldK(t):
        a(f"buffer_load_dwordx4 v[{K+4*t}:{K+4*t+3}], v{vWL}, s[8:11], s{50+t} offen{SC}"); vm.issue(f"K{t}")
    def ldV(t):
        if 'vmask' in dbg:
            a("s_mov_b32 exec_lo, 0x1ffff"); a("s_mov_b32 exec_hi, 0x1ffff")
            for h in range(2):
                a(f"buffer_load_dwordx4 v[{V+8*t+4*h}:{V+8*t+4*h+3}], v{vVL}, s[8:11], s{50+t} offen offset:{1024 + 544*h}{SC}"); vm.issue(f"V{t}{h}")
            a("s_mov_b64 exec, -1")
            return
        for h in range(2):
            a(f"buffer_load_dwordx4 v[{V+8*t+4*h}:{V+8*t+4*h+3}], v{vVL}, s[8:11], s{50+t} offen offset:{1024 + 544*h}{SC}"); vm.issue(f"V{t}{h}")
    a(f"""
    s_lshl_b32 s3, s44, 10
    v_add_u32 v{t4}, s3, v{vQA}
    """)
    def late_setup(part):
        u0, u1, u2, u3 = S1, S1 + 1, S1 + 2, S1 + 3
        if part == 0:
            srd(a, 16, 40, 41, 0x200000)
            srd(a, 20, 46, 47, 0x200000)
            srd(a, 24, 60, 61, 0x400)
            a(f"""
            v_and_b32 v{u1}, 31, v0
            v_lshrrev_b32 v{u2}, 5, v0
            v_mul_u32_u24 v{vPW}, 80, v{u1}
            s_mul_i32 s3, s6, 2560
            v_add_u32 v{vPW}, s3, v{vPW}
            v_lshl_add_u32 v{SP+3}, v{u2}, 2, v{vPW}
            v_lshl_add_u32 v{vPW}, v{u2}, 4, v{vPW}
            v_lshrrev_b32 v{u0}, 4, v0     ; g
            s_lshr_b32 s3, s6, 1
            s_lshl_b32 s3, s3, 3
            s_and_b32 s4, s6, 1
            s_lshl_b32 s4, s4, 1
            s_add_u32 s3, s3, s4
            v_and_b32 v{u1}, 1, v{u0}
            v_lshl_add_u32 v{u1}, v{u1}, 2, v{u2}
            v_add_u32 v{u1}, s3, v{u1}     ; n = 8*(w>>1) + 2*(w&1) + (g>>1) + 4*(g&1)
            v_mul_u32_u24 v{vPL}, 80, v{u1}
            v_and_b32 v{u2}, 15, v0        ; d
            v_lshl_add_u32 v{vPR}, v{u2}, 2, v{vPL}
            v_and_b32 v{u3}, 7, v0
            v_mul_u32_u24 v{u3}, 2560, v{u3}
            v_add3_u32 v{vPL}, v{vPL}, v{u3}, 64
            s_lshl_b32 s31, s28, 16
            s_lshl_b32 s33, s6, 13
            s_add_u32 s33, s33, {WS_WOF:#x}
            """)
        elif part == 1:
            a(f"""
            v_and_b32 v{u3}, 7, v{u1}      ; token
            v_lshrrev_b32 v{u1}, 3, v{u1}  ; head_local
            v_mul_u32_u24 v{vOW}, 144, v{u3}
            v_lshl_add_u32 v{vOW}, v{u1}, 5, v{vOW}
            v_lshl_add_u32 v{vOW}, v{u2}, 1, v{vOW}
            v_add_u32 v{vOW}, {L_OB:#x}, v{vOW}
            v_and_b32 v{u3}, 7, v0
            v_mul_u32_u24 v{vOR}, 144, v{u3}
            v_lshl_add_u32 v{vOR}, v{u0}, 4, v{vOR}
            v_add_u32 v{vOR}, {L_OB:#x}, v{vOR}
            {"" if 'nozc' in dbg else f"v_and_b32 v{u1}, 8, v0"}
            {"" if 'nozc' in dbg else f"v_cmp_ne_u32 vcc, 0, v{u1}"}
            {"" if 'nozc' in dbg else f"v_mov_b32 v{u1}, {L_ZC:#x}"}
            {"" if 'nozc' in dbg else f"v_cndmask_b32 v{vOR}, v{vOR}, v{u1}, vcc"}
            v_mov_b32 v{vLM}, 0
            v_lshlrev_b32 v{vFR}, 2, v{u3}
            v_add_u32 v{vFR}, {L_FLG:#x}, v{vFR}
            """)
        else:
            a(f"v_pk_mov_b32 v[{SP}:{SP+1}], 0, 0")
            a(f"v_mov_b32 v{SP+2}, 0xdddddddd")
    def rd_qcm():
        a(f"ds_read_b128 v[{Q}:{Q+3}], v{vQA}")
        for k in range(4):
            a(f"ds_read_b128 v[{CM+4*k}:{CM+4*k+3}], v{vQA} offset:{L_MREF - L_Q}")
        a(f"v_add_u32 v{vQA}, 1024, v{vQA}")
    mf = "v_mfma_f32_32x32x16_bf16"
    def M1(kt, xb):
        if 'nom1' in dbg: a("s_nop 1"); return
        a(f"{mf} v[{X[xb]}:{X[xb]+15}], v[{K+4*kt}:{K+4*kt+3}], v[{Q}:{Q+3}], v[{CM}:{CM+15}]")
    def E(xb, lo, hi):
        for r in range(lo, hi):
            if 'expnop' in dbg:
                a("v_nop"); a("v_nop")
                continue
            if 'noexp' in dbg:
                a(f"v_cvt_pk_bf16_f32 v{X[xb]+r}, 0, v{X[xb]+r}"); a(f"v_cvt_pk_bf16_f32 v{X[xb]+r}, 0, v{X[xb]+r}")
                continue
            a(f"v_exp_f32 v{X[xb]+r}, v{X[xb]+r}")
    def C2(h, xb):
        for k in range(4):
            a(f"v_cvt_pk_bf16_f32 v{SP+4*h+k}, v{X[xb]+8*h+2*k}, v{X[xb]+8*h+2*k+1}")
    def M3(h, kt):
        xb = kt & 1
        if 'nom3' in dbg: a("s_nop 2"); return
        a(f"v_smfmac_f32_32x32x32_bf16 v[{O}:{O+15}], v[{V+8*kt+4*h}:{V+8*kt+4*h+3}], v[{X[xb]+8*h}:{X[xb]+8*h+7}], v{SP+2}")
    def Ozero():
        a(f"v_mfma_f32_32x32x8bf16_1k v[{O}:{O+15}], v[{SP}:{SP+1}], v[{SP}:{SP+1}], 0")
    def part_write():
        a(f"""
        ds_write_b128 v{vPW}, v[{O}:{O+3}]
        ds_write_b128 v{vPW}, v[{O+4}:{O+7}] offset:32
        ds_write_b32 v{SP+3}, v{O+8} offset:64
        """)
    def s1_read():
        a(f"ds_read_b32 v{S1+8}, v{vPL}")
        for k in range(4):
            a(f"ds_read2st64_b32 v[{S1+2*k}:{S1+2*k+1}], v{vPR} offset0:{20*k} offset1:{20*k+10}")
    def s1_calc():
        dp = lambda mod: f"v_add_f32_dpp v{S1+8}, v{S1+8}, v{S1+8} {mod} row_mask:0xf bank_mask:0xf"
        pa = (lambda x, y: f"v_add_f32 v{x}, v{x}, v{y}\nv_add_f32 v{x+1}, v{x+1}, v{y+1}") if 's1sc' in dbg else \
             (lambda x, y: f"v_pk_add_f32 v[{x}:{x+1}], v[{x}:{x+1}], v[{y}:{y+1}]")
        a(f"""
        {dp("quad_perm:[1,0,3,2]")}
        {pa(S1, S1+2)}
        {pa(S1+4, S1+6)}
        {dp("quad_perm:[2,3,0,1]")}
        {pa(S1, S1+4)}
        v_add_f32 v{S1}, v{S1}, v{S1+1}
        {dp("row_half_mirror")}
        v_rcp_f32 v{S1+1}, v{S1+8}
        v_maximum3_f32 v{vLM}, v{vLM}, v{S1+8}, abs(v{S1})
        v_mul_f32 v{S1}, v{S1}, v{S1+1}
        v_cvt_pk_bf16_f32 v{S1}, v{S1}, v{S1}
        ds_write_b16 v{vOW}, v{S1}
        """)
    def s2_read():
        for s in range(2):
            a(f"ds_read_b128 v[{BF+4*s}:{BF+4*s+3}], v{vOR} offset:{64*s}")
    def s2_mma(lo, hi):
        for u in range(lo, hi):
            s, t = u >> 2, u & 3
            a(f"v_mfma_f32_16x16x32_bf16 v[{OA+4*t}:{OA+4*t+3}], v[{WF+4*u}:{WF+4*u+3}], v[{BF+4*s}:{BF+4*s+3}], v[{OA+4*t}:{OA+4*t+3}]")
    def wf_load(lo, hi):
        if lo == 0:
            a("s_add_u32 s34, s33, s31")
            a("s_add_u32 s35, s34, 4096")
            a("s_add_u32 s31, s31, 0x10000")
            a("s_and_b32 s31, s31, 0x7ffff")
        for u in range(lo, hi):
            a(f"buffer_load_dwordx4 v[{WF+4*u}:{WF+4*u+3}], v{vWL}, s[8:11], s{34 + (u >> 2)} offen offset:{1024*(u&3)}{'' if 'wfpl' in dbg else ' nt' if 'wfnt' in dbg else SC}")
            vm.issue("WF")
    def ffn_prefetch():
        a(f"""
        s_mov_b32 s39, s6
        s_cmp_eq_u32 s39, 1
        s_cselect_b64 s[36:37], s[64:65], s[62:63]
        s_cmp_eq_u32 s39, 2
        s_cselect_b64 s[36:37], s[66:67], s[36:37]
        """)
        srd(a, 12, 36, 37, 512 * 1792 * 2)
        a(f"""
        s_and_b32 s3, s2, 7
        s_lshr_b32 s4, s2, 3
        s_mul_i32 s5, s4, {16*3584}
        s_mul_i32 s36, s3, 448
        s_and_b32 s36, s36, 0xffffff80
        s_add_u32 s5, s5, s36
        s_lshl_b32 s36, s3, 7
        s_mul_i32 s37, s4, {56*1024}
        s_add_u32 s36, s36, s37
        v_lshrrev_b32 v{t0}, 2, v0
        v_mul_u32_u24 v{t0}, 3584, v{t0}
        v_and_b32 v{t1}, 3, v0
        v_lshl_add_u32 v{t0}, v{t1}, 7, v{t0}
        v_min_u32 v{t1}, 55, v0
        v_lshlrev_b32 v{t1}, 10, v{t1}
        s_cmp_eq_u32 s39, 2
        s_cselect_b32 s38, s36, s5
        s_cselect_b64 vcc, -1, 0
        v_cndmask_b32 v{vPA}, v{t0}, v{t1}, vcc
        s_lshl_b32 s39, s6, {PFS}
        s_add_u32 s39, s39, 1
        s_cmp_gt_u32 s6, 2
        s_cselect_b32 s39, 99, s39
        """)
    def ffn_setup():
        a(f"""
        s_and_b32 s3, s2, 7
        s_lshr_b32 s4, s2, 3
        s_and_b32 s5, s6, 1
        s_cmp_eq_u32 s5, 0
        s_cselect_b64 s[36:37], s[62:63], s[64:65]
        s_cmp_lt_u32 s2, 112
        s_cselect_b64 s[36:37], s[36:37], s[66:67]
        """)
        srd(a, 68, 36, 37, 512 * 1792 * 2)
        a(f"""
        s_mul_i32 s76, s3, 14
        s_add_u32 s76, s76, s4           ; fs
        s_lshl_b32 s77, s3, 2
        s_add_u32 s77, s77, s4
        s_sub_u32 s77, s77, 14           ; cb
        s_lshr_b32 s5, s6, 1
        s_mul_i32 s5, s5, {128*3584}
        s_lshl_b32 s36, s76, 5
        s_add_u32 s5, s5, s36
        s_mul_i32 s36, s6, {224*1024}
        s_lshl_b32 s37, s77, 5
        s_add_u32 s36, s36, s37
        s_cmp_lt_u32 s2, 112
        s_cselect_b32 s72, s5, s36
        s_movk_i32 s73, 1024
        s_cselect_b32 s73, 3584, s73
        s_cselect_b32 s75, 4, 7
        s_cmp_lt_u32 s2, 144
        s_cselect_b32 s75, s75, 0
        s_mul_i32 s74, s6, 7168
        s_add_u32 s74, s74, {L_FW:#x}
        v_lshrrev_b32 v{vFS}, 1, v0
        v_mul_lo_u32 v{vFS}, v{vFS}, s73
        v_and_b32 v{t1}, 1, v0
        v_lshl_add_u32 v{vFS}, v{t1}, 4, v{vFS}
        s_lshl_b32 s73, s73, 5
        s_mov_b32 s78, s74
        """)
    def ffn_stage():
        a(f"""
        s_cmp_lt_u32 s29, 4
        s_cbranch_scc1 K2_nost
        """)
        for e in range(2):
            a(f"""
            s_cmp_eq_u32 s75, 0
            s_cbranch_scc1 K2_nost
            s_mov_b32 m0, s78
            s_sub_u32 s75, s75, 1
            buffer_load_dwordx4 v{vFS}, s[68:71], s72 offen lds
            s_add_u32 s78, s78, 1024
            s_add_u32 s72, s72, s73
            """)
        a.label("K2_nost")
    def ffn_issue():
        a(f"""
        s_cmp_lg_u32 s29, s39
        s_cbranch_scc1 K2_nopf
        buffer_load_dword v{vPD}, v{vPA}, s[12:15], s38 offen
        """)
        a.label("K2_nopf")
    def setprio(p):
        if prio: a(f"s_setprio {p}")
    def mref_mma(q, d):
        a(f"{mf} v[{d}:{d+15}], v[{K}:{K+3}], v[{q}:{q+3}], 0")
        a(f"{mf} v[{d+16}:{d+31}], v[{K+4}:{K+7}], v[{q}:{q+3}], 0")
    def mref_max(S):
        a(f"v_max3_f32 v{t0}, v{S}, v{S+1}, v{S+2}")
        for r in range(3, 31, 2):
            a(f"v_max3_f32 v{t0}, v{t0}, v{S+r}, v{S+r+1}")
        a(f"""
        v_max_f32 v{t0}, v{t0}, v{S+31}
        v_mov_b32 v{t1}, v{t0}
        v_permlane32_swap_b32 v{t1}, v{t0}
        v_max_f32 v{t0}, v{t0}, v{t1}
        """)
        for r in range(4): a(f"v_sub_f32 v{S+r}, {f2u(-OFFS):#x}, v{t0}")
        a(f"ds_write_b128 v{t4}, v[{S}:{S+3}] offset:{L_MREF - L_Q}")
    def kv_first():
        ldK(0); ldK(1); ldV(0); ldK(2); ldV(1)
    for p in range(3): late_setup(p)
    ffn_prefetch(); ffn_setup()
    a(f"""
    s_lshl_b32 s3, s6, 2
    s_add_u32 s3, s3, {L_FLG:#x}
    v_mov_b32 v{vFW}, s3
    s_movk_i32 s59, {L_Q + 2048:#x}
    s_lshl_b32 s3, s30, 2
    s_or_b32 s3, s3, s6
    s_cmp_lt_u32 s3, 4
    s_cbranch_scc1 K1_comp
    """)
    a.label("K12_join")
    for r in range(0, 16, 2):
        a(f"v_pk_mov_b32 v[{OA+r}:{OA+r+1}], 0, 0")
    a(f"""
    s_min_u32 s3, s75, 4
    s_bfm_b32 s43, s3, 4
    s_sub_u32 s3, s75, s3
    s_bfm_b32 s42, s3, 5
    """)
    def fq_store():
        a(f"""
        v_mov_b32 v{t0}, s58
        s_lshl_b32 s3, s2, 6
        s_lshl_b32 s4, s6, 2
        s_add_u32 s3, s3, s4
        s_add_u32 s3, s3, {WS_FQ:#x}
        s_waitcnt vmcnt(7)
        s_mov_b64 exec, 1
        buffer_store_dword v{t0}, v{SP}, s[8:11], s3 offen sc1
        s_mov_b64 exec, -1
        """)
        vm.issue("FQS")
    if 'nops' not in dbg:
        a(f"""
        s_lshl_b32 s3, s30, 3
        s_or_b32 s3, s3, s6
        s_cmp_lg_u32 s3, 4
        s_cbranch_scc1 K2_nb2
        s_waitcnt vmcnt(0)
        s_barrier
        """)
        a.label("K2_nb2")
    a(f"""
    ds_write2_b32 v{vFW}, v{SP}, v{SP} offset0:0 offset1:8
    ds_write2_b32 v{vFW}, v{SP}, v{SP} offset0:64 offset1:80
    s_cmp_lg_u32 s30, 0
    s_cbranch_scc1 K2_safe
    s_cmp_eq_u32 s6, 4
    s_cbranch_scc1 K2_poller
    s_waitcnt lgkmcnt(0)
    s_barrier
    """)
    st(1, False); st(5, 4)
    if 'amp' in dbg: a('s_memrealtime s[88:89]'); a('s_waitcnt lgkmcnt(0)')
    kv_first()
    fq_store()
    a("s_branch K2_go")
    a.label("K2_poller")
    PA, PB = X[0], X[0] + 8
    a(f"""
    v_lshlrev_b32 v{t1}, {FLS}, v0
    s_and_b32 s3, s2, 7
    s_lshl_b32 s3, s3, 14
    s_add_u32 s3, s3, {WS_FL:#x}
    s_add_u32 s4, s3, {64 << FLS}
    s_add_u32 s5, s3, {128 << FLS}
    s_add_u32 s34, s3, {192 << FLS}
    s_mov_b32 s36, 0
    """)
    def fissue(b):
        for k, sr in enumerate(("s3", "s4", "s5", "s34")):
            a(f"buffer_load_dword v{b+k}, v{t1}, s[8:11], {sr} offen sc1")
    def fchk(b):
        for r in range(4): a(f"v_xor_b32 v{b+r}, s58, v{b+r}")
        a(f"""
        v_or3_b32 v{b}, v{b}, v{b+1}, v{b+2}
        v_or_b32 v{b}, v{b}, v{b+3}
        v_cmp_ne_u32 vcc, 0, v{b}
        s_cbranch_vccz K2_sync0
        """)
    if int(OPT.get('fd', 24)): a(f"s_sleep {OPT.get('fd', 24)}")
    if 'fnp' in dbg:
        a.label("K2_fl")
        fissue(PA); a("s_waitcnt vmcnt(0)"); fchk(PA)
        a(f"s_sleep {OPT.get('fsl', 2)}")
    else:
        fissue(PA)
        a("s_sleep 3")
        a.label("K2_fl")
        fissue(PB); a("s_waitcnt vmcnt(4)"); fchk(PA)
        fissue(PA); a("s_waitcnt vmcnt(4)"); fchk(PB)
    a(f"""
    s_add_u32 s36, s36, 1
    s_cmp_lt_u32 s36, 0x40000
    s_cbranch_scc1 K2_fl
    """)
    a.label("K2_sync0")
    st(4, 4)
    a(f"""
    s_cmp_lg_u32 s2, 0
    s_cbranch_scc1 K2_sync1
    v_mov_b32 v{t0}, s58
    s_mov_b32 s3, {WS_EP:#x}
    s_mov_b64 exec, 1
    buffer_store_dword v{t0}, v{SP}, s[8:11], s3 offen sc1
    s_mov_b64 exec, -1
    """)
    a.label("K2_sync1")
    vm.q = []; vm.done = -1
    ldK(0); ldK(1)
    a("s_waitcnt lgkmcnt(0)")
    a("s_barrier")
    st(1, False); st(5, 4)
    if 'amp' in dbg: a('s_memrealtime s[88:89]'); a('s_waitcnt lgkmcnt(0)')
    a(f"ds_read_b128 v[{Q}:{Q+3}], v{vQA}")
    ldV(0); ldK(2); ldV(1)
    a("s_waitcnt vmcnt(5) lgkmcnt(0)")
    mref_mma(Q, X[0]); mref_max(X[0])
    fq_store()
    a("s_branch K2_go")
    a.label("K2_safe")
    S = X[0]
    a(f"""
    v_and_b32 v{t0}, 31, v0
    v_lshlrev_b32 v{S1+4}, 2, v{t0}
    v_add_u32 v{S1+4}, {L_MX:#x}, v{S1+4}
    s_lshl_b32 s3, s44, 7
    v_add_u32 v{S1+5}, s3, v{S1+4}
    v_mov_b32 v{t0}, 0xff800000
    ds_write_b32 v{S1+5}, v{t0}
    s_waitcnt vmcnt(0) lgkmcnt(0)
    s_barrier
    v_mov_b32 v{t1}, v{vQA}
    s_mov_b32 s29, 0
    """)
    a.label("K2_safe_loop")
    a(f"""
    ds_read_b128 v[{BF}:{BF+3}], v{t1}
    v_mov_b32 v{t0}, 0xff800000
    s_waitcnt lgkmcnt(0)
    """)
    for t in range(8):
        a(f"v_mfma_f32_32x32x16_bf16 v[{S}:{S+15}], v[{K+4*t}:{K+4*t+3}], v[{BF}:{BF+3}], 0")
        for r in range(0, 16, 2):
            a(f"v_max3_f32 v{t0}, v{t0}, v{S+r}, v{S+r+1}")
    a(f"""
    ds_max_f32 v{S1+4}, v{t0}
    v_add_u32 v{t1}, 1024, v{t1}
    v_add_u32 v{S1+4}, 128, v{S1+4}
    s_add_u32 s29, s29, 1
    s_cmp_lt_u32 s29, 8
    s_cbranch_scc1 K2_safe_loop
    s_waitcnt lgkmcnt(0)
    s_barrier
    ds_read_b32 v{t0}, v{S1+5}
    s_waitcnt lgkmcnt(0)
    """)
    for r in range(4): a(f"v_sub_f32 v{BF+r}, 0, v{t0}")
    a(f"ds_write_b128 v{t4}, v[{BF}:{BF+3}] offset:{L_MREF - L_Q}")
    a.label("K2_go")
    a("s_waitcnt lgkmcnt(0)")
    a("s_barrier")
    st(2, False)
    rd_qcm()
    vm.wait("K0")
    a("s_waitcnt lgkmcnt(0)")
    M1(0, 0)
    a("s_mov_b32 s29, 1")
    P0 = OPT.get('p0', '33322111')
    setprio(int(P0[0]))
    LA = int(OPT.get('la', 0))
    for k in range(LA + 1):
        ldK(3 + k); ldV(2 + k)
    st(3, False)
    if 'leak' in dbg or 'amp' in dbg: a('s_memrealtime s[94:95]'); a('s_waitcnt lgkmcnt(0)')
    def tile(i, hook):
        xb = i & 1; xn = xb ^ 1
        hook(i, 'a')
        E(xb, 0, 2)
        hook(i, 'm3b')
        E(xb, 2, 5)
        hook(i, 'm1')
        M1((i + 1) & 7, xn)
        hook(i, 0)
        if i == 0:
            E(xb, 5, 12)
            hook(i, 1)
            Ozero()
            E(xb, 12, 16)
            M3(0, i)
            hook(i, 2)
        else:
            E(xb, 5, 8)
            hook(i, 'e1')
            E(xb, 8, 10)
            hook(i, 1)
            M3(0, i)
            hook(i, 2)
            E(xb, 10, 13)
            hook(i, 'e2')
            E(xb, 13, 15)
            hook(i, 'e3')
            E(xb, 15, 16)
    def hook0(i, pos):
        if pos == 'a' and i in (0, 2, 4, 6): st(1 + i // 2, 3)
        if pos == 'a' and i > 0 and P0[i] != P0[i - 1]: setprio(int(P0[i]))
        if pos == 'm3b' and i > 0:
            vm.wait(f"V{i-1}1"); M3(1, i - 1)
        if pos == 'm1':
            if i < 7: vm.wait(f"K{i+1}")
            else: a("s_waitcnt lgkmcnt(0)")
        if pos == 0:
            if i + 4 + LA <= 7: ldK(i + 4 + LA)
            if i + 3 + LA <= 7: ldV(i + 3 + LA)
            if i == 6: wf_load(0, 4)
            if i == 7: wf_load(4, 8)
        QT = int(OPT.get('qt', 1))
        if pos == 'e1' and i == QT:
            a(f"buffer_load_dword v{t0}, v{SP}, s[8:11], s45 offen sc1"); vm.issue("FQ")
        if pos == 'e1' and i == QT + 1:
            vm.wait("FQ")
            a(f"v_cmp_ne_u32 vcc, s58, v{t0}")
            a("s_cbranch_vccnz K2_qspin")
            a.label("K2_qback")
            a(f"buffer_load_dwordx4 v[{BF}:{BF+3}], v{vWL}, s[8:11], s32 offen sc1"); vm.issue("Q")
        if pos == 'e2' and i == int(OPT.get('qw', 4)):
            vm.wait("Q")
            a(f"ds_write_b128 v{t4}, v[{BF}:{BF+3}]")
            mref_mma(BF, WF)
        if pos == 'e1' and i == int(OPT.get('qw', 4)) + 1:
            a("s_cmp_lg_u32 s30, 0")
            a("s_cbranch_scc1 K2_keepm")
            mref_max(WF)
            a.label("K2_keepm")
        if pos == 1:
            if i == 6:
                a("s_waitcnt lgkmcnt(0)"); a("s_barrier"); rd_qcm()
            vm.wait(f"V{i}0")
        if pos == 2 and i == 7:
            vm.wait("V71")
    for i in range(8): tile(i, hook0)
    st(5, 3)
    a.raw(".p2align 3")
    a.label("K2_round")
    spins = []
    def poll(off):
        if 'xchk' in dbg: return
        a(f"ds_read_b32 v{vFV}, v{vFR} offset:{off}")
    def check(off):
        if 'xchk' in dbg: return
        k = len(spins); spins.append(off)
        a(f"""
        s_waitcnt lgkmcnt(0)
        v_cmp_gt_u32 vcc, s59, v{vFV}
        s_cbranch_vccnz K2_spin{k}
        """)
        a.label(f"K2_back{k}")
    PR = dict(x.split('=') for x in dbg.split(',') if '=' in x).get('pr', 'c')
    def hook(i, pos):
        if pos == 'm3b': M3(1, (i - 1) & 7)
        if pos == 'm1' and i == 7: a("s_waitcnt lgkmcnt(0)")
        if pos == 1 and i == 6: rd_qcm()
        if 'nohook' in dbg: return
        if 'bar' in dbg.split(','):
            if pos == 'a' and i in (0, 6, 7): setprio({6: 2, 7: 1, 0: 0}[i])
            if i == 0 and pos == 1: part_write()
            if i == 1 and pos == 0:
                a("s_waitcnt lgkmcnt(0)"); a("s_barrier"); setprio(2); s1_read()
            if i == 2 and pos == 0:
                a("s_waitcnt lgkmcnt(0)"); s1_calc(); setprio(1)
            if i == 3 and pos == 0: setprio(0)
            if i == 4 and pos == 0:
                a("s_waitcnt vmcnt(0) lgkmcnt(0)"); a("s_barrier"); setprio(3); s2_read()
            seq = [(4, 'e3'), (5, 'e1'), (5, 'e2'), (5, 'e3'), (6, 'e1'), (6, 'e2'), (6, 'e3'), (7, 'e1')]
        else:
            ca = int(OPT.get('ca', 2)); cb = int(OPT.get('cb', 5)); PT = OPT.get('pt', '10220332')
            slots = [(t, p) for t in range(1, 8) for p in (('a', 'e1', 'e2', 'e3') if cb >= 6 else ('e1', 'e2', 'e3'))]
            if i == 0 and pos == 1:
                if 'xpw' not in dbg: part_write()
                a(f"ds_write_b32 v{vFW}, v{vQA}")
            if i == ca and pos == 0: poll(0)
            if i == ca and pos == 2:
                check(0)
                if 'xs1' not in dbg: s1_read()
            if i == ca + 1 and pos == {'0': 0, '1': 'e1', '2': 'e2', '3': 'a'}[OPT.get('s1p', '3')]:
                a("s_waitcnt lgkmcnt(0)")
                if 'xs1' not in dbg: s1_calc()
                a(f"ds_write_b32 v{vFW}, v{vQA} offset:32")
            if i == cb - 1 and pos == 2: poll(32)
            if i == cb and pos == 'm1':
                check(32); s2_read(); a("s_waitcnt vmcnt(0)")
            if i == int(OPT.get('stp', 2)) and pos == 'e1' and 'nopf' not in dbg:
                a("s_bitcmp1_b32 s43, s29"); a("s_cbranch_scc1 K2_stg"); a.label("K2_stgb")
            if len(PT) == 8: PT = "".join(ch * 2 for ch in PT)
            for hpos, k in (('a', 2 * i), (2, 2 * i + 1)):
                if pos == hpos and PT[k] != PT[k - 1]: setprio(int(PT[k]))
            av = [x for x in slots if x > (cb, 'e1')]
            if OPT.get('sp', '0') == '1' and len(av) >= 12: av = [x for x in av if x[1] != 'e3']
            seq = av[:8]
            while len(seq) < 8: seq = sorted(seq + [seq[len(seq) % len(av)]])
        for u in [k for k, x in enumerate(seq) if x == (i, pos)]:
            if u == 0: a("s_waitcnt lgkmcnt(0)")
            if 'xmma' not in dbg: s2_mma(u, u + 1)
            if 'nowf' not in dbg: wf_load(u, u + 1)
            if u == 7 and 'nopf' not in dbg and PFP == 1:
                a("s_cmp_eq_u32 s29, s39"); a("s_cbranch_scc1 K2_side"); a.label("K2_sideb")
    for i in range(8): tile(i, hook)
    if 'rndst' in dbg:
        a(f"""
        s_memtime s[82:83]
        s_memrealtime s[100:101]
        s_waitcnt lgkmcnt(0)
        s_lshl_b32 s84, s2, 3
        s_add_u32 s84, s84, s6
        s_lshl_b32 s84, s84, 3
        s_add_u32 s84, s84, s29
        s_lshl_b32 s84, s84, 3
        s_add_u32 s84, s84, {WS_STAMP + 0x40000:#x}
        s_mov_b64 exec, 1
        v_mov_b32 v{S1+8}, s82
        v_mov_b32 v{S1+9}, s100
        v_mov_b32 v{S1+10}, 0
        buffer_store_dwordx2 v[{S1+8}:{S1+9}], v{S1+10}, s[8:11], s84 offen
        s_mov_b64 exec, -1
        """)
    a(f"""
    s_addk_i32 s59, 1024
    s_add_u32 s29, s29, 1
    s_cmp_lt_u32 s29, 8
    s_cbranch_scc1 K2_round
    """)
    st(4, False); st(0, True)
    if 'amp' in dbg: a('s_memrealtime s[98:99]'); a('s_waitcnt lgkmcnt(0)')
    M3(1, 7)
    XR = CM; WR = CM + 4; HV = X[0]; HN = X[0] + 8; PK = X[1]; ST = X[1] + 8
    a(f"""
    s_add_u32 s3, s7, s6
    s_lshl_b32 s4, s3, 10
    buffer_load_dwordx4 v[{XR}:{XR+3}], v{vWL}, s[16:19], s4 offen
    buffer_load_dwordx4 v[{WR}:{WR+3}], v{vWL}, s[24:27], 0 offen
    v_and_b32 v{t0}, 7, v0
    v_mul_u32_u24 v{t0}, 1040, v{t0}
    v_lshrrev_b32 v{t1}, 4, v0
    v_lshl_add_u32 v{t0}, v{t1}, 3, v{t0}
    s_lshl_b32 s5, s6, 7
    s_add_u32 s5, s5, {L_HB:#x}
    v_add_u32 v{t0}, s5, v{t0}
    s_mul_i32 s5, s6, 1040
    s_add_u32 s5, s5, {L_HB:#x}
    v_add_u32 v{t1}, s5, v{vWL}
    s_lshl_b32 s35, s6, 2
    s_add_u32 s35, s35, {L_KEY:#x}
    v_mov_b32 v{t4}, s35
    v_and_b32 v{t3}, 7, v0
    v_lshlrev_b32 v{t3}, 2, v{t3}
    v_add_u32 v{t3}, {L_KEY:#x}, v{t3}
    """)
    part_write()
    a("s_waitcnt lgkmcnt(0)"); a("s_barrier"); st(1, True); s1_read()
    a("s_waitcnt lgkmcnt(0)"); s1_calc()
    a(f"""
    v_mov_b32 v{t2}, {f2u(2.0**124):#x}
    v_cmp_nlt_f32 vcc, v{vLM}, v{t2}
    s_cmp_lg_u64 vcc, 0
    s_cselect_b32 s5, 1, 0
    v_mov_b32 v{t2}, s5
    ds_write_b32 v{t4}, v{t2} offset:32
    """)
    a("s_waitcnt vmcnt(2) lgkmcnt(0)"); a("s_barrier"); st(2, True); s2_read()
    a(f"ds_read_b32 v{t2}, v{t3} offset:32")
    a("s_waitcnt lgkmcnt(1)"); s2_mma(0, 8)
    a(f"""
    s_waitcnt lgkmcnt(0)
    v_cmp_ne_u32 vcc, 0, v{t2}
    s_cmp_eq_u64 vcc, 0
    s_cbranch_scc1 K2_good
    s_cmp_lg_u32 s30, 0
    s_cbranch_scc1 K2_good
    s_mov_b32 s30, 1
    s_waitcnt vmcnt(0)
    s_setprio 0
    s_branch K2_restart
    """)
    a.label("K2_good")
    a("s_mov_b32 exec_lo, 0x00ff00ff"); a("s_mov_b32 exec_hi, 0x00ff00ff")
    for t in range(4):
        a(f"v_cvt_pk_bf16_f32 v{S1+2*t}, v{OA+4*t}, v{OA+4*t+1}")
        a(f"v_cvt_pk_bf16_f32 v{S1+2*t+1}, v{OA+4*t+2}, v{OA+4*t+3}")
        a(f"ds_write_b64 v{t0}, v[{S1+2*t}:{S1+2*t+1}] offset:{32*t}")
    a("s_mov_b64 exec, -1")
    a("s_waitcnt vmcnt(0)")
    for r in range(4):
        a(f"v_lshlrev_b32 v{HV+2*r}, 16, v{XR+r}")
        a(f"v_and_b32 v{HV+2*r+1}, 0xffff0000, v{XR+r}")
        a(f"v_lshlrev_b32 v{WF+2*r}, 16, v{WR+r}")
        a(f"v_and_b32 v{WF+2*r+1}, 0xffff0000, v{WR+r}")
    a(f"""
    s_waitcnt lgkmcnt(0)
    s_barrier
    """)
    st(3, True)
    a(f"""
    ds_read_b128 v[{BF}:{BF+3}], v{t1}
    s_waitcnt lgkmcnt(0)
    """)
    for r in range(4):
        a(f"v_lshlrev_b32 v{HN+2*r}, 16, v{BF+r}")
        a(f"v_and_b32 v{HN+2*r+1}, 0xffff0000, v{BF+r}")
    P2 = lambda b, r: f"v[{b+r}:{b+r+1}]"
    for r in range(0, 8, 2): a(f"v_pk_add_f32 {P2(HV,r)}, {P2(HV,r)}, {P2(HN,r)}")
    for r in range(8): a(f"v_cvt_pk_bf16_f32 v{HV+r}, 0, v{HV+r}")
    SA, SB = S1, S1 + 2
    a(f"v_pk_add_f32 {P2(SA,0)}, {P2(HV,0)}, {P2(HV,2)}")
    a(f"v_pk_mul_f32 {P2(SB,0)}, {P2(HV,0)}, {P2(HV,0)}")
    a(f"v_pk_add_f32 {P2(SA,4)}, {P2(HV,4)}, {P2(HV,6)}")
    a(f"v_pk_fma_f32 {P2(SB,0)}, {P2(HV,2)}, {P2(HV,2)}, {P2(SB,0)}")
    a(f"v_pk_add_f32 {P2(SA,0)}, {P2(SA,0)}, {P2(SA,4)}")
    a(f"v_pk_fma_f32 {P2(SB,0)}, {P2(HV,4)}, {P2(HV,4)}, {P2(SB,0)}")
    a(f"v_add_f32 v{t0}, v{SA}, v{SA+1}")
    a(f"v_pk_fma_f32 {P2(SB,0)}, {P2(HV,6)}, {P2(HV,6)}, {P2(SB,0)}")
    a(f"v_add_f32 v{t2}, v{SB}, v{SB+1}")
    wave_sum(a, [t0, t2], [ST, ST + 1])
    ln_scalars(a, t0, t2, ST, ST + 2, ST + 1, ST + 3)
    st(4, True)
    for r in range(0, 8, 2): a(f"v_pk_add_f32 {P2(HN,r)}, {P2(HV,r)}, {P2(ST,0)} op_sel_hi:[1,0] neg_lo:[0,1] neg_hi:[0,1]")
    for r in range(8): a(f"v_cvt_pk_bf16_f32 v{HN+r}, 0, v{HN+r}")
    for r in range(0, 8, 2): a(f"v_pk_mul_f32 {P2(HN,r)}, {P2(HN,r)}, {P2(ST,2)} op_sel_hi:[1,0]")
    for r in range(8): a(f"v_cvt_pk_bf16_f32 v{HN+r}, 0, v{HN+r}")
    a(f"v_pk_mul_f32 {P2(SA,0)}, {P2(HN,0)}, {P2(WF,0)}")
    for r in range(2, 8, 2): a(f"v_pk_fma_f32 {P2(SA,0)}, {P2(HN,r)}, {P2(WF,r)}, {P2(SA,0)}")
    a(f"v_add_f32 v{t2}, v{SA}, v{SA+1}")
    fill = [f"v_pk_add_f32 {P2(WF+8,r)}, {P2(HV,r)}, {P2(HN,r)}" for r in range(0, 8, 2)]
    fill += [f"v_cvt_pk_bf16_f32 v{PK+4+r}, v{HV+2*r}, v{HV+2*r+1}" for r in range(4)]
    fill += [f"v_cvt_pk_bf16_f32 v{ST+4+r}, v{HN+2*r}, v{HN+2*r+1}" for r in range(4)]
    for mod in ("quad_perm:[1,0,3,2]", "quad_perm:[2,3,0,1]", "row_half_mirror", "row_mirror"):
        a(fill.pop(0)); a(fill.pop(0))
        a(f"v_add_f32_dpp v{t2}, v{t2}, v{t2} {mod} row_mask:0xf bank_mask:0xf")
    for w in (16, 32):
        a(f"v_mov_b32 v{t0}, v{t2}")
        a(fill.pop(0)); a(fill.pop(0))
        a(f"v_permlane{w}_swap_b32 v{t0}, v{t2}")
        a(f"v_add_f32 v{t2}, v{t2}, v{t0}")
    if 'leak' in dbg:
        a(f"""
        s_cmp_lg_u32 s3, 0
        s_cbranch_scc1 K2_leak
        s_memrealtime s[92:93]
        v_mov_b32 v{S1+4}, 0
        s_mov_b32 s5, {WS_SEL:#x}
        buffer_load_dwordx4 v[{S1}:{S1+3}], v{S1+4}, s[8:11], s5 offen
        s_waitcnt vmcnt(0) lgkmcnt(0)
        s_mov_b64 exec, 1
        v_add_f32 v{WF+8}, {f2u(64.0):#x}, v{WF+8}
        v_sub_u32 v{WF+9}, v{S1+2}, v{S1}
        v_sub_u32 v{WF+10}, v{S1+1}, v{S1}
        v_sub_u32 v{WF+11}, s90, v{S1}
        v_sub_u32 v{WF+12}, s94, v{S1}
        v_sub_u32 v{WF+13}, s92, v{S1}
        """)
        for r in range(9, 14):
            a(f"v_cvt_f32_u32 v{WF+r}, v{WF+r}")
            a(f"v_mul_f32 v{WF+r}, {f2u(0.005):#x}, v{WF+r}")
            a(f"v_min_f32 v{WF+r}, {f2u(20.0):#x}, v{WF+r}")
        a("s_mov_b64 exec, -1")
        a.label("K2_leak")
    a(f"""
    v_cvt_pk_bf16_f32 v{t2}, 0, v{t2}
    v_ashrrev_i32 v{t0}, 31, v{t2}
    v_or_b32 v{t0}, 0x80000000, v{t0}
    v_xor_b32 v{t2}, v{t2}, v{t0}
    v_and_b32 v{t2}, 0xffff0000, v{t2}
    s_sub_u32 s5, 0xffff, s3
    v_or_b32 v{t2}, s5, v{t2}      ; key
    ds_write_b32 v{t4}, v{t2}
    """)
    for r in range(4): a(f"v_cvt_pk_bf16_f32 v{PK+r}, v{WF+8+2*r}, v{WF+8+2*r+1}")
    a(f"""
    buffer_store_dwordx4 v[{PK}:{PK+3}], v{vWL}, s[20:23], s4 offen sc1
    """)
    a(f"""
    s_waitcnt lgkmcnt(0)
    s_barrier
    ds_read_b32 v{t1}, v{t3}
    s_waitcnt lgkmcnt(0)
    v_cmp_gt_u32 vcc, v{t1}, v{t2}
    v_cmp_eq_u32 s[36:37], v{t1}, v{t2}
    s_and_b32 s38, vcc_lo, 0xff
    s_bcnt1_i32_b32 s38, s38       ; rank
    """)
    st(5, False); st(5, True); st(0, 2); st(1, 2); st(2, 2); st(3, 2); st(4, 2); st(5, 2)
    a(f"""
    s_cmp_gt_u32 s38, 1
    s_cbranch_scc1 K2_pub0
    s_add_u32 s5, s4, {WS_H:#x}
    buffer_store_dwordx4 v[{PK+4}:{PK+7}], v{vWL}, s[8:11], s5 offen sc1
    s_add_u32 s5, s4, {WS_HN:#x}
    buffer_store_dwordx4 v[{ST+4}:{ST+7}], v{vWL}, s[8:11], s5 offen sc1
    v_cndmask_b32 v{ST+1}, v{t1}, 0, s[36:37]
    v_mov_b32 v{ST}, v{t2}
    s_lshl_b32 s5, s2, {G.KS_LOG}
    s_add_u32 s5, s5, {WS_KEY:#x}
    v_lshlrev_b32 v{t0}, 14, v0
    """)
    for mod in ("quad_perm:[1,0,3,2]", "quad_perm:[2,3,0,1]", "row_half_mirror"):
        a(f"v_max_u32_dpp v{ST+1}, v{ST+1}, v{ST+1} {mod} row_mask:0xf bank_mask:0xf")
    a("s_waitcnt vmcnt(0)")
    a.label("K2_pub0")
    a(f"""
    s_barrier
    s_cmp_lg_u32 s38, 0
    s_cbranch_scc1 K2_pub
    s_mov_b64 exec, {0xff if KREP else 1}
    buffer_store_dwordx2 v[{ST}:{ST+1}], v{t0}, s[8:11], s5 offen sc1
    s_mov_b64 exec, -1
    """)
    a.label("K2_pub")
    if 'amp' in dbg: a('s_memrealtime s[96:97]'); a('s_waitcnt lgkmcnt(0)')
    st(1, 2)
    def fin():
        if G.STAMP: a("s_waitcnt vmcnt(0)")
        stamp(a, 6)
        if G.STAMP: a("s_mov_b32 s91, s30")
        stamp_out(a, 1, 8, "s6", WF)
        a("s_endpgm")
    a(f"""
    s_cmp_ge_u32 s2, 144
    s_cbranch_scc1 K2_fin
    """)
    AFR = V
    KY = K; Y = K + 8; BX = V + 32; AC = K + 16
    a(f"""
    s_setprio 0
    v_bfe_u32 v{t0}, v0, 2, 2
    v_lshrrev_b32 v{t4}, 4, v0           ; g
    v_lshl_add_u32 v{t0}, v{t4}, 3, v{t0}
    v_lshlrev_b32 v{t0}, 5, v{t0}
    v_and_b32 v{t1}, 3, v0
    v_lshl_add_u32 v{t0}, v{t1}, 3, v{t0}
    v_add_u32 v{t0}, s74, v{t0}
    """)
    for sx in range(7):
        for half in range(2):
            d = AFR + 4 * sx + 2 * half
            a(f"ds_read_b64_tr_b16 v[{d}:{d+1}], v{t0} offset:{sx*1024 + half*128}")
    a(f"""
    v_and_b32 v{t3}, 1, v0
    v_lshlrev_b32 v{vPW}, 6, v{t3}
    v_lshl_add_u32 v{vPW}, v{t4}, 4, v{vPW}
    s_lshl_b32 s5, s6, 7
    s_add_u32 s5, s5, {L_RED:#x}
    v_add_u32 v{vPW}, s5, v{vPW}
    v_and_b32 v{vPR}, 31, v0
    v_lshlrev_b32 v{vPR}, 2, v{vPR}      ; (lane&31)*4
    v_lshrrev_b32 v{vOR}, 5, v0
    v_lshl_add_u32 v{vOR}, v{vOR}, 14, v{vPR}
    s_cmp_lg_u32 s6, 0
    s_cbranch_scc1 K2_nokey
    v_lshlrev_b32 v{t1}, {G.KS_LOG}, v0
    s_and_b32 s5, s2, {7 if KREP else 0}
    s_lshl_b32 s5, s5, 14
    s_add_u32 s5, s5, {WS_KEY:#x}
    s_add_u32 s79, s5, {64 << G.KS_LOG}
    s_add_u32 s80, s5, {128 << G.KS_LOG}
    s_add_u32 s81, s5, {192 << G.KS_LOG}
    s_mov_b32 s36, 0
    """)
    KZ = V + 60 - 8 * 0
    def poll_loop(name, issue, nld):
        K2R = X[0]
        def chk(b):
            a(f"""
            v_min3_u32 v{Y}, v{b}, v{b+1}, v{b+2}
            v_min3_u32 v{Y+1}, v{b+3}, v{b+4}, v{b+5}
            v_min3_u32 v{Y}, v{Y}, v{b+6}, v{b+7}
            v_min_u32 v{Y}, v{Y}, v{Y+1}
            v_cmp_eq_u32 vcc, 0, v{Y}
            """)
        sl = OPT.get('psl', 3)
        issue(KY)
        a(f"s_sleep {sl}")
        a.label(f"{name}_l")
        issue(K2R)
        a(f"s_waitcnt vmcnt({nld})")
        chk(KY)
        a(f"s_cbranch_vccz {name}_ok")
        issue(KY)
        a(f"s_waitcnt vmcnt({nld})")
        chk(K2R)
        a(f"""
        s_cbranch_vccz {name}_ok2
        s_add_u32 s36, s36, 1
        s_cmp_lt_u32 s36, 0x40000
        s_cbranch_scc1 {name}_l
        """)
        a.label(f"{name}_ok2")
        for r in range(0, 8, 2): a(f"v_pk_mov_b32 v[{KY+r}:{KY+r+1}], v[{K2R+r}:{K2R+r+1}], v[{K2R+r}:{K2R+r+1}] op_sel:[0,1]")
        a.label(f"{name}_ok")
    def kissue(b):
        for k, sr in enumerate(("s5", "s79", "s80", "s81")):
            a(f"buffer_load_dwordx2 v[{b+2*k}:{b+2*k+1}], v{t1}, s[8:11], {sr} offen sc1")
    if int(OPT.get('kd', 16)): a(f"s_sleep {OPT.get('kd', 16)}")
    poll_loop("K2_kp", kissue, 4)
    a.label("K2_kok")
    st(2, 2)
    if FS: a("s_mov_b32 s30, s36")
    B1, B2 = Y + 4, Y + 5
    a(f"""
    v_max_u32 v{B1}, v{KY}, v{KY+2}
    v_min_u32 v{B2}, v{KY}, v{KY+2}
    v_max3_u32 v{B2}, v{B2}, v{KY+1}, v{KY+3}
    v_max_u32 v{Y}, v{KY+4}, v{KY+6}
    v_min_u32 v{Y+1}, v{KY+4}, v{KY+6}
    v_max3_u32 v{Y+1}, v{Y+1}, v{KY+5}, v{KY+7}
    v_min_u32 v{Y+2}, v{B1}, v{Y}
    v_max_u32 v{B1}, v{B1}, v{Y}
    v_max3_u32 v{B2}, v{B2}, v{Y+1}, v{Y+2}
    v_mov_b32 v{Y}, v{B1}
    """)
    wave_max_u32(a, Y, Y + 1)
    a(f"""
    v_cmp_eq_u32 vcc, v{B1}, v{Y}
    v_cndmask_b32 v{B1}, v{B1}, v{B2}, vcc
    """)
    wave_max_u32(a, B1, Y + 1)
    a(f"""
    v_readfirstlane_b32 s40, v{Y}
    v_readfirstlane_b32 s41, v{B1}
    s_andn2_b32 s42, 0x7ff, s40
    s_andn2_b32 s43, 0x7ff, s41
    s_lshl_b32 s42, s42, 10
    s_lshl_b32 s43, s43, 10
    """)
    a.label("K2_nokey")
    a(f"""
    s_cmp_ge_u32 s2, 112
    s_cbranch_scc1 K2_down
    s_cmp_lg_u32 s6, 0
    s_cbranch_scc1 K2_up1
    s_add_u32 s36, s42, {WS_HN:#x}
    s_add_u32 s37, s43, {WS_HN:#x}
    buffer_load_dwordx4 v[{KY}:{KY+3}], v{vWL}, s[8:11], s36 offen sc1
    buffer_load_dwordx4 v[{KY+4}:{KY+7}], v{vWL}, s[8:11], s37 offen sc1
    s_waitcnt vmcnt(1)
    ds_write_b128 v{vWL}, v[{KY}:{KY+3}] offset:{L_XS}
    s_waitcnt vmcnt(0)
    ds_write_b128 v{vWL}, v[{KY+4}:{KY+7}] offset:{L_XS + 1040}
    """)
    a.label("K2_up1")
    st(3, 2)
    a(f"""
    v_mul_u32_u24 v{t0}, 1040, v{t3}
    v_lshl_add_u32 v{t0}, v{t4}, 4, v{t0}
    s_lshr_b32 s5, s6, 1
    s_lshl_b32 s5, s5, 8
    v_add_u32 v{t0}, s5, v{t0}
    s_waitcnt lgkmcnt(0)
    s_barrier
    """)
    for sx in range(4):
        a(f"ds_read_b128 v[{BX+4*sx}:{BX+4*sx+3}], v{t0} offset:{L_XS + 64*sx}")
    for sx in range(4):
        a(f"s_waitcnt lgkmcnt({3-sx})")
        c = "0" if sx == 0 else f"v[{AC}:{AC+3}]"
        a(f"v_mfma_f32_16x16x32_bf16 v[{AC}:{AC+3}], v[{AFR+4*sx}:{AFR+4*sx+3}], v[{BX+4*sx}:{BX+4*sx+3}], {c}")
    a(f"""
    ds_write_b128 v{vPW}, v[{AC}:{AC+3}]
    s_waitcnt lgkmcnt(0)
    s_barrier
    s_cmp_lg_u32 s6, 0
    s_cbranch_scc1 K2_fin
    """)
    def red_read():
        a(f"v_add_u32 v{t0}, {L_RED:#x}, v{vPR}")
        a("s_waitcnt vmcnt(0)")
        for k in range(4):
            a(f"ds_read2_b32 v[{KY+2*k}:{KY+2*k+1}], v{t0} offset0:{64*k} offset1:{64*k+32}")
        a("s_waitcnt lgkmcnt(0)")
        a(f"v_pk_add_f32 v[{KY}:{KY+1}], v[{KY}:{KY+1}], v[{KY+2}:{KY+3}]")
        a(f"v_pk_add_f32 v[{KY+4}:{KY+5}], v[{KY+4}:{KY+5}], v[{KY+6}:{KY+7}]")
        a(f"v_pk_add_f32 v[{KY}:{KY+1}], v[{KY}:{KY+1}], v[{KY+4}:{KY+5}]")
    st(4, 2)
    red_read()
    a(f"""
    v_cvt_pk_bf16_f32 v{KY}, 0, v{KY}
    v_cvt_pk_bf16_f32 v{KY+1}, 0, v{KY+1}
    """)
    sigmoid(a, KY + 2, KY, KY + 3)
    a(f"""
    v_mul_f32 v{KY}, v{KY}, v{KY+2}
    v_cvt_pk_bf16_f32 v{KY}, 0, v{KY}
    v_mul_f32 v{KY}, v{KY}, v{KY+1}
    v_cvt_pk_bf16_f32 v{KY}, 0, v{KY}
    v_or_b32 v{KY}, 1, v{KY}
    s_lshl_b32 s5, s76, 7
    s_add_u32 s5, s5, {WS_GU:#x}
    """)
    if GREP:
        for k in range(4):
            a(f"buffer_store_dword v{KY}, v{vOR}, s[8:11], s5 offen sc1")
            if k < 3: a("s_add_u32 s5, s5, 0x8000")
    else:
        a(f"""
        s_mov_b32 exec_hi, 0
        buffer_store_dword v{KY}, v{vPR}, s[8:11], s5 offen sc1
        s_mov_b64 exec, -1
        """)
    a(f"""
    s_branch K2_fin
    """)
    a.label("K2_down")
    HH, NN, GT, OO = Y + 6, Y + 7, AC + 4, AC + 5
    a(f"""
    s_cmp_lg_u32 s6, 0
    s_cbranch_scc1 K2_dn1
    v_bfe_u32 v{t0}, v0, 4, 1
    v_cmp_eq_u32 vcc, 0, v{t0}
    v_mov_b32 v{t0}, s43
    v_mov_b32 v{t1}, s42
    v_cndmask_b32 v{OO}, v{t0}, v{t1}, vcc
    v_and_b32 v{t0}, 15, v0
    v_lshl_add_u32 v{OO}, v{t0}, 1, v{OO}
    s_lshl_b32 s44, s77, 5
    s_add_u32 s36, s44, {WS_H:#x}
    s_add_u32 s37, s44, {WS_HN:#x}
    buffer_load_ushort v{HH}, v{OO}, s[8:11], s36 offen sc1
    buffer_load_ushort v{NN}, v{OO}, s[8:11], s37 offen sc1
    v_mov_b32 v{t0}, s41
    v_mov_b32 v{t1}, s40
    v_cndmask_b32 v{GT}, v{t0}, v{t1}, vcc
    v_and_b32 v{GT}, 0xffff0000, v{GT}
    v_ashrrev_i32 v{t0}, 31, v{GT}
    v_not_b32 v{t0}, v{t0}
    v_or_b32 v{t0}, 0x80000000, v{t0}
    v_xor_b32 v{GT}, v{GT}, v{t0}
    v_and_b32 v{GT}, 0xffff0000, v{GT}
    """)
    sigmoid(a, GT, GT, t0)
    a(f"v_cvt_pk_bf16_f32 v{GT}, 0, v{GT}")
    a.label("K2_dn1")
    a(f"""
    s_mul_i32 s5, s6, 1792
    s_and_b32 s37, s2, {7 if GREP else 0}
    s_lshl_b32 s37, s37, 14
    s_add_u32 s5, s5, s37
    s_add_u32 s5, s5, {WS_GU:#x}
    v_min_u32 v{t1}, 47, v0
    v_lshlrev_b32 v{t1}, 4, v{t1}
    s_lshl_b32 s37, s6, 10
    s_add_u32 s37, s37, {L_GB:#x}
    v_lshrrev_b32 v{t0}, 3, v0
    v_lshlrev_b32 v{vPL}, 5, v{t0}
    v_and_b32 v{t0}, 3, v0
    v_lshl_add_u32 v{vPL}, v{t0}, 3, v{vPL}
    v_bfe_u32 v{t0}, v0, 2, 1
    v_mul_u32_u24 v{t0}, 464, v{t0}
    v_add3_u32 v{vPL}, v{vPL}, v{t0}, s37
    v_mul_u32_u24 v{vOW}, 464, v{t3}
    v_lshl_add_u32 v{vOW}, v{t4}, 4, v{vOW}
    v_add_u32 v{vOW}, s37, v{vOW}
    s_mov_b32 s45, 0x07060302
    s_mov_b32 s36, 0
    """)
    def gissue(b):
        a(f"buffer_load_dwordx4 v[{b}:{b+3}], v{vWL}, s[8:11], s5 offen sc1")
        a(f"buffer_load_dwordx4 v[{b+4}:{b+7}], v{t1}, s[8:11], s5 offen offset:1024 sc1")
    if 'nogb' not in dbg:
        a("s_barrier")
        if int(OPT.get('gd', 24)): a(f"s_sleep {OPT.get('gd', 24)}")
    poll_loop("K2_gp", gissue, 2)
    a.label("K2_gok")
    st(4, 2)
    a(f"""
    v_perm_b32 v{Y}, v{KY+1}, v{KY}, s45
    v_perm_b32 v{Y+1}, v{KY+3}, v{KY+2}, s45
    v_perm_b32 v{Y+2}, v{KY+5}, v{KY+4}, s45
    v_perm_b32 v{Y+3}, v{KY+7}, v{KY+6}, s45
    ds_write_b64 v{vPL}, v[{Y}:{Y+1}]
    s_mov_b32 exec_hi, 0xffff
    ds_write_b64 v{vPL}, v[{Y+2}:{Y+3}] offset:256
    s_mov_b64 exec, -1
    """)
    for sx in range(7):
        a(f"ds_read_b128 v[{BX+4*sx}:{BX+4*sx+3}], v{vOW} offset:{64*sx}")
    for sx in range(7):
        a(f"s_waitcnt lgkmcnt({6-sx})")
        c = "0" if sx == 0 else f"v[{AC}:{AC+3}]"
        a(f"v_mfma_f32_16x16x32_bf16 v[{AC}:{AC+3}], v[{AFR+4*sx}:{AFR+4*sx+3}], v[{BX+4*sx}:{BX+4*sx+3}], {c}")
    a(f"""
    ds_write_b128 v{vPW}, v[{AC}:{AC+3}]
    s_waitcnt lgkmcnt(0)
    s_barrier
    s_cmp_lg_u32 s6, 0
    s_cbranch_scc1 K2_fin
    """)
    red_read()
    a(f"""
    v_add_f32 v{KY}, v{KY}, v{KY+1}
    v_lshlrev_b32 v{HH}, 16, v{HH}
    v_lshlrev_b32 v{NN}, 16, v{NN}
    v_cvt_pk_bf16_f32 v{KY}, 0, v{KY}
    v_mul_f32 v{KY}, v{KY}, v{GT}
    v_cvt_pk_bf16_f32 v{KY}, 0, v{KY}
    v_add_f32 v{KY}, v{KY}, v{NN}
    v_cvt_pk_bf16_f32 v{KY}, 0, v{KY}
    v_add_f32 v{KY}, v{KY}, v{HH}
    v_cvt_pk_bf16_f32 v{KY}, v{KY}, v{KY}
    s_mov_b32 exec_hi, 0
    buffer_store_short v{KY}, v{OO}, s[20:23], s44 offen sc1
    s_mov_b64 exec, -1
    """)
    a.label("K2_fin")
    if 'amp' in dbg:
        q = int(OPT['amp'])
        expr = {0: None, 1: ("s83", "s90"), 2: ("s84", "s90"), 3: ("s85", "s90"), 4: ("s86", "s90"), 5: ("s88", "s90"), 6: ("s94", "s90"), 7: ("s98", "s94"), 8: ("s96", "s98")}[q]
        a(f"""
        s_or_b32 s5, s2, s6
        s_cmp_lg_u32 s5, 0
        s_cbranch_scc1 K2_amp_end
        """)
        if expr: a(f"s_sub_u32 s85, {expr[0]}, {expr[1]}")
        else: a("s_mov_b32 s85, 0")
        a(f"""
        s_min_u32 s85, s85, 5000
        s_lshl_b32 s85, s85, 1
        s_add_u32 s85, s85, 600
        s_add_u32 s85, s85, s96
        """)
        a.label("K2_amp")
        a(f"""
        s_memrealtime s[92:93]
        s_waitcnt lgkmcnt(0)
        s_sub_u32 s86, s92, s85
        s_cmp_lt_i32 s86, 0
        s_cbranch_scc1 K2_amp
        """)
        a.label("K2_amp_end")
    if G.STAMP: a("s_waitcnt vmcnt(0)")
    stamp(a, 6)
    if G.STAMP: a("s_mov_b32 s91, s30")
    stamp_out(a, 1, 8, "s6", WF)
    dstamp(a, 1, True, 240)
    a.label("K2_end")
    a("s_endpgm")
    if 'nopf' not in dbg:
        a.label("K2_side")
        a(f"buffer_load_dword v{vPD}, v{vPA}, s[12:15], s38 offen")
        a("s_branch K2_sideb")
        a.label("K2_stg")
        for e in range(2):
            a(f"""
            s_mov_b32 m0, s78
            s_add_u32 s78, s78, 1024
            buffer_load_dwordx4 v{vFS}, s[68:71], s72 offen lds
            s_add_u32 s72, s72, s73
            """)
            if e == 0:
                a("s_bitcmp1_b32 s42, s29"); a("s_cbranch_scc0 K2_stgb")
        a("s_branch K2_stgb")
    a.label("K2_qspin")
    a(f"""
    s_mov_b32 s36, 0
    """)
    a.label("K2_qspin1")
    a(f"""
    s_sleep 2
    buffer_load_dword v{t0}, v{SP}, s[8:11], s45 offen sc1
    s_add_u32 s36, s36, 1
    s_waitcnt vmcnt(0)
    v_cmp_ne_u32 vcc, s58, v{t0}
    s_cbranch_vccz K2_qback
    s_cmp_lt_u32 s36, 0x40000
    s_cbranch_scc1 K2_qspin1
    s_branch K2_qback
    """)
    for k, off in enumerate(spins):
        a.label(f"K2_spin{k}")
        a(f"""
        s_sleep 1
        ds_read_b32 v{vFV}, v{vFR} offset:{off}
        s_waitcnt lgkmcnt(0)
        v_cmp_gt_u32 vcc, s59, v{vFV}
        s_cbranch_vccnz K2_spin{k}
        s_branch K2_back{k}
        """)
```

```python
from gen import *
import gen as G
import re

L_X = 0; L_W = 65536; L_KV = 131072; L_WOT = L_KV + 16384; L_DN = L_WOT + 2048; L1_TOTAL = L_DN + 64
L_Q0 = 0x6000

def gen_p1(a, dbg=''):
    SC = ' sc1'
    def p1(i):
        if 'p1st' in dbg: stamp(a, i)
        if 'amp' in dbg: a(f's_memrealtime s[100:101]'); a('s_waitcnt lgkmcnt(0)'); a(f's_mov_b32 s{82+i}, s100')
    FST = int(dict(x.split('=') for x in dbg.split(',') if '=' in x).get('fst', 0))
    WB = int(dict(x.split('=') for x in dbg.split(',') if '=' in x).get('wb', 5))
    WD = int(dict(x.split('=') for x in dbg.split(',') if '=' in x).get('wd', 9))
    PB = int(dict(x.split('=') for x in dbg.split(',') if '=' in x).get('pb', 99))
    FLS = int(dict(x.split('=') for x in dbg.split(',') if '=' in x).get('fls', 4))
    EPOCH = f"""
    s_add_u32 s56, s32, {WS_EP:#x}
    s_addc_u32 s57, s33, 0
    s_load_dword s58, s[56:57], 0
    """
    X = 32
    ACC = 96
    AF = 116
    T = 148
    a(f"""
    s_cmp_lt_u32 s2, 256
    s_cbranch_scc1 K1_go
    s_endpgm
    """)
    a.label("K1_go")
    stamp(a, 0)
    if ('leak' in dbg or 'amp' in dbg): a('s_memrealtime s[90:91]')
    dstamp(a, 0, False, 200)
    a(f"""
    s_load_dwordx8 s[24:31], s[0:1], 0
    s_load_dwordx2 s[44:45], s[0:1], 32
    s_load_dwordx2 s[32:33], s[0:1], 96
    """)
    if 'nocodepf' not in dbg:
        a(f"""
        s_cmp_ge_u32 s2, 16
        s_cbranch_scc1 K1_nocp
        v_subrev_u32 v30, 256, v0
        v_cmp_gt_u32 vcc, (K_all_end-k1_kernel+127)/128, v30
        s_and_saveexec_b64 s[62:63], vcc
        s_cbranch_execz K1_cpx
        s_getpc_b64 s[60:61]
        """)
        a.label("K1_pc")
        a(f"""
        s_sub_u32 s60, s60, K1_pc-k1_kernel
        s_subb_u32 s61, s61, 0
        v_lshlrev_b32 v30, 7, v30
        global_load_dword v31, v30, s[60:61]
        """)
        a.label("K1_cpx")
        a("s_mov_b64 exec, s[62:63]")
        a.label("K1_nocp")
    a(f"""
    s_and_b32 s3, s2, 7
    s_lshr_b32 s4, s2, 3
    s_and_b32 s5, s4, 7
    s_lshr_b32 s4, s4, 3           ; tb & 3
    s_lshl_b32 s3, s3, 2
    s_add_u32 s3, s3, s4
    v_lshrrev_b32 v1, 6, v0
    v_and_b32 v2, 63, v0           ; lane
    v_readfirstlane_b32 s6, v1     ; wave
    v_and_b32 v3, 15, v2           ; l & 15
    v_lshrrev_b32 v6, 2, v2
    v_lshrrev_b32 v4, 4, v2        ; g
    v_bfe_u32 v18, v2, 2, 2        ; r'
    v_and_b32 v19, 3, v2           ; c'
    v_lshl_add_u32 v20, v4, 3, v18 ; 8g + r'
    v_lshlrev_b32 v17, 5, v20
    v_lshl_add_u32 v17, v19, 3, v17
    s_cmp_ge_u32 s6, 4
    s_cbranch_scc1 K1_loader
    """)
    a(f"""
    s_load_dwordx2 s[48:49], s[0:1], 96
    s_load_dwordx2 s[40:41], s[0:1], 0
    s_load_dwordx8 s[60:67], s[0:1], 48
    s_load_dwordx2 s[46:47], s[0:1], 80
    s_lshl_b32 s7, s3, 6
    s_lshl_b32 s34, s6, 4
    s_add_u32 s7, s7, s34
    v_add_u32 v5, s7, v3           ; token
    v_lshrrev_b32 v7, 4, v2
    v_and_b32 v7, 2, v7
    v_xor_b32 v7, v7, v19
    v_lshlrev_b32 v6, 10, v6
    v_lshl_add_u32 v6, v7, 4, v6
    s_lshl_b32 s81, s6, 14
    s_lshl_b32 s80, s7, 10
    s_lshl_b32 s79, s5, 7          ; k rotation: 2j steps of 64 B
    s_waitcnt lgkmcnt(0)
    """)
    srd(a, 16, 24, 25, 0x200000)
    a(f"""
    s_add_u32 s42, s48, {WS_EP:#x}
    s_addc_u32 s43, s49, 0
    s_load_dword s58, s[42:43], 0
    """)
    def xloop(name, lo, hi):
        if lo >= hi: return
        a(f"s_mov_b32 s29, {lo}")
        a.label(name)
        a(f"""
        s_mov_b32 m0, s81
        s_add_u32 s3, s79, s80
        buffer_load_dwordx4 v6, s[16:19], s3 offen lds
        s_add_u32 m0, s81, {1024 - 64}
        s_add_u32 s79, s79, 128
        buffer_load_dwordx4 v6, s[16:19], s3 offen offset:64 lds
        s_and_b32 s79, s79, 0x3ff
        s_add_u32 s81, s81, 2048
        s_add_u32 s29, s29, 1
        s_cmp_lt_u32 s29, {hi}
        s_cbranch_scc1 {name}
        """)
    XN = int(dict(x.split('=') for x in dbg.split(',') if '=' in x).get('xn', 2))
    xloop("K1_x1", 0, XN)
    a("s_branch K12_setup1")
    EARLY = 'early' in dbg
    a.label("K1_loader")
    if 'noldprio' not in dbg: a("s_setprio 3")
    a(f"""
    s_sub_u32 s6, s6, 4
    v_lshrrev_b32 v7, 3, v2        ; row_in
    v_and_b32 v8, 7, v2            ; slot
    v_and_b32 v9, 2, v7
    v_xor_b32 v8, v8, v9
    v_xor_b32 v9, 4, v8
    s_lshl_b32 s35, s5, 7
    v_lshlrev_b32 v7, 10, v7
    v_add_u32 v7, s35, v7
    v_lshl_add_u32 v10, v8, 4, v7
    v_lshl_add_u32 v11, v9, 4, v7
    v_lshlrev_b32 v12, 4, v2       ; lane*16
    v_lshrrev_b32 v13, 1, v2
    v_lshlrev_b32 v13, 10, v13
    v_and_b32 v14, 1, v2
    v_lshl_add_u32 v13, v14, 4, v13
    s_lshl_b32 s65, s6, 14
    s_add_u32 s65, s65, {L_W}
    s_lshl_b32 s37, s6, 4
    s_lshl_b32 s38, s5, 3
    s_add_u32 s37, s37, s38
    v_and_b32 v15, 16, v2
    v_lshlrev_b32 v15, 3, v15
    v_xor_b32 v15, v15, v12
    s_lshl_b32 s39, s4, 2
    s_waitcnt lgkmcnt(0)
    """)
    a(EPOCH)
    srd(a, 12, 26, 27, 0x80000)
    a(f"""
    s_bitcmp0_b32 s5, 0
    s_cselect_b64 s[46:47], s[28:29], s[30:31]
    """)
    srd(a, 16, 46, 47, 0x4000)
    srd(a, 40, 44, 45, 0x80000)
    srd(a, 20, 32, 33, WS_SIZE)
    a(f"""
    v_mov_b32 v40, -1
    v_mov_b32 v41, -1
    v_mov_b32 v42, -1
    v_mov_b32 v43, -1
    s_lshl_b32 s48, s3, 3
    s_add_u32 s48, s48, s5
    s_lshl_b32 s48, s48, 2
    s_add_u32 s48, s48, s6
    s_lshl_b32 s48, s48, 10
    s_add_u32 s48, s48, {WS_H:#x}
    buffer_store_dwordx4 v[40:43], v12, s[20:23], s48 offen sc1
    """)
    a(f"""
    s_cmp_lg_u32 s6, 0
    s_cbranch_scc1 K1_noz
    v_mov_b32 v32, 0
    v_mov_b32 v33, 0
    v_mov_b32 v34, 0
    v_mov_b32 v35, 0
    s_lshl_b32 s48, s2, 10
    s_add_u32 s48, s48, {WS_GU:#x}
    buffer_store_dwordx4 v[32:35], v12, s[20:23], s48 offen{SC}
    """)
    a.label("K1_noz")
    if 'notouch' not in dbg:
        a(f"""
        s_cmp_lg_u32 s6, 1
        s_cbranch_scc1 K1_not
        s_and_b32 s48, s2, 7
        s_lshl_b32 s48, s48, 14
        s_add_u32 s48, s48, {WS_FL:#x}
        v_lshlrev_b32 v32, {FLS + 2}, v2
        buffer_load_dword v33, v32, s[20:23], s48 offen sc1
        """)
        a.label("K1_not")
    a(f"""
    s_cmp_lt_u32 s6, 2
    s_cbranch_scc1 K1_nowo
    s_lshl_b32 s46, s2, 1
    s_and_b32 s47, s6, 1
    s_add_u32 s46, s46, s47
    s_lshr_b32 s47, s46, 6
    s_lshl_b32 s47, s47, 16
    s_bfe_u32 s48, s46, 0x10002
    s_lshl_b32 s48, s48, 15        ; s * 32 rows
    s_add_u32 s47, s47, s48
    s_bfe_u32 s48, s46, 0x30003
    s_lshl_b32 s48, s48, 7         ; w * 128 B
    s_add_u32 s47, s47, s48
    s_and_b32 s48, s46, 3
    s_lshl_b32 s48, s48, 5         ; t * 32 B
    s_add_u32 s47, s47, s48
    s_lshl_b32 s48, s6, 10
    s_add_u32 s48, s48, {L_WOT - 2048}
    s_mov_b32 m0, s48
    v_add_u32 v17, s48, v17
    buffer_load_dwordx4 v13, s[40:43], s47 offen lds
    s_lshl_b32 s48, s6, 2
    s_add_u32 s48, s48, {L_DN - 8}
    v_mov_b32 v36, s48
    v_mov_b32 v37, 0
    ds_write_b32 v36, v37
    v_mov_b32 v37, 1
    """)
    a.label("K1_nowo")
    a(f"""
    s_lshl_b32 s36, s6, 12
    s_lshl_b32 s38, s5, 11
    """)
    for i in range(4):
        a(f"""
        s_add_u32 s48, s36, {i*1024}
        s_add_u32 m0, s48, {L_KV}
        s_add_u32 s48, s48, s38
        s_and_b32 s48, s48, 0x3fff
        buffer_load_dwordx4 v15, s[16:19], s48 offen lds
        """)
    a("s_waitcnt lgkmcnt(0)")
    a("s_add_u32 s58, s58, 1")
    a(f"""
    s_barrier
    s_cmp_lt_u32 s6, 2
    s_cbranch_scc1 K1_nowo2
    s_waitcnt vmcnt(4)
    ds_read_b64_tr_b16 v[32:33], v17
    ds_read_b64_tr_b16 v[34:35], v17 offset:128
    s_lshl_b32 s46, s46, 10
    s_add_u32 s46, s46, {WS_WOF:#x}
    s_waitcnt lgkmcnt(0)
    buffer_store_dwordx4 v[32:35], v12, s[20:23], s46 offen sc1
    s_branch K1_wst
    """)
    a.label("K1_nowo2")
    a("buffer_load_dword v33, v12, s[16:19], 0 offen")
    a.label("K1_wst")
    for i in range(16):
        a(f"""
        s_add_u32 s48, s39, {i}
        s_and_b32 s48, s48, 15
        s_lshl_b32 s49, s48, 10
        s_add_u32 m0, s65, s49
        s_add_u32 s48, s48, s37
        s_and_b32 s48, s48, 63
        s_lshl_b32 s48, s48, 13
        buffer_load_dwordx4 v{10 + (i & 1)}, s[12:15], s48 offen lds
        """)
        if i == WB:
            a(f"s_waitcnt vmcnt({WB + 2})")
            p1(1)
            a("s_barrier")
        if i == WD and EARLY:
            a(f"""
            s_cmp_lt_u32 s6, 2
            s_cbranch_scc1 K1_nodn
            s_waitcnt vmcnt({WD + 1})
            ds_write_b32 v36, v37
            """)
            a.label("K1_nodn")
    p1(2)
    if 'ps' in dbg.split(','):
        a("s_cmp_eq_u32 s6, 0")
        a("s_cbranch_scc1 K12_setup")
    a("s_waitcnt vmcnt(0)")
    p1(3)
    a("s_barrier")
    a("s_cmp_eq_u32 s6, 0")
    a("s_cbranch_scc1 K12_setup")
    a("s_setprio 0")
    a("s_branch K12_setup")
    a.label("K1_comp")
    ONE = 24; SEL = 8
    SEL = 152
    a(f"""
    v_lshlrev_b32 v21, 7, v20
    v_lshl_add_u32 v21, v19, 3, v21   ; row*128 + 8c'
    v_add_u32 v21, {L_W}, v21
    v_lshrrev_b32 v22, 1, v18
    v_and_b32 v23, 1, v4
    v_lshl_or_b32 v22, v23, 1, v22 ; h
    """)
    for t in range(4):
        a(f"v_xor_b32 v23, {t}, v22")
        a(f"v_lshl_add_u32 v{13+t}, v23, 5, v21")
    a(f"""
    v_lshlrev_b32 v10, 6, v3
    v_lshrrev_b32 v7, 2, v3
    v_and_b32 v7, 2, v7
    v_xor_b32 v7, v7, v4
    v_lshl_add_u32 v10, v7, 4, v10
    s_lshl_b32 s3, s6, 14
    v_add_u32 v10, s3, v10
    v_and_b32 v7, 1, v4
    v_lshlrev_b32 v7, 7, v7
    v_add_u32 v17, {L_KV}, v17
    v_xor_b32 v12, v17, v7
    v_xor_b32 v17, 128, v12
    """)
    for r in range(4): a(f"v_mov_b32 v{ONE+r}, 0x3f803f80")
    a(f"""
    v_and_b32 v7, 1, v2
    v_lshlrev_b32 v7, 4, v7
    v_mov_b32 v8, 0x3f80
    v_lshlrev_b32 v7, v7, v8
    v_cmp_eq_u32 s[34:35], v18, v4 ; g == (l&15)>>2
    v_bfe_u32 v8, v2, 1, 1
    v_cmp_eq_u32 vcc, 0, v8
    s_and_b64 s[42:43], s[34:35], vcc
    s_andn2_b64 s[36:37], s[34:35], vcc
    v_mov_b32 v{SEL}, 0
    v_mov_b32 v{SEL+1}, 0
    v_cndmask_b32 v{SEL+2}, 0, v7, s[42:43]
    v_cndmask_b32 v{SEL+3}, 0, v7, s[36:37]
    v_mov_b32 v{SEL+4}, 0
    v_mov_b32 v{SEL+5}, 0
    """)
    xloop("K1_x2", XN, 8)
    a("s_waitcnt lgkmcnt(0)")
    a("s_add_u32 s58, s58, 1")
    a("s_barrier")
    p1(1)
    m16 = "v_mfma_f32_16x16x32_bf16"
    SUM = ACC; GR = ACC + 4; NM = 248
    def stat(u):
        xs = f"v[{X+4*u}:{X+4*u+3}]"
        a(f"{m16} v[{SUM}:{SUM+3}], v[{ONE}:{ONE+3}], {xs}, " + ("0" if u == 0 else f"v[{SUM}:{SUM+3}]"))
        a(f"{m16} v[{GR}:{GR+3}], {xs}, {xs}, " + ("0" if u == 0 else f"v[{GR}:{GR+3}]"))
    for u in range(0, 16, 2):
        a(f"s_waitcnt vmcnt({14-u})")
        a(f"ds_read_b128 v[{X+4*u}:{X+4*u+3}], v10 offset:{1024*u}")
        a(f"ds_read_b128 v[{X+4*u+4}:{X+4*u+7}], v10 offset:{1024*u+1024}")
        if u >= 4:
            a("s_waitcnt lgkmcnt(4)")
            stat(u - 4); stat(u - 3)
    a("s_waitcnt lgkmcnt(2)"); stat(12); stat(13)
    a("s_waitcnt lgkmcnt(0)"); stat(14); stat(15)
    RG = 184
    a("s_barrier")
    a("s_lshr_b32 s79, s28, 1")
    a("s_cmp_lg_u32 s79, s6")
    a("s_cbranch_scc1 K1_nokvf")
    for sx in range(16):
        for half in range(2):
            d = RG + 4 * sx + 2 * half
            a(f"ds_read_b64_tr_b16 v[{d}:{d+1}], v{17 if half else 12} offset:{sx*1024}")
    a.label("K1_nokvf")
    a(f"""
    v_and_b32 v7, 1, v2
    v_cmp_eq_u32 vcc, 1, v7
    v_cndmask_b32 v8, v{GR}, v{GR+1}, vcc
    v_cndmask_b32 v9, v{GR+2}, v{GR+3}, vcc
    v_cndmask_b32 v8, 0, v8, s[42:43]
    v_cndmask_b32 v26, v8, v9, s[36:37]
    """)
    for w in (16, 32):
        sum_swap(a, 26, 28, w)
    ln_scalars(a, SUM, 26, 28, 30, 27, 29)
    for r in range(4): a(f"v_sub_f32 v{NM+r}, 0, v28")
    if 'newln' not in dbg:
        NB = 4
        def cen(u, h):
            d = AF + 8 * (u % NB) + 4 * h
            if 'nolnleg' not in dbg:
                return f"v_mfma_f32_16x16x16bf16_1k v[{d}:{d+3}], v[{SEL+2}:{SEL+3}], v[{X+4*u+2*h}:{X+4*u+2*h+1}], v[{NM}:{NM+3}]"
            return f"{m16} v[{d}:{d+3}], v[{SEL+2-2*h}:{SEL+5-2*h}], v[{X+4*u}:{X+4*u+3}], v[{NM}:{NM+3}]"
        def sub(u):
            d = AF + 8 * (u % NB)
            xs = f"v[{X+4*u}:{X+4*u+3}]"
            a(cen(u, 0)); a(cen(u, 1))
        sub(0); sub(1)
        def ln_step(u):
            d = AF + 8 * (u % NB); L = []
            for r in range(4): L.append(f"v_cvt_pk_bf16_f32 v{d+r}, 0, v{d+r}")
            if u + 2 < 16:
                dd = AF + 8 * ((u + 2) % NB); xs = f"v[{X+4*(u+2)}:{X+4*(u+2)+3}]"
                L.append(cen(u + 2, 0))
            for r in range(4, 8): L.append(f"v_cvt_pk_bf16_f32 v{d+r}, 0, v{d+r}")
            if 'lnmul' in dbg:
                for r in range(8): L.append(f"v_mul_f32 v{d+r}, v{d+r}, v30")
            else:
                for r in range(0, 8, 2): L.append(f"v_pk_mul_f32 v[{d+r}:{d+r+1}], v[{d+r}:{d+r+1}], v[30:31] op_sel_hi:[1,0]")
            if u + 2 < 16:
                L.append(cen(u + 2, 1))
            for r in range(4): L.append(f"v_cvt_pk_bf16_f32 v{X+4*u+r}, v{d+2*r}, v{d+2*r+1}")
            return L
        for u in range(16):
            for ins in ln_step(u): a(ins)
    else:
        l16 = "v_mfma_f32_16x16x16bf16_1k"
        ID = f"v[{SEL+2}:{SEL+3}]"
        def A_(u, h):
            d = AF + 8 * (u & 1) + 4 * h
            return f"{l16} v[{d}:{d+3}], {ID}, v[{X+4*u+2*h}:{X+4*u+2*h+1}], v[{NM}:{NM+3}]"
        def R_(u):
            d = AF + 8 * (u & 1)
            return [f"v_cvt_pk_bf16_f32 v{X+4*u+r}, v{d+2*r}, v{d+2*r+1}" for r in range(4)]
        def B_(u, h):
            d = AF + 16 + 8 * (u & 1) + 4 * h
            return f"{l16} v[{d}:{d+3}], {ID}, v[{X+4*u+2*h}:{X+4*u+2*h+1}], 0"
        def S_(u):
            d = AF + 16 + 8 * (u & 1)
            if 'lnmul' in dbg: return [f"v_mul_f32 v{d+r}, v{d+r}, v30\nv_mul_f32 v{d+r+1}, v{d+r+1}, v30" for r in range(0, 8, 2)]
            return [f"v_pk_mul_f32 v[{d+r}:{d+r+1}], v[{d+r}:{d+r+1}], v[30:31] op_sel_hi:[1,0]" for r in range(0, 8, 2)]
        def P_(u):
            d = AF + 16 + 8 * (u & 1)
            return [f"v_cvt_pk_bf16_f32 v{X+4*u+r}, v{d+2*r}, v{d+2*r+1}" for r in range(4)]
        ok = lambda u: 0 <= u < 16
        for st_ in range(-2, 16):
            r = R_(st_ + 1) if ok(st_ + 1) else []
            sc = S_(st_) if ok(st_) else []
            pk = P_(st_) if ok(st_) else []
            seq = []
            if ok(st_ + 2): seq.append(A_(st_ + 2, 0))
            seq += r[:3]
            if ok(st_ + 2): seq.append(A_(st_ + 2, 1))
            seq += r[3:] + sc[:2]
            if ok(st_ + 1): seq.append(B_(st_ + 1, 0))
            seq += sc[2:] + pk[:1]
            if ok(st_ + 1): seq.append(B_(st_ + 1, 1))
            seq += pk[1:]
            for ins in seq: a(ins)
    p1(2)
    KV = ACC + 16
    a(f"""
    v_lshrrev_b32 v9, 1, v4
    v_and_b32 v11, 1, v4
    s_cmp_lg_u32 s79, s6
    s_cbranch_scc1 K1_q
    s_lshr_b32 s35, s80, 15
    s_mul_i32 s35, s35, {TS}
    s_add_u32 s35, s35, {WS_KV:#x}
    s_waitcnt lgkmcnt(0)
    s_bitcmp0_b32 s28, 0
    s_cbranch_scc0 K1_v
    """)
    for sx in range(16):
        a(f"{m16} v[{KV}:{KV+3}], v[{RG+4*sx}:{RG+4*sx+3}], v[{X+4*sx}:{X+4*sx+3}], " + ("0" if sx == 0 else f"v[{KV}:{KV+3}]"))
    a(f"""
    v_and_b32 v8, 31, v5
    v_lshlrev_b32 v8, 4, v8
    v_lshl_add_u32 v8, v9, 9, v8
    s_branch K1_kvs
    """)
    a.label("K1_v")
    for sx in range(16):
        a(f"{m16} v[{KV}:{KV+3}], v[{X+4*sx}:{X+4*sx+3}], v[{RG+4*sx}:{RG+4*sx+3}], " + ("0" if sx == 0 else f"v[{KV}:{KV+3}]"))
    a(f"""
    s_and_b32 s36, s6, 1
    s_mul_i32 s36, s36, 544
    s_add_u32 s35, s35, s36
    s_add_u32 s35, s35, 1024
    v_mul_u32_u24 v8, 272, v9
    v_mov_b32 v{AF}, 0x3f803f80
    v_mov_b32 v{AF+1}, 0x3f803f80
    v_mov_b32 v{AF+2}, 0x3f803f80
    v_mov_b32 v{AF+3}, 0x3f803f80
    s_mov_b32 exec_lo, 1
    s_mov_b32 exec_hi, 1
    buffer_store_dwordx4 v[{AF}:{AF+3}], v8, s[8:11], s35 offen offset:256 sc1
    s_mov_b64 exec, -1
    v_lshl_add_u32 v8, v3, 4, v8
    """)
    a.label("K1_kvs")
    a(f"""
    v_cvt_pk_bf16_f32 v{T}, v{KV}, v{KV+1}
    v_cvt_pk_bf16_f32 v{T+1}, v{KV+2}, v{KV+3}
    v_mov_b32 v{T+2}, v{T}
    v_mov_b32 v{T+3}, v{T+1}
    v_permlane16_swap_b32 v{T}, v{T+2}
    v_permlane16_swap_b32 v{T+1}, v{T+3}
    s_mov_b32 exec_lo, 0xffff
    s_mov_b32 exec_hi, 0xffff
    buffer_store_dwordx4 v[{T}:{T+3}], v8, s[8:11], s35 offen sc1
    s_mov_b64 exec, -1
    v_mov_b32 v7, s58
    v_lshlrev_b32 v8, 14, v2
    s_lshl_b32 s35, s2, {FLS}
    s_add_u32 s35, s35, {WS_FL:#x}
    v_mov_b32 v21, {L_DN}
    """)
    EARLY = 'early' in dbg
    if EARLY: a.label("K1_dn")
    if EARLY: a(f"""
    ds_read_b64 v[22:23], v21
    s_waitcnt vmcnt(0) lgkmcnt(0)
    v_and_b32 v22, v22, v23
    v_cmp_eq_u32 vcc, 0, v22
    s_cbranch_vccnz K1_dn
    s_mov_b64 exec, 0xff
    buffer_store_dword v7, v8, s[8:11], s35 offen sc1
    s_mov_b64 exec, -1
    """)
    a.label("K1_q")
    a("s_barrier")
    p1(3)
    def rd(s, t):
        for half in range(2):
            d = RG + 16 * (s % 3) + 4 * t + 2 * half
            a(f"ds_read_b64_tr_b16 v[{d}:{d+1}], v{13+t} offset:{s*4096 + half*512}")
    for t in range(4): rd(0, t)
    for t in range(4): rd(1, t)
    for s in range(16):
        a(f"s_waitcnt lgkmcnt({8 if s < 15 else 0})")
        for t in range(4):
            d = RG + 16 * (s % 3) + 4 * t
            c = "0" if s == 0 else f"v[{ACC+4*t}:{ACC+4*t+3}]"
            a(f"{m16} v[{ACC+4*t}:{ACC+4*t+3}], v[{d}:{d+3}], v[{X+4*s}:{X+4*s+3}], {c}")
            if s + 2 < 16: rd(s + 2, t)
        if s == PB: a("s_barrier")
        if s == FST and not EARLY:
            a(f"""
            s_cmp_lg_u32 s79, s6
            s_cbranch_scc1 K1_nofl
            s_waitcnt vmcnt(0)
            s_mov_b64 exec, 0xff
            buffer_store_dword v7, v8, s[8:11], s35 offen sc1
            s_mov_b64 exec, -1
            """)
            a.label("K1_nofl")
    a(f"""
    s_lshl_b32 s35, s28, 10
    v_lshrrev_b32 v7, 3, v5
    v_lshlrev_b32 v7, 13, v7
    v_and_b32 v8, 7, v5
    v_lshl_add_u32 v7, v8, 4, v7
    v_lshl_add_u32 v7, v9, 9, v7
    v_lshl_add_u32 v7, v11, 7, v7
    """)
    for tp in range(2):
        for t in (2 * tp, 2 * tp + 1):
            for r in range(4): a(f"v_cvt_pk_bf16_f32 v{ACC+4*t+r}, 0, v{ACC+4*t+r}")
            for r in range(4): a(f"v_mul_f32 v{ACC+4*t+r}, {f2u(0.25 * 1.4426950408889634):#x}, v{ACC+4*t+r}")
            a(f"v_cvt_pk_bf16_f32 v{AF+2*t}, v{ACC+4*t}, v{ACC+4*t+1}")
            a(f"v_cvt_pk_bf16_f32 v{AF+2*t+1}, v{ACC+4*t+2}, v{ACC+4*t+3}")
        b = AF + 4 * tp
        a(f"v_permlane16_swap_b32 v{b}, v{b+2}")
        a(f"v_permlane16_swap_b32 v{b+1}, v{b+3}")
        a(f"buffer_store_dwordx4 v[{b}:{b+3}], v7, s[8:11], s35 offen offset:{256*tp}{SC}")
    a(f"""
    s_cmp_lg_u32 s79, s6
    s_cbranch_scc1 K1_nol
    v_and_b32 v8, 0x3ff, v7
    s_mov_b32 s36, 0x00ff00ff
    s_and_b32 s37, s28, 1
    s_lshl_b32 s37, s37, 3
    s_lshl_b32 exec_lo, s36, s37
    s_mov_b32 exec_hi, exec_lo
    ds_write_b128 v8, v[{AF}:{AF+3}] offset:{L_Q0}
    ds_write_b128 v8, v[{AF+4}:{AF+7}] offset:{L_Q0 + 256}
    s_mov_b64 exec, -1
    """)
    a.label("K1_nol")
    p1(4)
    dstamp(a, 0, True, 200)
    a("s_branch K12_join")
    for k, l in enumerate(a.lines):
        if isinstance(l, Ins):
            t = re.sub(r"\bv(\d+)\b", lambda m: f"v{159 + int(m.group(1))}" if 1 <= int(m.group(1)) <= 15 else m.group(0), l.text)
            if t != l.text: a.lines[k] = Ins(t)
```

```python
from gen import *
import gen as G

L_PART = 0x0; L_Q = 0x6000; L_MREF = 0x8400; L_OB = 0x5800; L_KEY = 0xAC00; L_FLG = 0xAD00; L_ZC = 0xAE00; L_MX = 0xB000; L_HB = 0xB400
L_FW = 0xE000; L_TOTAL = 0xE000 + 8 * 7168
L_XS = L_PART; L_RED = L_PART + 0x1000; L_GB = L_PART + 0x2000
C_EXACT = 0.25 * 1.4426950408889634
OFFS = 96.0

def wave_sum(a, vs, ts):
    if isinstance(vs, int): vs, ts = [vs], [ts]
    for mod in ("quad_perm:[1,0,3,2]", "quad_perm:[2,3,0,1]", "row_half_mirror", "row_mirror"):
        for v in vs:
            a(f"v_add_f32_dpp v{v}, v{v}, v{v} {mod} row_mask:0xf bank_mask:0xf")
    for w in (16, 32):
        for v, t in zip(vs, ts): a(f"v_mov_b32 v{t}, v{v}")
        for v, t in zip(vs, ts): a(f"v_permlane{w}_swap_b32 v{t}, v{v}")
        for v, t in zip(vs, ts): a(f"v_add_f32 v{v}, v{v}, v{t}")

class VM:
    def __init__(self, a): self.a = a; self.q = []; self.done = -1
    def issue(self, tag): self.q.append(tag)
    def wait(self, tag):
        i = max(k for k, t in enumerate(self.q) if t == tag)
        if i <= self.done: return
        self.done = i
        self.a(f"s_waitcnt vmcnt({len(self.q) - 1 - i})")

def wave_max_u32(a, v, t):
    for mod in ("quad_perm:[1,0,3,2]", "quad_perm:[2,3,0,1]", "row_half_mirror", "row_mirror"):
        a(f"v_max_u32_dpp v{v}, v{v}, v{v} {mod} row_mask:0xf bank_mask:0xf")
    for w in (16, 32):
        a(f"""
        v_mov_b32 v{t}, v{v}
        v_permlane{w}_swap_b32 v{t}, v{v}
        v_max_u32 v{v}, v{v}, v{t}
        """)

LOG2E = 1.4426950408889634
def sigmoid(a, d, x, t):
    a(f"""
    v_mul_f32 v{t}, {f2u(-LOG2E):#x}, v{x}
    v_exp_f32 v{t}, v{t}
    v_add_f32 v{t}, 1.0, v{t}
    v_rcp_f32 v{d}, v{t}
    """)

def gen_p2(a, dbg='', prio=True):
    SC = ' sc1'
    OPT = dict(x.split('=') for x in dbg.split(',') if '=' in x)
    FLS = int(OPT.get('fls', 4))
    PFS = int(OPT.get('pfs', 0)); PFP = int(OPT.get('pfp', 1))
    TAILST = 'tailst' in dbg
    FS = 'ffnst' in dbg
    KREP = 'nokrep' not in dbg; GREP = 'nogrep' not in dbg
    def st(i, tail):
        if 'p1st' in dbg:
            if tail == 4: stamp(a, i)
        elif 'r0st' in dbg:
            if tail == 3: stamp(a, i)
        elif FS:
            if tail == 2: stamp(a, i)
        elif tail in (True, False) and bool(tail) == TAILST: stamp(a, i)
    K = 16; V = 48; X = [112, 128]; O = 144; CM = 160; SP = 176; Q = 184; OA = 188; WF = 204; BF = 236; S1 = 240
    vQA, vPW, vPR, vPL, vOW, vOR, vLM, vWL, vKL, vVL = 1, 2, 3, 4, 5, 6, 7, 8, 9, 10
    t0, t1, t2, t3, t4 = 11, 12, 13, 14, 15
    vFW, vFR, vFV, vWLs = 9, 13, 14, 15
    vFS, vPA, vPD = SP + 4, SP + 5, SP + 6
    a.label("K12_setup")
    a(f"""
    s_load_dwordx2 s[48:49], s[0:1], 96
    s_load_dwordx2 s[40:41], s[0:1], 0
    s_load_dwordx8 s[60:67], s[0:1], 48
    s_load_dwordx2 s[46:47], s[0:1], 80
    s_waitcnt lgkmcnt(0)
    """)
    a.label("K12_setup1")
    a(f"""
    s_and_b32 s3, s2, 7
    s_lshr_b32 s4, s2, 3
    s_lshl_b32 s7, s3, 8
    s_lshl_b32 s5, s4, 3
    s_add_u32 s7, s7, s5           ; T0
    s_and_b32 s28, s4, 7           ; rot
    v_lshrrev_b32 v{t0}, 6, v0
    v_and_b32 v0, 63, v0
    v_readfirstlane_b32 s6, v{t0}
    s_mov_b32 s30, 0
    v_lshlrev_b32 v{vWL}, 4, v0
    s_mul_i32 s3, s6, {8*TS}
    s_add_u32 s3, s3, {WS_KV:#x}
    """)
    for t in range(8):
        a(f"""
        s_add_u32 s4, s28, {t}
        s_and_b32 s4, s4, 7
        s_mul_i32 s4, s4, {TS}
        s_add_u32 s{50+t}, s3, s4
        """)
    a.label("K2_restart")
    a(f"""
    s_add_u32 s44, s6, 4
    s_and_b32 s44, s44, 7
    s_add_u32 s3, s44, s28
    s_and_b32 s3, s3, 7
    s_andn2_b32 s45, s2, 0x38
    s_lshl_b32 s4, s3, 3
    s_or_b32 s45, s45, s4
    s_lshl_b32 s45, s45, 6
    s_lshr_b32 s4, s28, 1
    s_lshl_b32 s4, s4, 2
    s_add_u32 s45, s45, s4
    s_add_u32 s45, s45, {WS_FQ:#x}
    s_add_u32 s3, s3, s7
    s_lshl_b32 s32, s3, 10
    v_and_b32 v{t1}, 31, v0
    v_lshrrev_b32 v{t2}, 5, v0
    v_mul_u32_u24 v{vVL}, 272, v{t2}
    v_lshl_add_u32 v{vVL}, v{t1}, 4, v{vVL}
    v_cmp_lt_u32 vcc, 16, v{t1}
    v_bfrev_b32 v{t0}, 1
    v_add_u32 v{vQA}, {L_Q:#x}, v{vWL}
    v_cndmask_b32 v{vVL}, v{vVL}, v{t0}, vcc
    """)
    srd(a, 8, 48, 49, WS_SIZE)
    vm = VM(a)
    def ldK(t):
        a(f"buffer_load_dwordx4 v[{K+4*t}:{K+4*t+3}], v{vWL}, s[8:11], s{50+t} offen{SC}"); vm.issue(f"K{t}")
    def ldV(t):
        if 'vmask' in dbg:
            a("s_mov_b32 exec_lo, 0x1ffff"); a("s_mov_b32 exec_hi, 0x1ffff")
            for h in range(2):
                a(f"buffer_load_dwordx4 v[{V+8*t+4*h}:{V+8*t+4*h+3}], v{vVL}, s[8:11], s{50+t} offen offset:{1024 + 544*h}{SC}"); vm.issue(f"V{t}{h}")
            a("s_mov_b64 exec, -1")
            return
        for h in range(2):
            a(f"buffer_load_dwordx4 v[{V+8*t+4*h}:{V+8*t+4*h+3}], v{vVL}, s[8:11], s{50+t} offen offset:{1024 + 544*h}{SC}"); vm.issue(f"V{t}{h}")
    a(f"""
    s_lshl_b32 s3, s44, 10
    v_add_u32 v{t4}, s3, v{vQA}
    """)
    def late_setup(part):
        u0, u1, u2, u3 = S1, S1 + 1, S1 + 2, S1 + 3
        if part == 0:
            srd(a, 16, 40, 41, 0x200000)
            srd(a, 20, 46, 47, 0x200000)
            srd(a, 24, 60, 61, 0x400)
            a(f"""
            v_and_b32 v{u1}, 31, v0
            v_lshrrev_b32 v{u2}, 5, v0
            v_mul_u32_u24 v{vPW}, 80, v{u1}
            s_mul_i32 s3, s6, 2560
            v_add_u32 v{vPW}, s3, v{vPW}
            v_lshl_add_u32 v{SP+3}, v{u2}, 2, v{vPW}
            v_lshl_add_u32 v{vPW}, v{u2}, 4, v{vPW}
            v_lshrrev_b32 v{u0}, 4, v0     ; g
            s_lshr_b32 s3, s6, 1
            s_lshl_b32 s3, s3, 3
            s_and_b32 s4, s6, 1
            s_lshl_b32 s4, s4, 1
            s_add_u32 s3, s3, s4
            v_and_b32 v{u1}, 1, v{u0}
            v_lshl_add_u32 v{u1}, v{u1}, 2, v{u2}
            v_add_u32 v{u1}, s3, v{u1}     ; n = 8*(w>>1) + 2*(w&1) + (g>>1) + 4*(g&1)
            v_mul_u32_u24 v{vPL}, 80, v{u1}
            v_and_b32 v{u2}, 15, v0        ; d
            v_lshl_add_u32 v{vPR}, v{u2}, 2, v{vPL}
            v_and_b32 v{u3}, 7, v0
            v_mul_u32_u24 v{u3}, 2560, v{u3}
            v_add3_u32 v{vPL}, v{vPL}, v{u3}, 64
            s_lshl_b32 s31, s28, 16
            s_lshl_b32 s33, s6, 13
            s_add_u32 s33, s33, {WS_WOF:#x}
            """)
        elif part == 1:
            a(f"""
            v_and_b32 v{u3}, 7, v{u1}      ; token
            v_lshrrev_b32 v{u1}, 3, v{u1}  ; head_local
            v_mul_u32_u24 v{vOW}, 144, v{u3}
            v_lshl_add_u32 v{vOW}, v{u1}, 5, v{vOW}
            v_lshl_add_u32 v{vOW}, v{u2}, 1, v{vOW}
            v_add_u32 v{vOW}, {L_OB:#x}, v{vOW}
            v_and_b32 v{u3}, 7, v0
            v_mul_u32_u24 v{vOR}, 144, v{u3}
            v_lshl_add_u32 v{vOR}, v{u0}, 4, v{vOR}
            v_add_u32 v{vOR}, {L_OB:#x}, v{vOR}
            {"" if 'nozc' in dbg else f"v_and_b32 v{u1}, 8, v0"}
            {"" if 'nozc' in dbg else f"v_cmp_ne_u32 vcc, 0, v{u1}"}
            {"" if 'nozc' in dbg else f"v_mov_b32 v{u1}, {L_ZC:#x}"}
            {"" if 'nozc' in dbg else f"v_cndmask_b32 v{vOR}, v{vOR}, v{u1}, vcc"}
            v_mov_b32 v{vLM}, 0
            v_lshlrev_b32 v{vFR}, 2, v{u3}
            v_add_u32 v{vFR}, {L_FLG:#x}, v{vFR}
            """)
        else:
            a(f"v_pk_mov_b32 v[{SP}:{SP+1}], 0, 0")
            a(f"v_mov_b32 v{SP+2}, 0xdddddddd")
    def rd_qcm():
        a(f"ds_read_b128 v[{Q}:{Q+3}], v{vQA}")
        for k in range(4):
            a(f"ds_read_b128 v[{CM+4*k}:{CM+4*k+3}], v{vQA} offset:{L_MREF - L_Q}")
        a(f"v_add_u32 v{vQA}, 1024, v{vQA}")
    mf = "v_mfma_f32_32x32x16_bf16"
    def M1(kt, xb):
        if 'nom1' in dbg: a("s_nop 1"); return
        a(f"{mf} v[{X[xb]}:{X[xb]+15}], v[{K+4*kt}:{K+4*kt+3}], v[{Q}:{Q+3}], v[{CM}:{CM+15}]")
    def E(xb, lo, hi):
        for r in range(lo, hi):
            if 'expnop' in dbg:
                a("v_nop"); a("v_nop")
                continue
            if 'noexp' in dbg:
                a(f"v_cvt_pk_bf16_f32 v{X[xb]+r}, 0, v{X[xb]+r}"); a(f"v_cvt_pk_bf16_f32 v{X[xb]+r}, 0, v{X[xb]+r}")
                continue
            a(f"v_exp_f32 v{X[xb]+r}, v{X[xb]+r}")
    def C2(h, xb):
        for k in range(4):
            a(f"v_cvt_pk_bf16_f32 v{SP+4*h+k}, v{X[xb]+8*h+2*k}, v{X[xb]+8*h+2*k+1}")
    def M3(h, kt):
        xb = kt & 1
        if 'nom3' in dbg: a("s_nop 2"); return
        a(f"v_smfmac_f32_32x32x32_bf16 v[{O}:{O+15}], v[{V+8*kt+4*h}:{V+8*kt+4*h+3}], v[{X[xb]+8*h}:{X[xb]+8*h+7}], v{SP+2}")
    def Ozero():
        a(f"v_mfma_f32_32x32x8bf16_1k v[{O}:{O+15}], v[{SP}:{SP+1}], v[{SP}:{SP+1}], 0")
    def part_write():
        a(f"""
        ds_write_b128 v{vPW}, v[{O}:{O+3}]
        ds_write_b128 v{vPW}, v[{O+4}:{O+7}] offset:32
        ds_write_b32 v{SP+3}, v{O+8} offset:64
        """)
    def s1_read():
        a(f"ds_read_b32 v{S1+8}, v{vPL}")
        for k in range(4):
            a(f"ds_read2st64_b32 v[{S1+2*k}:{S1+2*k+1}], v{vPR} offset0:{20*k} offset1:{20*k+10}")
    def s1_calc():
        dp = lambda mod: f"v_add_f32_dpp v{S1+8}, v{S1+8}, v{S1+8} {mod} row_mask:0xf bank_mask:0xf"
        pa = (lambda x, y: f"v_add_f32 v{x}, v{x}, v{y}\nv_add_f32 v{x+1}, v{x+1}, v{y+1}") if 's1sc' in dbg else \
             (lambda x, y: f"v_pk_add_f32 v[{x}:{x+1}], v[{x}:{x+1}], v[{y}:{y+1}]")
        a(f"""
        {dp("quad_perm:[1,0,3,2]")}
        {pa(S1, S1+2)}
        {pa(S1+4, S1+6)}
        {dp("quad_perm:[2,3,0,1]")}
        {pa(S1, S1+4)}
        v_add_f32 v{S1}, v{S1}, v{S1+1}
        {dp("row_half_mirror")}
        v_rcp_f32 v{S1+1}, v{S1+8}
        v_maximum3_f32 v{vLM}, v{vLM}, v{S1+8}, abs(v{S1})
        v_mul_f32 v{S1}, v{S1}, v{S1+1}
        v_cvt_pk_bf16_f32 v{S1}, v{S1}, v{S1}
        ds_write_b16 v{vOW}, v{S1}
        """)
    def s2_read():
        for s in range(2):
            a(f"ds_read_b128 v[{BF+4*s}:{BF+4*s+3}], v{vOR} offset:{64*s}")
    def s2_mma(lo, hi):
        for u in range(lo, hi):
            s, t = u >> 2, u & 3
            a(f"v_mfma_f32_16x16x32_bf16 v[{OA+4*t}:{OA+4*t+3}], v[{WF+4*u}:{WF+4*u+3}], v[{BF+4*s}:{BF+4*s+3}], v[{OA+4*t}:{OA+4*t+3}]")
    def wf_load(lo, hi):
        if lo == 0:
            a("s_add_u32 s34, s33, s31")
            a("s_add_u32 s35, s34, 4096")
            a("s_add_u32 s31, s31, 0x10000")
            a("s_and_b32 s31, s31, 0x7ffff")
        for u in range(lo, hi):
            a(f"buffer_load_dwordx4 v[{WF+4*u}:{WF+4*u+3}], v{vWL}, s[8:11], s{34 + (u >> 2)} offen offset:{1024*(u&3)}{'' if 'wfpl' in dbg else ' nt' if 'wfnt' in dbg else SC}")
            vm.issue("WF")
    def ffn_prefetch():
        a(f"""
        s_mov_b32 s39, s6
        s_cmp_eq_u32 s39, 1
        s_cselect_b64 s[36:37], s[64:65], s[62:63]
        s_cmp_eq_u32 s39, 2
        s_cselect_b64 s[36:37], s[66:67], s[36:37]
        """)
        srd(a, 12, 36, 37, 512 * 1792 * 2)
        a(f"""
        s_and_b32 s3, s2, 7
        s_lshr_b32 s4, s2, 3
        s_mul_i32 s5, s4, {16*3584}
        s_mul_i32 s36, s3, 448
        s_and_b32 s36, s36, 0xffffff80
        s_add_u32 s5, s5, s36
        s_lshl_b32 s36, s3, 7
        s_mul_i32 s37, s4, {56*1024}
        s_add_u32 s36, s36, s37
        v_lshrrev_b32 v{t0}, 2, v0
        v_mul_u32_u24 v{t0}, 3584, v{t0}
        v_and_b32 v{t1}, 3, v0
        v_lshl_add_u32 v{t0}, v{t1}, 7, v{t0}
        v_min_u32 v{t1}, 55, v0
        v_lshlrev_b32 v{t1}, 10, v{t1}
        s_cmp_eq_u32 s39, 2
        s_cselect_b32 s38, s36, s5
        s_cselect_b64 vcc, -1, 0
        v_cndmask_b32 v{vPA}, v{t0}, v{t1}, vcc
        s_lshl_b32 s39, s6, {PFS}
        s_add_u32 s39, s39, 1
        s_cmp_gt_u32 s6, 2
        s_cselect_b32 s39, 99, s39
        """)
    def ffn_setup():
        a(f"""
        s_and_b32 s3, s2, 7
        s_lshr_b32 s4, s2, 3
        s_and_b32 s5, s6, 1
        s_cmp_eq_u32 s5, 0
        s_cselect_b64 s[36:37], s[62:63], s[64:65]
        s_cmp_lt_u32 s2, 112
        s_cselect_b64 s[36:37], s[36:37], s[66:67]
        """)
        srd(a, 68, 36, 37, 512 * 1792 * 2)
        a(f"""
        s_mul_i32 s76, s3, 14
        s_add_u32 s76, s76, s4           ; fs
        s_lshl_b32 s77, s3, 2
        s_add_u32 s77, s77, s4
        s_sub_u32 s77, s77, 14           ; cb
        s_lshr_b32 s5, s6, 1
        s_mul_i32 s5, s5, {128*3584}
        s_lshl_b32 s36, s76, 5
        s_add_u32 s5, s5, s36
        s_mul_i32 s36, s6, {224*1024}
        s_lshl_b32 s37, s77, 5
        s_add_u32 s36, s36, s37
        s_cmp_lt_u32 s2, 112
        s_cselect_b32 s72, s5, s36
        s_movk_i32 s73, 1024
        s_cselect_b32 s73, 3584, s73
        s_cselect_b32 s75, 4, 7
        s_cmp_lt_u32 s2, 144
        s_cselect_b32 s75, s75, 0
        s_mul_i32 s74, s6, 7168
        s_add_u32 s74, s74, {L_FW:#x}
        v_lshrrev_b32 v{vFS}, 1, v0
        v_mul_lo_u32 v{vFS}, v{vFS}, s73
        v_and_b32 v{t1}, 1, v0
        v_lshl_add_u32 v{vFS}, v{t1}, 4, v{vFS}
        s_lshl_b32 s73, s73, 5
        s_mov_b32 s78, s74
        """)
    def ffn_stage():
        a(f"""
        s_cmp_lt_u32 s29, 4
        s_cbranch_scc1 K2_nost
        """)
        for e in range(2):
            a(f"""
            s_cmp_eq_u32 s75, 0
            s_cbranch_scc1 K2_nost
            s_mov_b32 m0, s78
            s_sub_u32 s75, s75, 1
            buffer_load_dwordx4 v{vFS}, s[68:71], s72 offen lds
            s_add_u32 s78, s78, 1024
            s_add_u32 s72, s72, s73
            """)
        a.label("K2_nost")
    def ffn_issue():
        a(f"""
        s_cmp_lg_u32 s29, s39
        s_cbranch_scc1 K2_nopf
        buffer_load_dword v{vPD}, v{vPA}, s[12:15], s38 offen
        """)
        a.label("K2_nopf")
    def setprio(p):
        if prio: a(f"s_setprio {p}")
    def mref_mma(q, d):
        a(f"{mf} v[{d}:{d+15}], v[{K}:{K+3}], v[{q}:{q+3}], 0")
        a(f"{mf} v[{d+16}:{d+31}], v[{K+4}:{K+7}], v[{q}:{q+3}], 0")
    def mref_max(S):
        a(f"v_max3_f32 v{t0}, v{S}, v{S+1}, v{S+2}")
        for r in range(3, 31, 2):
            a(f"v_max3_f32 v{t0}, v{t0}, v{S+r}, v{S+r+1}")
        a(f"""
        v_max_f32 v{t0}, v{t0}, v{S+31}
        v_mov_b32 v{t1}, v{t0}
        v_permlane32_swap_b32 v{t1}, v{t0}
        v_max_f32 v{t0}, v{t0}, v{t1}
        """)
        for r in range(4): a(f"v_sub_f32 v{S+r}, {f2u(-OFFS):#x}, v{t0}")
        a(f"ds_write_b128 v{t4}, v[{S}:{S+3}] offset:{L_MREF - L_Q}")
    def kv_first():
        ldK(0); ldK(1); ldV(0); ldK(2); ldV(1)
    for p in range(3): late_setup(p)
    ffn_prefetch(); ffn_setup()
    a(f"""
    s_lshl_b32 s3, s6, 2
    s_add_u32 s3, s3, {L_FLG:#x}
    v_mov_b32 v{vFW}, s3
    s_movk_i32 s59, {L_Q + 2048:#x}
    s_lshl_b32 s3, s30, 2
    s_or_b32 s3, s3, s6
    s_cmp_lt_u32 s3, 4
    s_cbranch_scc1 K1_comp
    """)
    a.label("K12_join")
    for r in range(0, 16, 2):
        a(f"v_pk_mov_b32 v[{OA+r}:{OA+r+1}], 0, 0")
    a(f"""
    s_min_u32 s3, s75, 4
    s_bfm_b32 s43, s3, 4
    s_sub_u32 s3, s75, s3
    s_bfm_b32 s42, s3, 5
    """)
    def fq_store():
        a(f"""
        v_mov_b32 v{t0}, s58
        s_lshl_b32 s3, s2, 6
        s_lshl_b32 s4, s6, 2
        s_add_u32 s3, s3, s4
        s_add_u32 s3, s3, {WS_FQ:#x}
        s_waitcnt vmcnt(7)
        s_mov_b64 exec, 1
        buffer_store_dword v{t0}, v{SP}, s[8:11], s3 offen sc1
        s_mov_b64 exec, -1
        """)
        vm.issue("FQS")
    if 'ps' in dbg.split(','):
        a(f"""
        s_lshl_b32 s3, s30, 3
        s_or_b32 s3, s3, s6
        s_cmp_lg_u32 s3, 4
        s_cbranch_scc1 K2_nb2
        s_waitcnt vmcnt(0)
        s_barrier
        """)
        a.label("K2_nb2")
    a(f"""
    ds_write2_b32 v{vFW}, v{SP}, v{SP} offset0:0 offset1:8
    ds_write2_b32 v{vFW}, v{SP}, v{SP} offset0:64 offset1:80
    s_cmp_lg_u32 s30, 0
    s_cbranch_scc1 K2_safe
    s_cmp_eq_u32 s6, 4
    s_cbranch_scc1 K2_poller
    s_waitcnt lgkmcnt(0)
    s_barrier
    """)
    st(1, False); st(5, 4)
    if 'amp' in dbg: a('s_memrealtime s[88:89]'); a('s_waitcnt lgkmcnt(0)')
    kv_first()
    fq_store()
    a("s_branch K2_go")
    a.label("K2_poller")
    PA, PB = X[0], X[0] + 8
    a(f"""
    v_lshlrev_b32 v{t1}, {FLS}, v0
    s_and_b32 s3, s2, 7
    s_lshl_b32 s3, s3, 14
    s_add_u32 s3, s3, {WS_FL:#x}
    s_add_u32 s4, s3, {64 << FLS}
    s_add_u32 s5, s3, {128 << FLS}
    s_add_u32 s34, s3, {192 << FLS}
    s_mov_b32 s36, 0
    """)
    def fissue(b):
        for k, sr in enumerate(("s3", "s4", "s5", "s34")):
            a(f"buffer_load_dword v{b+k}, v{t1}, s[8:11], {sr} offen sc1")
    def fchk(b):
        for r in range(4): a(f"v_xor_b32 v{b+r}, s58, v{b+r}")
        a(f"""
        v_or3_b32 v{b}, v{b}, v{b+1}, v{b+2}
        v_or_b32 v{b}, v{b}, v{b+3}
        v_cmp_ne_u32 vcc, 0, v{b}
        s_cbranch_vccz K2_sync0
        """)
    if int(OPT.get('fd', 0)): a(f"s_sleep {OPT.get('fd', 0)}")
    if 'fnp' in dbg:
        a.label("K2_fl")
        fissue(PA); a("s_waitcnt vmcnt(0)"); fchk(PA)
        a(f"s_sleep {OPT.get('fsl', 2)}")
    else:
        fissue(PA)
        a("s_sleep 3")
        a.label("K2_fl")
        fissue(PB); a("s_waitcnt vmcnt(4)"); fchk(PA)
        fissue(PA); a("s_waitcnt vmcnt(4)"); fchk(PB)
    a(f"""
    s_add_u32 s36, s36, 1
    s_cmp_lt_u32 s36, 0x40000
    s_cbranch_scc1 K2_fl
    """)
    a.label("K2_sync0")
    st(4, 4)
    a(f"""
    s_cmp_lg_u32 s2, 0
    s_cbranch_scc1 K2_sync1
    v_mov_b32 v{t0}, s58
    s_mov_b32 s3, {WS_EP:#x}
    s_mov_b64 exec, 1
    buffer_store_dword v{t0}, v{SP}, s[8:11], s3 offen sc1
    s_mov_b64 exec, -1
    """)
    a.label("K2_sync1")
    vm.q = []; vm.done = -1
    ldK(0); ldK(1)
    a("s_waitcnt lgkmcnt(0)")
    a("s_barrier")
    st(1, False); st(5, 4)
    if 'amp' in dbg: a('s_memrealtime s[88:89]'); a('s_waitcnt lgkmcnt(0)')
    a(f"ds_read_b128 v[{Q}:{Q+3}], v{vQA}")
    ldV(0); ldK(2); ldV(1)
    a("s_waitcnt vmcnt(5) lgkmcnt(0)")
    mref_mma(Q, X[0]); mref_max(X[0])
    fq_store()
    a("s_branch K2_go")
    a.label("K2_safe")
    S = X[0]
    a(f"""
    v_and_b32 v{t0}, 31, v0
    v_lshlrev_b32 v{S1+4}, 2, v{t0}
    v_add_u32 v{S1+4}, {L_MX:#x}, v{S1+4}
    s_lshl_b32 s3, s44, 7
    v_add_u32 v{S1+5}, s3, v{S1+4}
    v_mov_b32 v{t0}, 0xff800000
    ds_write_b32 v{S1+5}, v{t0}
    s_waitcnt vmcnt(0) lgkmcnt(0)
    s_barrier
    v_mov_b32 v{t1}, v{vQA}
    s_mov_b32 s29, 0
    """)
    a.label("K2_safe_loop")
    a(f"""
    ds_read_b128 v[{BF}:{BF+3}], v{t1}
    v_mov_b32 v{t0}, 0xff800000
    s_waitcnt lgkmcnt(0)
    """)
    for t in range(8):
        a(f"v_mfma_f32_32x32x16_bf16 v[{S}:{S+15}], v[{K+4*t}:{K+4*t+3}], v[{BF}:{BF+3}], 0")
        for r in range(0, 16, 2):
            a(f"v_max3_f32 v{t0}, v{t0}, v{S+r}, v{S+r+1}")
    a(f"""
    ds_max_f32 v{S1+4}, v{t0}
    v_add_u32 v{t1}, 1024, v{t1}
    v_add_u32 v{S1+4}, 128, v{S1+4}
    s_add_u32 s29, s29, 1
    s_cmp_lt_u32 s29, 8
    s_cbranch_scc1 K2_safe_loop
    s_waitcnt lgkmcnt(0)
    s_barrier
    ds_read_b32 v{t0}, v{S1+5}
    s_waitcnt lgkmcnt(0)
    """)
    for r in range(4): a(f"v_sub_f32 v{BF+r}, 0, v{t0}")
    a(f"ds_write_b128 v{t4}, v[{BF}:{BF+3}] offset:{L_MREF - L_Q}")
    a.label("K2_go")
    a("s_waitcnt lgkmcnt(0)")
    a("s_barrier")
    st(2, False)
    rd_qcm()
    vm.wait("K0")
    a("s_waitcnt lgkmcnt(0)")
    M1(0, 0)
    a("s_mov_b32 s29, 1")
    P0 = OPT.get('p0', '33322111')
    setprio(int(P0[0]))
    LA = int(OPT.get('la', 0))
    for k in range(LA + 1):
        ldK(3 + k); ldV(2 + k)
    st(3, False)
    if 'leak' in dbg or 'amp' in dbg: a('s_memrealtime s[94:95]'); a('s_waitcnt lgkmcnt(0)')
    def tile(i, hook):
        xb = i & 1; xn = xb ^ 1
        hook(i, 'a')
        E(xb, 0, 2)
        hook(i, 'm3b')
        E(xb, 2, 5)
        hook(i, 'm1')
        M1((i + 1) & 7, xn)
        hook(i, 0)
        if i == 0:
            E(xb, 5, 12)
            hook(i, 1)
            Ozero()
            E(xb, 12, 16)
            M3(0, i)
            hook(i, 2)
        else:
            E(xb, 5, 8)
            hook(i, 'e1')
            E(xb, 8, 10)
            hook(i, 1)
            M3(0, i)
            hook(i, 2)
            E(xb, 10, 13)
            hook(i, 'e2')
            E(xb, 13, 15)
            hook(i, 'e3')
            E(xb, 15, 16)
    def hook0(i, pos):
        if pos == 'a' and i in (0, 2, 4, 6): st(1 + i // 2, 3)
        if pos == 'a' and i > 0 and P0[i] != P0[i - 1]: setprio(int(P0[i]))
        if pos == 'm3b' and i > 0:
            vm.wait(f"V{i-1}1"); M3(1, i - 1)
        if pos == 'm1':
            if i < 7: vm.wait(f"K{i+1}")
            else: a("s_waitcnt lgkmcnt(0)")
        if pos == 0:
            if i + 4 + LA <= 7: ldK(i + 4 + LA)
            if i + 3 + LA <= 7: ldV(i + 3 + LA)
            if i == 6: wf_load(0, 4)
            if i == 7: wf_load(4, 8)
        QT = int(OPT.get('qt', 1))
        if pos == 'e1' and i == QT:
            a(f"buffer_load_dword v{t0}, v{SP}, s[8:11], s45 offen sc1"); vm.issue("FQ")
        if pos == 'e1' and i == QT + 1:
            vm.wait("FQ")
            a(f"v_cmp_ne_u32 vcc, s58, v{t0}")
            a("s_cbranch_vccnz K2_qspin")
            a.label("K2_qback")
            a(f"buffer_load_dwordx4 v[{BF}:{BF+3}], v{vWL}, s[8:11], s32 offen sc1"); vm.issue("Q")
        if pos == 'e2' and i == int(OPT.get('qw', 4)):
            vm.wait("Q")
            a(f"ds_write_b128 v{t4}, v[{BF}:{BF+3}]")
            mref_mma(BF, WF)
        if pos == 'e1' and i == int(OPT.get('qw', 4)) + 1:
            a("s_cmp_lg_u32 s30, 0")
            a("s_cbranch_scc1 K2_keepm")
            mref_max(WF)
            a.label("K2_keepm")
        if pos == 1:
            if i == 6:
                a("s_waitcnt lgkmcnt(0)"); a("s_barrier"); rd_qcm()
            vm.wait(f"V{i}0")
        if pos == 2 and i == 7:
            vm.wait("V71")
    for i in range(8): tile(i, hook0)
    st(5, 3)
    a.raw(".p2align 3")
    a.label("K2_round")
    spins = []
    def poll(off):
        if 'xchk' in dbg: return
        a(f"ds_read_b32 v{vFV}, v{vFR} offset:{off}")
    def check(off):
        if 'xchk' in dbg: return
        k = len(spins); spins.append(off)
        a(f"""
        s_waitcnt lgkmcnt(0)
        v_cmp_gt_u32 vcc, s59, v{vFV}
        s_cbranch_vccnz K2_spin{k}
        """)
        a.label(f"K2_back{k}")
    PR = dict(x.split('=') for x in dbg.split(',') if '=' in x).get('pr', 'c')
    def hook(i, pos):
        if pos == 'm3b': M3(1, (i - 1) & 7)
        if pos == 'm1' and i == 7: a("s_waitcnt lgkmcnt(0)")
        if pos == 1 and i == 6: rd_qcm()
        if 'nohook' in dbg: return
        if 'bar' in dbg.split(','):
            if pos == 'a' and i in (0, 6, 7): setprio({6: 2, 7: 1, 0: 0}[i])
            if i == 0 and pos == 1: part_write()
            if i == 1 and pos == 0:
                a("s_waitcnt lgkmcnt(0)"); a("s_barrier"); setprio(2); s1_read()
            if i == 2 and pos == 0:
                a("s_waitcnt lgkmcnt(0)"); s1_calc(); setprio(1)
            if i == 3 and pos == 0: setprio(0)
            if i == 4 and pos == 0:
                a("s_waitcnt vmcnt(0) lgkmcnt(0)"); a("s_barrier"); setprio(3); s2_read()
            seq = [(4, 'e3'), (5, 'e1'), (5, 'e2'), (5, 'e3'), (6, 'e1'), (6, 'e2'), (6, 'e3'), (7, 'e1')]
        else:
            ca = int(OPT.get('ca', 2)); cb = int(OPT.get('cb', 5)); PT = OPT.get('pt', '10220332')
            slots = [(t, p) for t in range(1, 8) for p in (('a', 'e1', 'e2', 'e3') if cb >= 6 else ('e1', 'e2', 'e3'))]
            if i == 0 and pos == 1:
                if 'xpw' not in dbg: part_write()
                a(f"ds_write_b32 v{vFW}, v{vQA}")
            if i == ca and pos == 0: poll(0)
            if i == ca and pos == 2:
                check(0)
                if 'xs1' not in dbg: s1_read()
            if i == ca + 1 and pos == {'0': 0, '1': 'e1', '2': 'e2', '3': 'a'}[OPT.get('s1p', '3')]:
                a("s_waitcnt lgkmcnt(0)")
                if 'xs1' not in dbg: s1_calc()
                a(f"ds_write_b32 v{vFW}, v{vQA} offset:32")
            if i == cb - 1 and pos == 2: poll(32)
            if i == cb and pos == 'm1':
                check(32); s2_read(); a("s_waitcnt vmcnt(0)")
            if i == int(OPT.get('stp', 2)) and pos == 'e1' and 'nopf' not in dbg:
                a("s_bitcmp1_b32 s43, s29"); a("s_cbranch_scc1 K2_stg"); a.label("K2_stgb")
            if len(PT) == 8: PT = "".join(ch * 2 for ch in PT)
            for hpos, k in (('a', 2 * i), (2, 2 * i + 1)):
                if pos == hpos and PT[k] != PT[k - 1]: setprio(int(PT[k]))
            av = [x for x in slots if x > (cb, 'e1')]
            if OPT.get('sp', '0') == '1' and len(av) >= 12: av = [x for x in av if x[1] != 'e3']
            seq = av[:8]
            while len(seq) < 8: seq = sorted(seq + [seq[len(seq) % len(av)]])
        for u in [k for k, x in enumerate(seq) if x == (i, pos)]:
            if u == 0: a("s_waitcnt lgkmcnt(0)")
            if 'xmma' not in dbg: s2_mma(u, u + 1)
            if 'nowf' not in dbg: wf_load(u, u + 1)
            if u == 7 and 'nopf' not in dbg and PFP == 1:
                a("s_cmp_eq_u32 s29, s39"); a("s_cbranch_scc1 K2_side"); a.label("K2_sideb")
    for i in range(8): tile(i, hook)
    if 'rndst' in dbg:
        a(f"""
        s_memtime s[82:83]
        s_memrealtime s[100:101]
        s_waitcnt lgkmcnt(0)
        s_lshl_b32 s84, s2, 3
        s_add_u32 s84, s84, s6
        s_lshl_b32 s84, s84, 3
        s_add_u32 s84, s84, s29
        s_lshl_b32 s84, s84, 3
        s_add_u32 s84, s84, {WS_STAMP + 0x40000:#x}
        s_mov_b64 exec, 1
        v_mov_b32 v{S1+8}, s82
        v_mov_b32 v{S1+9}, s100
        v_mov_b32 v{S1+10}, 0
        buffer_store_dwordx2 v[{S1+8}:{S1+9}], v{S1+10}, s[8:11], s84 offen
        s_mov_b64 exec, -1
        """)
    a(f"""
    s_addk_i32 s59, 1024
    s_add_u32 s29, s29, 1
    s_cmp_lt_u32 s29, 8
    s_cbranch_scc1 K2_round
    """)
    st(4, False); st(0, True)
    if 'amp' in dbg: a('s_memrealtime s[98:99]'); a('s_waitcnt lgkmcnt(0)')
    M3(1, 7)
    XR = CM; WR = CM + 4; HV = X[0]; HN = X[0] + 8; PK = X[1]; ST = X[1] + 8
    a(f"""
    s_add_u32 s3, s7, s6
    s_lshl_b32 s4, s3, 10
    buffer_load_dwordx4 v[{XR}:{XR+3}], v{vWL}, s[16:19], s4 offen
    buffer_load_dwordx4 v[{WR}:{WR+3}], v{vWL}, s[24:27], 0 offen
    v_and_b32 v{t0}, 7, v0
    v_mul_u32_u24 v{t0}, 1040, v{t0}
    v_lshrrev_b32 v{t1}, 4, v0
    v_lshl_add_u32 v{t0}, v{t1}, 3, v{t0}
    s_lshl_b32 s5, s6, 7
    s_add_u32 s5, s5, {L_HB:#x}
    v_add_u32 v{t0}, s5, v{t0}
    s_mul_i32 s5, s6, 1040
    s_add_u32 s5, s5, {L_HB:#x}
    v_add_u32 v{t1}, s5, v{vWL}
    s_lshl_b32 s35, s6, 2
    s_add_u32 s35, s35, {L_KEY:#x}
    v_mov_b32 v{t4}, s35
    v_and_b32 v{t3}, 7, v0
    v_lshlrev_b32 v{t3}, 2, v{t3}
    v_add_u32 v{t3}, {L_KEY:#x}, v{t3}
    """)
    part_write()
    a("s_waitcnt lgkmcnt(0)"); a("s_barrier"); st(1, True); s1_read()
    a("s_waitcnt lgkmcnt(0)"); s1_calc()
    a(f"""
    v_mov_b32 v{t2}, {f2u(2.0**124):#x}
    v_cmp_nlt_f32 vcc, v{vLM}, v{t2}
    s_cmp_lg_u64 vcc, 0
    s_cselect_b32 s5, 1, 0
    v_mov_b32 v{t2}, s5
    ds_write_b32 v{t4}, v{t2} offset:32
    """)
    a("s_waitcnt vmcnt(2) lgkmcnt(0)"); a("s_barrier"); st(2, True); s2_read()
    a(f"ds_read_b32 v{t2}, v{t3} offset:32")
    a("s_waitcnt lgkmcnt(1)"); s2_mma(0, 8)
    a(f"""
    s_waitcnt lgkmcnt(0)
    v_cmp_ne_u32 vcc, 0, v{t2}
    s_cmp_eq_u64 vcc, 0
    s_cbranch_scc1 K2_good
    s_cmp_lg_u32 s30, 0
    s_cbranch_scc1 K2_good
    s_mov_b32 s30, 1
    s_waitcnt vmcnt(0)
    s_setprio 0
    s_branch K2_restart
    """)
    a.label("K2_good")
    a("s_mov_b32 exec_lo, 0x00ff00ff"); a("s_mov_b32 exec_hi, 0x00ff00ff")
    for t in range(4):
        a(f"v_cvt_pk_bf16_f32 v{S1+2*t}, v{OA+4*t}, v{OA+4*t+1}")
        a(f"v_cvt_pk_bf16_f32 v{S1+2*t+1}, v{OA+4*t+2}, v{OA+4*t+3}")
        a(f"ds_write_b64 v{t0}, v[{S1+2*t}:{S1+2*t+1}] offset:{32*t}")
    a("s_mov_b64 exec, -1")
    a("s_waitcnt vmcnt(0)")
    for r in range(4):
        a(f"v_lshlrev_b32 v{HV+2*r}, 16, v{XR+r}")
        a(f"v_and_b32 v{HV+2*r+1}, 0xffff0000, v{XR+r}")
        a(f"v_lshlrev_b32 v{WF+2*r}, 16, v{WR+r}")
        a(f"v_and_b32 v{WF+2*r+1}, 0xffff0000, v{WR+r}")
    a(f"""
    s_waitcnt lgkmcnt(0)
    s_barrier
    """)
    st(3, True)
    a(f"""
    ds_read_b128 v[{BF}:{BF+3}], v{t1}
    s_waitcnt lgkmcnt(0)
    """)
    for r in range(4):
        a(f"v_lshlrev_b32 v{HN+2*r}, 16, v{BF+r}")
        a(f"v_and_b32 v{HN+2*r+1}, 0xffff0000, v{BF+r}")
    P2 = lambda b, r: f"v[{b+r}:{b+r+1}]"
    for r in range(0, 8, 2): a(f"v_pk_add_f32 {P2(HV,r)}, {P2(HV,r)}, {P2(HN,r)}")
    for r in range(8): a(f"v_cvt_pk_bf16_f32 v{HV+r}, 0, v{HV+r}")
    SA, SB = S1, S1 + 2
    a(f"v_pk_add_f32 {P2(SA,0)}, {P2(HV,0)}, {P2(HV,2)}")
    a(f"v_pk_mul_f32 {P2(SB,0)}, {P2(HV,0)}, {P2(HV,0)}")
    a(f"v_pk_add_f32 {P2(SA,4)}, {P2(HV,4)}, {P2(HV,6)}")
    a(f"v_pk_fma_f32 {P2(SB,0)}, {P2(HV,2)}, {P2(HV,2)}, {P2(SB,0)}")
    a(f"v_pk_add_f32 {P2(SA,0)}, {P2(SA,0)}, {P2(SA,4)}")
    a(f"v_pk_fma_f32 {P2(SB,0)}, {P2(HV,4)}, {P2(HV,4)}, {P2(SB,0)}")
    a(f"v_add_f32 v{t0}, v{SA}, v{SA+1}")
    a(f"v_pk_fma_f32 {P2(SB,0)}, {P2(HV,6)}, {P2(HV,6)}, {P2(SB,0)}")
    a(f"v_add_f32 v{t2}, v{SB}, v{SB+1}")
    wave_sum(a, [t0, t2], [ST, ST + 1])
    ln_scalars(a, t0, t2, ST, ST + 2, ST + 1, ST + 3)
    st(4, True)
    for r in range(0, 8, 2): a(f"v_pk_add_f32 {P2(HN,r)}, {P2(HV,r)}, {P2(ST,0)} op_sel_hi:[1,0] neg_lo:[0,1] neg_hi:[0,1]")
    for r in range(8): a(f"v_cvt_pk_bf16_f32 v{HN+r}, 0, v{HN+r}")
    for r in range(0, 8, 2): a(f"v_pk_mul_f32 {P2(HN,r)}, {P2(HN,r)}, {P2(ST,2)} op_sel_hi:[1,0]")
    for r in range(8): a(f"v_cvt_pk_bf16_f32 v{HN+r}, 0, v{HN+r}")
    a(f"v_pk_mul_f32 {P2(SA,0)}, {P2(HN,0)}, {P2(WF,0)}")
    for r in range(2, 8, 2): a(f"v_pk_fma_f32 {P2(SA,0)}, {P2(HN,r)}, {P2(WF,r)}, {P2(SA,0)}")
    a(f"v_add_f32 v{t2}, v{SA}, v{SA+1}")
    fill = [f"v_pk_add_f32 {P2(WF+8,r)}, {P2(HV,r)}, {P2(HN,r)}" for r in range(0, 8, 2)]
    fill += [f"v_cvt_pk_bf16_f32 v{PK+4+r}, v{HV+2*r}, v{HV+2*r+1}" for r in range(4)]
    fill += [f"v_cvt_pk_bf16_f32 v{ST+4+r}, v{HN+2*r}, v{HN+2*r+1}" for r in range(4)]
    for mod in ("quad_perm:[1,0,3,2]", "quad_perm:[2,3,0,1]", "row_half_mirror", "row_mirror"):
        a(fill.pop(0)); a(fill.pop(0))
        a(f"v_add_f32_dpp v{t2}, v{t2}, v{t2} {mod} row_mask:0xf bank_mask:0xf")
    for w in (16, 32):
        a(f"v_mov_b32 v{t0}, v{t2}")
        a(fill.pop(0)); a(fill.pop(0))
        a(f"v_permlane{w}_swap_b32 v{t0}, v{t2}")
        a(f"v_add_f32 v{t2}, v{t2}, v{t0}")
    if 'leak' in dbg:
        a(f"""
        s_cmp_lg_u32 s3, 0
        s_cbranch_scc1 K2_leak
        s_memrealtime s[92:93]
        v_mov_b32 v{S1+4}, 0
        s_mov_b32 s5, {WS_SEL:#x}
        buffer_load_dwordx4 v[{S1}:{S1+3}], v{S1+4}, s[8:11], s5 offen
        s_waitcnt vmcnt(0) lgkmcnt(0)
        s_mov_b64 exec, 1
        v_add_f32 v{WF+8}, {f2u(64.0):#x}, v{WF+8}
        v_sub_u32 v{WF+9}, v{S1+2}, v{S1}
        v_sub_u32 v{WF+10}, v{S1+1}, v{S1}
        v_sub_u32 v{WF+11}, s90, v{S1}
        v_sub_u32 v{WF+12}, s94, v{S1}
        v_sub_u32 v{WF+13}, s92, v{S1}
        """)
        for r in range(9, 14):
            a(f"v_cvt_f32_u32 v{WF+r}, v{WF+r}")
            a(f"v_mul_f32 v{WF+r}, {f2u(0.005):#x}, v{WF+r}")
            a(f"v_min_f32 v{WF+r}, {f2u(20.0):#x}, v{WF+r}")
        a("s_mov_b64 exec, -1")
        a.label("K2_leak")
    a(f"""
    v_cvt_pk_bf16_f32 v{t2}, 0, v{t2}
    v_ashrrev_i32 v{t0}, 31, v{t2}
    v_or_b32 v{t0}, 0x80000000, v{t0}
    v_xor_b32 v{t2}, v{t2}, v{t0}
    v_and_b32 v{t2}, 0xffff0000, v{t2}
    s_sub_u32 s5, 0xffff, s3
    v_or_b32 v{t2}, s5, v{t2}      ; key
    ds_write_b32 v{t4}, v{t2}
    """)
    for r in range(4): a(f"v_cvt_pk_bf16_f32 v{PK+r}, v{WF+8+2*r}, v{WF+8+2*r+1}")
    a(f"""
    buffer_store_dwordx4 v[{PK}:{PK+3}], v{vWL}, s[20:23], s4 offen sc1
    """)
    for r in range(4):
        a(f"v_min_u32 v{PK+4+r}, -2, v{PK+4+r}")
        a(f"v_min_u32 v{ST+4+r}, -2, v{ST+4+r}")
    a(f"""
    s_waitcnt lgkmcnt(0)
    s_barrier
    ds_read_b32 v{t1}, v{t3}
    s_waitcnt lgkmcnt(0)
    v_cmp_gt_u32 vcc, v{t1}, v{t2}
    v_cmp_eq_u32 s[36:37], v{t1}, v{t2}
    s_and_b32 s38, vcc_lo, 0xff
    s_bcnt1_i32_b32 s38, s38       ; rank
    """)
    st(5, False); st(5, True); st(0, 2); st(1, 2); st(2, 2); st(3, 2); st(4, 2); st(5, 2)
    a(f"""
    s_cmp_gt_u32 s38, 1
    s_cbranch_scc1 K2_pub
    s_lshl_b32 s34, s7, 9
    s_lshl_b32 s5, s38, 11
    s_add_u32 s34, s34, s5
    s_add_u32 s34, s34, {WS_H:#x}
    buffer_store_dwordx4 v[{ST+4}:{ST+7}], v{vWL}, s[8:11], s34 offen sc1
    s_cmp_lg_u32 s38, 0
    s_cbranch_scc1 K2_pub0
    v_cndmask_b32 v{ST+1}, v{t1}, 0, s[36:37]
    v_mov_b32 v{ST}, v{t2}
    s_lshl_b32 s5, s2, {G.KS_LOG}
    s_add_u32 s5, s5, {WS_KEY:#x}
    v_lshlrev_b32 v{t0}, 14, v0
    """)
    for mod in ("quad_perm:[1,0,3,2]", "quad_perm:[2,3,0,1]", "row_half_mirror"):
        a(f"v_max_u32_dpp v{ST+1}, v{ST+1}, v{ST+1} {mod} row_mask:0xf bank_mask:0xf")
    a(f"""
    v_xor_b32 v{ST+1}, 0x800, v{ST+1}
    s_mov_b64 exec, {0xff if KREP else 1}
    buffer_store_dwordx2 v[{ST}:{ST+1}], v{t0}, s[8:11], s5 offen sc1
    s_mov_b64 exec, -1
    """)
    a.label("K2_pub0")
    a(f"""
    s_waitcnt vmcnt(0)
    buffer_store_dwordx4 v[{PK+4}:{PK+7}], v{vWL}, s[8:11], s34 offen offset:1024 sc1
    """)
    a.label("K2_pub")
    if 'amp' in dbg: a('s_memrealtime s[96:97]'); a('s_waitcnt lgkmcnt(0)')
    st(1, 2)
    def fin():
        if G.STAMP: a("s_waitcnt vmcnt(0)")
        stamp(a, 6)
        if G.STAMP: a("s_mov_b32 s91, s30")
        stamp_out(a, 1, 8, "s6", WF)
        a("s_endpgm")
    a(f"""
    s_cmp_ge_u32 s2, 144
    s_cbranch_scc1 K2_fin
    """)
    LEAD = 's6, 0' if 'lead0' in dbg else 's38, 2'
    AFR = V
    KY = K; Y = K + 8; BX = V + 32; AC = K + 16
    a(f"""
    s_setprio 0
    v_bfe_u32 v{t0}, v0, 2, 2
    v_lshrrev_b32 v{t4}, 4, v0           ; g
    v_lshl_add_u32 v{t0}, v{t4}, 3, v{t0}
    v_lshlrev_b32 v{t0}, 5, v{t0}
    v_and_b32 v{t1}, 3, v0
    v_lshl_add_u32 v{t0}, v{t1}, 3, v{t0}
    v_add_u32 v{t0}, s74, v{t0}
    """)
    for sx in range(7):
        for half in range(2):
            d = AFR + 4 * sx + 2 * half
            a(f"ds_read_b64_tr_b16 v[{d}:{d+1}], v{t0} offset:{sx*1024 + half*128}")
    a(f"""
    v_and_b32 v{t3}, 1, v0
    v_lshlrev_b32 v{vPW}, 6, v{t3}
    v_lshl_add_u32 v{vPW}, v{t4}, 4, v{vPW}
    s_lshl_b32 s5, s6, 7
    s_add_u32 s5, s5, {L_RED:#x}
    v_add_u32 v{vPW}, s5, v{vPW}
    v_and_b32 v{vPR}, 31, v0
    v_lshlrev_b32 v{vPR}, 2, v{vPR}      ; (lane&31)*4
    v_lshrrev_b32 v{vOR}, 5, v0
    v_lshl_add_u32 v{vOR}, v{vOR}, 14, v{vPR}
    s_cmp_lg_u32 {LEAD}
    s_cbranch_scc1 K2_nokey
    v_lshlrev_b32 v{t1}, {G.KS_LOG}, v0
    s_and_b32 s5, s2, {7 if KREP else 0}
    s_lshl_b32 s5, s5, 14
    s_add_u32 s5, s5, {WS_KEY:#x}
    s_add_u32 s79, s5, {64 << G.KS_LOG}
    s_add_u32 s80, s5, {128 << G.KS_LOG}
    s_add_u32 s81, s5, {192 << G.KS_LOG}
    s_mov_b32 s36, 0
    """)
    KZ = V + 60 - 8 * 0
    def poll_loop(name, issue, nld):
        K2R = X[0]
        def chk(b):
            a(f"""
            v_min3_u32 v{Y}, v{b}, v{b+1}, v{b+2}
            v_min3_u32 v{Y+1}, v{b+3}, v{b+4}, v{b+5}
            v_min3_u32 v{Y}, v{Y}, v{b+6}, v{b+7}
            v_min_u32 v{Y}, v{Y}, v{Y+1}
            v_cmp_eq_u32 vcc, 0, v{Y}
            """)
        sl = OPT.get('psl', 3)
        issue(KY)
        a(f"s_sleep {sl}")
        a.label(f"{name}_l")
        issue(K2R)
        a(f"s_waitcnt vmcnt({nld})")
        chk(KY)
        a(f"s_cbranch_vccz {name}_ok")
        issue(KY)
        a(f"s_waitcnt vmcnt({nld})")
        chk(K2R)
        a(f"""
        s_cbranch_vccz {name}_ok2
        s_add_u32 s36, s36, 1
        s_cmp_lt_u32 s36, 0x40000
        s_cbranch_scc1 {name}_l
        """)
        a.label(f"{name}_ok2")
        for r in range(0, 8, 2): a(f"v_pk_mov_b32 v[{KY+r}:{KY+r+1}], v[{K2R+r}:{K2R+r+1}], v[{K2R+r}:{K2R+r+1}] op_sel:[0,1]")
        a.label(f"{name}_ok")
    def kissue(b):
        for k, sr in enumerate(("s5", "s79", "s80", "s81")):
            a(f"buffer_load_dwordx2 v[{b+2*k}:{b+2*k+1}], v{t1}, s[8:11], {sr} offen sc1")
    if int(OPT.get('kd', 12)): a(f"s_sleep {OPT.get('kd', 12)}")
    poll_loop("K2_kp", kissue, 4)
    a.label("K2_kok")
    st(2, 2)
    if FS: a("s_mov_b32 s30, s36")
    B1, B2 = Y + 4, Y + 5
    a(f"""
    v_max_u32 v{B1}, v{KY}, v{KY+2}
    v_min_u32 v{B2}, v{KY}, v{KY+2}
    v_max3_u32 v{B2}, v{B2}, v{KY+1}, v{KY+3}
    v_max_u32 v{Y}, v{KY+4}, v{KY+6}
    v_min_u32 v{Y+1}, v{KY+4}, v{KY+6}
    v_max3_u32 v{Y+1}, v{Y+1}, v{KY+5}, v{KY+7}
    v_min_u32 v{Y+2}, v{B1}, v{Y}
    v_max_u32 v{B1}, v{B1}, v{Y}
    v_max3_u32 v{B2}, v{B2}, v{Y+1}, v{Y+2}
    v_mov_b32 v{Y}, v{B1}
    """)
    wave_max_u32(a, Y, Y + 1)
    a(f"""
    v_cmp_eq_u32 vcc, v{B1}, v{Y}
    v_cndmask_b32 v{B1}, v{B1}, v{B2}, vcc
    """)
    wave_max_u32(a, B1, Y + 1)
    a(f"""
    v_readfirstlane_b32 s40, v{Y}
    v_readfirstlane_b32 s41, v{B1}
    s_andn2_b32 s42, 0x7ff, s40
    s_andn2_b32 s43, 0x7ff, s41
    s_lshr_b32 s50, s42, 3
    s_lshr_b32 s51, s43, 3
    s_lshl_b32 s50, s50, 12
    s_lshl_b32 s51, s51, 12
    s_andn2_b32 s52, 0x800, s40
    s_andn2_b32 s53, 0x800, s41
    s_add_u32 s50, s50, s52
    s_add_u32 s51, s51, s53
    s_lshl_b32 s42, s42, 10
    s_lshl_b32 s43, s43, 10
    """)
    a.label("K2_nokey")
    a(f"""
    s_cmp_ge_u32 s2, 112
    s_cbranch_scc1 K2_down
    s_cmp_lg_u32 {LEAD}
    s_cbranch_scc1 K2_up1
    s_add_u32 s50, s50, {WS_H:#x}
    s_add_u32 s51, s51, {WS_H:#x}
    s_mov_b32 s36, 0
    """)
    a.label("K2_rows")
    a(f"""
    buffer_load_dwordx4 v[{KY}:{KY+3}], v{vWL}, s[8:11], s50 offen sc1
    buffer_load_dwordx4 v[{KY+4}:{KY+7}], v{vWL}, s[8:11], s51 offen sc1
    s_add_u32 s36, s36, 1
    s_waitcnt vmcnt(1)
    ds_write_b128 v{vWL}, v[{KY}:{KY+3}] offset:{L_XS}
    v_max3_u32 v{Y}, v{KY}, v{KY+1}, v{KY+2}
    s_waitcnt vmcnt(0)
    ds_write_b128 v{vWL}, v[{KY+4}:{KY+7}] offset:{L_XS + 1040}
    v_max3_u32 v{Y+1}, v{KY+3}, v{KY+4}, v{KY+5}
    v_max3_u32 v{Y}, v{Y}, v{KY+6}, v{KY+7}
    v_max_u32 v{Y}, v{Y}, v{Y+1}
    v_cmp_eq_u32 vcc, -1, v{Y}
    s_cbranch_vccz K2_up1
    s_cmp_lt_u32 s36, 0x40000
    s_cbranch_scc1 K2_rows
    """)
    a.label("K2_up1")
    st(3, 2)
    a(f"""
    v_mul_u32_u24 v{t0}, 1040, v{t3}
    v_lshl_add_u32 v{t0}, v{t4}, 4, v{t0}
    s_lshr_b32 s5, s6, 1
    s_lshl_b32 s5, s5, 8
    v_add_u32 v{t0}, s5, v{t0}
    s_waitcnt lgkmcnt(0)
    s_barrier
    """)
    for sx in range(4):
        a(f"ds_read_b128 v[{BX+4*sx}:{BX+4*sx+3}], v{t0} offset:{L_XS + 64*sx}")
    for sx in range(4):
        a(f"s_waitcnt lgkmcnt({3-sx})")
        c = "0" if sx == 0 else f"v[{AC}:{AC+3}]"
        a(f"v_mfma_f32_16x16x32_bf16 v[{AC}:{AC+3}], v[{AFR+4*sx}:{AFR+4*sx+3}], v[{BX+4*sx}:{BX+4*sx+3}], {c}")
    a(f"""
    ds_write_b128 v{vPW}, v[{AC}:{AC+3}]
    s_waitcnt lgkmcnt(0)
    s_barrier
    s_cmp_lg_u32 {LEAD}
    s_cbranch_scc1 K2_fin
    """)
    def red_read():
        a(f"v_add_u32 v{t0}, {L_RED:#x}, v{vPR}")
        a("s_waitcnt vmcnt(0)")
        for k in range(4):
            a(f"ds_read2_b32 v[{KY+2*k}:{KY+2*k+1}], v{t0} offset0:{64*k} offset1:{64*k+32}")
        a("s_waitcnt lgkmcnt(0)")
        a(f"v_pk_add_f32 v[{KY}:{KY+1}], v[{KY}:{KY+1}], v[{KY+2}:{KY+3}]")
        a(f"v_pk_add_f32 v[{KY+4}:{KY+5}], v[{KY+4}:{KY+5}], v[{KY+6}:{KY+7}]")
        a(f"v_pk_add_f32 v[{KY}:{KY+1}], v[{KY}:{KY+1}], v[{KY+4}:{KY+5}]")
    st(4, 2)
    red_read()
    a(f"""
    v_cvt_pk_bf16_f32 v{KY}, 0, v{KY}
    v_cvt_pk_bf16_f32 v{KY+1}, 0, v{KY+1}
    """)
    sigmoid(a, KY + 2, KY, KY + 3)
    a(f"""
    v_mul_f32 v{KY}, v{KY}, v{KY+2}
    v_cvt_pk_bf16_f32 v{KY}, 0, v{KY}
    v_mul_f32 v{KY}, v{KY}, v{KY+1}
    v_cvt_pk_bf16_f32 v{KY}, 0, v{KY}
    v_or_b32 v{KY}, 1, v{KY}
    s_lshl_b32 s5, s76, 7
    s_add_u32 s5, s5, {WS_GU:#x}
    """)
    if GREP:
        for k in range(4):
            a(f"buffer_store_dword v{KY}, v{vOR}, s[8:11], s5 offen sc1")
            if k < 3: a("s_add_u32 s5, s5, 0x8000")
    else:
        a(f"""
        s_mov_b32 exec_hi, 0
        buffer_store_dword v{KY}, v{vPR}, s[8:11], s5 offen sc1
        s_mov_b64 exec, -1
        """)
    a(f"""
    s_branch K2_fin
    """)
    a.label("K2_down")
    HH, NN, GT, OO, RS = Y + 6, Y + 7, AC + 4, AC + 5, AC + 6
    a(f"""
    s_cmp_lg_u32 {LEAD}
    s_cbranch_scc1 K2_dn1
    v_bfe_u32 v{t0}, v0, 4, 1
    v_cmp_eq_u32 vcc, 0, v{t0}
    v_mov_b32 v{t0}, s43
    v_mov_b32 v{t1}, s42
    v_cndmask_b32 v{OO}, v{t0}, v{t1}, vcc
    v_and_b32 v{t0}, 15, v0
    v_lshl_add_u32 v{OO}, v{t0}, 1, v{OO}
    s_lshl_b32 s44, s77, 5
    v_mov_b32 v{t1}, s51
    v_mov_b32 v{RS}, s50
    v_cndmask_b32 v{RS}, v{t1}, v{RS}, vcc
    v_and_b32 v{t0}, 14, v0
    v_lshl_add_u32 v{RS}, v{t0}, 1, v{RS}
    s_add_u32 s52, s44, {WS_H:#x}
    v_mov_b32 v{t0}, s41
    v_mov_b32 v{t1}, s40
    v_cndmask_b32 v{GT}, v{t0}, v{t1}, vcc
    v_and_b32 v{GT}, 0xffff0000, v{GT}
    v_ashrrev_i32 v{t0}, 31, v{GT}
    v_not_b32 v{t0}, v{t0}
    v_or_b32 v{t0}, 0x80000000, v{t0}
    v_xor_b32 v{GT}, v{GT}, v{t0}
    v_and_b32 v{GT}, 0xffff0000, v{GT}
    """)
    sigmoid(a, GT, GT, t0)
    a(f"v_cvt_pk_bf16_f32 v{GT}, 0, v{GT}")
    a.label("K2_dn1")
    a(f"""
    s_mul_i32 s5, s6, 1792
    s_and_b32 s37, s2, {7 if GREP else 0}
    s_lshl_b32 s37, s37, 14
    s_add_u32 s5, s5, s37
    s_add_u32 s5, s5, {WS_GU:#x}
    v_min_u32 v{t1}, 47, v0
    v_lshlrev_b32 v{t1}, 4, v{t1}
    s_lshl_b32 s37, s6, 10
    s_add_u32 s37, s37, {L_GB:#x}
    v_lshrrev_b32 v{t0}, 3, v0
    v_lshlrev_b32 v{vPL}, 5, v{t0}
    v_and_b32 v{t0}, 3, v0
    v_lshl_add_u32 v{vPL}, v{t0}, 3, v{vPL}
    v_bfe_u32 v{t0}, v0, 2, 1
    v_mul_u32_u24 v{t0}, 464, v{t0}
    v_add3_u32 v{vPL}, v{vPL}, v{t0}, s37
    v_mul_u32_u24 v{vOW}, 464, v{t3}
    v_lshl_add_u32 v{vOW}, v{t4}, 4, v{vOW}
    v_add_u32 v{vOW}, s37, v{vOW}
    s_mov_b32 s45, 0x07060302
    s_mov_b32 s36, 0
    """)
    def gissue(b):
        a(f"buffer_load_dwordx4 v[{b}:{b+3}], v{vWL}, s[8:11], s5 offen sc1")
        a(f"buffer_load_dwordx4 v[{b+4}:{b+7}], v{t1}, s[8:11], s5 offen offset:1024 sc1")
    if 'nogb' not in dbg:
        a(f"""
        s_barrier
        s_cmp_lg_u32 {LEAD}
        s_cbranch_scc1 K2_hw
        """)
        a.label("K2_hl")
        a(f"""
        buffer_load_dword v{NN}, v{RS}, s[8:11], s52 offen sc1
        buffer_load_dword v{HH}, v{RS}, s[8:11], s52 offen offset:1024 sc1
        s_add_u32 s36, s36, 1
        s_waitcnt vmcnt(0)
        v_max_u32 v{t0}, v{HH}, v{NN}
        v_cmp_eq_u32 vcc, -1, v{t0}
        s_cbranch_vccz K2_hok
        s_cmp_lt_u32 s36, 0x40000
        s_cbranch_scc1 K2_hl
        """)
        a.label("K2_hok")
        a(f"""
        v_and_b32 v{t0}, 1, v0
        v_lshlrev_b32 v{t0}, 4, v{t0}
        v_lshrrev_b32 v{HH}, v{t0}, v{HH}
        v_lshrrev_b32 v{NN}, v{t0}, v{NN}
        s_mov_b32 s36, 0
        s_sleep {max(int(OPT.get('gd', 28)) - 14, 0)}
        s_branch K2_hx
        """)
        a.label("K2_hw")
        a(f"s_sleep {OPT.get('gd', 28)}")
        a.label("K2_hx")
    poll_loop("K2_gp", gissue, 2)
    a.label("K2_gok")
    st(4, 2)
    a(f"""
    v_perm_b32 v{Y}, v{KY+1}, v{KY}, s45
    v_perm_b32 v{Y+1}, v{KY+3}, v{KY+2}, s45
    v_perm_b32 v{Y+2}, v{KY+5}, v{KY+4}, s45
    v_perm_b32 v{Y+3}, v{KY+7}, v{KY+6}, s45
    ds_write_b64 v{vPL}, v[{Y}:{Y+1}]
    s_mov_b32 exec_hi, 0xffff
    ds_write_b64 v{vPL}, v[{Y+2}:{Y+3}] offset:256
    s_mov_b64 exec, -1
    """)
    for sx in range(7):
        a(f"ds_read_b128 v[{BX+4*sx}:{BX+4*sx+3}], v{vOW} offset:{64*sx}")
    for sx in range(7):
        a(f"s_waitcnt lgkmcnt({6-sx})")
        c = "0" if sx == 0 else f"v[{AC}:{AC+3}]"
        a(f"v_mfma_f32_16x16x32_bf16 v[{AC}:{AC+3}], v[{AFR+4*sx}:{AFR+4*sx+3}], v[{BX+4*sx}:{BX+4*sx+3}], {c}")
    a(f"""
    ds_write_b128 v{vPW}, v[{AC}:{AC+3}]
    s_waitcnt lgkmcnt(0)
    s_barrier
    s_cmp_lg_u32 {LEAD}
    s_cbranch_scc1 K2_fin
    """)
    red_read()
    a(f"""
    v_add_f32 v{KY}, v{KY}, v{KY+1}
    v_lshlrev_b32 v{HH}, 16, v{HH}
    v_lshlrev_b32 v{NN}, 16, v{NN}
    v_cvt_pk_bf16_f32 v{KY}, 0, v{KY}
    v_mul_f32 v{KY}, v{KY}, v{GT}
    v_cvt_pk_bf16_f32 v{KY}, 0, v{KY}
    v_add_f32 v{KY}, v{KY}, v{NN}
    v_cvt_pk_bf16_f32 v{KY}, 0, v{KY}
    v_add_f32 v{KY}, v{KY}, v{HH}
    v_cvt_pk_bf16_f32 v{KY}, v{KY}, v{KY}
    s_mov_b32 exec_hi, 0
    buffer_store_short v{KY}, v{OO}, s[20:23], s44 offen sc1
    s_mov_b64 exec, -1
    """)
    a.label("K2_fin")
    if 'amp' in dbg:
        q = int(OPT['amp'])
        expr = {0: None, 1: ("s83", "s90"), 2: ("s84", "s90"), 3: ("s85", "s90"), 4: ("s86", "s90"), 5: ("s88", "s90"), 6: ("s94", "s90"), 7: ("s98", "s94"), 8: ("s96", "s98")}[q]
        a(f"""
        s_or_b32 s5, s2, s6
        s_cmp_lg_u32 s5, 0
        s_cbranch_scc1 K2_amp_end
        """)
        if expr: a(f"s_sub_u32 s85, {expr[0]}, {expr[1]}")
        else: a("s_mov_b32 s85, 0")
        a(f"""
        s_min_u32 s85, s85, 5000
        s_lshl_b32 s85, s85, 1
        s_add_u32 s85, s85, 600
        s_add_u32 s85, s85, s96
        """)
        a.label("K2_amp")
        a(f"""
        s_memrealtime s[92:93]
        s_waitcnt lgkmcnt(0)
        s_sub_u32 s86, s92, s85
        s_cmp_lt_i32 s86, 0
        s_cbranch_scc1 K2_amp
        """)
        a.label("K2_amp_end")
    if G.STAMP: a("s_waitcnt vmcnt(0)")
    stamp(a, 6)
    if G.STAMP: a("s_mov_b32 s91, s30")
    stamp_out(a, 1, 8, "s6", WF)
    dstamp(a, 1, True, 240)
    a.label("K2_end")
    a("s_endpgm")
    if 'nopf' not in dbg:
        a.label("K2_side")
        a(f"buffer_load_dword v{vPD}, v{vPA}, s[12:15], s38 offen")
        a("s_branch K2_sideb")
        a.label("K2_stg")
        for e in range(2):
            a(f"""
            s_mov_b32 m0, s78
            s_add_u32 s78, s78, 1024
            buffer_load_dwordx4 v{vFS}, s[68:71], s72 offen lds
            s_add_u32 s72, s72, s73
            """)
            if e == 0:
                a("s_bitcmp1_b32 s42, s29"); a("s_cbranch_scc0 K2_stgb")
        a("s_branch K2_stgb")
    a.label("K2_qspin")
    a(f"""
    s_mov_b32 s36, 0
    """)
    a.label("K2_qspin1")
    a(f"""
    s_sleep 2
    buffer_load_dword v{t0}, v{SP}, s[8:11], s45 offen sc1
    s_add_u32 s36, s36, 1
    s_waitcnt vmcnt(0)
    v_cmp_ne_u32 vcc, s58, v{t0}
    s_cbranch_vccz K2_qback
    s_cmp_lt_u32 s36, 0x40000
    s_cbranch_scc1 K2_qspin1
    s_branch K2_qback
    """)
    for k, off in enumerate(spins):
        a.label(f"K2_spin{k}")
        a(f"""
        s_sleep 1
        ds_read_b32 v{vFV}, v{vFR} offset:{off}
        s_waitcnt lgkmcnt(0)
        v_cmp_gt_u32 vcc, s59, v{vFV}
        s_cbranch_vccnz K2_spin{k}
        s_branch K2_back{k}
        """)
```

```python
from gen import *
import gen as G

L_PART = 0x0; L_Q = 0x6000; L_MREF = 0x8400; L_OB = 0x5800; L_KEY = 0xAC00; L_FLG = 0xAD00; L_ZC = 0xAE00; L_MX = 0xB000; L_HB = 0xB400
L_FW = 0xE000; L_TOTAL = 0xE000 + 8 * 7168
L_XS = L_PART; L_RED = L_PART + 0x1000; L_GB = L_PART + 0x2000
C_EXACT = 0.25 * 1.4426950408889634
OFFS = 96.0

def wave_sum(a, vs, ts):
    if isinstance(vs, int): vs, ts = [vs], [ts]
    for mod in ("quad_perm:[1,0,3,2]", "quad_perm:[2,3,0,1]", "row_half_mirror", "row_mirror"):
        for v in vs:
            a(f"v_add_f32_dpp v{v}, v{v}, v{v} {mod} row_mask:0xf bank_mask:0xf")
    for w in (16, 32):
        for v, t in zip(vs, ts): a(f"v_mov_b32 v{t}, v{v}")
        for v, t in zip(vs, ts): a(f"v_permlane{w}_swap_b32 v{t}, v{v}")
        for v, t in zip(vs, ts): a(f"v_add_f32 v{v}, v{v}, v{t}")

class VM:
    def __init__(self, a): self.a = a; self.q = []; self.done = -1
    def issue(self, tag): self.q.append(tag)
    def wait(self, tag):
        i = max(k for k, t in enumerate(self.q) if t == tag)
        if i <= self.done: return
        self.done = i
        self.a(f"s_waitcnt vmcnt({len(self.q) - 1 - i})")

def wave_max_u32(a, v, t):
    for mod in ("quad_perm:[1,0,3,2]", "quad_perm:[2,3,0,1]", "row_half_mirror", "row_mirror"):
        a(f"v_max_u32_dpp v{v}, v{v}, v{v} {mod} row_mask:0xf bank_mask:0xf")
    for w in (16, 32):
        a(f"""
        v_mov_b32 v{t}, v{v}
        v_permlane{w}_swap_b32 v{t}, v{v}
        v_max_u32 v{v}, v{v}, v{t}
        """)

LOG2E = 1.4426950408889634
def sigmoid(a, d, x, t):
    a(f"""
    v_mul_f32 v{t}, {f2u(-LOG2E):#x}, v{x}
    v_exp_f32 v{t}, v{t}
    v_add_f32 v{t}, 1.0, v{t}
    v_rcp_f32 v{d}, v{t}
    """)

def gen_p2(a, dbg='', prio=True):
    SC = ' sc1'
    OPT = dict(x.split('=') for x in dbg.split(',') if '=' in x)
    FLS = int(OPT.get('fls', 4))
    PFS = int(OPT.get('pfs', 0)); PFP = int(OPT.get('pfp', 1))
    TAILST = 'tailst' in dbg
    FS = 'ffnst' in dbg
    KREP = 'nokrep' not in dbg; GREP = 'nogrep' not in dbg
    def st(i, tail):
        if 'p1st' in dbg:
            if tail == 4: stamp(a, i)
        elif 'r0st' in dbg:
            if tail == 3: stamp(a, i)
        elif FS:
            if tail == 2: stamp(a, i)
        elif tail in (True, False) and bool(tail) == TAILST: stamp(a, i)
    K = 16; V = 48; X = [112, 128]; O = 144; CM = 160; SP = 176; Q = 184; OA = 188; WF = 204; BF = 236; S1 = 240
    vQA, vPW, vPR, vPL, vOW, vOR, vLM, vWL, vKL, vVL = 1, 2, 3, 4, 5, 6, 7, 8, 9, 10
    t0, t1, t2, t3, t4 = 11, 12, 13, 14, 15
    vFW, vFR, vFV, vWLs = 9, 13, 14, 15
    vFS, vPA, vPD = SP + 4, SP + 5, SP + 6
    a.label("K12_setup")
    a(f"""
    s_load_dwordx2 s[48:49], s[0:1], 96
    s_load_dwordx2 s[40:41], s[0:1], 0
    s_load_dwordx8 s[60:67], s[0:1], 48
    s_load_dwordx2 s[46:47], s[0:1], 80
    s_waitcnt lgkmcnt(0)
    """)
    a.label("K12_setup1")
    a(f"""
    s_and_b32 s3, s2, 7
    s_lshr_b32 s4, s2, 3
    s_lshl_b32 s7, s3, 8
    s_lshl_b32 s5, s4, 3
    s_add_u32 s7, s7, s5           ; T0
    s_and_b32 s28, s4, 7           ; rot
    v_lshrrev_b32 v{t0}, 6, v0
    v_and_b32 v0, 63, v0
    v_readfirstlane_b32 s6, v{t0}
    s_mov_b32 s30, 0
    v_lshlrev_b32 v{vWL}, 4, v0
    s_mul_i32 s3, s6, {8*TS}
    s_add_u32 s3, s3, {WS_KV:#x}
    """)
    for t in range(8):
        a(f"""
        s_add_u32 s4, s28, {t}
        s_and_b32 s4, s4, 7
        s_mul_i32 s4, s4, {TS}
        s_add_u32 s{50+t}, s3, s4
        """)
    a.label("K2_restart")
    a(f"""
    s_add_u32 s44, s6, 4
    s_and_b32 s44, s44, 7
    s_add_u32 s3, s44, s28
    s_and_b32 s3, s3, 7
    s_andn2_b32 s45, s2, 0x38
    s_lshl_b32 s4, s3, 3
    s_or_b32 s45, s45, s4
    s_lshl_b32 s45, s45, 6
    s_lshr_b32 s4, s28, 1
    s_lshl_b32 s4, s4, 2
    s_add_u32 s45, s45, s4
    s_add_u32 s45, s45, {WS_FQ:#x}
    s_add_u32 s3, s3, s7
    s_lshl_b32 s32, s3, 10
    v_and_b32 v{t1}, 31, v0
    v_lshrrev_b32 v{t2}, 5, v0
    v_mul_u32_u24 v{vVL}, 272, v{t2}
    v_lshl_add_u32 v{vVL}, v{t1}, 4, v{vVL}
    v_cmp_lt_u32 vcc, 16, v{t1}
    v_bfrev_b32 v{t0}, 1
    v_add_u32 v{vQA}, {L_Q:#x}, v{vWL}
    v_cndmask_b32 v{vVL}, v{vVL}, v{t0}, vcc
    """)
    srd(a, 8, 48, 49, WS_SIZE)
    vm = VM(a)
    def ldK(t):
        a(f"buffer_load_dwordx4 v[{K+4*t}:{K+4*t+3}], v{vWL}, s[8:11], s{50+t} offen{SC}"); vm.issue(f"K{t}")
    def ldV(t):
        if 'vmask' in dbg:
            a("s_mov_b32 exec_lo, 0x1ffff"); a("s_mov_b32 exec_hi, 0x1ffff")
            for h in range(2):
                a(f"buffer_load_dwordx4 v[{V+8*t+4*h}:{V+8*t+4*h+3}], v{vVL}, s[8:11], s{50+t} offen offset:{1024 + 544*h}{SC}"); vm.issue(f"V{t}{h}")
            a("s_mov_b64 exec, -1")
            return
        for h in range(2):
            a(f"buffer_load_dwordx4 v[{V+8*t+4*h}:{V+8*t+4*h+3}], v{vVL}, s[8:11], s{50+t} offen offset:{1024 + 544*h}{SC}"); vm.issue(f"V{t}{h}")
    a(f"""
    s_lshl_b32 s3, s44, 10
    v_add_u32 v{t4}, s3, v{vQA}
    """)
    def late_setup(part):
        u0, u1, u2, u3 = S1, S1 + 1, S1 + 2, S1 + 3
        if part == 0:
            srd(a, 16, 40, 41, 0x200000)
            srd(a, 20, 46, 47, 0x200000)
            srd(a, 24, 60, 61, 0x400)
            a(f"""
            v_and_b32 v{u1}, 31, v0
            v_lshrrev_b32 v{u2}, 5, v0
            v_mul_u32_u24 v{vPW}, 80, v{u1}
            s_mul_i32 s3, s6, 2560
            v_add_u32 v{vPW}, s3, v{vPW}
            v_lshl_add_u32 v{SP+3}, v{u2}, 2, v{vPW}
            v_lshl_add_u32 v{vPW}, v{u2}, 4, v{vPW}
            v_lshrrev_b32 v{u0}, 4, v0     ; g
            s_lshr_b32 s3, s6, 1
            s_lshl_b32 s3, s3, 3
            s_and_b32 s4, s6, 1
            s_lshl_b32 s4, s4, 1
            s_add_u32 s3, s3, s4
            v_and_b32 v{u1}, 1, v{u0}
            v_lshl_add_u32 v{u1}, v{u1}, 2, v{u2}
            v_add_u32 v{u1}, s3, v{u1}     ; n = 8*(w>>1) + 2*(w&1) + (g>>1) + 4*(g&1)
            v_mul_u32_u24 v{vPL}, 80, v{u1}
            v_and_b32 v{u2}, 15, v0        ; d
            v_lshl_add_u32 v{vPR}, v{u2}, 2, v{vPL}
            v_and_b32 v{u3}, 7, v0
            v_mul_u32_u24 v{u3}, 2560, v{u3}
            v_add3_u32 v{vPL}, v{vPL}, v{u3}, 64
            s_lshl_b32 s31, s28, 16
            s_lshl_b32 s33, s6, 13
            s_add_u32 s33, s33, {WS_WOF:#x}
            """)
        elif part == 1:
            a(f"""
            v_and_b32 v{u3}, 7, v{u1}      ; token
            v_lshrrev_b32 v{u1}, 3, v{u1}  ; head_local
            v_mul_u32_u24 v{vOW}, 144, v{u3}
            v_lshl_add_u32 v{vOW}, v{u1}, 5, v{vOW}
            v_lshl_add_u32 v{vOW}, v{u2}, 1, v{vOW}
            v_add_u32 v{vOW}, {L_OB:#x}, v{vOW}
            v_and_b32 v{u3}, 7, v0
            v_mul_u32_u24 v{vOR}, 144, v{u3}
            v_lshl_add_u32 v{vOR}, v{u0}, 4, v{vOR}
            v_add_u32 v{vOR}, {L_OB:#x}, v{vOR}
            {"" if 'nozc' in dbg else f"v_and_b32 v{u1}, 8, v0"}
            {"" if 'nozc' in dbg else f"v_cmp_ne_u32 vcc, 0, v{u1}"}
            {"" if 'nozc' in dbg else f"v_mov_b32 v{u1}, {L_ZC:#x}"}
            {"" if 'nozc' in dbg else f"v_cndmask_b32 v{vOR}, v{vOR}, v{u1}, vcc"}
            v_mov_b32 v{vLM}, 0
            v_lshlrev_b32 v{vFR}, 2, v{u3}
            v_add_u32 v{vFR}, {L_FLG:#x}, v{vFR}
            """)
        else:
            a(f"v_pk_mov_b32 v[{SP}:{SP+1}], 0, 0")
            a(f"v_mov_b32 v{SP+2}, 0xdddddddd")
    def rd_qcm():
        a(f"ds_read_b128 v[{Q}:{Q+3}], v{vQA}")
        for k in range(4):
            a(f"ds_read_b128 v[{CM+4*k}:{CM+4*k+3}], v{vQA} offset:{L_MREF - L_Q}")
        a(f"v_add_u32 v{vQA}, 1024, v{vQA}")
    mf = "v_mfma_f32_32x32x16_bf16"
    def M1(kt, xb):
        if 'nom1' in dbg: a("s_nop 1"); return
        a(f"{mf} v[{X[xb]}:{X[xb]+15}], v[{K+4*kt}:{K+4*kt+3}], v[{Q}:{Q+3}], v[{CM}:{CM+15}]")
    def E(xb, lo, hi):
        for r in range(lo, hi):
            if 'expnop' in dbg:
                a("v_nop"); a("v_nop")
                continue
            if 'noexp' in dbg:
                a(f"v_cvt_pk_bf16_f32 v{X[xb]+r}, 0, v{X[xb]+r}"); a(f"v_cvt_pk_bf16_f32 v{X[xb]+r}, 0, v{X[xb]+r}")
                continue
            a(f"v_exp_f32 v{X[xb]+r}, v{X[xb]+r}")
    def C2(h, xb):
        for k in range(4):
            a(f"v_cvt_pk_bf16_f32 v{SP+4*h+k}, v{X[xb]+8*h+2*k}, v{X[xb]+8*h+2*k+1}")
    def M3(h, kt):
        xb = kt & 1
        if 'nom3' in dbg: a("s_nop 2"); return
        a(f"v_smfmac_f32_32x32x32_bf16 v[{O}:{O+15}], v[{V+8*kt+4*h}:{V+8*kt+4*h+3}], v[{X[xb]+8*h}:{X[xb]+8*h+7}], v{SP+2}")
    def Ozero():
        a(f"v_mfma_f32_32x32x8bf16_1k v[{O}:{O+15}], v[{SP}:{SP+1}], v[{SP}:{SP+1}], 0")
    def part_write():
        a(f"""
        ds_write_b128 v{vPW}, v[{O}:{O+3}]
        ds_write_b128 v{vPW}, v[{O+4}:{O+7}] offset:32
        ds_write_b32 v{SP+3}, v{O+8} offset:64
        """)
    def s1_read():
        a(f"ds_read_b32 v{S1+8}, v{vPL}")
        for k in range(4):
            a(f"ds_read2st64_b32 v[{S1+2*k}:{S1+2*k+1}], v{vPR} offset0:{20*k} offset1:{20*k+10}")
    def s1_calc():
        dp = lambda mod: f"v_add_f32_dpp v{S1+8}, v{S1+8}, v{S1+8} {mod} row_mask:0xf bank_mask:0xf"
        pa = (lambda x, y: f"v_add_f32 v{x}, v{x}, v{y}\nv_add_f32 v{x+1}, v{x+1}, v{y+1}") if 's1sc' in dbg else \
             (lambda x, y: f"v_pk_add_f32 v[{x}:{x+1}], v[{x}:{x+1}], v[{y}:{y+1}]")
        a(f"""
        {dp("quad_perm:[1,0,3,2]")}
        {pa(S1, S1+2)}
        {pa(S1+4, S1+6)}
        {dp("quad_perm:[2,3,0,1]")}
        {pa(S1, S1+4)}
        v_add_f32 v{S1}, v{S1}, v{S1+1}
        {dp("row_half_mirror")}
        v_rcp_f32 v{S1+1}, v{S1+8}
        v_maximum3_f32 v{vLM}, v{vLM}, v{S1+8}, abs(v{S1})
        v_mul_f32 v{S1}, v{S1}, v{S1+1}
        v_cvt_pk_bf16_f32 v{S1}, v{S1}, v{S1}
        ds_write_b16 v{vOW}, v{S1}
        """)
    def s2_read():
        for s in range(2):
            a(f"ds_read_b128 v[{BF+4*s}:{BF+4*s+3}], v{vOR} offset:{64*s}")
    def s2_mma(lo, hi):
        for u in range(lo, hi):
            s, t = u >> 2, u & 3
            a(f"v_mfma_f32_16x16x32_bf16 v[{OA+4*t}:{OA+4*t+3}], v[{WF+4*u}:{WF+4*u+3}], v[{BF+4*s}:{BF+4*s+3}], v[{OA+4*t}:{OA+4*t+3}]")
    def wf_load(lo, hi):
        if lo == 0:
            a("s_add_u32 s34, s33, s31")
            a("s_add_u32 s35, s34, 4096")
            a("s_add_u32 s31, s31, 0x10000")
            a("s_and_b32 s31, s31, 0x7ffff")
        for u in range(lo, hi):
            a(f"buffer_load_dwordx4 v[{WF+4*u}:{WF+4*u+3}], v{vWL}, s[8:11], s{34 + (u >> 2)} offen offset:{1024*(u&3)}{'' if 'wfpl' in dbg else ' nt' if 'wfnt' in dbg else SC}")
            vm.issue("WF")
    def ffn_prefetch():
        a(f"""
        s_mov_b32 s39, s6
        s_cmp_eq_u32 s39, 1
        s_cselect_b64 s[36:37], s[64:65], s[62:63]
        s_cmp_eq_u32 s39, 2
        s_cselect_b64 s[36:37], s[66:67], s[36:37]
        """)
        srd(a, 12, 36, 37, 512 * 1792 * 2)
        a(f"""
        s_and_b32 s3, s2, 7
        s_lshr_b32 s4, s2, 3
        s_mul_i32 s5, s4, {16*3584}
        s_mul_i32 s36, s3, 448
        s_and_b32 s36, s36, 0xffffff80
        s_add_u32 s5, s5, s36
        s_lshl_b32 s36, s3, 7
        s_mul_i32 s37, s4, {56*1024}
        s_add_u32 s36, s36, s37
        v_lshrrev_b32 v{t0}, 2, v0
        v_mul_u32_u24 v{t0}, 3584, v{t0}
        v_and_b32 v{t1}, 3, v0
        v_lshl_add_u32 v{t0}, v{t1}, 7, v{t0}
        v_min_u32 v{t1}, 55, v0
        v_lshlrev_b32 v{t1}, 10, v{t1}
        s_cmp_eq_u32 s39, 2
        s_cselect_b32 s38, s36, s5
        s_cselect_b64 vcc, -1, 0
        v_cndmask_b32 v{vPA}, v{t0}, v{t1}, vcc
        s_lshl_b32 s39, s6, {PFS}
        s_add_u32 s39, s39, 1
        s_cmp_gt_u32 s6, 2
        s_cselect_b32 s39, 99, s39
        """)
    def ffn_setup():
        a(f"""
        s_and_b32 s3, s2, 7
        s_lshr_b32 s4, s2, 3
        s_and_b32 s5, s6, 1
        s_cmp_eq_u32 s5, 0
        s_cselect_b64 s[36:37], s[62:63], s[64:65]
        s_cmp_lt_u32 s2, 112
        s_cselect_b64 s[36:37], s[36:37], s[66:67]
        """)
        srd(a, 68, 36, 37, 512 * 1792 * 2)
        a(f"""
        s_mul_i32 s76, s3, 14
        s_add_u32 s76, s76, s4           ; fs
        s_lshl_b32 s77, s3, 2
        s_add_u32 s77, s77, s4
        s_sub_u32 s77, s77, 14           ; cb
        s_lshr_b32 s5, s6, 1
        s_mul_i32 s5, s5, {128*3584}
        s_lshl_b32 s36, s76, 5
        s_add_u32 s5, s5, s36
        s_mul_i32 s36, s6, {224*1024}
        s_lshl_b32 s37, s77, 5
        s_add_u32 s36, s36, s37
        s_cmp_lt_u32 s2, 112
        s_cselect_b32 s72, s5, s36
        s_movk_i32 s73, 1024
        s_cselect_b32 s73, 3584, s73
        s_cselect_b32 s75, 4, 7
        s_cmp_lt_u32 s2, 144
        s_cselect_b32 s75, s75, 0
        s_mul_i32 s74, s6, 7168
        s_add_u32 s74, s74, {L_FW:#x}
        v_lshrrev_b32 v{vFS}, 1, v0
        v_mul_lo_u32 v{vFS}, v{vFS}, s73
        v_and_b32 v{t1}, 1, v0
        v_lshl_add_u32 v{vFS}, v{t1}, 4, v{vFS}
        s_lshl_b32 s73, s73, 5
        s_mov_b32 s78, s74
        """)
    def ffn_stage():
        a(f"""
        s_cmp_lt_u32 s29, 4
        s_cbranch_scc1 K2_nost
        """)
        for e in range(2):
            a(f"""
            s_cmp_eq_u32 s75, 0
            s_cbranch_scc1 K2_nost
            s_mov_b32 m0, s78
            s_sub_u32 s75, s75, 1
            buffer_load_dwordx4 v{vFS}, s[68:71], s72 offen lds
            s_add_u32 s78, s78, 1024
            s_add_u32 s72, s72, s73
            """)
        a.label("K2_nost")
    def ffn_issue():
        a(f"""
        s_cmp_lg_u32 s29, s39
        s_cbranch_scc1 K2_nopf
        buffer_load_dword v{vPD}, v{vPA}, s[12:15], s38 offen
        """)
        a.label("K2_nopf")
    def setprio(p):
        if prio: a(f"s_setprio {p}")
    def mref_mma(q, d):
        a(f"{mf} v[{d}:{d+15}], v[{K}:{K+3}], v[{q}:{q+3}], 0")
        a(f"{mf} v[{d+16}:{d+31}], v[{K+4}:{K+7}], v[{q}:{q+3}], 0")
    def mref_max(S):
        a(f"v_max3_f32 v{t0}, v{S}, v{S+1}, v{S+2}")
        for r in range(3, 31, 2):
            a(f"v_max3_f32 v{t0}, v{t0}, v{S+r}, v{S+r+1}")
        a(f"""
        v_max_f32 v{t0}, v{t0}, v{S+31}
        v_mov_b32 v{t1}, v{t0}
        v_permlane32_swap_b32 v{t1}, v{t0}
        v_max_f32 v{t0}, v{t0}, v{t1}
        """)
        for r in range(4): a(f"v_sub_f32 v{S+r}, {f2u(-OFFS):#x}, v{t0}")
        a(f"ds_write_b128 v{t4}, v[{S}:{S+3}] offset:{L_MREF - L_Q}")
    def kv_first():
        ldK(0); ldK(1); ldV(0); ldK(2); ldV(1)
    for p in range(3): late_setup(p)
    ffn_prefetch(); ffn_setup()
    a(f"""
    s_lshl_b32 s3, s6, 2
    s_add_u32 s3, s3, {L_FLG:#x}
    v_mov_b32 v{vFW}, s3
    s_movk_i32 s59, {L_Q + 2048:#x}
    s_lshl_b32 s3, s30, 2
    s_or_b32 s3, s3, s6
    s_cmp_lt_u32 s3, 4
    s_cbranch_scc1 K1_comp
    """)
    a.label("K12_join")
    for r in range(0, 16, 2):
        a(f"v_pk_mov_b32 v[{OA+r}:{OA+r+1}], 0, 0")
    a(f"""
    s_min_u32 s3, s75, 4
    s_bfm_b32 s43, s3, 4
    s_sub_u32 s3, s75, s3
    s_bfm_b32 s42, s3, 5
    """)
    def fq_store():
        a(f"""
        v_mov_b32 v{t0}, s58
        s_lshl_b32 s3, s2, 6
        s_lshl_b32 s4, s6, 2
        s_add_u32 s3, s3, s4
        s_add_u32 s3, s3, {WS_FQ:#x}
        s_waitcnt vmcnt(7)
        s_mov_b64 exec, 1
        buffer_store_dword v{t0}, v{SP}, s[8:11], s3 offen sc1
        s_mov_b64 exec, -1
        """)
        vm.issue("FQS")
    if 'ps' in dbg.split(','):
        a(f"""
        s_lshl_b32 s3, s30, 3
        s_or_b32 s3, s3, s6
        s_cmp_lg_u32 s3, 4
        s_cbranch_scc1 K2_nb2
        s_waitcnt vmcnt(0)
        s_barrier
        """)
        a.label("K2_nb2")
    a(f"""
    ds_write2_b32 v{vFW}, v{SP}, v{SP} offset0:0 offset1:8
    ds_write2_b32 v{vFW}, v{SP}, v{SP} offset0:64 offset1:80
    s_cmp_lg_u32 s30, 0
    s_cbranch_scc1 K2_safe
    s_cmp_eq_u32 s6, 4
    s_cbranch_scc1 K2_poller
    s_waitcnt lgkmcnt(0)
    s_barrier
    """)
    st(1, False); st(5, 4)
    if 'amp' in dbg: a('s_memrealtime s[88:89]'); a('s_waitcnt lgkmcnt(0)')
    kv_first()
    fq_store()
    a("s_branch K2_go")
    a.label("K2_poller")
    PA, PB = X[0], X[0] + 8
    a(f"""
    v_lshlrev_b32 v{t1}, {FLS}, v0
    s_and_b32 s3, s2, 7
    s_lshl_b32 s3, s3, 14
    s_add_u32 s3, s3, {WS_FL:#x}
    s_add_u32 s4, s3, {64 << FLS}
    s_add_u32 s5, s3, {128 << FLS}
    s_add_u32 s34, s3, {192 << FLS}
    s_mov_b32 s36, 0
    """)
    def fissue(b):
        for k, sr in enumerate(("s3", "s4", "s5", "s34")):
            a(f"buffer_load_dword v{b+k}, v{t1}, s[8:11], {sr} offen sc1")
    def fchk(b):
        for r in range(4): a(f"v_xor_b32 v{b+r}, s58, v{b+r}")
        a(f"""
        v_or3_b32 v{b}, v{b}, v{b+1}, v{b+2}
        v_or_b32 v{b}, v{b}, v{b+3}
        v_cmp_ne_u32 vcc, 0, v{b}
        s_cbranch_vccz K2_sync0
        """)
    if int(OPT.get('fd', 0)): a(f"s_sleep {OPT.get('fd', 0)}")
    if 'fnp' in dbg:
        a.label("K2_fl")
        fissue(PA); a("s_waitcnt vmcnt(0)"); fchk(PA)
        a(f"s_sleep {OPT.get('fsl', 2)}")
    else:
        fissue(PA)
        a("s_sleep 3")
        a.label("K2_fl")
        fissue(PB); a("s_waitcnt vmcnt(4)"); fchk(PA)
        fissue(PA); a("s_waitcnt vmcnt(4)"); fchk(PB)
    a(f"""
    s_add_u32 s36, s36, 1
    s_cmp_lt_u32 s36, 0x40000
    s_cbranch_scc1 K2_fl
    """)
    a.label("K2_sync0")
    st(4, 4)
    a(f"""
    s_cmp_lg_u32 s2, 0
    s_cbranch_scc1 K2_sync1
    v_mov_b32 v{t0}, s58
    s_mov_b32 s3, {WS_EP:#x}
    s_mov_b64 exec, 1
    buffer_store_dword v{t0}, v{SP}, s[8:11], s3 offen sc1
    s_mov_b64 exec, -1
    """)
    a.label("K2_sync1")
    vm.q = []; vm.done = -1
    ldK(0); ldK(1)
    a("s_waitcnt lgkmcnt(0)")
    a("s_barrier")
    st(1, False); st(5, 4)
    if 'amp' in dbg: a('s_memrealtime s[88:89]'); a('s_waitcnt lgkmcnt(0)')
    a(f"ds_read_b128 v[{Q}:{Q+3}], v{vQA}")
    ldV(0); ldK(2); ldV(1)
    a("s_waitcnt vmcnt(5) lgkmcnt(0)")
    mref_mma(Q, X[0]); mref_max(X[0])
    fq_store()
    a("s_branch K2_go")
    a.label("K2_safe")
    S = X[0]
    a(f"""
    v_and_b32 v{t0}, 31, v0
    v_lshlrev_b32 v{S1+4}, 2, v{t0}
    v_add_u32 v{S1+4}, {L_MX:#x}, v{S1+4}
    s_lshl_b32 s3, s44, 7
    v_add_u32 v{S1+5}, s3, v{S1+4}
    v_mov_b32 v{t0}, 0xff800000
    ds_write_b32 v{S1+5}, v{t0}
    s_waitcnt vmcnt(0) lgkmcnt(0)
    s_barrier
    v_mov_b32 v{t1}, v{vQA}
    s_mov_b32 s29, 0
    """)
    a.label("K2_safe_loop")
    a(f"""
    ds_read_b128 v[{BF}:{BF+3}], v{t1}
    v_mov_b32 v{t0}, 0xff800000
    s_waitcnt lgkmcnt(0)
    """)
    for t in range(8):
        a(f"v_mfma_f32_32x32x16_bf16 v[{S}:{S+15}], v[{K+4*t}:{K+4*t+3}], v[{BF}:{BF+3}], 0")
        for r in range(0, 16, 2):
            a(f"v_max3_f32 v{t0}, v{t0}, v{S+r}, v{S+r+1}")
    a(f"""
    ds_max_f32 v{S1+4}, v{t0}
    v_add_u32 v{t1}, 1024, v{t1}
    v_add_u32 v{S1+4}, 128, v{S1+4}
    s_add_u32 s29, s29, 1
    s_cmp_lt_u32 s29, 8
    s_cbranch_scc1 K2_safe_loop
    s_waitcnt lgkmcnt(0)
    s_barrier
    ds_read_b32 v{t0}, v{S1+5}
    s_waitcnt lgkmcnt(0)
    """)
    for r in range(4): a(f"v_sub_f32 v{BF+r}, 0, v{t0}")
    a(f"ds_write_b128 v{t4}, v[{BF}:{BF+3}] offset:{L_MREF - L_Q}")
    a.label("K2_go")
    a("s_waitcnt lgkmcnt(0)")
    a("s_barrier")
    st(2, False)
    rd_qcm()
    vm.wait("K0")
    a("s_waitcnt lgkmcnt(0)")
    M1(0, 0)
    a("s_mov_b32 s29, 1")
    P0 = OPT.get('p0', '33322111')
    setprio(int(P0[0]))
    LA = int(OPT.get('la', 0))
    for k in range(LA + 1):
        ldK(3 + k); ldV(2 + k)
    st(3, False)
    if 'leak' in dbg or 'amp' in dbg: a('s_memrealtime s[94:95]'); a('s_waitcnt lgkmcnt(0)')
    def tile(i, hook):
        xb = i & 1; xn = xb ^ 1
        hook(i, 'a')
        E(xb, 0, 2)
        hook(i, 'm3b')
        E(xb, 2, 5)
        hook(i, 'm1')
        M1((i + 1) & 7, xn)
        hook(i, 0)
        if i == 0:
            E(xb, 5, 12)
            hook(i, 1)
            Ozero()
            E(xb, 12, 16)
            M3(0, i)
            hook(i, 2)
        else:
            E(xb, 5, 8)
            hook(i, 'e1')
            E(xb, 8, 10)
            hook(i, 1)
            M3(0, i)
            hook(i, 2)
            E(xb, 10, 13)
            hook(i, 'e2')
            E(xb, 13, 15)
            hook(i, 'e3')
            E(xb, 15, 16)
    def hook0(i, pos):
        if pos == 'a' and i in (0, 2, 4, 6): st(1 + i // 2, 3)
        if pos == 'a' and i > 0 and P0[i] != P0[i - 1]: setprio(int(P0[i]))
        if pos == 'm3b' and i > 0:
            vm.wait(f"V{i-1}1"); M3(1, i - 1)
        if pos == 'm1':
            if i < 7: vm.wait(f"K{i+1}")
            else: a("s_waitcnt lgkmcnt(0)")
        if pos == 0:
            if i + 4 + LA <= 7: ldK(i + 4 + LA)
            if i + 3 + LA <= 7: ldV(i + 3 + LA)
            if i == 6: wf_load(0, 4)
            if i == 7: wf_load(4, 8)
        QT = int(OPT.get('qt', 1))
        if pos == 'e1' and i == QT:
            a(f"buffer_load_dword v{t0}, v{SP}, s[8:11], s45 offen sc1"); vm.issue("FQ")
        if pos == 'e1' and i == QT + 1:
            vm.wait("FQ")
            a(f"v_cmp_ne_u32 vcc, s58, v{t0}")
            a("s_cbranch_vccnz K2_qspin")
            a.label("K2_qback")
            a(f"buffer_load_dwordx4 v[{BF}:{BF+3}], v{vWL}, s[8:11], s32 offen sc1"); vm.issue("Q")
        if pos == 'e2' and i == int(OPT.get('qw', 4)):
            vm.wait("Q")
            a(f"ds_write_b128 v{t4}, v[{BF}:{BF+3}]")
            mref_mma(BF, WF)
        if pos == 'e1' and i == int(OPT.get('qw', 4)) + 1:
            a("s_cmp_lg_u32 s30, 0")
            a("s_cbranch_scc1 K2_keepm")
            mref_max(WF)
            a.label("K2_keepm")
        if pos == 1:
            if i == 6:
                a("s_waitcnt lgkmcnt(0)"); a("s_barrier"); rd_qcm()
            vm.wait(f"V{i}0")
        if pos == 2 and i == 7:
            vm.wait("V71")
    for i in range(8): tile(i, hook0)
    st(5, 3)
    a.raw(".p2align 3")
    a.label("K2_round")
    spins = []
    def poll(off):
        if 'xchk' in dbg: return
        a(f"ds_read_b32 v{vFV}, v{vFR} offset:{off}")
    def check(off):
        if 'xchk' in dbg: return
        k = len(spins); spins.append(off)
        a(f"""
        s_waitcnt lgkmcnt(0)
        v_cmp_gt_u32 vcc, s59, v{vFV}
        s_cbranch_vccnz K2_spin{k}
        """)
        a.label(f"K2_back{k}")
    PR = dict(x.split('=') for x in dbg.split(',') if '=' in x).get('pr', 'c')
    def hook(i, pos):
        if pos == 'm3b': M3(1, (i - 1) & 7)
        if pos == 'm1' and i == 7: a("s_waitcnt lgkmcnt(0)")
        if pos == 1 and i == 6: rd_qcm()
        if 'nohook' in dbg: return
        if 'bar' in dbg.split(','):
            if pos == 'a' and i in (0, 6, 7): setprio({6: 2, 7: 1, 0: 0}[i])
            if i == 0 and pos == 1: part_write()
            if i == 1 and pos == 0:
                a("s_waitcnt lgkmcnt(0)"); a("s_barrier"); setprio(2); s1_read()
            if i == 2 and pos == 0:
                a("s_waitcnt lgkmcnt(0)"); s1_calc(); setprio(1)
            if i == 3 and pos == 0: setprio(0)
            if i == 4 and pos == 0:
                a("s_waitcnt vmcnt(0) lgkmcnt(0)"); a("s_barrier"); setprio(3); s2_read()
            seq = [(4, 'e3'), (5, 'e1'), (5, 'e2'), (5, 'e3'), (6, 'e1'), (6, 'e2'), (6, 'e3'), (7, 'e1')]
        else:
            ca = int(OPT.get('ca', 2)); cb = int(OPT.get('cb', 5)); PT = OPT.get('pt', '10220332')
            slots = [(t, p) for t in range(1, 8) for p in (('a', 'e1', 'e2', 'e3') if cb >= 6 else ('e1', 'e2', 'e3'))]
            if i == 0 and pos == 1:
                if 'xpw' not in dbg: part_write()
                a(f"ds_write_b32 v{vFW}, v{vQA}")
            if i == ca and pos == 0: poll(0)
            if i == ca and pos == 2:
                check(0)
                if 'xs1' not in dbg: s1_read()
            if i == ca + 1 and pos == {'0': 0, '1': 'e1', '2': 'e2', '3': 'a'}[OPT.get('s1p', '3')]:
                a("s_waitcnt lgkmcnt(0)")
                if 'xs1' not in dbg: s1_calc()
                a(f"ds_write_b32 v{vFW}, v{vQA} offset:32")
            if i == cb - 1 and pos == 2: poll(32)
            if i == cb and pos == 'm1':
                check(32); s2_read(); a("s_waitcnt vmcnt(0)")
            if i == int(OPT.get('stp', 2)) and pos == 'e1' and 'nopf' not in dbg:
                a("s_bitcmp1_b32 s43, s29"); a("s_cbranch_scc1 K2_stg"); a.label("K2_stgb")
            if len(PT) == 8: PT = "".join(ch * 2 for ch in PT)
            for hpos, k in (('a', 2 * i), (2, 2 * i + 1)):
                if pos == hpos and PT[k] != PT[k - 1]: setprio(int(PT[k]))
            av = [x for x in slots if x > (cb, 'e1')]
            if OPT.get('sp', '0') == '1' and len(av) >= 12: av = [x for x in av if x[1] != 'e3']
            seq = av[:8]
            while len(seq) < 8: seq = sorted(seq + [seq[len(seq) % len(av)]])
        for u in [k for k, x in enumerate(seq) if x == (i, pos)]:
            if u == 0: a("s_waitcnt lgkmcnt(0)")
            if 'xmma' not in dbg: s2_mma(u, u + 1)
            if 'nowf' not in dbg: wf_load(u, u + 1)
            if u == 7 and 'nopf' not in dbg and PFP == 1:
                a("s_cmp_eq_u32 s29, s39"); a("s_cbranch_scc1 K2_side"); a.label("K2_sideb")
    for i in range(8): tile(i, hook)
    if 'rndst' in dbg:
        a(f"""
        s_memtime s[82:83]
        s_memrealtime s[100:101]
        s_waitcnt lgkmcnt(0)
        s_lshl_b32 s84, s2, 3
        s_add_u32 s84, s84, s6
        s_lshl_b32 s84, s84, 3
        s_add_u32 s84, s84, s29
        s_lshl_b32 s84, s84, 3
        s_add_u32 s84, s84, {WS_STAMP + 0x40000:#x}
        s_mov_b64 exec, 1
        v_mov_b32 v{S1+8}, s82
        v_mov_b32 v{S1+9}, s100
        v_mov_b32 v{S1+10}, 0
        buffer_store_dwordx2 v[{S1+8}:{S1+9}], v{S1+10}, s[8:11], s84 offen
        s_mov_b64 exec, -1
        """)
    a(f"""
    s_addk_i32 s59, 1024
    s_add_u32 s29, s29, 1
    s_cmp_lt_u32 s29, 8
    s_cbranch_scc1 K2_round
    """)
    st(4, False); st(0, True)
    if 'amp' in dbg: a('s_memrealtime s[98:99]'); a('s_waitcnt lgkmcnt(0)')
    M3(1, 7)
    XR = CM; WR = CM + 4; HV = X[0]; HN = X[0] + 8; PK = X[1]; ST = X[1] + 8
    a(f"""
    s_add_u32 s3, s7, s6
    s_lshl_b32 s4, s3, 10
    buffer_load_dwordx4 v[{XR}:{XR+3}], v{vWL}, s[16:19], s4 offen
    buffer_load_dwordx4 v[{WR}:{WR+3}], v{vWL}, s[24:27], 0 offen
    v_and_b32 v{t0}, 7, v0
    v_mul_u32_u24 v{t0}, 1040, v{t0}
    v_lshrrev_b32 v{t1}, 4, v0
    v_lshl_add_u32 v{t0}, v{t1}, 3, v{t0}
    s_lshl_b32 s5, s6, 7
    s_add_u32 s5, s5, {L_HB:#x}
    v_add_u32 v{t0}, s5, v{t0}
    s_mul_i32 s5, s6, 1040
    s_add_u32 s5, s5, {L_HB:#x}
    v_add_u32 v{t1}, s5, v{vWL}
    s_lshl_b32 s35, s6, 2
    s_add_u32 s35, s35, {L_KEY:#x}
    v_mov_b32 v{t4}, s35
    v_and_b32 v{t3}, 7, v0
    v_lshlrev_b32 v{t3}, 2, v{t3}
    v_add_u32 v{t3}, {L_KEY:#x}, v{t3}
    """)
    part_write()
    a("s_waitcnt lgkmcnt(0)"); a("s_barrier"); st(1, True); s1_read()
    a("s_waitcnt lgkmcnt(0)"); s1_calc()
    a(f"""
    v_mov_b32 v{t2}, {f2u(2.0**124):#x}
    v_cmp_nlt_f32 vcc, v{vLM}, v{t2}
    s_cmp_lg_u64 vcc, 0
    s_cselect_b32 s5, 1, 0
    v_mov_b32 v{t2}, s5
    ds_write_b32 v{t4}, v{t2} offset:32
    """)
    a("s_waitcnt vmcnt(2) lgkmcnt(0)"); a("s_barrier"); st(2, True); s2_read()
    a(f"ds_read_b32 v{t2}, v{t3} offset:32")
    a("s_waitcnt lgkmcnt(1)"); s2_mma(0, 8)
    a(f"""
    s_waitcnt lgkmcnt(0)
    v_cmp_ne_u32 vcc, 0, v{t2}
    s_cmp_eq_u64 vcc, 0
    s_cbranch_scc1 K2_good
    s_cmp_lg_u32 s30, 0
    s_cbranch_scc1 K2_good
    s_mov_b32 s30, 1
    s_waitcnt vmcnt(0)
    s_setprio 0
    s_branch K2_restart
    """)
    a.label("K2_good")
    a("s_mov_b32 exec_lo, 0x00ff00ff"); a("s_mov_b32 exec_hi, 0x00ff00ff")
    for t in range(4):
        a(f"v_cvt_pk_bf16_f32 v{S1+2*t}, v{OA+4*t}, v{OA+4*t+1}")
        a(f"v_cvt_pk_bf16_f32 v{S1+2*t+1}, v{OA+4*t+2}, v{OA+4*t+3}")
        a(f"ds_write_b64 v{t0}, v[{S1+2*t}:{S1+2*t+1}] offset:{32*t}")
    a("s_mov_b64 exec, -1")
    a("s_waitcnt vmcnt(0)")
    for r in range(4):
        a(f"v_lshlrev_b32 v{HV+2*r}, 16, v{XR+r}")
        a(f"v_and_b32 v{HV+2*r+1}, 0xffff0000, v{XR+r}")
        a(f"v_lshlrev_b32 v{WF+2*r}, 16, v{WR+r}")
        a(f"v_and_b32 v{WF+2*r+1}, 0xffff0000, v{WR+r}")
    a(f"""
    s_waitcnt lgkmcnt(0)
    s_barrier
    """)
    st(3, True)
    a(f"""
    ds_read_b128 v[{BF}:{BF+3}], v{t1}
    s_waitcnt lgkmcnt(0)
    """)
    for r in range(4):
        a(f"v_lshlrev_b32 v{HN+2*r}, 16, v{BF+r}")
        a(f"v_and_b32 v{HN+2*r+1}, 0xffff0000, v{BF+r}")
    P2 = lambda b, r: f"v[{b+r}:{b+r+1}]"
    for r in range(0, 8, 2): a(f"v_pk_add_f32 {P2(HV,r)}, {P2(HV,r)}, {P2(HN,r)}")
    for r in range(8): a(f"v_cvt_pk_bf16_f32 v{HV+r}, 0, v{HV+r}")
    SA, SB = S1, S1 + 2
    a(f"v_pk_add_f32 {P2(SA,0)}, {P2(HV,0)}, {P2(HV,2)}")
    a(f"v_pk_mul_f32 {P2(SB,0)}, {P2(HV,0)}, {P2(HV,0)}")
    a(f"v_pk_add_f32 {P2(SA,4)}, {P2(HV,4)}, {P2(HV,6)}")
    a(f"v_pk_fma_f32 {P2(SB,0)}, {P2(HV,2)}, {P2(HV,2)}, {P2(SB,0)}")
    a(f"v_pk_add_f32 {P2(SA,0)}, {P2(SA,0)}, {P2(SA,4)}")
    a(f"v_pk_fma_f32 {P2(SB,0)}, {P2(HV,4)}, {P2(HV,4)}, {P2(SB,0)}")
    a(f"v_add_f32 v{t0}, v{SA}, v{SA+1}")
    a(f"v_pk_fma_f32 {P2(SB,0)}, {P2(HV,6)}, {P2(HV,6)}, {P2(SB,0)}")
    a(f"v_add_f32 v{t2}, v{SB}, v{SB+1}")
    wave_sum(a, [t0, t2], [ST, ST + 1])
    ln_scalars(a, t0, t2, ST, ST + 2, ST + 1, ST + 3)
    st(4, True)
    for r in range(0, 8, 2): a(f"v_pk_add_f32 {P2(HN,r)}, {P2(HV,r)}, {P2(ST,0)} op_sel_hi:[1,0] neg_lo:[0,1] neg_hi:[0,1]")
    for r in range(8): a(f"v_cvt_pk_bf16_f32 v{HN+r}, 0, v{HN+r}")
    for r in range(0, 8, 2): a(f"v_pk_mul_f32 {P2(HN,r)}, {P2(HN,r)}, {P2(ST,2)} op_sel_hi:[1,0]")
    for r in range(8): a(f"v_cvt_pk_bf16_f32 v{HN+r}, 0, v{HN+r}")
    a(f"v_pk_mul_f32 {P2(SA,0)}, {P2(HN,0)}, {P2(WF,0)}")
    for r in range(2, 8, 2): a(f"v_pk_fma_f32 {P2(SA,0)}, {P2(HN,r)}, {P2(WF,r)}, {P2(SA,0)}")
    a(f"v_add_f32 v{t2}, v{SA}, v{SA+1}")
    fill = [f"v_pk_add_f32 {P2(WF+8,r)}, {P2(HV,r)}, {P2(HN,r)}" for r in range(0, 8, 2)]
    fill += [f"v_cvt_pk_bf16_f32 v{PK+4+r}, v{HV+2*r}, v{HV+2*r+1}" for r in range(4)]
    fill += [f"v_cvt_pk_bf16_f32 v{ST+4+r}, v{HN+2*r}, v{HN+2*r+1}" for r in range(4)]
    for mod in ("quad_perm:[1,0,3,2]", "quad_perm:[2,3,0,1]", "row_half_mirror", "row_mirror"):
        a(fill.pop(0)); a(fill.pop(0))
        a(f"v_add_f32_dpp v{t2}, v{t2}, v{t2} {mod} row_mask:0xf bank_mask:0xf")
    for w in (16, 32):
        a(f"v_mov_b32 v{t0}, v{t2}")
        a(fill.pop(0)); a(fill.pop(0))
        a(f"v_permlane{w}_swap_b32 v{t0}, v{t2}")
        a(f"v_add_f32 v{t2}, v{t2}, v{t0}")
    if 'leak' in dbg:
        a(f"""
        s_cmp_lg_u32 s3, 0
        s_cbranch_scc1 K2_leak
        s_memrealtime s[92:93]
        v_mov_b32 v{S1+4}, 0
        s_mov_b32 s5, {WS_SEL:#x}
        buffer_load_dwordx4 v[{S1}:{S1+3}], v{S1+4}, s[8:11], s5 offen
        s_waitcnt vmcnt(0) lgkmcnt(0)
        s_mov_b64 exec, 1
        v_add_f32 v{WF+8}, {f2u(64.0):#x}, v{WF+8}
        v_sub_u32 v{WF+9}, v{S1+2}, v{S1}
        v_sub_u32 v{WF+10}, v{S1+1}, v{S1}
        v_sub_u32 v{WF+11}, s90, v{S1}
        v_sub_u32 v{WF+12}, s94, v{S1}
        v_sub_u32 v{WF+13}, s92, v{S1}
        """)
        for r in range(9, 14):
            a(f"v_cvt_f32_u32 v{WF+r}, v{WF+r}")
            a(f"v_mul_f32 v{WF+r}, {f2u(0.005):#x}, v{WF+r}")
            a(f"v_min_f32 v{WF+r}, {f2u(20.0):#x}, v{WF+r}")
        a("s_mov_b64 exec, -1")
        a.label("K2_leak")
    a(f"""
    v_cvt_pk_bf16_f32 v{t2}, 0, v{t2}
    v_ashrrev_i32 v{t0}, 31, v{t2}
    v_or_b32 v{t0}, 0x80000000, v{t0}
    v_xor_b32 v{t2}, v{t2}, v{t0}
    v_and_b32 v{t2}, 0xffff0000, v{t2}
    s_sub_u32 s5, 0xffff, s3
    v_or_b32 v{t2}, s5, v{t2}      ; key
    ds_write_b32 v{t4}, v{t2}
    """)
    for r in range(4): a(f"v_cvt_pk_bf16_f32 v{PK+r}, v{WF+8+2*r}, v{WF+8+2*r+1}")
    a(f"""
    buffer_store_dwordx4 v[{PK}:{PK+3}], v{vWL}, s[20:23], s4 offen sc1
    """)
    a(f"""
    s_waitcnt lgkmcnt(0)
    s_barrier
    ds_read_b32 v{t1}, v{t3}
    s_waitcnt lgkmcnt(0)
    v_cmp_gt_u32 vcc, v{t1}, v{t2}
    v_cmp_eq_u32 s[36:37], v{t1}, v{t2}
    s_and_b32 s38, vcc_lo, 0xff
    s_bcnt1_i32_b32 s38, s38       ; rank
    """)
    st(5, False); st(5, True); st(0, 2); st(1, 2); st(2, 2); st(3, 2); st(4, 2); st(5, 2)
    a(f"""
    s_cmp_gt_u32 s38, 1
    s_cbranch_scc1 K2_pub0
    s_add_u32 s5, s4, {WS_H:#x}
    buffer_store_dwordx4 v[{PK+4}:{PK+7}], v{vWL}, s[8:11], s5 offen sc1
    s_add_u32 s5, s4, {WS_HN:#x}
    buffer_store_dwordx4 v[{ST+4}:{ST+7}], v{vWL}, s[8:11], s5 offen sc1
    v_cndmask_b32 v{ST+1}, v{t1}, 0, s[36:37]
    v_mov_b32 v{ST}, v{t2}
    s_lshl_b32 s5, s2, {G.KS_LOG}
    s_add_u32 s5, s5, {WS_KEY:#x}
    v_lshlrev_b32 v{t0}, 14, v0
    """)
    for mod in ("quad_perm:[1,0,3,2]", "quad_perm:[2,3,0,1]", "row_half_mirror"):
        a(f"v_max_u32_dpp v{ST+1}, v{ST+1}, v{ST+1} {mod} row_mask:0xf bank_mask:0xf")
    a("s_waitcnt vmcnt(0)")
    a.label("K2_pub0")
    a(f"""
    s_barrier
    s_cmp_lg_u32 s38, 0
    s_cbranch_scc1 K2_pub
    s_mov_b64 exec, {0xff if KREP else 1}
    buffer_store_dwordx2 v[{ST}:{ST+1}], v{t0}, s[8:11], s5 offen sc1
    s_mov_b64 exec, -1
    """)
    a.label("K2_pub")
    if 'amp' in dbg: a('s_memrealtime s[96:97]'); a('s_waitcnt lgkmcnt(0)')
    st(1, 2)
    def fin():
        if G.STAMP: a("s_waitcnt vmcnt(0)")
        stamp(a, 6)
        if G.STAMP: a("s_mov_b32 s91, s30")
        stamp_out(a, 1, 8, "s6", WF)
        a("s_endpgm")
    a(f"""
    s_cmp_ge_u32 s2, 144
    s_cbranch_scc1 K2_fin
    """)
    AFR = V
    KY = K; Y = K + 8; BX = V + 32; AC = K + 16
    a(f"""
    s_setprio 0
    v_bfe_u32 v{t0}, v0, 2, 2
    v_lshrrev_b32 v{t4}, 4, v0           ; g
    v_lshl_add_u32 v{t0}, v{t4}, 3, v{t0}
    v_lshlrev_b32 v{t0}, 5, v{t0}
    v_and_b32 v{t1}, 3, v0
    v_lshl_add_u32 v{t0}, v{t1}, 3, v{t0}
    v_add_u32 v{t0}, s74, v{t0}
    """)
    for sx in range(7):
        for half in range(2):
            d = AFR + 4 * sx + 2 * half
            a(f"ds_read_b64_tr_b16 v[{d}:{d+1}], v{t0} offset:{sx*1024 + half*128}")
    a(f"""
    v_and_b32 v{t3}, 1, v0
    v_lshlrev_b32 v{vPW}, 6, v{t3}
    v_lshl_add_u32 v{vPW}, v{t4}, 4, v{vPW}
    s_lshl_b32 s5, s6, 7
    s_add_u32 s5, s5, {L_RED:#x}
    v_add_u32 v{vPW}, s5, v{vPW}
    v_and_b32 v{vPR}, 31, v0
    v_lshlrev_b32 v{vPR}, 2, v{vPR}      ; (lane&31)*4
    v_lshrrev_b32 v{vOR}, 5, v0
    v_lshl_add_u32 v{vOR}, v{vOR}, 14, v{vPR}
    s_cmp_lg_u32 s6, 0
    s_cbranch_scc1 K2_nokey
    v_lshlrev_b32 v{t1}, {G.KS_LOG}, v0
    s_and_b32 s5, s2, {7 if KREP else 0}
    s_lshl_b32 s5, s5, 14
    s_add_u32 s5, s5, {WS_KEY:#x}
    s_add_u32 s79, s5, {64 << G.KS_LOG}
    s_add_u32 s80, s5, {128 << G.KS_LOG}
    s_add_u32 s81, s5, {192 << G.KS_LOG}
    s_mov_b32 s36, 0
    """)
    KZ = V + 60 - 8 * 0
    def poll_loop(name, issue, nld):
        K2R = X[0]
        def chk(b):
            a(f"""
            v_min3_u32 v{Y}, v{b}, v{b+1}, v{b+2}
            v_min3_u32 v{Y+1}, v{b+3}, v{b+4}, v{b+5}
            v_min3_u32 v{Y}, v{Y}, v{b+6}, v{b+7}
            v_min_u32 v{Y}, v{Y}, v{Y+1}
            v_cmp_eq_u32 vcc, 0, v{Y}
            """)
        sl = OPT.get('psl', 3)
        issue(KY)
        a(f"s_sleep {sl}")
        a.label(f"{name}_l")
        issue(K2R)
        a(f"s_waitcnt vmcnt({nld})")
        chk(KY)
        a(f"s_cbranch_vccz {name}_ok")
        issue(KY)
        a(f"s_waitcnt vmcnt({nld})")
        chk(K2R)
        a(f"""
        s_cbranch_vccz {name}_ok2
        s_add_u32 s36, s36, 1
        s_cmp_lt_u32 s36, 0x40000
        s_cbranch_scc1 {name}_l
        """)
        a.label(f"{name}_ok2")
        for r in range(0, 8, 2): a(f"v_pk_mov_b32 v[{KY+r}:{KY+r+1}], v[{K2R+r}:{K2R+r+1}], v[{K2R+r}:{K2R+r+1}] op_sel:[0,1]")
        a.label(f"{name}_ok")
    def kissue(b):
        for k, sr in enumerate(("s5", "s79", "s80", "s81")):
            a(f"buffer_load_dwordx2 v[{b+2*k}:{b+2*k+1}], v{t1}, s[8:11], {sr} offen sc1")
    if int(OPT.get('kd', 16)): a(f"s_sleep {OPT.get('kd', 16)}")
    poll_loop("K2_kp", kissue, 4)
    a.label("K2_kok")
    st(2, 2)
    if FS: a("s_mov_b32 s30, s36")
    B1, B2 = Y + 4, Y + 5
    a(f"""
    v_max_u32 v{B1}, v{KY}, v{KY+2}
    v_min_u32 v{B2}, v{KY}, v{KY+2}
    v_max3_u32 v{B2}, v{B2}, v{KY+1}, v{KY+3}
    v_max_u32 v{Y}, v{KY+4}, v{KY+6}
    v_min_u32 v{Y+1}, v{KY+4}, v{KY+6}
    v_max3_u32 v{Y+1}, v{Y+1}, v{KY+5}, v{KY+7}
    v_min_u32 v{Y+2}, v{B1}, v{Y}
    v_max_u32 v{B1}, v{B1}, v{Y}
    v_max3_u32 v{B2}, v{B2}, v{Y+1}, v{Y+2}
    v_mov_b32 v{Y}, v{B1}
    """)
    wave_max_u32(a, Y, Y + 1)
    a(f"""
    v_cmp_eq_u32 vcc, v{B1}, v{Y}
    v_cndmask_b32 v{B1}, v{B1}, v{B2}, vcc
    """)
    wave_max_u32(a, B1, Y + 1)
    a(f"""
    v_readfirstlane_b32 s40, v{Y}
    v_readfirstlane_b32 s41, v{B1}
    s_andn2_b32 s42, 0x7ff, s40
    s_andn2_b32 s43, 0x7ff, s41
    s_lshl_b32 s42, s42, 10
    s_lshl_b32 s43, s43, 10
    """)
    a.label("K2_nokey")
    a(f"""
    s_cmp_ge_u32 s2, 112
    s_cbranch_scc1 K2_down
    s_cmp_lg_u32 s6, 0
    s_cbranch_scc1 K2_up1
    s_add_u32 s36, s42, {WS_HN:#x}
    s_add_u32 s37, s43, {WS_HN:#x}
    buffer_load_dwordx4 v[{KY}:{KY+3}], v{vWL}, s[8:11], s36 offen sc1
    buffer_load_dwordx4 v[{KY+4}:{KY+7}], v{vWL}, s[8:11], s37 offen sc1
    s_waitcnt vmcnt(1)
    ds_write_b128 v{vWL}, v[{KY}:{KY+3}] offset:{L_XS}
    s_waitcnt vmcnt(0)
    ds_write_b128 v{vWL}, v[{KY+4}:{KY+7}] offset:{L_XS + 1040}
    """)
    a.label("K2_up1")
    st(3, 2)
    a(f"""
    v_mul_u32_u24 v{t0}, 1040, v{t3}
    v_lshl_add_u32 v{t0}, v{t4}, 4, v{t0}
    s_lshr_b32 s5, s6, 1
    s_lshl_b32 s5, s5, 8
    v_add_u32 v{t0}, s5, v{t0}
    s_waitcnt lgkmcnt(0)
    s_barrier
    """)
    for sx in range(4):
        a(f"ds_read_b128 v[{BX+4*sx}:{BX+4*sx+3}], v{t0} offset:{L_XS + 64*sx}")
    for sx in range(4):
        a(f"s_waitcnt lgkmcnt({3-sx})")
        c = "0" if sx == 0 else f"v[{AC}:{AC+3}]"
        a(f"v_mfma_f32_16x16x32_bf16 v[{AC}:{AC+3}], v[{AFR+4*sx}:{AFR+4*sx+3}], v[{BX+4*sx}:{BX+4*sx+3}], {c}")
    a(f"""
    ds_write_b128 v{vPW}, v[{AC}:{AC+3}]
    s_waitcnt lgkmcnt(0)
    s_barrier
    s_cmp_lg_u32 s6, 0
    s_cbranch_scc1 K2_fin
    """)
    def red_read():
        a(f"v_add_u32 v{t0}, {L_RED:#x}, v{vPR}")
        a("s_waitcnt vmcnt(0)")
        for k in range(4):
            a(f"ds_read2_b32 v[{KY+2*k}:{KY+2*k+1}], v{t0} offset0:{64*k} offset1:{64*k+32}")
        a("s_waitcnt lgkmcnt(0)")
        a(f"v_pk_add_f32 v[{KY}:{KY+1}], v[{KY}:{KY+1}], v[{KY+2}:{KY+3}]")
        a(f"v_pk_add_f32 v[{KY+4}:{KY+5}], v[{KY+4}:{KY+5}], v[{KY+6}:{KY+7}]")
        a(f"v_pk_add_f32 v[{KY}:{KY+1}], v[{KY}:{KY+1}], v[{KY+4}:{KY+5}]")
    st(4, 2)
    red_read()
    a(f"""
    v_cvt_pk_bf16_f32 v{KY}, 0, v{KY}
    v_cvt_pk_bf16_f32 v{KY+1}, 0, v{KY+1}
    """)
    sigmoid(a, KY + 2, KY, KY + 3)
    a(f"""
    v_mul_f32 v{KY}, v{KY}, v{KY+2}
    v_cvt_pk_bf16_f32 v{KY}, 0, v{KY}
    v_mul_f32 v{KY}, v{KY}, v{KY+1}
    v_cvt_pk_bf16_f32 v{KY}, 0, v{KY}
    v_or_b32 v{KY}, 1, v{KY}
    s_lshl_b32 s5, s76, 7
    s_add_u32 s5, s5, {WS_GU:#x}
    """)
    if GREP:
        for k in range(4):
            a(f"buffer_store_dword v{KY}, v{vOR}, s[8:11], s5 offen sc1")
            if k < 3: a("s_add_u32 s5, s5, 0x8000")
    else:
        a(f"""
        s_mov_b32 exec_hi, 0
        buffer_store_dword v{KY}, v{vPR}, s[8:11], s5 offen sc1
        s_mov_b64 exec, -1
        """)
    a(f"""
    s_branch K2_fin
    """)
    a.label("K2_down")
    HH, NN, GT, OO = Y + 6, Y + 7, AC + 4, AC + 5
    a(f"""
    s_cmp_lg_u32 s6, 0
    s_cbranch_scc1 K2_dn1
    v_bfe_u32 v{t0}, v0, 4, 1
    v_cmp_eq_u32 vcc, 0, v{t0}
    v_mov_b32 v{t0}, s43
    v_mov_b32 v{t1}, s42
    v_cndmask_b32 v{OO}, v{t0}, v{t1}, vcc
    v_and_b32 v{t0}, 15, v0
    v_lshl_add_u32 v{OO}, v{t0}, 1, v{OO}
    s_lshl_b32 s44, s77, 5
    s_add_u32 s36, s44, {WS_H:#x}
    s_add_u32 s37, s44, {WS_HN:#x}
    buffer_load_ushort v{HH}, v{OO}, s[8:11], s36 offen sc1
    buffer_load_ushort v{NN}, v{OO}, s[8:11], s37 offen sc1
    v_mov_b32 v{t0}, s41
    v_mov_b32 v{t1}, s40
    v_cndmask_b32 v{GT}, v{t0}, v{t1}, vcc
    v_and_b32 v{GT}, 0xffff0000, v{GT}
    v_ashrrev_i32 v{t0}, 31, v{GT}
    v_not_b32 v{t0}, v{t0}
    v_or_b32 v{t0}, 0x80000000, v{t0}
    v_xor_b32 v{GT}, v{GT}, v{t0}
    v_and_b32 v{GT}, 0xffff0000, v{GT}
    """)
    sigmoid(a, GT, GT, t0)
    a(f"v_cvt_pk_bf16_f32 v{GT}, 0, v{GT}")
    a.label("K2_dn1")
    a(f"""
    s_mul_i32 s5, s6, 1792
    s_and_b32 s37, s2, {7 if GREP else 0}
    s_lshl_b32 s37, s37, 14
    s_add_u32 s5, s5, s37
    s_add_u32 s5, s5, {WS_GU:#x}
    v_min_u32 v{t1}, 47, v0
    v_lshlrev_b32 v{t1}, 4, v{t1}
    s_lshl_b32 s37, s6, 10
    s_add_u32 s37, s37, {L_GB:#x}
    v_lshrrev_b32 v{t0}, 3, v0
    v_lshlrev_b32 v{vPL}, 5, v{t0}
    v_and_b32 v{t0}, 3, v0
    v_lshl_add_u32 v{vPL}, v{t0}, 3, v{vPL}
    v_bfe_u32 v{t0}, v0, 2, 1
    v_mul_u32_u24 v{t0}, 464, v{t0}
    v_add3_u32 v{vPL}, v{vPL}, v{t0}, s37
    v_mul_u32_u24 v{vOW}, 464, v{t3}
    v_lshl_add_u32 v{vOW}, v{t4}, 4, v{vOW}
    v_add_u32 v{vOW}, s37, v{vOW}
    s_mov_b32 s45, 0x07060302
    s_mov_b32 s36, 0
    """)
    def gissue(b):
        a(f"buffer_load_dwordx4 v[{b}:{b+3}], v{vWL}, s[8:11], s5 offen sc1")
        a(f"buffer_load_dwordx4 v[{b+4}:{b+7}], v{t1}, s[8:11], s5 offen offset:1024 sc1")
    if 'nogb' not in dbg:
        a("s_barrier")
        if int(OPT.get('gd', 24)): a(f"s_sleep {OPT.get('gd', 24)}")
    poll_loop("K2_gp", gissue, 2)
    a.label("K2_gok")
    st(4, 2)
    a(f"""
    v_perm_b32 v{Y}, v{KY+1}, v{KY}, s45
    v_perm_b32 v{Y+1}, v{KY+3}, v{KY+2}, s45
    v_perm_b32 v{Y+2}, v{KY+5}, v{KY+4}, s45
    v_perm_b32 v{Y+3}, v{KY+7}, v{KY+6}, s45
    ds_write_b64 v{vPL}, v[{Y}:{Y+1}]
    s_mov_b32 exec_hi, 0xffff
    ds_write_b64 v{vPL}, v[{Y+2}:{Y+3}] offset:256
    s_mov_b64 exec, -1
    """)
    for sx in range(7):
        a(f"ds_read_b128 v[{BX+4*sx}:{BX+4*sx+3}], v{vOW} offset:{64*sx}")
    for sx in range(7):
        a(f"s_waitcnt lgkmcnt({6-sx})")
        c = "0" if sx == 0 else f"v[{AC}:{AC+3}]"
        a(f"v_mfma_f32_16x16x32_bf16 v[{AC}:{AC+3}], v[{AFR+4*sx}:{AFR+4*sx+3}], v[{BX+4*sx}:{BX+4*sx+3}], {c}")
    a(f"""
    ds_write_b128 v{vPW}, v[{AC}:{AC+3}]
    s_waitcnt lgkmcnt(0)
    s_barrier
    s_cmp_lg_u32 s6, 0
    s_cbranch_scc1 K2_fin
    """)
    red_read()
    a(f"""
    v_add_f32 v{KY}, v{KY}, v{KY+1}
    v_lshlrev_b32 v{HH}, 16, v{HH}
    v_lshlrev_b32 v{NN}, 16, v{NN}
    v_cvt_pk_bf16_f32 v{KY}, 0, v{KY}
    v_mul_f32 v{KY}, v{KY}, v{GT}
    v_cvt_pk_bf16_f32 v{KY}, 0, v{KY}
    v_add_f32 v{KY}, v{KY}, v{NN}
    v_cvt_pk_bf16_f32 v{KY}, 0, v{KY}
    v_add_f32 v{KY}, v{KY}, v{HH}
    v_cvt_pk_bf16_f32 v{KY}, v{KY}, v{KY}
    s_mov_b32 exec_hi, 0
    buffer_store_short v{KY}, v{OO}, s[20:23], s44 offen sc1
    s_mov_b64 exec, -1
    """)
    a.label("K2_fin")
    if 'amp' in dbg:
        q = int(OPT['amp'])
        expr = {0: None, 1: ("s83", "s90"), 2: ("s84", "s90"), 3: ("s85", "s90"), 4: ("s86", "s90"), 5: ("s88", "s90"), 6: ("s94", "s90"), 7: ("s98", "s94"), 8: ("s96", "s98")}[q]
        a(f"""
        s_or_b32 s5, s2, s6
        s_cmp_lg_u32 s5, 0
        s_cbranch_scc1 K2_amp_end
        """)
        if expr: a(f"s_sub_u32 s85, {expr[0]}, {expr[1]}")
        else: a("s_mov_b32 s85, 0")
        a(f"""
        s_min_u32 s85, s85, 5000
        s_lshl_b32 s85, s85, 1
        s_add_u32 s85, s85, 600
        s_add_u32 s85, s85, s96
        """)
        a.label("K2_amp")
        a(f"""
        s_memrealtime s[92:93]
        s_waitcnt lgkmcnt(0)
        s_sub_u32 s86, s92, s85
        s_cmp_lt_i32 s86, 0
        s_cbranch_scc1 K2_amp
        """)
        a.label("K2_amp_end")
    if G.STAMP: a("s_waitcnt vmcnt(0)")
    stamp(a, 6)
    if G.STAMP: a("s_mov_b32 s91, s30")
    stamp_out(a, 1, 8, "s6", WF)
    dstamp(a, 1, True, 240)
    a.label("K2_end")
    a("s_endpgm")
    if 'nopf' not in dbg:
        a.label("K2_side")
        a(f"buffer_load_dword v{vPD}, v{vPA}, s[12:15], s38 offen")
        a("s_branch K2_sideb")
        a.label("K2_stg")
        for e in range(2):
            a(f"""
            s_mov_b32 m0, s78
            s_add_u32 s78, s78, 1024
            buffer_load_dwordx4 v{vFS}, s[68:71], s72 offen lds
            s_add_u32 s72, s72, s73
            """)
            if e == 0:
                a("s_bitcmp1_b32 s42, s29"); a("s_cbranch_scc0 K2_stgb")
        a("s_branch K2_stgb")
    a.label("K2_qspin")
    a(f"""
    s_mov_b32 s36, 0
    """)
    a.label("K2_qspin1")
    a(f"""
    s_sleep 2
    buffer_load_dword v{t0}, v{SP}, s[8:11], s45 offen sc1
    s_add_u32 s36, s36, 1
    s_waitcnt vmcnt(0)
    v_cmp_ne_u32 vcc, s58, v{t0}
    s_cbranch_vccz K2_qback
    s_cmp_lt_u32 s36, 0x40000
    s_cbranch_scc1 K2_qspin1
    s_branch K2_qback
    """)
    for k, off in enumerate(spins):
        a.label(f"K2_spin{k}")
        a(f"""
        s_sleep 1
        ds_read_b32 v{vFV}, v{vFR} offset:{off}
        s_waitcnt lgkmcnt(0)
        v_cmp_gt_u32 vcc, s59, v{vFV}
        s_cbranch_vccnz K2_spin{k}
        s_branch K2_back{k}
        """)
```

```python
from gen import *
import gen as G
import re

L_X = 0; L_W = 65536; L_KV = 131072; L_WOT = L_KV + 16384; L_DN = L_WOT + 2048; L1_TOTAL = L_DN + 64
L_Q0 = 0x6000

def gen_p1(a, dbg=''):
    SC = ' sc1'
    def p1(i):
        if 'p1st' in dbg: stamp(a, i)
        if 'amp' in dbg: a(f's_memrealtime s[100:101]'); a('s_waitcnt lgkmcnt(0)'); a(f's_mov_b32 s{82+i}, s100')
    FST = int(dict(x.split('=') for x in dbg.split(',') if '=' in x).get('fst', 0))
    WB = int(dict(x.split('=') for x in dbg.split(',') if '=' in x).get('wb', 5))
    WD = int(dict(x.split('=') for x in dbg.split(',') if '=' in x).get('wd', 9))
    PB = int(dict(x.split('=') for x in dbg.split(',') if '=' in x).get('pb', 99))
    FLS = int(dict(x.split('=') for x in dbg.split(',') if '=' in x).get('fls', 4))
    EPOCH = f"""
    s_add_u32 s56, s32, {WS_EP:#x}
    s_addc_u32 s57, s33, 0
    s_load_dword s58, s[56:57], 0
    """
    X = 32
    ACC = 96
    AF = 116
    T = 148
    a(f"""
    s_cmp_lt_u32 s2, 256
    s_cbranch_scc1 K1_go
    s_endpgm
    """)
    a.label("K1_go")
    stamp(a, 0)
    if ('lite' in dbg or 'amp' in dbg): a('s_memrealtime s[90:91]')
    dstamp(a, 0, False, 200)
    a(f"""
    s_load_dwordx8 s[24:31], s[0:1], 0
    s_load_dwordx2 s[44:45], s[0:1], 32
    s_load_dwordx2 s[32:33], s[0:1], 96
    """)
    if 'nocodepf' not in dbg:
        a(f"""
        s_cmp_ge_u32 s2, 16
        s_cbranch_scc1 K1_nocp
        v_subrev_u32 v30, 256, v0
        v_cmp_gt_u32 vcc, (K_all_end-k1_kernel+127)/128, v30
        s_and_saveexec_b64 s[62:63], vcc
        s_cbranch_execz K1_cpx
        s_getpc_b64 s[60:61]
        """)
        a.label("K1_pc")
        a(f"""
        s_sub_u32 s60, s60, K1_pc-k1_kernel
        s_subb_u32 s61, s61, 0
        v_lshlrev_b32 v30, 7, v30
        global_load_dword v31, v30, s[60:61]
        """)
        a.label("K1_cpx")
        a("s_mov_b64 exec, s[62:63]")
        a.label("K1_nocp")
    a(f"""
    s_and_b32 s3, s2, 7
    s_lshr_b32 s4, s2, 3
    s_and_b32 s5, s4, 7
    s_lshr_b32 s4, s4, 3           ; tb & 3
    s_lshl_b32 s3, s3, 2
    s_add_u32 s3, s3, s4
    v_lshrrev_b32 v1, 6, v0
    v_and_b32 v2, 63, v0           ; lane
    v_readfirstlane_b32 s6, v1     ; wave
    v_and_b32 v3, 15, v2           ; l & 15
    v_lshrrev_b32 v6, 2, v2
    v_lshrrev_b32 v4, 4, v2        ; g
    v_bfe_u32 v18, v2, 2, 2        ; r'
    v_and_b32 v19, 3, v2           ; c'
    v_lshl_add_u32 v20, v4, 3, v18 ; 8g + r'
    v_lshlrev_b32 v17, 5, v20
    v_lshl_add_u32 v17, v19, 3, v17
    s_cmp_ge_u32 s6, 4
    s_cbranch_scc1 K1_loader
    """)
    a(f"""
    s_load_dwordx2 s[48:49], s[0:1], 96
    s_load_dwordx2 s[40:41], s[0:1], 0
    s_load_dwordx8 s[60:67], s[0:1], 48
    s_load_dwordx2 s[46:47], s[0:1], 80
    s_lshl_b32 s7, s3, 6
    s_lshl_b32 s34, s6, 4
    s_add_u32 s7, s7, s34
    v_add_u32 v5, s7, v3           ; token
    v_lshrrev_b32 v7, 4, v2
    v_and_b32 v7, 2, v7
    v_xor_b32 v7, v7, v19
    v_lshlrev_b32 v6, 10, v6
    v_lshl_add_u32 v6, v7, 4, v6
    s_lshl_b32 s81, s6, 14
    s_lshl_b32 s80, s7, 10
    s_lshl_b32 s79, s5, 7          ; k rotation: 2j steps of 64 B
    s_waitcnt lgkmcnt(0)
    """)
    srd(a, 16, 24, 25, 0x200000)
    a(f"""
    s_add_u32 s42, s48, {WS_EP:#x}
    s_addc_u32 s43, s49, 0
    s_load_dword s58, s[42:43], 0
    """)
    def xloop(name, lo, hi):
        if lo >= hi: return
        a(f"s_mov_b32 s29, {lo}")
        a.label(name)
        a(f"""
        s_mov_b32 m0, s81
        s_add_u32 s3, s79, s80
        buffer_load_dwordx4 v6, s[16:19], s3 offen lds
        s_add_u32 m0, s81, {1024 - 64}
        s_add_u32 s79, s79, 128
        buffer_load_dwordx4 v6, s[16:19], s3 offen offset:64 lds
        s_and_b32 s79, s79, 0x3ff
        s_add_u32 s81, s81, 2048
        s_add_u32 s29, s29, 1
        s_cmp_lt_u32 s29, {hi}
        s_cbranch_scc1 {name}
        """)
    XN = int(dict(x.split('=') for x in dbg.split(',') if '=' in x).get('xn', 2))
    xloop("K1_x1", 0, XN)
    a("s_branch K12_setup1")
    EARLY = 'early' in dbg
    a.label("K1_loader")
    if 'noldprio' not in dbg: a("s_setprio 3")
    a(f"""
    s_sub_u32 s6, s6, 4
    v_lshrrev_b32 v7, 3, v2        ; row_in
    v_and_b32 v8, 7, v2            ; slot
    v_and_b32 v9, 2, v7
    v_xor_b32 v8, v8, v9
    v_xor_b32 v9, 4, v8
    s_lshl_b32 s35, s5, 7
    v_lshlrev_b32 v7, 10, v7
    v_add_u32 v7, s35, v7
    v_lshl_add_u32 v10, v8, 4, v7
    v_lshl_add_u32 v11, v9, 4, v7
    v_lshlrev_b32 v12, 4, v2       ; lane*16
    v_lshrrev_b32 v13, 1, v2
    v_lshlrev_b32 v13, 10, v13
    v_and_b32 v14, 1, v2
    v_lshl_add_u32 v13, v14, 4, v13
    s_lshl_b32 s65, s6, 14
    s_add_u32 s65, s65, {L_W}
    s_lshl_b32 s37, s6, 4
    s_lshl_b32 s38, s5, 3
    s_add_u32 s37, s37, s38
    v_and_b32 v15, 16, v2
    v_lshlrev_b32 v15, 3, v15
    v_xor_b32 v15, v15, v12
    s_lshl_b32 s39, s4, 2
    s_waitcnt lgkmcnt(0)
    """)
    a(EPOCH)
    srd(a, 12, 26, 27, 0x80000)
    a(f"""
    s_bitcmp0_b32 s5, 0
    s_cselect_b64 s[46:47], s[28:29], s[30:31]
    """)
    srd(a, 16, 46, 47, 0x4000)
    srd(a, 40, 44, 45, 0x80000)
    srd(a, 20, 32, 33, WS_SIZE)
    a(f"""
    s_cmp_lg_u32 s6, 0
    s_cbranch_scc1 K1_noz
    v_mov_b32 v32, 0
    v_mov_b32 v33, 0
    v_mov_b32 v34, 0
    v_mov_b32 v35, 0
    s_lshl_b32 s48, s2, 10
    s_add_u32 s48, s48, {WS_GU:#x}
    buffer_store_dwordx4 v[32:35], v12, s[20:23], s48 offen{SC}
    """)
    a.label("K1_noz")
    if 'notouch' not in dbg:
        a(f"""
        s_cmp_lg_u32 s6, 1
        s_cbranch_scc1 K1_not
        s_and_b32 s48, s2, 7
        s_lshl_b32 s48, s48, 14
        s_add_u32 s48, s48, {WS_FL:#x}
        v_lshlrev_b32 v32, {FLS + 2}, v2
        buffer_load_dword v33, v32, s[20:23], s48 offen sc1
        """)
        a.label("K1_not")
    a(f"""
    s_cmp_lt_u32 s6, 2
    s_cbranch_scc1 K1_nowo
    s_lshl_b32 s46, s2, 1
    s_and_b32 s47, s6, 1
    s_add_u32 s46, s46, s47
    s_lshr_b32 s47, s46, 6
    s_lshl_b32 s47, s47, 16
    s_bfe_u32 s48, s46, 0x10002
    s_lshl_b32 s48, s48, 15        ; s * 32 rows
    s_add_u32 s47, s47, s48
    s_bfe_u32 s48, s46, 0x30003
    s_lshl_b32 s48, s48, 7         ; w * 128 B
    s_add_u32 s47, s47, s48
    s_and_b32 s48, s46, 3
    s_lshl_b32 s48, s48, 5         ; t * 32 B
    s_add_u32 s47, s47, s48
    s_lshl_b32 s48, s6, 10
    s_add_u32 s48, s48, {L_WOT - 2048}
    s_mov_b32 m0, s48
    v_add_u32 v17, s48, v17
    buffer_load_dwordx4 v13, s[40:43], s47 offen lds
    s_lshl_b32 s48, s6, 2
    s_add_u32 s48, s48, {L_DN - 8}
    v_mov_b32 v36, s48
    v_mov_b32 v37, 0
    ds_write_b32 v36, v37
    v_mov_b32 v37, 1
    """)
    a.label("K1_nowo")
    a(f"""
    s_lshl_b32 s36, s6, 12
    s_lshl_b32 s38, s5, 11
    """)
    for i in range(4):
        a(f"""
        s_add_u32 s48, s36, {i*1024}
        s_add_u32 m0, s48, {L_KV}
        s_add_u32 s48, s48, s38
        s_and_b32 s48, s48, 0x3fff
        buffer_load_dwordx4 v15, s[16:19], s48 offen lds
        """)
    a("s_waitcnt lgkmcnt(0)")
    a("s_add_u32 s58, s58, 1")
    a(f"""
    s_barrier
    s_cmp_lt_u32 s6, 2
    s_cbranch_scc1 K1_nowo2
    s_waitcnt vmcnt(4)
    ds_read_b64_tr_b16 v[32:33], v17
    ds_read_b64_tr_b16 v[34:35], v17 offset:128
    s_lshl_b32 s46, s46, 10
    s_add_u32 s46, s46, {WS_WOF:#x}
    s_waitcnt lgkmcnt(0)
    buffer_store_dwordx4 v[32:35], v12, s[20:23], s46 offen sc1
    s_branch K1_wst
    """)
    a.label("K1_nowo2")
    a("buffer_load_dword v33, v12, s[16:19], 0 offen")
    a.label("K1_wst")
    for i in range(16):
        a(f"""
        s_add_u32 s48, s39, {i}
        s_and_b32 s48, s48, 15
        s_lshl_b32 s49, s48, 10
        s_add_u32 m0, s65, s49
        s_add_u32 s48, s48, s37
        s_and_b32 s48, s48, 63
        s_lshl_b32 s48, s48, 13
        buffer_load_dwordx4 v{10 + (i & 1)}, s[12:15], s48 offen lds
        """)
        if i == WB:
            a(f"s_waitcnt vmcnt({WB + 2})")
            p1(1)
            a("s_barrier")
        if i == WD and EARLY:
            a(f"""
            s_cmp_lt_u32 s6, 2
            s_cbranch_scc1 K1_nodn
            s_waitcnt vmcnt({WD + 1})
            ds_write_b32 v36, v37
            """)
            a.label("K1_nodn")
    p1(2)
    if 'ps' in dbg.split(','):
        a("s_cmp_eq_u32 s6, 0")
        a("s_cbranch_scc1 K12_setup")
    a("s_waitcnt vmcnt(0)")
    p1(3)
    a("s_barrier")
    a("s_cmp_eq_u32 s6, 0")
    a("s_cbranch_scc1 K12_setup")
    a("s_setprio 0")
    a("s_branch K12_setup")
    a.label("K1_comp")
    ONE = 24; SEL = 8
    SEL = 152
    a(f"""
    v_lshlrev_b32 v21, 7, v20
    v_lshl_add_u32 v21, v19, 3, v21   ; row*128 + 8c'
    v_add_u32 v21, {L_W}, v21
    v_lshrrev_b32 v22, 1, v18
    v_and_b32 v23, 1, v4
    v_lshl_or_b32 v22, v23, 1, v22 ; h
    """)
    for t in range(4):
        a(f"v_xor_b32 v23, {t}, v22")
        a(f"v_lshl_add_u32 v{13+t}, v23, 5, v21")
    a(f"""
    v_lshlrev_b32 v10, 6, v3
    v_lshrrev_b32 v7, 2, v3
    v_and_b32 v7, 2, v7
    v_xor_b32 v7, v7, v4
    v_lshl_add_u32 v10, v7, 4, v10
    s_lshl_b32 s3, s6, 14
    v_add_u32 v10, s3, v10
    v_and_b32 v7, 1, v4
    v_lshlrev_b32 v7, 7, v7
    v_add_u32 v17, {L_KV}, v17
    v_xor_b32 v12, v17, v7
    v_xor_b32 v17, 128, v12
    """)
    for r in range(4): a(f"v_mov_b32 v{ONE+r}, 0x3f803f80")
    a(f"""
    v_and_b32 v7, 1, v2
    v_lshlrev_b32 v7, 4, v7
    v_mov_b32 v8, 0x3f80
    v_lshlrev_b32 v7, v7, v8
    v_cmp_eq_u32 s[34:35], v18, v4 ; g == (l&15)>>2
    v_bfe_u32 v8, v2, 1, 1
    v_cmp_eq_u32 vcc, 0, v8
    s_and_b64 s[42:43], s[34:35], vcc
    s_andn2_b64 s[36:37], s[34:35], vcc
    v_mov_b32 v{SEL}, 0
    v_mov_b32 v{SEL+1}, 0
    v_cndmask_b32 v{SEL+2}, 0, v7, s[42:43]
    v_cndmask_b32 v{SEL+3}, 0, v7, s[36:37]
    v_mov_b32 v{SEL+4}, 0
    v_mov_b32 v{SEL+5}, 0
    """)
    xloop("K1_x2", XN, 8)
    a("s_waitcnt lgkmcnt(0)")
    a("s_add_u32 s58, s58, 1")
    a("s_barrier")
    p1(1)
    m16 = "v_mfma_f32_16x16x32_bf16"
    SUM = ACC; GR = ACC + 4; NM = 248
    def stat(u):
        xs = f"v[{X+4*u}:{X+4*u+3}]"
        a(f"{m16} v[{SUM}:{SUM+3}], v[{ONE}:{ONE+3}], {xs}, " + ("0" if u == 0 else f"v[{SUM}:{SUM+3}]"))
        a(f"{m16} v[{GR}:{GR+3}], {xs}, {xs}, " + ("0" if u == 0 else f"v[{GR}:{GR+3}]"))
    for u in range(0, 16, 2):
        a(f"s_waitcnt vmcnt({14-u})")
        a(f"ds_read_b128 v[{X+4*u}:{X+4*u+3}], v10 offset:{1024*u}")
        a(f"ds_read_b128 v[{X+4*u+4}:{X+4*u+7}], v10 offset:{1024*u+1024}")
        if u >= 4:
            a("s_waitcnt lgkmcnt(4)")
            stat(u - 4); stat(u - 3)
    a("s_waitcnt lgkmcnt(2)"); stat(12); stat(13)
    a("s_waitcnt lgkmcnt(0)"); stat(14); stat(15)
    RG = 184
    a("s_barrier")
    a("s_lshr_b32 s79, s28, 1")
    a("s_cmp_lg_u32 s79, s6")
    a("s_cbranch_scc1 K1_nokvf")
    for sx in range(16):
        for half in range(2):
            d = RG + 4 * sx + 2 * half
            a(f"ds_read_b64_tr_b16 v[{d}:{d+1}], v{17 if half else 12} offset:{sx*1024}")
    a.label("K1_nokvf")
    a(f"""
    v_and_b32 v7, 1, v2
    v_cmp_eq_u32 vcc, 1, v7
    v_cndmask_b32 v8, v{GR}, v{GR+1}, vcc
    v_cndmask_b32 v9, v{GR+2}, v{GR+3}, vcc
    v_cndmask_b32 v8, 0, v8, s[42:43]
    v_cndmask_b32 v26, v8, v9, s[36:37]
    """)
    for w in (16, 32):
        sum_swap(a, 26, 28, w)
    ln_scalars(a, SUM, 26, 28, 30, 27, 29)
    for r in range(4): a(f"v_sub_f32 v{NM+r}, 0, v28")
    if 'newln' not in dbg:
        NB = 4
        def cen(u, h):
            d = AF + 8 * (u % NB) + 4 * h
            if 'nolnleg' not in dbg:
                return f"v_mfma_f32_16x16x16bf16_1k v[{d}:{d+3}], v[{SEL+2}:{SEL+3}], v[{X+4*u+2*h}:{X+4*u+2*h+1}], v[{NM}:{NM+3}]"
            return f"{m16} v[{d}:{d+3}], v[{SEL+2-2*h}:{SEL+5-2*h}], v[{X+4*u}:{X+4*u+3}], v[{NM}:{NM+3}]"
        def sub(u):
            d = AF + 8 * (u % NB)
            xs = f"v[{X+4*u}:{X+4*u+3}]"
            a(cen(u, 0)); a(cen(u, 1))
        sub(0); sub(1)
        def ln_step(u):
            d = AF + 8 * (u % NB); L = []
            for r in range(4): L.append(f"v_cvt_pk_bf16_f32 v{d+r}, 0, v{d+r}")
            if u + 2 < 16:
                dd = AF + 8 * ((u + 2) % NB); xs = f"v[{X+4*(u+2)}:{X+4*(u+2)+3}]"
                L.append(cen(u + 2, 0))
            for r in range(4, 8): L.append(f"v_cvt_pk_bf16_f32 v{d+r}, 0, v{d+r}")
            if 'lnmul' in dbg:
                for r in range(8): L.append(f"v_mul_f32 v{d+r}, v{d+r}, v30")
            else:
                for r in range(0, 8, 2): L.append(f"v_pk_mul_f32 v[{d+r}:{d+r+1}], v[{d+r}:{d+r+1}], v[30:31] op_sel_hi:[1,0]")
            if u + 2 < 16:
                L.append(cen(u + 2, 1))
            for r in range(4): L.append(f"v_cvt_pk_bf16_f32 v{X+4*u+r}, v{d+2*r}, v{d+2*r+1}")
            return L
        for u in range(16):
            for ins in ln_step(u): a(ins)
    else:
        l16 = "v_mfma_f32_16x16x16bf16_1k"
        ID = f"v[{SEL+2}:{SEL+3}]"
        def A_(u, h):
            d = AF + 8 * (u & 1) + 4 * h
            return f"{l16} v[{d}:{d+3}], {ID}, v[{X+4*u+2*h}:{X+4*u+2*h+1}], v[{NM}:{NM+3}]"
        def R_(u):
            d = AF + 8 * (u & 1)
            return [f"v_cvt_pk_bf16_f32 v{X+4*u+r}, v{d+2*r}, v{d+2*r+1}" for r in range(4)]
        def B_(u, h):
            d = AF + 16 + 8 * (u & 1) + 4 * h
            return f"{l16} v[{d}:{d+3}], {ID}, v[{X+4*u+2*h}:{X+4*u+2*h+1}], 0"
        def S_(u):
            d = AF + 16 + 8 * (u & 1)
            if 'lnmul' in dbg: return [f"v_mul_f32 v{d+r}, v{d+r}, v30\nv_mul_f32 v{d+r+1}, v{d+r+1}, v30" for r in range(0, 8, 2)]
            return [f"v_pk_mul_f32 v[{d+r}:{d+r+1}], v[{d+r}:{d+r+1}], v[30:31] op_sel_hi:[1,0]" for r in range(0, 8, 2)]
        def P_(u):
            d = AF + 16 + 8 * (u & 1)
            return [f"v_cvt_pk_bf16_f32 v{X+4*u+r}, v{d+2*r}, v{d+2*r+1}" for r in range(4)]
        ok = lambda u: 0 <= u < 16
        for st_ in range(-2, 16):
            r = R_(st_ + 1) if ok(st_ + 1) else []
            sc = S_(st_) if ok(st_) else []
            pk = P_(st_) if ok(st_) else []
            seq = []
            if ok(st_ + 2): seq.append(A_(st_ + 2, 0))
            seq += r[:3]
            if ok(st_ + 2): seq.append(A_(st_ + 2, 1))
            seq += r[3:] + sc[:2]
            if ok(st_ + 1): seq.append(B_(st_ + 1, 0))
            seq += sc[2:] + pk[:1]
            if ok(st_ + 1): seq.append(B_(st_ + 1, 1))
            seq += pk[1:]
            for ins in seq: a(ins)
    p1(2)
    KV = ACC + 16
    a(f"""
    v_lshrrev_b32 v9, 1, v4
    v_and_b32 v11, 1, v4
    s_cmp_lg_u32 s79, s6
    s_cbranch_scc1 K1_q
    s_lshr_b32 s35, s80, 15
    s_mul_i32 s35, s35, {TS}
    s_add_u32 s35, s35, {WS_KV:#x}
    s_waitcnt lgkmcnt(0)
    s_bitcmp0_b32 s28, 0
    s_cbranch_scc0 K1_v
    """)
    for sx in range(16):
        a(f"{m16} v[{KV}:{KV+3}], v[{RG+4*sx}:{RG+4*sx+3}], v[{X+4*sx}:{X+4*sx+3}], " + ("0" if sx == 0 else f"v[{KV}:{KV+3}]"))
    a(f"""
    v_and_b32 v8, 31, v5
    v_lshlrev_b32 v8, 4, v8
    v_lshl_add_u32 v8, v9, 9, v8
    s_branch K1_kvs
    """)
    a.label("K1_v")
    for sx in range(16):
        a(f"{m16} v[{KV}:{KV+3}], v[{X+4*sx}:{X+4*sx+3}], v[{RG+4*sx}:{RG+4*sx+3}], " + ("0" if sx == 0 else f"v[{KV}:{KV+3}]"))
    a(f"""
    s_and_b32 s36, s6, 1
    s_mul_i32 s36, s36, 544
    s_add_u32 s35, s35, s36
    s_add_u32 s35, s35, 1024
    v_mul_u32_u24 v8, 272, v9
    v_mov_b32 v{AF}, 0x3f803f80
    v_mov_b32 v{AF+1}, 0x3f803f80
    v_mov_b32 v{AF+2}, 0x3f803f80
    v_mov_b32 v{AF+3}, 0x3f803f80
    s_mov_b32 exec_lo, 1
    s_mov_b32 exec_hi, 1
    buffer_store_dwordx4 v[{AF}:{AF+3}], v8, s[8:11], s35 offen offset:256 sc1
    s_mov_b64 exec, -1
    v_lshl_add_u32 v8, v3, 4, v8
    """)
    a.label("K1_kvs")
    a(f"""
    v_cvt_pk_bf16_f32 v{T}, v{KV}, v{KV+1}
    v_cvt_pk_bf16_f32 v{T+1}, v{KV+2}, v{KV+3}
    v_mov_b32 v{T+2}, v{T}
    v_mov_b32 v{T+3}, v{T+1}
    v_permlane16_swap_b32 v{T}, v{T+2}
    v_permlane16_swap_b32 v{T+1}, v{T+3}
    s_mov_b32 exec_lo, 0xffff
    s_mov_b32 exec_hi, 0xffff
    buffer_store_dwordx4 v[{T}:{T+3}], v8, s[8:11], s35 offen sc1
    s_mov_b64 exec, -1
    v_mov_b32 v7, s58
    v_lshlrev_b32 v8, 14, v2
    s_lshl_b32 s35, s2, {FLS}
    s_add_u32 s35, s35, {WS_FL:#x}
    v_mov_b32 v21, {L_DN}
    """)
    EARLY = 'early' in dbg
    if EARLY: a.label("K1_dn")
    if EARLY: a(f"""
    ds_read_b64 v[22:23], v21
    s_waitcnt vmcnt(0) lgkmcnt(0)
    v_and_b32 v22, v22, v23
    v_cmp_eq_u32 vcc, 0, v22
    s_cbranch_vccnz K1_dn
    s_mov_b64 exec, 0xff
    buffer_store_dword v7, v8, s[8:11], s35 offen sc1
    s_mov_b64 exec, -1
    """)
    a.label("K1_q")
    a("s_barrier")
    p1(3)
    def rd(s, t):
        for half in range(2):
            d = RG + 16 * (s % 3) + 4 * t + 2 * half
            a(f"ds_read_b64_tr_b16 v[{d}:{d+1}], v{13+t} offset:{s*4096 + half*512}")
    for t in range(4): rd(0, t)
    for t in range(4): rd(1, t)
    for s in range(16):
        a(f"s_waitcnt lgkmcnt({8 if s < 15 else 0})")
        for t in range(4):
            d = RG + 16 * (s % 3) + 4 * t
            c = "0" if s == 0 else f"v[{ACC+4*t}:{ACC+4*t+3}]"
            a(f"{m16} v[{ACC+4*t}:{ACC+4*t+3}], v[{d}:{d+3}], v[{X+4*s}:{X+4*s+3}], {c}")
            if s + 2 < 16: rd(s + 2, t)
        if s == PB: a("s_barrier")
        if s == FST and not EARLY:
            a(f"""
            s_cmp_lg_u32 s79, s6
            s_cbranch_scc1 K1_nofl
            s_waitcnt vmcnt(0)
            s_mov_b64 exec, 0xff
            buffer_store_dword v7, v8, s[8:11], s35 offen sc1
            s_mov_b64 exec, -1
            """)
            a.label("K1_nofl")
    a(f"""
    s_lshl_b32 s35, s28, 10
    v_lshrrev_b32 v7, 3, v5
    v_lshlrev_b32 v7, 13, v7
    v_and_b32 v8, 7, v5
    v_lshl_add_u32 v7, v8, 4, v7
    v_lshl_add_u32 v7, v9, 9, v7
    v_lshl_add_u32 v7, v11, 7, v7
    """)
    for tp in range(2):
        for t in (2 * tp, 2 * tp + 1):
            for r in range(4): a(f"v_cvt_pk_bf16_f32 v{ACC+4*t+r}, 0, v{ACC+4*t+r}")
            for r in range(4): a(f"v_mul_f32 v{ACC+4*t+r}, {f2u(0.25 * 1.4426950408889634):#x}, v{ACC+4*t+r}")
            a(f"v_cvt_pk_bf16_f32 v{AF+2*t}, v{ACC+4*t}, v{ACC+4*t+1}")
            a(f"v_cvt_pk_bf16_f32 v{AF+2*t+1}, v{ACC+4*t+2}, v{ACC+4*t+3}")
        b = AF + 4 * tp
        a(f"v_permlane16_swap_b32 v{b}, v{b+2}")
        a(f"v_permlane16_swap_b32 v{b+1}, v{b+3}")
        a(f"buffer_store_dwordx4 v[{b}:{b+3}], v7, s[8:11], s35 offen offset:{256*tp}{SC}")
    a(f"""
    s_cmp_lg_u32 s79, s6
    s_cbranch_scc1 K1_nol
    v_and_b32 v8, 0x3ff, v7
    s_mov_b32 s36, 0x00ff00ff
    s_and_b32 s37, s28, 1
    s_lshl_b32 s37, s37, 3
    s_lshl_b32 exec_lo, s36, s37
    s_mov_b32 exec_hi, exec_lo
    ds_write_b128 v8, v[{AF}:{AF+3}] offset:{L_Q0}
    ds_write_b128 v8, v[{AF+4}:{AF+7}] offset:{L_Q0 + 256}
    s_mov_b64 exec, -1
    """)
    a.label("K1_nol")
    p1(4)
    dstamp(a, 0, True, 200)
    a("s_branch K12_join")
    for k, l in enumerate(a.lines):
        if isinstance(l, Ins):
            t = re.sub(r"\bv(\d+)\b", lambda m: f"v{159 + int(m.group(1))}" if 1 <= int(m.group(1)) <= 15 else m.group(0), l.text)
            if t != l.text: a.lines[k] = Ins(t)
```

```python
from gen import *
import gen as G

L_PART = 0x0; L_Q = 0x6000; L_MREF = 0x8400; L_OB = 0x5800; L_KEY = 0xAC00; L_FLG = 0xAD00; L_ZC = 0xAE00; L_MX = 0xB000; L_HB = 0xB400
L_FW = 0xE000; L_TOTAL = 0xE000 + 8 * 7168
L_XS = L_PART; L_RED = L_PART + 0x1000; L_GB = L_PART + 0x2000
C_EXACT = 0.25 * 1.4426950408889634
OFFS = 96.0

def wave_sum(a, vs, ts):
    if isinstance(vs, int): vs, ts = [vs], [ts]
    for mod in ("quad_perm:[1,0,3,2]", "quad_perm:[2,3,0,1]", "row_half_mirror", "row_mirror"):
        for v in vs:
            a(f"v_add_f32_dpp v{v}, v{v}, v{v} {mod} row_mask:0xf bank_mask:0xf")
    for w in (16, 32):
        for v, t in zip(vs, ts): a(f"v_mov_b32 v{t}, v{v}")
        for v, t in zip(vs, ts): a(f"v_permlane{w}_swap_b32 v{t}, v{v}")
        for v, t in zip(vs, ts): a(f"v_add_f32 v{v}, v{v}, v{t}")

class VM:
    def __init__(self, a): self.a = a; self.q = []; self.done = -1
    def issue(self, tag): self.q.append(tag)
    def wait(self, tag):
        i = max(k for k, t in enumerate(self.q) if t == tag)
        if i <= self.done: return
        self.done = i
        self.a(f"s_waitcnt vmcnt({len(self.q) - 1 - i})")

def wave_max_u32(a, v, t):
    for mod in ("quad_perm:[1,0,3,2]", "quad_perm:[2,3,0,1]", "row_half_mirror", "row_mirror"):
        a(f"v_max_u32_dpp v{v}, v{v}, v{v} {mod} row_mask:0xf bank_mask:0xf")
    for w in (16, 32):
        a(f"""
        v_mov_b32 v{t}, v{v}
        v_permlane{w}_swap_b32 v{t}, v{v}
        v_max_u32 v{v}, v{v}, v{t}
        """)

LOG2E = 1.4426950408889634
def sigmoid(a, d, x, t):
    a(f"""
    v_mul_f32 v{t}, {f2u(-LOG2E):#x}, v{x}
    v_exp_f32 v{t}, v{t}
    v_add_f32 v{t}, 1.0, v{t}
    v_rcp_f32 v{d}, v{t}
    """)

def gen_p2(a, dbg='', prio=True):
    SC = ' sc1'
    OPT = dict(x.split('=') for x in dbg.split(',') if '=' in x)
    FLS = int(OPT.get('fls', 4))
    PFS = int(OPT.get('pfs', 0)); PFP = int(OPT.get('pfp', 1))
    TAILST = 'tailst' in dbg
    FS = 'ffnst' in dbg
    KREP = 'nokrep' not in dbg; GREP = 'nogrep' not in dbg
    def st(i, tail):
        if 'p1st' in dbg:
            if tail == 4: stamp(a, i)
        elif 'r0st' in dbg:
            if tail == 3: stamp(a, i)
        elif FS:
            if tail == 2: stamp(a, i)
        elif tail in (True, False) and bool(tail) == TAILST: stamp(a, i)
    K = 16; V = 48; X = [112, 128]; O = 144; CM = 160; SP = 176; Q = 184; OA = 188; WF = 204; BF = 236; S1 = 240
    vQA, vPW, vPR, vPL, vOW, vOR, vLM, vWL, vKL, vVL = 1, 2, 3, 4, 5, 6, 7, 8, 9, 10
    t0, t1, t2, t3, t4 = 11, 12, 13, 14, 15
    vFW, vFR, vFV, vWLs = 9, 13, 14, 15
    vFS, vPA, vPD = SP + 4, SP + 5, SP + 6
    a.label("K12_setup")
    a(f"""
    s_load_dwordx2 s[48:49], s[0:1], 96
    s_load_dwordx2 s[40:41], s[0:1], 0
    s_load_dwordx8 s[60:67], s[0:1], 48
    s_load_dwordx2 s[46:47], s[0:1], 80
    s_waitcnt lgkmcnt(0)
    """)
    a.label("K12_setup1")
    a(f"""
    s_and_b32 s3, s2, 7
    s_lshr_b32 s4, s2, 3
    s_lshl_b32 s7, s3, 8
    s_lshl_b32 s5, s4, 3
    s_add_u32 s7, s7, s5           ; T0
    s_and_b32 s28, s4, 7           ; rot
    v_lshrrev_b32 v{t0}, 6, v0
    v_and_b32 v0, 63, v0
    v_readfirstlane_b32 s6, v{t0}
    s_mov_b32 s30, 0
    v_lshlrev_b32 v{vWL}, 4, v0
    s_mul_i32 s3, s6, {8*TS}
    s_add_u32 s3, s3, {WS_KV:#x}
    """)
    for t in range(8):
        a(f"""
        s_add_u32 s4, s28, {t}
        s_and_b32 s4, s4, 7
        s_mul_i32 s4, s4, {TS}
        s_add_u32 s{50+t}, s3, s4
        """)
    a.label("K2_restart")
    a(f"""
    s_add_u32 s44, s6, 4
    s_and_b32 s44, s44, 7
    s_add_u32 s3, s44, s28
    s_and_b32 s3, s3, 7
    s_andn2_b32 s45, s2, 0x38
    s_lshl_b32 s4, s3, 3
    s_or_b32 s45, s45, s4
    s_lshl_b32 s45, s45, 6
    s_lshr_b32 s4, s28, 1
    s_lshl_b32 s4, s4, 2
    s_add_u32 s45, s45, s4
    s_add_u32 s45, s45, {WS_FQ:#x}
    s_add_u32 s3, s3, s7
    s_lshl_b32 s32, s3, 10
    v_and_b32 v{t1}, 31, v0
    v_lshrrev_b32 v{t2}, 5, v0
    v_mul_u32_u24 v{vVL}, 272, v{t2}
    v_lshl_add_u32 v{vVL}, v{t1}, 4, v{vVL}
    v_cmp_lt_u32 vcc, 16, v{t1}
    v_bfrev_b32 v{t0}, 1
    v_add_u32 v{vQA}, {L_Q:#x}, v{vWL}
    v_cndmask_b32 v{vVL}, v{vVL}, v{t0}, vcc
    """)
    srd(a, 8, 48, 49, WS_SIZE)
    vm = VM(a)
    def ldK(t):
        a(f"buffer_load_dwordx4 v[{K+4*t}:{K+4*t+3}], v{vWL}, s[8:11], s{50+t} offen{SC}"); vm.issue(f"K{t}")
    def ldV(t):
        if 'vmask' in dbg:
            a("s_mov_b32 exec_lo, 0x1ffff"); a("s_mov_b32 exec_hi, 0x1ffff")
            for h in range(2):
                a(f"buffer_load_dwordx4 v[{V+8*t+4*h}:{V+8*t+4*h+3}], v{vVL}, s[8:11], s{50+t} offen offset:{1024 + 544*h}{SC}"); vm.issue(f"V{t}{h}")
            a("s_mov_b64 exec, -1")
            return
        for h in range(2):
            a(f"buffer_load_dwordx4 v[{V+8*t+4*h}:{V+8*t+4*h+3}], v{vVL}, s[8:11], s{50+t} offen offset:{1024 + 544*h}{SC}"); vm.issue(f"V{t}{h}")
    a(f"""
    s_lshl_b32 s3, s44, 10
    v_add_u32 v{t4}, s3, v{vQA}
    """)
    def late_setup(part):
        u0, u1, u2, u3 = S1, S1 + 1, S1 + 2, S1 + 3
        if part == 0:
            srd(a, 16, 40, 41, 0x200000)
            srd(a, 20, 46, 47, 0x200000)
            srd(a, 24, 60, 61, 0x400)
            a(f"""
            v_and_b32 v{u1}, 31, v0
            v_lshrrev_b32 v{u2}, 5, v0
            v_mul_u32_u24 v{vPW}, 80, v{u1}
            s_mul_i32 s3, s6, 2560
            v_add_u32 v{vPW}, s3, v{vPW}
            v_lshl_add_u32 v{SP+3}, v{u2}, 2, v{vPW}
            v_lshl_add_u32 v{vPW}, v{u2}, 4, v{vPW}
            v_lshrrev_b32 v{u0}, 4, v0     ; g
            s_lshr_b32 s3, s6, 1
            s_lshl_b32 s3, s3, 3
            s_and_b32 s4, s6, 1
            s_lshl_b32 s4, s4, 1
            s_add_u32 s3, s3, s4
            v_and_b32 v{u1}, 1, v{u0}
            v_lshl_add_u32 v{u1}, v{u1}, 2, v{u2}
            v_add_u32 v{u1}, s3, v{u1}     ; n = 8*(w>>1) + 2*(w&1) + (g>>1) + 4*(g&1)
            v_mul_u32_u24 v{vPL}, 80, v{u1}
            v_and_b32 v{u2}, 15, v0        ; d
            v_lshl_add_u32 v{vPR}, v{u2}, 2, v{vPL}
            v_and_b32 v{u3}, 7, v0
            v_mul_u32_u24 v{u3}, 2560, v{u3}
            v_add3_u32 v{vPL}, v{vPL}, v{u3}, 64
            s_lshl_b32 s31, s28, 16
            s_lshl_b32 s33, s6, 13
            s_add_u32 s33, s33, {WS_WOF:#x}
            """)
        elif part == 1:
            a(f"""
            v_and_b32 v{u3}, 7, v{u1}      ; token
            v_lshrrev_b32 v{u1}, 3, v{u1}  ; head_local
            v_mul_u32_u24 v{vOW}, 144, v{u3}
            v_lshl_add_u32 v{vOW}, v{u1}, 5, v{vOW}
            v_lshl_add_u32 v{vOW}, v{u2}, 1, v{vOW}
            v_add_u32 v{vOW}, {L_OB:#x}, v{vOW}
            v_and_b32 v{u3}, 7, v0
            v_mul_u32_u24 v{vOR}, 144, v{u3}
            v_lshl_add_u32 v{vOR}, v{u0}, 4, v{vOR}
            v_add_u32 v{vOR}, {L_OB:#x}, v{vOR}
            {"" if 'nozc' in dbg else f"v_and_b32 v{u1}, 8, v0"}
            {"" if 'nozc' in dbg else f"v_cmp_ne_u32 vcc, 0, v{u1}"}
            {"" if 'nozc' in dbg else f"v_mov_b32 v{u1}, {L_ZC:#x}"}
            {"" if 'nozc' in dbg else f"v_cndmask_b32 v{vOR}, v{vOR}, v{u1}, vcc"}
            v_mov_b32 v{vLM}, 0
            v_lshlrev_b32 v{vFR}, 2, v{u3}
            v_add_u32 v{vFR}, {L_FLG:#x}, v{vFR}
            """)
        else:
            a(f"v_pk_mov_b32 v[{SP}:{SP+1}], 0, 0")
            a(f"v_mov_b32 v{SP+2}, 0xdddddddd")
    def rd_qcm():
        a(f"ds_read_b128 v[{Q}:{Q+3}], v{vQA}")
        for k in range(4):
            a(f"ds_read_b128 v[{CM+4*k}:{CM+4*k+3}], v{vQA} offset:{L_MREF - L_Q}")
        a(f"v_add_u32 v{vQA}, 1024, v{vQA}")
    mf = "v_mfma_f32_32x32x16_bf16"
    def M1(kt, xb):
        if 'nom1' in dbg: a("s_nop 1"); return
        a(f"{mf} v[{X[xb]}:{X[xb]+15}], v[{K+4*kt}:{K+4*kt+3}], v[{Q}:{Q+3}], v[{CM}:{CM+15}]")
    def E(xb, lo, hi):
        for r in range(lo, hi):
            if 'expnop' in dbg:
                a("v_nop"); a("v_nop")
                continue
            if 'noexp' in dbg:
                a(f"v_cvt_pk_bf16_f32 v{X[xb]+r}, 0, v{X[xb]+r}"); a(f"v_cvt_pk_bf16_f32 v{X[xb]+r}, 0, v{X[xb]+r}")
                continue
            a(f"v_exp_f32 v{X[xb]+r}, v{X[xb]+r}")
    def C2(h, xb):
        for k in range(4):
            a(f"v_cvt_pk_bf16_f32 v{SP+4*h+k}, v{X[xb]+8*h+2*k}, v{X[xb]+8*h+2*k+1}")
    def M3(h, kt):
        xb = kt & 1
        if 'nom3' in dbg: a("s_nop 2"); return
        a(f"v_smfmac_f32_32x32x32_bf16 v[{O}:{O+15}], v[{V+8*kt+4*h}:{V+8*kt+4*h+3}], v[{X[xb]+8*h}:{X[xb]+8*h+7}], v{SP+2}")
    def Ozero():
        a(f"v_mfma_f32_32x32x8bf16_1k v[{O}:{O+15}], v[{SP}:{SP+1}], v[{SP}:{SP+1}], 0")
    def part_write():
        a(f"""
        ds_write_b128 v{vPW}, v[{O}:{O+3}]
        ds_write_b128 v{vPW}, v[{O+4}:{O+7}] offset:32
        ds_write_b32 v{SP+3}, v{O+8} offset:64
        """)
    def s1_read():
        a(f"ds_read_b32 v{S1+8}, v{vPL}")
        for k in range(4):
            a(f"ds_read2st64_b32 v[{S1+2*k}:{S1+2*k+1}], v{vPR} offset0:{20*k} offset1:{20*k+10}")
    def s1_calc():
        dp = lambda mod: f"v_add_f32_dpp v{S1+8}, v{S1+8}, v{S1+8} {mod} row_mask:0xf bank_mask:0xf"
        pa = (lambda x, y: f"v_add_f32 v{x}, v{x}, v{y}\nv_add_f32 v{x+1}, v{x+1}, v{y+1}") if 's1sc' in dbg else \
             (lambda x, y: f"v_pk_add_f32 v[{x}:{x+1}], v[{x}:{x+1}], v[{y}:{y+1}]")
        a(f"""
        {dp("quad_perm:[1,0,3,2]")}
        {pa(S1, S1+2)}
        {pa(S1+4, S1+6)}
        {dp("quad_perm:[2,3,0,1]")}
        {pa(S1, S1+4)}
        v_add_f32 v{S1}, v{S1}, v{S1+1}
        {dp("row_half_mirror")}
        v_rcp_f32 v{S1+1}, v{S1+8}
        v_maximum3_f32 v{vLM}, v{vLM}, v{S1+8}, abs(v{S1})
        v_mul_f32 v{S1}, v{S1}, v{S1+1}
        v_cvt_pk_bf16_f32 v{S1}, v{S1}, v{S1}
        ds_write_b16 v{vOW}, v{S1}
        """)
    def s2_read():
        for s in range(2):
            a(f"ds_read_b128 v[{BF+4*s}:{BF+4*s+3}], v{vOR} offset:{64*s}")
    def s2_mma(lo, hi):
        for u in range(lo, hi):
            s, t = u >> 2, u & 3
            a(f"v_mfma_f32_16x16x32_bf16 v[{OA+4*t}:{OA+4*t+3}], v[{WF+4*u}:{WF+4*u+3}], v[{BF+4*s}:{BF+4*s+3}], v[{OA+4*t}:{OA+4*t+3}]")
    def wf_load(lo, hi):
        if lo == 0:
            a("s_add_u32 s34, s33, s31")
            a("s_add_u32 s35, s34, 4096")
            a("s_add_u32 s31, s31, 0x10000")
            a("s_and_b32 s31, s31, 0x7ffff")
        for u in range(lo, hi):
            a(f"buffer_load_dwordx4 v[{WF+4*u}:{WF+4*u+3}], v{vWL}, s[8:11], s{34 + (u >> 2)} offen offset:{1024*(u&3)}{'' if 'wfpl' in dbg else ' nt' if 'wfnt' in dbg else SC}")
            vm.issue("WF")
    def ffn_prefetch():
        a(f"""
        s_mov_b32 s39, s6
        s_cmp_eq_u32 s39, 1
        s_cselect_b64 s[36:37], s[64:65], s[62:63]
        s_cmp_eq_u32 s39, 2
        s_cselect_b64 s[36:37], s[66:67], s[36:37]
        """)
        srd(a, 12, 36, 37, 512 * 1792 * 2)
        a(f"""
        s_and_b32 s3, s2, 7
        s_lshr_b32 s4, s2, 3
        s_mul_i32 s5, s4, {16*3584}
        s_mul_i32 s36, s3, 448
        s_and_b32 s36, s36, 0xffffff80
        s_add_u32 s5, s5, s36
        s_lshl_b32 s36, s3, 7
        s_mul_i32 s37, s4, {56*1024}
        s_add_u32 s36, s36, s37
        v_lshrrev_b32 v{t0}, 2, v0
        v_mul_u32_u24 v{t0}, 3584, v{t0}
        v_and_b32 v{t1}, 3, v0
        v_lshl_add_u32 v{t0}, v{t1}, 7, v{t0}
        v_min_u32 v{t1}, 55, v0
        v_lshlrev_b32 v{t1}, 10, v{t1}
        s_cmp_eq_u32 s39, 2
        s_cselect_b32 s38, s36, s5
        s_cselect_b64 vcc, -1, 0
        v_cndmask_b32 v{vPA}, v{t0}, v{t1}, vcc
        s_lshl_b32 s39, s6, {PFS}
        s_add_u32 s39, s39, 1
        s_cmp_gt_u32 s6, 2
        s_cselect_b32 s39, 99, s39
        """)
    def ffn_setup():
        a(f"""
        s_and_b32 s3, s2, 7
        s_lshr_b32 s4, s2, 3
        s_and_b32 s5, s6, 1
        s_cmp_eq_u32 s5, 0
        s_cselect_b64 s[36:37], s[62:63], s[64:65]
        s_cmp_lt_u32 s2, 112
        s_cselect_b64 s[36:37], s[36:37], s[66:67]
        """)
        srd(a, 68, 36, 37, 512 * 1792 * 2)
        a(f"""
        s_mul_i32 s76, s3, 14
        s_add_u32 s76, s76, s4           ; fs
        s_lshl_b32 s77, s3, 2
        s_add_u32 s77, s77, s4
        s_sub_u32 s77, s77, 14           ; cb
        s_lshr_b32 s5, s6, 1
        s_mul_i32 s5, s5, {128*3584}
        s_lshl_b32 s36, s76, 5
        s_add_u32 s5, s5, s36
        s_mul_i32 s36, s6, {224*1024}
        s_lshl_b32 s37, s77, 5
        s_add_u32 s36, s36, s37
        s_cmp_lt_u32 s2, 112
        s_cselect_b32 s72, s5, s36
        s_movk_i32 s73, 1024
        s_cselect_b32 s73, 3584, s73
        s_cselect_b32 s75, 4, 7
        s_cmp_lt_u32 s2, 144
        s_cselect_b32 s75, s75, 0
        s_mul_i32 s74, s6, 7168
        s_add_u32 s74, s74, {L_FW:#x}
        v_lshrrev_b32 v{vFS}, 1, v0
        v_mul_lo_u32 v{vFS}, v{vFS}, s73
        v_and_b32 v{t1}, 1, v0
        v_lshl_add_u32 v{vFS}, v{t1}, 4, v{vFS}
        s_lshl_b32 s73, s73, 5
        s_mov_b32 s78, s74
        """)
    def ffn_stage():
        a(f"""
        s_cmp_lt_u32 s29, 4
        s_cbranch_scc1 K2_nost
        """)
        for e in range(2):
            a(f"""
            s_cmp_eq_u32 s75, 0
            s_cbranch_scc1 K2_nost
            s_mov_b32 m0, s78
            s_sub_u32 s75, s75, 1
            buffer_load_dwordx4 v{vFS}, s[68:71], s72 offen lds
            s_add_u32 s78, s78, 1024
            s_add_u32 s72, s72, s73
            """)
        a.label("K2_nost")
    def ffn_issue():
        a(f"""
        s_cmp_lg_u32 s29, s39
        s_cbranch_scc1 K2_nopf
        buffer_load_dword v{vPD}, v{vPA}, s[12:15], s38 offen
        """)
        a.label("K2_nopf")
    def setprio(p):
        if prio: a(f"s_setprio {p}")
    def mref_mma(q, d):
        a(f"{mf} v[{d}:{d+15}], v[{K}:{K+3}], v[{q}:{q+3}], 0")
        a(f"{mf} v[{d+16}:{d+31}], v[{K+4}:{K+7}], v[{q}:{q+3}], 0")
    def mref_max(S):
        a(f"v_max3_f32 v{t0}, v{S}, v{S+1}, v{S+2}")
        for r in range(3, 31, 2):
            a(f"v_max3_f32 v{t0}, v{t0}, v{S+r}, v{S+r+1}")
        a(f"""
        v_max_f32 v{t0}, v{t0}, v{S+31}
        v_mov_b32 v{t1}, v{t0}
        v_permlane32_swap_b32 v{t1}, v{t0}
        v_max_f32 v{t0}, v{t0}, v{t1}
        """)
        for r in range(4): a(f"v_sub_f32 v{S+r}, {f2u(-OFFS):#x}, v{t0}")
        a(f"ds_write_b128 v{t4}, v[{S}:{S+3}] offset:{L_MREF - L_Q}")
    def kv_first():
        ldK(0); ldK(1); ldV(0); ldK(2); ldV(1)
    for p in range(3): late_setup(p)
    ffn_prefetch(); ffn_setup()
    a(f"""
    s_lshl_b32 s3, s6, 2
    s_add_u32 s3, s3, {L_FLG:#x}
    v_mov_b32 v{vFW}, s3
    s_movk_i32 s59, {L_Q + 2048:#x}
    s_lshl_b32 s3, s30, 2
    s_or_b32 s3, s3, s6
    s_cmp_lt_u32 s3, 4
    s_cbranch_scc1 K1_comp
    """)
    a.label("K12_join")
    for r in range(0, 16, 2):
        a(f"v_pk_mov_b32 v[{OA+r}:{OA+r+1}], 0, 0")
    a(f"""
    s_min_u32 s3, s75, 4
    s_bfm_b32 s43, s3, 4
    s_sub_u32 s3, s75, s3
    s_bfm_b32 s42, s3, 5
    """)
    def fq_store():
        a(f"""
        v_mov_b32 v{t0}, s58
        s_lshl_b32 s3, s2, 6
        s_lshl_b32 s4, s6, 2
        s_add_u32 s3, s3, s4
        s_add_u32 s3, s3, {WS_FQ:#x}
        s_waitcnt vmcnt(7)
        s_mov_b64 exec, 1
        buffer_store_dword v{t0}, v{SP}, s[8:11], s3 offen sc1
        s_mov_b64 exec, -1
        """)
        vm.issue("FQS")
    if 'ps' in dbg.split(','):
        a(f"""
        s_lshl_b32 s3, s30, 3
        s_or_b32 s3, s3, s6
        s_cmp_lg_u32 s3, 4
        s_cbranch_scc1 K2_nb2
        s_waitcnt vmcnt(0)
        s_barrier
        """)
        a.label("K2_nb2")
    a(f"""
    ds_write2_b32 v{vFW}, v{SP}, v{SP} offset0:0 offset1:8
    ds_write2_b32 v{vFW}, v{SP}, v{SP} offset0:64 offset1:80
    s_cmp_lg_u32 s30, 0
    s_cbranch_scc1 K2_safe
    s_cmp_eq_u32 s6, 4
    s_cbranch_scc1 K2_poller
    s_waitcnt lgkmcnt(0)
    s_barrier
    """)
    st(1, False); st(5, 4)
    if 'amp' in dbg: a('s_memrealtime s[88:89]'); a('s_waitcnt lgkmcnt(0)')
    kv_first()
    fq_store()
    a("s_branch K2_go")
    a.label("K2_poller")
    PA, PB = X[0], X[0] + 8
    a(f"""
    v_lshlrev_b32 v{t1}, {FLS}, v0
    s_and_b32 s3, s2, 7
    s_lshl_b32 s3, s3, 14
    s_add_u32 s3, s3, {WS_FL:#x}
    s_add_u32 s4, s3, {64 << FLS}
    s_add_u32 s5, s3, {128 << FLS}
    s_add_u32 s34, s3, {192 << FLS}
    s_mov_b32 s36, 0
    """)
    def fissue(b):
        for k, sr in enumerate(("s3", "s4", "s5", "s34")):
            a(f"buffer_load_dword v{b+k}, v{t1}, s[8:11], {sr} offen sc1")
    def fchk(b):
        for r in range(4): a(f"v_xor_b32 v{b+r}, s58, v{b+r}")
        a(f"""
        v_or3_b32 v{b}, v{b}, v{b+1}, v{b+2}
        v_or_b32 v{b}, v{b}, v{b+3}
        v_cmp_ne_u32 vcc, 0, v{b}
        s_cbranch_vccz K2_sync0
        """)
    if int(OPT.get('fd', 0)): a(f"s_sleep {OPT.get('fd', 0)}")
    if 'fnp' in dbg:
        a.label("K2_fl")
        fissue(PA); a("s_waitcnt vmcnt(0)"); fchk(PA)
        a(f"s_sleep {OPT.get('fsl', 2)}")
    else:
        def kvpf():
            a(f"""
            s_lshr_b32 s35, s2, 3
            s_mul_i32 s35, s35, {2*TS}
            s_add_u32 s35, s35, {WS_KV:#x}
            v_min_u32 v{t0}, 33, v0
            v_lshlrev_b32 v{t0}, 7, v{t0}
            buffer_load_dword v{vPD}, v{t0}, s[8:11], s35 offen sc1
            """)
        if OPT.get('kvpf', '0') == '1': kvpf()
        fissue(PA)
        if OPT.get('kvpf', '0') == '2': kvpf()
        a("s_sleep 3")
        a.label("K2_fl")
        fissue(PB); a("s_waitcnt vmcnt(4)"); fchk(PA)
        fissue(PA); a("s_waitcnt vmcnt(4)"); fchk(PB)
    a(f"""
    s_add_u32 s36, s36, 1
    s_cmp_lt_u32 s36, 0x40000
    s_cbranch_scc1 K2_fl
    """)
    a.label("K2_sync0")
    st(4, 4)
    a(f"""
    s_cmp_lg_u32 s2, 0
    s_cbranch_scc1 K2_sync1
    v_mov_b32 v{t0}, s58
    s_mov_b32 s3, {WS_EP:#x}
    s_mov_b64 exec, 1
    buffer_store_dword v{t0}, v{SP}, s[8:11], s3 offen sc1
    s_mov_b64 exec, -1
    """)
    a.label("K2_sync1")
    vm.q = []; vm.done = -1
    ldK(0); ldK(1)
    a("s_waitcnt lgkmcnt(0)")
    a("s_barrier")
    st(1, False); st(5, 4)
    if 'amp' in dbg: a('s_memrealtime s[88:89]'); a('s_waitcnt lgkmcnt(0)')
    a(f"ds_read_b128 v[{Q}:{Q+3}], v{vQA}")
    ldV(0); ldK(2); ldV(1)
    a("s_waitcnt vmcnt(5) lgkmcnt(0)")
    mref_mma(Q, X[0]); mref_max(X[0])
    fq_store()
    a("s_branch K2_go")
    a.label("K2_safe")
    S = X[0]
    a(f"""
    v_and_b32 v{t0}, 31, v0
    v_lshlrev_b32 v{S1+4}, 2, v{t0}
    v_add_u32 v{S1+4}, {L_MX:#x}, v{S1+4}
    s_lshl_b32 s3, s44, 7
    v_add_u32 v{S1+5}, s3, v{S1+4}
    v_mov_b32 v{t0}, 0xff800000
    ds_write_b32 v{S1+5}, v{t0}
    s_waitcnt vmcnt(0) lgkmcnt(0)
    s_barrier
    v_mov_b32 v{t1}, v{vQA}
    s_mov_b32 s29, 0
    """)
    a.label("K2_safe_loop")
    a(f"""
    ds_read_b128 v[{BF}:{BF+3}], v{t1}
    v_mov_b32 v{t0}, 0xff800000
    s_waitcnt lgkmcnt(0)
    """)
    for t in range(8):
        a(f"v_mfma_f32_32x32x16_bf16 v[{S}:{S+15}], v[{K+4*t}:{K+4*t+3}], v[{BF}:{BF+3}], 0")
        for r in range(0, 16, 2):
            a(f"v_max3_f32 v{t0}, v{t0}, v{S+r}, v{S+r+1}")
    a(f"""
    ds_max_f32 v{S1+4}, v{t0}
    v_add_u32 v{t1}, 1024, v{t1}
    v_add_u32 v{S1+4}, 128, v{S1+4}
    s_add_u32 s29, s29, 1
    s_cmp_lt_u32 s29, 8
    s_cbranch_scc1 K2_safe_loop
    s_waitcnt lgkmcnt(0)
    s_barrier
    ds_read_b32 v{t0}, v{S1+5}
    s_waitcnt lgkmcnt(0)
    """)
    for r in range(4): a(f"v_sub_f32 v{BF+r}, 0, v{t0}")
    a(f"ds_write_b128 v{t4}, v[{BF}:{BF+3}] offset:{L_MREF - L_Q}")
    a.label("K2_go")
    a("s_waitcnt lgkmcnt(0)")
    a("s_barrier")
    st(2, False)
    rd_qcm()
    vm.wait("K0")
    a("s_waitcnt lgkmcnt(0)")
    M1(0, 0)
    a("s_mov_b32 s29, 1")
    P0 = OPT.get('p0', '33322111')
    setprio(int(P0[0]))
    LA = int(OPT.get('la', 0))
    for k in range(LA + 1):
        ldK(3 + k); ldV(2 + k)
    st(3, False)
    if 'leak' in dbg or 'amp' in dbg: a('s_memrealtime s[94:95]'); a('s_waitcnt lgkmcnt(0)')
    def tile(i, hook):
        xb = i & 1; xn = xb ^ 1
        hook(i, 'a')
        E(xb, 0, 2)
        hook(i, 'm3b')
        E(xb, 2, 5)
        hook(i, 'm1')
        M1((i + 1) & 7, xn)
        hook(i, 0)
        if i == 0:
            E(xb, 5, 12)
            hook(i, 1)
            Ozero()
            E(xb, 12, 16)
            M3(0, i)
            hook(i, 2)
        else:
            E(xb, 5, 8)
            hook(i, 'e1')
            E(xb, 8, 10)
            hook(i, 1)
            M3(0, i)
            hook(i, 2)
            E(xb, 10, 13)
            hook(i, 'e2')
            E(xb, 13, 15)
            hook(i, 'e3')
            E(xb, 15, 16)
    def hook0(i, pos):
        if pos == 'a' and i in (0, 2, 4, 6): st(1 + i // 2, 3)
        if pos == 'a' and i > 0 and P0[i] != P0[i - 1]: setprio(int(P0[i]))
        if pos == 'm3b' and i > 0:
            vm.wait(f"V{i-1}1"); M3(1, i - 1)
        if pos == 'm1':
            if i < 7: vm.wait(f"K{i+1}")
            else: a("s_waitcnt lgkmcnt(0)")
        if pos == 0:
            if i + 4 + LA <= 7: ldK(i + 4 + LA)
            if i + 3 + LA <= 7: ldV(i + 3 + LA)
            if i == 6: wf_load(0, 4)
            if i == 7: wf_load(4, 8)
        QT = int(OPT.get('qt', 1))
        if pos == 'e1' and i == QT:
            a(f"buffer_load_dword v{t0}, v{SP}, s[8:11], s45 offen sc1"); vm.issue("FQ")
        if pos == 'e1' and i == QT + 1:
            vm.wait("FQ")
            a(f"v_cmp_ne_u32 vcc, s58, v{t0}")
            a("s_cbranch_vccnz K2_qspin")
            a.label("K2_qback")
            a(f"buffer_load_dwordx4 v[{BF}:{BF+3}], v{vWL}, s[8:11], s32 offen sc1"); vm.issue("Q")
        if pos == 'e2' and i == int(OPT.get('qw', 4)):
            vm.wait("Q")
            a(f"ds_write_b128 v{t4}, v[{BF}:{BF+3}]")
            mref_mma(BF, WF)
        if pos == 'e1' and i == int(OPT.get('qw', 4)) + 1:
            a("s_cmp_lg_u32 s30, 0")
            a("s_cbranch_scc1 K2_keepm")
            mref_max(WF)
            a.label("K2_keepm")
        if pos == 1:
            if i == 6:
                a("s_waitcnt lgkmcnt(0)"); a("s_barrier"); rd_qcm()
            vm.wait(f"V{i}0")
        if pos == 2 and i == 7:
            vm.wait("V71")
            a(f"""
            v_mov_b32 v{S1+8}, -1
            v_mov_b32 v{S1+9}, -1
            v_lshrrev_b32 v{S1+10}, 1, v{vWL}
            s_add_u32 s3, s7, s6
            s_lshl_b32 s3, s3, 9
            s_add_u32 s3, s3, {WS_H:#x}
            buffer_store_dwordx2 v[{S1+8}:{S1+9}], v{S1+10}, s[8:11], s3 offen sc1
            """)
    for i in range(8): tile(i, hook0)
    st(5, 3)
    a.raw(".p2align 3")
    a.label("K2_round")
    spins = []
    def poll(off):
        if 'xchk' in dbg: return
        a(f"ds_read_b32 v{vFV}, v{vFR} offset:{off}")
    def check(off):
        if 'xchk' in dbg: return
        k = len(spins); spins.append(off)
        a(f"""
        s_waitcnt lgkmcnt(0)
        v_cmp_gt_u32 vcc, s59, v{vFV}
        s_cbranch_vccnz K2_spin{k}
        """)
        a.label(f"K2_back{k}")
    PR = dict(x.split('=') for x in dbg.split(',') if '=' in x).get('pr', 'c')
    def hook(i, pos):
        if pos == 'm3b': M3(1, (i - 1) & 7)
        if pos == 'm1' and i == 7: a("s_waitcnt lgkmcnt(0)")
        if pos == 1 and i == 6: rd_qcm()
        if 'nohook' in dbg: return
        if 'bar' in dbg.split(','):
            if pos == 'a' and i in (0, 6, 7): setprio({6: 2, 7: 1, 0: 0}[i])
            if i == 0 and pos == 1: part_write()
            if i == 1 and pos == 0:
                a("s_waitcnt lgkmcnt(0)"); a("s_barrier"); setprio(2); s1_read()
            if i == 2 and pos == 0:
                a("s_waitcnt lgkmcnt(0)"); s1_calc(); setprio(1)
            if i == 3 and pos == 0: setprio(0)
            if i == 4 and pos == 0:
                a("s_waitcnt vmcnt(0) lgkmcnt(0)"); a("s_barrier"); setprio(3); s2_read()
            seq = [(4, 'e3'), (5, 'e1'), (5, 'e2'), (5, 'e3'), (6, 'e1'), (6, 'e2'), (6, 'e3'), (7, 'e1')]
        else:
            ca = int(OPT.get('ca', 2)); cb = int(OPT.get('cb', 5)); PT = OPT.get('pt', '10220332')
            slots = [(t, p) for t in range(1, 8) for p in (('a', 'e1', 'e2', 'e3') if cb >= 6 else ('e1', 'e2', 'e3'))]
            if i == 0 and pos == 1:
                if 'xpw' not in dbg: part_write()
                a(f"ds_write_b32 v{vFW}, v{vQA}")
            if i == ca and pos == 0: poll(0)
            if i == ca and pos == 2:
                check(0)
                if 'xs1' not in dbg: s1_read()
            if i == ca + 1 and pos == {'0': 0, '1': 'e1', '2': 'e2', '3': 'a'}[OPT.get('s1p', '3')]:
                a("s_waitcnt lgkmcnt(0)")
                if 'xs1' not in dbg: s1_calc()
                a(f"ds_write_b32 v{vFW}, v{vQA} offset:32")
            if i == cb - 1 and pos == 2: poll(32)
            if i == cb and pos == 'm1':
                check(32); s2_read(); a("s_waitcnt vmcnt(0)")
            if i == int(OPT.get('stp', 2)) and pos == 'e1' and 'nopf' not in dbg:
                a("s_bitcmp1_b32 s43, s29"); a("s_cbranch_scc1 K2_stg"); a.label("K2_stgb")
            if len(PT) == 8: PT = "".join(ch * 2 for ch in PT)
            for hpos, k in (('a', 2 * i), (2, 2 * i + 1)):
                if pos == hpos and PT[k] != PT[k - 1]: setprio(int(PT[k]))
            av = [x for x in slots if x > (cb, 'e1')]
            if OPT.get('sp', '0') == '1' and len(av) >= 12: av = [x for x in av if x[1] != 'e3']
            seq = av[:8]
            while len(seq) < 8: seq = sorted(seq + [seq[len(seq) % len(av)]])
        for u in [k for k, x in enumerate(seq) if x == (i, pos)]:
            if u == 0: a("s_waitcnt lgkmcnt(0)")
            if 'xmma' not in dbg: s2_mma(u, u + 1)
            if 'nowf' not in dbg: wf_load(u, u + 1)
            if u == 7 and 'nopf' not in dbg and PFP == 1:
                a("s_cmp_eq_u32 s29, s39"); a("s_cbranch_scc1 K2_side"); a.label("K2_sideb")
    for i in range(8): tile(i, hook)
    if 'rndst' in dbg:
        a(f"""
        s_memtime s[82:83]
        s_memrealtime s[100:101]
        s_waitcnt lgkmcnt(0)
        s_lshl_b32 s84, s2, 3
        s_add_u32 s84, s84, s6
        s_lshl_b32 s84, s84, 3
        s_add_u32 s84, s84, s29
        s_lshl_b32 s84, s84, 3
        s_add_u32 s84, s84, {WS_STAMP + 0x40000:#x}
        s_mov_b64 exec, 1
        v_mov_b32 v{S1+8}, s82
        v_mov_b32 v{S1+9}, s100
        v_mov_b32 v{S1+10}, 0
        buffer_store_dwordx2 v[{S1+8}:{S1+9}], v{S1+10}, s[8:11], s84 offen
        s_mov_b64 exec, -1
        """)
    a(f"""
    s_addk_i32 s59, 1024
    s_add_u32 s29, s29, 1
    s_cmp_lt_u32 s29, 8
    s_cbranch_scc1 K2_round
    """)
    st(4, False); st(0, True)
    if 'amp' in dbg: a('s_memrealtime s[98:99]'); a('s_waitcnt lgkmcnt(0)')
    M3(1, 7)
    XR = CM; WR = CM + 4; HV = X[0]; HN = X[0] + 8; PK = X[1]; ST = X[1] + 8
    a(f"""
    s_add_u32 s3, s7, s6
    s_lshl_b32 s4, s3, 10
    buffer_load_dwordx4 v[{XR}:{XR+3}], v{vWL}, s[16:19], s4 offen
    buffer_load_dwordx4 v[{WR}:{WR+3}], v{vWL}, s[24:27], 0 offen
    v_and_b32 v{t0}, 7, v0
    v_mul_u32_u24 v{t0}, 1040, v{t0}
    v_lshrrev_b32 v{t1}, 4, v0
    v_lshl_add_u32 v{t0}, v{t1}, 3, v{t0}
    s_lshl_b32 s5, s6, 7
    s_add_u32 s5, s5, {L_HB:#x}
    v_add_u32 v{t0}, s5, v{t0}
    s_mul_i32 s5, s6, 1040
    s_add_u32 s5, s5, {L_HB:#x}
    v_add_u32 v{t1}, s5, v{vWL}
    s_lshl_b32 s35, s6, 2
    s_add_u32 s35, s35, {L_KEY:#x}
    v_mov_b32 v{t4}, s35
    v_and_b32 v{t3}, 7, v0
    v_lshlrev_b32 v{t3}, 2, v{t3}
    v_add_u32 v{t3}, {L_KEY:#x}, v{t3}
    """)
    part_write()
    a("s_waitcnt lgkmcnt(0)"); a("s_barrier"); st(1, True); s1_read()
    a("s_waitcnt lgkmcnt(0)"); s1_calc()
    a(f"""
    v_mov_b32 v{t2}, {f2u(2.0**124):#x}
    v_cmp_nlt_f32 vcc, v{vLM}, v{t2}
    s_cmp_lg_u64 vcc, 0
    s_cselect_b32 s5, 1, 0
    v_mov_b32 v{t2}, s5
    ds_write_b32 v{t4}, v{t2} offset:32
    """)
    a("s_waitcnt vmcnt(2) lgkmcnt(0)"); a("s_barrier"); st(2, True); s2_read()
    a(f"ds_read_b32 v{t2}, v{t3} offset:32")
    a("s_waitcnt lgkmcnt(1)"); s2_mma(0, 8)
    a(f"""
    s_waitcnt lgkmcnt(0)
    v_cmp_ne_u32 vcc, 0, v{t2}
    s_cmp_eq_u64 vcc, 0
    s_cbranch_scc1 K2_good
    s_cmp_lg_u32 s30, 0
    s_cbranch_scc1 K2_good
    s_mov_b32 s30, 1
    s_waitcnt vmcnt(0)
    s_setprio 0
    s_branch K2_restart
    """)
    a.label("K2_good")
    a("s_mov_b32 exec_lo, 0x00ff00ff"); a("s_mov_b32 exec_hi, 0x00ff00ff")
    for t in range(4):
        a(f"v_cvt_pk_bf16_f32 v{S1+2*t}, v{OA+4*t}, v{OA+4*t+1}")
        a(f"v_cvt_pk_bf16_f32 v{S1+2*t+1}, v{OA+4*t+2}, v{OA+4*t+3}")
        a(f"ds_write_b64 v{t0}, v[{S1+2*t}:{S1+2*t+1}] offset:{32*t}")
    a("s_mov_b64 exec, -1")
    a("s_waitcnt vmcnt(0)")
    for r in range(4):
        a(f"v_lshlrev_b32 v{HV+2*r}, 16, v{XR+r}")
        a(f"v_and_b32 v{HV+2*r+1}, 0xffff0000, v{XR+r}")
        a(f"v_lshlrev_b32 v{WF+2*r}, 16, v{WR+r}")
        a(f"v_and_b32 v{WF+2*r+1}, 0xffff0000, v{WR+r}")
    a(f"""
    s_waitcnt lgkmcnt(0)
    s_barrier
    """)
    st(3, True)
    a(f"""
    ds_read_b128 v[{BF}:{BF+3}], v{t1}
    s_waitcnt lgkmcnt(0)
    """)
    for r in range(4):
        a(f"v_lshlrev_b32 v{HN+2*r}, 16, v{BF+r}")
        a(f"v_and_b32 v{HN+2*r+1}, 0xffff0000, v{BF+r}")
    P2 = lambda b, r: f"v[{b+r}:{b+r+1}]"
    for r in range(0, 8, 2): a(f"v_pk_add_f32 {P2(HV,r)}, {P2(HV,r)}, {P2(HN,r)}")
    for r in range(8): a(f"v_cvt_pk_bf16_f32 v{HV+r}, 0, v{HV+r}")
    SA, SB = S1, S1 + 2
    a(f"v_pk_add_f32 {P2(SA,0)}, {P2(HV,0)}, {P2(HV,2)}")
    a(f"v_pk_mul_f32 {P2(SB,0)}, {P2(HV,0)}, {P2(HV,0)}")
    a(f"v_pk_add_f32 {P2(SA,4)}, {P2(HV,4)}, {P2(HV,6)}")
    a(f"v_pk_fma_f32 {P2(SB,0)}, {P2(HV,2)}, {P2(HV,2)}, {P2(SB,0)}")
    a(f"v_pk_add_f32 {P2(SA,0)}, {P2(SA,0)}, {P2(SA,4)}")
    a(f"v_pk_fma_f32 {P2(SB,0)}, {P2(HV,4)}, {P2(HV,4)}, {P2(SB,0)}")
    a(f"v_add_f32 v{t0}, v{SA}, v{SA+1}")
    a(f"v_pk_fma_f32 {P2(SB,0)}, {P2(HV,6)}, {P2(HV,6)}, {P2(SB,0)}")
    a(f"v_add_f32 v{t2}, v{SB}, v{SB+1}")
    wave_sum(a, [t0, t2], [ST, ST + 1])
    ln_scalars(a, t0, t2, ST, ST + 2, ST + 1, ST + 3)
    st(4, True)
    for r in range(0, 8, 2): a(f"v_pk_add_f32 {P2(HN,r)}, {P2(HV,r)}, {P2(ST,0)} op_sel_hi:[1,0] neg_lo:[0,1] neg_hi:[0,1]")
    for r in range(8): a(f"v_cvt_pk_bf16_f32 v{HN+r}, 0, v{HN+r}")
    for r in range(0, 8, 2): a(f"v_pk_mul_f32 {P2(HN,r)}, {P2(HN,r)}, {P2(ST,2)} op_sel_hi:[1,0]")
    for r in range(8): a(f"v_cvt_pk_bf16_f32 v{HN+r}, 0, v{HN+r}")
    a(f"v_pk_mul_f32 {P2(SA,0)}, {P2(HN,0)}, {P2(WF,0)}")
    for r in range(2, 8, 2): a(f"v_pk_fma_f32 {P2(SA,0)}, {P2(HN,r)}, {P2(WF,r)}, {P2(SA,0)}")
    a(f"v_add_f32 v{t2}, v{SA}, v{SA+1}")
    fill = [f"v_pk_add_f32 {P2(WF+8,r)}, {P2(HV,r)}, {P2(HN,r)}" for r in range(0, 8, 2)]
    fill += [f"v_cvt_pk_bf16_f32 v{PK+4+r}, v{HV+2*r}, v{HV+2*r+1}" for r in range(4)]
    fill += [f"v_cvt_pk_bf16_f32 v{ST+4+r}, v{HN+2*r}, v{HN+2*r+1}" for r in range(4)]
    for mod in ("quad_perm:[1,0,3,2]", "quad_perm:[2,3,0,1]", "row_half_mirror", "row_mirror"):
        a(fill.pop(0)); a(fill.pop(0))
        a(f"v_add_f32_dpp v{t2}, v{t2}, v{t2} {mod} row_mask:0xf bank_mask:0xf")
    for w in (16, 32):
        a(f"v_mov_b32 v{t0}, v{t2}")
        a(fill.pop(0)); a(fill.pop(0))
        a(f"v_permlane{w}_swap_b32 v{t0}, v{t2}")
        a(f"v_add_f32 v{t2}, v{t2}, v{t0}")
    if 'leak' in dbg:
        a(f"""
        s_cmp_lg_u32 s3, 0
        s_cbranch_scc1 K2_leak
        s_memrealtime s[92:93]
        v_mov_b32 v{S1+4}, 0
        s_mov_b32 s5, {WS_SEL:#x}
        buffer_load_dwordx4 v[{S1}:{S1+3}], v{S1+4}, s[8:11], s5 offen
        s_waitcnt vmcnt(0) lgkmcnt(0)
        s_mov_b64 exec, 1
        v_add_f32 v{WF+8}, {f2u(64.0):#x}, v{WF+8}
        v_sub_u32 v{WF+9}, v{S1+2}, v{S1}
        v_sub_u32 v{WF+10}, v{S1+1}, v{S1}
        v_sub_u32 v{WF+11}, s90, v{S1}
        v_sub_u32 v{WF+12}, s94, v{S1}
        v_sub_u32 v{WF+13}, s92, v{S1}
        """)
        for r in range(9, 14):
            a(f"v_cvt_f32_u32 v{WF+r}, v{WF+r}")
            a(f"v_mul_f32 v{WF+r}, {f2u(0.005):#x}, v{WF+r}")
            a(f"v_min_f32 v{WF+r}, {f2u(20.0):#x}, v{WF+r}")
        a("s_mov_b64 exec, -1")
        a.label("K2_leak")
    a(f"""
    v_cvt_pk_bf16_f32 v{t2}, 0, v{t2}
    v_ashrrev_i32 v{t0}, 31, v{t2}
    v_or_b32 v{t0}, 0x80000000, v{t0}
    v_xor_b32 v{t2}, v{t2}, v{t0}
    v_and_b32 v{t2}, 0xffff0000, v{t2}
    s_sub_u32 s5, 0xffff, s3
    v_or_b32 v{t2}, s5, v{t2}      ; key
    ds_write_b32 v{t4}, v{t2}
    """)
    for r in range(4): a(f"v_cvt_pk_bf16_f32 v{PK+r}, v{WF+8+2*r}, v{WF+8+2*r+1}")
    a(f"""
    buffer_store_dwordx4 v[{PK}:{PK+3}], v{vWL}, s[20:23], s4 offen sc1
    """)
    for r in range(4):
        a(f"v_min_u32 v{PK+4+r}, -2, v{PK+4+r}")
        a(f"v_min_u32 v{ST+4+r}, -2, v{ST+4+r}")
    a(f"""
    s_waitcnt lgkmcnt(0)
    s_barrier
    ds_read_b32 v{t1}, v{t3}
    s_waitcnt lgkmcnt(0)
    v_cmp_gt_u32 vcc, v{t1}, v{t2}
    v_cmp_eq_u32 s[36:37], v{t1}, v{t2}
    s_and_b32 s38, vcc_lo, 0xff
    s_bcnt1_i32_b32 s38, s38       ; rank
    """)
    st(5, False); st(5, True); st(0, 2); st(1, 2); st(2, 2); st(3, 2); st(4, 2); st(5, 2)
    a(f"""
    s_cmp_gt_u32 s38, 1
    s_cbranch_scc1 K2_pub
    s_lshl_b32 s34, s7, 9
    s_lshl_b32 s5, s38, 11
    s_add_u32 s34, s34, s5
    s_add_u32 s34, s34, {WS_H:#x}
    buffer_store_dwordx4 v[{ST+4}:{ST+7}], v{vWL}, s[8:11], s34 offen sc1
    s_cmp_lg_u32 s38, 0
    s_cbranch_scc1 K2_pub0
    v_cndmask_b32 v{ST+1}, v{t1}, 0, s[36:37]
    v_mov_b32 v{ST}, v{t2}
    s_lshl_b32 s5, s2, {G.KS_LOG}
    s_add_u32 s5, s5, {WS_KEY:#x}
    v_lshlrev_b32 v{t0}, 14, v0
    """)
    for mod in ("quad_perm:[1,0,3,2]", "quad_perm:[2,3,0,1]", "row_half_mirror"):
        a(f"v_max_u32_dpp v{ST+1}, v{ST+1}, v{ST+1} {mod} row_mask:0xf bank_mask:0xf")
    a(f"""
    v_xor_b32 v{ST+1}, 0x800, v{ST+1}
    s_mov_b64 exec, {0xff if KREP else 1}
    buffer_store_dwordx2 v[{ST}:{ST+1}], v{t0}, s[8:11], s5 offen sc1
    s_mov_b64 exec, -1
    """)
    a.label("K2_pub0")
    a(f"""
    s_waitcnt vmcnt(0)
    buffer_store_dwordx4 v[{PK+4}:{PK+7}], v{vWL}, s[8:11], s34 offen offset:1024 sc1
    """)
    a.label("K2_pub")
    if 'amp' in dbg: a('s_memrealtime s[96:97]'); a('s_waitcnt lgkmcnt(0)')
    st(1, 2)
    def fin():
        if G.STAMP: a("s_waitcnt vmcnt(0)")
        stamp(a, 6)
        if G.STAMP: a("s_mov_b32 s91, s30")
        stamp_out(a, 1, 8, "s6", WF)
        a("s_endpgm")
    a(f"""
    s_cmp_ge_u32 s2, 144
    s_cbranch_scc1 K2_fin
    """)
    LEAD = 's6, 0' if 'lead0' in dbg else 's38, 2'
    AFR = V
    KY = K; Y = K + 8; BX = V + 32; AC = K + 16
    a(f"""
    s_setprio 0
    v_bfe_u32 v{t0}, v0, 2, 2
    v_lshrrev_b32 v{t4}, 4, v0           ; g
    v_lshl_add_u32 v{t0}, v{t4}, 3, v{t0}
    v_lshlrev_b32 v{t0}, 5, v{t0}
    v_and_b32 v{t1}, 3, v0
    v_lshl_add_u32 v{t0}, v{t1}, 3, v{t0}
    v_add_u32 v{t0}, s74, v{t0}
    """)
    for sx in range(7):
        for half in range(2):
            d = AFR + 4 * sx + 2 * half
            a(f"ds_read_b64_tr_b16 v[{d}:{d+1}], v{t0} offset:{sx*1024 + half*128}")
    a(f"""
    v_and_b32 v{t3}, 1, v0
    v_lshlrev_b32 v{vPW}, 6, v{t3}
    v_lshl_add_u32 v{vPW}, v{t4}, 4, v{vPW}
    s_lshl_b32 s5, s6, 7
    s_add_u32 s5, s5, {L_RED:#x}
    v_add_u32 v{vPW}, s5, v{vPW}
    v_and_b32 v{vPR}, 31, v0
    v_lshlrev_b32 v{vPR}, 2, v{vPR}      ; (lane&31)*4
    v_lshrrev_b32 v{vOR}, 5, v0
    v_lshl_add_u32 v{vOR}, v{vOR}, 14, v{vPR}
    s_cmp_lg_u32 {LEAD}
    s_cbranch_scc1 K2_nokey
    v_lshlrev_b32 v{t1}, {G.KS_LOG}, v0
    s_and_b32 s5, s2, {7 if KREP else 0}
    s_lshl_b32 s5, s5, 14
    s_add_u32 s5, s5, {WS_KEY:#x}
    s_add_u32 s79, s5, {64 << G.KS_LOG}
    s_add_u32 s80, s5, {128 << G.KS_LOG}
    s_add_u32 s81, s5, {192 << G.KS_LOG}
    s_mov_b32 s36, 0
    """)
    KZ = V + 60 - 8 * 0
    def poll_loop(name, issue, nld):
        K2R = X[0]
        def chk(b):
            a(f"""
            v_min3_u32 v{Y}, v{b}, v{b+1}, v{b+2}
            v_min3_u32 v{Y+1}, v{b+3}, v{b+4}, v{b+5}
            v_min3_u32 v{Y}, v{Y}, v{b+6}, v{b+7}
            v_min_u32 v{Y}, v{Y}, v{Y+1}
            v_cmp_eq_u32 vcc, 0, v{Y}
            """)
        sl = OPT.get('psl', 3)
        issue(KY)
        a(f"s_sleep {sl}")
        a.label(f"{name}_l")
        issue(K2R)
        a(f"s_waitcnt vmcnt({nld})")
        chk(KY)
        a(f"s_cbranch_vccz {name}_ok")
        issue(KY)
        a(f"s_waitcnt vmcnt({nld})")
        chk(K2R)
        a(f"""
        s_cbranch_vccz {name}_ok2
        s_add_u32 s36, s36, 1
        s_cmp_lt_u32 s36, 0x40000
        s_cbranch_scc1 {name}_l
        """)
        a.label(f"{name}_ok2")
        for r in range(0, 8, 2): a(f"v_pk_mov_b32 v[{KY+r}:{KY+r+1}], v[{K2R+r}:{K2R+r+1}], v[{K2R+r}:{K2R+r+1}] op_sel:[0,1]")
        a.label(f"{name}_ok")
    def kissue(b):
        for k, sr in enumerate(("s5", "s79", "s80", "s81")):
            a(f"buffer_load_dwordx2 v[{b+2*k}:{b+2*k+1}], v{t1}, s[8:11], {sr} offen sc1")
    if int(OPT.get('kd', 12)): a(f"s_sleep {OPT.get('kd', 12)}")
    poll_loop("K2_kp", kissue, 4)
    a.label("K2_kok")
    st(2, 2)
    if FS: a("s_mov_b32 s30, s36")
    B1, B2 = Y + 4, Y + 5
    a(f"""
    v_max_u32 v{B1}, v{KY}, v{KY+2}
    v_min_u32 v{B2}, v{KY}, v{KY+2}
    v_max3_u32 v{B2}, v{B2}, v{KY+1}, v{KY+3}
    v_max_u32 v{Y}, v{KY+4}, v{KY+6}
    v_min_u32 v{Y+1}, v{KY+4}, v{KY+6}
    v_max3_u32 v{Y+1}, v{Y+1}, v{KY+5}, v{KY+7}
    v_min_u32 v{Y+2}, v{B1}, v{Y}
    v_max_u32 v{B1}, v{B1}, v{Y}
    v_max3_u32 v{B2}, v{B2}, v{Y+1}, v{Y+2}
    v_mov_b32 v{Y}, v{B1}
    """)
    wave_max_u32(a, Y, Y + 1)
    a(f"""
    v_cmp_eq_u32 vcc, v{B1}, v{Y}
    v_cndmask_b32 v{B1}, v{B1}, v{B2}, vcc
    """)
    wave_max_u32(a, B1, Y + 1)
    a(f"""
    v_readfirstlane_b32 s40, v{Y}
    v_readfirstlane_b32 s41, v{B1}
    s_andn2_b32 s42, 0x7ff, s40
    s_andn2_b32 s43, 0x7ff, s41
    s_lshr_b32 s50, s42, 3
    s_lshr_b32 s51, s43, 3
    s_lshl_b32 s50, s50, 12
    s_lshl_b32 s51, s51, 12
    s_andn2_b32 s52, 0x800, s40
    s_andn2_b32 s53, 0x800, s41
    s_add_u32 s50, s50, s52
    s_add_u32 s51, s51, s53
    s_lshl_b32 s42, s42, 10
    s_lshl_b32 s43, s43, 10
    """)
    a.label("K2_nokey")
    a(f"""
    s_cmp_ge_u32 s2, 112
    s_cbranch_scc1 K2_down
    s_cmp_lg_u32 {LEAD}
    s_cbranch_scc1 K2_up1
    s_add_u32 s50, s50, {WS_H:#x}
    s_add_u32 s51, s51, {WS_H:#x}
    s_mov_b32 s36, 0
    """)
    a.label("K2_rows")
    a(f"""
    buffer_load_dwordx4 v[{KY}:{KY+3}], v{vWL}, s[8:11], s50 offen sc1
    buffer_load_dwordx4 v[{KY+4}:{KY+7}], v{vWL}, s[8:11], s51 offen sc1
    s_add_u32 s36, s36, 1
    s_waitcnt vmcnt(1)
    ds_write_b128 v{vWL}, v[{KY}:{KY+3}] offset:{L_XS}
    v_max3_u32 v{Y}, v{KY}, v{KY+1}, v{KY+2}
    s_waitcnt vmcnt(0)
    ds_write_b128 v{vWL}, v[{KY+4}:{KY+7}] offset:{L_XS + 1040}
    v_max3_u32 v{Y+1}, v{KY+3}, v{KY+4}, v{KY+5}
    v_max3_u32 v{Y}, v{Y}, v{KY+6}, v{KY+7}
    v_max_u32 v{Y}, v{Y}, v{Y+1}
    v_cmp_eq_u32 vcc, -1, v{Y}
    s_cbranch_vccz K2_up1
    s_cmp_lt_u32 s36, 0x40000
    s_cbranch_scc1 K2_rows
    """)
    a.label("K2_up1")
    st(3, 2)
    a(f"""
    v_mul_u32_u24 v{t0}, 1040, v{t3}
    v_lshl_add_u32 v{t0}, v{t4}, 4, v{t0}
    s_lshr_b32 s5, s6, 1
    s_lshl_b32 s5, s5, 8
    v_add_u32 v{t0}, s5, v{t0}
    s_waitcnt lgkmcnt(0)
    s_barrier
    """)
    for sx in range(4):
        a(f"ds_read_b128 v[{BX+4*sx}:{BX+4*sx+3}], v{t0} offset:{L_XS + 64*sx}")
    for sx in range(4):
        a(f"s_waitcnt lgkmcnt({3-sx})")
        c = "0" if sx == 0 else f"v[{AC}:{AC+3}]"
        a(f"v_mfma_f32_16x16x32_bf16 v[{AC}:{AC+3}], v[{AFR+4*sx}:{AFR+4*sx+3}], v[{BX+4*sx}:{BX+4*sx+3}], {c}")
    a(f"""
    ds_write_b128 v{vPW}, v[{AC}:{AC+3}]
    s_waitcnt lgkmcnt(0)
    s_barrier
    s_cmp_lg_u32 {LEAD}
    s_cbranch_scc1 K2_fin
    """)
    def red_read():
        a(f"v_add_u32 v{t0}, {L_RED:#x}, v{vPR}")
        a("s_waitcnt vmcnt(0)")
        for k in range(4):
            a(f"ds_read2_b32 v[{KY+2*k}:{KY+2*k+1}], v{t0} offset0:{64*k} offset1:{64*k+32}")
        a("s_waitcnt lgkmcnt(0)")
        a(f"v_pk_add_f32 v[{KY}:{KY+1}], v[{KY}:{KY+1}], v[{KY+2}:{KY+3}]")
        a(f"v_pk_add_f32 v[{KY+4}:{KY+5}], v[{KY+4}:{KY+5}], v[{KY+6}:{KY+7}]")
        a(f"v_pk_add_f32 v[{KY}:{KY+1}], v[{KY}:{KY+1}], v[{KY+4}:{KY+5}]")
    st(4, 2)
    red_read()
    a(f"""
    v_cvt_pk_bf16_f32 v{KY}, 0, v{KY}
    v_cvt_pk_bf16_f32 v{KY+1}, 0, v{KY+1}
    """)
    sigmoid(a, KY + 2, KY, KY + 3)
    a(f"""
    v_mul_f32 v{KY}, v{KY}, v{KY+2}
    v_cvt_pk_bf16_f32 v{KY}, 0, v{KY}
    v_mul_f32 v{KY}, v{KY}, v{KY+1}
    v_cvt_pk_bf16_f32 v{KY}, 0, v{KY}
    v_or_b32 v{KY}, 1, v{KY}
    s_lshl_b32 s5, s76, 7
    s_add_u32 s5, s5, {WS_GU:#x}
    """)
    if GREP:
        for k in range(4):
            a(f"buffer_store_dword v{KY}, v{vOR}, s[8:11], s5 offen sc1")
            if k < 3: a("s_add_u32 s5, s5, 0x8000")
    else:
        a(f"""
        s_mov_b32 exec_hi, 0
        buffer_store_dword v{KY}, v{vPR}, s[8:11], s5 offen sc1
        s_mov_b64 exec, -1
        """)
    a(f"""
    s_branch K2_fin
    """)
    a.label("K2_down")
    HH, NN, GT, OO, RS = Y + 6, Y + 7, AC + 4, AC + 5, AC + 6
    a(f"""
    s_cmp_lg_u32 {LEAD}
    s_cbranch_scc1 K2_dn1
    v_bfe_u32 v{t0}, v0, 4, 1
    v_cmp_eq_u32 vcc, 0, v{t0}
    v_mov_b32 v{t0}, s43
    v_mov_b32 v{t1}, s42
    v_cndmask_b32 v{OO}, v{t0}, v{t1}, vcc
    v_and_b32 v{t0}, 15, v0
    v_lshl_add_u32 v{OO}, v{t0}, 1, v{OO}
    s_lshl_b32 s44, s77, 5
    v_mov_b32 v{t1}, s51
    v_mov_b32 v{RS}, s50
    v_cndmask_b32 v{RS}, v{t1}, v{RS}, vcc
    v_and_b32 v{t0}, 14, v0
    v_lshl_add_u32 v{RS}, v{t0}, 1, v{RS}
    s_add_u32 s52, s44, {WS_H:#x}
    v_mov_b32 v{t0}, s41
    v_mov_b32 v{t1}, s40
    v_cndmask_b32 v{GT}, v{t0}, v{t1}, vcc
    v_and_b32 v{GT}, 0xffff0000, v{GT}
    v_ashrrev_i32 v{t0}, 31, v{GT}
    v_not_b32 v{t0}, v{t0}
    v_or_b32 v{t0}, 0x80000000, v{t0}
    v_xor_b32 v{GT}, v{GT}, v{t0}
    v_and_b32 v{GT}, 0xffff0000, v{GT}
    """)
    sigmoid(a, GT, GT, t0)
    a(f"v_cvt_pk_bf16_f32 v{GT}, 0, v{GT}")
    a.label("K2_dn1")
    a(f"""
    s_mul_i32 s5, s6, 1792
    s_and_b32 s37, s2, {7 if GREP else 0}
    s_lshl_b32 s37, s37, 14
    s_add_u32 s5, s5, s37
    s_add_u32 s5, s5, {WS_GU:#x}
    v_min_u32 v{t1}, 47, v0
    v_lshlrev_b32 v{t1}, 4, v{t1}
    s_lshl_b32 s37, s6, 10
    s_add_u32 s37, s37, {L_GB:#x}
    v_lshrrev_b32 v{t0}, 3, v0
    v_lshlrev_b32 v{vPL}, 5, v{t0}
    v_and_b32 v{t0}, 3, v0
    v_lshl_add_u32 v{vPL}, v{t0}, 3, v{vPL}
    v_bfe_u32 v{t0}, v0, 2, 1
    v_mul_u32_u24 v{t0}, 464, v{t0}
    v_add3_u32 v{vPL}, v{vPL}, v{t0}, s37
    v_mul_u32_u24 v{vOW}, 464, v{t3}
    v_lshl_add_u32 v{vOW}, v{t4}, 4, v{vOW}
    v_add_u32 v{vOW}, s37, v{vOW}
    s_mov_b32 s45, 0x07060302
    s_mov_b32 s36, 0
    """)
    def gissue(b):
        a(f"buffer_load_dwordx4 v[{b}:{b+3}], v{vWL}, s[8:11], s5 offen sc1")
        a(f"buffer_load_dwordx4 v[{b+4}:{b+7}], v{t1}, s[8:11], s5 offen offset:1024 sc1")
    if 'nogb' not in dbg:
        a(f"""
        s_barrier
        s_cmp_lg_u32 {LEAD}
        s_cbranch_scc1 K2_hw
        """)
        a.label("K2_hl")
        a(f"""
        buffer_load_dword v{NN}, v{RS}, s[8:11], s52 offen sc1
        buffer_load_dword v{HH}, v{RS}, s[8:11], s52 offen offset:1024 sc1
        s_add_u32 s36, s36, 1
        s_waitcnt vmcnt(0)
        v_max_u32 v{t0}, v{HH}, v{NN}
        v_cmp_eq_u32 vcc, -1, v{t0}
        s_cbranch_vccz K2_hok
        s_cmp_lt_u32 s36, 0x40000
        s_cbranch_scc1 K2_hl
        """)
        a.label("K2_hok")
        a(f"""
        v_and_b32 v{t0}, 1, v0
        v_lshlrev_b32 v{t0}, 4, v{t0}
        v_lshrrev_b32 v{HH}, v{t0}, v{HH}
        v_lshrrev_b32 v{NN}, v{t0}, v{NN}
        s_mov_b32 s36, 0
        s_sleep {max(int(OPT.get('gd', 28)) - 14, 0)}
        s_branch K2_hx
        """)
        a.label("K2_hw")
        a(f"s_sleep {OPT.get('gd', 28)}")
        a.label("K2_hx")
    poll_loop("K2_gp", gissue, 2)
    a.label("K2_gok")
    st(4, 2)
    a(f"""
    v_perm_b32 v{Y}, v{KY+1}, v{KY}, s45
    v_perm_b32 v{Y+1}, v{KY+3}, v{KY+2}, s45
    v_perm_b32 v{Y+2}, v{KY+5}, v{KY+4}, s45
    v_perm_b32 v{Y+3}, v{KY+7}, v{KY+6}, s45
    ds_write_b64 v{vPL}, v[{Y}:{Y+1}]
    s_mov_b32 exec_hi, 0xffff
    ds_write_b64 v{vPL}, v[{Y+2}:{Y+3}] offset:256
    s_mov_b64 exec, -1
    """)
    for sx in range(7):
        a(f"ds_read_b128 v[{BX+4*sx}:{BX+4*sx+3}], v{vOW} offset:{64*sx}")
    for sx in range(7):
        a(f"s_waitcnt lgkmcnt({6-sx})")
        c = "0" if sx == 0 else f"v[{AC}:{AC+3}]"
        a(f"v_mfma_f32_16x16x32_bf16 v[{AC}:{AC+3}], v[{AFR+4*sx}:{AFR+4*sx+3}], v[{BX+4*sx}:{BX+4*sx+3}], {c}")
    a(f"""
    ds_write_b128 v{vPW}, v[{AC}:{AC+3}]
    s_waitcnt lgkmcnt(0)
    s_barrier
    s_cmp_lg_u32 {LEAD}
    s_cbranch_scc1 K2_fin
    """)
    red_read()
    a(f"""
    v_add_f32 v{KY}, v{KY}, v{KY+1}
    v_lshlrev_b32 v{HH}, 16, v{HH}
    v_lshlrev_b32 v{NN}, 16, v{NN}
    v_cvt_pk_bf16_f32 v{KY}, 0, v{KY}
    v_mul_f32 v{KY}, v{KY}, v{GT}
    v_cvt_pk_bf16_f32 v{KY}, 0, v{KY}
    v_add_f32 v{KY}, v{KY}, v{NN}
    v_cvt_pk_bf16_f32 v{KY}, 0, v{KY}
    v_add_f32 v{KY}, v{KY}, v{HH}
    v_cvt_pk_bf16_f32 v{KY}, v{KY}, v{KY}
    s_mov_b32 exec_hi, 0
    buffer_store_short v{KY}, v{OO}, s[20:23], s44 offen sc1
    s_mov_b64 exec, -1
    """)
    a.label("K2_fin")
    if 'lite' in dbg:
        a(f"""
        s_waitcnt vmcnt(0)
        s_memrealtime s[92:93]
        s_lshl_b32 s3, s2, 3
        s_add_u32 s3, s3, s6
        s_lshl_b32 s3, s3, 3
        s_add_u32 s3, s3, {WS_STAMP:#x}
        s_waitcnt lgkmcnt(0)
        v_mov_b32 v{S1}, s90
        v_mov_b32 v{S1+1}, s92
        s_mov_b64 exec, 1
        buffer_store_dwordx2 v[{S1}:{S1+1}], v{SP}, s[8:11], s3 offen
        """)
    if 'amp' in dbg:
        q = int(OPT['amp'])
        expr = {0: None, 1: ("s83", "s90"), 2: ("s84", "s90"), 3: ("s85", "s90"), 4: ("s86", "s90"), 5: ("s88", "s90"), 6: ("s94", "s90"), 7: ("s98", "s94"), 8: ("s96", "s98")}[q]
        a(f"""
        s_or_b32 s5, s2, s6
        s_cmp_lg_u32 s5, 0
        s_cbranch_scc1 K2_amp_end
        """)
        if expr: a(f"s_sub_u32 s85, {expr[0]}, {expr[1]}")
        else: a("s_mov_b32 s85, 0")
        a(f"""
        s_min_u32 s85, s85, 5000
        s_lshl_b32 s85, s85, 1
        s_add_u32 s85, s85, 600
        s_add_u32 s85, s85, s96
        """)
        a.label("K2_amp")
        a(f"""
        s_memrealtime s[92:93]
        s_waitcnt lgkmcnt(0)
        s_sub_u32 s86, s92, s85
        s_cmp_lt_i32 s86, 0
        s_cbranch_scc1 K2_amp
        """)
        a.label("K2_amp_end")
    if G.STAMP: a("s_waitcnt vmcnt(0)")
    stamp(a, 6)
    if G.STAMP: a("s_mov_b32 s91, s30")
    stamp_out(a, 1, 8, "s6", WF)
    dstamp(a, 1, True, 240)
    a.label("K2_end")
    a("s_endpgm")
    if 'nopf' not in dbg:
        a.label("K2_side")
        a(f"buffer_load_dword v{vPD}, v{vPA}, s[12:15], s38 offen")
        a("s_branch K2_sideb")
        a.label("K2_stg")
        for e in range(2):
            a(f"""
            s_mov_b32 m0, s78
            s_add_u32 s78, s78, 1024
            buffer_load_dwordx4 v{vFS}, s[68:71], s72 offen lds
            s_add_u32 s72, s72, s73
            """)
            if e == 0:
                a("s_bitcmp1_b32 s42, s29"); a("s_cbranch_scc0 K2_stgb")
        a("s_branch K2_stgb")
    a.label("K2_qspin")
    a(f"""
    s_mov_b32 s36, 0
    """)
    a.label("K2_qspin1")
    a(f"""
    s_sleep 2
    buffer_load_dword v{t0}, v{SP}, s[8:11], s45 offen sc1
    s_add_u32 s36, s36, 1
    s_waitcnt vmcnt(0)
    v_cmp_ne_u32 vcc, s58, v{t0}
    s_cbranch_vccz K2_qback
    s_cmp_lt_u32 s36, 0x40000
    s_cbranch_scc1 K2_qspin1
    s_branch K2_qback
    """)
    for k, off in enumerate(spins):
        a.label(f"K2_spin{k}")
        a(f"""
        s_sleep 1
        ds_read_b32 v{vFV}, v{vFR} offset:{off}
        s_waitcnt lgkmcnt(0)
        v_cmp_gt_u32 vcc, s59, v{vFV}
        s_cbranch_vccnz K2_spin{k}
        s_branch K2_back{k}
        """)
```

```python
from gen import *
import gen as G
import re

L_X = 0; L_W = 65536; L_KV = 131072; L_WOT = L_KV + 16384; L_DN = L_WOT + 2048; L1_TOTAL = L_DN + 64
L_Q0 = 0x6000

def gen_p1(a, dbg=''):
    SC = ' sc1'
    def p1(i):
        if 'p1st' in dbg: stamp(a, i)
        if 'amp' in dbg: a(f's_memrealtime s[100:101]'); a('s_waitcnt lgkmcnt(0)'); a(f's_mov_b32 s{82+i}, s100')
    FST = int(dict(x.split('=') for x in dbg.split(',') if '=' in x).get('fst', 0))
    WB = int(dict(x.split('=') for x in dbg.split(',') if '=' in x).get('wb', 5))
    WD = int(dict(x.split('=') for x in dbg.split(',') if '=' in x).get('wd', 9))
    PB = int(dict(x.split('=') for x in dbg.split(',') if '=' in x).get('pb', 99))
    FLS = int(dict(x.split('=') for x in dbg.split(',') if '=' in x).get('fls', 4))
    EPOCH = f"""
    s_add_u32 s56, s32, {WS_EP:#x}
    s_addc_u32 s57, s33, 0
    s_load_dword s58, s[56:57], 0
    """
    X = 32
    ACC = 96
    AF = 116
    T = 148
    a(f"""
    s_cmp_lt_u32 s2, 256
    s_cbranch_scc1 K1_go
    s_endpgm
    """)
    a.label("K1_go")
    stamp(a, 0)
    if ('lite' in dbg or 'amp' in dbg): a('s_memrealtime s[90:91]')
    dstamp(a, 0, False, 200)
    a(f"""
    s_load_dwordx8 s[24:31], s[0:1], 0
    s_load_dwordx2 s[44:45], s[0:1], 32
    s_load_dwordx2 s[32:33], s[0:1], 96
    """)
    if 'nocodepf' not in dbg:
        a(f"""
        s_cmp_ge_u32 s2, 16
        s_cbranch_scc1 K1_nocp
        v_subrev_u32 v30, 256, v0
        v_cmp_gt_u32 vcc, (K_all_end-k1_kernel+127)/128, v30
        s_and_saveexec_b64 s[62:63], vcc
        s_cbranch_execz K1_cpx
        s_getpc_b64 s[60:61]
        """)
        a.label("K1_pc")
        a(f"""
        s_sub_u32 s60, s60, K1_pc-k1_kernel
        s_subb_u32 s61, s61, 0
        v_lshlrev_b32 v30, 7, v30
        global_load_dword v31, v30, s[60:61]
        """)
        a.label("K1_cpx")
        a("s_mov_b64 exec, s[62:63]")
        a.label("K1_nocp")
    a(f"""
    s_and_b32 s3, s2, 7
    s_lshr_b32 s4, s2, 3
    s_and_b32 s5, s4, 7
    s_lshr_b32 s4, s4, 3           ; tb & 3
    s_lshl_b32 s3, s3, 2
    s_add_u32 s3, s3, s4
    v_lshrrev_b32 v1, 6, v0
    v_and_b32 v2, 63, v0           ; lane
    v_readfirstlane_b32 s6, v1     ; wave
    v_and_b32 v3, 15, v2           ; l & 15
    v_lshrrev_b32 v6, 2, v2
    v_lshrrev_b32 v4, 4, v2        ; g
    v_bfe_u32 v18, v2, 2, 2        ; r'
    v_and_b32 v19, 3, v2           ; c'
    v_lshl_add_u32 v20, v4, 3, v18 ; 8g + r'
    v_lshlrev_b32 v17, 5, v20
    v_lshl_add_u32 v17, v19, 3, v17
    s_cmp_ge_u32 s6, 4
    s_cbranch_scc1 K1_loader
    """)
    a(f"""
    s_load_dwordx2 s[48:49], s[0:1], 96
    s_load_dwordx2 s[40:41], s[0:1], 0
    s_load_dwordx8 s[60:67], s[0:1], 48
    s_load_dwordx2 s[46:47], s[0:1], 80
    s_lshl_b32 s7, s3, 6
    s_lshl_b32 s34, s6, 4
    s_add_u32 s7, s7, s34
    v_add_u32 v5, s7, v3           ; token
    v_lshrrev_b32 v7, 4, v2
    v_and_b32 v7, 2, v7
    v_xor_b32 v7, v7, v19
    v_lshlrev_b32 v6, 10, v6
    v_lshl_add_u32 v6, v7, 4, v6
    s_lshl_b32 s81, s6, 14
    s_lshl_b32 s80, s7, 10
    s_lshl_b32 s79, s5, 7
    s_waitcnt lgkmcnt(0)
    """)
    srd(a, 16, 24, 25, 0x200000)
    a(f"""
    s_add_u32 s42, s48, {WS_EP:#x}
    s_addc_u32 s43, s49, 0
    s_load_dword s58, s[42:43], 0
    """)
    def xloop(name, lo, hi):
        if lo >= hi: return
        a(f"s_mov_b32 s29, {lo}")
        a.label(name)
        a(f"""
        s_mov_b32 m0, s81
        s_add_u32 s3, s79, s80
        buffer_load_dwordx4 v6, s[16:19], s3 offen lds
        s_add_u32 m0, s81, {1024 - 64}
        s_add_u32 s79, s79, 128
        buffer_load_dwordx4 v6, s[16:19], s3 offen offset:64 lds
        s_and_b32 s79, s79, 0x3ff
        s_add_u32 s81, s81, 2048
        s_add_u32 s29, s29, 1
        s_cmp_lt_u32 s29, {hi}
        s_cbranch_scc1 {name}
        """)
    XN = int(dict(x.split('=') for x in dbg.split(',') if '=' in x).get('xn', 2))
    xloop("K1_x1", 0, XN)
    a("s_branch K12_setup1")
    EARLY = 'early' in dbg
    a.label("K1_loader")
    if 'noldprio' not in dbg: a("s_setprio 3")
    a(f"""
    s_sub_u32 s6, s6, 4
    v_lshrrev_b32 v7, 3, v2        ; row_in
    v_and_b32 v8, 7, v2            ; slot
    v_and_b32 v9, 2, v7
    v_xor_b32 v8, v8, v9
    v_xor_b32 v9, 4, v8
    s_lshl_b32 s35, s5, 7
    v_lshlrev_b32 v7, 10, v7
    v_add_u32 v7, s35, v7
    v_lshl_add_u32 v10, v8, 4, v7
    v_lshl_add_u32 v11, v9, 4, v7
    v_lshlrev_b32 v12, 4, v2       ; lane*16
    v_lshlrev_b32 v41, 14, v2
    v_lshrrev_b32 v13, 1, v2
    v_lshlrev_b32 v13, 10, v13
    v_and_b32 v14, 1, v2
    v_lshl_add_u32 v13, v14, 4, v13
    s_lshl_b32 s65, s6, 14
    s_add_u32 s65, s65, {L_W}
    s_lshl_b32 s37, s6, 4
    s_lshl_b32 s38, s5, 3
    s_add_u32 s37, s37, s38
    v_and_b32 v15, 16, v2
    v_lshlrev_b32 v15, 3, v15
    v_xor_b32 v15, v15, v12
    s_lshl_b32 s39, s4, 2
    s_waitcnt lgkmcnt(0)
    """)
    a(EPOCH)
    srd(a, 12, 26, 27, 0x80000)
    a(f"""
    s_bitcmp0_b32 s5, 0
    s_cselect_b64 s[46:47], s[28:29], s[30:31]
    """)
    srd(a, 16, 46, 47, 0x4000)
    srd(a, 40, 44, 45, 0x80000)
    srd(a, 20, 32, 33, WS_SIZE)
    a(f"""
    s_cmp_lg_u32 s6, 0
    s_cbranch_scc1 K1_noz
    v_mov_b32 v32, 0
    v_mov_b32 v33, 0
    v_mov_b32 v34, 0
    v_mov_b32 v35, 0
    s_lshl_b32 s48, s2, 10
    s_add_u32 s48, s48, {WS_GU:#x}
    buffer_store_dwordx4 v[32:35], v12, s[20:23], s48 offen{SC}
    """)
    a.label("K1_noz")
    a(f"""
    s_cmp_lg_u32 s6, 1
    s_cbranch_scc1 K1_not
    s_lshl_b32 s48, s3, 1
    s_lshr_b32 s49, s5, 2
    s_add_u32 s48, s48, s49
    s_mul_i32 s48, s48, {TS}
    s_add_u32 s48, s48, {WS_KV:#x}
    s_bfe_u32 s49, s5, 0x10001
    s_lshl_b32 s50, s49, 8
    s_mul_i32 s51, s49, 544
    s_addk_i32 s51, 1024
    s_bitcmp0_b32 s5, 0
    s_cselect_b32 s50, s50, s51
    s_add_u32 s48, s48, s50
    s_movk_i32 s51, 272
    s_bitcmp0_b32 s5, 0
    s_cselect_b32 s51, 512, s51
    s_mov_b32 s52, 0x1ffff
    s_cselect_b32 s52, 0xffff, s52
    v_lshrrev_b32 v36, 5, v2
    v_mul_lo_u32 v36, v36, s51
    v_and_b32 v37, 31, v2
    v_lshl_add_u32 v36, v37, 4, v36
    v_cmp_eq_u32 vcc, 16, v37
    v_mov_b32 v37, 0x3f803f80
    v_cndmask_b32 v32, -1, v37, vcc
    v_mov_b32 v33, v32
    v_mov_b32 v34, v32
    v_mov_b32 v35, v32
    s_mov_b32 exec_lo, s52
    s_mov_b32 exec_hi, s52
    buffer_store_dwordx4 v[32:35], v36, s[20:23], s48 offen sc1
    s_mov_b64 exec, -1
    """)
    a.label("K1_not")
    a(f"""
    s_cmp_lt_u32 s6, 3
    s_cbranch_scc1 K1_nowo
    s_lshl_b32 s46, s2, 1          ; fragments 2b, 2b+1
    s_lshr_b32 s47, s46, 6
    s_lshl_b32 s47, s47, 16
    s_bfe_u32 s48, s46, 0x10002
    s_lshl_b32 s48, s48, 15        ; s * 32 rows
    s_add_u32 s47, s47, s48
    s_bfe_u32 s48, s46, 0x30003
    s_lshl_b32 s48, s48, 7         ; w * 128 B
    s_add_u32 s47, s47, s48
    s_and_b32 s48, s46, 3
    s_lshl_b32 s48, s48, 5         ; t * 32 B
    s_add_u32 s47, s47, s48
    s_mov_b32 m0, {L_WOT}
    v_add_u32 v17, {L_WOT}, v17
    buffer_load_dwordx4 v13, s[40:43], s47 offen lds
    s_mov_b32 m0, {L_WOT + 1024 - 32}
    s_nop 0
    buffer_load_dwordx4 v13, s[40:43], s47 offen offset:32 lds
    """)
    a.label("K1_nowo")
    a(f"""
    s_lshl_b32 s36, s6, 12
    s_lshl_b32 s38, s5, 11
    """)
    for i in range(4):
        a(f"""
        s_add_u32 s48, s36, {i*1024}
        s_add_u32 m0, s48, {L_KV}
        s_add_u32 s48, s48, s38
        s_and_b32 s48, s48, 0x3fff
        buffer_load_dwordx4 v15, s[16:19], s48 offen lds
        """)
    a("s_waitcnt lgkmcnt(0)")
    a("s_add_u32 s58, s58, 1")
    a(f"""
    s_barrier
    s_cmp_lt_u32 s6, 3
    s_cbranch_scc1 K1_wst
    s_waitcnt vmcnt(0)
    ds_read_b64_tr_b16 v[32:33], v17
    ds_read_b64_tr_b16 v[34:35], v17 offset:128
    ds_read_b64_tr_b16 v[36:37], v17 offset:1024
    ds_read_b64_tr_b16 v[38:39], v17 offset:1152
    s_lshl_b32 s46, s46, 10
    s_add_u32 s46, s46, {WS_WOF:#x}
    v_mov_b32 v40, s58
    s_lshl_b32 s35, s2, {FLS}
    s_add_u32 s35, s35, {WS_FL:#x}
    s_waitcnt lgkmcnt(0)
    buffer_store_dwordx4 v[32:35], v12, s[20:23], s46 offen sc1
    buffer_store_dwordx4 v[36:39], v12, s[20:23], s46 offen offset:1024 sc1
    """)
    a.label("K1_wst")
    for i in range(16):
        a(f"""
        s_add_u32 s48, s39, {i}
        s_and_b32 s48, s48, 15
        s_lshl_b32 s49, s48, 10
        s_add_u32 m0, s65, s49
        s_add_u32 s48, s48, s37
        s_and_b32 s48, s48, 63
        s_lshl_b32 s48, s48, 13
        buffer_load_dwordx4 v{10 + (i & 1)}, s[12:15], s48 offen lds
        """)
        if i == WB:
            a(f"""
            s_cmp_eq_u32 s6, 3
            s_cbranch_scc1 K1_wb
            s_waitcnt vmcnt({WB + 1})
            """)
            a.label("K1_wb")
            p1(1)
            a("s_barrier")
        if i == WD:
            a(f"""
            s_cmp_lt_u32 s6, 3
            s_cbranch_scc1 K1_nodn
            s_waitcnt vmcnt({WD + 1})
            s_mov_b64 exec, 0xff
            buffer_store_dword v40, v41, s[20:23], s35 offen sc1
            s_mov_b64 exec, -1
            """)
            a.label("K1_nodn")
    p1(2)
    if 'lpost' in dbg:
        a("s_waitcnt vmcnt(0)")
        p1(3)
        a("s_barrier")
    if 'lp3' not in dbg: a("s_setprio 0")
    a("s_branch K12_setup")
    a.label("K1_comp")
    ONE = 24; SEL = 8
    SEL = 152
    a(f"""
    v_lshlrev_b32 v21, 7, v20
    v_lshl_add_u32 v21, v19, 3, v21   ; row*128 + 8c'
    v_add_u32 v21, {L_W}, v21
    v_lshrrev_b32 v22, 1, v18
    v_and_b32 v23, 1, v4
    v_lshl_or_b32 v22, v23, 1, v22 ; h
    """)
    for t in range(4):
        a(f"v_xor_b32 v23, {t}, v22")
        a(f"v_lshl_add_u32 v{13+t}, v23, 5, v21")
    a(f"""
    v_lshlrev_b32 v10, 6, v3
    v_lshrrev_b32 v7, 2, v3
    v_and_b32 v7, 2, v7
    v_xor_b32 v7, v7, v4
    v_lshl_add_u32 v10, v7, 4, v10
    s_lshl_b32 s3, s6, 14
    v_add_u32 v10, s3, v10
    v_and_b32 v7, 1, v4
    v_lshlrev_b32 v7, 7, v7
    v_add_u32 v17, {L_KV}, v17
    v_xor_b32 v12, v17, v7
    v_xor_b32 v17, 128, v12
    """)
    for r in range(4): a(f"v_mov_b32 v{ONE+r}, 0x3f803f80")
    a(f"""
    v_and_b32 v7, 1, v2
    v_lshlrev_b32 v7, 4, v7
    v_mov_b32 v8, 0x3f80
    v_lshlrev_b32 v7, v7, v8
    v_cmp_eq_u32 s[34:35], v18, v4 ; g == (l&15)>>2
    v_bfe_u32 v8, v2, 1, 1
    v_cmp_eq_u32 vcc, 0, v8
    s_and_b64 s[42:43], s[34:35], vcc
    s_andn2_b64 s[36:37], s[34:35], vcc
    v_mov_b32 v{SEL}, 0
    v_mov_b32 v{SEL+1}, 0
    v_cndmask_b32 v{SEL+2}, 0, v7, s[42:43]
    v_cndmask_b32 v{SEL+3}, 0, v7, s[36:37]
    v_mov_b32 v{SEL+4}, 0
    v_mov_b32 v{SEL+5}, 0
    """)
    xloop("K1_x2", XN, 8)
    a("s_waitcnt lgkmcnt(0)")
    a("s_add_u32 s58, s58, 1")
    a("s_barrier")
    p1(1)
    m16 = "v_mfma_f32_16x16x32_bf16"
    SUM = ACC; GR = ACC + 4; NM = 248
    def stat(u):
        xs = f"v[{X+4*u}:{X+4*u+3}]"
        a(f"{m16} v[{SUM}:{SUM+3}], v[{ONE}:{ONE+3}], {xs}, " + ("0" if u == 0 else f"v[{SUM}:{SUM+3}]"))
        a(f"{m16} v[{GR}:{GR+3}], {xs}, {xs}, " + ("0" if u == 0 else f"v[{GR}:{GR+3}]"))
    for u in range(0, 16, 2):
        a(f"s_waitcnt vmcnt({14-u})")
        a(f"ds_read_b128 v[{X+4*u}:{X+4*u+3}], v10 offset:{1024*u}")
        a(f"ds_read_b128 v[{X+4*u+4}:{X+4*u+7}], v10 offset:{1024*u+1024}")
        if u >= 4:
            a("s_waitcnt lgkmcnt(4)")
            stat(u - 4); stat(u - 3)
    a("s_waitcnt lgkmcnt(2)"); stat(12); stat(13)
    a("s_waitcnt lgkmcnt(0)"); stat(14); stat(15)
    RG = 184
    a("s_barrier")
    a("s_lshr_b32 s79, s28, 1")
    a("s_cmp_lg_u32 s79, s6")
    a("s_cbranch_scc1 K1_nokvf")
    for sx in range(16):
        for half in range(2):
            d = RG + 4 * sx + 2 * half
            a(f"ds_read_b64_tr_b16 v[{d}:{d+1}], v{17 if half else 12} offset:{sx*1024}")
    a.label("K1_nokvf")
    a(f"""
    v_and_b32 v7, 1, v2
    v_cmp_eq_u32 vcc, 1, v7
    v_cndmask_b32 v8, v{GR}, v{GR+1}, vcc
    v_cndmask_b32 v9, v{GR+2}, v{GR+3}, vcc
    v_cndmask_b32 v8, 0, v8, s[42:43]
    v_cndmask_b32 v26, v8, v9, s[36:37]
    """)
    for w in (16, 32):
        sum_swap(a, 26, 28, w)
    ln_scalars(a, SUM, 26, 28, 30, 27, 29)
    for r in range(4): a(f"v_sub_f32 v{NM+r}, 0, v28")
    if 'newln' not in dbg:
        NB = 4
        def cen(u, h):
            d = AF + 8 * (u % NB) + 4 * h
            if 'nolnleg' not in dbg:
                return f"v_mfma_f32_16x16x16bf16_1k v[{d}:{d+3}], v[{SEL+2}:{SEL+3}], v[{X+4*u+2*h}:{X+4*u+2*h+1}], v[{NM}:{NM+3}]"
            return f"{m16} v[{d}:{d+3}], v[{SEL+2-2*h}:{SEL+5-2*h}], v[{X+4*u}:{X+4*u+3}], v[{NM}:{NM+3}]"
        def sub(u):
            d = AF + 8 * (u % NB)
            xs = f"v[{X+4*u}:{X+4*u+3}]"
            a(cen(u, 0)); a(cen(u, 1))
        sub(0); sub(1)
        def ln_step(u):
            d = AF + 8 * (u % NB); L = []
            for r in range(4): L.append(f"v_cvt_pk_bf16_f32 v{d+r}, 0, v{d+r}")
            if u + 2 < 16:
                dd = AF + 8 * ((u + 2) % NB); xs = f"v[{X+4*(u+2)}:{X+4*(u+2)+3}]"
                L.append(cen(u + 2, 0))
            for r in range(4, 8): L.append(f"v_cvt_pk_bf16_f32 v{d+r}, 0, v{d+r}")
            if 'lnmul' in dbg:
                for r in range(8): L.append(f"v_mul_f32 v{d+r}, v{d+r}, v30")
            else:
                for r in range(0, 8, 2): L.append(f"v_pk_mul_f32 v[{d+r}:{d+r+1}], v[{d+r}:{d+r+1}], v[30:31] op_sel_hi:[1,0]")
            if u + 2 < 16:
                L.append(cen(u + 2, 1))
            for r in range(4): L.append(f"v_cvt_pk_bf16_f32 v{X+4*u+r}, v{d+2*r}, v{d+2*r+1}")
            return L
        for u in range(16):
            for ins in ln_step(u): a(ins)
    else:
        l16 = "v_mfma_f32_16x16x16bf16_1k"
        ID = f"v[{SEL+2}:{SEL+3}]"
        def A_(u, h):
            d = AF + 8 * (u & 1) + 4 * h
            return f"{l16} v[{d}:{d+3}], {ID}, v[{X+4*u+2*h}:{X+4*u+2*h+1}], v[{NM}:{NM+3}]"
        def R_(u):
            d = AF + 8 * (u & 1)
            return [f"v_cvt_pk_bf16_f32 v{X+4*u+r}, v{d+2*r}, v{d+2*r+1}" for r in range(4)]
        def B_(u, h):
            d = AF + 16 + 8 * (u & 1) + 4 * h
            return f"{l16} v[{d}:{d+3}], {ID}, v[{X+4*u+2*h}:{X+4*u+2*h+1}], 0"
        def S_(u):
            d = AF + 16 + 8 * (u & 1)
            if 'lnmul' in dbg: return [f"v_mul_f32 v{d+r}, v{d+r}, v30\nv_mul_f32 v{d+r+1}, v{d+r+1}, v30" for r in range(0, 8, 2)]
            return [f"v_pk_mul_f32 v[{d+r}:{d+r+1}], v[{d+r}:{d+r+1}], v[30:31] op_sel_hi:[1,0]" for r in range(0, 8, 2)]
        def P_(u):
            d = AF + 16 + 8 * (u & 1)
            return [f"v_cvt_pk_bf16_f32 v{X+4*u+r}, v{d+2*r}, v{d+2*r+1}" for r in range(4)]
        ok = lambda u: 0 <= u < 16
        for st_ in range(-2, 16):
            r = R_(st_ + 1) if ok(st_ + 1) else []
            sc = S_(st_) if ok(st_) else []
            pk = P_(st_) if ok(st_) else []
            seq = []
            if ok(st_ + 2): seq.append(A_(st_ + 2, 0))
            seq += r[:3]
            if ok(st_ + 2): seq.append(A_(st_ + 2, 1))
            seq += r[3:] + sc[:2]
            if ok(st_ + 1): seq.append(B_(st_ + 1, 0))
            seq += sc[2:] + pk[:1]
            if ok(st_ + 1): seq.append(B_(st_ + 1, 1))
            seq += pk[1:]
            for ins in seq: a(ins)
    p1(2)
    KV = ACC + 16
    a(f"""
    v_lshrrev_b32 v9, 1, v4
    v_and_b32 v11, 1, v4
    s_cmp_lg_u32 s79, s6
    s_cbranch_scc1 K1_q
    s_lshr_b32 s35, s80, 15
    s_mul_i32 s35, s35, {TS}
    s_add_u32 s35, s35, {WS_KV:#x}
    s_waitcnt lgkmcnt(0)
    s_bitcmp0_b32 s28, 0
    s_cbranch_scc0 K1_v
    """)
    for sx in range(16):
        a(f"{m16} v[{KV}:{KV+3}], v[{RG+4*sx}:{RG+4*sx+3}], v[{X+4*sx}:{X+4*sx+3}], " + ("0" if sx == 0 else f"v[{KV}:{KV+3}]"))
    a(f"""
    v_and_b32 v8, 31, v5
    v_lshlrev_b32 v8, 4, v8
    v_lshl_add_u32 v8, v9, 9, v8
    s_branch K1_kvs
    """)
    a.label("K1_v")
    for sx in range(16):
        a(f"{m16} v[{KV}:{KV+3}], v[{X+4*sx}:{X+4*sx+3}], v[{RG+4*sx}:{RG+4*sx+3}], " + ("0" if sx == 0 else f"v[{KV}:{KV+3}]"))
    a(f"""
    s_and_b32 s36, s6, 1
    s_mul_i32 s36, s36, 544
    s_add_u32 s35, s35, s36
    s_add_u32 s35, s35, 1024
    v_mul_u32_u24 v8, 272, v9
    v_lshl_add_u32 v8, v3, 4, v8
    """)
    a.label("K1_kvs")
    a(f"""
    v_cvt_pk_bf16_f32 v{T}, v{KV}, v{KV+1}
    v_cvt_pk_bf16_f32 v{T+1}, v{KV+2}, v{KV+3}
    v_mov_b32 v{T+2}, v{T}
    v_mov_b32 v{T+3}, v{T+1}
    v_permlane16_swap_b32 v{T}, v{T+2}
    v_permlane16_swap_b32 v{T+1}, v{T+3}
    v_min_u32 v{T}, -2, v{T}
    s_mov_b32 exec_lo, 0xffff
    s_mov_b32 exec_hi, 0xffff
    buffer_store_dwordx4 v[{T}:{T+3}], v8, s[8:11], s35 offen sc1
    s_mov_b64 exec, -1
    """)
    a.label("K1_q")
    a("s_barrier")
    p1(3)
    def rd(s, t):
        for half in range(2):
            d = RG + 16 * (s % 3) + 4 * t + 2 * half
            a(f"ds_read_b64_tr_b16 v[{d}:{d+1}], v{13+t} offset:{s*4096 + half*512}")
    for t in range(4): rd(0, t)
    for t in range(4): rd(1, t)
    for s in range(16):
        a(f"s_waitcnt lgkmcnt({8 if s < 15 else 0})")
        for t in range(4):
            d = RG + 16 * (s % 3) + 4 * t
            c = "0" if s == 0 else f"v[{ACC+4*t}:{ACC+4*t+3}]"
            a(f"{m16} v[{ACC+4*t}:{ACC+4*t+3}], v[{d}:{d+3}], v[{X+4*s}:{X+4*s+3}], {c}")
            if s + 2 < 16: rd(s + 2, t)
        if s == PB: a("s_barrier")
    a(f"""
    s_lshl_b32 s35, s28, 10
    v_lshrrev_b32 v7, 3, v5
    v_lshlrev_b32 v7, 13, v7
    v_and_b32 v8, 7, v5
    v_lshl_add_u32 v7, v8, 4, v7
    v_lshl_add_u32 v7, v9, 9, v7
    v_lshl_add_u32 v7, v11, 7, v7
    """)
    for tp in range(2):
        for t in (2 * tp, 2 * tp + 1):
            for r in range(4): a(f"v_cvt_pk_bf16_f32 v{ACC+4*t+r}, 0, v{ACC+4*t+r}")
            for r in range(4): a(f"v_mul_f32 v{ACC+4*t+r}, {f2u(0.25 * 1.4426950408889634):#x}, v{ACC+4*t+r}")
            a(f"v_cvt_pk_bf16_f32 v{AF+2*t}, v{ACC+4*t}, v{ACC+4*t+1}")
            a(f"v_cvt_pk_bf16_f32 v{AF+2*t+1}, v{ACC+4*t+2}, v{ACC+4*t+3}")
        b = AF + 4 * tp
        a(f"v_permlane16_swap_b32 v{b}, v{b+2}")
        a(f"v_permlane16_swap_b32 v{b+1}, v{b+3}")
        a(f"buffer_store_dwordx4 v[{b}:{b+3}], v7, s[8:11], s35 offen offset:{256*tp}{SC}")
    a(f"""
    s_cmp_lg_u32 s79, s6
    s_cbranch_scc1 K1_nol
    v_and_b32 v8, 0x3ff, v7
    s_mov_b32 s36, 0x00ff00ff
    s_and_b32 s37, s28, 1
    s_lshl_b32 s37, s37, 3
    s_lshl_b32 exec_lo, s36, s37
    s_mov_b32 exec_hi, exec_lo
    ds_write_b128 v8, v[{AF}:{AF+3}] offset:{L_Q0}
    ds_write_b128 v8, v[{AF+4}:{AF+7}] offset:{L_Q0 + 256}
    s_mov_b64 exec, -1
    """)
    a.label("K1_nol")
    p1(4)
    dstamp(a, 0, True, 200)
    a("s_branch K12_join")
    for k, l in enumerate(a.lines):
        if isinstance(l, Ins):
            t = re.sub(r"\bv(\d+)\b", lambda m: f"v{159 + int(m.group(1))}" if 1 <= int(m.group(1)) <= 15 else m.group(0), l.text)
            if t != l.text: a.lines[k] = Ins(t)
```

```python
from gen import *
import gen as G

L_PART = 0x0; L_Q = 0x6000; L_MREF = 0x8400; L_OB = 0x5800; L_KEY = 0xAC00; L_FLG = 0xAD00; L_ZC = 0xAE00; L_MX = 0xB000; L_HB = 0xB400
L_FW = 0xE000; L_TOTAL = 0xE000 + 8 * 7168
L_XS = L_PART; L_RED = L_PART + 0x1000; L_GB = L_PART + 0x2000
C_EXACT = 0.25 * 1.4426950408889634
OFFS = 96.0

def wave_sum(a, vs, ts):
    if isinstance(vs, int): vs, ts = [vs], [ts]
    for mod in ("quad_perm:[1,0,3,2]", "quad_perm:[2,3,0,1]", "row_half_mirror", "row_mirror"):
        for v in vs:
            a(f"v_add_f32_dpp v{v}, v{v}, v{v} {mod} row_mask:0xf bank_mask:0xf")
    for w in (16, 32):
        for v, t in zip(vs, ts): a(f"v_mov_b32 v{t}, v{v}")
        for v, t in zip(vs, ts): a(f"v_permlane{w}_swap_b32 v{t}, v{v}")
        for v, t in zip(vs, ts): a(f"v_add_f32 v{v}, v{v}, v{t}")

class VM:
    def __init__(self, a): self.a = a; self.q = []; self.done = -1
    def issue(self, tag): self.q.append(tag)
    def wait(self, tag):
        i = max(k for k, t in enumerate(self.q) if t == tag)
        if i <= self.done: return
        self.done = i
        self.a(f"s_waitcnt vmcnt({len(self.q) - 1 - i})")

def wave_max_u32(a, v, t):
    for mod in ("quad_perm:[1,0,3,2]", "quad_perm:[2,3,0,1]", "row_half_mirror", "row_mirror"):
        a(f"v_max_u32_dpp v{v}, v{v}, v{v} {mod} row_mask:0xf bank_mask:0xf")
    for w in (16, 32):
        a(f"""
        v_mov_b32 v{t}, v{v}
        v_permlane{w}_swap_b32 v{t}, v{v}
        v_max_u32 v{v}, v{v}, v{t}
        """)

LOG2E = 1.4426950408889634
def sigmoid(a, d, x, t):
    a(f"""
    v_mul_f32 v{t}, {f2u(-LOG2E):#x}, v{x}
    v_exp_f32 v{t}, v{t}
    v_add_f32 v{t}, 1.0, v{t}
    v_rcp_f32 v{d}, v{t}
    """)

def gen_p2(a, dbg='', prio=True):
    SC = ' sc1'
    OPT = dict(x.split('=') for x in dbg.split(',') if '=' in x)
    FLS = int(OPT.get('fls', 4))
    PFS = int(OPT.get('pfs', 0)); PFP = int(OPT.get('pfp', 1))
    TAILST = 'tailst' in dbg
    FS = 'ffnst' in dbg
    KREP = 'nokrep' not in dbg; GREP = 'nogrep' not in dbg
    def st(i, tail):
        if 'p1st' in dbg:
            if tail == 4: stamp(a, i)
        elif 'r0st' in dbg:
            if tail == 3: stamp(a, i)
        elif FS:
            if tail == 2: stamp(a, i)
        elif tail in (True, False) and bool(tail) == TAILST: stamp(a, i)
    K = 16; V = 48; X = [112, 128]; O = 144; CM = 160; SP = 176; Q = 184; OA = 188; WF = 204; BF = 236; S1 = 240
    vQA, vPW, vPR, vPL, vOW, vOR, vLM, vWL, vKL, vVL = 1, 2, 3, 4, 5, 6, 7, 8, 9, 10
    t0, t1, t2, t3, t4 = 11, 12, 13, 14, 15
    vFW, vFR, vFV, vWLs = 9, 13, 14, 15
    vFS, vPA, vPD = SP + 4, SP + 5, SP + 6
    a.label("K12_setup")
    a(f"""
    s_load_dwordx2 s[48:49], s[0:1], 96
    s_load_dwordx2 s[40:41], s[0:1], 0
    s_load_dwordx8 s[60:67], s[0:1], 48
    s_load_dwordx2 s[46:47], s[0:1], 80
    s_waitcnt lgkmcnt(0)
    """)
    a.label("K12_setup1")
    a(f"""
    s_and_b32 s3, s2, 7
    s_lshr_b32 s4, s2, 3
    s_lshl_b32 s7, s3, 8
    s_lshl_b32 s5, s4, 3
    s_add_u32 s7, s7, s5           ; T0
    s_and_b32 s28, s4, 7           ; rot
    v_lshrrev_b32 v{t0}, 6, v0
    v_and_b32 v0, 63, v0
    v_readfirstlane_b32 s6, v{t0}
    s_mov_b32 s30, 0
    v_lshlrev_b32 v{vWL}, 4, v0
    s_mul_i32 s3, s6, {8*TS}
    s_add_u32 s3, s3, {WS_KV:#x}
    """)
    for t in range(8):
        a(f"""
        s_add_u32 s4, s28, {t}
        s_and_b32 s4, s4, 7
        s_mul_i32 s4, s4, {TS}
        s_add_u32 s{50+t}, s3, s4
        """)
    a.label("K2_restart")
    a(f"""
    s_add_u32 s44, s6, 4
    s_and_b32 s44, s44, 7
    s_add_u32 s3, s44, s28
    s_and_b32 s3, s3, 7
    s_andn2_b32 s45, s2, 0x38
    s_lshl_b32 s4, s3, 3
    s_or_b32 s45, s45, s4
    s_lshl_b32 s45, s45, 6
    s_lshr_b32 s4, s28, 1
    s_lshl_b32 s4, s4, 2
    s_add_u32 s45, s45, s4
    s_add_u32 s45, s45, {WS_FQ:#x}
    s_add_u32 s3, s3, s7
    s_lshl_b32 s32, s3, 10
    v_and_b32 v{t1}, 31, v0
    v_lshrrev_b32 v{t2}, 5, v0
    v_mul_u32_u24 v{vVL}, 272, v{t2}
    v_lshl_add_u32 v{vVL}, v{t1}, 4, v{vVL}
    v_cmp_lt_u32 vcc, 16, v{t1}
    v_bfrev_b32 v{t0}, 1
    v_add_u32 v{vQA}, {L_Q:#x}, v{vWL}
    v_cndmask_b32 v{vVL}, v{vVL}, v{t0}, vcc
    """)
    srd(a, 8, 48, 49, WS_SIZE)
    vm = VM(a)
    def ldK(t):
        a(f"buffer_load_dwordx4 v[{K+4*t}:{K+4*t+3}], v{vWL}, s[8:11], s{50+t} offen{SC}"); vm.issue(f"K{t}")
    def ldV(t):
        if 'vmask' in dbg:
            a("s_mov_b32 exec_lo, 0x1ffff"); a("s_mov_b32 exec_hi, 0x1ffff")
            for h in range(2):
                a(f"buffer_load_dwordx4 v[{V+8*t+4*h}:{V+8*t+4*h+3}], v{vVL}, s[8:11], s{50+t} offen offset:{1024 + 544*h}{SC}"); vm.issue(f"V{t}{h}")
            a("s_mov_b64 exec, -1")
            return
        for h in range(2):
            a(f"buffer_load_dwordx4 v[{V+8*t+4*h}:{V+8*t+4*h+3}], v{vVL}, s[8:11], s{50+t} offen offset:{1024 + 544*h}{SC}"); vm.issue(f"V{t}{h}")
    a(f"""
    s_lshl_b32 s3, s44, 10
    v_add_u32 v{t4}, s3, v{vQA}
    """)
    def late_setup(part):
        u0, u1, u2, u3 = S1, S1 + 1, S1 + 2, S1 + 3
        if part == 0:
            srd(a, 16, 40, 41, 0x200000)
            srd(a, 20, 46, 47, 0x200000)
            srd(a, 24, 60, 61, 0x400)
            a(f"""
            v_and_b32 v{u1}, 31, v0
            v_lshrrev_b32 v{u2}, 5, v0
            v_mul_u32_u24 v{vPW}, 80, v{u1}
            s_mul_i32 s3, s6, 2560
            v_add_u32 v{vPW}, s3, v{vPW}
            v_lshl_add_u32 v{SP+3}, v{u2}, 2, v{vPW}
            v_lshl_add_u32 v{vPW}, v{u2}, 4, v{vPW}
            v_lshrrev_b32 v{u0}, 4, v0     ; g
            s_lshr_b32 s3, s6, 1
            s_lshl_b32 s3, s3, 3
            s_and_b32 s4, s6, 1
            s_lshl_b32 s4, s4, 1
            s_add_u32 s3, s3, s4
            v_and_b32 v{u1}, 1, v{u0}
            v_lshl_add_u32 v{u1}, v{u1}, 2, v{u2}
            v_add_u32 v{u1}, s3, v{u1}     ; n = 8*(w>>1) + 2*(w&1) + (g>>1) + 4*(g&1)
            v_mul_u32_u24 v{vPL}, 80, v{u1}
            v_and_b32 v{u2}, 15, v0        ; d
            v_lshl_add_u32 v{vPR}, v{u2}, 2, v{vPL}
            v_and_b32 v{u3}, 7, v0
            v_mul_u32_u24 v{u3}, 2560, v{u3}
            v_add3_u32 v{vPL}, v{vPL}, v{u3}, 64
            s_lshl_b32 s31, s28, 16
            s_lshl_b32 s33, s6, 13
            s_add_u32 s33, s33, {WS_WOF:#x}
            """)
        elif part == 1:
            a(f"""
            v_and_b32 v{u3}, 7, v{u1}      ; token
            v_lshrrev_b32 v{u1}, 3, v{u1}  ; head_local
            v_mul_u32_u24 v{vOW}, 144, v{u3}
            v_lshl_add_u32 v{vOW}, v{u1}, 5, v{vOW}
            v_lshl_add_u32 v{vOW}, v{u2}, 1, v{vOW}
            v_add_u32 v{vOW}, {L_OB:#x}, v{vOW}
            v_and_b32 v{u3}, 7, v0
            v_mul_u32_u24 v{vOR}, 144, v{u3}
            v_lshl_add_u32 v{vOR}, v{u0}, 4, v{vOR}
            v_add_u32 v{vOR}, {L_OB:#x}, v{vOR}
            {"" if 'nozc' in dbg else f"v_and_b32 v{u1}, 8, v0"}
            {"" if 'nozc' in dbg else f"v_cmp_ne_u32 vcc, 0, v{u1}"}
            {"" if 'nozc' in dbg else f"v_mov_b32 v{u1}, {L_ZC:#x}"}
            {"" if 'nozc' in dbg else f"v_cndmask_b32 v{vOR}, v{vOR}, v{u1}, vcc"}
            v_mov_b32 v{vLM}, 0
            v_lshlrev_b32 v{vFR}, 2, v{u3}
            v_add_u32 v{vFR}, {L_FLG:#x}, v{vFR}
            """)
        else:
            a(f"v_pk_mov_b32 v[{SP}:{SP+1}], 0, 0")
            a(f"v_mov_b32 v{SP+2}, 0xdddddddd")
    def rd_qcm():
        a(f"ds_read_b128 v[{Q}:{Q+3}], v{vQA}")
        for k in range(4):
            a(f"ds_read_b128 v[{CM+4*k}:{CM+4*k+3}], v{vQA} offset:{L_MREF - L_Q}")
        a(f"v_add_u32 v{vQA}, 1024, v{vQA}")
    mf = "v_mfma_f32_32x32x16_bf16"
    def M1(kt, xb):
        if 'nom1' in dbg: a("s_nop 1"); return
        a(f"{mf} v[{X[xb]}:{X[xb]+15}], v[{K+4*kt}:{K+4*kt+3}], v[{Q}:{Q+3}], v[{CM}:{CM+15}]")
    def E(xb, lo, hi):
        for r in range(lo, hi):
            if 'expnop' in dbg:
                a("v_nop"); a("v_nop")
                continue
            if 'noexp' in dbg:
                a(f"v_cvt_pk_bf16_f32 v{X[xb]+r}, 0, v{X[xb]+r}"); a(f"v_cvt_pk_bf16_f32 v{X[xb]+r}, 0, v{X[xb]+r}")
                continue
            a(f"v_exp_f32 v{X[xb]+r}, v{X[xb]+r}")
    def C2(h, xb):
        for k in range(4):
            a(f"v_cvt_pk_bf16_f32 v{SP+4*h+k}, v{X[xb]+8*h+2*k}, v{X[xb]+8*h+2*k+1}")
    def M3(h, kt):
        xb = kt & 1
        if 'nom3' in dbg: a("s_nop 2"); return
        a(f"v_smfmac_f32_32x32x32_bf16 v[{O}:{O+15}], v[{V+8*kt+4*h}:{V+8*kt+4*h+3}], v[{X[xb]+8*h}:{X[xb]+8*h+7}], v{SP+2}")
    def Ozero():
        a(f"v_mfma_f32_32x32x8bf16_1k v[{O}:{O+15}], v[{SP}:{SP+1}], v[{SP}:{SP+1}], 0")
    def part_write():
        a(f"""
        ds_write_b128 v{vPW}, v[{O}:{O+3}]
        ds_write_b128 v{vPW}, v[{O+4}:{O+7}] offset:32
        ds_write_b32 v{SP+3}, v{O+8} offset:64
        """)
    def s1_read():
        a(f"ds_read_b32 v{S1+8}, v{vPL}")
        for k in range(4):
            a(f"ds_read2st64_b32 v[{S1+2*k}:{S1+2*k+1}], v{vPR} offset0:{20*k} offset1:{20*k+10}")
    def s1_calc():
        dp = lambda mod: f"v_add_f32_dpp v{S1+8}, v{S1+8}, v{S1+8} {mod} row_mask:0xf bank_mask:0xf"
        pa = (lambda x, y: f"v_add_f32 v{x}, v{x}, v{y}\nv_add_f32 v{x+1}, v{x+1}, v{y+1}") if 's1sc' in dbg else \
             (lambda x, y: f"v_pk_add_f32 v[{x}:{x+1}], v[{x}:{x+1}], v[{y}:{y+1}]")
        a(f"""
        {dp("quad_perm:[1,0,3,2]")}
        {pa(S1, S1+2)}
        {pa(S1+4, S1+6)}
        {dp("quad_perm:[2,3,0,1]")}
        {pa(S1, S1+4)}
        v_add_f32 v{S1}, v{S1}, v{S1+1}
        {dp("row_half_mirror")}
        v_rcp_f32 v{S1+1}, v{S1+8}
        v_maximum3_f32 v{vLM}, v{vLM}, v{S1+8}, abs(v{S1})
        v_mul_f32 v{S1}, v{S1}, v{S1+1}
        v_cvt_pk_bf16_f32 v{S1}, v{S1}, v{S1}
        ds_write_b16 v{vOW}, v{S1}
        """)
    def s2_read():
        for s in range(2):
            a(f"ds_read_b128 v[{BF+4*s}:{BF+4*s+3}], v{vOR} offset:{64*s}")
    def s2_mma(lo, hi):
        for u in range(lo, hi):
            s, t = u >> 2, u & 3
            a(f"v_mfma_f32_16x16x32_bf16 v[{OA+4*t}:{OA+4*t+3}], v[{WF+4*u}:{WF+4*u+3}], v[{BF+4*s}:{BF+4*s+3}], v[{OA+4*t}:{OA+4*t+3}]")
    def wf_load(lo, hi):
        if lo == 0:
            a("s_add_u32 s34, s33, s31")
            a("s_add_u32 s35, s34, 4096")
            a("s_add_u32 s31, s31, 0x10000")
            a("s_and_b32 s31, s31, 0x7ffff")
        for u in range(lo, hi):
            a(f"buffer_load_dwordx4 v[{WF+4*u}:{WF+4*u+3}], v{vWL}, s[8:11], s{34 + (u >> 2)} offen offset:{1024*(u&3)}{'' if 'wfpl' in dbg else ' nt' if 'wfnt' in dbg else SC}")
            vm.issue("WF")
    def ffn_prefetch():
        a(f"""
        s_mov_b32 s39, s6
        s_cmp_eq_u32 s39, 1
        s_cselect_b64 s[36:37], s[64:65], s[62:63]
        s_cmp_eq_u32 s39, 2
        s_cselect_b64 s[36:37], s[66:67], s[36:37]
        """)
        srd(a, 12, 36, 37, 512 * 1792 * 2)
        a(f"""
        s_and_b32 s3, s2, 7
        s_lshr_b32 s4, s2, 3
        s_mul_i32 s5, s4, {16*3584}
        s_mul_i32 s36, s3, 448
        s_and_b32 s36, s36, 0xffffff80
        s_add_u32 s5, s5, s36
        s_lshl_b32 s36, s3, 7
        s_mul_i32 s37, s4, {56*1024}
        s_add_u32 s36, s36, s37
        v_lshrrev_b32 v{t0}, 2, v0
        v_mul_u32_u24 v{t0}, 3584, v{t0}
        v_and_b32 v{t1}, 3, v0
        v_lshl_add_u32 v{t0}, v{t1}, 7, v{t0}
        v_min_u32 v{t1}, 55, v0
        v_lshlrev_b32 v{t1}, 10, v{t1}
        s_cmp_eq_u32 s39, 2
        s_cselect_b32 s38, s36, s5
        s_cselect_b64 vcc, -1, 0
        v_cndmask_b32 v{vPA}, v{t0}, v{t1}, vcc
        s_lshl_b32 s39, s6, {PFS}
        s_add_u32 s39, s39, 1
        s_cmp_gt_u32 s6, 2
        s_cselect_b32 s39, 99, s39
        """)
    def ffn_setup():
        a(f"""
        s_and_b32 s3, s2, 7
        s_lshr_b32 s4, s2, 3
        s_and_b32 s5, s6, 1
        s_cmp_eq_u32 s5, 0
        s_cselect_b64 s[36:37], s[62:63], s[64:65]
        s_cmp_lt_u32 s2, 112
        s_cselect_b64 s[36:37], s[36:37], s[66:67]
        """)
        srd(a, 68, 36, 37, 512 * 1792 * 2)
        a(f"""
        s_mul_i32 s76, s3, 14
        s_add_u32 s76, s76, s4           ; fs
        s_lshl_b32 s77, s3, 2
        s_add_u32 s77, s77, s4
        s_sub_u32 s77, s77, 14           ; cb
        s_lshr_b32 s5, s6, 1
        s_mul_i32 s5, s5, {128*3584}
        s_lshl_b32 s36, s76, 5
        s_add_u32 s5, s5, s36
        s_mul_i32 s36, s6, {224*1024}
        s_lshl_b32 s37, s77, 5
        s_add_u32 s36, s36, s37
        s_cmp_lt_u32 s2, 112
        s_cselect_b32 s72, s5, s36
        s_movk_i32 s73, 1024
        s_cselect_b32 s73, 3584, s73
        s_cselect_b32 s75, 4, 7
        s_cmp_lt_u32 s2, 144
        s_cselect_b32 s75, s75, 0
        s_mul_i32 s74, s6, 7168
        s_add_u32 s74, s74, {L_FW:#x}
        v_lshrrev_b32 v{vFS}, 1, v0
        v_mul_lo_u32 v{vFS}, v{vFS}, s73
        v_and_b32 v{t1}, 1, v0
        v_lshl_add_u32 v{vFS}, v{t1}, 4, v{vFS}
        s_lshl_b32 s73, s73, 5
        s_mov_b32 s78, s74
        """)
    def ffn_stage():
        a(f"""
        s_cmp_lt_u32 s29, 4
        s_cbranch_scc1 K2_nost
        """)
        for e in range(2):
            a(f"""
            s_cmp_eq_u32 s75, 0
            s_cbranch_scc1 K2_nost
            s_mov_b32 m0, s78
            s_sub_u32 s75, s75, 1
            buffer_load_dwordx4 v{vFS}, s[68:71], s72 offen lds
            s_add_u32 s78, s78, 1024
            s_add_u32 s72, s72, s73
            """)
        a.label("K2_nost")
    def ffn_issue():
        a(f"""
        s_cmp_lg_u32 s29, s39
        s_cbranch_scc1 K2_nopf
        buffer_load_dword v{vPD}, v{vPA}, s[12:15], s38 offen
        """)
        a.label("K2_nopf")
    def setprio(p):
        if prio: a(f"s_setprio {p}")
    def mref_mma(q, d):
        a(f"{mf} v[{d}:{d+15}], v[{K}:{K+3}], v[{q}:{q+3}], 0")
        a(f"{mf} v[{d+16}:{d+31}], v[{K+4}:{K+7}], v[{q}:{q+3}], 0")
    def mref_max(S):
        a(f"v_max3_f32 v{t0}, v{S}, v{S+1}, v{S+2}")
        for r in range(3, 31, 2):
            a(f"v_max3_f32 v{t0}, v{t0}, v{S+r}, v{S+r+1}")
        a(f"""
        v_max_f32 v{t0}, v{t0}, v{S+31}
        v_mov_b32 v{t1}, v{t0}
        v_permlane32_swap_b32 v{t1}, v{t0}
        v_max_f32 v{t0}, v{t0}, v{t1}
        """)
        for r in range(4): a(f"v_sub_f32 v{S+r}, {f2u(-OFFS):#x}, v{t0}")
        a(f"ds_write_b128 v{t4}, v[{S}:{S+3}] offset:{L_MREF - L_Q}")
    retries = []
    def frag(kind, t): return K + 4 * t if kind == "K" else V + 4 * t
    def vtest(fr):
        r = [frag(*f) for f in fr]
        if len(r) == 1: a(f"v_cmp_eq_u32 vcc, -1, v{r[0]}"); return
        a(f"v_max_u32 v{vPD}, v{r[0]}, v{r[1]}" if len(r) == 2 else f"v_max3_u32 v{vPD}, v{r[0]}, v{r[1]}, v{r[2]}")
        a(f"v_cmp_eq_u32 vcc, -1, v{vPD}")
    def valid(name, fr):
        vtest(fr)
        a(f"s_cbranch_vccnz K2_rt{name}")
        a.label(f"K2_rb{name}")
        retries.append((name, fr))
    def kv_first():
        ldK(0); ldK(1); ldV(0); ldK(2); ldV(1)
    for p in range(3): late_setup(p)
    ffn_prefetch(); ffn_setup()
    a(f"""
    s_lshl_b32 s3, s6, 2
    s_add_u32 s3, s3, {L_FLG:#x}
    v_mov_b32 v{vFW}, s3
    s_movk_i32 s59, {L_Q + 2048:#x}
    s_lshl_b32 s3, s30, 2
    s_or_b32 s3, s3, s6
    s_cmp_lt_u32 s3, 4
    s_cbranch_scc1 K1_comp
    """)
    a.label("K12_join")
    for r in range(0, 16, 2):
        a(f"v_pk_mov_b32 v[{OA+r}:{OA+r+1}], 0, 0")
    a(f"""
    s_min_u32 s3, s75, 4
    s_bfm_b32 s43, s3, 4
    s_sub_u32 s3, s75, s3
    s_bfm_b32 s42, s3, 5
    """)
    def fq_store():
        a(f"""
        v_mov_b32 v{t0}, s58
        s_lshl_b32 s3, s2, 6
        s_lshl_b32 s4, s6, 2
        s_add_u32 s3, s3, s4
        s_add_u32 s3, s3, {WS_FQ:#x}
        s_waitcnt vmcnt(7)
        s_mov_b64 exec, 1
        buffer_store_dword v{t0}, v{SP}, s[8:11], s3 offen sc1
        s_mov_b64 exec, -1
        """)
        vm.issue("FQS")
    if 'lpost' not in dbg:
        a(f"""
        s_cmp_lt_u32 s6, 4
        s_cbranch_scc1 K2_nb2
        s_cmp_lg_u32 s30, 0
        s_cbranch_scc1 K2_nb2
        s_waitcnt vmcnt(0)
        s_barrier
        """)
        a.label("K2_nb2")
    a(f"""
    ds_write2_b32 v{vFW}, v{SP}, v{SP} offset0:0 offset1:8
    ds_write2_b32 v{vFW}, v{SP}, v{SP} offset0:64 offset1:80
    s_cmp_lg_u32 s30, 0
    s_cbranch_scc1 K2_safe
    s_cmp_{"eq" if 'onep' in dbg else "ge"}_u32 s6, 4
    s_cbranch_scc1 K2_poller
    s_waitcnt lgkmcnt(0)
    s_barrier
    """)
    st(1, False); st(5, 4)
    if 'amp' in dbg: a('s_memrealtime s[88:89]'); a('s_waitcnt lgkmcnt(0)')
    kv_first()
    fq_store()
    a("s_branch K2_go")
    a.label("K2_poller")
    PA, PB = X[0], X[0] + 8
    a(f"""
    v_lshlrev_b32 v{t1}, {FLS}, v0
    s_and_b32 s3, s2, 7
    s_lshl_b32 s3, s3, 14
    s_add_u32 s3, s3, {WS_FL:#x}
    s_add_u32 s4, s3, {64 << FLS}
    s_add_u32 s5, s3, {128 << FLS}
    s_add_u32 s34, s3, {192 << FLS}
    s_mov_b32 s36, 0
    """)
    def fissue(b):
        for k, sr in enumerate(("s3", "s4", "s5", "s34")):
            a(f"buffer_load_dword v{b+k}, v{t1}, s[8:11], {sr} offen sc1")
    def fchk(b):
        for r in range(4): a(f"v_xor_b32 v{b+r}, s58, v{b+r}")
        a(f"""
        v_or3_b32 v{b}, v{b}, v{b+1}, v{b+2}
        v_or_b32 v{b}, v{b}, v{b+3}
        v_cmp_ne_u32 vcc, 0, v{b}
        s_cbranch_vccz K2_sync0
        """)
    if int(OPT.get('fd', 0)): a(f"s_sleep {OPT.get('fd', 0)}")
    if 'fnp' in dbg:
        a.label("K2_fl")
        fissue(PA); a("s_waitcnt vmcnt(0)"); fchk(PA)
        a(f"s_sleep {OPT.get('fsl', 2)}")
    else:
        def kvpf():
            a(f"""
            s_lshr_b32 s35, s2, 3
            s_mul_i32 s35, s35, {2*TS}
            s_add_u32 s35, s35, {WS_KV:#x}
            v_min_u32 v{t0}, 33, v0
            v_lshlrev_b32 v{t0}, 7, v{t0}
            buffer_load_dword v{vPD}, v{t0}, s[8:11], s35 offen sc1
            """)
        if OPT.get('kvpf', '0') == '1': kvpf()
        fissue(PA)
        if OPT.get('kvpf', '0') == '2': kvpf()
        a("s_sleep 3")
        a.label("K2_fl")
        fissue(PB); a("s_waitcnt vmcnt(4)"); fchk(PA)
        fissue(PA); a("s_waitcnt vmcnt(4)"); fchk(PB)
    a(f"""
    s_add_u32 s36, s36, 1
    s_cmp_lt_u32 s36, 0x40000
    s_cbranch_scc1 K2_fl
    """)
    a.label("K2_sync0")
    st(4, 4)
    a(f"""
    s_lshl_b32 s3, s2, 3
    s_or_b32 s3, s3, s6
    s_cmp_lg_u32 s3, 4
    s_cbranch_scc1 K2_sync1
    v_mov_b32 v{t0}, s58
    s_mov_b32 s3, {WS_EP:#x}
    s_mov_b64 exec, 1
    buffer_store_dword v{t0}, v{SP}, s[8:11], s3 offen sc1
    s_mov_b64 exec, -1
    """)
    a.label("K2_sync1")
    vm.q = []; vm.done = -1
    if int(OPT.get('ld', 0)): a(f"s_sleep {OPT['ld']}")
    kv_first()
    fq_store()
    a("s_waitcnt lgkmcnt(0)")
    a("s_barrier")
    st(1, False); st(5, 4)
    a(f"""
    s_cmp_lg_u32 s6, 4
    s_cbranch_scc1 K2_go
    ds_read_b128 v[{Q}:{Q+3}], v{vQA}
    s_waitcnt vmcnt(6)
    """)
    valid("m", [("K", 0), ("K", 1)])
    a("s_waitcnt lgkmcnt(0)")
    mref_mma(Q, X[0]); mref_max(X[0])
    a("s_branch K2_go")
    a.label("K2_safe")
    S = X[0]
    a(f"""
    v_and_b32 v{t0}, 31, v0
    v_lshlrev_b32 v{S1+4}, 2, v{t0}
    v_add_u32 v{S1+4}, {L_MX:#x}, v{S1+4}
    s_lshl_b32 s3, s44, 7
    v_add_u32 v{S1+5}, s3, v{S1+4}
    v_mov_b32 v{t0}, 0xff800000
    ds_write_b32 v{S1+5}, v{t0}
    s_waitcnt vmcnt(0) lgkmcnt(0)
    s_barrier
    v_mov_b32 v{t1}, v{vQA}
    s_mov_b32 s29, 0
    """)
    a.label("K2_safe_loop")
    a(f"""
    ds_read_b128 v[{BF}:{BF+3}], v{t1}
    v_mov_b32 v{t0}, 0xff800000
    s_waitcnt lgkmcnt(0)
    """)
    for t in range(8):
        a(f"v_mfma_f32_32x32x16_bf16 v[{S}:{S+15}], v[{K+4*t}:{K+4*t+3}], v[{BF}:{BF+3}], 0")
        for r in range(0, 16, 2):
            a(f"v_max3_f32 v{t0}, v{t0}, v{S+r}, v{S+r+1}")
    a(f"""
    ds_max_f32 v{S1+4}, v{t0}
    v_add_u32 v{t1}, 1024, v{t1}
    v_add_u32 v{S1+4}, 128, v{S1+4}
    s_add_u32 s29, s29, 1
    s_cmp_lt_u32 s29, 8
    s_cbranch_scc1 K2_safe_loop
    s_waitcnt lgkmcnt(0)
    s_barrier
    ds_read_b32 v{t0}, v{S1+5}
    s_waitcnt lgkmcnt(0)
    """)
    for r in range(4): a(f"v_sub_f32 v{BF+r}, 0, v{t0}")
    a(f"ds_write_b128 v{t4}, v[{BF}:{BF+3}] offset:{L_MREF - L_Q}")
    a.label("K2_go")
    a("s_waitcnt lgkmcnt(0)")
    a("s_barrier")
    st(2, False)
    rd_qcm()
    vm.wait("K0")
    valid("s", [("K", 0)])
    a("s_waitcnt lgkmcnt(0)")
    M1(0, 0)
    a("s_mov_b32 s29, 1")
    P0 = OPT.get('p0', '33322111')
    setprio(int(P0[0]))
    LA = int(OPT.get('la', 0))
    for k in range(LA + 1):
        ldK(3 + k); ldV(2 + k)
    st(3, False)
    if 'leak' in dbg or 'amp' in dbg: a('s_memrealtime s[94:95]'); a('s_waitcnt lgkmcnt(0)')
    def tile(i, hook):
        xb = i & 1; xn = xb ^ 1
        hook(i, 'a')
        E(xb, 0, 2)
        hook(i, 'm3b')
        E(xb, 2, 5)
        hook(i, 'm1')
        M1((i + 1) & 7, xn)
        hook(i, 0)
        if i == 0:
            E(xb, 5, 12)
            hook(i, 1)
            Ozero()
            E(xb, 12, 16)
            M3(0, i)
            hook(i, 2)
        else:
            E(xb, 5, 8)
            hook(i, 'e1')
            E(xb, 8, 10)
            hook(i, 1)
            M3(0, i)
            hook(i, 2)
            E(xb, 10, 13)
            hook(i, 'e2')
            E(xb, 13, 15)
            hook(i, 'e3')
            E(xb, 15, 16)
    def hook0(i, pos):
        if pos == 'a' and i in (0, 2, 4, 6): st(1 + i // 2, 3)
        if pos == 'a' and i > 0 and P0[i] != P0[i - 1]: setprio(int(P0[i]))
        if pos == 'm3b' and i > 0:
            vm.wait(f"V{i-1}1"); M3(1, i - 1)
        if pos == 'm1':
            if i < 7: vm.wait(f"K{i+1}")
            else: a("s_waitcnt lgkmcnt(0)")
            vm.wait(f"V{i}1")
            valid(str(i), ([("K", i + 1)] if i < 7 else []) + [("V", 2 * i), ("V", 2 * i + 1)])
        if pos == 0:
            if i + 4 + LA <= 7: ldK(i + 4 + LA)
            if i + 3 + LA <= 7: ldV(i + 3 + LA)
            if i == 6: wf_load(0, 4)
            if i == 7: wf_load(4, 8)
        QT = int(OPT.get('qt', 1))
        if pos == 'e1' and i == QT:
            a(f"buffer_load_dword v{t0}, v{SP}, s[8:11], s45 offen sc1"); vm.issue("FQ")
        if pos == 'e1' and i == QT + 1:
            vm.wait("FQ")
            a(f"v_cmp_ne_u32 vcc, s58, v{t0}")
            a("s_cbranch_vccnz K2_qspin")
            a.label("K2_qback")
            a(f"buffer_load_dwordx4 v[{BF}:{BF+3}], v{vWL}, s[8:11], s32 offen sc1"); vm.issue("Q")
        if pos == 'e2' and i == int(OPT.get('qw', 4)):
            vm.wait("Q")
            a(f"ds_write_b128 v{t4}, v[{BF}:{BF+3}]")
            mref_mma(BF, WF)
        if pos == 'e1' and i == int(OPT.get('qw', 4)) + 1:
            a("s_cmp_lg_u32 s30, 0")
            a("s_cbranch_scc1 K2_keepm")
            mref_max(WF)
            a.label("K2_keepm")
        if pos == 1:
            if i == 6:
                a("s_waitcnt lgkmcnt(0)"); a("s_barrier"); rd_qcm()
            vm.wait(f"V{i}0")
        if pos == 2 and i == 7:
            vm.wait("V71")
            a(f"""
            v_mov_b32 v{S1+8}, -1
            v_mov_b32 v{S1+9}, -1
            v_lshrrev_b32 v{S1+10}, 1, v{vWL}
            s_add_u32 s3, s7, s6
            s_lshl_b32 s3, s3, 9
            s_add_u32 s3, s3, {WS_H:#x}
            buffer_store_dwordx2 v[{S1+8}:{S1+9}], v{S1+10}, s[8:11], s3 offen sc1
            """)
    for i in range(8): tile(i, hook0)
    st(5, 3)
    a.raw(".p2align 3")
    a.label("K2_round")
    spins = []
    def poll(off):
        if 'xchk' in dbg: return
        a(f"ds_read_b32 v{vFV}, v{vFR} offset:{off}")
    def check(off):
        if 'xchk' in dbg: return
        k = len(spins); spins.append(off)
        a(f"""
        s_waitcnt lgkmcnt(0)
        v_cmp_gt_u32 vcc, s59, v{vFV}
        s_cbranch_vccnz K2_spin{k}
        """)
        a.label(f"K2_back{k}")
    PR = dict(x.split('=') for x in dbg.split(',') if '=' in x).get('pr', 'c')
    def hook(i, pos):
        if pos == 'm3b': M3(1, (i - 1) & 7)
        if pos == 'm1' and i == 7: a("s_waitcnt lgkmcnt(0)")
        if pos == 1 and i == 6: rd_qcm()
        if 'nohook' in dbg: return
        if 'bar' in dbg.split(','):
            if pos == 'a' and i in (0, 6, 7): setprio({6: 2, 7: 1, 0: 0}[i])
            if i == 0 and pos == 1: part_write()
            if i == 1 and pos == 0:
                a("s_waitcnt lgkmcnt(0)"); a("s_barrier"); setprio(2); s1_read()
            if i == 2 and pos == 0:
                a("s_waitcnt lgkmcnt(0)"); s1_calc(); setprio(1)
            if i == 3 and pos == 0: setprio(0)
            if i == 4 and pos == 0:
                a("s_waitcnt vmcnt(0) lgkmcnt(0)"); a("s_barrier"); setprio(3); s2_read()
            seq = [(4, 'e3'), (5, 'e1'), (5, 'e2'), (5, 'e3'), (6, 'e1'), (6, 'e2'), (6, 'e3'), (7, 'e1')]
        else:
            ca = int(OPT.get('ca', 2)); cb = int(OPT.get('cb', 5)); PT = OPT.get('pt', '10220332')
            slots = [(t, p) for t in range(1, 8) for p in (('a', 'e1', 'e2', 'e3') if cb >= 6 else ('e1', 'e2', 'e3'))]
            if i == 0 and pos == 1:
                if 'xpw' not in dbg: part_write()
                a(f"ds_write_b32 v{vFW}, v{vQA}")
            if i == ca and pos == 0: poll(0)
            if i == ca and pos == 2:
                check(0)
                if 'xs1' not in dbg: s1_read()
            if i == ca + 1 and pos == {'0': 0, '1': 'e1', '2': 'e2', '3': 'a'}[OPT.get('s1p', '3')]:
                a("s_waitcnt lgkmcnt(0)")
                if 'xs1' not in dbg: s1_calc()
                a(f"ds_write_b32 v{vFW}, v{vQA} offset:32")
            if i == cb - 1 and pos == 2: poll(32)
            if i == cb and pos == 'm1':
                check(32); s2_read(); a("s_waitcnt vmcnt(0)")
            if i == int(OPT.get('stp', 2)) and pos == 'e1' and 'nopf' not in dbg:
                a("s_bitcmp1_b32 s43, s29"); a("s_cbranch_scc1 K2_stg"); a.label("K2_stgb")
            if len(PT) == 8: PT = "".join(ch * 2 for ch in PT)
            for hpos, k in (('a', 2 * i), (2, 2 * i + 1)):
                if pos == hpos and PT[k] != PT[k - 1]: setprio(int(PT[k]))
            av = [x for x in slots if x > (cb, 'e1')]
            if OPT.get('sp', '0') == '1' and len(av) >= 12: av = [x for x in av if x[1] != 'e3']
            seq = av[:8]
            while len(seq) < 8: seq = sorted(seq + [seq[len(seq) % len(av)]])
        for u in [k for k, x in enumerate(seq) if x == (i, pos)]:
            if u == 0: a("s_waitcnt lgkmcnt(0)")
            if 'xmma' not in dbg: s2_mma(u, u + 1)
            if 'nowf' not in dbg: wf_load(u, u + 1)
            if u == 7 and 'nopf' not in dbg and PFP == 1:
                a("s_cmp_eq_u32 s29, s39"); a("s_cbranch_scc1 K2_side"); a.label("K2_sideb")
    for i in range(8): tile(i, hook)
    if 'rndst' in dbg:
        a(f"""
        s_memtime s[82:83]
        s_memrealtime s[100:101]
        s_waitcnt lgkmcnt(0)
        s_lshl_b32 s84, s2, 3
        s_add_u32 s84, s84, s6
        s_lshl_b32 s84, s84, 3
        s_add_u32 s84, s84, s29
        s_lshl_b32 s84, s84, 3
        s_add_u32 s84, s84, {WS_STAMP + 0x40000:#x}
        s_mov_b64 exec, 1
        v_mov_b32 v{S1+8}, s82
        v_mov_b32 v{S1+9}, s100
        v_mov_b32 v{S1+10}, 0
        buffer_store_dwordx2 v[{S1+8}:{S1+9}], v{S1+10}, s[8:11], s84 offen
        s_mov_b64 exec, -1
        """)
    a(f"""
    s_addk_i32 s59, 1024
    s_add_u32 s29, s29, 1
    s_cmp_lt_u32 s29, 8
    s_cbranch_scc1 K2_round
    """)
    st(4, False); st(0, True)
    if 'amp' in dbg: a('s_memrealtime s[98:99]'); a('s_waitcnt lgkmcnt(0)')
    M3(1, 7)
    XR = CM; WR = CM + 4; HV = X[0]; HN = X[0] + 8; PK = X[1]; ST = X[1] + 8
    a(f"""
    s_add_u32 s3, s7, s6
    s_lshl_b32 s4, s3, 10
    buffer_load_dwordx4 v[{XR}:{XR+3}], v{vWL}, s[16:19], s4 offen
    buffer_load_dwordx4 v[{WR}:{WR+3}], v{vWL}, s[24:27], 0 offen
    v_and_b32 v{t0}, 7, v0
    v_mul_u32_u24 v{t0}, 1040, v{t0}
    v_lshrrev_b32 v{t1}, 4, v0
    v_lshl_add_u32 v{t0}, v{t1}, 3, v{t0}
    s_lshl_b32 s5, s6, 7
    s_add_u32 s5, s5, {L_HB:#x}
    v_add_u32 v{t0}, s5, v{t0}
    s_mul_i32 s5, s6, 1040
    s_add_u32 s5, s5, {L_HB:#x}
    v_add_u32 v{t1}, s5, v{vWL}
    s_lshl_b32 s35, s6, 2
    s_add_u32 s35, s35, {L_KEY:#x}
    v_mov_b32 v{t4}, s35
    v_and_b32 v{t3}, 7, v0
    v_lshlrev_b32 v{t3}, 2, v{t3}
    v_add_u32 v{t3}, {L_KEY:#x}, v{t3}
    """)
    part_write()
    a("s_waitcnt lgkmcnt(0)"); a("s_barrier"); st(1, True); s1_read()
    a("s_waitcnt lgkmcnt(0)"); s1_calc()
    a(f"""
    v_mov_b32 v{t2}, {f2u(2.0**124):#x}
    v_cmp_nlt_f32 vcc, v{vLM}, v{t2}
    s_cmp_lg_u64 vcc, 0
    s_cselect_b32 s5, 1, 0
    v_mov_b32 v{t2}, s5
    ds_write_b32 v{t4}, v{t2} offset:32
    """)
    a("s_waitcnt vmcnt(2) lgkmcnt(0)"); a("s_barrier"); st(2, True); s2_read()
    a(f"ds_read_b32 v{t2}, v{t3} offset:32")
    a("s_waitcnt lgkmcnt(1)"); s2_mma(0, 8)
    a(f"""
    s_waitcnt lgkmcnt(0)
    v_cmp_ne_u32 vcc, 0, v{t2}
    s_cmp_eq_u64 vcc, 0
    s_cbranch_scc1 K2_good
    s_cmp_lg_u32 s30, 0
    s_cbranch_scc1 K2_good
    s_mov_b32 s30, 1
    s_waitcnt vmcnt(0)
    s_setprio 0
    s_branch K2_restart
    """)
    a.label("K2_good")
    a("s_mov_b32 exec_lo, 0x00ff00ff"); a("s_mov_b32 exec_hi, 0x00ff00ff")
    for t in range(4):
        a(f"v_cvt_pk_bf16_f32 v{S1+2*t}, v{OA+4*t}, v{OA+4*t+1}")
        a(f"v_cvt_pk_bf16_f32 v{S1+2*t+1}, v{OA+4*t+2}, v{OA+4*t+3}")
        a(f"ds_write_b64 v{t0}, v[{S1+2*t}:{S1+2*t+1}] offset:{32*t}")
    a("s_mov_b64 exec, -1")
    a("s_waitcnt vmcnt(0)")
    for r in range(4):
        a(f"v_lshlrev_b32 v{HV+2*r}, 16, v{XR+r}")
        a(f"v_and_b32 v{HV+2*r+1}, 0xffff0000, v{XR+r}")
        a(f"v_lshlrev_b32 v{WF+2*r}, 16, v{WR+r}")
        a(f"v_and_b32 v{WF+2*r+1}, 0xffff0000, v{WR+r}")
    a(f"""
    s_waitcnt lgkmcnt(0)
    s_barrier
    """)
    st(3, True)
    a(f"""
    ds_read_b128 v[{BF}:{BF+3}], v{t1}
    s_waitcnt lgkmcnt(0)
    """)
    for r in range(4):
        a(f"v_lshlrev_b32 v{HN+2*r}, 16, v{BF+r}")
        a(f"v_and_b32 v{HN+2*r+1}, 0xffff0000, v{BF+r}")
    P2 = lambda b, r: f"v[{b+r}:{b+r+1}]"
    for r in range(0, 8, 2): a(f"v_pk_add_f32 {P2(HV,r)}, {P2(HV,r)}, {P2(HN,r)}")
    for r in range(8): a(f"v_cvt_pk_bf16_f32 v{HV+r}, 0, v{HV+r}")
    SA, SB = S1, S1 + 2
    a(f"v_pk_add_f32 {P2(SA,0)}, {P2(HV,0)}, {P2(HV,2)}")
    a(f"v_pk_mul_f32 {P2(SB,0)}, {P2(HV,0)}, {P2(HV,0)}")
    a(f"v_pk_add_f32 {P2(SA,4)}, {P2(HV,4)}, {P2(HV,6)}")
    a(f"v_pk_fma_f32 {P2(SB,0)}, {P2(HV,2)}, {P2(HV,2)}, {P2(SB,0)}")
    a(f"v_pk_add_f32 {P2(SA,0)}, {P2(SA,0)}, {P2(SA,4)}")
    a(f"v_pk_fma_f32 {P2(SB,0)}, {P2(HV,4)}, {P2(HV,4)}, {P2(SB,0)}")
    a(f"v_add_f32 v{t0}, v{SA}, v{SA+1}")
    a(f"v_pk_fma_f32 {P2(SB,0)}, {P2(HV,6)}, {P2(HV,6)}, {P2(SB,0)}")
    a(f"v_add_f32 v{t2}, v{SB}, v{SB+1}")
    wave_sum(a, [t0, t2], [ST, ST + 1])
    ln_scalars(a, t0, t2, ST, ST + 2, ST + 1, ST + 3)
    st(4, True)
    for r in range(0, 8, 2): a(f"v_pk_add_f32 {P2(HN,r)}, {P2(HV,r)}, {P2(ST,0)} op_sel_hi:[1,0] neg_lo:[0,1] neg_hi:[0,1]")
    for r in range(8): a(f"v_cvt_pk_bf16_f32 v{HN+r}, 0, v{HN+r}")
    for r in range(0, 8, 2): a(f"v_pk_mul_f32 {P2(HN,r)}, {P2(HN,r)}, {P2(ST,2)} op_sel_hi:[1,0]")
    for r in range(8): a(f"v_cvt_pk_bf16_f32 v{HN+r}, 0, v{HN+r}")
    a(f"v_pk_mul_f32 {P2(SA,0)}, {P2(HN,0)}, {P2(WF,0)}")
    for r in range(2, 8, 2): a(f"v_pk_fma_f32 {P2(SA,0)}, {P2(HN,r)}, {P2(WF,r)}, {P2(SA,0)}")
    a(f"v_add_f32 v{t2}, v{SA}, v{SA+1}")
    fill = [f"v_pk_add_f32 {P2(WF+8,r)}, {P2(HV,r)}, {P2(HN,r)}" for r in range(0, 8, 2)]
    fill += [f"v_cvt_pk_bf16_f32 v{PK+4+r}, v{HV+2*r}, v{HV+2*r+1}" for r in range(4)]
    fill += [f"v_cvt_pk_bf16_f32 v{ST+4+r}, v{HN+2*r}, v{HN+2*r+1}" for r in range(4)]
    for mod in ("quad_perm:[1,0,3,2]", "quad_perm:[2,3,0,1]", "row_half_mirror", "row_mirror"):
        a(fill.pop(0)); a(fill.pop(0))
        a(f"v_add_f32_dpp v{t2}, v{t2}, v{t2} {mod} row_mask:0xf bank_mask:0xf")
    for w in (16, 32):
        a(f"v_mov_b32 v{t0}, v{t2}")
        a(fill.pop(0)); a(fill.pop(0))
        a(f"v_permlane{w}_swap_b32 v{t0}, v{t2}")
        a(f"v_add_f32 v{t2}, v{t2}, v{t0}")
    if 'leak' in dbg:
        a(f"""
        s_cmp_lg_u32 s3, 0
        s_cbranch_scc1 K2_leak
        s_memrealtime s[92:93]
        v_mov_b32 v{S1+4}, 0
        s_mov_b32 s5, {WS_SEL:#x}
        buffer_load_dwordx4 v[{S1}:{S1+3}], v{S1+4}, s[8:11], s5 offen
        s_waitcnt vmcnt(0) lgkmcnt(0)
        s_mov_b64 exec, 1
        v_add_f32 v{WF+8}, {f2u(64.0):#x}, v{WF+8}
        v_sub_u32 v{WF+9}, v{S1+2}, v{S1}
        v_sub_u32 v{WF+10}, v{S1+1}, v{S1}
        v_sub_u32 v{WF+11}, s90, v{S1}
        v_sub_u32 v{WF+12}, s94, v{S1}
        v_sub_u32 v{WF+13}, s92, v{S1}
        """)
        for r in range(9, 14):
            a(f"v_cvt_f32_u32 v{WF+r}, v{WF+r}")
            a(f"v_mul_f32 v{WF+r}, {f2u(0.005):#x}, v{WF+r}")
            a(f"v_min_f32 v{WF+r}, {f2u(20.0):#x}, v{WF+r}")
        a("s_mov_b64 exec, -1")
        a.label("K2_leak")
    a(f"""
    v_cvt_pk_bf16_f32 v{t2}, 0, v{t2}
    v_ashrrev_i32 v{t0}, 31, v{t2}
    v_or_b32 v{t0}, 0x80000000, v{t0}
    v_xor_b32 v{t2}, v{t2}, v{t0}
    v_and_b32 v{t2}, 0xffff0000, v{t2}
    s_sub_u32 s5, 0xffff, s3
    v_or_b32 v{t2}, s5, v{t2}      ; key
    ds_write_b32 v{t4}, v{t2}
    """)
    for r in range(4): a(f"v_cvt_pk_bf16_f32 v{PK+r}, v{WF+8+2*r}, v{WF+8+2*r+1}")
    a(f"""
    buffer_store_dwordx4 v[{PK}:{PK+3}], v{vWL}, s[20:23], s4 offen sc1
    """)
    for r in range(4):
        a(f"v_min_u32 v{PK+4+r}, -2, v{PK+4+r}")
        a(f"v_min_u32 v{ST+4+r}, -2, v{ST+4+r}")
    a(f"""
    s_waitcnt lgkmcnt(0)
    s_barrier
    ds_read_b32 v{t1}, v{t3}
    s_waitcnt lgkmcnt(0)
    v_cmp_gt_u32 vcc, v{t1}, v{t2}
    v_cmp_eq_u32 s[36:37], v{t1}, v{t2}
    s_and_b32 s38, vcc_lo, 0xff
    s_bcnt1_i32_b32 s38, s38       ; rank
    """)
    st(5, False); st(5, True); st(0, 2); st(1, 2); st(2, 2); st(3, 2); st(4, 2); st(5, 2)
    a(f"""
    s_cmp_gt_u32 s38, 1
    s_cbranch_scc1 K2_pub
    s_lshl_b32 s34, s7, 9
    s_lshl_b32 s5, s38, 11
    s_add_u32 s34, s34, s5
    s_add_u32 s34, s34, {WS_H:#x}
    buffer_store_dwordx4 v[{ST+4}:{ST+7}], v{vWL}, s[8:11], s34 offen sc1
    s_cmp_lg_u32 s38, 0
    s_cbranch_scc1 K2_pub0
    v_cndmask_b32 v{ST+1}, v{t1}, 0, s[36:37]
    v_mov_b32 v{ST}, v{t2}
    s_lshl_b32 s5, s2, {G.KS_LOG}
    s_add_u32 s5, s5, {WS_KEY:#x}
    v_lshlrev_b32 v{t0}, 14, v0
    """)
    for mod in ("quad_perm:[1,0,3,2]", "quad_perm:[2,3,0,1]", "row_half_mirror"):
        a(f"v_max_u32_dpp v{ST+1}, v{ST+1}, v{ST+1} {mod} row_mask:0xf bank_mask:0xf")
    a(f"""
    v_xor_b32 v{ST+1}, 0x800, v{ST+1}
    s_mov_b64 exec, {0xff if KREP else 1}
    buffer_store_dwordx2 v[{ST}:{ST+1}], v{t0}, s[8:11], s5 offen sc1
    s_mov_b64 exec, -1
    """)
    a.label("K2_pub0")
    a(f"""
    s_waitcnt vmcnt(0)
    buffer_store_dwordx4 v[{PK+4}:{PK+7}], v{vWL}, s[8:11], s34 offen offset:1024 sc1
    """)
    a.label("K2_pub")
    if 'amp' in dbg: a('s_memrealtime s[96:97]'); a('s_waitcnt lgkmcnt(0)')
    st(1, 2)
    def fin():
        if G.STAMP: a("s_waitcnt vmcnt(0)")
        stamp(a, 6)
        if G.STAMP: a("s_mov_b32 s91, s30")
        stamp_out(a, 1, 8, "s6", WF)
        a("s_endpgm")
    a(f"""
    s_cmp_ge_u32 s2, 144
    s_cbranch_scc1 K2_fin
    """)
    LEAD = 's6, 0' if 'lead0' in dbg else 's38, 2'
    AFR = V
    KY = K; Y = K + 8; BX = V + 32; AC = K + 16
    a(f"""
    s_setprio 0
    v_bfe_u32 v{t0}, v0, 2, 2
    v_lshrrev_b32 v{t4}, 4, v0           ; g
    v_lshl_add_u32 v{t0}, v{t4}, 3, v{t0}
    v_lshlrev_b32 v{t0}, 5, v{t0}
    v_and_b32 v{t1}, 3, v0
    v_lshl_add_u32 v{t0}, v{t1}, 3, v{t0}
    v_add_u32 v{t0}, s74, v{t0}
    """)
    for sx in range(7):
        for half in range(2):
            d = AFR + 4 * sx + 2 * half
            a(f"ds_read_b64_tr_b16 v[{d}:{d+1}], v{t0} offset:{sx*1024 + half*128}")
    a(f"""
    v_and_b32 v{t3}, 1, v0
    v_lshlrev_b32 v{vPW}, 6, v{t3}
    v_lshl_add_u32 v{vPW}, v{t4}, 4, v{vPW}
    s_lshl_b32 s5, s6, 7
    s_add_u32 s5, s5, {L_RED:#x}
    v_add_u32 v{vPW}, s5, v{vPW}
    v_and_b32 v{vPR}, 31, v0
    v_lshlrev_b32 v{vPR}, 2, v{vPR}      ; (lane&31)*4
    v_lshrrev_b32 v{vOR}, 5, v0
    v_lshl_add_u32 v{vOR}, v{vOR}, 14, v{vPR}
    s_cmp_lg_u32 {LEAD}
    s_cbranch_scc1 K2_nokey
    v_lshlrev_b32 v{t1}, {G.KS_LOG}, v0
    s_and_b32 s5, s2, {7 if KREP else 0}
    s_lshl_b32 s5, s5, 14
    s_add_u32 s5, s5, {WS_KEY:#x}
    s_add_u32 s79, s5, {64 << G.KS_LOG}
    s_add_u32 s80, s5, {128 << G.KS_LOG}
    s_add_u32 s81, s5, {192 << G.KS_LOG}
    s_mov_b32 s36, 0
    """)
    KZ = V + 60 - 8 * 0
    def poll_loop(name, issue, nld):
        K2R = X[0]
        def chk(b):
            a(f"""
            v_min3_u32 v{Y}, v{b}, v{b+1}, v{b+2}
            v_min3_u32 v{Y+1}, v{b+3}, v{b+4}, v{b+5}
            v_min3_u32 v{Y}, v{Y}, v{b+6}, v{b+7}
            v_min_u32 v{Y}, v{Y}, v{Y+1}
            v_cmp_eq_u32 vcc, 0, v{Y}
            """)
        sl = OPT.get('psl', 3)
        issue(KY)
        a(f"s_sleep {sl}")
        a.label(f"{name}_l")
        issue(K2R)
        a(f"s_waitcnt vmcnt({nld})")
        chk(KY)
        a(f"s_cbranch_vccz {name}_ok")
        issue(KY)
        a(f"s_waitcnt vmcnt({nld})")
        chk(K2R)
        a(f"""
        s_cbranch_vccz {name}_ok2
        s_add_u32 s36, s36, 1
        s_cmp_lt_u32 s36, 0x40000
        s_cbranch_scc1 {name}_l
        """)
        a.label(f"{name}_ok2")
        for r in range(0, 8, 2): a(f"v_pk_mov_b32 v[{KY+r}:{KY+r+1}], v[{K2R+r}:{K2R+r+1}], v[{K2R+r}:{K2R+r+1}] op_sel:[0,1]")
        a.label(f"{name}_ok")
    def kissue(b):
        for k, sr in enumerate(("s5", "s79", "s80", "s81")):
            a(f"buffer_load_dwordx2 v[{b+2*k}:{b+2*k+1}], v{t1}, s[8:11], {sr} offen sc1")
    if int(OPT.get('kd', 12)): a(f"s_sleep {OPT.get('kd', 12)}")
    poll_loop("K2_kp", kissue, 4)
    a.label("K2_kok")
    st(2, 2)
    if FS: a("s_mov_b32 s30, s36")
    B1, B2 = Y + 4, Y + 5
    a(f"""
    v_max_u32 v{B1}, v{KY}, v{KY+2}
    v_min_u32 v{B2}, v{KY}, v{KY+2}
    v_max3_u32 v{B2}, v{B2}, v{KY+1}, v{KY+3}
    v_max_u32 v{Y}, v{KY+4}, v{KY+6}
    v_min_u32 v{Y+1}, v{KY+4}, v{KY+6}
    v_max3_u32 v{Y+1}, v{Y+1}, v{KY+5}, v{KY+7}
    v_min_u32 v{Y+2}, v{B1}, v{Y}
    v_max_u32 v{B1}, v{B1}, v{Y}
    v_max3_u32 v{B2}, v{B2}, v{Y+1}, v{Y+2}
    v_mov_b32 v{Y}, v{B1}
    """)
    wave_max_u32(a, Y, Y + 1)
    a(f"""
    v_cmp_eq_u32 vcc, v{B1}, v{Y}
    v_cndmask_b32 v{B1}, v{B1}, v{B2}, vcc
    """)
    wave_max_u32(a, B1, Y + 1)
    a(f"""
    v_readfirstlane_b32 s40, v{Y}
    v_readfirstlane_b32 s41, v{B1}
    s_andn2_b32 s42, 0x7ff, s40
    s_andn2_b32 s43, 0x7ff, s41
    s_lshr_b32 s50, s42, 3
    s_lshr_b32 s51, s43, 3
    s_lshl_b32 s50, s50, 12
    s_lshl_b32 s51, s51, 12
    s_andn2_b32 s52, 0x800, s40
    s_andn2_b32 s53, 0x800, s41
    s_add_u32 s50, s50, s52
    s_add_u32 s51, s51, s53
    s_lshl_b32 s42, s42, 10
    s_lshl_b32 s43, s43, 10
    """)
    a.label("K2_nokey")
    a(f"""
    s_cmp_ge_u32 s2, 112
    s_cbranch_scc1 K2_down
    s_cmp_lg_u32 {LEAD}
    s_cbranch_scc1 K2_up1
    s_add_u32 s50, s50, {WS_H:#x}
    s_add_u32 s51, s51, {WS_H:#x}
    s_mov_b32 s36, 0
    """)
    a.label("K2_rows")
    a(f"""
    buffer_load_dwordx4 v[{KY}:{KY+3}], v{vWL}, s[8:11], s50 offen sc1
    buffer_load_dwordx4 v[{KY+4}:{KY+7}], v{vWL}, s[8:11], s51 offen sc1
    s_add_u32 s36, s36, 1
    s_waitcnt vmcnt(1)
    ds_write_b128 v{vWL}, v[{KY}:{KY+3}] offset:{L_XS}
    v_max3_u32 v{Y}, v{KY}, v{KY+1}, v{KY+2}
    s_waitcnt vmcnt(0)
    ds_write_b128 v{vWL}, v[{KY+4}:{KY+7}] offset:{L_XS + 1040}
    v_max3_u32 v{Y+1}, v{KY+3}, v{KY+4}, v{KY+5}
    v_max3_u32 v{Y}, v{Y}, v{KY+6}, v{KY+7}
    v_max_u32 v{Y}, v{Y}, v{Y+1}
    v_cmp_eq_u32 vcc, -1, v{Y}
    s_cbranch_vccz K2_up1
    s_cmp_lt_u32 s36, 0x40000
    s_cbranch_scc1 K2_rows
    """)
    a.label("K2_up1")
    st(3, 2)
    a(f"""
    v_mul_u32_u24 v{t0}, 1040, v{t3}
    v_lshl_add_u32 v{t0}, v{t4}, 4, v{t0}
    s_lshr_b32 s5, s6, 1
    s_lshl_b32 s5, s5, 8
    v_add_u32 v{t0}, s5, v{t0}
    s_waitcnt lgkmcnt(0)
    s_barrier
    """)
    for sx in range(4):
        a(f"ds_read_b128 v[{BX+4*sx}:{BX+4*sx+3}], v{t0} offset:{L_XS + 64*sx}")
    for sx in range(4):
        a(f"s_waitcnt lgkmcnt({3-sx})")
        c = "0" if sx == 0 else f"v[{AC}:{AC+3}]"
        a(f"v_mfma_f32_16x16x32_bf16 v[{AC}:{AC+3}], v[{AFR+4*sx}:{AFR+4*sx+3}], v[{BX+4*sx}:{BX+4*sx+3}], {c}")
    a(f"""
    ds_write_b128 v{vPW}, v[{AC}:{AC+3}]
    s_waitcnt lgkmcnt(0)
    s_barrier
    s_cmp_lg_u32 {LEAD}
    s_cbranch_scc1 K2_fin
    """)
    def red_read():
        a(f"v_add_u32 v{t0}, {L_RED:#x}, v{vPR}")
        a("s_waitcnt vmcnt(0)")
        for k in range(4):
            a(f"ds_read2_b32 v[{KY+2*k}:{KY+2*k+1}], v{t0} offset0:{64*k} offset1:{64*k+32}")
        a("s_waitcnt lgkmcnt(0)")
        a(f"v_pk_add_f32 v[{KY}:{KY+1}], v[{KY}:{KY+1}], v[{KY+2}:{KY+3}]")
        a(f"v_pk_add_f32 v[{KY+4}:{KY+5}], v[{KY+4}:{KY+5}], v[{KY+6}:{KY+7}]")
        a(f"v_pk_add_f32 v[{KY}:{KY+1}], v[{KY}:{KY+1}], v[{KY+4}:{KY+5}]")
    st(4, 2)
    red_read()
    a(f"""
    v_cvt_pk_bf16_f32 v{KY}, 0, v{KY}
    v_cvt_pk_bf16_f32 v{KY+1}, 0, v{KY+1}
    """)
    sigmoid(a, KY + 2, KY, KY + 3)
    a(f"""
    v_mul_f32 v{KY}, v{KY}, v{KY+2}
    v_cvt_pk_bf16_f32 v{KY}, 0, v{KY}
    v_mul_f32 v{KY}, v{KY}, v{KY+1}
    v_cvt_pk_bf16_f32 v{KY}, 0, v{KY}
    v_or_b32 v{KY}, 1, v{KY}
    s_lshl_b32 s5, s76, 7
    s_add_u32 s5, s5, {WS_GU:#x}
    """)
    if GREP:
        for k in range(4):
            a(f"buffer_store_dword v{KY}, v{vOR}, s[8:11], s5 offen sc1")
            if k < 3: a("s_add_u32 s5, s5, 0x8000")
    else:
        a(f"""
        s_mov_b32 exec_hi, 0
        buffer_store_dword v{KY}, v{vPR}, s[8:11], s5 offen sc1
        s_mov_b64 exec, -1
        """)
    a(f"""
    s_branch K2_fin
    """)
    a.label("K2_down")
    HH, NN, GT, OO, RS = Y + 6, Y + 7, AC + 4, AC + 5, AC + 6
    a(f"""
    s_cmp_lg_u32 {LEAD}
    s_cbranch_scc1 K2_dn1
    v_bfe_u32 v{t0}, v0, 4, 1
    v_cmp_eq_u32 vcc, 0, v{t0}
    v_mov_b32 v{t0}, s43
    v_mov_b32 v{t1}, s42
    v_cndmask_b32 v{OO}, v{t0}, v{t1}, vcc
    v_and_b32 v{t0}, 15, v0
    v_lshl_add_u32 v{OO}, v{t0}, 1, v{OO}
    s_lshl_b32 s44, s77, 5
    v_mov_b32 v{t1}, s51
    v_mov_b32 v{RS}, s50
    v_cndmask_b32 v{RS}, v{t1}, v{RS}, vcc
    v_and_b32 v{t0}, 14, v0
    v_lshl_add_u32 v{RS}, v{t0}, 1, v{RS}
    s_add_u32 s52, s44, {WS_H:#x}
    v_mov_b32 v{t0}, s41
    v_mov_b32 v{t1}, s40
    v_cndmask_b32 v{GT}, v{t0}, v{t1}, vcc
    v_and_b32 v{GT}, 0xffff0000, v{GT}
    v_ashrrev_i32 v{t0}, 31, v{GT}
    v_not_b32 v{t0}, v{t0}
    v_or_b32 v{t0}, 0x80000000, v{t0}
    v_xor_b32 v{GT}, v{GT}, v{t0}
    v_and_b32 v{GT}, 0xffff0000, v{GT}
    """)
    sigmoid(a, GT, GT, t0)
    a(f"v_cvt_pk_bf16_f32 v{GT}, 0, v{GT}")
    a.label("K2_dn1")
    a(f"""
    s_mul_i32 s5, s6, 1792
    s_and_b32 s37, s2, {7 if GREP else 0}
    s_lshl_b32 s37, s37, 14
    s_add_u32 s5, s5, s37
    s_add_u32 s5, s5, {WS_GU:#x}
    v_min_u32 v{t1}, 47, v0
    v_lshlrev_b32 v{t1}, 4, v{t1}
    s_lshl_b32 s37, s6, 10
    s_add_u32 s37, s37, {L_GB:#x}
    v_lshrrev_b32 v{t0}, 3, v0
    v_lshlrev_b32 v{vPL}, 5, v{t0}
    v_and_b32 v{t0}, 3, v0
    v_lshl_add_u32 v{vPL}, v{t0}, 3, v{vPL}
    v_bfe_u32 v{t0}, v0, 2, 1
    v_mul_u32_u24 v{t0}, 464, v{t0}
    v_add3_u32 v{vPL}, v{vPL}, v{t0}, s37
    v_mul_u32_u24 v{vOW}, 464, v{t3}
    v_lshl_add_u32 v{vOW}, v{t4}, 4, v{vOW}
    v_add_u32 v{vOW}, s37, v{vOW}
    s_mov_b32 s45, 0x07060302
    s_mov_b32 s36, 0
    """)
    def gissue(b):
        a(f"buffer_load_dwordx4 v[{b}:{b+3}], v{vWL}, s[8:11], s5 offen sc1")
        a(f"buffer_load_dwordx4 v[{b+4}:{b+7}], v{t1}, s[8:11], s5 offen offset:1024 sc1")
    if 'nogb' not in dbg:
        a(f"""
        s_barrier
        s_cmp_lg_u32 {LEAD}
        s_cbranch_scc1 K2_hw
        """)
        a.label("K2_hl")
        a(f"""
        buffer_load_dword v{NN}, v{RS}, s[8:11], s52 offen sc1
        buffer_load_dword v{HH}, v{RS}, s[8:11], s52 offen offset:1024 sc1
        s_add_u32 s36, s36, 1
        s_waitcnt vmcnt(0)
        v_max_u32 v{t0}, v{HH}, v{NN}
        v_cmp_eq_u32 vcc, -1, v{t0}
        s_cbranch_vccz K2_hok
        s_cmp_lt_u32 s36, 0x40000
        s_cbranch_scc1 K2_hl
        """)
        a.label("K2_hok")
        a(f"""
        v_and_b32 v{t0}, 1, v0
        v_lshlrev_b32 v{t0}, 4, v{t0}
        v_lshrrev_b32 v{HH}, v{t0}, v{HH}
        v_lshrrev_b32 v{NN}, v{t0}, v{NN}
        s_mov_b32 s36, 0
        s_sleep {max(int(OPT.get('gd', 28)) - 14, 0)}
        s_branch K2_hx
        """)
        a.label("K2_hw")
        a(f"s_sleep {OPT.get('gd', 28)}")
        a.label("K2_hx")
    poll_loop("K2_gp", gissue, 2)
    a.label("K2_gok")
    st(4, 2)
    a(f"""
    v_perm_b32 v{Y}, v{KY+1}, v{KY}, s45
    v_perm_b32 v{Y+1}, v{KY+3}, v{KY+2}, s45
    v_perm_b32 v{Y+2}, v{KY+5}, v{KY+4}, s45
    v_perm_b32 v{Y+3}, v{KY+7}, v{KY+6}, s45
    ds_write_b64 v{vPL}, v[{Y}:{Y+1}]
    s_mov_b32 exec_hi, 0xffff
    ds_write_b64 v{vPL}, v[{Y+2}:{Y+3}] offset:256
    s_mov_b64 exec, -1
    """)
    for sx in range(7):
        a(f"ds_read_b128 v[{BX+4*sx}:{BX+4*sx+3}], v{vOW} offset:{64*sx}")
    for sx in range(7):
        a(f"s_waitcnt lgkmcnt({6-sx})")
        c = "0" if sx == 0 else f"v[{AC}:{AC+3}]"
        a(f"v_mfma_f32_16x16x32_bf16 v[{AC}:{AC+3}], v[{AFR+4*sx}:{AFR+4*sx+3}], v[{BX+4*sx}:{BX+4*sx+3}], {c}")
    a(f"""
    ds_write_b128 v{vPW}, v[{AC}:{AC+3}]
    s_waitcnt lgkmcnt(0)
    s_barrier
    s_cmp_lg_u32 {LEAD}
    s_cbranch_scc1 K2_fin
    """)
    red_read()
    a(f"""
    v_add_f32 v{KY}, v{KY}, v{KY+1}
    v_lshlrev_b32 v{HH}, 16, v{HH}
    v_lshlrev_b32 v{NN}, 16, v{NN}
    v_cvt_pk_bf16_f32 v{KY}, 0, v{KY}
    v_mul_f32 v{KY}, v{KY}, v{GT}
    v_cvt_pk_bf16_f32 v{KY}, 0, v{KY}
    v_add_f32 v{KY}, v{KY}, v{NN}
    v_cvt_pk_bf16_f32 v{KY}, 0, v{KY}
    v_add_f32 v{KY}, v{KY}, v{HH}
    v_cvt_pk_bf16_f32 v{KY}, v{KY}, v{KY}
    s_mov_b32 exec_hi, 0
    buffer_store_short v{KY}, v{OO}, s[20:23], s44 offen sc1
    s_mov_b64 exec, -1
    """)
    a.label("K2_fin")
    if 'lite' in dbg:
        a(f"""
        s_waitcnt vmcnt(0)
        s_memrealtime s[92:93]
        s_lshl_b32 s3, s2, 3
        s_add_u32 s3, s3, s6
        s_lshl_b32 s3, s3, 3
        s_add_u32 s3, s3, {WS_STAMP:#x}
        s_waitcnt lgkmcnt(0)
        v_mov_b32 v{S1}, s90
        v_mov_b32 v{S1+1}, s92
        s_mov_b64 exec, 1
        buffer_store_dwordx2 v[{S1}:{S1+1}], v{SP}, s[8:11], s3 offen
        """)
    if 'amp' in dbg:
        q = int(OPT['amp'])
        expr = {0: None, 1: ("s83", "s90"), 2: ("s84", "s90"), 3: ("s85", "s90"), 4: ("s86", "s90"), 5: ("s88", "s90"), 6: ("s94", "s90"), 7: ("s98", "s94"), 8: ("s96", "s98")}[q]
        a(f"""
        s_or_b32 s5, s2, s6
        s_cmp_lg_u32 s5, 0
        s_cbranch_scc1 K2_amp_end
        """)
        if expr: a(f"s_sub_u32 s85, {expr[0]}, {expr[1]}")
        else: a("s_mov_b32 s85, 0")
        a(f"""
        s_min_u32 s85, s85, 5000
        s_lshl_b32 s85, s85, 1
        s_add_u32 s85, s85, 600
        s_add_u32 s85, s85, s96
        """)
        a.label("K2_amp")
        a(f"""
        s_memrealtime s[92:93]
        s_waitcnt lgkmcnt(0)
        s_sub_u32 s86, s92, s85
        s_cmp_lt_i32 s86, 0
        s_cbranch_scc1 K2_amp
        """)
        a.label("K2_amp_end")
    if G.STAMP: a("s_waitcnt vmcnt(0)")
    stamp(a, 6)
    if G.STAMP: a("s_mov_b32 s91, s30")
    stamp_out(a, 1, 8, "s6", WF)
    dstamp(a, 1, True, 240)
    a.label("K2_end")
    a("s_endpgm")
    if 'nopf' not in dbg:
        a.label("K2_side")
        a(f"buffer_load_dword v{vPD}, v{vPA}, s[12:15], s38 offen")
        a("s_branch K2_sideb")
        a.label("K2_stg")
        for e in range(2):
            a(f"""
            s_mov_b32 m0, s78
            s_add_u32 s78, s78, 1024
            buffer_load_dwordx4 v{vFS}, s[68:71], s72 offen lds
            s_add_u32 s72, s72, s73
            """)
            if e == 0:
                a("s_bitcmp1_b32 s42, s29"); a("s_cbranch_scc0 K2_stgb")
        a("s_branch K2_stgb")
    for name, fr in retries:
        a.label(f"K2_rt{name}")
        a("s_mov_b32 s36, 0")
        a.label(f"K2_rl{name}")
        for kind, t in fr:
            if kind == "K": a(f"buffer_load_dwordx4 v[{K+4*t}:{K+4*t+3}], v{vWL}, s[8:11], s{50+t} offen sc1")
            else: a(f"buffer_load_dwordx4 v[{V+4*t}:{V+4*t+3}], v{vVL}, s[8:11], s{50+t//2} offen offset:{1024 + 544*(t&1)} sc1")
        a("s_add_u32 s36, s36, 1")
        a("s_waitcnt vmcnt(0)")
        vtest(fr)
        a(f"""
        s_cbranch_vccz K2_rb{name}
        s_cmp_lt_u32 s36, 0x40000
        s_cbranch_scc1 K2_rl{name}
        s_branch K2_rb{name}
        """)
    a.label("K2_qspin")
    a(f"""
    s_mov_b32 s36, 0
    """)
    a.label("K2_qspin1")
    a(f"""
    s_sleep 2
    buffer_load_dword v{t0}, v{SP}, s[8:11], s45 offen sc1
    s_add_u32 s36, s36, 1
    s_waitcnt vmcnt(0)
    v_cmp_ne_u32 vcc, s58, v{t0}
    s_cbranch_vccz K2_qback
    s_cmp_lt_u32 s36, 0x40000
    s_cbranch_scc1 K2_qspin1
    s_branch K2_qback
    """)
    for k, off in enumerate(spins):
        a.label(f"K2_spin{k}")
        a(f"""
        s_sleep 1
        ds_read_b32 v{vFV}, v{vFR} offset:{off}
        s_waitcnt lgkmcnt(0)
        v_cmp_gt_u32 vcc, s59, v{vFV}
        s_cbranch_vccnz K2_spin{k}
        s_branch K2_back{k}
        """)
```

```python
from gen import *
import gen as G

L_PART = 0x0; L_Q = 0x6000; L_MREF = 0x8400; L_OB = 0x5800; L_KEY = 0xAC00; L_FLG = 0xAD00; L_ZC = 0xAE00; L_MX = 0xB000; L_HB = 0xB400
L_FW = 0xE000; L_TOTAL = 0xE000 + 8 * 7168
L_XS = L_PART; L_RED = L_PART + 0x1000; L_GB = L_PART + 0x2000
C_EXACT = 0.25 * 1.4426950408889634
OFFS = 96.0

def wave_sum(a, vs, ts):
    if isinstance(vs, int): vs, ts = [vs], [ts]
    for mod in ("quad_perm:[1,0,3,2]", "quad_perm:[2,3,0,1]", "row_half_mirror", "row_mirror"):
        for v in vs:
            a(f"v_add_f32_dpp v{v}, v{v}, v{v} {mod} row_mask:0xf bank_mask:0xf")
    for w in (16, 32):
        for v, t in zip(vs, ts): a(f"v_mov_b32 v{t}, v{v}")
        for v, t in zip(vs, ts): a(f"v_permlane{w}_swap_b32 v{t}, v{v}")
        for v, t in zip(vs, ts): a(f"v_add_f32 v{v}, v{v}, v{t}")

class VM:
    def __init__(self, a): self.a = a; self.q = []; self.done = -1
    def issue(self, tag): self.q.append(tag)
    def wait(self, tag):
        i = max(k for k, t in enumerate(self.q) if t == tag)
        if i <= self.done: return
        self.done = i
        self.a(f"s_waitcnt vmcnt({len(self.q) - 1 - i})")

def wave_max_u32(a, v, t):
    for mod in ("quad_perm:[1,0,3,2]", "quad_perm:[2,3,0,1]", "row_half_mirror", "row_mirror"):
        a(f"v_max_u32_dpp v{v}, v{v}, v{v} {mod} row_mask:0xf bank_mask:0xf")
    for w in (16, 32):
        a(f"""
        v_mov_b32 v{t}, v{v}
        v_permlane{w}_swap_b32 v{t}, v{v}
        v_max_u32 v{v}, v{v}, v{t}
        """)

LOG2E = 1.4426950408889634
def sigmoid(a, d, x, t):
    a(f"""
    v_mul_f32 v{t}, {f2u(-LOG2E):#x}, v{x}
    v_exp_f32 v{t}, v{t}
    v_add_f32 v{t}, 1.0, v{t}
    v_rcp_f32 v{d}, v{t}
    """)

def gen_p2(a, dbg='', prio=True):
    SC = ' sc1'
    OPT = dict(x.split('=') for x in dbg.split(',') if '=' in x)
    FLS = int(OPT.get('fls', 4))
    PFS = int(OPT.get('pfs', 0)); PFP = int(OPT.get('pfp', 1))
    TAILST = 'tailst' in dbg
    FS = 'ffnst' in dbg
    KREP = 'nokrep' not in dbg; GREP = 'nogrep' not in dbg
    def st(i, tail):
        if 'p1st' in dbg:
            if tail == 4: stamp(a, i)
        elif 'r0st' in dbg:
            if tail == 3: stamp(a, i)
        elif FS:
            if tail == 2: stamp(a, i)
        elif tail in (True, False) and bool(tail) == TAILST: stamp(a, i)
    K = 16; V = 48; X = [112, 128]; O = 144; CM = 160; SP = 176; Q = 184; OA = 188; WF = 204; BF = 236; S1 = 240
    vQA, vPW, vPR, vPL, vOW, vOR, vLM, vWL, vKL, vVL = 1, 2, 3, 4, 5, 6, 7, 8, 9, 10
    t0, t1, t2, t3, t4 = 11, 12, 13, 14, 15
    vFW, vFR, vFV, vWLs = 9, 13, 14, 15
    vFS, vPA, vPD = SP + 4, SP + 5, SP + 6
    a.label("K12_setup")
    a(f"""
    s_load_dwordx2 s[48:49], s[0:1], 96
    s_load_dwordx2 s[40:41], s[0:1], 0
    s_load_dwordx8 s[60:67], s[0:1], 48
    s_load_dwordx2 s[46:47], s[0:1], 80
    s_waitcnt lgkmcnt(0)
    """)
    a.label("K12_setup1")
    a(f"""
    s_and_b32 s3, s2, 7
    s_lshr_b32 s4, s2, 3
    s_lshl_b32 s7, s3, 8
    s_lshl_b32 s5, s4, 3
    s_add_u32 s7, s7, s5           ; T0
    s_and_b32 s28, s4, 7           ; rot
    v_lshrrev_b32 v{t0}, 6, v0
    v_and_b32 v0, 63, v0
    v_readfirstlane_b32 s6, v{t0}
    s_mov_b32 s30, 0
    v_lshlrev_b32 v{vWL}, 4, v0
    s_mul_i32 s3, s6, {8*TS}
    s_add_u32 s3, s3, {WS_KV:#x}
    """)
    for t in range(8):
        a(f"""
        s_add_u32 s4, s28, {t}
        s_and_b32 s4, s4, 7
        s_mul_i32 s4, s4, {TS}
        s_add_u32 s{50+t}, s3, s4
        """)
    a.label("K2_restart")
    a(f"""
    s_add_u32 s44, s6, 4
    s_and_b32 s44, s44, 7
    s_add_u32 s3, s44, s28
    s_and_b32 s3, s3, 7
    s_andn2_b32 s45, s2, 0x38
    s_lshl_b32 s4, s3, 3
    s_or_b32 s45, s45, s4
    s_lshl_b32 s45, s45, 6
    s_lshr_b32 s4, s28, 1
    s_lshl_b32 s4, s4, 2
    s_add_u32 s45, s45, s4
    s_add_u32 s45, s45, {WS_FQ:#x}
    s_add_u32 s3, s3, s7
    s_lshl_b32 s32, s3, 10
    v_and_b32 v{t1}, 31, v0
    v_lshrrev_b32 v{t2}, 5, v0
    v_mul_u32_u24 v{vVL}, 272, v{t2}
    v_lshl_add_u32 v{vVL}, v{t1}, 4, v{vVL}
    v_cmp_lt_u32 vcc, 16, v{t1}
    v_bfrev_b32 v{t0}, 1
    v_add_u32 v{vQA}, {L_Q:#x}, v{vWL}
    v_cndmask_b32 v{vVL}, v{vVL}, v{t0}, vcc
    """)
    srd(a, 8, 48, 49, WS_SIZE)
    vm = VM(a)
    def ldK(t):
        a(f"buffer_load_dwordx4 v[{K+4*t}:{K+4*t+3}], v{vWL}, s[8:11], s{50+t} offen{SC}"); vm.issue(f"K{t}")
    def ldV(t):
        if 'vmask' in dbg:
            a("s_mov_b32 exec_lo, 0x1ffff"); a("s_mov_b32 exec_hi, 0x1ffff")
            for h in range(2):
                a(f"buffer_load_dwordx4 v[{V+8*t+4*h}:{V+8*t+4*h+3}], v{vVL}, s[8:11], s{50+t} offen offset:{1024 + 544*h}{SC}"); vm.issue(f"V{t}{h}")
            a("s_mov_b64 exec, -1")
            return
        for h in range(2):
            a(f"buffer_load_dwordx4 v[{V+8*t+4*h}:{V+8*t+4*h+3}], v{vVL}, s[8:11], s{50+t} offen offset:{1024 + 544*h}{SC}"); vm.issue(f"V{t}{h}")
    a(f"""
    s_lshl_b32 s3, s44, 10
    v_add_u32 v{t4}, s3, v{vQA}
    """)
    def late_setup(part):
        u0, u1, u2, u3 = S1, S1 + 1, S1 + 2, S1 + 3
        if part == 0:
            srd(a, 16, 40, 41, 0x200000)
            srd(a, 20, 46, 47, 0x200000)
            srd(a, 24, 60, 61, 0x400)
            a(f"""
            v_and_b32 v{u1}, 31, v0
            v_lshrrev_b32 v{u2}, 5, v0
            v_mul_u32_u24 v{vPW}, 80, v{u1}
            s_mul_i32 s3, s6, 2560
            v_add_u32 v{vPW}, s3, v{vPW}
            v_lshl_add_u32 v{SP+3}, v{u2}, 2, v{vPW}
            v_lshl_add_u32 v{vPW}, v{u2}, 4, v{vPW}
            v_lshrrev_b32 v{u0}, 4, v0     ; g
            s_lshr_b32 s3, s6, 1
            s_lshl_b32 s3, s3, 3
            s_and_b32 s4, s6, 1
            s_lshl_b32 s4, s4, 1
            s_add_u32 s3, s3, s4
            v_and_b32 v{u1}, 1, v{u0}
            v_lshl_add_u32 v{u1}, v{u1}, 2, v{u2}
            v_add_u32 v{u1}, s3, v{u1}     ; n = 8*(w>>1) + 2*(w&1) + (g>>1) + 4*(g&1)
            v_mul_u32_u24 v{vPL}, 80, v{u1}
            v_and_b32 v{u2}, 15, v0        ; d
            v_lshl_add_u32 v{vPR}, v{u2}, 2, v{vPL}
            v_and_b32 v{u3}, 7, v0
            v_mul_u32_u24 v{u3}, 2560, v{u3}
            v_add3_u32 v{vPL}, v{vPL}, v{u3}, 64
            s_lshl_b32 s31, s28, 16
            s_lshl_b32 s33, s6, 13
            s_add_u32 s33, s33, {WS_WOF:#x}
            """)
        elif part == 1:
            a(f"""
            v_and_b32 v{u3}, 7, v{u1}      ; token
            v_lshrrev_b32 v{u1}, 3, v{u1}  ; head_local
            v_mul_u32_u24 v{vOW}, 144, v{u3}
            v_lshl_add_u32 v{vOW}, v{u1}, 5, v{vOW}
            v_lshl_add_u32 v{vOW}, v{u2}, 1, v{vOW}
            v_add_u32 v{vOW}, {L_OB:#x}, v{vOW}
            v_and_b32 v{u3}, 7, v0
            v_mul_u32_u24 v{vOR}, 144, v{u3}
            v_lshl_add_u32 v{vOR}, v{u0}, 4, v{vOR}
            v_add_u32 v{vOR}, {L_OB:#x}, v{vOR}
            {"" if 'nozc' in dbg else f"v_and_b32 v{u1}, 8, v0"}
            {"" if 'nozc' in dbg else f"v_cmp_ne_u32 vcc, 0, v{u1}"}
            {"" if 'nozc' in dbg else f"v_mov_b32 v{u1}, {L_ZC:#x}"}
            {"" if 'nozc' in dbg else f"v_cndmask_b32 v{vOR}, v{vOR}, v{u1}, vcc"}
            v_mov_b32 v{vLM}, 0
            v_lshlrev_b32 v{vFR}, 2, v{u3}
            v_add_u32 v{vFR}, {L_FLG:#x}, v{vFR}
            """)
        else:
            a(f"v_pk_mov_b32 v[{SP}:{SP+1}], 0, 0")
            a(f"v_mov_b32 v{SP+2}, 0xdddddddd")
    def rd_qcm():
        a(f"ds_read_b128 v[{Q}:{Q+3}], v{vQA}")
        for k in range(4):
            a(f"ds_read_b128 v[{CM+4*k}:{CM+4*k+3}], v{vQA} offset:{L_MREF - L_Q}")
        a(f"v_add_u32 v{vQA}, 1024, v{vQA}")
    mf = "v_mfma_f32_32x32x16_bf16"
    def M1(kt, xb):
        if 'nom1' in dbg: a("s_nop 1"); return
        a(f"{mf} v[{X[xb]}:{X[xb]+15}], v[{K+4*kt}:{K+4*kt+3}], v[{Q}:{Q+3}], v[{CM}:{CM+15}]")
    def E(xb, lo, hi):
        for r in range(lo, hi):
            if 'expnop' in dbg:
                a("v_nop"); a("v_nop")
                continue
            if 'noexp' in dbg:
                a(f"v_cvt_pk_bf16_f32 v{X[xb]+r}, 0, v{X[xb]+r}"); a(f"v_cvt_pk_bf16_f32 v{X[xb]+r}, 0, v{X[xb]+r}")
                continue
            a(f"v_exp_f32 v{X[xb]+r}, v{X[xb]+r}")
    def C2(h, xb):
        for k in range(4):
            a(f"v_cvt_pk_bf16_f32 v{SP+4*h+k}, v{X[xb]+8*h+2*k}, v{X[xb]+8*h+2*k+1}")
    def M3(h, kt):
        xb = kt & 1
        if 'nom3' in dbg: a("s_nop 2"); return
        a(f"v_smfmac_f32_32x32x32_bf16 v[{O}:{O+15}], v[{V+8*kt+4*h}:{V+8*kt+4*h+3}], v[{X[xb]+8*h}:{X[xb]+8*h+7}], v{SP+2}")
    def Ozero():
        a(f"v_mfma_f32_32x32x8bf16_1k v[{O}:{O+15}], v[{SP}:{SP+1}], v[{SP}:{SP+1}], 0")
    def part_write():
        a(f"""
        ds_write_b128 v{vPW}, v[{O}:{O+3}]
        ds_write_b128 v{vPW}, v[{O+4}:{O+7}] offset:32
        ds_write_b32 v{SP+3}, v{O+8} offset:64
        """)
    def s1_read():
        a(f"ds_read_b32 v{S1+8}, v{vPL}")
        for k in range(4):
            a(f"ds_read2st64_b32 v[{S1+2*k}:{S1+2*k+1}], v{vPR} offset0:{20*k} offset1:{20*k+10}")
    def s1_calc():
        dp = lambda mod: f"v_add_f32_dpp v{S1+8}, v{S1+8}, v{S1+8} {mod} row_mask:0xf bank_mask:0xf"
        pa = (lambda x, y: f"v_add_f32 v{x}, v{x}, v{y}\nv_add_f32 v{x+1}, v{x+1}, v{y+1}") if 's1sc' in dbg else \
             (lambda x, y: f"v_pk_add_f32 v[{x}:{x+1}], v[{x}:{x+1}], v[{y}:{y+1}]")
        a(f"""
        {dp("quad_perm:[1,0,3,2]")}
        {pa(S1, S1+2)}
        {pa(S1+4, S1+6)}
        {dp("quad_perm:[2,3,0,1]")}
        {pa(S1, S1+4)}
        v_add_f32 v{S1}, v{S1}, v{S1+1}
        {dp("row_half_mirror")}
        v_rcp_f32 v{S1+1}, v{S1+8}
        v_maximum3_f32 v{vLM}, v{vLM}, v{S1+8}, abs(v{S1})
        v_mul_f32 v{S1}, v{S1}, v{S1+1}
        v_cvt_pk_bf16_f32 v{S1}, v{S1}, v{S1}
        ds_write_b16 v{vOW}, v{S1}
        """)
    def s2_read():
        for s in range(2):
            a(f"ds_read_b128 v[{BF+4*s}:{BF+4*s+3}], v{vOR} offset:{64*s}")
    def s2_mma(lo, hi):
        for u in range(lo, hi):
            s, t = u >> 2, u & 3
            a(f"v_mfma_f32_16x16x32_bf16 v[{OA+4*t}:{OA+4*t+3}], v[{WF+4*u}:{WF+4*u+3}], v[{BF+4*s}:{BF+4*s+3}], v[{OA+4*t}:{OA+4*t+3}]")
    def wf_load(lo, hi):
        if lo == 0:
            a("s_add_u32 s34, s33, s31")
            a("s_add_u32 s35, s34, 4096")
            a("s_add_u32 s31, s31, 0x10000")
            a("s_and_b32 s31, s31, 0x7ffff")
        for u in range(lo, hi):
            a(f"buffer_load_dwordx4 v[{WF+4*u}:{WF+4*u+3}], v{vWL}, s[8:11], s{34 + (u >> 2)} offen offset:{1024*(u&3)}{'' if 'wfpl' in dbg else ' nt' if 'wfnt' in dbg else SC}")
            vm.issue("WF")
    def ffn_prefetch():
        a(f"""
        s_mov_b32 s39, s6
        s_cmp_eq_u32 s39, 1
        s_cselect_b64 s[36:37], s[64:65], s[62:63]
        s_cmp_eq_u32 s39, 2
        s_cselect_b64 s[36:37], s[66:67], s[36:37]
        """)
        srd(a, 12, 36, 37, 512 * 1792 * 2)
        a(f"""
        s_and_b32 s3, s2, 7
        s_lshr_b32 s4, s2, 3
        s_mul_i32 s5, s4, {16*3584}
        s_mul_i32 s36, s3, 448
        s_and_b32 s36, s36, 0xffffff80
        s_add_u32 s5, s5, s36
        s_lshl_b32 s36, s3, 7
        s_mul_i32 s37, s4, {56*1024}
        s_add_u32 s36, s36, s37
        v_lshrrev_b32 v{t0}, 2, v0
        v_mul_u32_u24 v{t0}, 3584, v{t0}
        v_and_b32 v{t1}, 3, v0
        v_lshl_add_u32 v{t0}, v{t1}, 7, v{t0}
        v_min_u32 v{t1}, 55, v0
        v_lshlrev_b32 v{t1}, 10, v{t1}
        s_cmp_eq_u32 s39, 2
        s_cselect_b32 s38, s36, s5
        s_cselect_b64 vcc, -1, 0
        v_cndmask_b32 v{vPA}, v{t0}, v{t1}, vcc
        s_lshl_b32 s39, s6, {PFS}
        s_add_u32 s39, s39, 1
        s_cmp_gt_u32 s6, 2
        s_cselect_b32 s39, 99, s39
        """)
    def ffn_setup():
        a(f"""
        s_and_b32 s3, s2, 7
        s_lshr_b32 s4, s2, 3
        s_and_b32 s5, s6, 1
        s_cmp_eq_u32 s5, 0
        s_cselect_b64 s[36:37], s[62:63], s[64:65]
        s_cmp_lt_u32 s2, 112
        s_cselect_b64 s[36:37], s[36:37], s[66:67]
        """)
        srd(a, 68, 36, 37, 512 * 1792 * 2)
        a(f"""
        s_mul_i32 s76, s3, 14
        s_add_u32 s76, s76, s4           ; fs
        s_lshl_b32 s77, s3, 2
        s_add_u32 s77, s77, s4
        s_sub_u32 s77, s77, 14           ; cb
        s_lshr_b32 s5, s6, 1
        s_mul_i32 s5, s5, {128*3584}
        s_lshl_b32 s36, s76, 5
        s_add_u32 s5, s5, s36
        s_mul_i32 s36, s6, {224*1024}
        s_lshl_b32 s37, s77, 5
        s_add_u32 s36, s36, s37
        s_cmp_lt_u32 s2, 112
        s_cselect_b32 s72, s5, s36
        s_movk_i32 s73, 1024
        s_cselect_b32 s73, 3584, s73
        s_cselect_b32 s75, 4, 7
        s_cmp_lt_u32 s2, 144
        s_cselect_b32 s75, s75, 0
        s_mul_i32 s74, s6, 7168
        s_add_u32 s74, s74, {L_FW:#x}
        v_lshrrev_b32 v{vFS}, 1, v0
        v_mul_lo_u32 v{vFS}, v{vFS}, s73
        v_and_b32 v{t1}, 1, v0
        v_lshl_add_u32 v{vFS}, v{t1}, 4, v{vFS}
        s_lshl_b32 s73, s73, 5
        s_mov_b32 s78, s74
        """)
    def ffn_stage():
        a(f"""
        s_cmp_lt_u32 s29, 4
        s_cbranch_scc1 K2_nost
        """)
        for e in range(2):
            a(f"""
            s_cmp_eq_u32 s75, 0
            s_cbranch_scc1 K2_nost
            s_mov_b32 m0, s78
            s_sub_u32 s75, s75, 1
            buffer_load_dwordx4 v{vFS}, s[68:71], s72 offen lds
            s_add_u32 s78, s78, 1024
            s_add_u32 s72, s72, s73
            """)
        a.label("K2_nost")
    def ffn_issue():
        a(f"""
        s_cmp_lg_u32 s29, s39
        s_cbranch_scc1 K2_nopf
        buffer_load_dword v{vPD}, v{vPA}, s[12:15], s38 offen
        """)
        a.label("K2_nopf")
    def setprio(p):
        if prio: a(f"s_setprio {p}")
    def mref_mma(q, d):
        a(f"{mf} v[{d}:{d+15}], v[{K}:{K+3}], v[{q}:{q+3}], 0")
        a(f"{mf} v[{d+16}:{d+31}], v[{K+4}:{K+7}], v[{q}:{q+3}], 0")
    def mref_max(S):
        a(f"v_max3_f32 v{t0}, v{S}, v{S+1}, v{S+2}")
        for r in range(3, 31, 2):
            a(f"v_max3_f32 v{t0}, v{t0}, v{S+r}, v{S+r+1}")
        a(f"""
        v_max_f32 v{t0}, v{t0}, v{S+31}
        v_mov_b32 v{t1}, v{t0}
        v_permlane32_swap_b32 v{t1}, v{t0}
        v_max_f32 v{t0}, v{t0}, v{t1}
        """)
        for r in range(4): a(f"v_sub_f32 v{S+r}, {f2u(-OFFS):#x}, v{t0}")
        a(f"ds_write_b128 v{t4}, v[{S}:{S+3}] offset:{L_MREF - L_Q}")
    def kv_first():
        ldK(0); ldK(1); ldV(0); ldK(2); ldV(1)
    for p in range(3): late_setup(p)
    ffn_prefetch(); ffn_setup()
    a(f"""
    s_lshl_b32 s3, s6, 2
    s_add_u32 s3, s3, {L_FLG:#x}
    v_mov_b32 v{vFW}, s3
    s_movk_i32 s59, {L_Q + 2048:#x}
    s_lshl_b32 s3, s30, 2
    s_or_b32 s3, s3, s6
    s_cmp_lt_u32 s3, 4
    s_cbranch_scc1 K1_comp
    """)
    a.label("K12_join")
    for r in range(0, 16, 2):
        a(f"v_pk_mov_b32 v[{OA+r}:{OA+r+1}], 0, 0")
    a(f"""
    s_min_u32 s3, s75, 4
    s_bfm_b32 s43, s3, 4
    s_sub_u32 s3, s75, s3
    s_bfm_b32 s42, s3, 5
    """)
    def fq_store():
        a(f"""
        v_mov_b32 v{t0}, s58
        s_lshl_b32 s3, s2, 6
        s_lshl_b32 s4, s6, 2
        s_add_u32 s3, s3, s4
        s_add_u32 s3, s3, {WS_FQ:#x}
        s_waitcnt vmcnt(7)
        s_mov_b64 exec, 1
        buffer_store_dword v{t0}, v{SP}, s[8:11], s3 offen sc1
        s_mov_b64 exec, -1
        """)
        vm.issue("FQS")
    if 'ps' in dbg.split(','):
        a(f"""
        s_lshl_b32 s3, s30, 3
        s_or_b32 s3, s3, s6
        s_cmp_lg_u32 s3, 4
        s_cbranch_scc1 K2_nb2
        s_waitcnt vmcnt(0)
        s_barrier
        """)
        a.label("K2_nb2")
    a(f"""
    ds_write2_b32 v{vFW}, v{SP}, v{SP} offset0:0 offset1:8
    ds_write2_b32 v{vFW}, v{SP}, v{SP} offset0:64 offset1:80
    s_cmp_lg_u32 s30, 0
    s_cbranch_scc1 K2_safe
    s_cmp_eq_u32 s6, 4
    s_cbranch_scc1 K2_poller
    s_waitcnt lgkmcnt(0)
    s_barrier
    """)
    st(1, False); st(5, 4)
    if 'amp' in dbg: a('s_memrealtime s[88:89]'); a('s_waitcnt lgkmcnt(0)')
    kv_first()
    fq_store()
    a("s_branch K2_go")
    a.label("K2_poller")
    PA, PB = X[0], X[0] + 8
    a(f"""
    v_lshlrev_b32 v{t1}, {FLS}, v0
    s_and_b32 s3, s2, 7
    s_lshl_b32 s3, s3, 14
    s_add_u32 s3, s3, {WS_FL:#x}
    s_add_u32 s4, s3, {64 << FLS}
    s_add_u32 s5, s3, {128 << FLS}
    s_add_u32 s34, s3, {192 << FLS}
    s_mov_b32 s36, 0
    """)
    def fissue(b):
        for k, sr in enumerate(("s3", "s4", "s5", "s34")):
            a(f"buffer_load_dword v{b+k}, v{t1}, s[8:11], {sr} offen sc1")
    def fchk(b):
        for r in range(4): a(f"v_xor_b32 v{b+r}, s58, v{b+r}")
        a(f"""
        v_or3_b32 v{b}, v{b}, v{b+1}, v{b+2}
        v_or_b32 v{b}, v{b}, v{b+3}
        v_cmp_ne_u32 vcc, 0, v{b}
        s_cbranch_vccz K2_sync0
        """)
    if int(OPT.get('fd', 0)): a(f"s_sleep {OPT.get('fd', 0)}")
    if 'fnp' in dbg:
        a.label("K2_fl")
        fissue(PA); a("s_waitcnt vmcnt(0)"); fchk(PA)
        a(f"s_sleep {OPT.get('fsl', 2)}")
    else:
        fissue(PA)
        a("s_sleep 3")
        a.label("K2_fl")
        fissue(PB); a("s_waitcnt vmcnt(4)"); fchk(PA)
        fissue(PA); a("s_waitcnt vmcnt(4)"); fchk(PB)
    a(f"""
    s_add_u32 s36, s36, 1
    s_cmp_lt_u32 s36, 0x40000
    s_cbranch_scc1 K2_fl
    """)
    a.label("K2_sync0")
    st(4, 4)
    a(f"""
    s_cmp_lg_u32 s2, 0
    s_cbranch_scc1 K2_sync1
    v_mov_b32 v{t0}, s58
    s_mov_b32 s3, {WS_EP:#x}
    s_mov_b64 exec, 1
    buffer_store_dword v{t0}, v{SP}, s[8:11], s3 offen sc1
    s_mov_b64 exec, -1
    """)
    a.label("K2_sync1")
    vm.q = []; vm.done = -1
    ldK(0); ldK(1)
    a("s_waitcnt lgkmcnt(0)")
    a("s_barrier")
    st(1, False); st(5, 4)
    if 'amp' in dbg: a('s_memrealtime s[88:89]'); a('s_waitcnt lgkmcnt(0)')
    a(f"ds_read_b128 v[{Q}:{Q+3}], v{vQA}")
    ldV(0); ldK(2); ldV(1)
    a("s_waitcnt vmcnt(5) lgkmcnt(0)")
    mref_mma(Q, X[0]); mref_max(X[0])
    fq_store()
    a("s_branch K2_go")
    a.label("K2_safe")
    S = X[0]
    a(f"""
    v_and_b32 v{t0}, 31, v0
    v_lshlrev_b32 v{S1+4}, 2, v{t0}
    v_add_u32 v{S1+4}, {L_MX:#x}, v{S1+4}
    s_lshl_b32 s3, s44, 7
    v_add_u32 v{S1+5}, s3, v{S1+4}
    v_mov_b32 v{t0}, 0xff800000
    ds_write_b32 v{S1+5}, v{t0}
    s_waitcnt vmcnt(0) lgkmcnt(0)
    s_barrier
    v_mov_b32 v{t1}, v{vQA}
    s_mov_b32 s29, 0
    """)
    a.label("K2_safe_loop")
    a(f"""
    ds_read_b128 v[{BF}:{BF+3}], v{t1}
    v_mov_b32 v{t0}, 0xff800000
    s_waitcnt lgkmcnt(0)
    """)
    for t in range(8):
        a(f"v_mfma_f32_32x32x16_bf16 v[{S}:{S+15}], v[{K+4*t}:{K+4*t+3}], v[{BF}:{BF+3}], 0")
        for r in range(0, 16, 2):
            a(f"v_max3_f32 v{t0}, v{t0}, v{S+r}, v{S+r+1}")
    a(f"""
    ds_max_f32 v{S1+4}, v{t0}
    v_add_u32 v{t1}, 1024, v{t1}
    v_add_u32 v{S1+4}, 128, v{S1+4}
    s_add_u32 s29, s29, 1
    s_cmp_lt_u32 s29, 8
    s_cbranch_scc1 K2_safe_loop
    s_waitcnt lgkmcnt(0)
    s_barrier
    ds_read_b32 v{t0}, v{S1+5}
    s_waitcnt lgkmcnt(0)
    """)
    for r in range(4): a(f"v_sub_f32 v{BF+r}, 0, v{t0}")
    a(f"ds_write_b128 v{t4}, v[{BF}:{BF+3}] offset:{L_MREF - L_Q}")
    a.label("K2_go")
    a("s_waitcnt lgkmcnt(0)")
    a("s_barrier")
    st(2, False)
    rd_qcm()
    vm.wait("K0")
    a("s_waitcnt lgkmcnt(0)")
    M1(0, 0)
    a("s_mov_b32 s29, 1")
    P0 = OPT.get('p0', '33322111')
    setprio(int(P0[0]))
    LA = int(OPT.get('la', 0))
    for k in range(LA + 1):
        ldK(3 + k); ldV(2 + k)
    st(3, False)
    if 'leak' in dbg or 'amp' in dbg: a('s_memrealtime s[94:95]'); a('s_waitcnt lgkmcnt(0)')
    def tile(i, hook):
        xb = i & 1; xn = xb ^ 1
        hook(i, 'a')
        E(xb, 0, 2)
        hook(i, 'm3b')
        E(xb, 2, 5)
        hook(i, 'm1')
        M1((i + 1) & 7, xn)
        hook(i, 0)
        if i == 0:
            E(xb, 5, 12)
            hook(i, 1)
            Ozero()
            E(xb, 12, 16)
            M3(0, i)
            hook(i, 2)
        else:
            E(xb, 5, 8)
            hook(i, 'e1')
            E(xb, 8, 10)
            hook(i, 1)
            M3(0, i)
            hook(i, 2)
            E(xb, 10, 13)
            hook(i, 'e2')
            E(xb, 13, 15)
            hook(i, 'e3')
            E(xb, 15, 16)
    def hook0(i, pos):
        if pos == 'a' and i in (0, 2, 4, 6): st(1 + i // 2, 3)
        if pos == 'a' and i > 0 and P0[i] != P0[i - 1]: setprio(int(P0[i]))
        if pos == 'm3b' and i > 0:
            vm.wait(f"V{i-1}1"); M3(1, i - 1)
        if pos == 'm1':
            if i < 7: vm.wait(f"K{i+1}")
            else: a("s_waitcnt lgkmcnt(0)")
        if pos == 0:
            if i + 4 + LA <= 7: ldK(i + 4 + LA)
            if i + 3 + LA <= 7: ldV(i + 3 + LA)
            if i == 6: wf_load(0, 4)
            if i == 7: wf_load(4, 8)
        QT = int(OPT.get('qt', 1))
        if pos == 'e1' and i == QT:
            a(f"buffer_load_dword v{t0}, v{SP}, s[8:11], s45 offen sc1"); vm.issue("FQ")
        if pos == 'e1' and i == QT + 1:
            vm.wait("FQ")
            a(f"v_cmp_ne_u32 vcc, s58, v{t0}")
            a("s_cbranch_vccnz K2_qspin")
            a.label("K2_qback")
            a(f"buffer_load_dwordx4 v[{BF}:{BF+3}], v{vWL}, s[8:11], s32 offen sc1"); vm.issue("Q")
        if pos == 'e2' and i == int(OPT.get('qw', 4)):
            vm.wait("Q")
            a(f"ds_write_b128 v{t4}, v[{BF}:{BF+3}]")
            mref_mma(BF, WF)
        if pos == 'e1' and i == int(OPT.get('qw', 4)) + 1:
            a("s_cmp_lg_u32 s30, 0")
            a("s_cbranch_scc1 K2_keepm")
            mref_max(WF)
            a.label("K2_keepm")
        if pos == 1:
            if i == 6:
                a("s_waitcnt lgkmcnt(0)"); a("s_barrier"); rd_qcm()
            vm.wait(f"V{i}0")
        if pos == 2 and i == 7:
            vm.wait("V71")
            a(f"""
            v_mov_b32 v{S1+8}, -1
            v_mov_b32 v{S1+9}, -1
            v_lshrrev_b32 v{S1+10}, 1, v{vWL}
            s_add_u32 s3, s7, s6
            s_lshl_b32 s3, s3, 9
            s_add_u32 s3, s3, {WS_H:#x}
            buffer_store_dwordx2 v[{S1+8}:{S1+9}], v{S1+10}, s[8:11], s3 offen sc1
            """)
    for i in range(8): tile(i, hook0)
    st(5, 3)
    a.raw(".p2align 3")
    a.label("K2_round")
    spins = []
    def poll(off):
        if 'xchk' in dbg: return
        a(f"ds_read_b32 v{vFV}, v{vFR} offset:{off}")
    def check(off):
        if 'xchk' in dbg: return
        k = len(spins); spins.append(off)
        a(f"""
        s_waitcnt lgkmcnt(0)
        v_cmp_gt_u32 vcc, s59, v{vFV}
        s_cbranch_vccnz K2_spin{k}
        """)
        a.label(f"K2_back{k}")
    PR = dict(x.split('=') for x in dbg.split(',') if '=' in x).get('pr', 'c')
    def hook(i, pos):
        if pos == 'm3b': M3(1, (i - 1) & 7)
        if pos == 'm1' and i == 7: a("s_waitcnt lgkmcnt(0)")
        if pos == 1 and i == 6: rd_qcm()
        if 'nohook' in dbg: return
        if 'bar' in dbg.split(','):
            if pos == 'a' and i in (0, 6, 7): setprio({6: 2, 7: 1, 0: 0}[i])
            if i == 0 and pos == 1: part_write()
            if i == 1 and pos == 0:
                a("s_waitcnt lgkmcnt(0)"); a("s_barrier"); setprio(2); s1_read()
            if i == 2 and pos == 0:
                a("s_waitcnt lgkmcnt(0)"); s1_calc(); setprio(1)
            if i == 3 and pos == 0: setprio(0)
            if i == 4 and pos == 0:
                a("s_waitcnt vmcnt(0) lgkmcnt(0)"); a("s_barrier"); setprio(3); s2_read()
            seq = [(4, 'e3'), (5, 'e1'), (5, 'e2'), (5, 'e3'), (6, 'e1'), (6, 'e2'), (6, 'e3'), (7, 'e1')]
        else:
            ca = int(OPT.get('ca', 2)); cb = int(OPT.get('cb', 5)); PT = OPT.get('pt', '10220332')
            slots = [(t, p) for t in range(1, 8) for p in (('a', 'e1', 'e2', 'e3') if cb >= 6 else ('e1', 'e2', 'e3'))]
            if i == 0 and pos == 1:
                if 'xpw' not in dbg: part_write()
                a(f"ds_write_b32 v{vFW}, v{vQA}")
            if i == ca and pos == 0: poll(0)
            if i == ca and pos == 2:
                check(0)
                if 'xs1' not in dbg: s1_read()
            if i == ca + 1 and pos == {'0': 0, '1': 'e1', '2': 'e2', '3': 'a'}[OPT.get('s1p', '3')]:
                a("s_waitcnt lgkmcnt(0)")
                if 'xs1' not in dbg: s1_calc()
                a(f"ds_write_b32 v{vFW}, v{vQA} offset:32")
            if i == cb - 1 and pos == 2: poll(32)
            if i == cb and pos == 'm1':
                check(32); s2_read(); a("s_waitcnt vmcnt(0)")
            if i == int(OPT.get('stp', 2)) and pos == 'e1' and 'nopf' not in dbg:
                a("s_bitcmp1_b32 s43, s29"); a("s_cbranch_scc1 K2_stg"); a.label("K2_stgb")
            if len(PT) == 8: PT = "".join(ch * 2 for ch in PT)
            for hpos, k in (('a', 2 * i), (2, 2 * i + 1)):
                if pos == hpos and PT[k] != PT[k - 1]: setprio(int(PT[k]))
            av = [x for x in slots if x > (cb, 'e1')]
            if OPT.get('sp', '0') == '1' and len(av) >= 12: av = [x for x in av if x[1] != 'e3']
            seq = av[:8]
            while len(seq) < 8: seq = sorted(seq + [seq[len(seq) % len(av)]])
        for u in [k for k, x in enumerate(seq) if x == (i, pos)]:
            if u == 0: a("s_waitcnt lgkmcnt(0)")
            if 'xmma' not in dbg: s2_mma(u, u + 1)
            if 'nowf' not in dbg: wf_load(u, u + 1)
            if u == 7 and 'nopf' not in dbg and PFP == 1:
                a("s_cmp_eq_u32 s29, s39"); a("s_cbranch_scc1 K2_side"); a.label("K2_sideb")
    for i in range(8): tile(i, hook)
    if 'rndst' in dbg:
        a(f"""
        s_memtime s[82:83]
        s_memrealtime s[100:101]
        s_waitcnt lgkmcnt(0)
        s_lshl_b32 s84, s2, 3
        s_add_u32 s84, s84, s6
        s_lshl_b32 s84, s84, 3
        s_add_u32 s84, s84, s29
        s_lshl_b32 s84, s84, 3
        s_add_u32 s84, s84, {WS_STAMP + 0x40000:#x}
        s_mov_b64 exec, 1
        v_mov_b32 v{S1+8}, s82
        v_mov_b32 v{S1+9}, s100
        v_mov_b32 v{S1+10}, 0
        buffer_store_dwordx2 v[{S1+8}:{S1+9}], v{S1+10}, s[8:11], s84 offen
        s_mov_b64 exec, -1
        """)
    a(f"""
    s_addk_i32 s59, 1024
    s_add_u32 s29, s29, 1
    s_cmp_lt_u32 s29, 8
    s_cbranch_scc1 K2_round
    """)
    st(4, False); st(0, True)
    if 'amp' in dbg: a('s_memrealtime s[98:99]'); a('s_waitcnt lgkmcnt(0)')
    M3(1, 7)
    XR = CM; WR = CM + 4; HV = X[0]; HN = X[0] + 8; PK = X[1]; ST = X[1] + 8
    a(f"""
    s_add_u32 s3, s7, s6
    s_lshl_b32 s4, s3, 10
    buffer_load_dwordx4 v[{XR}:{XR+3}], v{vWL}, s[16:19], s4 offen
    buffer_load_dwordx4 v[{WR}:{WR+3}], v{vWL}, s[24:27], 0 offen
    v_and_b32 v{t0}, 7, v0
    v_mul_u32_u24 v{t0}, 1040, v{t0}
    v_lshrrev_b32 v{t1}, 4, v0
    v_lshl_add_u32 v{t0}, v{t1}, 3, v{t0}
    s_lshl_b32 s5, s6, 7
    s_add_u32 s5, s5, {L_HB:#x}
    v_add_u32 v{t0}, s5, v{t0}
    s_mul_i32 s5, s6, 1040
    s_add_u32 s5, s5, {L_HB:#x}
    v_add_u32 v{t1}, s5, v{vWL}
    s_lshl_b32 s35, s6, 2
    s_add_u32 s35, s35, {L_KEY:#x}
    v_mov_b32 v{t4}, s35
    v_and_b32 v{t3}, 7, v0
    v_lshlrev_b32 v{t3}, 2, v{t3}
    v_add_u32 v{t3}, {L_KEY:#x}, v{t3}
    """)
    part_write()
    a("s_waitcnt lgkmcnt(0)"); a("s_barrier"); st(1, True); s1_read()
    a("s_waitcnt lgkmcnt(0)"); s1_calc()
    a(f"""
    v_mov_b32 v{t2}, {f2u(2.0**124):#x}
    v_cmp_nlt_f32 vcc, v{vLM}, v{t2}
    s_cmp_lg_u64 vcc, 0
    s_cselect_b32 s5, 1, 0
    v_mov_b32 v{t2}, s5
    ds_write_b32 v{t4}, v{t2} offset:32
    """)
    a("s_waitcnt vmcnt(2) lgkmcnt(0)"); a("s_barrier"); st(2, True); s2_read()
    a(f"ds_read_b32 v{t2}, v{t3} offset:32")
    a("s_waitcnt lgkmcnt(1)"); s2_mma(0, 8)
    a(f"""
    s_waitcnt lgkmcnt(0)
    v_cmp_ne_u32 vcc, 0, v{t2}
    s_cmp_eq_u64 vcc, 0
    s_cbranch_scc1 K2_good
    s_cmp_lg_u32 s30, 0
    s_cbranch_scc1 K2_good
    s_mov_b32 s30, 1
    s_waitcnt vmcnt(0)
    s_setprio 0
    s_branch K2_restart
    """)
    a.label("K2_good")
    a("s_mov_b32 exec_lo, 0x00ff00ff"); a("s_mov_b32 exec_hi, 0x00ff00ff")
    for t in range(4):
        a(f"v_cvt_pk_bf16_f32 v{S1+2*t}, v{OA+4*t}, v{OA+4*t+1}")
        a(f"v_cvt_pk_bf16_f32 v{S1+2*t+1}, v{OA+4*t+2}, v{OA+4*t+3}")
        a(f"ds_write_b64 v{t0}, v[{S1+2*t}:{S1+2*t+1}] offset:{32*t}")
    a("s_mov_b64 exec, -1")
    a("s_waitcnt vmcnt(0)")
    for r in range(4):
        a(f"v_lshlrev_b32 v{HV+2*r}, 16, v{XR+r}")
        a(f"v_and_b32 v{HV+2*r+1}, 0xffff0000, v{XR+r}")
        a(f"v_lshlrev_b32 v{WF+2*r}, 16, v{WR+r}")
        a(f"v_and_b32 v{WF+2*r+1}, 0xffff0000, v{WR+r}")
    a(f"""
    s_waitcnt lgkmcnt(0)
    s_barrier
    """)
    st(3, True)
    a(f"""
    ds_read_b128 v[{BF}:{BF+3}], v{t1}
    s_waitcnt lgkmcnt(0)
    """)
    for r in range(4):
        a(f"v_lshlrev_b32 v{HN+2*r}, 16, v{BF+r}")
        a(f"v_and_b32 v{HN+2*r+1}, 0xffff0000, v{BF+r}")
    P2 = lambda b, r: f"v[{b+r}:{b+r+1}]"
    for r in range(0, 8, 2): a(f"v_pk_add_f32 {P2(HV,r)}, {P2(HV,r)}, {P2(HN,r)}")
    for r in range(8): a(f"v_cvt_pk_bf16_f32 v{HV+r}, 0, v{HV+r}")
    SA, SB = S1, S1 + 2
    a(f"v_pk_add_f32 {P2(SA,0)}, {P2(HV,0)}, {P2(HV,2)}")
    a(f"v_pk_mul_f32 {P2(SB,0)}, {P2(HV,0)}, {P2(HV,0)}")
    a(f"v_pk_add_f32 {P2(SA,4)}, {P2(HV,4)}, {P2(HV,6)}")
    a(f"v_pk_fma_f32 {P2(SB,0)}, {P2(HV,2)}, {P2(HV,2)}, {P2(SB,0)}")
    a(f"v_pk_add_f32 {P2(SA,0)}, {P2(SA,0)}, {P2(SA,4)}")
    a(f"v_pk_fma_f32 {P2(SB,0)}, {P2(HV,4)}, {P2(HV,4)}, {P2(SB,0)}")
    a(f"v_add_f32 v{t0}, v{SA}, v{SA+1}")
    a(f"v_pk_fma_f32 {P2(SB,0)}, {P2(HV,6)}, {P2(HV,6)}, {P2(SB,0)}")
    a(f"v_add_f32 v{t2}, v{SB}, v{SB+1}")
    wave_sum(a, [t0, t2], [ST, ST + 1])
    ln_scalars(a, t0, t2, ST, ST + 2, ST + 1, ST + 3)
    st(4, True)
    for r in range(0, 8, 2): a(f"v_pk_add_f32 {P2(HN,r)}, {P2(HV,r)}, {P2(ST,0)} op_sel_hi:[1,0] neg_lo:[0,1] neg_hi:[0,1]")
    for r in range(8): a(f"v_cvt_pk_bf16_f32 v{HN+r}, 0, v{HN+r}")
    for r in range(0, 8, 2): a(f"v_pk_mul_f32 {P2(HN,r)}, {P2(HN,r)}, {P2(ST,2)} op_sel_hi:[1,0]")
    for r in range(8): a(f"v_cvt_pk_bf16_f32 v{HN+r}, 0, v{HN+r}")
    a(f"v_pk_mul_f32 {P2(SA,0)}, {P2(HN,0)}, {P2(WF,0)}")
    for r in range(2, 8, 2): a(f"v_pk_fma_f32 {P2(SA,0)}, {P2(HN,r)}, {P2(WF,r)}, {P2(SA,0)}")
    a(f"v_add_f32 v{t2}, v{SA}, v{SA+1}")
    fill = [f"v_pk_add_f32 {P2(WF+8,r)}, {P2(HV,r)}, {P2(HN,r)}" for r in range(0, 8, 2)]
    fill += [f"v_cvt_pk_bf16_f32 v{PK+4+r}, v{HV+2*r}, v{HV+2*r+1}" for r in range(4)]
    fill += [f"v_cvt_pk_bf16_f32 v{ST+4+r}, v{HN+2*r}, v{HN+2*r+1}" for r in range(4)]
    for mod in ("quad_perm:[1,0,3,2]", "quad_perm:[2,3,0,1]", "row_half_mirror", "row_mirror"):
        a(fill.pop(0)); a(fill.pop(0))
        a(f"v_add_f32_dpp v{t2}, v{t2}, v{t2} {mod} row_mask:0xf bank_mask:0xf")
    for w in (16, 32):
        a(f"v_mov_b32 v{t0}, v{t2}")
        a(fill.pop(0)); a(fill.pop(0))
        a(f"v_permlane{w}_swap_b32 v{t0}, v{t2}")
        a(f"v_add_f32 v{t2}, v{t2}, v{t0}")
    if 'leak' in dbg:
        a(f"""
        s_cmp_lg_u32 s3, 0
        s_cbranch_scc1 K2_leak
        s_memrealtime s[92:93]
        v_mov_b32 v{S1+4}, 0
        s_mov_b32 s5, {WS_SEL:#x}
        buffer_load_dwordx4 v[{S1}:{S1+3}], v{S1+4}, s[8:11], s5 offen
        s_waitcnt vmcnt(0) lgkmcnt(0)
        s_mov_b64 exec, 1
        v_add_f32 v{WF+8}, {f2u(64.0):#x}, v{WF+8}
        v_sub_u32 v{WF+9}, v{S1+2}, v{S1}
        v_sub_u32 v{WF+10}, v{S1+1}, v{S1}
        v_sub_u32 v{WF+11}, s90, v{S1}
        v_sub_u32 v{WF+12}, s94, v{S1}
        v_sub_u32 v{WF+13}, s92, v{S1}
        """)
        for r in range(9, 14):
            a(f"v_cvt_f32_u32 v{WF+r}, v{WF+r}")
            a(f"v_mul_f32 v{WF+r}, {f2u(0.005):#x}, v{WF+r}")
            a(f"v_min_f32 v{WF+r}, {f2u(20.0):#x}, v{WF+r}")
        a("s_mov_b64 exec, -1")
        a.label("K2_leak")
    a(f"""
    v_cvt_pk_bf16_f32 v{t2}, 0, v{t2}
    v_ashrrev_i32 v{t0}, 31, v{t2}
    v_or_b32 v{t0}, 0x80000000, v{t0}
    v_xor_b32 v{t2}, v{t2}, v{t0}
    v_and_b32 v{t2}, 0xffff0000, v{t2}
    s_sub_u32 s5, 0xffff, s3
    v_or_b32 v{t2}, s5, v{t2}      ; key
    ds_write_b32 v{t4}, v{t2}
    """)
    for r in range(4): a(f"v_cvt_pk_bf16_f32 v{PK+r}, v{WF+8+2*r}, v{WF+8+2*r+1}")
    a(f"""
    buffer_store_dwordx4 v[{PK}:{PK+3}], v{vWL}, s[20:23], s4 offen sc1
    """)
    for r in range(4):
        a(f"v_min_u32 v{PK+4+r}, -2, v{PK+4+r}")
        a(f"v_min_u32 v{ST+4+r}, -2, v{ST+4+r}")
    a(f"""
    s_waitcnt lgkmcnt(0)
    s_barrier
    ds_read_b32 v{t1}, v{t3}
    s_waitcnt lgkmcnt(0)
    v_cmp_gt_u32 vcc, v{t1}, v{t2}
    v_cmp_eq_u32 s[36:37], v{t1}, v{t2}
    s_and_b32 s38, vcc_lo, 0xff
    s_bcnt1_i32_b32 s38, s38       ; rank
    """)
    st(5, False); st(5, True); st(0, 2); st(1, 2); st(2, 2); st(3, 2); st(4, 2); st(5, 2)
    a(f"""
    s_cmp_gt_u32 s38, 1
    s_cbranch_scc1 K2_pub
    s_lshl_b32 s34, s7, 9
    s_lshl_b32 s5, s38, 11
    s_add_u32 s34, s34, s5
    s_add_u32 s34, s34, {WS_H:#x}
    buffer_store_dwordx4 v[{ST+4}:{ST+7}], v{vWL}, s[8:11], s34 offen sc1
    s_cmp_lg_u32 s38, 0
    s_cbranch_scc1 K2_pub0
    v_cndmask_b32 v{ST+1}, v{t1}, 0, s[36:37]
    v_mov_b32 v{ST}, v{t2}
    s_lshl_b32 s5, s2, {G.KS_LOG}
    s_add_u32 s5, s5, {WS_KEY:#x}
    v_lshlrev_b32 v{t0}, 14, v0
    """)
    for mod in ("quad_perm:[1,0,3,2]", "quad_perm:[2,3,0,1]", "row_half_mirror"):
        a(f"v_max_u32_dpp v{ST+1}, v{ST+1}, v{ST+1} {mod} row_mask:0xf bank_mask:0xf")
    a(f"""
    v_xor_b32 v{ST+1}, 0x800, v{ST+1}
    s_mov_b64 exec, {0xff if KREP else 1}
    buffer_store_dwordx2 v[{ST}:{ST+1}], v{t0}, s[8:11], s5 offen sc1
    s_mov_b64 exec, -1
    """)
    a.label("K2_pub0")
    a(f"""
    s_waitcnt vmcnt(0)
    buffer_store_dwordx4 v[{PK+4}:{PK+7}], v{vWL}, s[8:11], s34 offen offset:1024 sc1
    """)
    a.label("K2_pub")
    if 'amp' in dbg: a('s_memrealtime s[96:97]'); a('s_waitcnt lgkmcnt(0)')
    st(1, 2)
    def fin():
        if G.STAMP: a("s_waitcnt vmcnt(0)")
        stamp(a, 6)
        if G.STAMP: a("s_mov_b32 s91, s30")
        stamp_out(a, 1, 8, "s6", WF)
        a("s_endpgm")
    a(f"""
    s_cmp_ge_u32 s2, 144
    s_cbranch_scc1 K2_fin
    """)
    LEAD = 's6, 0' if 'lead0' in dbg else 's38, 2'
    AFR = V
    KY = K; Y = K + 8; BX = V + 32; AC = K + 16
    a(f"""
    s_setprio 0
    v_bfe_u32 v{t0}, v0, 2, 2
    v_lshrrev_b32 v{t4}, 4, v0           ; g
    v_lshl_add_u32 v{t0}, v{t4}, 3, v{t0}
    v_lshlrev_b32 v{t0}, 5, v{t0}
    v_and_b32 v{t1}, 3, v0
    v_lshl_add_u32 v{t0}, v{t1}, 3, v{t0}
    v_add_u32 v{t0}, s74, v{t0}
    """)
    for sx in range(7):
        for half in range(2):
            d = AFR + 4 * sx + 2 * half
            a(f"ds_read_b64_tr_b16 v[{d}:{d+1}], v{t0} offset:{sx*1024 + half*128}")
    a(f"""
    v_and_b32 v{t3}, 1, v0
    v_lshlrev_b32 v{vPW}, 6, v{t3}
    v_lshl_add_u32 v{vPW}, v{t4}, 4, v{vPW}
    s_lshl_b32 s5, s6, 7
    s_add_u32 s5, s5, {L_RED:#x}
    v_add_u32 v{vPW}, s5, v{vPW}
    v_and_b32 v{vPR}, 31, v0
    v_lshlrev_b32 v{vPR}, 2, v{vPR}      ; (lane&31)*4
    v_lshrrev_b32 v{vOR}, 5, v0
    v_lshl_add_u32 v{vOR}, v{vOR}, 14, v{vPR}
    s_cmp_lg_u32 {LEAD}
    s_cbranch_scc1 K2_nokey
    v_lshlrev_b32 v{t1}, {G.KS_LOG}, v0
    s_and_b32 s5, s2, {7 if KREP else 0}
    s_lshl_b32 s5, s5, 14
    s_add_u32 s5, s5, {WS_KEY:#x}
    s_add_u32 s79, s5, {64 << G.KS_LOG}
    s_add_u32 s80, s5, {128 << G.KS_LOG}
    s_add_u32 s81, s5, {192 << G.KS_LOG}
    s_mov_b32 s36, 0
    """)
    KZ = V + 60 - 8 * 0
    def poll_loop(name, issue, nld):
        K2R = X[0]
        def chk(b):
            a(f"""
            v_min3_u32 v{Y}, v{b}, v{b+1}, v{b+2}
            v_min3_u32 v{Y+1}, v{b+3}, v{b+4}, v{b+5}
            v_min3_u32 v{Y}, v{Y}, v{b+6}, v{b+7}
            v_min_u32 v{Y}, v{Y}, v{Y+1}
            v_cmp_eq_u32 vcc, 0, v{Y}
            """)
        sl = OPT.get('psl', 3)
        issue(KY)
        a(f"s_sleep {sl}")
        a.label(f"{name}_l")
        issue(K2R)
        a(f"s_waitcnt vmcnt({nld})")
        chk(KY)
        a(f"s_cbranch_vccz {name}_ok")
        issue(KY)
        a(f"s_waitcnt vmcnt({nld})")
        chk(K2R)
        a(f"""
        s_cbranch_vccz {name}_ok2
        s_add_u32 s36, s36, 1
        s_cmp_lt_u32 s36, 0x40000
        s_cbranch_scc1 {name}_l
        """)
        a.label(f"{name}_ok2")
        for r in range(0, 8, 2): a(f"v_pk_mov_b32 v[{KY+r}:{KY+r+1}], v[{K2R+r}:{K2R+r+1}], v[{K2R+r}:{K2R+r+1}] op_sel:[0,1]")
        a.label(f"{name}_ok")
    def kissue(b):
        for k, sr in enumerate(("s5", "s79", "s80", "s81")):
            a(f"buffer_load_dwordx2 v[{b+2*k}:{b+2*k+1}], v{t1}, s[8:11], {sr} offen sc1")
    if int(OPT.get('kd', 12)): a(f"s_sleep {OPT.get('kd', 12)}")
    poll_loop("K2_kp", kissue, 4)
    a.label("K2_kok")
    st(2, 2)
    if FS: a("s_mov_b32 s30, s36")
    B1, B2 = Y + 4, Y + 5
    a(f"""
    v_max_u32 v{B1}, v{KY}, v{KY+2}
    v_min_u32 v{B2}, v{KY}, v{KY+2}
    v_max3_u32 v{B2}, v{B2}, v{KY+1}, v{KY+3}
    v_max_u32 v{Y}, v{KY+4}, v{KY+6}
    v_min_u32 v{Y+1}, v{KY+4}, v{KY+6}
    v_max3_u32 v{Y+1}, v{Y+1}, v{KY+5}, v{KY+7}
    v_min_u32 v{Y+2}, v{B1}, v{Y}
    v_max_u32 v{B1}, v{B1}, v{Y}
    v_max3_u32 v{B2}, v{B2}, v{Y+1}, v{Y+2}
    v_mov_b32 v{Y}, v{B1}
    """)
    wave_max_u32(a, Y, Y + 1)
    a(f"""
    v_cmp_eq_u32 vcc, v{B1}, v{Y}
    v_cndmask_b32 v{B1}, v{B1}, v{B2}, vcc
    """)
    wave_max_u32(a, B1, Y + 1)
    a(f"""
    v_readfirstlane_b32 s40, v{Y}
    v_readfirstlane_b32 s41, v{B1}
    s_andn2_b32 s42, 0x7ff, s40
    s_andn2_b32 s43, 0x7ff, s41
    s_lshr_b32 s50, s42, 3
    s_lshr_b32 s51, s43, 3
    s_lshl_b32 s50, s50, 12
    s_lshl_b32 s51, s51, 12
    s_andn2_b32 s52, 0x800, s40
    s_andn2_b32 s53, 0x800, s41
    s_add_u32 s50, s50, s52
    s_add_u32 s51, s51, s53
    s_lshl_b32 s42, s42, 10
    s_lshl_b32 s43, s43, 10
    """)
    a.label("K2_nokey")
    a(f"""
    s_cmp_ge_u32 s2, 112
    s_cbranch_scc1 K2_down
    s_cmp_lg_u32 {LEAD}
    s_cbranch_scc1 K2_up1
    s_add_u32 s50, s50, {WS_H:#x}
    s_add_u32 s51, s51, {WS_H:#x}
    s_mov_b32 s36, 0
    """)
    a.label("K2_rows")
    a(f"""
    buffer_load_dwordx4 v[{KY}:{KY+3}], v{vWL}, s[8:11], s50 offen sc1
    buffer_load_dwordx4 v[{KY+4}:{KY+7}], v{vWL}, s[8:11], s51 offen sc1
    s_add_u32 s36, s36, 1
    s_waitcnt vmcnt(1)
    ds_write_b128 v{vWL}, v[{KY}:{KY+3}] offset:{L_XS}
    v_max3_u32 v{Y}, v{KY}, v{KY+1}, v{KY+2}
    s_waitcnt vmcnt(0)
    ds_write_b128 v{vWL}, v[{KY+4}:{KY+7}] offset:{L_XS + 1040}
    v_max3_u32 v{Y+1}, v{KY+3}, v{KY+4}, v{KY+5}
    v_max3_u32 v{Y}, v{Y}, v{KY+6}, v{KY+7}
    v_max_u32 v{Y}, v{Y}, v{Y+1}
    v_cmp_eq_u32 vcc, -1, v{Y}
    s_cbranch_vccz K2_up1
    s_cmp_lt_u32 s36, 0x40000
    s_cbranch_scc1 K2_rows
    """)
    a.label("K2_up1")
    st(3, 2)
    a(f"""
    v_mul_u32_u24 v{t0}, 1040, v{t3}
    v_lshl_add_u32 v{t0}, v{t4}, 4, v{t0}
    s_lshr_b32 s5, s6, 1
    s_lshl_b32 s5, s5, 8
    v_add_u32 v{t0}, s5, v{t0}
    s_waitcnt lgkmcnt(0)
    s_barrier
    """)
    for sx in range(4):
        a(f"ds_read_b128 v[{BX+4*sx}:{BX+4*sx+3}], v{t0} offset:{L_XS + 64*sx}")
    for sx in range(4):
        a(f"s_waitcnt lgkmcnt({3-sx})")
        c = "0" if sx == 0 else f"v[{AC}:{AC+3}]"
        a(f"v_mfma_f32_16x16x32_bf16 v[{AC}:{AC+3}], v[{AFR+4*sx}:{AFR+4*sx+3}], v[{BX+4*sx}:{BX+4*sx+3}], {c}")
    a(f"""
    ds_write_b128 v{vPW}, v[{AC}:{AC+3}]
    s_waitcnt lgkmcnt(0)
    s_barrier
    s_cmp_lg_u32 {LEAD}
    s_cbranch_scc1 K2_fin
    """)
    def red_read():
        a(f"v_add_u32 v{t0}, {L_RED:#x}, v{vPR}")
        a("s_waitcnt vmcnt(0)")
        for k in range(4):
            a(f"ds_read2_b32 v[{KY+2*k}:{KY+2*k+1}], v{t0} offset0:{64*k} offset1:{64*k+32}")
        a("s_waitcnt lgkmcnt(0)")
        a(f"v_pk_add_f32 v[{KY}:{KY+1}], v[{KY}:{KY+1}], v[{KY+2}:{KY+3}]")
        a(f"v_pk_add_f32 v[{KY+4}:{KY+5}], v[{KY+4}:{KY+5}], v[{KY+6}:{KY+7}]")
        a(f"v_pk_add_f32 v[{KY}:{KY+1}], v[{KY}:{KY+1}], v[{KY+4}:{KY+5}]")
    st(4, 2)
    red_read()
    a(f"""
    v_cvt_pk_bf16_f32 v{KY}, 0, v{KY}
    v_cvt_pk_bf16_f32 v{KY+1}, 0, v{KY+1}
    """)
    sigmoid(a, KY + 2, KY, KY + 3)
    a(f"""
    v_mul_f32 v{KY}, v{KY}, v{KY+2}
    v_cvt_pk_bf16_f32 v{KY}, 0, v{KY}
    v_mul_f32 v{KY}, v{KY}, v{KY+1}
    v_cvt_pk_bf16_f32 v{KY}, 0, v{KY}
    v_or_b32 v{KY}, 1, v{KY}
    s_lshl_b32 s5, s76, 7
    s_add_u32 s5, s5, {WS_GU:#x}
    """)
    if GREP:
        for k in range(4):
            a(f"buffer_store_dword v{KY}, v{vOR}, s[8:11], s5 offen sc1")
            if k < 3: a("s_add_u32 s5, s5, 0x8000")
    else:
        a(f"""
        s_mov_b32 exec_hi, 0
        buffer_store_dword v{KY}, v{vPR}, s[8:11], s5 offen sc1
        s_mov_b64 exec, -1
        """)
    a(f"""
    s_branch K2_fin
    """)
    a.label("K2_down")
    HH, NN, GT, OO, RS = Y + 6, Y + 7, AC + 4, AC + 5, AC + 6
    a(f"""
    s_cmp_lg_u32 {LEAD}
    s_cbranch_scc1 K2_dn1
    v_bfe_u32 v{t0}, v0, 4, 1
    v_cmp_eq_u32 vcc, 0, v{t0}
    v_mov_b32 v{t0}, s43
    v_mov_b32 v{t1}, s42
    v_cndmask_b32 v{OO}, v{t0}, v{t1}, vcc
    v_and_b32 v{t0}, 15, v0
    v_lshl_add_u32 v{OO}, v{t0}, 1, v{OO}
    s_lshl_b32 s44, s77, 5
    v_mov_b32 v{t1}, s51
    v_mov_b32 v{RS}, s50
    v_cndmask_b32 v{RS}, v{t1}, v{RS}, vcc
    v_and_b32 v{t0}, 14, v0
    v_lshl_add_u32 v{RS}, v{t0}, 1, v{RS}
    s_add_u32 s52, s44, {WS_H:#x}
    v_mov_b32 v{t0}, s41
    v_mov_b32 v{t1}, s40
    v_cndmask_b32 v{GT}, v{t0}, v{t1}, vcc
    v_and_b32 v{GT}, 0xffff0000, v{GT}
    v_ashrrev_i32 v{t0}, 31, v{GT}
    v_not_b32 v{t0}, v{t0}
    v_or_b32 v{t0}, 0x80000000, v{t0}
    v_xor_b32 v{GT}, v{GT}, v{t0}
    v_and_b32 v{GT}, 0xffff0000, v{GT}
    """)
    sigmoid(a, GT, GT, t0)
    a(f"v_cvt_pk_bf16_f32 v{GT}, 0, v{GT}")
    a.label("K2_dn1")
    a(f"""
    s_mul_i32 s5, s6, 1792
    s_and_b32 s37, s2, {7 if GREP else 0}
    s_lshl_b32 s37, s37, 14
    s_add_u32 s5, s5, s37
    s_add_u32 s5, s5, {WS_GU:#x}
    v_min_u32 v{t1}, 47, v0
    v_lshlrev_b32 v{t1}, 4, v{t1}
    s_lshl_b32 s37, s6, 10
    s_add_u32 s37, s37, {L_GB:#x}
    v_lshrrev_b32 v{t0}, 3, v0
    v_lshlrev_b32 v{vPL}, 5, v{t0}
    v_and_b32 v{t0}, 3, v0
    v_lshl_add_u32 v{vPL}, v{t0}, 3, v{vPL}
    v_bfe_u32 v{t0}, v0, 2, 1
    v_mul_u32_u24 v{t0}, 464, v{t0}
    v_add3_u32 v{vPL}, v{vPL}, v{t0}, s37
    v_mul_u32_u24 v{vOW}, 464, v{t3}
    v_lshl_add_u32 v{vOW}, v{t4}, 4, v{vOW}
    v_add_u32 v{vOW}, s37, v{vOW}
    s_mov_b32 s45, 0x07060302
    s_mov_b32 s36, 0
    """)
    def gissue(b):
        a(f"buffer_load_dwordx4 v[{b}:{b+3}], v{vWL}, s[8:11], s5 offen sc1")
        a(f"buffer_load_dwordx4 v[{b+4}:{b+7}], v{t1}, s[8:11], s5 offen offset:1024 sc1")
    if 'nogb' not in dbg:
        a(f"""
        s_barrier
        s_cmp_lg_u32 {LEAD}
        s_cbranch_scc1 K2_hw
        """)
        a.label("K2_hl")
        a(f"""
        buffer_load_dword v{NN}, v{RS}, s[8:11], s52 offen sc1
        buffer_load_dword v{HH}, v{RS}, s[8:11], s52 offen offset:1024 sc1
        s_add_u32 s36, s36, 1
        s_waitcnt vmcnt(0)
        v_max_u32 v{t0}, v{HH}, v{NN}
        v_cmp_eq_u32 vcc, -1, v{t0}
        s_cbranch_vccz K2_hok
        s_cmp_lt_u32 s36, 0x40000
        s_cbranch_scc1 K2_hl
        """)
        a.label("K2_hok")
        a(f"""
        v_and_b32 v{t0}, 1, v0
        v_lshlrev_b32 v{t0}, 4, v{t0}
        v_lshrrev_b32 v{HH}, v{t0}, v{HH}
        v_lshrrev_b32 v{NN}, v{t0}, v{NN}
        s_mov_b32 s36, 0
        s_sleep {max(int(OPT.get('gd', 28)) - 14, 0)}
        s_branch K2_hx
        """)
        a.label("K2_hw")
        a(f"s_sleep {OPT.get('gd', 28)}")
        a.label("K2_hx")
    poll_loop("K2_gp", gissue, 2)
    a.label("K2_gok")
    st(4, 2)
    a(f"""
    v_perm_b32 v{Y}, v{KY+1}, v{KY}, s45
    v_perm_b32 v{Y+1}, v{KY+3}, v{KY+2}, s45
    v_perm_b32 v{Y+2}, v{KY+5}, v{KY+4}, s45
    v_perm_b32 v{Y+3}, v{KY+7}, v{KY+6}, s45
    ds_write_b64 v{vPL}, v[{Y}:{Y+1}]
    s_mov_b32 exec_hi, 0xffff
    ds_write_b64 v{vPL}, v[{Y+2}:{Y+3}] offset:256
    s_mov_b64 exec, -1
    """)
    for sx in range(7):
        a(f"ds_read_b128 v[{BX+4*sx}:{BX+4*sx+3}], v{vOW} offset:{64*sx}")
    for sx in range(7):
        a(f"s_waitcnt lgkmcnt({6-sx})")
        c = "0" if sx == 0 else f"v[{AC}:{AC+3}]"
        a(f"v_mfma_f32_16x16x32_bf16 v[{AC}:{AC+3}], v[{AFR+4*sx}:{AFR+4*sx+3}], v[{BX+4*sx}:{BX+4*sx+3}], {c}")
    a(f"""
    ds_write_b128 v{vPW}, v[{AC}:{AC+3}]
    s_waitcnt lgkmcnt(0)
    s_barrier
    s_cmp_lg_u32 {LEAD}
    s_cbranch_scc1 K2_fin
    """)
    red_read()
    a(f"""
    v_add_f32 v{KY}, v{KY}, v{KY+1}
    v_lshlrev_b32 v{HH}, 16, v{HH}
    v_lshlrev_b32 v{NN}, 16, v{NN}
    v_cvt_pk_bf16_f32 v{KY}, 0, v{KY}
    v_mul_f32 v{KY}, v{KY}, v{GT}
    v_cvt_pk_bf16_f32 v{KY}, 0, v{KY}
    v_add_f32 v{KY}, v{KY}, v{NN}
    v_cvt_pk_bf16_f32 v{KY}, 0, v{KY}
    v_add_f32 v{KY}, v{KY}, v{HH}
    v_cvt_pk_bf16_f32 v{KY}, v{KY}, v{KY}
    s_mov_b32 exec_hi, 0
    buffer_store_short v{KY}, v{OO}, s[20:23], s44 offen sc1
    s_mov_b64 exec, -1
    """)
    a.label("K2_fin")
    if 'lite' in dbg:
        a(f"""
        s_waitcnt vmcnt(0)
        s_memrealtime s[92:93]
        s_lshl_b32 s3, s2, 3
        s_add_u32 s3, s3, s6
        s_lshl_b32 s3, s3, 3
        s_add_u32 s3, s3, {WS_STAMP:#x}
        s_waitcnt lgkmcnt(0)
        v_mov_b32 v{S1}, s90
        v_mov_b32 v{S1+1}, s92
        s_mov_b64 exec, 1
        buffer_store_dwordx2 v[{S1}:{S1+1}], v{SP}, s[8:11], s3 offen
        """)
    if 'amp' in dbg:
        q = int(OPT['amp'])
        expr = {0: None, 1: ("s83", "s90"), 2: ("s84", "s90"), 3: ("s85", "s90"), 4: ("s86", "s90"), 5: ("s88", "s90"), 6: ("s94", "s90"), 7: ("s98", "s94"), 8: ("s96", "s98")}[q]
        a(f"""
        s_or_b32 s5, s2, s6
        s_cmp_lg_u32 s5, 0
        s_cbranch_scc1 K2_amp_end
        """)
        if expr: a(f"s_sub_u32 s85, {expr[0]}, {expr[1]}")
        else: a("s_mov_b32 s85, 0")
        a(f"""
        s_min_u32 s85, s85, 5000
        s_lshl_b32 s85, s85, 1
        s_add_u32 s85, s85, 600
        s_add_u32 s85, s85, s96
        """)
        a.label("K2_amp")
        a(f"""
        s_memrealtime s[92:93]
        s_waitcnt lgkmcnt(0)
        s_sub_u32 s86, s92, s85
        s_cmp_lt_i32 s86, 0
        s_cbranch_scc1 K2_amp
        """)
        a.label("K2_amp_end")
    if G.STAMP: a("s_waitcnt vmcnt(0)")
    stamp(a, 6)
    if G.STAMP: a("s_mov_b32 s91, s30")
    stamp_out(a, 1, 8, "s6", WF)
    dstamp(a, 1, True, 240)
    a.label("K2_end")
    a("s_endpgm")
    if 'nopf' not in dbg:
        a.label("K2_side")
        a(f"buffer_load_dword v{vPD}, v{vPA}, s[12:15], s38 offen")
        a("s_branch K2_sideb")
        a.label("K2_stg")
        for e in range(2):
            a(f"""
            s_mov_b32 m0, s78
            s_add_u32 s78, s78, 1024
            buffer_load_dwordx4 v{vFS}, s[68:71], s72 offen lds
            s_add_u32 s72, s72, s73
            """)
            if e == 0:
                a("s_bitcmp1_b32 s42, s29"); a("s_cbranch_scc0 K2_stgb")
        a("s_branch K2_stgb")
    a.label("K2_qspin")
    a(f"""
    s_mov_b32 s36, 0
    """)
    a.label("K2_qspin1")
    a(f"""
    s_sleep 2
    buffer_load_dword v{t0}, v{SP}, s[8:11], s45 offen sc1
    s_add_u32 s36, s36, 1
    s_waitcnt vmcnt(0)
    v_cmp_ne_u32 vcc, s58, v{t0}
    s_cbranch_vccz K2_qback
    s_cmp_lt_u32 s36, 0x40000
    s_cbranch_scc1 K2_qspin1
    s_branch K2_qback
    """)
    for k, off in enumerate(spins):
        a.label(f"K2_spin{k}")
        a(f"""
        s_sleep 1
        ds_read_b32 v{vFV}, v{vFR} offset:{off}
        s_waitcnt lgkmcnt(0)
        v_cmp_gt_u32 vcc, s59, v{vFV}
        s_cbranch_vccnz K2_spin{k}
        s_branch K2_back{k}
        """)
```

```python
import sys, struct
sys.path.insert(0, "gen")
from asmlib import *

NAME = "sequential_preLN__grouped_kv_mqa__moe_arch_mod__prompt"
WS_Q    = 0x000000
WS_KV   = 0x260000
TS = 2176
WS_KEY  = 0x2C0000
KS_LOG = 6
REP = 8
WS_GU   = 0x2A0000
WS_FL   = 0x200000
WS_FQ   = 0x220000
WS_EP   = 0x227000
WS_SEL  = 0x228000
WS_YP   = 0x230000
WS_H    = 0x300000
WS_HN   = 0x500000
WS_WOF  = 0x780000
WS_SIZE = 0x800000
WS_STAMP = 0x700000
STAMP = False
ALIGN = True
DSTAMP = False
def set_dstamp(v):
    global DSTAMP
    DSTAMP = v
def dstamp(a, kid, end, vt):
    if not DSTAMP: return
    if not end:
        a("""
        s_memrealtime s[90:91]
        s_load_dwordx2 s[92:93], s[0:1], 88
        """)
        return
    a(f"""
    s_waitcnt vmcnt(0)
    s_memrealtime s[100:101]
    s_waitcnt lgkmcnt(0)
    s_cmp_lg_u32 s2, 5
    s_cbranch_scc1 DS_skip{kid}
    s_add_u32 s96, s92, {(3 - kid) * 512}
    s_addc_u32 s97, s93, 0
    s_mov_b32 s98, 256
    s_mov_b32 s99, 0x00020000
    s_mov_b64 s[94:95], exec
    s_mov_b64 exec, 1
    v_mov_b32 v{vt}, s90
    v_mov_b32 v{vt+1}, 0
    v_mov_b32 v{vt+2}, s100
    buffer_store_dword v{vt}, v{vt+1}, s[96:99], 0 offen offset:{8 * kid}
    buffer_store_dword v{vt+2}, v{vt+1}, s[96:99], 0 offen offset:{8 * kid + 4}
    s_getreg_b32 s89, hwreg(HW_REG_XCC_ID)
    v_mov_b32 v{vt}, s89
    buffer_store_dword v{vt}, v{vt+1}, s[96:99], 0 offen offset:{32 + 4 * kid}
    s_getreg_b32 s89, hwreg(HW_REG_HW_ID)
    v_mov_b32 v{vt+2}, s89
    buffer_store_dword v{vt+2}, v{vt+1}, s[96:99], 0 offen offset:{48 + 4 * kid}
    s_mov_b64 exec, s[94:95]
    """)
    a.label(f"DS_skip{kid}")
def set_stamp(v):
    global STAMP
    STAMP = v
def stamp(a, i):
    if not STAMP: return
    a(f"""
    s_memtime s[82:83]
    s_memrealtime s[100:101]
    s_waitcnt lgkmcnt(0)
    s_mov_b32 s{84+i}, s82
    s_mov_b32 s{92+i}, s100
    """)
def stamp_out(a, kid, srd_base, swave, vt):
    if not STAMP: return
    a(f"""
    s_mov_b64 exec, 1
    s_lshl_b32 s82, s2, 3
    s_add_u32 s82, s82, {swave}
    s_lshl_b32 s82, s82, 6
    s_add_u32 s82, s82, {WS_STAMP + kid * 0x20000:#x}
    v_mov_b32 v{vt}, 0
    """)
    for i in range(16):
        a(f"v_mov_b32 v{vt+1}, s{84+i}")
        a(f"buffer_store_dword v{vt+1}, v{vt}, s[{srd_base}:{srd_base+3}], s82 offen offset:{4*i}")
    a("s_mov_b64 exec, -1")

def f2u(x): return struct.unpack("<I", struct.pack("<f", x))[0]

def srd(a, d, lo, hi, size):
    a(f"""
    s_mov_b32 s{d}, s{lo}
    s_mov_b32 s{d+1}, s{hi}
    s_mov_b32 s{d+2}, {size:#x}
    s_mov_b32 s{d+3}, 0x00020000
    """)

def ln_scalars(a, vsum, vsq, vm, vrs, t0, t1, two_pass_var=False):
    a(f"v_mul_f32 v{t0}, {f2u(1/512):#x}, v{vsum}")
    a(f"v_mul_f32 v{t1}, {f2u(1/512):#x}, v{vsq}")
    if not two_pass_var:
        a(f"v_fma_f32 v{t1}, -v{t0}, v{t0}, v{t1}")
        a(f"v_max_f32 v{t1}, 0, v{t1}")
    a(f"""
    v_cvt_pk_bf16_f32 v{vm}, 0, v{t0}
    v_cvt_pk_bf16_f32 v{t1}, 0, v{t1}
    v_add_f32 v{t1}, {f2u(1e-5):#x}, v{t1}
    v_cvt_pk_bf16_f32 v{t1}, 0, v{t1}
    v_sqrt_f32 v{t1}, v{t1}
    v_cvt_pk_bf16_f32 v{t1}, 0, v{t1}
    v_rcp_f32 v{vrs}, v{t1}
    """)

def sum_swap(a, v, t, which):
    a(f"""
    v_mov_b32 v{t}, v{v}
    v_permlane{which}_swap_b32 v{t}, v{v}
    v_add_f32 v{v}, v{v}, v{t}
    """)

def gen_k1():
    a = Asm()
    X = 32
    ACC = 96
    AF = 116
    T = 148
    a(f"""
    s_cmp_ge_u32 s2, 256
    s_cbranch_scc1 K1_end
    """)
    stamp(a, 0)
    a(f"""
    s_load_dwordx4 s[24:27], s[0:1], 0
    s_load_dwordx4 s[28:31], s[0:1], 16
    s_load_dwordx2 s[32:33], s[0:1], 96
    s_load_dwordx2 s[44:45], s[0:1], 32
    s_and_b32 s3, s2, 7
    s_lshr_b32 s4, s2, 3
    s_and_b32 s5, s4, 7
    s_lshr_b32 s4, s4, 3
    s_lshl_b32 s3, s3, 2
    s_add_u32 s3, s3, s4
    v_lshrrev_b32 v1, 6, v0
    v_and_b32 v2, 63, v0           ; lane
    v_readfirstlane_b32 s6, v1     ; wave
    v_and_b32 v3, 15, v2           ; l & 15
    v_lshrrev_b32 v4, 4, v2        ; g
    s_lshl_b32 s7, s3, 6
    s_lshl_b32 s34, s6, 4
    s_add_u32 s7, s7, s34
    v_add_u32 v5, s7, v3           ; token
    v_lshlrev_b32 v6, 10, v5
    v_lshl_add_u32 v6, v4, 4, v6
    v_lshrrev_b32 v7, 3, v2        ; row_in
    v_and_b32 v8, 7, v2            ; slot
    v_and_b32 v9, 2, v7            ; ((row_in>>1)&1)<<1
    v_xor_b32 v8, v8, v9
    v_xor_b32 v9, 4, v8
    s_lshl_b32 s34, s6, 17
    s_lshl_b32 s35, s5, 7
    s_add_u32 s34, s34, s35
    v_lshlrev_b32 v7, 10, v7
    v_add_u32 v7, s34, v7
    v_lshl_add_u32 v10, v8, 4, v7
    v_lshl_add_u32 v11, v9, 4, v7
    s_waitcnt lgkmcnt(0)
    """)
    srd(a, 8, 24, 25, 0x200000)
    srd(a, 12, 26, 27, 0x80000)
    for s in range(16):
        a(f"buffer_load_dwordx4 v[{X+4*s}:{X+4*s+3}], v6, s[8:11], 0 offen offset:{64*s}")
    a("s_lshl_b32 s36, s6, 14")
    a("s_mov_b32 s37, 0")
    for i in range(16):
        a(f"s_add_u32 m0, s36, {i*1024}")
        a(f"buffer_load_dwordx4 v{10 + (i & 1)}, s[12:15], s37 offen lds")
        if i < 15: a(f"s_add_u32 s37, s37, 8192")
    a(f"""
    s_cmp_eq_u32 s5, 0
    s_cselect_b64 s[38:39], s[28:29], s[30:31]
    """)
    srd(a, 16, 38, 39, 0x4000)
    srd(a, 20, 32, 33, WS_SIZE)
    a(f"""
    s_cmp_gt_u32 s5, 1
    s_cbranch_scc1 K1_nokv
    v_lshlrev_b32 v12, 4, v0       ; tid*16
    s_lshl_b32 s36, s6, 10
    s_add_u32 s36, s36, 65536
    """)
    for i in range(4):
        a(f"s_add_u32 m0, s36, {i*4096}")
        a(f"s_mov_b32 s37, {i*4096}")
        a(f"buffer_load_dwordx4 v12, s[16:19], s37 offen lds")
    a.label("K1_nokv")
    srd(a, 40, 44, 45, 0x80000)
    a(f"""
    s_cmp_lt_u32 s6, 2
    s_cbranch_scc1 K1_nowo
    s_lshl_b32 s46, s2, 1
    s_and_b32 s47, s6, 1
    s_add_u32 s46, s46, s47
    s_lshr_b32 s47, s46, 6
    s_lshl_b32 s47, s47, 16
    s_bfe_u32 s48, s46, 0x10002
    s_lshl_b32 s48, s48, 15        ; s * 32 rows
    s_add_u32 s47, s47, s48
    s_bfe_u32 s48, s46, 0x30003
    s_lshl_b32 s48, s48, 7         ; w * 128 B
    s_add_u32 s47, s47, s48
    s_and_b32 s48, s46, 3
    s_lshl_b32 s48, s48, 5         ; t * 32 B
    s_add_u32 s47, s47, s48
    v_lshrrev_b32 v12, 1, v2
    v_lshlrev_b32 v12, 10, v12
    v_and_b32 v18, 1, v2
    v_lshl_add_u32 v12, v18, 4, v12
    s_lshl_b32 s48, s6, 10
    s_add_u32 m0, s48, {81920 - 2048}
    s_nop 0
    buffer_load_dwordx4 v12, s[40:43], s47 offen lds
    """)
    a.label("K1_nowo")
    a(f"""
    v_bfe_u32 v18, v2, 2, 2        ; r'
    v_and_b32 v19, 3, v2           ; c'
    v_lshl_add_u32 v20, v4, 3, v18 ; 8g + r'
    v_lshlrev_b32 v21, 7, v20
    v_lshl_add_u32 v21, v19, 3, v21   ; row*128 + 8c'
    v_lshrrev_b32 v22, 1, v18
    v_and_b32 v23, 1, v4
    v_lshl_or_b32 v22, v23, 1, v22 ; h
    """)
    for t in range(4):
        a(f"v_xor_b32 v23, {t}, v22")
        a(f"v_lshl_add_u32 v{13+t}, v23, 5, v21")
    a(f"""
    v_lshlrev_b32 v17, 5, v20
    v_lshl_add_u32 v17, v19, 3, v17
    v_add_u32 v17, 65536, v17
    v_mov_b32 v24, 0x3f803f80
    v_mov_b32 v25, 0
    v_mov_b32 v26, 0
    """)
    stamp(a, 1)
    a("s_waitcnt vmcnt(16)")
    stamp(a, 2)
    for r in range(64):
        a(f"v_dot2_f32_bf16 v25, v{X+r}, v24, v25")
        a(f"v_dot2_f32_bf16 v26, v{X+r}, v{X+r}, v26")
    for w in (16, 32):
        sum_swap(a, 25, 27, w)
        sum_swap(a, 26, 28, w)
    ln_scalars(a, 25, 26, 28, 30, 27, 29)
    for r in range(64):
        t = T + 2 * (r % 4)
        a(f"""
        v_lshlrev_b32 v{t}, 16, v{X+r}
        v_and_b32 v{t+1}, 0xffff0000, v{X+r}
        v_pk_add_f32 v[{t}:{t+1}], v[{t}:{t+1}], v[28:29] op_sel_hi:[1,0] neg_lo:[0,1] neg_hi:[0,1]
        v_cvt_pk_bf16_f32 v{t}, 0, v{t}
        v_cvt_pk_bf16_f32 v{t+1}, 0, v{t+1}
        v_pk_mul_f32 v[{t}:{t+1}], v[{t}:{t+1}], v[30:31] op_sel_hi:[1,0]
        v_cvt_pk_bf16_f32 v{X+r}, v{t}, v{t+1}
        """)
    stamp(a, 3)
    a("s_waitcnt vmcnt(0)")
    a("s_barrier")
    stamp(a, 4)
    a(f"""
    s_cmp_lt_u32 s6, 2
    s_cbranch_scc1 K1_nowo2
    s_lshl_b32 s48, s6, 10
    s_add_u32 s48, s48, {81920 - 2048 - 65536}
    v_add_u32 v12, s48, v17
    ds_read_b64_tr_b16 v[{T}:{T+1}], v12
    ds_read_b64_tr_b16 v[{T+2}:{T+3}], v12 offset:128
    s_lshl_b32 s46, s46, 10
    s_add_u32 s46, s46, {WS_WOF:#x}
    v_lshlrev_b32 v12, 4, v2
    s_waitcnt lgkmcnt(0)
    buffer_store_dwordx4 v[{T}:{T+3}], v12, s[20:23], s46 offen
    """)
    a.label("K1_nowo2")
    def rd1(u):
        s, t = u >> 2, u & 3
        for half in range(2):
            d = AF + 4 * (u & 7) + 2 * half
            a(f"ds_read_b64_tr_b16 v[{d}:{d+1}], v{13+t} offset:{s*4096 + half*512}")
    for u in range(6): rd1(u)
    for u in range(64):
        s, t = u >> 2, u & 3
        if u + 6 < 64: rd1(u + 6)
        a(f"s_waitcnt lgkmcnt({2 * min(6, 63 - u)})")
        d = AF + 4 * (u & 7)
        c = "0" if s == 0 else f"v[{ACC+4*t}:{ACC+4*t+3}]"
        a(f"v_mfma_f32_16x16x32_bf16 v[{ACC+4*t}:{ACC+4*t+3}], v[{d}:{d+3}], v[{X+4*s}:{X+4*s+3}], {c}")
    a(f"""
    s_lshl_b32 s35, s5, 7
    v_lshlrev_b32 v7, 10, v5
    v_lshl_add_u32 v7, v4, 3, v7
    v_add_u32 v7, s35, v7
    """)
    for r in range(16): a(f"v_cvt_pk_bf16_f32 v{ACC+r}, 0, v{ACC+r}")
    for r in range(16): a(f"v_mul_f32 v{ACC+r}, {f2u(0.25 * 1.4426950408889634):#x}, v{ACC+r}")
    for t in range(4):
        a(f"v_cvt_pk_bf16_f32 v{T+2*t}, v{ACC+4*t}, v{ACC+4*t+1}")
        a(f"v_cvt_pk_bf16_f32 v{T+2*t+1}, v{ACC+4*t+2}, v{ACC+4*t+3}")
        a(f"buffer_store_dwordx2 v[{T+2*t}:{T+2*t+1}], v7, s[20:23], 0 offen offset:{32*t}")
    stamp(a, 5)
    if STAMP: a("s_waitcnt vmcnt(0)")
    stamp(a, 6)
    stamp_out(a, 0, 20, "s6", 158)
    a(f"""
    s_cmp_gt_u32 s5, 1
    s_cbranch_scc1 K1_end
    """)
    KV = ACC + 16
    for hb in range(2):
        for s8 in range(8):
            s = hb * 8 + s8
            for half in range(2):
                d = AF + 4 * s8 + 2 * half
                a(f"ds_read_b64_tr_b16 v[{d}:{d+1}], v17 offset:{s*1024 + half*128}")
        a("s_waitcnt lgkmcnt(0)")
        a("s_cmp_eq_u32 s5, 0")
        a(f"s_cbranch_scc0 K1_v{hb}")
        for s8 in range(8):
            s = hb * 8 + s8
            c = "0" if s == 0 else f"v[{KV}:{KV+3}]"
            a(f"v_mfma_f32_16x16x32_bf16 v[{KV}:{KV+3}], v[{AF+4*s8}:{AF+4*s8+3}], v[{X+4*s}:{X+4*s+3}], {c}")
        a(f"s_branch K1_j{hb}")
        a.label(f"K1_v{hb}")
        for s8 in range(8):
            s = hb * 8 + s8
            c = "0" if s == 0 else f"v[{KV}:{KV+3}]"
            a(f"v_mfma_f32_16x16x32_bf16 v[{KV}:{KV+3}], v[{X+4*s}:{X+4*s+3}], v[{AF+4*s8}:{AF+4*s8+3}], {c}")
        a.label(f"K1_j{hb}")
    a(f"""
    v_lshlrev_b32 v7, 5, v5
    v_lshl_add_u32 v7, v4, 3, v7
    v_add_u32 v7, {WS_K:#x}, v7
    s_lshl_b32 s35, s7, 5
    s_add_u32 s35, s35, {WS_VT:#x}
    v_and_b32 v8, 1, v4
    v_lshlrev_b32 v8, 8, v8
    v_lshl_add_u32 v8, v3, 4, v8
    v_lshrrev_b32 v9, 1, v4
    v_lshl_add_u32 v8, v9, 3, v8
    v_add_u32 v8, s35, v8
    s_cmp_eq_u32 s5, 0
    s_cselect_b64 vcc, -1, 0
    v_cndmask_b32 v7, v8, v7, vcc
    v_cvt_pk_bf16_f32 v{T}, v{KV}, v{KV+1}
    v_cvt_pk_bf16_f32 v{T+1}, v{KV+2}, v{KV+3}
    buffer_store_dwordx2 v[{T}:{T+1}], v7, s[20:23], 0 offen
    """)
    a.label("K1_end")
    a("s_endpgm")
    a.fix()
    return a.text(), 160, 81920 + 2048

KERNELS = []

def build(kernels, path):
    hdr = open(f"cdna_kernels/{NAME}.s.ref").read().split("\n")
    out = []
    for ln in hdr:
        if ln.startswith("; Override") : break
        out.append(ln)
    for (name, text, vg, lds, grid, block) in kernels:
        out.append(f"; @launch kernel={name} grid=({grid},1,1) block=({block},1,1) lds={lds}")
    out.append('.amdgcn_target "amdgcn-amd-amdhsa--gfx950"')
    seen = set()
    for (name, text, vg, lds, grid, block) in kernels:
        if name in seen: continue
        seen.add(name)
        out.append(kernel_header(name) + text)
    out.append("K_all_end:")
    seen = set()
    for (name, text, vg, lds, grid, block) in kernels:
        if name in seen: continue
        seen.add(name)
        out.append(kernel_desc(name, vg))
    open(path, "w").write("\n".join(out))

if __name__ == "__main__":
    t1, v1, l1 = gen_k1()
    ks = [("k1_kernel", t1, v1, l1, 256, 256)]
    build(ks, sys.argv[1] if len(sys.argv) > 1 else f"cdna_kernels/{NAME}.s")


_jit = [0]
def jitter(a, dbg, k, reg="s2", n=3):
    if 'jit' not in dbg: return
    _jit[0] += 1
    a(f"""
    s_mul_i32 s99, s2, {37 + 2 * k}
    s_add_u32 s99, s99, {reg}
    s_lshr_b32 s99, s99, 2
    s_and_b32 s99, s99, 7
    s_cmp_lg_u32 s99, {k & 7}
    s_cbranch_scc1 JIT{_jit[0]}
    """)
    for _ in range(n): a("s_sleep 100")
    a.label(f"JIT{_jit[0]}")
```

```python
from gen import *
import gen as G
import re

L_X = 0; L_W = 65536; L_KV = 131072; L_WOT = L_KV + 16384; L_DN = L_WOT + 2048; L1_TOTAL = L_DN + 64
L_Q0 = 0x6000

def gen_p1(a, dbg=''):
    SC = ' sc1'
    def p1(i):
        if 'p1st' in dbg: stamp(a, i)
        if 'amp' in dbg: a(f's_memrealtime s[100:101]'); a('s_waitcnt lgkmcnt(0)'); a(f's_mov_b32 s{82+i}, s100')
    FST = int(dict(x.split('=') for x in dbg.split(',') if '=' in x).get('fst', 0))
    WB = int(dict(x.split('=') for x in dbg.split(',') if '=' in x).get('wb', 5))
    WD = int(dict(x.split('=') for x in dbg.split(',') if '=' in x).get('wd', 9))
    PB = int(dict(x.split('=') for x in dbg.split(',') if '=' in x).get('pb', 99))
    FLS = int(dict(x.split('=') for x in dbg.split(',') if '=' in x).get('fls', 4))
    EPOCH = f"""
    s_add_u32 s56, s32, {WS_EP:#x}
    s_addc_u32 s57, s33, 0
    s_load_dword s58, s[56:57], 0
    """
    X = 32
    ACC = 96
    AF = 116
    T = 148
    a(f"""
    s_cmp_lt_u32 s2, 256
    s_cbranch_scc1 K1_go
    s_endpgm
    """)
    a.label("K1_go")
    jitter(a, dbg, 1)
    stamp(a, 0)
    if ('lite' in dbg or 'amp' in dbg): a('s_memrealtime s[90:91]')
    dstamp(a, 0, False, 200)
    a(f"""
    s_load_dwordx8 s[24:31], s[0:1], 0
    s_load_dwordx2 s[44:45], s[0:1], 32
    s_load_dwordx2 s[32:33], s[0:1], 96
    """)
    if 'nocodepf' not in dbg:
        a(f"""
        s_cmp_ge_u32 s2, 16
        s_cbranch_scc1 K1_nocp
        v_subrev_u32 v30, 256, v0
        v_cmp_gt_u32 vcc, (K_all_end-k1_kernel+127)/128, v30
        s_and_saveexec_b64 s[62:63], vcc
        s_cbranch_execz K1_cpx
        s_getpc_b64 s[60:61]
        """)
        a.label("K1_pc")
        a(f"""
        s_sub_u32 s60, s60, K1_pc-k1_kernel
        s_subb_u32 s61, s61, 0
        v_lshlrev_b32 v30, 7, v30
        global_load_dword v31, v30, s[60:61]
        """)
        a.label("K1_cpx")
        a("s_mov_b64 exec, s[62:63]")
        a.label("K1_nocp")
    a(f"""
    s_and_b32 s3, s2, 7
    s_lshr_b32 s4, s2, 3
    s_and_b32 s5, s4, 7
    s_lshr_b32 s4, s4, 3           ; tb & 3
    s_lshl_b32 s3, s3, 2
    s_add_u32 s3, s3, s4
    v_lshrrev_b32 v1, 6, v0
    v_and_b32 v2, 63, v0           ; lane
    v_readfirstlane_b32 s6, v1     ; wave
    v_and_b32 v3, 15, v2           ; l & 15
    v_lshrrev_b32 v6, 2, v2
    v_lshrrev_b32 v4, 4, v2        ; g
    v_bfe_u32 v18, v2, 2, 2        ; r'
    v_and_b32 v19, 3, v2           ; c'
    v_lshl_add_u32 v20, v4, 3, v18 ; 8g + r'
    v_lshlrev_b32 v17, 5, v20
    v_lshl_add_u32 v17, v19, 3, v17
    s_cmp_ge_u32 s6, 4
    s_cbranch_scc1 K1_loader
    """)
    a(f"""
    s_load_dwordx2 s[48:49], s[0:1], 96
    s_load_dwordx2 s[40:41], s[0:1], 0
    s_load_dwordx8 s[60:67], s[0:1], 48
    s_load_dwordx2 s[46:47], s[0:1], 80
    s_lshl_b32 s7, s3, 6
    s_lshl_b32 s34, s6, 4
    s_add_u32 s7, s7, s34
    v_add_u32 v5, s7, v3           ; token
    v_lshrrev_b32 v7, 4, v2
    v_and_b32 v7, 2, v7
    v_xor_b32 v7, v7, v19
    v_lshlrev_b32 v6, 10, v6
    v_lshl_add_u32 v6, v7, 4, v6
    s_lshl_b32 s81, s6, 14
    s_lshl_b32 s80, s7, 10
    s_lshl_b32 s79, s5, 7
    s_waitcnt lgkmcnt(0)
    """)
    srd(a, 16, 24, 25, 0x200000)
    a(f"""
    s_add_u32 s42, s48, {WS_EP:#x}
    s_addc_u32 s43, s49, 0
    s_load_dword s58, s[42:43], 0
    """)
    def xloop(name, lo, hi):
        if lo >= hi: return
        a(f"s_mov_b32 s29, {lo}")
        a.label(name)
        a(f"""
        s_mov_b32 m0, s81
        s_add_u32 s3, s79, s80
        buffer_load_dwordx4 v6, s[16:19], s3 offen lds
        s_add_u32 m0, s81, {1024 - 64}
        s_add_u32 s79, s79, 128
        buffer_load_dwordx4 v6, s[16:19], s3 offen offset:64 lds
        s_and_b32 s79, s79, 0x3ff
        s_add_u32 s81, s81, 2048
        s_add_u32 s29, s29, 1
        s_cmp_lt_u32 s29, {hi}
        s_cbranch_scc1 {name}
        """)
    XN = int(dict(x.split('=') for x in dbg.split(',') if '=' in x).get('xn', 2))
    xloop("K1_x1", 0, XN)
    a("s_branch K12_setup1")
    EARLY = 'early' in dbg
    a.label("K1_loader")
    if 'noldprio' not in dbg: a("s_setprio 3")
    a(f"""
    s_sub_u32 s6, s6, 4
    v_lshrrev_b32 v7, 3, v2        ; row_in
    v_and_b32 v8, 7, v2            ; slot
    v_and_b32 v9, 2, v7
    v_xor_b32 v8, v8, v9
    v_xor_b32 v9, 4, v8
    s_lshl_b32 s35, s5, 7
    v_lshlrev_b32 v7, 10, v7
    v_add_u32 v7, s35, v7
    v_lshl_add_u32 v10, v8, 4, v7
    v_lshl_add_u32 v11, v9, 4, v7
    v_lshlrev_b32 v12, 4, v2       ; lane*16
    v_lshlrev_b32 v41, 14, v2
    v_lshrrev_b32 v13, 1, v2
    v_lshlrev_b32 v13, 10, v13
    v_and_b32 v14, 1, v2
    v_lshl_add_u32 v13, v14, 4, v13
    s_lshl_b32 s65, s6, 14
    s_add_u32 s65, s65, {L_W}
    s_lshl_b32 s37, s6, 4
    s_lshl_b32 s38, s5, 3
    s_add_u32 s37, s37, s38
    v_and_b32 v15, 16, v2
    v_lshlrev_b32 v15, 3, v15
    v_xor_b32 v15, v15, v12
    s_lshl_b32 s39, s4, 2
    s_waitcnt lgkmcnt(0)
    """)
    a(EPOCH)
    srd(a, 12, 26, 27, 0x80000)
    a(f"""
    s_bitcmp0_b32 s5, 0
    s_cselect_b64 s[46:47], s[28:29], s[30:31]
    """)
    srd(a, 16, 46, 47, 0x4000)
    srd(a, 40, 44, 45, 0x80000)
    srd(a, 20, 32, 33, WS_SIZE)
    a(f"""
    s_cmp_lg_u32 s6, 0
    s_cbranch_scc1 K1_noz
    v_mov_b32 v32, 0
    v_mov_b32 v33, 0
    v_mov_b32 v34, 0
    v_mov_b32 v35, 0
    s_lshl_b32 s48, s2, 10
    s_add_u32 s48, s48, {WS_GU:#x}
    buffer_store_dwordx4 v[32:35], v12, s[20:23], s48 offen{SC}
    """)
    a.label("K1_noz")
    a(f"""
    s_cmp_lg_u32 s6, 1
    s_cbranch_scc1 K1_not
    s_lshl_b32 s48, s3, 1
    s_lshr_b32 s49, s5, 2
    s_add_u32 s48, s48, s49
    s_mul_i32 s48, s48, {TS}
    s_add_u32 s48, s48, {WS_KV:#x}
    s_bfe_u32 s49, s5, 0x10001
    s_lshl_b32 s50, s49, 8
    s_mul_i32 s51, s49, 544
    s_addk_i32 s51, 1024
    s_bitcmp0_b32 s5, 0
    s_cselect_b32 s50, s50, s51
    s_add_u32 s48, s48, s50
    s_movk_i32 s51, 272
    s_bitcmp0_b32 s5, 0
    s_cselect_b32 s51, 512, s51
    s_mov_b32 s52, 0x1ffff
    s_cselect_b32 s52, 0xffff, s52
    v_lshrrev_b32 v36, 5, v2
    v_mul_lo_u32 v36, v36, s51
    v_and_b32 v37, 31, v2
    v_lshl_add_u32 v36, v37, 4, v36
    v_cmp_eq_u32 vcc, 16, v37
    v_mov_b32 v37, 0x3f803f80
    v_cndmask_b32 v32, -1, v37, vcc
    v_mov_b32 v33, v32
    v_mov_b32 v34, v32
    v_mov_b32 v35, v32
    s_mov_b32 exec_lo, s52
    s_mov_b32 exec_hi, s52
    buffer_store_dwordx4 v[32:35], v36, s[20:23], s48 offen sc1
    s_mov_b64 exec, -1
    """)
    a.label("K1_not")
    a(f"""
    s_cmp_lt_u32 s6, 3
    s_cbranch_scc1 K1_nowo
    s_lshl_b32 s46, s2, 1          ; fragments 2b, 2b+1
    s_lshr_b32 s47, s46, 6
    s_lshl_b32 s47, s47, 16
    s_bfe_u32 s48, s46, 0x10002
    s_lshl_b32 s48, s48, 15        ; s * 32 rows
    s_add_u32 s47, s47, s48
    s_bfe_u32 s48, s46, 0x30003
    s_lshl_b32 s48, s48, 7         ; w * 128 B
    s_add_u32 s47, s47, s48
    s_and_b32 s48, s46, 3
    s_lshl_b32 s48, s48, 5         ; t * 32 B
    s_add_u32 s47, s47, s48
    s_mov_b32 m0, {L_WOT}
    v_add_u32 v17, {L_WOT}, v17
    buffer_load_dwordx4 v13, s[40:43], s47 offen lds
    s_mov_b32 m0, {L_WOT + 1024 - 32}
    s_nop 0
    buffer_load_dwordx4 v13, s[40:43], s47 offen offset:32 lds
    """)
    a.label("K1_nowo")
    a(f"""
    s_lshl_b32 s36, s6, 12
    s_lshl_b32 s38, s5, 11
    """)
    for i in range(4):
        a(f"""
        s_add_u32 s48, s36, {i*1024}
        s_add_u32 m0, s48, {L_KV}
        s_add_u32 s48, s48, s38
        s_and_b32 s48, s48, 0x3fff
        buffer_load_dwordx4 v15, s[16:19], s48 offen lds
        """)
    a("s_waitcnt lgkmcnt(0)")
    a("s_add_u32 s58, s58, 1")
    a(f"""
    s_barrier
    s_cmp_lt_u32 s6, 3
    s_cbranch_scc1 K1_wst
    s_waitcnt vmcnt(0)
    ds_read_b64_tr_b16 v[32:33], v17
    ds_read_b64_tr_b16 v[34:35], v17 offset:128
    ds_read_b64_tr_b16 v[36:37], v17 offset:1024
    ds_read_b64_tr_b16 v[38:39], v17 offset:1152
    s_lshl_b32 s46, s46, 10
    s_add_u32 s46, s46, {WS_WOF:#x}
    v_mov_b32 v40, s58
    s_lshl_b32 s35, s2, {FLS}
    s_add_u32 s35, s35, {WS_FL:#x}
    s_waitcnt lgkmcnt(0)
    buffer_store_dwordx4 v[32:35], v12, s[20:23], s46 offen sc1
    buffer_store_dwordx4 v[36:39], v12, s[20:23], s46 offen offset:1024 sc1
    """)
    a.label("K1_wst")
    jitter(a, dbg, 4, 's6', 1)
    for i in range(16):
        a(f"""
        s_add_u32 s48, s39, {i}
        s_and_b32 s48, s48, 15
        s_lshl_b32 s49, s48, 10
        s_add_u32 m0, s65, s49
        s_add_u32 s48, s48, s37
        s_and_b32 s48, s48, 63
        s_lshl_b32 s48, s48, 13
        buffer_load_dwordx4 v{10 + (i & 1)}, s[12:15], s48 offen lds
        """)
        if i == WB:
            a(f"""
            s_cmp_eq_u32 s6, 3
            s_cbranch_scc1 K1_wb
            s_waitcnt vmcnt({WB + 1})
            """)
            a.label("K1_wb")
            p1(1)
            a("s_barrier")
        if i == WD:
            a(f"""
            s_cmp_lt_u32 s6, 3
            s_cbranch_scc1 K1_nodn
            s_waitcnt vmcnt({WD + 1})
            s_mov_b64 exec, 0xff
            buffer_store_dword v40, v41, s[20:23], s35 offen sc1
            s_mov_b64 exec, -1
            """)
            a.label("K1_nodn")
    p1(2)
    if 'l4' in dbg:
        a("s_cmp_eq_u32 s6, 0")
        a("s_cbranch_scc1 K12_setup")
    if 'lpost' in dbg or 'l4' in dbg:
        a("s_waitcnt vmcnt(0)")
        p1(3)
        a("s_barrier")
    if 'lp0' in dbg: a("s_setprio 0")
    a("s_branch K12_setup")
    a.label("K1_comp")
    ONE = 24; SEL = 8
    SEL = 152
    a(f"""
    v_lshlrev_b32 v21, 7, v20
    v_lshl_add_u32 v21, v19, 3, v21   ; row*128 + 8c'
    v_add_u32 v21, {L_W}, v21
    v_lshrrev_b32 v22, 1, v18
    v_and_b32 v23, 1, v4
    v_lshl_or_b32 v22, v23, 1, v22 ; h
    """)
    for t in range(4):
        a(f"v_xor_b32 v23, {t}, v22")
        a(f"v_lshl_add_u32 v{13+t}, v23, 5, v21")
    a(f"""
    v_lshlrev_b32 v10, 6, v3
    v_lshrrev_b32 v7, 2, v3
    v_and_b32 v7, 2, v7
    v_xor_b32 v7, v7, v4
    v_lshl_add_u32 v10, v7, 4, v10
    s_lshl_b32 s3, s6, 14
    v_add_u32 v10, s3, v10
    v_and_b32 v7, 1, v4
    v_lshlrev_b32 v7, 7, v7
    v_add_u32 v17, {L_KV}, v17
    v_xor_b32 v12, v17, v7
    v_xor_b32 v17, 128, v12
    """)
    for r in range(4): a(f"v_mov_b32 v{ONE+r}, 0x3f803f80")
    a(f"""
    v_and_b32 v7, 1, v2
    v_lshlrev_b32 v7, 4, v7
    v_mov_b32 v8, 0x3f80
    v_lshlrev_b32 v7, v7, v8
    v_cmp_eq_u32 s[34:35], v18, v4 ; g == (l&15)>>2
    v_bfe_u32 v8, v2, 1, 1
    v_cmp_eq_u32 vcc, 0, v8
    s_and_b64 s[42:43], s[34:35], vcc
    s_andn2_b64 s[36:37], s[34:35], vcc
    v_mov_b32 v{SEL}, 0
    v_mov_b32 v{SEL+1}, 0
    v_cndmask_b32 v{SEL+2}, 0, v7, s[42:43]
    v_cndmask_b32 v{SEL+3}, 0, v7, s[36:37]
    v_mov_b32 v{SEL+4}, 0
    v_mov_b32 v{SEL+5}, 0
    """)
    xloop("K1_x2", XN, 8)
    a("s_waitcnt lgkmcnt(0)")
    a("s_add_u32 s58, s58, 1")
    a("s_barrier")
    p1(1)
    m16 = "v_mfma_f32_16x16x32_bf16"
    SUM = ACC; GR = ACC + 4; NM = 248
    def stat(u):
        xs = f"v[{X+4*u}:{X+4*u+3}]"
        a(f"{m16} v[{SUM}:{SUM+3}], v[{ONE}:{ONE+3}], {xs}, " + ("0" if u == 0 else f"v[{SUM}:{SUM+3}]"))
        a(f"{m16} v[{GR}:{GR+3}], {xs}, {xs}, " + ("0" if u == 0 else f"v[{GR}:{GR+3}]"))
    for u in range(0, 16, 2):
        a(f"s_waitcnt vmcnt({14-u})")
        a(f"ds_read_b128 v[{X+4*u}:{X+4*u+3}], v10 offset:{1024*u}")
        a(f"ds_read_b128 v[{X+4*u+4}:{X+4*u+7}], v10 offset:{1024*u+1024}")
        if u >= 4:
            a("s_waitcnt lgkmcnt(4)")
            stat(u - 4); stat(u - 3)
    a("s_waitcnt lgkmcnt(2)"); stat(12); stat(13)
    a("s_waitcnt lgkmcnt(0)"); stat(14); stat(15)
    RG = 184
    a("s_barrier")
    a("s_lshr_b32 s79, s28, 1")
    a("s_cmp_lg_u32 s79, s6")
    a("s_cbranch_scc1 K1_nokvf")
    for sx in range(16):
        for half in range(2):
            d = RG + 4 * sx + 2 * half
            a(f"ds_read_b64_tr_b16 v[{d}:{d+1}], v{17 if half else 12} offset:{sx*1024}")
    a.label("K1_nokvf")
    a(f"""
    v_and_b32 v7, 1, v2
    v_cmp_eq_u32 vcc, 1, v7
    v_cndmask_b32 v8, v{GR}, v{GR+1}, vcc
    v_cndmask_b32 v9, v{GR+2}, v{GR+3}, vcc
    v_cndmask_b32 v8, 0, v8, s[42:43]
    v_cndmask_b32 v26, v8, v9, s[36:37]
    """)
    for w in (16, 32):
        sum_swap(a, 26, 28, w)
    ln_scalars(a, SUM, 26, 28, 30, 27, 29)
    for r in range(4): a(f"v_sub_f32 v{NM+r}, 0, v28")
    if 'newln' not in dbg:
        NB = 4
        def cen(u, h):
            d = AF + 8 * (u % NB) + 4 * h
            if 'nolnleg' not in dbg:
                return f"v_mfma_f32_16x16x16bf16_1k v[{d}:{d+3}], v[{SEL+2}:{SEL+3}], v[{X+4*u+2*h}:{X+4*u+2*h+1}], v[{NM}:{NM+3}]"
            return f"{m16} v[{d}:{d+3}], v[{SEL+2-2*h}:{SEL+5-2*h}], v[{X+4*u}:{X+4*u+3}], v[{NM}:{NM+3}]"
        def sub(u):
            d = AF + 8 * (u % NB)
            xs = f"v[{X+4*u}:{X+4*u+3}]"
            a(cen(u, 0)); a(cen(u, 1))
        sub(0); sub(1)
        def ln_step(u):
            d = AF + 8 * (u % NB); L = []
            for r in range(4): L.append(f"v_cvt_pk_bf16_f32 v{d+r}, 0, v{d+r}")
            if u + 2 < 16:
                dd = AF + 8 * ((u + 2) % NB); xs = f"v[{X+4*(u+2)}:{X+4*(u+2)+3}]"
                L.append(cen(u + 2, 0))
            for r in range(4, 8): L.append(f"v_cvt_pk_bf16_f32 v{d+r}, 0, v{d+r}")
            if 'lnmul' in dbg:
                for r in range(8): L.append(f"v_mul_f32 v{d+r}, v{d+r}, v30")
            else:
                for r in range(0, 8, 2): L.append(f"v_pk_mul_f32 v[{d+r}:{d+r+1}], v[{d+r}:{d+r+1}], v[30:31] op_sel_hi:[1,0]")
            if u + 2 < 16:
                L.append(cen(u + 2, 1))
            for r in range(4): L.append(f"v_cvt_pk_bf16_f32 v{X+4*u+r}, v{d+2*r}, v{d+2*r+1}")
            return L
        for u in range(16):
            for ins in ln_step(u): a(ins)
    else:
        l16 = "v_mfma_f32_16x16x16bf16_1k"
        ID = f"v[{SEL+2}:{SEL+3}]"
        def A_(u, h):
            d = AF + 8 * (u & 1) + 4 * h
            return f"{l16} v[{d}:{d+3}], {ID}, v[{X+4*u+2*h}:{X+4*u+2*h+1}], v[{NM}:{NM+3}]"
        def R_(u):
            d = AF + 8 * (u & 1)
            return [f"v_cvt_pk_bf16_f32 v{X+4*u+r}, v{d+2*r}, v{d+2*r+1}" for r in range(4)]
        def B_(u, h):
            d = AF + 16 + 8 * (u & 1) + 4 * h
            return f"{l16} v[{d}:{d+3}], {ID}, v[{X+4*u+2*h}:{X+4*u+2*h+1}], 0"
        def S_(u):
            d = AF + 16 + 8 * (u & 1)
            if 'lnmul' in dbg: return [f"v_mul_f32 v{d+r}, v{d+r}, v30\nv_mul_f32 v{d+r+1}, v{d+r+1}, v30" for r in range(0, 8, 2)]
            return [f"v_pk_mul_f32 v[{d+r}:{d+r+1}], v[{d+r}:{d+r+1}], v[30:31] op_sel_hi:[1,0]" for r in range(0, 8, 2)]
        def P_(u):
            d = AF + 16 + 8 * (u & 1)
            return [f"v_cvt_pk_bf16_f32 v{X+4*u+r}, v{d+2*r}, v{d+2*r+1}" for r in range(4)]
        ok = lambda u: 0 <= u < 16
        for st_ in range(-2, 16):
            r = R_(st_ + 1) if ok(st_ + 1) else []
            sc = S_(st_) if ok(st_) else []
            pk = P_(st_) if ok(st_) else []
            seq = []
            if ok(st_ + 2): seq.append(A_(st_ + 2, 0))
            seq += r[:3]
            if ok(st_ + 2): seq.append(A_(st_ + 2, 1))
            seq += r[3:] + sc[:2]
            if ok(st_ + 1): seq.append(B_(st_ + 1, 0))
            seq += sc[2:] + pk[:1]
            if ok(st_ + 1): seq.append(B_(st_ + 1, 1))
            seq += pk[1:]
            for ins in seq: a(ins)
    p1(2)
    if 'b2e' in dbg: a("s_barrier")
    KV = ACC + 16
    a(f"""
    v_lshrrev_b32 v9, 1, v4
    v_and_b32 v11, 1, v4
    s_cmp_lg_u32 s79, s6
    s_cbranch_scc1 K1_q
    s_lshr_b32 s35, s80, 15
    s_mul_i32 s35, s35, {TS}
    s_add_u32 s35, s35, {WS_KV:#x}
    s_waitcnt lgkmcnt(0)
    s_bitcmp0_b32 s28, 0
    s_cbranch_scc0 K1_v
    """)
    for sx in range(16):
        a(f"{m16} v[{KV}:{KV+3}], v[{RG+4*sx}:{RG+4*sx+3}], v[{X+4*sx}:{X+4*sx+3}], " + ("0" if sx == 0 else f"v[{KV}:{KV+3}]"))
    a(f"""
    v_and_b32 v8, 31, v5
    v_lshlrev_b32 v8, 4, v8
    v_lshl_add_u32 v8, v9, 9, v8
    s_branch K1_kvs
    """)
    a.label("K1_v")
    for sx in range(16):
        a(f"{m16} v[{KV}:{KV+3}], v[{X+4*sx}:{X+4*sx+3}], v[{RG+4*sx}:{RG+4*sx+3}], " + ("0" if sx == 0 else f"v[{KV}:{KV+3}]"))
    a(f"""
    s_and_b32 s36, s6, 1
    s_mul_i32 s36, s36, 544
    s_add_u32 s35, s35, s36
    s_add_u32 s35, s35, 1024
    v_mul_u32_u24 v8, 272, v9
    v_lshl_add_u32 v8, v3, 4, v8
    """)
    a.label("K1_kvs")
    jitter(a, dbg, 2)
    a(f"""
    v_cvt_pk_bf16_f32 v{T}, v{KV}, v{KV+1}
    v_cvt_pk_bf16_f32 v{T+1}, v{KV+2}, v{KV+3}
    v_mov_b32 v{T+2}, v{T}
    v_mov_b32 v{T+3}, v{T+1}
    v_permlane16_swap_b32 v{T}, v{T+2}
    v_permlane16_swap_b32 v{T+1}, v{T+3}
    v_min_u32 v{T}, -2, v{T}
    s_mov_b32 exec_lo, 0xffff
    s_mov_b32 exec_hi, 0xffff
    buffer_store_dwordx4 v[{T}:{T+3}], v8, s[8:11], s35 offen sc1
    s_mov_b64 exec, -1
    """)
    a.label("K1_q")
    if 'b2e' not in dbg: a("s_barrier")
    p1(3)
    def rd(s, t):
        for half in range(2):
            d = RG + 16 * (s % 3) + 4 * t + 2 * half
            a(f"ds_read_b64_tr_b16 v[{d}:{d+1}], v{13+t} offset:{s*4096 + half*512}")
    for t in range(4): rd(0, t)
    for t in range(4): rd(1, t)
    for s in range(16):
        a(f"s_waitcnt lgkmcnt({8 if s < 15 else 0})")
        for t in range(4):
            d = RG + 16 * (s % 3) + 4 * t
            c = "0" if s == 0 else f"v[{ACC+4*t}:{ACC+4*t+3}]"
            a(f"{m16} v[{ACC+4*t}:{ACC+4*t+3}], v[{d}:{d+3}], v[{X+4*s}:{X+4*s+3}], {c}")
            if s + 2 < 16: rd(s + 2, t)
        if s == PB: a("s_barrier")
    jitter(a, dbg, 3, 's6')
    a(f"""
    s_lshl_b32 s35, s28, 10
    s_mov_b32 s36, {f2u(0.25 * 1.4426950408889634):#x}
    v_lshrrev_b32 v7, 3, v5
    v_lshlrev_b32 v7, 13, v7
    v_and_b32 v8, 7, v5
    v_lshl_add_u32 v7, v8, 4, v7
    v_lshl_add_u32 v7, v9, 9, v7
    v_lshl_add_u32 v7, v11, 7, v7
    """)
    for tp in range(2):
        for t in (2 * tp, 2 * tp + 1):
            for r in range(4): a(f"v_cvt_pk_bf16_f32 v{ACC+4*t+r}, 0, v{ACC+4*t+r}")
            if 'qpk' in dbg:
                for r in (0, 2): a(f"v_pk_mul_f32 v[{ACC+4*t+r}:{ACC+4*t+r+1}], v[{ACC+4*t+r}:{ACC+4*t+r+1}], s[36:37] op_sel_hi:[1,0]")
            else:
                for r in range(4): a(f"v_mul_f32 v{ACC+4*t+r}, {f2u(0.25 * 1.4426950408889634):#x}, v{ACC+4*t+r}")
            a(f"v_cvt_pk_bf16_f32 v{AF+2*t}, v{ACC+4*t}, v{ACC+4*t+1}")
            a(f"v_cvt_pk_bf16_f32 v{AF+2*t+1}, v{ACC+4*t+2}, v{ACC+4*t+3}")
        b = AF + 4 * tp
        a(f"v_permlane16_swap_b32 v{b}, v{b+2}")
        a(f"v_permlane16_swap_b32 v{b+1}, v{b+3}")
        a(f"buffer_store_dwordx4 v[{b}:{b+3}], v7, s[8:11], s35 offen offset:{256*tp}{SC}")
    a(f"""
    s_cmp_lg_u32 s79, s6
    s_cbranch_scc1 K1_nol
    v_and_b32 v8, 0x3ff, v7
    s_mov_b32 s36, 0x00ff00ff
    s_and_b32 s37, s28, 1
    s_lshl_b32 s37, s37, 3
    s_lshl_b32 exec_lo, s36, s37
    s_mov_b32 exec_hi, exec_lo
    ds_write_b128 v8, v[{AF}:{AF+3}] offset:{L_Q0}
    ds_write_b128 v8, v[{AF+4}:{AF+7}] offset:{L_Q0 + 256}
    s_mov_b64 exec, -1
    """)
    a.label("K1_nol")
    p1(4)
    dstamp(a, 0, True, 200)
    a("s_branch K12_join")
    for k, l in enumerate(a.lines):
        if isinstance(l, Ins):
            t = re.sub(r"\bv(\d+)\b", lambda m: f"v{159 + int(m.group(1))}" if 1 <= int(m.group(1)) <= 15 else m.group(0), l.text)
            if t != l.text: a.lines[k] = Ins(t)
```

```python
from gen import *
import gen as G
import re

L_X = 0; L_W = 65536; L_KV = 131072; L_WOT = L_KV + 16384; L_DN = L_WOT + 2048; L1_TOTAL = L_DN + 64
L_Q0 = 0x6000

def gen_p1(a, dbg=''):
    SC = ' sc1'
    def p1(i):
        if 'p1st' in dbg: stamp(a, i)
        if 'amp' in dbg: a(f's_memrealtime s[100:101]'); a('s_waitcnt lgkmcnt(0)'); a(f's_mov_b32 s{82+i}, s100')
    FST = int(dict(x.split('=') for x in dbg.split(',') if '=' in x).get('fst', 0))
    WB = int(dict(x.split('=') for x in dbg.split(',') if '=' in x).get('wb', 5))
    WD = int(dict(x.split('=') for x in dbg.split(',') if '=' in x).get('wd', 9))
    PB = int(dict(x.split('=') for x in dbg.split(',') if '=' in x).get('pb', 12))
    FLS = int(dict(x.split('=') for x in dbg.split(',') if '=' in x).get('fls', 4))
    EPOCH = f"""
    s_add_u32 s56, s32, {WS_EP:#x}
    s_addc_u32 s57, s33, 0
    s_load_dword s58, s[56:57], 0
    """
    X = 32
    ACC = 96
    AF = 116
    T = 148
    a(f"""
    s_cmp_lt_u32 s2, 256
    s_cbranch_scc1 K1_go
    s_endpgm
    """)
    a.label("K1_go")
    stamp(a, 0)
    if ('lite' in dbg or 'amp' in dbg): a('s_memrealtime s[90:91]')
    dstamp(a, 0, False, 200)
    a(f"""
    s_load_dwordx8 s[24:31], s[0:1], 0
    s_load_dwordx2 s[44:45], s[0:1], 32
    s_load_dwordx2 s[32:33], s[0:1], 96
    """)
    if 'nocodepf' not in dbg:
        a(f"""
        s_cmp_ge_u32 s2, 16
        s_cbranch_scc1 K1_nocp
        v_subrev_u32 v30, 256, v0
        v_cmp_gt_u32 vcc, (K_all_end-k1_kernel+127)/128, v30
        s_and_saveexec_b64 s[62:63], vcc
        s_cbranch_execz K1_cpx
        s_getpc_b64 s[60:61]
        """)
        a.label("K1_pc")
        a(f"""
        s_sub_u32 s60, s60, K1_pc-k1_kernel
        s_subb_u32 s61, s61, 0
        v_lshlrev_b32 v30, 7, v30
        global_load_dword v31, v30, s[60:61]
        """)
        a.label("K1_cpx")
        a("s_mov_b64 exec, s[62:63]")
        a.label("K1_nocp")
    a(f"""
    s_and_b32 s3, s2, 7
    s_lshr_b32 s4, s2, 3
    s_and_b32 s5, s4, 7
    s_lshr_b32 s4, s4, 3           ; tb & 3
    s_lshl_b32 s3, s3, 2
    s_add_u32 s3, s3, s4
    v_lshrrev_b32 v1, 6, v0
    v_and_b32 v2, 63, v0           ; lane
    v_readfirstlane_b32 s6, v1     ; wave
    v_and_b32 v3, 15, v2           ; l & 15
    v_lshrrev_b32 v6, 2, v2
    v_lshrrev_b32 v4, 4, v2        ; g
    v_bfe_u32 v18, v2, 2, 2        ; r'
    v_and_b32 v19, 3, v2           ; c'
    v_lshl_add_u32 v20, v4, 3, v18 ; 8g + r'
    v_lshlrev_b32 v17, 5, v20
    v_lshl_add_u32 v17, v19, 3, v17
    s_cmp_ge_u32 s6, 4
    s_cbranch_scc1 K1_loader
    """)
    a(f"""
    s_load_dwordx2 s[48:49], s[0:1], 96
    s_load_dwordx2 s[40:41], s[0:1], 0
    s_load_dwordx8 s[60:67], s[0:1], 48
    s_load_dwordx2 s[46:47], s[0:1], 80
    s_lshl_b32 s7, s3, 6
    s_lshl_b32 s34, s6, 4
    s_add_u32 s7, s7, s34
    v_add_u32 v5, s7, v3           ; token
    v_lshrrev_b32 v7, 4, v2
    v_and_b32 v7, 2, v7
    v_xor_b32 v7, v7, v19
    v_lshlrev_b32 v6, 10, v6
    v_lshl_add_u32 v6, v7, 4, v6
    s_lshl_b32 s81, s6, 14
    s_lshl_b32 s80, s7, 10
    s_lshl_b32 s79, s5, 7
    s_waitcnt lgkmcnt(0)
    """)
    srd(a, 16, 24, 25, 0x200000)
    a(f"""
    s_add_u32 s42, s48, {WS_EP:#x}
    s_addc_u32 s43, s49, 0
    s_load_dword s58, s[42:43], 0
    """)
    def xloop(name, lo, hi):
        if lo >= hi: return
        a(f"s_mov_b32 s29, {lo}")
        a.label(name)
        a(f"""
        s_mov_b32 m0, s81
        s_add_u32 s3, s79, s80
        buffer_load_dwordx4 v6, s[16:19], s3 offen lds
        s_add_u32 m0, s81, {1024 - 64}
        s_add_u32 s79, s79, 128
        buffer_load_dwordx4 v6, s[16:19], s3 offen offset:64 lds
        s_and_b32 s79, s79, 0x3ff
        s_add_u32 s81, s81, 2048
        s_add_u32 s29, s29, 1
        s_cmp_lt_u32 s29, {hi}
        s_cbranch_scc1 {name}
        """)
    XN = int(dict(x.split('=') for x in dbg.split(',') if '=' in x).get('xn', 2))
    xloop("K1_x1", 0, XN)
    a("s_branch K12_setup1")
    EARLY = 'early' in dbg
    a.label("K1_loader")
    if 'noldprio' not in dbg: a("s_setprio 3")
    a(f"""
    s_sub_u32 s6, s6, 4
    v_lshrrev_b32 v7, 3, v2        ; row_in
    v_and_b32 v8, 7, v2            ; slot
    v_and_b32 v9, 2, v7
    v_xor_b32 v8, v8, v9
    v_xor_b32 v9, 4, v8
    s_lshl_b32 s35, s5, 7
    v_lshlrev_b32 v7, 10, v7
    v_add_u32 v7, s35, v7
    v_lshl_add_u32 v10, v8, 4, v7
    v_lshl_add_u32 v11, v9, 4, v7
    v_lshlrev_b32 v12, 4, v2       ; lane*16
    v_lshlrev_b32 v41, 14, v2
    v_lshrrev_b32 v13, 1, v2
    v_lshlrev_b32 v13, 10, v13
    v_and_b32 v14, 1, v2
    v_lshl_add_u32 v13, v14, 4, v13
    s_lshl_b32 s65, s6, 14
    s_add_u32 s65, s65, {L_W}
    s_lshl_b32 s37, s6, 4
    s_lshl_b32 s38, s5, 3
    s_add_u32 s37, s37, s38
    v_and_b32 v15, 16, v2
    v_lshlrev_b32 v15, 3, v15
    v_xor_b32 v15, v15, v12
    s_lshl_b32 s39, s4, 2
    s_waitcnt lgkmcnt(0)
    """)
    a(EPOCH)
    srd(a, 12, 26, 27, 0x80000)
    a(f"""
    s_bitcmp0_b32 s5, 0
    s_cselect_b64 s[46:47], s[28:29], s[30:31]
    """)
    srd(a, 16, 46, 47, 0x4000)
    srd(a, 40, 44, 45, 0x80000)
    srd(a, 20, 32, 33, WS_SIZE)
    a(f"""
    v_mov_b32 v44, -1
    v_mov_b32 v45, -1
    v_mov_b32 v46, -1
    v_mov_b32 v47, -1
    s_lshl_b32 s48, s3, 2
    s_add_u32 s48, s48, s6
    s_lshl_b32 s48, s48, 14
    s_lshl_b32 s49, s5, 10
    s_add_u32 s53, s48, s49
    s_add_u32 s54, s53, 8192
    """)
    QP = f"""
    buffer_store_dwordx4 v[44:47], v12, s[20:23], s53 offen sc1
    buffer_store_dwordx4 v[44:47], v12, s[20:23], s54 offen sc1
    """
    if 'qpl' not in dbg: a(QP)
    a(f"""
    s_cmp_lg_u32 s6, 0
    s_cbranch_scc1 K1_noz
    v_mov_b32 v32, 0
    v_mov_b32 v33, 0
    v_mov_b32 v34, 0
    v_mov_b32 v35, 0
    s_lshl_b32 s48, s2, 10
    s_add_u32 s48, s48, {WS_GU:#x}
    buffer_store_dwordx4 v[32:35], v12, s[20:23], s48 offen{SC}
    """)
    a.label("K1_noz")
    a(f"""
    s_cmp_lg_u32 s6, 1
    s_cbranch_scc1 K1_not
    s_lshl_b32 s48, s3, 1
    s_lshr_b32 s49, s5, 2
    s_add_u32 s48, s48, s49
    s_mul_i32 s48, s48, {TS}
    s_add_u32 s48, s48, {WS_KV:#x}
    s_bfe_u32 s49, s5, 0x10001
    s_lshl_b32 s50, s49, 8
    s_mul_i32 s51, s49, 544
    s_addk_i32 s51, 1024
    s_bitcmp0_b32 s5, 0
    s_cselect_b32 s50, s50, s51
    s_add_u32 s48, s48, s50
    s_movk_i32 s51, 272
    s_bitcmp0_b32 s5, 0
    s_cselect_b32 s51, 512, s51
    s_mov_b32 s52, 0x1ffff
    s_cselect_b32 s52, 0xffff, s52
    v_lshrrev_b32 v36, 5, v2
    v_mul_lo_u32 v36, v36, s51
    v_and_b32 v37, 31, v2
    v_lshl_add_u32 v36, v37, 4, v36
    v_cmp_eq_u32 vcc, 16, v37
    v_mov_b32 v37, 0x3f803f80
    v_cndmask_b32 v32, -1, v37, vcc
    v_mov_b32 v33, v32
    v_mov_b32 v34, v32
    v_mov_b32 v35, v32
    s_mov_b32 exec_lo, s52
    s_mov_b32 exec_hi, s52
    buffer_store_dwordx4 v[32:35], v36, s[20:23], s48 offen sc1
    s_mov_b64 exec, -1
    """)
    a.label("K1_not")
    a(f"""
    s_cmp_lt_u32 s6, 3
    s_cbranch_scc1 K1_nowo
    s_lshl_b32 s46, s2, 1          ; fragments 2b, 2b+1
    s_lshr_b32 s47, s46, 6
    s_lshl_b32 s47, s47, 16
    s_bfe_u32 s48, s46, 0x10002
    s_lshl_b32 s48, s48, 15        ; s * 32 rows
    s_add_u32 s47, s47, s48
    s_bfe_u32 s48, s46, 0x30003
    s_lshl_b32 s48, s48, 7         ; w * 128 B
    s_add_u32 s47, s47, s48
    s_and_b32 s48, s46, 3
    s_lshl_b32 s48, s48, 5         ; t * 32 B
    s_add_u32 s47, s47, s48
    s_mov_b32 m0, {L_WOT}
    v_add_u32 v17, {L_WOT}, v17
    buffer_load_dwordx4 v13, s[40:43], s47 offen lds
    s_mov_b32 m0, {L_WOT + 1024 - 32}
    s_nop 0
    buffer_load_dwordx4 v13, s[40:43], s47 offen offset:32 lds
    """)
    a.label("K1_nowo")
    a(f"""
    s_lshl_b32 s36, s6, 12
    s_lshl_b32 s38, s5, 11
    """)
    for i in range(4):
        a(f"""
        s_add_u32 s48, s36, {i*1024}
        s_add_u32 m0, s48, {L_KV}
        s_add_u32 s48, s48, s38
        s_and_b32 s48, s48, 0x3fff
        buffer_load_dwordx4 v15, s[16:19], s48 offen lds
        """)
    if 'qpl' in dbg: a(QP)
    a("s_waitcnt lgkmcnt(0)")
    a("s_add_u32 s58, s58, 1")
    a(f"""
    s_barrier
    s_cmp_lt_u32 s6, 3
    s_cbranch_scc1 K1_wst
    s_waitcnt vmcnt(0)
    ds_read_b64_tr_b16 v[32:33], v17
    ds_read_b64_tr_b16 v[34:35], v17 offset:128
    ds_read_b64_tr_b16 v[36:37], v17 offset:1024
    ds_read_b64_tr_b16 v[38:39], v17 offset:1152
    s_lshl_b32 s46, s46, 10
    s_add_u32 s46, s46, {WS_WOF:#x}
    v_mov_b32 v40, s58
    s_lshl_b32 s35, s2, {FLS}
    s_add_u32 s35, s35, {WS_FL:#x}
    s_waitcnt lgkmcnt(0)
    buffer_store_dwordx4 v[32:35], v12, s[20:23], s46 offen sc1
    buffer_store_dwordx4 v[36:39], v12, s[20:23], s46 offen offset:1024 sc1
    """)
    a.label("K1_wst")
    for i in range(16):
        a(f"""
        s_add_u32 s48, s39, {i}
        s_and_b32 s48, s48, 15
        s_lshl_b32 s49, s48, 10
        s_add_u32 m0, s65, s49
        s_add_u32 s48, s48, s37
        s_and_b32 s48, s48, 63
        s_lshl_b32 s48, s48, 13
        buffer_load_dwordx4 v{10 + (i & 1)}, s[12:15], s48 offen lds
        """)
        if i == WB:
            a(f"""
            s_cmp_eq_u32 s6, 3
            s_cbranch_scc1 K1_wb
            s_waitcnt vmcnt({WB + 1})
            """)
            a.label("K1_wb")
            p1(1)
            a("s_barrier")
        if i == WD:
            a(f"""
            s_cmp_lt_u32 s6, 3
            s_cbranch_scc1 K1_nodn
            s_waitcnt vmcnt({WD + 1})
            s_mov_b64 exec, 0xff
            buffer_store_dword v40, v41, s[20:23], s35 offen sc1
            s_mov_b64 exec, -1
            """)
            a.label("K1_nodn")
    p1(2)
    if 'lpost' in dbg:
        a("s_waitcnt vmcnt(0)")
        p1(3)
        a("s_barrier")
    if 'lp3' not in dbg: a("s_setprio 0")
    a("s_branch K12_setup")
    a.label("K1_comp")
    ONE = 24; SEL = 8
    SEL = 152
    a(f"""
    v_lshlrev_b32 v21, 7, v20
    v_lshl_add_u32 v21, v19, 3, v21   ; row*128 + 8c'
    v_add_u32 v21, {L_W}, v21
    v_lshrrev_b32 v22, 1, v18
    v_and_b32 v23, 1, v4
    v_lshl_or_b32 v22, v23, 1, v22 ; h
    """)
    for t in range(4):
        a(f"v_xor_b32 v23, {t}, v22")
        a(f"v_lshl_add_u32 v{13+t}, v23, 5, v21")
    a(f"""
    v_lshlrev_b32 v10, 6, v3
    v_lshrrev_b32 v7, 2, v3
    v_and_b32 v7, 2, v7
    v_xor_b32 v7, v7, v4
    v_lshl_add_u32 v10, v7, 4, v10
    s_lshl_b32 s3, s6, 14
    v_add_u32 v10, s3, v10
    v_and_b32 v7, 1, v4
    v_lshlrev_b32 v7, 7, v7
    v_add_u32 v17, {L_KV}, v17
    v_xor_b32 v12, v17, v7
    v_xor_b32 v17, 128, v12
    """)
    for r in range(4): a(f"v_mov_b32 v{ONE+r}, 0x3f803f80")
    a(f"""
    v_and_b32 v7, 1, v2
    v_lshlrev_b32 v7, 4, v7
    v_mov_b32 v8, 0x3f80
    v_lshlrev_b32 v7, v7, v8
    v_cmp_eq_u32 s[34:35], v18, v4 ; g == (l&15)>>2
    v_bfe_u32 v8, v2, 1, 1
    v_cmp_eq_u32 vcc, 0, v8
    s_and_b64 s[42:43], s[34:35], vcc
    s_andn2_b64 s[36:37], s[34:35], vcc
    v_mov_b32 v{SEL}, 0
    v_mov_b32 v{SEL+1}, 0
    v_cndmask_b32 v{SEL+2}, 0, v7, s[42:43]
    v_cndmask_b32 v{SEL+3}, 0, v7, s[36:37]
    v_mov_b32 v{SEL+4}, 0
    v_mov_b32 v{SEL+5}, 0
    """)
    xloop("K1_x2", XN, 8)
    a("s_waitcnt lgkmcnt(0)")
    a("s_add_u32 s58, s58, 1")
    a("s_barrier")
    p1(1)
    m16 = "v_mfma_f32_16x16x32_bf16"
    SUM = ACC; GR = ACC + 4; NM = 248
    def stat(u):
        xs = f"v[{X+4*u}:{X+4*u+3}]"
        a(f"{m16} v[{SUM}:{SUM+3}], v[{ONE}:{ONE+3}], {xs}, " + ("0" if u == 0 else f"v[{SUM}:{SUM+3}]"))
        a(f"{m16} v[{GR}:{GR+3}], {xs}, {xs}, " + ("0" if u == 0 else f"v[{GR}:{GR+3}]"))
    for u in range(0, 16, 2):
        a(f"s_waitcnt vmcnt({14-u})")
        a(f"ds_read_b128 v[{X+4*u}:{X+4*u+3}], v10 offset:{1024*u}")
        a(f"ds_read_b128 v[{X+4*u+4}:{X+4*u+7}], v10 offset:{1024*u+1024}")
        if u >= 4:
            a("s_waitcnt lgkmcnt(4)")
            stat(u - 4); stat(u - 3)
    a("s_waitcnt lgkmcnt(2)"); stat(12); stat(13)
    a("s_waitcnt lgkmcnt(0)"); stat(14); stat(15)
    RG = 184
    a("s_barrier")
    a("s_lshr_b32 s79, s28, 1")
    a("s_cmp_lg_u32 s79, s6")
    a("s_cbranch_scc1 K1_nokvf")
    for sx in range(16):
        for half in range(2):
            d = RG + 4 * sx + 2 * half
            a(f"ds_read_b64_tr_b16 v[{d}:{d+1}], v{17 if half else 12} offset:{sx*1024}")
    a.label("K1_nokvf")
    a(f"""
    v_and_b32 v7, 1, v2
    v_cmp_eq_u32 vcc, 1, v7
    v_cndmask_b32 v8, v{GR}, v{GR+1}, vcc
    v_cndmask_b32 v9, v{GR+2}, v{GR+3}, vcc
    v_cndmask_b32 v8, 0, v8, s[42:43]
    v_cndmask_b32 v26, v8, v9, s[36:37]
    """)
    for w in (16, 32):
        sum_swap(a, 26, 28, w)
    ln_scalars(a, SUM, 26, 28, 30, 27, 29)
    for r in range(4): a(f"v_sub_f32 v{NM+r}, 0, v28")
    if 'newln' not in dbg:
        NB = 4
        def cen(u, h):
            d = AF + 8 * (u % NB) + 4 * h
            if 'nolnleg' not in dbg:
                return f"v_mfma_f32_16x16x16bf16_1k v[{d}:{d+3}], v[{SEL+2}:{SEL+3}], v[{X+4*u+2*h}:{X+4*u+2*h+1}], v[{NM}:{NM+3}]"
            return f"{m16} v[{d}:{d+3}], v[{SEL+2-2*h}:{SEL+5-2*h}], v[{X+4*u}:{X+4*u+3}], v[{NM}:{NM+3}]"
        def sub(u):
            d = AF + 8 * (u % NB)
            xs = f"v[{X+4*u}:{X+4*u+3}]"
            a(cen(u, 0)); a(cen(u, 1))
        sub(0); sub(1)
        def ln_step(u):
            d = AF + 8 * (u % NB); L = []
            for r in range(4): L.append(f"v_cvt_pk_bf16_f32 v{d+r}, 0, v{d+r}")
            if u + 2 < 16:
                dd = AF + 8 * ((u + 2) % NB); xs = f"v[{X+4*(u+2)}:{X+4*(u+2)+3}]"
                L.append(cen(u + 2, 0))
            for r in range(4, 8): L.append(f"v_cvt_pk_bf16_f32 v{d+r}, 0, v{d+r}")
            if 'lnmul' in dbg:
                for r in range(8): L.append(f"v_mul_f32 v{d+r}, v{d+r}, v30")
            else:
                for r in range(0, 8, 2): L.append(f"v_pk_mul_f32 v[{d+r}:{d+r+1}], v[{d+r}:{d+r+1}], v[30:31] op_sel_hi:[1,0]")
            if u + 2 < 16:
                L.append(cen(u + 2, 1))
            for r in range(4): L.append(f"v_cvt_pk_bf16_f32 v{X+4*u+r}, v{d+2*r}, v{d+2*r+1}")
            return L
        for u in range(16):
            for ins in ln_step(u): a(ins)
    else:
        l16 = "v_mfma_f32_16x16x16bf16_1k"
        ID = f"v[{SEL+2}:{SEL+3}]"
        def A_(u, h):
            d = AF + 8 * (u & 1) + 4 * h
            return f"{l16} v[{d}:{d+3}], {ID}, v[{X+4*u+2*h}:{X+4*u+2*h+1}], v[{NM}:{NM+3}]"
        def R_(u):
            d = AF + 8 * (u & 1)
            return [f"v_cvt_pk_bf16_f32 v{X+4*u+r}, v{d+2*r}, v{d+2*r+1}" for r in range(4)]
        def B_(u, h):
            d = AF + 16 + 8 * (u & 1) + 4 * h
            return f"{l16} v[{d}:{d+3}], {ID}, v[{X+4*u+2*h}:{X+4*u+2*h+1}], 0"
        def S_(u):
            d = AF + 16 + 8 * (u & 1)
            if 'lnmul' in dbg: return [f"v_mul_f32 v{d+r}, v{d+r}, v30\nv_mul_f32 v{d+r+1}, v{d+r+1}, v30" for r in range(0, 8, 2)]
            return [f"v_pk_mul_f32 v[{d+r}:{d+r+1}], v[{d+r}:{d+r+1}], v[30:31] op_sel_hi:[1,0]" for r in range(0, 8, 2)]
        def P_(u):
            d = AF + 16 + 8 * (u & 1)
            return [f"v_cvt_pk_bf16_f32 v{X+4*u+r}, v{d+2*r}, v{d+2*r+1}" for r in range(4)]
        ok = lambda u: 0 <= u < 16
        for st_ in range(-2, 16):
            r = R_(st_ + 1) if ok(st_ + 1) else []
            sc = S_(st_) if ok(st_) else []
            pk = P_(st_) if ok(st_) else []
            seq = []
            if ok(st_ + 2): seq.append(A_(st_ + 2, 0))
            seq += r[:3]
            if ok(st_ + 2): seq.append(A_(st_ + 2, 1))
            seq += r[3:] + sc[:2]
            if ok(st_ + 1): seq.append(B_(st_ + 1, 0))
            seq += sc[2:] + pk[:1]
            if ok(st_ + 1): seq.append(B_(st_ + 1, 1))
            seq += pk[1:]
            for ins in seq: a(ins)
    p1(2)
    KV = ACC + 16
    a(f"""
    v_lshrrev_b32 v9, 1, v4
    v_and_b32 v11, 1, v4
    s_cmp_lg_u32 s79, s6
    s_cbranch_scc1 K1_q
    s_lshr_b32 s35, s80, 15
    s_mul_i32 s35, s35, {TS}
    s_add_u32 s35, s35, {WS_KV:#x}
    s_waitcnt lgkmcnt(0)
    s_bitcmp0_b32 s28, 0
    s_cbranch_scc0 K1_v
    """)
    for sx in range(16):
        a(f"{m16} v[{KV}:{KV+3}], v[{RG+4*sx}:{RG+4*sx+3}], v[{X+4*sx}:{X+4*sx+3}], " + ("0" if sx == 0 else f"v[{KV}:{KV+3}]"))
    a(f"""
    v_and_b32 v8, 31, v5
    v_lshlrev_b32 v8, 4, v8
    v_lshl_add_u32 v8, v9, 9, v8
    s_branch K1_kvs
    """)
    a.label("K1_v")
    for sx in range(16):
        a(f"{m16} v[{KV}:{KV+3}], v[{X+4*sx}:{X+4*sx+3}], v[{RG+4*sx}:{RG+4*sx+3}], " + ("0" if sx == 0 else f"v[{KV}:{KV+3}]"))
    a(f"""
    s_and_b32 s36, s6, 1
    s_mul_i32 s36, s36, 544
    s_add_u32 s35, s35, s36
    s_add_u32 s35, s35, 1024
    v_mul_u32_u24 v8, 272, v9
    v_lshl_add_u32 v8, v3, 4, v8
    """)
    a.label("K1_kvs")
    a(f"""
    v_cvt_pk_bf16_f32 v{T}, v{KV}, v{KV+1}
    v_cvt_pk_bf16_f32 v{T+1}, v{KV+2}, v{KV+3}
    v_mov_b32 v{T+2}, v{T}
    v_mov_b32 v{T+3}, v{T+1}
    v_permlane16_swap_b32 v{T}, v{T+2}
    v_permlane16_swap_b32 v{T+1}, v{T+3}
    v_min_u32 v{T}, -2, v{T}
    s_mov_b32 exec_lo, 0xffff
    s_mov_b32 exec_hi, 0xffff
    buffer_store_dwordx4 v[{T}:{T+3}], v8, s[8:11], s35 offen sc1
    s_mov_b64 exec, -1
    """)
    a.label("K1_q")
    a("s_barrier")
    p1(3)
    def rd(s, t):
        for half in range(2):
            d = RG + 16 * (s % 3) + 4 * t + 2 * half
            a(f"ds_read_b64_tr_b16 v[{d}:{d+1}], v{13+t} offset:{s*4096 + half*512}")
    for t in range(4): rd(0, t)
    for t in range(4): rd(1, t)
    for s in range(16):
        a(f"s_waitcnt lgkmcnt({8 if s < 15 else 0})")
        for t in range(4):
            d = RG + 16 * (s % 3) + 4 * t
            c = "0" if s == 0 else f"v[{ACC+4*t}:{ACC+4*t+3}]"
            a(f"{m16} v[{ACC+4*t}:{ACC+4*t+3}], v[{d}:{d+3}], v[{X+4*s}:{X+4*s+3}], {c}")
            if s + 2 < 16: rd(s + 2, t)
        if s == PB:
            a("s_barrier")
            for kind, t in (("K", 0), ("K", 1), ("V", 0), ("V", 1), ("K", 2), ("V", 2), ("V", 3)):
                if kind == "K": a(f"buffer_load_dwordx4 v[{16+4*t}:{16+4*t+3}], vP8, s[8:11], s{50+t} offen sc1")
                else: a(f"buffer_load_dwordx4 v[{48+4*t}:{48+4*t+3}], vP10, s[8:11], s{50+t//2} offen offset:{1024 + 544*(t&1)} sc1")
    a(f"""
    s_lshl_b32 s35, s28, 10
    v_lshrrev_b32 v7, 3, v5
    v_lshlrev_b32 v7, 13, v7
    v_and_b32 v8, 7, v5
    v_lshl_add_u32 v7, v8, 4, v7
    v_lshl_add_u32 v7, v9, 9, v7
    v_lshl_add_u32 v7, v11, 7, v7
    """)
    for tp in range(2):
        for t in (2 * tp, 2 * tp + 1):
            for r in range(4): a(f"v_cvt_pk_bf16_f32 v{ACC+4*t+r}, 0, v{ACC+4*t+r}")
            for r in range(4): a(f"v_mul_f32 v{ACC+4*t+r}, {f2u(0.25 * 1.4426950408889634):#x}, v{ACC+4*t+r}")
            a(f"v_cvt_pk_bf16_f32 v{AF+2*t}, v{ACC+4*t}, v{ACC+4*t+1}")
            a(f"v_cvt_pk_bf16_f32 v{AF+2*t+1}, v{ACC+4*t+2}, v{ACC+4*t+3}")
        b = AF + 4 * tp
        a(f"v_permlane16_swap_b32 v{b}, v{b+2}")
        a(f"v_permlane16_swap_b32 v{b+1}, v{b+3}")
        a(f"v_min_u32 v{b}, -2, v{b}")
        a(f"buffer_store_dwordx4 v[{b}:{b+3}], v7, s[8:11], s35 offen offset:{256*tp}{SC}")
    a(f"""
    s_cmp_lg_u32 s79, s6
    s_cbranch_scc1 K1_nol
    v_and_b32 v8, 0x3ff, v7
    s_mov_b32 s36, 0x00ff00ff
    s_and_b32 s37, s28, 1
    s_lshl_b32 s37, s37, 3
    s_lshl_b32 exec_lo, s36, s37
    s_mov_b32 exec_hi, exec_lo
    ds_write_b128 v8, v[{AF}:{AF+3}] offset:{L_Q0}
    ds_write_b128 v8, v[{AF+4}:{AF+7}] offset:{L_Q0 + 256}
    s_mov_b64 exec, -1
    """)
    a.label("K1_nol")
    p1(4)
    dstamp(a, 0, True, 200)
    a("s_branch K12_join")
    for k, l in enumerate(a.lines):
        if isinstance(l, Ins):
            t = re.sub(r"\bv(\d+)\b", lambda m: f"v{159 + int(m.group(1))}" if 1 <= int(m.group(1)) <= 16 else m.group(0), l.text).replace('vP', 'v')
            if t != l.text: a.lines[k] = Ins(t)
```

```python
from gen import *
import gen as G

L_PART = 0x0; L_Q = 0x6000; L_MREF = 0x8400; L_OB = 0x5800; L_KEY = 0xAC00; L_FLG = 0xAD00; L_ZC = 0xAE00; L_MX = 0xB000; L_HB = 0xB400
L_FW = 0xE000; L_TOTAL = 0xE000 + 8 * 7168
L_XS = L_PART; L_RED = L_PART + 0x1000; L_GB = L_PART + 0x2000
C_EXACT = 0.25 * 1.4426950408889634
OFFS = 96.0

def wave_sum(a, vs, ts):
    if isinstance(vs, int): vs, ts = [vs], [ts]
    for mod in ("quad_perm:[1,0,3,2]", "quad_perm:[2,3,0,1]", "row_half_mirror", "row_mirror"):
        for v in vs:
            a(f"v_add_f32_dpp v{v}, v{v}, v{v} {mod} row_mask:0xf bank_mask:0xf")
    for w in (16, 32):
        for v, t in zip(vs, ts): a(f"v_mov_b32 v{t}, v{v}")
        for v, t in zip(vs, ts): a(f"v_permlane{w}_swap_b32 v{t}, v{v}")
        for v, t in zip(vs, ts): a(f"v_add_f32 v{v}, v{v}, v{t}")

class VM:
    def __init__(self, a): self.a = a; self.q = []; self.done = -1
    def issue(self, tag): self.q.append(tag)
    def wait(self, tag):
        i = max(k for k, t in enumerate(self.q) if t == tag)
        if i <= self.done: return
        self.done = i
        self.a(f"s_waitcnt vmcnt({len(self.q) - 1 - i})")

def wave_max_u32(a, v, t):
    for mod in ("quad_perm:[1,0,3,2]", "quad_perm:[2,3,0,1]", "row_half_mirror", "row_mirror"):
        a(f"v_max_u32_dpp v{v}, v{v}, v{v} {mod} row_mask:0xf bank_mask:0xf")
    for w in (16, 32):
        a(f"""
        v_mov_b32 v{t}, v{v}
        v_permlane{w}_swap_b32 v{t}, v{v}
        v_max_u32 v{v}, v{v}, v{t}
        """)

LOG2E = 1.4426950408889634
def sigmoid(a, d, x, t):
    a(f"""
    v_mul_f32 v{t}, {f2u(-LOG2E):#x}, v{x}
    v_exp_f32 v{t}, v{t}
    v_add_f32 v{t}, 1.0, v{t}
    v_rcp_f32 v{d}, v{t}
    """)

def gen_p2(a, dbg='', prio=True):
    SC = ' sc1'
    OPT = dict(x.split('=') for x in dbg.split(',') if '=' in x)
    FLS = int(OPT.get('fls', 4))
    PFS = int(OPT.get('pfs', 0)); PFP = int(OPT.get('pfp', 1))
    TAILST = 'tailst' in dbg
    FS = 'ffnst' in dbg
    KREP = 'nokrep' not in dbg; GREP = 'nogrep' not in dbg
    def st(i, tail):
        if 'p1st' in dbg:
            if tail == 4: stamp(a, i)
        elif 'r0st' in dbg:
            if tail == 3: stamp(a, i)
        elif FS:
            if tail == 2: stamp(a, i)
        elif tail in (True, False) and bool(tail) == TAILST: stamp(a, i)
    K = 16; V = 48; X = [112, 128]; O = 144; CM = 160; SP = 176; Q = 184; OA = 188; WF = 204; BF = 236; S1 = 240
    vQA, vPW, vPR, vPL, vOW, vOR, vLM, vWL, vKL, vVL = 1, 2, 3, 4, 5, 6, 7, 8, 9, 10
    t0, t1, t2, t3, t4 = 11, 12, 13, 14, 15
    vFW, vFR, vFV, vWLs = 9, 13, 14, 15
    vFS, vPA, vPD = SP + 4, SP + 5, SP + 6
    a.label("K12_setup")
    a(f"""
    s_load_dwordx2 s[48:49], s[0:1], 96
    s_load_dwordx2 s[40:41], s[0:1], 0
    s_load_dwordx8 s[60:67], s[0:1], 48
    s_load_dwordx2 s[46:47], s[0:1], 80
    s_waitcnt lgkmcnt(0)
    """)
    a.label("K12_setup1")
    a(f"""
    s_and_b32 s3, s2, 7
    s_lshr_b32 s4, s2, 3
    s_lshl_b32 s7, s3, 8
    s_lshl_b32 s5, s4, 3
    s_add_u32 s7, s7, s5           ; T0
    s_and_b32 s28, s4, 7           ; rot
    v_lshrrev_b32 v{t0}, 6, v0
    v_and_b32 v0, 63, v0
    v_readfirstlane_b32 s6, v{t0}
    s_mov_b32 s30, 0
    v_lshlrev_b32 v{vWL}, 4, v0
    s_mul_i32 s3, s6, {8*TS}
    s_add_u32 s3, s3, {WS_KV:#x}
    """)
    for t in range(8):
        a(f"""
        s_add_u32 s4, s28, {t}
        s_and_b32 s4, s4, 7
        s_mul_i32 s4, s4, {TS}
        s_add_u32 s{50+t}, s3, s4
        """)
    a.label("K2_restart")
    a(f"""
    s_add_u32 s44, s6, 4
    s_and_b32 s44, s44, 7
    s_add_u32 s3, s44, s28
    s_and_b32 s3, s3, 7
    s_andn2_b32 s45, s2, 0x38
    s_lshl_b32 s4, s3, 3
    s_or_b32 s45, s45, s4
    s_lshl_b32 s45, s45, 6
    s_lshr_b32 s4, s28, 1
    s_lshl_b32 s4, s4, 2
    s_add_u32 s45, s45, s4
    s_add_u32 s45, s45, {WS_FQ:#x}
    s_add_u32 s3, s3, s7
    s_lshl_b32 s32, s3, 10
    v_and_b32 v{t1}, 31, v0
    v_lshrrev_b32 v{t2}, 5, v0
    v_mul_u32_u24 v{vVL}, 272, v{t2}
    v_lshl_add_u32 v{vVL}, v{t1}, 4, v{vVL}
    v_cmp_lt_u32 vcc, 16, v{t1}
    v_bfrev_b32 v{t0}, 1
    v_add_u32 v{vQA}, {L_Q:#x}, v{vWL}
    v_cndmask_b32 v{vVL}, v{vVL}, v{t0}, vcc
    """)
    srd(a, 8, 48, 49, WS_SIZE)
    vm = VM(a)
    def ldK(t):
        a(f"buffer_load_dwordx4 v[{K+4*t}:{K+4*t+3}], v{vWL}, s[8:11], s{50+t} offen{SC}"); vm.issue(f"K{t}")
    def ldV(t):
        if 'vmask' in dbg:
            a("s_mov_b32 exec_lo, 0x1ffff"); a("s_mov_b32 exec_hi, 0x1ffff")
            for h in range(2):
                a(f"buffer_load_dwordx4 v[{V+8*t+4*h}:{V+8*t+4*h+3}], v{vVL}, s[8:11], s{50+t} offen offset:{1024 + 544*h}{SC}"); vm.issue(f"V{t}{h}")
            a("s_mov_b64 exec, -1")
            return
        for h in range(2):
            a(f"buffer_load_dwordx4 v[{V+8*t+4*h}:{V+8*t+4*h+3}], v{vVL}, s[8:11], s{50+t} offen offset:{1024 + 544*h}{SC}"); vm.issue(f"V{t}{h}")
    a(f"""
    s_lshl_b32 s3, s44, 10
    v_add_u32 v{t4}, s3, v{vQA}
    """)
    def late_setup(part):
        u0, u1, u2, u3 = S1, S1 + 1, S1 + 2, S1 + 3
        if part == 0:
            srd(a, 16, 40, 41, 0x200000)
            srd(a, 20, 46, 47, 0x200000)
            srd(a, 24, 60, 61, 0x400)
            a(f"""
            v_and_b32 v{u1}, 31, v0
            v_lshrrev_b32 v{u2}, 5, v0
            v_mul_u32_u24 v{vPW}, 80, v{u1}
            s_mul_i32 s3, s6, 2560
            v_add_u32 v{vPW}, s3, v{vPW}
            v_lshl_add_u32 v{SP+3}, v{u2}, 2, v{vPW}
            v_lshl_add_u32 v{vPW}, v{u2}, 4, v{vPW}
            v_lshrrev_b32 v{u0}, 4, v0     ; g
            s_lshr_b32 s3, s6, 1
            s_lshl_b32 s3, s3, 3
            s_and_b32 s4, s6, 1
            s_lshl_b32 s4, s4, 1
            s_add_u32 s3, s3, s4
            v_and_b32 v{u1}, 1, v{u0}
            v_lshl_add_u32 v{u1}, v{u1}, 2, v{u2}
            v_add_u32 v{u1}, s3, v{u1}     ; n = 8*(w>>1) + 2*(w&1) + (g>>1) + 4*(g&1)
            v_mul_u32_u24 v{vPL}, 80, v{u1}
            v_and_b32 v{u2}, 15, v0        ; d
            v_lshl_add_u32 v{vPR}, v{u2}, 2, v{vPL}
            v_and_b32 v{u3}, 7, v0
            v_mul_u32_u24 v{u3}, 2560, v{u3}
            v_add3_u32 v{vPL}, v{vPL}, v{u3}, 64
            s_lshl_b32 s31, s28, 16
            s_lshl_b32 s33, s6, 13
            s_add_u32 s33, s33, {WS_WOF:#x}
            """)
        elif part == 1:
            a(f"""
            v_and_b32 v{u3}, 7, v{u1}      ; token
            v_lshrrev_b32 v{u1}, 3, v{u1}  ; head_local
            v_mul_u32_u24 v{vOW}, 144, v{u3}
            v_lshl_add_u32 v{vOW}, v{u1}, 5, v{vOW}
            v_lshl_add_u32 v{vOW}, v{u2}, 1, v{vOW}
            v_add_u32 v{vOW}, {L_OB:#x}, v{vOW}
            v_and_b32 v{u3}, 7, v0
            v_mul_u32_u24 v{vOR}, 144, v{u3}
            v_lshl_add_u32 v{vOR}, v{u0}, 4, v{vOR}
            v_add_u32 v{vOR}, {L_OB:#x}, v{vOR}
            {"" if 'nozc' in dbg else f"v_and_b32 v{u1}, 8, v0"}
            {"" if 'nozc' in dbg else f"v_cmp_ne_u32 vcc, 0, v{u1}"}
            {"" if 'nozc' in dbg else f"v_mov_b32 v{u1}, {L_ZC:#x}"}
            {"" if 'nozc' in dbg else f"v_cndmask_b32 v{vOR}, v{vOR}, v{u1}, vcc"}
            v_mov_b32 v{vLM}, 0
            v_lshlrev_b32 v{vFR}, 2, v{u3}
            v_add_u32 v{vFR}, {L_FLG:#x}, v{vFR}
            """)
        else:
            a(f"v_pk_mov_b32 v[{SP}:{SP+1}], 0, 0")
            a(f"v_mov_b32 v{SP+2}, 0xdddddddd")
    def rd_qcm():
        a(f"ds_read_b128 v[{Q}:{Q+3}], v{vQA}")
        for k in range(4):
            a(f"ds_read_b128 v[{CM+4*k}:{CM+4*k+3}], v{vQA} offset:{L_MREF - L_Q}")
        a(f"v_add_u32 v{vQA}, 1024, v{vQA}")
    mf = "v_mfma_f32_32x32x16_bf16"
    def M1(kt, xb):
        if 'nom1' in dbg: a("s_nop 1"); return
        a(f"{mf} v[{X[xb]}:{X[xb]+15}], v[{K+4*kt}:{K+4*kt+3}], v[{Q}:{Q+3}], v[{CM}:{CM+15}]")
    def E(xb, lo, hi):
        for r in range(lo, hi):
            if 'expnop' in dbg:
                a("v_nop"); a("v_nop")
                continue
            if 'noexp' in dbg:
                a(f"v_cvt_pk_bf16_f32 v{X[xb]+r}, 0, v{X[xb]+r}"); a(f"v_cvt_pk_bf16_f32 v{X[xb]+r}, 0, v{X[xb]+r}")
                continue
            a(f"v_exp_f32 v{X[xb]+r}, v{X[xb]+r}")
    def C2(h, xb):
        for k in range(4):
            a(f"v_cvt_pk_bf16_f32 v{SP+4*h+k}, v{X[xb]+8*h+2*k}, v{X[xb]+8*h+2*k+1}")
    def M3(h, kt):
        xb = kt & 1
        if 'nom3' in dbg: a("s_nop 2"); return
        a(f"v_smfmac_f32_32x32x32_bf16 v[{O}:{O+15}], v[{V+8*kt+4*h}:{V+8*kt+4*h+3}], v[{X[xb]+8*h}:{X[xb]+8*h+7}], v{SP+2}")
    def Ozero():
        a(f"v_mfma_f32_32x32x8bf16_1k v[{O}:{O+15}], v[{SP}:{SP+1}], v[{SP}:{SP+1}], 0")
    def part_write():
        a(f"""
        ds_write_b128 v{vPW}, v[{O}:{O+3}]
        ds_write_b128 v{vPW}, v[{O+4}:{O+7}] offset:32
        ds_write_b32 v{SP+3}, v{O+8} offset:64
        """)
    def s1_read():
        a(f"ds_read_b32 v{S1+8}, v{vPL}")
        for k in range(4):
            a(f"ds_read2st64_b32 v[{S1+2*k}:{S1+2*k+1}], v{vPR} offset0:{20*k} offset1:{20*k+10}")
    def s1_calc():
        dp = lambda mod: f"v_add_f32_dpp v{S1+8}, v{S1+8}, v{S1+8} {mod} row_mask:0xf bank_mask:0xf"
        pa = (lambda x, y: f"v_add_f32 v{x}, v{x}, v{y}\nv_add_f32 v{x+1}, v{x+1}, v{y+1}") if 's1sc' in dbg else \
             (lambda x, y: f"v_pk_add_f32 v[{x}:{x+1}], v[{x}:{x+1}], v[{y}:{y+1}]")
        a(f"""
        {dp("quad_perm:[1,0,3,2]")}
        {pa(S1, S1+2)}
        {pa(S1+4, S1+6)}
        {dp("quad_perm:[2,3,0,1]")}
        {pa(S1, S1+4)}
        v_add_f32 v{S1}, v{S1}, v{S1+1}
        {dp("row_half_mirror")}
        v_rcp_f32 v{S1+1}, v{S1+8}
        v_maximum3_f32 v{vLM}, v{vLM}, v{S1+8}, abs(v{S1})
        v_mul_f32 v{S1}, v{S1}, v{S1+1}
        v_cvt_pk_bf16_f32 v{S1}, v{S1}, v{S1}
        ds_write_b16 v{vOW}, v{S1}
        """)
    def s2_read():
        for s in range(2):
            a(f"ds_read_b128 v[{BF+4*s}:{BF+4*s+3}], v{vOR} offset:{64*s}")
    def s2_mma(lo, hi):
        for u in range(lo, hi):
            s, t = u >> 2, u & 3
            a(f"v_mfma_f32_16x16x32_bf16 v[{OA+4*t}:{OA+4*t+3}], v[{WF+4*u}:{WF+4*u+3}], v[{BF+4*s}:{BF+4*s+3}], v[{OA+4*t}:{OA+4*t+3}]")
    def wf_load(lo, hi):
        if lo == 0:
            a("s_add_u32 s34, s33, s31")
            a("s_add_u32 s35, s34, 4096")
            a("s_add_u32 s31, s31, 0x10000")
            a("s_and_b32 s31, s31, 0x7ffff")
        for u in range(lo, hi):
            a(f"buffer_load_dwordx4 v[{WF+4*u}:{WF+4*u+3}], v{vWL}, s[8:11], s{34 + (u >> 2)} offen offset:{1024*(u&3)}{'' if 'wfpl' in dbg else ' nt' if 'wfnt' in dbg else SC}")
            vm.issue("WF")
    def ffn_prefetch():
        a(f"""
        s_mov_b32 s39, s6
        s_cmp_eq_u32 s39, 1
        s_cselect_b64 s[36:37], s[64:65], s[62:63]
        s_cmp_eq_u32 s39, 2
        s_cselect_b64 s[36:37], s[66:67], s[36:37]
        """)
        srd(a, 12, 36, 37, 512 * 1792 * 2)
        a(f"""
        s_and_b32 s3, s2, 7
        s_lshr_b32 s4, s2, 3
        s_mul_i32 s5, s4, {16*3584}
        s_mul_i32 s36, s3, 448
        s_and_b32 s36, s36, 0xffffff80
        s_add_u32 s5, s5, s36
        s_lshl_b32 s36, s3, 7
        s_mul_i32 s37, s4, {56*1024}
        s_add_u32 s36, s36, s37
        v_lshrrev_b32 v{t0}, 2, v0
        v_mul_u32_u24 v{t0}, 3584, v{t0}
        v_and_b32 v{t1}, 3, v0
        v_lshl_add_u32 v{t0}, v{t1}, 7, v{t0}
        v_min_u32 v{t1}, 55, v0
        v_lshlrev_b32 v{t1}, 10, v{t1}
        s_cmp_eq_u32 s39, 2
        s_cselect_b32 s38, s36, s5
        s_cselect_b64 vcc, -1, 0
        v_cndmask_b32 v{vPA}, v{t0}, v{t1}, vcc
        s_lshl_b32 s39, s6, {PFS}
        s_add_u32 s39, s39, 1
        s_cmp_gt_u32 s6, 2
        s_cselect_b32 s39, 99, s39
        """)
    def ffn_setup():
        a(f"""
        s_and_b32 s3, s2, 7
        s_lshr_b32 s4, s2, 3
        s_and_b32 s5, s6, 1
        s_cmp_eq_u32 s5, 0
        s_cselect_b64 s[36:37], s[62:63], s[64:65]
        s_cmp_lt_u32 s2, 112
        s_cselect_b64 s[36:37], s[36:37], s[66:67]
        """)
        srd(a, 68, 36, 37, 512 * 1792 * 2)
        a(f"""
        s_mul_i32 s76, s3, 14
        s_add_u32 s76, s76, s4           ; fs
        s_lshl_b32 s77, s3, 2
        s_add_u32 s77, s77, s4
        s_sub_u32 s77, s77, 14           ; cb
        s_lshr_b32 s5, s6, 1
        s_mul_i32 s5, s5, {128*3584}
        s_lshl_b32 s36, s76, 5
        s_add_u32 s5, s5, s36
        s_mul_i32 s36, s6, {224*1024}
        s_lshl_b32 s37, s77, 5
        s_add_u32 s36, s36, s37
        s_cmp_lt_u32 s2, 112
        s_cselect_b32 s72, s5, s36
        s_movk_i32 s73, 1024
        s_cselect_b32 s73, 3584, s73
        s_cselect_b32 s75, 4, 7
        s_cmp_lt_u32 s2, 144
        s_cselect_b32 s75, s75, 0
        s_mul_i32 s74, s6, 7168
        s_add_u32 s74, s74, {L_FW:#x}
        v_lshrrev_b32 v{vFS}, 1, v0
        v_mul_lo_u32 v{vFS}, v{vFS}, s73
        v_and_b32 v{t1}, 1, v0
        v_lshl_add_u32 v{vFS}, v{t1}, 4, v{vFS}
        s_lshl_b32 s73, s73, 5
        s_mov_b32 s78, s74
        """)
    def ffn_stage():
        a(f"""
        s_cmp_lt_u32 s29, 4
        s_cbranch_scc1 K2_nost
        """)
        for e in range(2):
            a(f"""
            s_cmp_eq_u32 s75, 0
            s_cbranch_scc1 K2_nost
            s_mov_b32 m0, s78
            s_sub_u32 s75, s75, 1
            buffer_load_dwordx4 v{vFS}, s[68:71], s72 offen lds
            s_add_u32 s78, s78, 1024
            s_add_u32 s72, s72, s73
            """)
        a.label("K2_nost")
    def ffn_issue():
        a(f"""
        s_cmp_lg_u32 s29, s39
        s_cbranch_scc1 K2_nopf
        buffer_load_dword v{vPD}, v{vPA}, s[12:15], s38 offen
        """)
        a.label("K2_nopf")
    def setprio(p):
        if prio: a(f"s_setprio {p}")
    def mref_mma(q, d):
        a(f"{mf} v[{d}:{d+15}], v[{K}:{K+3}], v[{q}:{q+3}], 0")
        a(f"{mf} v[{d+16}:{d+31}], v[{K+4}:{K+7}], v[{q}:{q+3}], 0")
    def mref_max(S):
        a(f"v_max3_f32 v{t0}, v{S}, v{S+1}, v{S+2}")
        for r in range(3, 31, 2):
            a(f"v_max3_f32 v{t0}, v{t0}, v{S+r}, v{S+r+1}")
        a(f"""
        v_max_f32 v{t0}, v{t0}, v{S+31}
        v_mov_b32 v{t1}, v{t0}
        v_permlane32_swap_b32 v{t1}, v{t0}
        v_max_f32 v{t0}, v{t0}, v{t1}
        """)
        for r in range(4): a(f"v_sub_f32 v{S+r}, {f2u(-OFFS):#x}, v{t0}")
        a(f"ds_write_b128 v{t4}, v[{S}:{S+3}] offset:{L_MREF - L_Q}")
    retries = []
    def frag(kind, t): return K + 4 * t if kind == "K" else V + 4 * t
    def vtest(fr):
        r = [frag(*f) for f in fr]
        if len(r) == 1: a(f"v_cmp_eq_u32 vcc, -1, v{r[0]}"); return
        a(f"v_max_u32 v{vPD}, v{r[0]}, v{r[1]}" if len(r) == 2 else f"v_max3_u32 v{vPD}, v{r[0]}, v{r[1]}, v{r[2]}")
        a(f"v_cmp_eq_u32 vcc, -1, v{vPD}")
    def valid(name, fr):
        vtest(fr)
        a(f"s_cbranch_vccnz K2_rt{name}")
        a.label(f"K2_rb{name}")
        retries.append((name, fr))
    def kv_first():
        ldK(0); ldK(1); ldV(0); ldK(2); ldV(1)
    for p in range(3): late_setup(p)
    ffn_prefetch(); ffn_setup()
    a(f"""
    s_lshl_b32 s3, s6, 2
    s_add_u32 s3, s3, {L_FLG:#x}
    v_mov_b32 v{vFW}, s3
    s_movk_i32 s59, {L_Q + 2048:#x}
    s_lshl_b32 s3, s30, 2
    s_or_b32 s3, s3, s6
    s_cmp_lt_u32 s3, 4
    s_cbranch_scc1 K1_comp
    """)
    a.label("K12_join")
    for r in range(0, 16, 2):
        a(f"v_pk_mov_b32 v[{OA+r}:{OA+r+1}], 0, 0")
    a(f"""
    s_min_u32 s3, s75, 4
    s_bfm_b32 s43, s3, 4
    s_sub_u32 s3, s75, s3
    s_bfm_b32 s42, s3, 5
    """)
    def fq_store():
        a(f"""
        v_mov_b32 v{t0}, s58
        s_lshl_b32 s3, s2, 6
        s_lshl_b32 s4, s6, 2
        s_add_u32 s3, s3, s4
        s_add_u32 s3, s3, {WS_FQ:#x}
        s_waitcnt vmcnt(7)
        s_mov_b64 exec, 1
        buffer_store_dword v{t0}, v{SP}, s[8:11], s3 offen sc1
        s_mov_b64 exec, -1
        """)
        vm.issue("FQS")
    if 'lpost' not in dbg:
        a(f"""
        s_cmp_{"lg" if 'l4' in dbg else "lt"}_u32 s6, 4
        s_cbranch_scc1 K2_nb2
        s_cmp_lg_u32 s30, 0
        s_cbranch_scc1 K2_nb2
        s_waitcnt vmcnt(0)
        s_barrier
        """)
        a.label("K2_nb2")
    a(f"""
    ds_write2_b32 v{vFW}, v{SP}, v{SP} offset0:0 offset1:8
    ds_write2_b32 v{vFW}, v{SP}, v{SP} offset0:64 offset1:80
    s_cmp_lg_u32 s30, 0
    s_cbranch_scc1 K2_safe
    s_cmp_{"eq" if 'onep' in dbg else "ge"}_u32 s6, 4
    s_cbranch_scc1 K2_poller
    s_waitcnt lgkmcnt(0)
    s_barrier
    """)
    st(1, False); st(5, 4)
    if 'amp' in dbg: a('s_memrealtime s[88:89]'); a('s_waitcnt lgkmcnt(0)')
    kv_first()
    if 'fqlate' not in dbg: fq_store()
    a("s_branch K2_go")
    a.label("K2_poller")
    PA, PB = X[0], X[0] + 8
    a(f"""
    v_lshlrev_b32 v{t1}, {FLS}, v0
    s_and_b32 s3, s2, 7
    s_lshl_b32 s3, s3, 14
    s_add_u32 s3, s3, {WS_FL:#x}
    s_add_u32 s4, s3, {64 << FLS}
    s_add_u32 s5, s3, {128 << FLS}
    s_add_u32 s34, s3, {192 << FLS}
    s_mov_b32 s36, 0
    """)
    def fissue(b):
        for k, sr in enumerate(("s3", "s4", "s5", "s34")):
            a(f"buffer_load_dword v{b+k}, v{t1}, s[8:11], {sr} offen sc1")
    def fchk(b):
        for r in range(4): a(f"v_xor_b32 v{b+r}, s58, v{b+r}")
        a(f"""
        v_or3_b32 v{b}, v{b}, v{b+1}, v{b+2}
        v_or_b32 v{b}, v{b}, v{b+3}
        v_cmp_ne_u32 vcc, 0, v{b}
        s_cbranch_vccz K2_sync0
        """)
    if int(OPT.get('fd', 0)): a(f"s_sleep {OPT.get('fd', 0)}")
    if 'fnp' in dbg:
        a.label("K2_fl")
        fissue(PA); a("s_waitcnt vmcnt(0)"); fchk(PA)
        a(f"s_sleep {OPT.get('fsl', 2)}")
    else:
        def kvpf():
            a(f"""
            s_lshr_b32 s35, s2, 3
            s_mul_i32 s35, s35, {2*TS}
            s_add_u32 s35, s35, {WS_KV:#x}
            v_min_u32 v{t0}, 33, v0
            v_lshlrev_b32 v{t0}, 7, v{t0}
            buffer_load_dword v{vPD}, v{t0}, s[8:11], s35 offen sc1
            """)
        if OPT.get('kvpf', '0') == '1': kvpf()
        fissue(PA)
        if OPT.get('kvpf', '0') == '2': kvpf()
        a("s_sleep 3")
        a.label("K2_fl")
        fissue(PB); a("s_waitcnt vmcnt(4)"); fchk(PA)
        fissue(PA); a("s_waitcnt vmcnt(4)"); fchk(PB)
    a(f"""
    s_add_u32 s36, s36, 1
    s_cmp_lt_u32 s36, 0x40000
    s_cbranch_scc1 K2_fl
    """)
    a.label("K2_sync0")
    st(4, 4)
    a(f"""
    s_lshl_b32 s3, s2, 3
    s_or_b32 s3, s3, s6
    s_cmp_lg_u32 s3, 4
    s_cbranch_scc1 K2_sync1
    v_mov_b32 v{t0}, s58
    s_mov_b32 s3, {WS_EP:#x}
    s_mov_b64 exec, 1
    buffer_store_dword v{t0}, v{SP}, s[8:11], s3 offen sc1
    s_mov_b64 exec, -1
    """)
    a.label("K2_sync1")
    vm.q = []; vm.done = -1
    if int(OPT.get('ld', 0)): a(f"s_sleep {OPT['ld']}")
    if 'nopre' not in dbg:
        a("s_mov_b32 s36, 0")
        a.label("K2_pre")
    ALLK = 'allk' in dbg
    kv_first()
    if ALLK:
        keep = list(vm.q)
        for t in range(2, 8):
            if t > 2: ldK(t)
            ldV(t)
        vm.q = keep
    if 'nopre' not in dbg:
        a(f"""
        s_add_u32 s36, s36, 1
        s_waitcnt vmcnt(0)
        v_max3_u32 v{vPD}, v{K}, v{K+4}, v{K+8}
        v_max3_u32 v{vPD}, v{vPD}, v{V}, v{V+4}
        v_max3_u32 v{vPD}, v{vPD}, v{V+8}, v{V+12}
        """)
        if ALLK:
            rest = [K + 4 * t for t in range(3, 8)] + [V + 4 * t for t in range(4, 16)] + [K]
            for k in range(0, len(rest), 2): a(f"v_max3_u32 v{vPD}, v{vPD}, v{rest[k]}, v{rest[k+1]}")
        a(f"""
        v_cmp_eq_u32 vcc, -1, v{vPD}
        s_cbranch_vccz K2_pok
        s_cmp_lt_u32 s36, 0x40000
        s_cbranch_scc1 K2_pre
        """)
        a.label("K2_pok")
    if 'fqlate' not in dbg: fq_store()
    a("s_waitcnt lgkmcnt(0)")
    a("s_barrier")
    st(1, False); st(5, 4)
    a(f"""
    s_cmp_lg_u32 s6, 4
    s_cbranch_scc1 K2_go
    ds_read_b128 v[{Q}:{Q+3}], v{vQA}
    s_waitcnt vmcnt({5 if 'fqlate' in dbg else 6})
    """)
    valid("m", [("K", 0), ("K", 1)])
    a("s_waitcnt lgkmcnt(0)")
    mref_mma(Q, X[0]); mref_max(X[0])
    a("s_branch K2_go")
    a.label("K2_safe")
    S = X[0]
    a(f"""
    v_and_b32 v{t0}, 31, v0
    v_lshlrev_b32 v{S1+4}, 2, v{t0}
    v_add_u32 v{S1+4}, {L_MX:#x}, v{S1+4}
    s_lshl_b32 s3, s44, 7
    v_add_u32 v{S1+5}, s3, v{S1+4}
    v_mov_b32 v{t0}, 0xff800000
    ds_write_b32 v{S1+5}, v{t0}
    s_waitcnt vmcnt(0) lgkmcnt(0)
    s_barrier
    v_mov_b32 v{t1}, v{vQA}
    s_mov_b32 s29, 0
    """)
    a.label("K2_safe_loop")
    a(f"""
    ds_read_b128 v[{BF}:{BF+3}], v{t1}
    v_mov_b32 v{t0}, 0xff800000
    s_waitcnt lgkmcnt(0)
    """)
    for t in range(8):
        a(f"v_mfma_f32_32x32x16_bf16 v[{S}:{S+15}], v[{K+4*t}:{K+4*t+3}], v[{BF}:{BF+3}], 0")
        for r in range(0, 16, 2):
            a(f"v_max3_f32 v{t0}, v{t0}, v{S+r}, v{S+r+1}")
    a(f"""
    ds_max_f32 v{S1+4}, v{t0}
    v_add_u32 v{t1}, 1024, v{t1}
    v_add_u32 v{S1+4}, 128, v{S1+4}
    s_add_u32 s29, s29, 1
    s_cmp_lt_u32 s29, 8
    s_cbranch_scc1 K2_safe_loop
    s_waitcnt lgkmcnt(0)
    s_barrier
    ds_read_b32 v{t0}, v{S1+5}
    s_waitcnt lgkmcnt(0)
    """)
    for r in range(4): a(f"v_sub_f32 v{BF+r}, 0, v{t0}")
    a(f"ds_write_b128 v{t4}, v[{BF}:{BF+3}] offset:{L_MREF - L_Q}")
    a.label("K2_go")
    a("s_waitcnt lgkmcnt(0)")
    a("s_barrier")
    st(2, False)
    rd_qcm()
    if 'fqlate' in dbg: fq_store()
    vm.wait("K0")
    valid("s", [("K", 0)])
    a("s_waitcnt lgkmcnt(0)")
    M1(0, 0)
    a("s_mov_b32 s29, 1")
    P0 = OPT.get('p0', '33322111')
    setprio(int(P0[0]))
    LA = int(OPT.get('la', 0))
    def masked(f):
        if ALLK: a("s_mov_b64 exec, s[80:81]")
        f()
        if ALLK: a("s_mov_b64 exec, -1")
    if ALLK:
        a("s_cmp_lt_u32 s6, 4")
        a("s_cselect_b64 s[80:81], -1, 0")
    def f0():
        for k in range(LA + 1):
            ldK(3 + k); ldV(2 + k)
    masked(f0)
    st(3, False)
    if 'leak' in dbg or 'amp' in dbg: a('s_memrealtime s[94:95]'); a('s_waitcnt lgkmcnt(0)')
    def tile(i, hook):
        xb = i & 1; xn = xb ^ 1
        hook(i, 'a')
        E(xb, 0, 2)
        hook(i, 'm3b')
        E(xb, 2, 5)
        hook(i, 'm1')
        M1((i + 1) & 7, xn)
        hook(i, 0)
        if i == 0:
            E(xb, 5, 12)
            hook(i, 1)
            Ozero()
            E(xb, 12, 16)
            M3(0, i)
            hook(i, 2)
        else:
            E(xb, 5, 8)
            hook(i, 'e1')
            E(xb, 8, 10)
            hook(i, 1)
            M3(0, i)
            hook(i, 2)
            E(xb, 10, 13)
            hook(i, 'e2')
            E(xb, 13, 15)
            hook(i, 'e3')
            E(xb, 15, 16)
    def hook0(i, pos):
        if pos == 'a' and i in (0, 2, 4, 6): st(1 + i // 2, 3)
        if pos == 'a' and i > 0 and P0[i] != P0[i - 1]: setprio(int(P0[i]))
        if pos == 'm3b' and i > 0:
            vm.wait(f"V{i-1}1"); M3(1, i - 1)
        if pos == 'm1':
            if i < 7: vm.wait(f"K{i+1}")
            else: a("s_waitcnt lgkmcnt(0)")
            vm.wait(f"V{i}1")
            valid(str(i), ([("K", i + 1)] if i < 7 else []) + [("V", 2 * i), ("V", 2 * i + 1)])
        if pos == 0:
            def f1():
                if i + 4 + LA <= 7: ldK(i + 4 + LA)
                ldV(i + 3 + LA)
            if i + 3 + LA <= 7: masked(f1)
            if i == 6: wf_load(0, 4)
            if i == 7: wf_load(4, 8)
        QT = int(OPT.get('qt', 1))
        if pos == 'e1' and i == QT:
            a(f"buffer_load_dword v{t0}, v{SP}, s[8:11], s45 offen sc1"); vm.issue("FQ")
        if pos == 'e1' and i == QT + 1:
            vm.wait("FQ")
            a(f"v_cmp_ne_u32 vcc, s58, v{t0}")
            a("s_cbranch_vccnz K2_qspin")
            a.label("K2_qback")
            a(f"buffer_load_dwordx4 v[{BF}:{BF+3}], v{vWL}, s[8:11], s32 offen sc1"); vm.issue("Q")
        if pos == 'e2' and i == int(OPT.get('qw', 4)):
            vm.wait("Q")
            a(f"ds_write_b128 v{t4}, v[{BF}:{BF+3}]")
            mref_mma(BF, WF)
        if pos == 'e1' and i == int(OPT.get('qw', 4)) + 1:
            a("s_cmp_lg_u32 s30, 0")
            a("s_cbranch_scc1 K2_keepm")
            mref_max(WF)
            a.label("K2_keepm")
        if pos == 1:
            if i == 6:
                a("s_waitcnt lgkmcnt(0)"); a("s_barrier"); rd_qcm()
            vm.wait(f"V{i}0")
        if pos == 2 and i == 7:
            vm.wait("V71")
            a(f"""
            v_mov_b32 v{S1+8}, -1
            v_mov_b32 v{S1+9}, -1
            v_lshrrev_b32 v{S1+10}, 1, v{vWL}
            s_add_u32 s3, s7, s6
            s_lshl_b32 s3, s3, 9
            s_add_u32 s3, s3, {WS_H:#x}
            buffer_store_dwordx2 v[{S1+8}:{S1+9}], v{S1+10}, s[8:11], s3 offen sc1
            """)
    for i in range(8): tile(i, hook0)
    st(5, 3)
    jitter(a, dbg, 7, 's6', 1)
    a.raw(".p2align 3")
    a.label("K2_round")
    spins = []
    def poll(off):
        if 'xchk' in dbg: return
        a(f"ds_read_b32 v{vFV}, v{vFR} offset:{off}")
    def check(off):
        if 'xchk' in dbg: return
        k = len(spins); spins.append(off)
        a(f"""
        s_waitcnt lgkmcnt(0)
        v_cmp_gt_u32 vcc, s59, v{vFV}
        s_cbranch_vccnz K2_spin{k}
        """)
        a.label(f"K2_back{k}")
    PR = dict(x.split('=') for x in dbg.split(',') if '=' in x).get('pr', 'c')
    def hook(i, pos):
        if pos == 'm3b': M3(1, (i - 1) & 7)
        if pos == 'm1' and i == 7: a("s_waitcnt lgkmcnt(0)")
        if pos == 1 and i == 6: rd_qcm()
        if 'nohook' in dbg: return
        if 'bar' in dbg.split(','):
            if pos == 'a' and i in (0, 6, 7): setprio({6: 2, 7: 1, 0: 0}[i])
            if i == 0 and pos == 1: part_write()
            if i == 1 and pos == 0:
                a("s_waitcnt lgkmcnt(0)"); a("s_barrier"); setprio(2); s1_read()
            if i == 2 and pos == 0:
                a("s_waitcnt lgkmcnt(0)"); s1_calc(); setprio(1)
            if i == 3 and pos == 0: setprio(0)
            if i == 4 and pos == 0:
                a("s_waitcnt vmcnt(0) lgkmcnt(0)"); a("s_barrier"); setprio(3); s2_read()
            seq = [(4, 'e3'), (5, 'e1'), (5, 'e2'), (5, 'e3'), (6, 'e1'), (6, 'e2'), (6, 'e3'), (7, 'e1')]
        else:
            ca = int(OPT.get('ca', 2)); cb = int(OPT.get('cb', 5)); PT = OPT.get('pt', '10220332')
            slots = [(t, p) for t in range(1, 8) for p in (('a', 'e1', 'e2', 'e3') if cb >= 6 else ('e1', 'e2', 'e3'))]
            if i == 0 and pos == 1:
                if 'xpw' not in dbg: part_write()
                a(f"ds_write_b32 v{vFW}, v{vQA}")
            if i == ca and pos == 0: poll(0)
            if i == ca and pos == 2:
                check(0)
                if 'xs1' not in dbg: s1_read()
            if i == ca + 1 and pos == {'0': 0, '1': 'e1', '2': 'e2', '3': 'a'}[OPT.get('s1p', '3')]:
                a("s_waitcnt lgkmcnt(0)")
                if 'xs1' not in dbg: s1_calc()
                a(f"ds_write_b32 v{vFW}, v{vQA} offset:32")
            if i == cb - 1 and pos == 2: poll(32)
            if i == cb and pos == 'm1':
                check(32); s2_read(); a("s_waitcnt vmcnt(0)")
            if i == int(OPT.get('stp', 2)) and pos == 'e1' and 'nopf' not in dbg:
                a("s_bitcmp1_b32 s43, s29"); a("s_cbranch_scc1 K2_stg"); a.label("K2_stgb")
            if len(PT) == 8: PT = "".join(ch * 2 for ch in PT)
            for hpos, k in (('a', 2 * i), (2, 2 * i + 1)):
                if pos == hpos and PT[k] != PT[k - 1]: setprio(int(PT[k]))
            av = [x for x in slots if x > (cb, 'e1')]
            if OPT.get('sp', '0') == '1' and len(av) >= 12: av = [x for x in av if x[1] != 'e3']
            seq = av[:8]
            while len(seq) < 8: seq = sorted(seq + [seq[len(seq) % len(av)]])
        for u in [k for k, x in enumerate(seq) if x == (i, pos)]:
            if u == 0: a("s_waitcnt lgkmcnt(0)")
            if 'xmma' not in dbg: s2_mma(u, u + 1)
            if 'nowf' not in dbg: wf_load(u, u + 1)
            if u == 7 and 'nopf' not in dbg and PFP == 1:
                a("s_cmp_eq_u32 s29, s39"); a("s_cbranch_scc1 K2_side"); a.label("K2_sideb")
    for i in range(8): tile(i, hook)
    if 'rndst' in dbg:
        a(f"""
        s_memtime s[82:83]
        s_memrealtime s[100:101]
        s_waitcnt lgkmcnt(0)
        s_lshl_b32 s84, s2, 3
        s_add_u32 s84, s84, s6
        s_lshl_b32 s84, s84, 3
        s_add_u32 s84, s84, s29
        s_lshl_b32 s84, s84, 3
        s_add_u32 s84, s84, {WS_STAMP + 0x40000:#x}
        s_mov_b64 exec, 1
        v_mov_b32 v{S1+8}, s82
        v_mov_b32 v{S1+9}, s100
        v_mov_b32 v{S1+10}, 0
        buffer_store_dwordx2 v[{S1+8}:{S1+9}], v{S1+10}, s[8:11], s84 offen
        s_mov_b64 exec, -1
        """)
    a(f"""
    s_addk_i32 s59, 1024
    s_add_u32 s29, s29, 1
    s_cmp_lt_u32 s29, 8
    s_cbranch_scc1 K2_round
    """)
    jitter(a, dbg, 6, 's6', 1)
    st(4, False); st(0, True)
    if 'amp' in dbg: a('s_memrealtime s[98:99]'); a('s_waitcnt lgkmcnt(0)')
    M3(1, 7)
    XR = CM; WR = CM + 4; HV = X[0]; HN = X[0] + 8; PK = X[1]; ST = X[1] + 8
    a(f"""
    s_add_u32 s3, s7, s6
    s_lshl_b32 s4, s3, 10
    buffer_load_dwordx4 v[{XR}:{XR+3}], v{vWL}, s[16:19], s4 offen
    buffer_load_dwordx4 v[{WR}:{WR+3}], v{vWL}, s[24:27], 0 offen
    v_and_b32 v{t0}, 7, v0
    v_mul_u32_u24 v{t0}, 1040, v{t0}
    v_lshrrev_b32 v{t1}, 4, v0
    v_lshl_add_u32 v{t0}, v{t1}, 3, v{t0}
    s_lshl_b32 s5, s6, 7
    s_add_u32 s5, s5, {L_HB:#x}
    v_add_u32 v{t0}, s5, v{t0}
    s_mul_i32 s5, s6, 1040
    s_add_u32 s5, s5, {L_HB:#x}
    v_add_u32 v{t1}, s5, v{vWL}
    s_lshl_b32 s35, s6, 2
    s_add_u32 s35, s35, {L_KEY:#x}
    v_mov_b32 v{t4}, s35
    v_and_b32 v{t3}, 7, v0
    v_lshlrev_b32 v{t3}, 2, v{t3}
    v_add_u32 v{t3}, {L_KEY:#x}, v{t3}
    """)
    part_write()
    a("s_waitcnt lgkmcnt(0)"); a("s_barrier"); st(1, True); s1_read()
    a("s_waitcnt lgkmcnt(0)"); s1_calc()
    a(f"""
    v_mov_b32 v{t2}, {f2u(2.0**124):#x}
    v_cmp_nlt_f32 vcc, v{vLM}, v{t2}
    s_cmp_lg_u64 vcc, 0
    s_cselect_b32 s5, 1, 0
    v_mov_b32 v{t2}, s5
    ds_write_b32 v{t4}, v{t2} offset:32
    """)
    a("s_waitcnt vmcnt(2) lgkmcnt(0)"); a("s_barrier"); st(2, True); s2_read()
    a(f"ds_read_b32 v{t2}, v{t3} offset:32")
    a("s_waitcnt lgkmcnt(1)"); s2_mma(0, 8)
    a(f"""
    s_waitcnt lgkmcnt(0)
    v_cmp_ne_u32 vcc, 0, v{t2}
    s_cmp_eq_u64 vcc, 0
    s_cbranch_scc1 K2_good
    s_cmp_lg_u32 s30, 0
    s_cbranch_scc1 K2_good
    s_mov_b32 s30, 1
    s_waitcnt vmcnt(0)
    s_setprio 0
    s_branch K2_restart
    """)
    a.label("K2_good")
    a("s_mov_b32 exec_lo, 0x00ff00ff"); a("s_mov_b32 exec_hi, 0x00ff00ff")
    for t in range(4):
        a(f"v_cvt_pk_bf16_f32 v{S1+2*t}, v{OA+4*t}, v{OA+4*t+1}")
        a(f"v_cvt_pk_bf16_f32 v{S1+2*t+1}, v{OA+4*t+2}, v{OA+4*t+3}")
        a(f"ds_write_b64 v{t0}, v[{S1+2*t}:{S1+2*t+1}] offset:{32*t}")
    a("s_mov_b64 exec, -1")
    a("s_waitcnt vmcnt(0)")
    for r in range(4):
        a(f"v_lshlrev_b32 v{HV+2*r}, 16, v{XR+r}")
        a(f"v_and_b32 v{HV+2*r+1}, 0xffff0000, v{XR+r}")
        a(f"v_lshlrev_b32 v{WF+2*r}, 16, v{WR+r}")
        a(f"v_and_b32 v{WF+2*r+1}, 0xffff0000, v{WR+r}")
    a(f"""
    s_waitcnt lgkmcnt(0)
    s_barrier
    """)
    st(3, True)
    a(f"""
    ds_read_b128 v[{BF}:{BF+3}], v{t1}
    s_waitcnt lgkmcnt(0)
    """)
    for r in range(4):
        a(f"v_lshlrev_b32 v{HN+2*r}, 16, v{BF+r}")
        a(f"v_and_b32 v{HN+2*r+1}, 0xffff0000, v{BF+r}")
    P2 = lambda b, r: f"v[{b+r}:{b+r+1}]"
    for r in range(0, 8, 2): a(f"v_pk_add_f32 {P2(HV,r)}, {P2(HV,r)}, {P2(HN,r)}")
    for r in range(8): a(f"v_cvt_pk_bf16_f32 v{HV+r}, 0, v{HV+r}")
    SA, SB = S1, S1 + 2
    a(f"v_pk_add_f32 {P2(SA,0)}, {P2(HV,0)}, {P2(HV,2)}")
    a(f"v_pk_mul_f32 {P2(SB,0)}, {P2(HV,0)}, {P2(HV,0)}")
    a(f"v_pk_add_f32 {P2(SA,4)}, {P2(HV,4)}, {P2(HV,6)}")
    a(f"v_pk_fma_f32 {P2(SB,0)}, {P2(HV,2)}, {P2(HV,2)}, {P2(SB,0)}")
    a(f"v_pk_add_f32 {P2(SA,0)}, {P2(SA,0)}, {P2(SA,4)}")
    a(f"v_pk_fma_f32 {P2(SB,0)}, {P2(HV,4)}, {P2(HV,4)}, {P2(SB,0)}")
    a(f"v_add_f32 v{t0}, v{SA}, v{SA+1}")
    a(f"v_pk_fma_f32 {P2(SB,0)}, {P2(HV,6)}, {P2(HV,6)}, {P2(SB,0)}")
    a(f"v_add_f32 v{t2}, v{SB}, v{SB+1}")
    wave_sum(a, [t0, t2], [ST, ST + 1])
    ln_scalars(a, t0, t2, ST, ST + 2, ST + 1, ST + 3)
    st(4, True)
    for r in range(0, 8, 2): a(f"v_pk_add_f32 {P2(HN,r)}, {P2(HV,r)}, {P2(ST,0)} op_sel_hi:[1,0] neg_lo:[0,1] neg_hi:[0,1]")
    for r in range(8): a(f"v_cvt_pk_bf16_f32 v{HN+r}, 0, v{HN+r}")
    for r in range(0, 8, 2): a(f"v_pk_mul_f32 {P2(HN,r)}, {P2(HN,r)}, {P2(ST,2)} op_sel_hi:[1,0]")
    for r in range(8): a(f"v_cvt_pk_bf16_f32 v{HN+r}, 0, v{HN+r}")
    a(f"v_pk_mul_f32 {P2(SA,0)}, {P2(HN,0)}, {P2(WF,0)}")
    for r in range(2, 8, 2): a(f"v_pk_fma_f32 {P2(SA,0)}, {P2(HN,r)}, {P2(WF,r)}, {P2(SA,0)}")
    a(f"v_add_f32 v{t2}, v{SA}, v{SA+1}")
    fill = [f"v_pk_add_f32 {P2(WF+8,r)}, {P2(HV,r)}, {P2(HN,r)}" for r in range(0, 8, 2)]
    fill += [f"v_cvt_pk_bf16_f32 v{PK+4+r}, v{HV+2*r}, v{HV+2*r+1}" for r in range(4)]
    fill += [f"v_cvt_pk_bf16_f32 v{ST+4+r}, v{HN+2*r}, v{HN+2*r+1}" for r in range(4)]
    for mod in ("quad_perm:[1,0,3,2]", "quad_perm:[2,3,0,1]", "row_half_mirror", "row_mirror"):
        a(fill.pop(0)); a(fill.pop(0))
        a(f"v_add_f32_dpp v{t2}, v{t2}, v{t2} {mod} row_mask:0xf bank_mask:0xf")
    for w in (16, 32):
        a(f"v_mov_b32 v{t0}, v{t2}")
        a(fill.pop(0)); a(fill.pop(0))
        a(f"v_permlane{w}_swap_b32 v{t0}, v{t2}")
        a(f"v_add_f32 v{t2}, v{t2}, v{t0}")
    if 'leak' in dbg:
        a(f"""
        s_cmp_lg_u32 s3, 0
        s_cbranch_scc1 K2_leak
        s_memrealtime s[92:93]
        v_mov_b32 v{S1+4}, 0
        s_mov_b32 s5, {WS_SEL:#x}
        buffer_load_dwordx4 v[{S1}:{S1+3}], v{S1+4}, s[8:11], s5 offen
        s_waitcnt vmcnt(0) lgkmcnt(0)
        s_mov_b64 exec, 1
        v_add_f32 v{WF+8}, {f2u(64.0):#x}, v{WF+8}
        v_sub_u32 v{WF+9}, v{S1+2}, v{S1}
        v_sub_u32 v{WF+10}, v{S1+1}, v{S1}
        v_sub_u32 v{WF+11}, s90, v{S1}
        v_sub_u32 v{WF+12}, s94, v{S1}
        v_sub_u32 v{WF+13}, s92, v{S1}
        """)
        for r in range(9, 14):
            a(f"v_cvt_f32_u32 v{WF+r}, v{WF+r}")
            a(f"v_mul_f32 v{WF+r}, {f2u(0.005):#x}, v{WF+r}")
            a(f"v_min_f32 v{WF+r}, {f2u(20.0):#x}, v{WF+r}")
        a("s_mov_b64 exec, -1")
        a.label("K2_leak")
    a(f"""
    v_cvt_pk_bf16_f32 v{t2}, 0, v{t2}
    v_ashrrev_i32 v{t0}, 31, v{t2}
    v_or_b32 v{t0}, 0x80000000, v{t0}
    v_xor_b32 v{t2}, v{t2}, v{t0}
    v_and_b32 v{t2}, 0xffff0000, v{t2}
    s_sub_u32 s5, 0xffff, s3
    v_or_b32 v{t2}, s5, v{t2}      ; key
    ds_write_b32 v{t4}, v{t2}
    """)
    for r in range(4): a(f"v_cvt_pk_bf16_f32 v{PK+r}, v{WF+8+2*r}, v{WF+8+2*r+1}")
    a(f"""
    buffer_store_dwordx4 v[{PK}:{PK+3}], v{vWL}, s[20:23], s4 offen sc1
    """)
    for r in range(4):
        a(f"v_min_u32 v{PK+4+r}, -2, v{PK+4+r}")
        a(f"v_min_u32 v{ST+4+r}, -2, v{ST+4+r}")
    a(f"""
    s_waitcnt lgkmcnt(0)
    s_barrier
    ds_read_b32 v{t1}, v{t3}
    s_waitcnt lgkmcnt(0)
    v_cmp_gt_u32 vcc, v{t1}, v{t2}
    v_cmp_eq_u32 s[36:37], v{t1}, v{t2}
    s_and_b32 s38, vcc_lo, 0xff
    s_bcnt1_i32_b32 s38, s38       ; rank
    """)
    st(5, False); st(5, True); st(0, 2); st(1, 2); st(2, 2); st(3, 2); st(4, 2); st(5, 2)
    if 'jit' in dbg:
        a("s_cmp_lg_u32 s38, 1"); a("s_cbranch_scc1 JITR"); a("s_sleep 100"); a("s_sleep 100"); a("s_sleep 100"); a("s_sleep 100"); a("s_sleep 100"); a("s_sleep 100"); a.label("JITR")
    a(f"""
    s_cmp_gt_u32 s38, 1
    s_cbranch_scc1 K2_pub
    s_lshl_b32 s34, s7, 9
    s_lshl_b32 s5, s38, 11
    s_add_u32 s34, s34, s5
    s_add_u32 s34, s34, {WS_H:#x}
    buffer_store_dwordx4 v[{ST+4}:{ST+7}], v{vWL}, s[8:11], s34 offen sc1
    s_cmp_lg_u32 s38, 0
    s_cbranch_scc1 K2_pub0
    v_cndmask_b32 v{ST+1}, v{t1}, 0, s[36:37]
    v_mov_b32 v{ST}, v{t2}
    s_lshl_b32 s5, s2, {G.KS_LOG}
    s_add_u32 s5, s5, {WS_KEY:#x}
    v_lshlrev_b32 v{t0}, 14, v0
    """)
    for mod in ("quad_perm:[1,0,3,2]", "quad_perm:[2,3,0,1]", "row_half_mirror"):
        a(f"v_max_u32_dpp v{ST+1}, v{ST+1}, v{ST+1} {mod} row_mask:0xf bank_mask:0xf")
    a(f"""
    v_xor_b32 v{ST+1}, 0x800, v{ST+1}
    s_mov_b64 exec, {0xff if KREP else 1}
    buffer_store_dwordx2 v[{ST}:{ST+1}], v{t0}, s[8:11], s5 offen sc1
    s_mov_b64 exec, -1
    """)
    a.label("K2_pub0")
    if 'jit' in dbg:
        for _ in range(8): a("s_sleep 100")
    a(f"""
    s_waitcnt vmcnt(0)
    buffer_store_dwordx4 v[{PK+4}:{PK+7}], v{vWL}, s[8:11], s34 offen offset:1024 sc1
    """)
    a.label("K2_pub")
    if 'amp' in dbg: a('s_memrealtime s[96:97]'); a('s_waitcnt lgkmcnt(0)')
    st(1, 2)
    def fin():
        if G.STAMP: a("s_waitcnt vmcnt(0)")
        stamp(a, 6)
        if G.STAMP: a("s_mov_b32 s91, s30")
        stamp_out(a, 1, 8, "s6", WF)
        a("s_endpgm")
    a(f"""
    s_cmp_ge_u32 s2, 144
    s_cbranch_scc1 K2_fin
    """)
    LEAD = 's6, 0' if 'lead0' in dbg else 's38, 2'
    AFR = V
    KY = K; Y = K + 8; BX = V + 32; AC = K + 16
    a(f"""
    s_setprio 0
    v_bfe_u32 v{t0}, v0, 2, 2
    v_lshrrev_b32 v{t4}, 4, v0           ; g
    v_lshl_add_u32 v{t0}, v{t4}, 3, v{t0}
    v_lshlrev_b32 v{t0}, 5, v{t0}
    v_and_b32 v{t1}, 3, v0
    v_lshl_add_u32 v{t0}, v{t1}, 3, v{t0}
    v_add_u32 v{t0}, s74, v{t0}
    """)
    for sx in range(7):
        for half in range(2):
            d = AFR + 4 * sx + 2 * half
            a(f"ds_read_b64_tr_b16 v[{d}:{d+1}], v{t0} offset:{sx*1024 + half*128}")
    a(f"""
    v_and_b32 v{t3}, 1, v0
    v_lshlrev_b32 v{vPW}, 6, v{t3}
    v_lshl_add_u32 v{vPW}, v{t4}, 4, v{vPW}
    s_lshl_b32 s5, s6, 7
    s_add_u32 s5, s5, {L_RED:#x}
    v_add_u32 v{vPW}, s5, v{vPW}
    v_and_b32 v{vPR}, 31, v0
    v_lshlrev_b32 v{vPR}, 2, v{vPR}      ; (lane&31)*4
    v_lshrrev_b32 v{vOR}, 5, v0
    v_lshl_add_u32 v{vOR}, v{vOR}, 14, v{vPR}
    s_cmp_lg_u32 {LEAD}
    s_cbranch_scc1 K2_nokey
    v_lshlrev_b32 v{t1}, {G.KS_LOG}, v0
    s_and_b32 s5, s2, {7 if KREP else 0}
    s_lshl_b32 s5, s5, 14
    s_add_u32 s5, s5, {WS_KEY:#x}
    s_add_u32 s79, s5, {64 << G.KS_LOG}
    s_add_u32 s80, s5, {128 << G.KS_LOG}
    s_add_u32 s81, s5, {192 << G.KS_LOG}
    s_mov_b32 s36, 0
    """)
    KZ = V + 60 - 8 * 0
    def poll_loop(name, issue, nld):
        K2R = X[0]
        def chk(b):
            a(f"""
            v_min3_u32 v{Y}, v{b}, v{b+1}, v{b+2}
            v_min3_u32 v{Y+1}, v{b+3}, v{b+4}, v{b+5}
            v_min3_u32 v{Y}, v{Y}, v{b+6}, v{b+7}
            v_min_u32 v{Y}, v{Y}, v{Y+1}
            v_cmp_eq_u32 vcc, 0, v{Y}
            """)
        sl = OPT.get('psl', 3)
        issue(KY)
        a(f"s_sleep {sl}")
        a.label(f"{name}_l")
        issue(K2R)
        a(f"s_waitcnt vmcnt({nld})")
        chk(KY)
        a(f"s_cbranch_vccz {name}_ok")
        issue(KY)
        a(f"s_waitcnt vmcnt({nld})")
        chk(K2R)
        a(f"""
        s_cbranch_vccz {name}_ok2
        s_add_u32 s36, s36, 1
        s_cmp_lt_u32 s36, 0x40000
        s_cbranch_scc1 {name}_l
        """)
        a.label(f"{name}_ok2")
        for r in range(0, 8, 2): a(f"v_pk_mov_b32 v[{KY+r}:{KY+r+1}], v[{K2R+r}:{K2R+r+1}], v[{K2R+r}:{K2R+r+1}] op_sel:[0,1]")
        a.label(f"{name}_ok")
    def kissue(b):
        for k, sr in enumerate(("s5", "s79", "s80", "s81")):
            a(f"buffer_load_dwordx2 v[{b+2*k}:{b+2*k+1}], v{t1}, s[8:11], {sr} offen sc1")
    if int(OPT.get('kd', 12)): a(f"s_sleep {OPT.get('kd', 12)}")
    poll_loop("K2_kp", kissue, 4)
    a.label("K2_kok")
    st(2, 2)
    if FS: a("s_mov_b32 s30, s36")
    B1, B2 = Y + 4, Y + 5
    a(f"""
    v_max_u32 v{B1}, v{KY}, v{KY+2}
    v_min_u32 v{B2}, v{KY}, v{KY+2}
    v_max3_u32 v{B2}, v{B2}, v{KY+1}, v{KY+3}
    v_max_u32 v{Y}, v{KY+4}, v{KY+6}
    v_min_u32 v{Y+1}, v{KY+4}, v{KY+6}
    v_max3_u32 v{Y+1}, v{Y+1}, v{KY+5}, v{KY+7}
    v_min_u32 v{Y+2}, v{B1}, v{Y}
    v_max_u32 v{B1}, v{B1}, v{Y}
    v_max3_u32 v{B2}, v{B2}, v{Y+1}, v{Y+2}
    v_mov_b32 v{Y}, v{B1}
    """)
    wave_max_u32(a, Y, Y + 1)
    a(f"""
    v_cmp_eq_u32 vcc, v{B1}, v{Y}
    v_cndmask_b32 v{B1}, v{B1}, v{B2}, vcc
    """)
    wave_max_u32(a, B1, Y + 1)
    a(f"""
    v_readfirstlane_b32 s40, v{Y}
    v_readfirstlane_b32 s41, v{B1}
    s_andn2_b32 s42, 0x7ff, s40
    s_andn2_b32 s43, 0x7ff, s41
    s_lshr_b32 s50, s42, 3
    s_lshr_b32 s51, s43, 3
    s_lshl_b32 s50, s50, 12
    s_lshl_b32 s51, s51, 12
    s_andn2_b32 s52, 0x800, s40
    s_andn2_b32 s53, 0x800, s41
    s_add_u32 s50, s50, s52
    s_add_u32 s51, s51, s53
    s_lshl_b32 s42, s42, 10
    s_lshl_b32 s43, s43, 10
    """)
    a.label("K2_nokey")
    a(f"""
    s_cmp_ge_u32 s2, 112
    s_cbranch_scc1 K2_down
    s_cmp_lg_u32 {LEAD}
    s_cbranch_scc1 K2_up1
    s_add_u32 s50, s50, {WS_H:#x}
    s_add_u32 s51, s51, {WS_H:#x}
    s_mov_b32 s36, 0
    """)
    a.label("K2_rows")
    a(f"""
    buffer_load_dwordx4 v[{KY}:{KY+3}], v{vWL}, s[8:11], s50 offen sc1
    buffer_load_dwordx4 v[{KY+4}:{KY+7}], v{vWL}, s[8:11], s51 offen sc1
    s_add_u32 s36, s36, 1
    s_waitcnt vmcnt(1)
    ds_write_b128 v{vWL}, v[{KY}:{KY+3}] offset:{L_XS}
    v_max3_u32 v{Y}, v{KY}, v{KY+1}, v{KY+2}
    s_waitcnt vmcnt(0)
    ds_write_b128 v{vWL}, v[{KY+4}:{KY+7}] offset:{L_XS + 1040}
    v_max3_u32 v{Y+1}, v{KY+3}, v{KY+4}, v{KY+5}
    v_max3_u32 v{Y}, v{Y}, v{KY+6}, v{KY+7}
    v_max_u32 v{Y}, v{Y}, v{Y+1}
    v_cmp_eq_u32 vcc, -1, v{Y}
    s_cbranch_vccz K2_up1
    s_cmp_lt_u32 s36, 0x40000
    s_cbranch_scc1 K2_rows
    """)
    a.label("K2_up1")
    st(3, 2)
    a(f"""
    v_mul_u32_u24 v{t0}, 1040, v{t3}
    v_lshl_add_u32 v{t0}, v{t4}, 4, v{t0}
    s_lshr_b32 s5, s6, 1
    s_lshl_b32 s5, s5, 8
    v_add_u32 v{t0}, s5, v{t0}
    s_waitcnt lgkmcnt(0)
    s_barrier
    """)
    for sx in range(4):
        a(f"ds_read_b128 v[{BX+4*sx}:{BX+4*sx+3}], v{t0} offset:{L_XS + 64*sx}")
    for sx in range(4):
        a(f"s_waitcnt lgkmcnt({3-sx})")
        c = "0" if sx == 0 else f"v[{AC}:{AC+3}]"
        a(f"v_mfma_f32_16x16x32_bf16 v[{AC}:{AC+3}], v[{AFR+4*sx}:{AFR+4*sx+3}], v[{BX+4*sx}:{BX+4*sx+3}], {c}")
    a(f"""
    ds_write_b128 v{vPW}, v[{AC}:{AC+3}]
    s_waitcnt lgkmcnt(0)
    s_barrier
    s_cmp_lg_u32 {LEAD}
    s_cbranch_scc1 K2_fin
    """)
    def red_read():
        a(f"v_add_u32 v{t0}, {L_RED:#x}, v{vPR}")
        a("s_waitcnt vmcnt(0)")
        for k in range(4):
            a(f"ds_read2_b32 v[{KY+2*k}:{KY+2*k+1}], v{t0} offset0:{64*k} offset1:{64*k+32}")
        a("s_waitcnt lgkmcnt(0)")
        a(f"v_pk_add_f32 v[{KY}:{KY+1}], v[{KY}:{KY+1}], v[{KY+2}:{KY+3}]")
        a(f"v_pk_add_f32 v[{KY+4}:{KY+5}], v[{KY+4}:{KY+5}], v[{KY+6}:{KY+7}]")
        a(f"v_pk_add_f32 v[{KY}:{KY+1}], v[{KY}:{KY+1}], v[{KY+4}:{KY+5}]")
    st(4, 2)
    jitter(a, dbg, 5)
    red_read()
    a(f"""
    v_cvt_pk_bf16_f32 v{KY}, 0, v{KY}
    v_cvt_pk_bf16_f32 v{KY+1}, 0, v{KY+1}
    """)
    sigmoid(a, KY + 2, KY, KY + 3)
    a(f"""
    v_mul_f32 v{KY}, v{KY}, v{KY+2}
    v_cvt_pk_bf16_f32 v{KY}, 0, v{KY}
    v_mul_f32 v{KY}, v{KY}, v{KY+1}
    v_cvt_pk_bf16_f32 v{KY}, 0, v{KY}
    v_or_b32 v{KY}, 1, v{KY}
    s_lshl_b32 s5, s76, 7
    s_add_u32 s5, s5, {WS_GU:#x}
    """)
    if GREP:
        for k in range(4):
            a(f"buffer_store_dword v{KY}, v{vOR}, s[8:11], s5 offen sc1")
            if k < 3: a("s_add_u32 s5, s5, 0x8000")
    else:
        a(f"""
        s_mov_b32 exec_hi, 0
        buffer_store_dword v{KY}, v{vPR}, s[8:11], s5 offen sc1
        s_mov_b64 exec, -1
        """)
    a(f"""
    s_branch K2_fin
    """)
    a.label("K2_down")
    HH, NN, GT, OO, RS = Y + 6, Y + 7, AC + 4, AC + 5, AC + 6
    a(f"""
    s_cmp_lg_u32 {LEAD}
    s_cbranch_scc1 K2_dn1
    v_bfe_u32 v{t0}, v0, 4, 1
    v_cmp_eq_u32 vcc, 0, v{t0}
    v_mov_b32 v{t0}, s43
    v_mov_b32 v{t1}, s42
    v_cndmask_b32 v{OO}, v{t0}, v{t1}, vcc
    v_and_b32 v{t0}, 15, v0
    v_lshl_add_u32 v{OO}, v{t0}, 1, v{OO}
    s_lshl_b32 s44, s77, 5
    v_mov_b32 v{t1}, s51
    v_mov_b32 v{RS}, s50
    v_cndmask_b32 v{RS}, v{t1}, v{RS}, vcc
    v_and_b32 v{t0}, 14, v0
    v_lshl_add_u32 v{RS}, v{t0}, 1, v{RS}
    s_add_u32 s52, s44, {WS_H:#x}
    v_mov_b32 v{t0}, s41
    v_mov_b32 v{t1}, s40
    v_cndmask_b32 v{GT}, v{t0}, v{t1}, vcc
    v_and_b32 v{GT}, 0xffff0000, v{GT}
    v_ashrrev_i32 v{t0}, 31, v{GT}
    v_not_b32 v{t0}, v{t0}
    v_or_b32 v{t0}, 0x80000000, v{t0}
    v_xor_b32 v{GT}, v{GT}, v{t0}
    v_and_b32 v{GT}, 0xffff0000, v{GT}
    """)
    sigmoid(a, GT, GT, t0)
    a(f"v_cvt_pk_bf16_f32 v{GT}, 0, v{GT}")
    a.label("K2_dn1")
    a(f"""
    s_mul_i32 s5, s6, 1792
    s_and_b32 s37, s2, {7 if GREP else 0}
    s_lshl_b32 s37, s37, 14
    s_add_u32 s5, s5, s37
    s_add_u32 s5, s5, {WS_GU:#x}
    v_min_u32 v{t1}, 47, v0
    v_lshlrev_b32 v{t1}, 4, v{t1}
    s_lshl_b32 s37, s6, 10
    s_add_u32 s37, s37, {L_GB:#x}
    v_lshrrev_b32 v{t0}, 3, v0
    v_lshlrev_b32 v{vPL}, 5, v{t0}
    v_and_b32 v{t0}, 3, v0
    v_lshl_add_u32 v{vPL}, v{t0}, 3, v{vPL}
    v_bfe_u32 v{t0}, v0, 2, 1
    v_mul_u32_u24 v{t0}, 464, v{t0}
    v_add3_u32 v{vPL}, v{vPL}, v{t0}, s37
    v_mul_u32_u24 v{vOW}, 464, v{t3}
    v_lshl_add_u32 v{vOW}, v{t4}, 4, v{vOW}
    v_add_u32 v{vOW}, s37, v{vOW}
    s_mov_b32 s45, 0x07060302
    s_mov_b32 s36, 0
    """)
    def gissue(b):
        a(f"buffer_load_dwordx4 v[{b}:{b+3}], v{vWL}, s[8:11], s5 offen sc1")
        a(f"buffer_load_dwordx4 v[{b+4}:{b+7}], v{t1}, s[8:11], s5 offen offset:1024 sc1")
    if 'nogb' not in dbg:
        a(f"""
        s_barrier
        s_cmp_lg_u32 {LEAD}
        s_cbranch_scc1 K2_hw
        """)
        a.label("K2_hl")
        a(f"""
        buffer_load_dword v{NN}, v{RS}, s[8:11], s52 offen sc1
        buffer_load_dword v{HH}, v{RS}, s[8:11], s52 offen offset:1024 sc1
        s_add_u32 s36, s36, 1
        s_waitcnt vmcnt(0)
        v_max_u32 v{t0}, v{HH}, v{NN}
        v_cmp_eq_u32 vcc, -1, v{t0}
        s_cbranch_vccz K2_hok
        s_cmp_lt_u32 s36, 0x40000
        s_cbranch_scc1 K2_hl
        """)
        a.label("K2_hok")
        a(f"""
        v_and_b32 v{t0}, 1, v0
        v_lshlrev_b32 v{t0}, 4, v{t0}
        v_lshrrev_b32 v{HH}, v{t0}, v{HH}
        v_lshrrev_b32 v{NN}, v{t0}, v{NN}
        s_mov_b32 s36, 0
        s_sleep {max(int(OPT.get('gd', 28)) - 14, 0)}
        s_branch K2_hx
        """)
        a.label("K2_hw")
        a(f"s_sleep {OPT.get('gd', 28)}")
        a.label("K2_hx")
    poll_loop("K2_gp", gissue, 2)
    a.label("K2_gok")
    st(4, 2)
    a(f"""
    v_perm_b32 v{Y}, v{KY+1}, v{KY}, s45
    v_perm_b32 v{Y+1}, v{KY+3}, v{KY+2}, s45
    v_perm_b32 v{Y+2}, v{KY+5}, v{KY+4}, s45
    v_perm_b32 v{Y+3}, v{KY+7}, v{KY+6}, s45
    ds_write_b64 v{vPL}, v[{Y}:{Y+1}]
    s_mov_b32 exec_hi, 0xffff
    ds_write_b64 v{vPL}, v[{Y+2}:{Y+3}] offset:256
    s_mov_b64 exec, -1
    """)
    for sx in range(7):
        a(f"ds_read_b128 v[{BX+4*sx}:{BX+4*sx+3}], v{vOW} offset:{64*sx}")
    for sx in range(7):
        a(f"s_waitcnt lgkmcnt({6-sx})")
        c = "0" if sx == 0 else f"v[{AC}:{AC+3}]"
        a(f"v_mfma_f32_16x16x32_bf16 v[{AC}:{AC+3}], v[{AFR+4*sx}:{AFR+4*sx+3}], v[{BX+4*sx}:{BX+4*sx+3}], {c}")
    a(f"""
    ds_write_b128 v{vPW}, v[{AC}:{AC+3}]
    s_waitcnt lgkmcnt(0)
    s_barrier
    s_cmp_lg_u32 {LEAD}
    s_cbranch_scc1 K2_fin
    """)
    red_read()
    a(f"""
    v_add_f32 v{KY}, v{KY}, v{KY+1}
    v_lshlrev_b32 v{HH}, 16, v{HH}
    v_lshlrev_b32 v{NN}, 16, v{NN}
    v_cvt_pk_bf16_f32 v{KY}, 0, v{KY}
    v_mul_f32 v{KY}, v{KY}, v{GT}
    v_cvt_pk_bf16_f32 v{KY}, 0, v{KY}
    v_add_f32 v{KY}, v{KY}, v{NN}
    v_cvt_pk_bf16_f32 v{KY}, 0, v{KY}
    v_add_f32 v{KY}, v{KY}, v{HH}
    v_cvt_pk_bf16_f32 v{KY}, v{KY}, v{KY}
    s_mov_b32 exec_hi, 0
    buffer_store_short v{KY}, v{OO}, s[20:23], s44 offen sc1
    s_mov_b64 exec, -1
    """)
    a.label("K2_fin")
    if 'lite' in dbg:
        a(f"""
        s_waitcnt vmcnt(0)
        s_memrealtime s[92:93]
        s_lshl_b32 s3, s2, 3
        s_add_u32 s3, s3, s6
        s_lshl_b32 s3, s3, 3
        s_add_u32 s3, s3, {WS_STAMP:#x}
        s_waitcnt lgkmcnt(0)
        v_mov_b32 v{S1}, s90
        v_mov_b32 v{S1+1}, s92
        s_mov_b64 exec, 1
        buffer_store_dwordx2 v[{S1}:{S1+1}], v{SP}, s[8:11], s3 offen
        """)
    if 'amp' in dbg:
        q = int(OPT['amp'])
        expr = {0: None, 1: ("s83", "s90"), 2: ("s84", "s90"), 3: ("s85", "s90"), 4: ("s86", "s90"), 5: ("s88", "s90"), 6: ("s94", "s90"), 7: ("s98", "s94"), 8: ("s96", "s98")}[q]
        a(f"""
        s_or_b32 s5, s2, s6
        s_cmp_lg_u32 s5, 0
        s_cbranch_scc1 K2_amp_end
        """)
        if expr: a(f"s_sub_u32 s85, {expr[0]}, {expr[1]}")
        else: a("s_mov_b32 s85, 0")
        a(f"""
        s_min_u32 s85, s85, 5000
        s_lshl_b32 s85, s85, 1
        s_add_u32 s85, s85, 600
        s_add_u32 s85, s85, s96
        """)
        a.label("K2_amp")
        a(f"""
        s_memrealtime s[92:93]
        s_waitcnt lgkmcnt(0)
        s_sub_u32 s86, s92, s85
        s_cmp_lt_i32 s86, 0
        s_cbranch_scc1 K2_amp
        """)
        a.label("K2_amp_end")
    if G.STAMP: a("s_waitcnt vmcnt(0)")
    stamp(a, 6)
    if G.STAMP: a("s_mov_b32 s91, s30")
    stamp_out(a, 1, 8, "s6", WF)
    dstamp(a, 1, True, 240)
    a.label("K2_end")
    a("s_endpgm")
    if 'nopf' not in dbg:
        a.label("K2_side")
        a(f"buffer_load_dword v{vPD}, v{vPA}, s[12:15], s38 offen")
        a("s_branch K2_sideb")
        a.label("K2_stg")
        for e in range(2):
            a(f"""
            s_mov_b32 m0, s78
            s_add_u32 s78, s78, 1024
            buffer_load_dwordx4 v{vFS}, s[68:71], s72 offen lds
            s_add_u32 s72, s72, s73
            """)
            if e == 0:
                a("s_bitcmp1_b32 s42, s29"); a("s_cbranch_scc0 K2_stgb")
        a("s_branch K2_stgb")
    for name, fr in retries:
        a.label(f"K2_rt{name}")
        a("s_mov_b32 s36, 0")
        a.label(f"K2_rl{name}")
        for kind, t in fr:
            if kind == "K": a(f"buffer_load_dwordx4 v[{K+4*t}:{K+4*t+3}], v{vWL}, s[8:11], s{50+t} offen sc1")
            else: a(f"buffer_load_dwordx4 v[{V+4*t}:{V+4*t+3}], v{vVL}, s[8:11], s{50+t//2} offen offset:{1024 + 544*(t&1)} sc1")
        a("s_add_u32 s36, s36, 1")
        a("s_waitcnt vmcnt(0)")
        vtest(fr)
        a(f"""
        s_cbranch_vccz K2_rb{name}
        s_cmp_lt_u32 s36, 0x40000
        s_cbranch_scc1 K2_rl{name}
        s_branch K2_rb{name}
        """)
    a.label("K2_qspin")
    a(f"""
    s_mov_b32 s36, 0
    """)
    a.label("K2_qspin1")
    a(f"""
    s_sleep 2
    buffer_load_dword v{t0}, v{SP}, s[8:11], s45 offen sc1
    s_add_u32 s36, s36, 1
    s_waitcnt vmcnt(0)
    v_cmp_ne_u32 vcc, s58, v{t0}
    s_cbranch_vccz K2_qback
    s_cmp_lt_u32 s36, 0x40000
    s_cbranch_scc1 K2_qspin1
    s_branch K2_qback
    """)
    for k, off in enumerate(spins):
        a.label(f"K2_spin{k}")
        a(f"""
        s_sleep 1
        ds_read_b32 v{vFV}, v{vFR} offset:{off}
        s_waitcnt lgkmcnt(0)
        v_cmp_gt_u32 vcc, s59, v{vFV}
        s_cbranch_vccnz K2_spin{k}
        s_branch K2_back{k}
        """)
```

```python
from gen import *
import gen as G

L_PART = 0x0; L_Q = 0x6000; L_MREF = 0x8400; L_OB = 0x5800; L_KEY = 0xAC00; L_FLG = 0xAD00; L_ZC = 0xAE00; L_MX = 0xB000; L_HB = 0xB400
L_FW = 0xE000; L_TOTAL = 0xE000 + 8 * 7168
L_XS = L_PART; L_RED = L_PART + 0x1000; L_GB = L_PART + 0x2000
C_EXACT = 0.25 * 1.4426950408889634
OFFS = 96.0

def wave_sum(a, vs, ts):
    if isinstance(vs, int): vs, ts = [vs], [ts]
    for mod in ("quad_perm:[1,0,3,2]", "quad_perm:[2,3,0,1]", "row_half_mirror", "row_mirror"):
        for v in vs:
            a(f"v_add_f32_dpp v{v}, v{v}, v{v} {mod} row_mask:0xf bank_mask:0xf")
    for w in (16, 32):
        for v, t in zip(vs, ts): a(f"v_mov_b32 v{t}, v{v}")
        for v, t in zip(vs, ts): a(f"v_permlane{w}_swap_b32 v{t}, v{v}")
        for v, t in zip(vs, ts): a(f"v_add_f32 v{v}, v{v}, v{t}")

class VM:
    def __init__(self, a): self.a = a; self.q = []; self.done = -1
    def issue(self, tag): self.q.append(tag)
    def wait(self, tag):
        i = max(k for k, t in enumerate(self.q) if t == tag)
        if i <= self.done: return
        self.done = i
        self.a(f"s_waitcnt vmcnt({len(self.q) - 1 - i})")

def wave_max_u32(a, v, t):
    for mod in ("quad_perm:[1,0,3,2]", "quad_perm:[2,3,0,1]", "row_half_mirror", "row_mirror"):
        a(f"v_max_u32_dpp v{v}, v{v}, v{v} {mod} row_mask:0xf bank_mask:0xf")
    for w in (16, 32):
        a(f"""
        v_mov_b32 v{t}, v{v}
        v_permlane{w}_swap_b32 v{t}, v{v}
        v_max_u32 v{v}, v{v}, v{t}
        """)

LOG2E = 1.4426950408889634
def sigmoid(a, d, x, t):
    a(f"""
    v_mul_f32 v{t}, {f2u(-LOG2E):#x}, v{x}
    v_exp_f32 v{t}, v{t}
    v_add_f32 v{t}, 1.0, v{t}
    v_rcp_f32 v{d}, v{t}
    """)

def gen_p2(a, dbg='', prio=True):
    SC = ' sc1'
    OPT = dict(x.split('=') for x in dbg.split(',') if '=' in x)
    FLS = int(OPT.get('fls', 4))
    PFS = int(OPT.get('pfs', 0)); PFP = int(OPT.get('pfp', 1))
    TAILST = 'tailst' in dbg
    FS = 'ffnst' in dbg
    KREP = 'nokrep' not in dbg; GREP = 'nogrep' not in dbg
    def st(i, tail):
        if 'p1st' in dbg:
            if tail == 4: stamp(a, i)
        elif 'r0st' in dbg:
            if tail == 3: stamp(a, i)
        elif FS:
            if tail == 2: stamp(a, i)
        elif tail in (True, False) and bool(tail) == TAILST: stamp(a, i)
    K = 16; V = 48; X = [112, 128]; O = 144; CM = 160; SP = 176; Q = 184; OA = 188; WF = 204; BF = 236; S1 = 240
    vQA, vPW, vPR, vPL, vOW, vOR, vLM, vWL, vKL, vVL = 1, 2, 3, 4, 5, 6, 7, 8, 9, 10
    t0, t1, t2, t3, t4 = 11, 12, 13, 14, 15
    vFW, vFR, vFV, vWLs = 9, 13, 14, 15
    vFS, vPA, vPD = SP + 4, SP + 5, SP + 6
    a.label("K12_setup")
    a(f"""
    s_load_dwordx2 s[48:49], s[0:1], 96
    s_load_dwordx2 s[40:41], s[0:1], 0
    s_load_dwordx8 s[60:67], s[0:1], 48
    s_load_dwordx2 s[46:47], s[0:1], 80
    s_waitcnt lgkmcnt(0)
    """)
    a.label("K12_setup1")
    a(f"""
    s_and_b32 s3, s2, 7
    s_lshr_b32 s4, s2, 3
    s_lshl_b32 s7, s3, 8
    s_lshl_b32 s5, s4, 3
    s_add_u32 s7, s7, s5           ; T0
    s_and_b32 s28, s4, 7           ; rot
    v_lshrrev_b32 v{t0}, 6, v0
    v_and_b32 v0, 63, v0
    v_readfirstlane_b32 s6, v{t0}
    s_mov_b32 s30, 0
    v_lshlrev_b32 v{vWL}, 4, v0
    s_mul_i32 s3, s6, {8*TS}
    s_add_u32 s3, s3, {WS_KV:#x}
    """)
    for t in range(8):
        a(f"""
        s_add_u32 s4, s28, {t}
        s_and_b32 s4, s4, 7
        s_mul_i32 s4, s4, {TS}
        s_add_u32 s{50+t}, s3, s4
        """)
    a.label("K2_restart")
    a(f"""
    s_add_u32 s44, s6, 4
    s_and_b32 s44, s44, 7
    s_add_u32 s3, s44, s28
    s_and_b32 s3, s3, 7
    s_add_u32 s3, s3, s7
    s_lshl_b32 s32, s3, 10
    v_and_b32 v{t1}, 31, v0
    v_lshrrev_b32 v{t2}, 5, v0
    v_mul_u32_u24 v{vVL}, 272, v{t2}
    v_lshl_add_u32 v{vVL}, v{t1}, 4, v{vVL}
    v_cmp_lt_u32 vcc, 16, v{t1}
    v_bfrev_b32 v{t0}, 1
    v_add_u32 v{vQA}, {L_Q:#x}, v{vWL}
    v_cndmask_b32 v{vVL}, v{vVL}, v{t0}, vcc
    """)
    srd(a, 8, 48, 49, WS_SIZE)
    vm = VM(a)
    def ldK(t):
        a(f"buffer_load_dwordx4 v[{K+4*t}:{K+4*t+3}], v{vWL}, s[8:11], s{50+t} offen{SC}"); vm.issue(f"K{t}")
    def ldV(t):
        if 'vmask' in dbg:
            a("s_mov_b32 exec_lo, 0x1ffff"); a("s_mov_b32 exec_hi, 0x1ffff")
            for h in range(2):
                a(f"buffer_load_dwordx4 v[{V+8*t+4*h}:{V+8*t+4*h+3}], v{vVL}, s[8:11], s{50+t} offen offset:{1024 + 544*h}{SC}"); vm.issue(f"V{t}{h}")
            a("s_mov_b64 exec, -1")
            return
        for h in range(2):
            a(f"buffer_load_dwordx4 v[{V+8*t+4*h}:{V+8*t+4*h+3}], v{vVL}, s[8:11], s{50+t} offen offset:{1024 + 544*h}{SC}"); vm.issue(f"V{t}{h}")
    a(f"""
    s_lshl_b32 s3, s44, 10
    v_add_u32 v{t4}, s3, v{vQA}
    """)
    def late_setup(part):
        u0, u1, u2, u3 = S1, S1 + 1, S1 + 2, S1 + 3
        if part == 0:
            srd(a, 16, 40, 41, 0x200000)
            srd(a, 20, 46, 47, 0x200000)
            srd(a, 24, 60, 61, 0x400)
            a(f"""
            v_and_b32 v{u1}, 31, v0
            v_lshrrev_b32 v{u2}, 5, v0
            v_mul_u32_u24 v{vPW}, 80, v{u1}
            s_mul_i32 s3, s6, 2560
            v_add_u32 v{vPW}, s3, v{vPW}
            v_lshl_add_u32 v{SP+3}, v{u2}, 2, v{vPW}
            v_lshl_add_u32 v{vPW}, v{u2}, 4, v{vPW}
            v_lshrrev_b32 v{u0}, 4, v0     ; g
            s_lshr_b32 s3, s6, 1
            s_lshl_b32 s3, s3, 3
            s_and_b32 s4, s6, 1
            s_lshl_b32 s4, s4, 1
            s_add_u32 s3, s3, s4
            v_and_b32 v{u1}, 1, v{u0}
            v_lshl_add_u32 v{u1}, v{u1}, 2, v{u2}
            v_add_u32 v{u1}, s3, v{u1}     ; n = 8*(w>>1) + 2*(w&1) + (g>>1) + 4*(g&1)
            v_mul_u32_u24 v{vPL}, 80, v{u1}
            v_and_b32 v{u2}, 15, v0        ; d
            v_lshl_add_u32 v{vPR}, v{u2}, 2, v{vPL}
            v_and_b32 v{u3}, 7, v0
            v_mul_u32_u24 v{u3}, 2560, v{u3}
            v_add3_u32 v{vPL}, v{vPL}, v{u3}, 64
            s_lshl_b32 s31, s28, 16
            s_lshl_b32 s33, s6, 13
            s_add_u32 s33, s33, {WS_WOF:#x}
            """)
        elif part == 1:
            a(f"""
            v_and_b32 v{u3}, 7, v{u1}      ; token
            v_lshrrev_b32 v{u1}, 3, v{u1}  ; head_local
            v_mul_u32_u24 v{vOW}, 144, v{u3}
            v_lshl_add_u32 v{vOW}, v{u1}, 5, v{vOW}
            v_lshl_add_u32 v{vOW}, v{u2}, 1, v{vOW}
            v_add_u32 v{vOW}, {L_OB:#x}, v{vOW}
            v_and_b32 v{u3}, 7, v0
            v_mul_u32_u24 v{vOR}, 144, v{u3}
            v_lshl_add_u32 v{vOR}, v{u0}, 4, v{vOR}
            v_add_u32 v{vOR}, {L_OB:#x}, v{vOR}
            {"" if 'nozc' in dbg else f"v_and_b32 v{u1}, 8, v0"}
            {"" if 'nozc' in dbg else f"v_cmp_ne_u32 vcc, 0, v{u1}"}
            {"" if 'nozc' in dbg else f"v_mov_b32 v{u1}, {L_ZC:#x}"}
            {"" if 'nozc' in dbg else f"v_cndmask_b32 v{vOR}, v{vOR}, v{u1}, vcc"}
            v_mov_b32 v{vLM}, 0
            v_lshlrev_b32 v{vFR}, 2, v{u3}
            v_add_u32 v{vFR}, {L_FLG:#x}, v{vFR}
            """)
        else:
            a(f"v_pk_mov_b32 v[{SP}:{SP+1}], 0, 0")
            a(f"v_mov_b32 v{SP+2}, 0xdddddddd")
    def rd_qcm():
        a(f"ds_read_b128 v[{Q}:{Q+3}], v{vQA}")
        for k in range(4):
            a(f"ds_read_b128 v[{CM+4*k}:{CM+4*k+3}], v{vQA} offset:{L_MREF - L_Q}")
        a(f"v_add_u32 v{vQA}, 1024, v{vQA}")
    mf = "v_mfma_f32_32x32x16_bf16"
    def M1(kt, xb):
        if 'nom1' in dbg: a("s_nop 1"); return
        a(f"{mf} v[{X[xb]}:{X[xb]+15}], v[{K+4*kt}:{K+4*kt+3}], v[{Q}:{Q+3}], v[{CM}:{CM+15}]")
    def E(xb, lo, hi):
        for r in range(lo, hi):
            if 'expnop' in dbg:
                a("v_nop"); a("v_nop")
                continue
            if 'noexp' in dbg:
                a(f"v_cvt_pk_bf16_f32 v{X[xb]+r}, 0, v{X[xb]+r}"); a(f"v_cvt_pk_bf16_f32 v{X[xb]+r}, 0, v{X[xb]+r}")
                continue
            a(f"v_exp_f32 v{X[xb]+r}, v{X[xb]+r}")
    def C2(h, xb):
        for k in range(4):
            a(f"v_cvt_pk_bf16_f32 v{SP+4*h+k}, v{X[xb]+8*h+2*k}, v{X[xb]+8*h+2*k+1}")
    def M3(h, kt):
        xb = kt & 1
        if 'nom3' in dbg: a("s_nop 2"); return
        a(f"v_smfmac_f32_32x32x32_bf16 v[{O}:{O+15}], v[{V+8*kt+4*h}:{V+8*kt+4*h+3}], v[{X[xb]+8*h}:{X[xb]+8*h+7}], v{SP+2}")
    def Ozero():
        a(f"v_mfma_f32_32x32x8bf16_1k v[{O}:{O+15}], v[{SP}:{SP+1}], v[{SP}:{SP+1}], 0")
    def part_write():
        a(f"""
        ds_write_b128 v{vPW}, v[{O}:{O+3}]
        ds_write_b128 v{vPW}, v[{O+4}:{O+7}] offset:32
        ds_write_b32 v{SP+3}, v{O+8} offset:64
        """)
    def s1_read():
        a(f"ds_read_b32 v{S1+8}, v{vPL}")
        for k in range(4):
            a(f"ds_read2st64_b32 v[{S1+2*k}:{S1+2*k+1}], v{vPR} offset0:{20*k} offset1:{20*k+10}")
    def s1_calc():
        dp = lambda mod: f"v_add_f32_dpp v{S1+8}, v{S1+8}, v{S1+8} {mod} row_mask:0xf bank_mask:0xf"
        pa = (lambda x, y: f"v_add_f32 v{x}, v{x}, v{y}\nv_add_f32 v{x+1}, v{x+1}, v{y+1}") if 's1sc' in dbg else \
             (lambda x, y: f"v_pk_add_f32 v[{x}:{x+1}], v[{x}:{x+1}], v[{y}:{y+1}]")
        a(f"""
        {dp("quad_perm:[1,0,3,2]")}
        {pa(S1, S1+2)}
        {pa(S1+4, S1+6)}
        {dp("quad_perm:[2,3,0,1]")}
        {pa(S1, S1+4)}
        v_add_f32 v{S1}, v{S1}, v{S1+1}
        {dp("row_half_mirror")}
        v_rcp_f32 v{S1+1}, v{S1+8}
        v_maximum3_f32 v{vLM}, v{vLM}, v{S1+8}, abs(v{S1})
        v_mul_f32 v{S1}, v{S1}, v{S1+1}
        v_cvt_pk_bf16_f32 v{S1}, v{S1}, v{S1}
        ds_write_b16 v{vOW}, v{S1}
        """)
    def s2_read():
        for s in range(2):
            a(f"ds_read_b128 v[{BF+4*s}:{BF+4*s+3}], v{vOR} offset:{64*s}")
    def s2_mma(lo, hi):
        for u in range(lo, hi):
            s, t = u >> 2, u & 3
            a(f"v_mfma_f32_16x16x32_bf16 v[{OA+4*t}:{OA+4*t+3}], v[{WF+4*u}:{WF+4*u+3}], v[{BF+4*s}:{BF+4*s+3}], v[{OA+4*t}:{OA+4*t+3}]")
    def wf_load(lo, hi):
        if lo == 0:
            a("s_add_u32 s34, s33, s31")
            a("s_add_u32 s35, s34, 4096")
            a("s_add_u32 s31, s31, 0x10000")
            a("s_and_b32 s31, s31, 0x7ffff")
        for u in range(lo, hi):
            a(f"buffer_load_dwordx4 v[{WF+4*u}:{WF+4*u+3}], v{vWL}, s[8:11], s{34 + (u >> 2)} offen offset:{1024*(u&3)}{'' if 'wfpl' in dbg else ' nt' if 'wfnt' in dbg else SC}")
            vm.issue("WF")
    def ffn_prefetch():
        a(f"""
        s_mov_b32 s39, s6
        s_cmp_eq_u32 s39, 1
        s_cselect_b64 s[36:37], s[64:65], s[62:63]
        s_cmp_eq_u32 s39, 2
        s_cselect_b64 s[36:37], s[66:67], s[36:37]
        """)
        srd(a, 12, 36, 37, 512 * 1792 * 2)
        a(f"""
        s_and_b32 s3, s2, 7
        s_lshr_b32 s4, s2, 3
        s_mul_i32 s5, s4, {16*3584}
        s_mul_i32 s36, s3, 448
        s_and_b32 s36, s36, 0xffffff80
        s_add_u32 s5, s5, s36
        s_lshl_b32 s36, s3, 7
        s_mul_i32 s37, s4, {56*1024}
        s_add_u32 s36, s36, s37
        v_lshrrev_b32 v{t0}, 2, v0
        v_mul_u32_u24 v{t0}, 3584, v{t0}
        v_and_b32 v{t1}, 3, v0
        v_lshl_add_u32 v{t0}, v{t1}, 7, v{t0}
        v_min_u32 v{t1}, 55, v0
        v_lshlrev_b32 v{t1}, 10, v{t1}
        s_cmp_eq_u32 s39, 2
        s_cselect_b32 s38, s36, s5
        s_cselect_b64 vcc, -1, 0
        v_cndmask_b32 v{vPA}, v{t0}, v{t1}, vcc
        s_lshl_b32 s39, s6, {PFS}
        s_add_u32 s39, s39, 1
        s_cmp_gt_u32 s6, 2
        s_cselect_b32 s39, 99, s39
        """)
    def ffn_setup():
        a(f"""
        s_and_b32 s3, s2, 7
        s_lshr_b32 s4, s2, 3
        s_and_b32 s5, s6, 1
        s_cmp_eq_u32 s5, 0
        s_cselect_b64 s[36:37], s[62:63], s[64:65]
        s_cmp_lt_u32 s2, 112
        s_cselect_b64 s[36:37], s[36:37], s[66:67]
        """)
        srd(a, 68, 36, 37, 512 * 1792 * 2)
        a(f"""
        s_mul_i32 s76, s3, 14
        s_add_u32 s76, s76, s4           ; fs
        s_lshl_b32 s77, s3, 2
        s_add_u32 s77, s77, s4
        s_sub_u32 s77, s77, 14           ; cb
        s_lshr_b32 s5, s6, 1
        s_mul_i32 s5, s5, {128*3584}
        s_lshl_b32 s36, s76, 5
        s_add_u32 s5, s5, s36
        s_mul_i32 s36, s6, {224*1024}
        s_lshl_b32 s37, s77, 5
        s_add_u32 s36, s36, s37
        s_cmp_lt_u32 s2, 112
        s_cselect_b32 s72, s5, s36
        s_movk_i32 s73, 1024
        s_cselect_b32 s73, 3584, s73
        s_cselect_b32 s75, 4, 7
        s_cmp_lt_u32 s2, 144
        s_cselect_b32 s75, s75, 0
        s_mul_i32 s74, s6, 7168
        s_add_u32 s74, s74, {L_FW:#x}
        v_lshrrev_b32 v{vFS}, 1, v0
        v_mul_lo_u32 v{vFS}, v{vFS}, s73
        v_and_b32 v{t1}, 1, v0
        v_lshl_add_u32 v{vFS}, v{t1}, 4, v{vFS}
        s_lshl_b32 s73, s73, 5
        s_mov_b32 s78, s74
        """)
    def ffn_stage():
        a(f"""
        s_cmp_lt_u32 s29, 4
        s_cbranch_scc1 K2_nost
        """)
        for e in range(2):
            a(f"""
            s_cmp_eq_u32 s75, 0
            s_cbranch_scc1 K2_nost
            s_mov_b32 m0, s78
            s_sub_u32 s75, s75, 1
            buffer_load_dwordx4 v{vFS}, s[68:71], s72 offen lds
            s_add_u32 s78, s78, 1024
            s_add_u32 s72, s72, s73
            """)
        a.label("K2_nost")
    def ffn_issue():
        a(f"""
        s_cmp_lg_u32 s29, s39
        s_cbranch_scc1 K2_nopf
        buffer_load_dword v{vPD}, v{vPA}, s[12:15], s38 offen
        """)
        a.label("K2_nopf")
    def setprio(p):
        if prio: a(f"s_setprio {p}")
    def mref_mma(q, d):
        a(f"{mf} v[{d}:{d+15}], v[{K}:{K+3}], v[{q}:{q+3}], 0")
        a(f"{mf} v[{d+16}:{d+31}], v[{K+4}:{K+7}], v[{q}:{q+3}], 0")
    def mref_max(S, ad=None):
        ad = t4 if ad is None else ad
        a(f"v_max3_f32 v{t0}, v{S}, v{S+1}, v{S+2}")
        for r in range(3, 31, 2):
            a(f"v_max3_f32 v{t0}, v{t0}, v{S+r}, v{S+r+1}")
        a(f"""
        v_max_f32 v{t0}, v{t0}, v{S+31}
        v_mov_b32 v{t1}, v{t0}
        v_permlane32_swap_b32 v{t1}, v{t0}
        v_max_f32 v{t0}, v{t0}, v{t1}
        """)
        for r in range(4): a(f"v_sub_f32 v{S+r}, {f2u(-OFFS):#x}, v{t0}")
        a(f"ds_write_b128 v{ad}, v[{S}:{S+3}] offset:{L_MREF - L_Q}")
    retries = []
    def frag(kind, t): return K + 4 * t if kind == "K" else BF if kind == "Q" else V + 4 * t
    def vtest(fr):
        r = [frag(*f) for f in fr]
        if len(r) == 1: a(f"v_cmp_eq_u32 vcc, -1, v{r[0]}"); return
        a(f"v_max_u32 v{vPD}, v{r[0]}, v{r[1]}" if len(r) == 2 else f"v_max3_u32 v{vPD}, v{r[0]}, v{r[1]}, v{r[2]}")
        a(f"v_cmp_eq_u32 vcc, -1, v{vPD}")
    def valid(name, fr):
        vtest(fr)
        a(f"s_cbranch_vccnz K2_rt{name}")
        a.label(f"K2_rb{name}")
        retries.append((name, fr))
    def kv_first():
        ldK(0); ldK(1); ldV(0); ldK(2); ldV(1)
    for p in range(3): late_setup(p)
    ffn_prefetch(); ffn_setup()
    a(f"""
    s_lshl_b32 s3, s6, 2
    s_add_u32 s3, s3, {L_FLG:#x}
    v_mov_b32 v{vFW}, s3
    s_movk_i32 s59, {L_Q + 2048:#x}
    s_lshl_b32 s3, s30, 2
    s_or_b32 s3, s3, s6
    s_cmp_lt_u32 s3, 4
    s_cbranch_scc1 K1_comp
    """)
    a.label("K12_join")
    for r in range(0, 16, 2):
        a(f"v_pk_mov_b32 v[{OA+r}:{OA+r+1}], 0, 0")
    a(f"""
    s_min_u32 s3, s75, 4
    s_bfm_b32 s43, s3, 4
    s_sub_u32 s3, s75, s3
    s_bfm_b32 s42, s3, 5
    """)
    def fq_store():
        a(f"""
        v_mov_b32 v{t0}, s58
        s_lshl_b32 s3, s2, 6
        s_lshl_b32 s4, s6, 2
        s_add_u32 s3, s3, s4
        s_add_u32 s3, s3, {WS_FQ:#x}
        """)
        vm.wait("QS")
        a(f"""
        s_mov_b64 exec, 1
        buffer_store_dword v{t0}, v{SP}, s[8:11], s3 offen sc1
        s_mov_b64 exec, -1
        """)
        vm.issue("FQS")
    if 'lpost' not in dbg:
        a(f"""
        s_cmp_lt_u32 s6, 4
        s_cbranch_scc1 K2_nb2
        s_cmp_lg_u32 s30, 0
        s_cbranch_scc1 K2_nb2
        s_waitcnt vmcnt(0)
        s_barrier
        """)
        a.label("K2_nb2")
    a(f"""
    ds_write2_b32 v{vFW}, v{SP}, v{SP} offset0:0 offset1:8
    ds_write2_b32 v{vFW}, v{SP}, v{SP} offset0:64 offset1:80
    s_cmp_lg_u32 s30, 0
    s_cbranch_scc1 K2_safe
    s_cmp_{"eq" if 'onep' in dbg else "ge"}_u32 s6, 4
    s_cbranch_scc1 K2_poller
    s_lshr_b32 s3, s28, 1
    s_cmp_lg_u32 s3, s6
    s_cbranch_scc1 K2_go
    ds_read_b128 v[{Q}:{Q+3}], v{vQA}
    s_waitcnt vmcnt(7)
    """)
    valid("m", [("K", 0), ("K", 1)])
    a("s_waitcnt lgkmcnt(0)")
    mref_mma(Q, WF); mref_max(WF, vQA)
    a("s_branch K2_go")
    a.label("K2_poller")
    a("s_cmp_lg_u32 s6, 4")
    a("s_cbranch_scc1 K2_sync1")
    PA, PB = X[0], X[0] + 8
    a(f"""
    v_lshlrev_b32 v{t1}, {FLS}, v0
    s_and_b32 s3, s2, 7
    s_lshl_b32 s3, s3, 14
    s_add_u32 s3, s3, {WS_FL:#x}
    s_add_u32 s4, s3, {64 << FLS}
    s_add_u32 s5, s3, {128 << FLS}
    s_add_u32 s34, s3, {192 << FLS}
    s_mov_b32 s36, 0
    """)
    def fissue(b):
        for k, sr in enumerate(("s3", "s4", "s5", "s34")):
            a(f"buffer_load_dword v{b+k}, v{t1}, s[8:11], {sr} offen sc1")
    def fchk(b):
        for r in range(4): a(f"v_xor_b32 v{b+r}, s58, v{b+r}")
        a(f"""
        v_or3_b32 v{b}, v{b}, v{b+1}, v{b+2}
        v_or_b32 v{b}, v{b}, v{b+3}
        v_cmp_ne_u32 vcc, 0, v{b}
        s_cbranch_vccz K2_sync0
        """)
    if int(OPT.get('fd', 0)): a(f"s_sleep {OPT.get('fd', 0)}")
    if 'fnp' in dbg:
        a.label("K2_fl")
        fissue(PA); a("s_waitcnt vmcnt(0)"); fchk(PA)
        a(f"s_sleep {OPT.get('fsl', 2)}")
    else:
        def kvpf():
            a(f"""
            s_lshr_b32 s35, s2, 3
            s_mul_i32 s35, s35, {2*TS}
            s_add_u32 s35, s35, {WS_KV:#x}
            v_min_u32 v{t0}, 33, v0
            v_lshlrev_b32 v{t0}, 7, v{t0}
            buffer_load_dword v{vPD}, v{t0}, s[8:11], s35 offen sc1
            """)
        if OPT.get('kvpf', '0') == '1': kvpf()
        fissue(PA)
        if OPT.get('kvpf', '0') == '2': kvpf()
        a("s_sleep 3")
        a.label("K2_fl")
        fissue(PB); a("s_waitcnt vmcnt(4)"); fchk(PA)
        fissue(PA); a("s_waitcnt vmcnt(4)"); fchk(PB)
    a(f"""
    s_add_u32 s36, s36, 1
    s_cmp_lt_u32 s36, 0x40000
    s_cbranch_scc1 K2_fl
    """)
    a.label("K2_sync0")
    st(4, 4)
    a(f"""
    s_lshl_b32 s3, s2, 3
    s_or_b32 s3, s3, s6
    s_cmp_lg_u32 s3, 4
    s_cbranch_scc1 K2_sync1
    v_mov_b32 v{t0}, s58
    s_mov_b32 s3, {WS_EP:#x}
    s_mov_b64 exec, 1
    buffer_store_dword v{t0}, v{SP}, s[8:11], s3 offen sc1
    s_mov_b64 exec, -1
    """)
    a.label("K2_sync1")
    vm.q = []; vm.done = -1
    a("s_barrier")
    st(1, False); st(5, 4)
    kv_first()
    for _ in range(2):
        a(f"buffer_load_dword v{SP+7}, v{SP}, s[24:27], 0 offen"); vm.issue("QS")
    a("s_branch K2_go")
    a.label("K2_safe")
    S = X[0]
    a(f"""
    v_and_b32 v{t0}, 31, v0
    v_lshlrev_b32 v{S1+4}, 2, v{t0}
    v_add_u32 v{S1+4}, {L_MX:#x}, v{S1+4}
    s_lshl_b32 s3, s44, 7
    v_add_u32 v{S1+5}, s3, v{S1+4}
    v_mov_b32 v{t0}, 0xff800000
    ds_write_b32 v{S1+5}, v{t0}
    s_waitcnt vmcnt(0) lgkmcnt(0)
    s_barrier
    v_mov_b32 v{t1}, v{vQA}
    s_mov_b32 s29, 0
    """)
    a.label("K2_safe_loop")
    a(f"""
    ds_read_b128 v[{BF}:{BF+3}], v{t1}
    v_mov_b32 v{t0}, 0xff800000
    s_waitcnt lgkmcnt(0)
    """)
    for t in range(8):
        a(f"v_mfma_f32_32x32x16_bf16 v[{S}:{S+15}], v[{K+4*t}:{K+4*t+3}], v[{BF}:{BF+3}], 0")
        for r in range(0, 16, 2):
            a(f"v_max3_f32 v{t0}, v{t0}, v{S+r}, v{S+r+1}")
    a(f"""
    ds_max_f32 v{S1+4}, v{t0}
    v_add_u32 v{t1}, 1024, v{t1}
    v_add_u32 v{S1+4}, 128, v{S1+4}
    s_add_u32 s29, s29, 1
    s_cmp_lt_u32 s29, 8
    s_cbranch_scc1 K2_safe_loop
    s_waitcnt lgkmcnt(0)
    s_barrier
    ds_read_b32 v{t0}, v{S1+5}
    s_waitcnt lgkmcnt(0)
    """)
    for r in range(4): a(f"v_sub_f32 v{BF+r}, 0, v{t0}")
    a(f"ds_write_b128 v{t4}, v[{BF}:{BF+3}] offset:{L_MREF - L_Q}")
    a.label("K2_go")
    a("s_waitcnt lgkmcnt(0)")
    a("s_barrier")
    st(2, False)
    rd_qcm()
    vm.wait("K0")
    valid("s", [("K", 0)])
    a("s_waitcnt lgkmcnt(0)")
    M1(0, 0)
    a("s_mov_b32 s29, 1")
    P0 = OPT.get('p0', '33322111')
    setprio(int(P0[0]))
    LA = int(OPT.get('la', 0))
    for k in range(LA + 1):
        ldK(3 + k); ldV(2 + k)
    st(3, False)
    if 'leak' in dbg or 'amp' in dbg: a('s_memrealtime s[94:95]'); a('s_waitcnt lgkmcnt(0)')
    def tile(i, hook):
        xb = i & 1; xn = xb ^ 1
        hook(i, 'a')
        E(xb, 0, 2)
        hook(i, 'm3b')
        E(xb, 2, 5)
        hook(i, 'm1')
        M1((i + 1) & 7, xn)
        hook(i, 0)
        if i == 0:
            E(xb, 5, 12)
            hook(i, 1)
            Ozero()
            E(xb, 12, 16)
            M3(0, i)
            hook(i, 2)
        else:
            E(xb, 5, 8)
            hook(i, 'e1')
            E(xb, 8, 10)
            hook(i, 1)
            M3(0, i)
            hook(i, 2)
            E(xb, 10, 13)
            hook(i, 'e2')
            E(xb, 13, 15)
            hook(i, 'e3')
            E(xb, 15, 16)
    def hook0(i, pos):
        if pos == 'a' and i in (0, 2, 4, 6): st(1 + i // 2, 3)
        if pos == 'a' and i > 0 and P0[i] != P0[i - 1]: setprio(int(P0[i]))
        if pos == 'm3b' and i > 0:
            vm.wait(f"V{i-1}1"); M3(1, i - 1)
        if pos == 'm1':
            if i < 7: vm.wait(f"K{i+1}")
            else: a("s_waitcnt lgkmcnt(0)")
            vm.wait(f"V{i}1")
            valid(str(i), ([("K", i + 1)] if i < 7 else []) + [("V", 2 * i), ("V", 2 * i + 1)])
        if pos == 0:
            if i + 4 + LA <= 7: ldK(i + 4 + LA)
            if i + 3 + LA <= 7: ldV(i + 3 + LA)
            if i == 7: wf_load(0, 8)
        QT = int(OPT.get('qt', 2))
        if pos == 'e1' and i == QT:
            a(f"buffer_load_dwordx4 v[{BF}:{BF+3}], v{vWL}, s[8:11], s32 offen sc1"); vm.issue("Q")
        if pos == 'e2' and i == int(OPT.get('qw', 5)):
            vm.wait("Q")
            valid("q", [("Q", 0)])
            a(f"ds_write_b128 v{t4}, v[{BF}:{BF+3}]")
            mref_mma(BF, WF)
        if pos == 'e1' and i == int(OPT.get('qw', 5)) + 1:
            a("s_cmp_lg_u32 s30, 0")
            a("s_cbranch_scc1 K2_keepm")
            a("s_cmp_eq_u32 s44, 0")
            a("s_cbranch_scc1 K2_keepm")
            mref_max(WF)
            a.label("K2_keepm")
        if pos == 1:
            if i == 6:
                a("s_waitcnt lgkmcnt(0)"); a("s_barrier"); rd_qcm()
            vm.wait(f"V{i}0")
        if pos == 2 and i == 7:
            vm.wait("V71")
            a(f"""
            v_mov_b32 v{S1+8}, -1
            v_mov_b32 v{S1+9}, -1
            v_lshrrev_b32 v{S1+10}, 1, v{vWL}
            s_add_u32 s3, s7, s6
            s_lshl_b32 s3, s3, 9
            s_add_u32 s3, s3, {WS_H:#x}
            buffer_store_dwordx2 v[{S1+8}:{S1+9}], v{S1+10}, s[8:11], s3 offen sc1
            """)
    for i in range(8): tile(i, hook0)
    st(5, 3)
    a.raw(".p2align 3")
    a.label("K2_round")
    spins = []
    def poll(off):
        if 'xchk' in dbg: return
        a(f"ds_read_b32 v{vFV}, v{vFR} offset:{off}")
    def check(off):
        if 'xchk' in dbg: return
        k = len(spins); spins.append(off)
        a(f"""
        s_waitcnt lgkmcnt(0)
        v_cmp_gt_u32 vcc, s59, v{vFV}
        s_cbranch_vccnz K2_spin{k}
        """)
        a.label(f"K2_back{k}")
    PR = dict(x.split('=') for x in dbg.split(',') if '=' in x).get('pr', 'c')
    def hook(i, pos):
        if pos == 'm3b': M3(1, (i - 1) & 7)
        if pos == 'm1' and i == 7: a("s_waitcnt lgkmcnt(0)")
        if pos == 1 and i == 6: rd_qcm()
        if 'nohook' in dbg: return
        if 'bar' in dbg.split(','):
            if pos == 'a' and i in (0, 6, 7): setprio({6: 2, 7: 1, 0: 0}[i])
            if i == 0 and pos == 1: part_write()
            if i == 1 and pos == 0:
                a("s_waitcnt lgkmcnt(0)"); a("s_barrier"); setprio(2); s1_read()
            if i == 2 and pos == 0:
                a("s_waitcnt lgkmcnt(0)"); s1_calc(); setprio(1)
            if i == 3 and pos == 0: setprio(0)
            if i == 4 and pos == 0:
                a("s_waitcnt vmcnt(0) lgkmcnt(0)"); a("s_barrier"); setprio(3); s2_read()
            seq = [(4, 'e3'), (5, 'e1'), (5, 'e2'), (5, 'e3'), (6, 'e1'), (6, 'e2'), (6, 'e3'), (7, 'e1')]
        else:
            ca = int(OPT.get('ca', 2)); cb = int(OPT.get('cb', 5)); PT = OPT.get('pt', '10220332')
            slots = [(t, p) for t in range(1, 8) for p in (('a', 'e1', 'e2', 'e3') if cb >= 6 else ('e1', 'e2', 'e3'))]
            if i == 0 and pos == 1:
                if 'xpw' not in dbg: part_write()
                a(f"ds_write_b32 v{vFW}, v{vQA}")
            if i == ca and pos == 0: poll(0)
            if i == ca and pos == 2:
                check(0)
                if 'xs1' not in dbg: s1_read()
            if i == ca + 1 and pos == {'0': 0, '1': 'e1', '2': 'e2', '3': 'a'}[OPT.get('s1p', '3')]:
                a("s_waitcnt lgkmcnt(0)")
                if 'xs1' not in dbg: s1_calc()
                a(f"ds_write_b32 v{vFW}, v{vQA} offset:32")
            if i == cb - 1 and pos == 2: poll(32)
            if i == cb and pos == 'm1':
                check(32); s2_read(); a("s_waitcnt vmcnt(0)")
            if i == int(OPT.get('stp', 2)) and pos == 'e1' and 'nopf' not in dbg:
                a("s_bitcmp1_b32 s43, s29"); a("s_cbranch_scc1 K2_stg"); a.label("K2_stgb")
            if len(PT) == 8: PT = "".join(ch * 2 for ch in PT)
            for hpos, k in (('a', 2 * i), (2, 2 * i + 1)):
                if pos == hpos and PT[k] != PT[k - 1]: setprio(int(PT[k]))
            av = [x for x in slots if x > (cb, 'e1')]
            if OPT.get('sp', '0') == '1' and len(av) >= 12: av = [x for x in av if x[1] != 'e3']
            seq = av[:8]
            while len(seq) < 8: seq = sorted(seq + [seq[len(seq) % len(av)]])
        for u in [k for k, x in enumerate(seq) if x == (i, pos)]:
            if u == 0: a("s_waitcnt lgkmcnt(0)")
            if 'xmma' not in dbg: s2_mma(u, u + 1)
            if 'nowf' not in dbg: wf_load(u, u + 1)
            if u == 7 and 'nopf' not in dbg and PFP == 1:
                a("s_cmp_eq_u32 s29, s39"); a("s_cbranch_scc1 K2_side"); a.label("K2_sideb")
    for i in range(8): tile(i, hook)
    if 'rndst' in dbg:
        a(f"""
        s_memtime s[82:83]
        s_memrealtime s[100:101]
        s_waitcnt lgkmcnt(0)
        s_lshl_b32 s84, s2, 3
        s_add_u32 s84, s84, s6
        s_lshl_b32 s84, s84, 3
        s_add_u32 s84, s84, s29
        s_lshl_b32 s84, s84, 3
        s_add_u32 s84, s84, {WS_STAMP + 0x40000:#x}
        s_mov_b64 exec, 1
        v_mov_b32 v{S1+8}, s82
        v_mov_b32 v{S1+9}, s100
        v_mov_b32 v{S1+10}, 0
        buffer_store_dwordx2 v[{S1+8}:{S1+9}], v{S1+10}, s[8:11], s84 offen
        s_mov_b64 exec, -1
        """)
    a(f"""
    s_addk_i32 s59, 1024
    s_add_u32 s29, s29, 1
    s_cmp_lt_u32 s29, 8
    s_cbranch_scc1 K2_round
    """)
    st(4, False); st(0, True)
    if 'amp' in dbg: a('s_memrealtime s[98:99]'); a('s_waitcnt lgkmcnt(0)')
    M3(1, 7)
    XR = CM; WR = CM + 4; HV = X[0]; HN = X[0] + 8; PK = X[1]; ST = X[1] + 8
    a(f"""
    s_add_u32 s3, s7, s6
    s_lshl_b32 s4, s3, 10
    buffer_load_dwordx4 v[{XR}:{XR+3}], v{vWL}, s[16:19], s4 offen
    buffer_load_dwordx4 v[{WR}:{WR+3}], v{vWL}, s[24:27], 0 offen
    v_and_b32 v{t0}, 7, v0
    v_mul_u32_u24 v{t0}, 1040, v{t0}
    v_lshrrev_b32 v{t1}, 4, v0
    v_lshl_add_u32 v{t0}, v{t1}, 3, v{t0}
    s_lshl_b32 s5, s6, 7
    s_add_u32 s5, s5, {L_HB:#x}
    v_add_u32 v{t0}, s5, v{t0}
    s_mul_i32 s5, s6, 1040
    s_add_u32 s5, s5, {L_HB:#x}
    v_add_u32 v{t1}, s5, v{vWL}
    s_lshl_b32 s35, s6, 2
    s_add_u32 s35, s35, {L_KEY:#x}
    v_mov_b32 v{t4}, s35
    v_and_b32 v{t3}, 7, v0
    v_lshlrev_b32 v{t3}, 2, v{t3}
    v_add_u32 v{t3}, {L_KEY:#x}, v{t3}
    """)
    part_write()
    a("s_waitcnt lgkmcnt(0)"); a("s_barrier"); st(1, True); s1_read()
    a("s_waitcnt lgkmcnt(0)"); s1_calc()
    a(f"""
    v_mov_b32 v{t2}, {f2u(2.0**124):#x}
    v_cmp_nlt_f32 vcc, v{vLM}, v{t2}
    s_cmp_lg_u64 vcc, 0
    s_cselect_b32 s5, 1, 0
    v_mov_b32 v{t2}, s5
    ds_write_b32 v{t4}, v{t2} offset:32
    """)
    a("s_waitcnt vmcnt(2) lgkmcnt(0)"); a("s_barrier"); st(2, True); s2_read()
    a(f"ds_read_b32 v{t2}, v{t3} offset:32")
    a("s_waitcnt lgkmcnt(1)"); s2_mma(0, 8)
    a(f"""
    s_waitcnt lgkmcnt(0)
    v_cmp_ne_u32 vcc, 0, v{t2}
    s_cmp_eq_u64 vcc, 0
    s_cbranch_scc1 K2_good
    s_cmp_lg_u32 s30, 0
    s_cbranch_scc1 K2_good
    s_mov_b32 s30, 1
    s_waitcnt vmcnt(0)
    s_setprio 0
    s_branch K2_restart
    """)
    a.label("K2_good")
    a("s_mov_b32 exec_lo, 0x00ff00ff"); a("s_mov_b32 exec_hi, 0x00ff00ff")
    for t in range(4):
        a(f"v_cvt_pk_bf16_f32 v{S1+2*t}, v{OA+4*t}, v{OA+4*t+1}")
        a(f"v_cvt_pk_bf16_f32 v{S1+2*t+1}, v{OA+4*t+2}, v{OA+4*t+3}")
        a(f"ds_write_b64 v{t0}, v[{S1+2*t}:{S1+2*t+1}] offset:{32*t}")
    a("s_mov_b64 exec, -1")
    a("s_waitcnt vmcnt(0)")
    for r in range(4):
        a(f"v_lshlrev_b32 v{HV+2*r}, 16, v{XR+r}")
        a(f"v_and_b32 v{HV+2*r+1}, 0xffff0000, v{XR+r}")
        a(f"v_lshlrev_b32 v{WF+2*r}, 16, v{WR+r}")
        a(f"v_and_b32 v{WF+2*r+1}, 0xffff0000, v{WR+r}")
    a(f"""
    s_waitcnt lgkmcnt(0)
    s_barrier
    """)
    st(3, True)
    a(f"""
    ds_read_b128 v[{BF}:{BF+3}], v{t1}
    s_waitcnt lgkmcnt(0)
    """)
    for r in range(4):
        a(f"v_lshlrev_b32 v{HN+2*r}, 16, v{BF+r}")
        a(f"v_and_b32 v{HN+2*r+1}, 0xffff0000, v{BF+r}")
    P2 = lambda b, r: f"v[{b+r}:{b+r+1}]"
    for r in range(0, 8, 2): a(f"v_pk_add_f32 {P2(HV,r)}, {P2(HV,r)}, {P2(HN,r)}")
    for r in range(8): a(f"v_cvt_pk_bf16_f32 v{HV+r}, 0, v{HV+r}")
    SA, SB = S1, S1 + 2
    a(f"v_pk_add_f32 {P2(SA,0)}, {P2(HV,0)}, {P2(HV,2)}")
    a(f"v_pk_mul_f32 {P2(SB,0)}, {P2(HV,0)}, {P2(HV,0)}")
    a(f"v_pk_add_f32 {P2(SA,4)}, {P2(HV,4)}, {P2(HV,6)}")
    a(f"v_pk_fma_f32 {P2(SB,0)}, {P2(HV,2)}, {P2(HV,2)}, {P2(SB,0)}")
    a(f"v_pk_add_f32 {P2(SA,0)}, {P2(SA,0)}, {P2(SA,4)}")
    a(f"v_pk_fma_f32 {P2(SB,0)}, {P2(HV,4)}, {P2(HV,4)}, {P2(SB,0)}")
    a(f"v_add_f32 v{t0}, v{SA}, v{SA+1}")
    a(f"v_pk_fma_f32 {P2(SB,0)}, {P2(HV,6)}, {P2(HV,6)}, {P2(SB,0)}")
    a(f"v_add_f32 v{t2}, v{SB}, v{SB+1}")
    wave_sum(a, [t0, t2], [ST, ST + 1])
    ln_scalars(a, t0, t2, ST, ST + 2, ST + 1, ST + 3)
    st(4, True)
    for r in range(0, 8, 2): a(f"v_pk_add_f32 {P2(HN,r)}, {P2(HV,r)}, {P2(ST,0)} op_sel_hi:[1,0] neg_lo:[0,1] neg_hi:[0,1]")
    for r in range(8): a(f"v_cvt_pk_bf16_f32 v{HN+r}, 0, v{HN+r}")
    for r in range(0, 8, 2): a(f"v_pk_mul_f32 {P2(HN,r)}, {P2(HN,r)}, {P2(ST,2)} op_sel_hi:[1,0]")
    for r in range(8): a(f"v_cvt_pk_bf16_f32 v{HN+r}, 0, v{HN+r}")
    a(f"v_pk_mul_f32 {P2(SA,0)}, {P2(HN,0)}, {P2(WF,0)}")
    for r in range(2, 8, 2): a(f"v_pk_fma_f32 {P2(SA,0)}, {P2(HN,r)}, {P2(WF,r)}, {P2(SA,0)}")
    a(f"v_add_f32 v{t2}, v{SA}, v{SA+1}")
    fill = [f"v_pk_add_f32 {P2(WF+8,r)}, {P2(HV,r)}, {P2(HN,r)}" for r in range(0, 8, 2)]
    fill += [f"v_cvt_pk_bf16_f32 v{PK+4+r}, v{HV+2*r}, v{HV+2*r+1}" for r in range(4)]
    fill += [f"v_cvt_pk_bf16_f32 v{ST+4+r}, v{HN+2*r}, v{HN+2*r+1}" for r in range(4)]
    for mod in ("quad_perm:[1,0,3,2]", "quad_perm:[2,3,0,1]", "row_half_mirror", "row_mirror"):
        a(fill.pop(0)); a(fill.pop(0))
        a(f"v_add_f32_dpp v{t2}, v{t2}, v{t2} {mod} row_mask:0xf bank_mask:0xf")
    for w in (16, 32):
        a(f"v_mov_b32 v{t0}, v{t2}")
        a(fill.pop(0)); a(fill.pop(0))
        a(f"v_permlane{w}_swap_b32 v{t0}, v{t2}")
        a(f"v_add_f32 v{t2}, v{t2}, v{t0}")
    if 'leak' in dbg:
        a(f"""
        s_cmp_lg_u32 s3, 0
        s_cbranch_scc1 K2_leak
        s_memrealtime s[92:93]
        v_mov_b32 v{S1+4}, 0
        s_mov_b32 s5, {WS_SEL:#x}
        buffer_load_dwordx4 v[{S1}:{S1+3}], v{S1+4}, s[8:11], s5 offen
        s_waitcnt vmcnt(0) lgkmcnt(0)
        s_mov_b64 exec, 1
        v_add_f32 v{WF+8}, {f2u(64.0):#x}, v{WF+8}
        v_sub_u32 v{WF+9}, v{S1+2}, v{S1}
        v_sub_u32 v{WF+10}, v{S1+1}, v{S1}
        v_sub_u32 v{WF+11}, s90, v{S1}
        v_sub_u32 v{WF+12}, s94, v{S1}
        v_sub_u32 v{WF+13}, s92, v{S1}
        """)
        for r in range(9, 14):
            a(f"v_cvt_f32_u32 v{WF+r}, v{WF+r}")
            a(f"v_mul_f32 v{WF+r}, {f2u(0.005):#x}, v{WF+r}")
            a(f"v_min_f32 v{WF+r}, {f2u(20.0):#x}, v{WF+r}")
        a("s_mov_b64 exec, -1")
        a.label("K2_leak")
    a(f"""
    v_cvt_pk_bf16_f32 v{t2}, 0, v{t2}
    v_ashrrev_i32 v{t0}, 31, v{t2}
    v_or_b32 v{t0}, 0x80000000, v{t0}
    v_xor_b32 v{t2}, v{t2}, v{t0}
    v_and_b32 v{t2}, 0xffff0000, v{t2}
    s_sub_u32 s5, 0xffff, s3
    v_or_b32 v{t2}, s5, v{t2}      ; key
    ds_write_b32 v{t4}, v{t2}
    """)
    for r in range(4): a(f"v_cvt_pk_bf16_f32 v{PK+r}, v{WF+8+2*r}, v{WF+8+2*r+1}")
    a(f"""
    buffer_store_dwordx4 v[{PK}:{PK+3}], v{vWL}, s[20:23], s4 offen sc1
    """)
    for r in range(4):
        a(f"v_min_u32 v{PK+4+r}, -2, v{PK+4+r}")
        a(f"v_min_u32 v{ST+4+r}, -2, v{ST+4+r}")
    a(f"""
    s_waitcnt lgkmcnt(0)
    s_barrier
    ds_read_b32 v{t1}, v{t3}
    s_waitcnt lgkmcnt(0)
    v_cmp_gt_u32 vcc, v{t1}, v{t2}
    v_cmp_eq_u32 s[36:37], v{t1}, v{t2}
    s_and_b32 s38, vcc_lo, 0xff
    s_bcnt1_i32_b32 s38, s38       ; rank
    """)
    st(5, False); st(5, True); st(0, 2); st(1, 2); st(2, 2); st(3, 2); st(4, 2); st(5, 2)
    a(f"""
    s_cmp_gt_u32 s38, 1
    s_cbranch_scc1 K2_pub
    s_lshl_b32 s34, s7, 9
    s_lshl_b32 s5, s38, 11
    s_add_u32 s34, s34, s5
    s_add_u32 s34, s34, {WS_H:#x}
    buffer_store_dwordx4 v[{ST+4}:{ST+7}], v{vWL}, s[8:11], s34 offen sc1
    s_cmp_lg_u32 s38, 0
    s_cbranch_scc1 K2_pub0
    v_cndmask_b32 v{ST+1}, v{t1}, 0, s[36:37]
    v_mov_b32 v{ST}, v{t2}
    s_lshl_b32 s5, s2, {G.KS_LOG}
    s_add_u32 s5, s5, {WS_KEY:#x}
    v_lshlrev_b32 v{t0}, 14, v0
    """)
    for mod in ("quad_perm:[1,0,3,2]", "quad_perm:[2,3,0,1]", "row_half_mirror"):
        a(f"v_max_u32_dpp v{ST+1}, v{ST+1}, v{ST+1} {mod} row_mask:0xf bank_mask:0xf")
    a(f"""
    v_xor_b32 v{ST+1}, 0x800, v{ST+1}
    s_mov_b64 exec, {0xff if KREP else 1}
    buffer_store_dwordx2 v[{ST}:{ST+1}], v{t0}, s[8:11], s5 offen sc1
    s_mov_b64 exec, -1
    """)
    a.label("K2_pub0")
    a(f"""
    s_waitcnt vmcnt(0)
    buffer_store_dwordx4 v[{PK+4}:{PK+7}], v{vWL}, s[8:11], s34 offen offset:1024 sc1
    """)
    a.label("K2_pub")
    if 'amp' in dbg: a('s_memrealtime s[96:97]'); a('s_waitcnt lgkmcnt(0)')
    st(1, 2)
    def fin():
        if G.STAMP: a("s_waitcnt vmcnt(0)")
        stamp(a, 6)
        if G.STAMP: a("s_mov_b32 s91, s30")
        stamp_out(a, 1, 8, "s6", WF)
        a("s_endpgm")
    a(f"""
    s_cmp_ge_u32 s2, 144
    s_cbranch_scc1 K2_fin
    """)
    LEAD = 's6, 0' if 'lead0' in dbg else 's38, 2'
    AFR = V
    KY = K; Y = K + 8; BX = V + 32; AC = K + 16
    a(f"""
    s_setprio 0
    v_bfe_u32 v{t0}, v0, 2, 2
    v_lshrrev_b32 v{t4}, 4, v0           ; g
    v_lshl_add_u32 v{t0}, v{t4}, 3, v{t0}
    v_lshlrev_b32 v{t0}, 5, v{t0}
    v_and_b32 v{t1}, 3, v0
    v_lshl_add_u32 v{t0}, v{t1}, 3, v{t0}
    v_add_u32 v{t0}, s74, v{t0}
    """)
    for sx in range(7):
        for half in range(2):
            d = AFR + 4 * sx + 2 * half
            a(f"ds_read_b64_tr_b16 v[{d}:{d+1}], v{t0} offset:{sx*1024 + half*128}")
    a(f"""
    v_and_b32 v{t3}, 1, v0
    v_lshlrev_b32 v{vPW}, 6, v{t3}
    v_lshl_add_u32 v{vPW}, v{t4}, 4, v{vPW}
    s_lshl_b32 s5, s6, 7
    s_add_u32 s5, s5, {L_RED:#x}
    v_add_u32 v{vPW}, s5, v{vPW}
    v_and_b32 v{vPR}, 31, v0
    v_lshlrev_b32 v{vPR}, 2, v{vPR}      ; (lane&31)*4
    v_lshrrev_b32 v{vOR}, 5, v0
    v_lshl_add_u32 v{vOR}, v{vOR}, 14, v{vPR}
    s_cmp_lg_u32 {LEAD}
    s_cbranch_scc1 K2_nokey
    v_lshlrev_b32 v{t1}, {G.KS_LOG}, v0
    s_and_b32 s5, s2, {7 if KREP else 0}
    s_lshl_b32 s5, s5, 14
    s_add_u32 s5, s5, {WS_KEY:#x}
    s_add_u32 s79, s5, {64 << G.KS_LOG}
    s_add_u32 s80, s5, {128 << G.KS_LOG}
    s_add_u32 s81, s5, {192 << G.KS_LOG}
    s_mov_b32 s36, 0
    """)
    KZ = V + 60 - 8 * 0
    def poll_loop(name, issue, nld):
        K2R = X[0]
        def chk(b):
            a(f"""
            v_min3_u32 v{Y}, v{b}, v{b+1}, v{b+2}
            v_min3_u32 v{Y+1}, v{b+3}, v{b+4}, v{b+5}
            v_min3_u32 v{Y}, v{Y}, v{b+6}, v{b+7}
            v_min_u32 v{Y}, v{Y}, v{Y+1}
            v_cmp_eq_u32 vcc, 0, v{Y}
            """)
        sl = OPT.get('psl', 3)
        issue(KY)
        a(f"s_sleep {sl}")
        a.label(f"{name}_l")
        issue(K2R)
        a(f"s_waitcnt vmcnt({nld})")
        chk(KY)
        a(f"s_cbranch_vccz {name}_ok")
        issue(KY)
        a(f"s_waitcnt vmcnt({nld})")
        chk(K2R)
        a(f"""
        s_cbranch_vccz {name}_ok2
        s_add_u32 s36, s36, 1
        s_cmp_lt_u32 s36, 0x40000
        s_cbranch_scc1 {name}_l
        """)
        a.label(f"{name}_ok2")
        for r in range(0, 8, 2): a(f"v_pk_mov_b32 v[{KY+r}:{KY+r+1}], v[{K2R+r}:{K2R+r+1}], v[{K2R+r}:{K2R+r+1}] op_sel:[0,1]")
        a.label(f"{name}_ok")
    def kissue(b):
        for k, sr in enumerate(("s5", "s79", "s80", "s81")):
            a(f"buffer_load_dwordx2 v[{b+2*k}:{b+2*k+1}], v{t1}, s[8:11], {sr} offen sc1")
    if int(OPT.get('kd', 12)): a(f"s_sleep {OPT.get('kd', 12)}")
    poll_loop("K2_kp", kissue, 4)
    a.label("K2_kok")
    st(2, 2)
    if FS: a("s_mov_b32 s30, s36")
    B1, B2 = Y + 4, Y + 5
    a(f"""
    v_max_u32 v{B1}, v{KY}, v{KY+2}
    v_min_u32 v{B2}, v{KY}, v{KY+2}
    v_max3_u32 v{B2}, v{B2}, v{KY+1}, v{KY+3}
    v_max_u32 v{Y}, v{KY+4}, v{KY+6}
    v_min_u32 v{Y+1}, v{KY+4}, v{KY+6}
    v_max3_u32 v{Y+1}, v{Y+1}, v{KY+5}, v{KY+7}
    v_min_u32 v{Y+2}, v{B1}, v{Y}
    v_max_u32 v{B1}, v{B1}, v{Y}
    v_max3_u32 v{B2}, v{B2}, v{Y+1}, v{Y+2}
    v_mov_b32 v{Y}, v{B1}
    """)
    wave_max_u32(a, Y, Y + 1)
    a(f"""
    v_cmp_eq_u32 vcc, v{B1}, v{Y}
    v_cndmask_b32 v{B1}, v{B1}, v{B2}, vcc
    """)
    wave_max_u32(a, B1, Y + 1)
    a(f"""
    v_readfirstlane_b32 s40, v{Y}
    v_readfirstlane_b32 s41, v{B1}
    s_andn2_b32 s42, 0x7ff, s40
    s_andn2_b32 s43, 0x7ff, s41
    s_lshr_b32 s50, s42, 3
    s_lshr_b32 s51, s43, 3
    s_lshl_b32 s50, s50, 12
    s_lshl_b32 s51, s51, 12
    s_andn2_b32 s52, 0x800, s40
    s_andn2_b32 s53, 0x800, s41
    s_add_u32 s50, s50, s52
    s_add_u32 s51, s51, s53
    s_lshl_b32 s42, s42, 10
    s_lshl_b32 s43, s43, 10
    """)
    a.label("K2_nokey")
    a(f"""
    s_cmp_ge_u32 s2, 112
    s_cbranch_scc1 K2_down
    s_cmp_lg_u32 {LEAD}
    s_cbranch_scc1 K2_up1
    s_add_u32 s50, s50, {WS_H:#x}
    s_add_u32 s51, s51, {WS_H:#x}
    s_mov_b32 s36, 0
    """)
    a.label("K2_rows")
    a(f"""
    buffer_load_dwordx4 v[{KY}:{KY+3}], v{vWL}, s[8:11], s50 offen sc1
    buffer_load_dwordx4 v[{KY+4}:{KY+7}], v{vWL}, s[8:11], s51 offen sc1
    s_add_u32 s36, s36, 1
    s_waitcnt vmcnt(1)
    ds_write_b128 v{vWL}, v[{KY}:{KY+3}] offset:{L_XS}
    v_max3_u32 v{Y}, v{KY}, v{KY+1}, v{KY+2}
    s_waitcnt vmcnt(0)
    ds_write_b128 v{vWL}, v[{KY+4}:{KY+7}] offset:{L_XS + 1040}
    v_max3_u32 v{Y+1}, v{KY+3}, v{KY+4}, v{KY+5}
    v_max3_u32 v{Y}, v{Y}, v{KY+6}, v{KY+7}
    v_max_u32 v{Y}, v{Y}, v{Y+1}
    v_cmp_eq_u32 vcc, -1, v{Y}
    s_cbranch_vccz K2_up1
    s_cmp_lt_u32 s36, 0x40000
    s_cbranch_scc1 K2_rows
    """)
    a.label("K2_up1")
    st(3, 2)
    a(f"""
    v_mul_u32_u24 v{t0}, 1040, v{t3}
    v_lshl_add_u32 v{t0}, v{t4}, 4, v{t0}
    s_lshr_b32 s5, s6, 1
    s_lshl_b32 s5, s5, 8
    v_add_u32 v{t0}, s5, v{t0}
    s_waitcnt lgkmcnt(0)
    s_barrier
    """)
    for sx in range(4):
        a(f"ds_read_b128 v[{BX+4*sx}:{BX+4*sx+3}], v{t0} offset:{L_XS + 64*sx}")
    for sx in range(4):
        a(f"s_waitcnt lgkmcnt({3-sx})")
        c = "0" if sx == 0 else f"v[{AC}:{AC+3}]"
        a(f"v_mfma_f32_16x16x32_bf16 v[{AC}:{AC+3}], v[{AFR+4*sx}:{AFR+4*sx+3}], v[{BX+4*sx}:{BX+4*sx+3}], {c}")
    a(f"""
    ds_write_b128 v{vPW}, v[{AC}:{AC+3}]
    s_waitcnt lgkmcnt(0)
    s_barrier
    s_cmp_lg_u32 {LEAD}
    s_cbranch_scc1 K2_fin
    """)
    def red_read():
        a(f"v_add_u32 v{t0}, {L_RED:#x}, v{vPR}")
        a("s_waitcnt vmcnt(0)")
        for k in range(4):
            a(f"ds_read2_b32 v[{KY+2*k}:{KY+2*k+1}], v{t0} offset0:{64*k} offset1:{64*k+32}")
        a("s_waitcnt lgkmcnt(0)")
        a(f"v_pk_add_f32 v[{KY}:{KY+1}], v[{KY}:{KY+1}], v[{KY+2}:{KY+3}]")
        a(f"v_pk_add_f32 v[{KY+4}:{KY+5}], v[{KY+4}:{KY+5}], v[{KY+6}:{KY+7}]")
        a(f"v_pk_add_f32 v[{KY}:{KY+1}], v[{KY}:{KY+1}], v[{KY+4}:{KY+5}]")
    st(4, 2)
    red_read()
    a(f"""
    v_cvt_pk_bf16_f32 v{KY}, 0, v{KY}
    v_cvt_pk_bf16_f32 v{KY+1}, 0, v{KY+1}
    """)
    sigmoid(a, KY + 2, KY, KY + 3)
    a(f"""
    v_mul_f32 v{KY}, v{KY}, v{KY+2}
    v_cvt_pk_bf16_f32 v{KY}, 0, v{KY}
    v_mul_f32 v{KY}, v{KY}, v{KY+1}
    v_cvt_pk_bf16_f32 v{KY}, 0, v{KY}
    v_or_b32 v{KY}, 1, v{KY}
    s_lshl_b32 s5, s76, 7
    s_add_u32 s5, s5, {WS_GU:#x}
    """)
    if GREP:
        for k in range(4):
            a(f"buffer_store_dword v{KY}, v{vOR}, s[8:11], s5 offen sc1")
            if k < 3: a("s_add_u32 s5, s5, 0x8000")
    else:
        a(f"""
        s_mov_b32 exec_hi, 0
        buffer_store_dword v{KY}, v{vPR}, s[8:11], s5 offen sc1
        s_mov_b64 exec, -1
        """)
    a(f"""
    s_branch K2_fin
    """)
    a.label("K2_down")
    HH, NN, GT, OO, RS = Y + 6, Y + 7, AC + 4, AC + 5, AC + 6
    a(f"""
    s_cmp_lg_u32 {LEAD}
    s_cbranch_scc1 K2_dn1
    v_bfe_u32 v{t0}, v0, 4, 1
    v_cmp_eq_u32 vcc, 0, v{t0}
    v_mov_b32 v{t0}, s43
    v_mov_b32 v{t1}, s42
    v_cndmask_b32 v{OO}, v{t0}, v{t1}, vcc
    v_and_b32 v{t0}, 15, v0
    v_lshl_add_u32 v{OO}, v{t0}, 1, v{OO}
    s_lshl_b32 s44, s77, 5
    v_mov_b32 v{t1}, s51
    v_mov_b32 v{RS}, s50
    v_cndmask_b32 v{RS}, v{t1}, v{RS}, vcc
    v_and_b32 v{t0}, 14, v0
    v_lshl_add_u32 v{RS}, v{t0}, 1, v{RS}
    s_add_u32 s52, s44, {WS_H:#x}
    v_mov_b32 v{t0}, s41
    v_mov_b32 v{t1}, s40
    v_cndmask_b32 v{GT}, v{t0}, v{t1}, vcc
    v_and_b32 v{GT}, 0xffff0000, v{GT}
    v_ashrrev_i32 v{t0}, 31, v{GT}
    v_not_b32 v{t0}, v{t0}
    v_or_b32 v{t0}, 0x80000000, v{t0}
    v_xor_b32 v{GT}, v{GT}, v{t0}
    v_and_b32 v{GT}, 0xffff0000, v{GT}
    """)
    sigmoid(a, GT, GT, t0)
    a(f"v_cvt_pk_bf16_f32 v{GT}, 0, v{GT}")
    a.label("K2_dn1")
    a(f"""
    s_mul_i32 s5, s6, 1792
    s_and_b32 s37, s2, {7 if GREP else 0}
    s_lshl_b32 s37, s37, 14
    s_add_u32 s5, s5, s37
    s_add_u32 s5, s5, {WS_GU:#x}
    v_min_u32 v{t1}, 47, v0
    v_lshlrev_b32 v{t1}, 4, v{t1}
    s_lshl_b32 s37, s6, 10
    s_add_u32 s37, s37, {L_GB:#x}
    v_lshrrev_b32 v{t0}, 3, v0
    v_lshlrev_b32 v{vPL}, 5, v{t0}
    v_and_b32 v{t0}, 3, v0
    v_lshl_add_u32 v{vPL}, v{t0}, 3, v{vPL}
    v_bfe_u32 v{t0}, v0, 2, 1
    v_mul_u32_u24 v{t0}, 464, v{t0}
    v_add3_u32 v{vPL}, v{vPL}, v{t0}, s37
    v_mul_u32_u24 v{vOW}, 464, v{t3}
    v_lshl_add_u32 v{vOW}, v{t4}, 4, v{vOW}
    v_add_u32 v{vOW}, s37, v{vOW}
    s_mov_b32 s45, 0x07060302
    s_mov_b32 s36, 0
    """)
    def gissue(b):
        a(f"buffer_load_dwordx4 v[{b}:{b+3}], v{vWL}, s[8:11], s5 offen sc1")
        a(f"buffer_load_dwordx4 v[{b+4}:{b+7}], v{t1}, s[8:11], s5 offen offset:1024 sc1")
    if 'nogb' not in dbg:
        a(f"""
        s_barrier
        s_cmp_lg_u32 {LEAD}
        s_cbranch_scc1 K2_hw
        """)
        a.label("K2_hl")
        a(f"""
        buffer_load_dword v{NN}, v{RS}, s[8:11], s52 offen sc1
        buffer_load_dword v{HH}, v{RS}, s[8:11], s52 offen offset:1024 sc1
        s_add_u32 s36, s36, 1
        s_waitcnt vmcnt(0)
        v_max_u32 v{t0}, v{HH}, v{NN}
        v_cmp_eq_u32 vcc, -1, v{t0}
        s_cbranch_vccz K2_hok
        s_cmp_lt_u32 s36, 0x40000
        s_cbranch_scc1 K2_hl
        """)
        a.label("K2_hok")
        a(f"""
        v_and_b32 v{t0}, 1, v0
        v_lshlrev_b32 v{t0}, 4, v{t0}
        v_lshrrev_b32 v{HH}, v{t0}, v{HH}
        v_lshrrev_b32 v{NN}, v{t0}, v{NN}
        s_mov_b32 s36, 0
        s_sleep {max(int(OPT.get('gd', 28)) - 14, 0)}
        s_branch K2_hx
        """)
        a.label("K2_hw")
        a(f"s_sleep {OPT.get('gd', 28)}")
        a.label("K2_hx")
    poll_loop("K2_gp", gissue, 2)
    a.label("K2_gok")
    st(4, 2)
    a(f"""
    v_perm_b32 v{Y}, v{KY+1}, v{KY}, s45
    v_perm_b32 v{Y+1}, v{KY+3}, v{KY+2}, s45
    v_perm_b32 v{Y+2}, v{KY+5}, v{KY+4}, s45
    v_perm_b32 v{Y+3}, v{KY+7}, v{KY+6}, s45
    ds_write_b64 v{vPL}, v[{Y}:{Y+1}]
    s_mov_b32 exec_hi, 0xffff
    ds_write_b64 v{vPL}, v[{Y+2}:{Y+3}] offset:256
    s_mov_b64 exec, -1
    """)
    for sx in range(7):
        a(f"ds_read_b128 v[{BX+4*sx}:{BX+4*sx+3}], v{vOW} offset:{64*sx}")
    for sx in range(7):
        a(f"s_waitcnt lgkmcnt({6-sx})")
        c = "0" if sx == 0 else f"v[{AC}:{AC+3}]"
        a(f"v_mfma_f32_16x16x32_bf16 v[{AC}:{AC+3}], v[{AFR+4*sx}:{AFR+4*sx+3}], v[{BX+4*sx}:{BX+4*sx+3}], {c}")
    a(f"""
    ds_write_b128 v{vPW}, v[{AC}:{AC+3}]
    s_waitcnt lgkmcnt(0)
    s_barrier
    s_cmp_lg_u32 {LEAD}
    s_cbranch_scc1 K2_fin
    """)
    red_read()
    a(f"""
    v_add_f32 v{KY}, v{KY}, v{KY+1}
    v_lshlrev_b32 v{HH}, 16, v{HH}
    v_lshlrev_b32 v{NN}, 16, v{NN}
    v_cvt_pk_bf16_f32 v{KY}, 0, v{KY}
    v_mul_f32 v{KY}, v{KY}, v{GT}
    v_cvt_pk_bf16_f32 v{KY}, 0, v{KY}
    v_add_f32 v{KY}, v{KY}, v{NN}
    v_cvt_pk_bf16_f32 v{KY}, 0, v{KY}
    v_add_f32 v{KY}, v{KY}, v{HH}
    v_cvt_pk_bf16_f32 v{KY}, v{KY}, v{KY}
    s_mov_b32 exec_hi, 0
    buffer_store_short v{KY}, v{OO}, s[20:23], s44 offen sc1
    s_mov_b64 exec, -1
    """)
    a.label("K2_fin")
    if 'lite' in dbg:
        a(f"""
        s_waitcnt vmcnt(0)
        s_memrealtime s[92:93]
        s_lshl_b32 s3, s2, 3
        s_add_u32 s3, s3, s6
        s_lshl_b32 s3, s3, 3
        s_add_u32 s3, s3, {WS_STAMP:#x}
        s_waitcnt lgkmcnt(0)
        v_mov_b32 v{S1}, s90
        v_mov_b32 v{S1+1}, s92
        s_mov_b64 exec, 1
        buffer_store_dwordx2 v[{S1}:{S1+1}], v{SP}, s[8:11], s3 offen
        """)
    if 'amp' in dbg:
        q = int(OPT['amp'])
        expr = {0: None, 1: ("s83", "s90"), 2: ("s84", "s90"), 3: ("s85", "s90"), 4: ("s86", "s90"), 5: ("s88", "s90"), 6: ("s94", "s90"), 7: ("s98", "s94"), 8: ("s96", "s98")}[q]
        a(f"""
        s_or_b32 s5, s2, s6
        s_cmp_lg_u32 s5, 0
        s_cbranch_scc1 K2_amp_end
        """)
        if expr: a(f"s_sub_u32 s85, {expr[0]}, {expr[1]}")
        else: a("s_mov_b32 s85, 0")
        a(f"""
        s_min_u32 s85, s85, 5000
        s_lshl_b32 s85, s85, 1
        s_add_u32 s85, s85, 600
        s_add_u32 s85, s85, s96
        """)
        a.label("K2_amp")
        a(f"""
        s_memrealtime s[92:93]
        s_waitcnt lgkmcnt(0)
        s_sub_u32 s86, s92, s85
        s_cmp_lt_i32 s86, 0
        s_cbranch_scc1 K2_amp
        """)
        a.label("K2_amp_end")
    if G.STAMP: a("s_waitcnt vmcnt(0)")
    stamp(a, 6)
    if G.STAMP: a("s_mov_b32 s91, s30")
    stamp_out(a, 1, 8, "s6", WF)
    dstamp(a, 1, True, 240)
    a.label("K2_end")
    a("s_endpgm")
    if 'nopf' not in dbg:
        a.label("K2_side")
        a(f"buffer_load_dword v{vPD}, v{vPA}, s[12:15], s38 offen")
        a("s_branch K2_sideb")
        a.label("K2_stg")
        for e in range(2):
            a(f"""
            s_mov_b32 m0, s78
            s_add_u32 s78, s78, 1024
            buffer_load_dwordx4 v{vFS}, s[68:71], s72 offen lds
            s_add_u32 s72, s72, s73
            """)
            if e == 0:
                a("s_bitcmp1_b32 s42, s29"); a("s_cbranch_scc0 K2_stgb")
        a("s_branch K2_stgb")
    for name, fr in retries:
        a.label(f"K2_rt{name}")
        a("s_mov_b32 s36, 0")
        a.label(f"K2_rl{name}")
        for kind, t in fr:
            if kind == "K": a(f"buffer_load_dwordx4 v[{K+4*t}:{K+4*t+3}], v{vWL}, s[8:11], s{50+t} offen sc1")
            elif kind == "Q": a(f"buffer_load_dwordx4 v[{BF}:{BF+3}], v{vWL}, s[8:11], s32 offen sc1")
            else: a(f"buffer_load_dwordx4 v[{V+4*t}:{V+4*t+3}], v{vVL}, s[8:11], s{50+t//2} offen offset:{1024 + 544*(t&1)} sc1")
        a("s_add_u32 s36, s36, 1")
        a("s_waitcnt vmcnt(0)")
        vtest(fr)
        a(f"""
        s_cbranch_vccz K2_rb{name}
        s_cmp_lt_u32 s36, 0x40000
        s_cbranch_scc1 K2_rl{name}
        s_branch K2_rb{name}
        """)
    for k, off in enumerate(spins):
        a.label(f"K2_spin{k}")
        a(f"""
        s_sleep 1
        ds_read_b32 v{vFV}, v{vFR} offset:{off}
        s_waitcnt lgkmcnt(0)
        v_cmp_gt_u32 vcc, s59, v{vFV}
        s_cbranch_vccnz K2_spin{k}
        s_branch K2_back{k}
        """)
```

```python
from gen import *
import gen as G

L_PART = 0x0; L_Q = 0x6000; L_MREF = 0x8400; L_OB = 0x5800; L_KEY = 0xAC00; L_FLG = 0xAD00; L_ZC = 0xAE00; L_MX = 0xB000; L_HB = 0xB400
L_FW = 0xE000; L_TOTAL = 0xE000 + 8 * 7168
L_XS = L_PART; L_RED = L_PART + 0x1000; L_GB = L_PART + 0x2000
C_EXACT = 0.25 * 1.4426950408889634
OFFS = 96.0

def wave_sum(a, vs, ts):
    if isinstance(vs, int): vs, ts = [vs], [ts]
    for mod in ("quad_perm:[1,0,3,2]", "quad_perm:[2,3,0,1]", "row_half_mirror", "row_mirror"):
        for v in vs:
            a(f"v_add_f32_dpp v{v}, v{v}, v{v} {mod} row_mask:0xf bank_mask:0xf")
    for w in (16, 32):
        for v, t in zip(vs, ts): a(f"v_mov_b32 v{t}, v{v}")
        for v, t in zip(vs, ts): a(f"v_permlane{w}_swap_b32 v{t}, v{v}")
        for v, t in zip(vs, ts): a(f"v_add_f32 v{v}, v{v}, v{t}")

class VM:
    def __init__(self, a): self.a = a; self.q = []; self.done = -1
    def issue(self, tag): self.q.append(tag)
    def wait(self, tag):
        i = max(k for k, t in enumerate(self.q) if t == tag)
        if i <= self.done: return
        self.done = i
        self.a(f"s_waitcnt vmcnt({len(self.q) - 1 - i})")

def wave_max_u32(a, v, t):
    for mod in ("quad_perm:[1,0,3,2]", "quad_perm:[2,3,0,1]", "row_half_mirror", "row_mirror"):
        a(f"v_max_u32_dpp v{v}, v{v}, v{v} {mod} row_mask:0xf bank_mask:0xf")
    for w in (16, 32):
        a(f"""
        v_mov_b32 v{t}, v{v}
        v_permlane{w}_swap_b32 v{t}, v{v}
        v_max_u32 v{v}, v{v}, v{t}
        """)

LOG2E = 1.4426950408889634
def sigmoid(a, d, x, t):
    a(f"""
    v_mul_f32 v{t}, {f2u(-LOG2E):#x}, v{x}
    v_exp_f32 v{t}, v{t}
    v_add_f32 v{t}, 1.0, v{t}
    v_rcp_f32 v{d}, v{t}
    """)

def gen_p2(a, dbg='', prio=True):
    SC = ' sc1'
    OPT = dict(x.split('=') for x in dbg.split(',') if '=' in x)
    FLS = int(OPT.get('fls', 4))
    PFS = int(OPT.get('pfs', 0)); PFP = int(OPT.get('pfp', 1))
    TAILST = 'tailst' in dbg
    FS = 'ffnst' in dbg
    KREP = 'nokrep' not in dbg; GREP = 'nogrep' not in dbg
    def st(i, tail):
        if 'p1st' in dbg:
            if tail == 4: stamp(a, i)
        elif 'r0st' in dbg:
            if tail == 3: stamp(a, i)
        elif FS:
            if tail == 2: stamp(a, i)
        elif tail in (True, False) and bool(tail) == TAILST: stamp(a, i)
    K = 16; V = 48; X = [112, 128]; O = 144; CM = 160; SP = 176; Q = 184; OA = 188; WF = 204; BF = 236; S1 = 240
    vQA, vPW, vPR, vPL, vOW, vOR, vLM, vWL, vKL, vVL = 1, 2, 3, 4, 5, 6, 7, 8, 9, 10
    t0, t1, t2, t3, t4 = 11, 12, 13, 14, 15
    vFW, vFR, vFV, vWLs = 9, 13, 14, 15
    vFS, vPA, vPD = SP + 4, SP + 5, SP + 6
    a.label("K12_setup")
    a(f"""
    s_load_dwordx2 s[48:49], s[0:1], 96
    s_load_dwordx2 s[40:41], s[0:1], 0
    s_load_dwordx8 s[60:67], s[0:1], 48
    s_load_dwordx2 s[46:47], s[0:1], 80
    s_waitcnt lgkmcnt(0)
    """)
    a.label("K12_setup1")
    a(f"""
    s_and_b32 s3, s2, 7
    s_lshr_b32 s4, s2, 3
    s_lshl_b32 s7, s3, 8
    s_lshl_b32 s5, s4, 3
    s_add_u32 s7, s7, s5           ; T0
    s_and_b32 s28, s4, 7           ; rot
    v_lshrrev_b32 v{t0}, 6, v0
    v_and_b32 v0, 63, v0
    v_readfirstlane_b32 s6, v{t0}
    s_mov_b32 s30, 0
    v_lshlrev_b32 v{vWL}, 4, v0
    s_mul_i32 s3, s6, {8*TS}
    s_add_u32 s3, s3, {WS_KV:#x}
    """)
    for t in range(8):
        a(f"""
        s_add_u32 s4, s28, {t}
        s_and_b32 s4, s4, 7
        s_mul_i32 s4, s4, {TS}
        s_add_u32 s{50+t}, s3, s4
        """)
    a.label("K2_restart")
    a(f"""
    s_add_u32 s44, s6, 4
    s_and_b32 s44, s44, 7
    s_add_u32 s3, s44, s28
    s_and_b32 s3, s3, 7
    s_andn2_b32 s45, s2, 0x38
    s_lshl_b32 s4, s3, 3
    s_or_b32 s45, s45, s4
    s_lshl_b32 s45, s45, 6
    s_lshr_b32 s4, s28, 1
    s_lshl_b32 s4, s4, 2
    s_add_u32 s45, s45, s4
    s_add_u32 s45, s45, {WS_FQ:#x}
    s_add_u32 s3, s3, s7
    s_lshl_b32 s32, s3, 10
    v_and_b32 v{t1}, 31, v0
    v_lshrrev_b32 v{t2}, 5, v0
    v_mul_u32_u24 v{vVL}, 272, v{t2}
    v_lshl_add_u32 v{vVL}, v{t1}, 4, v{vVL}
    v_cmp_lt_u32 vcc, 16, v{t1}
    v_bfrev_b32 v{t0}, 1
    v_add_u32 v{vQA}, {L_Q:#x}, v{vWL}
    v_cndmask_b32 v{vVL}, v{vVL}, v{t0}, vcc
    """)
    srd(a, 8, 48, 49, WS_SIZE)
    vm = VM(a)
    def ldK(t):
        a(f"buffer_load_dwordx4 v[{K+4*t}:{K+4*t+3}], v{vWL}, s[8:11], s{50+t} offen{SC}"); vm.issue(f"K{t}")
    def ldV(t):
        if 'vmask' in dbg:
            a("s_mov_b32 exec_lo, 0x1ffff"); a("s_mov_b32 exec_hi, 0x1ffff")
            for h in range(2):
                a(f"buffer_load_dwordx4 v[{V+8*t+4*h}:{V+8*t+4*h+3}], v{vVL}, s[8:11], s{50+t} offen offset:{1024 + 544*h}{SC}"); vm.issue(f"V{t}{h}")
            a("s_mov_b64 exec, -1")
            return
        for h in range(2):
            a(f"buffer_load_dwordx4 v[{V+8*t+4*h}:{V+8*t+4*h+3}], v{vVL}, s[8:11], s{50+t} offen offset:{1024 + 544*h}{SC}"); vm.issue(f"V{t}{h}")
    a(f"""
    s_lshl_b32 s3, s44, 10
    v_add_u32 v{t4}, s3, v{vQA}
    """)
    def late_setup(part):
        u0, u1, u2, u3 = S1, S1 + 1, S1 + 2, S1 + 3
        if part == 0:
            srd(a, 16, 40, 41, 0x200000)
            srd(a, 20, 46, 47, 0x200000)
            srd(a, 24, 60, 61, 0x400)
            a(f"""
            v_and_b32 v{u1}, 31, v0
            v_lshrrev_b32 v{u2}, 5, v0
            v_mul_u32_u24 v{vPW}, 80, v{u1}
            s_mul_i32 s3, s6, 2560
            v_add_u32 v{vPW}, s3, v{vPW}
            v_lshl_add_u32 v{SP+3}, v{u2}, 2, v{vPW}
            v_lshl_add_u32 v{vPW}, v{u2}, 4, v{vPW}
            v_lshrrev_b32 v{u0}, 4, v0     ; g
            s_lshr_b32 s3, s6, 1
            s_lshl_b32 s3, s3, 3
            s_and_b32 s4, s6, 1
            s_lshl_b32 s4, s4, 1
            s_add_u32 s3, s3, s4
            v_and_b32 v{u1}, 1, v{u0}
            v_lshl_add_u32 v{u1}, v{u1}, 2, v{u2}
            v_add_u32 v{u1}, s3, v{u1}     ; n = 8*(w>>1) + 2*(w&1) + (g>>1) + 4*(g&1)
            v_mul_u32_u24 v{vPL}, 80, v{u1}
            v_and_b32 v{u2}, 15, v0        ; d
            v_lshl_add_u32 v{vPR}, v{u2}, 2, v{vPL}
            v_and_b32 v{u3}, 7, v0
            v_mul_u32_u24 v{u3}, 2560, v{u3}
            v_add3_u32 v{vPL}, v{vPL}, v{u3}, 64
            s_lshl_b32 s31, s28, 16
            s_lshl_b32 s33, s6, 13
            s_add_u32 s33, s33, {WS_WOF:#x}
            """)
        elif part == 1:
            a(f"""
            v_and_b32 v{u3}, 7, v{u1}      ; token
            v_lshrrev_b32 v{u1}, 3, v{u1}  ; head_local
            v_mul_u32_u24 v{vOW}, 144, v{u3}
            v_lshl_add_u32 v{vOW}, v{u1}, 5, v{vOW}
            v_lshl_add_u32 v{vOW}, v{u2}, 1, v{vOW}
            v_add_u32 v{vOW}, {L_OB:#x}, v{vOW}
            v_and_b32 v{u3}, 7, v0
            v_mul_u32_u24 v{vOR}, 144, v{u3}
            v_lshl_add_u32 v{vOR}, v{u0}, 4, v{vOR}
            v_add_u32 v{vOR}, {L_OB:#x}, v{vOR}
            {"" if 'nozc' in dbg else f"v_and_b32 v{u1}, 8, v0"}
            {"" if 'nozc' in dbg else f"v_cmp_ne_u32 vcc, 0, v{u1}"}
            {"" if 'nozc' in dbg else f"v_mov_b32 v{u1}, {L_ZC:#x}"}
            {"" if 'nozc' in dbg else f"v_cndmask_b32 v{vOR}, v{vOR}, v{u1}, vcc"}
            v_mov_b32 v{vLM}, 0
            v_lshlrev_b32 v{vFR}, 2, v{u3}
            v_add_u32 v{vFR}, {L_FLG:#x}, v{vFR}
            """)
        else:
            a(f"v_pk_mov_b32 v[{SP}:{SP+1}], 0, 0")
            a(f"v_mov_b32 v{SP+2}, 0xdddddddd")
    def rd_qcm():
        a(f"ds_read_b128 v[{Q}:{Q+3}], v{vQA}")
        for k in range(4):
            a(f"ds_read_b128 v[{CM+4*k}:{CM+4*k+3}], v{vQA} offset:{L_MREF - L_Q}")
        a(f"v_add_u32 v{vQA}, 1024, v{vQA}")
    mf = "v_mfma_f32_32x32x16_bf16"
    def M1(kt, xb):
        if 'nom1' in dbg: a("s_nop 1"); return
        a(f"{mf} v[{X[xb]}:{X[xb]+15}], v[{K+4*kt}:{K+4*kt+3}], v[{Q}:{Q+3}], v[{CM}:{CM+15}]")
    def E(xb, lo, hi):
        for r in range(lo, hi):
            if 'expnop' in dbg:
                a("v_nop"); a("v_nop")
                continue
            if 'noexp' in dbg:
                a(f"v_cvt_pk_bf16_f32 v{X[xb]+r}, 0, v{X[xb]+r}"); a(f"v_cvt_pk_bf16_f32 v{X[xb]+r}, 0, v{X[xb]+r}")
                continue
            a(f"v_exp_f32 v{X[xb]+r}, v{X[xb]+r}")
    def C2(h, xb):
        for k in range(4):
            a(f"v_cvt_pk_bf16_f32 v{SP+4*h+k}, v{X[xb]+8*h+2*k}, v{X[xb]+8*h+2*k+1}")
    def M3(h, kt):
        xb = kt & 1
        if 'nom3' in dbg: a("s_nop 2"); return
        a(f"v_smfmac_f32_32x32x32_bf16 v[{O}:{O+15}], v[{V+8*kt+4*h}:{V+8*kt+4*h+3}], v[{X[xb]+8*h}:{X[xb]+8*h+7}], v{SP+2}")
    def Ozero():
        a(f"v_mfma_f32_32x32x8bf16_1k v[{O}:{O+15}], v[{SP}:{SP+1}], v[{SP}:{SP+1}], 0")
    def part_write():
        a(f"""
        ds_write_b128 v{vPW}, v[{O}:{O+3}]
        ds_write_b128 v{vPW}, v[{O+4}:{O+7}] offset:32
        ds_write_b32 v{SP+3}, v{O+8} offset:64
        """)
    def s1_read():
        a(f"ds_read_b32 v{S1+8}, v{vPL}")
        for k in range(4):
            a(f"ds_read2st64_b32 v[{S1+2*k}:{S1+2*k+1}], v{vPR} offset0:{20*k} offset1:{20*k+10}")
    def s1_calc():
        dp = lambda mod: f"v_add_f32_dpp v{S1+8}, v{S1+8}, v{S1+8} {mod} row_mask:0xf bank_mask:0xf"
        pa = (lambda x, y: f"v_add_f32 v{x}, v{x}, v{y}\nv_add_f32 v{x+1}, v{x+1}, v{y+1}") if 's1sc' in dbg else \
             (lambda x, y: f"v_pk_add_f32 v[{x}:{x+1}], v[{x}:{x+1}], v[{y}:{y+1}]")
        a(f"""
        {dp("quad_perm:[1,0,3,2]")}
        {pa(S1, S1+2)}
        {pa(S1+4, S1+6)}
        {dp("quad_perm:[2,3,0,1]")}
        {pa(S1, S1+4)}
        v_add_f32 v{S1}, v{S1}, v{S1+1}
        {dp("row_half_mirror")}
        v_rcp_f32 v{S1+1}, v{S1+8}
        v_maximum3_f32 v{vLM}, v{vLM}, v{S1+8}, abs(v{S1})
        v_mul_f32 v{S1}, v{S1}, v{S1+1}
        v_cvt_pk_bf16_f32 v{S1}, v{S1}, v{S1}
        ds_write_b16 v{vOW}, v{S1}
        """)
    def s2_read():
        for s in range(2):
            a(f"ds_read_b128 v[{BF+4*s}:{BF+4*s+3}], v{vOR} offset:{64*s}")
    def s2_mma(lo, hi):
        for u in range(lo, hi):
            s, t = u >> 2, u & 3
            a(f"v_mfma_f32_16x16x32_bf16 v[{OA+4*t}:{OA+4*t+3}], v[{WF+4*u}:{WF+4*u+3}], v[{BF+4*s}:{BF+4*s+3}], v[{OA+4*t}:{OA+4*t+3}]")
    def wf_load(lo, hi):
        if lo == 0:
            a("s_add_u32 s34, s33, s31")
            a("s_add_u32 s35, s34, 4096")
            a("s_add_u32 s31, s31, 0x10000")
            a("s_and_b32 s31, s31, 0x7ffff")
        for u in range(lo, hi):
            a(f"buffer_load_dwordx4 v[{WF+4*u}:{WF+4*u+3}], v{vWL}, s[8:11], s{34 + (u >> 2)} offen offset:{1024*(u&3)}{'' if 'wfpl' in dbg else ' nt' if 'wfnt' in dbg else SC}")
            vm.issue("WF")
    def ffn_prefetch():
        a(f"""
        s_mov_b32 s39, s6
        s_cmp_eq_u32 s39, 1
        s_cselect_b64 s[36:37], s[64:65], s[62:63]
        s_cmp_eq_u32 s39, 2
        s_cselect_b64 s[36:37], s[66:67], s[36:37]
        """)
        srd(a, 12, 36, 37, 512 * 1792 * 2)
        a(f"""
        s_and_b32 s3, s2, 7
        s_lshr_b32 s4, s2, 3
        s_mul_i32 s5, s4, {16*3584}
        s_mul_i32 s36, s3, 448
        s_and_b32 s36, s36, 0xffffff80
        s_add_u32 s5, s5, s36
        s_lshl_b32 s36, s3, 7
        s_mul_i32 s37, s4, {56*1024}
        s_add_u32 s36, s36, s37
        v_lshrrev_b32 v{t0}, 2, v0
        v_mul_u32_u24 v{t0}, 3584, v{t0}
        v_and_b32 v{t1}, 3, v0
        v_lshl_add_u32 v{t0}, v{t1}, 7, v{t0}
        v_min_u32 v{t1}, 55, v0
        v_lshlrev_b32 v{t1}, 10, v{t1}
        s_cmp_eq_u32 s39, 2
        s_cselect_b32 s38, s36, s5
        s_cselect_b64 vcc, -1, 0
        v_cndmask_b32 v{vPA}, v{t0}, v{t1}, vcc
        s_lshl_b32 s39, s6, {PFS}
        s_add_u32 s39, s39, 1
        s_cmp_gt_u32 s6, 2
        s_cselect_b32 s39, 99, s39
        """)
    def ffn_setup():
        a(f"""
        s_and_b32 s3, s2, 7
        s_lshr_b32 s4, s2, 3
        s_and_b32 s5, s6, 1
        s_cmp_eq_u32 s5, 0
        s_cselect_b64 s[36:37], s[62:63], s[64:65]
        s_cmp_lt_u32 s2, 112
        s_cselect_b64 s[36:37], s[36:37], s[66:67]
        """)
        srd(a, 68, 36, 37, 512 * 1792 * 2)
        a(f"""
        s_mul_i32 s76, s3, 14
        s_add_u32 s76, s76, s4           ; fs
        s_lshl_b32 s77, s3, 2
        s_add_u32 s77, s77, s4
        s_sub_u32 s77, s77, 14           ; cb
        s_lshr_b32 s5, s6, 1
        s_mul_i32 s5, s5, {128*3584}
        s_lshl_b32 s36, s76, 5
        s_add_u32 s5, s5, s36
        s_mul_i32 s36, s6, {224*1024}
        s_lshl_b32 s37, s77, 5
        s_add_u32 s36, s36, s37
        s_cmp_lt_u32 s2, 112
        s_cselect_b32 s72, s5, s36
        s_movk_i32 s73, 1024
        s_cselect_b32 s73, 3584, s73
        s_cselect_b32 s75, 4, 7
        s_cmp_lt_u32 s2, 144
        s_cselect_b32 s75, s75, 0
        s_mul_i32 s74, s6, 7168
        s_add_u32 s74, s74, {L_FW:#x}
        v_lshrrev_b32 v{vFS}, 1, v0
        v_mul_lo_u32 v{vFS}, v{vFS}, s73
        v_and_b32 v{t1}, 1, v0
        v_lshl_add_u32 v{vFS}, v{t1}, 4, v{vFS}
        s_lshl_b32 s73, s73, 5
        s_mov_b32 s78, s74
        """)
    def ffn_stage():
        a(f"""
        s_cmp_lt_u32 s29, 4
        s_cbranch_scc1 K2_nost
        """)
        for e in range(2):
            a(f"""
            s_cmp_eq_u32 s75, 0
            s_cbranch_scc1 K2_nost
            s_mov_b32 m0, s78
            s_sub_u32 s75, s75, 1
            buffer_load_dwordx4 v{vFS}, s[68:71], s72 offen lds
            s_add_u32 s78, s78, 1024
            s_add_u32 s72, s72, s73
            """)
        a.label("K2_nost")
    def ffn_issue():
        a(f"""
        s_cmp_lg_u32 s29, s39
        s_cbranch_scc1 K2_nopf
        buffer_load_dword v{vPD}, v{vPA}, s[12:15], s38 offen
        """)
        a.label("K2_nopf")
    def setprio(p):
        if prio: a(f"s_setprio {p}")
    def mref_mma(q, d):
        a(f"{mf} v[{d}:{d+15}], v[{K}:{K+3}], v[{q}:{q+3}], 0")
        a(f"{mf} v[{d+16}:{d+31}], v[{K+4}:{K+7}], v[{q}:{q+3}], 0")
    def mref_max(S):
        a(f"v_max3_f32 v{t0}, v{S}, v{S+1}, v{S+2}")
        for r in range(3, 31, 2):
            a(f"v_max3_f32 v{t0}, v{t0}, v{S+r}, v{S+r+1}")
        a(f"""
        v_max_f32 v{t0}, v{t0}, v{S+31}
        v_mov_b32 v{t1}, v{t0}
        v_permlane32_swap_b32 v{t1}, v{t0}
        v_max_f32 v{t0}, v{t0}, v{t1}
        """)
        for r in range(4): a(f"v_sub_f32 v{S+r}, {f2u(-OFFS):#x}, v{t0}")
        a(f"ds_write_b128 v{t4}, v[{S}:{S+3}] offset:{L_MREF - L_Q}")
    retries = []
    def frag(kind, t): return K + 4 * t if kind == "K" else V + 4 * t
    def vtest(fr):
        r = [frag(*f) for f in fr]
        if len(r) == 1: a(f"v_cmp_eq_u32 vcc, -1, v{r[0]}"); return
        a(f"v_max_u32 v{vPD}, v{r[0]}, v{r[1]}" if len(r) == 2 else f"v_max3_u32 v{vPD}, v{r[0]}, v{r[1]}, v{r[2]}")
        a(f"v_cmp_eq_u32 vcc, -1, v{vPD}")
    def valid(name, fr):
        vtest(fr)
        a(f"s_cbranch_vccnz K2_rt{name}")
        a.label(f"K2_rb{name}")
        retries.append((name, fr))
    def kv_first():
        ldK(0); ldK(1); ldV(0); ldK(2); ldV(1)
    for p in range(3): late_setup(p)
    ffn_prefetch(); ffn_setup()
    a(f"""
    s_lshl_b32 s3, s6, 2
    s_add_u32 s3, s3, {L_FLG:#x}
    v_mov_b32 v{vFW}, s3
    s_movk_i32 s59, {L_Q + 2048:#x}
    s_lshl_b32 s3, s30, 2
    s_or_b32 s3, s3, s6
    s_cmp_lt_u32 s3, 4
    s_cbranch_scc1 K1_comp
    """)
    a.label("K12_join")
    for r in range(0, 16, 2):
        a(f"v_pk_mov_b32 v[{OA+r}:{OA+r+1}], 0, 0")
    a(f"""
    s_min_u32 s3, s75, 4
    s_bfm_b32 s43, s3, 4
    s_sub_u32 s3, s75, s3
    s_bfm_b32 s42, s3, 5
    """)
    def fq_store():
        a(f"""
        v_mov_b32 v{t0}, s58
        s_lshl_b32 s3, s2, 6
        s_lshl_b32 s4, s6, 2
        s_add_u32 s3, s3, s4
        s_add_u32 s3, s3, {WS_FQ:#x}
        s_waitcnt vmcnt(7)
        s_mov_b64 exec, 1
        buffer_store_dword v{t0}, v{SP}, s[8:11], s3 offen sc1
        s_mov_b64 exec, -1
        """)
        vm.issue("FQS")
    if 'lpost' not in dbg:
        a(f"""
        s_cmp_{"lg" if 'l4' in dbg else "lt"}_u32 s6, 4
        s_cbranch_scc1 K2_nb2
        s_cmp_lg_u32 s30, 0
        s_cbranch_scc1 K2_nb2
        s_waitcnt vmcnt(0)
        s_barrier
        """)
        a.label("K2_nb2")
    a(f"""
    ds_write2_b32 v{vFW}, v{SP}, v{SP} offset0:0 offset1:8
    ds_write2_b32 v{vFW}, v{SP}, v{SP} offset0:64 offset1:80
    s_cmp_lg_u32 s30, 0
    s_cbranch_scc1 K2_safe
    s_cmp_{"eq" if 'onep' in dbg else "ge"}_u32 s6, 4
    s_cbranch_scc1 K2_poller
    s_waitcnt lgkmcnt(0)
    s_barrier
    """)
    st(1, False); st(5, 4)
    if 'amp' in dbg: a('s_memrealtime s[88:89]'); a('s_waitcnt lgkmcnt(0)')
    kv_first()
    if 'fqlate' not in dbg: fq_store()
    a("s_branch K2_go")
    a.label("K2_poller")
    PA, PB = X[0], X[0] + 8
    a(f"""
    v_lshlrev_b32 v{t1}, {FLS}, v0
    s_and_b32 s3, s2, 7
    s_lshl_b32 s3, s3, 14
    s_add_u32 s3, s3, {WS_FL:#x}
    s_add_u32 s4, s3, {64 << FLS}
    s_add_u32 s5, s3, {128 << FLS}
    s_add_u32 s34, s3, {192 << FLS}
    s_mov_b32 s36, 0
    """)
    def fissue(b):
        for k, sr in enumerate(("s3", "s4", "s5", "s34")):
            a(f"buffer_load_dword v{b+k}, v{t1}, s[8:11], {sr} offen sc1")
    def fchk(b):
        for r in range(4): a(f"v_xor_b32 v{b+r}, s58, v{b+r}")
        a(f"""
        v_or3_b32 v{b}, v{b}, v{b+1}, v{b+2}
        v_or_b32 v{b}, v{b}, v{b+3}
        v_cmp_ne_u32 vcc, 0, v{b}
        s_cbranch_vccz K2_sync0
        """)
    if int(OPT.get('fd', 0)): a(f"s_sleep {OPT.get('fd', 0)}")
    if 'fnp' in dbg:
        a.label("K2_fl")
        fissue(PA); a("s_waitcnt vmcnt(0)"); fchk(PA)
        a(f"s_sleep {OPT.get('fsl', 2)}")
    else:
        def kvpf():
            a(f"""
            s_lshr_b32 s35, s2, 3
            s_mul_i32 s35, s35, {2*TS}
            s_add_u32 s35, s35, {WS_KV:#x}
            v_min_u32 v{t0}, 33, v0
            v_lshlrev_b32 v{t0}, 7, v{t0}
            buffer_load_dword v{vPD}, v{t0}, s[8:11], s35 offen sc1
            """)
        if OPT.get('kvpf', '0') == '1': kvpf()
        fissue(PA)
        if OPT.get('kvpf', '0') == '2': kvpf()
        a("s_sleep 3")
        a.label("K2_fl")
        fissue(PB); a("s_waitcnt vmcnt(4)"); fchk(PA)
        fissue(PA); a("s_waitcnt vmcnt(4)"); fchk(PB)
    a(f"""
    s_add_u32 s36, s36, 1
    s_cmp_lt_u32 s36, 0x40000
    s_cbranch_scc1 K2_fl
    """)
    a.label("K2_sync0")
    st(4, 4)
    a(f"""
    s_lshl_b32 s3, s2, 3
    s_or_b32 s3, s3, s6
    s_cmp_lg_u32 s3, 4
    s_cbranch_scc1 K2_sync1
    v_mov_b32 v{t0}, s58
    s_mov_b32 s3, {WS_EP:#x}
    s_mov_b64 exec, 1
    buffer_store_dword v{t0}, v{SP}, s[8:11], s3 offen sc1
    s_mov_b64 exec, -1
    """)
    a.label("K2_sync1")
    vm.q = []; vm.done = -1
    if int(OPT.get('ld', 0)): a(f"s_sleep {OPT['ld']}")
    if 'nopre' not in dbg:
        a("s_mov_b32 s36, 0")
        a.label("K2_pre")
    ALLK = 'allk' in dbg
    kv_first()
    if ALLK:
        keep = list(vm.q)
        for t in range(2, 8):
            if t > 2: ldK(t)
            ldV(t)
        vm.q = keep
    if 'nopre' not in dbg:
        a(f"""
        s_add_u32 s36, s36, 1
        s_waitcnt vmcnt(0)
        v_max3_u32 v{vPD}, v{K}, v{K+4}, v{K+8}
        v_max3_u32 v{vPD}, v{vPD}, v{V}, v{V+4}
        v_max3_u32 v{vPD}, v{vPD}, v{V+8}, v{V+12}
        """)
        if ALLK:
            rest = [K + 4 * t for t in range(3, 8)] + [V + 4 * t for t in range(4, 16)] + [K]
            for k in range(0, len(rest), 2): a(f"v_max3_u32 v{vPD}, v{vPD}, v{rest[k]}, v{rest[k+1]}")
        a(f"""
        v_cmp_eq_u32 vcc, -1, v{vPD}
        s_cbranch_vccz K2_pok
        s_cmp_lt_u32 s36, 0x40000
        s_cbranch_scc1 K2_pre
        """)
        a.label("K2_pok")
    if 'fqlate' not in dbg: fq_store()
    a("s_waitcnt lgkmcnt(0)")
    a("s_barrier")
    st(1, False); st(5, 4)
    a(f"""
    s_cmp_lg_u32 s6, 4
    s_cbranch_scc1 K2_go
    ds_read_b128 v[{Q}:{Q+3}], v{vQA}
    s_waitcnt vmcnt({5 if 'fqlate' in dbg else 6})
    """)
    valid("m", [("K", 0), ("K", 1)])
    a("s_waitcnt lgkmcnt(0)")
    mref_mma(Q, X[0]); mref_max(X[0])
    a("s_branch K2_go")
    a.label("K2_safe")
    S = X[0]
    a(f"""
    v_and_b32 v{t0}, 31, v0
    v_lshlrev_b32 v{S1+4}, 2, v{t0}
    v_add_u32 v{S1+4}, {L_MX:#x}, v{S1+4}
    s_lshl_b32 s3, s44, 7
    v_add_u32 v{S1+5}, s3, v{S1+4}
    v_mov_b32 v{t0}, 0xff800000
    ds_write_b32 v{S1+5}, v{t0}
    s_waitcnt vmcnt(0) lgkmcnt(0)
    s_barrier
    v_mov_b32 v{t1}, v{vQA}
    s_mov_b32 s29, 0
    """)
    a.label("K2_safe_loop")
    a(f"""
    ds_read_b128 v[{BF}:{BF+3}], v{t1}
    v_mov_b32 v{t0}, 0xff800000
    s_waitcnt lgkmcnt(0)
    """)
    for t in range(8):
        a(f"v_mfma_f32_32x32x16_bf16 v[{S}:{S+15}], v[{K+4*t}:{K+4*t+3}], v[{BF}:{BF+3}], 0")
        for r in range(0, 16, 2):
            a(f"v_max3_f32 v{t0}, v{t0}, v{S+r}, v{S+r+1}")
    a(f"""
    ds_max_f32 v{S1+4}, v{t0}
    v_add_u32 v{t1}, 1024, v{t1}
    v_add_u32 v{S1+4}, 128, v{S1+4}
    s_add_u32 s29, s29, 1
    s_cmp_lt_u32 s29, 8
    s_cbranch_scc1 K2_safe_loop
    s_waitcnt lgkmcnt(0)
    s_barrier
    ds_read_b32 v{t0}, v{S1+5}
    s_waitcnt lgkmcnt(0)
    """)
    for r in range(4): a(f"v_sub_f32 v{BF+r}, 0, v{t0}")
    a(f"ds_write_b128 v{t4}, v[{BF}:{BF+3}] offset:{L_MREF - L_Q}")
    a.label("K2_go")
    a("s_waitcnt lgkmcnt(0)")
    a("s_barrier")
    st(2, False)
    rd_qcm()
    if 'fqlate' in dbg: fq_store()
    vm.wait("K0")
    valid("s", [("K", 0)])
    a("s_waitcnt lgkmcnt(0)")
    M1(0, 0)
    a("s_mov_b32 s29, 1")
    P0 = OPT.get('p0', '33322111')
    setprio(int(P0[0]))
    LA = int(OPT.get('la', 0))
    def masked(f):
        if ALLK: a("s_mov_b64 exec, s[80:81]")
        f()
        if ALLK: a("s_mov_b64 exec, -1")
    if ALLK:
        a("s_cmp_lt_u32 s6, 4")
        a("s_cselect_b64 s[80:81], -1, 0")
    def f0():
        for k in range(LA + 1):
            ldK(3 + k); ldV(2 + k)
    masked(f0)
    st(3, False)
    if 'leak' in dbg or 'amp' in dbg: a('s_memrealtime s[94:95]'); a('s_waitcnt lgkmcnt(0)')
    def tile(i, hook):
        xb = i & 1; xn = xb ^ 1
        hook(i, 'a')
        E(xb, 0, 2)
        hook(i, 'm3b')
        E(xb, 2, 5)
        hook(i, 'm1')
        M1((i + 1) & 7, xn)
        hook(i, 0)
        if i == 0:
            E(xb, 5, 12)
            hook(i, 1)
            Ozero()
            E(xb, 12, 16)
            M3(0, i)
            hook(i, 2)
        else:
            E(xb, 5, 8)
            hook(i, 'e1')
            E(xb, 8, 10)
            hook(i, 1)
            M3(0, i)
            hook(i, 2)
            E(xb, 10, 13)
            hook(i, 'e2')
            E(xb, 13, 15)
            hook(i, 'e3')
            E(xb, 15, 16)
    def hook0(i, pos):
        if pos == 'a' and i in (0, 2, 4, 6): st(1 + i // 2, 3)
        if pos == 'a' and i > 0 and P0[i] != P0[i - 1]: setprio(int(P0[i]))
        if pos == 'm3b' and i > 0:
            vm.wait(f"V{i-1}1"); M3(1, i - 1)
        if pos == 'm1':
            if i < 7: vm.wait(f"K{i+1}")
            else: a("s_waitcnt lgkmcnt(0)")
            vm.wait(f"V{i}1")
            valid(str(i), ([("K", i + 1)] if i < 7 else []) + [("V", 2 * i), ("V", 2 * i + 1)])
        if pos == 0:
            def f1():
                if i + 4 + LA <= 7: ldK(i + 4 + LA)
                ldV(i + 3 + LA)
            if i + 3 + LA <= 7: masked(f1)
            if i == 6: wf_load(0, 4)
            if i == 7: wf_load(4, 8)
        QT = int(OPT.get('qt', 1))
        if pos == 'e1' and i == QT:
            a(f"buffer_load_dword v{t0}, v{SP}, s[8:11], s45 offen sc1"); vm.issue("FQ")
        if pos == 'e1' and i == QT + 1:
            vm.wait("FQ")
            a(f"v_cmp_ne_u32 vcc, s58, v{t0}")
            a("s_cbranch_vccnz K2_qspin")
            a.label("K2_qback")
            a(f"buffer_load_dwordx4 v[{BF}:{BF+3}], v{vWL}, s[8:11], s32 offen sc1"); vm.issue("Q")
        if pos == 'e2' and i == int(OPT.get('qw', 4)):
            vm.wait("Q")
            a(f"ds_write_b128 v{t4}, v[{BF}:{BF+3}]")
            mref_mma(BF, WF)
        if pos == 'e1' and i == int(OPT.get('qw', 4)) + 1:
            a("s_cmp_lg_u32 s30, 0")
            a("s_cbranch_scc1 K2_keepm")
            mref_max(WF)
            a.label("K2_keepm")
        if pos == 1:
            if i == 6:
                a("s_waitcnt lgkmcnt(0)"); a("s_barrier"); rd_qcm()
            vm.wait(f"V{i}0")
        if pos == 2 and i == 7:
            vm.wait("V71")
            a(f"""
            v_mov_b32 v{S1+8}, -1
            v_mov_b32 v{S1+9}, -1
            v_lshrrev_b32 v{S1+10}, 1, v{vWL}
            s_add_u32 s3, s7, s6
            s_lshl_b32 s3, s3, 9
            s_add_u32 s3, s3, {WS_H:#x}
            buffer_store_dwordx2 v[{S1+8}:{S1+9}], v{S1+10}, s[8:11], s3 offen sc1
            """)
            if 'tw' in dbg.split(','):
                a(f"""
                s_lshl_b32 s3, s7, 10
                buffer_load_dword v{SP+7}, v{vWL}, s[24:27], 0 offen
                buffer_load_dword v{SP+7}, v{SP}, s[20:23], s3 offen sc1
                """)
    for i in range(8): tile(i, hook0)
    st(5, 3)
    jitter(a, dbg, 7, 's6', 1)
    a.raw(".p2align 3")
    a.label("K2_round")
    spins = []
    def poll(off):
        if 'xchk' in dbg: return
        a(f"ds_read_b32 v{vFV}, v{vFR} offset:{off}")
    def check(off):
        if 'xchk' in dbg: return
        k = len(spins); spins.append(off)
        a(f"""
        s_waitcnt lgkmcnt(0)
        v_cmp_gt_u32 vcc, s59, v{vFV}
        s_cbranch_vccnz K2_spin{k}
        """)
        a.label(f"K2_back{k}")
    PR = dict(x.split('=') for x in dbg.split(',') if '=' in x).get('pr', 'c')
    def hook(i, pos):
        if pos == 'm3b': M3(1, (i - 1) & 7)
        if pos == 'm1' and i == 7: a("s_waitcnt lgkmcnt(0)")
        if pos == 1 and i == 6: rd_qcm()
        if 'nohook' in dbg: return
        if 'bar' in dbg.split(','):
            if pos == 'a' and i in (0, 6, 7): setprio({6: 2, 7: 1, 0: 0}[i])
            if i == 0 and pos == 1: part_write()
            if i == 1 and pos == 0:
                a("s_waitcnt lgkmcnt(0)"); a("s_barrier"); setprio(2); s1_read()
            if i == 2 and pos == 0:
                a("s_waitcnt lgkmcnt(0)"); s1_calc(); setprio(1)
            if i == 3 and pos == 0: setprio(0)
            if i == 4 and pos == 0:
                a("s_waitcnt vmcnt(0) lgkmcnt(0)"); a("s_barrier"); setprio(3); s2_read()
            seq = [(4, 'e3'), (5, 'e1'), (5, 'e2'), (5, 'e3'), (6, 'e1'), (6, 'e2'), (6, 'e3'), (7, 'e1')]
        else:
            ca = int(OPT.get('ca', 2)); cb = int(OPT.get('cb', 5)); PT = OPT.get('pt', '10220332')
            slots = [(t, p) for t in range(1, 8) for p in (('a', 'e1', 'e2', 'e3') if cb >= 6 else ('e1', 'e2', 'e3'))]
            if i == 0 and pos == 1:
                if 'xpw' not in dbg: part_write()
                a(f"ds_write_b32 v{vFW}, v{vQA}")
            if i == ca and pos == 0: poll(0)
            if i == ca and pos == 2:
                check(0)
                if 'xs1' not in dbg: s1_read()
            if i == ca + 1 and pos == {'0': 0, '1': 'e1', '2': 'e2', '3': 'a'}[OPT.get('s1p', '3')]:
                a("s_waitcnt lgkmcnt(0)")
                if 'xs1' not in dbg: s1_calc()
                a(f"ds_write_b32 v{vFW}, v{vQA} offset:32")
            if i == cb - 1 and pos == 2: poll(32)
            if i == cb and pos == 'm1':
                check(32); s2_read(); a("s_waitcnt vmcnt(0)")
            if i == int(OPT.get('stp', 2)) and pos == 'e1' and 'nopf' not in dbg:
                a("s_bitcmp1_b32 s43, s29"); a("s_cbranch_scc1 K2_stg"); a.label("K2_stgb")
            if len(PT) == 8: PT = "".join(ch * 2 for ch in PT)
            for hpos, k in (('a', 2 * i), (2, 2 * i + 1)):
                if pos == hpos and PT[k] != PT[k - 1]: setprio(int(PT[k]))
            av = [x for x in slots if x > (cb, 'e1')]
            if OPT.get('sp', '0') == '1' and len(av) >= 12: av = [x for x in av if x[1] != 'e3']
            seq = av[:8]
            while len(seq) < 8: seq = sorted(seq + [seq[len(seq) % len(av)]])
        for u in [k for k, x in enumerate(seq) if x == (i, pos)]:
            if u == 0: a("s_waitcnt lgkmcnt(0)")
            if 'xmma' not in dbg: s2_mma(u, u + 1)
            if 'nowf' not in dbg: wf_load(u, u + 1)
            if u == 7 and 'nopf' not in dbg and PFP == 1:
                a("s_cmp_eq_u32 s29, s39"); a("s_cbranch_scc1 K2_side"); a.label("K2_sideb")
    for i in range(8): tile(i, hook)
    if 'rndst' in dbg:
        a(f"""
        s_memtime s[82:83]
        s_memrealtime s[100:101]
        s_waitcnt lgkmcnt(0)
        s_lshl_b32 s84, s2, 3
        s_add_u32 s84, s84, s6
        s_lshl_b32 s84, s84, 3
        s_add_u32 s84, s84, s29
        s_lshl_b32 s84, s84, 3
        s_add_u32 s84, s84, {WS_STAMP + 0x40000:#x}
        s_mov_b64 exec, 1
        v_mov_b32 v{S1+8}, s82
        v_mov_b32 v{S1+9}, s100
        v_mov_b32 v{S1+10}, 0
        buffer_store_dwordx2 v[{S1+8}:{S1+9}], v{S1+10}, s[8:11], s84 offen
        s_mov_b64 exec, -1
        """)
    a(f"""
    s_addk_i32 s59, 1024
    s_add_u32 s29, s29, 1
    s_cmp_lt_u32 s29, 8
    s_cbranch_scc1 K2_round
    """)
    jitter(a, dbg, 6, 's6', 1)
    st(4, False); st(0, True)
    if 'amp' in dbg: a('s_memrealtime s[98:99]'); a('s_waitcnt lgkmcnt(0)')
    M3(1, 7)
    XR = CM; WR = CM + 4; HV = X[0]; HN = X[0] + 8; PK = X[1]; ST = X[1] + 8
    a(f"""
    s_add_u32 s3, s7, s6
    s_lshl_b32 s4, s3, 10
    buffer_load_dwordx4 v[{XR}:{XR+3}], v{vWL}, s[16:19], s4 offen
    buffer_load_dwordx4 v[{WR}:{WR+3}], v{vWL}, s[24:27], 0 offen
    """)
    if 'oldtail' not in dbg: part_write()
    a(f"""
    v_and_b32 v{t0}, 7, v0
    v_mul_u32_u24 v{t0}, 1040, v{t0}
    v_lshrrev_b32 v{t1}, 4, v0
    v_lshl_add_u32 v{t0}, v{t1}, 3, v{t0}
    s_lshl_b32 s5, s6, 7
    s_add_u32 s5, s5, {L_HB:#x}
    v_add_u32 v{t0}, s5, v{t0}
    s_mul_i32 s5, s6, 1040
    s_add_u32 s5, s5, {L_HB:#x}
    v_add_u32 v{t1}, s5, v{vWL}
    s_lshl_b32 s35, s6, 2
    s_add_u32 s35, s35, {L_KEY:#x}
    v_mov_b32 v{t4}, s35
    v_and_b32 v{t3}, 7, v0
    v_lshlrev_b32 v{t3}, 2, v{t3}
    v_add_u32 v{t3}, {L_KEY:#x}, v{t3}
    """)
    if 'oldtail' in dbg: part_write()
    a("s_waitcnt lgkmcnt(0)"); a("s_barrier"); st(1, True); s1_read()
    a("s_waitcnt lgkmcnt(0)"); s1_calc()
    a(f"""
    v_mov_b32 v{t2}, {f2u(2.0**124):#x}
    v_cmp_nlt_f32 vcc, v{vLM}, v{t2}
    s_cmp_lg_u64 vcc, 0
    s_cselect_b32 s5, 1, 0
    v_mov_b32 v{t2}, s5
    ds_write_b32 v{t4}, v{t2} offset:32
    """)
    a("s_waitcnt vmcnt(2) lgkmcnt(0)"); a("s_barrier"); st(2, True); s2_read()
    a(f"ds_read_b32 v{t2}, v{t3} offset:32")
    a("s_waitcnt lgkmcnt(1)"); s2_mma(0, 8)
    a(f"""
    s_waitcnt lgkmcnt(0)
    v_cmp_ne_u32 vcc, 0, v{t2}
    s_cmp_eq_u64 vcc, 0
    s_cbranch_scc1 K2_good
    s_cmp_lg_u32 s30, 0
    s_cbranch_scc1 K2_good
    s_mov_b32 s30, 1
    s_waitcnt vmcnt(0)
    s_setprio 0
    s_branch K2_restart
    """)
    a.label("K2_good")
    a("s_mov_b32 exec_lo, 0x00ff00ff"); a("s_mov_b32 exec_hi, 0x00ff00ff")
    for t in range(4):
        a(f"v_cvt_pk_bf16_f32 v{S1+2*t}, v{OA+4*t}, v{OA+4*t+1}")
        a(f"v_cvt_pk_bf16_f32 v{S1+2*t+1}, v{OA+4*t+2}, v{OA+4*t+3}")
        a(f"ds_write_b64 v{t0}, v[{S1+2*t}:{S1+2*t+1}] offset:{32*t}")
    a("s_mov_b64 exec, -1")
    a("s_waitcnt vmcnt(0)")
    for r in range(4):
        a(f"v_lshlrev_b32 v{HV+2*r}, 16, v{XR+r}")
        a(f"v_and_b32 v{HV+2*r+1}, 0xffff0000, v{XR+r}")
        if 'oldtail' in dbg:
            a(f"v_lshlrev_b32 v{WF+2*r}, 16, v{WR+r}")
            a(f"v_and_b32 v{WF+2*r+1}, 0xffff0000, v{WR+r}")
    a(f"""
    s_waitcnt lgkmcnt(0)
    s_barrier
    """)
    st(3, True)
    a(f"""
    ds_read_b128 v[{BF}:{BF+3}], v{t1}
    s_waitcnt lgkmcnt(0)
    """)
    for r in range(4):
        a(f"v_lshlrev_b32 v{HN+2*r}, 16, v{BF+r}")
        a(f"v_and_b32 v{HN+2*r+1}, 0xffff0000, v{BF+r}")
    P2 = lambda b, r: f"v[{b+r}:{b+r+1}]"
    for r in range(0, 8, 2): a(f"v_pk_add_f32 {P2(HV,r)}, {P2(HV,r)}, {P2(HN,r)}")
    for r in range(8): a(f"v_cvt_pk_bf16_f32 v{HV+r}, 0, v{HV+r}")
    SA, SB = S1, S1 + 2
    a(f"v_pk_add_f32 {P2(SA,0)}, {P2(HV,0)}, {P2(HV,2)}")
    a(f"v_pk_mul_f32 {P2(SB,0)}, {P2(HV,0)}, {P2(HV,0)}")
    a(f"v_pk_add_f32 {P2(SA,4)}, {P2(HV,4)}, {P2(HV,6)}")
    a(f"v_pk_fma_f32 {P2(SB,0)}, {P2(HV,2)}, {P2(HV,2)}, {P2(SB,0)}")
    a(f"v_pk_add_f32 {P2(SA,0)}, {P2(SA,0)}, {P2(SA,4)}")
    a(f"v_pk_fma_f32 {P2(SB,0)}, {P2(HV,4)}, {P2(HV,4)}, {P2(SB,0)}")
    a(f"v_add_f32 v{t0}, v{SA}, v{SA+1}")
    a(f"v_pk_fma_f32 {P2(SB,0)}, {P2(HV,6)}, {P2(HV,6)}, {P2(SB,0)}")
    a(f"v_add_f32 v{t2}, v{SB}, v{SB+1}")
    wave_sum(a, [t0, t2], [ST, ST + 1])
    ln_scalars(a, t0, t2, ST, ST + 2, ST + 1, ST + 3)
    st(4, True)
    for r in range(0, 8, 2): a(f"v_pk_add_f32 {P2(HN,r)}, {P2(HV,r)}, {P2(ST,0)} op_sel_hi:[1,0] neg_lo:[0,1] neg_hi:[0,1]")
    for r in range(8): a(f"v_cvt_pk_bf16_f32 v{HN+r}, 0, v{HN+r}")
    for r in range(0, 8, 2): a(f"v_pk_mul_f32 {P2(HN,r)}, {P2(HN,r)}, {P2(ST,2)} op_sel_hi:[1,0]")
    if 'oldtail' in dbg:
        for r in range(8): a(f"v_cvt_pk_bf16_f32 v{HN+r}, 0, v{HN+r}")
        a(f"v_pk_mul_f32 {P2(SA,0)}, {P2(HN,0)}, {P2(WF,0)}")
        for r in range(2, 8, 2): a(f"v_pk_fma_f32 {P2(SA,0)}, {P2(HN,r)}, {P2(WF,r)}, {P2(SA,0)}")
        a(f"v_add_f32 v{t2}, v{SA}, v{SA+1}")
        fill = [f"v_pk_add_f32 {P2(WF+8,r)}, {P2(HV,r)}, {P2(HN,r)}" for r in range(0, 8, 2)]
        fill += [f"v_cvt_pk_bf16_f32 v{PK+4+r}, v{HV+2*r}, v{HV+2*r+1}" for r in range(4)]
        fill += [f"v_cvt_pk_bf16_f32 v{ST+4+r}, v{HN+2*r}, v{HN+2*r+1}" for r in range(4)]
        late = []
    else:
        for r in range(4): a(f"v_cvt_pk_bf16_f32 v{ST+4+r}, v{HN+2*r}, v{HN+2*r+1}")
        a(f"v_dot2_f32_bf16 v{t2}, v{ST+4}, v{WR}, 0")
        for r in range(1, 4): a(f"v_dot2_f32_bf16 v{t2}, v{ST+4+r}, v{WR+r}, v{t2}")
        fill = []
        for r in range(4):
            fill += [f"v_lshlrev_b32 v{HN+2*r}, 16, v{ST+4+r}", f"v_and_b32 v{HN+2*r+1}, 0xffff0000, v{ST+4+r}"]
        fill += [f"v_pk_add_f32 {P2(WF+8,r)}, {P2(HV,r)}, {P2(HN,r)}" for r in range(0, 8, 2)]
        late = [f"v_cvt_pk_bf16_f32 v{PK+4+r}, v{HV+2*r}, v{HV+2*r+1}" for r in range(4)]
        a(late.pop(0))
    for mod in ("quad_perm:[1,0,3,2]", "quad_perm:[2,3,0,1]", "row_half_mirror", "row_mirror"):
        a(fill.pop(0)); a(fill.pop(0))
        a(f"v_add_f32_dpp v{t2}, v{t2}, v{t2} {mod} row_mask:0xf bank_mask:0xf")
    for w in (16, 32):
        a(f"v_mov_b32 v{t0}, v{t2}")
        a(fill.pop(0)); a(fill.pop(0))
        a(f"v_permlane{w}_swap_b32 v{t0}, v{t2}")
        a(f"v_add_f32 v{t2}, v{t2}, v{t0}")
    if 'leak' in dbg:
        a(f"""
        s_cmp_lg_u32 s3, 0
        s_cbranch_scc1 K2_leak
        s_memrealtime s[92:93]
        v_mov_b32 v{S1+4}, 0
        s_mov_b32 s5, {WS_SEL:#x}
        buffer_load_dwordx4 v[{S1}:{S1+3}], v{S1+4}, s[8:11], s5 offen
        s_waitcnt vmcnt(0) lgkmcnt(0)
        s_mov_b64 exec, 1
        v_add_f32 v{WF+8}, {f2u(64.0):#x}, v{WF+8}
        v_sub_u32 v{WF+9}, v{S1+2}, v{S1}
        v_sub_u32 v{WF+10}, v{S1+1}, v{S1}
        v_sub_u32 v{WF+11}, s90, v{S1}
        v_sub_u32 v{WF+12}, s94, v{S1}
        v_sub_u32 v{WF+13}, s92, v{S1}
        """)
        for r in range(9, 14):
            a(f"v_cvt_f32_u32 v{WF+r}, v{WF+r}")
            a(f"v_mul_f32 v{WF+r}, {f2u(0.005):#x}, v{WF+r}")
            a(f"v_min_f32 v{WF+r}, {f2u(20.0):#x}, v{WF+r}")
        a("s_mov_b64 exec, -1")
        a.label("K2_leak")
    a(f"""
    v_cvt_pk_bf16_f32 v{t2}, 0, v{t2}
    v_ashrrev_i32 v{t0}, 31, v{t2}
    v_or_b32 v{t0}, 0x80000000, v{t0}
    v_xor_b32 v{t2}, v{t2}, v{t0}
    v_and_b32 v{t2}, 0xffff0000, v{t2}
    s_sub_u32 s5, 0xffff, s3
    v_or_b32 v{t2}, s5, v{t2}      ; key
    ds_write_b32 v{t4}, v{t2}
    """)
    for r in range(4): a(f"v_cvt_pk_bf16_f32 v{PK+r}, v{WF+8+2*r}, v{WF+8+2*r+1}")
    a(f"""
    buffer_store_dwordx4 v[{PK}:{PK+3}], v{vWL}, s[20:23], s4 offen sc1
    """)
    for ins in late: a(ins)
    for r in range(4):
        a(f"v_min_u32 v{PK+4+r}, -2, v{PK+4+r}")
        a(f"v_min_u32 v{ST+4+r}, -2, v{ST+4+r}")
    a(f"""
    s_waitcnt lgkmcnt(0)
    s_barrier
    ds_read_b32 v{t1}, v{t3}
    s_waitcnt lgkmcnt(0)
    v_cmp_gt_u32 vcc, v{t1}, v{t2}
    v_cmp_eq_u32 s[36:37], v{t1}, v{t2}
    s_and_b32 s38, vcc_lo, 0xff
    s_bcnt1_i32_b32 s38, s38       ; rank
    """)
    st(5, False); st(5, True); st(0, 2); st(1, 2); st(2, 2); st(3, 2); st(4, 2); st(5, 2)
    if 'jit' in dbg:
        a("s_cmp_lg_u32 s38, 1"); a("s_cbranch_scc1 JITR"); a("s_sleep 100"); a("s_sleep 100"); a("s_sleep 100"); a("s_sleep 100"); a("s_sleep 100"); a("s_sleep 100"); a.label("JITR")
    a(f"""
    s_cmp_gt_u32 s38, 1
    s_cbranch_scc1 K2_pub
    s_lshl_b32 s34, s7, 9
    s_lshl_b32 s5, s38, 11
    s_add_u32 s34, s34, s5
    s_add_u32 s34, s34, {WS_H:#x}
    buffer_store_dwordx4 v[{ST+4}:{ST+7}], v{vWL}, s[8:11], s34 offen sc1
    s_cmp_lg_u32 s38, 0
    s_cbranch_scc1 K2_pub0
    v_cndmask_b32 v{ST+1}, v{t1}, 0, s[36:37]
    v_mov_b32 v{ST}, v{t2}
    s_lshl_b32 s5, s2, {G.KS_LOG}
    s_add_u32 s5, s5, {WS_KEY:#x}
    v_lshlrev_b32 v{t0}, 14, v0
    """)
    for mod in ("quad_perm:[1,0,3,2]", "quad_perm:[2,3,0,1]", "row_half_mirror"):
        a(f"v_max_u32_dpp v{ST+1}, v{ST+1}, v{ST+1} {mod} row_mask:0xf bank_mask:0xf")
    a(f"""
    v_xor_b32 v{ST+1}, 0x800, v{ST+1}
    s_mov_b64 exec, {0xff if KREP else 1}
    buffer_store_dwordx2 v[{ST}:{ST+1}], v{t0}, s[8:11], s5 offen sc1
    s_mov_b64 exec, -1
    """)
    a.label("K2_pub0")
    if 'jit' in dbg:
        for _ in range(8): a("s_sleep 100")
    a(f"""
    s_waitcnt vmcnt(0)
    buffer_store_dwordx4 v[{PK+4}:{PK+7}], v{vWL}, s[8:11], s34 offen offset:1024 sc1
    """)
    a.label("K2_pub")
    if 'amp' in dbg: a('s_memrealtime s[96:97]'); a('s_waitcnt lgkmcnt(0)')
    st(1, 2)
    def fin():
        if G.STAMP: a("s_waitcnt vmcnt(0)")
        stamp(a, 6)
        if G.STAMP: a("s_mov_b32 s91, s30")
        stamp_out(a, 1, 8, "s6", WF)
        a("s_endpgm")
    a(f"""
    s_cmp_ge_u32 s2, 144
    s_cbranch_scc1 K2_fin
    """)
    LEAD = 's6, 0' if 'lead0' in dbg else 's38, 2'
    AFR = V
    KY = K; Y = K + 8; BX = V + 32; AC = K + 16
    a(f"""
    s_setprio 0
    v_bfe_u32 v{t0}, v0, 2, 2
    v_lshrrev_b32 v{t4}, 4, v0           ; g
    v_lshl_add_u32 v{t0}, v{t4}, 3, v{t0}
    v_lshlrev_b32 v{t0}, 5, v{t0}
    v_and_b32 v{t1}, 3, v0
    v_lshl_add_u32 v{t0}, v{t1}, 3, v{t0}
    v_add_u32 v{t0}, s74, v{t0}
    """)
    for sx in range(7):
        for half in range(2):
            d = AFR + 4 * sx + 2 * half
            a(f"ds_read_b64_tr_b16 v[{d}:{d+1}], v{t0} offset:{sx*1024 + half*128}")
    a(f"""
    v_and_b32 v{t3}, 1, v0
    v_lshlrev_b32 v{vPW}, 6, v{t3}
    v_lshl_add_u32 v{vPW}, v{t4}, 4, v{vPW}
    s_lshl_b32 s5, s6, 7
    s_add_u32 s5, s5, {L_RED:#x}
    v_add_u32 v{vPW}, s5, v{vPW}
    v_and_b32 v{vPR}, 31, v0
    v_lshlrev_b32 v{vPR}, 2, v{vPR}      ; (lane&31)*4
    v_lshrrev_b32 v{vOR}, 5, v0
    v_lshl_add_u32 v{vOR}, v{vOR}, 14, v{vPR}
    s_cmp_lg_u32 {LEAD}
    s_cbranch_scc1 K2_nokey
    v_lshlrev_b32 v{t1}, {G.KS_LOG}, v0
    s_and_b32 s5, s2, {7 if KREP else 0}
    s_lshl_b32 s5, s5, 14
    s_add_u32 s5, s5, {WS_KEY:#x}
    s_add_u32 s79, s5, {64 << G.KS_LOG}
    s_add_u32 s80, s5, {128 << G.KS_LOG}
    s_add_u32 s81, s5, {192 << G.KS_LOG}
    s_mov_b32 s36, 0
    """)
    KZ = V + 60 - 8 * 0
    def poll_loop(name, issue, nld):
        K2R = X[0]
        def chk(b):
            a(f"""
            v_min3_u32 v{Y}, v{b}, v{b+1}, v{b+2}
            v_min3_u32 v{Y+1}, v{b+3}, v{b+4}, v{b+5}
            v_min3_u32 v{Y}, v{Y}, v{b+6}, v{b+7}
            v_min_u32 v{Y}, v{Y}, v{Y+1}
            v_cmp_eq_u32 vcc, 0, v{Y}
            """)
        sl = OPT.get('psl', 3)
        issue(KY)
        a(f"s_sleep {sl}")
        a.label(f"{name}_l")
        issue(K2R)
        a(f"s_waitcnt vmcnt({nld})")
        chk(KY)
        a(f"s_cbranch_vccz {name}_ok")
        issue(KY)
        a(f"s_waitcnt vmcnt({nld})")
        chk(K2R)
        a(f"""
        s_cbranch_vccz {name}_ok2
        s_add_u32 s36, s36, 1
        s_cmp_lt_u32 s36, 0x40000
        s_cbranch_scc1 {name}_l
        """)
        a.label(f"{name}_ok2")
        for r in range(0, 8, 2): a(f"v_pk_mov_b32 v[{KY+r}:{KY+r+1}], v[{K2R+r}:{K2R+r+1}], v[{K2R+r}:{K2R+r+1}] op_sel:[0,1]")
        a.label(f"{name}_ok")
    def kissue(b):
        for k, sr in enumerate(("s5", "s79", "s80", "s81")):
            a(f"buffer_load_dwordx2 v[{b+2*k}:{b+2*k+1}], v{t1}, s[8:11], {sr} offen sc1")
    if int(OPT.get('kd', 12)): a(f"s_sleep {OPT.get('kd', 12)}")
    poll_loop("K2_kp", kissue, 4)
    a.label("K2_kok")
    st(2, 2)
    if FS: a("s_mov_b32 s30, s36")
    B1, B2 = Y + 4, Y + 5
    a(f"""
    v_max_u32 v{B1}, v{KY}, v{KY+2}
    v_min_u32 v{B2}, v{KY}, v{KY+2}
    v_max3_u32 v{B2}, v{B2}, v{KY+1}, v{KY+3}
    v_max_u32 v{Y}, v{KY+4}, v{KY+6}
    v_min_u32 v{Y+1}, v{KY+4}, v{KY+6}
    v_max3_u32 v{Y+1}, v{Y+1}, v{KY+5}, v{KY+7}
    v_min_u32 v{Y+2}, v{B1}, v{Y}
    v_max_u32 v{B1}, v{B1}, v{Y}
    v_max3_u32 v{B2}, v{B2}, v{Y+1}, v{Y+2}
    v_mov_b32 v{Y}, v{B1}
    """)
    wave_max_u32(a, Y, Y + 1)
    a(f"""
    v_cmp_eq_u32 vcc, v{B1}, v{Y}
    v_cndmask_b32 v{B1}, v{B1}, v{B2}, vcc
    """)
    wave_max_u32(a, B1, Y + 1)
    a(f"""
    v_readfirstlane_b32 s40, v{Y}
    v_readfirstlane_b32 s41, v{B1}
    s_andn2_b32 s42, 0x7ff, s40
    s_andn2_b32 s43, 0x7ff, s41
    s_lshr_b32 s50, s42, 3
    s_lshr_b32 s51, s43, 3
    s_lshl_b32 s50, s50, 12
    s_lshl_b32 s51, s51, 12
    s_andn2_b32 s52, 0x800, s40
    s_andn2_b32 s53, 0x800, s41
    s_add_u32 s50, s50, s52              ; slot offsets of the two routed rows
    s_add_u32 s51, s51, s53
    s_lshl_b32 s42, s42, 10              ; row byte offsets of the two routed tokens
    s_lshl_b32 s43, s43, 10
    """)
    a.label("K2_nokey")
    a(f"""
    s_cmp_ge_u32 s2, 112
    s_cbranch_scc1 K2_down
    s_cmp_lg_u32 {LEAD}
    s_cbranch_scc1 K2_up1
    s_add_u32 s50, s50, {WS_H:#x}
    s_add_u32 s51, s51, {WS_H:#x}
    s_mov_b32 s36, 0
    """)
    a.label("K2_rows")
    a(f"""
    buffer_load_dwordx4 v[{KY}:{KY+3}], v{vWL}, s[8:11], s50 offen sc1
    buffer_load_dwordx4 v[{KY+4}:{KY+7}], v{vWL}, s[8:11], s51 offen sc1
    s_add_u32 s36, s36, 1
    s_waitcnt vmcnt(1)
    ds_write_b128 v{vWL}, v[{KY}:{KY+3}] offset:{L_XS}
    v_max3_u32 v{Y}, v{KY}, v{KY+1}, v{KY+2}
    s_waitcnt vmcnt(0)
    ds_write_b128 v{vWL}, v[{KY+4}:{KY+7}] offset:{L_XS + 1040}
    v_max3_u32 v{Y+1}, v{KY+3}, v{KY+4}, v{KY+5}
    v_max3_u32 v{Y}, v{Y}, v{KY+6}, v{KY+7}
    v_max_u32 v{Y}, v{Y}, v{Y+1}
    v_cmp_eq_u32 vcc, -1, v{Y}
    s_cbranch_vccz K2_up1
    s_cmp_lt_u32 s36, 0x40000
    s_cbranch_scc1 K2_rows
    """)
    a.label("K2_up1")
    st(3, 2)
    a(f"""
    v_mul_u32_u24 v{t0}, 1040, v{t3}
    v_lshl_add_u32 v{t0}, v{t4}, 4, v{t0}
    s_lshr_b32 s5, s6, 1
    s_lshl_b32 s5, s5, 8
    v_add_u32 v{t0}, s5, v{t0}
    s_waitcnt lgkmcnt(0)
    s_barrier
    """)
    for sx in range(4):
        a(f"ds_read_b128 v[{BX+4*sx}:{BX+4*sx+3}], v{t0} offset:{L_XS + 64*sx}")
    for sx in range(4):
        a(f"s_waitcnt lgkmcnt({3-sx})")
        c = "0" if sx == 0 else f"v[{AC}:{AC+3}]"
        a(f"v_mfma_f32_16x16x32_bf16 v[{AC}:{AC+3}], v[{AFR+4*sx}:{AFR+4*sx+3}], v[{BX+4*sx}:{BX+4*sx+3}], {c}")
    a(f"""
    ds_write_b128 v{vPW}, v[{AC}:{AC+3}]
    s_waitcnt lgkmcnt(0)
    s_barrier
    s_cmp_lg_u32 {LEAD}
    s_cbranch_scc1 K2_fin
    """)
    def red_read():
        a(f"v_add_u32 v{t0}, {L_RED:#x}, v{vPR}")
        a("s_waitcnt vmcnt(0)")
        for k in range(4):
            a(f"ds_read2_b32 v[{KY+2*k}:{KY+2*k+1}], v{t0} offset0:{64*k} offset1:{64*k+32}")
        a("s_waitcnt lgkmcnt(0)")
        a(f"v_pk_add_f32 v[{KY}:{KY+1}], v[{KY}:{KY+1}], v[{KY+2}:{KY+3}]")
        a(f"v_pk_add_f32 v[{KY+4}:{KY+5}], v[{KY+4}:{KY+5}], v[{KY+6}:{KY+7}]")
        a(f"v_pk_add_f32 v[{KY}:{KY+1}], v[{KY}:{KY+1}], v[{KY+4}:{KY+5}]")
    st(4, 2)
    jitter(a, dbg, 5)
    red_read()
    a(f"""
    v_cvt_pk_bf16_f32 v{KY}, 0, v{KY}
    v_cvt_pk_bf16_f32 v{KY+1}, 0, v{KY+1}
    """)
    sigmoid(a, KY + 2, KY, KY + 3)
    a(f"""
    v_mul_f32 v{KY}, v{KY}, v{KY+2}
    v_cvt_pk_bf16_f32 v{KY}, 0, v{KY}
    v_mul_f32 v{KY}, v{KY}, v{KY+1}
    v_cvt_pk_bf16_f32 v{KY}, 0, v{KY}
    v_or_b32 v{KY}, 1, v{KY}
    s_lshl_b32 s5, s76, 7
    s_add_u32 s5, s5, {WS_GU:#x}
    """)
    if GREP:
        for k in range(4):
            a(f"buffer_store_dword v{KY}, v{vOR}, s[8:11], s5 offen sc1")
            if k < 3: a("s_add_u32 s5, s5, 0x8000")
    else:
        a(f"""
        s_mov_b32 exec_hi, 0
        buffer_store_dword v{KY}, v{vPR}, s[8:11], s5 offen sc1
        s_mov_b64 exec, -1
        """)
    a(f"""
    s_branch K2_fin
    """)
    a.label("K2_down")
    HH, NN, GT, OO, RS = Y + 6, Y + 7, AC + 4, AC + 5, AC + 6
    a(f"""
    s_cmp_lg_u32 {LEAD}
    s_cbranch_scc1 K2_dn1
    v_bfe_u32 v{t0}, v0, 4, 1
    v_cmp_eq_u32 vcc, 0, v{t0}
    v_mov_b32 v{t0}, s43
    v_mov_b32 v{t1}, s42
    v_cndmask_b32 v{OO}, v{t0}, v{t1}, vcc
    v_and_b32 v{t0}, 15, v0
    v_lshl_add_u32 v{OO}, v{t0}, 1, v{OO}
    s_lshl_b32 s44, s77, 5
    v_mov_b32 v{t1}, s51
    v_mov_b32 v{RS}, s50
    v_cndmask_b32 v{RS}, v{t1}, v{RS}, vcc
    v_and_b32 v{t0}, 14, v0
    v_lshl_add_u32 v{RS}, v{t0}, 1, v{RS}
    s_add_u32 s52, s44, {WS_H:#x}
    v_mov_b32 v{t0}, s41
    v_mov_b32 v{t1}, s40
    v_cndmask_b32 v{GT}, v{t0}, v{t1}, vcc
    v_and_b32 v{GT}, 0xffff0000, v{GT}
    v_ashrrev_i32 v{t0}, 31, v{GT}
    v_not_b32 v{t0}, v{t0}
    v_or_b32 v{t0}, 0x80000000, v{t0}
    v_xor_b32 v{GT}, v{GT}, v{t0}
    v_and_b32 v{GT}, 0xffff0000, v{GT}
    """)
    sigmoid(a, GT, GT, t0)
    a(f"v_cvt_pk_bf16_f32 v{GT}, 0, v{GT}")
    a.label("K2_dn1")
    a(f"""
    s_mul_i32 s5, s6, 1792
    s_and_b32 s37, s2, {7 if GREP else 0}
    s_lshl_b32 s37, s37, 14
    s_add_u32 s5, s5, s37
    s_add_u32 s5, s5, {WS_GU:#x}
    v_min_u32 v{t1}, 47, v0
    v_lshlrev_b32 v{t1}, 4, v{t1}
    s_lshl_b32 s37, s6, 10
    s_add_u32 s37, s37, {L_GB:#x}
    v_lshrrev_b32 v{t0}, 3, v0
    v_lshlrev_b32 v{vPL}, 5, v{t0}
    v_and_b32 v{t0}, 3, v0
    v_lshl_add_u32 v{vPL}, v{t0}, 3, v{vPL}
    v_bfe_u32 v{t0}, v0, 2, 1
    v_mul_u32_u24 v{t0}, 464, v{t0}
    v_add3_u32 v{vPL}, v{vPL}, v{t0}, s37
    v_mul_u32_u24 v{vOW}, 464, v{t3}
    v_lshl_add_u32 v{vOW}, v{t4}, 4, v{vOW}
    v_add_u32 v{vOW}, s37, v{vOW}
    s_mov_b32 s45, 0x07060302
    s_mov_b32 s36, 0
    """)
    def gissue(b):
        a(f"buffer_load_dwordx4 v[{b}:{b+3}], v{vWL}, s[8:11], s5 offen sc1")
        a(f"buffer_load_dwordx4 v[{b+4}:{b+7}], v{t1}, s[8:11], s5 offen offset:1024 sc1")
    if 'nogb' not in dbg:
        a(f"""
        s_barrier
        s_cmp_lg_u32 {LEAD}
        s_cbranch_scc1 K2_hw
        """)
        a.label("K2_hl")
        a(f"""
        buffer_load_dword v{NN}, v{RS}, s[8:11], s52 offen sc1
        buffer_load_dword v{HH}, v{RS}, s[8:11], s52 offen offset:1024 sc1
        s_add_u32 s36, s36, 1
        s_waitcnt vmcnt(0)
        v_max_u32 v{t0}, v{HH}, v{NN}
        v_cmp_eq_u32 vcc, -1, v{t0}
        s_cbranch_vccz K2_hok
        s_cmp_lt_u32 s36, 0x40000
        s_cbranch_scc1 K2_hl
        """)
        a.label("K2_hok")
        a(f"""
        v_and_b32 v{t0}, 1, v0
        v_lshlrev_b32 v{t0}, 4, v{t0}
        v_lshrrev_b32 v{HH}, v{t0}, v{HH}
        v_lshrrev_b32 v{NN}, v{t0}, v{NN}
        s_mov_b32 s36, 0
        s_sleep {max(int(OPT.get('gd', 28)) - 14, 0)}
        s_branch K2_hx
        """)
        a.label("K2_hw")
        a(f"s_sleep {OPT.get('gd', 28)}")
        a.label("K2_hx")
    poll_loop("K2_gp", gissue, 2)
    a.label("K2_gok")
    st(4, 2)
    a(f"""
    v_perm_b32 v{Y}, v{KY+1}, v{KY}, s45
    v_perm_b32 v{Y+1}, v{KY+3}, v{KY+2}, s45
    v_perm_b32 v{Y+2}, v{KY+5}, v{KY+4}, s45
    v_perm_b32 v{Y+3}, v{KY+7}, v{KY+6}, s45
    ds_write_b64 v{vPL}, v[{Y}:{Y+1}]
    s_mov_b32 exec_hi, 0xffff
    ds_write_b64 v{vPL}, v[{Y+2}:{Y+3}] offset:256
    s_mov_b64 exec, -1
    """)
    for sx in range(7):
        a(f"ds_read_b128 v[{BX+4*sx}:{BX+4*sx+3}], v{vOW} offset:{64*sx}")
    for sx in range(7):
        a(f"s_waitcnt lgkmcnt({6-sx})")
        c = "0" if sx == 0 else f"v[{AC}:{AC+3}]"
        a(f"v_mfma_f32_16x16x32_bf16 v[{AC}:{AC+3}], v[{AFR+4*sx}:{AFR+4*sx+3}], v[{BX+4*sx}:{BX+4*sx+3}], {c}")
    a(f"""
    ds_write_b128 v{vPW}, v[{AC}:{AC+3}]
    s_waitcnt lgkmcnt(0)
    s_barrier
    s_cmp_lg_u32 {LEAD}
    s_cbranch_scc1 K2_fin
    """)
    red_read()
    a(f"""
    v_add_f32 v{KY}, v{KY}, v{KY+1}
    v_lshlrev_b32 v{HH}, 16, v{HH}
    v_lshlrev_b32 v{NN}, 16, v{NN}
    v_cvt_pk_bf16_f32 v{KY}, 0, v{KY}
    v_mul_f32 v{KY}, v{KY}, v{GT}
    v_cvt_pk_bf16_f32 v{KY}, 0, v{KY}
    v_add_f32 v{KY}, v{KY}, v{NN}
    v_cvt_pk_bf16_f32 v{KY}, 0, v{KY}
    v_add_f32 v{KY}, v{KY}, v{HH}
    v_cvt_pk_bf16_f32 v{KY}, v{KY}, v{KY}
    s_mov_b32 exec_hi, 0
    buffer_store_short v{KY}, v{OO}, s[20:23], s44 offen sc1
    s_mov_b64 exec, -1
    """)
    a.label("K2_fin")
    if 'lite' in dbg:
        a(f"""
        s_waitcnt vmcnt(0)
        s_memrealtime s[92:93]
        s_lshl_b32 s3, s2, 3
        s_add_u32 s3, s3, s6
        s_lshl_b32 s3, s3, 3
        s_add_u32 s3, s3, {WS_STAMP:#x}
        s_waitcnt lgkmcnt(0)
        v_mov_b32 v{S1}, s90
        v_mov_b32 v{S1+1}, s92
        s_mov_b64 exec, 1
        buffer_store_dwordx2 v[{S1}:{S1+1}], v{SP}, s[8:11], s3 offen
        """)
    if 'amp' in dbg:
        q = int(OPT['amp'])
        expr = {0: None, 1: ("s83", "s90"), 2: ("s84", "s90"), 3: ("s85", "s90"), 4: ("s86", "s90"), 5: ("s88", "s90"), 6: ("s94", "s90"), 7: ("s98", "s94"), 8: ("s96", "s98")}[q]
        a(f"""
        s_or_b32 s5, s2, s6
        s_cmp_lg_u32 s5, 0
        s_cbranch_scc1 K2_amp_end
        """)
        if expr: a(f"s_sub_u32 s85, {expr[0]}, {expr[1]}")
        else: a("s_mov_b32 s85, 0")
        a(f"""
        s_min_u32 s85, s85, 5000
        s_lshl_b32 s85, s85, 1
        s_add_u32 s85, s85, 600
        s_add_u32 s85, s85, s96
        """)
        a.label("K2_amp")
        a(f"""
        s_memrealtime s[92:93]
        s_waitcnt lgkmcnt(0)
        s_sub_u32 s86, s92, s85
        s_cmp_lt_i32 s86, 0
        s_cbranch_scc1 K2_amp
        """)
        a.label("K2_amp_end")
    if G.STAMP: a("s_waitcnt vmcnt(0)")
    stamp(a, 6)
    if G.STAMP: a("s_mov_b32 s91, s30")
    stamp_out(a, 1, 8, "s6", WF)
    dstamp(a, 1, True, 240)
    a.label("K2_end")
    a("s_endpgm")
    if 'nopf' not in dbg:
        a.label("K2_side")
        a(f"buffer_load_dword v{vPD}, v{vPA}, s[12:15], s38 offen")
        a("s_branch K2_sideb")
        a.label("K2_stg")
        for e in range(2):
            a(f"""
            s_mov_b32 m0, s78
            s_add_u32 s78, s78, 1024
            buffer_load_dwordx4 v{vFS}, s[68:71], s72 offen lds
            s_add_u32 s72, s72, s73
            """)
            if e == 0:
                a("s_bitcmp1_b32 s42, s29"); a("s_cbranch_scc0 K2_stgb")
        a("s_branch K2_stgb")
    for name, fr in retries:
        a.label(f"K2_rt{name}")
        a("s_mov_b32 s36, 0")
        a.label(f"K2_rl{name}")
        for kind, t in fr:
            if kind == "K": a(f"buffer_load_dwordx4 v[{K+4*t}:{K+4*t+3}], v{vWL}, s[8:11], s{50+t} offen sc1")
            else: a(f"buffer_load_dwordx4 v[{V+4*t}:{V+4*t+3}], v{vVL}, s[8:11], s{50+t//2} offen offset:{1024 + 544*(t&1)} sc1")
        a("s_add_u32 s36, s36, 1")
        a("s_waitcnt vmcnt(0)")
        vtest(fr)
        a(f"""
        s_cbranch_vccz K2_rb{name}
        s_cmp_lt_u32 s36, 0x40000
        s_cbranch_scc1 K2_rl{name}
        s_branch K2_rb{name}
        """)
    a.label("K2_qspin")
    a(f"""
    s_mov_b32 s36, 0
    """)
    a.label("K2_qspin1")
    a(f"""
    s_sleep 2
    buffer_load_dword v{t0}, v{SP}, s[8:11], s45 offen sc1
    s_add_u32 s36, s36, 1
    s_waitcnt vmcnt(0)
    v_cmp_ne_u32 vcc, s58, v{t0}
    s_cbranch_vccz K2_qback
    s_cmp_lt_u32 s36, 0x40000
    s_cbranch_scc1 K2_qspin1
    s_branch K2_qback
    """)
    for k, off in enumerate(spins):
        a.label(f"K2_spin{k}")
        a(f"""
        s_sleep 1
        ds_read_b32 v{vFV}, v{vFR} offset:{off}
        s_waitcnt lgkmcnt(0)
        v_cmp_gt_u32 vcc, s59, v{vFV}
        s_cbranch_vccnz K2_spin{k}
        s_branch K2_back{k}
        """)
```

```python
import sys
sys.path.insert(0, "gen")
from gen import *
import gen as G
import kf1, kf1b, kf1c, kf1d, kf1e, kf1f, kf2, kf2c, kf2e, kf2f
from kf1 import L1_TOTAL
from kf2 import gen_p2, L_TOTAL
import argparse
ap = argparse.ArgumentParser()
ap.add_argument("out"); ap.add_argument("--stamp", action="store_true"); ap.add_argument("--dbg", default=""); ap.add_argument("--final", action="store_true")
args = ap.parse_args()
set_stamp(args.stamp)
a = Asm()
old = 'v8' in args.dbg
P1 = kf1b if old else kf1d if 'kvd' in args.dbg else kf1c if 'v12' in args.dbg else kf1f if 'vf' in args.dbg else kf1e
L1_TOTAL = P1.L1_TOTAL
P1.gen_p1(a, dbg=args.dbg)
(kf2 if old else kf2c if ('v12' in args.dbg or 'kvd' in args.dbg) else kf2f if 'vf' in args.dbg else kf2e).gen_p2(a, dbg=args.dbg)
a.fix()
print("align", align8(a))
build([("k1_kernel", a.text(), 256, max(L1_TOTAL, L_TOTAL), 256, 512)], args.out)

if args.final:
    txt = open(args.out).read()
    kn = NAME + "_kernel"
    txt = txt.replace("k1_kernel", kn).replace(f"; @launch kernel={kn} ", "; @launch ")
    doc = """
"""
    txt = txt.replace('.amdgcn_target "amdgcn-amd-amdhsa--gfx950"\n', '.amdgcn_target "amdgcn-amd-amdhsa--gfx950"' + doc, 1)
    open(args.out, "w").write(txt)
```
